```python
import torch

def _softmax(x, axis=-1):
    return torch.softmax(x, dim=axis)

def _gelu(x):
    return torch.nn.functional.gelu(x, approximate='tanh')

def _silu(x):
    return torch.nn.functional.silu(x)

def _sigmoid(x):
    return torch.sigmoid(x)

def _layernorm(x, axis=-1, eps=1e-05):
    m = x.mean(dim=axis, keepdim=True)
    v = x.var(dim=axis, keepdim=True, unbiased=False)
    return (x - m) / torch.sqrt(v + eps)

def _scatter_add(tgt, idx, src, axis=0):
    return tgt.clone().index_add_(axis, idx, src)

def _segment_sum(src, seg, n):
    out = torch.zeros((n,) + src.shape[1:], dtype=src.dtype)
    return out.index_add_(0, seg, src)

def _pad(x, pw):
    flat = tuple((v for pair in reversed(pw) for v in pair))
    return torch.nn.functional.pad(x, flat)
kernel_name = 'gated_mix__ssm_conv_h3__memory_aug_recurrent_mem_tr__prompt'

def setup_inputs():

    _w = lambda a: (lambda t: t.to(torch.bfloat16) if t.is_floating_point() else t)(torch.as_tensor(a))

    def _A_setup():
        B, S, D = (1, 2048, 512)
        ks = 4
        return {'q': _w((lambda *s: torch.randn(*s, dtype=torch.bfloat16) * 0.05)(B, S, D)), 'k': _w((lambda *s: torch.randn(*s, dtype=torch.bfloat16) * 1.6)(B, S, D)), 'v': _w((lambda *s: torch.randn(*s, dtype=torch.bfloat16) * 1.6)(B, S, D)), 'shift_k': _w((lambda *s: torch.randn(*s, dtype=torch.bfloat16) * 1.6)(D, ks) * 0.5), 'ssm_k': _w((lambda *s: torch.randn(*s, dtype=torch.bfloat16) * 1.6)(D, S) * (1.0 / S ** 0.5)), 'ssm_D': _w((lambda *s: torch.randn(*s, dtype=torch.bfloat16) * 1.6)(D))}
    _A_in = _A_setup()

    def _B_setup():
        B, S, Dm = (1, 2048, 512)
        H, Dh = (32, 128)
        M, seg = (8, 32)
        seg = min(seg, S)
        S = S // seg * seg
        return {'x': _w((lambda *s: torch.randn(*s, dtype=torch.bfloat16) * 0.05)(B, S, Dm)), 'mem0': _w((lambda *s: torch.randn(*s, dtype=torch.bfloat16) * 1.6)(B, M, Dm)), 'Wq': _w((lambda *s: torch.randn(*s, dtype=torch.bfloat16) * 0.8)(Dm, H, Dh) * Dm ** (-0.5)), 'Wk': _w((lambda *s: torch.randn(*s, dtype=torch.bfloat16) * 0.8)(Dm, H, Dh) * Dm ** (-0.5)), 'Wv': _w((lambda *s: torch.randn(*s, dtype=torch.bfloat16) * 1.6)(Dm, H, Dh) * Dm ** (-0.5)), 'Wo': _w((lambda *s: torch.randn(*s, dtype=torch.bfloat16) * 1.6)(H, Dh, Dm) * (H * Dh) ** (-0.5)), 'seg_len': seg}
    _B_in = _B_setup()
    return {'A_q': _A_in['q'], 'A_k': _A_in['k'], 'A_v': _A_in['v'], 'A_shift_k': _A_in['shift_k'], 'A_ssm_k': _A_in['ssm_k'], 'A_ssm_D': _A_in['ssm_D'], 'B_x': _B_in['x'], 'B_mem0': _B_in['mem0'], 'B_Wq': _B_in['Wq'], 'B_Wk': _B_in['Wk'], 'B_Wv': _B_in['Wv'], 'B_Wo': _B_in['Wo'], 'B_seg_len': _B_in['seg_len'], 'gate_w': _w((lambda *s: torch.randn(*s, dtype=torch.bfloat16) * 0.05)(512) * 16.0)}

def reference(A_q, A_k, A_v, A_shift_k, A_ssm_k, A_ssm_D, B_x, B_mem0, B_Wq, B_Wk, B_Wv, B_Wo, B_seg_len, gate_w):

    def _A_ref(q, k, v, shift_k, ssm_k, ssm_D):
        B, S, D = q.shape
        ks = shift_k.shape[-1]
        k_pad = _pad(k, ((0, 0), (ks - 1, 0), (0, 0)))
        k_shift = torch.zeros_like(k)
        for t in range(ks):
            k_shift = k_shift + k_pad[:, t:t + S, :] * shift_k[:, ks - 1 - t][None, None, :]
        kv = k_shift * v
        L = 2 * S
        kv_pad = _pad(kv, ((0, 0), (0, S), (0, 0)))
        kf_pad = _pad(ssm_k, ((0, 0), (0, S)))
        kv_f = (lambda x, axes=(-2, -1): torch.fft.rfft2(x.float(), dim=axes))(kv_pad[:, None, :, :], axes=(1, 2))
        kf_f = (lambda x, axes=(-2, -1): torch.fft.rfft2(x.float(), dim=axes))(kf_pad[:, None, :], axes=(1, 2))
        kf_f = (lambda x, *d: x.permute(*d))(kf_f, 1, 2, 0)
        y_f = kv_f * kf_f[None, :, :, :]
        y = (lambda x, s, axes=(-2, -1): torch.fft.irfft2(x, s=s, dim=axes).to(torch.bfloat16))(y_f, (1, L), axes=(1, 2))[:, 0, :S, :]
        y = y + kv * ssm_D[None, None, :]
        return q * y

    def _B_ref(x, mem0, Wq, Wk, Wv, Wo, seg_len):
        B, S, Dm = x.shape
        H, Dh = (Wq.shape[1], Wq.shape[2])
        M = mem0.shape[1]
        scale = Dh ** (-0.5)
        n_seg = S // seg_len
        L = M + seg_len
        idx = torch.arange(L)
        mask = (idx[:, None] < M) | (idx[:, None] >= idx[None, :])
        mem = mem0
        outs = []
        for s in range(n_seg):
            xs = x[:, s * seg_len:(s + 1) * seg_len, :].clone()
            h = torch.concatenate([mem, xs], axis=1)
            q = torch.einsum('btd,dhe->bhte', h, Wq)
            k = torch.einsum('btd,dhe->bhte', h, Wk)
            v = torch.einsum('btd,dhe->bhte', h, Wv)
            scores = torch.einsum('bhqe,bhke->bhqk', q, k) * scale
            scores = torch.where(mask[None, None], scores, -1000000000.0)
            p = _softmax(scores, axis=-1)
            o = torch.einsum('bhqk,bhke->bhqe', p, v)
            o = torch.einsum('bhte,hed->btd', o, Wo)
            mem = o[:, :M, :].clone()
            outs.append(o[:, M:, :])
        return torch.concatenate(outs, axis=1)
    x = A_q
    g = _sigmoid((x * gate_w).sum(-1, keepdims=True))
    a = _A_ref(x, A_k, A_v, A_shift_k, A_ssm_k, A_ssm_D)
    b = _B_ref(x, B_mem0, B_Wq, B_Wk, B_Wv, B_Wo, B_seg_len)
    return g * a + (1 - g) * b
```

```python
import re

class Em:
    def __init__(self):
        self.lines = []
        self.lg = 0
        self.uid = 0
    def __call__(self, s):
        for ln in s.split("\n"):
            ln = ln.strip()
            if not ln: continue
            self.lines.append(ln)
            if ln.startswith("ds_"):
                self.lg += 1
        return self.lg
    def label(self, name):
        self.lines.append(name + ":")
    def newlabel(self, p="L"):
        self.uid += 1
        return f"{p}_{self.uid}"
    def waitlg(self, seq):
        n = self.lg - seq
        assert n >= 0
        n = min(n, 15)
        self(f"s_waitcnt lgkmcnt({n})")
    def nop(self, n):
        while n > 0:
            k = min(n, 16); self(f"s_nop {k-1}"); n -= k
    def text(self):
        out = []
        for ln in self.lines:
            if ln.endswith(":") or ln.startswith("."):
                out.append(ln)
            else:
                out.append("    " + ln)
        return "\n".join(out) + "\n"

def vr(b, n=1, p="v"):
    return f"{p}{b}" if n == 1 else f"{p}[{b}:{b+n-1}]"

_reg = re.compile(r"\b([vas])(\d+)\b|\b([vas])\[(\d+):(\d+)\]")
def regs_of(tok):
    out = set()
    for m in _reg.finditer(tok):
        if m.group(1):
            out.add((m.group(1), int(m.group(2))))
        else:
            for i in range(int(m.group(4)), int(m.group(5)) + 1):
                out.add((m.group(3), i))
    if re.search(r"\bvcc\b", tok): out |= {("s", 106), ("s", 107)}
    if re.search(r"\bexec\b", tok): out |= {("s", 126), ("s", 127)}
    if re.search(r"\bm0\b", tok): out.add(("s", 124))
    return out

TRANS = ("v_exp_", "v_log_", "v_rcp_", "v_rsq_", "v_sqrt_", "v_sin_", "v_cos_")
def parse(ln):
    ln = ln.split(";")[0].strip()
    parts = ln.split(None, 1)
    op = parts[0]
    ops = []
    if len(parts) > 1:
        depth = 0; cur = ""
        for ch in parts[1]:
            if ch == "[": depth += 1
            if ch == "]": depth -= 1
            if ch == "," and depth == 0:
                ops.append(cur.strip()); cur = ""
            else: cur += ch
        ops.append(cur.strip())
    d = dict(op=op, ops=ops, w=set(), r=set(), kind="other", srcc=set(), ab=set())
    def R(i): return regs_of(ops[i].split()[0]) if i < len(ops) and ops[i] else set()
    if op.startswith("v_mfma") or op.startswith("v_smfmac"):
        d["kind"] = "mfma"
        d["w"] = R(0); d["ab"] = R(1) | R(2)
        if op.startswith("v_smfmac"):
            d["srcc"] = R(0); d["ab"] |= R(3)
        else:
            d["srcc"] = R(3)
        d["r"] = d["ab"] | d["srcc"]
        d["passes"] = 8 if "32x32" in op else 4
    elif op.startswith("v_"):
        d["kind"] = "valu"
        if op.startswith("v_cmp"):
            d["w"] = R(0); d["r"] = set().union(*[R(i) for i in range(1, len(ops))])
        elif op.startswith("v_permlane") and "swap" in op:
            d["w"] = R(0) | R(1); d["r"] = R(0) | R(1); d["perm"] = True
        elif op.startswith("v_readfirstlane") or op.startswith("v_readlane"):
            d["w"] = R(0); d["r"] = set().union(*[R(i) for i in range(1, len(ops))]); d["rdlane"] = True
        else:
            d["w"] = R(0); d["r"] = set().union(*[R(i) for i in range(1, len(ops))]) if len(ops) > 1 else set()
            if "_co_" in op and not op.startswith("v_addc") and not op.startswith("v_subb"):
                d["w"] |= R(1)
            if op.startswith("v_fmac") or op.startswith("v_writelane") or "dpp" in ln or op.startswith("v_dot2c"):
                d["r"] |= R(0)
            if op.startswith("v_cndmask") and len(ops) == 3: d["r"] |= {("s",106),("s",107)}
        d["dpp"] = ("_dpp" in op) or ("row_" in ln) or ("quad_perm" in ln) or ("wave_" in ln)
        d["trans"] = op.startswith(TRANS)
    elif op.startswith("ds_"):
        d["kind"] = "ds"
        if "read" in op:
            d["w"] = R(0); d["r"] = R(1)
        else:
            d["r"] = set().union(*[R(i) for i in range(len(ops))])
    elif op.startswith("buffer_") or op.startswith("global_"):
        d["kind"] = "vmem"
        isload = "load" in op and " lds" not in ln
        ret = "atomic" in op and "sc0" in ln
        if op in ("buffer_inv", "buffer_wbl2"):
            pass
        elif isload or ret:
            d["w"] = R(0); d["r"] = set().union(*[R(i) for i in range(1, len(ops))])
        else:
            d["r"] = set().union(*[R(i) for i in range(len(ops))])
            if "store" in op and ("x3" in op or "x4" in op):
                d["wide"] = R(0) if op.startswith("buffer_") else R(1)
        d["lds"] = " lds" in ln
    elif op.startswith("s_"):
        d["kind"] = "salu"
        if op == "s_nop": d["nop"] = int(ops[0]) + 1
        elif op.startswith(("s_cmp", "s_cbranch", "s_branch", "s_waitcnt", "s_barrier", "s_sleep", "s_endpgm", "s_setprio")):
            d["r"] = set().union(*[R(i) for i in range(len(ops))]) if ops else set()
        else:
            d["w"] = R(0); d["r"] = set().union(*[R(i) for i in range(1, len(ops))]) if len(ops) > 1 else set()
    return d

def check_hazards(lines, name=""):
    ins = [(ln, parse(ln)) for ln in lines if not (ln.endswith(":") or ln.startswith(".") or ln.startswith(";"))]
    probs = []
    n = len(ins)
    for i, (ln, a) in enumerate(ins):
        dist = 0
        tcur = 0; tmf = 0 if a["kind"] == "mfma" else None; pmf = a.get("passes", 0)
        for j in range(i + 1, min(n, i + 24)):
            lb, b = ins[j]
            tcur += 4
            if b["kind"] == "mfma":
                if tmf is not None: tcur = max(tcur, tmf + 4 * pmf)
                tmf = tcur; pmf = b["passes"]
            if a["kind"] == "mfma": dist = max(dist, tcur // 4 - 1 - 1)
            tcur += 4 * (b.get("nop", 1) - 1)
            need = 0
            vw = {r for r in a["w"] if r[0] in "va"}
            sw = {r for r in a["w"] if r[0] == "s"}
            if a["kind"] == "mfma":
                p = a["passes"]
                if b["kind"] == "mfma":
                    if vw & b["ab"]: need = max(need, 8 if p == 4 else 12)
                    if vw & b["srcc"]:
                        if not (b["srcc"] == vw and b["passes"] == p): need = max(need, 6 if p == 4 else 10)
                elif b["kind"] in ("valu", "ds", "vmem"):
                    if vw & (b["r"] | b["w"]): need = max(need, 8 if p == 4 else 12)
                if b["kind"] == "valu" and (a["srcc"] & b["w"]): need = max(need, 3 if p == 4 else 7)
            if a["kind"] == "valu":
                if b["kind"] == "mfma" and (vw & b["r"]): need = max(need, 2)
                if b["kind"] == "valu":
                    if b.get("perm") and (vw & b["r"]): need = max(need, 2)
                    if b.get("dpp") and (vw & b["r"]): need = max(need, 2)
                    if b.get("rdlane") and (vw & b["r"]): need = max(need, 1)
                    if a.get("trans") and not b.get("trans") and (vw & b["r"]): need = max(need, 1)
                    if sw & b["r"]: need = max(need, 4 if b.get("rdlane") and False else 2)
                if b["kind"] == "vmem" and (sw & b["r"]): need = max(need, 5)
            if a["kind"] == "vmem" and a.get("wide"):
                if b["kind"] == "valu" and (a["wide"] & b["w"]): need = max(need, 2)
            if a["kind"] == "salu" and ("s", 124) in a["w"]:
                if b["kind"] == "vmem" and b.get("lds"): need = max(need, 1)
            if need > dist:
                probs.append(f"{name}: need {need} have {dist}:\n      {ln}\n   -> {lb}")
            dist += b.get("nop", 1)
            if dist >= 12: break
    return probs
```

```python
from asmlib import Em, vr
from layout import *

S_Q, S_K, S_V, S_SH, S_SSMK, S_SSMD, S_MEM0 = 4, 6, 8, 10, 12, 14, 16
S_WQ, S_WK, S_WV, S_WO, S_GATE, S_OUT, S_DBG, S_WS = 20, 22, 24, 26, 28, 30, 32, 34
R_WS, R_T, R_T2 = 36, 40, 44
S_W, S_XCC, S_GRP, S_H = 48, 49, 50, 51
SPIN_MAX = 1 << 15

def srd(e, r, p, size):
    e(f"s_mov_b32 s{r}, s{p}\ns_mov_b32 s{r+1}, s{p+1}\ns_mov_b32 s{r+2}, {size}\ns_mov_b32 s{r+3}, 0x20000")

def lane_consts(e, c, g, lane="v0"):
    e(f"v_and_b32 {c}, 15, {lane}\nv_lshrrev_b32 {g}, 4, {lane}")

def emit_UB(e, dst, c, b, t):
    e(f"v_lshrrev_b32 {t}, 1, {b}")
    e(f"v_lshl_add_u32 {t}, {t}, 3, {c}")
    e(f"v_and_b32 {t}, 15, {t}")
    e(f"v_lshl_add_u32 {t}, {b}, 4, {t}")
    e(f"v_lshlrev_b32 {dst}, 3, {t}")

IDX, A_RSR, A_AGW, A_AGR, A_TR, A_TRK, A_UW, A_W, A_KX, A_VX, T0, T1, SEL = 0, 1, 2, 3, 4, 5, 6, 7, 8, 9, 10, 11, 12
MEMA, QB, KXA, XT, ACA, ACB = 16, 48, 64, 88, 96, 104
WV0 = 112
S_STEP, S_RSW0, S_RSW1, S_RSR0, S_RSR1, S_AGW, S_AGRST, S_AGR0, S_AGR1 = 52, 53, 54, 55, 56, 57, 58, 59, 60
S_KVG, S_KVL, S_KVM, S_READY, S_SPIN, S_AGSLOT, S_TMP, S_TMP2 = 61, 62, 63, 64, 65, 66, 67, 68
S_M0, S_M1, S_M2 = 70, 72, 74
S_AGM = 76
S_ODD = 78
S_SC = 80
S_CF = 81
S_MODE = 82
S_TAG = 83
S_AGM2 = 74
S_ST = 84

BLOCKS = [("q", J) for J in range(3, 8)] + [("k", J) for J in range(8)] + [("v", J) for J in range(8)] \
       + [("o", (0, p)) for p in range(4)] + [("q", 0), ("q", 1), ("q", 2)] + [("o", (1, p)) for p in range(4)]
NREG = 25
def frag_reg(i):
    if i < 32: return ("a", 8 * i)
    return ("v", WV0 + 8 * (i - 32))
FRAG = {}
for n, (m, J) in enumerate(BLOCKS):
    for t in range(2):
        if n < NREG: FRAG[(m, J, t)] = frag_reg(2 * n + t)
        else: FRAG[(m, J, t)] = ("lds", (n - NREG) * 4096 + t * 2048)
def slot_addr(n):
    s = n % 10
    wl = {5: 0, 6: 1, 7: 2, 8: 3, 9: 4, 0: 5, 1: 6}
    return ("wl", wl[s]) if s in wl else ("ot", s - 2)

def wait_init(e, tag, vt):
    l = e.newlabel("WI"); d = e.newlabel("WID")
    e(f"s_mov_b32 s{S_SPIN}, 0")
    e(f"v_mbcnt_lo_u32_b32 v{vt+1}, -1, 0\nv_mbcnt_hi_u32_b32 v{vt+1}, -1, v{vt+1}\nv_lshlrev_b32 v{vt+1}, 2, v{vt+1}")
    e.label(l)
    e(f"global_load_dword v{vt}, v{vt+1}, s[{S_DBG}:{S_DBG+1}] sc1")
    e(f"s_add_u32 s{S_SPIN}, s{S_SPIN}, 1")
    e("s_waitcnt vmcnt(0)")
    e(f"v_readlane_b32 s{S_TMP}, v{vt}, {DBG_INIT//4}")
    e(f"s_cmp_ge_u32 s{S_TMP}, 256\ns_cbranch_scc1 {d}")
    e("s_sleep 8")
    e(f"s_cmp_lt_u32 s{S_SPIN}, {SPIN_MAX}\ns_cbranch_scc1 {l}")
    e.label(d)

def kv_ready(e, need_sgpr_delta, va, vb):
    l = e.newlabel("KR"); d = e.newlabel("KRD")
    e(f"s_add_u32 s{S_TMP2}, s{S_STEP}, {need_sgpr_delta}")
    e(f"s_cmp_gt_u32 s{S_READY}, s{S_TMP2}\ns_cbranch_scc1 {d}")
    e(f"s_mov_b32 s{S_SPIN}, 0")
    e(f"v_mbcnt_lo_u32_b32 v{vb}, -1, 0\nv_mbcnt_hi_u32_b32 v{vb}, -1, v{vb}\nv_and_b32 v{vb}, 7, v{vb}\nv_lshlrev_b32 v{vb}, 2, v{vb}")
    e(f"s_lshl_b32 s{S_TMP}, s{S_H}, 6")
    e(f"v_add_u32 v{vb}, s{S_TMP}, v{vb}")
    e.label(l)
    e(f"buffer_load_dword v{va}, v{vb}, s[{R_WS}:{R_WS+3}], 0 offen sc1")
    e(f"s_add_u32 s{S_SPIN}, s{S_SPIN}, 1")
    e("s_waitcnt vmcnt(0)")
    e(f"s_mov_b32 s{S_READY}, 1000")
    for g in range(7):
        e(f"v_readlane_b32 s{S_TMP}, v{va}, {g}")
        e(f"s_mul_i32 s{S_TMP}, s{S_TMP}, 7\ns_add_u32 s{S_TMP}, s{S_TMP}, {g}\ns_min_u32 s{S_READY}, s{S_READY}, s{S_TMP}")
    e(f"s_cmp_gt_u32 s{S_READY}, s{S_TMP2}\ns_cbranch_scc1 {d}")
    e("s_sleep 4")
    e(f"s_cmp_lt_u32 s{S_SPIN}, {SPIN_MAX}\ns_cbranch_scc1 {l}")
    e.label(d)

def kv_dma(e):
    out = []
    for i in range(4):
        out.append([f"s_add_u32 m0, s{S_KVL}, {i*4096}", f"s_add_u32 s{S_TMP}, s{S_KVG}, {i*4096}",
                    f"buffer_load_dwordx4 v{A_AGR}, s[{R_WS}:{R_WS+3}], s{S_TMP} offen sc1 lds"])
    return out

def chain_prologue(e):
    e("; ---- chain prologue")
    lane_consts(e, "v16", "v17")
    e("v_and_b32 v18, 3, v0\nv_lshrrev_b32 v19, 2, v0")
    e(f"s_lshl_b32 s{S_TMP}, s{S_H}, 8\ns_lshl_b32 s{S_TMP2}, s{S_W}, 6\ns_add_u32 s{S_TMP}, s{S_TMP}, s{S_TMP2}")
    e(f"v_lshlrev_b32 v20, 13, v19\nv_lshl_add_u32 v20, v18, 4, v20\nv_add_u32 v20, s{S_TMP}, v20")
    e(f"s_lshl_b32 s{S_TMP}, s{S_H}, 17\ns_lshl_b32 s{S_TMP2}, s{S_W}, 8\ns_add_u32 s{S_TMP}, s{S_TMP}, s{S_TMP2}")
    e(f"v_lshlrev_b32 v21, 10, v19\nv_lshl_add_u32 v21, v18, 4, v21\nv_add_u32 v21, s{S_TMP}, v21")
    e("v_and_b32 v22, 1, v17\nv_lshlrev_b32 v22, 5, v22")
    e("v_lshrrev_b32 v23, 1, v17\nv_lshl_add_u32 v22, v23, 2, v22")
    e("v_lshrrev_b32 v23, 3, v16\nv_lshl_add_u32 v22, v23, 4, v22")
    e("v_bfe_u32 v23, v16, 2, 1\nv_add_u32 v22, v22, v23")
    e("v_lshlrev_b32 v22, 6, v22\nv_lshl_add_u32 v22, v18, 3, v22")
    e(f"s_mul_i32 s{S_KVL}, s{S_W}, 28672")
    e(f"s_mul_i32 s{S_KVG}, s{S_W}, 12288\ns_add_u32 s{S_KVG}, s{S_KVG}, {L_KVB}")
    e(f"v_add_u32 v24, s{S_KVL}, v22\nv_add_u32 v25, s{S_KVG}, v22")
    e(f"v_lshl_add_u32 v{A_W}, v0, 4, s{S_KVL}")
    RW = {"q": R_T, "k": R_T2, "v": 84, "o": 88}
    for m, p in (("q", S_WQ), ("k", S_WK), ("v", S_WV), ("o", S_WO)): srd(e, RW[m], p, 0x400000)
    def issue(n):
        m, J = BLOCKS[n]
        kind, k = slot_addr(n)
        base = S_KVL if kind == "wl" else S_KVG
        for i in range(4):
            e(f"s_add_u32 m0, s{base}, {k*4096 + i*1024}")
            if m == "o":
                so = (64 * J[0] + 16 * i) * 1024 + J[1] * 64
                e(f"s_mov_b32 s{S_TMP}, {so}")
                e(f"buffer_load_dwordx4 v21, s[{RW[m]}:{RW[m]+3}], s{S_TMP} offen lds")
            else:
                so = (64 * J + 16 * i) * 8192
                e(f"s_mov_b32 s{S_TMP}, {so}")
                e(f"buffer_load_dwordx4 v20, s[{RW[m]}:{RW[m]+3}], s{S_TMP} offen lds")
    def consume(n, outstanding):
        m, J = BLOCKS[n]
        kind, k = slot_addr(n)
        e(f"s_waitcnt vmcnt({4*outstanding})")
        av = "v24" if kind == "wl" else "v25"
        for t in range(2):
            f = FRAG[(m, J, t)]
            for mm in range(4):
                off = k * 4096 + (8 * (mm // 2) + 2 * (mm % 2)) * 64 + t * 32
                if f[0] == "lds": dst = vr(32 + 8 * t + 2 * mm, 2)
                else: dst = vr(f[1] + 2 * mm, 2, f[0])
                e(f"ds_read_b64_tr_b16 {dst}, {av} offset:{off}")
        e("s_waitcnt lgkmcnt(0)")
        if n >= NREG:
            for t in range(2):
                for hf in range(2):
                    e(f"ds_write_b128 v{A_W}, {vr(32+8*t+4*hf,4)} offset:{k*4096 + t*2048 + hf*1024}")
            e("s_waitcnt lgkmcnt(0)")
    N = len(BLOCKS)
    for n in range(10): issue(n)
    e(f"v_and_b32 v26, 1, v0\nv_cmp_eq_u32 vcc, 1, v26\nv_mov_b32 v27, 0x44444444\nv_mov_b32 v28, 0xeeeeeeee")
    e(f"s_mov_b64 s[{S_ODD}:{S_ODD+1}], vcc")
    e(f"v_cndmask_b32 v29, v27, v28, vcc")
    for r in range(4):
        e(f"v_mov_b32 v{SEL+r}, 0")
    e("v_mov_b32 v27, 0x3f80\nv_mov_b32 v28, 0x3f800000")
    for j in range(8):
        e(f"v_cmp_eq_u32 vcc, {j}, v16\ns_nop 1\nv_cndmask_b32 v{SEL+j//2}, v{SEL+j//2}, v{27+(j%2)}, vcc")
    e(f"s_lshr_b32 s{S_TMP}, s{S_W}, 1\ns_lshl_b32 s{S_TMP}, s{S_TMP}, 12")
    e(f"s_lshl_b32 s{S_TMP2}, s{S_H}, 7\ns_add_u32 s{S_TMP}, s{S_TMP}, s{S_TMP2}")
    e(f"s_and_b32 s{S_TMP2}, s{S_W}, 1\ns_lshl_b32 s{S_TMP2}, s{S_TMP2}, 6\ns_add_u32 s{S_TMP}, s{S_TMP}, s{S_TMP2}")
    e(f"v_lshlrev_b32 v{A_RSR}, 13, v19\nv_lshl_add_u32 v{A_RSR}, v18, 4, v{A_RSR}\nv_add_u32 v{A_RSR}, s{S_TMP}, v{A_RSR}")
    e(f"s_and_b32 s{S_TMP}, s{S_H}, 1\ns_lshl_b32 s{S_TMP}, s{S_TMP}, 3")
    e(f"s_and_b32 s{S_TMP2}, s{S_W}, 1\ns_lshl_b32 s{S_TMP2}, s{S_TMP2}, 2\ns_add_u32 s{S_TMP}, s{S_TMP}, s{S_TMP2}")
    e(f"v_add_u32 v26, s{S_TMP}, v18")
    e(f"s_bfe_u32 s{S_TMP}, s{S_H}, 0x20001\nv_mov_b32 v27, s{S_TMP}")
    emit_UB(e, f"v{A_AGW}", "v26", "v27", "v28")
    e(f"v_and_b32 v26, 1, v17\nv_lshl_add_u32 v{A_AGW}, v26, 9, v{A_AGW}")
    e(f"s_lshr_b32 s{S_TMP}, s{S_W}, 1\ns_lshl_b32 s{S_TMP}, s{S_TMP}, 12")
    e(f"s_lshr_b32 s{S_TMP2}, s{S_H}, 3\ns_lshl_b32 s{S_TMP2}, s{S_TMP2}, 10\ns_add_u32 s{S_TMP}, s{S_TMP}, s{S_TMP2}")
    e(f"v_add_u32 v{A_AGW}, s{S_TMP}, v{A_AGW}")
    e(f"s_mov_b32 s{S_AGM}, 0x000F000F\ns_mov_b32 s{S_AGM+1}, 0\ns_mov_b32 s{S_AGM2}, 0x00FF00FF\ns_mov_b32 s{S_AGM2+1}, 0")
    e(f"v_bfe_u32 v26, v0, 2, 1\nv_lshl_add_u32 v{A_AGW}, v26, 14, v{A_AGW}")
    e(f"s_lshl_b32 s{S_TMP}, s{S_W}, 10\ns_add_u32 s{S_TMP}, s{S_TMP}, {L_MEM}")
    e(f"v_lshl_add_u32 v{A_AGR}, v0, 4, s{S_TMP}")
    emit_UB(e, f"v{A_UW}", "v16", "v17", "v28")
    e(f"v_add_u32 v{A_UW}, s{S_TMP}, v{A_UW}")
    e("v_lshrrev_b32 v26, 2, v16\nv_lshl_add_u32 v26, v17, 2, v26")
    emit_UB(e, f"v{A_TR}", "v26", "v18", "v28")
    e(f"v_add_u32 v{A_TR}, {L_MEM}, v{A_TR}")
    e("v_and_b32 v27, 1, v18\nv_lshlrev_b32 v27, 1, v27\nv_lshrrev_b32 v28, 1, v18\nv_or_b32 v27, v27, v28")
    emit_UB(e, f"v{A_TRK}", "v26", "v27", "v28")
    e(f"v_add_u32 v{A_TRK}, {L_MEM}, v{A_TRK}")
    e(f"v_lshlrev_b32 v{A_KX}, 4, v0\nv_add_u32 v{A_KX}, {L_KVB}, v{A_KX}")
    e(f"v_lshrrev_b32 v26, 1, v17\nv_lshl_add_u32 v26, v26, 4, v16\nv_lshlrev_b32 v26, 4, v26\nv_and_b32 v27, 1, v17\nv_lshl_add_u32 v26, v27, 3, v26")
    e(f"s_lshl_b32 s{S_TMP}, s{S_W}, 11\ns_add_u32 s{S_TMP}, s{S_TMP}, {L_KVB + 8192}\nv_add_u32 v{A_VX}, s{S_TMP}, v26")
    for n in range(N):
        consume(n, min(N - 1 - n, 9))
        if n + 10 < N: issue(n + 10)
    e("s_barrier")
    srd(e, R_T, S_MEM0, 8192)
    e(f"s_lshl_b32 s{S_TMP}, s{S_W}, 8")
    e(f"v_lshlrev_b32 v26, 11, v17\nv_lshl_add_u32 v26, v16, 1, v26\nv_add_u32 v26, s{S_TMP}, v26")
    for u in range(4):
        e(f"buffer_load_ushort v{32+2*u}, v26, s[{R_T}:{R_T+3}], 0 offen offset:{u*64}")
        e(f"buffer_load_ushort v{33+2*u}, v26, s[{R_T}:{R_T+3}], 0 offen offset:{u*64+1024}")
        e(f"buffer_load_ushort v{40+2*u}, v26, s[{R_T}:{R_T+3}], 0 offen offset:{u*64+32}")
        e(f"buffer_load_ushort v{41+2*u}, v26, s[{R_T}:{R_T+3}], 0 offen offset:{u*64+32+1024}")
    e("s_waitcnt vmcnt(0)")
    for r in range(8): e(f"v_lshl_or_b32 v{32+r}, v{40+r}, 16, v{32+r}")
    for u in range(4):
        e(f"ds_write_b64 v{A_UW}, {vr(32+2*u,2)} offset:{(u//2)*4096 + (u%2)*512}")
    e(f"v_mov_b32 v{IDX}, v29")
    e(f"s_mov_b32 s{S_STEP}, 0\ns_mov_b32 s{S_READY}, 0")
    e(f"s_lshl_b32 s{S_TMP}, s{S_H}, 13")
    e(f"s_add_u32 s{S_RSW0}, s{S_TMP}, {WS_RS - L_MEM}\ns_add_u32 s{S_RSW1}, s{S_RSW0}, 4096")
    e(f"s_mov_b32 s{S_RSR0}, {WS_RS}\ns_mov_b32 s{S_RSR1}, {WS_RS + 0x20000}")
    e(f"s_mov_b32 s{S_AGSLOT}, 0\ns_mov_b32 s{S_AGW}, {WS_AG}\ns_mov_b32 s{S_TAG}, 0")
    e(f"s_lshl_b32 s{S_TMP}, s{S_H}, 14\ns_add_u32 s{S_KVG}, s{S_TMP}, {WS_KV - L_MEM}")
    e(f"s_lshl_b32 s{S_TMP}, s{S_W}, 10\ns_add_u32 s{S_KVL}, s{S_TMP}, {L_KVB}")
    e(f"s_lshl_b32 s{S_TMP}, s{S_H}, 13\ns_add_u32 s{S_KVM}, s{S_TMP}, {WS_KVM - L_MEM}")
    e(f"s_lshl_b32 s{S_CF}, s{S_H}, 6\ns_add_u32 s{S_CF}, s{S_CF}, {FL_CFLAG}")
    e(f"s_mov_b32 s{S_SC}, 0x3e0293ee")
    wait_init(e, "c", 32)
    e(f"v_readlane_b32 s{S_MODE}, v32, {DBG_XCC(0)//4}")
    kv_ready(e, 0, 32, 33)
    for grp in kv_dma(e):
        for s in grp: e(s)
    e(f"s_add_u32 s{S_KVG}, s{S_KVG}, 0x80000\ns_xor_b32 s{S_KVL}, s{S_KVL}, 0x3C000")

def interleave(e, mf, fill):
    def run(x):
        for s in x:
            if callable(s): s()
            else: e(s)
    run(fill.get(-1, []))
    for i, m in enumerate(mf):
        if callable(m): m()
        else: e(m)
        run(fill.get(i, []))

def smf(acc, a, f):
    return f"v_smfmac_f32_16x16x64_bf16 {vr(acc,4)}, {vr(a,4)}, {vr(f[1],8,f[0])}, v{IDX}"
def mf32(d, a, b, c):
    return f"v_mfma_f32_16x16x32_bf16 {vr(d,4)}, {vr(a,4)}, {vr(b,4)}, {c if c == '0' else vr(c,4)}"

def preload_q(e):
    for J in range(3):
        for t in range(2):
            r = QB + 8 * (2 * J + t); off = FRAG[("q", J, t)][1]
            e(f"ds_read_b128 {vr(r,4)}, v{A_W} offset:{off}")
            e(f"ds_read_b128 {vr(r+4,4)}, v{A_W} offset:{off+1024}")


def kv_ready_ool(e, tail, va, vb):
    l = e.newlabel("KR"); d = e.newlabel("KRD"); sl = e.newlabel("KRS")
    e(f"s_add_u32 s{S_TMP2}, s{S_STEP}, 1")
    e(f"s_cmp_le_u32 s{S_READY}, s{S_TMP2}\ns_cbranch_scc1 {sl}")
    e.label(d)
    def slow():
        e.label(sl)
        e(f"s_mov_b32 s{S_SPIN}, 0")
        e(f"v_mbcnt_lo_u32_b32 v{vb}, -1, 0\nv_mbcnt_hi_u32_b32 v{vb}, -1, v{vb}\nv_and_b32 v{vb}, 7, v{vb}\nv_lshlrev_b32 v{vb}, 2, v{vb}")
        e(f"s_lshl_b32 s{S_TMP}, s{S_H}, 6")
        e(f"v_add_u32 v{vb}, s{S_TMP}, v{vb}")
        e.label(l)
        e(f"buffer_load_dword v{va}, v{vb}, s[{R_WS}:{R_WS+3}], 0 offen sc1")
        e(f"s_add_u32 s{S_SPIN}, s{S_SPIN}, 1")
        e("s_waitcnt vmcnt(0)")
        e(f"s_mov_b32 s{S_READY}, 1000")
        for g in range(7):
            e(f"v_readlane_b32 s{S_TMP}, v{va}, {g}")
            e(f"s_mul_i32 s{S_TMP}, s{S_TMP}, 7\ns_add_u32 s{S_TMP}, s{S_TMP}, {g}\ns_min_u32 s{S_READY}, s{S_READY}, s{S_TMP}")
        e(f"s_cmp_ge_u32 s{S_READY}, 64\ns_cselect_b32 s{S_READY}, 1000, s{S_READY}")
        e(f"s_cmp_gt_u32 s{S_READY}, s{S_TMP2}\ns_cbranch_scc1 {d}")
        e("s_sleep 4")
        e(f"s_cmp_lt_u32 s{S_SPIN}, {SPIN_MAX}\ns_cbranch_scc1 {l}")
        e(f"s_branch {d}")
    tail.append(slow)

def chain_loop(e, fast, cfg):
    st = "" if fast else " sc1"
    tag_ = "F" if fast else "S"
    WS = f"s[{R_WS}:{R_WS+3}]"
    stamps = cfg.get("stamps", [])
    def S(name):
        if name in stamps:
            i = stamps.index(name); e(f"s_memtime s[{S_ST+2*i}:{S_ST+2*i+1}]")
    def SS(name): return lambda: S(name)
    LOOP, LAST = f"CH{tag_}_LOOP", f"CH{tag_}_LAST"
    tail = []
    seq = {}
    def wt(key): return lambda: e.waitlg(seq[key])
    def fr(m, J, t):
        f = FRAG[(m, J, t)]
        if f[0] == "lds" and m == "q": return ("v", QB + 8 * (2 * J + t))
        return f
    VPUB = KXA + 20
    dma = kv_dma(e)
    if cfg.get("nodma"): dma = [[], [], [], []]
    nopub = cfg.get("nopub")
    preload_q(e)
    for r in range(0, 16, 2): e(f"v_mov_b64 {vr(ACA+r,2)}, 0")
    e("s_waitcnt vmcnt(0) lgkmcnt(0)")
    if cfg.get("gstamp"): e("s_memrealtime s[18:19]")
    e(".p2align 6")
    e.label(LOOP)
    e("s_barrier")
    S("b1")
    def rd_mem(J):
        def f():
            for x in range(2):
                seq[("m", J)] = e(f"ds_read_b64_tr_b16 {vr(MEMA+4*J+2*x,2)}, v{A_TR} offset:{(J%2)*4096 + (J//2)*1024 + x*512}")
        return f
    mq = [smf(ACA + 4 * t, MEMA + 4 * J, fr("q", J, t)) for J in range(8) for t in range(2)]
    flag = [f"v_mov_b32 v{T0}, s{S_STEP}", f"v_mov_b32 v{T1}, s{S_CF}", "s_mov_b64 exec, 1",
            f"buffer_store_dword v{T0}, v{T1}, {WS}, 0 offen sc1", "s_mov_b64 exec, -1"]
    fill = {-1: [rd_mem(0), rd_mem(1), rd_mem(2), rd_mem(3), lambda: kv_ready_ool(e, tail, T0, T1)] + dma[0] + [wt(("m", 0)), SS("m0")],
            0: [rd_mem(4)], 1: [wt(("m", 1))], 2: [rd_mem(5)], 3: [wt(("m", 2))], 4: [rd_mem(6)], 5: [wt(("m", 3))],
            6: [rd_mem(7)], 7: [wt(("m", 4))], 8: dma[1], 9: [wt(("m", 5))], 11: [wt(("m", 6))], 13: [wt(("m", 7))],
            15: dma[2],
            }
    if not nopub: fill[12] = flag
    interleave(e, mq, fill)
    S("q")
    mk = [smf(ACB + 4 * t, MEMA + 4 * J, fr("k", J, t)) for J in range(8) for t in range(2)]
    def post_dup(acc, dst):
        return [f"v_add_f32 v{acc}, v{acc}, v{acc+1}", f"v_add_f32 v{acc+2}, v{acc+2}, v{acc+3}",
                f"v_cvt_pk_bf16_f32 v{dst}, v{acc}, v{acc}", f"v_cvt_pk_bf16_f32 v{dst+1}, v{acc+2}, v{acc+2}"]
    pq = post_dup(ACA, XT + 4) + post_dup(ACA + 4, XT + 6)
    def rd_q(js):
        def f():
            for t in range(2):
                seq[("q", js)] = e(f"ds_read_b64_tr_b16 {vr(QB+4*js+2*t,2)}, v{A_TR} offset:{L_QU-L_MEM + js*1024 + t*512}")
        return f
    kxslot = [0, 1, 2, 3, 4, 5, 0, 1]
    def rd_kx(n):
        js, kt = n // 2, n % 2
        def f(): seq[("kx", n)] = e(f"ds_read_b128 {vr(KXA+4*kxslot[n],4)}, v{A_KX} offset:{(kt*4+js)*1024}")
        return f
    def wr_u(key, r, off):
        def f(): seq[key] = e(f"ds_write_b64 v{A_UW}, {vr(r,2)} offset:{off}")
        return f
    bq = cfg.get("bq", 9)
    fill = {1: pq[0:2], 2: pq[2:4], 3: [wr_u("wq0", XT + 4, L_QU - L_MEM)] + pq[4:6], 4: pq[6:8],
            5: [wr_u("wq1", XT + 6, L_QU - L_MEM + 512)], 6: [rd_kx(0)], 7: [rd_kx(1)], 8: [rd_kx(2)]}
    fill[bq] = fill.get(bq, []) + [wt("wq1"), SS("bq0"), "s_barrier", SS("bq1"), rd_q(0)]
    fill[bq + 1] = [rd_q(1)]; fill[bq + 2] = [rd_q(2)]; fill[bq + 3] = [rd_q(3)]
    fill[bq + 4] = [rd_kx(3), rd_kx(4)]; fill[bq + 5] = [rd_kx(5)] + dma[3]
    interleave(e, mk, fill)
    S("k")
    pk = post_dup(ACB, XT + 4) + post_dup(ACB + 4, XT + 6)
    ms = []
    for js in range(4):
        for kt in range(2):
            n = js * 2 + kt
            ms.append(mf32(ACA + 4 * kt, KXA + 4 * kxslot[n], QB + 4 * js, "0" if js == 0 else ACA + 4 * kt))
    def rd_k(js):
        def f():
            for t in range(2):
                seq[("k", js)] = e(f"ds_read_b64_tr_b16 {vr(KXA+8+4*js+2*t,2)}, v{A_TRK} offset:{L_KU-L_MEM + js*1024 + t*512}")
        return f
    fill = {-1: [wt(("q", 0)), SS("q0")],
            0: [rd_kx(6)], 1: [rd_kx(7)] + pk[0:2] + [wt(("kx", 3))],
            2: pk[2:4], 3: [wr_u("wk0", XT + 4, L_KU - L_MEM)] + pk[4:6] + [wt(("kx", 5))],
            4: pk[6:8], 5: [wr_u("wk1", XT + 6, L_KU - L_MEM + 512), f"v_mov_b64 {vr(ACB,2)}, 0", f"v_mov_b64 {vr(ACB+2,2)}, 0", wt(("kx", 7))],
            6: [f"v_mov_b64 {vr(ACB+4,2)}, 0", f"v_mov_b64 {vr(ACB+6,2)}, 0"],
            }
    interleave(e, ms, fill)
    S("Sx")
    e(f"s_cmp_ge_u32 s{S_STEP}, 63\ns_cbranch_scc1 {LAST}")
    mv = [smf(ACB + 4 * t, MEMA + 4 * J, fr("v", J, t)) for J in range(8) for t in range(2)]
    SM = KXA
    X0, X1 = ACA, ACA + 4
    mx, t2 = KXA + 4, KXA + 5
    e0 = XT
    NV1 = cfg.get("nv1", 9); bk = cfg.get("bk", 1)
    msm = [mf32(SM, KXA + 8 + 4 * js, QB + 4 * js, "0" if js == 0 else SM) for js in range(4)]
    odd = f"s[{S_ODD}:{S_ODD+1}]"
    early = [f"v_max3_f32 v{mx}, v{X0}, v{X0+1}, v{X0+2}", f"v_max3_f32 v{t2}, v{X1}, v{X1+1}, v{X1+2}",
             f"v_max3_f32 v{mx}, v{mx}, v{X0+3}, v{X1+3}", f"v_max_f32 v{mx}, v{mx}, v{t2}",
             f"v_cndmask_b32 v{e0}, v{X0}, v{X0+2}, {odd}", f"v_cndmask_b32 v{e0+1}, v{X0+1}, v{X0+3}, {odd}",
             f"v_cndmask_b32 v{e0+2}, v{X1}, v{X1+2}, {odd}", f"v_cndmask_b32 v{e0+3}, v{X1+1}, v{X1+3}, {odd}"]
    seqm = mv[:NV1] + msm + mv[NV1:]
    PVB0, PVB1, OAC, PA = QB, QB + 8, KXA + 8, KXA + 16
    def rd_vx():
        for t in range(2):
            for hf in range(2):
                seq["vx"] = e(f"ds_read_b64 {vr(QB+8*t+2+4*hf,2)}, v{A_VX} offset:{t*1024 + hf*512}")
    l_, r_ = KXA + 6, KXA + 7
    EE = [e0, e0+1, e0+2, e0+3, T0]
    late = [
        f"v_max3_f32 v{mx}, v{mx}, v{SM}, v{SM+2}",
        f"v_cndmask_b32 v{T0}, v{SM}, v{SM+2}, {odd}",
        f"v_mov_b32 v{t2}, v{mx}", "N2",
        f"v_permlane32_swap_b32 v{mx}, v{t2}",
        f"v_max_f32 v{mx}, v{mx}, v{t2}",
        f"v_mov_b32 v{t2}, v{mx}", "N2",
        f"v_permlane16_swap_b32 v{mx}, v{t2}",
        f"v_max_f32 v{mx}, v{mx}, v{t2}",
        f"v_mul_f32 v{mx}, s{S_SC}, v{mx}",
    ] + [f"v_fma_f32 v{x}, v{x}, s{S_SC}, -v{mx}" for x in EE] \
      + [f"v_exp_f32 v{x}, v{x}" for x in EE] + [
        f"v_add_f32 v{l_}, v{e0}, v{e0+1}", f"v_add_f32 v{r_}, v{e0+2}, v{e0+3}",
        f"v_add_f32 v{l_}, v{l_}, v{T0}", f"v_add_f32 v{l_}, v{l_}, v{r_}", "N2",
        f"v_add_f32_dpp v{l_}, v{l_}, v{l_} quad_perm:[1,0,3,2] row_mask:0xf bank_mask:0xf",
        f"v_mov_b32 v{r_}, v{l_}", "N2",
        f"v_permlane32_swap_b32 v{l_}, v{r_}",
        f"v_add_f32 v{l_}, v{l_}, v{r_}",
        f"v_mov_b32 v{r_}, v{l_}", "N2",
        f"v_permlane16_swap_b32 v{l_}, v{r_}",
        f"v_add_f32 v{l_}, v{l_}, v{r_}",
        f"v_rcp_f32 v{l_}, v{l_}", "N1",
    ] + [f"v_mul_f32 v{x}, v{x}, v{l_}" for x in [T0, e0, e0+1, e0+2, e0+3]] + [
        f"v_cvt_pk_bf16_f32 v{PA}, v{T0}, v{T0}",
        f"v_cvt_pk_bf16_f32 v{PA+1}, v{e0}, v{e0+1}",
        f"v_cvt_pk_bf16_f32 v{PA+3}, v{e0+2}, v{e0+3}",
        f"v_permlane32_swap_b32 v{PA}, v{PA+2}",
    ]
    fill = {bk: [wt("wk1"), SS("bk0"), "s_barrier", SS("bk1"), rd_k(0)], bk + 1: [rd_k(1)], bk + 2: [rd_k(2)], bk + 3: [rd_k(3)]}
    fill[bk + 4] = [f"buffer_store_dwordx4 {vr(XT+4,4)}, v{A_AGR}, {WS}, s{S_KVM} offen sc1"] if not nopub else []
    ei = 0
    for i in range(1, NV1 + 4):
        if i == bk or ei >= len(early): continue
        fill[i] = fill.get(i, []) + early[ei:ei + 1]; ei += 1
    assert ei >= len(early)
    for js in range(4): fill[NV1 + js - 1] = fill.get(NV1 + js - 1, []) + [wt(("k", js))]
    fill[NV1 - 1] = fill[NV1 - 1] + [SS("k0")]
    interleave(e, seqm[:NV1 + 4], fill)
    S("Sm")
    rest = seqm[NV1 + 4:]
    extra = [f"v_mov_b64 {vr(OAC,2)}, 0", f"v_mov_b64 {vr(OAC+2,2)}, 0", f"v_mov_b64 {vr(OAC+4,2)}, 0",
             f"v_mov_b64 {vr(OAC+6,2)}, 0", f"v_mov_b32 v{PA+2}, 0"]
    def rd_wo(T):
        def f():
            off = FRAG[("o", (1, T // 2), T % 2)][1]; r = MEMA + 8 * (T % 4)
            e(f"ds_read_b128 {vr(r,4)}, v{A_W} offset:{off}")
            seq[("wo", T)] = e(f"ds_read_b128 {vr(r+4,4)}, v{A_W} offset:{off+1024}")
        return f
    assert NV1 >= 8
    ri = 0
    def nextv():
        nonlocal ri
        e(rest[ri]); ri += 1
        g = NV1 + ri
        if g == 12: rd_wo(2)()
        if g == 16: rd_wo(3)()
    nextv(); rd_vx(); e(extra[0])
    nextv(); rd_wo(0)(); rd_wo(1)(); e(extra[1])
    xi = 2
    nN = sum(1 for s in late if s == "N2")
    for s in late:
        if s == "N2":
            nN -= 1
            if ri < len(rest):
                nextv()
                if xi < len(extra): e(extra[xi]); xi += 1
                else: e("s_nop 0")
            elif xi < len(extra) - 1:
                e(extra[xi]); e(extra[xi + 1]); xi += 2
            elif xi < len(extra):
                e(extra[xi]); xi += 1; e("s_nop 0")
            else: e("s_nop 1")
        elif s == "N1":
            e("s_nop 0")
        else:
            e(s)
            if s.startswith("v_exp") and ri < len(rest) - (nN - 1):
                nextv()
    assert ri == len(rest) and xi == len(extra), (ri, len(rest), xi)
    S("soft")
    for t in range(2):
        e(f"v_cvt_pk_bf16_f32 v{QB+8*t}, v{ACB+4*t}, v{ACB+4*t+1}")
        e(f"v_cvt_pk_bf16_f32 v{QB+8*t+1}, v{ACB+4*t+2}, v{ACB+4*t+3}")
    e.waitlg(seq["vx"])
    e(f"s_add_u32 s{S_TMP2}, s{S_KVM}, 4096")
    e(f"v_smfmac_f32_16x16x64_bf16 {vr(OAC,4)}, {vr(PA,4)}, {vr(PVB0,8)}, v{IDX}")
    e(f"v_smfmac_f32_16x16x64_bf16 {vr(OAC+4,4)}, {vr(PA,4)}, {vr(PVB1,8)}, v{IDX}")
    WAC = [QB, QB + 4, QB + 8, QB + 12, ACA, ACA + 4, ACB, ACB + 4]
    e(f"v_mov_b64 {vr(VPUB,2)}, {vr(PVB0,2)}\nv_mov_b64 {vr(VPUB+2,2)}, {vr(PVB1,2)}")
    for r in range(0, 6, 2): e(f"v_mov_b64 {vr(ACA+r,2)}, 0")
    e(f"v_add_f32 v{OAC}, v{OAC}, v{OAC+1}\nv_add_f32 v{OAC+2}, v{OAC+2}, v{OAC+3}")
    e(f"v_mov_b64 {vr(ACA+6,2)}, 0")
    e(f"v_add_f32 v{OAC+4}, v{OAC+4}, v{OAC+5}\nv_add_f32 v{OAC+6}, v{OAC+6}, v{OAC+7}")
    e(f"v_cvt_pk_bf16_f32 v{OAC}, v{OAC}, v{OAC+4}\nv_cvt_pk_bf16_f32 v{OAC+1}, v{OAC+2}, v{OAC+6}")
    so = e(f"ds_write_b64 v{A_UW}, {vr(OAC,2)} offset:{L_QU-L_MEM}")
    S("ow")
    if not nopub: e(f"buffer_store_dwordx4 {vr(VPUB,4)}, v{A_AGR}, {WS}, s{S_TMP2} offen sc1")
    for r in range(0, 8, 2): e(f"v_mov_b64 {vr(ACB+r,2)}, 0")
    e.waitlg(so)
    S("bo0")
    e("s_barrier")
    S("bo1")
    OA = KXA
    for J in range(2):
        for x in range(2):
            seq[("oa", J)] = e(f"ds_read_b64_tr_b16 {vr(OA+4*J+2*x,2)}, v{A_TR} offset:{L_QU-L_MEM + (2*J+x)*1024}")
    for r in range(0, 16, 2): e(f"v_mov_b64 {vr(QB+r,2)}, 0")
    mo = []
    for p in range(4):
        for T in (2 * p, 2 * p + 1): mo.append(smf(WAC[T], OA, FRAG[("o", (0, T // 2), T % 2)]))
        for T in (2 * p, 2 * p + 1): mo.append(smf(WAC[T], OA + 4, ("v", MEMA + 8 * (T % 4))))
    RSO = OAC
    def post_pair(p):
        a, b = WAC[2 * p], WAC[2 * p + 1]; d = RSO + 2 * p
        return [f"v_add_f32 v{a}, v{a}, v{a+1}", f"v_add_f32 v{a+2}, v{a+2}, v{a+3}",
                f"v_add_f32 v{b}, v{b}, v{b+1}", f"v_add_f32 v{b+2}, v{b+2}, v{b+3}",
                f"v_cvt_pk_bf16_f32 v{d}, v{a}, v{b}", f"v_cvt_pk_bf16_f32 v{d+1}, v{a+2}, v{b+2}"]
    p0, p1, p2, p3 = [post_pair(p) for p in range(4)]
    def tag(r): return f"v_and_or_b32 v{r}, v{r}, -2, s{S_TAG}"
    fill = {-1: [wt(("oa", 0)), SS("oa")], 1: [wt(("oa", 1))], 2: [rd_wo(4)], 3: [rd_wo(5)],
            5: p0[0:1], 6: [rd_wo(6)] + p0[1:3], 7: [rd_wo(7)] + p0[3:5], 8: p0[5:6] + [tag(RSO)],
            9: p1[0:2] + [wt(("wo", 4))], 10: p1[2:4] + [wt(("wo", 5))], 11: p1[4:6],
            12: [f"buffer_store_dwordx4 {vr(RSO,4)}, v{A_AGR}, {WS}, s{S_RSW0} offen{st}"],
            13: p2[0:2] + [wt(("wo", 6))], 14: p2[2:4] + [wt(("wo", 7))],
            15: p2[4:6] + [tag(RSO + 4), "s_nop 2"] + p3 + [f"buffer_store_dwordx4 {vr(RSO+4,4)}, v{A_AGR}, {WS}, s{S_RSW1} offen{st}"],
            }
    interleave(e, mo, fill)
    S("Wo")
    RP, RED, AGO, AP = MEMA, MEMA + 8, MEMA + 12, MEMA + 16

    for r in range(0, 16, 2): e(f"v_mov_b64 {vr(ACA+r,2)}, 0")
    e(f"v_mov_b64 {vr(AGO,2)}, -1")
    e(f"v_xor_b32 v{A_KX}, 0x3C000, v{A_KX}\nv_xor_b32 v{A_VX}, 0x3C000, v{A_VX}")
    e(f"v_add_u32 v{A_AGW}, 0x2000, v{A_AGW}\nv_subrev_u32 v{T0}, 0x6000, v{A_AGW}\nv_min_u32 v{A_AGW}, v{A_AGW}, v{T0}")
    e(f"s_add_u32 s{S_AGSLOT}, s{S_AGSLOT}, 0x2000\ns_cmp_eq_u32 s{S_AGSLOT}, 0x6000\ns_cselect_b32 s{S_AGSLOT}, 0, s{S_AGSLOT}")
    e(f"s_add_u32 s{S_AGR0}, s{S_AGSLOT}, {WS_AG - L_MEM}\ns_add_u32 s{S_AGR1}, s{S_AGR0}, 4096")
    e(f"s_add_u32 s{S_KVG}, s{S_KVG}, 0x80000\ns_xor_b32 s{S_KVL}, s{S_KVL}, 0x3C000\ns_add_u32 s{S_KVM}, s{S_KVM}, 0x40000")
    e(f"s_add_u32 s{S_STEP}, s{S_STEP}, 1\ns_mov_b32 s{S_SPIN}, 0")
    e.nop(cfg.get("d1", 20))
    P1, P1R, P2, P2R = [e.newlabel(x) for x in ("P1", "P1R", "P2", "P2R")]
    S("rsi")
    e(f"buffer_load_dwordx4 {vr(RP,4)}, v{A_RSR}, {WS}, s{S_RSR0} offen sc1")
    e(f"buffer_load_dwordx4 {vr(RP+4,4)}, v{A_RSR}, {WS}, s{S_RSR1} offen sc1")
    preload_q(e)
    e.label(P1)
    e("s_waitcnt vmcnt(0)")
    e(mf32(RED, SEL, RP, "0"))
    e(f"v_xor_b32 v{T0}, s{S_TAG}, v{RP}\nv_xor_b32 v{T1}, s{S_TAG}, v{RP+4}")
    e(mf32(RED, SEL, RP + 4, RED))
    e(f"v_or_b32 v{T0}, v{T0}, v{T1}\nv_and_b32 v{T0}, 1, v{T0}")
    e(f"v_cmp_ne_u32 vcc, 0, v{T0}\ns_cbranch_vccnz {P1R}")
    e.label(P1 + "_OK")
    S("rs")
    def p1r():
        e.label(P1R)
        e(f"s_add_u32 s{S_SPIN}, s{S_SPIN}, 1\ns_cmp_gt_u32 s{S_SPIN}, {SPIN_MAX}\ns_cbranch_scc1 {P1}_OK")
        e(f"s_mov_b64 exec, vcc\nbuffer_load_dwordx4 {vr(RP,4)}, v{A_RSR}, {WS}, s{S_RSR0} offen sc1")
        e(f"buffer_load_dwordx4 {vr(RP+4,4)}, v{A_RSR}, {WS}, s{S_RSR1} offen sc1")
        e(f"s_mov_b64 exec, -1\ns_branch {P1}")
    tail.append(p1r)
    e(f"s_xor_b32 s{S_TAG}, s{S_TAG}, 1\ns_nop 2")
    for ror in (8, 4):
        for r in range(4):
            e(f"v_add_f32_dpp v{RED+r}, v{RED+r}, v{RED+r} row_ror:{ror} row_mask:0xf bank_mask:0xf")
    e(f"s_mov_b64 exec, s[{S_AGM}:{S_AGM+1}]")
    e(f"v_cvt_pk_bf16_f32 v{AGO}, v{RED}, v{RED+1}\nv_cvt_pk_bf16_f32 v{AGO+1}, v{RED+2}, v{RED+3}")
    e(f"s_mov_b64 exec, s[{S_AGM2}:{S_AGM2+1}]\nbuffer_store_dwordx2 {vr(AGO,2)}, v{A_AGW}, {WS}, s{S_AGW} offen{st}\ns_mov_b64 exec, -1")
    S("ags")
    e.nop(cfg.get("d2", 60))
    e(f"buffer_load_dwordx4 {vr(AP,4)}, v{A_AGR}, {WS}, s{S_AGR0} offen sc1")
    e(f"buffer_load_dwordx4 {vr(AP+4,4)}, v{A_AGR}, {WS}, s{S_AGR1} offen sc1")
    e.label(P2)
    e("s_waitcnt vmcnt(0)")
    e(f"ds_write_b128 v{A_AGR}, {vr(AP,4)}\nds_write_b128 v{A_AGR}, {vr(AP+4,4)} offset:4096")
    e(f"v_max3_u32 v{T0}, v{AP}, v{AP+1}, v{AP+2}\nv_max3_u32 v{T1}, v{AP+4}, v{AP+5}, v{AP+6}")
    e(f"v_max3_u32 v{T0}, v{T0}, v{AP+3}, v{AP+7}\nv_max_u32 v{T0}, v{T0}, v{T1}")
    e(f"v_cmp_eq_u32 vcc, -1, v{T0}\ns_cbranch_vccnz {P2R}")
    e.label(P2 + "_OK")
    S("ag")
    def p2r():
        e.label(P2R)
        e(f"s_add_u32 s{S_SPIN}, s{S_SPIN}, 1\ns_cmp_gt_u32 s{S_SPIN}, {SPIN_MAX}\ns_cbranch_scc1 {P2}_OK")
        e(f"s_waitcnt lgkmcnt(0)\ns_mov_b64 exec, vcc\nbuffer_load_dwordx4 {vr(AP,4)}, v{A_AGR}, {WS}, s{S_AGR0} offen sc1")
        e(f"buffer_load_dwordx4 {vr(AP+4,4)}, v{A_AGR}, {WS}, s{S_AGR1} offen sc1")
        e(f"s_mov_b64 exec, -1\ns_branch {P2}")
    tail.append(p2r)
    if stamps:
        sk = e.newlabel("NS")
        e(f"s_waitcnt lgkmcnt(0)")
        e(f"s_cmp_eq_u32 s{S_STEP}, {cfg.get('stampstep', 40)}\ns_cbranch_scc0 {LOOP}")
        for i in range(len(stamps)): e(f"v_writelane_b32 v{T0}, s{S_ST+2*i}, {i}")
        e(f"v_writelane_b32 v{T0}, s{S_SPIN}, 10")
        e(f"s_lshl_b32 s{S_TMP}, s{S_H}, 2\ns_add_u32 s{S_TMP}, s{S_TMP}, s{S_W}\ns_lshl_b32 s{S_TMP}, s{S_TMP}, 8\ns_add_u32 s{S_TMP}, s{S_TMP}, {WS_STAMP}")
        e(f"v_mbcnt_lo_u32_b32 v{T1}, -1, 0\nv_mbcnt_hi_u32_b32 v{T1}, -1, v{T1}\nv_lshlrev_b32 v{T1}, 2, v{T1}")
        e(f"buffer_store_dword v{T0}, v{T1}, {WS}, s{S_TMP} offen")
    e(f"s_waitcnt lgkmcnt(0)\ns_branch {LOOP}")
    for t in tail: t()
    e.label(LAST)
    e(f"buffer_store_dwordx4 {vr(XT+4,4)}, v{A_AGR}, {WS}, s{S_KVM} offen sc1")
    for m in mv: e(m)
    e.nop(8)
    for t in range(2):
        e(f"v_cvt_pk_bf16_f32 v{VPUB+2*t}, v{ACB+4*t}, v{ACB+4*t+1}")
        e(f"v_cvt_pk_bf16_f32 v{VPUB+2*t+1}, v{ACB+4*t+2}, v{ACB+4*t+3}")
    e(f"s_add_u32 s{S_TMP2}, s{S_KVM}, 4096")
    e(f"buffer_store_dwordx4 {vr(VPUB,4)}, v{A_AGR}, {WS}, s{S_TMP2} offen sc1")
    e("s_waitcnt vmcnt(0) lgkmcnt(0)\ns_barrier")
    e(f"v_mov_b32 v{T0}, 64\nv_mov_b32 v{T1}, s{S_CF}\ns_mov_b64 exec, 1")
    e(f"buffer_store_dword v{T0}, v{T1}, {WS}, 0 offen sc1")
    if cfg.get("gstamp"):
        e(f"s_memrealtime s[84:85]\ns_waitcnt lgkmcnt(0)\nv_mov_b32 v20, s3\nv_mov_b32 v21, s18\nv_mov_b32 v22, s84\nv_mov_b32 v23, 0")
        e(f"s_lshl_b32 s{S_TMP}, s{S_H}, 4\ns_add_u32 s{S_TMP}, s{S_TMP}, {WS_STAMP + 0x10000}\nv_mov_b32 v{T1}, 0")
        e(f"buffer_store_dwordx4 v[20:23], v{T1}, {WS}, s{S_TMP} offen")
    e("s_branch KEND")
```

```python
FL_KVDONE = 0x0000
FL_CFLAG  = 0x0800
FL_OFLAG  = 0x1000
FL_CONV   = 0x3000
FL_SIZE   = 0x4000
WS_AG     = 0x40000
WS_RS     = 0x100000
WS_STAMP  = 0x200000
WS_KV     = 0x1000000
WS_KVM    = 0x3000000
WS_O      = 0x4000000
WS_Y2     = 0x5000000
WS_G      = 0x5200000
WS_SIZE   = 0x10000000
def DBG_XCC(x): return (x % 4) * 64 + (x // 4) * 4
DBG_INIT = 64 + 8
DBG_OVF = 128 + 8
L_WL   = 0x0
L_KVB  = 0x1C000
L_MEM  = 0x24000
L_QU   = 0x26000
L_KU   = 0x27000
LDS_SIZE = 0x28000
PI_ = [0, 2, 1, 3]
def UB(c, b): return (b * 16 + ((c + 8 * (b >> 1)) & 15)) * 8
```

```python
from asmlib import Em, vr
from layout import *
from chain import *

WS = f"s[{R_WS}:{R_WS+3}]"
W_XB, W_QX, W_KMU, W_RED, W_STG = 0x0, 0x10000, 0x12000, 0x13000, 0x10000
NSLOT = 6
S_G, S_SEG, S_CNT, S_XL, S_XG, S_I, S_OFF, S_OFF2, S_STGB = 52, 53, 54, 55, 56, 57, 58, 59, 60
R_X = 84
R_A, R_B = 40, 44
R_O = 88
V_C, V_G, V_L16, V_XSRC, V_XRD, V_T, V_T2 = 1, 2, 3, 4, 5, 6, 7

def load_blocks(e, blocks):
    N = len(blocks)
    def issue(n):
        r, vs, so, _, _ = blocks[n]
        for i in range(4):
            e(f"s_add_u32 m0, s{S_STGB}, {(n % NSLOT) * 4096 + i * 1024}\ns_mov_b32 s{S_TMP}, {so[i]}")
            e(f"buffer_load_dwordx4 {vs}, s[{r}:{r+3}], s{S_TMP} offen lds")
    for n in range(min(NSLOT, N)): issue(n)
    for n in range(N):
        e(f"s_waitcnt vmcnt({4 * min(N - 1 - n, NSLOT - 1)})")
        for dst, off in blocks[n][4]:
            e(f"ds_read_b64_tr_b16 {dst}, {blocks[n][3]} offset:{(n % NSLOT) * 4096 + off}")
        e("s_waitcnt lgkmcnt(0)")
        if n + NSLOT < N: issue(n + NSLOT)

def wmat_blocks(r, abase):
    out = []
    for J in range(8):
        rd = []
        for t in range(2):
            for m in range(4):
                s = 2 * J + m // 2
                rd.append((vr(abase + (t * 16 + s) * 4 + 2 * (m % 2), 2, "a"), (32 * (m // 2) + 4 * (m % 2)) * 64 + t * 32))
        out.append((r, "v20", [(64 * J + 16 * i) * 8192 for i in range(4)], "v22", rd))
    return out

def wo_blocks(r, abase):
    out = []
    for hh in range(8):
        rd = []
        for js in range(4):
            for m in range(2):
                rd.append((vr(abase + (hh * 4 + js) * 4 + 2 * m, 2, "a"), (32 * js + 16 * m) * 32))
        out.append((r, "v21", [(hh * 128 + 32 * i) * 1024 for i in range(4)], "v23", rd))
    return out

def wload_addr(e):
    e("v_and_b32 v18, 3, v0\nv_lshrrev_b32 v19, 2, v0")
    e(f"s_lshl_b32 s{S_TMP}, s{S_H}, 8\ns_lshl_b32 s{S_TMP2}, s{S_W}, 6\ns_add_u32 s{S_TMP}, s{S_TMP}, s{S_TMP2}")
    e(f"v_lshlrev_b32 v20, 13, v19\nv_lshl_add_u32 v20, v18, 4, v20\nv_add_u32 v20, s{S_TMP}, v20")
    e(f"s_lshl_b32 s{S_TMP}, s{S_W}, 20\ns_lshl_b32 s{S_TMP2}, s{S_H}, 5\ns_add_u32 s{S_TMP}, s{S_TMP}, s{S_TMP2}")
    e(f"v_lshrrev_b32 v21, 1, v0\nv_lshlrev_b32 v21, 10, v21\nv_and_b32 v24, 1, v0\nv_lshl_add_u32 v21, v24, 4, v21\nv_add_u32 v21, s{S_TMP}, v21")
    e(f"s_mul_i32 s{S_STGB}, s{S_W}, {NSLOT*4096}\ns_add_u32 s{S_STGB}, s{S_STGB}, {W_STG}")
    e(f"v_lshrrev_b32 v24, 2, v{V_C}")
    e(f"v_lshl_add_u32 v22, v{V_G}, 3, v24\nv_lshlrev_b32 v22, 6, v22\nv_lshl_add_u32 v22, v18, 3, v22\nv_add_u32 v22, s{S_STGB}, v22")
    e(f"v_lshl_add_u32 v23, v{V_G}, 2, v24\nv_lshlrev_b32 v23, 5, v23\nv_lshl_add_u32 v23, v18, 3, v23\nv_add_u32 v23, s{S_STGB}, v23")

def x_dma(e):
    out = []
    for i in range(8):
        out.append([f"s_add_u32 m0, s{S_XL}, {i*1024}", f"s_add_u32 s{S_TMP}, s{S_XG}, {i*64}",
                    f"buffer_load_dwordx4 v{V_XSRC}, s[{R_X}:{R_X+3}], s{S_TMP} offen lds"])
    return out

def flag_store(e, soff, val):
    e(f"v_mov_b32 v{V_T}, {val}\nv_mov_b32 v{V_T2}, s{soff}\ns_mov_b64 exec, 1")
    e(f"buffer_store_dword v{V_T}, v{V_T2}, {WS}, 0 offen sc1\ns_mov_b64 exec, -1")

def mfd(d, a, b, c, pa="v", pb="v"):
    return f"v_mfma_f32_16x16x32_bf16 {vr(d,4)}, {vr(a,4,pa)}, {vr(b,4,pb)}, {c if c == '0' else vr(c,4)}"

def phaseA(e, cfg):
    e("; ---- phase A : K,V projection")
    XF, ACC, OUT = 32, 64, 96
    srd(e, R_A, S_WK, 0x400000); srd(e, R_B, S_WV, 0x400000)
    e(f"s_mov_b32 s{S_SEG}, s{S_G}\ns_mov_b32 s{S_I}, 0")
    e(f"s_lshl_b32 s{S_XG}, s{S_SEG}, 15\ns_lshl_b32 s{S_XL}, s{S_W}, 13")
    for g in x_dma(e):
        for s in g: e(s)
    load_blocks(e, wmat_blocks(R_A, 0) + wmat_blocks(R_B, 128))
    wait_init(e, "w", 24)
    e(f"s_lshl_b32 s{S_OFF2}, s{S_H}, 6\ns_lshl_b32 s{S_TMP}, s{S_G}, 2\ns_add_u32 s{S_OFF2}, s{S_OFF2}, s{S_TMP}")
    e.label("PA_LOOP")
    e("s_waitcnt vmcnt(4)\ns_barrier")
    flag_store(e, S_OFF2, f"s{S_CNT}")
    e(f"s_add_u32 s{S_XG}, s{S_XG}, {7 << 15}\ns_xor_b32 s{S_XL}, s{S_XL}, 0x8000")
    dma = x_dma(e)
    seq = {}
    def rd(n):
        s, rt = n // 2, n % 2
        seq[n] = e(f"ds_read_b128 {vr(XF + 4 * (n % 8), 4)}, v{V_XRD} offset:{(rt * 16 + s) * 1024}")
    for n in range(6): rd(n)
    for n in range(32):
        s, rt = n // 2, n % 2
        e.waitlg(seq[n])
        x = XF + 4 * (n % 8)
        for t in range(2):
            a = ACC + 4 * (t * 2 + rt)
            e(mfd(a, (t * 16 + s) * 4, x, "0" if s == 0 else a, "a", "v"))
            if t == 0 and n + 6 < 32: rd(n + 6)
        for t in range(2):
            a = ACC + 16 + 4 * (t * 2 + rt)
            e(mfd(a, x, 128 + (t * 16 + s) * 4, "0" if s == 0 else a, "v", "a"))
        if n % 3 == 1 and n // 3 < 8:
            for q in dma[n // 3]: e(q)
    e(f"v_xor_b32 v{V_XRD}, 0x8000, v{V_XRD}")
    e(f"s_lshl_b32 s{S_OFF}, s{S_SEG}, 19\ns_lshl_b32 s{S_TMP}, s{S_H}, 14\ns_add_u32 s{S_OFF}, s{S_OFF}, s{S_TMP}\ns_add_u32 s{S_OFF}, s{S_OFF}, {WS_KV}")
    e(f"s_lshl_b32 s{S_TMP}, s{S_W}, 10\ns_add_u32 s{S_TMP2}, s{S_OFF}, s{S_TMP}\ns_mov_b32 s{S_CNT}, s{S_I}\ns_nop 2")
    for rt in range(2):
        o = OUT + 4 * rt
        for t in range(2):
            a = ACC + 4 * (t * 2 + rt)
            e(f"v_cvt_pk_bf16_f32 v{o+2*t}, v{a}, v{a+1}\nv_cvt_pk_bf16_f32 v{o+2*t+1}, v{a+2}, v{a+3}")
        e(f"buffer_store_dwordx4 {vr(o,4)}, v{V_L16}, {WS}, s{S_TMP2} offen sc1")
        e(f"s_add_u32 s{S_TMP2}, s{S_TMP2}, 4096")
    e(f"s_add_u32 s{S_TMP2}, s{S_TMP2}, s{S_TMP}")
    for t in range(2):
        o = OUT + 8 + 4 * t
        for rt in range(2):
            a = ACC + 16 + 4 * (t * 2 + rt)
            e(f"v_cvt_pk_bf16_f32 v{o+2*rt}, v{a}, v{a+1}\nv_cvt_pk_bf16_f32 v{o+2*rt+1}, v{a+2}, v{a+3}")
        e(f"buffer_store_dwordx4 {vr(o,4)}, v{V_L16}, {WS}, s{S_TMP2} offen offset:{t*1024} sc1")
    e(f"s_add_u32 s{S_I}, s{S_I}, 1\ns_add_u32 s{S_SEG}, s{S_SEG}, 7\ns_cmp_lt_u32 s{S_SEG}, 64\ns_cbranch_scc1 PA_LOOP")
    e("s_waitcnt vmcnt(0)\ns_barrier")
    flag_store(e, S_OFF2, f"s{S_I}")

def rb_pair(e, d, a, b):
    e(f"v_cvt_pk_bf16_f32 v{d}, v{a}, v{b}\nv_lshlrev_b32 v{a}, 16, v{d}\nv_and_b32 v{b}, 0xffff0000, v{d}")

C_UR, C_HP, URS, HPS = 0x0, 0x8000, 7680, 4160
def conv(e, cfg):
    e("; ---- conv task")
    S_TK = S_OFF
    e(f"s_mul_i32 s{S_TK}, s{S_H}, 7\ns_add_u32 s{S_TK}, s{S_TK}, s{S_G}\ns_cmp_lt_u32 s{S_TK}, 128\ns_cbranch_scc0 CV_END")
    srd(e, R_A, S_K, 0x200000); srd(e, R_B, S_V, 0x200000)
    KR, VR, SH, P, U = 32, 56, 72, 88, 112
    e(f"s_lshl_b32 s{S_TMP}, s{S_W}, 6\nv_add_u32 v16, s{S_TMP}, v0")
    e(f"s_lshl_b32 s{S_TMP}, s{S_TK}, 3\nv_lshlrev_b32 v17, 13, v16\nv_add_u32 v17, s{S_TMP}, v17")
    e("v_subrev_u32 v18, 3072, v17")
    for j in range(3): e(f"buffer_load_dwordx2 {vr(KR+2*j,2)}, v18, s[{R_A}:{R_A+3}], 0 offen offset:{j*1024}")
    e("v_add_u32 v19, 4096, v17")
    for j in range(8):
        va = "v17" if j < 4 else "v19"
        e(f"buffer_load_dwordx2 {vr(KR+6+2*j,2)}, {va}, s[{R_A}:{R_A+3}], 0 offen offset:{(j%4)*1024}")
        e(f"buffer_load_dwordx2 {vr(VR+2*j,2)}, {va}, s[{R_B}:{R_B+3}], 0 offen offset:{(j%4)*1024}")
    srd(e, R_O, S_SSMK, 0x200000)
    e(f"s_lshl_b32 s{S_TMP2}, s{S_TK}, 2\ns_add_u32 s{S_TMP2}, s{S_TMP2}, s{S_W}")
    e(f"s_lshl_b32 s{S_XG}, s{S_TMP2}, 12\ns_mul_i32 s{S_XL}, s{S_W}, {HPS}\ns_add_u32 s{S_XL}, s{S_XL}, {C_HP}")
    e(f"s_add_u32 m0, s{S_XL}, 64\ns_nop 0")
    for i in range(4): e(f"buffer_load_dwordx4 v{V_L16}, s[{R_O}:{R_O+3}], s{S_XG} offen offset:{i*1024} lds")
    e(f"s_lshl_b32 s{S_TMP}, s{S_TK}, 5\ns_load_dwordx8 s[92:99], s[{S_SH}:{S_SH+1}], s{S_TMP}")
    e(f"s_lshl_b32 s{S_TMP}, s{S_TMP2}, 1\ns_and_b32 s{S_TMP}, s{S_TMP}, -4\ns_load_dword s{S_CNT}, s[{S_SSMD}:{S_SSMD+1}], s{S_TMP}")
    e(f"v_mov_b64 v[24:25], 0\nv_mov_b64 v[26:27], 0\nv_lshl_add_u32 v20, v0, 2, s{S_XL}")
    e(f"s_mov_b64 exec, 0xffff\nds_write_b32 v20, v24\ns_mov_b64 exec, -1")
    e(f"s_mul_i32 s{S_I}, s{S_W}, {URS}\nv_add_u32 v20, s{S_I}, v{V_L16}")
    for i in range(2): e(f"ds_write_b128 v20, v[24:27] offset:{5120 + i*1024}")
    e(f"s_mov_b32 exec_hi, 0\nds_write_b128 v20, v[24:27] offset:{5120 + 2048}\ns_mov_b64 exec, -1")
    e("v_lshlrev_b32 v20, 3, v16\nv_sub_u32 v20, 2040, v20\nv_lshrrev_b32 v21, 5, v20\nv_and_b32 v20, 31, v20")
    e("v_mul_u32_u24 v21, 80, v21\nv_lshl_add_u32 v20, v20, 1, v21")
    e("s_waitcnt vmcnt(4) lgkmcnt(0)")
    e("v_cmp_eq_u32 vcc, 0, v16\ns_nop 1")
    for r in range(6): e(f"v_cndmask_b32 v{KR+r}, v{KR+r}, v24, vcc")
    for ch in range(4):
        for j in range(4):
            src = 92 + ch * 2 + j // 2
            e(f"s_lshl_b32 s{62+j}, s{src}, 16" if j % 2 == 0 else f"s_and_b32 s{62+j}, s{src}, 0xffff0000")
        KF = 120
        for j in range(11):
            r = KR + 2 * j + ch // 2
            e(f"v_lshlrev_b32 v{KF+j}, 16, v{r}" if ch % 2 == 0 else f"v_and_b32 v{KF+j}, 0xffff0000, v{r}")
        for pr in range(4):
            a, b, t1, t2, d = P, P + 1, P + 2, P + 3, P + 4
            r0 = 2 * pr
            e(f"v_mul_f32 v{a}, s65, v{KF+r0}\nv_mul_f32 v{b}, s65, v{KF+r0+1}")
            rb_pair(e, d, a, b)
            for j in (2, 1, 0):
                e(f"v_mul_f32 v{t1}, s{62+j}, v{KF+r0+3-j}\nv_mul_f32 v{t2}, s{62+j}, v{KF+r0+1+3-j}")
                rb_pair(e, d, t1, t2)
                e(f"v_add_f32 v{a}, v{a}, v{t1}\nv_add_f32 v{b}, v{b}, v{t2}")
                rb_pair(e, d, a, b)
            for q, rr in ((t1, r0), (t2, r0 + 1)):
                r = VR + 2 * rr + ch // 2
                e(f"v_lshlrev_b32 v{q}, 16, v{r}" if ch % 2 == 0 else f"v_and_b32 v{q}, 0xffff0000, v{r}")
            e(f"v_mul_f32 v{a}, v{a}, v{t1}\nv_mul_f32 v{b}, v{b}, v{t2}")
            e(f"v_cvt_pk_bf16_f32 v{U+3-pr}, v{b}, v{a}")
        e(f"ds_write_b128 v20, {vr(U,4)} offset:{ch*URS}\ns_nop 1")
    e("s_waitcnt vmcnt(0) lgkmcnt(0)\ns_barrier")
    e(f"v_and_b32 v16, 31, v0\nv_lshrrev_b32 v17, 5, v0")
    e(f"v_lshl_add_u32 v18, v17, 3, v16\nv_add_u32 v18, 1, v18\nv_lshl_add_u32 v18, v18, 1, s{S_XL}")
    e(f"v_sub_u32 v19, 63, v16\nv_mul_u32_u24 v19, 80, v19\nv_lshl_add_u32 v19, v17, 4, v19\nv_add_u32 v19, s{S_I}, v19")
    e("v_subrev_u32 v21, 2560, v19")
    AC0, AC1, FR, NB = 32, 48, 64, 3
    seq = {}
    def rd(sg):
        b = FR + 16 * (sg % NB); bo = (sg // 2) * 80 + (sg % 2) * 32
        e(f"ds_read_b128 {vr(b,4)}, v18 offset:{sg*32}")
        e(f"ds_read_b128 {vr(b+4,4)}, v19 offset:{bo}")
        e(f"ds_read_b128 {vr(b+8,4)}, v21 offset:{bo}")
        seq[sg] = e(f"ds_read_b128 {vr(b+12,4)}, v18 offset:{sg*32+2048}")
    def mm(d, a, b, first): return f"v_mfma_f32_32x32x16_bf16 {vr(d,16)}, {vr(a,4)}, {vr(b,4)}, {'0' if first else vr(d,16)}"
    rd(0); rd(1)
    for sg in range(64):
        b = FR + 16 * (sg % NB)
        e.waitlg(seq[sg])
        e(mm(AC0, b, b + 4, sg == 0))
        if sg + 2 < 64: rd(sg + 2)
        e(mm(AC1, b, b + 8, sg == 0))
        e(mm(AC1, b + 12, b + 4, False))
    e(f"s_bitcmp1_b32 s{S_TMP2}, 0\ns_cbranch_scc1 CV_D1\ns_lshl_b32 s{S_CNT}, s{S_CNT}, 16")
    e.label("CV_D1")
    e(f"s_and_b32 s{S_CNT}, s{S_CNT}, 0xffff0000")
    e(f"v_lshlrev_b32 v22, 5, v17\nv_sub_u32 v22, v19, v22\nv_lshl_add_u32 v22, v17, 3, v22")
    e(f"v_lshlrev_b32 v23, 6, v16\nv_lshl_add_u32 v23, v17, 3, v23")
    e(f"s_lshl_b32 s{S_XG}, s{S_TMP2}, 12\ns_add_u32 s{S_XG}, s{S_XG}, {WS_Y2}")
    e("v_subrev_u32 v24, 2560, v22")
    for tl in range(2):
        for q in range(4):
            e(f"ds_read_b64 {vr(FR + 8*tl + 2*q, 2)}, {'v22' if tl == 0 else 'v24'} offset:{56 - 16*q}")
    e("s_waitcnt lgkmcnt(0)\ns_nop 7")
    for tl in range(2):
        for q in range(4):
            y = (AC0 if tl == 0 else AC1) + 4 * q; u = FR + 8 * tl + 2 * q; t = 96
            e(f"v_and_b32 v{t}, 0xffff0000, v{u+1}\nv_lshlrev_b32 v{t+1}, 16, v{u+1}\nv_and_b32 v{t+2}, 0xffff0000, v{u}\nv_lshlrev_b32 v{t+3}, 16, v{u}")
            for i in range(4): e(f"v_mul_f32 v{t+i}, s{S_CNT}, v{t+i}")
            rb_pair(e, t + 4, t, t + 1); rb_pair(e, t + 4, t + 2, t + 3)
            rb_pair(e, t + 4, y, y + 1); rb_pair(e, t + 4, y + 2, y + 3)
            for i in range(4): e(f"v_add_f32 v{y+i}, v{y+i}, v{t+i}")
            e(f"v_cvt_pk_bf16_f32 v{y}, v{y}, v{y+1}\nv_cvt_pk_bf16_f32 v{y+1}, v{y+2}, v{y+3}")
            e(f"buffer_store_dwordx2 {vr(y,2)}, v23, {WS}, s{S_XG} offen offset:{tl*2048 + q*16} sc1")
    e("s_waitcnt vmcnt(0)\ns_barrier")
    e(f"s_lshl_b32 s{S_TK}, s{S_TK}, 2\ns_add_u32 s{S_TK}, s{S_TK}, {FL_CONV}")
    flag_store(e, S_TK, 1)
    e.label("CV_END")

def poll_all(e, name, vaddr, soff, nl_mask, cmpv, vt):
    l, d = e.newlabel(name), e.newlabel(name + "D")
    e(f"s_mov_b32 s{S_SPIN}, 0")
    e.label(l)
    e(f"buffer_load_dword v{vt}, v{vaddr}, {WS}, {soff} offen sc1\ns_add_u32 s{S_SPIN}, s{S_SPIN}, 1\ns_waitcnt vmcnt(0)")
    e(f"v_cmp_gt_u32 vcc, {cmpv}, v{vt}\ns_cbranch_vccz {d}\ns_sleep 2")
    e(f"s_cmp_lt_u32 s{S_SPIN}, {SPIN_MAX}\ns_cbranch_scc1 {l}")
    e.label(d)

def phaseB(e, cfg):
    e("; ---- phase B")
    srd(e, R_A, S_WQ, 0x400000); srd(e, R_B, S_WO, 0x400000)
    wload_addr(e)
    e(f"s_mov_b32 s{S_SEG}, s{S_G}\ns_lshl_b32 s{S_XG}, s{S_SEG}, 15\ns_lshl_b32 s{S_XL}, s{S_W}, 13")
    e(f"v_mov_b32 v{V_XRD}, v{V_L16}")
    for g in x_dma(e):
        for s in g: e(s)
    load_blocks(e, wmat_blocks(R_A, 0) + wo_blocks(R_B, 128))
    srd(e, R_O, S_OUT, 0x200000); srd(e, R_A, S_GATE, 1024)
    GW = 16
    e(f"buffer_load_dwordx4 {vr(GW,4)}, v{V_L16}, s[{R_A}:{R_A+3}], 0 offen")
    e(f"s_and_b32 s62, s{S_W}, 1\ns_lshr_b32 s63, s{S_W}, 1")
    e(f"v_lshlrev_b32 v8, 2, v{V_G}\nv_sub_u32 v8, v{V_C}, v8\ns_lshl_b32 s{S_TMP}, s62, 4\nv_add_u32 v8, s{S_TMP}, v8\nv_subrev_u32 v9, 16, v8")
    e(f"v_and_b32 v24, 1, v0\nv_lshlrev_b32 v24, 1, v24\nv_bfe_u32 v25, v0, 1, 1\nv_or_b32 v24, v24, v25")
    e(f"v_lshrrev_b32 v25, 2, v{V_C}\nv_lshl_add_u32 v25, v{V_G}, 2, v25\nv_lshl_add_u32 v10, v24, 4, v25\nv_lshlrev_b32 v10, 4, v10\nv_add_u32 v10, {W_KMU}, v10")
    e(f"v_and_b32 v24, 1, v{V_G}\nv_lshlrev_b32 v24, 1, v24\nv_lshrrev_b32 v25, 1, v{V_G}\nv_or_b32 v24, v24, v25")
    e(f"v_lshl_add_u32 v11, v24, 4, v{V_C}\nv_lshlrev_b32 v11, 4, v11\ns_lshl_b32 s{S_TMP}, s63, 11\ns_add_u32 s{S_TMP}, s{S_TMP}, 4096\nv_add_u32 v11, s{S_TMP}, v11")
    e(f"v_lshrrev_b32 v24, 2, v0\nv_and_b32 v25, 3, v0\nv_lshlrev_b32 v12, 10, v24\nv_lshl_add_u32 v12, v25, 8, v12")
    e(f"s_lshr_b32 s{S_TMP}, s{S_H}, 4\ns_lshl_b32 s{S_TMP}, s{S_TMP}, 14\ns_and_b32 s{S_TMP2}, s{S_H}, 15\ns_lshl_b32 s{S_TMP2}, s{S_TMP2}, 4\ns_add_u32 s{S_TMP}, s{S_TMP}, s{S_TMP2}\nv_add_u32 v12, s{S_TMP}, v12")
    e(f"s_lshl_b32 s{S_TMP}, s{S_W}, 3\nv_lshrrev_b32 v24, 3, v0\nv_add_u32 v24, s{S_TMP}, v24\nv_and_b32 v25, 7, v0")
    e(f"v_lshrrev_b32 v26, 4, v24\nv_and_b32 v27, 15, v24\nv_lshlrev_b32 v13, 10, v26\nv_lshl_add_u32 v13, v27, 4, v13")
    e(f"v_lshrrev_b32 v26, 1, v25\nv_lshl_add_u32 v13, v26, 8, v13\nv_and_b32 v26, 1, v25\nv_lshl_add_u32 v13, v26, 3, v13\nv_add_u32 v13, {W_RED}, v13")
    e(f"s_lshl_b32 s{S_TMP}, s{S_H}, 16\nv_lshlrev_b32 v14, 13, v25\nv_lshl_add_u32 v14, v24, 1, v14\nv_add_u32 v14, s{S_TMP}, v14")
    e(f"s_lshl_b32 s{S_TMP}, s{S_H}, 5\nv_lshlrev_b32 v15, 10, v24\nv_lshl_add_u32 v15, v25, 2, v15\nv_add_u32 v15, s{S_TMP}, v15")
    e(f"v_and_b32 v20, 31, v0\nv_lshlrev_b32 v20, 2, v20\nv_lshlrev_b32 v21, 2, v24")
    e(f"s_lshl_b32 s{S_CF}, s{S_H}, 6\ns_add_u32 s{S_CF}, s{S_CF}, {FL_CFLAG}\ns_mov_b32 s{S_SC}, 0x3e0293ee")
    e(f"v_lshlrev_b32 v24, 2, v0\ns_mov_b32 s{S_OFF}, {FL_CONV}\ns_mov_b32 s{S_OFF2}, {FL_CONV+256}")
    poll_all(e, "CVW", 24, f"s{S_OFF}", None, 1, 25)
    poll_all(e, "CVW", 24, f"s{S_OFF2}", None, 1, 25)
    XF, ACC, KF, VF, QF, KM, VM, SS_, PB, OA, TT = 32, 64, 80, 112, 128, 144, 160, 168, 180, 188, 204
    e.label("PB_LOOP")
    e("s_waitcnt vmcnt(0)\ns_barrier")
    e(f"s_lshl_b32 s{S_OFF}, s{S_SEG}, 19\ns_lshl_b32 s{S_TMP}, s{S_H}, 14\ns_add_u32 s{S_OFF}, s{S_OFF}, s{S_TMP}\ns_add_u32 s{S_OFF}, s{S_OFF}, {WS_KV}")
    e(f"s_add_u32 s{S_OFF2}, s{S_OFF}, 4096\ns_lshl_b32 s{S_TMP}, s63, 12\ns_add_u32 s{S_CNT}, s{S_OFF}, s{S_TMP}\ns_add_u32 s{S_CNT}, s{S_CNT}, 8192")
    lds_ = []
    for js in range(4):
        lds_.append(f"buffer_load_dwordx4 {vr(KF+4*js,4)}, v{V_L16}, {WS}, s{S_OFF} offen offset:{js*1024} sc1")
        lds_.append(f"buffer_load_dwordx4 {vr(KF+16+4*js,4)}, v{V_L16}, {WS}, s{S_OFF2} offen offset:{js*1024} sc1")
        lds_.append(f"buffer_load_dwordx4 {vr(VF+4*js,4)}, v{V_L16}, {WS}, s{S_CNT} offen offset:{js*1024} sc1")
    seq = {}
    def rd(n):
        s, rt = n // 2, n % 2
        seq[n] = e(f"ds_read_b128 {vr(XF + 4 * (n % 8), 4)}, v{V_XRD} offset:{(rt * 16 + s) * 1024}")
    sg = e(f"ds_read_b128 {vr(TT,4)}, v12")
    for n in range(6): rd(n)
    for n in range(32):
        s, rt = n // 2, n % 2
        e.waitlg(seq[n])
        x = XF + 4 * (n % 8)
        for t in range(2):
            a = ACC + 4 * (t * 2 + rt)
            e(mfd(a, (t * 16 + s) * 4, x, "0" if s == 0 else a, "a", "v"))
            if t == 0 and n + 6 < 32: rd(n + 6)
        if n % 2 == 1 and n // 2 < 12: e(lds_[n // 2])
    for i in range(4):
        e(f"v_lshlrev_b32 v{TT+4}, 16, v{TT+i}\nv_and_b32 v{TT+5}, 0xffff0000, v{TT+i}\nv_lshlrev_b32 v{TT+6}, 16, v{GW+i}\nv_and_b32 v{TT+7}, 0xffff0000, v{GW+i}")
        e(f"v_mul_f32 v{TT+4}, v{TT+4}, v{TT+6}\nv_mul_f32 v{TT+5}, v{TT+5}, v{TT+7}")
        rb_pair(e, TT + 6, TT + 4, TT + 5)
        e(f"v_add_f32 v{TT+i}, v{TT+4}, v{TT+5}")
    e(f"v_add_f32 v{TT}, v{TT}, v{TT+1}\nv_add_f32 v{TT+2}, v{TT+2}, v{TT+3}\nv_add_f32 v{TT}, v{TT}, v{TT+2}")
    for rt in range(2):
        o = QF + 4 * rt
        for t in range(2):
            a = ACC + 4 * (t * 2 + rt)
            e(f"v_cvt_pk_bf16_f32 v{o+2*t}, v{a}, v{a+1}\nv_cvt_pk_bf16_f32 v{o+2*t+1}, v{a+2}, v{a+3}")
    e(f"s_lshl_b32 s{S_TMP}, s{S_W}, 10\ns_add_u32 s{S_TMP}, s{S_TMP}, {W_QX}\nv_add_u32 v{V_T}, s{S_TMP}, v{V_L16}")
    e(f"ds_write_b128 v{V_T}, {vr(QF,4)}\nds_write_b128 v{V_T}, {vr(QF+4,4)} offset:4096")
    for ror in (1, 2, 4, 8):
        e(f"s_nop 1\nv_add_f32_dpp v{TT}, v{TT}, v{TT} row_ror:{ror} row_mask:0xf bank_mask:0xf")
    for op in ("v_permlane16_swap_b32", "v_permlane32_swap_b32"):
        e(f"v_mov_b32 v{TT+1}, v{TT}\ns_nop 1\n{op} v{TT}, v{TT+1}\nv_add_f32 v{TT}, v{TT}, v{TT+1}")
    e(f"v_cvt_pk_bf16_f32 v{TT}, v{TT}, v{TT}\nv_lshlrev_b32 v{TT}, 16, v{TT}\nv_mul_f32 v{TT}, 0xbfb8aa3b, v{TT}\nv_exp_f32 v{TT}, v{TT}\ns_nop 0")
    e(f"v_add_f32 v{TT}, 1.0, v{TT}\nv_rcp_f32 v{TT}, v{TT}\ns_nop 0\nv_cvt_pk_bf16_f32 v{TT}, v{TT}, v{TT}\nv_lshlrev_b32 v{TT}, 16, v{TT}")
    e(f"s_lshl_b32 s{S_TMP}, s{S_SEG}, 5\ns_add_u32 s{S_TMP}, s{S_TMP}, s{S_H}\ns_lshl_b32 s{S_TMP}, s{S_TMP}, 2\ns_add_u32 s{S_TMP}, s{S_TMP}, {WS_G}")
    e(f"v_mov_b32 v{V_T2}, 0\ns_mov_b64 exec, 1\nbuffer_store_dword v{TT}, v{V_T2}, {WS}, s{S_TMP} offen sc1\ns_mov_b64 exec, -1")
    e(f"v_mov_b32 v{TT+1}, s{S_CF}\ns_add_u32 s{S_I}, s{S_SEG}, 1")
    poll_all(e, "CHW", TT + 1, "0", None, f"s{S_I}", TT + 2)
    e(f"s_lshl_b32 s{S_OFF}, s{S_SEG}, 18\ns_lshl_b32 s{S_TMP}, s{S_H}, 13\ns_add_u32 s{S_OFF}, s{S_OFF}, s{S_TMP}\ns_add_u32 s{S_OFF2}, s{S_OFF}, {WS_KVM}")
    e(f"s_lshl_b32 s{S_TMP}, s{S_W}, 10\ns_add_u32 m0, s{S_TMP}, {W_KMU}\ns_add_u32 s{S_TMP}, s{S_TMP}, s{S_OFF2}")
    e(f"buffer_load_dwordx4 v{V_L16}, {WS}, s{S_TMP} offen sc1 lds")
    for i in range(2): e(f"buffer_load_dwordx4 {vr(VM+4*i,4)}, v11, {WS}, s{S_OFF2} offen offset:{i*1024} sc1")
    e("s_waitcnt vmcnt(2) lgkmcnt(0)\ns_barrier")
    e(f"s_add_u32 s{S_XG}, s{S_XG}, {7 << 15}\ns_xor_b32 s{S_XL}, s{S_XL}, 0x8000")
    e(f"s_lshl_b32 s{S_TMP}, s62, 12\ns_add_u32 s{S_TMP}, s{S_TMP}, {W_QX}\nv_add_u32 v{V_T}, s{S_TMP}, v{V_L16}")
    for js in range(4): e(f"ds_read_b128 {vr(QF+4*js,4)}, v{V_T} offset:{js*1024}")
    for js in range(4):
        for t in range(2): e(f"ds_read_b64_tr_b16 {vr(KM+4*js+2*t,2)}, v10 offset:{js*1024 + t*8}")
    e(f"v_xor_b32 v{V_XRD}, 0x8000, v{V_XRD}\nv_xor_b32 v12, 0x8000, v12")
    e("s_waitcnt lgkmcnt(0)")
    X0, X1, M = SS_, SS_ + 4, SS_ + 8
    for js in range(4):
        c = lambda r: "0" if js == 0 else r
        e(mfd(X0, KF + 4 * js, QF + 4 * js, c(X0))); e(mfd(X1, KF + 16 + 4 * js, QF + 4 * js, c(X1))); e(mfd(M, KM + 4 * js, QF + 4 * js, c(M)))
    for g in x_dma(e):
        for s in g: e(s)
    e(f"v_mov_b32 v{TT}, 0xf149f2ca")
    for kt in range(2):
        for i in range(4):
            e(f"v_cmp_le_i32 vcc, {i}, v{8+kt}\ns_nop 1\nv_cndmask_b32 v{SS_+4*kt+i}, v{TT}, v{SS_+4*kt+i}, vcc")
    mx, t2 = TT + 1, TT + 2
    e(f"v_max3_f32 v{mx}, v{X0}, v{X0+1}, v{X0+2}\nv_max3_f32 v{t2}, v{X1}, v{X1+1}, v{X1+2}\nv_max3_f32 v{mx}, v{mx}, v{X0+3}, v{X1+3}")
    e(f"v_max3_f32 v{t2}, v{t2}, v{M}, v{M+2}\nv_max_f32 v{mx}, v{mx}, v{t2}")
    for op in ("v_permlane16_swap_b32", "v_permlane32_swap_b32"):
        e(f"v_mov_b32 v{t2}, v{mx}\ns_nop 1\n{op} v{mx}, v{t2}\nv_max_f32 v{mx}, v{mx}, v{t2}")
    e(f"v_mul_f32 v{mx}, s{S_SC}, v{mx}")
    EE = [SS_ + i for i in range(8)] + [M, M + 2]
    for x in EE: e(f"v_fma_f32 v{x}, v{x}, s{S_SC}, -v{mx}")
    for x in EE: e(f"v_exp_f32 v{x}, v{x}")
    e(f"s_nop 0\nv_add_f32 v{mx}, v{EE[0]}, v{EE[1]}")
    for x in EE[2:]: e(f"v_add_f32 v{mx}, v{mx}, v{x}")
    for op in ("v_permlane16_swap_b32", "v_permlane32_swap_b32"):
        e(f"v_mov_b32 v{t2}, v{mx}\ns_nop 1\n{op} v{mx}, v{t2}\nv_add_f32 v{mx}, v{mx}, v{t2}")
    e(f"v_rcp_f32 v{mx}, v{mx}\ns_nop 0")
    for x in EE: e(f"v_mul_f32 v{x}, v{x}, v{mx}")
    for i in range(4): e(f"v_cvt_pk_bf16_f32 v{PB+i}, v{SS_+2*i}, v{SS_+2*i+1}")
    e(f"v_cvt_pk_bf16_f32 v{PB+4}, v{M}, v{M}\nv_cvt_pk_bf16_f32 v{PB+5}, v{M+2}, v{M+2}")
    e("s_waitcnt vmcnt(8)\ns_nop 0")
    for T in range(4): e(mfd(OA + 4 * T, VF + 4 * T, PB, "0"))
    for T in range(4):
        e(f"v_mfma_f32_16x16x16_bf16 {vr(OA+4*T,4)}, {vr(VM+2*T,2)}, {vr(PB+4,2)}, {vr(OA+4*T,4)}")
    e(f"s_add_u32 s{S_OFF}, s{S_OFF}, {WS_O}\ns_lshl_b32 s{S_TMP}, s62, 12\ns_add_u32 s{S_OFF}, s{S_OFF}, s{S_TMP}\ns_lshl_b32 s{S_TMP}, s63, 11\ns_add_u32 s{S_OFF}, s{S_OFF}, s{S_TMP}\ns_nop 3")
    for j in range(2):
        for t in range(2):
            a = OA + 4 * (2 * j + t)
            e(f"v_cvt_pk_bf16_f32 v{QF+4*j+2*t}, v{a}, v{a+1}\nv_cvt_pk_bf16_f32 v{QF+4*j+2*t+1}, v{a+2}, v{a+3}")
        e(f"buffer_store_dwordx4 {vr(QF+4*j,4)}, v{V_L16}, {WS}, s{S_OFF} offen offset:{j*1024} sc1")
    e("s_waitcnt vmcnt(0)\ns_barrier")
    e(f"s_lshl_b32 s{S_OFF2}, s{S_SEG}, 7\ns_add_u32 s{S_OFF2}, s{S_OFF2}, {FL_OFLAG}\ns_lshl_b32 s{S_TMP}, s{S_H}, 2\ns_add_u32 s{S_CNT}, s{S_OFF2}, s{S_TMP}")
    flag_store(e, S_CNT, 1)
    e(f"s_lshl_b32 s{S_TMP}, s{S_SEG}, 6\ns_add_u32 s{S_TMP}, s{S_TMP}, {WS_Y2}\ns_add_u32 s{S_I}, s{S_TMP}, 4096")
    e(f"buffer_load_ushort v{TT+4}, v14, {WS}, s{S_TMP} offen sc1\nbuffer_load_ushort v{TT+5}, v14, {WS}, s{S_I} offen sc1")
    e(f"s_lshl_b32 s{S_CNT}, s{S_SEG}, 15\nbuffer_load_dword v{TT+6}, v15, s[{R_X}:{R_X+3}], s{S_CNT} offen")
    poll_all(e, "OW", 20, f"s{S_OFF2}", None, 1, TT + 2)
    e(f"s_lshl_b32 s{S_TMP}, s{S_SEG}, 7\ns_add_u32 s{S_TMP}, s{S_TMP}, {WS_G}\nbuffer_load_dword v{TT+7}, v21, {WS}, s{S_TMP} offen sc1")
    e(f"s_lshl_b32 s{S_OFF}, s{S_SEG}, 18\ns_lshl_b32 s{S_TMP}, s{S_W}, 16\ns_add_u32 s{S_OFF}, s{S_OFF}, s{S_TMP}\ns_add_u32 s{S_OFF}, s{S_OFF}, {WS_O}")
    RB, NR = 32, 40
    def ld(n):
        if n % 4 == 0 and n > 0: e(f"s_add_u32 s{S_OFF}, s{S_OFF}, 4096")
        e(f"buffer_load_dwordx4 {vr(RB + 4 * (n % NR), 4)}, v{V_L16}, {WS}, s{S_OFF} offen offset:{(n % 4) * 1024} sc1")
    for n in range(NR): ld(n)
    FA = 192
    for n in range(64):
        hh, rt, js = n // 8, (n // 4) % 2, n % 4
        e(f"s_waitcnt vmcnt({min(63 - n, NR - 1)})")
        a = FA + 4 * rt
        e(mfd(a, 128 + (hh * 4 + js) * 4, RB + 4 * (n % NR), "0" if n in (0, 4) else a, "a", "v"))
        if n + NR < 64: ld(n + NR)
    e(f"s_lshl_b32 s{S_TMP}, s{S_W}, 11\ns_add_u32 s{S_TMP}, s{S_TMP}, {W_RED}\nv_add_u32 v{V_T}, s{S_TMP}, v{V_L16}\ns_nop 5")
    e(f"ds_write_b128 v{V_T}, {vr(FA,4)}\nds_write_b128 v{V_T}, {vr(FA+4,4)} offset:1024\ns_waitcnt lgkmcnt(0)\ns_barrier")
    for w in range(4): e(f"ds_read_b64 {vr(32+2*w,2)}, v13 offset:{w*2048}")
    y0, y1, q, g = TT + 4, TT + 5, TT + 6, TT + 7
    e(f"v_lshlrev_b32 v{y0}, 16, v{y0}\nv_lshlrev_b32 v{y1}, 16, v{y1}\nv_lshlrev_b32 v40, 16, v{q}\nv_and_b32 v41, 0xffff0000, v{q}")
    e(f"v_mul_f32 v{y0}, v{y0}, v40\nv_mul_f32 v{y1}, v{y1}, v41")
    rb_pair(e, 42, y0, y1)
    e(f"v_mul_f32 v{y0}, v{y0}, v{g}\nv_mul_f32 v{y1}, v{y1}, v{g}")
    rb_pair(e, 42, y0, y1)
    e(f"v_sub_f32 v{g}, 1.0, v{g}\nv_cvt_pk_bf16_f32 v{g}, v{g}, v{g}\nv_lshlrev_b32 v{g}, 16, v{g}\ns_waitcnt lgkmcnt(0)")
    e("v_add_f32 v32, v32, v34\nv_add_f32 v33, v33, v35\nv_add_f32 v36, v36, v38\nv_add_f32 v37, v37, v39\nv_add_f32 v32, v32, v36\nv_add_f32 v33, v33, v37")
    rb_pair(e, 42, 32, 33)
    e(f"v_mul_f32 v32, v32, v{g}\nv_mul_f32 v33, v33, v{g}")
    rb_pair(e, 42, 32, 33)
    e(f"v_add_f32 v32, v32, v{y0}\nv_add_f32 v33, v33, v{y1}\nv_cvt_pk_bf16_f32 v32, v32, v33")
    e(f"buffer_store_dword v32, v15, s[{R_O}:{R_O+3}], s{S_CNT} offen")
    e(f"s_add_u32 s{S_SEG}, s{S_SEG}, 7\ns_cmp_lt_u32 s{S_SEG}, 64\ns_cbranch_scc1 PB_LOOP")

def worker(e, cfg):
    e(f"s_sub_u32 s{S_G}, s{S_GRP}, 1\ns_mov_b32 s{S_CNT}, 0")
    lane_consts(e, f"v{V_C}", f"v{V_G}")
    e(f"v_lshlrev_b32 v{V_L16}, 4, v0\nv_mov_b32 v{V_XRD}, v{V_L16}")
    e(f"s_lshr_b32 s{S_TMP}, s{S_W}, 1\ns_lshl_b32 s{S_TMP}, s{S_TMP}, 14\ns_and_b32 s{S_TMP2}, s{S_W}, 1\ns_lshl_b32 s{S_TMP2}, s{S_TMP2}, 9\ns_add_u32 s{S_TMP}, s{S_TMP}, s{S_TMP2}")
    e(f"v_lshlrev_b32 v{V_XSRC}, 10, v{V_C}\nv_lshl_add_u32 v{V_XSRC}, v{V_G}, 4, v{V_XSRC}\nv_add_u32 v{V_XSRC}, s{S_TMP}, v{V_XSRC}")
    srd(e, R_X, S_Q, 0x200000)
    wload_addr(e)
    phaseA(e, cfg)
    conv(e, cfg)
    e("s_barrier")
    phaseB(e, cfg)
```

```python
import sys, json
from asmlib import Em, vr, check_hazards
from layout import *
import chain as C
from chain import *

KNAME = "gated_mix__ssm_conv_h3__memory_aug_recurrent_mem_tr__prompt_kernel"

def common_prologue(e):
    e("s_cmp_ge_u32 s2, 256\ns_cbranch_scc1 KEND")
    e("s_load_dwordx8 s[4:11], s[0:1], 0\ns_load_dwordx4 s[12:15], s[0:1], 32\ns_load_dwordx2 s[16:17], s[0:1], 56")
    e("s_load_dwordx8 s[20:27], s[0:1], 64\ns_load_dwordx4 s[28:31], s[0:1], 104\ns_load_dwordx4 s[32:35], s[0:1], 120")
    e(f"s_getreg_b32 s{S_XCC}, hwreg(HW_REG_XCC_ID)\ns_and_b32 s{S_XCC}, s{S_XCC}, 7")
    e(f"v_lshrrev_b32 v1, 6, v0\nv_mov_b32 v2, v0\nv_and_b32 v0, 63, v0\nv_readfirstlane_b32 s{S_W}, v1")
    e("s_waitcnt lgkmcnt(0)")
    srd(e, R_WS, S_WS, WS_SIZE)
    WS = f"s[{R_WS}:{R_WS+3}]"
    DBG = f"s[{S_DBG}:{S_DBG+1}]"
    e(f"s_cmp_eq_u32 s{S_W}, 0\ns_cbranch_scc0 PRO_NORANK")
    e(f"s_and_b32 s{S_TMP}, s{S_XCC}, 3\ns_lshl_b32 s{S_TMP}, s{S_TMP}, 6\ns_lshr_b32 s{S_TMP2}, s{S_XCC}, 2\ns_lshl_b32 s{S_TMP2}, s{S_TMP2}, 2\ns_add_u32 s{S_TMP}, s{S_TMP}, s{S_TMP2}")
    e(f"v_mov_b32 v3, s{S_TMP}\nv_mov_b32 v4, 1\ns_mov_b64 exec, 1")
    e(f"global_atomic_add v5, v3, v4, {DBG} sc0\ns_mov_b64 exec, -1")
    e.label("PRO_NORANK")
    e("v_mov_b32 v6, -1\nv_mov_b32 v7, -1\nv_mov_b32 v8, 0")
    e(f"s_lshl_b32 s{S_TMP}, s2, 11\ns_add_u32 s{S_TMP}, s{S_TMP}, {WS_RS}\nv_lshlrev_b32 v9, 3, v2")
    e(f"buffer_store_dwordx2 v[6:7], v9, {WS}, s{S_TMP} offen sc1")
    e(f"v_lshlrev_b32 v9, 2, v2\nv_cmp_gt_u32 vcc, 32, v2\ns_and_saveexec_b64 s[{S_M0}:{S_M0+1}], vcc\ns_cbranch_execz PRO_I1")
    e(f"s_lshl_b32 s{S_TMP}, s2, 7\ns_add_u32 s{S_TMP}, s{S_TMP}, {WS_AG}")
    e(f"buffer_store_dword v6, v9, {WS}, s{S_TMP} offen sc1")
    e(f"s_mov_b64 exec, 0xffff\ns_lshl_b32 s{S_TMP}, s2, 6")
    e(f"buffer_store_dword v8, v9, {WS}, s{S_TMP} offen sc1")
    e.label("PRO_I1")
    e("s_mov_b64 exec, -1\ns_waitcnt vmcnt(0)")
    e(f"s_cmp_eq_u32 s{S_W}, 0\ns_cbranch_scc0 PRO_W")
    e(f"v_readfirstlane_b32 s{S_H}, v5\ns_mov_b32 s{S_GRP}, s{S_XCC}")
    e(f"s_cmp_lt_u32 s{S_H}, 32\ns_cbranch_scc1 PRO_HAVE")
    e(f"v_mov_b32 v3, {DBG_OVF}\ns_mov_b64 exec, 1\nglobal_atomic_add v5, v3, v4, {DBG} sc0\ns_mov_b64 exec, -1")
    e(f"v_lshlrev_b32 v9, 2, v0\ns_mov_b32 s{S_SPIN}, 0")
    e.label("PRO_OV")
    e(f"global_load_dword v10, v9, {DBG} sc1\ns_add_u32 s{S_SPIN}, s{S_SPIN}, 1\ns_waitcnt vmcnt(0)\ns_mov_b32 s{S_TMP2}, 0")
    for x in range(8):
        e(f"v_readlane_b32 s{S_TMP}, v10, {DBG_XCC(x)//4}\ns_add_u32 s{S_TMP2}, s{S_TMP2}, s{S_TMP}")
    e(f"s_cmp_ge_u32 s{S_TMP2}, 256\ns_cbranch_scc1 PRO_OV2\ns_sleep 8\ns_cmp_lt_u32 s{S_SPIN}, {SPIN_MAX}\ns_cbranch_scc1 PRO_OV")
    e.label("PRO_OV2")
    e(f"v_readfirstlane_b32 s{S_TMP2}, v5\ns_mov_b32 s{S_GRP}, 7\ns_mov_b32 s{S_H}, 31")
    for x in range(8):
        nl = f"PRO_OVN{x}"
        e(f"v_readlane_b32 s{S_TMP}, v10, {DBG_XCC(x)//4}\ns_min_u32 s{S_TMP}, s{S_TMP}, 32\ns_add_u32 s{S_SPIN}, s{S_TMP}, s{S_TMP2}")
        e(f"s_cmp_lt_u32 s{S_SPIN}, 32\ns_cbranch_scc0 {nl}\ns_mov_b32 s{S_GRP}, {x}\ns_mov_b32 s{S_H}, s{S_SPIN}\ns_branch PRO_HAVE")
        e.label(nl)
        e(f"s_sub_u32 s{S_TMP2}, s{S_SPIN}, 32")
    e.label("PRO_HAVE")
    e(f"v_mov_b32 v10, s{S_GRP}\nv_mov_b32 v11, s{S_H}\nv_mov_b32 v9, 0\nds_write_b64 v9, v[10:11]\ns_waitcnt lgkmcnt(0)")
    e.label("PRO_W")
    e("s_barrier\nv_mov_b32 v9, 0\nds_read_b64 v[10:11], v9")
    e(f"s_cmp_eq_u32 s{S_W}, 0\ns_cbranch_scc0 PRO_W2")
    e(f"v_mov_b32 v3, {DBG_INIT}\ns_mov_b64 exec, 1\nglobal_atomic_add v3, v4, {DBG}\ns_mov_b64 exec, -1")
    e.label("PRO_W2")
    e(f"s_waitcnt lgkmcnt(0)\nv_readfirstlane_b32 s{S_GRP}, v10\nv_readfirstlane_b32 s{S_H}, v11")
    e(f"s_and_b32 s{S_GRP}, s{S_GRP}, 7\ns_and_b32 s{S_H}, s{S_H}, 31\ns_barrier")

def build(cfg):
    e = Em()
    e.label(KNAME)
    if cfg.get("gstamp"): e("s_memrealtime s[18:19]\ns_waitcnt lgkmcnt(0)\ns_mov_b32 s3, s18")
    common_prologue(e)
    e(f"s_cmp_eq_u32 s{S_GRP}, 0\ns_cbranch_scc0 WORKER")
    chain_prologue(e)
    if cfg.get("force_slow"): e(f"s_mov_b32 s{S_MODE}, 0")
    e(f"s_cmp_ge_u32 s{S_MODE}, 32\ns_cbranch_scc0 CHAIN_SLOW")
    chain_loop(e, True, cfg)
    e.label("CHAIN_SLOW")
    chain_loop(e, False, cfg)
    e.label("WORKER")
    if not cfg.get("chain_only"):
        import worker
        worker.worker(e, cfg)
    else:
        wait_init(e, "w", 32)
        e(f"s_lshl_b32 s{S_TMP}, s{S_H}, 6\ns_lshl_b32 s{S_TMP2}, s{S_GRP}, 2\ns_add_u32 s{S_TMP}, s{S_TMP}, s{S_TMP2}\ns_sub_u32 s{S_TMP}, s{S_TMP}, 4")
        e(f"v_mov_b32 v1, s{S_TMP}\nv_mov_b32 v2, 10\nbuffer_store_dword v2, v1, s[{R_WS}:{R_WS+3}], 0 offen sc1")
    e.label("KEND")
    e("s_waitcnt vmcnt(0)\ns_endpgm")
    probs = check_hazards(e.lines)
    for p in probs: print("HAZARD", p, file=sys.stderr)
    hdr = open('gated_mix__ssm_conv_h3__memory_aug_recurrent_mem_tr__prompt.s.ref').read().split("; Override launch")[0]
    s = hdr + f"; @launch grid=(256,1,1) block=(256,1,1) lds={LDS_SIZE}\n"
    s += f'.amdgcn_target "amdgcn-amd-amdhsa--gfx950"\n.text\n.globl {KNAME}\n.p2align 8\n.type {KNAME},@function\n'
    s += e.text()
    s += f""".section .rodata,"a"
.p2align 6
.amdhsa_kernel {KNAME}
  .amdhsa_next_free_vgpr 512
  .amdhsa_next_free_sgpr 102
  .amdhsa_accum_offset 256
  .amdhsa_group_segment_fixed_size 0
  .amdhsa_kernarg_size 136
  .amdhsa_user_sgpr_count 2
  .amdhsa_user_sgpr_kernarg_segment_ptr 1
  .amdhsa_system_sgpr_workgroup_id_x 1
.end_amdhsa_kernel
"""
    return s

if __name__ == "__main__":
    out = sys.argv[1]
    cfg = json.loads(sys.argv[2]) if len(sys.argv) > 2 else {}
    open(out, "w").write(build(cfg))
    json.dump(cfg, open(out + ".json", "w"))
```

```python
import re

class Em:
    def __init__(self):
        self.lines = []
        self.lg = 0
        self.uid = 0
    def __call__(self, s):
        for ln in s.split("\n"):
            ln = ln.strip()
            if not ln: continue
            self.lines.append(ln)
            if ln.startswith("ds_"):
                self.lg += 1
        return self.lg
    def label(self, name):
        self.lines.append(name + ":")
    def newlabel(self, p="L"):
        self.uid += 1
        return f"{p}_{self.uid}"
    def waitlg(self, seq):
        n = self.lg - seq
        assert n >= 0
        n = min(n, 15)
        self(f"s_waitcnt lgkmcnt({n})")
    def nop(self, n):
        while n > 0:
            k = min(n, 16); self(f"s_nop {k-1}"); n -= k
    def text(self):
        out = []
        for ln in self.lines:
            if ln.endswith(":") or ln.startswith("."):
                out.append(ln)
            else:
                out.append("    " + ln)
        return "\n".join(out) + "\n"

def vr(b, n=1, p="v"):
    return f"{p}{b}" if n == 1 else f"{p}[{b}:{b+n-1}]"

_reg = re.compile(r"\b([vas])(\d+)\b|\b([vas])\[(\d+):(\d+)\]")
def regs_of(tok):
    out = set()
    for m in _reg.finditer(tok):
        if m.group(1):
            out.add((m.group(1), int(m.group(2))))
        else:
            for i in range(int(m.group(4)), int(m.group(5)) + 1):
                out.add((m.group(3), i))
    if re.search(r"\bvcc\b", tok): out |= {("s", 106), ("s", 107)}
    if re.search(r"\bexec\b", tok): out |= {("s", 126), ("s", 127)}
    if re.search(r"\bm0\b", tok): out.add(("s", 124))
    return out

TRANS = ("v_exp_", "v_log_", "v_rcp_", "v_rsq_", "v_sqrt_", "v_sin_", "v_cos_")
def parse(ln):
    ln = ln.split(";")[0].strip()
    parts = ln.split(None, 1)
    op = parts[0]
    ops = []
    if len(parts) > 1:
        depth = 0; cur = ""
        for ch in parts[1]:
            if ch == "[": depth += 1
            if ch == "]": depth -= 1
            if ch == "," and depth == 0:
                ops.append(cur.strip()); cur = ""
            else: cur += ch
        ops.append(cur.strip())
    d = dict(op=op, ops=ops, w=set(), r=set(), kind="other", srcc=set(), ab=set())
    def R(i): return regs_of(ops[i].split()[0]) if i < len(ops) and ops[i] else set()
    if op.startswith("v_mfma") or op.startswith("v_smfmac"):
        d["kind"] = "mfma"
        d["w"] = R(0); d["ab"] = R(1) | R(2)
        if op.startswith("v_smfmac"):
            d["srcc"] = R(0); d["ab"] |= R(3)
        else:
            d["srcc"] = R(3)
        d["r"] = d["ab"] | d["srcc"]
        d["passes"] = 8 if "32x32" in op else 4
    elif op.startswith("v_"):
        d["kind"] = "valu"
        if op.startswith("v_cmp"):
            d["w"] = R(0); d["r"] = set().union(*[R(i) for i in range(1, len(ops))])
        elif op.startswith("v_permlane") and "swap" in op:
            d["w"] = R(0) | R(1); d["r"] = R(0) | R(1); d["perm"] = True
        elif op.startswith("v_readfirstlane") or op.startswith("v_readlane"):
            d["w"] = R(0); d["r"] = set().union(*[R(i) for i in range(1, len(ops))]); d["rdlane"] = True
        else:
            d["w"] = R(0); d["r"] = set().union(*[R(i) for i in range(1, len(ops))]) if len(ops) > 1 else set()
            if "_co_" in op and not op.startswith("v_addc") and not op.startswith("v_subb"):
                d["w"] |= R(1)
            if op.startswith("v_fmac") or op.startswith("v_writelane") or "dpp" in ln or op.startswith("v_dot2c"):
                d["r"] |= R(0)
            if op.startswith("v_cndmask") and len(ops) == 3: d["r"] |= {("s",106),("s",107)}
        d["dpp"] = ("_dpp" in op) or ("row_" in ln) or ("quad_perm" in ln) or ("wave_" in ln)
        d["trans"] = op.startswith(TRANS)
    elif op.startswith("ds_"):
        d["kind"] = "ds"
        if "read" in op:
            d["w"] = R(0); d["r"] = R(1)
        else:
            d["r"] = set().union(*[R(i) for i in range(len(ops))])
    elif op.startswith("buffer_") or op.startswith("global_"):
        d["kind"] = "vmem"
        isload = "load" in op and " lds" not in ln
        ret = "atomic" in op and "sc0" in ln
        if op in ("buffer_inv", "buffer_wbl2"):
            pass
        elif isload or ret:
            d["w"] = R(0); d["r"] = set().union(*[R(i) for i in range(1, len(ops))])
        else:
            d["r"] = set().union(*[R(i) for i in range(len(ops))])
            if "store" in op and ("x3" in op or "x4" in op):
                d["wide"] = R(0) if op.startswith("buffer_") else R(1)
        d["lds"] = " lds" in ln
    elif op.startswith("s_"):
        d["kind"] = "salu"
        if op == "s_nop": d["nop"] = int(ops[0]) + 1
        elif op.startswith(("s_cmp", "s_cbranch", "s_branch", "s_waitcnt", "s_barrier", "s_sleep", "s_endpgm", "s_setprio")):
            d["r"] = set().union(*[R(i) for i in range(len(ops))]) if ops else set()
        else:
            d["w"] = R(0); d["r"] = set().union(*[R(i) for i in range(1, len(ops))]) if len(ops) > 1 else set()
    return d

def check_hazards(lines, name=""):
    ins = [(ln, parse(ln)) for ln in lines if not (ln.endswith(":") or ln.startswith(".") or ln.startswith(";"))]
    probs = []
    n = len(ins)
    for i, (ln, a) in enumerate(ins):
        dist = 0
        tcur = 0; tmf = 0 if a["kind"] == "mfma" else None; pmf = a.get("passes", 0); hold = 12 if a["op"].startswith("v_smfmac") else 8
        for j in range(i + 1, min(n, i + 24)):
            lb, b = ins[j]
            tcur += 4
            if b["kind"] == "mfma":
                if tmf is not None: tcur = max(tcur, tmf + 4 * pmf)
                tmf = tcur; pmf = b["passes"]; hold = 12 if b["op"].startswith("v_smfmac") else 8
            elif b["kind"] == "valu" and tmf is not None:
                tcur = max(tcur, tmf + hold)
            if a["kind"] == "mfma": dist = max(dist, tcur // 4 - 1 - 1)
            tcur += 4 * (b.get("nop", 1) - 1)
            if b.get("trans") or b.get("perm"): tcur += 4
            need = 0
            vw = {r for r in a["w"] if r[0] in "va"}
            sw = {r for r in a["w"] if r[0] == "s"}
            if a["kind"] == "mfma":
                p = a["passes"]
                if b["kind"] == "mfma":
                    if vw & b["ab"]: need = max(need, 8 if p == 4 else 12)
                    if vw & b["srcc"]:
                        if not (b["srcc"] == vw and b["passes"] == p): need = max(need, 6 if p == 4 else 10)
                elif b["kind"] in ("valu", "ds", "vmem"):
                    if vw & (b["r"] | b["w"]): need = max(need, 8 if p == 4 else 12)
                if b["kind"] == "valu" and (a["srcc"] & b["w"]): need = max(need, 3 if p == 4 else 7)
            if a["kind"] == "valu":
                if b["kind"] == "mfma" and (vw & b["r"]): need = max(need, 2)
                if b["kind"] == "valu":
                    if b.get("perm") and (vw & b["r"]): need = max(need, 2)
                    if b.get("dpp") and (vw & b["r"]): need = max(need, 2)
                    if b.get("rdlane") and (vw & b["r"]): need = max(need, 1)
                    if a.get("trans") and not b.get("trans") and (vw & b["r"]): need = max(need, 1)
                    if sw & b["r"]: need = max(need, 4 if b.get("rdlane") and False else 2)
                if b["kind"] == "vmem" and (sw & b["r"]): need = max(need, 5)
            if a["kind"] == "vmem" and a.get("wide"):
                if b["kind"] == "valu" and (a["wide"] & b["w"]): need = max(need, 2)
            if a["kind"] == "salu" and ("s", 124) in a["w"]:
                if b["kind"] == "vmem" and b.get("lds"): need = max(need, 1)
            if need > dist:
                probs.append(f"{name}: need {need} have {dist}:\n      {ln}\n   -> {lb}")
            dist += b.get("nop", 1)
            if dist >= 12: break
    return probs
```

```python
from asmlib import Em, vr
from layout import *

S_Q, S_K, S_V, S_SH, S_SSMK, S_SSMD, S_MEM0 = 4, 6, 8, 10, 12, 14, 16
S_WQ, S_WK, S_WV, S_WO, S_GATE, S_OUT, S_DBG, S_WS = 20, 22, 24, 26, 28, 30, 32, 34
R_WS, R_T, R_T2 = 36, 40, 44
S_W, S_XCC, S_GRP, S_H = 48, 49, 50, 51
S_W0M = 76
NINIT = 28
SPIN_MAX = 1 << 15

def srd(e, r, p, size):
    e(f"s_mov_b32 s{r}, s{p}\ns_mov_b32 s{r+1}, s{p+1}\ns_mov_b32 s{r+2}, {size}\ns_mov_b32 s{r+3}, 0x20000")

def lane_consts(e, c, g, lane="v0"):
    e(f"v_and_b32 {c}, 15, {lane}\nv_lshrrev_b32 {g}, 4, {lane}")

def emit_UB(e, dst, c, b, t):
    e(f"v_lshrrev_b32 {t}, 1, {b}")
    e(f"v_lshl_add_u32 {t}, {t}, 3, {c}")
    e(f"v_and_b32 {t}, 15, {t}")
    e(f"v_lshl_add_u32 {t}, {b}, 4, {t}")
    e(f"v_lshlrev_b32 {dst}, 3, {t}")

IDX, A_RSR, A_AGW, A_AGR, A_TR, A_TRK, A_UW, A_W, A_KX, A_VX, T0, A_RSW, SEL = 0, 1, 2, 3, 4, 5, 6, 7, 8, 9, 10, 11, 12
MEMA, QB, KXA, XT, ACA, ACB = 16, 48, 64, 88, 96, 104
WV0 = 112
S_STEP, S_RSW0, S_RSW1, S_RSR0, S_RSR1, S_AGW, S_AGRST, S_AGR0, S_AGR1 = 52, 53, 54, 55, 56, 57, 58, 59, 60
S_KVG, S_KVL, S_KVM, S_READY, S_SPIN, S_AGSLOT, S_TMP, S_TMP2 = 61, 62, 63, 64, 65, 66, 67, 68
S_M0, S_M1, S_M2 = 70, 72, 74
S_AGM = 72
S_ODD = 78
S_SC = 80
S_CF = 81
S_MODE = 82
S_TAG = 83
S_KVG2, S_FLV = 10, 11
S_RSR = [55, 56, 4, 5]
S_EM, S_LM, S_LB = 4, 6, 8
S_AGM2 = 74
S_ST = 84

BLOCKS = [("q", J) for J in range(3, 8)] + [("k", J) for J in range(8)] + [("v", J) for J in range(8)] \
       + [("o", (0, p)) for p in range(4)] + [("q", 0), ("q", 1), ("q", 2)] + [("o", (1, p)) for p in range(4)]
NREG = 25
def frag_reg(i):
    if i < 32: return ("a", 8 * i)
    return ("v", WV0 + 8 * (i - 32))
FRAG = {}
for n, (m, J) in enumerate(BLOCKS):
    for t in range(2):
        if n < NREG: FRAG[(m, J, t)] = frag_reg(2 * n + t)
        else: FRAG[(m, J, t)] = ("lds", (n - NREG) * 4096 + t * 2048)
def slot_addr(n):
    s = n % 10
    wl = {5: 0, 6: 1, 7: 2, 8: 3, 9: 4, 0: 5, 1: 6}
    return ("wl", wl[s]) if s in wl else ("ot", s - 2)

def wait_init(e, tag, vt):
    l = e.newlabel("WI"); d = e.newlabel("WID")
    e(f"s_mov_b32 s{S_SPIN}, 0")
    e(f"v_mbcnt_lo_u32_b32 v{vt+1}, -1, 0\nv_mbcnt_hi_u32_b32 v{vt+1}, -1, v{vt+1}\nv_lshlrev_b32 v{vt+1}, 2, v{vt+1}")
    e.label(l)
    e(f"global_load_dword v{vt}, v{vt+1}, s[{S_DBG}:{S_DBG+1}] sc1")
    e(f"s_add_u32 s{S_SPIN}, s{S_SPIN}, 1")
    e("s_waitcnt vmcnt(0)")
    e(f"v_readlane_b32 s{S_TMP}, v{vt}, {DBG_INIT//4}")
    e(f"s_cmp_ge_u32 s{S_TMP}, {NINIT}\ns_cbranch_scc1 {d}")
    e("s_sleep 16")
    e(f"s_cmp_lt_u32 s{S_SPIN}, {SPIN_MAX}\ns_cbranch_scc1 {l}")
    e.label(d)

def kv_poll(e, va, vb, done):
    l = e.newlabel("KR")
    e(f"s_mov_b32 s{S_SPIN}, 0")
    e(f"v_mbcnt_lo_u32_b32 v{vb}, -1, 0\nv_mbcnt_hi_u32_b32 v{vb}, -1, v{vb}\nv_lshlrev_b32 v{vb}, 2, v{vb}")
    e.label(l)
    e(f"s_lshl_b32 s{S_TMP}, s{S_H}, 8")
    e(f"buffer_load_dword v{va}, v{vb}, s[{R_WS}:{R_WS+3}], s{S_TMP} offen sc1")
    e(f"s_add_u32 s{S_SPIN}, s{S_SPIN}, 1")
    e("s_waitcnt vmcnt(0)")
    e(f"v_cmp_eq_u32 vcc, 0, v{va}\ns_ff1_i32_b64 s{S_READY}, vcc")
    e(f"s_cmp_gt_u32 s{S_READY}, s{S_TMP2}\ns_cbranch_scc1 {done}")
    e("s_sleep 16")
    e(f"s_cmp_lt_u32 s{S_SPIN}, {SPIN_MAX}\ns_cbranch_scc1 {l}")
    e(f"s_branch {done}")

def kv_ready(e, delta, va, vb):
    d = e.newlabel("KRD")
    e(f"s_add_u32 s{S_TMP2}, s{S_STEP}, {delta}")
    kv_poll(e, va, vb, d)
    e.label(d)

def kv_dma(e):
    out = []
    for i in range(4):
        pre = [f"s_add_u32 m0, s{S_KVL}, {(i//2)*8192}", f"s_add_u32 s{S_TMP}, s{S_KVG}, {(i//2)*8192}"]
        out.append(pre + [f"buffer_load_dwordx4 v{A_AGR}, s[{R_WS}:{R_WS+3}], s{S_TMP} offen offset:{(i%2)*1024} sc1 lds"])
    return out

def chain_prologue(e, cfg={}):
    e("; ---- chain prologue")
    lane_consts(e, "v16", "v17")
    e("v_and_b32 v18, 3, v0\nv_lshrrev_b32 v19, 2, v0")
    e(f"s_lshl_b32 s{S_TMP}, s{S_H}, 8\ns_lshl_b32 s{S_TMP2}, s{S_W}, 6\ns_add_u32 s{S_TMP}, s{S_TMP}, s{S_TMP2}")
    e(f"v_lshlrev_b32 v20, 13, v19\nv_lshl_add_u32 v20, v18, 4, v20\nv_add_u32 v20, s{S_TMP}, v20")
    e(f"s_lshl_b32 s{S_TMP}, s{S_H}, 17\ns_lshl_b32 s{S_TMP2}, s{S_W}, 8\ns_add_u32 s{S_TMP}, s{S_TMP}, s{S_TMP2}")
    e(f"v_lshlrev_b32 v21, 10, v19\nv_lshl_add_u32 v21, v18, 4, v21\nv_add_u32 v21, s{S_TMP}, v21")
    e("v_and_b32 v22, 1, v17\nv_lshlrev_b32 v22, 5, v22")
    e("v_lshrrev_b32 v23, 1, v17\nv_lshl_add_u32 v22, v23, 2, v22")
    e("v_lshrrev_b32 v23, 3, v16\nv_lshl_add_u32 v22, v23, 4, v22")
    e("v_bfe_u32 v23, v16, 2, 1\nv_add_u32 v22, v22, v23")
    e("v_lshlrev_b32 v22, 6, v22\nv_lshl_add_u32 v22, v18, 3, v22")
    e(f"s_mul_i32 s{S_KVL}, s{S_W}, 28672")
    e(f"s_mul_i32 s{S_KVG}, s{S_W}, 12288\ns_add_u32 s{S_KVG}, s{S_KVG}, {L_KVB}")
    e(f"v_add_u32 v24, s{S_KVL}, v22\nv_add_u32 v25, s{S_KVG}, v22")
    e(f"v_lshl_add_u32 v{A_W}, v0, 4, s{S_KVL}")
    RW = {"q": R_T, "k": R_T2, "v": 84, "o": 88}
    for m, p in (("q", S_WQ), ("k", S_WK), ("v", S_WV), ("o", S_WO)): srd(e, RW[m], p, 0x400000)
    def issue(n):
        m, J = BLOCKS[n]
        kind, k = slot_addr(n)
        base = S_KVL if kind == "wl" else S_KVG
        for i in range(4):
            e(f"s_add_u32 m0, s{base}, {k*4096 + i*1024}")
            if m == "o":
                so = (64 * J[0] + 16 * i) * 1024 + J[1] * 64
                e(f"s_mov_b32 s{S_TMP}, {so}")
                e(f"buffer_load_dwordx4 v21, s[{RW[m]}:{RW[m]+3}], s{S_TMP} offen lds")
            else:
                so = (64 * J + 16 * i) * 8192
                e(f"s_mov_b32 s{S_TMP}, {so}")
                e(f"buffer_load_dwordx4 v20, s[{RW[m]}:{RW[m]+3}], s{S_TMP} offen lds")
    def consume(n, outstanding):
        m, J = BLOCKS[n]
        kind, k = slot_addr(n)
        e(f"s_waitcnt vmcnt({4*outstanding})")
        av = "v24" if kind == "wl" else "v25"
        for t in range(2):
            f = FRAG[(m, J, t)]
            for mm in range(4):
                off = k * 4096 + (8 * (mm // 2) + 2 * (mm % 2)) * 64 + t * 32
                if f[0] == "lds": dst = vr(32 + 8 * t + 2 * mm, 2)
                else: dst = vr(f[1] + 2 * mm, 2, f[0])
                e(f"ds_read_b64_tr_b16 {dst}, {av} offset:{off}")
        e("s_waitcnt lgkmcnt(0)")
        if n >= NREG:
            for t in range(2):
                for hf in range(2):
                    e(f"ds_write_b128 v{A_W}, {vr(32+8*t+4*hf,4)} offset:{k*4096 + t*2048 + hf*1024}")
            e("s_waitcnt lgkmcnt(0)")
    N = len(BLOCKS)
    for n in range(10): issue(n)
    e(f"v_and_b32 v26, 1, v0\nv_cmp_eq_u32 vcc, 1, v26\nv_mov_b32 v27, 0x44444444\nv_mov_b32 v28, 0xeeeeeeee")
    e(f"s_mov_b64 s[{S_ODD}:{S_ODD+1}], vcc")
    e(f"v_cndmask_b32 v29, v27, v28, vcc")
    for r in range(4):
        e(f"v_mov_b32 v{SEL+r}, 0")
    e("v_mov_b32 v27, 0x3f80\nv_mov_b32 v28, 0x3f800000")
    for j in range(8):
        e(f"v_cmp_eq_u32 vcc, {j}, v16\ns_nop 1\nv_cndmask_b32 v{SEL+j//2}, v{SEL+j//2}, v{27+(j%2)}, vcc")
    e(f"s_and_b32 s{S_TMP}, s{S_W}, 2\ns_lshl_b32 s{S_TMP}, s{S_TMP}, 11\ns_lshl_b32 s{S_TMP2}, s{S_H}, 7\ns_add_u32 s{S_TMP}, s{S_TMP}, s{S_TMP2}")
    e(f"v_lshrrev_b32 v26, 3, v0\nv_and_b32 v27, 7, v0\nv_lshlrev_b32 v{A_RSR}, 13, v26\nv_lshl_add_u32 v{A_RSR}, v27, 4, v{A_RSR}\nv_add_u32 v{A_RSR}, s{S_TMP}, v{A_RSR}")
    e(f"s_lshl_b32 s{S_TMP2}, s{S_W}, 9\nv_lshl_add_u32 v{A_RSW}, v0, 3, s{S_TMP2}")
    e(f"v_and_b32 v26, 1, v17\nv_lshl_add_u32 v26, v27, 1, v26\ns_and_b32 s{S_TMP2}, s{S_H}, 3\nv_mov_b32 v27, s{S_TMP2}")
    emit_UB(e, f"v{A_AGW}", "v26", "v27", "v28")
    e(f"s_and_b32 s{S_TMP}, s{S_TMP}, 0xfffffe00\nv_add_u32 v{A_AGW}, s{S_TMP}, v{A_AGW}")
    e(f"s_mov_b32 s{S_AGM}, 0x00FF00FF\ns_mov_b32 s{S_AGM+1}, 0\ns_mov_b32 s{S_AGM2}, -1\ns_mov_b32 s{S_AGM2+1}, 0")
    e(f"v_bfe_u32 v26, v0, 3, 1\nv_lshl_add_u32 v{A_AGW}, v26, 14, v{A_AGW}")
    e(f"s_lshl_b32 s{S_TMP}, s{S_W}, 11\ns_add_u32 s{S_TMP}, s{S_TMP}, {L_MEM}")
    e(f"v_lshl_add_u32 v{A_AGR}, v0, 4, s{S_TMP}")
    e(f"s_lshl_b32 s{S_TMP}, s{S_W}, 10\ns_add_u32 s{S_TMP}, s{S_TMP}, {L_MEM}")
    emit_UB(e, f"v{A_UW}", "v16", "v17", "v28")
    e(f"v_add_u32 v{A_UW}, s{S_TMP}, v{A_UW}")
    e("v_lshrrev_b32 v26, 2, v16\nv_lshl_add_u32 v26, v17, 2, v26")
    emit_UB(e, f"v{A_TR}", "v26", "v18", "v28")
    e(f"v_add_u32 v{A_TR}, {L_MEM}, v{A_TR}")
    e("v_and_b32 v27, 1, v18\nv_lshlrev_b32 v27, 1, v27\nv_lshrrev_b32 v28, 1, v18\nv_or_b32 v27, v27, v28")
    emit_UB(e, f"v{A_TRK}", "v26", "v27", "v28")
    e(f"v_add_u32 v{A_TRK}, {L_MEM}, v{A_TRK}")
    e(f"v_lshlrev_b32 v{A_KX}, 4, v0\nv_add_u32 v{A_KX}, {L_KVB}, v{A_KX}")
    e(f"v_lshrrev_b32 v26, 1, v17\nv_lshl_add_u32 v26, v26, 4, v16\nv_lshlrev_b32 v26, 4, v26\nv_and_b32 v27, 1, v17\nv_lshl_add_u32 v26, v27, 3, v26")
    e(f"s_lshl_b32 s{S_TMP}, s{S_W}, 11\ns_add_u32 s{S_TMP}, s{S_TMP}, {L_KVB + 8192}\nv_add_u32 v{A_VX}, s{S_TMP}, v26")
    for n in range(N):
        consume(n, min(N - 1 - n, 9))
        if n + 10 < N: issue(n + 10)
    e("s_barrier")
    if cfg.get("gstamp"): e("s_memrealtime s[18:19]\ns_waitcnt lgkmcnt(0)\ns_mov_b32 s69, s18")
    srd(e, R_T, S_MEM0, 8192)
    e(f"s_lshl_b32 s{S_TMP}, s{S_W}, 8")
    e(f"v_lshlrev_b32 v26, 11, v17\nv_lshl_add_u32 v26, v16, 1, v26\nv_add_u32 v26, s{S_TMP}, v26")
    for u in range(4):
        e(f"buffer_load_ushort v{32+2*u}, v26, s[{R_T}:{R_T+3}], 0 offen offset:{u*64}")
        e(f"buffer_load_ushort v{33+2*u}, v26, s[{R_T}:{R_T+3}], 0 offen offset:{u*64+1024}")
        e(f"buffer_load_ushort v{40+2*u}, v26, s[{R_T}:{R_T+3}], 0 offen offset:{u*64+32}")
        e(f"buffer_load_ushort v{41+2*u}, v26, s[{R_T}:{R_T+3}], 0 offen offset:{u*64+32+1024}")
    e("s_waitcnt vmcnt(0)")
    for r in range(8): e(f"v_lshl_or_b32 v{32+r}, v{40+r}, 16, v{32+r}")
    e(f"s_lshl_b32 s{S_TMP}, s{S_W}, 9\nv_subrev_u32 v27, s{S_TMP}, v{A_UW}")
    for u in range(4):
        e(f"ds_write_b64 v27, {vr(32+2*u,2)} offset:{u*2048}")
    e(f"v_mov_b32 v{IDX}, v29")
    e(f"s_mov_b32 s{S_STEP}, 0\ns_mov_b32 s{S_READY}, 0")
    e(f"s_lshl_b32 s{S_TMP}, s{S_H}, 13")
    e(f"s_add_u32 s{S_RSW0}, s{S_TMP}, {WS_RS}\ns_add_u32 s{S_RSW1}, s{S_RSW0}, 4096")
    for i in range(4): e(f"s_mov_b32 s{S_RSR[i]}, {WS_RS + 0x10000 * i}")
    e(f"s_mov_b32 s{S_AGSLOT}, 0\ns_mov_b32 s{S_AGW}, {WS_AG}\ns_mov_b32 s{S_TAG}, 0")
    e(f"s_lshl_b32 s{S_TMP}, s{S_H}, 14\ns_add_u32 s{S_KVG}, s{S_TMP}, {WS_KV - L_MEM}")
    e(f"s_lshl_b32 s{S_TMP}, s{S_W}, 11\ns_add_u32 s{S_KVL}, s{S_TMP}, {L_KVB}")
    e(f"s_lshl_b32 s{S_TMP}, s{S_H}, 13\ns_add_u32 s{S_KVM}, s{S_TMP}, {WS_KVM - L_MEM - 0x40000}")
    e(f"s_mov_b32 s{S_LB}, 0x3f003f00\ns_mov_b32 s{S_LB+1}, 0x3f803f80")
    e(f"s_lshl_b32 s{S_CF}, s{S_H}, 7\ns_add_u32 s{S_CF}, s{S_CF}, {FL_CFLAG}")
    e(f"s_mov_b32 s{S_SC}, 0x3e0293ee")
    wait_init(e, "c", 32)
    e(f"s_mov_b32 s{S_SPIN}, 0")
    e.label("MODE_L")
    e(f"v_readlane_b32 s{S_MODE}, v32, {DBG_XCC(0)//4}\ns_cmp_ge_u32 s{S_MODE}, 32\ns_cbranch_scc1 MODE_D\ns_mov_b32 s{S_TMP2}, 0")
    for x in range(8):
        e(f"v_readlane_b32 s{S_TMP}, v32, {DBG_XCC(x)//4}\ns_add_u32 s{S_TMP2}, s{S_TMP2}, s{S_TMP}")
    e(f"s_cmp_ge_u32 s{S_TMP2}, 256\ns_cbranch_scc1 MODE_D\ns_sleep 16")
    e(f"global_load_dword v32, v33, s[{S_DBG}:{S_DBG+1}] sc1\ns_add_u32 s{S_SPIN}, s{S_SPIN}, 1\ns_waitcnt vmcnt(0)\ns_cmp_lt_u32 s{S_SPIN}, {SPIN_MAX}\ns_cbranch_scc1 MODE_L")
    e.label("MODE_D")
    kv_ready(e, 0, 32, 33)
    for grp in kv_dma(e):
        for s in grp: e(s)
    e(f"s_add_u32 s{S_KVG}, s{S_KVG}, 0x80000\ns_xor_b32 s{S_KVL}, s{S_KVL}, 0x3C000")

def interleave(e, mf, fill):
    def run(x):
        for s in x:
            if callable(s): s()
            else: e(s)
    run(fill.get(-1, []))
    for i, m in enumerate(mf):
        if callable(m): m()
        else: e(m)
        run(fill.get(i, []))

def smf(acc, a, f):
    return f"v_smfmac_f32_16x16x64_bf16 {vr(acc,4)}, {vr(a,4)}, {vr(f[1],8,f[0])}, v{IDX}"
def mf32(d, a, b, c):
    return f"v_mfma_f32_16x16x32_bf16 {vr(d,4)}, {vr(a,4)}, {vr(b,4)}, {c if c == '0' else vr(c,4)}"

NPRE = 5
QL = [(0, 0), (0, 1), (1, 0), (1, 1), (2, 0), (2, 1)]
def rd_ql(e, n, r):
    off = FRAG[("q",) + QL[n]][1]
    e(f"ds_read_b128 {vr(r,4)}, v{A_W} offset:{off}")
    return e(f"ds_read_b128 {vr(r+4,4)}, v{A_W} offset:{off+1024}")
def preload_q(e):
    for n in range(NPRE): rd_ql(e, n, QB + 8 * n)

def kv_ready_ool(e, tail, va, vb):
    d = e.newlabel("KRD"); sl = e.newlabel("KRS")
    e(f"s_add_u32 s{S_TMP2}, s{S_STEP}, 1")
    e(f"s_cmp_le_u32 s{S_READY}, s{S_TMP2}\ns_cbranch_scc1 {sl}")
    e.label(d)
    def slow():
        e.label(sl)
        kv_poll(e, va, vb, d)
    tail.append(slow)

def chain_loop(e, fast, cfg):
    st = "" if fast else " sc1"
    tag_ = "F" if fast else "S"
    WS = f"s[{R_WS}:{R_WS+3}]"
    stamps = cfg.get("stamps", [])
    def S(name):
        if name in stamps:
            i = stamps.index(name); e(f"s_memtime s[{S_ST+2*i}:{S_ST+2*i+1}]")
    def SS(name): return lambda: S(name)
    LOOP, LAST, ENTRY, EARLY = [f"CH{tag_}_{x}" for x in ("LOOP", "LAST", "ENTRY", "EARLY")]
    tail = []
    seq = {}
    def wt(key): return lambda: e.waitlg(seq[key])
    VP, KP = XT, XT + 4
    RP, RED, AGO, T1, AP = MEMA, MEMA + 16, MEMA + 20, MEMA + 22, MEMA + 24
    preload_q(e)
    for r in range(0, 16, 2): e(f"v_mov_b64 {vr(ACA+r,2)}, 0")
    e("s_waitcnt vmcnt(0) lgkmcnt(0)")
    if cfg.get("gstamp"): e("s_memrealtime s[18:19]\ns_memtime s[16:17]")
    kv_ready(e, 1, T0, T1)
    e(f"s_add_u32 s{S_KVG2}, s{S_KVG}, 8192\ns_mov_b32 m0, s{S_KVL}\nv_mov_b32 v{T0}, 0")
    e(f"s_branch {ENTRY}")
    def rs_ld(r):
        for i in range(4): e(f"buffer_load_dwordx4 {vr(r+4*i,4)}, v{A_RSR}, {WS}, s{S_RSR[i]} offen sc1")
    def rs_chk(r, n):
        for i in range(4):
            e(f"s_waitcnt vmcnt({n+3-i})")
            e(mf32(RED, SEL, r + 4 * i, "0" if i == 0 else RED))
            e(f"v_bitop3_b32 v{T1 if i else T0}, v{r+4*i}, v{r+4*i+2}, s{S_TAG} bitop3:0x7e")
            if i: e(f"v_or_b32 v{T0}, v{T0}, v{T1}")
        e(f"v_and_b32 v{T0}, 1, v{T0}\nv_cmp_ne_u32 vcc, 0, v{T0}")
    def ag_ld(r):
        e(f"buffer_load_dwordx4 {vr(r,4)}, v{A_AGR}, {WS}, s{S_AGR0} offen sc1")
        e(f"buffer_load_dwordx4 {vr(r+4,4)}, v{A_AGR}, {WS}, s{S_AGR0} offen offset:1024 sc1")
    def ag_chk(r, n):
        e(f"s_waitcnt vmcnt({n})")
        e(f"ds_write_b128 v{A_AGR}, {vr(r,4)}\nds_write_b128 v{A_AGR}, {vr(r+4,4)} offset:1024")
        e(f"v_max3_u32 v{T0}, v{r}, v{r+1}, v{r+2}\nv_max3_u32 v{T1}, v{r+4}, v{r+5}, v{r+6}")
        e(f"v_max3_u32 v{T0}, v{T0}, v{r+3}, v{r+7}\nv_max_u32 v{T0}, v{T0}, v{T1}\nv_cmp_eq_u32 vcc, -1, v{T0}")
    def comm(reducer, d1, d2, K, KR):
        P1, P1R, P2, P2R = [e.newlabel(x) for x in ("P1", "P1R", "P2", "P2R")]
        if not reducer:
            preload_q(e)
            e(f"s_xor_b32 s{S_TAG}, s{S_TAG}, 1")
            S("rsi"); S("rs")
        else:
            e.nop(d1)
            S("rsi")
            rsets = [RP, ACA][:KR]
            rs_ld(RP)
            preload_q(e)
            if KR > 1:
                e.nop(cfg.get("e1", 5)); rs_ld(ACA)
            rs_chk(RP, 4 * (KR - 1))
            e(f"s_cbranch_vccnz {P1R}")
            e.label(P1 + "_OK")
            S("rs")
            def p1r():
                e.label(P1R)
                for k in range(KR):
                    e(f"s_add_u32 s{S_SPIN}, s{S_SPIN}, 1\ns_cmp_gt_u32 s{S_SPIN}, {SPIN_MAX}\ns_cbranch_scc1 {P1}_OK")
                    e("s_mov_b64 exec, vcc"); rs_ld(rsets[k]); e("s_mov_b64 exec, -1")
                    rs_chk(rsets[(k + 1) % KR], 4 * (KR - 1))
                    e(f"s_cbranch_vccz {P1}_OK")
                e(f"s_branch {P1R}")
            tail.append(p1r)
            e(f"s_xor_b32 s{S_TAG}, s{S_TAG}, 1\ns_nop 1")
            for r in range(4):
                e(f"v_add_f32_dpp v{RED+r}, v{RED+r}, v{RED+r} row_ror:8 row_mask:0xf bank_mask:0xf")
            e(f"s_mov_b64 exec, s[{S_AGM}:{S_AGM+1}]")
            e(f"v_cvt_pk_bf16_f32 v{AGO}, v{RED}, v{RED+1}\nv_cvt_pk_bf16_f32 v{AGO+1}, v{RED+2}, v{RED+3}")
            e(f"s_mov_b64 exec, s[{S_AGM2}:{S_AGM2+1}]\nbuffer_store_dwordx2 {vr(AGO,2)}, v{A_AGW}, {WS}, s{S_AGW} offen{st}\ns_mov_b64 exec, -1")
        S("ags")
        if cfg.get("agbar"): e("s_barrier")
        S("agb")
        kv_ready_ool(e, tail, T0, T1)
        e.nop(d2)
        sets = [AP, ACB][:K]
        for k, r in enumerate(sets):
            if k: e.nop(cfg.get("e2", 25))
            ag_ld(r)
        ag_chk(AP, 2 * (K - 1))
        e(f"s_cbranch_vccnz {P2R}")
        e.label(P2 + "_OK")
        S("ag")
        def p2r():
            e.label(P2R)
            for k in range(K):
                e(f"s_add_u32 s{S_SPIN}, s{S_SPIN}, {16 if stamps else 1}\ns_cmp_gt_u32 s{S_SPIN}, {SPIN_MAX}\ns_cbranch_scc1 {P2}_OK")
                e("s_mov_b64 exec, vcc"); ag_ld(sets[k]); e("s_mov_b64 exec, -1")
                ag_chk(sets[(k + 1) % K], 2 * (K - 1))
                e(f"s_cbranch_vccz {P2}_OK")
            e(f"s_branch {P2R}")
        tail.append(p2r)
        if stamps:
            sk = e.newlabel("NS")
            e(f"s_waitcnt lgkmcnt(0)\ns_cmp_eq_u32 s{S_STEP}, {cfg.get('stampstep', 40)}\ns_cbranch_scc0 {sk}")
            for i in range(len(stamps)): e(f"v_writelane_b32 v{T0}, s{S_ST+2*i}, {i}")
            e(f"v_writelane_b32 v{T0}, s{S_SPIN}, 10")
            for i in range(5): e(f"s_memrealtime s[{12+4*i}:{13+4*i}]\ns_memtime s[{14+4*i}:{15+4*i}]\ns_nop 5")
            e("s_waitcnt lgkmcnt(0)")
            for i in range(5): e(f"v_writelane_b32 v{T0}, s{12+4*i}, {16+2*i}\nv_writelane_b32 v{T0}, s{14+4*i}, {17+2*i}")
            e(f"s_lshl_b32 s{S_TMP}, s{S_H}, 2\ns_add_u32 s{S_TMP}, s{S_TMP}, s{S_W}\ns_lshl_b32 s{S_TMP}, s{S_TMP}, 8\ns_add_u32 s{S_TMP}, s{S_TMP}, {WS_STAMP}")
            e(f"v_mbcnt_lo_u32_b32 v{T1}, -1, 0\nv_mbcnt_hi_u32_b32 v{T1}, -1, v{T1}\nv_lshlrev_b32 v{T1}, 2, v{T1}")
            e(f"buffer_store_dword v{T0}, v{T1}, {WS}, s{S_TMP} offen")
            e.label(sk)
        for r in range(0, 8, 2): e(f"v_mov_b64 {vr(ACA+r,2)}, 0")
        e(f"v_mov_b32 v{T0}, s{S_FLV}\ns_waitcnt lgkmcnt(0)")
    D = cfg.get("D", [[0, 60], [0, 160], [25, 40], [0, 190]])
    if cfg.get("agbar"): D = [[cfg["d1e"], cfg.get("d2e", 0)], [0, cfg.get("d2e", 0)], [cfg["d1"], cfg["d2"]], [0, cfg["d2"]]]
    KK = [cfg.get("Ke", 1), cfg.get("Ke", 1), cfg.get("K", 2), cfg.get("K", 2)]
    for w in (0, 1, 3):
        e.label(f"{LOOP}_{w}")
        comm(w == 0, D[w][0], D[w][1], KK[w], cfg.get('KRe', 1))
        e(f"s_branch {ENTRY}")
    e(".p2align 6")
    e.label(f"{LOOP}_2")
    comm(True, D[2][0], D[2][1], KK[2], cfg.get('KR', 2))
    e.label(ENTRY)
    e("s_barrier")
    S("b1")
    def rd_m(J, x):
        def f(): seq[("m", J)] = e(f"ds_read_b64_tr_b16 {vr(MEMA+4*J+2*x,2)}, v{A_TR} offset:{(2*(J%2)+x)*2048 + (J//2)*512}")
        return f
    qorder = [(0, 0), (0, 1), (1, 0), (1, 1), (2, 0)] + [(J, t) for J in range(3, 8) for t in range(2)] + [(2, 1)]
    def qf(J, t):
        if J < 3: return ("v", QB + 8 * (QL.index((J, t)) % 5))
        return FRAG[("q", J, t)]
    mq = [smf(ACA + 4 * t, MEMA + 4 * J, qf(J, t)) for J, t in qorder]
    def rd_w(key, r, off):
        def f(): seq[key] = e(f"ds_read_b128 {vr(r,4)}, v{A_W} offset:{off}")
        return f
    def rq(n, hf): return rd_w(("ql", n), QB + 8 * (n % 5) + 4 * hf, FRAG[("q",) + QL[n]][1] + 1024 * hf)
    flag = [f"s_mov_b64 exec, s[{S_W0M}:{S_W0M+1}]", f"buffer_store_dword v{T0}, off, {WS}, s{S_CF} sc1", "s_mov_b64 exec, -1"]
    pubk = f"buffer_store_dwordx4 {vr(KP,4)}, v{A_AGR}, {WS}, s{S_KVM} offen sc1"
    pubv = f"buffer_store_dwordx4 {vr(VP,4)}, v{A_AGR}, {WS}, s{S_KVM} offen offset:1024 sc1"
    if cfg.get("nopub"): pubk = pubv = "s_nop 0"; flag = []
    def dm(i): return "s_nop 0" if cfg.get("nodma") else f"buffer_load_dwordx4 v{A_AGR}, {WS}, s{S_KVG if i < 2 else S_KVG2} offen offset:{(i%2)*1024} sc1 lds"
    z = lambda r: f"v_mov_b64 {vr(r,2)}, 0"
    fill = {-1: [rd_m(J, x) for J in range(4) for x in range(2)] + [wt(("m", 0)), SS("m0")],
            0: [rd_m(4, 0), dm(0)], 1: [rd_m(4, 1), wt(("m", 1))], 2: [rd_m(5, 0), dm(1)], 3: [rd_m(5, 1), wt(("m", 2))],
            4: [f"s_add_u32 m0, s{S_KVL}, 8192", wt(("m", 3))],
            5: ["s_waitcnt vmcnt(2)", rd_m(6, 0)], 6: [rd_m(6, 1), wt(("m", 4))], 7: [rd_m(7, 0), dm(2), z(ACB)], 8: [rd_m(7, 1), wt(("m", 5)), z(ACB + 2)],
            9: [rq(5, 0), dm(3), z(ACB + 4)], 10: [rq(5, 1), wt(("m", 6)), z(ACB + 6)], 11: flag, 12: [wt(("m", 7))], 13: [pubk], 14: [wt(("ql", 5))],
            }
    interleave(e, mq, fill)
    S("q")
    mk = [smf(ACB + 4 * t, MEMA + 4 * J, FRAG[("k", J, t)]) for J in range(8) for t in range(2)]
    def post_dup(acc, dst):
        return [f"v_add_f32 v{acc}, v{acc}, v{acc+1}", f"v_add_f32 v{acc+2}, v{acc+2}, v{acc+3}",
                f"v_cvt_pk_bf16_f32 v{dst}, v{acc}, v{acc}", f"v_cvt_pk_bf16_f32 v{dst+1}, v{acc+2}, v{acc+2}"]
    pq = post_dup(ACA, KP) + post_dup(ACA + 4, KP + 2)
    def rd_q(js, t):
        def f(): seq[("q", js)] = e(f"ds_read_b64_tr_b16 {vr(QB+4*js+2*t,2)}, v{A_TR} offset:{L_QU-L_MEM + js*1024 + t*512}")
        return f
    kxslot = [0, 1, 2, 3, 4, 5, 0, 1]
    def rd_kx(n):
        js, kt = n // 2, n % 2
        def f(): seq[("kx", n)] = e(f"ds_read_b128 {vr(KXA+4*kxslot[n],4)}, v{A_KX} offset:{(kt*4+js)*1024}")
        return f
    def wr_u(key, r, off):
        def f(): seq[key] = e(f"ds_write_b64 v{A_UW}, {vr(r,2)} offset:{off}")
        return f
    fill = {0: pq[0:2], 1: pq[2:4], 2: [wr_u("wq0", KP, L_QU - L_MEM)] + pq[4:6], 3: pq[6:8],
            4: [wr_u("wq1", KP + 2, L_QU - L_MEM + 512)], 5: [rd_kx(0)], 6: [rd_kx(1)], 7: [rd_kx(2)], 8: [rd_kx(3)],
            9: [wt("wq1"), SS("bq0"), "s_barrier", SS("bq1")],
            10: [rd_q(0, 0), rd_q(0, 1)], 11: [rd_q(1, 0), rd_q(1, 1)], 12: [rd_q(2, 0), rd_q(2, 1)], 13: [rd_q(3, 0), rd_q(3, 1)],
            14: [rd_kx(4)], 15: [rd_kx(5), wt(("q", 0))]}
    interleave(e, mk, fill)
    S("k")
    pk = post_dup(ACB, KP) + post_dup(ACB + 4, KP + 2)
    ms = []
    for js in range(4):
        for kt in range(2):
            n = js * 2 + kt
            ms.append(mf32(ACA + 4 * kt, KXA + 4 * kxslot[n], QB + 4 * js, "0" if js == 0 else ACA + 4 * kt))
    def rd_k(js, t):
        def f(): seq[("k", js)] = e(f"ds_read_b64_tr_b16 {vr(KXA+8+4*js+2*t,2)}, v{A_TRK} offset:{L_KU-L_MEM + js*1024 + t*512}")
        return f
    fill = {0: [rd_kx(6)] + pk[0:2], 1: [rd_kx(7), wt(("q", 1))] + pk[2:4],
            2: [wr_u("wk0", KP, L_KU - L_MEM)] + pk[4:6], 3: [wt(("kx", 5))] + pk[6:8],
            4: [wr_u("wk1", KP + 2, L_KU - L_MEM + 512), z(ACB), z(ACB + 2)],
            5: [wt(("kx", 7)), z(ACB + 4), z(ACB + 6)],
            6: [pubv],
            7: [f"s_cmp_ge_u32 s{S_STEP}, 63", f"s_cbranch_scc1 {LAST}"],
            }
    interleave(e, ms, fill)
    S("Sx")
    mv = [smf(ACB + 4 * t, MEMA + 4 * J, FRAG[("v", J, t)]) for J in range(8) for t in range(2)]
    SM = KXA
    X0, X1 = ACA, ACA + 4
    mx, t2 = KXA + 4, KXA + 5
    e0 = XT
    NV1 = cfg.get("nv1", 10)
    msm = [mf32(SM, KXA + 8 + 4 * js, QB + 4 * js, "0" if js == 0 else SM) for js in range(4)]
    odd = f"s[{S_ODD}:{S_ODD+1}]"
    early = [f"v_max3_f32 v{mx}, v{X0}, v{X0+1}, v{X0+2}", f"v_max3_f32 v{t2}, v{X1}, v{X1+1}, v{X1+2}",
             f"v_max3_f32 v{mx}, v{mx}, v{X0+3}, v{X1+3}", f"v_max_f32 v{mx}, v{mx}, v{t2}",
             f"v_cndmask_b32 v{e0}, v{X0}, v{X0+2}, {odd}", f"v_cndmask_b32 v{e0+1}, v{X0+1}, v{X0+3}, {odd}",
             f"v_cndmask_b32 v{e0+2}, v{X1}, v{X1+2}, {odd}", f"v_cndmask_b32 v{e0+3}, v{X1+1}, v{X1+3}, {odd}"]
    seqm = mv[:NV1] + msm + mv[NV1:]
    PVB0, PVB1, OAC, PA, LB, LA = QB, QB + 8, KXA + 8, KXA + 16, KXA + 20, KXA
    def rd_vx(n):
        t, hf = n // 2, n % 2
        def f(): seq["vx"] = e(f"ds_read_b64 {vr(QB+8*t+2+4*hf,2)}, v{A_VX} offset:{t*1024 + hf*512}")
        return f
    def rd_wo(T, hf):
        return rd_w(("wo", T), MEMA + 8 * (T % 4) + 4 * hf, FRAG[("o", (1, T // 2), T % 2)][1] + 1024 * hf)
    EE = [T0, e0, e0+1, e0+2, e0+3]
    fill = {0: [wt("wk1"), SS("bk0"), "s_barrier", SS("bk1")]}
    for n in range(8): fill[1 + n] = [rd_k(n // 2, n % 2), early[n]]
    FLAGPOS = flag
    fill[NV1 - 1] = [rd_wo(0, 0), wt(("k", 0)), SS("k0")] if NV1 - 1 > 8 else fill[NV1 - 1][:1] + [wt(("k", 0))] + fill[NV1 - 1][1:]
    fill[NV1] = [wt(("k", 1)), z(OAC), z(OAC + 2)]
    fill[NV1 + 1] = [wt(("k", 2)), z(OAC + 4), z(OAC + 6)]
    fill[NV1 + 2] = [wt(("k", 3)), f"v_mov_b32 v{PA+2}, 0"]
    fill[NV1 + 3] = [rd_vx(0), f"v_mov_b64 {vr(LB,2)}, s[{S_LB}:{S_LB+1}]", f"v_mov_b64 {vr(LB+2,2)}, s[{S_LB}:{S_LB+1}]"]
    interleave(e, seqm[:NV1 + 4], fill)
    S("Sm")
    rest = seqm[NV1 + 4:]
    assert len(rest) == 6
    def run(x):
        for s in x: s() if callable(s) else e(s)
    run([rest[0], rd_vx(1), rd_vx(2), rest[1], rd_vx(3), rd_wo(0, 1),
         f"v_max3_f32 v{mx}, v{mx}, v{SM}, v{SM+2}", f"v_mov_b32 v{t2}, v{mx}",
         rest[2], rd_wo(1, 0), rd_wo(1, 1),
         f"v_permlane32_swap_b32 v{mx}, v{t2}", f"v_max_f32 v{mx}, v{mx}, v{t2}", f"v_mov_b32 v{t2}, v{mx}",
         rest[3], rd_wo(2, 0), rd_wo(2, 1),
         f"v_permlane16_swap_b32 v{mx}, v{t2}", f"v_max_f32 v{mx}, v{mx}, v{t2}",
         rest[4], f"v_mul_f32 v{mx}, s{S_SC}, v{mx}", rest[5], rd_wo(3, 0), rd_wo(3, 1),
         f"v_cndmask_b32 v{T0}, v{SM}, v{SM+2}, {odd}"]
        + [f"v_fma_f32 v{x}, v{x}, s{S_SC}, -v{mx}" for x in EE] + [f"v_exp_f32 v{x}, v{x}" for x in EE]
        + [f"v_cvt_pk_bf16_f32 v{PA}, v{T0}, v{T0}", f"v_cvt_pk_bf16_f32 v{PA+1}, v{e0}, v{e0+1}", f"v_cvt_pk_bf16_f32 v{PA+3}, v{e0+2}, v{e0+3}",
           f"v_permlane32_swap_b32 v{PA}, v{PA+2}"])
    S("soft")
    cv = lambda t, h: f"v_cvt_pk_bf16_f32 v{QB+8*t+h}, v{ACB+4*t+2*h}, v{ACB+4*t+2*h+1}"
    run([cv(0, 0), cv(0, 1), mf32(LA, PA, LB, "0"), wt("vx"), cv(1, 0), cv(1, 1),
         f"v_smfmac_f32_16x16x64_bf16 {vr(OAC,4)}, {vr(PA,4)}, {vr(PVB0,8)}, v{IDX}", "s_nop 0",
         f"v_smfmac_f32_16x16x64_bf16 {vr(OAC+4,4)}, {vr(PA,4)}, {vr(PVB1,8)}, v{IDX}",
         f"v_add_f32 v{LA}, v{LA}, v{LA+1}", f"v_add_f32 v{LA+2}, v{LA+2}, v{LA+3}", f"v_rcp_f32 v{LA}, v{LA}", f"v_rcp_f32 v{LA+2}, v{LA+2}",
         f"v_add_f32 v{OAC}, v{OAC}, v{OAC+1}", f"v_add_f32 v{OAC+2}, v{OAC+2}, v{OAC+3}",
         f"v_mul_f32 v{OAC}, v{OAC}, v{LA}", f"v_mul_f32 v{OAC+2}, v{OAC+2}, v{LA+2}",
         f"v_add_f32 v{OAC+4}, v{OAC+4}, v{OAC+5}", f"v_add_f32 v{OAC+6}, v{OAC+6}, v{OAC+7}",
         f"v_mul_f32 v{OAC+4}, v{OAC+4}, v{LA}", f"v_mul_f32 v{OAC+6}, v{OAC+6}, v{LA+2}",
         f"v_cvt_pk_bf16_f32 v{OAC}, v{OAC}, v{OAC+4}", f"v_cvt_pk_bf16_f32 v{OAC+1}, v{OAC+2}, v{OAC+6}"])
    WAC = [QB, QB + 4, QB + 8, QB + 12, ACA, ACA + 4, ACB, ACB + 4]
    so = e(f"ds_write_b64 v{A_UW}, {vr(OAC,2)} offset:{L_QU-L_MEM}")
    S("ow")
    e(f"v_mov_b64 {vr(VP,2)}, {vr(PVB0,2)}\nv_mov_b64 {vr(VP+2,2)}, {vr(PVB1,2)}")
    for r in range(0, 16, 2): e(z(QB + r))
    e.waitlg(so)
    S("bo0")
    e("s_barrier")
    S("bo1")
    OA = KXA
    for J in range(2):
        for x in range(2):
            seq[("oa", J)] = e(f"ds_read_b64_tr_b16 {vr(OA+4*J+2*x,2)}, v{A_TR} offset:{L_QU-L_MEM + (2*J+x)*1024}")
    for r in range(0, 16, 2): e(z(ACA + r))
    mo = []
    for p in range(4):
        for T in (2 * p, 2 * p + 1): mo.append(smf(WAC[T], OA, FRAG[("o", (0, T // 2), T % 2)]))
        for T in (2 * p, 2 * p + 1): mo.append(smf(WAC[T], OA + 4, ("v", MEMA + 8 * (T % 4))))
    RSO = OAC
    def post_pair(p):
        a, b = WAC[2 * p], WAC[2 * p + 1]; d = RSO + 2 * p
        return [f"v_add_f32 v{a}, v{a}, v{a+1}", f"v_add_f32 v{a+2}, v{a+2}, v{a+3}",
                f"v_add_f32 v{b}, v{b}, v{b+1}", f"v_add_f32 v{b+2}, v{b+2}, v{b+3}",
                f"v_cvt_pk_bf16_f32 v{d}, v{a}, v{b}", f"v_cvt_pk_bf16_f32 v{d+1}, v{a+2}, v{b+2}",
                f"v_and_or_b32 v{d}, v{d}, -2, s{S_TAG}",
                f"buffer_store_dwordx2 {vr(d,2)}, v{A_RSW}, {WS}, s{S_RSW0 if p < 2 else S_RSW1} offen offset:{(p%2)*2048}{st}"]
    p0, p1, p2, p3 = [post_pair(p) for p in range(4)]
    fill = {-1: [wt(("oa", 0)), SS("oa")], 1: [wt(("oa", 1))], 2: [rd_wo(4, 0), rd_wo(4, 1)], 3: [rd_wo(5, 0), rd_wo(5, 1)],
            4: ["s_nop 0"] + p0[0:1], 5: p0[1:3], 6: [rd_wo(6, 0), rd_wo(6, 1)] + p0[3:5], 7: [rd_wo(7, 0), rd_wo(7, 1)] + p0[5:7], 8: p0[7:8] + p1[0:1],
            9: [wt(("wo", 4))] + p1[1:3], 10: [wt(("wo", 5))] + p1[3:5], 11: p1[5:7],
            12: p1[7:8] + p2[0:1], 13: [wt(("wo", 6))] + p2[1:3], 14: [wt(("wo", 7))] + p2[3:5],
            15: p2[5:8] + ["s_nop 2"] + p3,
            }
    interleave(e, mo, fill)
    S("Wo")
    e(f"v_mov_b64 {vr(AGO,2)}, -1")
    e(f"v_xor_b32 v{A_KX}, 0x3C000, v{A_KX}\nv_xor_b32 v{A_VX}, 0x3C000, v{A_VX}")
    e(f"v_add_u32 v{A_AGW}, 0x2000, v{A_AGW}\nv_subrev_u32 v{T0}, 0x6000, v{A_AGW}\nv_min_u32 v{A_AGW}, v{A_AGW}, v{T0}")
    e(f"s_add_u32 s{S_AGSLOT}, s{S_AGSLOT}, 0x2000\ns_cmp_eq_u32 s{S_AGSLOT}, 0x6000\ns_cselect_b32 s{S_AGSLOT}, 0, s{S_AGSLOT}")
    e(f"s_add_u32 s{S_AGR0}, s{S_AGSLOT}, {WS_AG - L_MEM}")
    e(f"s_add_u32 s{S_KVG}, s{S_KVG}, 0x80000\ns_xor_b32 s{S_KVL}, s{S_KVL}, 0x3C000\ns_add_u32 s{S_KVM}, s{S_KVM}, 0x40000")
    e(f"s_add_u32 s{S_KVG2}, s{S_KVG}, 8192\ns_mov_b32 m0, s{S_KVL}\ns_mov_b32 s{S_FLV}, s{S_STEP}")
    e(f"s_add_u32 s{S_STEP}, s{S_STEP}, 1\ns_mov_b32 s{S_SPIN}, 0")
    for w in (2, 0, 1): e(f"s_cmp_eq_u32 s{S_W}, {w}\ns_cbranch_scc1 {LOOP}_{w}")
    e(f"s_branch {LOOP}_3")
    for t in tail: t()
    e.label(LAST)
    e(f"s_add_u32 s{S_KVM}, s{S_KVM}, 0x40000")
    e(pubk)
    for m in mv: e(m)
    e.nop(8)
    for t in range(2):
        e(f"v_cvt_pk_bf16_f32 v{VP+2*t}, v{ACB+4*t}, v{ACB+4*t+1}")
        e(f"v_cvt_pk_bf16_f32 v{VP+2*t+1}, v{ACB+4*t+2}, v{ACB+4*t+3}")
    e(pubv)
    e("s_waitcnt vmcnt(0) lgkmcnt(0)\ns_barrier")
    e(f"v_mov_b32 v{T0}, 64\ns_mov_b64 exec, s[{S_W0M}:{S_W0M+1}]")
    e(f"buffer_store_dword v{T0}, off, {WS}, s{S_CF} sc1")
    if cfg.get("gstamp"):
        e(f"s_memrealtime s[84:85]\ns_memtime s[86:87]\ns_waitcnt lgkmcnt(0)\ns_sub_u32 s86, s86, s16\nv_mov_b32 v24, s86\nv_mov_b32 v20, s3\nv_mov_b32 v21, s18\nv_mov_b32 v22, s84\nv_mov_b32 v23, s69")
        e(f"s_lshl_b32 s{S_TMP}, s{S_H}, 4\ns_add_u32 s{S_TMP}, s{S_TMP}, {WS_STAMP + 0x10000}")
        e(f"buffer_store_dwordx4 v[20:23], off, {WS}, s{S_TMP}\nbuffer_store_dword v24, off, {WS}, s{S_TMP} offset:1024")
    e("s_branch KEND")
```

```python
FL_KV     = 0x0000
FL_OFLAG  = 0x2000
FL_CFLAG  = 0x4000
FL_CONV   = 0x5000
FL_SIZE   = 0x8000
WS_AG     = 0x40000
WS_RS     = 0x100000
WS_STAMP  = 0x200000
WS_KV     = 0x1000000
WS_KVM    = 0x3040000
WS_O      = 0x4100000
WS_Y2     = 0x5200000
WS_G      = 0x5400000
WS_SIZE   = 0x10000000
def DBG_XCC(x): return (x % 4) * 64 + (x // 4) * 4
DBG_INIT = 64 + 8
DBG_OVF = 128 + 8
L_WL   = 0x0
L_KVB  = 0x1C000
L_MEM  = 0x24000
L_QU   = 0x26000
L_KU   = 0x27000
LDS_SIZE = 0x28000
PI_ = [0, 2, 1, 3]
def UB(c, b): return (b * 16 + ((c + 8 * (b >> 1)) & 15)) * 8
DP_SEG = 57
FL_O2 = 0x80000
DBG_PACE = 192 + 8
```

```python
from asmlib import Em, vr
from layout import *
from chain import *

WS = f"s[{R_WS}:{R_WS+3}]"
W_XB, W_QX, W_KMU, W_RED, W_STG = 0x0, 0x10000, 0x12000, 0x13000, 0x10000
NSLOT = 6
S_G, S_SEG, S_CNT, S_XL, S_XG, S_I, S_OFF, S_OFF2, S_STGB = 52, 53, 54, 55, 56, 57, 58, 59, 60
S_STP, S_END, S_PREV, S_CHN = 61, 66, 74, 75
R_X = 84
R_A, R_B = 40, 44
R_O = 88
V_C, V_G, V_L16, V_XSRC, V_XRD, V_T, V_T2 = 1, 2, 3, 4, 5, 6, 7

_cfg = {}
def WST(e, idx=None):
    if not _cfg.get("wstamp"): return
    e(f"s_memrealtime s[70:71]\ns_lshl_b32 s72, s{S_GRP}, 5\ns_add_u32 s72, s72, s{S_H}\ns_lshl_b32 s72, s72, 8\ns_lshl_b32 s73, s101, 2\ns_add_u32 s72, s72, s73")
    e(f"s_add_u32 s72, s72, {WS_STAMP + 0x20000}\ns_add_u32 s101, s101, 1\ns_waitcnt lgkmcnt(0)\ns_sub_u32 s70, s70, s3\nv_mov_b32 v{V_T}, s70\nv_mov_b32 v{V_T2}, 0\ns_mov_b64 exec, s[{S_W0M}:{S_W0M+1}]")
    e(f"buffer_store_dword v{V_T}, v{V_T2}, {WS}, s72 offen\ns_mov_b64 exec, -1\ns_waitcnt vmcnt(0)")

def load_blocks(e, blocks):
    N = len(blocks)
    def issue(n):
        r, vs, so, _, _ = blocks[n]
        for i in range(4):
            e(f"s_add_u32 m0, s{S_STGB}, {(n % NSLOT) * 4096 + i * 1024}\ns_mov_b32 s{S_TMP}, {so[i]}")
            e(f"buffer_load_dwordx4 {vs}, s[{r}:{r+3}], s{S_TMP} offen lds")
    for n in range(min(NSLOT, N)): issue(n)
    for n in range(N):
        e(f"s_waitcnt vmcnt({4 * min(N - 1 - n, NSLOT - 1)})")
        for dst, off in blocks[n][4]:
            e(f"ds_read_b64_tr_b16 {dst}, {blocks[n][3]} offset:{(n % NSLOT) * 4096 + off}")
        e("s_waitcnt lgkmcnt(0)")
        if n + NSLOT < N: issue(n + NSLOT)

def wmat_blocks(r, abase):
    out = []
    for J in range(8):
        rd = []
        for t in range(2):
            for m in range(4):
                s = 2 * J + m // 2
                rd.append((vr(abase + (t * 16 + s) * 4 + 2 * (m % 2), 2, "a"), (32 * (m // 2) + 4 * (m % 2)) * 64 + t * 32))
        out.append((r, "v20", [(64 * J + 16 * i) * 8192 for i in range(4)], "v22", rd))
    return out

def wo_blocks(r, abase):
    out = []
    for hh in range(8):
        rd = []
        for js in range(4):
            for m in range(2):
                rd.append((vr(abase + (hh * 4 + js) * 4 + 2 * m, 2, "a"), (32 * js + 16 * m) * 32))
        out.append((r, "v21", [(hh * 128 + 32 * i) * 1024 for i in range(4)], "v23", rd))
    return out

def wload_addr(e):
    e("v_and_b32 v18, 3, v0\nv_lshrrev_b32 v19, 2, v0")
    e(f"s_lshl_b32 s{S_TMP}, s{S_H}, 8\ns_lshl_b32 s{S_TMP2}, s{S_W}, 6\ns_add_u32 s{S_TMP}, s{S_TMP}, s{S_TMP2}")
    e(f"v_lshlrev_b32 v20, 13, v19\nv_lshl_add_u32 v20, v18, 4, v20\nv_add_u32 v20, s{S_TMP}, v20")
    e(f"s_lshl_b32 s{S_TMP}, s{S_W}, 20\ns_lshl_b32 s{S_TMP2}, s{S_H}, 5\ns_add_u32 s{S_TMP}, s{S_TMP}, s{S_TMP2}")
    e(f"v_lshrrev_b32 v21, 1, v0\nv_lshlrev_b32 v21, 10, v21\nv_and_b32 v24, 1, v0\nv_lshl_add_u32 v21, v24, 4, v21\nv_add_u32 v21, s{S_TMP}, v21")
    e(f"s_mul_i32 s{S_STGB}, s{S_W}, {NSLOT*4096}\ns_add_u32 s{S_STGB}, s{S_STGB}, {W_STG}")
    e(f"v_lshrrev_b32 v24, 2, v{V_C}")
    e(f"v_lshl_add_u32 v22, v{V_G}, 3, v24\nv_lshlrev_b32 v22, 6, v22\nv_lshl_add_u32 v22, v18, 3, v22\nv_add_u32 v22, s{S_STGB}, v22")
    e(f"v_lshl_add_u32 v23, v{V_G}, 2, v24\nv_lshlrev_b32 v23, 5, v23\nv_lshl_add_u32 v23, v18, 3, v23\nv_add_u32 v23, s{S_STGB}, v23")

def x_dma(e):
    out = []
    for i in range(8):
        out.append([f"s_add_u32 m0, s{S_XL}, {i*1024}", f"s_add_u32 s{S_TMP}, s{S_XG}, {i*64}",
                    f"buffer_load_dwordx4 v{V_XSRC}, s[{R_X}:{R_X+3}], s{S_TMP} offen lds"])
    return out

def flag_store(e, soff, val):
    e(f"v_mov_b32 v{V_T}, {val}\nv_mov_b32 v{V_T2}, s{soff}\ns_mov_b64 exec, s[{S_W0M}:{S_W0M+1}]")
    e(f"buffer_store_dword v{V_T}, v{V_T2}, {WS}, 0 offen sc1\ns_mov_b64 exec, -1")

def mfd(d, a, b, c, pa="v", pb="v"):
    return f"v_mfma_f32_16x16x32_bf16 {vr(d,4)}, {vr(a,4,pa)}, {vr(b,4,pb)}, {c if c == '0' else vr(c,4)}"

def phaseA(e, cfg):
    e("; ---- phase A : K,V projection")
    XF, ACC, OUT = 32, 64, 96
    srd(e, R_A, S_WK, 0x400000); srd(e, R_B, S_WV, 0x400000)
    e(f"s_cmp_lt_u32 s{S_G}, 3\ns_cselect_b32 s{S_STP}, 3, 4\ns_cselect_b32 s{S_END}, 27, 64\ns_cselect_b32 s{S_TMP}, 0, 24\ns_add_u32 s{S_SEG}, s{S_G}, s{S_TMP}")
    e(f"s_lshl_b32 s{S_XG}, s{S_SEG}, 15\ns_lshl_b32 s{S_XL}, s{S_W}, 13\nv_mov_b32 v{V_XRD}, v{V_L16}")
    for g in x_dma(e):
        for s in g: e(s)
    load_blocks(e, wmat_blocks(R_A, 0) + wmat_blocks(R_B, 128))
    wait_init(e, "w", 24)
    WST(e)
    e(f"s_mov_b32 s{S_CNT}, 0x7ffffff0\ns_mov_b32 s{S_I}, 0x7ffffff0")
    pa = cfg.get("pastamp")
    def acc(k):
        if pa: e(f"s_memtime s[70:71]\ns_waitcnt lgkmcnt(0)\ns_sub_u32 s72, s70, s92\ns_mov_b32 s92, s70\ns_add_u32 s{93+k}, s{93+k}, s72")
    if pa: e("s_memtime s[92:93]\ns_waitcnt lgkmcnt(0)\ns_mov_b32 s93, 0\ns_mov_b32 s94, 0\ns_mov_b32 s95, 0\ns_mov_b32 s96, 0")
    e.label("PA_LOOP")
    e("s_waitcnt vmcnt(4)")
    acc(0)
    e("s_barrier")
    acc(1)
    flag_store(e, S_CNT, 1)
    e(f"s_lshl_b32 s{S_TMP}, s{S_STP}, 15\ns_add_u32 s{S_XG}, s{S_XG}, s{S_TMP}\ns_xor_b32 s{S_XL}, s{S_XL}, 0x8000")
    dma = x_dma(e)
    seq = {}
    def rd(n):
        s, rt = n // 2, n % 2
        seq[n] = e(f"ds_read_b128 {vr(XF + 4 * (n % 8), 4)}, v{V_XRD} offset:{(rt * 16 + s) * 1024}")
    for n in range(6): rd(n)
    for n in range(32):
        s, rt = n // 2, n % 2
        e.waitlg(seq[n])
        x = XF + 4 * (n % 8)
        for t in range(2):
            a = ACC + 4 * (t * 2 + rt)
            e(mfd(a, (t * 16 + s) * 4, x, "0" if s == 0 else a, "a", "v"))
            if t == 0 and n + 6 < 32: rd(n + 6)
        for t in range(2):
            a = ACC + 16 + 4 * (t * 2 + rt)
            e(mfd(a, x, 128 + (t * 16 + s) * 4, "0" if s == 0 else a, "v", "a"))
        if n % 3 == 1 and n // 3 < 8:
            for q in dma[n // 3]: e(q)
    acc(2)
    e(f"v_xor_b32 v{V_XRD}, 0x8000, v{V_XRD}")
    e(f"s_lshl_b32 s{S_OFF}, s{S_SEG}, 19\ns_lshl_b32 s{S_TMP}, s{S_H}, 14\ns_add_u32 s{S_OFF}, s{S_OFF}, s{S_TMP}\ns_add_u32 s{S_OFF}, s{S_OFF}, {WS_KV}")
    e(f"s_lshl_b32 s{S_TMP}, s{S_W}, 10\ns_add_u32 s{S_TMP2}, s{S_OFF}, s{S_TMP}\ns_mov_b32 s{S_CNT}, s{S_I}\ns_lshl_b32 s{S_I}, s{S_H}, 6\ns_add_u32 s{S_I}, s{S_I}, s{S_SEG}\ns_lshl_b32 s{S_I}, s{S_I}, 2")
    for rt in range(2):
        o = OUT + 4 * rt
        for t in range(2):
            a = ACC + 4 * (t * 2 + rt)
            e(f"v_cvt_pk_bf16_f32 v{o+2*t}, v{a}, v{a+1}\nv_cvt_pk_bf16_f32 v{o+2*t+1}, v{a+2}, v{a+3}")
        e(f"buffer_store_dwordx4 {vr(o,4)}, v{V_L16}, {WS}, s{S_TMP2} offen sc1")
        e(f"s_add_u32 s{S_TMP2}, s{S_TMP2}, 4096")
    e(f"s_add_u32 s{S_TMP2}, s{S_TMP2}, s{S_TMP}")
    for t in range(2):
        o = OUT + 8 + 4 * t
        for rt in range(2):
            a = ACC + 16 + 4 * (t * 2 + rt)
            e(f"v_cvt_pk_bf16_f32 v{o+2*rt}, v{a}, v{a+1}\nv_cvt_pk_bf16_f32 v{o+2*rt+1}, v{a+2}, v{a+3}")
        e(f"buffer_store_dwordx4 {vr(o,4)}, v{V_L16}, {WS}, s{S_TMP2} offen offset:{t*1024} sc1")
    acc(3)
    e(f"s_add_u32 s{S_SEG}, s{S_SEG}, s{S_STP}\ns_cmp_lt_u32 s{S_SEG}, s{S_END}\ns_cbranch_scc1 PA_LOOP")
    e("s_waitcnt vmcnt(0)\ns_barrier")
    flag_store(e, S_CNT, 1)
    flag_store(e, S_I, 1)
    if pa:
        e(f"s_lshl_b32 s72, s{S_GRP}, 5\ns_add_u32 s72, s72, s{S_H}\ns_lshl_b32 s72, s72, 4\ns_add_u32 s72, s72, {WS_STAMP + 0x30000}")
        e(f"v_mov_b32 v32, s93\nv_mov_b32 v33, s94\nv_mov_b32 v34, s95\nv_mov_b32 v35, s96\nv_mov_b32 v36, 0\nbuffer_store_dwordx4 v[32:35], v36, {WS}, s72 offen")

def rb_pair(e, d, a, b):
    e(f"v_cvt_pk_bf16_f32 v{d}, v{a}, v{b}\nv_lshlrev_b32 v{a}, 16, v{d}\nv_and_b32 v{b}, 0xffff0000, v{d}")

C_UR, C_HP, URS, HPC = 0x0, 0x8000, 7680, 4160
HPS = 4 * HPC
def conv(e, cfg):
    e("; ---- conv task")
    S_TK = S_OFF
    e(f"s_cmp_lt_u32 s{S_G}, 3\ns_cbranch_scc1 CV_END\ns_sub_u32 s{S_TK}, s{S_G}, 3\ns_lshl_b32 s{S_TK}, s{S_TK}, 5\ns_add_u32 s{S_TK}, s{S_TK}, s{S_H}")
    srd(e, R_A, S_K, 0x200000); srd(e, R_B, S_V, 0x200000)
    KR, VR, SH, P, U = 32, 56, 72, 88, 112
    e(f"s_lshl_b32 s{S_TMP}, s{S_W}, 6\nv_add_u32 v16, s{S_TMP}, v0")
    e(f"s_lshl_b32 s{S_TMP}, s{S_TK}, 3\nv_lshlrev_b32 v17, 13, v16\nv_add_u32 v17, s{S_TMP}, v17")
    e("v_subrev_u32 v18, 3072, v17")
    for j in range(3): e(f"buffer_load_dwordx2 {vr(KR+2*j,2)}, v18, s[{R_A}:{R_A+3}], 0 offen offset:{j*1024}")
    e("v_add_u32 v19, 4096, v17")
    for j in range(8):
        va = "v17" if j < 4 else "v19"
        e(f"buffer_load_dwordx2 {vr(KR+6+2*j,2)}, {va}, s[{R_A}:{R_A+3}], 0 offen offset:{(j%4)*1024}")
        e(f"buffer_load_dwordx2 {vr(VR+2*j,2)}, {va}, s[{R_B}:{R_B+3}], 0 offen offset:{(j%4)*1024}")
    e(f"s_lshl_b32 s{S_TMP2}, s{S_TK}, 2\ns_add_u32 s{S_TMP2}, s{S_TMP2}, s{S_W}")
    e(f"s_lshl_b32 s{S_XG}, s{S_TMP2}, 12\ns_mul_i32 s{S_XL}, s{S_W}, {HPS}\ns_add_u32 s{S_XL}, s{S_XL}, {C_HP}")
    e(f"s_add_u32 s{R_O}, s{S_SSMK}, s{S_XG}\ns_addc_u32 s{R_O+1}, s{S_SSMK+1}, 0\ns_mov_b32 s{R_O+2}, 4096\ns_mov_b32 s{R_O+3}, 0x20000")
    HR = 140
    for i in range(5):
        e(f"v_add_u32 v22, {i*1024 - 64}, v{V_L16}\nv_add_u32 v23, {i*1024 - 48}, v{V_L16}")
        e(f"buffer_load_dwordx4 {vr(HR+6*i,4)}, v22, s[{R_O}:{R_O+3}], 0 offen\nbuffer_load_dwordx2 {vr(HR+6*i+4,2)}, v23, s[{R_O}:{R_O+3}], 0 offen")
    e(f"s_lshl_b32 s{S_TMP}, s{S_TK}, 5\ns_load_dwordx8 s[92:99], s[{S_SH}:{S_SH+1}], s{S_TMP}")
    e(f"s_lshl_b32 s{S_TMP}, s{S_TMP2}, 1\ns_and_b32 s{S_TMP}, s{S_TMP}, -4\ns_load_dword s{S_CNT}, s[{S_SSMD}:{S_SSMD+1}], s{S_TMP}")
    e(f"v_mov_b64 v[24:25], 0\nv_mov_b64 v[26:27], 0")
    e(f"s_mul_i32 s{S_I}, s{S_W}, {URS}\nv_add_u32 v20, s{S_I}, v{V_L16}")
    for i in range(2): e(f"ds_write_b128 v20, v[24:27] offset:{5120 + i*1024}")
    e(f"s_mov_b32 exec_hi, 0\nds_write_b128 v20, v[24:27] offset:{5120 + 2048}\ns_mov_b64 exec, -1")
    e("v_lshlrev_b32 v20, 3, v16\nv_sub_u32 v20, 2040, v20\nv_lshrrev_b32 v21, 5, v20\nv_and_b32 v20, 31, v20")
    e("v_mul_u32_u24 v21, 80, v21\nv_lshl_add_u32 v20, v20, 1, v21")
    e("s_waitcnt vmcnt(10) lgkmcnt(0)")
    if cfg.get("cvstamp"): WST(e)
    e("v_cmp_eq_u32 vcc, 0, v16\ns_nop 1")
    for r in range(6): e(f"v_cndmask_b32 v{KR+r}, v{KR+r}, v24, vcc")
    for ch in range(4):
        for j in range(4):
            src = 92 + ch * 2 + j // 2
            e(f"s_lshl_b32 s{62+j}, s{src}, 16" if j % 2 == 0 else f"s_and_b32 s{62+j}, s{src}, 0xffff0000")
        KF = 120
        for j in range(11):
            r = KR + 2 * j + ch // 2
            e(f"v_lshlrev_b32 v{KF+j}, 16, v{r}" if ch % 2 == 0 else f"v_and_b32 v{KF+j}, 0xffff0000, v{r}")
        for pr in range(4):
            a, b, t1, t2, d = P, P + 1, P + 2, P + 3, P + 4
            r0 = 2 * pr
            e(f"v_mul_f32 v{a}, s65, v{KF+r0}\nv_mul_f32 v{b}, s65, v{KF+r0+1}")
            rb_pair(e, d, a, b)
            for j in (2, 1, 0):
                e(f"v_mul_f32 v{t1}, s{62+j}, v{KF+r0+3-j}\nv_mul_f32 v{t2}, s{62+j}, v{KF+r0+1+3-j}")
                rb_pair(e, d, t1, t2)
                e(f"v_add_f32 v{a}, v{a}, v{t1}\nv_add_f32 v{b}, v{b}, v{t2}")
                rb_pair(e, d, a, b)
            for q, rr in ((t1, r0), (t2, r0 + 1)):
                r = VR + 2 * rr + ch // 2
                e(f"v_lshlrev_b32 v{q}, 16, v{r}" if ch % 2 == 0 else f"v_and_b32 v{q}, 0xffff0000, v{r}")
            e(f"v_mul_f32 v{a}, v{a}, v{t1}\nv_mul_f32 v{b}, v{b}, v{t2}")
            e(f"v_cvt_pk_bf16_f32 v{U+3-pr}, v{b}, v{a}")
        e(f"ds_write_b128 v20, {vr(U,4)} offset:{ch*URS}\ns_nop 1")
    if cfg.get("cvstamp"): WST(e)
    e(f"s_waitcnt vmcnt(0)\nv_add_u32 v22, s{S_XL}, v{V_L16}")
    for i in range(5):
        x = HR + 6 * i
        if i == 4: e("s_mov_b64 exec, 15")
        for k in range(4): e(f"v_alignbyte_b32 v{P+k}, v{x+k+1}, v{x+k}, 2")
        for k in range(4): e(f"v_alignbyte_b32 v{P+4+k}, v{x+k+2}, v{x+k+1}, 2")
        for k in range(4): e(f"v_mov_b32 v{P+8+k}, v{x+k+1}")
        e(f"ds_write_b128 v22, {vr(x,4)} offset:{i*1024}\nds_write_b128 v22, {vr(P,4)} offset:{i*1024 + HPC}")
        e(f"ds_write_b128 v22, {vr(P+8,4)} offset:{i*1024 + 2*HPC}\nds_write_b128 v22, {vr(P+4,4)} offset:{i*1024 + 3*HPC}\ns_waitcnt lgkmcnt(0)")
    e("s_mov_b64 exec, -1\ns_barrier")
    if cfg.get("cvstamp"): WST(e)
    e(f"v_and_b32 v16, 31, v0\nv_lshrrev_b32 v17, 5, v0")
    e(f"v_lshl_add_u32 v18, v17, 3, v16\nv_add_u32 v18, 1, v18\nv_and_b32 v19, 3, v18\nv_and_b32 v18, -4, v18\nv_mul_u32_u24 v19, {HPC}, v19")
    e(f"v_lshl_add_u32 v18, v18, 1, v19\nv_add_u32 v18, s{S_XL}, v18")
    e(f"v_sub_u32 v19, 63, v16\nv_mul_u32_u24 v19, 80, v19\nv_lshl_add_u32 v19, v17, 4, v19\nv_add_u32 v19, s{S_I}, v19")
    e("v_subrev_u32 v21, 2560, v19")
    AC0, AC1, FR, NB = 32, 48, 64, 3
    seq = {}
    def rd(sg):
        b = FR + 16 * (sg % NB); bo = (sg // 2) * 80 + (sg % 2) * 32
        e(f"ds_read_b64 {vr(b,2)}, v18 offset:{sg*32}\nds_read_b64 {vr(b+2,2)}, v18 offset:{sg*32+8}")
        e(f"ds_read_b128 {vr(b+4,4)}, v19 offset:{bo}")
        e(f"ds_read_b128 {vr(b+8,4)}, v21 offset:{bo}")
        seq[sg] = e(f"ds_read_b64 {vr(b+12,2)}, v18 offset:{sg*32+2048}\nds_read_b64 {vr(b+14,2)}, v18 offset:{sg*32+2056}")
    def mm(d, a, b, first): return f"v_mfma_f32_32x32x16_bf16 {vr(d,16)}, {vr(a,4)}, {vr(b,4)}, {'0' if first else vr(d,16)}"
    rd(0); rd(1)
    for sg in range(64):
        b = FR + 16 * (sg % NB)
        e.waitlg(seq[sg])
        e(mm(AC0, b, b + 4, sg == 0))
        if sg + 2 < 64: rd(sg + 2)
        e(mm(AC1, b, b + 8, sg == 0))
        e(mm(AC1, b + 12, b + 4, False))
    if cfg.get("cvstamp"): WST(e)
    e(f"s_bitcmp1_b32 s{S_TMP2}, 0\ns_cbranch_scc1 CV_D1\ns_lshl_b32 s{S_CNT}, s{S_CNT}, 16")
    e.label("CV_D1")
    e(f"s_and_b32 s{S_CNT}, s{S_CNT}, 0xffff0000")
    e(f"v_lshlrev_b32 v22, 5, v17\nv_sub_u32 v22, v19, v22\nv_lshl_add_u32 v22, v17, 3, v22")
    e(f"v_lshlrev_b32 v23, 6, v16\nv_lshl_add_u32 v23, v17, 3, v23")
    e(f"s_lshl_b32 s{S_XG}, s{S_TMP2}, 12\ns_add_u32 s{S_XG}, s{S_XG}, {WS_Y2}")
    e("v_subrev_u32 v24, 2560, v22")
    for tl in range(2):
        for q in range(4):
            e(f"ds_read_b64 {vr(FR + 8*tl + 2*q, 2)}, {'v22' if tl == 0 else 'v24'} offset:{56 - 16*q}")
    e("s_waitcnt lgkmcnt(0)\ns_nop 7")
    for tl in range(2):
        for q in range(4):
            y = (AC0 if tl == 0 else AC1) + 4 * q; u = FR + 8 * tl + 2 * q; t = 96
            e(f"v_and_b32 v{t}, 0xffff0000, v{u+1}\nv_lshlrev_b32 v{t+1}, 16, v{u+1}\nv_and_b32 v{t+2}, 0xffff0000, v{u}\nv_lshlrev_b32 v{t+3}, 16, v{u}")
            for i in range(4): e(f"v_mul_f32 v{t+i}, s{S_CNT}, v{t+i}")
            rb_pair(e, t + 4, t, t + 1); rb_pair(e, t + 4, t + 2, t + 3)
            rb_pair(e, t + 4, y, y + 1); rb_pair(e, t + 4, y + 2, y + 3)
            for i in range(4): e(f"v_add_f32 v{y+i}, v{y+i}, v{t+i}")
            e(f"v_cvt_pk_bf16_f32 v{y}, v{y}, v{y+1}\nv_cvt_pk_bf16_f32 v{y+1}, v{y+2}, v{y+3}")
            e(f"buffer_store_dwordx2 {vr(y,2)}, v23, {WS}, s{S_XG} offen offset:{tl*2048 + q*16} sc1")
    if cfg.get("cvstamp"): e("s_nop 0"); WST(e)
    e("s_waitcnt vmcnt(0)\ns_barrier")
    wait_init(e, "w", 24)
    e(f"s_lshl_b32 s{S_TK}, s{S_TK}, 2\ns_add_u32 s{S_TK}, s{S_TK}, {FL_CONV}")
    flag_store(e, S_TK, 1)
    e.label("CV_END")

def poll_all(e, name, vaddr, soff, cmpv, vt, sleep=8, bar=True):
    l, d = e.newlabel(name), e.newlabel(name + "D")
    e(f"s_cmp_eq_u32 s{S_W}, 0\ns_cbranch_scc0 {d}\ns_mov_b32 s{S_SPIN}, 0")
    e.label(l)
    e(f"buffer_load_dword v{vt}, v{vaddr}, {WS}, {soff} offen sc1\ns_add_u32 s{S_SPIN}, s{S_SPIN}, 1\ns_waitcnt vmcnt(0)")
    e(f"v_cmp_gt_u32 vcc, {cmpv}, v{vt}\ns_cbranch_vccz {d}\ns_sleep {sleep}")
    e(f"s_cmp_lt_u32 s{S_SPIN}, {SPIN_MAX}\ns_cbranch_scc1 {l}")
    e.label(d)
    if bar: e("s_barrier")

def phaseB(e, cfg):
    e("; ---- phase B")
    srd(e, R_A, S_WQ, 0x400000); srd(e, R_B, S_WO, 0x400000)
    wload_addr(e)
    e(f"s_mov_b32 s{S_SEG}, s{S_G}\ns_lshl_b32 s{S_XG}, s{S_SEG}, 15\ns_lshl_b32 s{S_XL}, s{S_W}, 13")
    e(f"v_mov_b32 v{V_XRD}, v{V_L16}")
    for g in x_dma(e):
        for s in g: e(s)
    load_blocks(e, wmat_blocks(R_A, 0) + wo_blocks(R_B, 128))
    srd(e, R_O, S_OUT, 0x200000); srd(e, R_A, S_GATE, 1024)
    GW = 16
    e(f"buffer_load_dwordx4 {vr(GW,4)}, v{V_L16}, s[{R_A}:{R_A+3}], 0 offen")
    e(f"s_and_b32 s62, s{S_W}, 1\ns_lshr_b32 s63, s{S_W}, 1")
    e(f"v_lshlrev_b32 v8, 2, v{V_G}\nv_sub_u32 v8, v{V_C}, v8\ns_lshl_b32 s{S_TMP}, s62, 4\nv_add_u32 v8, s{S_TMP}, v8\nv_subrev_u32 v9, 16, v8")
    e(f"v_and_b32 v24, 1, v0\nv_lshlrev_b32 v24, 1, v24\nv_bfe_u32 v25, v0, 1, 1\nv_or_b32 v24, v24, v25")
    e(f"v_lshrrev_b32 v25, 2, v{V_C}\nv_lshl_add_u32 v25, v{V_G}, 2, v25\nv_lshl_add_u32 v10, v24, 4, v25\nv_lshlrev_b32 v10, 4, v10\nv_add_u32 v10, {W_KMU}, v10")
    e(f"v_and_b32 v24, 1, v{V_G}\nv_lshlrev_b32 v24, 1, v24\nv_lshrrev_b32 v25, 1, v{V_G}\nv_or_b32 v24, v24, v25")
    e(f"v_lshl_add_u32 v11, v24, 4, v{V_C}\nv_lshlrev_b32 v11, 4, v11\ns_lshl_b32 s{S_TMP}, s63, 12\ns_add_u32 s{S_TMP}, s{S_TMP}, 1024\nv_add_u32 v11, s{S_TMP}, v11")
    e(f"v_lshrrev_b32 v24, 2, v0\nv_and_b32 v25, 3, v0\nv_lshlrev_b32 v12, 10, v24\nv_lshl_add_u32 v12, v25, 8, v12")
    e(f"s_lshr_b32 s{S_TMP}, s{S_H}, 4\ns_lshl_b32 s{S_TMP}, s{S_TMP}, 14\ns_and_b32 s{S_TMP2}, s{S_H}, 15\ns_lshl_b32 s{S_TMP2}, s{S_TMP2}, 4\ns_add_u32 s{S_TMP}, s{S_TMP}, s{S_TMP2}\nv_add_u32 v12, s{S_TMP}, v12")
    e(f"s_lshl_b32 s{S_TMP}, s{S_W}, 3\nv_lshrrev_b32 v24, 3, v0\nv_add_u32 v24, s{S_TMP}, v24\nv_and_b32 v25, 7, v0")
    e(f"v_lshrrev_b32 v26, 4, v24\nv_and_b32 v27, 15, v24\nv_lshlrev_b32 v13, 10, v26\nv_lshl_add_u32 v13, v27, 4, v13")
    e(f"v_lshrrev_b32 v26, 1, v25\nv_lshl_add_u32 v13, v26, 8, v13\nv_and_b32 v26, 1, v25\nv_lshl_add_u32 v13, v26, 3, v13\nv_add_u32 v13, {W_RED}, v13")
    e(f"s_lshl_b32 s{S_TMP}, s{S_H}, 16\nv_lshlrev_b32 v14, 13, v25\nv_lshl_add_u32 v14, v24, 1, v14\nv_add_u32 v14, s{S_TMP}, v14")
    e(f"s_lshl_b32 s{S_TMP}, s{S_H}, 5\nv_lshlrev_b32 v15, 10, v24\nv_lshl_add_u32 v15, v25, 2, v15\nv_add_u32 v15, s{S_TMP}, v15")
    e(f"v_and_b32 v20, 31, v0\nv_lshlrev_b32 v20, 2, v20\nv_lshlrev_b32 v21, 2, v24")
    e(f"s_lshl_b32 s{S_CF}, s{S_H}, 7\ns_add_u32 s{S_CF}, s{S_CF}, {FL_CFLAG}\ns_mov_b32 s{S_SC}, 0x3e0293ee")
    e(f"v_lshlrev_b32 v24, 2, v0\ns_mov_b32 s{S_OFF}, {FL_CONV}\ns_mov_b32 s{S_OFF2}, {FL_CONV+256}\ns_lshl_b32 s{S_CNT}, s{S_H}, 8")
    if not cfg.get("noconv"):
        poll_all(e, "CVW", 24, f"s{S_OFF}", 1, 25, 32, False)
        poll_all(e, "CVW", 24, f"s{S_OFF2}", 1, 25, 32, False)
    poll_all(e, "KVW", 24, f"s{S_CNT}", 1, 25, 32, False)
    e(f"s_mov_b32 s{S_PREV}, -1")
    KF, VF, XF, ACC, QF, KM, VM, SS_, PB, OA, TT = 32, 64, 80, 112, 128, 144, 160, 168, 180, 188, 224
    RB, NR, FA = 80, 32, 208
    def final():
        e(f"s_lshl_b32 s{S_TMP}, s{S_PREV}, 6\ns_add_u32 s{S_TMP}, s{S_TMP}, {WS_Y2}\ns_add_u32 s{S_I}, s{S_TMP}, 4096")
        e(f"buffer_load_ushort v{TT+4}, v14, {WS}, s{S_TMP} offen sc1\nbuffer_load_ushort v{TT+5}, v14, {WS}, s{S_I} offen sc1")
        e(f"s_lshl_b32 s{S_CNT}, s{S_PREV}, 15\nbuffer_load_dword v{TT+6}, v15, s[{R_X}:{R_X+3}], s{S_CNT} offen")
        e(f"s_lshl_b32 s{S_OFF2}, s{S_PREV}, 7\ns_add_u32 s{S_OFF2}, s{S_OFF2}, {FL_OFLAG}")
        WST(e)
        poll_all(e, "OW", 20, f"s{S_OFF2}", 1, TT + 2, cfg.get("osleep", 4))
        WST(e)
        e(f"s_lshl_b32 s{S_TMP}, s{S_PREV}, 7\ns_add_u32 s{S_TMP}, s{S_TMP}, {WS_G}\nbuffer_load_dword v{TT+7}, v21, {WS}, s{S_TMP} offen sc1")
        e(f"s_lshl_b32 s{S_OFF}, s{S_PREV}, 18\ns_lshl_b32 s{S_TMP}, s{S_W}, 16\ns_add_u32 s{S_OFF}, s{S_OFF}, s{S_TMP}\ns_add_u32 s{S_OFF}, s{S_OFF}, {WS_O}")
        def ld(n):
            if n % 4 == 0 and n > 0: e(f"s_add_u32 s{S_OFF}, s{S_OFF}, 4096")
            e(f"buffer_load_dwordx4 {vr(RB + 4 * (n % NR), 4)}, v{V_L16}, {WS}, s{S_OFF} offen offset:{(n % 4) * 1024} sc1")
        for n in range(NR): ld(n)
        for n in range(64):
            hh, rt, js = n // 8, (n // 4) % 2, n % 4
            e(f"s_waitcnt vmcnt({min(63 - n, NR - 1)})")
            a = FA + 4 * rt
            e(mfd(a, 128 + (hh * 4 + js) * 4, RB + 4 * (n % NR), "0" if n in (0, 4) else a, "a", "v"))
            if n + NR < 64: ld(n + NR)
        e(f"s_lshl_b32 s{S_TMP}, s{S_W}, 11\ns_add_u32 s{S_TMP}, s{S_TMP}, {W_RED}\nv_add_u32 v{V_T}, s{S_TMP}, v{V_L16}\ns_nop 5")
        e(f"ds_write_b128 v{V_T}, {vr(FA,4)}\nds_write_b128 v{V_T}, {vr(FA+4,4)} offset:1024\ns_waitcnt lgkmcnt(0)\ns_barrier")
        B0 = RB
        for w in range(4): e(f"ds_read_b64 {vr(B0+2*w,2)}, v13 offset:{w*2048}")
        y0, y1, q, g = TT + 4, TT + 5, TT + 6, TT + 7
        e(f"v_lshlrev_b32 v{y0}, 16, v{y0}\nv_lshlrev_b32 v{y1}, 16, v{y1}\nv_lshlrev_b32 v{B0+8}, 16, v{q}\nv_and_b32 v{B0+9}, 0xffff0000, v{q}")
        e(f"v_mul_f32 v{y0}, v{y0}, v{B0+8}\nv_mul_f32 v{y1}, v{y1}, v{B0+9}")
        rb_pair(e, B0 + 10, y0, y1)
        e(f"v_mul_f32 v{y0}, v{y0}, v{g}\nv_mul_f32 v{y1}, v{y1}, v{g}")
        rb_pair(e, B0 + 10, y0, y1)
        e(f"v_sub_f32 v{g}, 1.0, v{g}\nv_cvt_pk_bf16_f32 v{g}, v{g}, v{g}\nv_lshlrev_b32 v{g}, 16, v{g}\ns_waitcnt lgkmcnt(0)")
        e(f"v_add_f32 v{B0}, v{B0}, v{B0+2}\nv_add_f32 v{B0+1}, v{B0+1}, v{B0+3}\nv_add_f32 v{B0+4}, v{B0+4}, v{B0+6}\nv_add_f32 v{B0+5}, v{B0+5}, v{B0+7}")
        e(f"v_add_f32 v{B0}, v{B0}, v{B0+4}\nv_add_f32 v{B0+1}, v{B0+1}, v{B0+5}")
        rb_pair(e, B0 + 10, B0, B0 + 1)
        e(f"v_mul_f32 v{B0}, v{B0}, v{g}\nv_mul_f32 v{B0+1}, v{B0+1}, v{g}")
        rb_pair(e, B0 + 10, B0, B0 + 1)
        e(f"v_add_f32 v{B0}, v{B0}, v{y0}\nv_add_f32 v{B0+1}, v{B0+1}, v{y1}\nv_cvt_pk_bf16_f32 v{B0}, v{B0}, v{B0+1}")
        e(f"buffer_store_dword v{B0}, v15, s[{R_O}:{R_O+3}], s{S_CNT} offen")
    e.label("PB_LOOP")
    e("s_waitcnt vmcnt(0)\ns_barrier")
    WST(e)
    e(f"s_lshl_b32 s{S_OFF}, s{S_SEG}, 19\ns_lshl_b32 s{S_TMP}, s{S_H}, 14\ns_add_u32 s{S_OFF}, s{S_OFF}, s{S_TMP}\ns_add_u32 s{S_OFF}, s{S_OFF}, {WS_KV}")
    e(f"s_add_u32 s{S_OFF2}, s{S_OFF}, 4096\ns_lshl_b32 s{S_TMP}, s63, 12\ns_add_u32 s{S_CNT}, s{S_OFF}, s{S_TMP}\ns_add_u32 s{S_CNT}, s{S_CNT}, 8192")
    lds_ = []
    for js in range(4):
        lds_.append(f"buffer_load_dwordx4 {vr(KF+4*js,4)}, v{V_L16}, {WS}, s{S_OFF} offen offset:{js*1024} sc1")
        lds_.append(f"buffer_load_dwordx4 {vr(KF+16+4*js,4)}, v{V_L16}, {WS}, s{S_OFF2} offen offset:{js*1024} sc1")
        lds_.append(f"buffer_load_dwordx4 {vr(VF+4*js,4)}, v{V_L16}, {WS}, s{S_CNT} offen offset:{js*1024} sc1")
    seq = {}
    def rd(n):
        s, rt = n // 2, n % 2
        seq[n] = e(f"ds_read_b128 {vr(XF + 4 * (n % 8), 4)}, v{V_XRD} offset:{(rt * 16 + s) * 1024}")
    sg = e(f"ds_read_b128 {vr(TT,4)}, v12")
    for n in range(6): rd(n)
    for n in range(32):
        s, rt = n // 2, n % 2
        e.waitlg(seq[n])
        x = XF + 4 * (n % 8)
        for t in range(2):
            a = ACC + 4 * (t * 2 + rt)
            e(mfd(a, (t * 16 + s) * 4, x, "0" if s == 0 else a, "a", "v"))
            if t == 0 and n + 6 < 32: rd(n + 6)
        if n % 2 == 1 and n // 2 < 12: e(lds_[n // 2])
    for i in range(4):
        e(f"v_lshlrev_b32 v{TT+4}, 16, v{TT+i}\nv_and_b32 v{TT+5}, 0xffff0000, v{TT+i}\nv_lshlrev_b32 v{TT+6}, 16, v{GW+i}\nv_and_b32 v{TT+7}, 0xffff0000, v{GW+i}")
        e(f"v_mul_f32 v{TT+4}, v{TT+4}, v{TT+6}\nv_mul_f32 v{TT+5}, v{TT+5}, v{TT+7}")
        rb_pair(e, TT + 6, TT + 4, TT + 5)
        e(f"v_add_f32 v{TT+i}, v{TT+4}, v{TT+5}")
    e(f"v_add_f32 v{TT}, v{TT}, v{TT+1}\nv_add_f32 v{TT+2}, v{TT+2}, v{TT+3}\nv_add_f32 v{TT}, v{TT}, v{TT+2}")
    for rt in range(2):
        o = QF + 4 * rt
        for t in range(2):
            a = ACC + 4 * (t * 2 + rt)
            e(f"v_cvt_pk_bf16_f32 v{o+2*t}, v{a}, v{a+1}\nv_cvt_pk_bf16_f32 v{o+2*t+1}, v{a+2}, v{a+3}")
    e(f"s_lshl_b32 s{S_TMP}, s{S_W}, 10\ns_add_u32 s{S_TMP}, s{S_TMP}, {W_QX}\nv_add_u32 v{V_T}, s{S_TMP}, v{V_L16}")
    e(f"ds_write_b128 v{V_T}, {vr(QF,4)}\nds_write_b128 v{V_T}, {vr(QF+4,4)} offset:4096")
    for ror in (1, 2, 4, 8):
        e(f"s_nop 1\nv_add_f32_dpp v{TT}, v{TT}, v{TT} row_ror:{ror} row_mask:0xf bank_mask:0xf")
    for op in ("v_permlane16_swap_b32", "v_permlane32_swap_b32"):
        e(f"v_mov_b32 v{TT+1}, v{TT}\ns_nop 1\n{op} v{TT}, v{TT+1}\nv_add_f32 v{TT}, v{TT}, v{TT+1}")
    e(f"v_cvt_pk_bf16_f32 v{TT}, v{TT}, v{TT}\nv_lshlrev_b32 v{TT}, 16, v{TT}\nv_mul_f32 v{TT}, 0xbfb8aa3b, v{TT}\nv_exp_f32 v{TT}, v{TT}\ns_nop 0")
    e(f"v_add_f32 v{TT}, 1.0, v{TT}\nv_rcp_f32 v{TT}, v{TT}\ns_nop 0\nv_cvt_pk_bf16_f32 v{TT}, v{TT}, v{TT}\nv_lshlrev_b32 v{TT}, 16, v{TT}")
    e(f"s_lshl_b32 s{S_TMP}, s{S_SEG}, 5\ns_add_u32 s{S_TMP}, s{S_TMP}, s{S_H}\ns_lshl_b32 s{S_TMP}, s{S_TMP}, 2\ns_add_u32 s{S_TMP}, s{S_TMP}, {WS_G}")
    e(f"v_mov_b32 v{V_T2}, 0\ns_mov_b64 exec, s[{S_W0M}:{S_W0M+1}]\nbuffer_store_dword v{TT}, v{V_T2}, {WS}, s{S_TMP} offen sc1\ns_mov_b64 exec, -1")
    e(f"s_cmp_eq_u32 s{S_PREV}, -1\ns_cbranch_scc1 PB_NOPREV")
    final()
    e.label("PB_NOPREV")
    e(f"v_mov_b32 v{TT+1}, s{S_CF}\ns_add_u32 s{S_I}, s{S_SEG}, 1")
    WST(e)
    poll_all(e, "CHW", TT + 1, "0", f"s{S_I}", TT + 2, cfg.get("csleep", 4))
    WST(e)
    e(f"s_lshl_b32 s{S_OFF}, s{S_SEG}, 18\ns_lshl_b32 s{S_TMP}, s{S_H}, 13\ns_add_u32 s{S_OFF}, s{S_OFF}, s{S_TMP}\ns_add_u32 s{S_OFF2}, s{S_OFF}, {WS_KVM}")
    e(f"s_lshl_b32 s{S_TMP}, s{S_W}, 10\ns_add_u32 m0, s{S_TMP}, {W_KMU}\ns_lshl_b32 s{S_TMP}, s{S_TMP}, 1\ns_add_u32 s{S_TMP}, s{S_TMP}, s{S_OFF2}")
    e(f"buffer_load_dwordx4 v{V_L16}, {WS}, s{S_TMP} offen sc1 lds")
    for i in range(2): e(f"buffer_load_dwordx4 {vr(VM+4*i,4)}, v11, {WS}, s{S_OFF2} offen offset:{i*2048} sc1")
    e("s_waitcnt vmcnt(2) lgkmcnt(0)\ns_barrier")
    e(f"s_add_u32 s{S_XG}, s{S_XG}, {7 << 15}\ns_xor_b32 s{S_XL}, s{S_XL}, 0x8000")
    e(f"s_lshl_b32 s{S_TMP}, s62, 12\ns_add_u32 s{S_TMP}, s{S_TMP}, {W_QX}\nv_add_u32 v{V_T}, s{S_TMP}, v{V_L16}")
    for js in range(4): e(f"ds_read_b128 {vr(QF+4*js,4)}, v{V_T} offset:{js*1024}")
    for js in range(4):
        for t in range(2): e(f"ds_read_b64_tr_b16 {vr(KM+4*js+2*t,2)}, v10 offset:{js*1024 + t*8}")
    e(f"v_xor_b32 v{V_XRD}, 0x8000, v{V_XRD}\nv_xor_b32 v12, 0x8000, v12")
    e("s_waitcnt lgkmcnt(0)")
    X0, X1, M = SS_, SS_ + 4, SS_ + 8
    for js in range(4):
        c = lambda r: "0" if js == 0 else r
        e(mfd(X0, KF + 4 * js, QF + 4 * js, c(X0))); e(mfd(X1, KF + 16 + 4 * js, QF + 4 * js, c(X1))); e(mfd(M, KM + 4 * js, QF + 4 * js, c(M)))
    for g in x_dma(e):
        for s in g: e(s)
    e(f"v_mov_b32 v{TT}, 0xf149f2ca")
    for kt in range(2):
        for i in range(4):
            e(f"v_cmp_le_i32 vcc, {i}, v{8+kt}\ns_nop 1\nv_cndmask_b32 v{SS_+4*kt+i}, v{TT}, v{SS_+4*kt+i}, vcc")
    mx, t2 = TT + 1, TT + 2
    e(f"v_max3_f32 v{mx}, v{X0}, v{X0+1}, v{X0+2}\nv_max3_f32 v{t2}, v{X1}, v{X1+1}, v{X1+2}\nv_max3_f32 v{mx}, v{mx}, v{X0+3}, v{X1+3}")
    e(f"v_max3_f32 v{t2}, v{t2}, v{M}, v{M+2}\nv_max_f32 v{mx}, v{mx}, v{t2}")
    for op in ("v_permlane16_swap_b32", "v_permlane32_swap_b32"):
        e(f"v_mov_b32 v{t2}, v{mx}\ns_nop 1\n{op} v{mx}, v{t2}\nv_max_f32 v{mx}, v{mx}, v{t2}")
    e(f"v_mul_f32 v{mx}, s{S_SC}, v{mx}")
    EE = [SS_ + i for i in range(8)] + [M, M + 2]
    for x in EE: e(f"v_fma_f32 v{x}, v{x}, s{S_SC}, -v{mx}")
    for x in EE: e(f"v_exp_f32 v{x}, v{x}")
    e(f"s_nop 0\nv_add_f32 v{mx}, v{EE[0]}, v{EE[1]}")
    for x in EE[2:]: e(f"v_add_f32 v{mx}, v{mx}, v{x}")
    for op in ("v_permlane16_swap_b32", "v_permlane32_swap_b32"):
        e(f"v_mov_b32 v{t2}, v{mx}\ns_nop 1\n{op} v{mx}, v{t2}\nv_add_f32 v{mx}, v{mx}, v{t2}")
    e(f"v_rcp_f32 v{mx}, v{mx}\ns_nop 0")
    for x in EE: e(f"v_mul_f32 v{x}, v{x}, v{mx}")
    for i in range(4): e(f"v_cvt_pk_bf16_f32 v{PB+i}, v{SS_+2*i}, v{SS_+2*i+1}")
    e(f"v_cvt_pk_bf16_f32 v{PB+4}, v{M}, v{M}\nv_cvt_pk_bf16_f32 v{PB+5}, v{M+2}, v{M+2}")
    e("s_waitcnt vmcnt(8)\ns_nop 0")
    for T in range(4): e(mfd(OA + 4 * T, VF + 4 * T, PB, "0"))
    for T in range(4):
        e(f"v_mfma_f32_16x16x16_bf16 {vr(OA+4*T,4)}, {vr(VM+2*T,2)}, {vr(PB+4,2)}, {vr(OA+4*T,4)}")
    e(f"s_add_u32 s{S_OFF}, s{S_OFF}, {WS_O}\ns_lshl_b32 s{S_TMP}, s62, 12\ns_add_u32 s{S_OFF}, s{S_OFF}, s{S_TMP}\ns_lshl_b32 s{S_TMP}, s63, 11\ns_add_u32 s{S_OFF}, s{S_OFF}, s{S_TMP}\ns_nop 3")
    for j in range(2):
        for t in range(2):
            a = OA + 4 * (2 * j + t)
            e(f"v_cvt_pk_bf16_f32 v{QF+4*j+2*t}, v{a}, v{a+1}\nv_cvt_pk_bf16_f32 v{QF+4*j+2*t+1}, v{a+2}, v{a+3}")
        e(f"buffer_store_dwordx4 {vr(QF+4*j,4)}, v{V_L16}, {WS}, s{S_OFF} offen offset:{j*1024} sc1")
    e("s_waitcnt vmcnt(0)\ns_barrier")
    e(f"s_lshl_b32 s{S_OFF2}, s{S_SEG}, 7\ns_add_u32 s{S_OFF2}, s{S_OFF2}, {FL_OFLAG}\ns_lshl_b32 s{S_TMP}, s{S_H}, 2\ns_add_u32 s{S_CNT}, s{S_OFF2}, s{S_TMP}")
    flag_store(e, S_CNT, 1)
    e(f"s_mov_b32 s{S_PREV}, s{S_SEG}\ns_add_u32 s{S_SEG}, s{S_SEG}, 7\ns_cmp_lt_u32 s{S_SEG}, 64\ns_cbranch_scc1 PB_LOOP")
    final()

def worker(e, cfg):
    e(f"s_sub_u32 s{S_G}, s{S_GRP}, 1\ns_mov_b32 s{S_CNT}, 0")
    lane_consts(e, f"v{V_C}", f"v{V_G}")
    e(f"v_lshlrev_b32 v{V_L16}, 4, v0\nv_mov_b32 v{V_XRD}, v{V_L16}")
    e(f"s_lshr_b32 s{S_TMP}, s{S_W}, 1\ns_lshl_b32 s{S_TMP}, s{S_TMP}, 14\ns_and_b32 s{S_TMP2}, s{S_W}, 1\ns_lshl_b32 s{S_TMP2}, s{S_TMP2}, 9\ns_add_u32 s{S_TMP}, s{S_TMP}, s{S_TMP2}")
    e(f"v_lshlrev_b32 v{V_XSRC}, 10, v{V_C}\nv_lshl_add_u32 v{V_XSRC}, v{V_G}, 4, v{V_XSRC}\nv_add_u32 v{V_XSRC}, s{S_TMP}, v{V_XSRC}")
    srd(e, R_X, S_Q, 0x200000)
    _cfg.update(cfg)
    if cfg.get("wstamp"): e("s_mov_b32 s101, 0")
    WST(e)
    if cfg.get("hold") is not None:
        e(f"s_cmp_lt_u32 s{S_G}, {cfg['hold']}\ns_cbranch_scc{0 if cfg.get('holdinv') else 1} HOLD_END")
        e.label("HOLD")
        e(f"s_sleep 32\ns_memrealtime s[70:71]\ns_waitcnt lgkmcnt(0)\ns_sub_u32 s70, s70, s3\ns_cmp_lt_u32 s70, {cfg['holdus']*100}\ns_cbranch_scc1 HOLD")
        e.label("HOLD_END")
    if not cfg.get("noconv"): conv(e, cfg)
    WST(e)
    wload_addr(e)
    phaseA(e, cfg)
    WST(e)
    phaseB(e, cfg)
    WST(e)
```

```python
import sys, json
from asmlib import Em, vr, check_hazards
from layout import *
import chain as C
from chain import *

KNAME = "gated_mix__ssm_conv_h3__memory_aug_recurrent_mem_tr__prompt_kernel"

def common_prologue(e):
    e("s_cmp_ge_u32 s2, 256\ns_cbranch_scc1 KEND")
    e("s_load_dwordx8 s[4:11], s[0:1], 0\ns_load_dwordx4 s[12:15], s[0:1], 32\ns_load_dwordx2 s[16:17], s[0:1], 56")
    e("s_load_dwordx8 s[20:27], s[0:1], 64\ns_load_dwordx4 s[28:31], s[0:1], 104\ns_load_dwordx4 s[32:35], s[0:1], 120")
    e(f"s_getreg_b32 s{S_XCC}, hwreg(HW_REG_XCC_ID)\ns_and_b32 s{S_XCC}, s{S_XCC}, 7")
    e(f"v_lshrrev_b32 v1, 6, v0\nv_mov_b32 v2, v0\nv_and_b32 v0, 63, v0\nv_readfirstlane_b32 s{S_W}, v1")
    e("s_waitcnt lgkmcnt(0)")
    srd(e, R_WS, S_WS, WS_SIZE)
    WS = f"s[{R_WS}:{R_WS+3}]"
    DBG = f"s[{S_DBG}:{S_DBG+1}]"
    e(f"s_cmp_eq_u32 s{S_W}, 0\ns_cbranch_scc0 PRO_NORANK")
    e(f"s_and_b32 s{S_TMP}, s{S_XCC}, 3\ns_lshl_b32 s{S_TMP}, s{S_TMP}, 6\ns_lshr_b32 s{S_TMP2}, s{S_XCC}, 2\ns_lshl_b32 s{S_TMP2}, s{S_TMP2}, 2\ns_add_u32 s{S_TMP}, s{S_TMP}, s{S_TMP2}")
    e(f"v_mov_b32 v3, s{S_TMP}\nv_mov_b32 v4, 1\ns_mov_b64 exec, 1")
    e(f"global_atomic_add v5, v3, v4, {DBG} sc0\ns_mov_b64 exec, -1")
    e.label("PRO_NORANK")
    e("s_waitcnt vmcnt(0)")
    e(f"s_cmp_eq_u32 s{S_W}, 0\ns_cbranch_scc0 PRO_W")
    e(f"v_readfirstlane_b32 s{S_H}, v5\ns_mov_b32 s{S_GRP}, s{S_XCC}")
    e(f"s_cmp_lt_u32 s{S_H}, 32\ns_cbranch_scc1 PRO_HAVE")
    e(f"v_mov_b32 v3, {DBG_OVF}\ns_mov_b64 exec, 1\nglobal_atomic_add v5, v3, v4, {DBG} sc0\ns_mov_b64 exec, -1")
    e(f"v_lshlrev_b32 v9, 2, v0\ns_mov_b32 s{S_SPIN}, 0")
    e.label("PRO_OV")
    e(f"global_load_dword v10, v9, {DBG} sc1\ns_add_u32 s{S_SPIN}, s{S_SPIN}, 1\ns_waitcnt vmcnt(0)\ns_mov_b32 s{S_TMP2}, 0")
    for x in range(8):
        e(f"v_readlane_b32 s{S_TMP}, v10, {DBG_XCC(x)//4}\ns_add_u32 s{S_TMP2}, s{S_TMP2}, s{S_TMP}")
    e(f"s_cmp_ge_u32 s{S_TMP2}, 256\ns_cbranch_scc1 PRO_OV2\ns_sleep 8\ns_cmp_lt_u32 s{S_SPIN}, {SPIN_MAX}\ns_cbranch_scc1 PRO_OV")
    e.label("PRO_OV2")
    e(f"v_readfirstlane_b32 s{S_TMP2}, v5\ns_mov_b32 s{S_GRP}, 7\ns_mov_b32 s{S_H}, 31")
    for x in range(8):
        nl = f"PRO_OVN{x}"
        e(f"v_readlane_b32 s{S_TMP}, v10, {DBG_XCC(x)//4}\ns_min_u32 s{S_TMP}, s{S_TMP}, 32\ns_add_u32 s{S_SPIN}, s{S_TMP}, s{S_TMP2}")
        e(f"s_cmp_lt_u32 s{S_SPIN}, 32\ns_cbranch_scc0 {nl}\ns_mov_b32 s{S_GRP}, {x}\ns_mov_b32 s{S_H}, s{S_SPIN}\ns_branch PRO_HAVE")
        e.label(nl)
        e(f"s_sub_u32 s{S_TMP2}, s{S_SPIN}, 32")
    e.label("PRO_HAVE")
    e(f"v_mov_b32 v10, s{S_GRP}\nv_mov_b32 v11, s{S_H}\nv_mov_b32 v9, 0\nds_write_b64 v9, v[10:11]\ns_waitcnt lgkmcnt(0)")
    e.label("PRO_W")
    e("s_barrier\nv_mov_b32 v9, 0\nds_read_b64 v[10:11], v9")
    e(f"s_waitcnt lgkmcnt(0)\nv_readfirstlane_b32 s{S_GRP}, v10\nv_readfirstlane_b32 s{S_H}, v11")
    e(f"s_and_b32 s{S_GRP}, s{S_GRP}, 7\ns_and_b32 s{S_H}, s{S_H}, 31")
    e(f"s_cmp_eq_u32 s{S_W}, 0\ns_cselect_b32 s{S_W0M}, 1, 0\ns_mov_b32 s{S_W0M+1}, 0")
    e(f"s_cmp_eq_u32 s{S_GRP}, 0\ns_cbranch_scc1 PRO_NOINIT\ns_cmp_lt_u32 s{S_H}, 4\ns_cbranch_scc0 PRO_NOINIT")
    e(f"s_sub_u32 s{S_TMP2}, s{S_GRP}, 1\ns_lshl_b32 s{S_TMP2}, s{S_TMP2}, 2\ns_add_u32 s{S_TMP2}, s{S_TMP2}, s{S_H}")
    e("v_mov_b64 v[12:13], -1\nv_mov_b64 v[14:15], -1\nv_mov_b32 v8, 0\nv_lshlrev_b32 v9, 4, v2\nv_lshlrev_b32 v3, 2, v2")
    e.label("PRO_INIT")
    e(f"s_lshl_b32 s{S_TMP}, s{S_TMP2}, 13\ns_add_u32 s{S_TMP}, s{S_TMP}, {WS_RS}")
    e(f"buffer_store_dwordx4 v[12:15], v9, {WS}, s{S_TMP} offen sc1\ns_add_u32 s{S_TMP}, s{S_TMP}, 4096")
    e(f"buffer_store_dwordx4 v[12:15], v9, {WS}, s{S_TMP} offen sc1")
    e(f"s_lshl_b32 s{S_TMP}, s{S_TMP2}, 10\nbuffer_store_dword v8, v3, {WS}, s{S_TMP} offen sc1\ns_add_u32 s{S_TMP}, s{S_TMP}, {WS_AG}")
    e(f"buffer_store_dword v12, v3, {WS}, s{S_TMP} offen sc1")
    e(f"s_add_u32 s{S_TMP2}, s{S_TMP2}, 28\ns_cmp_lt_u32 s{S_TMP2}, 32\ns_cbranch_scc1 PRO_INIT")
    e(f"s_waitcnt vmcnt(0)\ns_barrier\nv_mov_b32 v3, {DBG_INIT}\nv_mov_b32 v4, 1\ns_mov_b64 exec, s[{S_W0M}:{S_W0M+1}]")
    e(f"global_atomic_add v3, v4, {DBG}\ns_mov_b64 exec, -1")
    e.label("PRO_NOINIT")
    e("s_barrier")

DEFAULTS = {"agbar":1,"d1e":20,"d1":35,"d2":30,"d2e":30,"Ke":2,"KRe":2,"e1":15,"e2":25}
def build(cfg):
    cfg = {**DEFAULTS, **cfg}
    e = Em()
    e.label(KNAME)
    if cfg.get("gstamp"): e("s_memrealtime s[18:19]\ns_waitcnt lgkmcnt(0)\ns_mov_b32 s3, s18")
    common_prologue(e)
    e(f"s_cmp_eq_u32 s{S_GRP}, 0\ns_cbranch_scc0 WORKER")
    chain_prologue(e, cfg)
    if cfg.get("force_slow"): e(f"s_mov_b32 s{S_MODE}, 0")
    e(f"s_cmp_ge_u32 s{S_MODE}, 32\ns_cbranch_scc0 CHAIN_SLOW")
    chain_loop(e, True, cfg)
    e.label("CHAIN_SLOW")
    chain_loop(e, False, cfg)
    e.label("WORKER")
    if not cfg.get("chain_only"):
        import worker
        worker.worker(e, cfg)
    else:
        wait_init(e, "w", 32)
        e(f"s_lshl_b32 s{S_TMP}, s{S_H}, 8\nv_lshlrev_b32 v1, 2, v0\nv_mov_b32 v2, 1\nbuffer_store_dword v2, v1, s[{R_WS}:{R_WS+3}], s{S_TMP} offen sc1")
    e.label("KEND")
    e("s_waitcnt vmcnt(0)\ns_endpgm")
    probs = check_hazards(e.lines)
    for p in probs: print("HAZARD", p, file=sys.stderr)
    hdr = open('gated_mix__ssm_conv_h3__memory_aug_recurrent_mem_tr__prompt.s.ref').read().split("; Override launch")[0]
    s = hdr + f"; @launch grid=(256,1,1) block=(256,1,1) lds={LDS_SIZE}\n"
    s += f'.amdgcn_target "amdgcn-amd-amdhsa--gfx950"\n.text\n.globl {KNAME}\n.p2align 8\n.type {KNAME},@function\n'
    s += e.text()
    s += f""".section .rodata,"a"
.p2align 6
.amdhsa_kernel {KNAME}
  .amdhsa_next_free_vgpr 512
  .amdhsa_next_free_sgpr 102
  .amdhsa_accum_offset 256
  .amdhsa_group_segment_fixed_size 0
  .amdhsa_kernarg_size 136
  .amdhsa_user_sgpr_count 2
  .amdhsa_user_sgpr_kernarg_segment_ptr 1
  .amdhsa_system_sgpr_workgroup_id_x 1
.end_amdhsa_kernel
"""
    return s

if __name__ == "__main__":
    out = sys.argv[1]
    cfg = json.loads(sys.argv[2]) if len(sys.argv) > 2 else {}
    open(out, "w").write(build(cfg))
    json.dump(cfg, open(out + ".json", "w"))
```

```python
from asmlib import Em, vr
from layout import *

S_Q, S_K, S_V, S_SH, S_SSMK, S_SSMD, S_MEM0 = 4, 6, 8, 10, 12, 14, 16
S_WQ, S_WK, S_WV, S_WO, S_GATE, S_OUT, S_DBG, S_WS = 20, 22, 24, 26, 28, 30, 32, 34
R_WS, R_T, R_T2 = 36, 40, 44
S_W, S_XCC, S_GRP, S_H = 48, 49, 50, 51
S_W0M = 76
NINIT = 28
SPIN_MAX = 1 << 15

def srd(e, r, p, size):
    e(f"s_mov_b32 s{r}, s{p}\ns_mov_b32 s{r+1}, s{p+1}\ns_mov_b32 s{r+2}, {size}\ns_mov_b32 s{r+3}, 0x20000")

def lane_consts(e, c, g, lane="v0"):
    e(f"v_and_b32 {c}, 15, {lane}\nv_lshrrev_b32 {g}, 4, {lane}")

def emit_UB(e, dst, c, b, t):
    e(f"v_lshrrev_b32 {t}, 1, {b}")
    e(f"v_lshl_add_u32 {t}, {t}, 3, {c}")
    e(f"v_and_b32 {t}, 15, {t}")
    e(f"v_lshl_add_u32 {t}, {b}, 4, {t}")
    e(f"v_lshlrev_b32 {dst}, 3, {t}")

IDX, A_RSR, A_AGW, A_AGR, A_TR, A_TRK, A_UW, A_W, A_KX, A_VX, T0, A_RSW, SEL = 0, 1, 2, 3, 4, 5, 6, 7, 8, 9, 10, 11, 12
MEMA, QB, KXA, XT, ACA, ACB = 16, 48, 64, 88, 96, 104
WV0 = 112
S_STEP, S_RSW0, S_RSW1, S_RSR0, S_RSR1, S_AGW, S_AGRST, S_AGR0, S_AGR1 = 52, 53, 54, 55, 56, 57, 58, 59, 60
S_KVG, S_KVL, S_KVM, S_READY, S_SPIN, S_AGSLOT, S_TMP, S_TMP2 = 61, 62, 63, 64, 65, 66, 67, 68
S_M0, S_M1, S_M2 = 70, 72, 74
S_AGM = 72
S_ODD = 78
S_SC = 80
S_CF = 81
S_MODE = 82
S_TAG = 83
S_KVG2, S_FLV = 10, 11
S_XG0, S_XL0 = 96, 97
S_KFO = 58
S_RSR = [55, 56, 4, 5]
S_EM, S_LM, S_LB = 4, 6, 8
S_AGM2 = 74
S_ST = 84

BLOCKS = [("q", J) for J in range(3, 8)] + [("k", J) for J in range(8)] + [("v", J) for J in range(8)] \
       + [("o", (0, p)) for p in range(4)] + [("q", 0), ("q", 1), ("q", 2)] + [("o", (1, p)) for p in range(4)]
NREG = 25
def frag_reg(i):
    if i < 32: return ("a", 8 * i)
    return ("v", WV0 + 8 * (i - 32))
FRAG = {}
for n, (m, J) in enumerate(BLOCKS):
    for t in range(2):
        if n < NREG: FRAG[(m, J, t)] = frag_reg(2 * n + t)
        else: FRAG[(m, J, t)] = ("lds", (n - NREG) * 4096 + t * 2048)
def slot_addr(n):
    s = n % 10
    wl = {5: 0, 6: 1, 7: 2, 8: 3, 9: 4, 0: 5, 1: 6}
    return ("wl", wl[s]) if s in wl else ("ot", s - 2)

def wait_init(e, tag, vt):
    l = e.newlabel("WI"); d = e.newlabel("WID")
    e(f"s_mov_b32 s{S_SPIN}, 0")
    e(f"v_mbcnt_lo_u32_b32 v{vt+1}, -1, 0\nv_mbcnt_hi_u32_b32 v{vt+1}, -1, v{vt+1}\nv_lshlrev_b32 v{vt+1}, 2, v{vt+1}")
    e.label(l)
    e(f"global_load_dword v{vt}, v{vt+1}, s[{S_DBG}:{S_DBG+1}] sc1")
    e(f"s_add_u32 s{S_SPIN}, s{S_SPIN}, 1")
    e("s_waitcnt vmcnt(0)")
    e(f"v_readlane_b32 s{S_TMP}, v{vt}, {DBG_INIT//4}")
    e(f"s_cmp_ge_u32 s{S_TMP}, {NINIT}\ns_cbranch_scc1 {d}")
    e("s_sleep 16")
    e(f"s_cmp_lt_u32 s{S_SPIN}, {SPIN_MAX}\ns_cbranch_scc1 {l}")
    e.label(d)

def kv_poll(e, va, vb, done):
    l = e.newlabel("KR")
    e(f"s_mov_b32 s{S_SPIN}, 0")
    e(f"v_mbcnt_lo_u32_b32 v{vb}, -1, 0\nv_mbcnt_hi_u32_b32 v{vb}, -1, v{vb}\nv_lshlrev_b32 v{vb}, 2, v{vb}")
    e.label(l)
    e(f"s_lshl_b32 s{S_TMP}, s{S_H}, 8")
    e(f"buffer_load_dword v{va}, v{vb}, s[{R_WS}:{R_WS+3}], s{S_TMP} offen sc1")
    e(f"s_add_u32 s{S_SPIN}, s{S_SPIN}, 1")
    e("s_waitcnt vmcnt(0)")
    e(f"v_cmp_eq_u32 vcc, 0, v{va}\ns_ff1_i32_b64 s{S_READY}, vcc")
    e(f"s_cmp_gt_u32 s{S_READY}, s{S_TMP2}\ns_cbranch_scc1 {done}")
    e("s_sleep 16")
    e(f"s_cmp_lt_u32 s{S_SPIN}, {SPIN_MAX}\ns_cbranch_scc1 {l}")
    e(f"s_branch {done}")

def kv_ready(e, delta, va, vb):
    d = e.newlabel("KRD")
    e(f"s_add_u32 s{S_TMP2}, s{S_STEP}, {delta}\ns_cmp_gt_u32 s{S_READY}, s{S_TMP2}\ns_cbranch_scc1 {d}")
    kv_poll(e, va, vb, d)
    e.label(d)

def kv_dma(e, g=None, l=None):
    out = []
    for i in range(4):
        pre = [f"s_add_u32 m0, s{l or S_KVL}, {(i//2)*8192}", f"s_add_u32 s{S_TMP}, s{g or S_KVG}, {(i//2)*8192}"]
        out.append(pre + [f"buffer_load_dwordx4 v{A_AGR}, s[{R_WS}:{R_WS+3}], s{S_TMP} offen offset:{(i%2)*1024} sc1 lds"])
    return out

def chain_prologue(e, cfg={}):
    e("; ---- chain prologue")
    if cfg.get("prost") == 2: e("s_memrealtime s[92:93]")
    lane_consts(e, "v16", "v17")
    e("v_and_b32 v18, 3, v0\nv_lshrrev_b32 v19, 2, v0")
    e(f"s_lshl_b32 s{S_TMP}, s{S_H}, 8\ns_lshl_b32 s{S_TMP2}, s{S_W}, 6\ns_add_u32 s{S_TMP}, s{S_TMP}, s{S_TMP2}")
    e(f"v_lshlrev_b32 v20, 13, v19\nv_lshl_add_u32 v20, v18, 4, v20\nv_add_u32 v20, s{S_TMP}, v20")
    e(f"s_lshl_b32 s{S_TMP}, s{S_H}, 17\ns_lshl_b32 s{S_TMP2}, s{S_W}, 8\ns_add_u32 s{S_TMP}, s{S_TMP}, s{S_TMP2}")
    e(f"v_lshlrev_b32 v21, 10, v19\nv_lshl_add_u32 v21, v18, 4, v21\nv_add_u32 v21, s{S_TMP}, v21")
    e("v_and_b32 v22, 1, v17\nv_lshlrev_b32 v22, 5, v22")
    e("v_lshrrev_b32 v23, 1, v17\nv_lshl_add_u32 v22, v23, 2, v22")
    e("v_lshrrev_b32 v23, 3, v16\nv_lshl_add_u32 v22, v23, 4, v22")
    e("v_bfe_u32 v23, v16, 2, 1\nv_add_u32 v22, v22, v23")
    e("v_lshlrev_b32 v22, 6, v22\nv_lshl_add_u32 v22, v18, 3, v22")
    e(f"s_mul_i32 s{S_KVL}, s{S_W}, 28672")
    e(f"s_mul_i32 s{S_KVG}, s{S_W}, 12288\ns_add_u32 s{S_KVG}, s{S_KVG}, {L_KVB}")
    e(f"v_add_u32 v24, s{S_KVL}, v22\nv_add_u32 v25, s{S_KVG}, v22")
    e(f"v_lshl_add_u32 v{A_W}, v0, 4, s{S_KVL}")
    RW = {"q": R_T, "k": R_T2, "v": 84, "o": 88}
    for m, p in (("q", S_WQ), ("k", S_WK), ("v", S_WV), ("o", S_WO)): srd(e, RW[m], p, 0x400000)
    def issue(n):
        m, J = BLOCKS[n]
        kind, k = slot_addr(n)
        base = S_KVL if kind == "wl" else S_KVG
        for i in range(4):
            e(f"s_add_u32 m0, s{base}, {k*4096 + i*1024}")
            if m == "o":
                so = (64 * J[0] + 16 * i) * 1024 + J[1] * 64
                e(f"s_mov_b32 s{S_TMP}, {so}")
                e(f"buffer_load_dwordx4 v21, s[{RW[m]}:{RW[m]+3}], s{S_TMP} offen lds")
            else:
                so = (64 * J + 16 * i) * 8192
                e(f"s_mov_b32 s{S_TMP}, {so}")
                e(f"buffer_load_dwordx4 v20, s[{RW[m]}:{RW[m]+3}], s{S_TMP} offen lds")
    def consume(n, outstanding):
        m, J = BLOCKS[n]
        kind, k = slot_addr(n)
        e(f"s_waitcnt vmcnt({outstanding})")
        av = "v24" if kind == "wl" else "v25"
        for t in range(2):
            f = FRAG[(m, J, t)]
            for mm in range(4):
                off = k * 4096 + (8 * (mm // 2) + 2 * (mm % 2)) * 64 + t * 32
                if f[0] == "lds": dst = vr(32 + 8 * t + 2 * mm, 2)
                else: dst = vr(f[1] + 2 * mm, 2, f[0])
                e(f"ds_read_b64_tr_b16 {dst}, {av} offset:{off}")
        e("s_waitcnt lgkmcnt(0)")
        if n >= NREG:
            for t in range(2):
                for hf in range(2):
                    e(f"ds_write_b128 v{A_W}, {vr(32+8*t+4*hf,4)} offset:{k*4096 + t*2048 + hf*1024}")
            e("s_waitcnt lgkmcnt(0)")
    N = len(BLOCKS)
    if cfg.get("tlbw"):
        e(f"v_lshlrev_b32 v26, 16, v0\ns_lshl_b32 s{S_TMP}, s{S_H}, 11\nv_add_u32 v26, s{S_TMP}, v26")
        for m in "qkvo": e(f"buffer_load_dword v27, v26, s[{RW[m]}:{RW[m]+3}], 0 offen")
        if cfg["tlbw"] == 2: e("s_waitcnt vmcnt(0)")
    DEP = 4
    srd(e, 92, S_MEM0, 8192)
    e(f"s_lshl_b32 s{S_TMP}, s{S_W}, 8")
    e(f"v_lshlrev_b32 v26, 11, v17\nv_lshl_add_u32 v26, v16, 1, v26\nv_add_u32 v26, s{S_TMP}, v26")
    mem0_ld = []
    for u in range(4):
        mem0_ld += [f"buffer_load_ushort v{48+2*u}, v26, s[92:95], 0 offen offset:{u*64}", f"buffer_load_ushort v{49+2*u}, v26, s[92:95], 0 offen offset:{u*64+32}",
                    f"buffer_load_ushort v{56+2*u}, v26, s[92:95], 0 offen offset:{u*64+1024}", f"buffer_load_ushort v{57+2*u}, v26, s[92:95], 0 offen offset:{u*64+32+1024}"]
    for n in range(DEP):
        if cfg.get("prost") == 2 and n == 1: e("s_memrealtime s[94:95]")
        issue(n)
    if cfg.get("prost") == 2: e("s_memrealtime s[96:97]")
    for x in mem0_ld: e(x)
    e(f"v_and_b32 v26, 2, v0\nv_cmp_eq_u32 vcc, 2, v26\nv_mov_b32 v27, 0x44444444\nv_mov_b32 v28, 0xeeeeeeee")
    e(f"s_mov_b64 s[{S_ODD}:{S_ODD+1}], vcc")
    e(f"v_cndmask_b32 v29, v27, v28, vcc")
    for r in range(4):
        e(f"v_mov_b32 v{SEL+r}, 0")
    e("v_mov_b32 v27, 0x3f80\nv_mov_b32 v28, 0x3f800000")
    for j in range(8):
        e(f"v_cmp_eq_u32 vcc, {j}, v16\ns_nop 1\nv_cndmask_b32 v{SEL+j//2}, v{SEL+j//2}, v{27+(j%2)}, vcc")
    e(f"s_and_b32 s{S_TMP}, s{S_W}, 2\ns_lshl_b32 s{S_TMP}, s{S_TMP}, 11\ns_lshl_b32 s{S_TMP2}, s{S_H}, 7\ns_add_u32 s{S_TMP}, s{S_TMP}, s{S_TMP2}")
    e(f"v_lshrrev_b32 v26, 3, v0\nv_and_b32 v27, 7, v0\nv_lshlrev_b32 v{A_RSR}, 13, v26\nv_lshl_add_u32 v{A_RSR}, v27, 4, v{A_RSR}\nv_add_u32 v{A_RSR}, s{S_TMP}, v{A_RSR}")
    e(f"s_lshl_b32 s{S_TMP2}, s{S_W}, 9\nv_lshl_add_u32 v{A_RSW}, v0, 3, s{S_TMP2}")
    e(f"v_and_b32 v26, 1, v17\nv_lshl_add_u32 v26, v27, 1, v26\ns_and_b32 s{S_TMP2}, s{S_H}, 3\nv_mov_b32 v27, s{S_TMP2}")
    emit_UB(e, f"v{A_AGW}", "v26", "v27", "v28")
    e(f"s_and_b32 s{S_TMP}, s{S_TMP}, 0xfffffe00\nv_add_u32 v{A_AGW}, s{S_TMP}, v{A_AGW}")
    e(f"s_mov_b32 s{S_AGM}, 0x00FF00FF\ns_mov_b32 s{S_AGM+1}, 0\ns_mov_b32 s{S_AGM2}, -1\ns_mov_b32 s{S_AGM2+1}, 0")
    e(f"v_bfe_u32 v26, v0, 3, 1\nv_lshl_add_u32 v{A_AGW}, v26, 14, v{A_AGW}")
    e(f"s_lshl_b32 s{S_TMP}, s{S_W}, 11\ns_add_u32 s{S_TMP}, s{S_TMP}, {L_MEM}")
    e(f"v_lshl_add_u32 v{A_AGR}, v0, 4, s{S_TMP}")
    e(f"s_lshl_b32 s{S_TMP}, s{S_W}, 10\ns_add_u32 s{S_TMP}, s{S_TMP}, {L_QU}")
    emit_UB(e, f"v{A_UW}", "v16", "v17", "v28")
    e(f"v_add_u32 v{A_UW}, s{S_TMP}, v{A_UW}")
    e("v_lshrrev_b32 v26, 2, v16\nv_lshl_add_u32 v26, v17, 2, v26")
    emit_UB(e, f"v{A_TR}", "v26", "v18", "v28")
    e(f"v_add_u32 v{A_TR}, {L_MEM}, v{A_TR}")
    e("v_and_b32 v27, 1, v18\nv_lshlrev_b32 v27, 1, v27\nv_lshrrev_b32 v28, 1, v18\nv_or_b32 v27, v27, v28")
    emit_UB(e, f"v{A_TRK}", "v26", "v27", "v28")
    e(f"v_add_u32 v{A_TRK}, {L_MEM}, v{A_TRK}")
    e(f"v_lshlrev_b32 v{A_KX}, 4, v0\nv_add_u32 v{A_KX}, {L_KVB}, v{A_KX}")
    e(f"v_lshrrev_b32 v26, 1, v17\nv_lshl_add_u32 v26, v26, 4, v16\nv_lshlrev_b32 v26, 4, v26\nv_and_b32 v27, 1, v17\nv_lshl_add_u32 v26, v27, 3, v26")
    e(f"s_lshl_b32 s{S_TMP}, s{S_W}, 11\ns_add_u32 s{S_TMP}, s{S_TMP}, {L_KVB + 8192}\nv_add_u32 v{A_VX}, s{S_TMP}, v26")
    e(f"v_lshlrev_b32 v65, 2, v0\ns_mov_b32 s{S_STEP}, 0\ns_mov_b32 s{S_READY}, 0\ns_mov_b32 s{S_MODE}, 0")
    WSR = f"s[{R_WS}:{R_WS+3}]"
    order = [("B", n) for n in range(DEP) for _ in range(4)] + [("M", 0)] * 16
    def after(kind, n):
        last = max(i for i, x in enumerate(order) if x == (kind, n))
        return min(len(order) - 1 - last, 63)
    for n in range(N):
        consume(n, after("B", n))
        if n + DEP < N:
            issue(n + DEP); order += [("B", n + DEP)] * 4
        if n == 16:
            e(f"global_load_dword v64, v65, s[{S_DBG}:{S_DBG+1}] sc1"); order.append(("D", 0))
        if n == 23:
            e(f"v_readlane_b32 s{S_TMP}, v64, {DBG_INIT//4}\nv_readlane_b32 s{S_MODE}, v64, {DBG_XCC(0)//4}\nv_mov_b32 v66, 0")
            e(f"s_cmp_ge_u32 s{S_TMP}, {NINIT}\ns_cselect_b32 s{S_MODE}, s{S_MODE}, 0\ns_cselect_b64 exec, -1, 0\ns_lshl_b32 s{S_TMP}, s{S_H}, 8")
            e(f"buffer_load_dword v66, v65, {WSR}, s{S_TMP} offen sc1\ns_mov_b64 exec, -1"); order.append(("F", 0))
        if n == 28:
            e("s_barrier")
            e(f"v_cmp_eq_u32 vcc, 0, v66\ns_ff1_i32_b64 s{S_READY}, vcc")
            e(f"s_lshl_b32 s{S_TMP}, s{S_H}, 14\ns_add_u32 s{S_XG0}, s{S_TMP}, {WS_KV - L_MEM}\ns_lshl_b32 s{S_TMP}, s{S_W}, 11\ns_add_u32 s{S_XL0}, s{S_TMP}, {L_KVB}")
            e(f"s_cmp_gt_u32 s{S_READY}, 0\ns_cselect_b64 exec, -1, 0")
            for grp in kv_dma(e, S_XG0, S_XL0):
                for x in grp: e(x)
            e("s_mov_b64 exec, -1"); order += [("K", 0)] * 4
            for r in range(8): e(f"v_lshl_or_b32 v{48+r}, v{56+r}, 16, v{48+r}")
            e(f"s_lshl_b32 s{S_TMP}, s{S_W}, 9\ns_add_u32 s{S_TMP}, s{S_TMP}, {L_QU - L_MEM}\nv_subrev_u32 v27, s{S_TMP}, v{A_UW}")
            for u in range(4): e(f"ds_write_b64 v27, {vr(48+2*u,2)} offset:{u*2048}")
    if cfg.get("gstamp"): e("s_memrealtime s[18:19]\ns_waitcnt lgkmcnt(0)\ns_mov_b32 s69, s18")
    e(f"v_mov_b32 v{IDX}, v29")
    e(f"s_lshl_b32 s{S_TMP}, s{S_H}, 13")
    e(f"s_add_u32 s{S_RSW0}, s{S_TMP}, {WS_RS}\ns_add_u32 s{S_RSW1}, s{S_RSW0}, 4096")
    for i in range(4): e(f"s_mov_b32 s{S_RSR[i]}, {WS_RS + 0x10000 * i}")
    e(f"s_mov_b32 s{S_AGSLOT}, 0\ns_mov_b32 s{S_AGW}, {WS_AG}\ns_mov_b32 s{S_TAG}, 0")
    e(f"s_mov_b32 s{S_KVG}, s{S_XG0}\ns_mov_b32 s{S_KVL}, s{S_XL0}")
    e(f"s_lshl_b32 s{S_TMP}, s{S_H}, 13\ns_add_u32 s{S_KVM}, s{S_TMP}, {WS_KVM - L_MEM - 0x40000}")
    e(f"s_mov_b32 s{S_LB}, 0x3f003f00\ns_mov_b32 s{S_LB+1}, 0x3f803f80")
    e(f"s_lshl_b32 s{S_CF}, s{S_H}, 7\ns_add_u32 s{S_CF}, s{S_CF}, {FL_CFLAG}")
    e(f"s_mov_b32 s{S_SC}, 0x3e0293ee")
    e(f"s_lshl_b32 s{S_KFO}, s{S_H}, 8\ns_add_u32 s{S_KFO}, s{S_KFO}, 4")
    e(f"s_cmp_ge_u32 s{S_MODE}, 32\ns_cbranch_scc1 MODE_D")
    wait_init(e, "c", 32)
    e(f"s_mov_b32 s{S_SPIN}, 0")
    e.label("MODE_L")
    e(f"v_readlane_b32 s{S_MODE}, v32, {DBG_XCC(0)//4}\ns_cmp_ge_u32 s{S_MODE}, 32\ns_cbranch_scc1 MODE_D\ns_mov_b32 s{S_TMP2}, 0")
    for x in range(8):
        e(f"v_readlane_b32 s{S_TMP}, v32, {DBG_XCC(x)//4}\ns_add_u32 s{S_TMP2}, s{S_TMP2}, s{S_TMP}")
    e(f"s_cmp_ge_u32 s{S_TMP2}, 256\ns_cbranch_scc1 MODE_D\ns_sleep 16")
    e(f"global_load_dword v32, v33, s[{S_DBG}:{S_DBG+1}] sc1\ns_add_u32 s{S_SPIN}, s{S_SPIN}, 1\ns_waitcnt vmcnt(0)\ns_cmp_lt_u32 s{S_SPIN}, {SPIN_MAX}\ns_cbranch_scc1 MODE_L")
    e.label("MODE_D")
    e(f"s_cmp_gt_u32 s{S_READY}, 0\ns_cbranch_scc1 KV0_D")
    kv_ready(e, 0, 32, 33)
    for grp in kv_dma(e):
        for s in grp: e(s)
    e.label("KV0_D")
    e(f"s_add_u32 s{S_KVG}, s{S_KVG}, 0x80000\ns_xor_b32 s{S_KVL}, s{S_KVL}, 0x3C000")

def interleave(e, mf, fill):
    def run(x):
        for s in x:
            if callable(s): s()
            else: e(s)
    run(fill.get(-1, []))
    for i, m in enumerate(mf):
        if callable(m): m()
        else: e(m)
        run(fill.get(i, []))

def smf(acc, a, f):
    return f"v_smfmac_f32_16x16x64_bf16 {vr(acc,4)}, {vr(a,4)}, {vr(f[1],8,f[0])}, v{IDX}"
def mf32(d, a, b, c):
    return f"v_mfma_f32_16x16x32_bf16 {vr(d,4)}, {vr(a,4)}, {vr(b,4)}, {c if c == '0' else vr(c,4)}"

NPRE = 5
QL = [(0, 0), (0, 1), (1, 0), (1, 1), (2, 0), (2, 1)]
def rd_ql(e, n, r):
    off = FRAG[("q",) + QL[n]][1]
    e(f"ds_read_b128 {vr(r,4)}, v{A_W} offset:{off}")
    return e(f"ds_read_b128 {vr(r+4,4)}, v{A_W} offset:{off+1024}")
def preload_q(e):
    for n in range(NPRE): rd_ql(e, n, QB + 8 * n)

S_KF = 12
def kv_peek(e):
    e(f"s_min_u32 s{S_TMP}, s{S_STEP}, 59\ns_lshl_b32 s{S_TMP}, s{S_TMP}, 2\ns_add_u32 s{S_TMP}, s{S_TMP}, s{S_KFO}")
    e(f"s_load_dwordx4 s[{S_KF}:{S_KF+3}], s[{S_WS}:{S_WS+1}], s{S_TMP} glc")
def kv_fold(e):
    e(f"s_and_b32 s{S_KF}, s{S_KF}, s{S_KF+1}\ns_and_b32 s{S_KF+2}, s{S_KF+2}, s{S_KF+3}\ns_and_b32 s{S_KF}, s{S_KF}, s{S_KF+2}")
    e(f"s_add_u32 s{S_TMP}, s{S_STEP}, 5\ns_cmp_ge_u32 s{S_STEP}, 59\ns_cselect_b32 s{S_TMP}, -1, s{S_TMP}")
    e(f"s_cmp_eq_u32 s{S_KF}, 1\ns_cselect_b32 s{S_TMP}, s{S_TMP}, 0\ns_max_u32 s{S_READY}, s{S_READY}, s{S_TMP}")

def kv_ready_ool(e, tail, va, vb):
    d = e.newlabel("KRD"); sl = e.newlabel("KRS")
    e(f"s_add_u32 s{S_TMP2}, s{S_STEP}, 1")
    e(f"s_cmp_le_u32 s{S_READY}, s{S_TMP2}\ns_cbranch_scc1 {sl}")
    e.label(d)
    def slow():
        e.label(sl)
        kv_poll(e, va, vb, d)
    tail.append(slow)

def chain_loop(e, fast, cfg):
    st = "" if fast else " sc1"
    tag_ = "F" if fast else "S"
    WS = f"s[{R_WS}:{R_WS+3}]"
    stamps = cfg.get("stamps", [])
    def S(name):
        if name in stamps:
            i = stamps.index(name); e(f"s_memtime s[{S_ST+2*i}:{S_ST+2*i+1}]")
    def SS(name): return lambda: S(name)
    def GS(p, fill, n):
        for i in range(n):
            if f"{p}_{i}" in stamps: fill[i] = [SS(f"{p}_{i}")] + list(fill.get(i, []))
    LOOP, LAST, ENTRY, EARLY = [f"CH{tag_}_{x}" for x in ("LOOP", "LAST", "ENTRY", "EARLY")]
    tail = []
    seq = {}
    def wt(key): return lambda: e.waitlg(seq[key])
    KP, VP, QP = XT + 4, XT + 6, XT + 2
    RP, RED, AGO, T1, AP = MEMA, MEMA + 16, MEMA + 20, MEMA + 22, MEMA + 24
    preload_q(e)
    for r in range(0, 16, 2): e(f"v_mov_b64 {vr(ACA+r,2)}, 0")
    e("s_waitcnt vmcnt(0) lgkmcnt(0)")
    if cfg.get("gstamp"): e("s_memrealtime s[18:19]\ns_memtime s[16:17]")
    kv_ready(e, 1, T0, T1)
    e(f"s_mov_b32 s{S_KF}, 0")
    if cfg.get("prio"): e(f"s_setprio {cfg['prio']}")
    e(f"s_add_u32 s{S_KVG2}, s{S_KVG}, 8192\ns_mov_b32 m0, s{S_KVL}\nv_mov_b32 v{T0}, 0")
    e(f"s_branch {ENTRY}")
    def rs_ld(r):
        for i in range(4): e(f"buffer_load_dwordx4 {vr(r+4*i,4)}, v{A_RSR}, {WS}, s{S_RSR[i]} offen sc1")
    def rs_chk(r, n):
        for i in range(4):
            e(f"s_waitcnt vmcnt({n+3-i})")
            e(mf32(RED, SEL, r + 4 * i, "0" if i == 0 else RED))
            e(f"v_bitop3_b32 v{T1 if i else T0}, v{r+4*i}, v{r+4*i+2}, s{S_TAG} bitop3:0x7e")
            if i: e(f"v_or_b32 v{T0}, v{T0}, v{T1}")
        e(f"v_and_b32 v{T0}, 1, v{T0}\nv_cmp_ne_u32 vcc, 0, v{T0}")
    def ag_ld(r):
        e(f"buffer_load_dwordx4 {vr(r,4)}, v{A_AGR}, {WS}, s{S_AGR0} offen sc1")
        e(f"buffer_load_dwordx4 {vr(r+4,4)}, v{A_AGR}, {WS}, s{S_AGR0} offen offset:1024 sc1")
    def ag_chk(r, n):
        e(f"s_waitcnt vmcnt({n})")
        e(f"ds_write_b128 v{A_AGR}, {vr(r,4)}\nds_write_b128 v{A_AGR}, {vr(r+4,4)} offset:1024")
        e(f"v_max3_u32 v{T0}, v{r}, v{r+1}, v{r+2}\nv_max3_u32 v{T1}, v{r+4}, v{r+5}, v{r+6}")
        e(f"v_max3_u32 v{T0}, v{T0}, v{r+3}, v{r+7}\nv_max_u32 v{T0}, v{T0}, v{T1}\nv_cmp_eq_u32 vcc, -1, v{T0}")
    def comm(reducer, d1, d2, K, KR):
        P1, P1R, P2, P2R = [e.newlabel(x) for x in ("P1", "P1R", "P2", "P2R")]
        if not reducer:
            preload_q(e)
            e(f"s_xor_b32 s{S_TAG}, s{S_TAG}, 1")
            S("rsi"); S("rs")
        else:
            e.nop(d1)
            S("rsi")
            rsets = [RP, ACA][:KR]
            rs_ld(RP)
            preload_q(e)
            if KR > 1:
                e.nop(cfg.get("e1", 5)); rs_ld(ACA)
            rs_chk(RP, 4 * (KR - 1))
            e(f"s_cbranch_vccnz {P1R}")
            e.label(P1 + "_OK")
            S("rs")
            def p1r():
                e.label(P1R)
                for k in range(KR):
                    e(f"s_add_u32 s{S_SPIN}, s{S_SPIN}, 1\ns_cmp_gt_u32 s{S_SPIN}, {SPIN_MAX}\ns_cbranch_scc1 {P1}_OK")
                    e("s_mov_b64 exec, vcc"); rs_ld(rsets[k]); e("s_mov_b64 exec, -1")
                    rs_chk(rsets[(k + 1) % KR], 4 * (KR - 1))
                    e(f"s_cbranch_vccz {P1}_OK")
                e(f"s_branch {P1R}")
            tail.append(p1r)
            e(f"s_xor_b32 s{S_TAG}, s{S_TAG}, 1\ns_nop 1")
            for r in range(4):
                e(f"v_add_f32_dpp v{RED+r}, v{RED+r}, v{RED+r} row_ror:8 row_mask:0xf bank_mask:0xf")
            e(f"s_mov_b64 exec, s[{S_AGM}:{S_AGM+1}]")
            e(f"v_cvt_pk_bf16_f32 v{AGO}, v{RED}, v{RED+1}\nv_cvt_pk_bf16_f32 v{AGO+1}, v{RED+2}, v{RED+3}")
            e(f"s_mov_b64 exec, s[{S_AGM2}:{S_AGM2+1}]\nbuffer_store_dwordx2 {vr(AGO,2)}, v{A_AGW}, {WS}, s{S_AGW} offen{st}\ns_mov_b64 exec, -1")
        S("ags")
        if cfg.get("agbar"): e("s_barrier")
        S("agb")
        kv_ready_ool(e, tail, T0, T1)
        e.nop(d2)
        sets = [AP, ACB][:K]
        for k, r in enumerate(sets):
            if k: e.nop(cfg.get("e2", 25))
            ag_ld(r)
        ag_chk(AP, 2 * (K - 1))
        e(f"s_cbranch_vccnz {P2R}")
        e.label(P2 + "_OK")
        S("ag")
        def p2r():
            e.label(P2R)
            for k in range(K):
                e(f"s_add_u32 s{S_SPIN}, s{S_SPIN}, {16 if stamps else 1}\ns_cmp_gt_u32 s{S_SPIN}, {SPIN_MAX}\ns_cbranch_scc1 {P2}_OK")
                e("s_mov_b64 exec, vcc"); ag_ld(sets[k]); e("s_mov_b64 exec, -1")
                ag_chk(sets[(k + 1) % K], 2 * (K - 1))
                e(f"s_cbranch_vccz {P2}_OK")
            e(f"s_branch {P2R}")
        tail.append(p2r)
        if stamps:
            sk = e.newlabel("NS")
            e(f"s_waitcnt lgkmcnt(0)\ns_cmp_eq_u32 s{S_STEP}, {cfg.get('stampstep', 40)}\ns_cbranch_scc0 {sk}")
            for i in range(len(stamps)): e(f"v_writelane_b32 v{T0}, s{S_ST+2*i}, {i}")
            e(f"v_writelane_b32 v{T0}, s{S_SPIN}, 10")
            for i in range(5): e(f"s_memrealtime s[{12+4*i}:{13+4*i}]\ns_memtime s[{14+4*i}:{15+4*i}]\ns_nop 5")
            e("s_waitcnt lgkmcnt(0)")
            for i in range(5): e(f"v_writelane_b32 v{T0}, s{12+4*i}, {16+2*i}\nv_writelane_b32 v{T0}, s{14+4*i}, {17+2*i}")
            e(f"s_lshl_b32 s{S_TMP}, s{S_H}, 2\ns_add_u32 s{S_TMP}, s{S_TMP}, s{S_W}\ns_lshl_b32 s{S_TMP}, s{S_TMP}, 8\ns_add_u32 s{S_TMP}, s{S_TMP}, {WS_STAMP}")
            e(f"v_mbcnt_lo_u32_b32 v{T1}, -1, 0\nv_mbcnt_hi_u32_b32 v{T1}, -1, v{T1}\nv_lshlrev_b32 v{T1}, 2, v{T1}")
            e(f"buffer_store_dword v{T0}, v{T1}, {WS}, s{S_TMP} offen")
            e.label(sk)
        for r in range(0, 8, 2): e(f"v_mov_b64 {vr(ACA+r,2)}, 0")
        e(f"v_mov_b32 v{T0}, s{S_FLV}")
        if cfg.get("pubc"): e(f"buffer_store_dwordx4 {vr(KP,4)}, v{A_AGR}, {WS}, s{S_KVM} offen sc1")
        e("s_waitcnt lgkmcnt(0)")
    D = cfg.get("D", [[0, 60], [0, 160], [25, 40], [0, 190]])
    if cfg.get("agbar"): D = [[cfg["d1e"], cfg.get("d2e", 0)], [0, cfg.get("d2e", 0)], [cfg["d1"], cfg["d2"]], [0, cfg["d2"]]]
    KK = [cfg.get("Ke", 1), cfg.get("Ke", 1), cfg.get("K", 2), cfg.get("K", 2)]
    for w in (0, 1, 3):
        e.label(f"{LOOP}_{w}")
        comm(w == 0, D[w][0], D[w][1], KK[w], cfg.get('KRe', 1))
        e(f"s_branch {ENTRY}")
    e(".p2align 6")
    e.label(f"{LOOP}_2")
    comm(True, D[2][0], D[2][1], KK[2], cfg.get('KR', 2))
    e.label(ENTRY)
    e("s_barrier")
    S("b1")
    if cfg.get("stepst"): e("s_memrealtime s[84:85]")
    def rd_m(J, x):
        def f(): seq[("m", J)] = e(f"ds_read_b64_tr_b16 {vr(MEMA+4*J+2*x,2)}, v{A_TR} offset:{(2*(J%2)+x)*2048 + (J//2)*512}")
        return f
    qorder = [(0, 0), (0, 1), (1, 0), (1, 1), (2, 0)] + [(J, t) for J in range(3, 8) for t in range(2)] + [(2, 1)]
    def qf(J, t):
        if J < 3: return ("v", QB + 8 * (QL.index((J, t)) % 5))
        return FRAG[("q", J, t)]
    mq = [smf(ACA + 4 * t, MEMA + 4 * J, qf(J, t)) for J, t in qorder]
    def rd_w(key, r, off):
        def f(): seq[key] = e(f"ds_read_b128 {vr(r,4)}, v{A_W} offset:{off}")
        return f
    def rq(n, hf): return rd_w(("ql", n), QB + 8 * (n % 5) + 4 * hf, FRAG[("q",) + QL[n]][1] + 1024 * hf)
    flag = [f"s_mov_b64 exec, s[{S_W0M}:{S_W0M+1}]", f"buffer_store_dword v{T0}, off, {WS}, s{S_CF} sc1", "s_mov_b64 exec, -1"]
    pubk = f"buffer_store_dwordx4 {vr(KP,4)}, v{A_AGR}, {WS}, s{S_KVM} offen sc1"
    pubv = "s_nop 0"
    if cfg.get("nopub"): pubk = pubv = "s_nop 0"; flag = []
    def dm(i): return "s_nop 0" if cfg.get("nodma") else f"buffer_load_dwordx4 v{A_AGR}, {WS}, s{S_KVG if i < 2 else S_KVG2} offen offset:{(i%2)*1024} sc1 lds"
    z = lambda r: f"v_mov_b64 {vr(r,2)}, 0"
    fill = {-1: [rd_m(J, x) for J in range(4) for x in range(2)] + [wt(("m", 0)), SS("m0")],
            0: [rd_m(4, 0), dm(0)], 1: [rd_m(4, 1), wt(("m", 1))], 2: [rd_m(5, 0), dm(1)], 3: [rd_m(5, 1), wt(("m", 2))],
            4: [f"s_add_u32 m0, s{S_KVL}, 8192", wt(("m", 3))],
            5: [f"s_waitcnt vmcnt({3 if cfg.get('pubc') else 2})", rd_m(6, 0)], 6: [rd_m(6, 1), wt(("m", 4))], 7: [rd_m(7, 0), dm(2)], 8: [rd_m(7, 1), wt(("m", 5))],
            9: [rq(5, 0), dm(3)], 10: [rq(5, 1), wt(("m", 6))], 11: flag, 12: [wt(("m", 7))], 13: [] if cfg.get("pubc") else [pubk], 14: [wt(("ql", 5))],
            }
    kextra = {}
    dp = cfg.get("dp", 0)
    m0b = f"s_add_u32 m0, s{S_KVL}, 8192"
    if dp:
        for g in (0, 2, 7, 9): fill[g] = fill[g][:1]
        fill[4] = fill[4][1:]
        fill[5] = ["s_waitcnt vmcnt(%d)" % (1 if dp in (1, 2) else 0), rd_m(6, 0)]
        if dp == 1:
            fill[2] += [dm(0)]; fill[7] += [dm(1)]; fill[9] += [m0b]; fill[12] = fill[12] + [dm(2)]; kextra = {5: [dm(3)]}
        if dp == 2:
            fill[2] += [dm(0)]; fill[9] += [dm(1)]; kextra = {3: [m0b], 5: [dm(2)], 11: [dm(3)]}
        if dp == 3:
            fill[7] += [dm(0)]; fill[12] = fill[12] + [dm(1)]; kextra = {3: [m0b], 6: [dm(2)], 14: [dm(3)]}
    if cfg.get("flp") == 1:
        fill[11] = []; kextra[7] = None
    pp = cfg.get("pubp", 0)
    if pp:
        pre = [rd_m(J, x) for J in range(4) for x in range(2)]
        fill[-1] = pre[:pp] + [pubk] + pre[pp:] + [wt(("m", 0)), SS("m0")]
        fill[13] = []; fill[5] = ["s_waitcnt vmcnt(3)", rd_m(6, 0)]
    if cfg.get("pub2"):
        fill[13] = [f"buffer_store_dwordx2 {vr(KP,2)}, v{A_AGR}, {WS}, s{S_KVM} offen sc1"]
        fill[15] = [f"buffer_store_dwordx2 {vr(VP,2)}, v{A_AGR}, {WS}, s{S_KVM} offen offset:8 sc1"]
    for n, g in enumerate([7, 8, 9, 10] if not cfg.get("xz") else [10, 12, 13, 14]): fill[g] = fill[g] + [z(ACB + 2 * n)]
    GS("q", fill, 16)
    interleave(e, mq, fill)
    S("q")
    mk = [smf(ACB + 4 * t, MEMA + 4 * J, FRAG[("k", J, t)]) for J in range(8) for t in range(2)]
    def post_dup(acc, dst):
        return [f"v_add_f32 v{acc}, v{acc}, v{acc+2}", f"v_add_f32 v{acc+1}, v{acc+1}, v{acc+3}",
                f"v_cvt_pk_bf16_f32 v{dst}, v{acc}, v{acc+1}"]
    pq = post_dup(ACA, QP) + post_dup(ACA + 4, QP + 1)
    def rd_q(js, t):
        def f(): seq[("q", js)] = e(f"ds_read_b64_tr_b16 {vr(QB+4*js+2*t,2)}, v{A_TR} offset:{L_QU-L_MEM + js*1024 + t*512}")
        return f
    kxslot = [0, 1, 2, 3, 4, 5, 0, 1]
    def rd_kx(n):
        js, kt = n // 2, n % 2
        def f(): seq[("kx", n)] = e(f"ds_read_b128 {vr(KXA+4*kxslot[n],4)}, v{A_KX} offset:{(kt*4+js)*1024}")
        return f
    def wr_u(key, a, r, t):
        def f(): seq[key] = e(f"ds_write2_b32 v{a}, v{r}, v{r} offset0:{128*t} offset1:{128*t+1}")
        return f
    fill = {0: pq[0:2], 1: pq[2:4], 2: [wr_u("wq0", A_UW, QP, 0)] + pq[4:6], 3: [wr_u("wq1", A_UW, QP + 1, 1)],
            4: [rd_kx(0), f"v_add_u32 v{T0}, {L_KU - L_QU}, v{A_UW}"], 5: [rd_kx(1)], 6: [rd_kx(2)], 7: [rd_kx(3)],
            8: [wt("wq1"), SS("bq0"), "s_barrier", SS("bq1")],
            9: [rd_q(0, 0), rd_q(0, 1)], 10: [rd_q(1, 0), rd_q(1, 1)], 11: [rd_kx(4)], 12: [rd_q(2, 0), rd_kx(5)], 13: [rd_q(2, 1), rd_q(3, 0)],
            14: [rd_q(3, 1)], 15: [wt(("q", 1))]}
    for g, x in kextra.items():
        if x is None: fill[g] = flag; fill[6] = fill[6] + [rd_kx(3)]
        else: fill[g] = fill[g] + x
    if cfg.get("flp") == 1: fill[4] = [rd_kx(0)]; fill[8] = fill[8]; fill[15] = fill[15]; kadd = True
    GS("k", fill, 16)
    interleave(e, mk, fill)
    S("k")
    pk = post_dup(ACB, KP) + post_dup(ACB + 4, KP + 1)
    ms = []
    for js in range(4):
        for kt in range(2):
            n = js * 2 + kt
            ms.append(mf32(ACA + 4 * kt, KXA + 4 * kxslot[n], QB + 4 * js, "0" if js == 0 else ACA + 4 * kt))
    def rd_k(js, t):
        def f(): seq[("k", js)] = e(f"ds_read_b64_tr_b16 {vr(KXA+8+4*js+2*t,2)}, v{A_TRK} offset:{L_KU-L_MEM + js*1024 + t*512}")
        return f
    fill = {0: [rd_kx(6)] + pk[0:2], 1: [rd_kx(7)] + pk[2:4] + ([f"v_add_u32 v{T0}, {L_KU - L_QU}, v{A_UW}"] if cfg.get("flp") == 1 else []),
            2: [wr_u("wk0", T0, KP, 0)] + pk[4:6], 3: [wt(("q", 3)), z(ACB), z(ACB + 2)],
            4: [wr_u("wk1", T0, KP + 1, 1), z(ACB + 4), z(ACB + 6)],
            5: [wt(("kx", 7))],
            7: [f"s_cmp_ge_u32 s{S_STEP}, 63", f"s_cbranch_scc1 {LAST}"],
            }
    GS("sx", fill, 8)
    interleave(e, ms, fill)
    S("Sx")
    mv = [smf(ACB + 4 * t, MEMA + 4 * J, FRAG[("v", J, t)]) for J in range(8) for t in range(2)]
    SM = KXA
    X0, X1 = ACA, ACA + 4
    mx, t2 = KXA + 4, KXA + 5
    e0 = XT
    NV1 = cfg.get("nv1", 10)
    msm = [mf32(SM, KXA + 8 + 4 * js, QB + 4 * js, "0" if js == 0 else SM) for js in range(4)]
    odd = f"s[{S_ODD}:{S_ODD+1}]"
    early = [f"v_max3_f32 v{mx}, v{X0}, v{X0+1}, v{X0+2}", f"v_max3_f32 v{t2}, v{X1}, v{X1+1}, v{X1+2}",
             f"v_max3_f32 v{mx}, v{mx}, v{X0+3}, v{X1+3}", f"v_max_f32 v{mx}, v{mx}, v{t2}",
             f"v_cndmask_b32 v{e0}, v{X0}, v{X0+2}, {odd}", f"v_cndmask_b32 v{e0+1}, v{X0+1}, v{X0+3}, {odd}",
             f"v_cndmask_b32 v{e0+2}, v{X1}, v{X1+2}, {odd}", f"v_cndmask_b32 v{e0+3}, v{X1+1}, v{X1+3}, {odd}"]
    seqm = mv[:NV1] + msm + mv[NV1:]
    PVB0, PVB1, OAC, PA, LB, LA = QB, QB + 8, KXA + 8, KXA + 16, KXA + 20, KXA + 4
    def rd_vx(n):
        t, hf = n // 2, n % 2
        def f(): seq["vx"] = e(f"ds_read_b64 {vr(QB+8*t+2+4*hf,2)}, v{A_VX} offset:{t*1024 + hf*512}")
        return f
    def rd_wo(T, hf):
        return rd_w(("wo", T), MEMA + 8 * (T % 4) + 4 * hf, FRAG[("o", (1, T // 2), T % 2)][1] + 1024 * hf)
    EE = [SM, SM + 1, e0, e0+1, e0+2, e0+3]
    fill = {0: [wt("wk1"), SS("bk0"), "s_barrier", SS("bk1")]}
    for n in range(8): fill[1 + n] = [rd_k(n // 2, n % 2), early[n]]
    xv = cfg.get("xv", 0)
    if xv == 2:
        fill = {1: early[0:1], 2: early[1:3], 3: early[3:5], 4: [wt("wk1"), "s_barrier"],
                5: [rd_k(0, 0), rd_k(0, 1)], 6: [rd_k(1, 0), rd_k(1, 1)], 7: [rd_k(2, 0), rd_k(2, 1)], 8: [rd_k(3, 0), rd_k(3, 1)]}
    if xv == 3:
        fill = {1: early[0:2], 2: early[2:4], 3: [wt("wk1"), "s_barrier"],
                4: [rd_k(0, 0), rd_k(0, 1)], 5: [rd_k(1, 0), rd_k(1, 1)], 6: [rd_k(2, 0)], 7: [rd_k(2, 1)], 8: [rd_k(3, 0), rd_k(3, 1)]}
    if xv == 1:
        for n in range(8): fill[1 + n] = [rd_k(n // 2, n % 2)]
        fill[7] += early[0:1]; fill[8] += early[1:2]
    FLAGPOS = flag
    fill[NV1 - 1] = [rd_wo(0, 0), wt(("k", 0)), SS("k0")] if NV1 - 1 > 8 else fill[NV1 - 1][:1] + [wt(("k", 0))] + fill[NV1 - 1][1:]
    lb = [f"v_mov_b64 {vr(LB,2)}, s[{S_LB}:{S_LB+1}]", f"v_mov_b64 {vr(LB+2,2)}, s[{S_LB}:{S_LB+1}]"]
    zz = [z(OAC), z(OAC + 2), z(OAC + 4), z(OAC + 6), f"v_mov_b32 v{PA+2}, 0"] + lb
    if xv == 1:
        fill[NV1 - 1] = fill[NV1 - 1] + early[2:3]
        fill[NV1] = [wt(("k", 1))] + early[3:5]
        fill[NV1 + 1] = [wt(("k", 2))] + early[5:7]
        fill[NV1 + 2] = [wt(("k", 3))] + early[7:8] + zz[0:1]
        fill[NV1 + 3] = [rd_vx(0)] + zz[1:3]
        zz = zz[3:]
    elif xv in (2, 3):
        rem = early[5:] if xv == 2 else early[4:]
        allv = rem + zz
        k0 = 2 if xv == 3 else 0
        fill[NV1] = [wt(("k", 1))]
        fill[NV1 + 1] = [wt(("k", 2))] + allv[0:k0]
        fill[NV1 + 2] = [wt(("k", 3))] + allv[k0:k0 + 2]
        fill[NV1 + 3] = [rd_vx(0)] + allv[k0 + 2:k0 + 4]
        zz = allv[k0 + 4:]
    else:
        fill[NV1] = [wt(("k", 1))] + zz[0:2]
        fill[NV1 + 1] = [wt(("k", 2))] + zz[2:4]
        fill[NV1 + 2] = [wt(("k", 3))] + zz[4:5]
        fill[NV1 + 3] = [rd_vx(0)] + zz[5:7]
        zz = []
    GS("v1", fill, 14)
    interleave(e, seqm[:NV1 + 4], fill)
    S("Sm")
    rest = seqm[NV1 + 4:]
    assert len(rest) == 6
    def run(x):
        for s in x: s() if callable(s) else e(s)
    run([rest[0], rd_vx(1), rd_vx(2)] + zz[0:1] + [rest[1], rd_vx(3), rd_wo(0, 1),
         f"v_max3_f32 v{mx}, v{mx}, v{SM}, v{SM+1}", f"v_mov_b32 v{t2}, v{mx}",
         rest[2], rd_wo(1, 0), rd_wo(1, 1),
         f"v_permlane32_swap_b32 v{mx}, v{t2}", f"v_max_f32 v{mx}, v{mx}, v{t2}", f"v_mov_b32 v{t2}, v{mx}",
         rest[3], rd_wo(2, 0), rd_wo(2, 1),
         f"v_permlane16_swap_b32 v{mx}, v{t2}", f"v_max_f32 v{mx}, v{mx}, v{t2}",
         rest[4], f"v_mul_f32 v{mx}, s{S_SC}, v{mx}", rest[5], rd_wo(3, 0), rd_wo(3, 1)] + zz[1:] + [
         ]
        + [f"v_fma_f32 v{x}, v{x}, s{S_SC}, -v{mx}" for x in EE] + [f"v_exp_f32 v{x}, v{x}" for x in EE]
        + [f"v_cvt_pk_bf16_f32 v{PA}, v{SM}, v{SM+1}", f"v_cvt_pk_bf16_f32 v{PA+1}, v{e0}, v{e0+1}", f"v_cvt_pk_bf16_f32 v{PA+3}, v{e0+2}, v{e0+3}",
           f"v_permlane32_swap_b32 v{PA}, v{PA+2}"])
    S("soft")
    cv = lambda t, h: f"v_cvt_pk_bf16_f32 v{QB+8*t+h}, v{ACB+4*t+2*h}, v{ACB+4*t+2*h+1}"
    run([cv(0, 0), cv(0, 1), mf32(LA, PA, LB, "0"), wt("vx"), cv(1, 0), cv(1, 1),
         f"v_smfmac_f32_16x16x64_bf16 {vr(OAC,4)}, {vr(PA,4)}, {vr(PVB0,8)}, v{IDX}", "s_nop 0",
         f"v_smfmac_f32_16x16x64_bf16 {vr(OAC+4,4)}, {vr(PA,4)}, {vr(PVB1,8)}, v{IDX}",
         ] + ([
         f"v_pk_add_f32 {vr(LA,2)}, {vr(LA,2)}, {vr(LA+2,2)}", f"v_rcp_f32 v{LA}, v{LA}", f"v_rcp_f32 v{LA+1}, v{LA+1}",
         f"v_pk_add_f32 {vr(OAC,2)}, {vr(OAC,2)}, {vr(OAC+2,2)}", f"v_pk_mul_f32 {vr(OAC,2)}, {vr(OAC,2)}, {vr(LA,2)}", "s_nop 0",
         f"v_pk_add_f32 {vr(OAC+4,2)}, {vr(OAC+4,2)}, {vr(OAC+6,2)}", f"v_cvt_pk_bf16_f32 v{OAC}, v{OAC}, v{OAC+1}",
         f"v_pk_mul_f32 {vr(OAC+4,2)}, {vr(OAC+4,2)}, {vr(LA,2)}", f"v_cvt_pk_bf16_f32 v{OAC+1}, v{OAC+4}, v{OAC+5}"] if cfg.get("usepk") else [
         f"v_add_f32 v{LA}, v{LA}, v{LA+2}", f"v_add_f32 v{LA+1}, v{LA+1}, v{LA+3}", f"v_rcp_f32 v{LA}, v{LA}", f"v_rcp_f32 v{LA+1}, v{LA+1}",
         f"v_add_f32 v{OAC}, v{OAC}, v{OAC+2}", f"v_add_f32 v{OAC+1}, v{OAC+1}, v{OAC+3}",
         f"v_mul_f32 v{OAC}, v{OAC}, v{LA}", f"v_mul_f32 v{OAC+1}, v{OAC+1}, v{LA+1}",
         f"v_add_f32 v{OAC+4}, v{OAC+4}, v{OAC+6}", f"v_add_f32 v{OAC+5}, v{OAC+5}, v{OAC+7}",
         f"v_mul_f32 v{OAC+4}, v{OAC+4}, v{LA}", f"v_mul_f32 v{OAC+5}, v{OAC+5}, v{LA+1}",
         f"v_cvt_pk_bf16_f32 v{OAC}, v{OAC}, v{OAC+1}", f"v_cvt_pk_bf16_f32 v{OAC+1}, v{OAC+4}, v{OAC+5}"]))
    WAC = [QB, QB + 4, QB + 8, QB + 12, ACA, ACA + 4, ACB, ACB + 4]
    so = e(f"ds_write_b64 v{A_UW}, {vr(OAC,2)}")
    S("ow")
    def vpost():
        for t in range(2):
            a = ACB + 4 * t
            e(f"v_pk_add_f32 {vr(a,2)}, {vr(a,2)}, {vr(a+2,2)}\nv_cvt_pk_bf16_f32 v{VP+t}, v{a}, v{a+1}")
    vpost()
    for r in range(0, 16, 2): e(z(QB + r))
    if cfg.get("xo"):
        for r in range(0, 16, 2): e(z(ACA + r))
    e.waitlg(so)
    S("bo0")
    e("s_barrier")
    S("bo1")
    OA = KXA
    for J in range(2):
        for x in range(2):
            seq[("oa", J)] = e(f"ds_read_b64_tr_b16 {vr(OA+4*J+2*x,2)}, v{A_TR} offset:{L_QU-L_MEM + (2*J+x)*1024}")
    if not cfg.get("xo"):
        for r in range(0, 16, 2): e(z(ACA + r))
    mo = []
    for p in range(4):
        for T in (2 * p, 2 * p + 1): mo.append(smf(WAC[T], OA, FRAG[("o", (0, T // 2), T % 2)]))
        for T in (2 * p, 2 * p + 1): mo.append(smf(WAC[T], OA + 4, ("v", MEMA + 8 * (T % 4))))
    RSO = OAC
    def post_pair(p):
        a, b = WAC[2 * p], WAC[2 * p + 1]; d = RSO + 2 * p
        return [f"v_add_f32 v{a}, v{a}, v{a+2}", f"v_add_f32 v{a+1}, v{a+1}, v{a+3}",
                f"v_cvt_pk_bf16_f32 v{d}, v{a}, v{a+1}", f"v_add_f32 v{b}, v{b}, v{b+2}",
                f"v_add_f32 v{b+1}, v{b+1}, v{b+3}", f"v_and_or_b32 v{d}, v{d}, -2, s{S_TAG}",
                f"v_cvt_pk_bf16_f32 v{d+1}, v{b}, v{b+1}",
                f"buffer_store_dwordx2 {vr(d,2)}, v{A_RSW}, {WS}, s{S_RSW0 if p < 2 else S_RSW1} offen offset:{(p%2)*2048}{st}"]
    p0, p1, p2, p3 = [post_pair(p) for p in range(4)]
    fill = {-1: [wt(("oa", 0)), SS("oa")], 1: [wt(("oa", 1))], 2: [rd_wo(4, 0), rd_wo(4, 1)], 3: [rd_wo(5, 0), rd_wo(5, 1)],
            4: ["s_nop 0"] + p0[0:1], 5: p0[1:3], 6: [rd_wo(6, 0), rd_wo(6, 1)] + p0[3:5], 7: [rd_wo(7, 0), rd_wo(7, 1)] + p0[5:7], 8: p0[7:8] + p1[0:1],
            9: [wt(("wo", 4))] + p1[1:3], 10: [wt(("wo", 5))] + p1[3:5], 11: p1[5:7],
            12: p1[7:8] + p2[0:1], 13: [wt(("wo", 6))] + p2[1:3], 14: [wt(("wo", 7))] + p2[3:5],
            15: p2[5:8] + p3[0:3] + ([p3[5]] + p3[3:5] + p3[6:] if not cfg.get("usepk") else [p3[5], f"v_pk_add_f32 {vr(WAC[7],2)}, {vr(WAC[7],2)}, {vr(WAC[7]+2,2)}"] + p3[6:]),
            }
    GS("wo", fill, 16)
    interleave(e, mo, fill)
    S("Wo")
    if cfg.get("stepst"):
        for k in range(12): e(f"s_cmp_eq_u32 s{S_STEP}, {k if k < 8 else 8*(k-6)}\ns_cselect_b32 s{20+k}, s84, s{20+k}")
    e(f"v_mov_b64 {vr(AGO,2)}, -1")
    e(f"v_xor_b32 v{A_KX}, 0x3C000, v{A_KX}\nv_xor_b32 v{A_VX}, 0x3C000, v{A_VX}")
    e(f"v_add_u32 v{A_AGW}, 0x2000, v{A_AGW}\nv_subrev_u32 v{T0}, 0x6000, v{A_AGW}\nv_min_u32 v{A_AGW}, v{A_AGW}, v{T0}")
    e(f"s_add_u32 s{S_AGSLOT}, s{S_AGSLOT}, 0x2000\ns_cmp_eq_u32 s{S_AGSLOT}, 0x6000\ns_cselect_b32 s{S_AGSLOT}, 0, s{S_AGSLOT}")
    e(f"s_add_u32 s{S_AGR0}, s{S_AGSLOT}, {WS_AG - L_MEM}")
    e(f"s_add_u32 s{S_KVG}, s{S_KVG}, 0x80000\ns_xor_b32 s{S_KVL}, s{S_KVL}, 0x3C000\ns_add_u32 s{S_KVM}, s{S_KVM}, 0x40000")
    e(f"s_add_u32 s{S_KVG2}, s{S_KVG}, 8192\ns_mov_b32 m0, s{S_KVL}\ns_mov_b32 s{S_FLV}, s{S_STEP}")
    if cfg.get("peek"): kv_fold(e)
    e(f"s_add_u32 s{S_STEP}, s{S_STEP}, 1\ns_mov_b32 s{S_SPIN}, 0")
    if cfg.get("peek"): kv_peek(e)
    for w in (2, 0, 1): e(f"s_cmp_eq_u32 s{S_W}, {w}\ns_cbranch_scc1 {LOOP}_{w}")
    e(f"s_branch {LOOP}_3")
    for t in tail: t()
    e.label(LAST)
    e(f"s_add_u32 s{S_KVM}, s{S_KVM}, 0x40000")
    for m in mv: e(m)
    e.nop(8)
    vpost()
    e(pubk)
    e("s_waitcnt vmcnt(0) lgkmcnt(0)\ns_barrier")
    e(f"v_mov_b32 v{T0}, 64\ns_mov_b64 exec, s[{S_W0M}:{S_W0M+1}]")
    e(f"buffer_store_dword v{T0}, off, {WS}, s{S_CF} sc1")
    if cfg.get("gstamp"):
        e(f"s_memrealtime s[84:85]\ns_memtime s[86:87]\ns_waitcnt lgkmcnt(0)\ns_sub_u32 s86, s86, s16\nv_mov_b32 v24, s86\nv_mov_b32 v20, s3\nv_mov_b32 v21, s18\nv_mov_b32 v22, s84\nv_mov_b32 v23, s69")
        e(f"s_lshl_b32 s{S_TMP}, s{S_H}, 4\ns_add_u32 s{S_TMP}, s{S_TMP}, {WS_STAMP + 0x10000}")
        if cfg.get("stepst"):
            for k in range(12): e(f"v_mov_b32 v{30+k}, s{20+k}")
            e(f"s_lshl_b32 s{S_TMP2}, s{S_H}, 6\ns_add_u32 s{S_TMP2}, s{S_TMP2}, {WS_STAMP + 0x11000}")
            for k in range(3): e(f"buffer_store_dwordx4 v[{30+4*k}:{33+4*k}], off, {WS}, s{S_TMP2} offset:{16*k}")
        e(f"buffer_store_dwordx4 v[20:23], off, {WS}, s{S_TMP}\nbuffer_store_dword v24, off, {WS}, s{S_TMP} offset:1024")
    e("s_branch KEND")
```

```python
from asmlib import Em, vr
from layout import *
from chain import *

WS = f"s[{R_WS}:{R_WS+3}]"
W_XB, W_QX, W_KMU, W_RED, W_STG = 0x0, 0x10000, 0x12000, 0x13000, 0x10000
NSLOT = 6
S_G, S_SEG, S_CNT, S_XL, S_XG, S_I, S_OFF, S_OFF2, S_STGB = 52, 53, 54, 55, 56, 57, 58, 59, 60
S_STP, S_END, S_PREV, S_CHN = 61, 66, 74, 75
R_X = 84
R_A, R_B = 40, 44
R_O = 88
V_C, V_G, V_L16, V_XSRC, V_XRD, V_T, V_T2 = 1, 2, 3, 4, 5, 6, 7

_cfg = {}
def WST(e, idx=None):
    if not _cfg.get("wstamp"): return
    e(f"s_memrealtime s[70:71]\ns_lshl_b32 s72, s{S_GRP}, 5\ns_add_u32 s72, s72, s{S_H}\ns_lshl_b32 s72, s72, 8\ns_lshl_b32 s73, s101, 2\ns_add_u32 s72, s72, s73")
    e(f"s_add_u32 s72, s72, {WS_STAMP + 0x20000}\ns_add_u32 s101, s101, 1\ns_waitcnt lgkmcnt(0)\ns_sub_u32 s70, s70, s3\nv_mov_b32 v{V_T}, s70\nv_mov_b32 v{V_T2}, 0\ns_mov_b64 exec, s[{S_W0M}:{S_W0M+1}]")
    e(f"buffer_store_dword v{V_T}, v{V_T2}, {WS}, s72 offen\ns_mov_b64 exec, -1\ns_waitcnt vmcnt(0)")

def load_blocks(e, blocks):
    N = len(blocks)
    def issue(n):
        r, vs, so, _, _ = blocks[n]
        for i in range(4):
            e(f"s_add_u32 m0, s{S_STGB}, {(n % NSLOT) * 4096 + i * 1024}\ns_mov_b32 s{S_TMP}, {so[i]}")
            e(f"buffer_load_dwordx4 {vs}, s[{r}:{r+3}], s{S_TMP} offen lds")
    for n in range(min(NSLOT, N)): issue(n)
    for n in range(N):
        e(f"s_waitcnt vmcnt({4 * min(N - 1 - n, NSLOT - 1)})")
        for dst, off in blocks[n][4]:
            e(f"ds_read_b64_tr_b16 {dst}, {blocks[n][3]} offset:{(n % NSLOT) * 4096 + off}")
        e("s_waitcnt lgkmcnt(0)")
        if n + NSLOT < N: issue(n + NSLOT)

def wmat_blocks(r, abase):
    out = []
    for J in range(8):
        rd = []
        for t in range(2):
            for m in range(4):
                s = 2 * J + m // 2
                rd.append((vr(abase + (t * 16 + s) * 4 + 2 * (m % 2), 2, "a"), (32 * (m // 2) + 4 * (m % 2)) * 64 + t * 32))
        out.append((r, "v20", [(64 * J + 16 * i) * 8192 for i in range(4)], "v22", rd))
    return out

def wo_blocks(r, abase):
    out = []
    for hh in range(8):
        rd = []
        for js in range(4):
            for m in range(2):
                rd.append((vr(abase + (hh * 4 + js) * 4 + 2 * m, 2, "a"), (32 * js + 16 * m) * 32))
        out.append((r, "v21", [(hh * 128 + 32 * i) * 1024 for i in range(4)], "v23", rd))
    return out

def wload_addr(e):
    e("v_and_b32 v18, 3, v0\nv_lshrrev_b32 v19, 2, v0")
    e(f"s_lshl_b32 s{S_TMP}, s{S_H}, 8\ns_lshl_b32 s{S_TMP2}, s{S_W}, 6\ns_add_u32 s{S_TMP}, s{S_TMP}, s{S_TMP2}")
    e(f"v_lshlrev_b32 v20, 13, v19\nv_lshl_add_u32 v20, v18, 4, v20\nv_add_u32 v20, s{S_TMP}, v20")
    e(f"s_lshl_b32 s{S_TMP}, s{S_W}, 20\ns_lshl_b32 s{S_TMP2}, s{S_H}, 5\ns_add_u32 s{S_TMP}, s{S_TMP}, s{S_TMP2}")
    e(f"v_lshrrev_b32 v21, 1, v0\nv_lshlrev_b32 v21, 10, v21\nv_and_b32 v24, 1, v0\nv_lshl_add_u32 v21, v24, 4, v21\nv_add_u32 v21, s{S_TMP}, v21")
    e(f"s_mul_i32 s{S_STGB}, s{S_W}, {NSLOT*4096}\ns_add_u32 s{S_STGB}, s{S_STGB}, {W_STG}")
    e(f"v_lshrrev_b32 v24, 2, v{V_C}")
    e(f"v_lshl_add_u32 v22, v{V_G}, 3, v24\nv_lshlrev_b32 v22, 6, v22\nv_lshl_add_u32 v22, v18, 3, v22\nv_add_u32 v22, s{S_STGB}, v22")
    e(f"v_lshl_add_u32 v23, v{V_G}, 2, v24\nv_lshlrev_b32 v23, 5, v23\nv_lshl_add_u32 v23, v18, 3, v23\nv_add_u32 v23, s{S_STGB}, v23")

def x_dma(e):
    out = []
    for i in range(8):
        out.append([f"s_add_u32 m0, s{S_XL}, {i*1024}", f"s_add_u32 s{S_TMP}, s{S_XG}, {i*64}",
                    f"buffer_load_dwordx4 v{V_XSRC}, s[{R_X}:{R_X+3}], s{S_TMP} offen lds"])
    return out

def flag_store(e, soff, val):
    e(f"v_mov_b32 v{V_T}, {val}\nv_mov_b32 v{V_T2}, s{soff}\ns_mov_b64 exec, s[{S_W0M}:{S_W0M+1}]")
    e(f"buffer_store_dword v{V_T}, v{V_T2}, {WS}, 0 offen sc1\ns_mov_b64 exec, -1")

def mfd(d, a, b, c, pa="v", pb="v"):
    return f"v_mfma_f32_16x16x32_bf16 {vr(d,4)}, {vr(a,4,pa)}, {vr(b,4,pb)}, {c if c == '0' else vr(c,4)}"

def phaseA(e, cfg):
    e("; ---- phase A : K,V projection")
    XF, ACC, OUT = 32, 64, 96
    srd(e, R_A, S_WK, 0x400000); srd(e, R_B, S_WV, 0x400000)
    e(f"s_cmp_lt_u32 s{S_G}, 3\ns_cselect_b32 s{S_STP}, 3, 4\ns_cselect_b32 s{S_END}, 27, 64\ns_cselect_b32 s{S_TMP}, 0, 24\ns_add_u32 s{S_SEG}, s{S_G}, s{S_TMP}")
    e(f"s_lshl_b32 s{S_XG}, s{S_SEG}, 15\ns_lshl_b32 s{S_XL}, s{S_W}, 13\nv_mov_b32 v{V_XRD}, v{V_L16}")
    for g in x_dma(e):
        for s in g: e(s)
    load_blocks(e, wmat_blocks(R_A, 0) + wmat_blocks(R_B, 128))
    wait_init(e, "w", 24)
    WST(e)
    e(f"s_mov_b32 s{S_I}, 0x7ffffff0")
    pa = cfg.get("pastamp")
    def acc(k):
        if pa: e(f"s_memtime s[70:71]\ns_waitcnt lgkmcnt(0)\ns_sub_u32 s72, s70, s92\ns_mov_b32 s92, s70\ns_add_u32 s{93+k}, s{93+k}, s72")
    if pa: e("s_memtime s[92:93]\ns_waitcnt lgkmcnt(0)\ns_mov_b32 s93, 0\ns_mov_b32 s94, 0\ns_mov_b32 s95, 0\ns_mov_b32 s96, 0")
    e.label("PA_LOOP")
    e("s_waitcnt vmcnt(4)")
    acc(0)
    e("s_barrier")
    acc(1)
    e(f"s_lshl_b32 s{S_TMP}, s{S_STP}, 15\ns_add_u32 s{S_XG}, s{S_XG}, s{S_TMP}\ns_xor_b32 s{S_XL}, s{S_XL}, 0x8000")
    dma = x_dma(e)
    seq = {}
    def rd(n):
        s, rt = n // 2, n % 2
        seq[n] = e(f"ds_read_b128 {vr(XF + 4 * (n % 8), 4)}, v{V_XRD} offset:{(rt * 16 + s) * 1024}")
    for n in range(6): rd(n)
    for n in range(32):
        s, rt = n // 2, n % 2
        e.waitlg(seq[n])
        x = XF + 4 * (n % 8)
        for t in range(2):
            a = ACC + 4 * (t * 2 + rt)
            e(mfd(a, (t * 16 + s) * 4, x, "0" if s == 0 else a, "a", "v"))
            if t == 0 and n + 6 < 32: rd(n + 6)
        for t in range(2):
            a = ACC + 16 + 4 * (t * 2 + rt)
            e(mfd(a, x, 128 + (t * 16 + s) * 4, "0" if s == 0 else a, "v", "a"))
        if n % 3 == 1 and n // 3 < 8:
            for q in dma[n // 3]: e(q)
        if n == 14:
            e("s_waitcnt vmcnt(5)\ns_barrier")
            flag_store(e, S_I, 1)
    acc(2)
    e(f"v_xor_b32 v{V_XRD}, 0x8000, v{V_XRD}")
    e(f"s_lshl_b32 s{S_OFF}, s{S_SEG}, 19\ns_lshl_b32 s{S_TMP}, s{S_H}, 14\ns_add_u32 s{S_OFF}, s{S_OFF}, s{S_TMP}\ns_add_u32 s{S_OFF}, s{S_OFF}, {WS_KV}")
    e(f"s_lshl_b32 s{S_TMP}, s{S_W}, 10\ns_add_u32 s{S_TMP2}, s{S_OFF}, s{S_TMP}\ns_nop 0\ns_lshl_b32 s{S_I}, s{S_H}, 6\ns_add_u32 s{S_I}, s{S_I}, s{S_SEG}\ns_lshl_b32 s{S_I}, s{S_I}, 2")
    for rt in range(2):
        o = OUT + 4 * rt
        for t in range(2):
            a = ACC + 4 * (t * 2 + rt)
            e(f"v_cvt_pk_bf16_f32 v{o+2*t}, v{a}, v{a+1}\nv_cvt_pk_bf16_f32 v{o+2*t+1}, v{a+2}, v{a+3}")
        e(f"buffer_store_dwordx4 {vr(o,4)}, v{V_L16}, {WS}, s{S_TMP2} offen sc1")
        e(f"s_add_u32 s{S_TMP2}, s{S_TMP2}, 4096")
    e(f"s_add_u32 s{S_TMP2}, s{S_TMP2}, s{S_TMP}")
    for t in range(2):
        o = OUT + 8 + 4 * t
        for rt in range(2):
            a = ACC + 16 + 4 * (t * 2 + rt)
            e(f"v_cvt_pk_bf16_f32 v{o+2*rt}, v{a}, v{a+1}\nv_cvt_pk_bf16_f32 v{o+2*rt+1}, v{a+2}, v{a+3}")
        e(f"buffer_store_dwordx4 {vr(o,4)}, v{V_L16}, {WS}, s{S_TMP2} offen offset:{t*1024} sc1")
    acc(3)
    e(f"s_add_u32 s{S_SEG}, s{S_SEG}, s{S_STP}\ns_cmp_lt_u32 s{S_SEG}, s{S_END}\ns_cbranch_scc1 PA_LOOP")
    e("s_waitcnt vmcnt(0)\ns_barrier")
    flag_store(e, S_I, 1)
    if pa:
        e(f"s_lshl_b32 s72, s{S_GRP}, 5\ns_add_u32 s72, s72, s{S_H}\ns_lshl_b32 s72, s72, 4\ns_add_u32 s72, s72, {WS_STAMP + 0x30000}")
        e(f"v_mov_b32 v32, s93\nv_mov_b32 v33, s94\nv_mov_b32 v34, s95\nv_mov_b32 v35, s96\nv_mov_b32 v36, 0\nbuffer_store_dwordx4 v[32:35], v36, {WS}, s72 offen")

def rb_pair(e, d, a, b):
    e(f"v_cvt_pk_bf16_f32 v{d}, v{a}, v{b}\nv_lshlrev_b32 v{a}, 16, v{d}\nv_and_b32 v{b}, 0xffff0000, v{d}")

C_UR, C_HP, URS, HPC = 0x0, 0x8000, 7680, 4160
HPS = 4 * HPC
def conv(e, cfg):
    e("; ---- conv task")
    S_TK = S_OFF
    e(f"s_cmp_lt_u32 s{S_G}, 3\ns_cbranch_scc1 CV_END\ns_sub_u32 s{S_TK}, s{S_G}, 3\ns_lshl_b32 s{S_TK}, s{S_TK}, 5\ns_add_u32 s{S_TK}, s{S_TK}, s{S_H}")
    srd(e, R_A, S_K, 0x200000); srd(e, R_B, S_V, 0x200000)
    KR, VR, SH, P, U = 32, 56, 72, 88, 112
    e(f"s_lshl_b32 s{S_TMP}, s{S_W}, 6\nv_add_u32 v16, s{S_TMP}, v0")
    e(f"s_lshl_b32 s{S_TMP}, s{S_TK}, 3\nv_lshlrev_b32 v17, 13, v16\nv_add_u32 v17, s{S_TMP}, v17")
    e("v_subrev_u32 v18, 3072, v17")
    for j in range(3): e(f"buffer_load_dwordx2 {vr(KR+2*j,2)}, v18, s[{R_A}:{R_A+3}], 0 offen offset:{j*1024}")
    e("v_add_u32 v19, 4096, v17")
    for j in range(8):
        va = "v17" if j < 4 else "v19"
        e(f"buffer_load_dwordx2 {vr(KR+6+2*j,2)}, {va}, s[{R_A}:{R_A+3}], 0 offen offset:{(j%4)*1024}")
        e(f"buffer_load_dwordx2 {vr(VR+2*j,2)}, {va}, s[{R_B}:{R_B+3}], 0 offen offset:{(j%4)*1024}")
    e(f"s_lshl_b32 s{S_TMP2}, s{S_TK}, 2\ns_add_u32 s{S_TMP2}, s{S_TMP2}, s{S_W}")
    e(f"s_lshl_b32 s{S_XG}, s{S_TMP2}, 12\ns_mul_i32 s{S_XL}, s{S_W}, {HPS}\ns_add_u32 s{S_XL}, s{S_XL}, {C_HP}")
    e(f"s_add_u32 s{R_O}, s{S_SSMK}, s{S_XG}\ns_addc_u32 s{R_O+1}, s{S_SSMK+1}, 0\ns_mov_b32 s{R_O+2}, 4096\ns_mov_b32 s{R_O+3}, 0x20000")
    HR = 140
    for i in range(5):
        e(f"v_add_u32 v22, {i*1024 - 64}, v{V_L16}\nv_add_u32 v23, {i*1024 - 48}, v{V_L16}")
        e(f"buffer_load_dwordx4 {vr(HR+6*i,4)}, v22, s[{R_O}:{R_O+3}], 0 offen\nbuffer_load_dwordx2 {vr(HR+6*i+4,2)}, v23, s[{R_O}:{R_O+3}], 0 offen")
    e(f"s_lshl_b32 s{S_TMP}, s{S_TK}, 5\ns_load_dwordx8 s[92:99], s[{S_SH}:{S_SH+1}], s{S_TMP}")
    e(f"s_lshl_b32 s{S_TMP}, s{S_TMP2}, 1\ns_and_b32 s{S_TMP}, s{S_TMP}, -4\ns_load_dword s{S_CNT}, s[{S_SSMD}:{S_SSMD+1}], s{S_TMP}")
    e(f"v_mov_b64 v[24:25], 0\nv_mov_b64 v[26:27], 0")
    e(f"s_mul_i32 s{S_I}, s{S_W}, {URS}\nv_add_u32 v20, s{S_I}, v{V_L16}")
    for i in range(2): e(f"ds_write_b128 v20, v[24:27] offset:{5120 + i*1024}")
    e(f"s_mov_b32 exec_hi, 0\nds_write_b128 v20, v[24:27] offset:{5120 + 2048}\ns_mov_b64 exec, -1")
    e("v_lshlrev_b32 v20, 3, v16\nv_sub_u32 v20, 2040, v20\nv_lshrrev_b32 v21, 5, v20\nv_and_b32 v20, 31, v20")
    e("v_mul_u32_u24 v21, 80, v21\nv_lshl_add_u32 v20, v20, 1, v21")
    e("s_waitcnt vmcnt(10) lgkmcnt(0)")
    if cfg.get("cvstamp"): WST(e)
    e("v_cmp_eq_u32 vcc, 0, v16\ns_nop 1")
    for r in range(6): e(f"v_cndmask_b32 v{KR+r}, v{KR+r}, v24, vcc")
    for ch in range(4):
        for j in range(4):
            src = 92 + ch * 2 + j // 2
            e(f"s_lshl_b32 s{62+j}, s{src}, 16" if j % 2 == 0 else f"s_and_b32 s{62+j}, s{src}, 0xffff0000")
        KF = 120
        for j in range(11):
            r = KR + 2 * j + ch // 2
            e(f"v_lshlrev_b32 v{KF+j}, 16, v{r}" if ch % 2 == 0 else f"v_and_b32 v{KF+j}, 0xffff0000, v{r}")
        for pr in range(4):
            a, b, t1, t2, d = P, P + 1, P + 2, P + 3, P + 4
            r0 = 2 * pr
            e(f"v_mul_f32 v{a}, s65, v{KF+r0}\nv_mul_f32 v{b}, s65, v{KF+r0+1}")
            rb_pair(e, d, a, b)
            for j in (2, 1, 0):
                e(f"v_mul_f32 v{t1}, s{62+j}, v{KF+r0+3-j}\nv_mul_f32 v{t2}, s{62+j}, v{KF+r0+1+3-j}")
                rb_pair(e, d, t1, t2)
                e(f"v_add_f32 v{a}, v{a}, v{t1}\nv_add_f32 v{b}, v{b}, v{t2}")
                rb_pair(e, d, a, b)
            for q, rr in ((t1, r0), (t2, r0 + 1)):
                r = VR + 2 * rr + ch // 2
                e(f"v_lshlrev_b32 v{q}, 16, v{r}" if ch % 2 == 0 else f"v_and_b32 v{q}, 0xffff0000, v{r}")
            e(f"v_mul_f32 v{a}, v{a}, v{t1}\nv_mul_f32 v{b}, v{b}, v{t2}")
            e(f"v_cvt_pk_bf16_f32 v{U+3-pr}, v{b}, v{a}")
        e(f"ds_write_b128 v20, {vr(U,4)} offset:{ch*URS}\ns_nop 1")
    if cfg.get("cvstamp"): WST(e)
    e(f"s_waitcnt vmcnt(0)\nv_add_u32 v22, s{S_XL}, v{V_L16}")
    for i in range(5):
        x = HR + 6 * i
        if i == 4: e("s_mov_b64 exec, 15")
        for k in range(4): e(f"v_alignbyte_b32 v{P+k}, v{x+k+1}, v{x+k}, 2")
        for k in range(4): e(f"v_alignbyte_b32 v{P+4+k}, v{x+k+2}, v{x+k+1}, 2")
        for k in range(4): e(f"v_mov_b32 v{P+8+k}, v{x+k+1}")
        e(f"ds_write_b128 v22, {vr(x,4)} offset:{i*1024}\nds_write_b128 v22, {vr(P,4)} offset:{i*1024 + HPC}")
        e(f"ds_write_b128 v22, {vr(P+8,4)} offset:{i*1024 + 2*HPC}\nds_write_b128 v22, {vr(P+4,4)} offset:{i*1024 + 3*HPC}\ns_waitcnt lgkmcnt(0)")
    e("s_mov_b64 exec, -1\ns_barrier")
    if cfg.get("cvstamp"): WST(e)
    e(f"v_and_b32 v16, 31, v0\nv_lshrrev_b32 v17, 5, v0")
    e(f"v_lshl_add_u32 v18, v17, 3, v16\nv_add_u32 v18, 1, v18\nv_and_b32 v19, 3, v18\nv_and_b32 v18, -4, v18\nv_mul_u32_u24 v19, {HPC}, v19")
    e(f"v_lshl_add_u32 v18, v18, 1, v19\nv_add_u32 v18, s{S_XL}, v18")
    e(f"v_sub_u32 v19, 63, v16\nv_mul_u32_u24 v19, 80, v19\nv_lshl_add_u32 v19, v17, 4, v19\nv_add_u32 v19, s{S_I}, v19")
    e("v_subrev_u32 v21, 2560, v19")
    AC0, AC1, FR, NB = 32, 48, 64, 3
    seq = {}
    def rd(sg):
        b = FR + 16 * (sg % NB); bo = (sg // 2) * 80 + (sg % 2) * 32
        e(f"ds_read_b64 {vr(b,2)}, v18 offset:{sg*32}\nds_read_b64 {vr(b+2,2)}, v18 offset:{sg*32+8}")
        e(f"ds_read_b128 {vr(b+4,4)}, v19 offset:{bo}")
        e(f"ds_read_b128 {vr(b+8,4)}, v21 offset:{bo}")
        seq[sg] = e(f"ds_read_b64 {vr(b+12,2)}, v18 offset:{sg*32+2048}\nds_read_b64 {vr(b+14,2)}, v18 offset:{sg*32+2056}")
    def mm(d, a, b, first): return f"v_mfma_f32_32x32x16_bf16 {vr(d,16)}, {vr(a,4)}, {vr(b,4)}, {'0' if first else vr(d,16)}"
    rd(0); rd(1)
    for sg in range(64):
        b = FR + 16 * (sg % NB)
        e.waitlg(seq[sg])
        e(mm(AC0, b, b + 4, sg == 0))
        if sg + 2 < 64: rd(sg + 2)
        e(mm(AC1, b, b + 8, sg == 0))
        e(mm(AC1, b + 12, b + 4, False))
    if cfg.get("cvstamp"): WST(e)
    e(f"s_bitcmp1_b32 s{S_TMP2}, 0\ns_cbranch_scc1 CV_D1\ns_lshl_b32 s{S_CNT}, s{S_CNT}, 16")
    e.label("CV_D1")
    e(f"s_and_b32 s{S_CNT}, s{S_CNT}, 0xffff0000")
    e(f"v_lshlrev_b32 v22, 5, v17\nv_sub_u32 v22, v19, v22\nv_lshl_add_u32 v22, v17, 3, v22")
    e(f"v_lshlrev_b32 v23, 6, v16\nv_lshl_add_u32 v23, v17, 3, v23")
    e(f"s_lshl_b32 s{S_XG}, s{S_TMP2}, 12\ns_add_u32 s{S_XG}, s{S_XG}, {WS_Y2}")
    e("v_subrev_u32 v24, 2560, v22")
    for tl in range(2):
        for q in range(4):
            e(f"ds_read_b64 {vr(FR + 8*tl + 2*q, 2)}, {'v22' if tl == 0 else 'v24'} offset:{56 - 16*q}")
    e("s_waitcnt lgkmcnt(0)\ns_nop 7")
    for tl in range(2):
        for q in range(4):
            y = (AC0 if tl == 0 else AC1) + 4 * q; u = FR + 8 * tl + 2 * q; t = 96
            e(f"v_and_b32 v{t}, 0xffff0000, v{u+1}\nv_lshlrev_b32 v{t+1}, 16, v{u+1}\nv_and_b32 v{t+2}, 0xffff0000, v{u}\nv_lshlrev_b32 v{t+3}, 16, v{u}")
            for i in range(4): e(f"v_mul_f32 v{t+i}, s{S_CNT}, v{t+i}")
            rb_pair(e, t + 4, t, t + 1); rb_pair(e, t + 4, t + 2, t + 3)
            rb_pair(e, t + 4, y, y + 1); rb_pair(e, t + 4, y + 2, y + 3)
            for i in range(4): e(f"v_add_f32 v{y+i}, v{y+i}, v{t+i}")
            e(f"v_cvt_pk_bf16_f32 v{y}, v{y}, v{y+1}\nv_cvt_pk_bf16_f32 v{y+1}, v{y+2}, v{y+3}")
            e(f"buffer_store_dwordx2 {vr(y,2)}, v23, {WS}, s{S_XG} offen offset:{tl*2048 + q*16} sc1")
    if cfg.get("cvstamp"): e("s_nop 0"); WST(e)
    e("s_waitcnt vmcnt(0)\ns_barrier")
    wait_init(e, "w", 24)
    e(f"s_lshl_b32 s{S_TK}, s{S_TK}, 2\ns_add_u32 s{S_TK}, s{S_TK}, {FL_CONV}")
    flag_store(e, S_TK, 1)
    e.label("CV_END")

def poll_all(e, name, vaddr, soff, cmpv, vt, sleep=8, bar=True):
    l, d = e.newlabel(name), e.newlabel(name + "D")
    e(f"s_cmp_eq_u32 s{S_W}, 0\ns_cbranch_scc0 {d}\ns_mov_b32 s{S_SPIN}, 0")
    e.label(l)
    e(f"buffer_load_dword v{vt}, v{vaddr}, {WS}, {soff} offen sc1\ns_add_u32 s{S_SPIN}, s{S_SPIN}, 1\ns_waitcnt vmcnt(0)")
    e(f"v_cmp_gt_u32 vcc, {cmpv}, v{vt}\ns_cbranch_vccz {d}\ns_sleep {sleep}")
    e(f"s_cmp_lt_u32 s{S_SPIN}, {SPIN_MAX}\ns_cbranch_scc1 {l}")
    e.label(d)
    if bar: e("s_barrier")

def phaseB(e, cfg):
    e("; ---- phase B")
    srd(e, R_A, S_WQ, 0x400000); srd(e, R_B, S_WO, 0x400000)
    wload_addr(e)
    e(f"s_mov_b32 s{S_SEG}, s{S_G}\ns_lshl_b32 s{S_XG}, s{S_SEG}, 15\ns_lshl_b32 s{S_XL}, s{S_W}, 13")
    e(f"v_mov_b32 v{V_XRD}, v{V_L16}")
    for g in x_dma(e):
        for s in g: e(s)
    load_blocks(e, wmat_blocks(R_A, 0) + wo_blocks(R_B, 128))
    srd(e, R_O, S_OUT, 0x200000); srd(e, R_A, S_GATE, 1024)
    GW = 16
    e(f"buffer_load_dwordx4 {vr(GW,4)}, v{V_L16}, s[{R_A}:{R_A+3}], 0 offen")
    e(f"s_and_b32 s62, s{S_W}, 1\ns_lshr_b32 s63, s{S_W}, 1")
    e(f"v_lshlrev_b32 v8, 2, v{V_G}\nv_sub_u32 v8, v{V_C}, v8\ns_lshl_b32 s{S_TMP}, s62, 4\nv_add_u32 v8, s{S_TMP}, v8\nv_subrev_u32 v9, 16, v8")
    e(f"v_lshrrev_b32 v25, 2, v{V_C}\nv_lshl_add_u32 v25, v{V_G}, 2, v25\nv_and_b32 v24, 1, v0\nv_lshlrev_b32 v24, 3, v24\nv_lshl_add_u32 v10, v25, 4, v24\nv_add_u32 v10, {W_KMU}, v10")
    e(f"s_lshl_b32 s{S_TMP}, s{S_W}, 9\ns_add_u32 s{S_TMP}, s{S_TMP}, {W_KMU}\nv_lshlrev_b32 v22, 4, v{V_C}\nv_lshl_add_u32 v22, v{V_G}, 2, v22\nv_add_u32 v22, s{S_TMP}, v22")
    e(f"s_lshl_b32 s{S_TMP}, s{S_W}, 9\nv_lshl_add_u32 v23, v0, 3, s{S_TMP}")
    e(f"v_and_b32 v24, 1, v{V_G}\nv_lshl_add_u32 v11, v24, 5, v{V_C}\nv_lshlrev_b32 v11, 3, v11\ns_lshl_b32 s{S_TMP}, s63, 10\ns_add_u32 s{S_TMP}, s{S_TMP}, 2048\nv_add_u32 v11, s{S_TMP}, v11")
    e(f"v_lshrrev_b32 v24, 2, v0\nv_and_b32 v25, 3, v0\nv_lshlrev_b32 v12, 10, v24\nv_lshl_add_u32 v12, v25, 8, v12")
    e(f"s_lshr_b32 s{S_TMP}, s{S_H}, 4\ns_lshl_b32 s{S_TMP}, s{S_TMP}, 14\ns_and_b32 s{S_TMP2}, s{S_H}, 15\ns_lshl_b32 s{S_TMP2}, s{S_TMP2}, 4\ns_add_u32 s{S_TMP}, s{S_TMP}, s{S_TMP2}\nv_add_u32 v12, s{S_TMP}, v12")
    e(f"s_lshl_b32 s{S_TMP}, s{S_W}, 3\nv_lshrrev_b32 v24, 3, v0\nv_add_u32 v24, s{S_TMP}, v24\nv_and_b32 v25, 7, v0")
    e(f"v_lshrrev_b32 v26, 4, v24\nv_and_b32 v27, 15, v24\nv_lshlrev_b32 v13, 10, v26\nv_lshl_add_u32 v13, v27, 4, v13")
    e(f"v_lshrrev_b32 v26, 1, v25\nv_lshl_add_u32 v13, v26, 8, v13\nv_and_b32 v26, 1, v25\nv_lshl_add_u32 v13, v26, 3, v13\nv_add_u32 v13, {W_RED}, v13")
    e(f"s_lshl_b32 s{S_TMP}, s{S_H}, 16\nv_lshlrev_b32 v14, 13, v25\nv_lshl_add_u32 v14, v24, 1, v14\nv_add_u32 v14, s{S_TMP}, v14")
    e(f"s_lshl_b32 s{S_TMP}, s{S_H}, 5\nv_lshlrev_b32 v15, 10, v24\nv_lshl_add_u32 v15, v25, 2, v15\nv_add_u32 v15, s{S_TMP}, v15")
    e(f"v_and_b32 v20, 31, v0\nv_lshlrev_b32 v20, 2, v20\nv_lshlrev_b32 v21, 2, v24")
    e(f"s_lshl_b32 s{S_CF}, s{S_H}, 7\ns_add_u32 s{S_CF}, s{S_CF}, {FL_CFLAG}\ns_mov_b32 s{S_SC}, 0x3e0293ee")
    e(f"v_lshlrev_b32 v24, 2, v0\ns_mov_b32 s{S_OFF}, {FL_CONV}\ns_mov_b32 s{S_OFF2}, {FL_CONV+256}\ns_lshl_b32 s{S_CNT}, s{S_H}, 8")
    if not cfg.get("noconv"):
        poll_all(e, "CVW", 24, f"s{S_OFF}", 1, 25, 32, False)
        poll_all(e, "CVW", 24, f"s{S_OFF2}", 1, 25, 32, False)
    poll_all(e, "KVW", 24, f"s{S_CNT}", 1, 25, 32, False)
    e(f"s_mov_b32 s{S_PREV}, -1")
    KF, VF, XF, ACC, QF, KM, VM, SS_, PB, OA, TT = 32, 64, 80, 112, 128, 144, 160, 168, 180, 188, 224
    RB, NR, FA = 80, 32, 208
    def final():
        e(f"s_lshl_b32 s{S_TMP}, s{S_PREV}, 6\ns_add_u32 s{S_TMP}, s{S_TMP}, {WS_Y2}\ns_add_u32 s{S_I}, s{S_TMP}, 4096")
        e(f"buffer_load_ushort v{TT+4}, v14, {WS}, s{S_TMP} offen sc1\nbuffer_load_ushort v{TT+5}, v14, {WS}, s{S_I} offen sc1")
        e(f"s_lshl_b32 s{S_CNT}, s{S_PREV}, 15\nbuffer_load_dword v{TT+6}, v15, s[{R_X}:{R_X+3}], s{S_CNT} offen")
        e(f"s_lshl_b32 s{S_OFF2}, s{S_PREV}, 7\ns_add_u32 s{S_OFF2}, s{S_OFF2}, {FL_OFLAG}")
        WST(e)
        poll_all(e, "OW", 20, f"s{S_OFF2}", 1, TT + 2, cfg.get("osleep", 4))
        WST(e)
        e(f"s_lshl_b32 s{S_TMP}, s{S_PREV}, 7\ns_add_u32 s{S_TMP}, s{S_TMP}, {WS_G}\nbuffer_load_dword v{TT+7}, v21, {WS}, s{S_TMP} offen sc1")
        e(f"s_lshl_b32 s{S_OFF}, s{S_PREV}, 18\ns_lshl_b32 s{S_TMP}, s{S_W}, 16\ns_add_u32 s{S_OFF}, s{S_OFF}, s{S_TMP}\ns_add_u32 s{S_OFF}, s{S_OFF}, {WS_O}")
        def ld(n):
            if n % 4 == 0 and n > 0: e(f"s_add_u32 s{S_OFF}, s{S_OFF}, 4096")
            e(f"buffer_load_dwordx4 {vr(RB + 4 * (n % NR), 4)}, v{V_L16}, {WS}, s{S_OFF} offen offset:{(n % 4) * 1024} sc1")
        for n in range(NR): ld(n)
        for n in range(64):
            hh, rt, js = n // 8, (n // 4) % 2, n % 4
            e(f"s_waitcnt vmcnt({min(63 - n, NR - 1)})")
            a = FA + 4 * rt
            e(mfd(a, 128 + (hh * 4 + js) * 4, RB + 4 * (n % NR), "0" if n in (0, 4) else a, "a", "v"))
            if n + NR < 64: ld(n + NR)
        e(f"s_lshl_b32 s{S_TMP}, s{S_W}, 11\ns_add_u32 s{S_TMP}, s{S_TMP}, {W_RED}\nv_add_u32 v{V_T}, s{S_TMP}, v{V_L16}\ns_nop 5")
        e(f"ds_write_b128 v{V_T}, {vr(FA,4)}\nds_write_b128 v{V_T}, {vr(FA+4,4)} offset:1024\ns_waitcnt lgkmcnt(0)\ns_barrier")
        B0 = RB
        for w in range(4): e(f"ds_read_b64 {vr(B0+2*w,2)}, v13 offset:{w*2048}")
        y0, y1, q, g = TT + 4, TT + 5, TT + 6, TT + 7
        e(f"v_lshlrev_b32 v{y0}, 16, v{y0}\nv_lshlrev_b32 v{y1}, 16, v{y1}\nv_lshlrev_b32 v{B0+8}, 16, v{q}\nv_and_b32 v{B0+9}, 0xffff0000, v{q}")
        e(f"v_mul_f32 v{y0}, v{y0}, v{B0+8}\nv_mul_f32 v{y1}, v{y1}, v{B0+9}")
        rb_pair(e, B0 + 10, y0, y1)
        e(f"v_mul_f32 v{y0}, v{y0}, v{g}\nv_mul_f32 v{y1}, v{y1}, v{g}")
        rb_pair(e, B0 + 10, y0, y1)
        e(f"v_sub_f32 v{g}, 1.0, v{g}\nv_cvt_pk_bf16_f32 v{g}, v{g}, v{g}\nv_lshlrev_b32 v{g}, 16, v{g}\ns_waitcnt lgkmcnt(0)")
        e(f"v_add_f32 v{B0}, v{B0}, v{B0+2}\nv_add_f32 v{B0+1}, v{B0+1}, v{B0+3}\nv_add_f32 v{B0+4}, v{B0+4}, v{B0+6}\nv_add_f32 v{B0+5}, v{B0+5}, v{B0+7}")
        e(f"v_add_f32 v{B0}, v{B0}, v{B0+4}\nv_add_f32 v{B0+1}, v{B0+1}, v{B0+5}")
        rb_pair(e, B0 + 10, B0, B0 + 1)
        e(f"v_mul_f32 v{B0}, v{B0}, v{g}\nv_mul_f32 v{B0+1}, v{B0+1}, v{g}")
        rb_pair(e, B0 + 10, B0, B0 + 1)
        e(f"v_add_f32 v{B0}, v{B0}, v{y0}\nv_add_f32 v{B0+1}, v{B0+1}, v{y1}\nv_cvt_pk_bf16_f32 v{B0}, v{B0}, v{B0+1}")
        e(f"buffer_store_dword v{B0}, v15, s[{R_O}:{R_O+3}], s{S_CNT} offen {cfg.get('outst', '')}")
    e.label("PB_LOOP")
    e("s_waitcnt vmcnt(0)\ns_barrier")
    WST(e)
    e(f"s_lshl_b32 s{S_OFF}, s{S_SEG}, 19\ns_lshl_b32 s{S_TMP}, s{S_H}, 14\ns_add_u32 s{S_OFF}, s{S_OFF}, s{S_TMP}\ns_add_u32 s{S_OFF}, s{S_OFF}, {WS_KV}")
    e(f"s_add_u32 s{S_OFF2}, s{S_OFF}, 4096\ns_lshl_b32 s{S_TMP}, s63, 12\ns_add_u32 s{S_CNT}, s{S_OFF}, s{S_TMP}\ns_add_u32 s{S_CNT}, s{S_CNT}, 8192")
    lds_ = []
    for js in range(4):
        lds_.append(f"buffer_load_dwordx4 {vr(KF+4*js,4)}, v{V_L16}, {WS}, s{S_OFF} offen offset:{js*1024} sc1")
        lds_.append(f"buffer_load_dwordx4 {vr(KF+16+4*js,4)}, v{V_L16}, {WS}, s{S_OFF2} offen offset:{js*1024} sc1")
        lds_.append(f"buffer_load_dwordx4 {vr(VF+4*js,4)}, v{V_L16}, {WS}, s{S_CNT} offen offset:{js*1024} sc1")
    seq = {}
    def rd(n):
        s, rt = n // 2, n % 2
        seq[n] = e(f"ds_read_b128 {vr(XF + 4 * (n % 8), 4)}, v{V_XRD} offset:{(rt * 16 + s) * 1024}")
    sg = e(f"ds_read_b128 {vr(TT,4)}, v12")
    for n in range(6): rd(n)
    for n in range(32):
        s, rt = n // 2, n % 2
        e.waitlg(seq[n])
        x = XF + 4 * (n % 8)
        for t in range(2):
            a = ACC + 4 * (t * 2 + rt)
            e(mfd(a, (t * 16 + s) * 4, x, "0" if s == 0 else a, "a", "v"))
            if t == 0 and n + 6 < 32: rd(n + 6)
        if n % 2 == 1 and n // 2 < 12: e(lds_[n // 2])
    for i in range(4):
        e(f"v_lshlrev_b32 v{TT+4}, 16, v{TT+i}\nv_and_b32 v{TT+5}, 0xffff0000, v{TT+i}\nv_lshlrev_b32 v{TT+6}, 16, v{GW+i}\nv_and_b32 v{TT+7}, 0xffff0000, v{GW+i}")
        e(f"v_mul_f32 v{TT+4}, v{TT+4}, v{TT+6}\nv_mul_f32 v{TT+5}, v{TT+5}, v{TT+7}")
        rb_pair(e, TT + 6, TT + 4, TT + 5)
        e(f"v_add_f32 v{TT+i}, v{TT+4}, v{TT+5}")
    e(f"v_add_f32 v{TT}, v{TT}, v{TT+1}\nv_add_f32 v{TT+2}, v{TT+2}, v{TT+3}\nv_add_f32 v{TT}, v{TT}, v{TT+2}")
    for rt in range(2):
        o = QF + 4 * rt
        for t in range(2):
            a = ACC + 4 * (t * 2 + rt)
            e(f"v_cvt_pk_bf16_f32 v{o+2*t}, v{a}, v{a+1}\nv_cvt_pk_bf16_f32 v{o+2*t+1}, v{a+2}, v{a+3}")
    e(f"s_lshl_b32 s{S_TMP}, s{S_W}, 10\ns_add_u32 s{S_TMP}, s{S_TMP}, {W_QX}\nv_add_u32 v{V_T}, s{S_TMP}, v{V_L16}")
    e(f"ds_write_b128 v{V_T}, {vr(QF,4)}\nds_write_b128 v{V_T}, {vr(QF+4,4)} offset:4096")
    for ror in (1, 2, 4, 8):
        e(f"s_nop 1\nv_add_f32_dpp v{TT}, v{TT}, v{TT} row_ror:{ror} row_mask:0xf bank_mask:0xf")
    for op in ("v_permlane16_swap_b32", "v_permlane32_swap_b32"):
        e(f"v_mov_b32 v{TT+1}, v{TT}\ns_nop 1\n{op} v{TT}, v{TT+1}\nv_add_f32 v{TT}, v{TT}, v{TT+1}")
    e(f"v_cvt_pk_bf16_f32 v{TT}, v{TT}, v{TT}\nv_lshlrev_b32 v{TT}, 16, v{TT}\nv_mul_f32 v{TT}, 0xbfb8aa3b, v{TT}\nv_exp_f32 v{TT}, v{TT}\ns_nop 0")
    e(f"v_add_f32 v{TT}, 1.0, v{TT}\nv_rcp_f32 v{TT}, v{TT}\ns_nop 0\nv_cvt_pk_bf16_f32 v{TT}, v{TT}, v{TT}\nv_lshlrev_b32 v{TT}, 16, v{TT}")
    e(f"s_lshl_b32 s{S_TMP}, s{S_SEG}, 5\ns_add_u32 s{S_TMP}, s{S_TMP}, s{S_H}\ns_lshl_b32 s{S_TMP}, s{S_TMP}, 2\ns_add_u32 s{S_TMP}, s{S_TMP}, {WS_G}")
    e(f"v_mov_b32 v{V_T2}, 0\ns_mov_b64 exec, s[{S_W0M}:{S_W0M+1}]\nbuffer_store_dword v{TT}, v{V_T2}, {WS}, s{S_TMP} offen sc1\ns_mov_b64 exec, -1")
    e(f"s_cmp_eq_u32 s{S_PREV}, -1\ns_cbranch_scc1 PB_NOPREV")
    final()
    e.label("PB_NOPREV")
    e(f"v_mov_b32 v{TT+1}, s{S_CF}\ns_add_u32 s{S_I}, s{S_SEG}, 1")
    WST(e)
    poll_all(e, "CHW", TT + 1, "0", f"s{S_I}", TT + 2, cfg.get("csleep", 4))
    WST(e)
    e(f"s_lshl_b32 s{S_OFF}, s{S_SEG}, 18\ns_lshl_b32 s{S_TMP}, s{S_H}, 13\ns_add_u32 s{S_OFF}, s{S_OFF}, s{S_TMP}\ns_add_u32 s{S_OFF2}, s{S_OFF}, {WS_KVM}")
    e(f"buffer_load_dwordx2 {vr(KM,2)}, v23, {WS}, s{S_OFF2} offen sc1")
    for i in range(2):
        for b in range(2): e(f"buffer_load_dwordx2 {vr(VM+4*i+2*b,2)}, v11, {WS}, s{S_OFF2} offen offset:{i*512 + b*128} sc1")
    e(f"s_waitcnt vmcnt(4)\nds_write2_b32 v22, v{KM}, v{KM+1} offset0:0 offset1:64\ns_waitcnt lgkmcnt(0)\ns_barrier")
    e(f"s_add_u32 s{S_XG}, s{S_XG}, {7 << 15}\ns_xor_b32 s{S_XL}, s{S_XL}, 0x8000")
    e(f"s_lshl_b32 s{S_TMP}, s62, 12\ns_add_u32 s{S_TMP}, s{S_TMP}, {W_QX}\nv_add_u32 v{V_T}, s{S_TMP}, v{V_L16}")
    for js in range(4): e(f"ds_read_b128 {vr(QF+4*js,4)}, v{V_T} offset:{js*1024}")
    for js in range(4):
        for t in range(2): e(f"ds_read_b64_tr_b16 {vr(KM+4*js+2*t,2)}, v10 offset:{js*512 + t*256}")
    e(f"v_xor_b32 v{V_XRD}, 0x8000, v{V_XRD}\nv_xor_b32 v12, 0x8000, v12")
    e("s_waitcnt lgkmcnt(0)")
    X0, X1, M = SS_, SS_ + 4, SS_ + 8
    for js in range(4):
        c = lambda r: "0" if js == 0 else r
        e(mfd(X0, KF + 4 * js, QF + 4 * js, c(X0))); e(mfd(X1, KF + 16 + 4 * js, QF + 4 * js, c(X1))); e(mfd(M, KM + 4 * js, QF + 4 * js, c(M)))
    for g in x_dma(e):
        for s in g: e(s)
    e(f"v_mov_b32 v{TT}, 0xf149f2ca")
    for kt in range(2):
        for i in range(4):
            e(f"v_cmp_le_i32 vcc, {i}, v{8+kt}\ns_nop 1\nv_cndmask_b32 v{SS_+4*kt+i}, v{TT}, v{SS_+4*kt+i}, vcc")
    e("s_mov_b32 exec_lo, 0")
    for i in range(4): e(f"v_mov_b32 v{M+i}, v{TT}")
    e("s_mov_b32 exec_lo, -1")
    mx, t2 = TT + 1, TT + 2
    e(f"v_max3_f32 v{mx}, v{X0}, v{X0+1}, v{X0+2}\nv_max3_f32 v{t2}, v{X1}, v{X1+1}, v{X1+2}\nv_max3_f32 v{mx}, v{mx}, v{X0+3}, v{X1+3}")
    e(f"v_max3_f32 v{t2}, v{t2}, v{M}, v{M+1}\nv_max3_f32 v{mx}, v{mx}, v{M+2}, v{M+3}\nv_max_f32 v{mx}, v{mx}, v{t2}")
    for op in ("v_permlane16_swap_b32", "v_permlane32_swap_b32"):
        e(f"v_mov_b32 v{t2}, v{mx}\ns_nop 1\n{op} v{mx}, v{t2}\nv_max_f32 v{mx}, v{mx}, v{t2}")
    e(f"v_mul_f32 v{mx}, s{S_SC}, v{mx}")
    EE = [SS_ + i for i in range(12)]
    for x in EE: e(f"v_fma_f32 v{x}, v{x}, s{S_SC}, -v{mx}")
    for x in EE: e(f"v_exp_f32 v{x}, v{x}")
    e(f"s_nop 0\nv_add_f32 v{mx}, v{EE[0]}, v{EE[1]}")
    for x in EE[2:]: e(f"v_add_f32 v{mx}, v{mx}, v{x}")
    for op in ("v_permlane16_swap_b32", "v_permlane32_swap_b32"):
        e(f"v_mov_b32 v{t2}, v{mx}\ns_nop 1\n{op} v{mx}, v{t2}\nv_add_f32 v{mx}, v{mx}, v{t2}")
    e(f"v_rcp_f32 v{mx}, v{mx}\ns_nop 0")
    for x in EE: e(f"v_mul_f32 v{x}, v{x}, v{mx}")
    for i in range(4): e(f"v_cvt_pk_bf16_f32 v{PB+i}, v{SS_+2*i}, v{SS_+2*i+1}")
    e(f"v_cvt_pk_bf16_f32 v{PB+4}, v{M}, v{M+1}\nv_cvt_pk_bf16_f32 v{PB+5}, v{M+2}, v{M+3}")
    e("s_waitcnt vmcnt(8)")
    for i in range(2): e(f"v_swap_b32 v{VM+4*i+1}, v{VM+4*i+2}")
    e("s_nop 1")
    for T in range(4): e(mfd(OA + 4 * T, VF + 4 * T, PB, "0"))
    for T in range(4):
        e(f"v_mfma_f32_16x16x16_bf16 {vr(OA+4*T,4)}, {vr(VM+2*T,2)}, {vr(PB+4,2)}, {vr(OA+4*T,4)}")
    e(f"s_add_u32 s{S_OFF}, s{S_OFF}, {WS_O}\ns_lshl_b32 s{S_TMP}, s62, 12\ns_add_u32 s{S_OFF}, s{S_OFF}, s{S_TMP}\ns_lshl_b32 s{S_TMP}, s63, 11\ns_add_u32 s{S_OFF}, s{S_OFF}, s{S_TMP}\ns_nop 3")
    for j in range(2):
        for t in range(2):
            a = OA + 4 * (2 * j + t)
            e(f"v_cvt_pk_bf16_f32 v{QF+4*j+2*t}, v{a}, v{a+1}\nv_cvt_pk_bf16_f32 v{QF+4*j+2*t+1}, v{a+2}, v{a+3}")
        e(f"buffer_store_dwordx4 {vr(QF+4*j,4)}, v{V_L16}, {WS}, s{S_OFF} offen offset:{j*1024} sc1")
    e("s_waitcnt vmcnt(0)\ns_barrier")
    e(f"s_lshl_b32 s{S_OFF2}, s{S_SEG}, 7\ns_add_u32 s{S_OFF2}, s{S_OFF2}, {FL_OFLAG}\ns_lshl_b32 s{S_TMP}, s{S_H}, 2\ns_add_u32 s{S_CNT}, s{S_OFF2}, s{S_TMP}")
    flag_store(e, S_CNT, 1)
    e(f"s_mov_b32 s{S_PREV}, s{S_SEG}\ns_add_u32 s{S_SEG}, s{S_SEG}, 7\ns_cmp_lt_u32 s{S_SEG}, 64\ns_cbranch_scc1 PB_LOOP")
    final()

def worker(e, cfg):
    e(f"s_sub_u32 s{S_G}, s{S_GRP}, 1\ns_mov_b32 s{S_CNT}, 0")
    e("v_mov_b32 v15, v2")
    lane_consts(e, f"v{V_C}", f"v{V_G}")
    e(f"v_lshlrev_b32 v{V_L16}, 4, v0\nv_mov_b32 v{V_XRD}, v{V_L16}")
    e(f"s_lshr_b32 s{S_TMP}, s{S_W}, 1\ns_lshl_b32 s{S_TMP}, s{S_TMP}, 14\ns_and_b32 s{S_TMP2}, s{S_W}, 1\ns_lshl_b32 s{S_TMP2}, s{S_TMP2}, 9\ns_add_u32 s{S_TMP}, s{S_TMP}, s{S_TMP2}")
    e(f"v_lshlrev_b32 v{V_XSRC}, 10, v{V_C}\nv_lshl_add_u32 v{V_XSRC}, v{V_G}, 4, v{V_XSRC}\nv_add_u32 v{V_XSRC}, s{S_TMP}, v{V_XSRC}")
    srd(e, R_X, S_Q, 0x200000)
    _cfg.update(cfg)
    if cfg.get("pref") in (2, 4):
        e(f"s_lshl_b32 s{S_TMP2}, s{S_G}, 5\ns_add_u32 s{S_TMP2}, s{S_TMP2}, s{S_H}\nv_lshlrev_b32 v16, 6, v15")
        e.label("PF_L")
        e(f"s_lshl_b32 s{S_TMP}, s{S_TMP2}, 14\nv_add_u32 v17, s{S_TMP}, v16")
        for i, p in enumerate([S_WQ, S_WK, S_WV, S_WO][:cfg["pref"]] if cfg["pref"] == 4 else [S_WQ, S_WO]):
            e(f"global_load_dword v{248+i}, v17, s[{p}:{p+1}]")
        e(f"s_add_u32 s{S_TMP2}, s{S_TMP2}, 224\ns_cmp_lt_u32 s{S_TMP2}, 256\ns_cbranch_scc1 PF_L")
    if cfg.get("wstamp"): e("s_mov_b32 s101, 0")
    WST(e)
    if cfg.get("hold") is not None:
        e(f"s_cmp_lt_u32 s{S_G}, {cfg['hold']}\ns_cbranch_scc{0 if cfg.get('holdinv') else 1} HOLD_END")
        e.label("HOLD")
        e(f"s_sleep 32\ns_memrealtime s[70:71]\ns_waitcnt lgkmcnt(0)\ns_sub_u32 s70, s70, s3\ns_cmp_lt_u32 s70, {cfg['holdus']*100}\ns_cbranch_scc1 HOLD")
        e.label("HOLD_END")
    if not cfg.get("noconv"): conv(e, cfg)
    WST(e)
    wload_addr(e)
    phaseA(e, cfg)
    WST(e)
    phaseB(e, cfg)
    WST(e)
    if cfg.get("dbgt"):
        e(f"s_memrealtime s[70:71]\ns_waitcnt lgkmcnt(0)\ns_sub_u32 s70, s70, s3\nv_mov_b32 v20, s70\nv_mov_b32 v21, 20\ns_mov_b64 exec, s[{S_W0M}:{S_W0M+1}]\nglobal_atomic_umax v21, v20, s[{S_DBG}:{S_DBG+1}]")
```

```python
import sys, json
from asmlib import Em, vr, check_hazards
from layout import *
import chain as C
from chain import *

KNAME = "gated_mix__ssm_conv_h3__memory_aug_recurrent_mem_tr__prompt_kernel"

def common_prologue(e, cfg):
    e("s_cmp_ge_u32 s2, 256\ns_cbranch_scc1 KEND")
    e("s_load_dwordx8 s[4:11], s[0:1], 0\ns_load_dwordx4 s[12:15], s[0:1], 32\ns_load_dwordx2 s[16:17], s[0:1], 56")
    e("s_load_dwordx8 s[20:27], s[0:1], 64\ns_load_dwordx4 s[28:31], s[0:1], 104\ns_load_dwordx4 s[32:35], s[0:1], 120")
    e(f"s_getreg_b32 s{S_XCC}, hwreg(HW_REG_XCC_ID)\ns_and_b32 s{S_XCC}, s{S_XCC}, 7")
    e(f"v_lshrrev_b32 v1, 6, v0\nv_mov_b32 v2, v0\nv_and_b32 v0, 63, v0\nv_readfirstlane_b32 s{S_W}, v1")
    e("s_waitcnt lgkmcnt(0)")
    srd(e, R_WS, S_WS, WS_SIZE)
    WS = f"s[{R_WS}:{R_WS+3}]"
    DBG = f"s[{S_DBG}:{S_DBG+1}]"
    e(f"s_cmp_eq_u32 s{S_W}, 0\ns_cbranch_scc0 PRO_NORANK")
    e(f"s_and_b32 s{S_TMP}, s{S_XCC}, 3\ns_lshl_b32 s{S_TMP}, s{S_TMP}, 6\ns_lshr_b32 s{S_TMP2}, s{S_XCC}, 2\ns_lshl_b32 s{S_TMP2}, s{S_TMP2}, 2\ns_add_u32 s{S_TMP}, s{S_TMP}, s{S_TMP2}")
    e(f"v_mov_b32 v3, s{S_TMP}\nv_mov_b32 v4, 1\ns_mov_b64 exec, 1")
    e(f"global_atomic_add v5, v3, v4, {DBG} sc0\ns_mov_b64 exec, -1")
    e.label("PRO_NORANK")
    if cfg.get("pref") == 1:
        e(f"s_barrier\ns_lshl_b32 s{S_TMP}, s2, 14\nv_lshl_add_u32 v17, v2, 6, s{S_TMP}")
        for i, p in enumerate([S_WQ, S_WK, S_WV, S_WO]): e(f"global_load_dword v{248+i}, v17, s[{p}:{p+1}]")
        e("s_waitcnt vmcnt(4)")
    if cfg.get("cpf"):
        e(f"s_getpc_b64 s[{S_TMP+3}:{S_TMP+4}]")
        e.label("CPF_BASE")
        e(f"v_lshlrev_b32 v3, 6, v2\ns_cmp_eq_u32 s{S_W}, 0\ns_cbranch_scc1 CPF_END\nv_subrev_u32 v3, 4096, v3")
        for i in range(cfg["cpf"]):
            e(f"v_cmp_gt_u32 vcc, KEND-CPF_BASE, v3\ns_and_saveexec_b64 s[{S_TMP+5}:{S_TMP+6}], vcc\ns_cbranch_execz CPF_R")
            e(f"global_load_dword v{240+i}, v3, s[{S_TMP+3}:{S_TMP+4}]\nv_add_u32 v3, 12288, v3")
        e.label("CPF_R")
        e("s_mov_b64 exec, -1\ns_branch PRO_W")
        e.label("CPF_END")
    if cfg.get("pref") != 1: e("s_waitcnt vmcnt(0)")
    e(f"s_cmp_eq_u32 s{S_W}, 0\ns_cbranch_scc0 PRO_W")
    e(f"v_readfirstlane_b32 s{S_H}, v5\ns_mov_b32 s{S_GRP}, s{S_XCC}")
    e(f"s_cmp_lt_u32 s{S_H}, 32\ns_cbranch_scc1 PRO_HAVE")
    e(f"v_mov_b32 v3, {DBG_OVF}\ns_mov_b64 exec, 1\nglobal_atomic_add v5, v3, v4, {DBG} sc0\ns_mov_b64 exec, -1")
    e(f"v_lshlrev_b32 v9, 2, v0\ns_mov_b32 s{S_SPIN}, 0")
    e.label("PRO_OV")
    e(f"global_load_dword v10, v9, {DBG} sc1\ns_add_u32 s{S_SPIN}, s{S_SPIN}, 1\ns_waitcnt vmcnt(0)\ns_mov_b32 s{S_TMP2}, 0")
    for x in range(8):
        e(f"v_readlane_b32 s{S_TMP}, v10, {DBG_XCC(x)//4}\ns_add_u32 s{S_TMP2}, s{S_TMP2}, s{S_TMP}")
    e(f"s_cmp_ge_u32 s{S_TMP2}, 256\ns_cbranch_scc1 PRO_OV2\ns_sleep 8\ns_cmp_lt_u32 s{S_SPIN}, {SPIN_MAX}\ns_cbranch_scc1 PRO_OV")
    e.label("PRO_OV2")
    e(f"v_readfirstlane_b32 s{S_TMP2}, v5\ns_mov_b32 s{S_GRP}, 7\ns_mov_b32 s{S_H}, 31")
    for x in range(8):
        nl = f"PRO_OVN{x}"
        e(f"v_readlane_b32 s{S_TMP}, v10, {DBG_XCC(x)//4}\ns_min_u32 s{S_TMP}, s{S_TMP}, 32\ns_add_u32 s{S_SPIN}, s{S_TMP}, s{S_TMP2}")
        e(f"s_cmp_lt_u32 s{S_SPIN}, 32\ns_cbranch_scc0 {nl}\ns_mov_b32 s{S_GRP}, {x}\ns_mov_b32 s{S_H}, s{S_SPIN}\ns_branch PRO_HAVE")
        e.label(nl)
        e(f"s_sub_u32 s{S_TMP2}, s{S_SPIN}, 32")
    e.label("PRO_HAVE")
    e(f"v_mov_b32 v10, s{S_GRP}\nv_mov_b32 v11, s{S_H}\nv_mov_b32 v9, 0\nds_write_b64 v9, v[10:11]\ns_waitcnt lgkmcnt(0)")
    e.label("PRO_W")
    e("s_barrier\nv_mov_b32 v9, 0\nds_read_b64 v[10:11], v9")
    e(f"s_waitcnt lgkmcnt(0)\nv_readfirstlane_b32 s{S_GRP}, v10\nv_readfirstlane_b32 s{S_H}, v11")
    e(f"s_and_b32 s{S_GRP}, s{S_GRP}, 7\ns_and_b32 s{S_H}, s{S_H}, 31")
    e(f"s_cmp_eq_u32 s{S_W}, 0\ns_cselect_b32 s{S_W0M}, 1, 0\ns_mov_b32 s{S_W0M+1}, 0")
    e(f"s_cmp_eq_u32 s{S_GRP}, 0\ns_cbranch_scc1 PRO_NOINIT\ns_cmp_lt_u32 s{S_H}, 4\ns_cbranch_scc0 PRO_NOINIT")
    e(f"s_sub_u32 s{S_TMP2}, s{S_GRP}, 1\ns_lshl_b32 s{S_TMP2}, s{S_TMP2}, 2\ns_add_u32 s{S_TMP2}, s{S_TMP2}, s{S_H}")
    e("v_mov_b64 v[12:13], -1\nv_mov_b64 v[14:15], -1\nv_mov_b32 v8, 0\nv_lshlrev_b32 v9, 4, v2\nv_lshlrev_b32 v3, 2, v2")
    e.label("PRO_INIT")
    e(f"s_lshl_b32 s{S_TMP}, s{S_TMP2}, 13\ns_add_u32 s{S_TMP}, s{S_TMP}, {WS_RS}")
    e(f"buffer_store_dwordx4 v[12:15], v9, {WS}, s{S_TMP} offen sc1\ns_add_u32 s{S_TMP}, s{S_TMP}, 4096")
    e(f"buffer_store_dwordx4 v[12:15], v9, {WS}, s{S_TMP} offen sc1")
    e(f"s_lshl_b32 s{S_TMP}, s{S_TMP2}, 10\nbuffer_store_dword v8, v3, {WS}, s{S_TMP} offen sc1\ns_add_u32 s{S_TMP}, s{S_TMP}, {WS_AG}")
    e(f"buffer_store_dword v12, v3, {WS}, s{S_TMP} offen sc1")
    e(f"s_add_u32 s{S_TMP2}, s{S_TMP2}, 28\ns_cmp_lt_u32 s{S_TMP2}, 32\ns_cbranch_scc1 PRO_INIT")
    e(f"s_waitcnt vmcnt(0)\ns_barrier\nv_mov_b32 v3, {DBG_INIT}\nv_mov_b32 v4, 1\ns_mov_b64 exec, s[{S_W0M}:{S_W0M+1}]")
    e(f"global_atomic_add v3, v4, {DBG}\ns_mov_b64 exec, -1")
    e.label("PRO_NOINIT")
    e("s_barrier")

DEFAULTS = {"agbar":1,"d1e":45,"d1":55,"d2":15,"d2e":30,"Ke":2,"KRe":1,"e1":0,"e2":25,"pref":4,"xv":3,"xo":1,"xz":1,"peek":1,"cpf":6,"wda":1,"wdb":1,"prefc":1,"asplit":30}
def build(cfg):
    cfg = {**DEFAULTS, **cfg}
    C.DBGC = bool(cfg.get('dbgt'))
    e = Em()
    e.label(KNAME)
    if cfg.get("gstamp"): e("s_memrealtime s[18:19]\ns_waitcnt lgkmcnt(0)\ns_mov_b32 s3, s18")
    common_prologue(e, cfg)
    e(f"s_cmp_eq_u32 s{S_GRP}, 0\ns_cbranch_scc0 WORKER")
    chain_prologue(e, cfg)
    if cfg.get("force_slow"): e(f"s_mov_b32 s{S_MODE}, 0")
    e(f"s_cmp_ge_u32 s{S_MODE}, 32\ns_cbranch_scc0 CHAIN_SLOW")
    chain_loop(e, True, cfg)
    e.label("CHAIN_SLOW")
    chain_loop(e, False, cfg)
    e.label("WORKER")
    if not cfg.get("chain_only"):
        import worker
        worker.worker(e, cfg)
    else:
        wait_init(e, "w", 32)
        e(f"s_lshl_b32 s{S_TMP}, s{S_H}, 8\nv_lshlrev_b32 v1, 2, v0\nv_mov_b32 v2, 1\nbuffer_store_dword v2, v1, s[{R_WS}:{R_WS+3}], s{S_TMP} offen sc1")
    e.label("KEND")
    e("s_waitcnt vmcnt(0)\ns_endpgm")
    probs = check_hazards(e.lines)
    for p in probs: print("HAZARD", p, file=sys.stderr)
    hdr = open('gated_mix__ssm_conv_h3__memory_aug_recurrent_mem_tr__prompt.s.ref').read().split("; Override launch")[0]
    s = hdr + f"; @launch grid=(256,1,1) block=(256,1,1) lds={LDS_SIZE}\n"
    s += f'.amdgcn_target "amdgcn-amd-amdhsa--gfx950"\n.text\n.globl {KNAME}\n.p2align 8\n.type {KNAME},@function\n'
    s += e.text()
    s += f""".section .rodata,"a"
.p2align 6
.amdhsa_kernel {KNAME}
  .amdhsa_next_free_vgpr 512
  .amdhsa_next_free_sgpr 102
  .amdhsa_accum_offset 256
  .amdhsa_group_segment_fixed_size 0
  .amdhsa_kernarg_size 136
  .amdhsa_user_sgpr_count 2
  .amdhsa_user_sgpr_kernarg_segment_ptr 1
  .amdhsa_system_sgpr_workgroup_id_x 1
.end_amdhsa_kernel
"""
    return s

if __name__ == "__main__":
    out = sys.argv[1]
    cfg = json.loads(sys.argv[2]) if len(sys.argv) > 2 else {}
    open(out, "w").write(build(cfg))
    json.dump(cfg, open(out + ".json", "w"))
```

```python
from asmlib import Em, vr
from layout import *

S_Q, S_K, S_V, S_SH, S_SSMK, S_SSMD, S_MEM0 = 4, 6, 8, 10, 12, 14, 16
S_WQ, S_WK, S_WV, S_WO, S_GATE, S_OUT, S_DBG, S_WS = 20, 22, 24, 26, 28, 30, 32, 34
R_WS, R_T, R_T2 = 36, 40, 44
S_W, S_XCC, S_GRP, S_H = 48, 49, 50, 51
S_W0M = 76
NINIT = 28
SPIN_MAX = 1 << 15

def srd(e, r, p, size):
    e(f"s_mov_b32 s{r}, s{p}\ns_mov_b32 s{r+1}, s{p+1}\ns_mov_b32 s{r+2}, {size}\ns_mov_b32 s{r+3}, 0x20000")

def lane_consts(e, c, g, lane="v0"):
    e(f"v_and_b32 {c}, 15, {lane}\nv_lshrrev_b32 {g}, 4, {lane}")

def emit_UB(e, dst, c, b, t):
    e(f"v_lshrrev_b32 {t}, 1, {b}")
    e(f"v_lshl_add_u32 {t}, {t}, 3, {c}")
    e(f"v_and_b32 {t}, 15, {t}")
    e(f"v_lshl_add_u32 {t}, {b}, 4, {t}")
    e(f"v_lshlrev_b32 {dst}, 3, {t}")

IDX, A_RSR, A_AGW, A_AGR, A_TR, A_TRK, A_UW, A_W, A_KX, A_VX, T0, A_RSW, SEL = 0, 1, 2, 3, 4, 5, 6, 7, 8, 9, 10, 11, 12
MEMA, QB, KXA, XT, ACA, ACB = 16, 48, 64, 88, 96, 104
WV0 = 112
S_STEP, S_RSW0, S_RSW1, S_RSR0, S_RSR1, S_AGW, S_AGRST, S_AGR0, S_AGR1 = 52, 53, 54, 55, 56, 57, 58, 59, 60
S_KVG, S_KVL, S_KVM, S_READY, S_SPIN, S_AGSLOT, S_TMP, S_TMP2 = 61, 62, 63, 64, 65, 66, 67, 68
S_M0, S_M1, S_M2 = 70, 72, 74
S_AGM = 72
S_ODD = 78
S_SC = 80
S_CF = 81
S_MODE = 82
S_TAG = 83
S_KVG2, S_FLV = 10, 11
S_XG0, S_XL0 = 96, 97
S_KFO = 58
S_RSR = [55, 56, 4, 5]
S_EM, S_LM, S_LB = 4, 6, 8
S_AGM2 = 74
S_ST = 84

BLOCKS = [("q", J) for J in range(3, 8)] + [("k", J) for J in range(8)] + [("v", J) for J in range(8)] \
       + [("o", (0, p)) for p in range(4)] + [("q", 0), ("q", 1), ("q", 2)] + [("o", (1, p)) for p in range(4)]
NREG = 25
def frag_reg(i):
    if i < 32: return ("a", 8 * i)
    return ("v", WV0 + 8 * (i - 32))
FRAG = {}
for n, (m, J) in enumerate(BLOCKS):
    for t in range(2):
        if n < NREG: FRAG[(m, J, t)] = frag_reg(2 * n + t)
        else: FRAG[(m, J, t)] = ("lds", (n - NREG) * 4096 + t * 2048)
def slot_addr(n):
    s = n % 10
    wl = {5: 0, 6: 1, 7: 2, 8: 3, 9: 4, 0: 5, 1: 6}
    return ("wl", wl[s]) if s in wl else ("ot", s - 2)

def wait_init(e, tag, vt):
    l = e.newlabel("WI"); d = e.newlabel("WID")
    e(f"s_mov_b32 s{S_SPIN}, 0")
    e(f"v_mbcnt_lo_u32_b32 v{vt+1}, -1, 0\nv_mbcnt_hi_u32_b32 v{vt+1}, -1, v{vt+1}\nv_lshlrev_b32 v{vt+1}, 2, v{vt+1}")
    e.label(l)
    e(f"global_load_dword v{vt}, v{vt+1}, s[{S_DBG}:{S_DBG+1}] sc1")
    e(f"s_add_u32 s{S_SPIN}, s{S_SPIN}, 1")
    e("s_waitcnt vmcnt(0)")
    e(f"v_readlane_b32 s{S_TMP}, v{vt}, {DBG_INIT//4}")
    e(f"s_cmp_ge_u32 s{S_TMP}, {NINIT}\ns_cbranch_scc1 {d}")
    e("s_sleep 16")
    e(f"s_cmp_lt_u32 s{S_SPIN}, {SPIN_MAX}\ns_cbranch_scc1 {l}")
    e.label(d)

def kv_poll(e, va, vb, done):
    l = e.newlabel("KR")
    e(f"s_mov_b32 s{S_SPIN}, 0")
    e(f"v_mbcnt_lo_u32_b32 v{vb}, -1, 0\nv_mbcnt_hi_u32_b32 v{vb}, -1, v{vb}\nv_lshlrev_b32 v{vb}, 2, v{vb}")
    e.label(l)
    e(f"s_lshl_b32 s{S_TMP}, s{S_H}, 8")
    e(f"buffer_load_dword v{va}, v{vb}, s[{R_WS}:{R_WS+3}], s{S_TMP} offen sc1")
    e(f"s_add_u32 s{S_SPIN}, s{S_SPIN}, 1")
    e("s_waitcnt vmcnt(0)")
    e(f"v_cmp_eq_u32 vcc, 0, v{va}\ns_ff1_i32_b64 s{S_READY}, vcc")
    e(f"s_cmp_gt_u32 s{S_READY}, s{S_TMP2}\ns_cbranch_scc1 {done}")
    e("s_sleep 16")
    e(f"s_cmp_lt_u32 s{S_SPIN}, {SPIN_MAX}\ns_cbranch_scc1 {l}")
    e(f"s_branch {done}")

def kv_ready(e, delta, va, vb):
    d = e.newlabel("KRD")
    e(f"s_add_u32 s{S_TMP2}, s{S_STEP}, {delta}\ns_cmp_gt_u32 s{S_READY}, s{S_TMP2}\ns_cbranch_scc1 {d}")
    kv_poll(e, va, vb, d)
    e.label(d)

def kv_dma(e, g=None, l=None):
    out = []
    for i in range(4):
        pre = [f"s_add_u32 m0, s{l or S_KVL}, {(i//2)*8192}", f"s_add_u32 s{S_TMP}, s{g or S_KVG}, {(i//2)*8192}"]
        out.append(pre + [f"buffer_load_dwordx4 v{A_AGR}, s[{R_WS}:{R_WS+3}], s{S_TMP} offen offset:{(i%2)*1024} sc1 lds"])
    return out

def chain_prologue(e, cfg={}):
    e("; ---- chain prologue")
    if cfg.get("prost") == 2: e("s_memrealtime s[92:93]")
    lane_consts(e, "v16", "v17")
    e("v_and_b32 v18, 3, v0\nv_lshrrev_b32 v19, 2, v0")
    e(f"s_lshl_b32 s{S_TMP}, s{S_H}, 8\ns_lshl_b32 s{S_TMP2}, s{S_W}, 6\ns_add_u32 s{S_TMP}, s{S_TMP}, s{S_TMP2}")
    e(f"v_lshlrev_b32 v20, 13, v19\nv_lshl_add_u32 v20, v18, 4, v20\nv_add_u32 v20, s{S_TMP}, v20")
    e(f"s_lshl_b32 s{S_TMP}, s{S_H}, 17\ns_lshl_b32 s{S_TMP2}, s{S_W}, 8\ns_add_u32 s{S_TMP}, s{S_TMP}, s{S_TMP2}")
    e(f"v_lshlrev_b32 v21, 10, v19\nv_lshl_add_u32 v21, v18, 4, v21\nv_add_u32 v21, s{S_TMP}, v21")
    e("v_and_b32 v22, 1, v17\nv_lshlrev_b32 v22, 5, v22")
    e("v_lshrrev_b32 v23, 1, v17\nv_lshl_add_u32 v22, v23, 2, v22")
    e("v_lshrrev_b32 v23, 3, v16\nv_lshl_add_u32 v22, v23, 4, v22")
    e("v_bfe_u32 v23, v16, 2, 1\nv_add_u32 v22, v22, v23")
    e("v_lshlrev_b32 v22, 6, v22\nv_lshl_add_u32 v22, v18, 3, v22")
    e(f"s_mul_i32 s{S_KVL}, s{S_W}, 28672")
    e(f"s_mul_i32 s{S_KVG}, s{S_W}, 12288\ns_add_u32 s{S_KVG}, s{S_KVG}, {L_KVB}")
    e(f"v_add_u32 v24, s{S_KVL}, v22\nv_add_u32 v25, s{S_KVG}, v22")
    e(f"v_lshl_add_u32 v{A_W}, v0, 4, s{S_KVL}")
    RW = {"q": R_T, "k": R_T2, "v": 84, "o": 88}
    for m, p in (("q", S_WQ), ("k", S_WK), ("v", S_WV), ("o", S_WO)): srd(e, RW[m], p, 0x400000)
    def issue(n):
        m, J = BLOCKS[n]
        kind, k = slot_addr(n)
        base = S_KVL if kind == "wl" else S_KVG
        for i in range(4):
            e(f"s_add_u32 m0, s{base}, {k*4096 + i*1024}")
            if m == "o":
                so = (64 * J[0] + 16 * i) * 1024 + J[1] * 64
                e(f"s_mov_b32 s{S_TMP}, {so}")
                e(f"buffer_load_dwordx4 v21, s[{RW[m]}:{RW[m]+3}], s{S_TMP} offen lds")
            else:
                so = (64 * J + 16 * i) * 8192
                e(f"s_mov_b32 s{S_TMP}, {so}")
                e(f"buffer_load_dwordx4 v20, s[{RW[m]}:{RW[m]+3}], s{S_TMP} offen lds")
    def consume(n, outstanding):
        m, J = BLOCKS[n]
        kind, k = slot_addr(n)
        e(f"s_waitcnt vmcnt({outstanding})")
        av = "v24" if kind == "wl" else "v25"
        for t in range(2):
            f = FRAG[(m, J, t)]
            for mm in range(4):
                off = k * 4096 + (8 * (mm // 2) + 2 * (mm % 2)) * 64 + t * 32
                if f[0] == "lds": dst = vr(32 + 8 * t + 2 * mm, 2)
                else: dst = vr(f[1] + 2 * mm, 2, f[0])
                e(f"ds_read_b64_tr_b16 {dst}, {av} offset:{off}")
        e("s_waitcnt lgkmcnt(0)")
        if n >= NREG:
            for t in range(2):
                for hf in range(2):
                    e(f"ds_write_b128 v{A_W}, {vr(32+8*t+4*hf,4)} offset:{k*4096 + t*2048 + hf*1024}")
            e("s_waitcnt lgkmcnt(0)")
    N = len(BLOCKS)
    if cfg.get("tlbw"):
        e(f"v_lshlrev_b32 v26, 16, v0\ns_lshl_b32 s{S_TMP}, s{S_H}, 11\nv_add_u32 v26, s{S_TMP}, v26")
        for m in "qkvo": e(f"buffer_load_dword v27, v26, s[{RW[m]}:{RW[m]+3}], 0 offen")
        if cfg["tlbw"] == 2: e("s_waitcnt vmcnt(0)")
    DEP = 4
    srd(e, 92, S_MEM0, 8192)
    e(f"s_lshl_b32 s{S_TMP}, s{S_W}, 8")
    e(f"v_lshlrev_b32 v26, 11, v17\nv_lshl_add_u32 v26, v16, 1, v26\nv_add_u32 v26, s{S_TMP}, v26")
    mem0_ld = []
    for u in range(4):
        mem0_ld += [f"buffer_load_ushort v{48+2*u}, v26, s[92:95], 0 offen offset:{u*64}", f"buffer_load_ushort v{49+2*u}, v26, s[92:95], 0 offen offset:{u*64+32}",
                    f"buffer_load_ushort v{56+2*u}, v26, s[92:95], 0 offen offset:{u*64+1024}", f"buffer_load_ushort v{57+2*u}, v26, s[92:95], 0 offen offset:{u*64+32+1024}"]
    for n in range(DEP):
        if cfg.get("prost") == 2 and n == 1: e("s_memrealtime s[94:95]")
        issue(n)
    if cfg.get("prost") == 2: e("s_memrealtime s[96:97]")
    for x in mem0_ld: e(x)
    e(f"v_and_b32 v26, 2, v0\nv_cmp_eq_u32 vcc, 2, v26\nv_mov_b32 v27, 0x44444444\nv_mov_b32 v28, 0xeeeeeeee")
    e(f"s_mov_b64 s[{S_ODD}:{S_ODD+1}], vcc")
    e(f"v_cndmask_b32 v29, v27, v28, vcc")
    for r in range(4):
        e(f"v_mov_b32 v{SEL+r}, 0")
    e("v_mov_b32 v27, 0x3f80\nv_mov_b32 v28, 0x3f800000")
    for j in range(8):
        e(f"v_cmp_eq_u32 vcc, {j}, v16\ns_nop 1\nv_cndmask_b32 v{SEL+j//2}, v{SEL+j//2}, v{27+(j%2)}, vcc")
    e(f"s_and_b32 s{S_TMP}, s{S_W}, 2\ns_lshl_b32 s{S_TMP}, s{S_TMP}, 11\ns_lshl_b32 s{S_TMP2}, s{S_H}, 7\ns_add_u32 s{S_TMP}, s{S_TMP}, s{S_TMP2}")
    e(f"v_lshrrev_b32 v26, 3, v0\nv_and_b32 v27, 7, v0\nv_lshlrev_b32 v{A_RSR}, 13, v26\nv_lshl_add_u32 v{A_RSR}, v27, 4, v{A_RSR}\nv_add_u32 v{A_RSR}, s{S_TMP}, v{A_RSR}")
    e(f"s_lshl_b32 s{S_TMP2}, s{S_W}, 9\nv_lshl_add_u32 v{A_RSW}, v0, 3, s{S_TMP2}")
    e(f"v_and_b32 v26, 1, v17\nv_lshl_add_u32 v26, v27, 1, v26\ns_and_b32 s{S_TMP2}, s{S_H}, 3\nv_mov_b32 v27, s{S_TMP2}")
    emit_UB(e, f"v{A_AGW}", "v26", "v27", "v28")
    e(f"s_and_b32 s{S_TMP}, s{S_TMP}, 0xfffffe00\nv_add_u32 v{A_AGW}, s{S_TMP}, v{A_AGW}")
    e(f"s_mov_b32 s{S_AGM}, 0x00FF00FF\ns_mov_b32 s{S_AGM+1}, 0\ns_mov_b32 s{S_AGM2}, -1\ns_mov_b32 s{S_AGM2+1}, 0")
    e(f"v_bfe_u32 v26, v0, 3, 1\nv_lshl_add_u32 v{A_AGW}, v26, 14, v{A_AGW}")
    e(f"s_lshl_b32 s{S_TMP}, s{S_W}, 11\ns_add_u32 s{S_TMP}, s{S_TMP}, {L_MEM}")
    e(f"v_lshl_add_u32 v{A_AGR}, v0, 4, s{S_TMP}")
    e(f"s_lshl_b32 s{S_TMP}, s{S_W}, 10\ns_add_u32 s{S_TMP}, s{S_TMP}, {L_QU}")
    emit_UB(e, f"v{A_UW}", "v16", "v17", "v28")
    e(f"v_add_u32 v{A_UW}, s{S_TMP}, v{A_UW}")
    e("v_lshrrev_b32 v26, 2, v16\nv_lshl_add_u32 v26, v17, 2, v26")
    emit_UB(e, f"v{A_TR}", "v26", "v18", "v28")
    e(f"v_add_u32 v{A_TR}, {L_MEM}, v{A_TR}")
    e("v_and_b32 v27, 1, v18\nv_lshlrev_b32 v27, 1, v27\nv_lshrrev_b32 v28, 1, v18\nv_or_b32 v27, v27, v28")
    emit_UB(e, f"v{A_TRK}", "v26", "v27", "v28")
    e(f"v_add_u32 v{A_TRK}, {L_MEM}, v{A_TRK}")
    e(f"v_lshlrev_b32 v{A_KX}, 4, v0\nv_add_u32 v{A_KX}, {L_KVB}, v{A_KX}")
    e(f"v_lshrrev_b32 v26, 1, v17\nv_lshl_add_u32 v26, v26, 4, v16\nv_lshlrev_b32 v26, 4, v26\nv_and_b32 v27, 1, v17\nv_lshl_add_u32 v26, v27, 3, v26")
    e(f"s_lshl_b32 s{S_TMP}, s{S_W}, 11\ns_add_u32 s{S_TMP}, s{S_TMP}, {L_KVB + 8192}\nv_add_u32 v{A_VX}, s{S_TMP}, v26")
    e(f"v_lshlrev_b32 v65, 2, v0\ns_mov_b32 s{S_STEP}, 0\ns_mov_b32 s{S_READY}, 0\ns_mov_b32 s{S_MODE}, 0")
    WSR = f"s[{R_WS}:{R_WS+3}]"
    order = [("B", n) for n in range(DEP) for _ in range(4)] + [("M", 0)] * 16
    def after(kind, n):
        last = max(i for i, x in enumerate(order) if x == (kind, n))
        return min(len(order) - 1 - last, 63)
    for n in range(N):
        consume(n, after("B", n))
        if n + DEP < N:
            issue(n + DEP); order += [("B", n + DEP)] * 4
        if n == 16:
            e(f"global_load_dword v64, v65, s[{S_DBG}:{S_DBG+1}] sc1"); order.append(("D", 0))
        if n == 23:
            e(f"v_readlane_b32 s{S_TMP}, v64, {DBG_INIT//4}\nv_readlane_b32 s{S_MODE}, v64, {DBG_XCC(0)//4}\nv_mov_b32 v66, 0")
            e(f"s_cmp_ge_u32 s{S_TMP}, {NINIT}\ns_cselect_b32 s{S_MODE}, s{S_MODE}, 0\ns_cselect_b64 exec, -1, 0\ns_lshl_b32 s{S_TMP}, s{S_H}, 8")
            e(f"buffer_load_dword v66, v65, {WSR}, s{S_TMP} offen sc1\ns_mov_b64 exec, -1"); order.append(("F", 0))
        if n == 28:
            e("s_barrier")
            e(f"v_cmp_eq_u32 vcc, 0, v66\ns_ff1_i32_b64 s{S_READY}, vcc")
            e(f"s_lshl_b32 s{S_TMP}, s{S_H}, 14\ns_add_u32 s{S_XG0}, s{S_TMP}, {WS_KV - L_MEM}\ns_lshl_b32 s{S_TMP}, s{S_W}, 11\ns_add_u32 s{S_XL0}, s{S_TMP}, {L_KVB}")
            e(f"s_cmp_gt_u32 s{S_READY}, 0\ns_cselect_b64 exec, -1, 0")
            for grp in kv_dma(e, S_XG0, S_XL0):
                for x in grp: e(x)
            e("s_mov_b64 exec, -1"); order += [("K", 0)] * 4
            for r in range(8): e(f"v_lshl_or_b32 v{48+r}, v{56+r}, 16, v{48+r}")
            e(f"s_lshl_b32 s{S_TMP}, s{S_W}, 9\ns_add_u32 s{S_TMP}, s{S_TMP}, {L_QU - L_MEM}\nv_subrev_u32 v27, s{S_TMP}, v{A_UW}")
            for u in range(4): e(f"ds_write_b64 v27, {vr(48+2*u,2)} offset:{u*2048}")
    if cfg.get("gstamp"): e("s_memrealtime s[18:19]\ns_waitcnt lgkmcnt(0)\ns_mov_b32 s69, s18")
    e(f"v_mov_b32 v{IDX}, v29")
    e(f"s_lshl_b32 s{S_TMP}, s{S_H}, 13")
    e(f"s_add_u32 s{S_RSW0}, s{S_TMP}, {WS_RS}\ns_add_u32 s{S_RSW1}, s{S_RSW0}, 4096")
    for i in range(4): e(f"s_mov_b32 s{S_RSR[i]}, {WS_RS + 0x10000 * i}")
    e(f"s_mov_b32 s{S_AGSLOT}, 0\ns_mov_b32 s{S_AGW}, {WS_AG}\ns_mov_b32 s{S_TAG}, 0")
    e(f"s_mov_b32 s{S_KVG}, s{S_XG0}\ns_mov_b32 s{S_KVL}, s{S_XL0}")
    e(f"s_lshl_b32 s{S_TMP}, s{S_H}, 13\ns_add_u32 s{S_KVM}, s{S_TMP}, {WS_KVM - L_MEM - 0x40000}")
    e(f"s_mov_b32 s{S_LB}, 0x3f003f00\ns_mov_b32 s{S_LB+1}, 0x3f803f80")
    e(f"s_lshl_b32 s{S_CF}, s{S_H}, 7\ns_add_u32 s{S_CF}, s{S_CF}, {FL_CFLAG}")
    e(f"s_mov_b32 s{S_SC}, 0x3e0293ee")
    e(f"s_lshl_b32 s{S_KFO}, s{S_H}, 8\ns_add_u32 s{S_KFO}, s{S_KFO}, 4")
    e(f"s_cmp_ge_u32 s{S_MODE}, 32\ns_cbranch_scc1 MODE_D")
    wait_init(e, "c", 32)
    e(f"s_mov_b32 s{S_SPIN}, 0")
    e.label("MODE_L")
    e(f"v_readlane_b32 s{S_MODE}, v32, {DBG_XCC(0)//4}\ns_cmp_ge_u32 s{S_MODE}, 32\ns_cbranch_scc1 MODE_D\ns_mov_b32 s{S_TMP2}, 0")
    for x in range(8):
        e(f"v_readlane_b32 s{S_TMP}, v32, {DBG_XCC(x)//4}\ns_add_u32 s{S_TMP2}, s{S_TMP2}, s{S_TMP}")
    e(f"s_cmp_ge_u32 s{S_TMP2}, 256\ns_cbranch_scc1 MODE_D\ns_sleep 16")
    e(f"global_load_dword v32, v33, s[{S_DBG}:{S_DBG+1}] sc1\ns_add_u32 s{S_SPIN}, s{S_SPIN}, 1\ns_waitcnt vmcnt(0)\ns_cmp_lt_u32 s{S_SPIN}, {SPIN_MAX}\ns_cbranch_scc1 MODE_L")
    e.label("MODE_D")
    e(f"s_cmp_gt_u32 s{S_READY}, 0\ns_cbranch_scc1 KV0_D")
    kv_ready(e, 0, 32, 33)
    for grp in kv_dma(e):
        for s in grp: e(s)
    e.label("KV0_D")
    e(f"s_add_u32 s{S_KVG}, s{S_KVG}, 0x80000\ns_xor_b32 s{S_KVL}, s{S_KVL}, 0x3C000")

def interleave(e, mf, fill):
    def run(x):
        for s in x:
            if callable(s): s()
            else: e(s)
    run(fill.get(-1, []))
    for i, m in enumerate(mf):
        if callable(m): m()
        else: e(m)
        run(fill.get(i, []))

def smf(acc, a, f):
    return f"v_smfmac_f32_16x16x64_bf16 {vr(acc,4)}, {vr(a,4)}, {vr(f[1],8,f[0])}, v{IDX}"
def mf32(d, a, b, c):
    return f"v_mfma_f32_16x16x32_bf16 {vr(d,4)}, {vr(a,4)}, {vr(b,4)}, {c if c == '0' else vr(c,4)}"

NPRE = 5
QL = [(0, 0), (0, 1), (1, 0), (1, 1), (2, 0), (2, 1)]
def rd_ql(e, n, r):
    off = FRAG[("q",) + QL[n]][1]
    e(f"ds_read_b128 {vr(r,4)}, v{A_W} offset:{off}")
    return e(f"ds_read_b128 {vr(r+4,4)}, v{A_W} offset:{off+1024}")
def preload_q(e):
    for n in range(NPRE): rd_ql(e, n, QB + 8 * n)

S_KF = 12
def kv_peek(e):
    e(f"s_min_u32 s{S_TMP}, s{S_STEP}, 59\ns_lshl_b32 s{S_TMP}, s{S_TMP}, 2\ns_add_u32 s{S_TMP}, s{S_TMP}, s{S_KFO}")
    e(f"s_load_dwordx4 s[{S_KF}:{S_KF+3}], s[{S_WS}:{S_WS+1}], s{S_TMP} glc")
def kv_fold(e):
    e(f"s_and_b32 s{S_KF}, s{S_KF}, s{S_KF+1}\ns_and_b32 s{S_KF+2}, s{S_KF+2}, s{S_KF+3}\ns_and_b32 s{S_KF}, s{S_KF}, s{S_KF+2}")
    e(f"s_add_u32 s{S_TMP}, s{S_STEP}, 5\ns_cmp_ge_u32 s{S_STEP}, 59\ns_cselect_b32 s{S_TMP}, -1, s{S_TMP}")
    e(f"s_cmp_eq_u32 s{S_KF}, 1\ns_cselect_b32 s{S_TMP}, s{S_TMP}, 0\ns_max_u32 s{S_READY}, s{S_READY}, s{S_TMP}")

def kv_ready_ool(e, tail, va, vb):
    d = e.newlabel("KRD"); sl = e.newlabel("KRS")
    e(f"s_add_u32 s{S_TMP2}, s{S_STEP}, 1")
    e(f"s_cmp_le_u32 s{S_READY}, s{S_TMP2}\ns_cbranch_scc1 {sl}")
    e.label(d)
    def slow():
        e.label(sl)
        kv_poll(e, va, vb, d)
    tail.append(slow)

def chain_loop(e, fast, cfg):
    st = "" if fast else " sc1"
    tag_ = "F" if fast else "S"
    WS = f"s[{R_WS}:{R_WS+3}]"
    stamps = cfg.get("stamps", [])
    def S(name):
        if name in stamps:
            i = stamps.index(name); e(f"s_memtime s[{S_ST+2*i}:{S_ST+2*i+1}]")
    def SS(name): return lambda: S(name)
    def GS(p, fill, n):
        for i in range(n):
            if f"{p}_{i}" in stamps: fill[i] = [SS(f"{p}_{i}")] + list(fill.get(i, []))
    LOOP, LAST, ENTRY, EARLY = [f"CH{tag_}_{x}" for x in ("LOOP", "LAST", "ENTRY", "EARLY")]
    tail = []
    seq = {}
    def wt(key): return lambda: e.waitlg(seq[key])
    KP, VP, QP = XT + 4, XT + 6, XT + 2
    RP, RED, AGO, T1, AP = MEMA, MEMA + 16, MEMA + 20, MEMA + 22, MEMA + 24
    preload_q(e)
    for r in range(0, 16, 2): e(f"v_mov_b64 {vr(ACA+r,2)}, 0")
    e("s_waitcnt vmcnt(0) lgkmcnt(0)")
    if cfg.get("gstamp"): e("s_memrealtime s[18:19]\ns_memtime s[16:17]")
    kv_ready(e, 1, T0, T1)
    e(f"s_mov_b32 s{S_KF}, 0")
    if cfg.get("prio"): e(f"s_setprio {cfg['prio']}")
    e(f"s_add_u32 s{S_KVG2}, s{S_KVG}, 8192\ns_mov_b32 m0, s{S_KVL}\nv_mov_b32 v{T0}, 0")
    e(f"s_branch {ENTRY}")
    def rs_ld(r):
        for i in range(4): e(f"buffer_load_dwordx4 {vr(r+4*i,4)}, v{A_RSR}, {WS}, s{S_RSR[i]} offen sc1")
    def rs_chk(r, n):
        for i in range(4):
            e(f"s_waitcnt vmcnt({n+3-i})")
            e(mf32(RED, SEL, r + 4 * i, "0" if i == 0 else RED))
            e(f"v_bitop3_b32 v{T1 if i else T0}, v{r+4*i}, v{r+4*i+2}, s{S_TAG} bitop3:0x7e")
            if i: e(f"v_or_b32 v{T0}, v{T0}, v{T1}")
        e(f"v_and_b32 v{T0}, 1, v{T0}\nv_cmp_ne_u32 vcc, 0, v{T0}")
    def ag_ld(r):
        e(f"buffer_load_dwordx4 {vr(r,4)}, v{A_AGR}, {WS}, s{S_AGR0} offen sc1")
        e(f"buffer_load_dwordx4 {vr(r+4,4)}, v{A_AGR}, {WS}, s{S_AGR0} offen offset:1024 sc1")
    def ag_chk(r, n):
        e(f"s_waitcnt vmcnt({n})")
        e(f"ds_write_b128 v{A_AGR}, {vr(r,4)}\nds_write_b128 v{A_AGR}, {vr(r+4,4)} offset:1024")
        e(f"v_max3_u32 v{T0}, v{r}, v{r+1}, v{r+2}\nv_max3_u32 v{T1}, v{r+4}, v{r+5}, v{r+6}")
        e(f"v_max3_u32 v{T0}, v{T0}, v{r+3}, v{r+7}\nv_max_u32 v{T0}, v{T0}, v{T1}\nv_cmp_eq_u32 vcc, -1, v{T0}")
    def comm(reducer, d1, d2, K, KR):
        P1, P1R, P2, P2R = [e.newlabel(x) for x in ("P1", "P1R", "P2", "P2R")]
        if not reducer:
            preload_q(e)
            e(f"s_xor_b32 s{S_TAG}, s{S_TAG}, 1")
            S("rsi"); S("rs")
        else:
            e.nop(d1)
            S("rsi")
            rsets = [RP, ACA][:KR]
            rs_ld(RP)
            preload_q(e)
            if KR > 1:
                e.nop(cfg.get("e1", 5)); rs_ld(ACA)
            rs_chk(RP, 4 * (KR - 1))
            e(f"s_cbranch_vccnz {P1R}")
            e.label(P1 + "_OK")
            S("rs")
            def p1r():
                e.label(P1R)
                for k in range(KR):
                    e(f"s_add_u32 s{S_SPIN}, s{S_SPIN}, 1\ns_cmp_gt_u32 s{S_SPIN}, {SPIN_MAX}\ns_cbranch_scc1 {P1}_OK")
                    e("s_mov_b64 exec, vcc"); rs_ld(rsets[k]); e("s_mov_b64 exec, -1")
                    rs_chk(rsets[(k + 1) % KR], 4 * (KR - 1))
                    e(f"s_cbranch_vccz {P1}_OK")
                e(f"s_branch {P1R}")
            tail.append(p1r)
            e(f"s_xor_b32 s{S_TAG}, s{S_TAG}, 1\ns_nop 1")
            for r in range(4):
                e(f"v_add_f32_dpp v{RED+r}, v{RED+r}, v{RED+r} row_ror:8 row_mask:0xf bank_mask:0xf")
            e(f"s_mov_b64 exec, s[{S_AGM}:{S_AGM+1}]")
            e(f"v_cvt_pk_bf16_f32 v{AGO}, v{RED}, v{RED+1}\nv_cvt_pk_bf16_f32 v{AGO+1}, v{RED+2}, v{RED+3}")
            e(f"s_mov_b64 exec, s[{S_AGM2}:{S_AGM2+1}]\nbuffer_store_dwordx2 {vr(AGO,2)}, v{A_AGW}, {WS}, s{S_AGW} offen{st}\ns_mov_b64 exec, -1")
        S("ags")
        if cfg.get("agbar"): e("s_barrier")
        S("agb")
        kv_ready_ool(e, tail, T0, T1)
        e.nop(d2)
        sets = [AP, ACB][:K]
        for k, r in enumerate(sets):
            if k: e.nop(cfg.get("e2", 25))
            ag_ld(r)
        ag_chk(AP, 2 * (K - 1))
        e(f"s_cbranch_vccnz {P2R}")
        e.label(P2 + "_OK")
        S("ag")
        def p2r():
            e.label(P2R)
            for k in range(K):
                e(f"s_add_u32 s{S_SPIN}, s{S_SPIN}, {16 if stamps else 1}\ns_cmp_gt_u32 s{S_SPIN}, {SPIN_MAX}\ns_cbranch_scc1 {P2}_OK")
                e("s_mov_b64 exec, vcc"); ag_ld(sets[k]); e("s_mov_b64 exec, -1")
                ag_chk(sets[(k + 1) % K], 2 * (K - 1))
                e(f"s_cbranch_vccz {P2}_OK")
            e(f"s_branch {P2R}")
        tail.append(p2r)
        if stamps:
            sk = e.newlabel("NS")
            e(f"s_waitcnt lgkmcnt(0)\ns_cmp_eq_u32 s{S_STEP}, {cfg.get('stampstep', 40)}\ns_cbranch_scc0 {sk}")
            for i in range(len(stamps)): e(f"v_writelane_b32 v{T0}, s{S_ST+2*i}, {i}")
            e(f"v_writelane_b32 v{T0}, s{S_SPIN}, 10")
            for i in range(5): e(f"s_memrealtime s[{12+4*i}:{13+4*i}]\ns_memtime s[{14+4*i}:{15+4*i}]\ns_nop 5")
            e("s_waitcnt lgkmcnt(0)")
            for i in range(5): e(f"v_writelane_b32 v{T0}, s{12+4*i}, {16+2*i}\nv_writelane_b32 v{T0}, s{14+4*i}, {17+2*i}")
            e(f"s_lshl_b32 s{S_TMP}, s{S_H}, 2\ns_add_u32 s{S_TMP}, s{S_TMP}, s{S_W}\ns_lshl_b32 s{S_TMP}, s{S_TMP}, 8\ns_add_u32 s{S_TMP}, s{S_TMP}, {WS_STAMP}")
            e(f"v_mbcnt_lo_u32_b32 v{T1}, -1, 0\nv_mbcnt_hi_u32_b32 v{T1}, -1, v{T1}\nv_lshlrev_b32 v{T1}, 2, v{T1}")
            e(f"buffer_store_dword v{T0}, v{T1}, {WS}, s{S_TMP} offen")
            e.label(sk)
        for r in range(0, 8, 2): e(f"v_mov_b64 {vr(ACA+r,2)}, 0")
        e(f"v_mov_b32 v{T0}, s{S_FLV}")
        if cfg.get("pubc"): e(f"buffer_store_dwordx4 {vr(KP,4)}, v{A_AGR}, {WS}, s{S_KVM} offen sc1")
        e("s_waitcnt lgkmcnt(0)")
    D = cfg.get("D", [[0, 60], [0, 160], [25, 40], [0, 190]])
    if cfg.get("agbar"): D = [[cfg["d1e"], cfg.get("d2e", 0)], [0, cfg.get("d2e", 0)], [cfg["d1"], cfg["d2"]], [0, cfg["d2"]]]
    KK = [cfg.get("Ke", 1), cfg.get("Ke", 1), cfg.get("K", 2), cfg.get("K", 2)]
    for w in (0, 1, 3):
        e.label(f"{LOOP}_{w}")
        comm(w == 0, D[w][0], D[w][1], KK[w], cfg.get('KRe', 1))
        e(f"s_branch {ENTRY}")
    e(".p2align 6")
    e.label(f"{LOOP}_2")
    comm(True, D[2][0], D[2][1], KK[2], cfg.get('KR', 2))
    e.label(ENTRY)
    e("s_barrier")
    S("b1")
    if cfg.get("stepst"): e("s_memrealtime s[84:85]")
    def rd_m(J, x):
        def f(): seq[("m", J)] = e(f"ds_read_b64_tr_b16 {vr(MEMA+4*J+2*x,2)}, v{A_TR} offset:{(2*(J%2)+x)*2048 + (J//2)*512}")
        return f
    qorder = [(0, 0), (0, 1), (1, 0), (1, 1), (2, 0)] + [(J, t) for J in range(3, 8) for t in range(2)] + [(2, 1)]
    def qf(J, t):
        if J < 3: return ("v", QB + 8 * (QL.index((J, t)) % 5))
        return FRAG[("q", J, t)]
    mq = [smf(ACA + 4 * t, MEMA + 4 * J, qf(J, t)) for J, t in qorder]
    def rd_w(key, r, off):
        def f(): seq[key] = e(f"ds_read_b128 {vr(r,4)}, v{A_W} offset:{off}")
        return f
    def rq(n, hf): return rd_w(("ql", n), QB + 8 * (n % 5) + 4 * hf, FRAG[("q",) + QL[n]][1] + 1024 * hf)
    flag = [f"s_mov_b64 exec, s[{S_W0M}:{S_W0M+1}]", f"buffer_store_dword v{T0}, off, {WS}, s{S_CF} sc1", "s_mov_b64 exec, -1"]
    pubk = f"buffer_store_dwordx4 {vr(KP,4)}, v{A_AGR}, {WS}, s{S_KVM} offen sc1"
    pubv = "s_nop 0"
    if cfg.get("nopub"): pubk = pubv = "s_nop 0"; flag = []
    def dm(i): return "s_nop 0" if cfg.get("nodma") else f"buffer_load_dwordx4 v{A_AGR}, {WS}, s{S_KVG if i < 2 else S_KVG2} offen offset:{(i%2)*1024} sc1 lds"
    z = lambda r: f"v_mov_b64 {vr(r,2)}, 0"
    fill = {-1: [rd_m(J, x) for J in range(4) for x in range(2)] + [wt(("m", 0)), SS("m0")],
            0: [rd_m(4, 0), dm(0)], 1: [rd_m(4, 1), wt(("m", 1))], 2: [rd_m(5, 0), dm(1)], 3: [rd_m(5, 1), wt(("m", 2))],
            4: [f"s_add_u32 m0, s{S_KVL}, 8192", wt(("m", 3))],
            5: [f"s_waitcnt vmcnt({3 if cfg.get('pubc') else 2})", rd_m(6, 0)], 6: [rd_m(6, 1), wt(("m", 4))], 7: [rd_m(7, 0), dm(2)], 8: [rd_m(7, 1), wt(("m", 5))],
            9: [rq(5, 0), dm(3)], 10: [rq(5, 1), wt(("m", 6))], 11: flag, 12: [wt(("m", 7))], 13: [] if cfg.get("pubc") else [pubk], 14: [wt(("ql", 5))],
            }
    kextra = {}
    dp = cfg.get("dp", 0)
    m0b = f"s_add_u32 m0, s{S_KVL}, 8192"
    if dp:
        for g in (0, 2, 7, 9): fill[g] = fill[g][:1]
        fill[4] = fill[4][1:]
        fill[5] = ["s_waitcnt vmcnt(%d)" % (1 if dp in (1, 2) else 0), rd_m(6, 0)]
        if dp == 1:
            fill[2] += [dm(0)]; fill[7] += [dm(1)]; fill[9] += [m0b]; fill[12] = fill[12] + [dm(2)]; kextra = {5: [dm(3)]}
        if dp == 2:
            fill[2] += [dm(0)]; fill[9] += [dm(1)]; kextra = {3: [m0b], 5: [dm(2)], 11: [dm(3)]}
        if dp == 3:
            fill[7] += [dm(0)]; fill[12] = fill[12] + [dm(1)]; kextra = {3: [m0b], 6: [dm(2)], 14: [dm(3)]}
    if cfg.get("flp") == 1:
        fill[11] = []; kextra[7] = None
    pp = cfg.get("pubp", 0)
    if pp:
        pre = [rd_m(J, x) for J in range(4) for x in range(2)]
        fill[-1] = pre[:pp] + [pubk] + pre[pp:] + [wt(("m", 0)), SS("m0")]
        fill[13] = []; fill[5] = ["s_waitcnt vmcnt(3)", rd_m(6, 0)]
    if cfg.get("pub2"):
        fill[13] = [f"buffer_store_dwordx2 {vr(KP,2)}, v{A_AGR}, {WS}, s{S_KVM} offen sc1"]
        fill[15] = [f"buffer_store_dwordx2 {vr(VP,2)}, v{A_AGR}, {WS}, s{S_KVM} offen offset:8 sc1"]
    for n, g in enumerate([7, 8, 9, 10] if not cfg.get("xz") else [10, 12, 13, 14]): fill[g] = fill[g] + [z(ACB + 2 * n)]
    GS("q", fill, 16)
    interleave(e, mq, fill)
    S("q")
    mk = [smf(ACB + 4 * t, MEMA + 4 * J, FRAG[("k", J, t)]) for J in range(8) for t in range(2)]
    def post_dup(acc, dst):
        return [f"v_add_f32 v{acc}, v{acc}, v{acc+2}", f"v_add_f32 v{acc+1}, v{acc+1}, v{acc+3}",
                f"v_cvt_pk_bf16_f32 v{dst}, v{acc}, v{acc+1}"]
    pq = post_dup(ACA, QP) + post_dup(ACA + 4, QP + 1)
    def rd_q(js, t):
        def f(): seq[("q", js)] = e(f"ds_read_b64_tr_b16 {vr(QB+4*js+2*t,2)}, v{A_TR} offset:{L_QU-L_MEM + js*1024 + t*512}")
        return f
    kxslot = [0, 1, 2, 3, 4, 5, 0, 1]
    def rd_kx(n):
        js, kt = n // 2, n % 2
        def f(): seq[("kx", n)] = e(f"ds_read_b128 {vr(KXA+4*kxslot[n],4)}, v{A_KX} offset:{(kt*4+js)*1024}")
        return f
    def wr_u(key, a, r, t):
        def f(): seq[key] = e(f"ds_write2_b32 v{a}, v{r}, v{r} offset0:{128*t} offset1:{128*t+1}")
        return f
    fill = {0: pq[0:2], 1: pq[2:4], 2: [wr_u("wq0", A_UW, QP, 0)] + pq[4:6], 3: [wr_u("wq1", A_UW, QP + 1, 1)],
            4: [rd_kx(0), f"v_add_u32 v{T0}, {L_KU - L_QU}, v{A_UW}"], 5: [rd_kx(1)], 6: [rd_kx(2)], 7: [rd_kx(3)],
            8: [wt("wq1"), SS("bq0"), "s_barrier", SS("bq1")],
            9: [rd_q(0, 0), rd_q(0, 1)], 10: [rd_q(1, 0), rd_q(1, 1)], 11: [rd_kx(4)], 12: [rd_q(2, 0), rd_kx(5)], 13: [rd_q(2, 1), rd_q(3, 0)],
            14: [rd_q(3, 1)], 15: [wt(("q", 1))]}
    for g, x in kextra.items():
        if x is None: fill[g] = flag; fill[6] = fill[6] + [rd_kx(3)]
        else: fill[g] = fill[g] + x
    if cfg.get("flp") == 1: fill[4] = [rd_kx(0)]; fill[8] = fill[8]; fill[15] = fill[15]; kadd = True
    GS("k", fill, 16)
    interleave(e, mk, fill)
    S("k")
    pk = post_dup(ACB, KP) + post_dup(ACB + 4, KP + 1)
    ms = []
    for js in range(4):
        for kt in range(2):
            n = js * 2 + kt
            ms.append(mf32(ACA + 4 * kt, KXA + 4 * kxslot[n], QB + 4 * js, "0" if js == 0 else ACA + 4 * kt))
    def rd_k(js, t):
        def f(): seq[("k", js)] = e(f"ds_read_b64_tr_b16 {vr(KXA+8+4*js+2*t,2)}, v{A_TRK} offset:{L_KU-L_MEM + js*1024 + t*512}")
        return f
    fill = {0: [rd_kx(6)] + pk[0:2], 1: [rd_kx(7)] + pk[2:4] + ([f"v_add_u32 v{T0}, {L_KU - L_QU}, v{A_UW}"] if cfg.get("flp") == 1 else []),
            2: [wr_u("wk0", T0, KP, 0)] + pk[4:6], 3: [wt(("q", 3)), z(ACB), z(ACB + 2)],
            4: [wr_u("wk1", T0, KP + 1, 1), z(ACB + 4), z(ACB + 6)],
            5: [wt(("kx", 7))],
            7: [f"s_cmp_ge_u32 s{S_STEP}, 63", f"s_cbranch_scc1 {LAST}"],
            }
    GS("sx", fill, 8)
    interleave(e, ms, fill)
    S("Sx")
    mv = [smf(ACB + 4 * t, MEMA + 4 * J, FRAG[("v", J, t)]) for J in range(8) for t in range(2)]
    SM = KXA
    X0, X1 = ACA, ACA + 4
    mx, t2 = KXA + 4, KXA + 5
    e0 = XT
    NV1 = cfg.get("nv1", 10)
    msm = [mf32(SM, KXA + 8 + 4 * js, QB + 4 * js, "0" if js == 0 else SM) for js in range(4)]
    odd = f"s[{S_ODD}:{S_ODD+1}]"
    early = [f"v_max3_f32 v{mx}, v{X0}, v{X0+1}, v{X0+2}", f"v_max3_f32 v{t2}, v{X1}, v{X1+1}, v{X1+2}",
             f"v_max3_f32 v{mx}, v{mx}, v{X0+3}, v{X1+3}", f"v_max_f32 v{mx}, v{mx}, v{t2}",
             f"v_cndmask_b32 v{e0}, v{X0}, v{X0+2}, {odd}", f"v_cndmask_b32 v{e0+1}, v{X0+1}, v{X0+3}, {odd}",
             f"v_cndmask_b32 v{e0+2}, v{X1}, v{X1+2}, {odd}", f"v_cndmask_b32 v{e0+3}, v{X1+1}, v{X1+3}, {odd}"]
    seqm = mv[:NV1] + msm + mv[NV1:]
    PVB0, PVB1, OAC, PA, LB, LA = QB, QB + 8, KXA + 8, KXA + 16, KXA + 20, KXA + 4
    def rd_vx(n):
        t, hf = n // 2, n % 2
        def f(): seq["vx"] = e(f"ds_read_b64 {vr(QB+8*t+2+4*hf,2)}, v{A_VX} offset:{t*1024 + hf*512}")
        return f
    def rd_wo(T, hf):
        return rd_w(("wo", T), MEMA + 8 * (T % 4) + 4 * hf, FRAG[("o", (1, T // 2), T % 2)][1] + 1024 * hf)
    EE = [SM, SM + 1, e0, e0+1, e0+2, e0+3]
    fill = {0: [wt("wk1"), SS("bk0"), "s_barrier", SS("bk1")]}
    for n in range(8): fill[1 + n] = [rd_k(n // 2, n % 2), early[n]]
    xv = cfg.get("xv", 0)
    if xv == 2:
        fill = {1: early[0:1], 2: early[1:3], 3: early[3:5], 4: [wt("wk1"), "s_barrier"],
                5: [rd_k(0, 0), rd_k(0, 1)], 6: [rd_k(1, 0), rd_k(1, 1)], 7: [rd_k(2, 0), rd_k(2, 1)], 8: [rd_k(3, 0), rd_k(3, 1)]}
    if xv == 3:
        fill = {1: early[0:2], 2: early[2:4], 3: [wt("wk1"), "s_barrier"],
                4: [rd_k(0, 0), rd_k(0, 1)], 5: [rd_k(1, 0), rd_k(1, 1)], 6: [rd_k(2, 0)], 7: [rd_k(2, 1)], 8: [rd_k(3, 0), rd_k(3, 1)]}
    if xv == 1:
        for n in range(8): fill[1 + n] = [rd_k(n // 2, n % 2)]
        fill[7] += early[0:1]; fill[8] += early[1:2]
    FLAGPOS = flag
    fill[NV1 - 1] = [rd_wo(0, 0), wt(("k", 0)), SS("k0")] if NV1 - 1 > 8 else fill[NV1 - 1][:1] + [wt(("k", 0))] + fill[NV1 - 1][1:]
    lb = [f"v_mov_b64 {vr(LB,2)}, s[{S_LB}:{S_LB+1}]", f"v_mov_b64 {vr(LB+2,2)}, s[{S_LB}:{S_LB+1}]"]
    zz = [z(OAC), z(OAC + 2), z(OAC + 4), z(OAC + 6), f"v_mov_b32 v{PA+2}, 0"] + lb
    if xv == 1:
        fill[NV1 - 1] = fill[NV1 - 1] + early[2:3]
        fill[NV1] = [wt(("k", 1))] + early[3:5]
        fill[NV1 + 1] = [wt(("k", 2))] + early[5:7]
        fill[NV1 + 2] = [wt(("k", 3))] + early[7:8] + zz[0:1]
        fill[NV1 + 3] = [rd_vx(0)] + zz[1:3]
        zz = zz[3:]
    elif xv in (2, 3):
        rem = early[5:] if xv == 2 else early[4:]
        allv = rem + zz
        k0 = 2 if xv == 3 else 0
        fill[NV1] = [wt(("k", 1))]
        fill[NV1 + 1] = [wt(("k", 2))] + allv[0:k0]
        fill[NV1 + 2] = [wt(("k", 3))] + allv[k0:k0 + 2]
        fill[NV1 + 3] = [rd_vx(0)] + allv[k0 + 2:k0 + 4]
        zz = allv[k0 + 4:]
    else:
        fill[NV1] = [wt(("k", 1))] + zz[0:2]
        fill[NV1 + 1] = [wt(("k", 2))] + zz[2:4]
        fill[NV1 + 2] = [wt(("k", 3))] + zz[4:5]
        fill[NV1 + 3] = [rd_vx(0)] + zz[5:7]
        zz = []
    GS("v1", fill, 14)
    interleave(e, seqm[:NV1 + 4], fill)
    S("Sm")
    rest = seqm[NV1 + 4:]
    assert len(rest) == 6
    def run(x):
        for s in x: s() if callable(s) else e(s)
    run([rest[0], rd_vx(1), rd_vx(2)] + zz[0:1] + [rest[1], rd_vx(3), rd_wo(0, 1),
         f"v_max3_f32 v{mx}, v{mx}, v{SM}, v{SM+1}", f"v_mov_b32 v{t2}, v{mx}",
         rest[2], rd_wo(1, 0), rd_wo(1, 1),
         f"v_permlane32_swap_b32 v{mx}, v{t2}", f"v_max_f32 v{mx}, v{mx}, v{t2}", f"v_mov_b32 v{t2}, v{mx}",
         rest[3], rd_wo(2, 0), rd_wo(2, 1),
         f"v_permlane16_swap_b32 v{mx}, v{t2}", f"v_max_f32 v{mx}, v{mx}, v{t2}",
         rest[4], f"v_mul_f32 v{mx}, s{S_SC}, v{mx}", rest[5], rd_wo(3, 0), rd_wo(3, 1)] + zz[1:] + [
         ]
        + [f"v_fma_f32 v{x}, v{x}, s{S_SC}, -v{mx}" for x in EE] + [f"v_exp_f32 v{x}, v{x}" for x in EE]
        + [f"v_cvt_pk_bf16_f32 v{PA}, v{SM}, v{SM+1}", f"v_cvt_pk_bf16_f32 v{PA+1}, v{e0}, v{e0+1}", f"v_cvt_pk_bf16_f32 v{PA+3}, v{e0+2}, v{e0+3}",
           f"v_permlane32_swap_b32 v{PA}, v{PA+2}"])
    S("soft")
    cv = lambda t, h: f"v_cvt_pk_bf16_f32 v{QB+8*t+h}, v{ACB+4*t+2*h}, v{ACB+4*t+2*h+1}"
    run([cv(0, 0), cv(0, 1), mf32(LA, PA, LB, "0"), wt("vx"), cv(1, 0), cv(1, 1),
         f"v_smfmac_f32_16x16x64_bf16 {vr(OAC,4)}, {vr(PA,4)}, {vr(PVB0,8)}, v{IDX}", "s_nop 0",
         f"v_smfmac_f32_16x16x64_bf16 {vr(OAC+4,4)}, {vr(PA,4)}, {vr(PVB1,8)}, v{IDX}",
         ] + ([
         f"v_pk_add_f32 {vr(LA,2)}, {vr(LA,2)}, {vr(LA+2,2)}", f"v_rcp_f32 v{LA}, v{LA}", f"v_rcp_f32 v{LA+1}, v{LA+1}",
         f"v_pk_add_f32 {vr(OAC,2)}, {vr(OAC,2)}, {vr(OAC+2,2)}", f"v_pk_mul_f32 {vr(OAC,2)}, {vr(OAC,2)}, {vr(LA,2)}", "s_nop 0",
         f"v_pk_add_f32 {vr(OAC+4,2)}, {vr(OAC+4,2)}, {vr(OAC+6,2)}", f"v_cvt_pk_bf16_f32 v{OAC}, v{OAC}, v{OAC+1}",
         f"v_pk_mul_f32 {vr(OAC+4,2)}, {vr(OAC+4,2)}, {vr(LA,2)}", f"v_cvt_pk_bf16_f32 v{OAC+1}, v{OAC+4}, v{OAC+5}"] if cfg.get("usepk") else [
         f"v_add_f32 v{LA}, v{LA}, v{LA+2}", f"v_add_f32 v{LA+1}, v{LA+1}, v{LA+3}", f"v_rcp_f32 v{LA}, v{LA}", f"v_rcp_f32 v{LA+1}, v{LA+1}",
         f"v_add_f32 v{OAC}, v{OAC}, v{OAC+2}", f"v_add_f32 v{OAC+1}, v{OAC+1}, v{OAC+3}",
         f"v_mul_f32 v{OAC}, v{OAC}, v{LA}", f"v_mul_f32 v{OAC+1}, v{OAC+1}, v{LA+1}",
         f"v_add_f32 v{OAC+4}, v{OAC+4}, v{OAC+6}", f"v_add_f32 v{OAC+5}, v{OAC+5}, v{OAC+7}",
         f"v_mul_f32 v{OAC+4}, v{OAC+4}, v{LA}", f"v_mul_f32 v{OAC+5}, v{OAC+5}, v{LA+1}",
         f"v_cvt_pk_bf16_f32 v{OAC}, v{OAC}, v{OAC+1}", f"v_cvt_pk_bf16_f32 v{OAC+1}, v{OAC+4}, v{OAC+5}"]))
    WAC = [QB, QB + 4, QB + 8, QB + 12, ACA, ACA + 4, ACB, ACB + 4]
    so = e(f"ds_write_b64 v{A_UW}, {vr(OAC,2)}")
    S("ow")
    def vpost():
        for t in range(2):
            a = ACB + 4 * t
            e(f"v_pk_add_f32 {vr(a,2)}, {vr(a,2)}, {vr(a+2,2)}\nv_cvt_pk_bf16_f32 v{VP+t}, v{a}, v{a+1}")
    vpost()
    for r in range(0, 16, 2): e(z(QB + r))
    if cfg.get("xo"):
        for r in range(0, 16, 2): e(z(ACA + r))
    e.waitlg(so)
    S("bo0")
    e("s_barrier")
    S("bo1")
    OA = KXA
    for J in range(2):
        for x in range(2):
            seq[("oa", J)] = e(f"ds_read_b64_tr_b16 {vr(OA+4*J+2*x,2)}, v{A_TR} offset:{L_QU-L_MEM + (2*J+x)*1024}")
    if not cfg.get("xo"):
        for r in range(0, 16, 2): e(z(ACA + r))
    mo = []
    for p in range(4):
        for T in (2 * p, 2 * p + 1): mo.append(smf(WAC[T], OA, FRAG[("o", (0, T // 2), T % 2)]))
        for T in (2 * p, 2 * p + 1): mo.append(smf(WAC[T], OA + 4, ("v", MEMA + 8 * (T % 4))))
    RSO = OAC
    def post_pair(p):
        a, b = WAC[2 * p], WAC[2 * p + 1]; d = RSO + 2 * p
        return [f"v_add_f32 v{a}, v{a}, v{a+2}", f"v_add_f32 v{a+1}, v{a+1}, v{a+3}",
                f"v_cvt_pk_bf16_f32 v{d}, v{a}, v{a+1}", f"v_add_f32 v{b}, v{b}, v{b+2}",
                f"v_add_f32 v{b+1}, v{b+1}, v{b+3}", f"v_and_or_b32 v{d}, v{d}, -2, s{S_TAG}",
                f"v_cvt_pk_bf16_f32 v{d+1}, v{b}, v{b+1}",
                f"buffer_store_dwordx2 {vr(d,2)}, v{A_RSW}, {WS}, s{S_RSW0 if p < 2 else S_RSW1} offen offset:{(p%2)*2048}{st}"]
    p0, p1, p2, p3 = [post_pair(p) for p in range(4)]
    fill = {-1: [wt(("oa", 0)), SS("oa")], 1: [wt(("oa", 1))], 2: [rd_wo(4, 0), rd_wo(4, 1)], 3: [rd_wo(5, 0), rd_wo(5, 1)],
            4: ["s_nop 0"] + p0[0:1], 5: p0[1:3], 6: [rd_wo(6, 0), rd_wo(6, 1)] + p0[3:5], 7: [rd_wo(7, 0), rd_wo(7, 1)] + p0[5:7], 8: p0[7:8] + p1[0:1],
            9: [wt(("wo", 4))] + p1[1:3], 10: [wt(("wo", 5))] + p1[3:5], 11: p1[5:7],
            12: p1[7:8] + p2[0:1], 13: [wt(("wo", 6))] + p2[1:3], 14: [wt(("wo", 7))] + p2[3:5],
            15: p2[5:8] + p3[0:3] + ([p3[5]] + p3[3:5] + p3[6:] if not cfg.get("usepk") else [p3[5], f"v_pk_add_f32 {vr(WAC[7],2)}, {vr(WAC[7],2)}, {vr(WAC[7]+2,2)}"] + p3[6:]),
            }
    GS("wo", fill, 16)
    interleave(e, mo, fill)
    S("Wo")
    if cfg.get("stepst"):
        for k in range(12): e(f"s_cmp_eq_u32 s{S_STEP}, {k if k < 8 else 8*(k-6)}\ns_cselect_b32 s{20+k}, s84, s{20+k}")
    e.nop(cfg.get("xdelay", 0))
    e(f"v_mov_b64 {vr(AGO,2)}, -1")
    e(f"v_xor_b32 v{A_KX}, 0x3C000, v{A_KX}\nv_xor_b32 v{A_VX}, 0x3C000, v{A_VX}")
    e(f"v_add_u32 v{A_AGW}, 0x2000, v{A_AGW}\nv_subrev_u32 v{T0}, 0x6000, v{A_AGW}\nv_min_u32 v{A_AGW}, v{A_AGW}, v{T0}")
    e(f"s_add_u32 s{S_AGSLOT}, s{S_AGSLOT}, 0x2000\ns_cmp_eq_u32 s{S_AGSLOT}, 0x6000\ns_cselect_b32 s{S_AGSLOT}, 0, s{S_AGSLOT}")
    e(f"s_add_u32 s{S_AGR0}, s{S_AGSLOT}, {WS_AG - L_MEM}")
    e(f"s_add_u32 s{S_KVG}, s{S_KVG}, 0x80000\ns_xor_b32 s{S_KVL}, s{S_KVL}, 0x3C000\ns_add_u32 s{S_KVM}, s{S_KVM}, 0x40000")
    e(f"s_add_u32 s{S_KVG2}, s{S_KVG}, 8192\ns_mov_b32 m0, s{S_KVL}\ns_mov_b32 s{S_FLV}, s{S_STEP}")
    if cfg.get("peek"): kv_fold(e)
    e(f"s_add_u32 s{S_STEP}, s{S_STEP}, 1\ns_mov_b32 s{S_SPIN}, 0")
    if cfg.get("peek"): kv_peek(e)
    for w in (2, 0, 1): e(f"s_cmp_eq_u32 s{S_W}, {w}\ns_cbranch_scc1 {LOOP}_{w}")
    e(f"s_branch {LOOP}_3")
    for t in tail: t()
    e.label(LAST)
    e(f"s_add_u32 s{S_KVM}, s{S_KVM}, 0x40000")
    for m in mv: e(m)
    e.nop(8)
    vpost()
    e(pubk)
    e("s_waitcnt vmcnt(0) lgkmcnt(0)\ns_barrier")
    e(f"v_mov_b32 v{T0}, 64\ns_mov_b64 exec, s[{S_W0M}:{S_W0M+1}]")
    e(f"buffer_store_dword v{T0}, off, {WS}, s{S_CF} sc1")
    if cfg.get("gstamp"):
        e(f"s_memrealtime s[84:85]\ns_memtime s[86:87]\ns_waitcnt lgkmcnt(0)\ns_sub_u32 s86, s86, s16\nv_mov_b32 v24, s86\nv_mov_b32 v20, s3\nv_mov_b32 v21, s18\nv_mov_b32 v22, s84\nv_mov_b32 v23, s69")
        e(f"s_lshl_b32 s{S_TMP}, s{S_H}, 4\ns_add_u32 s{S_TMP}, s{S_TMP}, {WS_STAMP + 0x10000}")
        if cfg.get("stepst"):
            for k in range(12): e(f"v_mov_b32 v{30+k}, s{20+k}")
            e(f"s_lshl_b32 s{S_TMP2}, s{S_H}, 6\ns_add_u32 s{S_TMP2}, s{S_TMP2}, {WS_STAMP + 0x11000}")
            for k in range(3): e(f"buffer_store_dwordx4 v[{30+4*k}:{33+4*k}], off, {WS}, s{S_TMP2} offset:{16*k}")
        e(f"buffer_store_dwordx4 v[20:23], off, {WS}, s{S_TMP}\nbuffer_store_dword v24, off, {WS}, s{S_TMP} offset:1024")
    if cfg.get("dbgt"):
        for k, r in enumerate(("s69", "s18", "s84")):
            e(f"s_sub_u32 s{S_TMP}, {r}, s3\nv_mov_b32 v20, s{S_TMP}\nv_mov_b32 v21, {8 + 4*k}\nglobal_atomic_umax v21, v20, s[{S_DBG}:{S_DBG+1}]")
        e(f"v_mov_b32 v20, s86\nv_mov_b32 v21, 24\nglobal_atomic_umax v21, v20, s[{S_DBG}:{S_DBG+1}]")
    e("s_branch KEND")
```

```python
from asmlib import Em, vr
from layout import *

S_Q, S_K, S_V, S_SH, S_SSMK, S_SSMD, S_MEM0 = 4, 6, 8, 10, 12, 14, 16
S_WQ, S_WK, S_WV, S_WO, S_GATE, S_OUT, S_DBG, S_WS = 20, 22, 24, 26, 28, 30, 32, 34
R_WS, R_T, R_T2 = 36, 40, 44
S_W, S_XCC, S_GRP, S_H = 48, 49, 50, 51
S_W0M = 76
NINIT = 28
SPIN_MAX = 1 << 15

def srd(e, r, p, size):
    e(f"s_mov_b32 s{r}, s{p}\ns_mov_b32 s{r+1}, s{p+1}\ns_mov_b32 s{r+2}, {size}\ns_mov_b32 s{r+3}, 0x20000")

def lane_consts(e, c, g, lane="v0"):
    e(f"v_and_b32 {c}, 15, {lane}\nv_lshrrev_b32 {g}, 4, {lane}")

def emit_UB(e, dst, c, b, t):
    e(f"v_lshrrev_b32 {t}, 1, {b}")
    e(f"v_lshl_add_u32 {t}, {t}, 3, {c}")
    e(f"v_and_b32 {t}, 15, {t}")
    e(f"v_lshl_add_u32 {t}, {b}, 4, {t}")
    e(f"v_lshlrev_b32 {dst}, 3, {t}")

IDX, A_RSR, A_AGW, A_AGR, A_TR, A_TRK, A_UW, A_W, A_KX, A_VX, T0, A_RSW, SEL = 0, 1, 2, 3, 4, 5, 6, 7, 8, 9, 10, 11, 12
MEMA, QB, KXA, XT, ACA, ACB = 16, 48, 64, 88, 96, 104
WV0 = 112
S_STEP, S_RSW0, S_RSW1, S_RSR0, S_RSR1, S_AGW, S_AGRST, S_AGR0, S_AGR1 = 52, 53, 54, 55, 56, 57, 58, 59, 60
S_KVG, S_KVL, S_KVM, S_READY, S_SPIN, S_AGSLOT, S_TMP, S_TMP2 = 61, 62, 63, 64, 65, 66, 67, 68
S_M0, S_M1, S_M2 = 70, 72, 74
S_AGM = 72
S_ODD = 78
S_SC = 80
S_CF = 81
S_MODE = 82
S_TAG = 83
S_KVG2, S_FLV = 10, 11
S_XG0, S_XL0 = 96, 97
S_KFO = 58
S_RSR = [55, 56, 4, 5]
S_EM, S_LM, S_LB = 4, 6, 8
S_AGM2 = 74
S_ST = 84

BLOCKS = [("q", J) for J in range(3, 8)] + [("k", J) for J in range(8)] + [("v", J) for J in range(8)] \
       + [("o", (0, p)) for p in range(4)] + [("q", 0), ("q", 1), ("q", 2)] + [("o", (1, p)) for p in range(4)]
NREG = 25
def frag_reg(i):
    if i < 32: return ("a", 8 * i)
    return ("v", WV0 + 8 * (i - 32))
FRAG = {}
for n, (m, J) in enumerate(BLOCKS):
    for t in range(2):
        if n < NREG: FRAG[(m, J, t)] = frag_reg(2 * n + t)
        else: FRAG[(m, J, t)] = ("lds", (n - NREG) * 4096 + t * 2048)
def slot_addr(n):
    s = n % 10
    wl = {5: 0, 6: 1, 7: 2, 8: 3, 9: 4, 0: 5, 1: 6}
    return ("wl", wl[s]) if s in wl else ("ot", s - 2)

def wait_init(e, tag, vt):
    l = e.newlabel("WI"); d = e.newlabel("WID")
    e(f"s_mov_b32 s{S_SPIN}, 0")
    e(f"v_mbcnt_lo_u32_b32 v{vt+1}, -1, 0\nv_mbcnt_hi_u32_b32 v{vt+1}, -1, v{vt+1}\nv_lshlrev_b32 v{vt+1}, 2, v{vt+1}")
    e.label(l)
    e(f"global_load_dword v{vt}, v{vt+1}, s[{S_DBG}:{S_DBG+1}] sc1")
    e(f"s_add_u32 s{S_SPIN}, s{S_SPIN}, 1")
    e("s_waitcnt vmcnt(0)")
    e(f"v_readlane_b32 s{S_TMP}, v{vt}, {DBG_INIT//4}")
    e(f"s_cmp_ge_u32 s{S_TMP}, {NINIT}\ns_cbranch_scc1 {d}")
    e("s_sleep 16")
    e(f"s_cmp_lt_u32 s{S_SPIN}, {SPIN_MAX}\ns_cbranch_scc1 {l}")
    e.label(d)

def kv_poll(e, va, vb, done):
    l = e.newlabel("KR")
    e(f"s_mov_b32 s{S_SPIN}, 0")
    e(f"v_mbcnt_lo_u32_b32 v{vb}, -1, 0\nv_mbcnt_hi_u32_b32 v{vb}, -1, v{vb}\nv_lshlrev_b32 v{vb}, 2, v{vb}")
    e.label(l)
    e(f"s_lshl_b32 s{S_TMP}, s{S_H}, 8")
    e(f"buffer_load_dword v{va}, v{vb}, s[{R_WS}:{R_WS+3}], s{S_TMP} offen sc1")
    e(f"s_add_u32 s{S_SPIN}, s{S_SPIN}, 1")
    e("s_waitcnt vmcnt(0)")
    e(f"v_cmp_eq_u32 vcc, 0, v{va}\ns_ff1_i32_b64 s{S_READY}, vcc")
    e(f"s_cmp_gt_u32 s{S_READY}, s{S_TMP2}\ns_cbranch_scc1 {done}")
    e("s_sleep 16")
    e(f"s_cmp_lt_u32 s{S_SPIN}, {SPIN_MAX}\ns_cbranch_scc1 {l}")
    e(f"s_branch {done}")

def kv_ready(e, delta, va, vb):
    d = e.newlabel("KRD")
    e(f"s_add_u32 s{S_TMP2}, s{S_STEP}, {delta}\ns_cmp_gt_u32 s{S_READY}, s{S_TMP2}\ns_cbranch_scc1 {d}")
    kv_poll(e, va, vb, d)
    e.label(d)

def kv_dma(e, g=None, l=None):
    out = []
    for i in range(4):
        pre = [f"s_add_u32 m0, s{l or S_KVL}, {(i//2)*8192}", f"s_add_u32 s{S_TMP}, s{g or S_KVG}, {(i//2)*8192}"]
        out.append(pre + [f"buffer_load_dwordx4 v{A_AGR}, s[{R_WS}:{R_WS+3}], s{S_TMP} offen offset:{(i%2)*1024} sc1 lds"])
    return out

def chain_prologue(e, cfg={}):
    e("; ---- chain prologue")
    if cfg.get("prost") == 2: e("s_memrealtime s[92:93]")
    lane_consts(e, "v16", "v17")
    e("v_and_b32 v18, 3, v0\nv_lshrrev_b32 v19, 2, v0")
    e(f"s_lshl_b32 s{S_TMP}, s{S_H}, 8\ns_lshl_b32 s{S_TMP2}, s{S_W}, 6\ns_add_u32 s{S_TMP}, s{S_TMP}, s{S_TMP2}")
    e(f"v_lshlrev_b32 v20, 13, v19\nv_lshl_add_u32 v20, v18, 4, v20\nv_add_u32 v20, s{S_TMP}, v20")
    e(f"s_lshl_b32 s{S_TMP}, s{S_H}, 17\ns_lshl_b32 s{S_TMP2}, s{S_W}, 8\ns_add_u32 s{S_TMP}, s{S_TMP}, s{S_TMP2}")
    e(f"v_lshlrev_b32 v21, 10, v19\nv_lshl_add_u32 v21, v18, 4, v21\nv_add_u32 v21, s{S_TMP}, v21")
    e("v_and_b32 v22, 1, v17\nv_lshlrev_b32 v22, 5, v22")
    e("v_lshrrev_b32 v23, 1, v17\nv_lshl_add_u32 v22, v23, 2, v22")
    e("v_lshrrev_b32 v23, 3, v16\nv_lshl_add_u32 v22, v23, 4, v22")
    e("v_bfe_u32 v23, v16, 2, 1\nv_add_u32 v22, v22, v23")
    e("v_lshlrev_b32 v22, 6, v22\nv_lshl_add_u32 v22, v18, 3, v22")
    e(f"s_mul_i32 s{S_KVL}, s{S_W}, 28672")
    e(f"s_mul_i32 s{S_KVG}, s{S_W}, 12288\ns_add_u32 s{S_KVG}, s{S_KVG}, {L_KVB}")
    e(f"v_add_u32 v24, s{S_KVL}, v22\nv_add_u32 v25, s{S_KVG}, v22")
    e(f"v_lshl_add_u32 v{A_W}, v0, 4, s{S_KVL}")
    RW = {"q": R_T, "k": R_T2, "v": 84, "o": 88}
    for m, p in (("q", S_WQ), ("k", S_WK), ("v", S_WV), ("o", S_WO)): srd(e, RW[m], p, 0x400000)
    def issue(n):
        m, J = BLOCKS[n]
        kind, k = slot_addr(n)
        base = S_KVL if kind == "wl" else S_KVG
        for i in range(4):
            e(f"s_add_u32 m0, s{base}, {k*4096 + i*1024}")
            if m == "o":
                so = (64 * J[0] + 16 * i) * 1024 + J[1] * 64
                e(f"s_mov_b32 s{S_TMP}, {so}")
                e(f"buffer_load_dwordx4 v21, s[{RW[m]}:{RW[m]+3}], s{S_TMP} offen lds")
            else:
                so = (64 * J + 16 * i) * 8192
                e(f"s_mov_b32 s{S_TMP}, {so}")
                e(f"buffer_load_dwordx4 v20, s[{RW[m]}:{RW[m]+3}], s{S_TMP} offen lds")
    def consume(n, outstanding):
        m, J = BLOCKS[n]
        kind, k = slot_addr(n)
        e(f"s_waitcnt vmcnt({outstanding})")
        av = "v24" if kind == "wl" else "v25"
        for t in range(2):
            f = FRAG[(m, J, t)]
            for mm in range(4):
                off = k * 4096 + (8 * (mm // 2) + 2 * (mm % 2)) * 64 + t * 32
                if f[0] == "lds": dst = vr(32 + 8 * t + 2 * mm, 2)
                else: dst = vr(f[1] + 2 * mm, 2, f[0])
                e(f"ds_read_b64_tr_b16 {dst}, {av} offset:{off}")
        e("s_waitcnt lgkmcnt(0)")
        if n >= NREG:
            for t in range(2):
                for hf in range(2):
                    e(f"ds_write_b128 v{A_W}, {vr(32+8*t+4*hf,4)} offset:{k*4096 + t*2048 + hf*1024}")
            e("s_waitcnt lgkmcnt(0)")
    N = len(BLOCKS)
    if cfg.get("tlbw"):
        e(f"v_lshlrev_b32 v26, 16, v0\ns_lshl_b32 s{S_TMP}, s{S_H}, 11\nv_add_u32 v26, s{S_TMP}, v26")
        for m in "qkvo": e(f"buffer_load_dword v27, v26, s[{RW[m]}:{RW[m]+3}], 0 offen")
        if cfg["tlbw"] == 2: e("s_waitcnt vmcnt(0)")
    DEP = 4
    srd(e, 92, S_MEM0, 8192)
    e(f"s_lshl_b32 s{S_TMP}, s{S_W}, 8")
    e(f"v_lshlrev_b32 v26, 11, v17\nv_lshl_add_u32 v26, v16, 1, v26\nv_add_u32 v26, s{S_TMP}, v26")
    mem0_ld = []
    for u in range(4):
        mem0_ld += [f"buffer_load_ushort v{48+2*u}, v26, s[92:95], 0 offen offset:{u*64}", f"buffer_load_ushort v{49+2*u}, v26, s[92:95], 0 offen offset:{u*64+32}",
                    f"buffer_load_ushort v{56+2*u}, v26, s[92:95], 0 offen offset:{u*64+1024}", f"buffer_load_ushort v{57+2*u}, v26, s[92:95], 0 offen offset:{u*64+32+1024}"]
    for n in range(DEP):
        if cfg.get("prost") == 2 and n == 1: e("s_memrealtime s[94:95]")
        issue(n)
    if cfg.get("prost") == 2: e("s_memrealtime s[96:97]")
    for x in mem0_ld: e(x)
    e(f"v_and_b32 v26, 2, v0\nv_cmp_eq_u32 vcc, 2, v26\nv_mov_b32 v27, 0x44444444\nv_mov_b32 v28, 0xeeeeeeee")
    e(f"s_mov_b64 s[{S_ODD}:{S_ODD+1}], vcc")
    e(f"v_cndmask_b32 v29, v27, v28, vcc")
    for r in range(4):
        e(f"v_mov_b32 v{SEL+r}, 0")
    e("v_mov_b32 v27, 0x3f80\nv_mov_b32 v28, 0x3f800000")
    for j in range(8):
        e(f"v_cmp_eq_u32 vcc, {j}, v16\ns_nop 1\nv_cndmask_b32 v{SEL+j//2}, v{SEL+j//2}, v{27+(j%2)}, vcc")
    e(f"s_and_b32 s{S_TMP}, s{S_W}, 2\ns_lshl_b32 s{S_TMP}, s{S_TMP}, 11\ns_lshl_b32 s{S_TMP2}, s{S_H}, 7\ns_add_u32 s{S_TMP}, s{S_TMP}, s{S_TMP2}")
    e(f"v_lshrrev_b32 v26, 3, v0\nv_and_b32 v27, 7, v0\nv_lshlrev_b32 v{A_RSR}, 13, v26\nv_lshl_add_u32 v{A_RSR}, v27, 4, v{A_RSR}\nv_add_u32 v{A_RSR}, s{S_TMP}, v{A_RSR}")
    e(f"s_lshl_b32 s{S_TMP2}, s{S_W}, 9\nv_lshl_add_u32 v{A_RSW}, v0, 3, s{S_TMP2}")
    e(f"v_and_b32 v26, 1, v17\nv_lshl_add_u32 v26, v27, 1, v26\ns_and_b32 s{S_TMP2}, s{S_H}, 3\nv_mov_b32 v27, s{S_TMP2}")
    emit_UB(e, f"v{A_AGW}", "v26", "v27", "v28")
    e(f"s_and_b32 s{S_TMP}, s{S_TMP}, 0xfffffe00\nv_add_u32 v{A_AGW}, s{S_TMP}, v{A_AGW}")
    e(f"s_mov_b32 s{S_AGM}, 0x00FF00FF\ns_mov_b32 s{S_AGM+1}, 0\ns_mov_b32 s{S_AGM2}, -1\ns_mov_b32 s{S_AGM2+1}, 0")
    e(f"v_bfe_u32 v26, v0, 3, 1\nv_lshl_add_u32 v{A_AGW}, v26, 14, v{A_AGW}")
    e(f"s_lshl_b32 s{S_TMP}, s{S_W}, 11\ns_add_u32 s{S_TMP}, s{S_TMP}, {L_MEM}")
    e(f"v_lshl_add_u32 v{A_AGR}, v0, 4, s{S_TMP}")
    e(f"s_lshl_b32 s{S_TMP}, s{S_W}, 10\ns_add_u32 s{S_TMP}, s{S_TMP}, {L_QU}")
    emit_UB(e, f"v{A_UW}", "v16", "v17", "v28")
    e(f"v_add_u32 v{A_UW}, s{S_TMP}, v{A_UW}")
    e("v_lshrrev_b32 v26, 2, v16\nv_lshl_add_u32 v26, v17, 2, v26")
    emit_UB(e, f"v{A_TR}", "v26", "v18", "v28")
    e(f"v_add_u32 v{A_TR}, {L_MEM}, v{A_TR}")
    e("v_and_b32 v27, 1, v18\nv_lshlrev_b32 v27, 1, v27\nv_lshrrev_b32 v28, 1, v18\nv_or_b32 v27, v27, v28")
    emit_UB(e, f"v{A_TRK}", "v26", "v27", "v28")
    e(f"v_add_u32 v{A_TRK}, {L_MEM}, v{A_TRK}")
    e(f"v_lshlrev_b32 v{A_KX}, 4, v0\nv_add_u32 v{A_KX}, {L_KVB}, v{A_KX}")
    e(f"v_lshrrev_b32 v26, 1, v17\nv_lshl_add_u32 v26, v26, 4, v16\nv_lshlrev_b32 v26, 4, v26\nv_and_b32 v27, 1, v17\nv_lshl_add_u32 v26, v27, 3, v26")
    e(f"s_lshl_b32 s{S_TMP}, s{S_W}, 11\ns_add_u32 s{S_TMP}, s{S_TMP}, {L_KVB + 8192}\nv_add_u32 v{A_VX}, s{S_TMP}, v26")
    e(f"v_lshlrev_b32 v65, 2, v0\ns_mov_b32 s{S_STEP}, 0\ns_mov_b32 s{S_READY}, 0\ns_mov_b32 s{S_MODE}, 0")
    WSR = f"s[{R_WS}:{R_WS+3}]"
    order = [("B", n) for n in range(DEP) for _ in range(4)] + [("M", 0)] * 16
    def after(kind, n):
        last = max(i for i, x in enumerate(order) if x == (kind, n))
        return min(len(order) - 1 - last, 63)
    for n in range(N):
        consume(n, after("B", n))
        if n + DEP < N:
            issue(n + DEP); order += [("B", n + DEP)] * 4
        if n == 16:
            e(f"global_load_dword v64, v65, s[{S_DBG}:{S_DBG+1}] sc1"); order.append(("D", 0))
        if n == 23:
            e(f"v_readlane_b32 s{S_TMP}, v64, {DBG_INIT//4}\nv_readlane_b32 s{S_MODE}, v64, {DBG_XCC(0)//4}\nv_mov_b32 v66, 0")
            e(f"s_cmp_ge_u32 s{S_TMP}, {NINIT}\ns_cselect_b32 s{S_MODE}, s{S_MODE}, 0\ns_cselect_b64 exec, -1, 0\ns_lshl_b32 s{S_TMP}, s{S_H}, 8")
            e(f"buffer_load_dword v66, v65, {WSR}, s{S_TMP} offen sc1\ns_mov_b64 exec, -1"); order.append(("F", 0))
        if n == 28:
            e("s_barrier")
            e(f"v_cmp_eq_u32 vcc, 0, v66\ns_ff1_i32_b64 s{S_READY}, vcc")
            e(f"s_lshl_b32 s{S_TMP}, s{S_H}, 14\ns_add_u32 s{S_XG0}, s{S_TMP}, {WS_KV - L_MEM}\ns_lshl_b32 s{S_TMP}, s{S_W}, 11\ns_add_u32 s{S_XL0}, s{S_TMP}, {L_KVB}")
            e(f"s_cmp_gt_u32 s{S_READY}, 0\ns_cselect_b64 exec, -1, 0")
            for grp in kv_dma(e, S_XG0, S_XL0):
                for x in grp: e(x)
            e("s_mov_b64 exec, -1"); order += [("K", 0)] * 4
            for r in range(8): e(f"v_lshl_or_b32 v{48+r}, v{56+r}, 16, v{48+r}")
            e(f"s_lshl_b32 s{S_TMP}, s{S_W}, 9\ns_add_u32 s{S_TMP}, s{S_TMP}, {L_QU - L_MEM}\nv_subrev_u32 v27, s{S_TMP}, v{A_UW}")
            for u in range(4): e(f"ds_write_b64 v27, {vr(48+2*u,2)} offset:{u*2048}")
    if cfg.get("gstamp"): e("s_memrealtime s[18:19]\ns_waitcnt lgkmcnt(0)\ns_mov_b32 s69, s18")
    e(f"v_mov_b32 v{IDX}, v29")
    e(f"s_lshl_b32 s{S_TMP}, s{S_H}, 13")
    e(f"s_add_u32 s{S_RSW0}, s{S_TMP}, {WS_RS}\ns_add_u32 s{S_RSW1}, s{S_RSW0}, 4096")
    for i in range(4): e(f"s_mov_b32 s{S_RSR[i]}, {WS_RS + 0x10000 * i}")
    e(f"s_mov_b32 s{S_AGSLOT}, 0\ns_mov_b32 s{S_AGW}, {WS_AG}\ns_mov_b32 s{S_TAG}, 0")
    e(f"s_mov_b32 s{S_KVG}, s{S_XG0}\ns_mov_b32 s{S_KVL}, s{S_XL0}")
    e(f"s_lshl_b32 s{S_TMP}, s{S_H}, 13\ns_add_u32 s{S_KVM}, s{S_TMP}, {WS_KVM - 0x40000}")
    e(f"s_mov_b32 s{S_LB}, 0x3f003f00\ns_mov_b32 s{S_LB+1}, 0x3f803f80")
    e(f"s_lshl_b32 s{S_CF}, s{S_H}, 7\ns_add_u32 s{S_CF}, s{S_CF}, {FL_CFLAG}")
    e(f"s_mov_b32 s{S_SC}, 0x3e0293ee")
    e(f"s_lshl_b32 s{S_KFO}, s{S_H}, 8\ns_add_u32 s{S_KFO}, s{S_KFO}, 4")
    e(f"s_cmp_ge_u32 s{S_MODE}, 32\ns_cbranch_scc1 MODE_D")
    wait_init(e, "c", 32)
    e(f"s_mov_b32 s{S_SPIN}, 0")
    e.label("MODE_L")
    e(f"v_readlane_b32 s{S_MODE}, v32, {DBG_XCC(0)//4}\ns_cmp_ge_u32 s{S_MODE}, 32\ns_cbranch_scc1 MODE_D\ns_mov_b32 s{S_TMP2}, 0")
    for x in range(8):
        e(f"v_readlane_b32 s{S_TMP}, v32, {DBG_XCC(x)//4}\ns_add_u32 s{S_TMP2}, s{S_TMP2}, s{S_TMP}")
    e(f"s_cmp_ge_u32 s{S_TMP2}, 256\ns_cbranch_scc1 MODE_D\ns_sleep 16")
    e(f"global_load_dword v32, v33, s[{S_DBG}:{S_DBG+1}] sc1\ns_add_u32 s{S_SPIN}, s{S_SPIN}, 1\ns_waitcnt vmcnt(0)\ns_cmp_lt_u32 s{S_SPIN}, {SPIN_MAX}\ns_cbranch_scc1 MODE_L")
    e.label("MODE_D")
    e(f"s_cmp_gt_u32 s{S_READY}, 0\ns_cbranch_scc1 KV0_D")
    kv_ready(e, 0, 32, 33)
    for grp in kv_dma(e):
        for s in grp: e(s)
    e.label("KV0_D")
    e(f"s_add_u32 s{S_KVG}, s{S_KVG}, 0x80000\ns_xor_b32 s{S_KVL}, s{S_KVL}, 0x3C000")

def interleave(e, mf, fill):
    def run(x):
        for s in x:
            if callable(s): s()
            else: e(s)
    run(fill.get(-1, []))
    for i, m in enumerate(mf):
        if callable(m): m()
        else: e(m)
        run(fill.get(i, []))

def smf(acc, a, f):
    return f"v_smfmac_f32_16x16x64_bf16 {vr(acc,4)}, {vr(a,4)}, {vr(f[1],8,f[0])}, v{IDX}"
def mf32(d, a, b, c):
    return f"v_mfma_f32_16x16x32_bf16 {vr(d,4)}, {vr(a,4)}, {vr(b,4)}, {c if c == '0' else vr(c,4)}"

NPRE = 5
QL = [(0, 0), (0, 1), (1, 0), (1, 1), (2, 0), (2, 1)]
def rd_ql(e, n, r):
    off = FRAG[("q",) + QL[n]][1]
    e(f"ds_read_b128 {vr(r,4)}, v{A_W} offset:{off}")
    return e(f"ds_read_b128 {vr(r+4,4)}, v{A_W} offset:{off+1024}")
def preload_q(e):
    for n in range(NPRE): rd_ql(e, n, QB + 8 * n)

S_KF = 12
def kv_peek(e):
    e(f"s_min_u32 s{S_TMP}, s{S_STEP}, 59\ns_lshl_b32 s{S_TMP}, s{S_TMP}, 2\ns_add_u32 s{S_TMP}, s{S_TMP}, s{S_KFO}")
    e(f"s_load_dwordx4 s[{S_KF}:{S_KF+3}], s[{S_WS}:{S_WS+1}], s{S_TMP} glc")
def kv_fold(e):
    e(f"s_and_b32 s{S_KF}, s{S_KF}, s{S_KF+1}\ns_and_b32 s{S_KF+2}, s{S_KF+2}, s{S_KF+3}\ns_and_b32 s{S_KF}, s{S_KF}, s{S_KF+2}")
    e(f"s_add_u32 s{S_TMP}, s{S_STEP}, 5\ns_cmp_ge_u32 s{S_STEP}, 59\ns_cselect_b32 s{S_TMP}, -1, s{S_TMP}")
    e(f"s_cmp_eq_u32 s{S_KF}, 1\ns_cselect_b32 s{S_TMP}, s{S_TMP}, 0\ns_max_u32 s{S_READY}, s{S_READY}, s{S_TMP}")

def kv_ready_ool(e, tail, va, vb):
    d = e.newlabel("KRD"); sl = e.newlabel("KRS")
    e(f"s_add_u32 s{S_TMP2}, s{S_STEP}, 1")
    e(f"s_cmp_le_u32 s{S_READY}, s{S_TMP2}\ns_cbranch_scc1 {sl}")
    e.label(d)
    def slow():
        e.label(sl)
        kv_poll(e, va, vb, d)
    tail.append(slow)

def chain_loop(e, fast, cfg):
    st = "" if fast else " sc1"
    tag_ = "F" if fast else "S"
    WS = f"s[{R_WS}:{R_WS+3}]"
    stamps = cfg.get("stamps", [])
    def S(name):
        if name in stamps:
            i = stamps.index(name); e(f"s_memtime s[{S_ST+2*i}:{S_ST+2*i+1}]")
    def SS(name): return lambda: S(name)
    def GS(p, fill, n):
        for i in range(n):
            if f"{p}_{i}" in stamps: fill[i] = [SS(f"{p}_{i}")] + list(fill.get(i, []))
    LOOP, LAST, ENTRY, EARLY = [f"CH{tag_}_{x}" for x in ("LOOP", "LAST", "ENTRY", "EARLY")]
    tail = []
    seq = {}
    def wt(key): return lambda: e.waitlg(seq[key])
    KP, VP, QP = XT + 4, XT + 6, XT + 2
    RP, RED, AGO, T1, AP = MEMA, MEMA + 16, MEMA + 20, MEMA + 22, MEMA + 24
    preload_q(e)
    for r in range(0, 16, 2): e(f"v_mov_b64 {vr(ACA+r,2)}, 0")
    e("s_waitcnt vmcnt(0) lgkmcnt(0)")
    if cfg.get("gstamp"): e("s_memrealtime s[18:19]\ns_memtime s[16:17]")
    kv_ready(e, 1, T0, T1)
    e(f"s_mov_b32 s{S_KF}, 0")
    if cfg.get("prio"): e(f"s_setprio {cfg['prio']}")
    e(f"s_add_u32 s{S_KVG2}, s{S_KVG}, 8192\ns_mov_b32 m0, s{S_KVL}\nv_mov_b32 v{T0}, 0")
    e(f"s_branch {ENTRY}")
    def rs_ld(r):
        for i in range(4): e(f"buffer_load_dwordx4 {vr(r+4*i,4)}, v{A_RSR}, {WS}, s{S_RSR[i]} offen sc1")
    def rs_chk(r, n):
        for i in range(4):
            e(f"s_waitcnt vmcnt({n+3-i})")
            e(mf32(RED, SEL, r + 4 * i, "0" if i == 0 else RED))
            e(f"v_bitop3_b32 v{T1 if i else T0}, v{r+4*i}, v{r+4*i+2}, s{S_TAG} bitop3:0x7e")
            if i: e(f"v_or_b32 v{T0}, v{T0}, v{T1}")
        e(f"v_and_b32 v{T0}, 1, v{T0}\nv_cmp_ne_u32 vcc, 0, v{T0}")
    def ag_ld(r):
        e(f"buffer_load_dwordx4 {vr(r,4)}, v{A_AGR}, {WS}, s{S_AGR0} offen sc1")
        e(f"buffer_load_dwordx4 {vr(r+4,4)}, v{A_AGR}, {WS}, s{S_AGR0} offen offset:1024 sc1")
    def ag_chk(r, n):
        e(f"s_waitcnt vmcnt({n})")
        e(f"ds_write_b128 v{A_AGR}, {vr(r,4)}\nds_write_b128 v{A_AGR}, {vr(r+4,4)} offset:1024")
        e(f"v_max3_u32 v{T0}, v{r}, v{r+1}, v{r+2}\nv_max3_u32 v{T1}, v{r+4}, v{r+5}, v{r+6}")
        e(f"v_max3_u32 v{T0}, v{T0}, v{r+3}, v{r+7}\nv_max_u32 v{T0}, v{T0}, v{T1}\nv_cmp_eq_u32 vcc, -1, v{T0}")
    def comm(reducer, d1, d2, K, KR):
        P1, P1R, P2, P2R = [e.newlabel(x) for x in ("P1", "P1R", "P2", "P2R")]
        if not reducer:
            preload_q(e)
            e(f"s_xor_b32 s{S_TAG}, s{S_TAG}, 1")
            S("rsi"); S("rs")
        else:
            e.nop(d1)
            S("rsi")
            rsets = [RP, ACA][:KR]
            rs_ld(RP)
            preload_q(e)
            if KR > 1:
                e.nop(cfg.get("e1", 5)); rs_ld(ACA)
            rs_chk(RP, 4 * (KR - 1))
            e(f"s_cbranch_vccnz {P1R}")
            e.label(P1 + "_OK")
            S("rs")
            def p1r():
                e.label(P1R)
                for k in range(KR):
                    e(f"s_add_u32 s{S_SPIN}, s{S_SPIN}, 1\ns_cmp_gt_u32 s{S_SPIN}, {SPIN_MAX}\ns_cbranch_scc1 {P1}_OK")
                    e("s_mov_b64 exec, vcc"); rs_ld(rsets[k]); e("s_mov_b64 exec, -1")
                    rs_chk(rsets[(k + 1) % KR], 4 * (KR - 1))
                    e(f"s_cbranch_vccz {P1}_OK")
                e(f"s_branch {P1R}")
            tail.append(p1r)
            e(f"s_xor_b32 s{S_TAG}, s{S_TAG}, 1\ns_nop 1")
            for r in range(4):
                e(f"v_add_f32_dpp v{RED+r}, v{RED+r}, v{RED+r} row_ror:8 row_mask:0xf bank_mask:0xf")
            e(f"s_mov_b64 exec, s[{S_AGM}:{S_AGM+1}]")
            e(f"v_cvt_pk_bf16_f32 v{AGO}, v{RED}, v{RED+1}\nv_cvt_pk_bf16_f32 v{AGO+1}, v{RED+2}, v{RED+3}")
            e(f"s_mov_b64 exec, s[{S_AGM2}:{S_AGM2+1}]\nbuffer_store_dwordx2 {vr(AGO,2)}, v{A_AGW}, {WS}, s{S_AGW} offen{st}\ns_mov_b64 exec, -1")
        S("ags")
        if cfg.get("agbar"): e("s_barrier")
        S("agb")
        kv_ready_ool(e, tail, T0, T1)
        e.nop(d2)
        sets = [AP, ACB][:K]
        for k, r in enumerate(sets):
            if k: e.nop(cfg.get("e2", 25))
            ag_ld(r)
        ag_chk(AP, 2 * (K - 1))
        e(f"s_cbranch_vccnz {P2R}")
        e.label(P2 + "_OK")
        S("ag")
        def p2r():
            e.label(P2R)
            for k in range(K):
                e(f"s_add_u32 s{S_SPIN}, s{S_SPIN}, {16 if stamps else 1}\ns_cmp_gt_u32 s{S_SPIN}, {SPIN_MAX}\ns_cbranch_scc1 {P2}_OK")
                e("s_mov_b64 exec, vcc"); ag_ld(sets[k]); e("s_mov_b64 exec, -1")
                ag_chk(sets[(k + 1) % K], 2 * (K - 1))
                e(f"s_cbranch_vccz {P2}_OK")
            e(f"s_branch {P2R}")
        tail.append(p2r)
        if stamps:
            sk = e.newlabel("NS")
            e(f"s_waitcnt lgkmcnt(0)\ns_cmp_eq_u32 s{S_STEP}, {cfg.get('stampstep', 40)}\ns_cbranch_scc0 {sk}")
            for i in range(len(stamps)): e(f"v_writelane_b32 v{T0}, s{S_ST+2*i}, {i}")
            e(f"v_writelane_b32 v{T0}, s{S_SPIN}, 10")
            for i in range(5): e(f"s_memrealtime s[{12+4*i}:{13+4*i}]\ns_memtime s[{14+4*i}:{15+4*i}]\ns_nop 5")
            e("s_waitcnt lgkmcnt(0)")
            for i in range(5): e(f"v_writelane_b32 v{T0}, s{12+4*i}, {16+2*i}\nv_writelane_b32 v{T0}, s{14+4*i}, {17+2*i}")
            e(f"s_lshl_b32 s{S_TMP}, s{S_H}, 2\ns_add_u32 s{S_TMP}, s{S_TMP}, s{S_W}\ns_lshl_b32 s{S_TMP}, s{S_TMP}, 8\ns_add_u32 s{S_TMP}, s{S_TMP}, {WS_STAMP}")
            e(f"v_mbcnt_lo_u32_b32 v{T1}, -1, 0\nv_mbcnt_hi_u32_b32 v{T1}, -1, v{T1}\nv_lshlrev_b32 v{T1}, 2, v{T1}")
            e(f"buffer_store_dword v{T0}, v{T1}, {WS}, s{S_TMP} offen")
            e.label(sk)
        for r in range(0, 8, 2): e(f"v_mov_b64 {vr(ACA+r,2)}, 0")
        e(f"v_mov_b32 v{T0}, s{S_FLV}")
        if cfg.get("pubc"): e(f"buffer_store_dwordx4 {vr(KP,4)}, v{A_AGR}, {WS}, s{S_KVM} offen sc1")
        e("s_waitcnt lgkmcnt(0)")
    D = cfg.get("D", [[0, 60], [0, 160], [25, 40], [0, 190]])
    if cfg.get("agbar"): D = [[cfg["d1e"], cfg.get("d2e", 0)], [0, cfg.get("d2e", 0)], [cfg["d1"], cfg["d2"]], [0, cfg["d2"]]]
    KK = [cfg.get("Ke", 1), cfg.get("Ke", 1), cfg.get("K", 2), cfg.get("K", 2)]
    for w in (0, 1, 3):
        e.label(f"{LOOP}_{w}")
        comm(w == 0, D[w][0], D[w][1], KK[w], cfg.get('KRe', 1))
        e(f"s_branch {ENTRY}")
    e(".p2align 6")
    e.label(f"{LOOP}_2")
    comm(True, D[2][0], D[2][1], KK[2], cfg.get('KR', 2))
    e.label(ENTRY)
    e("s_barrier")
    S("b1")
    if cfg.get("stepst"): e("s_memrealtime s[84:85]")
    def rd_m(J, x):
        def f(): seq[("m", J)] = e(f"ds_read_b64_tr_b16 {vr(MEMA+4*J+2*x,2)}, v{A_TR} offset:{(2*(J%2)+x)*2048 + (J//2)*512}")
        return f
    qorder = [(0, 0), (0, 1), (1, 0), (1, 1), (2, 0)] + [(J, t) for J in range(3, 8) for t in range(2)] + [(2, 1)]
    def qf(J, t):
        if J < 3: return ("v", QB + 8 * (QL.index((J, t)) % 5))
        return FRAG[("q", J, t)]
    mq = [smf(ACA + 4 * t, MEMA + 4 * J, qf(J, t)) for J, t in qorder]
    def rd_w(key, r, off):
        def f(): seq[key] = e(f"ds_read_b128 {vr(r,4)}, v{A_W} offset:{off}")
        return f
    def rq(n, hf): return rd_w(("ql", n), QB + 8 * (n % 5) + 4 * hf, FRAG[("q",) + QL[n]][1] + 1024 * hf)
    flag = [f"s_mov_b64 exec, s[{S_W0M}:{S_W0M+1}]", f"buffer_store_dword v{T0}, off, {WS}, s{S_CF} sc1", "s_mov_b64 exec, -1"]
    pubk = f"buffer_store_dwordx2 {vr(KP,2)}, v{A_RSW}, {WS}, s{S_KVM} offen sc1"
    pubv = f"buffer_store_dwordx2 {vr(VP,2)}, v{A_RSW}, {WS}, s{S_KVM} offen offset:2048 sc1"
    if cfg.get("nopub"): pubk = pubv = "s_nop 0"; flag = []
    def dm(i): return "s_nop 0" if cfg.get("nodma") else f"buffer_load_dwordx4 v{A_AGR}, {WS}, s{S_KVG if i < 2 else S_KVG2} offen offset:{(i%2)*1024} sc1 lds"
    z = lambda r: f"v_mov_b64 {vr(r,2)}, 0"
    fill = {-1: [rd_m(J, x) for J in range(4) for x in range(2)] + [wt(("m", 0)), SS("m0")],
            0: [rd_m(4, 0), dm(0)], 1: [rd_m(4, 1), wt(("m", 1))], 2: [rd_m(5, 0), dm(1)], 3: [rd_m(5, 1), wt(("m", 2))],
            4: [f"s_add_u32 m0, s{S_KVL}, 8192", wt(("m", 3))],
            5: [f"s_waitcnt vmcnt({3 if cfg.get('pubc') else 2})", rd_m(6, 0)], 6: [rd_m(6, 1), wt(("m", 4))], 7: [rd_m(7, 0), dm(2)], 8: [rd_m(7, 1), wt(("m", 5))],
            9: [rq(5, 0), dm(3)], 10: [rq(5, 1), wt(("m", 6))], 11: flag, 12: [wt(("m", 7))], 13: [] if cfg.get("pubc") else [pubk], 14: [wt(("ql", 5))],
            }
    kextra = {}
    dp = cfg.get("dp", 0)
    m0b = f"s_add_u32 m0, s{S_KVL}, 8192"
    if dp:
        for g in (0, 2, 7, 9): fill[g] = fill[g][:1]
        fill[4] = fill[4][1:]
        fill[5] = ["s_waitcnt vmcnt(%d)" % (1 if dp in (1, 2) else 0), rd_m(6, 0)]
        if dp == 1:
            fill[2] += [dm(0)]; fill[7] += [dm(1)]; fill[9] += [m0b]; fill[12] = fill[12] + [dm(2)]; kextra = {5: [dm(3)]}
        if dp == 2:
            fill[2] += [dm(0)]; fill[9] += [dm(1)]; kextra = {3: [m0b], 5: [dm(2)], 11: [dm(3)]}
        if dp == 3:
            fill[7] += [dm(0)]; fill[12] = fill[12] + [dm(1)]; kextra = {3: [m0b], 6: [dm(2)], 14: [dm(3)]}
    if cfg.get("flp") == 1:
        fill[11] = []; kextra[7] = None
    pp = cfg.get("pubp", 0)
    if pp:
        pre = [rd_m(J, x) for J in range(4) for x in range(2)]
        fill[-1] = pre[:pp] + [pubk] + pre[pp:] + [wt(("m", 0)), SS("m0")]
        fill[13] = []; fill[5] = ["s_waitcnt vmcnt(3)", rd_m(6, 0)]
    fill[15] = [pubv]
    for n, g in enumerate([7, 8, 9, 10] if not cfg.get("xz") else [10, 12, 13, 14]): fill[g] = fill[g] + [z(ACB + 2 * n)]
    GS("q", fill, 16)
    interleave(e, mq, fill)
    S("q")
    mk = [smf(ACB + 4 * t, MEMA + 4 * J, FRAG[("k", J, t)]) for J in range(8) for t in range(2)]
    def post_dup(acc, dst):
        return [f"v_add_f32 v{acc}, v{acc}, v{acc+2}", f"v_add_f32 v{acc+1}, v{acc+1}, v{acc+3}",
                f"v_cvt_pk_bf16_f32 v{dst}, v{acc}, v{acc+1}"]
    pq = post_dup(ACA, QP) + post_dup(ACA + 4, QP + 1)
    def rd_q(js, t):
        def f(): seq[("q", js)] = e(f"ds_read_b64_tr_b16 {vr(QB+4*js+2*t,2)}, v{A_TR} offset:{L_QU-L_MEM + js*1024 + t*512}")
        return f
    kxslot = [0, 1, 2, 3, 4, 5, 0, 1]
    def rd_kx(n):
        js, kt = n // 2, n % 2
        def f(): seq[("kx", n)] = e(f"ds_read_b128 {vr(KXA+4*kxslot[n],4)}, v{A_KX} offset:{(kt*4+js)*1024}")
        return f
    def wr_u(key, a, r, t):
        def f(): seq[key] = e(f"ds_write2_b32 v{a}, v{r}, v{r} offset0:{128*t} offset1:{128*t+1}")
        return f
    fill = {0: pq[0:2], 1: pq[2:4], 2: [wr_u("wq0", A_UW, QP, 0)] + pq[4:6], 3: [wr_u("wq1", A_UW, QP + 1, 1)],
            4: [rd_kx(0), f"v_add_u32 v{T0}, {L_KU - L_QU}, v{A_UW}"], 5: [rd_kx(1)], 6: [rd_kx(2)], 7: [rd_kx(3)],
            8: [wt("wq1"), SS("bq0"), "s_barrier", SS("bq1")],
            9: [rd_q(0, 0), rd_q(0, 1)], 10: [rd_q(1, 0), rd_q(1, 1)], 11: [rd_kx(4)], 12: [rd_q(2, 0), rd_kx(5)], 13: [rd_q(2, 1), rd_q(3, 0)],
            14: [rd_q(3, 1)], 15: [wt(("q", 1))]}
    for g, x in kextra.items():
        if x is None: fill[g] = flag; fill[6] = fill[6] + [rd_kx(3)]
        else: fill[g] = fill[g] + x
    if cfg.get("flp") == 1: fill[4] = [rd_kx(0)]; fill[8] = fill[8]; fill[15] = fill[15]; kadd = True
    GS("k", fill, 16)
    interleave(e, mk, fill)
    S("k")
    pk = post_dup(ACB, KP) + post_dup(ACB + 4, KP + 1)
    ms = []
    for js in range(4):
        for kt in range(2):
            n = js * 2 + kt
            ms.append(mf32(ACA + 4 * kt, KXA + 4 * kxslot[n], QB + 4 * js, "0" if js == 0 else ACA + 4 * kt))
    def rd_k(js, t):
        def f(): seq[("k", js)] = e(f"ds_read_b64_tr_b16 {vr(KXA+8+4*js+2*t,2)}, v{A_TRK} offset:{L_KU-L_MEM + js*1024 + t*512}")
        return f
    fill = {0: [rd_kx(6)] + pk[0:2], 1: [rd_kx(7)] + pk[2:4] + ([f"v_add_u32 v{T0}, {L_KU - L_QU}, v{A_UW}"] if cfg.get("flp") == 1 else []),
            2: [wr_u("wk0", T0, KP, 0)] + pk[4:6], 3: [wt(("q", 3)), z(ACB), z(ACB + 2)],
            4: [wr_u("wk1", T0, KP + 1, 1), z(ACB + 4), z(ACB + 6)],
            5: [wt(("kx", 7))],
            7: [f"s_cmp_ge_u32 s{S_STEP}, 63", f"s_cbranch_scc1 {LAST}"],
            }
    GS("sx", fill, 8)
    interleave(e, ms, fill)
    S("Sx")
    mv = [smf(ACB + 4 * t, MEMA + 4 * J, FRAG[("v", J, t)]) for J in range(8) for t in range(2)]
    SM = KXA
    X0, X1 = ACA, ACA + 4
    mx, t2 = KXA + 4, KXA + 5
    e0 = XT
    NV1 = cfg.get("nv1", 10)
    msm = [mf32(SM, KXA + 8 + 4 * js, QB + 4 * js, "0" if js == 0 else SM) for js in range(4)]
    odd = f"s[{S_ODD}:{S_ODD+1}]"
    early = [f"v_max3_f32 v{mx}, v{X0}, v{X0+1}, v{X0+2}", f"v_max3_f32 v{t2}, v{X1}, v{X1+1}, v{X1+2}",
             f"v_max3_f32 v{mx}, v{mx}, v{X0+3}, v{X1+3}", f"v_max_f32 v{mx}, v{mx}, v{t2}",
             f"v_cndmask_b32 v{e0}, v{X0}, v{X0+2}, {odd}", f"v_cndmask_b32 v{e0+1}, v{X0+1}, v{X0+3}, {odd}",
             f"v_cndmask_b32 v{e0+2}, v{X1}, v{X1+2}, {odd}", f"v_cndmask_b32 v{e0+3}, v{X1+1}, v{X1+3}, {odd}"]
    seqm = mv[:NV1] + msm + mv[NV1:]
    PVB0, PVB1, OAC, PA, LB, LA = QB, QB + 8, KXA + 8, KXA + 16, KXA + 20, KXA + 4
    def rd_vx(n):
        t, hf = n // 2, n % 2
        def f(): seq["vx"] = e(f"ds_read_b64 {vr(QB+8*t+2+4*hf,2)}, v{A_VX} offset:{t*1024 + hf*512}")
        return f
    def rd_wo(T, hf):
        return rd_w(("wo", T), MEMA + 8 * (T % 4) + 4 * hf, FRAG[("o", (1, T // 2), T % 2)][1] + 1024 * hf)
    EE = [SM, SM + 1, e0, e0+1, e0+2, e0+3]
    fill = {0: [wt("wk1"), SS("bk0"), "s_barrier", SS("bk1")]}
    for n in range(8): fill[1 + n] = [rd_k(n // 2, n % 2), early[n]]
    xv = cfg.get("xv", 0)
    if xv == 2:
        fill = {1: early[0:1], 2: early[1:3], 3: early[3:5], 4: [wt("wk1"), "s_barrier"],
                5: [rd_k(0, 0), rd_k(0, 1)], 6: [rd_k(1, 0), rd_k(1, 1)], 7: [rd_k(2, 0), rd_k(2, 1)], 8: [rd_k(3, 0), rd_k(3, 1)]}
    if xv == 3:
        fill = {1: early[0:2], 2: early[2:4], 3: [wt("wk1"), "s_barrier"],
                4: [rd_k(0, 0), rd_k(0, 1)], 5: [rd_k(1, 0), rd_k(1, 1)], 6: [rd_k(2, 0)], 7: [rd_k(2, 1)], 8: [rd_k(3, 0), rd_k(3, 1)]}
    if xv == 1:
        for n in range(8): fill[1 + n] = [rd_k(n // 2, n % 2)]
        fill[7] += early[0:1]; fill[8] += early[1:2]
    FLAGPOS = flag
    fill[NV1 - 1] = [rd_wo(0, 0), wt(("k", 0)), SS("k0")] if NV1 - 1 > 8 else fill[NV1 - 1][:1] + [wt(("k", 0))] + fill[NV1 - 1][1:]
    lb = [f"v_mov_b64 {vr(LB,2)}, s[{S_LB}:{S_LB+1}]", f"v_mov_b64 {vr(LB+2,2)}, s[{S_LB}:{S_LB+1}]"]
    zz = [z(OAC), z(OAC + 2), z(OAC + 4), z(OAC + 6), f"v_mov_b32 v{PA+2}, 0"] + lb
    if xv == 1:
        fill[NV1 - 1] = fill[NV1 - 1] + early[2:3]
        fill[NV1] = [wt(("k", 1))] + early[3:5]
        fill[NV1 + 1] = [wt(("k", 2))] + early[5:7]
        fill[NV1 + 2] = [wt(("k", 3))] + early[7:8] + zz[0:1]
        fill[NV1 + 3] = [rd_vx(0)] + zz[1:3]
        zz = zz[3:]
    elif xv in (2, 3):
        rem = early[5:] if xv == 2 else early[4:]
        allv = rem + zz
        k0 = 2 if xv == 3 else 0
        fill[NV1] = [wt(("k", 1))]
        fill[NV1 + 1] = [wt(("k", 2))] + allv[0:k0]
        fill[NV1 + 2] = [wt(("k", 3))] + allv[k0:k0 + 2]
        fill[NV1 + 3] = [rd_vx(0)] + allv[k0 + 2:k0 + 4]
        zz = allv[k0 + 4:]
    else:
        fill[NV1] = [wt(("k", 1))] + zz[0:2]
        fill[NV1 + 1] = [wt(("k", 2))] + zz[2:4]
        fill[NV1 + 2] = [wt(("k", 3))] + zz[4:5]
        fill[NV1 + 3] = [rd_vx(0)] + zz[5:7]
        zz = []
    GS("v1", fill, 14)
    interleave(e, seqm[:NV1 + 4], fill)
    S("Sm")
    rest = seqm[NV1 + 4:]
    assert len(rest) == 6
    def run(x):
        for s in x: s() if callable(s) else e(s)
    run([rest[0], rd_vx(1), rd_vx(2)] + zz[0:1] + [rest[1], rd_vx(3), rd_wo(0, 1),
         f"v_max3_f32 v{mx}, v{mx}, v{SM}, v{SM+1}", f"v_mov_b32 v{t2}, v{mx}",
         rest[2], rd_wo(1, 0), rd_wo(1, 1),
         f"v_permlane32_swap_b32 v{mx}, v{t2}", f"v_max_f32 v{mx}, v{mx}, v{t2}", f"v_mov_b32 v{t2}, v{mx}",
         rest[3], rd_wo(2, 0), rd_wo(2, 1),
         f"v_permlane16_swap_b32 v{mx}, v{t2}", f"v_max_f32 v{mx}, v{mx}, v{t2}",
         rest[4], f"v_mul_f32 v{mx}, s{S_SC}, v{mx}", rest[5], rd_wo(3, 0), rd_wo(3, 1)] + zz[1:] + [
         ]
        + [f"v_fma_f32 v{x}, v{x}, s{S_SC}, -v{mx}" for x in EE] + [f"v_exp_f32 v{x}, v{x}" for x in EE]
        + [f"v_cvt_pk_bf16_f32 v{PA}, v{SM}, v{SM+1}", f"v_cvt_pk_bf16_f32 v{PA+1}, v{e0}, v{e0+1}", f"v_cvt_pk_bf16_f32 v{PA+3}, v{e0+2}, v{e0+3}",
           f"v_permlane32_swap_b32 v{PA}, v{PA+2}"])
    S("soft")
    cv = lambda t, h: f"v_cvt_pk_bf16_f32 v{QB+8*t+h}, v{ACB+4*t+2*h}, v{ACB+4*t+2*h+1}"
    run([cv(0, 0), cv(0, 1), mf32(LA, PA, LB, "0"), wt("vx"), cv(1, 0), cv(1, 1),
         f"v_smfmac_f32_16x16x64_bf16 {vr(OAC,4)}, {vr(PA,4)}, {vr(PVB0,8)}, v{IDX}", "s_nop 0",
         f"v_smfmac_f32_16x16x64_bf16 {vr(OAC+4,4)}, {vr(PA,4)}, {vr(PVB1,8)}, v{IDX}",
         ] + ([
         f"v_pk_add_f32 {vr(LA,2)}, {vr(LA,2)}, {vr(LA+2,2)}", f"v_rcp_f32 v{LA}, v{LA}", f"v_rcp_f32 v{LA+1}, v{LA+1}",
         f"v_pk_add_f32 {vr(OAC,2)}, {vr(OAC,2)}, {vr(OAC+2,2)}", f"v_pk_mul_f32 {vr(OAC,2)}, {vr(OAC,2)}, {vr(LA,2)}", "s_nop 0",
         f"v_pk_add_f32 {vr(OAC+4,2)}, {vr(OAC+4,2)}, {vr(OAC+6,2)}", f"v_cvt_pk_bf16_f32 v{OAC}, v{OAC}, v{OAC+1}",
         f"v_pk_mul_f32 {vr(OAC+4,2)}, {vr(OAC+4,2)}, {vr(LA,2)}", f"v_cvt_pk_bf16_f32 v{OAC+1}, v{OAC+4}, v{OAC+5}"] if cfg.get("usepk") else [
         f"v_add_f32 v{LA}, v{LA}, v{LA+2}", f"v_add_f32 v{LA+1}, v{LA+1}, v{LA+3}", f"v_rcp_f32 v{LA}, v{LA}", f"v_rcp_f32 v{LA+1}, v{LA+1}",
         f"v_add_f32 v{OAC}, v{OAC}, v{OAC+2}", f"v_add_f32 v{OAC+1}, v{OAC+1}, v{OAC+3}",
         f"v_mul_f32 v{OAC}, v{OAC}, v{LA}", f"v_mul_f32 v{OAC+1}, v{OAC+1}, v{LA+1}",
         f"v_add_f32 v{OAC+4}, v{OAC+4}, v{OAC+6}", f"v_add_f32 v{OAC+5}, v{OAC+5}, v{OAC+7}",
         f"v_mul_f32 v{OAC+4}, v{OAC+4}, v{LA}", f"v_mul_f32 v{OAC+5}, v{OAC+5}, v{LA+1}",
         f"v_cvt_pk_bf16_f32 v{OAC}, v{OAC}, v{OAC+1}", f"v_cvt_pk_bf16_f32 v{OAC+1}, v{OAC+4}, v{OAC+5}"]))
    WAC = [QB, QB + 4, QB + 8, QB + 12, ACA, ACA + 4, ACB, ACB + 4]
    so = e(f"ds_write_b64 v{A_UW}, {vr(OAC,2)}")
    S("ow")
    def vpost():
        for t in range(2):
            a = ACB + 4 * t
            e(f"v_pk_add_f32 {vr(a,2)}, {vr(a,2)}, {vr(a+2,2)}\nv_cvt_pk_bf16_f32 v{VP+t}, v{a}, v{a+1}")
    vpost()
    for r in range(0, 16, 2): e(z(QB + r))
    if cfg.get("xo"):
        for r in range(0, 16, 2): e(z(ACA + r))
    e.waitlg(so)
    S("bo0")
    e("s_barrier")
    S("bo1")
    OA = KXA
    for J in range(2):
        for x in range(2):
            seq[("oa", J)] = e(f"ds_read_b64_tr_b16 {vr(OA+4*J+2*x,2)}, v{A_TR} offset:{L_QU-L_MEM + (2*J+x)*1024}")
    if not cfg.get("xo"):
        for r in range(0, 16, 2): e(z(ACA + r))
    mo = []
    for p in range(4):
        for T in (2 * p, 2 * p + 1): mo.append(smf(WAC[T], OA, FRAG[("o", (0, T // 2), T % 2)]))
        for T in (2 * p, 2 * p + 1): mo.append(smf(WAC[T], OA + 4, ("v", MEMA + 8 * (T % 4))))
    RSO = OAC
    def post_pair(p):
        a, b = WAC[2 * p], WAC[2 * p + 1]; d = RSO + 2 * p
        return [f"v_add_f32 v{a}, v{a}, v{a+2}", f"v_add_f32 v{a+1}, v{a+1}, v{a+3}",
                f"v_cvt_pk_bf16_f32 v{d}, v{a}, v{a+1}", f"v_add_f32 v{b}, v{b}, v{b+2}",
                f"v_add_f32 v{b+1}, v{b+1}, v{b+3}", f"v_and_or_b32 v{d}, v{d}, -2, s{S_TAG}",
                f"v_cvt_pk_bf16_f32 v{d+1}, v{b}, v{b+1}",
                f"buffer_store_dwordx2 {vr(d,2)}, v{A_RSW}, {WS}, s{S_RSW0 if p < 2 else S_RSW1} offen offset:{(p%2)*2048}{st}"]
    p0, p1, p2, p3 = [post_pair(p) for p in range(4)]
    fill = {-1: [wt(("oa", 0)), SS("oa")], 1: [wt(("oa", 1))], 2: [rd_wo(4, 0), rd_wo(4, 1)], 3: [rd_wo(5, 0), rd_wo(5, 1)],
            4: ["s_nop 0"] + p0[0:1], 5: p0[1:3], 6: [rd_wo(6, 0), rd_wo(6, 1)] + p0[3:5], 7: [rd_wo(7, 0), rd_wo(7, 1)] + p0[5:7], 8: p0[7:8] + p1[0:1],
            9: [wt(("wo", 4))] + p1[1:3], 10: [wt(("wo", 5))] + p1[3:5], 11: p1[5:7],
            12: p1[7:8] + p2[0:1], 13: [wt(("wo", 6))] + p2[1:3], 14: [wt(("wo", 7))] + p2[3:5],
            15: p2[5:8] + p3[0:3] + ([p3[5]] + p3[3:5] + p3[6:] if not cfg.get("usepk") else [p3[5], f"v_pk_add_f32 {vr(WAC[7],2)}, {vr(WAC[7],2)}, {vr(WAC[7]+2,2)}"] + p3[6:]),
            }
    GS("wo", fill, 16)
    interleave(e, mo, fill)
    S("Wo")
    if cfg.get("stepst"):
        for k in range(12): e(f"s_cmp_eq_u32 s{S_STEP}, {k if k < 8 else 8*(k-6)}\ns_cselect_b32 s{20+k}, s84, s{20+k}")
    e.nop(cfg.get("xdelay", 0))
    e(f"v_mov_b64 {vr(AGO,2)}, -1")
    e(f"v_xor_b32 v{A_KX}, 0x3C000, v{A_KX}\nv_xor_b32 v{A_VX}, 0x3C000, v{A_VX}")
    e(f"v_add_u32 v{A_AGW}, 0x2000, v{A_AGW}\nv_subrev_u32 v{T0}, 0x6000, v{A_AGW}\nv_min_u32 v{A_AGW}, v{A_AGW}, v{T0}")
    e(f"s_add_u32 s{S_AGSLOT}, s{S_AGSLOT}, 0x2000\ns_cmp_eq_u32 s{S_AGSLOT}, 0x6000\ns_cselect_b32 s{S_AGSLOT}, 0, s{S_AGSLOT}")
    e(f"s_add_u32 s{S_AGR0}, s{S_AGSLOT}, {WS_AG - L_MEM}")
    e(f"s_add_u32 s{S_KVG}, s{S_KVG}, 0x80000\ns_xor_b32 s{S_KVL}, s{S_KVL}, 0x3C000\ns_add_u32 s{S_KVM}, s{S_KVM}, 0x40000")
    e(f"s_add_u32 s{S_KVG2}, s{S_KVG}, 8192\ns_mov_b32 m0, s{S_KVL}\ns_mov_b32 s{S_FLV}, s{S_STEP}")
    if cfg.get("peek"): kv_fold(e)
    e(f"s_add_u32 s{S_STEP}, s{S_STEP}, 1\ns_mov_b32 s{S_SPIN}, 0")
    if cfg.get("peek"): kv_peek(e)
    for w in (2, 0, 1): e(f"s_cmp_eq_u32 s{S_W}, {w}\ns_cbranch_scc1 {LOOP}_{w}")
    e(f"s_branch {LOOP}_3")
    for t in tail: t()
    e.label(LAST)
    e(f"s_add_u32 s{S_KVM}, s{S_KVM}, 0x40000")
    e(pubk)
    for m in mv: e(m)
    e.nop(8)
    vpost()
    e(pubv)
    e("s_waitcnt vmcnt(0) lgkmcnt(0)\ns_barrier")
    e(f"v_mov_b32 v{T0}, 64\ns_mov_b64 exec, s[{S_W0M}:{S_W0M+1}]")
    e(f"buffer_store_dword v{T0}, off, {WS}, s{S_CF} sc1")
    if cfg.get("gstamp"):
        e(f"s_memrealtime s[84:85]\ns_memtime s[86:87]\ns_waitcnt lgkmcnt(0)\ns_sub_u32 s86, s86, s16\nv_mov_b32 v24, s86\nv_mov_b32 v20, s3\nv_mov_b32 v21, s18\nv_mov_b32 v22, s84\nv_mov_b32 v23, s69")
        e(f"s_lshl_b32 s{S_TMP}, s{S_H}, 4\ns_add_u32 s{S_TMP}, s{S_TMP}, {WS_STAMP + 0x10000}")
        if cfg.get("stepst"):
            for k in range(12): e(f"v_mov_b32 v{30+k}, s{20+k}")
            e(f"s_lshl_b32 s{S_TMP2}, s{S_H}, 6\ns_add_u32 s{S_TMP2}, s{S_TMP2}, {WS_STAMP + 0x11000}")
            for k in range(3): e(f"buffer_store_dwordx4 v[{30+4*k}:{33+4*k}], off, {WS}, s{S_TMP2} offset:{16*k}")
        e(f"buffer_store_dwordx4 v[20:23], off, {WS}, s{S_TMP}\nbuffer_store_dword v24, off, {WS}, s{S_TMP} offset:1024")
    if cfg.get("dbgt"):
        for k, r in enumerate(("s69", "s18", "s84")):
            e(f"s_sub_u32 s{S_TMP}, {r}, s3\nv_mov_b32 v20, s{S_TMP}\nv_mov_b32 v21, {8 + 4*k}\nglobal_atomic_umax v21, v20, s[{S_DBG}:{S_DBG+1}]")
        e(f"v_mov_b32 v20, s86\nv_mov_b32 v21, 24\nglobal_atomic_umax v21, v20, s[{S_DBG}:{S_DBG+1}]")
    e("s_branch KEND")
```

```python
from asmlib import Em, vr
from layout import *

S_Q, S_K, S_V, S_SH, S_SSMK, S_SSMD, S_MEM0 = 4, 6, 8, 10, 12, 14, 16
S_WQ, S_WK, S_WV, S_WO, S_GATE, S_OUT, S_DBG, S_WS = 20, 22, 24, 26, 28, 30, 32, 34
R_WS, R_T, R_T2 = 36, 40, 44
S_W, S_XCC, S_GRP, S_H = 48, 49, 50, 51
S_W0M = 76
NINIT = 28
SPIN_MAX = 1 << 15
DBGC = False

def srd(e, r, p, size):
    e(f"s_mov_b32 s{r}, s{p}\ns_mov_b32 s{r+1}, s{p+1}\ns_mov_b32 s{r+2}, {size}\ns_mov_b32 s{r+3}, 0x20000")

def lane_consts(e, c, g, lane="v0"):
    e(f"v_and_b32 {c}, 15, {lane}\nv_lshrrev_b32 {g}, 4, {lane}")

def emit_UB(e, dst, c, b, t):
    e(f"v_lshrrev_b32 {t}, 1, {b}")
    e(f"v_lshl_add_u32 {t}, {t}, 3, {c}")
    e(f"v_and_b32 {t}, 15, {t}")
    e(f"v_lshl_add_u32 {t}, {b}, 4, {t}")
    e(f"v_lshlrev_b32 {dst}, 3, {t}")

IDX, A_RSR, A_AGW, A_AGR, A_TR, A_TRK, A_UW, A_W, A_KX, A_VX, T0, A_RSW, SEL = 0, 1, 2, 3, 4, 5, 6, 7, 8, 9, 10, 11, 12
MEMA, QB, KXA, XT, ACA, ACB = 16, 48, 64, 88, 96, 104
WV0 = 112
S_STEP, S_RSW0, S_RSW1, S_RSR0, S_RSR1, S_AGW, S_AGRST, S_AGR0, S_AGR1 = 52, 53, 54, 55, 56, 57, 58, 59, 60
S_KVG, S_KVL, S_KVM, S_READY, S_SPIN, S_AGSLOT, S_TMP, S_TMP2 = 61, 62, 63, 64, 65, 66, 67, 68
S_M0, S_M1, S_M2 = 70, 72, 74
S_AGM = 72
S_ODD = 78
S_SC = 80
S_CF = 81
S_MODE = 82
S_TAG = 83
S_KVG2, S_FLV = 10, 11
S_XG0, S_XL0 = 96, 97
S_KFO = 58
S_RSR = [55, 56, 4, 5]
S_EM, S_LM, S_LB = 4, 6, 8
S_AGM2 = 74
S_ST = 84

BLOCKS = [("q", J) for J in range(3, 8)] + [("k", J) for J in range(8)] + [("v", J) for J in range(8)] \
       + [("o", (0, p)) for p in range(4)] + [("q", 0), ("q", 1), ("q", 2)] + [("o", (1, p)) for p in range(4)]
NREG = 25
def frag_reg(i):
    if i < 32: return ("a", 8 * i)
    return ("v", WV0 + 8 * (i - 32))
FRAG = {}
for n, (m, J) in enumerate(BLOCKS):
    for t in range(2):
        if n < NREG: FRAG[(m, J, t)] = frag_reg(2 * n + t)
        else: FRAG[(m, J, t)] = ("lds", (n - NREG) * 4096 + t * 2048)
def slot_addr(n):
    s = n % 10
    wl = {5: 0, 6: 1, 7: 2, 8: 3, 9: 4, 0: 5, 1: 6}
    return ("wl", wl[s]) if s in wl else ("ot", s - 2)

def wait_init(e, tag, vt):
    l = e.newlabel("WI"); d = e.newlabel("WID")
    e(f"s_mov_b32 s{S_SPIN}, 0")
    e(f"v_mbcnt_lo_u32_b32 v{vt+1}, -1, 0\nv_mbcnt_hi_u32_b32 v{vt+1}, -1, v{vt+1}\nv_lshlrev_b32 v{vt+1}, 2, v{vt+1}")
    e.label(l)
    e(f"global_load_dword v{vt}, v{vt+1}, s[{S_DBG}:{S_DBG+1}] sc1")
    e(f"s_add_u32 s{S_SPIN}, s{S_SPIN}, 1")
    e("s_waitcnt vmcnt(0)")
    e(f"v_readlane_b32 s{S_TMP}, v{vt}, {DBG_INIT//4}")
    e(f"s_cmp_ge_u32 s{S_TMP}, {NINIT}\ns_cbranch_scc1 {d}")
    e("s_sleep 16")
    e(f"s_cmp_lt_u32 s{S_SPIN}, {SPIN_MAX}\ns_cbranch_scc1 {l}")
    e.label(d)

def kv_poll(e, va, vb, done):
    l = e.newlabel("KR")
    e(f"s_mov_b32 s{S_SPIN}, 0")
    e(f"v_mbcnt_lo_u32_b32 v{vb}, -1, 0\nv_mbcnt_hi_u32_b32 v{vb}, -1, v{vb}\nv_lshlrev_b32 v{vb}, 2, v{vb}")
    e.label(l)
    if DBGC: e(f"s_lshl_b32 s{S_TMP}, 1, s{S_STEP}\ns_or_b32 s60, s60, s{S_TMP}\ns_add_u32 s57, s57, 0")
    e(f"s_lshl_b32 s{S_TMP}, s{S_H}, 8")
    e(f"buffer_load_dword v{va}, v{vb}, s[{R_WS}:{R_WS+3}], s{S_TMP} offen sc1")
    e(f"s_add_u32 s{S_SPIN}, s{S_SPIN}, 1")
    e("s_waitcnt vmcnt(0)")
    e(f"v_cmp_eq_u32 vcc, 0, v{va}\ns_ff1_i32_b64 s{S_READY}, vcc")
    e(f"s_cmp_gt_u32 s{S_READY}, s{S_TMP2}\ns_cbranch_scc1 {done}")
    e("s_sleep 16")
    e(f"s_cmp_lt_u32 s{S_SPIN}, {SPIN_MAX}\ns_cbranch_scc1 {l}")
    e(f"s_branch {done}")

def kv_ready(e, delta, va, vb):
    d = e.newlabel("KRD")
    e(f"s_add_u32 s{S_TMP2}, s{S_STEP}, {delta}\ns_cmp_gt_u32 s{S_READY}, s{S_TMP2}\ns_cbranch_scc1 {d}")
    kv_poll(e, va, vb, d)
    e.label(d)

def kv_dma(e, g=None, l=None):
    out = []
    for i in range(4):
        pre = [f"s_add_u32 m0, s{l or S_KVL}, {(i//2)*8192}", f"s_add_u32 s{S_TMP}, s{g or S_KVG}, {(i//2)*8192}"]
        out.append(pre + [f"buffer_load_dwordx4 v{A_AGR}, s[{R_WS}:{R_WS+3}], s{S_TMP} offen offset:{(i%2)*1024} sc1 lds"])
    return out

def chain_prologue(e, cfg={}):
    e("; ---- chain prologue")
    if cfg.get("prost") == 2: e("s_memrealtime s[92:93]")
    lane_consts(e, "v16", "v17")
    e("v_and_b32 v18, 3, v0\nv_lshrrev_b32 v19, 2, v0")
    e(f"s_lshl_b32 s{S_TMP}, s{S_H}, 8\ns_lshl_b32 s{S_TMP2}, s{S_W}, 6\ns_add_u32 s{S_TMP}, s{S_TMP}, s{S_TMP2}")
    e(f"v_lshlrev_b32 v20, 13, v19\nv_lshl_add_u32 v20, v18, 4, v20\nv_add_u32 v20, s{S_TMP}, v20")
    e(f"s_lshl_b32 s{S_TMP}, s{S_H}, 17\ns_lshl_b32 s{S_TMP2}, s{S_W}, 8\ns_add_u32 s{S_TMP}, s{S_TMP}, s{S_TMP2}")
    e(f"v_lshlrev_b32 v21, 10, v19\nv_lshl_add_u32 v21, v18, 4, v21\nv_add_u32 v21, s{S_TMP}, v21")
    e("v_and_b32 v22, 1, v17\nv_lshlrev_b32 v22, 5, v22")
    e("v_lshrrev_b32 v23, 1, v17\nv_lshl_add_u32 v22, v23, 2, v22")
    e("v_lshrrev_b32 v23, 3, v16\nv_lshl_add_u32 v22, v23, 4, v22")
    e("v_bfe_u32 v23, v16, 2, 1\nv_add_u32 v22, v22, v23")
    e("v_lshlrev_b32 v22, 6, v22\nv_lshl_add_u32 v22, v18, 3, v22")
    e(f"s_mul_i32 s{S_KVL}, s{S_W}, 28672")
    e(f"s_mul_i32 s{S_KVG}, s{S_W}, 12288\ns_add_u32 s{S_KVG}, s{S_KVG}, {L_KVB}")
    e(f"v_add_u32 v24, s{S_KVL}, v22\nv_add_u32 v25, s{S_KVG}, v22")
    e(f"v_lshl_add_u32 v{A_W}, v0, 4, s{S_KVL}")
    RW = {"q": R_T, "k": R_T2, "v": 84, "o": 88}
    for m, p in (("q", S_WQ), ("k", S_WK), ("v", S_WV), ("o", S_WO)): srd(e, RW[m], p, 0x400000)
    def issue(n):
        m, J = BLOCKS[n]
        kind, k = slot_addr(n)
        base = S_KVL if kind == "wl" else S_KVG
        for i in range(4):
            e(f"s_add_u32 m0, s{base}, {k*4096 + i*1024}")
            if m == "o":
                so = (64 * J[0] + 16 * i) * 1024 + J[1] * 64
                e(f"s_mov_b32 s{S_TMP}, {so}")
                e(f"buffer_load_dwordx4 v21, s[{RW[m]}:{RW[m]+3}], s{S_TMP} offen lds")
            else:
                so = (64 * J + 16 * i) * 8192
                e(f"s_mov_b32 s{S_TMP}, {so}")
                e(f"buffer_load_dwordx4 v20, s[{RW[m]}:{RW[m]+3}], s{S_TMP} offen lds")
    def consume(n, outstanding):
        m, J = BLOCKS[n]
        kind, k = slot_addr(n)
        e(f"s_waitcnt vmcnt({outstanding})")
        av = "v24" if kind == "wl" else "v25"
        for t in range(2):
            f = FRAG[(m, J, t)]
            for mm in range(4):
                off = k * 4096 + (8 * (mm // 2) + 2 * (mm % 2)) * 64 + t * 32
                if f[0] == "lds": dst = vr(32 + 8 * t + 2 * mm, 2)
                else: dst = vr(f[1] + 2 * mm, 2, f[0])
                e(f"ds_read_b64_tr_b16 {dst}, {av} offset:{off}")
        e("s_waitcnt lgkmcnt(0)")
        if n >= NREG:
            for t in range(2):
                for hf in range(2):
                    e(f"ds_write_b128 v{A_W}, {vr(32+8*t+4*hf,4)} offset:{k*4096 + t*2048 + hf*1024}")
            e("s_waitcnt lgkmcnt(0)")
    N = len(BLOCKS)
    if cfg.get("tlbw"):
        e(f"v_lshlrev_b32 v26, 16, v0\ns_lshl_b32 s{S_TMP}, s{S_H}, 11\nv_add_u32 v26, s{S_TMP}, v26")
        for m in "qkvo": e(f"buffer_load_dword v27, v26, s[{RW[m]}:{RW[m]+3}], 0 offen")
        if cfg["tlbw"] == 2: e("s_waitcnt vmcnt(0)")
    DEP = 4
    srd(e, 92, S_MEM0, 8192)
    e(f"s_lshl_b32 s{S_TMP}, s{S_W}, 8")
    e(f"v_lshlrev_b32 v26, 11, v17\nv_lshl_add_u32 v26, v16, 1, v26\nv_add_u32 v26, s{S_TMP}, v26")
    mem0_ld = []
    for u in range(4):
        mem0_ld += [f"buffer_load_ushort v{48+2*u}, v26, s[92:95], 0 offen offset:{u*64}", f"buffer_load_ushort v{49+2*u}, v26, s[92:95], 0 offen offset:{u*64+32}",
                    f"buffer_load_ushort v{56+2*u}, v26, s[92:95], 0 offen offset:{u*64+1024}", f"buffer_load_ushort v{57+2*u}, v26, s[92:95], 0 offen offset:{u*64+32+1024}"]
    for n in range(DEP):
        if cfg.get("prost") == 2 and n == 1: e("s_memrealtime s[94:95]")
        issue(n)
    if cfg.get("prost") == 2: e("s_memrealtime s[96:97]")
    for x in mem0_ld: e(x)
    e(f"v_and_b32 v26, 2, v0\nv_cmp_eq_u32 vcc, 2, v26\nv_mov_b32 v27, 0x44444444\nv_mov_b32 v28, 0xeeeeeeee")
    e(f"s_mov_b64 s[{S_ODD}:{S_ODD+1}], vcc")
    e(f"v_cndmask_b32 v29, v27, v28, vcc")
    for r in range(4):
        e(f"v_mov_b32 v{SEL+r}, 0")
    e("v_mov_b32 v27, 0x3f80\nv_mov_b32 v28, 0x3f800000")
    for j in range(8):
        e(f"v_cmp_eq_u32 vcc, {j}, v16\ns_nop 1\nv_cndmask_b32 v{SEL+j//2}, v{SEL+j//2}, v{27+(j%2)}, vcc")
    e(f"s_and_b32 s{S_TMP}, s{S_W}, 2\ns_lshl_b32 s{S_TMP}, s{S_TMP}, 11\ns_lshl_b32 s{S_TMP2}, s{S_H}, 7\ns_add_u32 s{S_TMP}, s{S_TMP}, s{S_TMP2}")
    e(f"v_lshrrev_b32 v26, 3, v0\nv_and_b32 v27, 7, v0\nv_lshlrev_b32 v{A_RSR}, 13, v26\nv_lshl_add_u32 v{A_RSR}, v27, 4, v{A_RSR}\nv_add_u32 v{A_RSR}, s{S_TMP}, v{A_RSR}")
    e(f"s_lshl_b32 s{S_TMP2}, s{S_W}, 9\nv_lshl_add_u32 v{A_RSW}, v0, 3, s{S_TMP2}")
    e(f"v_and_b32 v26, 1, v17\nv_lshl_add_u32 v26, v27, 1, v26\ns_and_b32 s{S_TMP2}, s{S_H}, 3\nv_mov_b32 v27, s{S_TMP2}")
    emit_UB(e, f"v{A_AGW}", "v26", "v27", "v28")
    e(f"s_and_b32 s{S_TMP}, s{S_TMP}, 0xfffffe00\nv_add_u32 v{A_AGW}, s{S_TMP}, v{A_AGW}")
    e(f"s_mov_b32 s{S_AGM}, 0x00FF00FF\ns_mov_b32 s{S_AGM+1}, 0\ns_mov_b32 s{S_AGM2}, -1\ns_mov_b32 s{S_AGM2+1}, 0")
    e(f"v_bfe_u32 v26, v0, 3, 1\nv_lshl_add_u32 v{A_AGW}, v26, 14, v{A_AGW}")
    e(f"s_lshl_b32 s{S_TMP}, s{S_W}, 11\ns_add_u32 s{S_TMP}, s{S_TMP}, {L_MEM}")
    e(f"v_lshl_add_u32 v{A_AGR}, v0, 4, s{S_TMP}")
    e(f"s_lshl_b32 s{S_TMP}, s{S_W}, 10\ns_add_u32 s{S_TMP}, s{S_TMP}, {L_QU}")
    emit_UB(e, f"v{A_UW}", "v16", "v17", "v28")
    e(f"v_add_u32 v{A_UW}, s{S_TMP}, v{A_UW}")
    e("v_lshrrev_b32 v26, 2, v16\nv_lshl_add_u32 v26, v17, 2, v26")
    emit_UB(e, f"v{A_TR}", "v26", "v18", "v28")
    e(f"v_add_u32 v{A_TR}, {L_MEM}, v{A_TR}")
    e("v_and_b32 v27, 1, v18\nv_lshlrev_b32 v27, 1, v27\nv_lshrrev_b32 v28, 1, v18\nv_or_b32 v27, v27, v28")
    emit_UB(e, f"v{A_TRK}", "v26", "v27", "v28")
    e(f"v_add_u32 v{A_TRK}, {L_MEM}, v{A_TRK}")
    e(f"v_lshlrev_b32 v{A_KX}, 4, v0\nv_add_u32 v{A_KX}, {L_KVB}, v{A_KX}")
    e(f"v_lshrrev_b32 v26, 1, v17\nv_lshl_add_u32 v26, v26, 4, v16\nv_lshlrev_b32 v26, 4, v26\nv_and_b32 v27, 1, v17\nv_lshl_add_u32 v26, v27, 3, v26")
    e(f"s_lshl_b32 s{S_TMP}, s{S_W}, 11\ns_add_u32 s{S_TMP}, s{S_TMP}, {L_KVB + 8192}\nv_add_u32 v{A_VX}, s{S_TMP}, v26")
    e(f"v_lshlrev_b32 v65, 2, v0\ns_mov_b32 s{S_STEP}, 0\ns_mov_b32 s{S_READY}, 0\ns_mov_b32 s{S_MODE}, 0")
    WSR = f"s[{R_WS}:{R_WS+3}]"
    order = [("B", n) for n in range(DEP) for _ in range(4)] + [("M", 0)] * 16
    def after(kind, n):
        last = max(i for i, x in enumerate(order) if x == (kind, n))
        return min(len(order) - 1 - last, 63)
    for n in range(N):
        consume(n, after("B", n))
        if n + DEP < N:
            issue(n + DEP); order += [("B", n + DEP)] * 4
        if n == 16:
            e(f"global_load_dword v64, v65, s[{S_DBG}:{S_DBG+1}] sc1"); order.append(("D", 0))
        if n == 23:
            e(f"v_readlane_b32 s{S_TMP}, v64, {DBG_INIT//4}\nv_readlane_b32 s{S_MODE}, v64, {DBG_XCC(0)//4}\nv_mov_b32 v66, 0")
            e(f"s_cmp_ge_u32 s{S_TMP}, {NINIT}\ns_cselect_b32 s{S_MODE}, s{S_MODE}, 0\ns_cselect_b64 exec, -1, 0\ns_lshl_b32 s{S_TMP}, s{S_H}, 8")
            e(f"buffer_load_dword v66, v65, {WSR}, s{S_TMP} offen sc1\ns_mov_b64 exec, -1"); order.append(("F", 0))
        if n == 28:
            e("s_barrier")
            e(f"v_cmp_eq_u32 vcc, 0, v66\ns_ff1_i32_b64 s{S_READY}, vcc")
            e(f"s_lshl_b32 s{S_TMP}, s{S_H}, 14\ns_add_u32 s{S_XG0}, s{S_TMP}, {WS_KV - L_MEM}\ns_lshl_b32 s{S_TMP}, s{S_W}, 11\ns_add_u32 s{S_XL0}, s{S_TMP}, {L_KVB}")
            e(f"s_cmp_gt_u32 s{S_READY}, 0\ns_cselect_b64 exec, -1, 0")
            for grp in kv_dma(e, S_XG0, S_XL0):
                for x in grp: e(x)
            e("s_mov_b64 exec, -1"); order += [("K", 0)] * 4
            for r in range(8): e(f"v_lshl_or_b32 v{48+r}, v{56+r}, 16, v{48+r}")
            e(f"s_lshl_b32 s{S_TMP}, s{S_W}, 9\ns_add_u32 s{S_TMP}, s{S_TMP}, {L_QU - L_MEM}\nv_subrev_u32 v27, s{S_TMP}, v{A_UW}")
            for u in range(4): e(f"ds_write_b64 v27, {vr(48+2*u,2)} offset:{u*2048}")
    if cfg.get("gstamp"): e("s_memrealtime s[18:19]\ns_waitcnt lgkmcnt(0)\ns_mov_b32 s69, s18")
    e(f"v_mov_b32 v{IDX}, v29")
    e(f"s_lshl_b32 s{S_TMP}, s{S_H}, 13")
    e(f"s_add_u32 s{S_RSW0}, s{S_TMP}, {WS_RS}\ns_add_u32 s{S_RSW1}, s{S_RSW0}, 4096")
    for i in range(4): e(f"s_mov_b32 s{S_RSR[i]}, {WS_RS + 0x10000 * i}")
    e(f"s_mov_b32 s{S_AGSLOT}, 0\ns_mov_b32 s{S_AGW}, {WS_AG}\ns_mov_b32 s{S_TAG}, 0")
    e(f"s_mov_b32 s{S_KVG}, s{S_XG0}\ns_mov_b32 s{S_KVL}, s{S_XL0}")
    e(f"s_lshl_b32 s{S_TMP}, s{S_H}, 13\ns_add_u32 s{S_KVM}, s{S_TMP}, {WS_KVM - 0x40000}")
    e(f"s_mov_b32 s{S_LB}, 0x3f003f00\ns_mov_b32 s{S_LB+1}, 0x3f803f80")
    e(f"s_lshl_b32 s{S_CF}, s{S_H}, 7\ns_add_u32 s{S_CF}, s{S_CF}, {FL_CFLAG}")
    e(f"s_mov_b32 s{S_SC}, 0x3e0293ee")
    e(f"s_lshl_b32 s{S_KFO}, s{S_H}, 8\ns_add_u32 s{S_KFO}, s{S_KFO}, 4")
    e(f"s_cmp_ge_u32 s{S_MODE}, 32\ns_cbranch_scc1 MODE_D")
    wait_init(e, "c", 32)
    e(f"s_mov_b32 s{S_SPIN}, 0")
    e.label("MODE_L")
    e(f"v_readlane_b32 s{S_MODE}, v32, {DBG_XCC(0)//4}\ns_cmp_ge_u32 s{S_MODE}, 32\ns_cbranch_scc1 MODE_D\ns_mov_b32 s{S_TMP2}, 0")
    for x in range(8):
        e(f"v_readlane_b32 s{S_TMP}, v32, {DBG_XCC(x)//4}\ns_add_u32 s{S_TMP2}, s{S_TMP2}, s{S_TMP}")
    e(f"s_cmp_ge_u32 s{S_TMP2}, 256\ns_cbranch_scc1 MODE_D\ns_sleep 16")
    e(f"global_load_dword v32, v33, s[{S_DBG}:{S_DBG+1}] sc1\ns_add_u32 s{S_SPIN}, s{S_SPIN}, 1\ns_waitcnt vmcnt(0)\ns_cmp_lt_u32 s{S_SPIN}, {SPIN_MAX}\ns_cbranch_scc1 MODE_L")
    e.label("MODE_D")
    e(f"s_cmp_gt_u32 s{S_READY}, 0\ns_cbranch_scc1 KV0_D")
    kv_ready(e, 0, 32, 33)
    for grp in kv_dma(e):
        for s in grp: e(s)
    e.label("KV0_D")
    e(f"s_add_u32 s{S_KVG}, s{S_KVG}, 0x80000\ns_xor_b32 s{S_KVL}, s{S_KVL}, 0x3C000")

def interleave(e, mf, fill):
    def run(x):
        for s in x:
            if callable(s): s()
            else: e(s)
    run(fill.get(-1, []))
    for i, m in enumerate(mf):
        if callable(m): m()
        else: e(m)
        run(fill.get(i, []))

def smf(acc, a, f):
    return f"v_smfmac_f32_16x16x64_bf16 {vr(acc,4)}, {vr(a,4)}, {vr(f[1],8,f[0])}, v{IDX}"
def mf32(d, a, b, c):
    return f"v_mfma_f32_16x16x32_bf16 {vr(d,4)}, {vr(a,4)}, {vr(b,4)}, {c if c == '0' else vr(c,4)}"

NPRE = 5
QL = [(0, 0), (0, 1), (1, 0), (1, 1), (2, 0), (2, 1)]
def rd_ql(e, n, r):
    off = FRAG[("q",) + QL[n]][1]
    e(f"ds_read_b128 {vr(r,4)}, v{A_W} offset:{off}")
    return e(f"ds_read_b128 {vr(r+4,4)}, v{A_W} offset:{off+1024}")
def preload_q(e):
    for n in range(NPRE): rd_ql(e, n, QB + 8 * n)

S_KF = 12
def kv_peek(e):
    e(f"s_min_u32 s{S_TMP}, s{S_STEP}, 59\ns_lshl_b32 s{S_TMP}, s{S_TMP}, 2\ns_add_u32 s{S_TMP}, s{S_TMP}, s{S_KFO}")
    e(f"s_load_dwordx4 s[{S_KF}:{S_KF+3}], s[{S_WS}:{S_WS+1}], s{S_TMP} glc")
def kv_fold(e):
    e(f"s_and_b32 s{S_KF}, s{S_KF}, s{S_KF+1}\ns_and_b32 s{S_KF+2}, s{S_KF+2}, s{S_KF+3}\ns_and_b32 s{S_KF}, s{S_KF}, s{S_KF+2}")
    e(f"s_add_u32 s{S_TMP}, s{S_STEP}, 5\ns_cmp_ge_u32 s{S_STEP}, 59\ns_cselect_b32 s{S_TMP}, -1, s{S_TMP}")
    e(f"s_cmp_eq_u32 s{S_KF}, 1\ns_cselect_b32 s{S_TMP}, s{S_TMP}, 0\ns_max_u32 s{S_READY}, s{S_READY}, s{S_TMP}")

def kv_ready_ool(e, tail, va, vb):
    d = e.newlabel("KRD"); sl = e.newlabel("KRS")
    e(f"s_add_u32 s{S_TMP2}, s{S_STEP}, 1")
    e(f"s_cmp_le_u32 s{S_READY}, s{S_TMP2}\ns_cbranch_scc1 {sl}")
    e.label(d)
    def slow():
        e.label(sl)
        kv_poll(e, va, vb, d)
    tail.append(slow)

def chain_loop(e, fast, cfg):
    st = "" if fast else " sc1"
    tag_ = "F" if fast else "S"
    WS = f"s[{R_WS}:{R_WS+3}]"
    stamps = cfg.get("stamps", [])
    def S(name):
        if name in stamps:
            i = stamps.index(name); e(f"s_memtime s[{S_ST+2*i}:{S_ST+2*i+1}]")
    def SS(name): return lambda: S(name)
    def GS(p, fill, n):
        for i in range(n):
            if f"{p}_{i}" in stamps: fill[i] = [SS(f"{p}_{i}")] + list(fill.get(i, []))
    LOOP, LAST, ENTRY, EARLY = [f"CH{tag_}_{x}" for x in ("LOOP", "LAST", "ENTRY", "EARLY")]
    tail = []
    seq = {}
    def wt(key): return lambda: e.waitlg(seq[key])
    KP, VP, QP = XT + 4, XT + 6, XT + 2
    RP, RED, AGO, T1, AP = MEMA, MEMA + 16, MEMA + 20, MEMA + 22, MEMA + 24
    preload_q(e)
    for r in range(0, 16, 2): e(f"v_mov_b64 {vr(ACA+r,2)}, 0")
    e("s_waitcnt vmcnt(0) lgkmcnt(0)")
    if cfg.get("gstamp"): e("s_memrealtime s[18:19]\ns_memtime s[16:17]")
    kv_ready(e, 1, T0, T1)
    e(f"s_mov_b32 s{S_KF}, 0\ns_mov_b32 s60, 0")
    if cfg.get("prio"): e(f"s_setprio {cfg['prio']}")
    e(f"s_add_u32 s{S_KVG2}, s{S_KVG}, 8192\ns_mov_b32 m0, s{S_KVL}\nv_mov_b32 v{T0}, 0")
    e(f"s_branch {ENTRY}")
    def rs_ld(r):
        for i in range(4): e(f"buffer_load_dwordx4 {vr(r+4*i,4)}, v{A_RSR}, {WS}, s{S_RSR[i]} offen sc1")
    def rs_chk(r, n):
        for i in range(4):
            e(f"s_waitcnt vmcnt({n+3-i})")
            e(mf32(RED, SEL, r + 4 * i, "0" if i == 0 else RED))
            e(f"v_bitop3_b32 v{T1 if i else T0}, v{r+4*i}, v{r+4*i+2}, s{S_TAG} bitop3:0x7e")
            if i: e(f"v_or_b32 v{T0}, v{T0}, v{T1}")
        e(f"v_and_b32 v{T0}, 1, v{T0}\nv_cmp_ne_u32 vcc, 0, v{T0}")
    def ag_ld(r):
        e(f"buffer_load_dwordx4 {vr(r,4)}, v{A_AGR}, {WS}, s{S_AGR0} offen sc1")
        e(f"buffer_load_dwordx4 {vr(r+4,4)}, v{A_AGR}, {WS}, s{S_AGR0} offen offset:1024 sc1")
    def ag_chk(r, n):
        T1 = MEMA + 15
        e(f"s_waitcnt vmcnt({n})")
        e(f"ds_write_b128 v{A_AGR}, {vr(r,4)}\nds_write_b128 v{A_AGR}, {vr(r+4,4)} offset:1024")
        e(f"v_max3_u32 v{T0}, v{r}, v{r+1}, v{r+2}\nv_max3_u32 v{T1}, v{r+4}, v{r+5}, v{r+6}")
        e(f"v_max3_u32 v{T0}, v{T0}, v{r+3}, v{r+7}\nv_max_u32 v{T0}, v{T0}, v{T1}\nv_cmp_eq_u32 vcc, -1, v{T0}")
    def advance():
        e(f"v_mov_b64 {vr(AGO,2)}, -1")
        e(f"v_xor_b32 v{A_KX}, 0x3C000, v{A_KX}\nv_xor_b32 v{A_VX}, 0x3C000, v{A_VX}")
        e(f"v_add_u32 v{A_AGW}, 0x2000, v{A_AGW}\nv_subrev_u32 v{T0}, 0x6000, v{A_AGW}\nv_min_u32 v{A_AGW}, v{A_AGW}, v{T0}")
        e(f"s_add_u32 s{S_AGSLOT}, s{S_AGSLOT}, 0x2000\ns_cmp_eq_u32 s{S_AGSLOT}, 0x6000\ns_cselect_b32 s{S_AGSLOT}, 0, s{S_AGSLOT}")
        e(f"s_add_u32 s{S_AGR0}, s{S_AGSLOT}, {WS_AG - L_MEM}")
        e(f"s_add_u32 s{S_KVG}, s{S_KVG}, 0x80000\ns_xor_b32 s{S_KVL}, s{S_KVL}, 0x3C000\ns_add_u32 s{S_KVM}, s{S_KVM}, 0x40000")
        e(f"s_add_u32 s{S_KVG2}, s{S_KVG}, 8192\ns_mov_b32 m0, s{S_KVL}\ns_mov_b32 s{S_FLV}, s{S_STEP}")
        if cfg.get("peek"): kv_fold(e)
        e(f"s_add_u32 s{S_STEP}, s{S_STEP}, 1\ns_mov_b32 s{S_SPIN}, 0")
        if cfg.get("peek"): kv_peek(e)
    def comm(reducer, d1, d2, K, KR):
        P1, P1R, P2, P2R = [e.newlabel(x) for x in ("P1", "P1R", "P2", "P2R")]
        if not reducer:
            advance()
            preload_q(e)
            e(f"s_xor_b32 s{S_TAG}, s{S_TAG}, 1")
            S("rsi"); S("rs")
        else:
            e.nop(d1)
            S("rsi")
            rsets = [RP, ACA][:KR]
            rs_ld(RP)
            advance()
            preload_q(e)
            if KR > 1:
                e.nop(cfg.get("e1", 5)); rs_ld(ACA)
            rs_chk(RP, 4 * (KR - 1))
            e(f"s_cbranch_vccnz {P1R}")
            e.label(P1 + "_OK")
            S("rs")
            def p1r():
                e.label(P1R)
                for k in range(KR):
                    e(f"s_add_u32 s{S_SPIN}, s{S_SPIN}, 1\ns_cmp_gt_u32 s{S_SPIN}, {SPIN_MAX}\ns_cbranch_scc1 {P1}_OK")
                    e("s_mov_b64 exec, vcc"); rs_ld(rsets[k]); e("s_mov_b64 exec, -1")
                    rs_chk(rsets[(k + 1) % KR], 4 * (KR - 1))
                    e(f"s_cbranch_vccz {P1}_OK")
                e(f"s_branch {P1R}")
            tail.append(p1r)
            e(f"s_xor_b32 s{S_TAG}, s{S_TAG}, 1\ns_nop 1")
            for r in range(4):
                e(f"v_add_f32_dpp v{RED+r}, v{RED+r}, v{RED+r} row_ror:8 row_mask:0xf bank_mask:0xf")
            e(f"s_mov_b64 exec, s[{S_AGM}:{S_AGM+1}]")
            e(f"v_cvt_pk_bf16_f32 v{AGO}, v{RED}, v{RED+1}\nv_cvt_pk_bf16_f32 v{AGO+1}, v{RED+2}, v{RED+3}")
            e(f"s_mov_b64 exec, s[{S_AGM2}:{S_AGM2+1}]\nbuffer_store_dwordx2 {vr(AGO,2)}, v{A_AGW}, {WS}, s{S_AGW} offen{st}\ns_mov_b64 exec, -1")
        S("ags")
        if cfg.get("agbar"): e("s_barrier")
        S("agb")
        kv_ready_ool(e, tail, T0, MEMA + 15)
        e.nop(d2)
        sets = [AP, ACB, MEMA + 16][:K]
        for k, r in enumerate(sets):
            if k: e.nop(cfg.get("e2", 25))
            ag_ld(r)
        ag_chk(AP, 2 * (K - 1))
        e(f"s_cbranch_vccnz {P2R}")
        e.label(P2 + "_OK")
        S("ag")
        def p2r():
            e.label(P2R)
            for k in range(K):
                e(f"s_add_u32 s{S_SPIN}, s{S_SPIN}, {16 if stamps else 1}\ns_cmp_gt_u32 s{S_SPIN}, {SPIN_MAX}\ns_cbranch_scc1 {P2}_OK")
                e("s_mov_b64 exec, vcc"); ag_ld(sets[k]); e("s_mov_b64 exec, -1")
                ag_chk(sets[(k + 1) % K], 2 * (K - 1))
                e(f"s_cbranch_vccz {P2}_OK")
            e(f"s_branch {P2R}")
        tail.append(p2r)
        if stamps:
            sk = e.newlabel("NS")
            e(f"s_waitcnt lgkmcnt(0)\ns_cmp_eq_u32 s{S_STEP}, {cfg.get('stampstep', 40)}\ns_cbranch_scc0 {sk}")
            for i in range(len(stamps)): e(f"v_writelane_b32 v{T0}, s{S_ST+2*i}, {i}")
            e(f"v_writelane_b32 v{T0}, s{S_SPIN}, 10")
            for i in range(5): e(f"s_memrealtime s[{12+4*i}:{13+4*i}]\ns_memtime s[{14+4*i}:{15+4*i}]\ns_nop 5")
            e("s_waitcnt lgkmcnt(0)")
            for i in range(5): e(f"v_writelane_b32 v{T0}, s{12+4*i}, {16+2*i}\nv_writelane_b32 v{T0}, s{14+4*i}, {17+2*i}")
            e(f"s_lshl_b32 s{S_TMP}, s{S_H}, 2\ns_add_u32 s{S_TMP}, s{S_TMP}, s{S_W}\ns_lshl_b32 s{S_TMP}, s{S_TMP}, 8\ns_add_u32 s{S_TMP}, s{S_TMP}, {WS_STAMP}")
            e(f"v_mbcnt_lo_u32_b32 v{T1}, -1, 0\nv_mbcnt_hi_u32_b32 v{T1}, -1, v{T1}\nv_lshlrev_b32 v{T1}, 2, v{T1}")
            e(f"buffer_store_dword v{T0}, v{T1}, {WS}, s{S_TMP} offen")
            e.label(sk)
        for r in range(0, 8, 2): e(f"v_mov_b64 {vr(ACA+r,2)}, 0")
        e(f"v_mov_b32 v{T0}, s{S_FLV}")
        if cfg.get("pubc"): e(f"buffer_store_dwordx4 {vr(KP,4)}, v{A_AGR}, {WS}, s{S_KVM} offen sc1")
        e("s_waitcnt lgkmcnt(0)")
    D = cfg.get("D", [[0, 60], [0, 160], [25, 40], [0, 190]])
    if cfg.get("agbar"): D = [[cfg["d1e"], cfg.get("d2e", 0)], [0, cfg.get("d2e", 0)], [cfg["d1"], cfg["d2"]], [0, cfg["d2"]]]
    KK = [cfg.get("Ke", 1), cfg.get("Ke", 1), cfg.get("K", 2), cfg.get("K", 2)]
    for w in (0, 1, 3):
        e.label(f"{LOOP}_{w}")
        comm(w == 0, D[w][0], D[w][1], KK[w], cfg.get('KRe', 1))
        e(f"s_branch {ENTRY}")
    e(".p2align 6")
    e.label(f"{LOOP}_2")
    comm(True, D[2][0], D[2][1], KK[2], cfg.get('KR', 2))
    e.label(ENTRY)
    e("s_barrier")
    S("b1")
    if cfg.get("stepst"): e("s_memrealtime s[84:85]")
    def rd_m(J, x):
        def f(): seq[("m", J)] = e(f"ds_read_b64_tr_b16 {vr(MEMA+4*J+2*x,2)}, v{A_TR} offset:{(2*(J%2)+x)*2048 + (J//2)*512}")
        return f
    qorder = [(0, 0), (0, 1), (1, 0), (1, 1), (2, 0)] + [(J, t) for J in range(3, 8) for t in range(2)] + [(2, 1)]
    def qf(J, t):
        if J < 3: return ("v", QB + 8 * (QL.index((J, t)) % 5))
        return FRAG[("q", J, t)]
    mq = [smf(ACA + 4 * t, MEMA + 4 * J, qf(J, t)) for J, t in qorder]
    def rd_w(key, r, off):
        def f(): seq[key] = e(f"ds_read_b128 {vr(r,4)}, v{A_W} offset:{off}")
        return f
    def rq(n, hf): return rd_w(("ql", n), QB + 8 * (n % 5) + 4 * hf, FRAG[("q",) + QL[n]][1] + 1024 * hf)
    flag = [f"s_mov_b64 exec, s[{S_W0M}:{S_W0M+1}]", f"buffer_store_dword v{T0}, off, {WS}, s{S_CF} sc1", "s_mov_b64 exec, -1"]
    pubk = f"buffer_store_dwordx2 {vr(KP,2)}, v{A_RSW}, {WS}, s{S_KVM} offen sc1"
    pubv = f"buffer_store_dwordx2 {vr(VP,2)}, v{A_RSW}, {WS}, s{S_KVM} offen offset:2048 sc1"
    if cfg.get("nopub"): pubk = pubv = "s_nop 0"; flag = []
    def dm(i): return "s_nop 0" if cfg.get("nodma") else f"buffer_load_dwordx4 v{A_AGR}, {WS}, s{S_KVG if i < 2 else S_KVG2} offen offset:{(i%2)*1024} sc1 lds"
    z = lambda r: f"v_mov_b64 {vr(r,2)}, 0"
    fill = {-1: [rd_m(J, x) for J in range(4) for x in range(2)] + [wt(("m", 0)), SS("m0")],
            0: [rd_m(4, 0), dm(0)], 1: [rd_m(4, 1), wt(("m", 1))], 2: [rd_m(5, 0), dm(1)], 3: [rd_m(5, 1), wt(("m", 2))],
            4: [f"s_add_u32 m0, s{S_KVL}, 8192", wt(("m", 3))],
            5: [f"s_waitcnt vmcnt({3 if cfg.get('pubc') else 2})", rd_m(6, 0)], 6: [rd_m(6, 1), wt(("m", 4))], 7: [rd_m(7, 0), dm(2)], 8: [rd_m(7, 1), wt(("m", 5))],
            9: [rq(5, 0), dm(3)], 10: [rq(5, 1), wt(("m", 6))], 11: flag, 12: [wt(("m", 7))], 13: [] if cfg.get("pubc") else [pubk], 14: [wt(("ql", 5))],
            }
    if max(KK) > 2:
        fill[0] = ["s_waitcnt vmcnt(0)", rd_m(4, 0), dm(0)]; fill[5] = [rd_m(6, 0)]
    kextra = {}
    dp = cfg.get("dp", 0)
    m0b = f"s_add_u32 m0, s{S_KVL}, 8192"
    if dp:
        for g in (0, 2, 7, 9): fill[g] = fill[g][:1]
        fill[4] = fill[4][1:]
        fill[5] = ["s_waitcnt vmcnt(%d)" % (1 if dp in (1, 2) else 0), rd_m(6, 0)]
        if dp == 1:
            fill[2] += [dm(0)]; fill[7] += [dm(1)]; fill[9] += [m0b]; fill[12] = fill[12] + [dm(2)]; kextra = {5: [dm(3)]}
        if dp == 2:
            fill[2] += [dm(0)]; fill[9] += [dm(1)]; kextra = {3: [m0b], 5: [dm(2)], 11: [dm(3)]}
        if dp == 3:
            fill[7] += [dm(0)]; fill[12] = fill[12] + [dm(1)]; kextra = {3: [m0b], 6: [dm(2)], 14: [dm(3)]}
    if cfg.get("flp") == 1:
        fill[11] = []; kextra[7] = None
    pp = cfg.get("pubp", 0)
    if pp:
        pre = [rd_m(J, x) for J in range(4) for x in range(2)]
        fill[-1] = pre[:pp] + [pubk] + pre[pp:] + [wt(("m", 0)), SS("m0")]
        fill[13] = []; fill[5] = ["s_waitcnt vmcnt(3)", rd_m(6, 0)]
    fill[15] = [pubv]
    for n, g in enumerate([7, 8, 9, 10] if not cfg.get("xz") else [10, 12, 13, 14]): fill[g] = fill[g] + [z(ACB + 2 * n)]
    GS("q", fill, 16)
    interleave(e, mq, fill)
    S("q")
    mk = [smf(ACB + 4 * t, MEMA + 4 * J, FRAG[("k", J, t)]) for J in range(8) for t in range(2)]
    def post_dup(acc, dst):
        return [f"v_add_f32 v{acc}, v{acc}, v{acc+2}", f"v_add_f32 v{acc+1}, v{acc+1}, v{acc+3}",
                f"v_cvt_pk_bf16_f32 v{dst}, v{acc}, v{acc+1}"]
    pq = post_dup(ACA, QP) + post_dup(ACA + 4, QP + 1)
    def rd_q(js, t):
        def f(): seq[("q", js)] = e(f"ds_read_b64_tr_b16 {vr(QB+4*js+2*t,2)}, v{A_TR} offset:{L_QU-L_MEM + js*1024 + t*512}")
        return f
    kxslot = [0, 1, 2, 3, 4, 5, 0, 1]
    def rd_kx(n):
        js, kt = n // 2, n % 2
        def f(): seq[("kx", n)] = e(f"ds_read_b128 {vr(KXA+4*kxslot[n],4)}, v{A_KX} offset:{(kt*4+js)*1024}")
        return f
    def wr_u(key, a, r, t):
        def f(): seq[key] = e(f"ds_write2_b32 v{a}, v{r}, v{r} offset0:{128*t} offset1:{128*t+1}")
        return f
    fill = {0: pq[0:2], 1: pq[2:4], 2: [wr_u("wq0", A_UW, QP, 0)] + pq[4:6], 3: [wr_u("wq1", A_UW, QP + 1, 1)],
            4: [rd_kx(0), f"v_add_u32 v{T0}, {L_KU - L_QU}, v{A_UW}"], 5: [rd_kx(1)], 6: [rd_kx(2)], 7: [rd_kx(3)],
            8: [wt("wq1"), SS("bq0"), "s_barrier", SS("bq1")],
            9: [rd_q(0, 0), rd_q(0, 1)], 10: [rd_q(1, 0), rd_q(1, 1)], 11: [rd_kx(4)], 12: [rd_q(2, 0), rd_kx(5)], 13: [rd_q(2, 1), rd_q(3, 0)],
            14: [rd_q(3, 1)], 15: [wt(("q", 1))]}
    for g, x in kextra.items():
        if x is None: fill[g] = flag; fill[6] = fill[6] + [rd_kx(3)]
        else: fill[g] = fill[g] + x
    if cfg.get("flp") == 1: fill[4] = [rd_kx(0)]; fill[8] = fill[8]; fill[15] = fill[15]; kadd = True
    GS("k", fill, 16)
    interleave(e, mk, fill)
    S("k")
    pk = post_dup(ACB, KP) + post_dup(ACB + 4, KP + 1)
    ms = []
    for js in range(4):
        for kt in range(2):
            n = js * 2 + kt
            ms.append(mf32(ACA + 4 * kt, KXA + 4 * kxslot[n], QB + 4 * js, "0" if js == 0 else ACA + 4 * kt))
    def rd_k(js, t):
        def f(): seq[("k", js)] = e(f"ds_read_b64_tr_b16 {vr(KXA+8+4*js+2*t,2)}, v{A_TRK} offset:{L_KU-L_MEM + js*1024 + t*512}")
        return f
    fill = {0: [rd_kx(6)] + pk[0:2], 1: [rd_kx(7)] + pk[2:4] + ([f"v_add_u32 v{T0}, {L_KU - L_QU}, v{A_UW}"] if cfg.get("flp") == 1 else []),
            2: [wr_u("wk0", T0, KP, 0)] + pk[4:6], 3: [wt(("q", 3)), z(ACB), z(ACB + 2)],
            4: [wr_u("wk1", T0, KP + 1, 1), z(ACB + 4), z(ACB + 6)],
            5: [wt(("kx", 7))],
            7: [f"s_cmp_ge_u32 s{S_STEP}, 63", f"s_cbranch_scc1 {LAST}"],
            }
    GS("sx", fill, 8)
    interleave(e, ms, fill)
    S("Sx")
    mv = [smf(ACB + 4 * t, MEMA + 4 * J, FRAG[("v", J, t)]) for J in range(8) for t in range(2)]
    SM = KXA
    X0, X1 = ACA, ACA + 4
    mx, t2 = KXA + 4, KXA + 5
    e0 = XT
    NV1 = cfg.get("nv1", 10)
    msm = [mf32(SM, KXA + 8 + 4 * js, QB + 4 * js, "0" if js == 0 else SM) for js in range(4)]
    odd = f"s[{S_ODD}:{S_ODD+1}]"
    early = [f"v_max3_f32 v{mx}, v{X0}, v{X0+1}, v{X0+2}", f"v_max3_f32 v{t2}, v{X1}, v{X1+1}, v{X1+2}",
             f"v_max3_f32 v{mx}, v{mx}, v{X0+3}, v{X1+3}", f"v_max_f32 v{mx}, v{mx}, v{t2}",
             f"v_cndmask_b32 v{e0}, v{X0}, v{X0+2}, {odd}", f"v_cndmask_b32 v{e0+1}, v{X0+1}, v{X0+3}, {odd}",
             f"v_cndmask_b32 v{e0+2}, v{X1}, v{X1+2}, {odd}", f"v_cndmask_b32 v{e0+3}, v{X1+1}, v{X1+3}, {odd}"]
    seqm = mv[:NV1] + msm + mv[NV1:]
    PVB0, PVB1, OAC, PA, LB, LA = QB, QB + 8, KXA + 8, KXA + 16, KXA + 20, KXA + 4
    def rd_vx(n):
        t, hf = n // 2, n % 2
        def f(): seq["vx"] = e(f"ds_read_b64 {vr(QB+8*t+2+4*hf,2)}, v{A_VX} offset:{t*1024 + hf*512}")
        return f
    def rd_wo(T, hf):
        return rd_w(("wo", T), MEMA + 8 * (T % 4) + 4 * hf, FRAG[("o", (1, T // 2), T % 2)][1] + 1024 * hf)
    EE = [SM, SM + 1, e0, e0+1, e0+2, e0+3]
    fill = {0: [wt("wk1"), SS("bk0"), "s_barrier", SS("bk1")]}
    for n in range(8): fill[1 + n] = [rd_k(n // 2, n % 2), early[n]]
    xv = cfg.get("xv", 0)
    if xv == 2:
        fill = {1: early[0:1], 2: early[1:3], 3: early[3:5], 4: [wt("wk1"), "s_barrier"],
                5: [rd_k(0, 0), rd_k(0, 1)], 6: [rd_k(1, 0), rd_k(1, 1)], 7: [rd_k(2, 0), rd_k(2, 1)], 8: [rd_k(3, 0), rd_k(3, 1)]}
    if xv == 3:
        fill = {1: early[0:2], 2: early[2:4], 3: [wt("wk1"), "s_barrier"],
                4: [rd_k(0, 0), rd_k(0, 1)], 5: [rd_k(1, 0), rd_k(1, 1)], 6: [rd_k(2, 0)], 7: [rd_k(2, 1)], 8: [rd_k(3, 0), rd_k(3, 1)]}
    if xv == 1:
        for n in range(8): fill[1 + n] = [rd_k(n // 2, n % 2)]
        fill[7] += early[0:1]; fill[8] += early[1:2]
    FLAGPOS = flag
    fill[NV1 - 1] = [rd_wo(0, 0), wt(("k", 0)), SS("k0")] if NV1 - 1 > 8 else fill[NV1 - 1][:1] + [wt(("k", 0))] + fill[NV1 - 1][1:]
    lb = [f"v_mov_b64 {vr(LB,2)}, s[{S_LB}:{S_LB+1}]", f"v_mov_b64 {vr(LB+2,2)}, s[{S_LB}:{S_LB+1}]"]
    zz = [z(OAC), z(OAC + 2), z(OAC + 4), z(OAC + 6), f"v_mov_b32 v{PA+2}, 0"] + lb
    if xv == 1:
        fill[NV1 - 1] = fill[NV1 - 1] + early[2:3]
        fill[NV1] = [wt(("k", 1))] + early[3:5]
        fill[NV1 + 1] = [wt(("k", 2))] + early[5:7]
        fill[NV1 + 2] = [wt(("k", 3))] + early[7:8] + zz[0:1]
        fill[NV1 + 3] = [rd_vx(0)] + zz[1:3]
        zz = zz[3:]
    elif xv in (2, 3):
        rem = early[5:] if xv == 2 else early[4:]
        allv = rem + zz
        k0 = 2 if xv == 3 else 0
        fill[NV1] = [wt(("k", 1))]
        fill[NV1 + 1] = [wt(("k", 2))] + allv[0:k0]
        fill[NV1 + 2] = [wt(("k", 3))] + allv[k0:k0 + 2]
        fill[NV1 + 3] = [rd_vx(0)] + allv[k0 + 2:k0 + 4]
        zz = allv[k0 + 4:]
    else:
        fill[NV1] = [wt(("k", 1))] + zz[0:2]
        fill[NV1 + 1] = [wt(("k", 2))] + zz[2:4]
        fill[NV1 + 2] = [wt(("k", 3))] + zz[4:5]
        fill[NV1 + 3] = [rd_vx(0)] + zz[5:7]
        zz = []
    GS("v1", fill, 14)
    interleave(e, seqm[:NV1 + 4], fill)
    S("Sm")
    rest = seqm[NV1 + 4:]
    assert len(rest) == 6
    def run(x):
        for s in x: s() if callable(s) else e(s)
    run([rest[0], rd_vx(1), rd_vx(2)] + zz[0:1] + [rest[1], rd_vx(3), rd_wo(0, 1),
         f"v_max3_f32 v{mx}, v{mx}, v{SM}, v{SM+1}", f"v_mov_b32 v{t2}, v{mx}",
         rest[2], rd_wo(1, 0), rd_wo(1, 1),
         f"v_permlane32_swap_b32 v{mx}, v{t2}", f"v_max_f32 v{mx}, v{mx}, v{t2}", f"v_mov_b32 v{t2}, v{mx}",
         rest[3], rd_wo(2, 0), rd_wo(2, 1),
         f"v_permlane16_swap_b32 v{mx}, v{t2}", f"v_max_f32 v{mx}, v{mx}, v{t2}",
         rest[4], f"v_mul_f32 v{mx}, s{S_SC}, v{mx}", rest[5], rd_wo(3, 0), rd_wo(3, 1)] + zz[1:] + [
         ]
        + [f"v_fma_f32 v{x}, v{x}, s{S_SC}, -v{mx}" for x in EE] + [f"v_exp_f32 v{x}, v{x}" for x in EE]
        + [f"v_cvt_pk_bf16_f32 v{PA}, v{SM}, v{SM+1}", f"v_cvt_pk_bf16_f32 v{PA+1}, v{e0}, v{e0+1}", f"v_cvt_pk_bf16_f32 v{PA+3}, v{e0+2}, v{e0+3}",
           f"v_permlane32_swap_b32 v{PA}, v{PA+2}"])
    S("soft")
    cv = lambda t, h: f"v_cvt_pk_bf16_f32 v{QB+8*t+h}, v{ACB+4*t+2*h}, v{ACB+4*t+2*h+1}"
    run([cv(0, 0), cv(0, 1), mf32(LA, PA, LB, "0"), wt("vx"), cv(1, 0), cv(1, 1),
         f"v_smfmac_f32_16x16x64_bf16 {vr(OAC,4)}, {vr(PA,4)}, {vr(PVB0,8)}, v{IDX}", "s_nop 0",
         f"v_smfmac_f32_16x16x64_bf16 {vr(OAC+4,4)}, {vr(PA,4)}, {vr(PVB1,8)}, v{IDX}",
         ] + ([
         f"v_pk_add_f32 {vr(LA,2)}, {vr(LA,2)}, {vr(LA+2,2)}", f"v_rcp_f32 v{LA}, v{LA}", f"v_rcp_f32 v{LA+1}, v{LA+1}",
         f"v_pk_add_f32 {vr(OAC,2)}, {vr(OAC,2)}, {vr(OAC+2,2)}", f"v_pk_mul_f32 {vr(OAC,2)}, {vr(OAC,2)}, {vr(LA,2)}", "s_nop 0",
         f"v_pk_add_f32 {vr(OAC+4,2)}, {vr(OAC+4,2)}, {vr(OAC+6,2)}", f"v_cvt_pk_bf16_f32 v{OAC}, v{OAC}, v{OAC+1}",
         f"v_pk_mul_f32 {vr(OAC+4,2)}, {vr(OAC+4,2)}, {vr(LA,2)}", f"v_cvt_pk_bf16_f32 v{OAC+1}, v{OAC+4}, v{OAC+5}"] if cfg.get("usepk") else [
         f"v_add_f32 v{LA}, v{LA}, v{LA+2}", f"v_add_f32 v{LA+1}, v{LA+1}, v{LA+3}", f"v_rcp_f32 v{LA}, v{LA}", f"v_rcp_f32 v{LA+1}, v{LA+1}",
         f"v_add_f32 v{OAC}, v{OAC}, v{OAC+2}", f"v_add_f32 v{OAC+1}, v{OAC+1}, v{OAC+3}",
         f"v_mul_f32 v{OAC}, v{OAC}, v{LA}", f"v_mul_f32 v{OAC+1}, v{OAC+1}, v{LA+1}",
         f"v_add_f32 v{OAC+4}, v{OAC+4}, v{OAC+6}", f"v_add_f32 v{OAC+5}, v{OAC+5}, v{OAC+7}",
         f"v_mul_f32 v{OAC+4}, v{OAC+4}, v{LA}", f"v_mul_f32 v{OAC+5}, v{OAC+5}, v{LA+1}",
         f"v_cvt_pk_bf16_f32 v{OAC}, v{OAC}, v{OAC+1}", f"v_cvt_pk_bf16_f32 v{OAC+1}, v{OAC+4}, v{OAC+5}"]))
    WAC = [QB, QB + 4, QB + 8, QB + 12, ACA, ACA + 4, ACB, ACB + 4]
    so = e(f"ds_write_b64 v{A_UW}, {vr(OAC,2)}")
    S("ow")
    def vpost():
        for t in range(2):
            a = ACB + 4 * t
            e(f"v_pk_add_f32 {vr(a,2)}, {vr(a,2)}, {vr(a+2,2)}\nv_cvt_pk_bf16_f32 v{VP+t}, v{a}, v{a+1}")
    vpost()
    for r in range(0, 16, 2): e(z(QB + r))
    if cfg.get("xo"):
        for r in range(0, 16, 2): e(z(ACA + r))
    e.waitlg(so)
    S("bo0")
    e("s_barrier")
    S("bo1")
    OA = KXA
    for J in range(2):
        for x in range(2):
            seq[("oa", J)] = e(f"ds_read_b64_tr_b16 {vr(OA+4*J+2*x,2)}, v{A_TR} offset:{L_QU-L_MEM + (2*J+x)*1024}")
    if not cfg.get("xo"):
        for r in range(0, 16, 2): e(z(ACA + r))
    mo = []
    for p in range(4):
        for T in (2 * p, 2 * p + 1): mo.append(smf(WAC[T], OA, FRAG[("o", (0, T // 2), T % 2)]))
        for T in (2 * p, 2 * p + 1): mo.append(smf(WAC[T], OA + 4, ("v", MEMA + 8 * (T % 4))))
    RSO = OAC
    def post_pair(p):
        a, b = WAC[2 * p], WAC[2 * p + 1]; d = RSO + 2 * p
        return [f"v_add_f32 v{a}, v{a}, v{a+2}", f"v_add_f32 v{a+1}, v{a+1}, v{a+3}",
                f"v_cvt_pk_bf16_f32 v{d}, v{a}, v{a+1}", f"v_add_f32 v{b}, v{b}, v{b+2}",
                f"v_add_f32 v{b+1}, v{b+1}, v{b+3}", f"v_and_or_b32 v{d}, v{d}, -2, s{S_TAG}",
                f"v_cvt_pk_bf16_f32 v{d+1}, v{b}, v{b+1}",
                f"buffer_store_dwordx2 {vr(d,2)}, v{A_RSW}, {WS}, s{S_RSW0 if p < 2 else S_RSW1} offen offset:{(p%2)*2048}{st}"]
    p0, p1, p2, p3 = [post_pair(p) for p in range(4)]
    fill = {-1: [wt(("oa", 0)), SS("oa")], 1: [wt(("oa", 1))], 2: [rd_wo(4, 0), rd_wo(4, 1)], 3: [rd_wo(5, 0), rd_wo(5, 1)],
            4: ["s_nop 0"] + p0[0:1], 5: p0[1:3], 6: [rd_wo(6, 0), rd_wo(6, 1)] + p0[3:5], 7: [rd_wo(7, 0), rd_wo(7, 1)] + p0[5:7], 8: p0[7:8] + p1[0:1],
            9: [wt(("wo", 4))] + p1[1:3], 10: [wt(("wo", 5))] + p1[3:5], 11: p1[5:7],
            12: p1[7:8] + p2[0:1], 13: [wt(("wo", 6))] + p2[1:3], 14: [wt(("wo", 7))] + p2[3:5],
            15: p2[5:8] + p3[0:3] + ([p3[5]] + p3[3:5] + p3[6:] if not cfg.get("usepk") else [p3[5], f"v_pk_add_f32 {vr(WAC[7],2)}, {vr(WAC[7],2)}, {vr(WAC[7]+2,2)}"] + p3[6:]),
            }
    GS("wo", fill, 16)
    interleave(e, mo, fill)
    S("Wo")
    if cfg.get("stepst"):
        for k in range(12): e(f"s_cmp_eq_u32 s{S_STEP}, {k}\ns_cselect_b32 s{20+k}, s84, s{20+k}")
    e.nop(cfg.get("xdelay", 0))
    for w in (2, 0, 1): e(f"s_cmp_eq_u32 s{S_W}, {w}\ns_cbranch_scc1 {LOOP}_{w}")
    e(f"s_branch {LOOP}_3")
    for t in tail: t()
    e.label(LAST)
    e(f"s_add_u32 s{S_KVM}, s{S_KVM}, 0x40000")
    e(pubk)
    for m in mv: e(m)
    e.nop(8)
    vpost()
    e(pubv)
    e("s_waitcnt vmcnt(0) lgkmcnt(0)\ns_barrier")
    e(f"v_mov_b32 v{T0}, 64\ns_mov_b64 exec, s[{S_W0M}:{S_W0M+1}]")
    e(f"buffer_store_dword v{T0}, off, {WS}, s{S_CF} sc1")
    if cfg.get("gstamp"):
        e(f"s_memrealtime s[84:85]\ns_memtime s[86:87]\ns_waitcnt lgkmcnt(0)\ns_sub_u32 s86, s86, s16\nv_mov_b32 v24, s86\nv_mov_b32 v20, s3\nv_mov_b32 v21, s18\nv_mov_b32 v22, s84\nv_mov_b32 v23, s69")
        e(f"s_lshl_b32 s{S_TMP}, s{S_H}, 4\ns_add_u32 s{S_TMP}, s{S_TMP}, {WS_STAMP + 0x10000}")
        if cfg.get("stepst"):
            for k in range(12): e(f"v_mov_b32 v{30+k}, s{20+k}")
            e(f"s_lshl_b32 s{S_TMP2}, s{S_H}, 6\ns_add_u32 s{S_TMP2}, s{S_TMP2}, {WS_STAMP + 0x11000}")
            for k in range(3): e(f"buffer_store_dwordx4 v[{30+4*k}:{33+4*k}], off, {WS}, s{S_TMP2} offset:{16*k}")
        e(f"buffer_store_dwordx4 v[20:23], off, {WS}, s{S_TMP}\nbuffer_store_dword v24, off, {WS}, s{S_TMP} offset:1024")
    if cfg.get("dbgt"):
        for k, r in enumerate(("s69", "s18", "s84")):
            e(f"s_sub_u32 s{S_TMP}, {r}, s3\nv_mov_b32 v20, s{S_TMP}\nv_mov_b32 v21, {8 + 4*k}\nglobal_atomic_umax v21, v20, s[{S_DBG}:{S_DBG+1}]")
        e(f"v_mov_b32 v20, s60\nv_mov_b32 v21, 28\nglobal_atomic_or v21, v20, s[{S_DBG}:{S_DBG+1}]")
        e(f"v_mov_b32 v20, s86\nv_mov_b32 v21, 24\nglobal_atomic_umax v21, v20, s[{S_DBG}:{S_DBG+1}]")
    e("s_branch KEND")
```

```python
from asmlib import Em, vr
from layout import *
from chain import *

WS = f"s[{R_WS}:{R_WS+3}]"
W_XB, W_QX, W_KMU, W_RED, W_STG = 0x0, 0x10000, 0x12000, 0x13000, 0x10000
NSLOT = 6
S_G, S_SEG, S_CNT, S_XL, S_XG, S_I, S_OFF, S_OFF2, S_STGB = 52, 53, 54, 55, 56, 57, 58, 59, 60
S_STP, S_END, S_PREV, S_CHN = 61, 66, 74, 75
R_X = 84
R_A, R_B = 40, 44
R_O = 88
V_C, V_G, V_L16, V_XSRC, V_XRD, V_T, V_T2 = 1, 2, 3, 4, 5, 6, 7

_cfg = {}
def WST(e, idx=None):
    if not _cfg.get("wstamp"): return
    e(f"s_memrealtime s[70:71]\ns_lshl_b32 s72, s{S_GRP}, 5\ns_add_u32 s72, s72, s{S_H}\ns_lshl_b32 s72, s72, 8\ns_lshl_b32 s73, s101, 2\ns_add_u32 s72, s72, s73")
    e(f"s_add_u32 s72, s72, {WS_STAMP + 0x20000}\ns_add_u32 s101, s101, 1\ns_waitcnt lgkmcnt(0)\ns_sub_u32 s70, s70, s3\nv_mov_b32 v{V_T}, s70\nv_mov_b32 v{V_T2}, 0\ns_mov_b64 exec, s[{S_W0M}:{S_W0M+1}]")
    e(f"buffer_store_dword v{V_T}, v{V_T2}, {WS}, s72 offen\ns_mov_b64 exec, -1\ns_waitcnt vmcnt(0)")

def load_blocks(e, blocks, D=NSLOT):
    N = len(blocks)
    def issue(n):
        r, vs, so, _, _ = blocks[n]
        for i in range(4):
            e(f"s_add_u32 m0, s{S_STGB}, {(n % NSLOT) * 4096 + i * 1024}\ns_mov_b32 s{S_TMP}, {so[i]}")
            e(f"buffer_load_dwordx4 {vs}, s[{r}:{r+3}], s{S_TMP} offen lds")
    for n in range(min(D, N)): issue(n)
    for n in range(N):
        e(f"s_waitcnt vmcnt({4 * min(N - 1 - n, D - 1)})")
        for dst, off in blocks[n][4]:
            e(f"ds_read_b64_tr_b16 {dst}, {blocks[n][3]} offset:{(n % NSLOT) * 4096 + off}")
        e("s_waitcnt lgkmcnt(0)")
        if n + D < N: issue(n + D)

def wmat_blocks(r, abase):
    out = []
    for J in range(8):
        rd = []
        for t in range(2):
            for m in range(4):
                s = 2 * J + m // 2
                rd.append((vr(abase + (t * 16 + s) * 4 + 2 * (m % 2), 2, "a"), (32 * (m // 2) + 4 * (m % 2)) * 64 + t * 32))
        out.append((r, "v20", [(64 * J + 16 * i) * 8192 for i in range(4)], "v22", rd))
    return out

def wo_blocks(r, abase):
    out = []
    for hh in range(8):
        rd = []
        for js in range(4):
            for m in range(2):
                rd.append((vr(abase + (hh * 4 + js) * 4 + 2 * m, 2, "a"), (32 * js + 16 * m) * 32))
        out.append((r, "v21", [(hh * 128 + 32 * i) * 1024 for i in range(4)], "v23", rd))
    return out

def wload_addr(e):
    e("v_and_b32 v18, 3, v0\nv_lshrrev_b32 v19, 2, v0")
    e(f"s_lshl_b32 s{S_TMP}, s{S_H}, 8\ns_lshl_b32 s{S_TMP2}, s{S_W}, 6\ns_add_u32 s{S_TMP}, s{S_TMP}, s{S_TMP2}")
    e(f"v_lshlrev_b32 v20, 13, v19\nv_lshl_add_u32 v20, v18, 4, v20\nv_add_u32 v20, s{S_TMP}, v20")
    e(f"s_lshl_b32 s{S_TMP}, s{S_W}, 20\ns_lshl_b32 s{S_TMP2}, s{S_H}, 5\ns_add_u32 s{S_TMP}, s{S_TMP}, s{S_TMP2}")
    e(f"v_lshrrev_b32 v21, 1, v0\nv_lshlrev_b32 v21, 10, v21\nv_and_b32 v24, 1, v0\nv_lshl_add_u32 v21, v24, 4, v21\nv_add_u32 v21, s{S_TMP}, v21")
    e(f"s_mul_i32 s{S_STGB}, s{S_W}, {NSLOT*4096}\ns_add_u32 s{S_STGB}, s{S_STGB}, {W_STG}")
    e(f"v_lshrrev_b32 v24, 2, v{V_C}")
    e(f"v_lshl_add_u32 v22, v{V_G}, 3, v24\nv_lshlrev_b32 v22, 6, v22\nv_lshl_add_u32 v22, v18, 3, v22\nv_add_u32 v22, s{S_STGB}, v22")
    e(f"v_lshl_add_u32 v23, v{V_G}, 2, v24\nv_lshlrev_b32 v23, 5, v23\nv_lshl_add_u32 v23, v18, 3, v23\nv_add_u32 v23, s{S_STGB}, v23")

def x_dma(e):
    out = []
    for i in range(8):
        out.append([f"s_add_u32 m0, s{S_XL}, {i*1024}", f"s_add_u32 s{S_TMP}, s{S_XG}, {i*64}",
                    f"buffer_load_dwordx4 v{V_XSRC}, s[{R_X}:{R_X+3}], s{S_TMP} offen lds"])
    return out

def flag_store(e, soff, val):
    e(f"v_mov_b32 v{V_T}, {val}\nv_mov_b32 v{V_T2}, s{soff}\ns_mov_b64 exec, s[{S_W0M}:{S_W0M+1}]")
    e(f"buffer_store_dword v{V_T}, v{V_T2}, {WS}, 0 offen sc1\ns_mov_b64 exec, -1")

def mfd(d, a, b, c, pa="v", pb="v"):
    return f"v_mfma_f32_16x16x32_bf16 {vr(d,4)}, {vr(a,4,pa)}, {vr(b,4,pb)}, {c if c == '0' else vr(c,4)}"

def phaseA(e, cfg):
    e("; ---- phase A : K,V projection")
    XF, ACC, OUT = 32, 64, 96
    srd(e, R_A, S_WK, 0x400000); srd(e, R_B, S_WV, 0x400000)
    if cfg.get("seqa"):
        e(f"s_cmp_lt_u32 s{S_G}, 3\ns_cselect_b32 s{S_STP}, 2, 4\ns_cselect_b32 s{S_END}, 28, 64\ns_cselect_b32 s{S_TMP}, 9, 25\ns_add_u32 s{S_SEG}, s{S_G}, s{S_TMP}")
        e(f"s_cmp_eq_u32 s{S_G}, 0\ns_cselect_b32 s{S_STP}, 1, s{S_STP}\ns_cselect_b32 s{S_END}, 10, s{S_END}\ns_cselect_b32 s{S_SEG}, 0, s{S_SEG}")
    else:
        e(f"s_cmp_lt_u32 s{S_G}, 3\ns_cselect_b32 s{S_STP}, 3, 4\ns_cselect_b32 s{S_END}, {cfg.get('asplit', 27)}, 64\ns_cselect_b32 s{S_TMP}, 0, {cfg.get('asplit', 27) - 3}\ns_add_u32 s{S_SEG}, s{S_G}, s{S_TMP}")
    e(f"s_lshl_b32 s{S_XG}, s{S_SEG}, 15\ns_lshl_b32 s{S_XL}, s{S_W}, 13\nv_mov_b32 v{V_XRD}, v{V_L16}")
    for g in x_dma(e):
        for s in g: e(s)
    load_blocks(e, wmat_blocks(R_A, 0) + wmat_blocks(R_B, 128), cfg.get('wda', 6))
    wait_init(e, "w", 24)
    WST(e)
    e(f"s_mov_b32 s{S_I}, 0x7ffffff0")
    pa = cfg.get("pastamp")
    def acc(k):
        if pa: e(f"s_memtime s[70:71]\ns_waitcnt lgkmcnt(0)\ns_sub_u32 s72, s70, s92\ns_mov_b32 s92, s70\ns_add_u32 s{93+k}, s{93+k}, s72")
    if pa: e("s_memtime s[92:93]\ns_waitcnt lgkmcnt(0)\ns_mov_b32 s93, 0\ns_mov_b32 s94, 0\ns_mov_b32 s95, 0\ns_mov_b32 s96, 0")
    e.label("PA_LOOP")
    e("s_waitcnt vmcnt(4)")
    acc(0)
    e("s_barrier")
    acc(1)
    e(f"s_lshl_b32 s{S_TMP}, s{S_STP}, 15\ns_add_u32 s{S_XG}, s{S_XG}, s{S_TMP}\ns_xor_b32 s{S_XL}, s{S_XL}, 0x8000")
    dma = x_dma(e)
    seq = {}
    def rd(n):
        s, rt = n // 2, n % 2
        seq[n] = e(f"ds_read_b128 {vr(XF + 4 * (n % 8), 4)}, v{V_XRD} offset:{(rt * 16 + s) * 1024}")
    for n in range(6): rd(n)
    for n in range(32):
        s, rt = n // 2, n % 2
        e.waitlg(seq[n])
        x = XF + 4 * (n % 8)
        for t in range(2):
            a = ACC + 4 * (t * 2 + rt)
            e(mfd(a, (t * 16 + s) * 4, x, "0" if s == 0 else a, "a", "v"))
            if t == 0 and n + 6 < 32: rd(n + 6)
        for t in range(2):
            a = ACC + 16 + 4 * (t * 2 + rt)
            e(mfd(a, x, 128 + (t * 16 + s) * 4, "0" if s == 0 else a, "v", "a"))
        if n % 3 == 1 and n // 3 < 8:
            for q in dma[n // 3]: e(q)
        if n == 14:
            e("s_waitcnt vmcnt(5)\ns_barrier")
            flag_store(e, S_I, 1)
    acc(2)
    e(f"v_xor_b32 v{V_XRD}, 0x8000, v{V_XRD}")
    e(f"s_lshl_b32 s{S_OFF}, s{S_SEG}, 19\ns_lshl_b32 s{S_TMP}, s{S_H}, 14\ns_add_u32 s{S_OFF}, s{S_OFF}, s{S_TMP}\ns_add_u32 s{S_OFF}, s{S_OFF}, {WS_KV}")
    e(f"s_lshl_b32 s{S_TMP}, s{S_W}, 10\ns_add_u32 s{S_TMP2}, s{S_OFF}, s{S_TMP}\ns_nop 0\ns_lshl_b32 s{S_I}, s{S_H}, 6\ns_add_u32 s{S_I}, s{S_I}, s{S_SEG}\ns_lshl_b32 s{S_I}, s{S_I}, 2")
    for rt in range(2):
        o = OUT + 4 * rt
        for t in range(2):
            a = ACC + 4 * (t * 2 + rt)
            e(f"v_cvt_pk_bf16_f32 v{o+2*t}, v{a}, v{a+1}\nv_cvt_pk_bf16_f32 v{o+2*t+1}, v{a+2}, v{a+3}")
        e(f"buffer_store_dwordx4 {vr(o,4)}, v{V_L16}, {WS}, s{S_TMP2} offen sc1")
        e(f"s_add_u32 s{S_TMP2}, s{S_TMP2}, 4096")
    e(f"s_add_u32 s{S_TMP2}, s{S_TMP2}, s{S_TMP}")
    for t in range(2):
        o = OUT + 8 + 4 * t
        for rt in range(2):
            a = ACC + 16 + 4 * (t * 2 + rt)
            e(f"v_cvt_pk_bf16_f32 v{o+2*rt}, v{a}, v{a+1}\nv_cvt_pk_bf16_f32 v{o+2*rt+1}, v{a+2}, v{a+3}")
        e(f"buffer_store_dwordx4 {vr(o,4)}, v{V_L16}, {WS}, s{S_TMP2} offen offset:{t*1024} sc1")
    acc(3)
    e(f"s_add_u32 s{S_SEG}, s{S_SEG}, s{S_STP}\ns_cmp_lt_u32 s{S_SEG}, s{S_END}\ns_cbranch_scc1 PA_LOOP")
    e("s_waitcnt vmcnt(0)\ns_barrier")
    flag_store(e, S_I, 1)
    if pa:
        e(f"s_lshl_b32 s72, s{S_GRP}, 5\ns_add_u32 s72, s72, s{S_H}\ns_lshl_b32 s72, s72, 4\ns_add_u32 s72, s72, {WS_STAMP + 0x30000}")
        e(f"v_mov_b32 v32, s93\nv_mov_b32 v33, s94\nv_mov_b32 v34, s95\nv_mov_b32 v35, s96\nv_mov_b32 v36, 0\nbuffer_store_dwordx4 v[32:35], v36, {WS}, s72 offen")

def poll_all(e, name, vaddr, soff, cmpv, vt, sleep=8, bar=True):
    l, d = e.newlabel(name), e.newlabel(name + "D")
    e(f"s_cmp_eq_u32 s{S_W}, 0\ns_cbranch_scc0 {d}\ns_mov_b32 s{S_SPIN}, 0")
    e.label(l)
    e(f"buffer_load_dword v{vt}, v{vaddr}, {WS}, {soff} offen sc1\ns_add_u32 s{S_SPIN}, s{S_SPIN}, 1\ns_waitcnt vmcnt(0)")
    e(f"v_cmp_gt_u32 vcc, {cmpv}, v{vt}\ns_cbranch_vccz {d}\ns_sleep {sleep}")
    e(f"s_cmp_lt_u32 s{S_SPIN}, {SPIN_MAX}\ns_cbranch_scc1 {l}")
    e.label(d)
    if bar: e("s_barrier")

def rb_pair(e, d, a, b):
    e(f"v_cvt_pk_bf16_f32 v{d}, v{a}, v{b}\nv_lshlrev_b32 v{a}, 16, v{d}\nv_and_b32 v{b}, 0xffff0000, v{d}")

C_UR, C_HP, URS, HPC = 0x0, 0x8000, 7680, 4160
HPS = 4 * HPC
def conv(e, cfg):
    e("; ---- conv task")
    S_TK = S_OFF
    e(f"s_cmp_lt_u32 s{S_G}, 3\ns_cbranch_scc1 CV_END\ns_sub_u32 s{S_TK}, s{S_G}, 3\ns_lshl_b32 s{S_TK}, s{S_TK}, 5\ns_add_u32 s{S_TK}, s{S_TK}, s{S_H}")
    if cfg.get("cvwait") is not None:
        wait_init(e, "w", 24)
        e(f"s_lshl_b32 s{S_OFF2}, s{S_H}, 8\ns_add_u32 s{S_OFF2}, s{S_OFF2}, {4*cfg['cvwait']}\nv_mov_b32 v24, 0")
        poll_all(e, "CVS", 24, f"s{S_OFF2}", 1, 25, 32)
    srd(e, R_A, S_K, 0x200000); srd(e, R_B, S_V, 0x200000)
    KR, VR, SH, P, U = 32, 56, 72, 88, 112
    e(f"s_lshl_b32 s{S_TMP}, s{S_W}, 6\nv_add_u32 v16, s{S_TMP}, v0")
    e(f"s_lshl_b32 s{S_TMP}, s{S_TK}, 3\nv_lshlrev_b32 v17, 13, v16\nv_add_u32 v17, s{S_TMP}, v17")
    e("v_subrev_u32 v18, 3072, v17")
    for j in range(3): e(f"buffer_load_dwordx2 {vr(KR+2*j,2)}, v18, s[{R_A}:{R_A+3}], 0 offen offset:{j*1024}")
    e("v_add_u32 v19, 4096, v17")
    for j in range(8):
        va = "v17" if j < 4 else "v19"
        e(f"buffer_load_dwordx2 {vr(KR+6+2*j,2)}, {va}, s[{R_A}:{R_A+3}], 0 offen offset:{(j%4)*1024}")
        e(f"buffer_load_dwordx2 {vr(VR+2*j,2)}, {va}, s[{R_B}:{R_B+3}], 0 offen offset:{(j%4)*1024}")
    e(f"s_lshl_b32 s{S_TMP2}, s{S_TK}, 2\ns_add_u32 s{S_TMP2}, s{S_TMP2}, s{S_W}")
    e(f"s_lshl_b32 s{S_XG}, s{S_TMP2}, 12\ns_mul_i32 s{S_XL}, s{S_W}, {HPS}\ns_add_u32 s{S_XL}, s{S_XL}, {C_HP}")
    e(f"s_add_u32 s{R_O}, s{S_SSMK}, s{S_XG}\ns_addc_u32 s{R_O+1}, s{S_SSMK+1}, 0\ns_mov_b32 s{R_O+2}, 4096\ns_mov_b32 s{R_O+3}, 0x20000")
    HR = 140
    for i in range(5):
        e(f"v_add_u32 v22, {i*1024 - 64}, v{V_L16}\nv_add_u32 v23, {i*1024 - 48}, v{V_L16}")
        e(f"buffer_load_dwordx4 {vr(HR+6*i,4)}, v22, s[{R_O}:{R_O+3}], 0 offen\nbuffer_load_dwordx2 {vr(HR+6*i+4,2)}, v23, s[{R_O}:{R_O+3}], 0 offen")
    e(f"s_lshl_b32 s{S_TMP}, s{S_TK}, 5\ns_load_dwordx8 s[92:99], s[{S_SH}:{S_SH+1}], s{S_TMP}")
    e(f"s_lshl_b32 s{S_TMP}, s{S_TMP2}, 1\ns_and_b32 s{S_TMP}, s{S_TMP}, -4\ns_load_dword s{S_CNT}, s[{S_SSMD}:{S_SSMD+1}], s{S_TMP}")
    e(f"v_mov_b64 v[24:25], 0\nv_mov_b64 v[26:27], 0")
    e(f"s_mul_i32 s{S_I}, s{S_W}, {URS}\nv_add_u32 v20, s{S_I}, v{V_L16}")
    for i in range(2): e(f"ds_write_b128 v20, v[24:27] offset:{5120 + i*1024}")
    e(f"s_mov_b32 exec_hi, 0\nds_write_b128 v20, v[24:27] offset:{5120 + 2048}\ns_mov_b64 exec, -1")
    e("v_lshlrev_b32 v20, 3, v16\nv_sub_u32 v20, 2040, v20\nv_lshrrev_b32 v21, 5, v20\nv_and_b32 v20, 31, v20")
    e("v_mul_u32_u24 v21, 80, v21\nv_lshl_add_u32 v20, v20, 1, v21")
    e("s_waitcnt vmcnt(10) lgkmcnt(0)")
    if cfg.get("cvstamp"): WST(e)
    e("v_cmp_eq_u32 vcc, 0, v16\ns_nop 1")
    for r in range(6): e(f"v_cndmask_b32 v{KR+r}, v{KR+r}, v24, vcc")
    for ch in range(4):
        for j in range(4):
            src = 92 + ch * 2 + j // 2
            e(f"s_lshl_b32 s{62+j}, s{src}, 16" if j % 2 == 0 else f"s_and_b32 s{62+j}, s{src}, 0xffff0000")
        KF = 120
        for j in range(11):
            r = KR + 2 * j + ch // 2
            e(f"v_lshlrev_b32 v{KF+j}, 16, v{r}" if ch % 2 == 0 else f"v_and_b32 v{KF+j}, 0xffff0000, v{r}")
        for pr in range(4):
            a, b, t1, t2, d = P, P + 1, P + 2, P + 3, P + 4
            r0 = 2 * pr
            e(f"v_mul_f32 v{a}, s65, v{KF+r0}\nv_mul_f32 v{b}, s65, v{KF+r0+1}")
            rb_pair(e, d, a, b)
            for j in (2, 1, 0):
                e(f"v_mul_f32 v{t1}, s{62+j}, v{KF+r0+3-j}\nv_mul_f32 v{t2}, s{62+j}, v{KF+r0+1+3-j}")
                rb_pair(e, d, t1, t2)
                e(f"v_add_f32 v{a}, v{a}, v{t1}\nv_add_f32 v{b}, v{b}, v{t2}")
                rb_pair(e, d, a, b)
            for q, rr in ((t1, r0), (t2, r0 + 1)):
                r = VR + 2 * rr + ch // 2
                e(f"v_lshlrev_b32 v{q}, 16, v{r}" if ch % 2 == 0 else f"v_and_b32 v{q}, 0xffff0000, v{r}")
            e(f"v_mul_f32 v{a}, v{a}, v{t1}\nv_mul_f32 v{b}, v{b}, v{t2}")
            e(f"v_cvt_pk_bf16_f32 v{U+3-pr}, v{b}, v{a}")
        e(f"ds_write_b128 v20, {vr(U,4)} offset:{ch*URS}\ns_nop 1")
    if cfg.get("cvstamp"): WST(e)
    e(f"s_waitcnt vmcnt(0)\nv_add_u32 v22, s{S_XL}, v{V_L16}")
    for i in range(5):
        x = HR + 6 * i
        if i == 4: e("s_mov_b64 exec, 15")
        for k in range(4): e(f"v_alignbyte_b32 v{P+k}, v{x+k+1}, v{x+k}, 2")
        for k in range(4): e(f"v_alignbyte_b32 v{P+4+k}, v{x+k+2}, v{x+k+1}, 2")
        for k in range(4): e(f"v_mov_b32 v{P+8+k}, v{x+k+1}")
        e(f"ds_write_b128 v22, {vr(x,4)} offset:{i*1024}\nds_write_b128 v22, {vr(P,4)} offset:{i*1024 + HPC}")
        e(f"ds_write_b128 v22, {vr(P+8,4)} offset:{i*1024 + 2*HPC}\nds_write_b128 v22, {vr(P+4,4)} offset:{i*1024 + 3*HPC}\ns_waitcnt lgkmcnt(0)")
    e("s_mov_b64 exec, -1\ns_barrier")
    if cfg.get("cvstamp"): WST(e)
    e(f"v_and_b32 v16, 31, v0\nv_lshrrev_b32 v17, 5, v0")
    e(f"v_lshl_add_u32 v18, v17, 3, v16\nv_add_u32 v18, 1, v18\nv_and_b32 v19, 3, v18\nv_and_b32 v18, -4, v18\nv_mul_u32_u24 v19, {HPC}, v19")
    e(f"v_lshl_add_u32 v18, v18, 1, v19\nv_add_u32 v18, s{S_XL}, v18")
    e(f"v_sub_u32 v19, 63, v16\nv_mul_u32_u24 v19, 80, v19\nv_lshl_add_u32 v19, v17, 4, v19\nv_add_u32 v19, s{S_I}, v19")
    e("v_subrev_u32 v21, 2560, v19")
    AC0, AC1, FR, NB = 32, 48, 64, 3
    seq = {}
    def rd(sg):
        b = FR + 16 * (sg % NB); bo = (sg // 2) * 80 + (sg % 2) * 32
        e(f"ds_read_b64 {vr(b,2)}, v18 offset:{sg*32}\nds_read_b64 {vr(b+2,2)}, v18 offset:{sg*32+8}")
        e(f"ds_read_b128 {vr(b+4,4)}, v19 offset:{bo}")
        e(f"ds_read_b128 {vr(b+8,4)}, v21 offset:{bo}")
        seq[sg] = e(f"ds_read_b64 {vr(b+12,2)}, v18 offset:{sg*32+2048}\nds_read_b64 {vr(b+14,2)}, v18 offset:{sg*32+2056}")
    def mm(d, a, b, first): return f"v_mfma_f32_32x32x16_bf16 {vr(d,16)}, {vr(a,4)}, {vr(b,4)}, {'0' if first else vr(d,16)}"
    rd(0); rd(1)
    for sg in range(64):
        b = FR + 16 * (sg % NB)
        e.waitlg(seq[sg])
        e(mm(AC0, b, b + 4, sg == 0))
        if sg + 2 < 64: rd(sg + 2)
        e(mm(AC1, b, b + 8, sg == 0))
        e(mm(AC1, b + 12, b + 4, False))
    if cfg.get("cvstamp"): WST(e)
    e(f"s_bitcmp1_b32 s{S_TMP2}, 0\ns_cbranch_scc1 CV_D1\ns_lshl_b32 s{S_CNT}, s{S_CNT}, 16")
    e.label("CV_D1")
    e(f"s_and_b32 s{S_CNT}, s{S_CNT}, 0xffff0000")
    e(f"v_lshlrev_b32 v22, 5, v17\nv_sub_u32 v22, v19, v22\nv_lshl_add_u32 v22, v17, 3, v22")
    e(f"v_lshlrev_b32 v23, 6, v16\nv_lshl_add_u32 v23, v17, 3, v23")
    e(f"s_lshl_b32 s{S_XG}, s{S_TMP2}, 12\ns_add_u32 s{S_XG}, s{S_XG}, {WS_Y2}")
    e("v_subrev_u32 v24, 2560, v22")
    for tl in range(2):
        for q in range(4):
            e(f"ds_read_b64 {vr(FR + 8*tl + 2*q, 2)}, {'v22' if tl == 0 else 'v24'} offset:{56 - 16*q}")
    e("s_waitcnt lgkmcnt(0)\ns_nop 7")
    for tl in range(2):
        for q in range(4):
            y = (AC0 if tl == 0 else AC1) + 4 * q; u = FR + 8 * tl + 2 * q; t = 96
            e(f"v_and_b32 v{t}, 0xffff0000, v{u+1}\nv_lshlrev_b32 v{t+1}, 16, v{u+1}\nv_and_b32 v{t+2}, 0xffff0000, v{u}\nv_lshlrev_b32 v{t+3}, 16, v{u}")
            for i in range(4): e(f"v_mul_f32 v{t+i}, s{S_CNT}, v{t+i}")
            rb_pair(e, t + 4, t, t + 1); rb_pair(e, t + 4, t + 2, t + 3)
            rb_pair(e, t + 4, y, y + 1); rb_pair(e, t + 4, y + 2, y + 3)
            for i in range(4): e(f"v_add_f32 v{y+i}, v{y+i}, v{t+i}")
            e(f"v_cvt_pk_bf16_f32 v{y}, v{y}, v{y+1}\nv_cvt_pk_bf16_f32 v{y+1}, v{y+2}, v{y+3}")
            e(f"buffer_store_dwordx2 {vr(y,2)}, v23, {WS}, s{S_XG} offen offset:{tl*2048 + q*16} sc1")
    if cfg.get("cvstamp"): e("s_nop 0"); WST(e)
    e("s_waitcnt vmcnt(0)\ns_barrier")
    wait_init(e, "w", 24)
    e(f"s_lshl_b32 s{S_TK}, s{S_TK}, 2\ns_add_u32 s{S_TK}, s{S_TK}, {FL_CONV}")
    flag_store(e, S_TK, 1)
    e.label("CV_END")

def phaseB(e, cfg):
    e("; ---- phase B")
    srd(e, R_A, S_WQ, 0x400000); srd(e, R_B, S_WO, 0x400000)
    wload_addr(e)
    e(f"s_mov_b32 s{S_SEG}, s{S_G}\ns_lshl_b32 s{S_XG}, s{S_SEG}, 15\ns_lshl_b32 s{S_XL}, s{S_W}, 13")
    e(f"v_mov_b32 v{V_XRD}, v{V_L16}")
    for g in x_dma(e):
        for s in g: e(s)
    load_blocks(e, wmat_blocks(R_A, 0) + wo_blocks(R_B, 128), cfg.get('wdb', 6))
    srd(e, R_O, S_OUT, 0x200000); srd(e, R_A, S_GATE, 1024)
    GW = 16
    e(f"buffer_load_dwordx4 {vr(GW,4)}, v{V_L16}, s[{R_A}:{R_A+3}], 0 offen")
    e(f"s_and_b32 s62, s{S_W}, 1\ns_lshr_b32 s63, s{S_W}, 1")
    e(f"v_lshlrev_b32 v8, 2, v{V_G}\nv_sub_u32 v8, v{V_C}, v8\ns_lshl_b32 s{S_TMP}, s62, 4\nv_add_u32 v8, s{S_TMP}, v8\nv_subrev_u32 v9, 16, v8")
    e(f"v_lshrrev_b32 v25, 2, v{V_C}\nv_lshl_add_u32 v25, v{V_G}, 2, v25\nv_and_b32 v24, 1, v0\nv_lshlrev_b32 v24, 3, v24\nv_lshl_add_u32 v10, v25, 4, v24\nv_add_u32 v10, {W_KMU}, v10")
    e(f"s_lshl_b32 s{S_TMP}, s{S_W}, 9\ns_add_u32 s{S_TMP}, s{S_TMP}, {W_KMU}\nv_lshlrev_b32 v22, 4, v{V_C}\nv_lshl_add_u32 v22, v{V_G}, 2, v22\nv_add_u32 v22, s{S_TMP}, v22")
    e(f"s_lshl_b32 s{S_TMP}, s{S_W}, 9\nv_lshl_add_u32 v23, v0, 3, s{S_TMP}")
    e(f"v_and_b32 v24, 1, v{V_G}\nv_lshl_add_u32 v11, v24, 5, v{V_C}\nv_lshlrev_b32 v11, 3, v11\ns_lshl_b32 s{S_TMP}, s63, 10\ns_add_u32 s{S_TMP}, s{S_TMP}, 2048\nv_add_u32 v11, s{S_TMP}, v11")
    e(f"v_lshrrev_b32 v24, 2, v0\nv_and_b32 v25, 3, v0\nv_lshlrev_b32 v12, 10, v24\nv_lshl_add_u32 v12, v25, 8, v12")
    e(f"s_lshr_b32 s{S_TMP}, s{S_H}, 4\ns_lshl_b32 s{S_TMP}, s{S_TMP}, 14\ns_and_b32 s{S_TMP2}, s{S_H}, 15\ns_lshl_b32 s{S_TMP2}, s{S_TMP2}, 4\ns_add_u32 s{S_TMP}, s{S_TMP}, s{S_TMP2}\nv_add_u32 v12, s{S_TMP}, v12")
    e(f"s_lshl_b32 s{S_TMP}, s{S_W}, 3\nv_lshrrev_b32 v24, 3, v0\nv_add_u32 v24, s{S_TMP}, v24\nv_and_b32 v25, 7, v0")
    e(f"v_lshrrev_b32 v26, 4, v24\nv_and_b32 v27, 15, v24\nv_lshlrev_b32 v13, 10, v26\nv_lshl_add_u32 v13, v27, 4, v13")
    e(f"v_lshrrev_b32 v26, 1, v25\nv_lshl_add_u32 v13, v26, 8, v13\nv_and_b32 v26, 1, v25\nv_lshl_add_u32 v13, v26, 3, v13\nv_add_u32 v13, {W_RED}, v13")
    e(f"s_lshl_b32 s{S_TMP}, s{S_H}, 16\nv_lshlrev_b32 v14, 13, v25\nv_lshl_add_u32 v14, v24, 1, v14\nv_add_u32 v14, s{S_TMP}, v14")
    e(f"s_lshl_b32 s{S_TMP}, s{S_H}, 5\nv_lshlrev_b32 v15, 10, v24\nv_lshl_add_u32 v15, v25, 2, v15\nv_add_u32 v15, s{S_TMP}, v15")
    e(f"v_and_b32 v20, 31, v0\nv_lshlrev_b32 v20, 2, v20\nv_lshlrev_b32 v21, 2, v24")
    e(f"s_lshl_b32 s{S_CF}, s{S_H}, 7\ns_add_u32 s{S_CF}, s{S_CF}, {FL_CFLAG}\ns_mov_b32 s{S_SC}, 0x3e0293ee")
    e(f"v_lshlrev_b32 v24, 2, v0\ns_mov_b32 s{S_OFF}, {FL_CONV}\ns_mov_b32 s{S_OFF2}, {FL_CONV+256}\ns_lshl_b32 s{S_CNT}, s{S_H}, 8")
    e(f"v_mov_b32 v26, 0\ns_mov_b32 s{S_CHN}, 0")
    e(f"s_mov_b32 s{S_PREV}, -1")
    KF, VF, XF, ACC, QF, KM, VM, SS_, PB, OA, TT = 32, 64, 80, 112, 128, 144, 160, 168, 180, 188, 224
    RB, NR, FA = 80, 32, 208
    def final():
        cd = e.newlabel("CVD")
        e(f"s_cmp_eq_u32 s{S_CHN}, 1\ns_cbranch_scc1 {cd}\ns_mov_b32 s{S_CHN}, 1\ns_mov_b32 s{S_OFF}, {FL_CONV}\ns_mov_b32 s{S_OFF2}, {FL_CONV+256}")
        poll_all(e, "CVW", 24, f"s{S_OFF}", 1, 25, 32, False)
        poll_all(e, "CVW", 24, f"s{S_OFF2}", 1, 25, 32, True)
        e.label(cd)
        e(f"s_lshl_b32 s{S_TMP}, s{S_PREV}, 6\ns_add_u32 s{S_TMP}, s{S_TMP}, {WS_Y2}\ns_add_u32 s{S_I}, s{S_TMP}, 4096")
        e(f"buffer_load_ushort v{TT+4}, v14, {WS}, s{S_TMP} offen sc1\nbuffer_load_ushort v{TT+5}, v14, {WS}, s{S_I} offen sc1")
        e(f"s_lshl_b32 s{S_CNT}, s{S_PREV}, 15\nbuffer_load_dword v{TT+6}, v15, s[{R_X}:{R_X+3}], s{S_CNT} offen")
        e(f"s_lshl_b32 s{S_OFF2}, s{S_PREV}, 7\ns_add_u32 s{S_OFF2}, s{S_OFF2}, {FL_OFLAG}")
        WST(e)
        poll_all(e, "OW", 20, f"s{S_OFF2}", 1, TT + 2, cfg.get("osleep", 4))
        WST(e)
        e(f"s_lshl_b32 s{S_TMP}, s{S_PREV}, 7\ns_add_u32 s{S_TMP}, s{S_TMP}, {WS_G}\nbuffer_load_dword v{TT+7}, v21, {WS}, s{S_TMP} offen sc1")
        e(f"s_lshl_b32 s{S_OFF}, s{S_PREV}, 18\ns_lshl_b32 s{S_TMP}, s{S_W}, 16\ns_add_u32 s{S_OFF}, s{S_OFF}, s{S_TMP}\ns_add_u32 s{S_OFF}, s{S_OFF}, {WS_O}")
        def ld(n):
            if n % 4 == 0 and n > 0: e(f"s_add_u32 s{S_OFF}, s{S_OFF}, 4096")
            e(f"buffer_load_dwordx4 {vr(RB + 4 * (n % NR), 4)}, v{V_L16}, {WS}, s{S_OFF} offen offset:{(n % 4) * 1024} sc1")
        for n in range(NR): ld(n)
        for n in range(64):
            hh, rt, js = n // 8, (n // 4) % 2, n % 4
            e(f"s_waitcnt vmcnt({min(63 - n, NR - 1)})")
            a = FA + 4 * rt
            e(mfd(a, 128 + (hh * 4 + js) * 4, RB + 4 * (n % NR), "0" if n in (0, 4) else a, "a", "v"))
            if n + NR < 64: ld(n + NR)
        e(f"s_lshl_b32 s{S_TMP}, s{S_W}, 11\ns_add_u32 s{S_TMP}, s{S_TMP}, {W_RED}\nv_add_u32 v{V_T}, s{S_TMP}, v{V_L16}\ns_nop 5")
        e(f"ds_write_b128 v{V_T}, {vr(FA,4)}\nds_write_b128 v{V_T}, {vr(FA+4,4)} offset:1024\ns_waitcnt lgkmcnt(0)\ns_barrier")
        B0 = RB
        for w in range(4): e(f"ds_read_b64 {vr(B0+2*w,2)}, v13 offset:{w*2048}")
        y0, y1, q, g = TT + 4, TT + 5, TT + 6, TT + 7
        e(f"v_lshlrev_b32 v{y0}, 16, v{y0}\nv_lshlrev_b32 v{y1}, 16, v{y1}\nv_lshlrev_b32 v{B0+8}, 16, v{q}\nv_and_b32 v{B0+9}, 0xffff0000, v{q}")
        e(f"v_mul_f32 v{y0}, v{y0}, v{B0+8}\nv_mul_f32 v{y1}, v{y1}, v{B0+9}")
        rb_pair(e, B0 + 10, y0, y1)
        e(f"v_mul_f32 v{y0}, v{y0}, v{g}\nv_mul_f32 v{y1}, v{y1}, v{g}")
        rb_pair(e, B0 + 10, y0, y1)
        e(f"v_sub_f32 v{g}, 1.0, v{g}\nv_cvt_pk_bf16_f32 v{g}, v{g}, v{g}\nv_lshlrev_b32 v{g}, 16, v{g}\ns_waitcnt lgkmcnt(0)")
        e(f"v_add_f32 v{B0}, v{B0}, v{B0+2}\nv_add_f32 v{B0+1}, v{B0+1}, v{B0+3}\nv_add_f32 v{B0+4}, v{B0+4}, v{B0+6}\nv_add_f32 v{B0+5}, v{B0+5}, v{B0+7}")
        e(f"v_add_f32 v{B0}, v{B0}, v{B0+4}\nv_add_f32 v{B0+1}, v{B0+1}, v{B0+5}")
        rb_pair(e, B0 + 10, B0, B0 + 1)
        e(f"v_mul_f32 v{B0}, v{B0}, v{g}\nv_mul_f32 v{B0+1}, v{B0+1}, v{g}")
        rb_pair(e, B0 + 10, B0, B0 + 1)
        e(f"v_add_f32 v{B0}, v{B0}, v{y0}\nv_add_f32 v{B0+1}, v{B0+1}, v{y1}\nv_cvt_pk_bf16_f32 v{B0}, v{B0}, v{B0+1}")
        e(f"buffer_store_dword v{B0}, v15, s[{R_O}:{R_O+3}], s{S_CNT} offen {cfg.get('outst', '')}")
    e.label("PB_LOOP")
    e(f"s_lshl_b32 s{S_CNT}, s{S_H}, 6\ns_add_u32 s{S_CNT}, s{S_CNT}, s{S_SEG}\ns_lshl_b32 s{S_CNT}, s{S_CNT}, 2")
    poll_all(e, "KVW", 26, f"s{S_CNT}", 1, 25, 16, False)
    e("s_waitcnt vmcnt(0)\ns_barrier")
    WST(e)
    e(f"s_lshl_b32 s{S_OFF}, s{S_SEG}, 19\ns_lshl_b32 s{S_TMP}, s{S_H}, 14\ns_add_u32 s{S_OFF}, s{S_OFF}, s{S_TMP}\ns_add_u32 s{S_OFF}, s{S_OFF}, {WS_KV}")
    e(f"s_add_u32 s{S_OFF2}, s{S_OFF}, 4096\ns_lshl_b32 s{S_TMP}, s63, 12\ns_add_u32 s{S_CNT}, s{S_OFF}, s{S_TMP}\ns_add_u32 s{S_CNT}, s{S_CNT}, 8192")
    lds_ = []
    for js in range(4):
        lds_.append(f"buffer_load_dwordx4 {vr(KF+4*js,4)}, v{V_L16}, {WS}, s{S_OFF} offen offset:{js*1024} sc1")
        lds_.append(f"buffer_load_dwordx4 {vr(KF+16+4*js,4)}, v{V_L16}, {WS}, s{S_OFF2} offen offset:{js*1024} sc1")
        lds_.append(f"buffer_load_dwordx4 {vr(VF+4*js,4)}, v{V_L16}, {WS}, s{S_CNT} offen offset:{js*1024} sc1")
    seq = {}
    def rd(n):
        s, rt = n // 2, n % 2
        seq[n] = e(f"ds_read_b128 {vr(XF + 4 * (n % 8), 4)}, v{V_XRD} offset:{(rt * 16 + s) * 1024}")
    sg = e(f"ds_read_b128 {vr(TT,4)}, v12")
    for n in range(6): rd(n)
    for n in range(32):
        s, rt = n // 2, n % 2
        e.waitlg(seq[n])
        x = XF + 4 * (n % 8)
        for t in range(2):
            a = ACC + 4 * (t * 2 + rt)
            e(mfd(a, (t * 16 + s) * 4, x, "0" if s == 0 else a, "a", "v"))
            if t == 0 and n + 6 < 32: rd(n + 6)
        if n % 2 == 1 and n // 2 < 12: e(lds_[n // 2])
    for i in range(4):
        e(f"v_lshlrev_b32 v{TT+4}, 16, v{TT+i}\nv_and_b32 v{TT+5}, 0xffff0000, v{TT+i}\nv_lshlrev_b32 v{TT+6}, 16, v{GW+i}\nv_and_b32 v{TT+7}, 0xffff0000, v{GW+i}")
        e(f"v_mul_f32 v{TT+4}, v{TT+4}, v{TT+6}\nv_mul_f32 v{TT+5}, v{TT+5}, v{TT+7}")
        rb_pair(e, TT + 6, TT + 4, TT + 5)
        e(f"v_add_f32 v{TT+i}, v{TT+4}, v{TT+5}")
    e(f"v_add_f32 v{TT}, v{TT}, v{TT+1}\nv_add_f32 v{TT+2}, v{TT+2}, v{TT+3}\nv_add_f32 v{TT}, v{TT}, v{TT+2}")
    for rt in range(2):
        o = QF + 4 * rt
        for t in range(2):
            a = ACC + 4 * (t * 2 + rt)
            e(f"v_cvt_pk_bf16_f32 v{o+2*t}, v{a}, v{a+1}\nv_cvt_pk_bf16_f32 v{o+2*t+1}, v{a+2}, v{a+3}")
    e(f"s_lshl_b32 s{S_TMP}, s{S_W}, 10\ns_add_u32 s{S_TMP}, s{S_TMP}, {W_QX}\nv_add_u32 v{V_T}, s{S_TMP}, v{V_L16}")
    e(f"ds_write_b128 v{V_T}, {vr(QF,4)}\nds_write_b128 v{V_T}, {vr(QF+4,4)} offset:4096")
    for ror in (1, 2, 4, 8):
        e(f"s_nop 1\nv_add_f32_dpp v{TT}, v{TT}, v{TT} row_ror:{ror} row_mask:0xf bank_mask:0xf")
    for op in ("v_permlane16_swap_b32", "v_permlane32_swap_b32"):
        e(f"v_mov_b32 v{TT+1}, v{TT}\ns_nop 1\n{op} v{TT}, v{TT+1}\nv_add_f32 v{TT}, v{TT}, v{TT+1}")
    e(f"v_cvt_pk_bf16_f32 v{TT}, v{TT}, v{TT}\nv_lshlrev_b32 v{TT}, 16, v{TT}\nv_mul_f32 v{TT}, 0xbfb8aa3b, v{TT}\nv_exp_f32 v{TT}, v{TT}\ns_nop 0")
    e(f"v_add_f32 v{TT}, 1.0, v{TT}\nv_rcp_f32 v{TT}, v{TT}\ns_nop 0\nv_cvt_pk_bf16_f32 v{TT}, v{TT}, v{TT}\nv_lshlrev_b32 v{TT}, 16, v{TT}")
    e(f"s_lshl_b32 s{S_TMP}, s{S_SEG}, 5\ns_add_u32 s{S_TMP}, s{S_TMP}, s{S_H}\ns_lshl_b32 s{S_TMP}, s{S_TMP}, 2\ns_add_u32 s{S_TMP}, s{S_TMP}, {WS_G}")
    e(f"v_mov_b32 v{V_T2}, 0\ns_mov_b64 exec, s[{S_W0M}:{S_W0M+1}]\nbuffer_store_dword v{TT}, v{V_T2}, {WS}, s{S_TMP} offen sc1\ns_mov_b64 exec, -1")
    e(f"s_cmp_eq_u32 s{S_PREV}, -1\ns_cbranch_scc1 PB_NOPREV")
    final()
    e.label("PB_NOPREV")
    e(f"v_mov_b32 v{TT+1}, s{S_CF}\ns_add_u32 s{S_I}, s{S_SEG}, 1")
    WST(e)
    poll_all(e, "CHW", TT + 1, "0", f"s{S_I}", TT + 2, cfg.get("csleep", 4))
    WST(e)
    e(f"s_lshl_b32 s{S_OFF}, s{S_SEG}, 18\ns_lshl_b32 s{S_TMP}, s{S_H}, 13\ns_add_u32 s{S_OFF}, s{S_OFF}, s{S_TMP}\ns_add_u32 s{S_OFF2}, s{S_OFF}, {WS_KVM}")
    e(f"buffer_load_dwordx2 {vr(KM,2)}, v23, {WS}, s{S_OFF2} offen sc1")
    for i in range(2):
        for b in range(2): e(f"buffer_load_dwordx2 {vr(VM+4*i+2*b,2)}, v11, {WS}, s{S_OFF2} offen offset:{i*512 + b*128} sc1")
    e(f"s_waitcnt vmcnt(4)\nds_write2_b32 v22, v{KM}, v{KM+1} offset0:0 offset1:64\ns_waitcnt lgkmcnt(0)\ns_barrier")
    e(f"s_add_u32 s{S_XG}, s{S_XG}, {7 << 15}\ns_xor_b32 s{S_XL}, s{S_XL}, 0x8000")
    e(f"s_lshl_b32 s{S_TMP}, s62, 12\ns_add_u32 s{S_TMP}, s{S_TMP}, {W_QX}\nv_add_u32 v{V_T}, s{S_TMP}, v{V_L16}")
    for js in range(4): e(f"ds_read_b128 {vr(QF+4*js,4)}, v{V_T} offset:{js*1024}")
    for js in range(4):
        for t in range(2): e(f"ds_read_b64_tr_b16 {vr(KM+4*js+2*t,2)}, v10 offset:{js*512 + t*256}")
    e(f"v_xor_b32 v{V_XRD}, 0x8000, v{V_XRD}\nv_xor_b32 v12, 0x8000, v12")
    e("s_waitcnt lgkmcnt(0)")
    X0, X1, M = SS_, SS_ + 4, SS_ + 8
    for js in range(4):
        c = lambda r: "0" if js == 0 else r
        e(mfd(X0, KF + 4 * js, QF + 4 * js, c(X0))); e(mfd(X1, KF + 16 + 4 * js, QF + 4 * js, c(X1))); e(mfd(M, KM + 4 * js, QF + 4 * js, c(M)))
    for g in x_dma(e):
        for s in g: e(s)
    e(f"v_mov_b32 v{TT}, 0xf149f2ca")
    for kt in range(2):
        for i in range(4):
            e(f"v_cmp_le_i32 vcc, {i}, v{8+kt}\ns_nop 1\nv_cndmask_b32 v{SS_+4*kt+i}, v{TT}, v{SS_+4*kt+i}, vcc")
    e("s_mov_b32 exec_lo, 0")
    for i in range(4): e(f"v_mov_b32 v{M+i}, v{TT}")
    e("s_mov_b32 exec_lo, -1")
    mx, t2 = TT + 1, TT + 2
    e(f"v_max3_f32 v{mx}, v{X0}, v{X0+1}, v{X0+2}\nv_max3_f32 v{t2}, v{X1}, v{X1+1}, v{X1+2}\nv_max3_f32 v{mx}, v{mx}, v{X0+3}, v{X1+3}")
    e(f"v_max3_f32 v{t2}, v{t2}, v{M}, v{M+1}\nv_max3_f32 v{mx}, v{mx}, v{M+2}, v{M+3}\nv_max_f32 v{mx}, v{mx}, v{t2}")
    for op in ("v_permlane16_swap_b32", "v_permlane32_swap_b32"):
        e(f"v_mov_b32 v{t2}, v{mx}\ns_nop 1\n{op} v{mx}, v{t2}\nv_max_f32 v{mx}, v{mx}, v{t2}")
    e(f"v_mul_f32 v{mx}, s{S_SC}, v{mx}")
    EE = [SS_ + i for i in range(12)]
    for x in EE: e(f"v_fma_f32 v{x}, v{x}, s{S_SC}, -v{mx}")
    for x in EE: e(f"v_exp_f32 v{x}, v{x}")
    e(f"s_nop 0\nv_add_f32 v{mx}, v{EE[0]}, v{EE[1]}")
    for x in EE[2:]: e(f"v_add_f32 v{mx}, v{mx}, v{x}")
    for op in ("v_permlane16_swap_b32", "v_permlane32_swap_b32"):
        e(f"v_mov_b32 v{t2}, v{mx}\ns_nop 1\n{op} v{mx}, v{t2}\nv_add_f32 v{mx}, v{mx}, v{t2}")
    e(f"v_rcp_f32 v{mx}, v{mx}\ns_nop 0")
    for x in EE: e(f"v_mul_f32 v{x}, v{x}, v{mx}")
    for i in range(4): e(f"v_cvt_pk_bf16_f32 v{PB+i}, v{SS_+2*i}, v{SS_+2*i+1}")
    e(f"v_cvt_pk_bf16_f32 v{PB+4}, v{M}, v{M+1}\nv_cvt_pk_bf16_f32 v{PB+5}, v{M+2}, v{M+3}")
    e("s_waitcnt vmcnt(8)")
    for i in range(2): e(f"v_swap_b32 v{VM+4*i+1}, v{VM+4*i+2}")
    e("s_nop 1")
    for T in range(4): e(mfd(OA + 4 * T, VF + 4 * T, PB, "0"))
    for T in range(4):
        e(f"v_mfma_f32_16x16x16_bf16 {vr(OA+4*T,4)}, {vr(VM+2*T,2)}, {vr(PB+4,2)}, {vr(OA+4*T,4)}")
    e(f"s_add_u32 s{S_OFF}, s{S_OFF}, {WS_O}\ns_lshl_b32 s{S_TMP}, s62, 12\ns_add_u32 s{S_OFF}, s{S_OFF}, s{S_TMP}\ns_lshl_b32 s{S_TMP}, s63, 11\ns_add_u32 s{S_OFF}, s{S_OFF}, s{S_TMP}\ns_nop 3")
    for j in range(2):
        for t in range(2):
            a = OA + 4 * (2 * j + t)
            e(f"v_cvt_pk_bf16_f32 v{QF+4*j+2*t}, v{a}, v{a+1}\nv_cvt_pk_bf16_f32 v{QF+4*j+2*t+1}, v{a+2}, v{a+3}")
        e(f"buffer_store_dwordx4 {vr(QF+4*j,4)}, v{V_L16}, {WS}, s{S_OFF} offen offset:{j*1024} sc1")
    e("s_waitcnt vmcnt(0)\ns_barrier")
    e(f"s_lshl_b32 s{S_OFF2}, s{S_SEG}, 7\ns_add_u32 s{S_OFF2}, s{S_OFF2}, {FL_OFLAG}\ns_lshl_b32 s{S_TMP}, s{S_H}, 2\ns_add_u32 s{S_CNT}, s{S_OFF2}, s{S_TMP}")
    flag_store(e, S_CNT, 1)
    e(f"s_mov_b32 s{S_PREV}, s{S_SEG}\ns_add_u32 s{S_SEG}, s{S_SEG}, 7\ns_cmp_lt_u32 s{S_SEG}, 64\ns_cbranch_scc1 PB_LOOP")
    final()

def worker(e, cfg):
    e(f"s_sub_u32 s{S_G}, s{S_GRP}, 1\ns_mov_b32 s{S_CNT}, 0")
    e("v_mov_b32 v15, v2")
    lane_consts(e, f"v{V_C}", f"v{V_G}")
    e(f"v_lshlrev_b32 v{V_L16}, 4, v0\nv_mov_b32 v{V_XRD}, v{V_L16}")
    e(f"s_lshr_b32 s{S_TMP}, s{S_W}, 1\ns_lshl_b32 s{S_TMP}, s{S_TMP}, 14\ns_and_b32 s{S_TMP2}, s{S_W}, 1\ns_lshl_b32 s{S_TMP2}, s{S_TMP2}, 9\ns_add_u32 s{S_TMP}, s{S_TMP}, s{S_TMP2}")
    e(f"v_lshlrev_b32 v{V_XSRC}, 10, v{V_C}\nv_lshl_add_u32 v{V_XSRC}, v{V_G}, 4, v{V_XSRC}\nv_add_u32 v{V_XSRC}, s{S_TMP}, v{V_XSRC}")
    srd(e, R_X, S_Q, 0x200000)
    _cfg.update(cfg)
    if cfg.get("pref") in (2, 4):
        pc = cfg.get("prefc")
        if pc: e(f"s_cmp_lt_u32 s{S_G}, 3\ns_cbranch_scc1 PF_E")
        e(f"s_lshl_b32 s{S_TMP2}, s{S_G}, 5\ns_add_u32 s{S_TMP2}, s{S_TMP2}, s{S_H}\nv_lshlrev_b32 v16, 6, v15")
        if pc: e(f"s_sub_u32 s{S_TMP2}, s{S_TMP2}, 96")
        e.label("PF_L")
        e(f"s_lshl_b32 s{S_TMP}, s{S_TMP2}, 14\nv_add_u32 v17, s{S_TMP}, v16")
        for i, p in enumerate([S_WQ, S_WK, S_WV, S_WO][:cfg["pref"]] if cfg["pref"] == 4 else [S_WQ, S_WO]):
            e(f"global_load_dword v{248+i}, v17, s[{p}:{p+1}]")
        e(f"s_add_u32 s{S_TMP2}, s{S_TMP2}, {128 if pc else 224}\ns_cmp_lt_u32 s{S_TMP2}, 256\ns_cbranch_scc1 PF_L")
        e.label("PF_E")
    if cfg.get("wstamp"): e("s_mov_b32 s101, 0")
    WST(e)
    if cfg.get("hold") is not None:
        e(f"s_cmp_lt_u32 s{S_G}, {cfg['hold']}\ns_cbranch_scc{0 if cfg.get('holdinv') else 1} HOLD_END")
        e.label("HOLD")
        e(f"s_sleep 32\ns_memrealtime s[70:71]\ns_waitcnt lgkmcnt(0)\ns_sub_u32 s70, s70, s3\ns_cmp_lt_u32 s70, {cfg['holdus']*100}\ns_cbranch_scc1 HOLD")
        e.label("HOLD_END")
    if not cfg.get("noconv"): conv(e, cfg)
    WST(e)
    wload_addr(e)
    phaseA(e, cfg)
    WST(e)
    phaseB(e, cfg)
    WST(e)
    if cfg.get("dbgt"):
        e(f"s_memrealtime s[70:71]\ns_waitcnt lgkmcnt(0)\ns_sub_u32 s70, s70, s3\nv_mov_b32 v20, s70\nv_mov_b32 v21, 20\ns_mov_b64 exec, s[{S_W0M}:{S_W0M+1}]\nglobal_atomic_umax v21, v20, s[{S_DBG}:{S_DBG+1}]")
```

```python
from asmlib import Em, vr
from layout import *

S_Q, S_K, S_V, S_SH, S_SSMK, S_SSMD, S_MEM0 = 4, 6, 8, 10, 12, 14, 16
S_WQ, S_WK, S_WV, S_WO, S_GATE, S_OUT, S_DBG, S_WS = 20, 22, 24, 26, 28, 30, 32, 34
R_WS, R_T, R_T2 = 36, 40, 44
S_W, S_XCC, S_GRP, S_H = 48, 49, 50, 51
S_W0M = 76
NINIT = 28
SPIN_MAX = 1 << 15
DBGC = False

def srd(e, r, p, size):
    e(f"s_mov_b32 s{r}, s{p}\ns_mov_b32 s{r+1}, s{p+1}\ns_mov_b32 s{r+2}, {size}\ns_mov_b32 s{r+3}, 0x20000")

def lane_consts(e, c, g, lane="v0"):
    e(f"v_and_b32 {c}, 15, {lane}\nv_lshrrev_b32 {g}, 4, {lane}")

def emit_UB(e, dst, c, b, t):
    e(f"v_lshrrev_b32 {t}, 1, {b}")
    e(f"v_lshl_add_u32 {t}, {t}, 3, {c}")
    e(f"v_and_b32 {t}, 15, {t}")
    e(f"v_lshl_add_u32 {t}, {b}, 4, {t}")
    e(f"v_lshlrev_b32 {dst}, 3, {t}")

IDX, A_RSR, A_AGW, A_AGR, A_TR, A_TRK, A_UW, A_W, A_KX, A_VX, T0, A_RSW, SEL = 0, 1, 2, 3, 4, 5, 6, 7, 8, 9, 10, 11, 12
MEMA, QB, KXA, XT, ACA, ACB = 16, 48, 64, 88, 96, 104
WV0 = 112
S_STEP, S_RSW0, S_RSW1, S_RSR0, S_RSR1, S_AGW, S_AGRST, S_AGR0, S_AGR1 = 52, 53, 54, 55, 56, 57, 58, 59, 60
S_KVG, S_KVL, S_KVM, S_READY, S_SPIN, S_AGSLOT, S_TMP, S_TMP2 = 61, 62, 63, 64, 65, 66, 67, 68
S_M0, S_M1, S_M2 = 70, 72, 74
S_AGM = 72
S_ODD = 78
S_SC = 80
S_CF = 81
S_MODE = 82
S_TAG = 83
S_KVG2, S_FLV = 10, 11
S_XG0, S_XL0 = 96, 97
S_KFO = 58
S_RSR = [55, 56, 4, 5]
S_EM, S_LM, S_LB = 4, 6, 8
S_AGM2 = 74
S_ST = 84

BLOCKS = [("q", J) for J in range(3, 8)] + [("k", J) for J in range(8)] + [("v", J) for J in range(8)] \
       + [("o", (0, p)) for p in range(4)] + [("q", 0), ("q", 1), ("q", 2)] + [("o", (1, p)) for p in range(4)]
NREG = 25
def frag_reg(i):
    if i < 32: return ("a", 8 * i)
    return ("v", WV0 + 8 * (i - 32))
FRAG = {}
for n, (m, J) in enumerate(BLOCKS):
    for t in range(2):
        if n < NREG: FRAG[(m, J, t)] = frag_reg(2 * n + t)
        else: FRAG[(m, J, t)] = ("lds", (n - NREG) * 4096 + t * 2048)
def slot_addr(n):
    s = n % 10
    wl = {5: 0, 6: 1, 7: 2, 8: 3, 9: 4, 0: 5, 1: 6}
    return ("wl", wl[s]) if s in wl else ("ot", s - 2)

def wait_init(e, tag, vt):
    l = e.newlabel("WI"); d = e.newlabel("WID")
    e(f"s_mov_b32 s{S_SPIN}, 0")
    e(f"v_mbcnt_lo_u32_b32 v{vt+1}, -1, 0\nv_mbcnt_hi_u32_b32 v{vt+1}, -1, v{vt+1}\nv_lshlrev_b32 v{vt+1}, 2, v{vt+1}")
    e.label(l)
    e(f"global_load_dword v{vt}, v{vt+1}, s[{S_DBG}:{S_DBG+1}] sc1")
    e(f"s_add_u32 s{S_SPIN}, s{S_SPIN}, 1")
    e("s_waitcnt vmcnt(0)")
    e(f"v_readlane_b32 s{S_TMP}, v{vt}, {DBG_INIT//4}")
    e(f"s_cmp_ge_u32 s{S_TMP}, {NINIT}\ns_cbranch_scc1 {d}")
    e("s_sleep 16")
    e(f"s_cmp_lt_u32 s{S_SPIN}, {SPIN_MAX}\ns_cbranch_scc1 {l}")
    e.label(d)

def kv_poll(e, va, vb, done):
    l = e.newlabel("KR")
    e(f"s_mov_b32 s{S_SPIN}, 0")
    e(f"v_mbcnt_lo_u32_b32 v{vb}, -1, 0\nv_mbcnt_hi_u32_b32 v{vb}, -1, v{vb}\nv_lshlrev_b32 v{vb}, 2, v{vb}")
    e.label(l)
    if DBGC: e(f"s_lshl_b32 s{S_TMP}, 1, s{S_STEP}\ns_or_b32 s60, s60, s{S_TMP}\ns_add_u32 s57, s57, 0")
    e(f"s_lshl_b32 s{S_TMP}, s{S_H}, 8")
    e(f"buffer_load_dword v{va}, v{vb}, s[{R_WS}:{R_WS+3}], s{S_TMP} offen sc1")
    e(f"s_add_u32 s{S_SPIN}, s{S_SPIN}, 1")
    e("s_waitcnt vmcnt(0)")
    e(f"v_cmp_eq_u32 vcc, 0, v{va}\ns_ff1_i32_b64 s{S_READY}, vcc")
    e(f"s_cmp_gt_u32 s{S_READY}, s{S_TMP2}\ns_cbranch_scc1 {done}")
    e("s_sleep 16")
    e(f"s_cmp_lt_u32 s{S_SPIN}, {SPIN_MAX}\ns_cbranch_scc1 {l}")
    e(f"s_branch {done}")

def kv_ready(e, delta, va, vb):
    d = e.newlabel("KRD")
    e(f"s_add_u32 s{S_TMP2}, s{S_STEP}, {delta}\ns_cmp_gt_u32 s{S_READY}, s{S_TMP2}\ns_cbranch_scc1 {d}")
    kv_poll(e, va, vb, d)
    e.label(d)

def kv_dma(e, g=None, l=None):
    out = []
    for i in range(4):
        pre = [f"s_add_u32 m0, s{l or S_KVL}, {(i//2)*8192}", f"s_add_u32 s{S_TMP}, s{g or S_KVG}, {(i//2)*8192}"]
        out.append(pre + [f"buffer_load_dwordx4 v{A_AGR}, s[{R_WS}:{R_WS+3}], s{S_TMP} offen offset:{(i%2)*1024} sc1 lds"])
    return out

def chain_prologue(e, cfg={}):
    e("; ---- chain prologue")
    if cfg.get("prost") == 2: e("s_memrealtime s[92:93]")
    lane_consts(e, "v16", "v17")
    e("v_and_b32 v18, 3, v0\nv_lshrrev_b32 v19, 2, v0")
    e(f"s_lshl_b32 s{S_TMP}, s{S_H}, 8\ns_lshl_b32 s{S_TMP2}, s{S_W}, 6\ns_add_u32 s{S_TMP}, s{S_TMP}, s{S_TMP2}")
    e(f"v_lshlrev_b32 v20, 13, v19\nv_lshl_add_u32 v20, v18, 4, v20\nv_add_u32 v20, s{S_TMP}, v20")
    e(f"s_lshl_b32 s{S_TMP}, s{S_H}, 17\ns_lshl_b32 s{S_TMP2}, s{S_W}, 8\ns_add_u32 s{S_TMP}, s{S_TMP}, s{S_TMP2}")
    e(f"v_lshlrev_b32 v21, 10, v19\nv_lshl_add_u32 v21, v18, 4, v21\nv_add_u32 v21, s{S_TMP}, v21")
    e("v_and_b32 v22, 1, v17\nv_lshlrev_b32 v22, 5, v22")
    e("v_lshrrev_b32 v23, 1, v17\nv_lshl_add_u32 v22, v23, 2, v22")
    e("v_lshrrev_b32 v23, 3, v16\nv_lshl_add_u32 v22, v23, 4, v22")
    e("v_bfe_u32 v23, v16, 2, 1\nv_add_u32 v22, v22, v23")
    e("v_lshlrev_b32 v22, 6, v22\nv_lshl_add_u32 v22, v18, 3, v22")
    e(f"s_mul_i32 s{S_KVL}, s{S_W}, 28672")
    e(f"s_mul_i32 s{S_KVG}, s{S_W}, 12288\ns_add_u32 s{S_KVG}, s{S_KVG}, {L_KVB}")
    e(f"v_add_u32 v24, s{S_KVL}, v22\nv_add_u32 v25, s{S_KVG}, v22")
    e(f"v_lshl_add_u32 v{A_W}, v0, 4, s{S_KVL}")
    RW = {"q": R_T, "k": R_T2, "v": 84, "o": 88}
    for m, p in (("q", S_WQ), ("k", S_WK), ("v", S_WV), ("o", S_WO)): srd(e, RW[m], p, 0x400000)
    def issue(n):
        m, J = BLOCKS[n]
        kind, k = slot_addr(n)
        base = S_KVL if kind == "wl" else S_KVG
        for i in range(4):
            e(f"s_add_u32 m0, s{base}, {k*4096 + i*1024}")
            if m == "o":
                so = (64 * J[0] + 16 * i) * 1024 + J[1] * 64
                e(f"s_mov_b32 s{S_TMP}, {so}")
                e(f"buffer_load_dwordx4 v21, s[{RW[m]}:{RW[m]+3}], s{S_TMP} offen lds")
            else:
                so = (64 * J + 16 * i) * 8192
                e(f"s_mov_b32 s{S_TMP}, {so}")
                e(f"buffer_load_dwordx4 v20, s[{RW[m]}:{RW[m]+3}], s{S_TMP} offen lds")
    def consume(n, outstanding):
        m, J = BLOCKS[n]
        kind, k = slot_addr(n)
        e(f"s_waitcnt vmcnt({outstanding})")
        av = "v24" if kind == "wl" else "v25"
        for t in range(2):
            f = FRAG[(m, J, t)]
            for mm in range(4):
                off = k * 4096 + (8 * (mm // 2) + 2 * (mm % 2)) * 64 + t * 32
                if f[0] == "lds": dst = vr(32 + 8 * t + 2 * mm, 2)
                else: dst = vr(f[1] + 2 * mm, 2, f[0])
                e(f"ds_read_b64_tr_b16 {dst}, {av} offset:{off}")
        e("s_waitcnt lgkmcnt(0)")
        if n >= NREG:
            for t in range(2):
                for hf in range(2):
                    e(f"ds_write_b128 v{A_W}, {vr(32+8*t+4*hf,4)} offset:{k*4096 + t*2048 + hf*1024}")
            e("s_waitcnt lgkmcnt(0)")
    N = len(BLOCKS)
    if cfg.get("tlbw"):
        e(f"v_lshlrev_b32 v26, 16, v0\ns_lshl_b32 s{S_TMP}, s{S_H}, 11\nv_add_u32 v26, s{S_TMP}, v26")
        for m in "qkvo": e(f"buffer_load_dword v27, v26, s[{RW[m]}:{RW[m]+3}], 0 offen")
        if cfg["tlbw"] == 2: e("s_waitcnt vmcnt(0)")
    DEP = 4
    srd(e, 92, S_MEM0, 8192)
    e(f"s_lshl_b32 s{S_TMP}, s{S_W}, 8")
    e(f"v_lshlrev_b32 v26, 11, v17\nv_lshl_add_u32 v26, v16, 1, v26\nv_add_u32 v26, s{S_TMP}, v26")
    mem0_ld = []
    for u in range(4):
        mem0_ld += [f"buffer_load_ushort v{48+2*u}, v26, s[92:95], 0 offen offset:{u*64}", f"buffer_load_ushort v{49+2*u}, v26, s[92:95], 0 offen offset:{u*64+32}",
                    f"buffer_load_ushort v{56+2*u}, v26, s[92:95], 0 offen offset:{u*64+1024}", f"buffer_load_ushort v{57+2*u}, v26, s[92:95], 0 offen offset:{u*64+32+1024}"]
    for n in range(DEP):
        if cfg.get("prost") == 2 and n == 1: e("s_memrealtime s[94:95]")
        issue(n)
    if cfg.get("prost") == 2: e("s_memrealtime s[96:97]")
    for x in mem0_ld: e(x)
    e(f"v_and_b32 v26, 2, v0\nv_cmp_eq_u32 vcc, 2, v26\nv_mov_b32 v27, 0x44444444\nv_mov_b32 v28, 0xeeeeeeee")
    e(f"s_mov_b64 s[{S_ODD}:{S_ODD+1}], vcc")
    e(f"v_cndmask_b32 v29, v27, v28, vcc")
    for r in range(4):
        e(f"v_mov_b32 v{SEL+r}, 0")
    e("v_mov_b32 v27, 0x3f80\nv_mov_b32 v28, 0x3f800000")
    for j in range(8):
        e(f"v_cmp_eq_u32 vcc, {j}, v16\ns_nop 1\nv_cndmask_b32 v{SEL+j//2}, v{SEL+j//2}, v{27+(j%2)}, vcc")
    e(f"s_and_b32 s{S_TMP}, s{S_W}, 2\ns_lshl_b32 s{S_TMP}, s{S_TMP}, 11\ns_lshl_b32 s{S_TMP2}, s{S_H}, 7\ns_add_u32 s{S_TMP}, s{S_TMP}, s{S_TMP2}")
    e(f"v_lshrrev_b32 v26, 3, v0\nv_and_b32 v27, 7, v0\nv_lshlrev_b32 v{A_RSR}, 13, v26\nv_lshl_add_u32 v{A_RSR}, v27, 4, v{A_RSR}\nv_add_u32 v{A_RSR}, s{S_TMP}, v{A_RSR}")
    e(f"s_lshl_b32 s{S_TMP2}, s{S_W}, 9\nv_lshl_add_u32 v{A_RSW}, v0, 3, s{S_TMP2}")
    e(f"v_and_b32 v26, 1, v17\nv_lshl_add_u32 v26, v27, 1, v26\ns_and_b32 s{S_TMP2}, s{S_H}, 3\nv_mov_b32 v27, s{S_TMP2}")
    emit_UB(e, f"v{A_AGW}", "v26", "v27", "v28")
    e(f"s_and_b32 s{S_TMP}, s{S_TMP}, 0xfffffe00\nv_add_u32 v{A_AGW}, s{S_TMP}, v{A_AGW}")
    e(f"s_mov_b32 s{S_AGM}, 0x00FF00FF\ns_mov_b32 s{S_AGM+1}, 0\ns_mov_b32 s{S_AGM2}, -1\ns_mov_b32 s{S_AGM2+1}, 0")
    e(f"v_bfe_u32 v26, v0, 3, 1\nv_lshl_add_u32 v{A_AGW}, v26, 14, v{A_AGW}")
    e(f"s_lshl_b32 s{S_TMP}, s{S_W}, 11\ns_add_u32 s{S_TMP}, s{S_TMP}, {L_MEM}")
    e(f"v_lshl_add_u32 v{A_AGR}, v0, 4, s{S_TMP}")
    e(f"s_lshl_b32 s{S_TMP}, s{S_W}, 10\ns_add_u32 s{S_TMP}, s{S_TMP}, {L_QU}")
    emit_UB(e, f"v{A_UW}", "v16", "v17", "v28")
    e(f"v_add_u32 v{A_UW}, s{S_TMP}, v{A_UW}")
    e("v_lshrrev_b32 v26, 2, v16\nv_lshl_add_u32 v26, v17, 2, v26")
    emit_UB(e, f"v{A_TR}", "v26", "v18", "v28")
    e(f"v_add_u32 v{A_TR}, {L_MEM}, v{A_TR}")
    e("v_and_b32 v27, 1, v18\nv_lshlrev_b32 v27, 1, v27\nv_lshrrev_b32 v28, 1, v18\nv_or_b32 v27, v27, v28")
    emit_UB(e, f"v{A_TRK}", "v26", "v27", "v28")
    e(f"v_add_u32 v{A_TRK}, {L_MEM}, v{A_TRK}")
    e(f"v_lshlrev_b32 v{A_KX}, 4, v0\nv_add_u32 v{A_KX}, {L_KVB}, v{A_KX}")
    e(f"v_lshrrev_b32 v26, 1, v17\nv_lshl_add_u32 v26, v26, 4, v16\nv_lshlrev_b32 v26, 4, v26\nv_and_b32 v27, 1, v17\nv_lshl_add_u32 v26, v27, 3, v26")
    e(f"s_lshl_b32 s{S_TMP}, s{S_W}, 11\ns_add_u32 s{S_TMP}, s{S_TMP}, {L_KVB + 8192}\nv_add_u32 v{A_VX}, s{S_TMP}, v26")
    e(f"v_lshlrev_b32 v65, 2, v0\ns_mov_b32 s{S_STEP}, 0\ns_mov_b32 s{S_READY}, 0\ns_mov_b32 s{S_MODE}, 0")
    WSR = f"s[{R_WS}:{R_WS+3}]"
    order = [("B", n) for n in range(DEP) for _ in range(4)] + [("M", 0)] * 16
    def after(kind, n):
        last = max(i for i, x in enumerate(order) if x == (kind, n))
        return min(len(order) - 1 - last, 63)
    for n in range(N):
        consume(n, after("B", n))
        if n + DEP < N:
            issue(n + DEP); order += [("B", n + DEP)] * 4
        if n == 16:
            e(f"global_load_dword v64, v65, s[{S_DBG}:{S_DBG+1}] sc1"); order.append(("D", 0))
        if n == 23:
            e(f"v_readlane_b32 s{S_TMP}, v64, {DBG_INIT//4}\nv_readlane_b32 s{S_MODE}, v64, {DBG_XCC(0)//4}\nv_mov_b32 v66, 0")
            e(f"s_cmp_ge_u32 s{S_TMP}, {NINIT}\ns_cselect_b32 s{S_MODE}, s{S_MODE}, 0\ns_cselect_b64 exec, -1, 0\ns_lshl_b32 s{S_TMP}, s{S_H}, 8")
            e(f"buffer_load_dword v66, v65, {WSR}, s{S_TMP} offen sc1\ns_mov_b64 exec, -1"); order.append(("F", 0))
        if n == 28:
            e("s_barrier")
            e(f"v_cmp_eq_u32 vcc, 0, v66\ns_ff1_i32_b64 s{S_READY}, vcc")
            e(f"s_lshl_b32 s{S_TMP}, s{S_H}, 14\ns_add_u32 s{S_XG0}, s{S_TMP}, {WS_KV - L_MEM}\ns_lshl_b32 s{S_TMP}, s{S_W}, 11\ns_add_u32 s{S_XL0}, s{S_TMP}, {L_KVB}")
            e(f"s_cmp_gt_u32 s{S_READY}, 0\ns_cselect_b64 exec, -1, 0")
            for grp in kv_dma(e, S_XG0, S_XL0):
                for x in grp: e(x)
            e("s_mov_b64 exec, -1"); order += [("K", 0)] * 4
            for r in range(8): e(f"v_lshl_or_b32 v{48+r}, v{56+r}, 16, v{48+r}")
            e(f"s_lshl_b32 s{S_TMP}, s{S_W}, 9\ns_add_u32 s{S_TMP}, s{S_TMP}, {L_QU - L_MEM}\nv_subrev_u32 v27, s{S_TMP}, v{A_UW}")
            for u in range(4): e(f"ds_write_b64 v27, {vr(48+2*u,2)} offset:{u*2048}")
    if cfg.get("gstamp"): e("s_memrealtime s[18:19]\ns_waitcnt lgkmcnt(0)\ns_mov_b32 s69, s18")
    e(f"v_mov_b32 v{IDX}, v29")
    e(f"s_lshl_b32 s{S_TMP}, s{S_H}, 13")
    e(f"s_add_u32 s{S_RSW0}, s{S_TMP}, {WS_RS}\ns_add_u32 s{S_RSW1}, s{S_RSW0}, 4096")
    for i in range(4): e(f"s_mov_b32 s{S_RSR[i]}, {WS_RS + 0x10000 * i}")
    e(f"s_mov_b32 s{S_AGSLOT}, 0\ns_mov_b32 s{S_AGW}, {WS_AG}\ns_mov_b32 s{S_TAG}, 0")
    e(f"s_mov_b32 s{S_KVG}, s{S_XG0}\ns_mov_b32 s{S_KVL}, s{S_XL0}")
    e(f"s_lshl_b32 s{S_TMP}, s{S_H}, 13\ns_add_u32 s{S_KVM}, s{S_TMP}, {WS_KVM - 0x40000}")
    e(f"s_mov_b32 s{S_LB}, 0x3f003f00\ns_mov_b32 s{S_LB+1}, 0x3f803f80")
    e(f"s_lshl_b32 s{S_CF}, s{S_H}, 7\ns_add_u32 s{S_CF}, s{S_CF}, {FL_CFLAG}")
    e(f"s_mov_b32 s{S_SC}, 0x3e0293ee")
    e(f"s_lshl_b32 s{S_KFO}, s{S_H}, 8\ns_add_u32 s{S_KFO}, s{S_KFO}, 4")
    e(f"s_cmp_ge_u32 s{S_MODE}, 32\ns_cbranch_scc1 MODE_D")
    wait_init(e, "c", 32)
    e(f"s_mov_b32 s{S_SPIN}, 0")
    e.label("MODE_L")
    e(f"v_readlane_b32 s{S_MODE}, v32, {DBG_XCC(0)//4}\ns_cmp_ge_u32 s{S_MODE}, 32\ns_cbranch_scc1 MODE_D\ns_mov_b32 s{S_TMP2}, 0")
    for x in range(8):
        e(f"v_readlane_b32 s{S_TMP}, v32, {DBG_XCC(x)//4}\ns_add_u32 s{S_TMP2}, s{S_TMP2}, s{S_TMP}")
    e(f"s_cmp_ge_u32 s{S_TMP2}, 256\ns_cbranch_scc1 MODE_D\ns_sleep 16")
    e(f"global_load_dword v32, v33, s[{S_DBG}:{S_DBG+1}] sc1\ns_add_u32 s{S_SPIN}, s{S_SPIN}, 1\ns_waitcnt vmcnt(0)\ns_cmp_lt_u32 s{S_SPIN}, {SPIN_MAX}\ns_cbranch_scc1 MODE_L")
    e.label("MODE_D")
    e(f"s_cmp_gt_u32 s{S_READY}, 0\ns_cbranch_scc1 KV0_D")
    kv_ready(e, 0, 32, 33)
    for grp in kv_dma(e):
        for s in grp: e(s)
    e.label("KV0_D")
    e(f"s_add_u32 s{S_KVG}, s{S_KVG}, 0x80000\ns_xor_b32 s{S_KVL}, s{S_KVL}, 0x3C000")

def interleave(e, mf, fill):
    def run(x):
        for s in x:
            if callable(s): s()
            else: e(s)
    run(fill.get(-1, []))
    for i, m in enumerate(mf):
        if callable(m): m()
        else: e(m)
        run(fill.get(i, []))

def smf(acc, a, f):
    return f"v_smfmac_f32_16x16x64_bf16 {vr(acc,4)}, {vr(a,4)}, {vr(f[1],8,f[0])}, v{IDX}"
def mf32(d, a, b, c):
    return f"v_mfma_f32_16x16x32_bf16 {vr(d,4)}, {vr(a,4)}, {vr(b,4)}, {c if c == '0' else vr(c,4)}"

NPRE = 5
QL = [(0, 0), (0, 1), (1, 0), (1, 1), (2, 0), (2, 1)]
def rd_ql(e, n, r):
    off = FRAG[("q",) + QL[n]][1]
    e(f"ds_read_b128 {vr(r,4)}, v{A_W} offset:{off}")
    return e(f"ds_read_b128 {vr(r+4,4)}, v{A_W} offset:{off+1024}")
def preload_q(e):
    for n in range(NPRE): rd_ql(e, n, QB + 8 * n)

S_KF = 12
def kv_peek(e):
    e(f"s_min_u32 s{S_TMP}, s{S_STEP}, 59\ns_lshl_b32 s{S_TMP}, s{S_TMP}, 2\ns_add_u32 s{S_TMP}, s{S_TMP}, s{S_KFO}")
    e(f"s_load_dwordx4 s[{S_KF}:{S_KF+3}], s[{S_WS}:{S_WS+1}], s{S_TMP} glc")
def kv_fold(e):
    e(f"s_and_b32 s{S_KF}, s{S_KF}, s{S_KF+1}\ns_and_b32 s{S_KF+2}, s{S_KF+2}, s{S_KF+3}\ns_and_b32 s{S_KF}, s{S_KF}, s{S_KF+2}")
    e(f"s_add_u32 s{S_TMP}, s{S_STEP}, 5\ns_cmp_ge_u32 s{S_STEP}, 59\ns_cselect_b32 s{S_TMP}, -1, s{S_TMP}")
    e(f"s_cmp_eq_u32 s{S_KF}, 1\ns_cselect_b32 s{S_TMP}, s{S_TMP}, 0\ns_max_u32 s{S_READY}, s{S_READY}, s{S_TMP}")

def kv_ready_ool(e, tail, va, vb):
    d = e.newlabel("KRD"); sl = e.newlabel("KRS")
    e(f"s_add_u32 s{S_TMP2}, s{S_STEP}, 1")
    e(f"s_cmp_le_u32 s{S_READY}, s{S_TMP2}\ns_cbranch_scc1 {sl}")
    e.label(d)
    def slow():
        e.label(sl)
        kv_poll(e, va, vb, d)
    tail.append(slow)

def chain_loop(e, fast, cfg):
    st = "" if fast else " sc1"
    tag_ = "F" if fast else "S"
    WS = f"s[{R_WS}:{R_WS+3}]"
    stamps = cfg.get("stamps", [])
    def S(name):
        if name in stamps:
            i = stamps.index(name); e(f"s_memtime s[{S_ST+2*i}:{S_ST+2*i+1}]")
    def SS(name): return lambda: S(name)
    def GS(p, fill, n):
        for i in range(n):
            if f"{p}_{i}" in stamps: fill[i] = [SS(f"{p}_{i}")] + list(fill.get(i, []))
    LOOP, LAST, ENTRY, EARLY = [f"CH{tag_}_{x}" for x in ("LOOP", "LAST", "ENTRY", "EARLY")]
    tail = []
    seq = {}
    def wt(key): return lambda: e.waitlg(seq[key])
    KP, VP, QP = XT + 4, XT + 6, XT + 2
    RP, RED, AGO, T1, AP = MEMA, MEMA + 16, MEMA + 20, MEMA + 22, MEMA + 24
    preload_q(e)
    for r in range(0, 16, 2): e(f"v_mov_b64 {vr(ACA+r,2)}, 0")
    e("s_waitcnt vmcnt(0) lgkmcnt(0)")
    if cfg.get("gstamp"): e("s_memrealtime s[18:19]\ns_memtime s[16:17]")
    kv_ready(e, 1, T0, T1)
    e(f"s_mov_b32 s{S_KF}, 0\ns_mov_b32 s60, 0")
    if cfg.get("prio"): e(f"s_setprio {cfg['prio']}")
    e(f"s_add_u32 s{S_KVG2}, s{S_KVG}, 8192\ns_mov_b32 m0, s{S_KVL}\nv_mov_b32 v{T0}, 0")
    e(f"s_branch {ENTRY}")
    def rs_ld(r):
        for i in range(4): e(f"buffer_load_dwordx4 {vr(r+4*i,4)}, v{A_RSR}, {WS}, s{S_RSR[i]} offen sc1")
    def rs_chk(r, n):
        for i in range(4):
            e(f"s_waitcnt vmcnt({n+3-i})")
            e(mf32(RED, SEL, r + 4 * i, "0" if i == 0 else RED))
            e(f"v_bitop3_b32 v{T1 if i else T0}, v{r+4*i}, v{r+4*i+2}, s{S_TAG} bitop3:0x7e")
            if i: e(f"v_or_b32 v{T0}, v{T0}, v{T1}")
        e(f"v_and_b32 v{T0}, 1, v{T0}\nv_cmp_ne_u32 vcc, 0, v{T0}")
    def ag_ld(r):
        e(f"buffer_load_dwordx4 {vr(r,4)}, v{A_AGR}, {WS}, s{S_AGR0} offen sc1")
        e(f"buffer_load_dwordx4 {vr(r+4,4)}, v{A_AGR}, {WS}, s{S_AGR0} offen offset:1024 sc1")
    def ag_chk(r, n):
        T1 = MEMA + 15
        e(f"s_waitcnt vmcnt({n})")
        e(f"ds_write_b128 v{A_AGR}, {vr(r,4)}\nds_write_b128 v{A_AGR}, {vr(r+4,4)} offset:1024")
        e(f"v_max3_u32 v{T0}, v{r}, v{r+1}, v{r+2}\nv_max3_u32 v{T1}, v{r+4}, v{r+5}, v{r+6}")
        e(f"v_max3_u32 v{T0}, v{T0}, v{r+3}, v{r+7}\nv_max_u32 v{T0}, v{T0}, v{T1}\nv_cmp_eq_u32 vcc, -1, v{T0}")
    def advance():
        e(f"v_mov_b64 {vr(AGO,2)}, -1")
        e(f"v_xor_b32 v{A_KX}, 0x3C000, v{A_KX}\nv_xor_b32 v{A_VX}, 0x3C000, v{A_VX}")
        e(f"v_add_u32 v{A_AGW}, 0x2000, v{A_AGW}\nv_subrev_u32 v{T0}, 0x6000, v{A_AGW}\nv_min_u32 v{A_AGW}, v{A_AGW}, v{T0}")
        e(f"s_add_u32 s{S_AGSLOT}, s{S_AGSLOT}, 0x2000\ns_cmp_eq_u32 s{S_AGSLOT}, 0x6000\ns_cselect_b32 s{S_AGSLOT}, 0, s{S_AGSLOT}")
        e(f"s_add_u32 s{S_AGR0}, s{S_AGSLOT}, {WS_AG - L_MEM}")
        e(f"s_add_u32 s{S_KVG}, s{S_KVG}, 0x80000\ns_xor_b32 s{S_KVL}, s{S_KVL}, 0x3C000\ns_add_u32 s{S_KVM}, s{S_KVM}, 0x40000")
        e(f"s_add_u32 s{S_KVG2}, s{S_KVG}, 8192\ns_mov_b32 m0, s{S_KVL}\ns_mov_b32 s{S_FLV}, s{S_STEP}")
        if cfg.get("peek"): kv_fold(e)
        e(f"s_add_u32 s{S_STEP}, s{S_STEP}, 1\ns_mov_b32 s{S_SPIN}, 0")
        if cfg.get("peek"): kv_peek(e)
    def comm(reducer, d1, d2, K, KR):
        P1, P1R, P2, P2R = [e.newlabel(x) for x in ("P1", "P1R", "P2", "P2R")]
        if not reducer:
            advance()
            preload_q(e)
            e(f"s_xor_b32 s{S_TAG}, s{S_TAG}, 1")
            S("rsi"); S("rs")
        else:
            e.nop(d1)
            S("rsi")
            rsets = [RP, ACA][:KR]
            rs_ld(RP)
            advance()
            preload_q(e)
            if KR > 1:
                e.nop(cfg.get("e1", 5)); rs_ld(ACA)
            rs_chk(RP, 4 * (KR - 1))
            e(f"s_cbranch_vccnz {P1R}")
            e.label(P1 + "_OK")
            S("rs")
            def p1r():
                e.label(P1R)
                for k in range(KR):
                    e(f"s_add_u32 s{S_SPIN}, s{S_SPIN}, 1\ns_cmp_gt_u32 s{S_SPIN}, {SPIN_MAX}\ns_cbranch_scc1 {P1}_OK")
                    e("s_mov_b64 exec, vcc"); rs_ld(rsets[k]); e("s_mov_b64 exec, -1")
                    rs_chk(rsets[(k + 1) % KR], 4 * (KR - 1))
                    e(f"s_cbranch_vccz {P1}_OK")
                e(f"s_branch {P1R}")
            tail.append(p1r)
            e(f"s_xor_b32 s{S_TAG}, s{S_TAG}, 1\ns_nop 1")
            for r in range(4):
                e(f"v_add_f32_dpp v{RED+r}, v{RED+r}, v{RED+r} row_ror:8 row_mask:0xf bank_mask:0xf")
            e(f"s_mov_b64 exec, s[{S_AGM}:{S_AGM+1}]")
            e(f"v_cvt_pk_bf16_f32 v{AGO}, v{RED}, v{RED+1}\nv_cvt_pk_bf16_f32 v{AGO+1}, v{RED+2}, v{RED+3}")
            e(f"s_mov_b64 exec, s[{S_AGM2}:{S_AGM2+1}]\nbuffer_store_dwordx2 {vr(AGO,2)}, v{A_AGW}, {WS}, s{S_AGW} offen{st}\ns_mov_b64 exec, -1")
        S("ags")
        if cfg.get("agbar"): e("s_barrier")
        S("agb")
        kv_ready_ool(e, tail, T0, MEMA + 15)
        e.nop(d2)
        sets = [AP, ACB, MEMA + 16][:K]
        for k, r in enumerate(sets):
            if k: e.nop(cfg.get("e2", 25))
            ag_ld(r)
        ag_chk(AP, 2 * (K - 1))
        e(f"s_cbranch_vccnz {P2R}")
        e.label(P2 + "_OK")
        S("ag")
        def p2r():
            e.label(P2R)
            for k in range(K):
                e(f"s_add_u32 s{S_SPIN}, s{S_SPIN}, {16 if stamps else 1}\ns_cmp_gt_u32 s{S_SPIN}, {SPIN_MAX}\ns_cbranch_scc1 {P2}_OK")
                e("s_mov_b64 exec, vcc"); ag_ld(sets[k]); e("s_mov_b64 exec, -1")
                ag_chk(sets[(k + 1) % K], 2 * (K - 1))
                e(f"s_cbranch_vccz {P2}_OK")
            e(f"s_branch {P2R}")
        tail.append(p2r)
        if stamps:
            sk = e.newlabel("NS")
            e(f"s_waitcnt lgkmcnt(0)\ns_cmp_eq_u32 s{S_STEP}, {cfg.get('stampstep', 40)}\ns_cbranch_scc0 {sk}")
            for i in range(len(stamps)): e(f"v_writelane_b32 v{T0}, s{S_ST+2*i}, {i}")
            e(f"v_writelane_b32 v{T0}, s{S_SPIN}, 10")
            for i in range(5): e(f"s_memrealtime s[{12+4*i}:{13+4*i}]\ns_memtime s[{14+4*i}:{15+4*i}]\ns_nop 5")
            e("s_waitcnt lgkmcnt(0)")
            for i in range(5): e(f"v_writelane_b32 v{T0}, s{12+4*i}, {16+2*i}\nv_writelane_b32 v{T0}, s{14+4*i}, {17+2*i}")
            e(f"s_lshl_b32 s{S_TMP}, s{S_H}, 2\ns_add_u32 s{S_TMP}, s{S_TMP}, s{S_W}\ns_lshl_b32 s{S_TMP}, s{S_TMP}, 8\ns_add_u32 s{S_TMP}, s{S_TMP}, {WS_STAMP}")
            e(f"v_mbcnt_lo_u32_b32 v{T1}, -1, 0\nv_mbcnt_hi_u32_b32 v{T1}, -1, v{T1}\nv_lshlrev_b32 v{T1}, 2, v{T1}")
            e(f"buffer_store_dword v{T0}, v{T1}, {WS}, s{S_TMP} offen")
            e.label(sk)
        for r in range(0, 8, 2): e(f"v_mov_b64 {vr(ACA+r,2)}, 0")
        e(f"v_mov_b32 v{T0}, s{S_FLV}")
        if cfg.get("pubc"): e(f"buffer_store_dwordx4 {vr(KP,4)}, v{A_AGR}, {WS}, s{S_KVM} offen sc1")
        e("s_waitcnt lgkmcnt(0)")
    D = cfg.get("D", [[0, 60], [0, 160], [25, 40], [0, 190]])
    if cfg.get("agbar"): D = [[cfg["d1e"], cfg.get("d2e", 0)], [0, cfg.get("d2e", 0)], [cfg["d1"], cfg["d2"]], [0, cfg["d2"]]]
    KK = [cfg.get("Ke", 1), cfg.get("Ke", 1), cfg.get("K", 2), cfg.get("K", 2)]
    for w in (0, 1, 3):
        e.label(f"{LOOP}_{w}")
        comm(w == 0, D[w][0], D[w][1], KK[w], cfg.get('KRe', 1))
        e(f"s_branch {ENTRY}")
    e(".p2align 6")
    e.label(f"{LOOP}_2")
    comm(True, D[2][0], D[2][1], KK[2], cfg.get('KR', 2))
    e.label(ENTRY)
    e("s_barrier")
    S("b1")
    if cfg.get("stepst"): e("s_memrealtime s[84:85]")
    def rd_m(J, x):
        def f(): seq[("m", J)] = e(f"ds_read_b64_tr_b16 {vr(MEMA+4*J+2*x,2)}, v{A_TR} offset:{(2*(J%2)+x)*2048 + (J//2)*512}")
        return f
    qorder = [(0, 0), (0, 1), (1, 0), (1, 1), (2, 0)] + [(J, t) for J in range(3, 8) for t in range(2)] + [(2, 1)]
    def qf(J, t):
        if J < 3: return ("v", QB + 8 * (QL.index((J, t)) % 5))
        return FRAG[("q", J, t)]
    mq = [smf(ACA + 4 * t, MEMA + 4 * J, qf(J, t)) for J, t in qorder]
    def rd_w(key, r, off):
        def f(): seq[key] = e(f"ds_read_b128 {vr(r,4)}, v{A_W} offset:{off}")
        return f
    def rq(n, hf): return rd_w(("ql", n), QB + 8 * (n % 5) + 4 * hf, FRAG[("q",) + QL[n]][1] + 1024 * hf)
    flag = [f"s_mov_b64 exec, s[{S_W0M}:{S_W0M+1}]", f"buffer_store_dword v{T0}, off, {WS}, s{S_CF} sc1", "s_mov_b64 exec, -1"]
    pubk = f"buffer_store_dwordx2 {vr(KP,2)}, v{A_RSW}, {WS}, s{S_KVM} offen sc1"
    pubv = f"buffer_store_dwordx2 {vr(VP,2)}, v{A_RSW}, {WS}, s{S_KVM} offen offset:2048 sc1"
    if cfg.get("nopub"): pubk = pubv = "s_nop 0"; flag = []
    def dm(i): return "s_nop 0" if cfg.get("nodma") else f"buffer_load_dwordx4 v{A_AGR}, {WS}, s{S_KVG if i < 2 else S_KVG2} offen offset:{(i%2)*1024} sc1 lds"
    z = lambda r: f"v_mov_b64 {vr(r,2)}, 0"
    fill = {-1: [rd_m(J, x) for J in range(4) for x in range(2)] + [f"s_cmp_ge_u32 s{S_STEP}, 63", f"s_cbranch_scc1 {LAST}", wt(("m", 0)), SS("m0")],
            0: [rd_m(4, 0), dm(0)], 1: [rd_m(4, 1), wt(("m", 1))], 2: [rd_m(5, 0), dm(1)], 3: [rd_m(5, 1), wt(("m", 2))],
            4: [f"s_add_u32 m0, s{S_KVL}, 8192", wt(("m", 3))],
            5: [f"s_waitcnt vmcnt({3 if cfg.get('pubc') else 2})", rd_m(6, 0)], 6: [rd_m(6, 1), wt(("m", 4))], 7: [rd_m(7, 0), dm(2)], 8: [rd_m(7, 1), wt(("m", 5))],
            9: [rq(5, 0), dm(3)], 10: [rq(5, 1), wt(("m", 6))], 11: flag, 12: [wt(("m", 7))], 13: [] if cfg.get("pubc") else [pubk], 14: [wt(("ql", 5))],
            }
    if max(KK) > 2:
        fill[0] = ["s_waitcnt vmcnt(0)", rd_m(4, 0), dm(0)]; fill[5] = [rd_m(6, 0)]
    kextra = {}
    dp = cfg.get("dp", 0)
    m0b = f"s_add_u32 m0, s{S_KVL}, 8192"
    if dp:
        for g in (0, 2, 7, 9): fill[g] = fill[g][:1]
        fill[4] = fill[4][1:]
        fill[5] = ["s_waitcnt vmcnt(%d)" % (1 if dp in (1, 2) else 0), rd_m(6, 0)]
        if dp == 1:
            fill[2] += [dm(0)]; fill[7] += [dm(1)]; fill[9] += [m0b]; fill[12] = fill[12] + [dm(2)]; kextra = {5: [dm(3)]}
        if dp == 2:
            fill[2] += [dm(0)]; fill[9] += [dm(1)]; kextra = {3: [m0b], 5: [dm(2)], 11: [dm(3)]}
        if dp == 3:
            fill[7] += [dm(0)]; fill[12] = fill[12] + [dm(1)]; kextra = {3: [m0b], 6: [dm(2)], 14: [dm(3)]}
    if cfg.get("flp") == 1:
        fill[11] = []; kextra[7] = None
    pp = cfg.get("pubp", 0)
    if pp:
        pre = [rd_m(J, x) for J in range(4) for x in range(2)]
        fill[-1] = pre[:pp] + [pubk] + pre[pp:] + [wt(("m", 0)), SS("m0")]
        fill[13] = []; fill[5] = ["s_waitcnt vmcnt(3)", rd_m(6, 0)]
    fill[15] = [pubv]
    for n, g in enumerate([7, 8, 9, 10] if not cfg.get("xz") else [10, 12, 13, 14]): fill[g] = fill[g] + [z(ACB + 2 * n)]
    GS("q", fill, 16)
    interleave(e, mq, fill)
    S("q")
    mk = [smf(ACB + 4 * t, MEMA + 4 * J, FRAG[("k", J, t)]) for J in range(8) for t in range(2)]
    def post_dup(acc, dst):
        return [f"v_add_f32 v{acc}, v{acc}, v{acc+2}", f"v_add_f32 v{acc+1}, v{acc+1}, v{acc+3}",
                f"v_cvt_pk_bf16_f32 v{dst}, v{acc}, v{acc+1}"]
    pq = post_dup(ACA, QP) + post_dup(ACA + 4, QP + 1)
    def rd_q(js, t):
        def f(): seq[("q", js)] = e(f"ds_read_b64_tr_b16 {vr(QB+4*js+2*t,2)}, v{A_TR} offset:{L_QU-L_MEM + js*1024 + t*512}")
        return f
    kxslot = [0, 1, 2, 3, 4, 5, 0, 1]
    def rd_kx(n):
        js, kt = n // 2, n % 2
        def f(): seq[("kx", n)] = e(f"ds_read_b128 {vr(KXA+4*kxslot[n],4)}, v{A_KX} offset:{(kt*4+js)*1024}")
        return f
    def wr_u(key, a, r, t):
        def f(): seq[key] = e(f"ds_write2_b32 v{a}, v{r}, v{r} offset0:{128*t} offset1:{128*t+1}")
        return f
    fill = {0: pq[0:2], 1: pq[2:4], 2: [wr_u("wq0", A_UW, QP, 0)] + pq[4:6], 3: [wr_u("wq1", A_UW, QP + 1, 1)],
            4: [rd_kx(0), f"v_add_u32 v{T0}, {L_KU - L_QU}, v{A_UW}"], 5: [rd_kx(1)], 6: [rd_kx(2)], 7: [rd_kx(3)],
            8: [wt("wq1"), SS("bq0"), "s_barrier", SS("bq1")],
            9: [rd_q(0, 0), rd_q(0, 1)], 10: [rd_q(1, 0), rd_q(1, 1)], 11: [rd_kx(4)], 12: [rd_q(2, 0), rd_kx(5)], 13: [rd_q(2, 1), rd_q(3, 0)],
            14: [rd_q(3, 1)], 15: [wt(("q", 1))]}
    for g, x in kextra.items():
        if x is None: fill[g] = flag; fill[6] = fill[6] + [rd_kx(3)]
        else: fill[g] = fill[g] + x
    if cfg.get("flp") == 1: fill[4] = [rd_kx(0)]; fill[8] = fill[8]; fill[15] = fill[15]; kadd = True
    GS("k", fill, 16)
    interleave(e, mk, fill)
    S("k")
    pk = post_dup(ACB, KP) + post_dup(ACB + 4, KP + 1)
    ms = []
    for js in range(4):
        for kt in range(2):
            n = js * 2 + kt
            ms.append(mf32(ACA + 4 * kt, KXA + 4 * kxslot[n], QB + 4 * js, "0" if js == 0 else ACA + 4 * kt))
    def rd_k(js, t):
        def f(): seq[("k", js)] = e(f"ds_read_b64_tr_b16 {vr(KXA+8+4*js+2*t,2)}, v{A_TRK} offset:{L_KU-L_MEM + js*1024 + t*512}")
        return f
    fill = {0: [rd_kx(6)] + pk[0:2], 1: [rd_kx(7)] + pk[2:4] + ([f"v_add_u32 v{T0}, {L_KU - L_QU}, v{A_UW}"] if cfg.get("flp") == 1 else []),
            2: [wr_u("wk0", T0, KP, 0)] + pk[4:6], 3: [wt(("q", 3)), z(ACB), z(ACB + 2)],
            4: [wr_u("wk1", T0, KP + 1, 1), z(ACB + 4), z(ACB + 6)],
            5: [wt(("kx", 7))],
            }
    GS("sx", fill, 8)
    interleave(e, ms, fill)
    S("Sx")
    mv = [smf(ACB + 4 * t, MEMA + 4 * J, FRAG[("v", J, t)]) for J in range(8) for t in range(2)]
    SM = KXA
    X0, X1 = ACA, ACA + 4
    mx, t2 = KXA + 4, KXA + 5
    e0 = XT
    NV1 = cfg.get("nv1", 10)
    msm = [mf32(SM, KXA + 8 + 4 * js, QB + 4 * js, "0" if js == 0 else SM) for js in range(4)]
    odd = f"s[{S_ODD}:{S_ODD+1}]"
    early = [f"v_max3_f32 v{mx}, v{X0}, v{X0+1}, v{X0+2}", f"v_max3_f32 v{t2}, v{X1}, v{X1+1}, v{X1+2}",
             f"v_max3_f32 v{mx}, v{mx}, v{X0+3}, v{X1+3}", f"v_max_f32 v{mx}, v{mx}, v{t2}",
             f"v_cndmask_b32 v{e0}, v{X0}, v{X0+2}, {odd}", f"v_cndmask_b32 v{e0+1}, v{X0+1}, v{X0+3}, {odd}",
             f"v_cndmask_b32 v{e0+2}, v{X1}, v{X1+2}, {odd}", f"v_cndmask_b32 v{e0+3}, v{X1+1}, v{X1+3}, {odd}"]
    seqm = mv[:NV1] + msm + mv[NV1:]
    PVB0, PVB1, OAC, PA, LB, LA = QB, QB + 8, KXA + 8, KXA + 16, KXA + 20, KXA + 4
    def rd_vx(n):
        t, hf = n // 2, n % 2
        def f(): seq["vx"] = e(f"ds_read_b64 {vr(QB+8*t+2+4*hf,2)}, v{A_VX} offset:{t*1024 + hf*512}")
        return f
    def rd_wo(T, hf):
        return rd_w(("wo", T), MEMA + 8 * (T % 4) + 4 * hf, FRAG[("o", (1, T // 2), T % 2)][1] + 1024 * hf)
    EE = [SM, SM + 1, e0, e0+1, e0+2, e0+3]
    fill = {0: [wt("wk1"), SS("bk0"), "s_barrier", SS("bk1")]}
    for n in range(8): fill[1 + n] = [rd_k(n // 2, n % 2), early[n]]
    xv = cfg.get("xv", 0)
    if xv == 2:
        fill = {1: early[0:1], 2: early[1:3], 3: early[3:5], 4: [wt("wk1"), "s_barrier"],
                5: [rd_k(0, 0), rd_k(0, 1)], 6: [rd_k(1, 0), rd_k(1, 1)], 7: [rd_k(2, 0), rd_k(2, 1)], 8: [rd_k(3, 0), rd_k(3, 1)]}
    if xv == 3:
        fill = {1: early[0:2], 2: early[2:4], 3: [wt("wk1"), "s_barrier"],
                4: [rd_k(0, 0), rd_k(0, 1)], 5: [rd_k(1, 0), rd_k(1, 1)], 6: [rd_k(2, 0)], 7: [rd_k(2, 1)], 8: [rd_k(3, 0), rd_k(3, 1)]}
    if xv == 1:
        for n in range(8): fill[1 + n] = [rd_k(n // 2, n % 2)]
        fill[7] += early[0:1]; fill[8] += early[1:2]
    FLAGPOS = flag
    fill[NV1 - 1] = [rd_wo(0, 0), wt(("k", 0)), SS("k0")] if NV1 - 1 > 8 else fill[NV1 - 1][:1] + [wt(("k", 0))] + fill[NV1 - 1][1:]
    lb = [f"v_mov_b64 {vr(LB,2)}, s[{S_LB}:{S_LB+1}]", f"v_mov_b64 {vr(LB+2,2)}, s[{S_LB}:{S_LB+1}]"]
    zz = [z(OAC), z(OAC + 2), z(OAC + 4), z(OAC + 6), f"v_mov_b32 v{PA+2}, 0"] + lb
    if xv == 1:
        fill[NV1 - 1] = fill[NV1 - 1] + early[2:3]
        fill[NV1] = [wt(("k", 1))] + early[3:5]
        fill[NV1 + 1] = [wt(("k", 2))] + early[5:7]
        fill[NV1 + 2] = [wt(("k", 3))] + early[7:8] + zz[0:1]
        fill[NV1 + 3] = [rd_vx(0)] + zz[1:3]
        zz = zz[3:]
    elif xv in (2, 3):
        rem = early[5:] if xv == 2 else early[4:]
        allv = rem + zz
        k0 = 2 if xv == 3 else 0
        fill[NV1] = [wt(("k", 1))]
        fill[NV1 + 1] = [wt(("k", 2))] + allv[0:k0]
        fill[NV1 + 2] = [wt(("k", 3))] + allv[k0:k0 + 2]
        fill[NV1 + 3] = [rd_vx(0)] + allv[k0 + 2:k0 + 4]
        zz = allv[k0 + 4:]
    else:
        fill[NV1] = [wt(("k", 1))] + zz[0:2]
        fill[NV1 + 1] = [wt(("k", 2))] + zz[2:4]
        fill[NV1 + 2] = [wt(("k", 3))] + zz[4:5]
        fill[NV1 + 3] = [rd_vx(0)] + zz[5:7]
        zz = []
    GS("v1", fill, 14)
    interleave(e, seqm[:NV1 + 4], fill)
    S("Sm")
    rest = seqm[NV1 + 4:]
    assert len(rest) == 6
    def run(x):
        for s in x: s() if callable(s) else e(s)
    run([rest[0], rd_vx(1), rd_vx(2)] + zz[0:1] + [rest[1], rd_vx(3), rd_wo(0, 1),
         f"v_max3_f32 v{mx}, v{mx}, v{SM}, v{SM+1}", f"v_mov_b32 v{t2}, v{mx}",
         rest[2], rd_wo(1, 0), rd_wo(1, 1),
         f"v_permlane32_swap_b32 v{mx}, v{t2}", f"v_max_f32 v{mx}, v{mx}, v{t2}", f"v_mov_b32 v{t2}, v{mx}",
         rest[3], rd_wo(2, 0), rd_wo(2, 1),
         f"v_permlane16_swap_b32 v{mx}, v{t2}", f"v_max_f32 v{mx}, v{mx}, v{t2}",
         rest[4], f"v_mul_f32 v{mx}, s{S_SC}, v{mx}", rest[5], rd_wo(3, 0), rd_wo(3, 1)] + zz[1:] + [
         ]
        + [f"v_fma_f32 v{x}, v{x}, s{S_SC}, -v{mx}" for x in EE] + [f"v_exp_f32 v{x}, v{x}" for x in EE]
        + [f"v_cvt_pk_bf16_f32 v{PA}, v{SM}, v{SM+1}", f"v_cvt_pk_bf16_f32 v{PA+1}, v{e0}, v{e0+1}", f"v_cvt_pk_bf16_f32 v{PA+3}, v{e0+2}, v{e0+3}",
           f"v_permlane32_swap_b32 v{PA}, v{PA+2}"])
    S("soft")
    cv = lambda t, h: f"v_cvt_pk_bf16_f32 v{QB+8*t+h}, v{ACB+4*t+2*h}, v{ACB+4*t+2*h+1}"
    run([cv(0, 0), cv(0, 1), mf32(LA, PA, LB, "0"), wt("vx"), cv(1, 0), cv(1, 1),
         f"v_smfmac_f32_16x16x64_bf16 {vr(OAC,4)}, {vr(PA,4)}, {vr(PVB0,8)}, v{IDX}", "s_nop 0",
         f"v_smfmac_f32_16x16x64_bf16 {vr(OAC+4,4)}, {vr(PA,4)}, {vr(PVB1,8)}, v{IDX}",
         ] + ([
         f"v_pk_add_f32 {vr(LA,2)}, {vr(LA,2)}, {vr(LA+2,2)}", f"v_rcp_f32 v{LA}, v{LA}", f"v_rcp_f32 v{LA+1}, v{LA+1}",
         f"v_pk_add_f32 {vr(OAC,2)}, {vr(OAC,2)}, {vr(OAC+2,2)}", f"v_pk_mul_f32 {vr(OAC,2)}, {vr(OAC,2)}, {vr(LA,2)}", "s_nop 0",
         f"v_pk_add_f32 {vr(OAC+4,2)}, {vr(OAC+4,2)}, {vr(OAC+6,2)}", f"v_cvt_pk_bf16_f32 v{OAC}, v{OAC}, v{OAC+1}",
         f"v_pk_mul_f32 {vr(OAC+4,2)}, {vr(OAC+4,2)}, {vr(LA,2)}", f"v_cvt_pk_bf16_f32 v{OAC+1}, v{OAC+4}, v{OAC+5}"] if cfg.get("usepk") else [
         f"v_add_f32 v{LA}, v{LA}, v{LA+2}", f"v_add_f32 v{LA+1}, v{LA+1}, v{LA+3}", f"v_rcp_f32 v{LA}, v{LA}", f"v_rcp_f32 v{LA+1}, v{LA+1}",
         f"v_add_f32 v{OAC}, v{OAC}, v{OAC+2}", f"v_add_f32 v{OAC+1}, v{OAC+1}, v{OAC+3}",
         f"v_mul_f32 v{OAC}, v{OAC}, v{LA}", f"v_mul_f32 v{OAC+1}, v{OAC+1}, v{LA+1}",
         f"v_add_f32 v{OAC+4}, v{OAC+4}, v{OAC+6}", f"v_add_f32 v{OAC+5}, v{OAC+5}, v{OAC+7}",
         f"v_mul_f32 v{OAC+4}, v{OAC+4}, v{LA}", f"v_mul_f32 v{OAC+5}, v{OAC+5}, v{LA+1}",
         f"v_cvt_pk_bf16_f32 v{OAC}, v{OAC}, v{OAC+1}", f"v_cvt_pk_bf16_f32 v{OAC+1}, v{OAC+4}, v{OAC+5}"]))
    WAC = [QB, QB + 4, QB + 8, QB + 12, ACA, ACA + 4, ACB, ACB + 4]
    so = e(f"ds_write_b64 v{A_UW}, {vr(OAC,2)}")
    S("ow")
    def vpost():
        for t in range(2):
            a = ACB + 4 * t
            e(f"v_pk_add_f32 {vr(a,2)}, {vr(a,2)}, {vr(a+2,2)}\nv_cvt_pk_bf16_f32 v{VP+t}, v{a}, v{a+1}")
    vpost()
    for r in range(0, 16, 2): e(z(QB + r))
    if cfg.get("xo"):
        for r in range(0, 16, 2): e(z(ACA + r))
    e.waitlg(so)
    S("bo0")
    e("s_barrier")
    S("bo1")
    OA = KXA
    for J in range(2):
        for x in range(2):
            seq[("oa", J)] = e(f"ds_read_b64_tr_b16 {vr(OA+4*J+2*x,2)}, v{A_TR} offset:{L_QU-L_MEM + (2*J+x)*1024}")
    if not cfg.get("xo"):
        for r in range(0, 16, 2): e(z(ACA + r))
    mo = []
    for p in range(4):
        for T in (2 * p, 2 * p + 1): mo.append(smf(WAC[T], OA, FRAG[("o", (0, T // 2), T % 2)]))
        for T in (2 * p, 2 * p + 1): mo.append(smf(WAC[T], OA + 4, ("v", MEMA + 8 * (T % 4))))
    RSO = OAC
    def post_pair(p):
        a, b = WAC[2 * p], WAC[2 * p + 1]; d = RSO + 2 * p
        return [f"v_add_f32 v{a}, v{a}, v{a+2}", f"v_add_f32 v{a+1}, v{a+1}, v{a+3}",
                f"v_cvt_pk_bf16_f32 v{d}, v{a}, v{a+1}", f"v_add_f32 v{b}, v{b}, v{b+2}",
                f"v_add_f32 v{b+1}, v{b+1}, v{b+3}", f"v_and_or_b32 v{d}, v{d}, -2, s{S_TAG}",
                f"v_cvt_pk_bf16_f32 v{d+1}, v{b}, v{b+1}",
                f"buffer_store_dwordx2 {vr(d,2)}, v{A_RSW}, {WS}, s{S_RSW0 if p < 2 else S_RSW1} offen offset:{(p%2)*2048}{st}"]
    p0, p1, p2, p3 = [post_pair(p) for p in range(4)]
    fill = {-1: [wt(("oa", 0)), SS("oa")], 1: [wt(("oa", 1))], 2: [rd_wo(4, 0), rd_wo(4, 1)], 3: [rd_wo(5, 0), rd_wo(5, 1)],
            4: ["s_nop 0"] + p0[0:1], 5: p0[1:3], 6: [rd_wo(6, 0), rd_wo(6, 1)] + p0[3:5], 7: [rd_wo(7, 0), rd_wo(7, 1)] + p0[5:7], 8: p0[7:8] + p1[0:1],
            9: [wt(("wo", 4))] + p1[1:3], 10: [wt(("wo", 5))] + p1[3:5], 11: p1[5:7],
            12: p1[7:8] + p2[0:1], 13: [wt(("wo", 6))] + p2[1:3], 14: [wt(("wo", 7))] + p2[3:5],
            15: p2[5:8] + p3[0:3] + ([p3[5]] + p3[3:5] + p3[6:] if not cfg.get("usepk") else [p3[5], f"v_pk_add_f32 {vr(WAC[7],2)}, {vr(WAC[7],2)}, {vr(WAC[7]+2,2)}"] + p3[6:]),
            }
    GS("wo", fill, 16)
    interleave(e, mo, fill)
    S("Wo")
    if cfg.get("stepst"):
        for k in range(12): e(f"s_cmp_eq_u32 s{S_STEP}, {k}\ns_cselect_b32 s{20+k}, s84, s{20+k}")
    e.nop(cfg.get("xdelay", 0))
    for w in (2, 0, 1): e(f"s_cmp_eq_u32 s{S_W}, {w}\ns_cbranch_scc1 {LOOP}_{w}")
    e(f"s_branch {LOOP}_3")
    for t in tail: t()
    e.label(LAST)
    e("s_waitcnt vmcnt(0)")
    for J in range(4, 8):
        for x in range(2): rd_m(J, x)()
    e(pubk); e(pubv)
    e(f"s_add_u32 s{S_KVM}, s{S_KVM}, 0x40000")
    for r in range(0, 8, 2): e(z(ACB + r))
    e("s_waitcnt lgkmcnt(0)")
    for J in range(8):
        for t in range(2): e(smf(ACA + 4 * t, MEMA + 4 * J, FRAG[("k", J, t)]))
    for i, m in enumerate(mv):
        e(m)
        if 2 <= i < 8: e((post_dup(ACA, KP) + post_dup(ACA + 4, KP + 1))[i - 2])
        if i == 8: e(pubk)
    e.nop(8)
    vpost()
    e(pubv)
    e("s_waitcnt vmcnt(0) lgkmcnt(0)\ns_barrier")
    e(f"v_mov_b32 v{T0}, 64\ns_mov_b64 exec, s[{S_W0M}:{S_W0M+1}]")
    e(f"buffer_store_dword v{T0}, off, {WS}, s{S_CF} sc1")
    if cfg.get("gstamp"):
        e(f"s_memrealtime s[84:85]\ns_memtime s[86:87]\ns_waitcnt lgkmcnt(0)\ns_sub_u32 s86, s86, s16\nv_mov_b32 v24, s86\nv_mov_b32 v20, s3\nv_mov_b32 v21, s18\nv_mov_b32 v22, s84\nv_mov_b32 v23, s69")
        e(f"s_lshl_b32 s{S_TMP}, s{S_H}, 4\ns_add_u32 s{S_TMP}, s{S_TMP}, {WS_STAMP + 0x10000}")
        if cfg.get("stepst"):
            for k in range(12): e(f"v_mov_b32 v{30+k}, s{20+k}")
            e(f"s_lshl_b32 s{S_TMP2}, s{S_H}, 6\ns_add_u32 s{S_TMP2}, s{S_TMP2}, {WS_STAMP + 0x11000}")
            for k in range(3): e(f"buffer_store_dwordx4 v[{30+4*k}:{33+4*k}], off, {WS}, s{S_TMP2} offset:{16*k}")
        e(f"buffer_store_dwordx4 v[20:23], off, {WS}, s{S_TMP}\nbuffer_store_dword v24, off, {WS}, s{S_TMP} offset:1024")
    if cfg.get("dbgt"):
        for k, r in enumerate(("s69", "s18", "s84")):
            e(f"s_sub_u32 s{S_TMP}, {r}, s3\nv_mov_b32 v20, s{S_TMP}\nv_mov_b32 v21, {8 + 4*k}\nglobal_atomic_umax v21, v20, s[{S_DBG}:{S_DBG+1}]")
        e(f"v_mov_b32 v20, s60\nv_mov_b32 v21, 28\nglobal_atomic_or v21, v20, s[{S_DBG}:{S_DBG+1}]")
        e(f"v_mov_b32 v20, s86\nv_mov_b32 v21, 24\nglobal_atomic_umax v21, v20, s[{S_DBG}:{S_DBG+1}]")
    e("s_branch KEND")
```

```python
from asmlib import Em, vr
from layout import *
from chain import *

WS = f"s[{R_WS}:{R_WS+3}]"
W_XB, W_QX, W_KMU, W_RED, W_STG = 0x0, 0x10000, 0x12000, 0x13000, 0x10000
NSLOT = 6
S_G, S_SEG, S_CNT, S_XL, S_XG, S_I, S_OFF, S_OFF2, S_STGB = 52, 53, 54, 55, 56, 57, 58, 59, 60
S_STP, S_END, S_PREV, S_CHN = 61, 66, 74, 75
R_X = 84
R_A, R_B = 40, 44
R_O = 88
V_C, V_G, V_L16, V_XSRC, V_XRD, V_T, V_T2 = 1, 2, 3, 4, 5, 6, 7

_cfg = {}
def WST(e, idx=None):
    if not _cfg.get("wstamp"): return
    e(f"s_memrealtime s[70:71]\ns_lshl_b32 s72, s{S_GRP}, 5\ns_add_u32 s72, s72, s{S_H}\ns_lshl_b32 s72, s72, 8\ns_lshl_b32 s73, s101, 2\ns_add_u32 s72, s72, s73")
    e(f"s_add_u32 s72, s72, {WS_STAMP + 0x20000}\ns_add_u32 s101, s101, 1\ns_waitcnt lgkmcnt(0)\ns_sub_u32 s70, s70, s3\nv_mov_b32 v{V_T}, s70\nv_mov_b32 v{V_T2}, 0\ns_mov_b64 exec, s[{S_W0M}:{S_W0M+1}]")
    e(f"buffer_store_dword v{V_T}, v{V_T2}, {WS}, s72 offen\ns_mov_b64 exec, -1\ns_waitcnt vmcnt(0)")

def load_blocks(e, blocks, D=NSLOT):
    N = len(blocks)
    def issue(n):
        r, vs, so, _, _ = blocks[n]
        for i in range(4):
            e(f"s_add_u32 m0, s{S_STGB}, {(n % NSLOT) * 4096 + i * 1024}\ns_mov_b32 s{S_TMP}, {so[i]}")
            e(f"buffer_load_dwordx4 {vs}, s[{r}:{r+3}], s{S_TMP} offen lds")
    for n in range(min(D, N)): issue(n)
    for n in range(N):
        e(f"s_waitcnt vmcnt({4 * min(N - 1 - n, D - 1)})")
        for dst, off in blocks[n][4]:
            e(f"ds_read_b64_tr_b16 {dst}, {blocks[n][3]} offset:{(n % NSLOT) * 4096 + off}")
        e("s_waitcnt lgkmcnt(0)")
        if n + D < N: issue(n + D)

def wmat_blocks(r, abase):
    out = []
    for J in range(8):
        rd = []
        for t in range(2):
            for m in range(4):
                s = 2 * J + m // 2
                rd.append((vr(abase + (t * 16 + s) * 4 + 2 * (m % 2), 2, "a"), (32 * (m // 2) + 4 * (m % 2)) * 64 + t * 32))
        out.append((r, "v20", [(64 * J + 16 * i) * 8192 for i in range(4)], "v22", rd))
    return out

def wo_blocks(r, abase):
    out = []
    for hh in range(8):
        rd = []
        for js in range(4):
            for m in range(2):
                rd.append((vr(abase + (hh * 4 + js) * 4 + 2 * m, 2, "a"), (32 * js + 16 * m) * 32))
        out.append((r, "v21", [(hh * 128 + 32 * i) * 1024 for i in range(4)], "v23", rd))
    return out

def wload_addr(e):
    e("v_and_b32 v18, 3, v0\nv_lshrrev_b32 v19, 2, v0")
    e(f"s_lshl_b32 s{S_TMP}, s{S_H}, 8\ns_lshl_b32 s{S_TMP2}, s{S_W}, 6\ns_add_u32 s{S_TMP}, s{S_TMP}, s{S_TMP2}")
    e(f"v_lshlrev_b32 v20, 13, v19\nv_lshl_add_u32 v20, v18, 4, v20\nv_add_u32 v20, s{S_TMP}, v20")
    e(f"s_lshl_b32 s{S_TMP}, s{S_W}, 20\ns_lshl_b32 s{S_TMP2}, s{S_H}, 5\ns_add_u32 s{S_TMP}, s{S_TMP}, s{S_TMP2}")
    e(f"v_lshrrev_b32 v21, 1, v0\nv_lshlrev_b32 v21, 10, v21\nv_and_b32 v24, 1, v0\nv_lshl_add_u32 v21, v24, 4, v21\nv_add_u32 v21, s{S_TMP}, v21")
    e(f"s_mul_i32 s{S_STGB}, s{S_W}, {NSLOT*4096}\ns_add_u32 s{S_STGB}, s{S_STGB}, {W_STG}")
    e(f"v_lshrrev_b32 v24, 2, v{V_C}")
    e(f"v_lshl_add_u32 v22, v{V_G}, 3, v24\nv_lshlrev_b32 v22, 6, v22\nv_lshl_add_u32 v22, v18, 3, v22\nv_add_u32 v22, s{S_STGB}, v22")
    e(f"v_lshl_add_u32 v23, v{V_G}, 2, v24\nv_lshlrev_b32 v23, 5, v23\nv_lshl_add_u32 v23, v18, 3, v23\nv_add_u32 v23, s{S_STGB}, v23")

def x_dma(e):
    out = []
    for i in range(8):
        out.append([f"s_add_u32 m0, s{S_XL}, {i*1024}", f"s_add_u32 s{S_TMP}, s{S_XG}, {i*64}",
                    f"buffer_load_dwordx4 v{V_XSRC}, s[{R_X}:{R_X+3}], s{S_TMP} offen lds"])
    return out

def flag_store(e, soff, val):
    e(f"v_mov_b32 v{V_T}, {val}\nv_mov_b32 v{V_T2}, s{soff}\ns_mov_b64 exec, s[{S_W0M}:{S_W0M+1}]")
    e(f"buffer_store_dword v{V_T}, v{V_T2}, {WS}, 0 offen sc1\ns_mov_b64 exec, -1")

def mfd(d, a, b, c, pa="v", pb="v"):
    return f"v_mfma_f32_16x16x32_bf16 {vr(d,4)}, {vr(a,4,pa)}, {vr(b,4,pb)}, {c if c == '0' else vr(c,4)}"

def phaseA(e, cfg):
    e("; ---- phase A : K,V projection")
    XF, ACC, OUT = 32, 64, 96
    srd(e, R_A, S_WK, 0x400000); srd(e, R_B, S_WV, 0x400000)
    if cfg.get("seqa"):
        e(f"s_cmp_lt_u32 s{S_G}, 3\ns_cselect_b32 s{S_STP}, 2, 4\ns_cselect_b32 s{S_END}, 28, 64\ns_cselect_b32 s{S_TMP}, 9, 25\ns_add_u32 s{S_SEG}, s{S_G}, s{S_TMP}")
        e(f"s_cmp_eq_u32 s{S_G}, 0\ns_cselect_b32 s{S_STP}, 1, s{S_STP}\ns_cselect_b32 s{S_END}, 10, s{S_END}\ns_cselect_b32 s{S_SEG}, 0, s{S_SEG}")
    else:
        e(f"s_cmp_lt_u32 s{S_G}, 3\ns_cselect_b32 s{S_STP}, 3, 4\ns_cselect_b32 s{S_END}, {cfg.get('asplit', 27)}, 64\ns_cselect_b32 s{S_TMP}, 0, {cfg.get('asplit', 27) - 3}\ns_add_u32 s{S_SEG}, s{S_G}, s{S_TMP}")
    e(f"s_lshl_b32 s{S_XG}, s{S_SEG}, 15\ns_lshl_b32 s{S_XL}, s{S_W}, 13\nv_mov_b32 v{V_XRD}, v{V_L16}")
    for g in x_dma(e):
        for s in g: e(s)
    load_blocks(e, wmat_blocks(R_A, 0) + wmat_blocks(R_B, 128), cfg.get('wda', 6))
    wait_init(e, "w", 24)
    e(f"s_and_b32 s{S_TMP}, s{S_GRP}, 3\ns_lshl_b32 s{S_TMP}, s{S_TMP}, 4\ns_lshr_b32 s{S_TMP2}, s{S_GRP}, 2\ns_add_u32 s{S_TMP}, s{S_TMP}, s{S_TMP2}\ns_nop 3")
    e(f"v_readlane_b32 s{S_MODE}, v24, s{S_TMP}")
    if cfg.get("force_slow"): e(f"s_mov_b32 s{S_MODE}, 0")
    WST(e)
    e(f"s_mov_b32 s{S_I}, 0x7ffffff0")
    pa = cfg.get("pastamp")
    def acc(k):
        if pa: e(f"s_memtime s[70:71]\ns_waitcnt lgkmcnt(0)\ns_sub_u32 s72, s70, s92\ns_mov_b32 s92, s70\ns_add_u32 s{93+k}, s{93+k}, s72")
    if pa: e("s_memtime s[92:93]\ns_waitcnt lgkmcnt(0)\ns_mov_b32 s93, 0\ns_mov_b32 s94, 0\ns_mov_b32 s95, 0\ns_mov_b32 s96, 0")
    e.label("PA_LOOP")
    e("s_waitcnt vmcnt(4)")
    acc(0)
    e("s_barrier")
    acc(1)
    e(f"s_lshl_b32 s{S_TMP}, s{S_STP}, 15\ns_add_u32 s{S_XG}, s{S_XG}, s{S_TMP}\ns_xor_b32 s{S_XL}, s{S_XL}, 0x8000")
    dma = x_dma(e)
    seq = {}
    def rd(n):
        s, rt = n // 2, n % 2
        seq[n] = e(f"ds_read_b128 {vr(XF + 4 * (n % 8), 4)}, v{V_XRD} offset:{(rt * 16 + s) * 1024}")
    for n in range(6): rd(n)
    for n in range(32):
        s, rt = n // 2, n % 2
        e.waitlg(seq[n])
        x = XF + 4 * (n % 8)
        for t in range(2):
            a = ACC + 4 * (t * 2 + rt)
            e(mfd(a, (t * 16 + s) * 4, x, "0" if s == 0 else a, "a", "v"))
            if t == 0 and n + 6 < 32: rd(n + 6)
        for t in range(2):
            a = ACC + 16 + 4 * (t * 2 + rt)
            e(mfd(a, x, 128 + (t * 16 + s) * 4, "0" if s == 0 else a, "v", "a"))
        if n % 3 == 1 and n // 3 < 8:
            for q in dma[n // 3]: e(q)
        if n == 14:
            e("s_waitcnt vmcnt(5)\ns_barrier")
            flag_store(e, S_I, 1)
    acc(2)
    e(f"v_xor_b32 v{V_XRD}, 0x8000, v{V_XRD}")
    e(f"s_lshl_b32 s{S_OFF}, s{S_SEG}, 19\ns_lshl_b32 s{S_TMP}, s{S_H}, 14\ns_add_u32 s{S_OFF}, s{S_OFF}, s{S_TMP}\ns_add_u32 s{S_OFF}, s{S_OFF}, {WS_KV}")
    e(f"s_lshl_b32 s{S_TMP}, s{S_W}, 10\ns_add_u32 s{S_TMP2}, s{S_OFF}, s{S_TMP}\ns_nop 0\ns_lshl_b32 s{S_I}, s{S_H}, 6\ns_add_u32 s{S_I}, s{S_I}, s{S_SEG}\ns_lshl_b32 s{S_I}, s{S_I}, 2")
    for rt in range(2):
        o = OUT + 4 * rt
        for t in range(2):
            a = ACC + 4 * (t * 2 + rt)
            e(f"v_cvt_pk_bf16_f32 v{o+2*t}, v{a}, v{a+1}\nv_cvt_pk_bf16_f32 v{o+2*t+1}, v{a+2}, v{a+3}")
        e(f"buffer_store_dwordx4 {vr(o,4)}, v{V_L16}, {WS}, s{S_TMP2} offen sc1")
        e(f"s_add_u32 s{S_TMP2}, s{S_TMP2}, 4096")
    e(f"s_add_u32 s{S_TMP2}, s{S_TMP2}, s{S_TMP}")
    for t in range(2):
        o = OUT + 8 + 4 * t
        for rt in range(2):
            a = ACC + 16 + 4 * (t * 2 + rt)
            e(f"v_cvt_pk_bf16_f32 v{o+2*rt}, v{a}, v{a+1}\nv_cvt_pk_bf16_f32 v{o+2*rt+1}, v{a+2}, v{a+3}")
        e(f"buffer_store_dwordx4 {vr(o,4)}, v{V_L16}, {WS}, s{S_TMP2} offen offset:{t*1024} sc1")
    acc(3)
    e(f"s_add_u32 s{S_SEG}, s{S_SEG}, s{S_STP}\ns_cmp_lt_u32 s{S_SEG}, s{S_END}\ns_cbranch_scc1 PA_LOOP")
    e("s_waitcnt vmcnt(0)\ns_barrier")
    flag_store(e, S_I, 1)
    if pa:
        e(f"s_lshl_b32 s72, s{S_GRP}, 5\ns_add_u32 s72, s72, s{S_H}\ns_lshl_b32 s72, s72, 4\ns_add_u32 s72, s72, {WS_STAMP + 0x30000}")
        e(f"v_mov_b32 v32, s93\nv_mov_b32 v33, s94\nv_mov_b32 v34, s95\nv_mov_b32 v35, s96\nv_mov_b32 v36, 0\nbuffer_store_dwordx4 v[32:35], v36, {WS}, s72 offen")

def poll_all(e, name, vaddr, soff, cmpv, vt, sleep=8, bar=True):
    l, d = e.newlabel(name), e.newlabel(name + "D")
    e(f"s_cmp_eq_u32 s{S_W}, 0\ns_cbranch_scc0 {d}\ns_mov_b32 s{S_SPIN}, 0")
    e.label(l)
    e(f"buffer_load_dword v{vt}, v{vaddr}, {WS}, {soff} offen sc1\ns_add_u32 s{S_SPIN}, s{S_SPIN}, 1\ns_waitcnt vmcnt(0)")
    e(f"v_cmp_gt_u32 vcc, {cmpv}, v{vt}\ns_cbranch_vccz {d}\ns_sleep {sleep}")
    e(f"s_cmp_lt_u32 s{S_SPIN}, {SPIN_MAX}\ns_cbranch_scc1 {l}")
    e.label(d)
    if bar: e("s_barrier")

def rb_pair(e, d, a, b):
    e(f"v_cvt_pk_bf16_f32 v{d}, v{a}, v{b}\nv_lshlrev_b32 v{a}, 16, v{d}\nv_and_b32 v{b}, 0xffff0000, v{d}")

C_UR, C_HP, URS, HPC = 0x0, 0x8000, 7680, 4160
HPS = 4 * HPC
def conv(e, cfg):
    e("; ---- conv task")
    S_TK = S_OFF
    e(f"s_cmp_lt_u32 s{S_G}, 3\ns_cbranch_scc1 CV_END\ns_sub_u32 s{S_TK}, s{S_G}, 3\ns_lshl_b32 s{S_TK}, s{S_TK}, 5\ns_add_u32 s{S_TK}, s{S_TK}, s{S_H}")
    if cfg.get("cvwait") is not None:
        wait_init(e, "w", 24)
        e(f"s_lshl_b32 s{S_OFF2}, s{S_H}, 8\ns_add_u32 s{S_OFF2}, s{S_OFF2}, {4*cfg['cvwait']}\nv_mov_b32 v24, 0")
        poll_all(e, "CVS", 24, f"s{S_OFF2}", 1, 25, 32)
    srd(e, R_A, S_K, 0x200000); srd(e, R_B, S_V, 0x200000)
    KR, VR, SH, P, U = 32, 56, 72, 88, 112
    e(f"s_lshl_b32 s{S_TMP}, s{S_W}, 6\nv_add_u32 v16, s{S_TMP}, v0")
    e(f"s_lshl_b32 s{S_TMP}, s{S_TK}, 3\nv_lshlrev_b32 v17, 13, v16\nv_add_u32 v17, s{S_TMP}, v17")
    e("v_subrev_u32 v18, 3072, v17")
    for j in range(3): e(f"buffer_load_dwordx2 {vr(KR+2*j,2)}, v18, s[{R_A}:{R_A+3}], 0 offen offset:{j*1024}")
    e("v_add_u32 v19, 4096, v17")
    for j in range(8):
        va = "v17" if j < 4 else "v19"
        e(f"buffer_load_dwordx2 {vr(KR+6+2*j,2)}, {va}, s[{R_A}:{R_A+3}], 0 offen offset:{(j%4)*1024}")
        e(f"buffer_load_dwordx2 {vr(VR+2*j,2)}, {va}, s[{R_B}:{R_B+3}], 0 offen offset:{(j%4)*1024}")
    e(f"s_lshl_b32 s{S_TMP2}, s{S_TK}, 2\ns_add_u32 s{S_TMP2}, s{S_TMP2}, s{S_W}")
    e(f"s_lshl_b32 s{S_XG}, s{S_TMP2}, 12\ns_mul_i32 s{S_XL}, s{S_W}, {HPS}\ns_add_u32 s{S_XL}, s{S_XL}, {C_HP}")
    e(f"s_add_u32 s{R_O}, s{S_SSMK}, s{S_XG}\ns_addc_u32 s{R_O+1}, s{S_SSMK+1}, 0\ns_mov_b32 s{R_O+2}, 4096\ns_mov_b32 s{R_O+3}, 0x20000")
    HR = 140
    for i in range(5):
        e(f"v_add_u32 v22, {i*1024 - 64}, v{V_L16}\nv_add_u32 v23, {i*1024 - 48}, v{V_L16}")
        e(f"buffer_load_dwordx4 {vr(HR+6*i,4)}, v22, s[{R_O}:{R_O+3}], 0 offen\nbuffer_load_dwordx2 {vr(HR+6*i+4,2)}, v23, s[{R_O}:{R_O+3}], 0 offen")
    e(f"s_lshl_b32 s{S_TMP}, s{S_TK}, 5\ns_load_dwordx8 s[92:99], s[{S_SH}:{S_SH+1}], s{S_TMP}")
    e(f"s_lshl_b32 s{S_TMP}, s{S_TMP2}, 1\ns_and_b32 s{S_TMP}, s{S_TMP}, -4\ns_load_dword s{S_CNT}, s[{S_SSMD}:{S_SSMD+1}], s{S_TMP}")
    e(f"v_mov_b64 v[24:25], 0\nv_mov_b64 v[26:27], 0")
    e(f"s_mul_i32 s{S_I}, s{S_W}, {URS}\nv_add_u32 v20, s{S_I}, v{V_L16}")
    for i in range(2): e(f"ds_write_b128 v20, v[24:27] offset:{5120 + i*1024}")
    e(f"s_mov_b32 exec_hi, 0\nds_write_b128 v20, v[24:27] offset:{5120 + 2048}\ns_mov_b64 exec, -1")
    e("v_lshlrev_b32 v20, 3, v16\nv_sub_u32 v20, 2040, v20\nv_lshrrev_b32 v21, 5, v20\nv_and_b32 v20, 31, v20")
    e("v_mul_u32_u24 v21, 80, v21\nv_lshl_add_u32 v20, v20, 1, v21")
    e("s_waitcnt vmcnt(10) lgkmcnt(0)")
    if cfg.get("cvstamp"): WST(e)
    e("v_cmp_eq_u32 vcc, 0, v16\ns_nop 1")
    for r in range(6): e(f"v_cndmask_b32 v{KR+r}, v{KR+r}, v24, vcc")
    for ch in range(4):
        for j in range(4):
            src = 92 + ch * 2 + j // 2
            e(f"s_lshl_b32 s{62+j}, s{src}, 16" if j % 2 == 0 else f"s_and_b32 s{62+j}, s{src}, 0xffff0000")
        KF = 120
        for j in range(11):
            r = KR + 2 * j + ch // 2
            e(f"v_lshlrev_b32 v{KF+j}, 16, v{r}" if ch % 2 == 0 else f"v_and_b32 v{KF+j}, 0xffff0000, v{r}")
        for pr in range(4):
            a, b, t1, t2, d = P, P + 1, P + 2, P + 3, P + 4
            r0 = 2 * pr
            e(f"v_mul_f32 v{a}, s65, v{KF+r0}\nv_mul_f32 v{b}, s65, v{KF+r0+1}")
            rb_pair(e, d, a, b)
            for j in (2, 1, 0):
                e(f"v_mul_f32 v{t1}, s{62+j}, v{KF+r0+3-j}\nv_mul_f32 v{t2}, s{62+j}, v{KF+r0+1+3-j}")
                rb_pair(e, d, t1, t2)
                e(f"v_add_f32 v{a}, v{a}, v{t1}\nv_add_f32 v{b}, v{b}, v{t2}")
                rb_pair(e, d, a, b)
            for q, rr in ((t1, r0), (t2, r0 + 1)):
                r = VR + 2 * rr + ch // 2
                e(f"v_lshlrev_b32 v{q}, 16, v{r}" if ch % 2 == 0 else f"v_and_b32 v{q}, 0xffff0000, v{r}")
            e(f"v_mul_f32 v{a}, v{a}, v{t1}\nv_mul_f32 v{b}, v{b}, v{t2}")
            e(f"v_cvt_pk_bf16_f32 v{U+3-pr}, v{b}, v{a}")
        e(f"ds_write_b128 v20, {vr(U,4)} offset:{ch*URS}\ns_nop 1")
    if cfg.get("cvstamp"): WST(e)
    e(f"s_waitcnt vmcnt(0)\nv_add_u32 v22, s{S_XL}, v{V_L16}")
    for i in range(5):
        x = HR + 6 * i
        if i == 4: e("s_mov_b64 exec, 15")
        for k in range(4): e(f"v_alignbyte_b32 v{P+k}, v{x+k+1}, v{x+k}, 2")
        for k in range(4): e(f"v_alignbyte_b32 v{P+4+k}, v{x+k+2}, v{x+k+1}, 2")
        for k in range(4): e(f"v_mov_b32 v{P+8+k}, v{x+k+1}")
        e(f"ds_write_b128 v22, {vr(x,4)} offset:{i*1024}\nds_write_b128 v22, {vr(P,4)} offset:{i*1024 + HPC}")
        e(f"ds_write_b128 v22, {vr(P+8,4)} offset:{i*1024 + 2*HPC}\nds_write_b128 v22, {vr(P+4,4)} offset:{i*1024 + 3*HPC}\ns_waitcnt lgkmcnt(0)")
    e("s_mov_b64 exec, -1\ns_barrier")
    if cfg.get("cvstamp"): WST(e)
    e(f"v_and_b32 v16, 31, v0\nv_lshrrev_b32 v17, 5, v0")
    e(f"v_lshl_add_u32 v18, v17, 3, v16\nv_add_u32 v18, 1, v18\nv_and_b32 v19, 3, v18\nv_and_b32 v18, -4, v18\nv_mul_u32_u24 v19, {HPC}, v19")
    e(f"v_lshl_add_u32 v18, v18, 1, v19\nv_add_u32 v18, s{S_XL}, v18")
    e(f"v_sub_u32 v19, 63, v16\nv_mul_u32_u24 v19, 80, v19\nv_lshl_add_u32 v19, v17, 4, v19\nv_add_u32 v19, s{S_I}, v19")
    e("v_subrev_u32 v21, 2560, v19")
    AC0, AC1, FR, NB = 32, 48, 64, 3
    seq = {}
    def rd(sg):
        b = FR + 16 * (sg % NB); bo = (sg // 2) * 80 + (sg % 2) * 32
        e(f"ds_read_b64 {vr(b,2)}, v18 offset:{sg*32}\nds_read_b64 {vr(b+2,2)}, v18 offset:{sg*32+8}")
        e(f"ds_read_b128 {vr(b+4,4)}, v19 offset:{bo}")
        e(f"ds_read_b128 {vr(b+8,4)}, v21 offset:{bo}")
        seq[sg] = e(f"ds_read_b64 {vr(b+12,2)}, v18 offset:{sg*32+2048}\nds_read_b64 {vr(b+14,2)}, v18 offset:{sg*32+2056}")
    def mm(d, a, b, first): return f"v_mfma_f32_32x32x16_bf16 {vr(d,16)}, {vr(a,4)}, {vr(b,4)}, {'0' if first else vr(d,16)}"
    rd(0); rd(1)
    for sg in range(64):
        b = FR + 16 * (sg % NB)
        e.waitlg(seq[sg])
        e(mm(AC0, b, b + 4, sg == 0))
        if sg + 2 < 64: rd(sg + 2)
        e(mm(AC1, b, b + 8, sg == 0))
        e(mm(AC1, b + 12, b + 4, False))
    if cfg.get("cvstamp"): WST(e)
    e(f"s_bitcmp1_b32 s{S_TMP2}, 0\ns_cbranch_scc1 CV_D1\ns_lshl_b32 s{S_CNT}, s{S_CNT}, 16")
    e.label("CV_D1")
    e(f"s_and_b32 s{S_CNT}, s{S_CNT}, 0xffff0000")
    e(f"v_lshlrev_b32 v22, 5, v17\nv_sub_u32 v22, v19, v22\nv_lshl_add_u32 v22, v17, 3, v22")
    e(f"v_lshlrev_b32 v23, 6, v16\nv_lshl_add_u32 v23, v17, 3, v23")
    e(f"s_lshl_b32 s{S_XG}, s{S_TMP2}, 12\ns_add_u32 s{S_XG}, s{S_XG}, {WS_Y2}")
    e("v_subrev_u32 v24, 2560, v22")
    for tl in range(2):
        for q in range(4):
            e(f"ds_read_b64 {vr(FR + 8*tl + 2*q, 2)}, {'v22' if tl == 0 else 'v24'} offset:{56 - 16*q}")
    e("s_waitcnt lgkmcnt(0)\ns_nop 7")
    for tl in range(2):
        for q in range(4):
            y = (AC0 if tl == 0 else AC1) + 4 * q; u = FR + 8 * tl + 2 * q; t = 96
            e(f"v_and_b32 v{t}, 0xffff0000, v{u+1}\nv_lshlrev_b32 v{t+1}, 16, v{u+1}\nv_and_b32 v{t+2}, 0xffff0000, v{u}\nv_lshlrev_b32 v{t+3}, 16, v{u}")
            for i in range(4): e(f"v_mul_f32 v{t+i}, s{S_CNT}, v{t+i}")
            rb_pair(e, t + 4, t, t + 1); rb_pair(e, t + 4, t + 2, t + 3)
            rb_pair(e, t + 4, y, y + 1); rb_pair(e, t + 4, y + 2, y + 3)
            for i in range(4): e(f"v_add_f32 v{y+i}, v{y+i}, v{t+i}")
            e(f"v_cvt_pk_bf16_f32 v{y}, v{y}, v{y+1}\nv_cvt_pk_bf16_f32 v{y+1}, v{y+2}, v{y+3}")
            e(f"buffer_store_dwordx2 {vr(y,2)}, v23, {WS}, s{S_XG} offen offset:{tl*2048 + q*16} sc1")
    if cfg.get("cvstamp"): e("s_nop 0"); WST(e)
    e("s_waitcnt vmcnt(0)\ns_barrier")
    wait_init(e, "w", 24)
    e(f"s_lshl_b32 s{S_TK}, s{S_TK}, 2\ns_add_u32 s{S_TK}, s{S_TK}, {FL_CONV}")
    flag_store(e, S_TK, 1)
    e.label("CV_END")

def phaseB(e, cfg):
    e("; ---- phase B")
    srd(e, R_A, S_WQ, 0x400000); srd(e, R_B, S_WO, 0x400000)
    wload_addr(e)
    e(f"s_mov_b32 s{S_SEG}, s{S_G}\ns_lshl_b32 s{S_XG}, s{S_SEG}, 15\ns_lshl_b32 s{S_XL}, s{S_W}, 13")
    e(f"v_mov_b32 v{V_XRD}, v{V_L16}")
    for g in x_dma(e):
        for s in g: e(s)
    load_blocks(e, wmat_blocks(R_A, 0) + wo_blocks(R_B, 128), cfg.get('wdb', 6))
    srd(e, R_O, S_OUT, 0x200000); srd(e, R_A, S_GATE, 1024)
    GW = 16
    e(f"buffer_load_dwordx4 {vr(GW,4)}, v{V_L16}, s[{R_A}:{R_A+3}], 0 offen")
    e(f"s_and_b32 s62, s{S_W}, 1\ns_lshr_b32 s63, s{S_W}, 1")
    e(f"v_lshlrev_b32 v8, 2, v{V_G}\nv_sub_u32 v8, v{V_C}, v8\ns_lshl_b32 s{S_TMP}, s62, 4\nv_add_u32 v8, s{S_TMP}, v8\nv_subrev_u32 v9, 16, v8")
    e(f"v_lshrrev_b32 v25, 2, v{V_C}\nv_lshl_add_u32 v25, v{V_G}, 2, v25\nv_and_b32 v24, 1, v0\nv_lshlrev_b32 v24, 3, v24\nv_lshl_add_u32 v10, v25, 4, v24\nv_add_u32 v10, {W_KMU}, v10")
    e(f"s_lshl_b32 s{S_TMP}, s{S_W}, 9\ns_add_u32 s{S_TMP}, s{S_TMP}, {W_KMU}\nv_lshlrev_b32 v22, 4, v{V_C}\nv_lshl_add_u32 v22, v{V_G}, 2, v22\nv_add_u32 v22, s{S_TMP}, v22")
    e(f"s_lshl_b32 s{S_TMP}, s{S_W}, 9\nv_lshl_add_u32 v23, v0, 3, s{S_TMP}")
    e(f"v_and_b32 v24, 1, v{V_G}\nv_lshl_add_u32 v11, v24, 5, v{V_C}\nv_lshlrev_b32 v11, 3, v11\ns_lshl_b32 s{S_TMP}, s63, 10\ns_add_u32 s{S_TMP}, s{S_TMP}, 2048\nv_add_u32 v11, s{S_TMP}, v11")
    e(f"v_lshrrev_b32 v24, 2, v0\nv_and_b32 v25, 3, v0\nv_lshlrev_b32 v12, 10, v24\nv_lshl_add_u32 v12, v25, 8, v12")
    e(f"s_lshr_b32 s{S_TMP}, s{S_H}, 4\ns_lshl_b32 s{S_TMP}, s{S_TMP}, 14\ns_and_b32 s{S_TMP2}, s{S_H}, 15\ns_lshl_b32 s{S_TMP2}, s{S_TMP2}, 4\ns_add_u32 s{S_TMP}, s{S_TMP}, s{S_TMP2}\nv_add_u32 v12, s{S_TMP}, v12")
    e(f"s_lshl_b32 s{S_TMP}, s{S_W}, 3\nv_lshrrev_b32 v24, 3, v0\nv_add_u32 v24, s{S_TMP}, v24\nv_and_b32 v25, 7, v0")
    e(f"v_lshrrev_b32 v26, 4, v24\nv_and_b32 v27, 15, v24\nv_lshlrev_b32 v13, 10, v26\nv_lshl_add_u32 v13, v27, 4, v13")
    e(f"v_lshrrev_b32 v26, 1, v25\nv_lshl_add_u32 v13, v26, 8, v13\nv_and_b32 v26, 1, v25\nv_lshl_add_u32 v13, v26, 3, v13\nv_add_u32 v13, {W_RED}, v13")
    e(f"s_lshl_b32 s{S_TMP}, s{S_H}, 16\nv_lshlrev_b32 v14, 13, v25\nv_lshl_add_u32 v14, v24, 1, v14\nv_add_u32 v14, s{S_TMP}, v14")
    e(f"s_lshl_b32 s{S_TMP}, s{S_H}, 5\nv_lshlrev_b32 v15, 10, v24\nv_lshl_add_u32 v15, v25, 2, v15\nv_add_u32 v15, s{S_TMP}, v15")
    e(f"v_and_b32 v20, 31, v0\nv_lshlrev_b32 v20, 7, v20\nv_lshlrev_b32 v21, 2, v24")
    e(f"s_lshl_b32 s{S_CF}, s{S_H}, 7\ns_add_u32 s{S_CF}, s{S_CF}, {FL_CFLAG}\ns_mov_b32 s{S_SC}, 0x3e0293ee")
    e(f"v_lshlrev_b32 v24, 2, v0\ns_mov_b32 s{S_OFF}, {FL_CONV}\ns_mov_b32 s{S_OFF2}, {FL_CONV+256}\ns_lshl_b32 s{S_CNT}, s{S_H}, 8")
    e(f"v_mov_b32 v26, 0\ns_mov_b32 s{S_CHN}, 0")
    e(f"s_mov_b32 s{S_PREV}, -1")
    KF, VF, XF, ACC, QF, KM, VM, SS_, PB, OA, TT = 32, 64, 80, 112, 232, 144, 160, 216, 180, 188, 224
    X0, X1, M, MX = SS_, SS_ + 4, 168, 27
    RB, NR, FA = 80, 32, 208
    S_RT = 64
    def final(half=False):
        cd = e.newlabel("CVD")
        e(f"s_cmp_eq_u32 s{S_CHN}, 1\ns_cbranch_scc1 {cd}\ns_mov_b32 s{S_CHN}, 1\ns_mov_b32 s{S_OFF}, {FL_CONV}\ns_mov_b32 s{S_OFF2}, {FL_CONV+256}")
        poll_all(e, "CVW", 24, f"s{S_OFF}", 1, 25, 32, False)
        poll_all(e, "CVW", 24, f"s{S_OFF2}", 1, 25, 32, True)
        e.label(cd)
        e(f"s_lshl_b32 s{S_TMP}, s{S_PREV}, 6\ns_add_u32 s{S_TMP}, s{S_TMP}, {WS_Y2}\ns_add_u32 s{S_I}, s{S_TMP}, 4096")
        e(f"buffer_load_ushort v{TT+4}, v14, {WS}, s{S_TMP} offen sc1\nbuffer_load_ushort v{TT+5}, v14, {WS}, s{S_I} offen sc1")
        e(f"s_lshl_b32 s{S_CNT}, s{S_PREV}, 15\nbuffer_load_dword v{TT+6}, v15, s[{R_X}:{R_X+3}], s{S_CNT} offen")
        e(f"s_lshl_b32 s{S_OFF2}, s{S_PREV}, 12\ns_add_u32 s{S_OFF2}, s{S_OFF2}, {FL_O2}")
        WST(e)
        poll_all(e, "OW", 20, f"s{S_OFF2}", 1, TT + 2, cfg.get("osleep", 4))
        WST(e)
        e(f"s_lshl_b32 s{S_TMP}, s{S_PREV}, 7\ns_add_u32 s{S_TMP}, s{S_TMP}, {WS_G}\nbuffer_load_dword v{TT+7}, v21, {WS}, s{S_TMP} offen sc1")
        e(f"s_lshl_b32 s{S_OFF}, s{S_PREV}, 18\ns_lshl_b32 s{S_TMP}, s{S_W}, 16\ns_add_u32 s{S_OFF}, s{S_OFF}, s{S_TMP}\ns_add_u32 s{S_OFF}, s{S_OFF}, {WS_O}")
        NL = 32 if half else 64
        if half: e(f"s_lshl_b32 s{S_TMP}, s{S_RT}, 12\ns_add_u32 s{S_OFF}, s{S_OFF}, s{S_TMP}")
        def ld(n):
            if n % 4 == 0 and n > 0: e(f"s_add_u32 s{S_OFF}, s{S_OFF}, {8192 if half else 4096}")
            e(f"buffer_load_dwordx4 {vr(RB + 4 * (n % NR), 4)}, v{V_L16}, {WS}, s{S_OFF} offen offset:{(n % 4) * 1024} sc1")
        for n in range(NR): ld(n)
        for n in range(NL):
            hh, rt, js = (n // 4, 0, n % 4) if half else (n // 8, (n // 4) % 2, n % 4)
            e(f"s_waitcnt vmcnt({min(NL - 1 - n, NR - 1)})")
            a = FA + 4 * rt
            e(mfd(a, 128 + (hh * 4 + js) * 4, RB + 4 * (n % NR), "0" if n == 4 * rt else a, "a", "v"))
            if n + NR < NL: ld(n + NR)
        e(f"s_lshl_b32 s{S_TMP}, s{S_W}, 11\ns_add_u32 s{S_TMP}, s{S_TMP}, {W_RED}")
        if half: e(f"s_lshl_b32 s{S_I}, s{S_RT}, 10\ns_add_u32 s{S_TMP}, s{S_TMP}, s{S_I}")
        e(f"v_add_u32 v{V_T}, s{S_TMP}, v{V_L16}\ns_nop 5")
        e(f"ds_write_b128 v{V_T}, {vr(FA,4)}")
        if not half: e(f"ds_write_b128 v{V_T}, {vr(FA+4,4)} offset:1024")
        e("s_waitcnt lgkmcnt(0)\ns_barrier")
        B0 = RB
        for w in range(4): e(f"ds_read_b64 {vr(B0+2*w,2)}, v13 offset:{w*2048}")
        y0, y1, q, g = TT + 4, TT + 5, TT + 6, TT + 7
        e(f"v_lshlrev_b32 v{y0}, 16, v{y0}\nv_lshlrev_b32 v{y1}, 16, v{y1}\nv_lshlrev_b32 v{B0+8}, 16, v{q}\nv_and_b32 v{B0+9}, 0xffff0000, v{q}")
        e(f"v_mul_f32 v{y0}, v{y0}, v{B0+8}\nv_mul_f32 v{y1}, v{y1}, v{B0+9}")
        rb_pair(e, B0 + 10, y0, y1)
        e(f"v_mul_f32 v{y0}, v{y0}, v{g}\nv_mul_f32 v{y1}, v{y1}, v{g}")
        rb_pair(e, B0 + 10, y0, y1)
        e(f"v_sub_f32 v{g}, 1.0, v{g}\nv_cvt_pk_bf16_f32 v{g}, v{g}, v{g}\nv_lshlrev_b32 v{g}, 16, v{g}\ns_waitcnt lgkmcnt(0)")
        e(f"v_add_f32 v{B0}, v{B0}, v{B0+2}\nv_add_f32 v{B0+1}, v{B0+1}, v{B0+3}\nv_add_f32 v{B0+4}, v{B0+4}, v{B0+6}\nv_add_f32 v{B0+5}, v{B0+5}, v{B0+7}")
        e(f"v_add_f32 v{B0}, v{B0}, v{B0+4}\nv_add_f32 v{B0+1}, v{B0+1}, v{B0+5}")
        rb_pair(e, B0 + 10, B0, B0 + 1)
        e(f"v_mul_f32 v{B0}, v{B0}, v{g}\nv_mul_f32 v{B0+1}, v{B0+1}, v{g}")
        rb_pair(e, B0 + 10, B0, B0 + 1)
        e(f"v_add_f32 v{B0}, v{B0}, v{y0}\nv_add_f32 v{B0+1}, v{B0+1}, v{y1}\nv_cvt_pk_bf16_f32 v{B0}, v{B0}, v{B0+1}")
        if half: e(f"s_cmp_eq_u32 s63, s{S_RT}\ns_cselect_b64 exec, -1, 0")
        e(f"buffer_store_dword v{B0}, v15, s[{R_O}:{R_O+3}], s{S_CNT} offen {cfg.get('outst', '')}")
        if half: e("s_mov_b64 exec, -1")
    e.label("PB_LOOP")
    e(f"s_lshl_b32 s{S_CNT}, s{S_H}, 6\ns_add_u32 s{S_CNT}, s{S_CNT}, s{S_SEG}\ns_lshl_b32 s{S_CNT}, s{S_CNT}, 2")
    poll_all(e, "KVW", 26, f"s{S_CNT}", 1, 25, 16, False)
    e("s_waitcnt vmcnt(0)\ns_barrier")
    WST(e)
    e(f"s_lshl_b32 s{S_OFF}, s{S_SEG}, 19\ns_lshl_b32 s{S_TMP}, s{S_H}, 14\ns_add_u32 s{S_OFF}, s{S_OFF}, s{S_TMP}\ns_add_u32 s{S_OFF}, s{S_OFF}, {WS_KV}")
    e(f"s_add_u32 s{S_OFF2}, s{S_OFF}, 4096\ns_lshl_b32 s{S_TMP}, s63, 12\ns_add_u32 s{S_CNT}, s{S_OFF}, s{S_TMP}\ns_add_u32 s{S_CNT}, s{S_CNT}, 8192")
    lds_ = []
    for js in range(4):
        lds_.append(f"buffer_load_dwordx4 {vr(KF+4*js,4)}, v{V_L16}, {WS}, s{S_OFF} offen offset:{js*1024} sc1")
        lds_.append(f"buffer_load_dwordx4 {vr(KF+16+4*js,4)}, v{V_L16}, {WS}, s{S_OFF2} offen offset:{js*1024} sc1")
        lds_.append(f"buffer_load_dwordx4 {vr(VF+4*js,4)}, v{V_L16}, {WS}, s{S_CNT} offen offset:{js*1024} sc1")
    seq = {}
    def rd(n):
        s, rt = n // 2, n % 2
        seq[n] = e(f"ds_read_b128 {vr(XF + 4 * (n % 8), 4)}, v{V_XRD} offset:{(rt * 16 + s) * 1024}")
    sg = e(f"ds_read_b128 {vr(TT,4)}, v12")
    for n in range(6): rd(n)
    for n in range(32):
        s, rt = n // 2, n % 2
        e.waitlg(seq[n])
        x = XF + 4 * (n % 8)
        for t in range(2):
            a = ACC + 4 * (t * 2 + rt)
            e(mfd(a, (t * 16 + s) * 4, x, "0" if s == 0 else a, "a", "v"))
            if t == 0 and n + 6 < 32: rd(n + 6)
        if n % 2 == 1 and n // 2 < 12: e(lds_[n // 2])
    for i in range(4):
        e(f"v_lshlrev_b32 v{TT+4}, 16, v{TT+i}\nv_and_b32 v{TT+5}, 0xffff0000, v{TT+i}\nv_lshlrev_b32 v{TT+6}, 16, v{GW+i}\nv_and_b32 v{TT+7}, 0xffff0000, v{GW+i}")
        e(f"v_mul_f32 v{TT+4}, v{TT+4}, v{TT+6}\nv_mul_f32 v{TT+5}, v{TT+5}, v{TT+7}")
        rb_pair(e, TT + 6, TT + 4, TT + 5)
        e(f"v_add_f32 v{TT+i}, v{TT+4}, v{TT+5}")
    e(f"v_add_f32 v{TT}, v{TT}, v{TT+1}\nv_add_f32 v{TT+2}, v{TT+2}, v{TT+3}\nv_add_f32 v{TT}, v{TT}, v{TT+2}")
    for rt in range(2):
        o = QF + 4 * rt
        for t in range(2):
            a = ACC + 4 * (t * 2 + rt)
            e(f"v_cvt_pk_bf16_f32 v{o+2*t}, v{a}, v{a+1}\nv_cvt_pk_bf16_f32 v{o+2*t+1}, v{a+2}, v{a+3}")
    e(f"s_lshl_b32 s{S_TMP}, s{S_W}, 10\ns_add_u32 s{S_TMP}, s{S_TMP}, {W_QX}\nv_add_u32 v{V_T}, s{S_TMP}, v{V_L16}")
    e(f"ds_write_b128 v{V_T}, {vr(QF,4)}\nds_write_b128 v{V_T}, {vr(QF+4,4)} offset:4096")
    for ror in (1, 2, 4, 8):
        e(f"s_nop 1\nv_add_f32_dpp v{TT}, v{TT}, v{TT} row_ror:{ror} row_mask:0xf bank_mask:0xf")
    for op in ("v_permlane16_swap_b32", "v_permlane32_swap_b32"):
        e(f"v_mov_b32 v{TT+1}, v{TT}\ns_nop 1\n{op} v{TT}, v{TT+1}\nv_add_f32 v{TT}, v{TT}, v{TT+1}")
    e(f"v_cvt_pk_bf16_f32 v{TT}, v{TT}, v{TT}\nv_lshlrev_b32 v{TT}, 16, v{TT}\nv_mul_f32 v{TT}, 0xbfb8aa3b, v{TT}\nv_exp_f32 v{TT}, v{TT}\ns_nop 0")
    e(f"v_add_f32 v{TT}, 1.0, v{TT}\nv_rcp_f32 v{TT}, v{TT}\ns_nop 0\nv_cvt_pk_bf16_f32 v{TT}, v{TT}, v{TT}\nv_lshlrev_b32 v{TT}, 16, v{TT}")
    e(f"s_lshl_b32 s{S_TMP}, s{S_SEG}, 5\ns_add_u32 s{S_TMP}, s{S_TMP}, s{S_H}\ns_lshl_b32 s{S_TMP}, s{S_TMP}, 2\ns_add_u32 s{S_TMP}, s{S_TMP}, {WS_G}")
    e(f"v_mov_b32 v{V_T2}, 0\ns_mov_b64 exec, s[{S_W0M}:{S_W0M+1}]\nbuffer_store_dword v{TT}, v{V_T2}, {WS}, s{S_TMP} offen sc1\ns_mov_b64 exec, -1")
    e("s_waitcnt lgkmcnt(0)\ns_barrier")
    e(f"s_add_u32 s{S_XG}, s{S_XG}, {7 << 15}\ns_xor_b32 s{S_XL}, s{S_XL}, 0x8000")
    e(f"s_lshl_b32 s{S_TMP}, s62, 12\ns_add_u32 s{S_TMP}, s{S_TMP}, {W_QX}\nv_add_u32 v{V_T}, s{S_TMP}, v{V_L16}")
    for js in range(4): e(f"ds_read_b128 {vr(QF+4*js,4)}, v{V_T} offset:{js*1024}")
    e(f"v_xor_b32 v{V_XRD}, 0x8000, v{V_XRD}\nv_xor_b32 v12, 0x8000, v12")
    e("s_waitcnt vmcnt(1) lgkmcnt(0)")
    for js in range(4):
        c = lambda r: "0" if js == 0 else r
        e(mfd(X0, KF + 4 * js, QF + 4 * js, c(X0))); e(mfd(X1, KF + 16 + 4 * js, QF + 4 * js, c(X1)))
    for g in x_dma(e):
        for s in g: e(s)
    e(f"v_mov_b32 v{TT}, 0xf149f2ca")
    for kt in range(2):
        for i in range(4):
            e(f"v_cmp_le_i32 vcc, {i}, v{8+kt}\ns_nop 1\nv_cndmask_b32 v{SS_+4*kt+i}, v{TT}, v{SS_+4*kt+i}, vcc")
    e(f"v_max3_f32 v{MX}, v{X0}, v{X0+1}, v{X0+2}\nv_max3_f32 v{TT}, v{X1}, v{X1+1}, v{X1+2}\nv_max3_f32 v{MX}, v{MX}, v{X0+3}, v{X1+3}\nv_max_f32 v{MX}, v{MX}, v{TT}")
    e(f"s_cmp_eq_u32 s{S_PREV}, -1\ns_cbranch_scc1 PB_NOPREV")
    final()
    e.label("PB_NOPREV")
    e(f"s_lshl_b32 s{S_OFF}, s{S_SEG}, 18\ns_lshl_b32 s{S_TMP}, s{S_H}, 13\ns_add_u32 s{S_OFF}, s{S_OFF}, s{S_TMP}\ns_add_u32 s{S_OFF2}, s{S_OFF}, {WS_KVM}")
    def kvm_ld():
        e(f"buffer_load_dwordx2 {vr(KM,2)}, v23, {WS}, s{S_OFF2} offen sc1")
        for i in range(2):
            for b in range(2): e(f"buffer_load_dwordx2 {vr(VM+4*i+2*b,2)}, v11, {WS}, s{S_OFF2} offen offset:{i*512 + b*128} sc1")
    WST(e)
    if cfg.get("dpoll"):
        e(f"s_cmp_ge_u32 s{S_SEG}, {DP_SEG}\ns_cbranch_scc1 PB_DIRECT")
    e(f"v_mov_b32 v{TT+1}, s{S_CF}\ns_add_u32 s{S_I}, s{S_SEG}, 1")
    poll_all(e, "CHW", TT + 1, "0", f"s{S_I}", TT + 2, cfg.get("csleep", 4))
    kvm_ld()
    e("s_waitcnt vmcnt(0)")
    if cfg.get("dpoll"):
        e("s_branch PB_HAVE")
        e.label("PB_DIRECT")
        e(f"s_mov_b32 s{S_SPIN}, 0")
        e.label("PB_DL")
        kvm_ld()
        e(f"s_add_u32 s{S_SPIN}, s{S_SPIN}, 1\ns_waitcnt vmcnt(0)")
        e(f"v_max3_u32 v{TT}, v{KM}, v{KM+1}, v{VM}")
        for i in range(1, 8, 2): e(f"v_max3_u32 v{TT}, v{TT}, v{VM+i}, v{VM+min(i+1,7)}")
        e(f"v_cmp_eq_u32 vcc, -1, v{TT}\ns_cbranch_vccz PB_HAVE\ns_sleep {cfg.get('dsleep', 6)}\ns_cmp_lt_u32 s{S_SPIN}, {SPIN_MAX}\ns_cbranch_scc1 PB_DL")
        e.label("PB_HAVE")
    WST(e)
    e(f"ds_write2_b32 v22, v{KM}, v{KM+1} offset0:0 offset1:64")
    for i in range(2): e(f"v_swap_b32 v{VM+4*i+1}, v{VM+4*i+2}")
    e(f"v_mov_b32 v{TT}, 0xf149f2ca\ns_waitcnt lgkmcnt(0)\ns_barrier")
    for js in range(4):
        for t in range(2): e(f"ds_read_b64_tr_b16 {vr(KM+4*js+2*t,2)}, v10 offset:{js*512 + t*256}")
    for js in range(4):
        e(f"s_waitcnt lgkmcnt({6-2*js})")
        e(mfd(M, KM + 4 * js, QF + 4 * js, "0" if js == 0 else M))
    e(f"s_add_u32 s{S_OFF}, s{S_OFF}, {WS_O}\ns_lshl_b32 s{S_TMP}, s62, 12\ns_add_u32 s{S_OFF}, s{S_OFF}, s{S_TMP}\ns_lshl_b32 s{S_TMP}, s63, 11\ns_add_u32 s{S_OFF}, s{S_OFF}, s{S_TMP}")
    e(f"s_lshl_b32 s{S_OFF2}, s{S_SEG}, 12\ns_add_u32 s{S_OFF2}, s{S_OFF2}, {FL_O2}\ns_lshl_b32 s{S_TMP}, s{S_H}, 7\ns_add_u32 s{S_CNT}, s{S_OFF2}, s{S_TMP}")
    e("s_mov_b32 exec_lo, 0")
    for i in range(4): e(f"v_mov_b32 v{M+i}, v{TT}")
    e("s_mov_b32 exec_lo, -1")
    mx, t2 = MX, TT + 2
    e(f"v_max3_f32 v{mx}, v{mx}, v{M}, v{M+1}\nv_max3_f32 v{mx}, v{mx}, v{M+2}, v{M+3}")
    for op in ("v_permlane16_swap_b32", "v_permlane32_swap_b32"):
        e(f"v_mov_b32 v{t2}, v{mx}\ns_nop 1\n{op} v{mx}, v{t2}\nv_max_f32 v{mx}, v{mx}, v{t2}")
    e(f"v_mul_f32 v{mx}, s{S_SC}, v{mx}")
    EE = [SS_ + i for i in range(8)] + [M + i for i in range(4)]
    for x in EE: e(f"v_fma_f32 v{x}, v{x}, s{S_SC}, -v{mx}")
    for x in EE: e(f"v_exp_f32 v{x}, v{x}")
    e(f"s_nop 0\nv_add_f32 v{mx}, v{EE[0]}, v{EE[1]}")
    for x in EE[2:]: e(f"v_add_f32 v{mx}, v{mx}, v{x}")
    for op in ("v_permlane16_swap_b32", "v_permlane32_swap_b32"):
        e(f"v_mov_b32 v{t2}, v{mx}\ns_nop 1\n{op} v{mx}, v{t2}\nv_add_f32 v{mx}, v{mx}, v{t2}")
    e(f"v_rcp_f32 v{mx}, v{mx}\ns_nop 0")
    for x in EE: e(f"v_mul_f32 v{x}, v{x}, v{mx}")
    for i in range(4): e(f"v_cvt_pk_bf16_f32 v{PB+i}, v{SS_+2*i}, v{SS_+2*i+1}")
    e(f"v_cvt_pk_bf16_f32 v{PB+4}, v{M}, v{M+1}\nv_cvt_pk_bf16_f32 v{PB+5}, v{M+2}, v{M+3}\ns_nop 0")
    for T in range(4): e(mfd(OA + 4 * T, VF + 4 * T, PB, "0"))
    for T in range(4):
        e(f"v_mfma_f32_16x16x16_bf16 {vr(OA+4*T,4)}, {vr(VM+2*T,2)}, {vr(PB+4,2)}, {vr(OA+4*T,4)}")
    e("s_nop 4")
    for j in range(2):
        for t in range(2):
            a = OA + 4 * (2 * j + t)
            e(f"v_cvt_pk_bf16_f32 v{QF+4*j+2*t}, v{a}, v{a+1}\nv_cvt_pk_bf16_f32 v{QF+4*j+2*t+1}, v{a+2}, v{a+3}")
    def ostore(bits):
        for j in range(2): e(f"buffer_store_dwordx4 {vr(QF+4*j,4)}, v{V_L16}, {WS}, s{S_OFF} offen offset:{j*1024}{bits}")
        e("s_waitcnt vmcnt(0)\ns_barrier")
        e(f"v_mov_b32 v{V_T}, 1\ns_mov_b64 exec, s[{S_W0M}:{S_W0M+1}]\nbuffer_store_dword v{V_T}, off, {WS}, s{S_CNT}{bits}\ns_mov_b64 exec, -1")
    if cfg.get("ofast"):
        e(f"s_cmp_ge_u32 s{S_MODE}, 32\ns_cbranch_scc0 PB_OSLOW")
        ostore("")
        e("s_branch PB_ODONE")
        e.label("PB_OSLOW")
    ostore(" sc1")
    e.label("PB_ODONE")
    e(f"s_mov_b32 s{S_PREV}, s{S_SEG}\ns_add_u32 s{S_SEG}, s{S_SEG}, 7\ns_cmp_lt_u32 s{S_SEG}, 64\ns_cbranch_scc1 PB_LOOP")
    if cfg.get("split"):
        e(f"s_mov_b32 s{S_RT}, 0\ns_cmp_ge_u32 s{S_PREV}, 61\ns_cbranch_scc1 PB_HALF")
        final()
        e(f"s_cmp_eq_u32 s{S_PREV}, 60\ns_cbranch_scc1 PB_END\ns_sub_u32 s{S_PREV}, 120, s{S_PREV}\ns_mov_b32 s{S_RT}, 1\ns_barrier")
        e.label("PB_HALF")
        final(True)
        e.label("PB_END")
    else:
        final()

def worker(e, cfg):
    e(f"s_sub_u32 s{S_G}, s{S_GRP}, 1\ns_mov_b32 s{S_CNT}, 0")
    e("v_mov_b32 v15, v2")
    lane_consts(e, f"v{V_C}", f"v{V_G}")
    e(f"v_lshlrev_b32 v{V_L16}, 4, v0\nv_mov_b32 v{V_XRD}, v{V_L16}")
    e(f"s_lshr_b32 s{S_TMP}, s{S_W}, 1\ns_lshl_b32 s{S_TMP}, s{S_TMP}, 14\ns_and_b32 s{S_TMP2}, s{S_W}, 1\ns_lshl_b32 s{S_TMP2}, s{S_TMP2}, 9\ns_add_u32 s{S_TMP}, s{S_TMP}, s{S_TMP2}")
    e(f"v_lshlrev_b32 v{V_XSRC}, 10, v{V_C}\nv_lshl_add_u32 v{V_XSRC}, v{V_G}, 4, v{V_XSRC}\nv_add_u32 v{V_XSRC}, s{S_TMP}, v{V_XSRC}")
    srd(e, R_X, S_Q, 0x200000)
    _cfg.update(cfg)
    if cfg.get("pref") in (2, 4):
        pc = cfg.get("prefc")
        if pc: e(f"s_cmp_lt_u32 s{S_G}, 3\ns_cbranch_scc1 PF_E")
        e(f"s_lshl_b32 s{S_TMP2}, s{S_G}, 5\ns_add_u32 s{S_TMP2}, s{S_TMP2}, s{S_H}\nv_lshlrev_b32 v16, 6, v15")
        if pc: e(f"s_sub_u32 s{S_TMP2}, s{S_TMP2}, 96")
        e.label("PF_L")
        e(f"s_lshl_b32 s{S_TMP}, s{S_TMP2}, 14\nv_add_u32 v17, s{S_TMP}, v16")
        for i, p in enumerate([S_WQ, S_WK, S_WV, S_WO][:cfg["pref"]] if cfg["pref"] == 4 else [S_WQ, S_WO]):
            e(f"global_load_dword v{248+i}, v17, s[{p}:{p+1}]")
        e(f"s_add_u32 s{S_TMP2}, s{S_TMP2}, {128 if pc else 224}\ns_cmp_lt_u32 s{S_TMP2}, 256\ns_cbranch_scc1 PF_L")
        e.label("PF_E")
    if cfg.get("wstamp"): e("s_mov_b32 s101, 0")
    WST(e)
    if cfg.get("hold") is not None:
        e(f"s_cmp_lt_u32 s{S_G}, {cfg['hold']}\ns_cbranch_scc{0 if cfg.get('holdinv') else 1} HOLD_END")
        e.label("HOLD")
        e(f"s_sleep 32\ns_memrealtime s[70:71]\ns_waitcnt lgkmcnt(0)\ns_sub_u32 s70, s70, s3\ns_cmp_lt_u32 s70, {cfg['holdus']*100}\ns_cbranch_scc1 HOLD")
        e.label("HOLD_END")
    if not cfg.get("noconv"): conv(e, cfg)
    WST(e)
    wload_addr(e)
    phaseA(e, cfg)
    WST(e)
    phaseB(e, cfg)
    WST(e)
    if cfg.get("dbgt"):
        e(f"s_memrealtime s[70:71]\ns_waitcnt lgkmcnt(0)\ns_sub_u32 s70, s70, s3\nv_mov_b32 v20, s70\nv_mov_b32 v21, 20\ns_mov_b64 exec, s[{S_W0M}:{S_W0M+1}]\nglobal_atomic_umax v21, v20, s[{S_DBG}:{S_DBG+1}]")
```

```python
import sys, json
from asmlib import Em, vr, check_hazards
from layout import *
import chain as C
from chain import *

KNAME = "gated_mix__ssm_conv_h3__memory_aug_recurrent_mem_tr__prompt_kernel"

def common_prologue(e, cfg):
    e("s_cmp_ge_u32 s2, 256\ns_cbranch_scc1 KEND")
    e("s_load_dwordx8 s[4:11], s[0:1], 0\ns_load_dwordx4 s[12:15], s[0:1], 32\ns_load_dwordx2 s[16:17], s[0:1], 56")
    e("s_load_dwordx8 s[20:27], s[0:1], 64\ns_load_dwordx4 s[28:31], s[0:1], 104\ns_load_dwordx4 s[32:35], s[0:1], 120")
    e(f"s_getreg_b32 s{S_XCC}, hwreg(HW_REG_XCC_ID)\ns_and_b32 s{S_XCC}, s{S_XCC}, 7")
    e(f"v_lshrrev_b32 v1, 6, v0\nv_mov_b32 v2, v0\nv_and_b32 v0, 63, v0\nv_readfirstlane_b32 s{S_W}, v1")
    e("s_waitcnt lgkmcnt(0)")
    srd(e, R_WS, S_WS, WS_SIZE)
    WS = f"s[{R_WS}:{R_WS+3}]"
    DBG = f"s[{S_DBG}:{S_DBG+1}]"
    e(f"s_cmp_eq_u32 s{S_W}, 0\ns_cbranch_scc0 PRO_NORANK")
    e(f"s_and_b32 s{S_TMP}, s{S_XCC}, 3\ns_lshl_b32 s{S_TMP}, s{S_TMP}, 6\ns_lshr_b32 s{S_TMP2}, s{S_XCC}, 2\ns_lshl_b32 s{S_TMP2}, s{S_TMP2}, 2\ns_add_u32 s{S_TMP}, s{S_TMP}, s{S_TMP2}")
    e(f"v_mov_b32 v3, s{S_TMP}\nv_mov_b32 v4, 1\ns_mov_b64 exec, 1")
    e(f"global_atomic_add v5, v3, v4, {DBG} sc0\ns_mov_b64 exec, -1")
    e.label("PRO_NORANK")
    if cfg.get("pref") == 1:
        e(f"s_barrier\ns_lshl_b32 s{S_TMP}, s2, 14\nv_lshl_add_u32 v17, v2, 6, s{S_TMP}")
        for i, p in enumerate([S_WQ, S_WK, S_WV, S_WO]): e(f"global_load_dword v{248+i}, v17, s[{p}:{p+1}]")
        e("s_waitcnt vmcnt(4)")
    if cfg.get("cpf"):
        e(f"s_getpc_b64 s[{S_TMP+3}:{S_TMP+4}]")
        e.label("CPF_BASE")
        e(f"v_lshlrev_b32 v3, 6, v2\ns_cmp_eq_u32 s{S_W}, 0\ns_cbranch_scc1 CPF_END\nv_subrev_u32 v3, 4096, v3")
        for i in range(cfg["cpf"]):
            e(f"v_cmp_gt_u32 vcc, KEND-CPF_BASE, v3\ns_and_saveexec_b64 s[{S_TMP+5}:{S_TMP+6}], vcc\ns_cbranch_execz CPF_R")
            e(f"global_load_dword v{240+i}, v3, s[{S_TMP+3}:{S_TMP+4}]\nv_add_u32 v3, 12288, v3")
        e.label("CPF_R")
        e("s_mov_b64 exec, -1\ns_branch PRO_W")
        e.label("CPF_END")
    if cfg.get("pref") != 1: e("s_waitcnt vmcnt(0)")
    e(f"s_cmp_eq_u32 s{S_W}, 0\ns_cbranch_scc0 PRO_W")
    e(f"v_readfirstlane_b32 s{S_H}, v5\ns_mov_b32 s{S_GRP}, s{S_XCC}")
    e(f"s_cmp_lt_u32 s{S_H}, 32\ns_cbranch_scc1 PRO_HAVE")
    e(f"v_mov_b32 v3, {DBG_OVF}\ns_mov_b64 exec, 1\nglobal_atomic_add v5, v3, v4, {DBG} sc0\ns_mov_b64 exec, -1")
    e(f"v_lshlrev_b32 v9, 2, v0\ns_mov_b32 s{S_SPIN}, 0")
    e.label("PRO_OV")
    e(f"global_load_dword v10, v9, {DBG} sc1\ns_add_u32 s{S_SPIN}, s{S_SPIN}, 1\ns_waitcnt vmcnt(0)\ns_mov_b32 s{S_TMP2}, 0")
    for x in range(8):
        e(f"v_readlane_b32 s{S_TMP}, v10, {DBG_XCC(x)//4}\ns_add_u32 s{S_TMP2}, s{S_TMP2}, s{S_TMP}")
    e(f"s_cmp_ge_u32 s{S_TMP2}, 256\ns_cbranch_scc1 PRO_OV2\ns_sleep 8\ns_cmp_lt_u32 s{S_SPIN}, {SPIN_MAX}\ns_cbranch_scc1 PRO_OV")
    e.label("PRO_OV2")
    e(f"v_readfirstlane_b32 s{S_TMP2}, v5\ns_mov_b32 s{S_GRP}, 7\ns_mov_b32 s{S_H}, 31")
    for x in range(8):
        nl = f"PRO_OVN{x}"
        e(f"v_readlane_b32 s{S_TMP}, v10, {DBG_XCC(x)//4}\ns_min_u32 s{S_TMP}, s{S_TMP}, 32\ns_add_u32 s{S_SPIN}, s{S_TMP}, s{S_TMP2}")
        e(f"s_cmp_lt_u32 s{S_SPIN}, 32\ns_cbranch_scc0 {nl}\ns_mov_b32 s{S_GRP}, {x}\ns_mov_b32 s{S_H}, s{S_SPIN}\ns_branch PRO_HAVE")
        e.label(nl)
        e(f"s_sub_u32 s{S_TMP2}, s{S_SPIN}, 32")
    e.label("PRO_HAVE")
    e(f"v_mov_b32 v10, s{S_GRP}\nv_mov_b32 v11, s{S_H}\nv_mov_b32 v9, 0\nds_write_b64 v9, v[10:11]\ns_waitcnt lgkmcnt(0)")
    e.label("PRO_W")
    e("s_barrier\nv_mov_b32 v9, 0\nds_read_b64 v[10:11], v9")
    e(f"s_waitcnt lgkmcnt(0)\nv_readfirstlane_b32 s{S_GRP}, v10\nv_readfirstlane_b32 s{S_H}, v11")
    e(f"s_and_b32 s{S_GRP}, s{S_GRP}, 7\ns_and_b32 s{S_H}, s{S_H}, 31")
    e(f"s_cmp_eq_u32 s{S_W}, 0\ns_cselect_b32 s{S_W0M}, 1, 0\ns_mov_b32 s{S_W0M+1}, 0")
    e(f"s_cmp_eq_u32 s{S_GRP}, 0\ns_cbranch_scc1 PRO_NOINIT\ns_cmp_lt_u32 s{S_H}, 4\ns_cbranch_scc0 PRO_NOINIT")
    e(f"s_sub_u32 s{S_TMP2}, s{S_GRP}, 1\ns_lshl_b32 s{S_TMP2}, s{S_TMP2}, 2\ns_add_u32 s{S_TMP2}, s{S_TMP2}, s{S_H}")
    e("v_mov_b64 v[12:13], -1\nv_mov_b64 v[14:15], -1\nv_mov_b32 v8, 0\nv_lshlrev_b32 v9, 4, v2\nv_lshlrev_b32 v3, 2, v2")
    e.label("PRO_INIT")
    e(f"s_lshl_b32 s{S_TMP}, s{S_TMP2}, 13\ns_add_u32 s{S_TMP}, s{S_TMP}, {WS_RS}")
    e(f"buffer_store_dwordx4 v[12:15], v9, {WS}, s{S_TMP} offen sc1\ns_add_u32 s{S_TMP}, s{S_TMP}, 4096")
    e(f"buffer_store_dwordx4 v[12:15], v9, {WS}, s{S_TMP} offen sc1")
    e(f"s_lshl_b32 s{S_TMP}, s{S_TMP2}, 10\nbuffer_store_dword v8, v3, {WS}, s{S_TMP} offen sc1\ns_add_u32 s{S_TMP}, s{S_TMP}, {WS_AG}")
    e(f"buffer_store_dword v12, v3, {WS}, s{S_TMP} offen sc1")
    e(f"s_lshl_b32 s{S_TMP}, s{S_TMP2}, 13\ns_add_u32 s{S_TMP}, s{S_TMP}, {FL_O2}\nv_lshlrev_b32 v16, 5, v2")
    e(f"buffer_store_dword v8, v16, {WS}, s{S_TMP} offen sc1")
    if cfg.get("dpoll"):
        e(f"s_lshl_b32 s{S_TMP}, s{S_TMP2}, 13\ns_add_u32 s{S_TMP}, s{S_TMP}, {WS_KVM + DP_SEG * 0x40000}")
        for sg in range(DP_SEG, 64):
            e(f"buffer_store_dwordx4 v[12:15], v9, {WS}, s{S_TMP} offen sc1\ns_add_u32 s{S_TMP}, s{S_TMP}, 0x40000")
    e(f"s_add_u32 s{S_TMP2}, s{S_TMP2}, 28\ns_cmp_lt_u32 s{S_TMP2}, 32\ns_cbranch_scc1 PRO_INIT")
    e(f"s_waitcnt vmcnt(0)\ns_barrier\nv_mov_b32 v3, {DBG_INIT}\nv_mov_b32 v4, 1\ns_mov_b64 exec, s[{S_W0M}:{S_W0M+1}]")
    e(f"global_atomic_add v3, v4, {DBG}\ns_mov_b64 exec, -1")
    e.label("PRO_NOINIT")
    e("s_barrier")

DEFAULTS = {"agbar":1,"d1e":45,"d1":55,"d2":15,"d2e":30,"Ke":2,"KRe":1,"e1":0,"e2":25,"pref":4,"xv":3,"xo":1,"xz":1,"peek":1,"cpf":6,"wda":1,"wdb":1,"prefc":1,"asplit":30,"dpoll":1,"split":1,"osleep":3}
def build(cfg):
    cfg = {**DEFAULTS, **cfg}
    C.DBGC = bool(cfg.get('dbgt'))
    e = Em()
    e.label(KNAME)
    if cfg.get("gstamp"): e("s_memrealtime s[18:19]\ns_waitcnt lgkmcnt(0)\ns_mov_b32 s3, s18")
    common_prologue(e, cfg)
    e(f"s_cmp_eq_u32 s{S_GRP}, 0\ns_cbranch_scc0 WORKER")
    chain_prologue(e, cfg)
    if cfg.get("force_slow"): e(f"s_mov_b32 s{S_MODE}, 0")
    e(f"s_cmp_ge_u32 s{S_MODE}, 32\ns_cbranch_scc0 CHAIN_SLOW")
    chain_loop(e, True, cfg)
    e.label("CHAIN_SLOW")
    chain_loop(e, False, cfg)
    e.label("WORKER")
    if not cfg.get("chain_only"):
        import worker
        worker.worker(e, cfg)
    else:
        wait_init(e, "w", 32)
        e(f"s_lshl_b32 s{S_TMP}, s{S_H}, 8\nv_lshlrev_b32 v1, 2, v0\nv_mov_b32 v2, 1\nbuffer_store_dword v2, v1, s[{R_WS}:{R_WS+3}], s{S_TMP} offen sc1")
    e.label("KEND")
    e("s_waitcnt vmcnt(0)\ns_endpgm")
    probs = check_hazards(e.lines)
    for p in probs: print("HAZARD", p, file=sys.stderr)
    hdr = open('gated_mix__ssm_conv_h3__memory_aug_recurrent_mem_tr__prompt.s.ref').read().split("; Override launch")[0]
    s = hdr + f"; @launch grid=(256,1,1) block=(256,1,1) lds={LDS_SIZE}\n"
    s += f'.amdgcn_target "amdgcn-amd-amdhsa--gfx950"\n.text\n.globl {KNAME}\n.p2align 8\n.type {KNAME},@function\n'
    s += e.text()
    s += f""".section .rodata,"a"
.p2align 6
.amdhsa_kernel {KNAME}
  .amdhsa_next_free_vgpr 512
  .amdhsa_next_free_sgpr 102
  .amdhsa_accum_offset 256
  .amdhsa_group_segment_fixed_size 0
  .amdhsa_kernarg_size 136
  .amdhsa_user_sgpr_count 2
  .amdhsa_user_sgpr_kernarg_segment_ptr 1
  .amdhsa_system_sgpr_workgroup_id_x 1
.end_amdhsa_kernel
"""
    return s

if __name__ == "__main__":
    out = sys.argv[1]
    cfg = json.loads(sys.argv[2]) if len(sys.argv) > 2 else {}
    open(out, "w").write(build(cfg))
    json.dump(cfg, open(out + ".json", "w"))
```

```python
from asmlib import Em, vr
from layout import *

S_Q, S_K, S_V, S_SH, S_SSMK, S_SSMD, S_MEM0 = 4, 6, 8, 10, 12, 14, 16
S_WQ, S_WK, S_WV, S_WO, S_GATE, S_OUT, S_DBG, S_WS = 20, 22, 24, 26, 28, 30, 32, 34
R_WS, R_T, R_T2 = 36, 40, 44
S_W, S_XCC, S_GRP, S_H = 48, 49, 50, 51
S_W0M = 76
NINIT = 28
SPIN_MAX = 1 << 15
DBGC = False

def srd(e, r, p, size):
    e(f"s_mov_b32 s{r}, s{p}\ns_mov_b32 s{r+1}, s{p+1}\ns_mov_b32 s{r+2}, {size}\ns_mov_b32 s{r+3}, 0x20000")

def lane_consts(e, c, g, lane="v0"):
    e(f"v_and_b32 {c}, 15, {lane}\nv_lshrrev_b32 {g}, 4, {lane}")

def emit_UB(e, dst, c, b, t):
    e(f"v_lshrrev_b32 {t}, 1, {b}")
    e(f"v_lshl_add_u32 {t}, {t}, 3, {c}")
    e(f"v_and_b32 {t}, 15, {t}")
    e(f"v_lshl_add_u32 {t}, {b}, 4, {t}")
    e(f"v_lshlrev_b32 {dst}, 3, {t}")

IDX, A_RSR, A_AGW, A_AGR, A_TR, A_TRK, A_UW, A_W, A_KX, A_VX, T0, A_RSW, SEL = 0, 1, 2, 3, 4, 5, 6, 7, 8, 9, 10, 11, 12
MEMA, QB, KXA, XT, ACA, ACB = 16, 48, 64, 88, 96, 104
WV0 = 112
S_STEP, S_RSW0, S_RSW1, S_RSR0, S_RSR1, S_AGW, S_AGRST, S_AGR0, S_AGR1 = 52, 53, 54, 55, 56, 57, 58, 59, 60
S_KVG, S_KVL, S_KVM, S_READY, S_SPIN, S_AGSLOT, S_TMP, S_TMP2 = 61, 62, 63, 64, 65, 66, 67, 68
S_M0, S_M1, S_M2 = 70, 72, 74
S_AGM = 72
S_ODD = 78
S_SC = 80
S_CF = 81
S_MODE = 82
S_TAG = 83
S_KVG2, S_FLV = 10, 11
S_XG0, S_XL0 = 96, 97
S_KFO = 58
S_RSR = [55, 56, 4, 5]
S_EM, S_LM, S_LB = 4, 6, 8
S_AGM2 = 74
S_ST = 84

BLOCKS = [("q", J) for J in range(3, 8)] + [("k", J) for J in range(8)] + [("v", J) for J in range(8)] \
       + [("o", (0, p)) for p in range(4)] + [("q", 0), ("q", 1), ("q", 2)] + [("o", (1, p)) for p in range(4)]
NREG = 25
def frag_reg(i):
    if i < 32: return ("a", 8 * i)
    return ("v", WV0 + 8 * (i - 32))
FRAG = {}
for n, (m, J) in enumerate(BLOCKS):
    for t in range(2):
        if n < NREG: FRAG[(m, J, t)] = frag_reg(2 * n + t)
        else: FRAG[(m, J, t)] = ("lds", (n - NREG) * 4096 + t * 2048)
def slot_addr(n):
    s = n % 10
    wl = {5: 0, 6: 1, 7: 2, 8: 3, 9: 4, 0: 5, 1: 6}
    return ("wl", wl[s]) if s in wl else ("ot", s - 2)

def wait_init(e, tag, vt):
    l = e.newlabel("WI"); d = e.newlabel("WID")
    e(f"s_mov_b32 s{S_SPIN}, 0")
    e(f"v_mbcnt_lo_u32_b32 v{vt+1}, -1, 0\nv_mbcnt_hi_u32_b32 v{vt+1}, -1, v{vt+1}\nv_lshlrev_b32 v{vt+1}, 2, v{vt+1}")
    e.label(l)
    e(f"global_load_dword v{vt}, v{vt+1}, s[{S_DBG}:{S_DBG+1}] sc1")
    e(f"s_add_u32 s{S_SPIN}, s{S_SPIN}, 1")
    e("s_waitcnt vmcnt(0)")
    e(f"v_readlane_b32 s{S_TMP}, v{vt}, {DBG_INIT//4}")
    e(f"s_cmp_ge_u32 s{S_TMP}, {NINIT}\ns_cbranch_scc1 {d}")
    e("s_sleep 16")
    e(f"s_cmp_lt_u32 s{S_SPIN}, {SPIN_MAX}\ns_cbranch_scc1 {l}")
    e.label(d)

def kv_poll(e, va, vb, done):
    l = e.newlabel("KR")
    e(f"s_mov_b32 s{S_SPIN}, 0")
    e(f"v_mbcnt_lo_u32_b32 v{vb}, -1, 0\nv_mbcnt_hi_u32_b32 v{vb}, -1, v{vb}\nv_lshlrev_b32 v{vb}, 2, v{vb}")
    e.label(l)
    if DBGC: e(f"s_lshl_b32 s{S_TMP}, 1, s{S_STEP}\ns_or_b32 s60, s60, s{S_TMP}\ns_add_u32 s57, s57, 0")
    e(f"s_lshl_b32 s{S_TMP}, s{S_H}, 8")
    e(f"buffer_load_dword v{va}, v{vb}, s[{R_WS}:{R_WS+3}], s{S_TMP} offen sc1")
    e(f"s_add_u32 s{S_SPIN}, s{S_SPIN}, 1")
    e("s_waitcnt vmcnt(0)")
    e(f"v_cmp_eq_u32 vcc, 0, v{va}\ns_ff1_i32_b64 s{S_READY}, vcc")
    e(f"s_cmp_gt_u32 s{S_READY}, s{S_TMP2}\ns_cbranch_scc1 {done}")
    e("s_sleep 16")
    e(f"s_cmp_lt_u32 s{S_SPIN}, {SPIN_MAX}\ns_cbranch_scc1 {l}")
    e(f"s_branch {done}")

def kv_ready(e, delta, va, vb):
    d = e.newlabel("KRD")
    e(f"s_add_u32 s{S_TMP2}, s{S_STEP}, {delta}\ns_cmp_gt_u32 s{S_READY}, s{S_TMP2}\ns_cbranch_scc1 {d}")
    kv_poll(e, va, vb, d)
    e.label(d)

def kv_dma(e, g=None, l=None):
    out = []
    for i in range(4):
        pre = [f"s_add_u32 m0, s{l or S_KVL}, {(i//2)*8192}", f"s_add_u32 s{S_TMP}, s{g or S_KVG}, {(i//2)*8192}"]
        out.append(pre + [f"buffer_load_dwordx4 v{A_AGR}, s[{R_WS}:{R_WS+3}], s{S_TMP} offen offset:{(i%2)*1024} sc1 lds"])
    return out

def chain_prologue(e, cfg={}):
    e("; ---- chain prologue")
    if cfg.get("prost") == 2: e("s_memrealtime s[92:93]")
    lane_consts(e, "v16", "v17")
    e("v_and_b32 v18, 3, v0\nv_lshrrev_b32 v19, 2, v0")
    e(f"s_lshl_b32 s{S_TMP}, s{S_H}, 8\ns_lshl_b32 s{S_TMP2}, s{S_W}, 6\ns_add_u32 s{S_TMP}, s{S_TMP}, s{S_TMP2}")
    e(f"v_lshlrev_b32 v20, 13, v19\nv_lshl_add_u32 v20, v18, 4, v20\nv_add_u32 v20, s{S_TMP}, v20")
    e(f"s_lshl_b32 s{S_TMP}, s{S_H}, 17\ns_lshl_b32 s{S_TMP2}, s{S_W}, 8\ns_add_u32 s{S_TMP}, s{S_TMP}, s{S_TMP2}")
    e(f"v_lshlrev_b32 v21, 10, v19\nv_lshl_add_u32 v21, v18, 4, v21\nv_add_u32 v21, s{S_TMP}, v21")
    e("v_and_b32 v22, 1, v17\nv_lshlrev_b32 v22, 5, v22")
    e("v_lshrrev_b32 v23, 1, v17\nv_lshl_add_u32 v22, v23, 2, v22")
    e("v_lshrrev_b32 v23, 3, v16\nv_lshl_add_u32 v22, v23, 4, v22")
    e("v_bfe_u32 v23, v16, 2, 1\nv_add_u32 v22, v22, v23")
    e("v_lshlrev_b32 v22, 6, v22\nv_lshl_add_u32 v22, v18, 3, v22")
    e(f"s_mul_i32 s{S_KVL}, s{S_W}, 28672")
    e(f"s_mul_i32 s{S_KVG}, s{S_W}, 12288\ns_add_u32 s{S_KVG}, s{S_KVG}, {L_KVB}")
    e(f"v_add_u32 v24, s{S_KVL}, v22\nv_add_u32 v25, s{S_KVG}, v22")
    e(f"v_lshl_add_u32 v{A_W}, v0, 4, s{S_KVL}")
    RW = {"q": R_T, "k": R_T2, "v": 84, "o": 88}
    for m, p in (("q", S_WQ), ("k", S_WK), ("v", S_WV), ("o", S_WO)): srd(e, RW[m], p, 0x400000)
    def issue(n):
        m, J = BLOCKS[n]
        kind, k = slot_addr(n)
        base = S_KVL if kind == "wl" else S_KVG
        for i in range(4):
            e(f"s_add_u32 m0, s{base}, {k*4096 + i*1024}")
            if m == "o":
                so = (64 * J[0] + 16 * i) * 1024 + J[1] * 64
                e(f"s_mov_b32 s{S_TMP}, {so}")
                e(f"buffer_load_dwordx4 v21, s[{RW[m]}:{RW[m]+3}], s{S_TMP} offen lds")
            else:
                so = (64 * J + 16 * i) * 8192
                e(f"s_mov_b32 s{S_TMP}, {so}")
                e(f"buffer_load_dwordx4 v20, s[{RW[m]}:{RW[m]+3}], s{S_TMP} offen lds")
    def consume(n, outstanding):
        m, J = BLOCKS[n]
        kind, k = slot_addr(n)
        e(f"s_waitcnt vmcnt({outstanding})")
        av = "v24" if kind == "wl" else "v25"
        for t in range(2):
            f = FRAG[(m, J, t)]
            for mm in range(4):
                off = k * 4096 + (8 * (mm // 2) + 2 * (mm % 2)) * 64 + t * 32
                if f[0] == "lds": dst = vr(32 + 8 * t + 2 * mm, 2)
                else: dst = vr(f[1] + 2 * mm, 2, f[0])
                e(f"ds_read_b64_tr_b16 {dst}, {av} offset:{off}")
        e("s_waitcnt lgkmcnt(0)")
        if n >= NREG:
            for t in range(2):
                for hf in range(2):
                    e(f"ds_write_b128 v{A_W}, {vr(32+8*t+4*hf,4)} offset:{k*4096 + t*2048 + hf*1024}")
            e("s_waitcnt lgkmcnt(0)")
    N = len(BLOCKS)
    if cfg.get("tlbw"):
        e(f"v_lshlrev_b32 v26, 16, v0\ns_lshl_b32 s{S_TMP}, s{S_H}, 11\nv_add_u32 v26, s{S_TMP}, v26")
        for m in "qkvo": e(f"buffer_load_dword v27, v26, s[{RW[m]}:{RW[m]+3}], 0 offen")
        if cfg["tlbw"] == 2: e("s_waitcnt vmcnt(0)")
    DEP = 4
    srd(e, 92, S_MEM0, 8192)
    e(f"s_lshl_b32 s{S_TMP}, s{S_W}, 8")
    e(f"v_lshlrev_b32 v26, 11, v17\nv_lshl_add_u32 v26, v16, 1, v26\nv_add_u32 v26, s{S_TMP}, v26")
    mem0_ld = []
    for u in range(4):
        mem0_ld += [f"buffer_load_ushort v{48+2*u}, v26, s[92:95], 0 offen offset:{u*64}", f"buffer_load_ushort v{49+2*u}, v26, s[92:95], 0 offen offset:{u*64+32}",
                    f"buffer_load_ushort v{56+2*u}, v26, s[92:95], 0 offen offset:{u*64+1024}", f"buffer_load_ushort v{57+2*u}, v26, s[92:95], 0 offen offset:{u*64+32+1024}"]
    for n in range(DEP):
        if cfg.get("prost") == 2 and n == 1: e("s_memrealtime s[94:95]")
        issue(n)
    if cfg.get("prost") == 2: e("s_memrealtime s[96:97]")
    for x in mem0_ld: e(x)
    e(f"v_and_b32 v26, 2, v0\nv_cmp_eq_u32 vcc, 2, v26\nv_mov_b32 v27, 0x44444444\nv_mov_b32 v28, 0xeeeeeeee")
    e(f"s_mov_b64 s[{S_ODD}:{S_ODD+1}], vcc")
    e(f"v_cndmask_b32 v29, v27, v28, vcc")
    for r in range(4):
        e(f"v_mov_b32 v{SEL+r}, 0")
    e("v_mov_b32 v27, 0x3f80\nv_mov_b32 v28, 0x3f800000")
    for j in range(8):
        e(f"v_cmp_eq_u32 vcc, {j}, v16\ns_nop 1\nv_cndmask_b32 v{SEL+j//2}, v{SEL+j//2}, v{27+(j%2)}, vcc")
    e(f"s_and_b32 s{S_TMP}, s{S_W}, 2\ns_lshl_b32 s{S_TMP}, s{S_TMP}, 11\ns_lshl_b32 s{S_TMP2}, s{S_H}, 7\ns_add_u32 s{S_TMP}, s{S_TMP}, s{S_TMP2}")
    e(f"v_lshrrev_b32 v26, 3, v0\nv_and_b32 v27, 7, v0\nv_lshlrev_b32 v{A_RSR}, 13, v26\nv_lshl_add_u32 v{A_RSR}, v27, 4, v{A_RSR}\nv_add_u32 v{A_RSR}, s{S_TMP}, v{A_RSR}")
    e(f"s_lshl_b32 s{S_TMP2}, s{S_W}, 9\nv_lshl_add_u32 v{A_RSW}, v0, 3, s{S_TMP2}")
    e(f"v_and_b32 v26, 1, v17\nv_lshl_add_u32 v26, v27, 1, v26\ns_and_b32 s{S_TMP2}, s{S_H}, 3\nv_mov_b32 v27, s{S_TMP2}")
    emit_UB(e, f"v{A_AGW}", "v26", "v27", "v28")
    e(f"s_and_b32 s{S_TMP}, s{S_TMP}, 0xfffffe00\nv_add_u32 v{A_AGW}, s{S_TMP}, v{A_AGW}")
    e(f"s_mov_b32 s{S_AGM}, 0x00FF00FF\ns_mov_b32 s{S_AGM+1}, 0\ns_mov_b32 s{S_AGM2}, -1\ns_mov_b32 s{S_AGM2+1}, 0")
    e(f"v_bfe_u32 v26, v0, 3, 1\nv_lshl_add_u32 v{A_AGW}, v26, 14, v{A_AGW}")
    e(f"s_lshl_b32 s{S_TMP}, s{S_W}, 11\ns_add_u32 s{S_TMP}, s{S_TMP}, {L_MEM}")
    e(f"v_lshl_add_u32 v{A_AGR}, v0, 4, s{S_TMP}")
    e(f"s_lshl_b32 s{S_TMP}, s{S_W}, 10\ns_add_u32 s{S_TMP}, s{S_TMP}, {L_QU}")
    emit_UB(e, f"v{A_UW}", "v16", "v17", "v28")
    e(f"v_add_u32 v{A_UW}, s{S_TMP}, v{A_UW}")
    e("v_lshrrev_b32 v26, 2, v16\nv_lshl_add_u32 v26, v17, 2, v26")
    emit_UB(e, f"v{A_TR}", "v26", "v18", "v28")
    e(f"v_add_u32 v{A_TR}, {L_MEM}, v{A_TR}")
    e("v_and_b32 v27, 1, v18\nv_lshlrev_b32 v27, 1, v27\nv_lshrrev_b32 v28, 1, v18\nv_or_b32 v27, v27, v28")
    emit_UB(e, f"v{A_TRK}", "v26", "v27", "v28")
    e(f"v_add_u32 v{A_TRK}, {L_MEM}, v{A_TRK}")
    e(f"v_lshlrev_b32 v{A_KX}, 4, v0\nv_add_u32 v{A_KX}, {L_KVB}, v{A_KX}")
    e(f"v_lshrrev_b32 v26, 1, v17\nv_lshl_add_u32 v26, v26, 4, v16\nv_lshlrev_b32 v26, 4, v26\nv_and_b32 v27, 1, v17\nv_lshl_add_u32 v26, v27, 3, v26")
    e(f"s_lshl_b32 s{S_TMP}, s{S_W}, 11\ns_add_u32 s{S_TMP}, s{S_TMP}, {L_KVB + 8192}\nv_add_u32 v{A_VX}, s{S_TMP}, v26")
    e(f"v_lshlrev_b32 v65, 2, v0\ns_mov_b32 s{S_STEP}, 0\ns_mov_b32 s{S_READY}, 0\ns_mov_b32 s{S_MODE}, 0")
    WSR = f"s[{R_WS}:{R_WS+3}]"
    order = [("B", n) for n in range(DEP) for _ in range(4)] + [("M", 0)] * 16
    def after(kind, n):
        last = max(i for i, x in enumerate(order) if x == (kind, n))
        return min(len(order) - 1 - last, 63)
    for n in range(N):
        consume(n, after("B", n))
        if n + DEP < N:
            issue(n + DEP); order += [("B", n + DEP)] * 4
        if n == cfg.get("ctouch", -1):
            e(f"s_mul_i32 s{S_TMP}, s{S_H}, 21\nv_add_u32 v67, s{S_TMP}, v0\nv_lshlrev_b32 v67, 16, v67\ns_mul_i32 s{S_TMP}, s{S_W0M}, 0x1fffff\ns_mov_b32 exec_lo, s{S_TMP}\ns_mov_b32 exec_hi, 0\ns_mov_b32 s{S_TMP}, {WS_KV}")
            e(f"buffer_load_dword v68, v67, {WSR}, s{S_TMP} offen sc1\ns_mov_b64 exec, -1"); order.append(("T", 0))
        if n == 16:
            e(f"global_load_dword v64, v65, s[{S_DBG}:{S_DBG+1}] sc1"); order.append(("D", 0))
        if n == 23:
            e(f"v_readlane_b32 s{S_TMP}, v64, {DBG_INIT//4}\nv_readlane_b32 s{S_MODE}, v64, {DBG_XCC(0)//4}\nv_mov_b32 v66, 0")
            e(f"s_cmp_ge_u32 s{S_TMP}, {NINIT}\ns_cselect_b32 s{S_MODE}, s{S_MODE}, 0\ns_cselect_b64 exec, -1, 0\ns_lshl_b32 s{S_TMP}, s{S_H}, 8")
            e(f"buffer_load_dword v66, v65, {WSR}, s{S_TMP} offen sc1\ns_mov_b64 exec, -1"); order.append(("F", 0))
        if n == 28:
            e("s_barrier")
            e(f"v_cmp_eq_u32 vcc, 0, v66\ns_ff1_i32_b64 s{S_READY}, vcc")
            e(f"s_lshl_b32 s{S_TMP}, s{S_H}, 14\ns_add_u32 s{S_XG0}, s{S_TMP}, {WS_KV - L_MEM}\ns_lshl_b32 s{S_TMP}, s{S_W}, 11\ns_add_u32 s{S_XL0}, s{S_TMP}, {L_KVB}")
            e(f"s_cmp_gt_u32 s{S_READY}, 0\ns_cselect_b64 exec, -1, 0")
            for grp in kv_dma(e, S_XG0, S_XL0):
                for x in grp: e(x)
            e("s_mov_b64 exec, -1"); order += [("K", 0)] * 4
            for r in range(8): e(f"v_lshl_or_b32 v{48+r}, v{56+r}, 16, v{48+r}")
            e(f"s_lshl_b32 s{S_TMP}, s{S_W}, 9\ns_add_u32 s{S_TMP}, s{S_TMP}, {L_QU - L_MEM}\nv_subrev_u32 v27, s{S_TMP}, v{A_UW}")
            for u in range(4): e(f"ds_write_b64 v27, {vr(48+2*u,2)} offset:{u*2048}")
    if cfg.get("gstamp"): e("s_memrealtime s[18:19]\ns_waitcnt lgkmcnt(0)\ns_mov_b32 s69, s18")
    e(f"v_mov_b32 v{IDX}, v29")
    e(f"s_lshl_b32 s{S_TMP}, s{S_H}, 13")
    e(f"s_add_u32 s{S_RSW0}, s{S_TMP}, {WS_RS}\ns_add_u32 s{S_RSW1}, s{S_RSW0}, 4096")
    for i in range(4): e(f"s_mov_b32 s{S_RSR[i]}, {WS_RS + 0x10000 * i}")
    e(f"s_mov_b32 s{S_AGSLOT}, 0\ns_mov_b32 s{S_AGW}, {WS_AG}\ns_mov_b32 s{S_TAG}, 0")
    e(f"s_mov_b32 s{S_KVG}, s{S_XG0}\ns_mov_b32 s{S_KVL}, s{S_XL0}")
    e(f"s_lshl_b32 s{S_TMP}, s{S_H}, 12\ns_add_u32 s{S_KVM}, s{S_TMP}, {WS_KVM - 0x20000}")
    e(f"s_mov_b32 s{S_LB}, 0x3f003f00\ns_mov_b32 s{S_LB+1}, 0x3f803f80")
    e(f"s_lshl_b32 s{S_CF}, s{S_H}, 7\ns_add_u32 s{S_CF}, s{S_CF}, {FL_CFLAG}")
    e(f"s_mov_b32 s{S_SC}, 0x3e0293ee")
    e(f"s_lshl_b32 s{S_KFO}, s{S_H}, 8\ns_add_u32 s{S_KFO}, s{S_KFO}, 4")
    e(f"s_cmp_ge_u32 s{S_MODE}, 32\ns_cbranch_scc1 MODE_D")
    wait_init(e, "c", 32)
    e(f"s_mov_b32 s{S_SPIN}, 0")
    e.label("MODE_L")
    e(f"v_readlane_b32 s{S_MODE}, v32, {DBG_XCC(0)//4}\ns_cmp_ge_u32 s{S_MODE}, 32\ns_cbranch_scc1 MODE_D\ns_mov_b32 s{S_TMP2}, 0")
    for x in range(8):
        e(f"v_readlane_b32 s{S_TMP}, v32, {DBG_XCC(x)//4}\ns_add_u32 s{S_TMP2}, s{S_TMP2}, s{S_TMP}")
    e(f"s_cmp_ge_u32 s{S_TMP2}, 256\ns_cbranch_scc1 MODE_D\ns_sleep 16")
    e(f"global_load_dword v32, v33, s[{S_DBG}:{S_DBG+1}] sc1\ns_add_u32 s{S_SPIN}, s{S_SPIN}, 1\ns_waitcnt vmcnt(0)\ns_cmp_lt_u32 s{S_SPIN}, {SPIN_MAX}\ns_cbranch_scc1 MODE_L")
    e.label("MODE_D")
    e(f"s_cmp_gt_u32 s{S_READY}, 0\ns_cbranch_scc1 KV0_D")
    kv_ready(e, 0, 32, 33)
    for grp in kv_dma(e):
        for s in grp: e(s)
    e.label("KV0_D")
    e(f"s_add_u32 s{S_KVG}, s{S_KVG}, 0x80000\ns_xor_b32 s{S_KVL}, s{S_KVL}, 0x3C000")

def interleave(e, mf, fill):
    def run(x):
        for s in x:
            if callable(s): s()
            else: e(s)
    run(fill.get(-1, []))
    for i, m in enumerate(mf):
        if callable(m): m()
        else: e(m)
        run(fill.get(i, []))

def smf(acc, a, f):
    return f"v_smfmac_f32_16x16x64_bf16 {vr(acc,4)}, {vr(a,4)}, {vr(f[1],8,f[0])}, v{IDX}"
def mf32(d, a, b, c):
    return f"v_mfma_f32_16x16x32_bf16 {vr(d,4)}, {vr(a,4)}, {vr(b,4)}, {c if c == '0' else vr(c,4)}"

NPRE = 5
QL = [(0, 0), (0, 1), (1, 0), (1, 1), (2, 0), (2, 1)]
def rd_ql(e, n, r):
    off = FRAG[("q",) + QL[n]][1]
    e(f"ds_read_b128 {vr(r,4)}, v{A_W} offset:{off}")
    return e(f"ds_read_b128 {vr(r+4,4)}, v{A_W} offset:{off+1024}")
def preload_q(e):
    for n in range(NPRE): rd_ql(e, n, QB + 8 * n)

S_KF = 12
def kv_peek(e):
    e(f"s_min_u32 s{S_TMP}, s{S_STEP}, 59\ns_lshl_b32 s{S_TMP}, s{S_TMP}, 2\ns_add_u32 s{S_TMP}, s{S_TMP}, s{S_KFO}")
    e(f"s_load_dwordx4 s[{S_KF}:{S_KF+3}], s[{S_WS}:{S_WS+1}], s{S_TMP} glc")
def kv_fold(e):
    e(f"s_and_b32 s{S_KF}, s{S_KF}, s{S_KF+1}\ns_and_b32 s{S_KF+2}, s{S_KF+2}, s{S_KF+3}\ns_and_b32 s{S_KF}, s{S_KF}, s{S_KF+2}")
    e(f"s_add_u32 s{S_TMP}, s{S_STEP}, 5\ns_cmp_ge_u32 s{S_STEP}, 59\ns_cselect_b32 s{S_TMP}, -1, s{S_TMP}")
    e(f"s_cmp_eq_u32 s{S_KF}, 1\ns_cselect_b32 s{S_TMP}, s{S_TMP}, 0\ns_max_u32 s{S_READY}, s{S_READY}, s{S_TMP}")

def kv_ready_ool(e, tail, va, vb):
    d = e.newlabel("KRD"); sl = e.newlabel("KRS")
    e(f"s_add_u32 s{S_TMP2}, s{S_STEP}, 1")
    e(f"s_cmp_le_u32 s{S_READY}, s{S_TMP2}\ns_cbranch_scc1 {sl}")
    e.label(d)
    def slow():
        e.label(sl)
        kv_poll(e, va, vb, d)
    tail.append(slow)

def chain_loop(e, fast, cfg):
    st = "" if fast else " sc1"
    tag_ = "F" if fast else "S"
    WS = f"s[{R_WS}:{R_WS+3}]"
    stamps = cfg.get("stamps", [])
    def S(name):
        if name in stamps:
            i = stamps.index(name); e(f"s_memtime s[{S_ST+2*i}:{S_ST+2*i+1}]")
    def SS(name): return lambda: S(name)
    def GS(p, fill, n):
        for i in range(n):
            if f"{p}_{i}" in stamps: fill[i] = [SS(f"{p}_{i}")] + list(fill.get(i, []))
    LOOP, LAST, ENTRY, EARLY = [f"CH{tag_}_{x}" for x in ("LOOP", "LAST", "ENTRY", "EARLY")]
    tail = []
    seq = {}
    def wt(key): return lambda: e.waitlg(seq[key])
    KP, VP, QP = XT + 4, XT + 6, XT + 2
    RP, RED, AGO, T1, AP = MEMA, MEMA + 16, MEMA + 20, MEMA + 22, MEMA + 24
    preload_q(e)
    for r in range(0, 16, 2): e(f"v_mov_b64 {vr(ACA+r,2)}, 0")
    e("s_waitcnt vmcnt(0) lgkmcnt(0)")
    if cfg.get("gstamp"): e("s_memrealtime s[18:19]\ns_memtime s[16:17]")
    kv_ready(e, 1, T0, T1)
    e(f"s_mov_b32 s{S_KF}, 0\ns_mov_b32 s60, 0")
    if cfg.get("prio"): e(f"s_setprio {cfg['prio']}")
    e(f"s_add_u32 s{S_KVG2}, s{S_KVG}, 8192\ns_mov_b32 m0, s{S_KVL}\nv_mov_b32 v{T0}, 0")
    e(f"s_branch {ENTRY}")
    def rs_ld(r):
        for i in range(4): e(f"buffer_load_dwordx4 {vr(r+4*i,4)}, v{A_RSR}, {WS}, s{S_RSR[i]} offen sc1")
    def rs_chk(r, n):
        for i in range(4):
            e(f"s_waitcnt vmcnt({n+3-i})")
            e(mf32(RED, SEL, r + 4 * i, "0" if i == 0 else RED))
            e(f"v_bitop3_b32 v{T1 if i else T0}, v{r+4*i}, v{r+4*i+2}, s{S_TAG} bitop3:0x7e")
            if i: e(f"v_or_b32 v{T0}, v{T0}, v{T1}")
        e(f"v_and_b32 v{T0}, 1, v{T0}\nv_cmp_ne_u32 vcc, 0, v{T0}")
    def ag_ld(r):
        e(f"buffer_load_dwordx4 {vr(r,4)}, v{A_AGR}, {WS}, s{S_AGR0} offen sc1")
        e(f"buffer_load_dwordx4 {vr(r+4,4)}, v{A_AGR}, {WS}, s{S_AGR0} offen offset:1024 sc1")
    def ag_chk(r, n):
        T1 = MEMA + 15
        e(f"s_waitcnt vmcnt({n})")
        e(f"ds_write_b128 v{A_AGR}, {vr(r,4)}\nds_write_b128 v{A_AGR}, {vr(r+4,4)} offset:1024")
        e(f"v_max3_u32 v{T0}, v{r}, v{r+1}, v{r+2}\nv_max3_u32 v{T1}, v{r+4}, v{r+5}, v{r+6}")
        e(f"v_max3_u32 v{T0}, v{T0}, v{r+3}, v{r+7}\nv_max_u32 v{T0}, v{T0}, v{T1}\nv_cmp_eq_u32 vcc, -1, v{T0}")
    def advance():
        e(f"v_mov_b64 {vr(AGO,2)}, -1")
        e(f"v_xor_b32 v{A_KX}, 0x3C000, v{A_KX}\nv_xor_b32 v{A_VX}, 0x3C000, v{A_VX}")
        e(f"v_add_u32 v{A_AGW}, 0x2000, v{A_AGW}\nv_subrev_u32 v{T0}, 0x6000, v{A_AGW}\nv_min_u32 v{A_AGW}, v{A_AGW}, v{T0}")
        e(f"s_add_u32 s{S_AGSLOT}, s{S_AGSLOT}, 0x2000\ns_cmp_eq_u32 s{S_AGSLOT}, 0x6000\ns_cselect_b32 s{S_AGSLOT}, 0, s{S_AGSLOT}")
        e(f"s_add_u32 s{S_AGR0}, s{S_AGSLOT}, {WS_AG - L_MEM}")
        e(f"s_add_u32 s{S_KVG}, s{S_KVG}, 0x80000\ns_xor_b32 s{S_KVL}, s{S_KVL}, 0x3C000\ns_add_u32 s{S_KVM}, s{S_KVM}, 0x20000")
        e(f"s_add_u32 s{S_KVG2}, s{S_KVG}, 8192\ns_mov_b32 m0, s{S_KVL}\ns_mov_b32 s{S_FLV}, s{S_STEP}")
        if cfg.get("peek"): kv_fold(e)
        e(f"s_add_u32 s{S_STEP}, s{S_STEP}, 1\ns_mov_b32 s{S_SPIN}, 0")
        if cfg.get("peek"): kv_peek(e)
    def comm(reducer, d1, d2, K, KR):
        P1, P1R, P2, P2R = [e.newlabel(x) for x in ("P1", "P1R", "P2", "P2R")]
        if not reducer:
            advance()
            preload_q(e)
            e(f"s_xor_b32 s{S_TAG}, s{S_TAG}, 1")
            S("rsi"); S("rs")
        else:
            e.nop(d1)
            S("rsi")
            rsets = [RP, ACA][:KR]
            rs_ld(RP)
            advance()
            preload_q(e)
            if KR > 1:
                e.nop(cfg.get("e1", 5)); rs_ld(ACA)
            rs_chk(RP, 4 * (KR - 1))
            e(f"s_cbranch_vccnz {P1R}")
            e.label(P1 + "_OK")
            S("rs")
            def p1r():
                e.label(P1R)
                for k in range(KR):
                    e(f"s_add_u32 s{S_SPIN}, s{S_SPIN}, 1\ns_cmp_gt_u32 s{S_SPIN}, {SPIN_MAX}\ns_cbranch_scc1 {P1}_OK")
                    e("s_mov_b64 exec, vcc"); rs_ld(rsets[k]); e("s_mov_b64 exec, -1")
                    rs_chk(rsets[(k + 1) % KR], 4 * (KR - 1))
                    e(f"s_cbranch_vccz {P1}_OK")
                e(f"s_branch {P1R}")
            tail.append(p1r)
            e(f"s_xor_b32 s{S_TAG}, s{S_TAG}, 1\ns_nop 1")
            for r in range(4):
                e(f"v_add_f32_dpp v{RED+r}, v{RED+r}, v{RED+r} row_ror:8 row_mask:0xf bank_mask:0xf")
            e(f"s_mov_b64 exec, s[{S_AGM}:{S_AGM+1}]")
            e(f"v_cvt_pk_bf16_f32 v{AGO}, v{RED}, v{RED+1}\nv_cvt_pk_bf16_f32 v{AGO+1}, v{RED+2}, v{RED+3}")
            e(f"s_mov_b64 exec, s[{S_AGM2}:{S_AGM2+1}]\nbuffer_store_dwordx2 {vr(AGO,2)}, v{A_AGW}, {WS}, s{S_AGW} offen{st}\ns_mov_b64 exec, -1")
        S("ags")
        if cfg.get("agbar"): e("s_barrier")
        S("agb")
        kv_ready_ool(e, tail, T0, MEMA + 15)
        e.nop(d2)
        sets = [AP, ACB, MEMA + 16][:K]
        for k, r in enumerate(sets):
            if k: e.nop(cfg.get("e2", 25))
            ag_ld(r)
        ag_chk(AP, 2 * (K - 1))
        e(f"s_cbranch_vccnz {P2R}")
        e.label(P2 + "_OK")
        S("ag")
        def p2r():
            e.label(P2R)
            for k in range(K):
                e(f"s_add_u32 s{S_SPIN}, s{S_SPIN}, {16 if stamps else 1}\ns_cmp_gt_u32 s{S_SPIN}, {SPIN_MAX}\ns_cbranch_scc1 {P2}_OK")
                e("s_mov_b64 exec, vcc"); ag_ld(sets[k]); e("s_mov_b64 exec, -1")
                ag_chk(sets[(k + 1) % K], 2 * (K - 1))
                e(f"s_cbranch_vccz {P2}_OK")
            e(f"s_branch {P2R}")
        tail.append(p2r)
        if stamps:
            sk = e.newlabel("NS")
            e(f"s_waitcnt lgkmcnt(0)\ns_cmp_eq_u32 s{S_STEP}, {cfg.get('stampstep', 40)}\ns_cbranch_scc0 {sk}")
            for i in range(len(stamps)): e(f"v_writelane_b32 v{T0}, s{S_ST+2*i}, {i}")
            e(f"v_writelane_b32 v{T0}, s{S_SPIN}, 10")
            for i in range(5): e(f"s_memrealtime s[{12+4*i}:{13+4*i}]\ns_memtime s[{14+4*i}:{15+4*i}]\ns_nop 5")
            e("s_waitcnt lgkmcnt(0)")
            for i in range(5): e(f"v_writelane_b32 v{T0}, s{12+4*i}, {16+2*i}\nv_writelane_b32 v{T0}, s{14+4*i}, {17+2*i}")
            e(f"s_lshl_b32 s{S_TMP}, s{S_H}, 2\ns_add_u32 s{S_TMP}, s{S_TMP}, s{S_W}\ns_lshl_b32 s{S_TMP}, s{S_TMP}, 8\ns_add_u32 s{S_TMP}, s{S_TMP}, {WS_STAMP}")
            e(f"v_mbcnt_lo_u32_b32 v{T1}, -1, 0\nv_mbcnt_hi_u32_b32 v{T1}, -1, v{T1}\nv_lshlrev_b32 v{T1}, 2, v{T1}")
            e(f"buffer_store_dword v{T0}, v{T1}, {WS}, s{S_TMP} offen")
            e.label(sk)
        for r in range(0, 8, 2): e(f"v_mov_b64 {vr(ACA+r,2)}, 0")
        e(f"v_mov_b32 v{T0}, s{S_FLV}")
        if cfg.get("pubc"): e(f"buffer_store_dwordx4 {vr(KP,4)}, v{A_AGR}, {WS}, s{S_KVM} offen sc1")
        e("s_waitcnt lgkmcnt(0)")
    D = cfg.get("D", [[0, 60], [0, 160], [25, 40], [0, 190]])
    if cfg.get("agbar"): D = [[cfg["d1e"], cfg.get("d2e", 0)], [0, cfg.get("d2e", 0)], [cfg["d1"], cfg["d2"]], [0, cfg["d2"]]]
    KK = [cfg.get("Ke", 1), cfg.get("Ke", 1), cfg.get("K", 2), cfg.get("K", 2)]
    for w in (0, 1, 3):
        e.label(f"{LOOP}_{w}")
        comm(w == 0, D[w][0], D[w][1], KK[w], cfg.get('KRe', 1))
        e(f"s_branch {ENTRY}")
    e(".p2align 6")
    e.label(f"{LOOP}_2")
    comm(True, D[2][0], D[2][1], KK[2], cfg.get('KR', 2))
    e.label(ENTRY)
    e("s_barrier")
    S("b1")
    if cfg.get("stepst"): e("s_memrealtime s[84:85]")
    def rd_m(J, x):
        def f(): seq[("m", J)] = e(f"ds_read_b64_tr_b16 {vr(MEMA+4*J+2*x,2)}, v{A_TR} offset:{(2*(J%2)+x)*2048 + (J//2)*512}")
        return f
    qorder = [(0, 0), (0, 1), (1, 0), (1, 1), (2, 0)] + [(J, t) for J in range(3, 8) for t in range(2)] + [(2, 1)]
    def qf(J, t):
        if J < 3: return ("v", QB + 8 * (QL.index((J, t)) % 5))
        return FRAG[("q", J, t)]
    mq = [smf(ACA + 4 * t, MEMA + 4 * J, qf(J, t)) for J, t in qorder]
    def rd_w(key, r, off):
        def f(): seq[key] = e(f"ds_read_b128 {vr(r,4)}, v{A_W} offset:{off}")
        return f
    def rq(n, hf): return rd_w(("ql", n), QB + 8 * (n % 5) + 4 * hf, FRAG[("q",) + QL[n]][1] + 1024 * hf)
    flag = [f"s_mov_b64 exec, s[{S_W0M}:{S_W0M+1}]", f"buffer_store_dword v{T0}, off, {WS}, s{S_CF} sc1", "s_mov_b64 exec, -1"]
    pubk = f"buffer_store_dwordx2 {vr(KP,2)}, v{A_RSW}, {WS}, s{S_KVM} offen sc1"
    pubv = f"buffer_store_dwordx2 {vr(VP,2)}, v{A_RSW}, {WS}, s{S_KVM} offen offset:2048 sc1"
    if cfg.get("nopub"): pubk = pubv = "s_nop 0"; flag = []
    def dm(i): return "s_nop 0" if cfg.get("nodma") else f"buffer_load_dwordx4 v{A_AGR}, {WS}, s{S_KVG if i < 2 else S_KVG2} offen offset:{(i%2)*1024} sc1 lds"
    z = lambda r: f"v_mov_b64 {vr(r,2)}, 0"
    fill = {-1: [rd_m(J, x) for J in range(4) for x in range(2)] + [f"s_cmp_ge_u32 s{S_STEP}, 63", f"s_cbranch_scc1 {LAST}", wt(("m", 0)), SS("m0")],
            0: [rd_m(4, 0), dm(0)], 1: [rd_m(4, 1), wt(("m", 1))], 2: [rd_m(5, 0), dm(1)], 3: [rd_m(5, 1), wt(("m", 2))],
            4: [f"s_add_u32 m0, s{S_KVL}, 8192", wt(("m", 3))],
            5: [f"s_waitcnt vmcnt({3 if cfg.get('pubc') else 2})", rd_m(6, 0)], 6: [rd_m(6, 1), wt(("m", 4))], 7: [rd_m(7, 0), dm(2)], 8: [rd_m(7, 1), wt(("m", 5))],
            9: [rq(5, 0), dm(3)], 10: [rq(5, 1), wt(("m", 6))], 11: flag, 12: [wt(("m", 7))], 13: [] if cfg.get("pubc") else [pubk], 14: [wt(("ql", 5))],
            }
    if max(KK) > 2:
        fill[0] = ["s_waitcnt vmcnt(0)", rd_m(4, 0), dm(0)]; fill[5] = [rd_m(6, 0)]
    kextra = {}
    dp = cfg.get("dp", 0)
    m0b = f"s_add_u32 m0, s{S_KVL}, 8192"
    if dp:
        for g in (0, 2, 7, 9): fill[g] = fill[g][:1]
        fill[4] = fill[4][1:]
        fill[5] = ["s_waitcnt vmcnt(%d)" % (1 if dp in (1, 2) else 0), rd_m(6, 0)]
        if dp == 1:
            fill[2] += [dm(0)]; fill[7] += [dm(1)]; fill[9] += [m0b]; fill[12] = fill[12] + [dm(2)]; kextra = {5: [dm(3)]}
        if dp == 2:
            fill[2] += [dm(0)]; fill[9] += [dm(1)]; kextra = {3: [m0b], 5: [dm(2)], 11: [dm(3)]}
        if dp == 3:
            fill[7] += [dm(0)]; fill[12] = fill[12] + [dm(1)]; kextra = {3: [m0b], 6: [dm(2)], 14: [dm(3)]}
    if cfg.get("flp") == 1:
        fill[11] = []; kextra[7] = None
    pp = cfg.get("pubp", 0)
    if pp:
        pre = [rd_m(J, x) for J in range(4) for x in range(2)]
        fill[-1] = pre[:pp] + [pubk] + pre[pp:] + [wt(("m", 0)), SS("m0")]
        fill[13] = []; fill[5] = ["s_waitcnt vmcnt(3)", rd_m(6, 0)]
    fill[15] = [pubv]
    for n, g in enumerate([7, 8, 9, 10] if not cfg.get("xz") else [10, 12, 13, 14]): fill[g] = fill[g] + [z(ACB + 2 * n)]
    GS("q", fill, 16)
    interleave(e, mq, fill)
    S("q")
    mk = [smf(ACB + 4 * t, MEMA + 4 * J, FRAG[("k", J, t)]) for J in range(8) for t in range(2)]
    def post_dup(acc, dst):
        return [f"v_add_f32 v{acc}, v{acc}, v{acc+2}", f"v_add_f32 v{acc+1}, v{acc+1}, v{acc+3}",
                f"v_cvt_pk_bf16_f32 v{dst}, v{acc}, v{acc+1}"]
    pq = post_dup(ACA, QP) + post_dup(ACA + 4, QP + 1)
    def rd_q(js, t):
        def f(): seq[("q", js)] = e(f"ds_read_b64_tr_b16 {vr(QB+4*js+2*t,2)}, v{A_TR} offset:{L_QU-L_MEM + js*1024 + t*512}")
        return f
    kxslot = [0, 1, 2, 3, 4, 5, 0, 1]
    def rd_kx(n):
        js, kt = n // 2, n % 2
        def f(): seq[("kx", n)] = e(f"ds_read_b128 {vr(KXA+4*kxslot[n],4)}, v{A_KX} offset:{(kt*4+js)*1024}")
        return f
    def wr_u(key, a, r, t):
        def f(): seq[key] = e(f"ds_write2_b32 v{a}, v{r}, v{r} offset0:{128*t} offset1:{128*t+1}")
        return f
    fill = {0: pq[0:2], 1: pq[2:4], 2: [wr_u("wq0", A_UW, QP, 0)] + pq[4:6], 3: [wr_u("wq1", A_UW, QP + 1, 1)],
            4: [rd_kx(0), f"v_add_u32 v{T0}, {L_KU - L_QU}, v{A_UW}"], 5: [rd_kx(1)], 6: [rd_kx(2)], 7: [rd_kx(3)],
            8: [wt("wq1"), SS("bq0"), "s_barrier", SS("bq1")],
            9: [rd_q(0, 0), rd_q(0, 1)], 10: [rd_q(1, 0), rd_q(1, 1)], 11: [rd_kx(4)], 12: [rd_q(2, 0), rd_kx(5)], 13: [rd_q(2, 1), rd_q(3, 0)],
            14: [rd_q(3, 1)], 15: [wt(("q", 1))]}
    for g, x in kextra.items():
        if x is None: fill[g] = flag; fill[6] = fill[6] + [rd_kx(3)]
        else: fill[g] = fill[g] + x
    if cfg.get("flp") == 1: fill[4] = [rd_kx(0)]; fill[8] = fill[8]; fill[15] = fill[15]; kadd = True
    GS("k", fill, 16)
    interleave(e, mk, fill)
    S("k")
    pk = post_dup(ACB, KP) + post_dup(ACB + 4, KP + 1)
    ms = []
    for js in range(4):
        for kt in range(2):
            n = js * 2 + kt
            ms.append(mf32(ACA + 4 * kt, KXA + 4 * kxslot[n], QB + 4 * js, "0" if js == 0 else ACA + 4 * kt))
    def rd_k(js, t):
        def f(): seq[("k", js)] = e(f"ds_read_b64_tr_b16 {vr(KXA+8+4*js+2*t,2)}, v{A_TRK} offset:{L_KU-L_MEM + js*1024 + t*512}")
        return f
    fill = {0: [rd_kx(6)] + pk[0:2], 1: [rd_kx(7)] + pk[2:4] + ([f"v_add_u32 v{T0}, {L_KU - L_QU}, v{A_UW}"] if cfg.get("flp") == 1 else []),
            2: [wr_u("wk0", T0, KP, 0)] + pk[4:6], 3: [wt(("q", 3)), z(ACB), z(ACB + 2)],
            4: [wr_u("wk1", T0, KP + 1, 1), z(ACB + 4), z(ACB + 6)],
            5: [wt(("kx", 7))],
            }
    GS("sx", fill, 8)
    interleave(e, ms, fill)
    S("Sx")
    mv = [smf(ACB + 4 * t, MEMA + 4 * J, FRAG[("v", J, t)]) for J in range(8) for t in range(2)]
    SM = KXA
    X0, X1 = ACA, ACA + 4
    mx, t2 = KXA + 4, KXA + 5
    e0 = XT
    NV1 = cfg.get("nv1", 10)
    msm = [mf32(SM, KXA + 8 + 4 * js, QB + 4 * js, "0" if js == 0 else SM) for js in range(4)]
    odd = f"s[{S_ODD}:{S_ODD+1}]"
    early = [f"v_max3_f32 v{mx}, v{X0}, v{X0+1}, v{X0+2}", f"v_max3_f32 v{t2}, v{X1}, v{X1+1}, v{X1+2}",
             f"v_max3_f32 v{mx}, v{mx}, v{X0+3}, v{X1+3}", f"v_max_f32 v{mx}, v{mx}, v{t2}",
             f"v_cndmask_b32 v{e0}, v{X0}, v{X0+2}, {odd}", f"v_cndmask_b32 v{e0+1}, v{X0+1}, v{X0+3}, {odd}",
             f"v_cndmask_b32 v{e0+2}, v{X1}, v{X1+2}, {odd}", f"v_cndmask_b32 v{e0+3}, v{X1+1}, v{X1+3}, {odd}"]
    seqm = mv[:NV1] + msm + mv[NV1:]
    PVB0, PVB1, OAC, PA, LB, LA = QB, QB + 8, KXA + 8, KXA + 16, KXA + 20, KXA + 4
    def rd_vx(n):
        t, hf = n // 2, n % 2
        def f(): seq["vx"] = e(f"ds_read_b64 {vr(QB+8*t+2+4*hf,2)}, v{A_VX} offset:{t*1024 + hf*512}")
        return f
    def rd_wo(T, hf):
        return rd_w(("wo", T), MEMA + 8 * (T % 4) + 4 * hf, FRAG[("o", (1, T // 2), T % 2)][1] + 1024 * hf)
    EE = [SM, SM + 1, e0, e0+1, e0+2, e0+3]
    fill = {0: [wt("wk1"), SS("bk0"), "s_barrier", SS("bk1")]}
    for n in range(8): fill[1 + n] = [rd_k(n // 2, n % 2), early[n]]
    xv = cfg.get("xv", 0)
    if xv == 2:
        fill = {1: early[0:1], 2: early[1:3], 3: early[3:5], 4: [wt("wk1"), "s_barrier"],
                5: [rd_k(0, 0), rd_k(0, 1)], 6: [rd_k(1, 0), rd_k(1, 1)], 7: [rd_k(2, 0), rd_k(2, 1)], 8: [rd_k(3, 0), rd_k(3, 1)]}
    if xv == 3:
        fill = {1: early[0:2], 2: early[2:4], 3: [wt("wk1"), "s_barrier"],
                4: [rd_k(0, 0), rd_k(0, 1)], 5: [rd_k(1, 0), rd_k(1, 1)], 6: [rd_k(2, 0)], 7: [rd_k(2, 1)], 8: [rd_k(3, 0), rd_k(3, 1)]}
    if xv == 1:
        for n in range(8): fill[1 + n] = [rd_k(n // 2, n % 2)]
        fill[7] += early[0:1]; fill[8] += early[1:2]
    FLAGPOS = flag
    fill[NV1 - 1] = [rd_wo(0, 0), wt(("k", 0)), SS("k0")] if NV1 - 1 > 8 else fill[NV1 - 1][:1] + [wt(("k", 0))] + fill[NV1 - 1][1:]
    lb = [f"v_mov_b64 {vr(LB,2)}, s[{S_LB}:{S_LB+1}]", f"v_mov_b64 {vr(LB+2,2)}, s[{S_LB}:{S_LB+1}]"]
    zz = [z(OAC), z(OAC + 2), z(OAC + 4), z(OAC + 6), f"v_mov_b32 v{PA+2}, 0"] + lb
    if xv == 1:
        fill[NV1 - 1] = fill[NV1 - 1] + early[2:3]
        fill[NV1] = [wt(("k", 1))] + early[3:5]
        fill[NV1 + 1] = [wt(("k", 2))] + early[5:7]
        fill[NV1 + 2] = [wt(("k", 3))] + early[7:8] + zz[0:1]
        fill[NV1 + 3] = [rd_vx(0)] + zz[1:3]
        zz = zz[3:]
    elif xv in (2, 3):
        rem = early[5:] if xv == 2 else early[4:]
        allv = rem + zz
        k0 = 2 if xv == 3 else 0
        fill[NV1] = [wt(("k", 1))]
        fill[NV1 + 1] = [wt(("k", 2))] + allv[0:k0]
        fill[NV1 + 2] = [wt(("k", 3))] + allv[k0:k0 + 2]
        fill[NV1 + 3] = [rd_vx(0)] + allv[k0 + 2:k0 + 4]
        zz = allv[k0 + 4:]
    else:
        fill[NV1] = [wt(("k", 1))] + zz[0:2]
        fill[NV1 + 1] = [wt(("k", 2))] + zz[2:4]
        fill[NV1 + 2] = [wt(("k", 3))] + zz[4:5]
        fill[NV1 + 3] = [rd_vx(0)] + zz[5:7]
        zz = []
    GS("v1", fill, 14)
    interleave(e, seqm[:NV1 + 4], fill)
    S("Sm")
    rest = seqm[NV1 + 4:]
    assert len(rest) == 6
    def run(x):
        for s in x: s() if callable(s) else e(s)
    run([rest[0], rd_vx(1), rd_vx(2)] + zz[0:1] + [rest[1], rd_vx(3), rd_wo(0, 1),
         f"v_max3_f32 v{mx}, v{mx}, v{SM}, v{SM+1}", f"v_mov_b32 v{t2}, v{mx}",
         rest[2], rd_wo(1, 0), rd_wo(1, 1),
         f"v_permlane32_swap_b32 v{mx}, v{t2}", f"v_max_f32 v{mx}, v{mx}, v{t2}", f"v_mov_b32 v{t2}, v{mx}",
         rest[3], rd_wo(2, 0), rd_wo(2, 1),
         f"v_permlane16_swap_b32 v{mx}, v{t2}", f"v_max_f32 v{mx}, v{mx}, v{t2}",
         rest[4], f"v_mul_f32 v{mx}, s{S_SC}, v{mx}", rest[5], rd_wo(3, 0), rd_wo(3, 1)] + zz[1:] + [
         ]
        + [f"v_fma_f32 v{x}, v{x}, s{S_SC}, -v{mx}" for x in EE] + [f"v_exp_f32 v{x}, v{x}" for x in EE]
        + [f"v_cvt_pk_bf16_f32 v{PA}, v{SM}, v{SM+1}", f"v_cvt_pk_bf16_f32 v{PA+1}, v{e0}, v{e0+1}", f"v_cvt_pk_bf16_f32 v{PA+3}, v{e0+2}, v{e0+3}",
           f"v_permlane32_swap_b32 v{PA}, v{PA+2}"])
    S("soft")
    cv = lambda t, h: f"v_cvt_pk_bf16_f32 v{QB+8*t+h}, v{ACB+4*t+2*h}, v{ACB+4*t+2*h+1}"
    run([cv(0, 0), cv(0, 1), mf32(LA, PA, LB, "0"), wt("vx"), cv(1, 0), cv(1, 1),
         f"v_smfmac_f32_16x16x64_bf16 {vr(OAC,4)}, {vr(PA,4)}, {vr(PVB0,8)}, v{IDX}", "s_nop 0",
         f"v_smfmac_f32_16x16x64_bf16 {vr(OAC+4,4)}, {vr(PA,4)}, {vr(PVB1,8)}, v{IDX}",
         ] + ([
         f"v_pk_add_f32 {vr(LA,2)}, {vr(LA,2)}, {vr(LA+2,2)}", f"v_rcp_f32 v{LA}, v{LA}", f"v_rcp_f32 v{LA+1}, v{LA+1}",
         f"v_pk_add_f32 {vr(OAC,2)}, {vr(OAC,2)}, {vr(OAC+2,2)}", f"v_pk_mul_f32 {vr(OAC,2)}, {vr(OAC,2)}, {vr(LA,2)}", "s_nop 0",
         f"v_pk_add_f32 {vr(OAC+4,2)}, {vr(OAC+4,2)}, {vr(OAC+6,2)}", f"v_cvt_pk_bf16_f32 v{OAC}, v{OAC}, v{OAC+1}",
         f"v_pk_mul_f32 {vr(OAC+4,2)}, {vr(OAC+4,2)}, {vr(LA,2)}", f"v_cvt_pk_bf16_f32 v{OAC+1}, v{OAC+4}, v{OAC+5}"] if cfg.get("usepk") else [
         f"v_add_f32 v{LA}, v{LA}, v{LA+2}", f"v_add_f32 v{LA+1}, v{LA+1}, v{LA+3}", f"v_rcp_f32 v{LA}, v{LA}", f"v_rcp_f32 v{LA+1}, v{LA+1}",
         f"v_add_f32 v{OAC}, v{OAC}, v{OAC+2}", f"v_add_f32 v{OAC+1}, v{OAC+1}, v{OAC+3}",
         f"v_mul_f32 v{OAC}, v{OAC}, v{LA}", f"v_mul_f32 v{OAC+1}, v{OAC+1}, v{LA+1}",
         f"v_add_f32 v{OAC+4}, v{OAC+4}, v{OAC+6}", f"v_add_f32 v{OAC+5}, v{OAC+5}, v{OAC+7}",
         f"v_mul_f32 v{OAC+4}, v{OAC+4}, v{LA}", f"v_mul_f32 v{OAC+5}, v{OAC+5}, v{LA+1}",
         f"v_cvt_pk_bf16_f32 v{OAC}, v{OAC}, v{OAC+1}", f"v_cvt_pk_bf16_f32 v{OAC+1}, v{OAC+4}, v{OAC+5}"]))
    WAC = [QB, QB + 4, QB + 8, QB + 12, ACA, ACA + 4, ACB, ACB + 4]
    so = e(f"ds_write_b64 v{A_UW}, {vr(OAC,2)}")
    S("ow")
    def vpost():
        for t in range(2):
            a = ACB + 4 * t
            e(f"v_pk_add_f32 {vr(a,2)}, {vr(a,2)}, {vr(a+2,2)}\nv_cvt_pk_bf16_f32 v{VP+t}, v{a}, v{a+1}")
    vpost()
    for r in range(0, 16, 2): e(z(QB + r))
    if cfg.get("xo"):
        for r in range(0, 16, 2): e(z(ACA + r))
    e.waitlg(so)
    S("bo0")
    e("s_barrier")
    S("bo1")
    OA = KXA
    for J in range(2):
        for x in range(2):
            seq[("oa", J)] = e(f"ds_read_b64_tr_b16 {vr(OA+4*J+2*x,2)}, v{A_TR} offset:{L_QU-L_MEM + (2*J+x)*1024}")
    if not cfg.get("xo"):
        for r in range(0, 16, 2): e(z(ACA + r))
    mo = []
    for p in range(4):
        for T in (2 * p, 2 * p + 1): mo.append(smf(WAC[T], OA, FRAG[("o", (0, T // 2), T % 2)]))
        for T in (2 * p, 2 * p + 1): mo.append(smf(WAC[T], OA + 4, ("v", MEMA + 8 * (T % 4))))
    RSO = OAC
    def post_pair(p):
        a, b = WAC[2 * p], WAC[2 * p + 1]; d = RSO + 2 * p
        return [f"v_add_f32 v{a}, v{a}, v{a+2}", f"v_add_f32 v{a+1}, v{a+1}, v{a+3}",
                f"v_cvt_pk_bf16_f32 v{d}, v{a}, v{a+1}", f"v_add_f32 v{b}, v{b}, v{b+2}",
                f"v_add_f32 v{b+1}, v{b+1}, v{b+3}", f"v_and_or_b32 v{d}, v{d}, -2, s{S_TAG}",
                f"v_cvt_pk_bf16_f32 v{d+1}, v{b}, v{b+1}",
                f"buffer_store_dwordx2 {vr(d,2)}, v{A_RSW}, {WS}, s{S_RSW0 if p < 2 else S_RSW1} offen offset:{(p%2)*2048}{st}"]
    p0, p1, p2, p3 = [post_pair(p) for p in range(4)]
    fill = {-1: [wt(("oa", 0)), SS("oa")], 1: [wt(("oa", 1))], 2: [rd_wo(4, 0), rd_wo(4, 1)], 3: [rd_wo(5, 0), rd_wo(5, 1)],
            4: ["s_nop 0"] + p0[0:1], 5: p0[1:3], 6: [rd_wo(6, 0), rd_wo(6, 1)] + p0[3:5], 7: [rd_wo(7, 0), rd_wo(7, 1)] + p0[5:7], 8: p0[7:8] + p1[0:1],
            9: [wt(("wo", 4))] + p1[1:3], 10: [wt(("wo", 5))] + p1[3:5], 11: p1[5:7],
            12: p1[7:8] + p2[0:1], 13: [wt(("wo", 6))] + p2[1:3], 14: [wt(("wo", 7))] + p2[3:5],
            15: p2[5:8] + p3[0:3] + ([p3[5]] + p3[3:5] + p3[6:] if not cfg.get("usepk") else [p3[5], f"v_pk_add_f32 {vr(WAC[7],2)}, {vr(WAC[7],2)}, {vr(WAC[7]+2,2)}"] + p3[6:]),
            }
    GS("wo", fill, 16)
    interleave(e, mo, fill)
    S("Wo")
    if cfg.get("stepst"):
        for k in range(12): e(f"s_cmp_eq_u32 s{S_STEP}, {k}\ns_cselect_b32 s{20+k}, s84, s{20+k}")
    e.nop(cfg.get("xdelay", 0))
    for w in (2, 0, 1): e(f"s_cmp_eq_u32 s{S_W}, {w}\ns_cbranch_scc1 {LOOP}_{w}")
    e(f"s_branch {LOOP}_3")
    for t in tail: t()
    e.label(LAST)
    e("s_waitcnt vmcnt(0)")
    for J in range(4, 8):
        for x in range(2): rd_m(J, x)()
    e(pubk); e(pubv)
    e(f"s_add_u32 s{S_KVM}, s{S_KVM}, 0x20000")
    for r in range(0, 8, 2): e(z(ACB + r))
    e("s_waitcnt lgkmcnt(0)")
    for J in range(8):
        for t in range(2): e(smf(ACA + 4 * t, MEMA + 4 * J, FRAG[("k", J, t)]))
    for i, m in enumerate(mv):
        e(m)
        if 2 <= i < 8: e((post_dup(ACA, KP) + post_dup(ACA + 4, KP + 1))[i - 2])
        if i == 8: e(pubk)
    e.nop(8)
    vpost()
    e(pubv)
    e("s_waitcnt vmcnt(0) lgkmcnt(0)\ns_barrier")
    e(f"v_mov_b32 v{T0}, 64\ns_mov_b64 exec, s[{S_W0M}:{S_W0M+1}]")
    e(f"buffer_store_dword v{T0}, off, {WS}, s{S_CF} sc1")
    if cfg.get("gstamp"):
        e(f"s_memrealtime s[84:85]\ns_memtime s[86:87]\ns_waitcnt lgkmcnt(0)\ns_sub_u32 s86, s86, s16\nv_mov_b32 v24, s86\nv_mov_b32 v20, s3\nv_mov_b32 v21, s18\nv_mov_b32 v22, s84\nv_mov_b32 v23, s69")
        e(f"s_lshl_b32 s{S_TMP}, s{S_H}, 4\ns_add_u32 s{S_TMP}, s{S_TMP}, {WS_STAMP + 0x10000}")
        if cfg.get("stepst"):
            for k in range(12): e(f"v_mov_b32 v{30+k}, s{20+k}")
            e(f"s_lshl_b32 s{S_TMP2}, s{S_H}, 6\ns_add_u32 s{S_TMP2}, s{S_TMP2}, {WS_STAMP + 0x11000}")
            for k in range(3): e(f"buffer_store_dwordx4 v[{30+4*k}:{33+4*k}], off, {WS}, s{S_TMP2} offset:{16*k}")
        e(f"buffer_store_dwordx4 v[20:23], off, {WS}, s{S_TMP}\nbuffer_store_dword v24, off, {WS}, s{S_TMP} offset:1024")
    if cfg.get("dbgt"):
        for k, r in enumerate(("s69", "s18", "s84")):
            e(f"s_sub_u32 s{S_TMP}, {r}, s3\nv_mov_b32 v20, s{S_TMP}\nv_mov_b32 v21, {8 + 4*k}\nglobal_atomic_umax v21, v20, s[{S_DBG}:{S_DBG+1}]")
        e(f"v_mov_b32 v20, s60\nv_mov_b32 v21, 28\nglobal_atomic_or v21, v20, s[{S_DBG}:{S_DBG+1}]")
        e(f"v_mov_b32 v20, s86\nv_mov_b32 v21, 24\nglobal_atomic_umax v21, v20, s[{S_DBG}:{S_DBG+1}]")
    e("s_branch KEND")
```

```python
from asmlib import Em, vr
from layout import *
from chain import *

WS = f"s[{R_WS}:{R_WS+3}]"
W_XB, W_QX, W_KMU, W_RED, W_STG = 0x0, 0x10000, 0x12000, 0x13000, 0x10000
NSLOT = 6
S_G, S_SEG, S_CNT, S_XL, S_XG, S_I, S_OFF, S_OFF2, S_STGB = 52, 53, 54, 55, 56, 57, 58, 59, 60
S_STP, S_END, S_PREV, S_CHN = 61, 66, 74, 75
R_X = 84
R_A, R_B = 40, 44
R_O = 88
V_C, V_G, V_L16, V_XSRC, V_XRD, V_T, V_T2 = 1, 2, 3, 4, 5, 6, 7

_cfg = {}
def WST(e, idx=None):
    if not _cfg.get("wstamp"): return
    e(f"s_memrealtime s[70:71]\ns_lshl_b32 s72, s{S_GRP}, 5\ns_add_u32 s72, s72, s{S_H}\ns_lshl_b32 s72, s72, 8\ns_lshl_b32 s73, s101, 2\ns_add_u32 s72, s72, s73")
    e(f"s_add_u32 s72, s72, {WS_STAMP + 0x20000}\ns_add_u32 s101, s101, 1\ns_waitcnt lgkmcnt(0)\ns_sub_u32 s70, s70, s3\nv_mov_b32 v{V_T}, s70\nv_mov_b32 v{V_T2}, 0\ns_mov_b64 exec, s[{S_W0M}:{S_W0M+1}]")
    e(f"buffer_store_dword v{V_T}, v{V_T2}, {WS}, s72 offen\ns_mov_b64 exec, -1\ns_waitcnt vmcnt(0)")

def load_blocks(e, blocks, D=NSLOT):
    N = len(blocks)
    def issue(n):
        r, vs, so, _, _ = blocks[n]
        for i in range(4):
            e(f"s_add_u32 m0, s{S_STGB}, {(n % NSLOT) * 4096 + i * 1024}\ns_mov_b32 s{S_TMP}, {so[i]}")
            e(f"buffer_load_dwordx4 {vs}, s[{r}:{r+3}], s{S_TMP} offen lds")
    for n in range(min(D, N)): issue(n)
    for n in range(N):
        e(f"s_waitcnt vmcnt({4 * min(N - 1 - n, D - 1)})")
        for dst, off in blocks[n][4]:
            e(f"ds_read_b64_tr_b16 {dst}, {blocks[n][3]} offset:{(n % NSLOT) * 4096 + off}")
        e("s_waitcnt lgkmcnt(0)")
        if n + D < N: issue(n + D)

def wmat_blocks(r, abase):
    out = []
    for J in range(8):
        rd = []
        for t in range(2):
            for m in range(4):
                s = 2 * J + m // 2
                rd.append((vr(abase + (t * 16 + s) * 4 + 2 * (m % 2), 2, "a"), (32 * (m // 2) + 4 * (m % 2)) * 64 + t * 32))
        out.append((r, "v20", [(64 * J + 16 * i) * 8192 for i in range(4)], "v22", rd))
    return out

def wo_blocks(r, abase):
    out = []
    for hh in range(8):
        rd = []
        for js in range(4):
            for m in range(2):
                rd.append((vr(abase + (hh * 4 + js) * 4 + 2 * m, 2, "a"), (32 * js + 16 * m) * 32))
        out.append((r, "v21", [(hh * 128 + 32 * i) * 1024 for i in range(4)], "v23", rd))
    return out

def wload_addr(e):
    e("v_and_b32 v18, 3, v0\nv_lshrrev_b32 v19, 2, v0")
    e(f"s_lshl_b32 s{S_TMP}, s{S_H}, 8\ns_lshl_b32 s{S_TMP2}, s{S_W}, 6\ns_add_u32 s{S_TMP}, s{S_TMP}, s{S_TMP2}")
    e(f"v_lshlrev_b32 v20, 13, v19\nv_lshl_add_u32 v20, v18, 4, v20\nv_add_u32 v20, s{S_TMP}, v20")
    e(f"s_lshl_b32 s{S_TMP}, s{S_W}, 20\ns_lshl_b32 s{S_TMP2}, s{S_H}, 5\ns_add_u32 s{S_TMP}, s{S_TMP}, s{S_TMP2}")
    e(f"v_lshrrev_b32 v21, 1, v0\nv_lshlrev_b32 v21, 10, v21\nv_and_b32 v24, 1, v0\nv_lshl_add_u32 v21, v24, 4, v21\nv_add_u32 v21, s{S_TMP}, v21")
    e(f"s_mul_i32 s{S_STGB}, s{S_W}, {NSLOT*4096}\ns_add_u32 s{S_STGB}, s{S_STGB}, {W_STG}")
    e(f"v_lshrrev_b32 v24, 2, v{V_C}")
    e(f"v_lshl_add_u32 v22, v{V_G}, 3, v24\nv_lshlrev_b32 v22, 6, v22\nv_lshl_add_u32 v22, v18, 3, v22\nv_add_u32 v22, s{S_STGB}, v22")
    e(f"v_lshl_add_u32 v23, v{V_G}, 2, v24\nv_lshlrev_b32 v23, 5, v23\nv_lshl_add_u32 v23, v18, 3, v23\nv_add_u32 v23, s{S_STGB}, v23")

def x_dma(e):
    out = []
    for i in range(8):
        out.append([f"s_add_u32 m0, s{S_XL}, {i*1024}", f"s_add_u32 s{S_TMP}, s{S_XG}, {i*64}",
                    f"buffer_load_dwordx4 v{V_XSRC}, s[{R_X}:{R_X+3}], s{S_TMP} offen lds"])
    return out

def flag_store(e, soff, val):
    e(f"v_mov_b32 v{V_T}, {val}\nv_mov_b32 v{V_T2}, s{soff}\ns_mov_b64 exec, s[{S_W0M}:{S_W0M+1}]")
    e(f"buffer_store_dword v{V_T}, v{V_T2}, {WS}, 0 offen sc1\ns_mov_b64 exec, -1")

def mfd(d, a, b, c, pa="v", pb="v"):
    return f"v_mfma_f32_16x16x32_bf16 {vr(d,4)}, {vr(a,4,pa)}, {vr(b,4,pb)}, {c if c == '0' else vr(c,4)}"

def phaseA(e, cfg):
    e("; ---- phase A : K,V projection")
    XF, ACC, OUT = 32, 64, 96
    srd(e, R_A, S_WK, 0x400000); srd(e, R_B, S_WV, 0x400000)
    if cfg.get("seqa"):
        e(f"s_cmp_lt_u32 s{S_G}, 3\ns_cselect_b32 s{S_STP}, 2, 4\ns_cselect_b32 s{S_END}, 28, 64\ns_cselect_b32 s{S_TMP}, 9, 25\ns_add_u32 s{S_SEG}, s{S_G}, s{S_TMP}")
        e(f"s_cmp_eq_u32 s{S_G}, 0\ns_cselect_b32 s{S_STP}, 1, s{S_STP}\ns_cselect_b32 s{S_END}, 10, s{S_END}\ns_cselect_b32 s{S_SEG}, 0, s{S_SEG}")
    else:
        e(f"s_cmp_lt_u32 s{S_G}, 3\ns_cselect_b32 s{S_STP}, 3, 4\ns_cselect_b32 s{S_END}, {cfg.get('asplit', 27)}, 64\ns_cselect_b32 s{S_TMP}, 0, {cfg.get('asplit', 27) - 3}\ns_add_u32 s{S_SEG}, s{S_G}, s{S_TMP}")
    e(f"s_lshl_b32 s{S_XG}, s{S_SEG}, 15\ns_lshl_b32 s{S_XL}, s{S_W}, 13\nv_mov_b32 v{V_XRD}, v{V_L16}")
    for g in x_dma(e):
        for s in g: e(s)
    load_blocks(e, wmat_blocks(R_A, 0) + wmat_blocks(R_B, 128), cfg.get('wda', 6))
    wait_init(e, "w", 24)
    e(f"s_and_b32 s{S_TMP}, s{S_GRP}, 3\ns_lshl_b32 s{S_TMP}, s{S_TMP}, 4\ns_lshr_b32 s{S_TMP2}, s{S_GRP}, 2\ns_add_u32 s{S_TMP}, s{S_TMP}, s{S_TMP2}\ns_nop 3")
    e(f"v_readlane_b32 s{S_MODE}, v24, s{S_TMP}")
    if cfg.get("force_slow"): e(f"s_mov_b32 s{S_MODE}, 0")
    WST(e)
    e(f"s_mov_b32 s{S_I}, 0x7ffffff0")
    pa = cfg.get("pastamp")
    def acc(k):
        if pa: e(f"s_memtime s[70:71]\ns_waitcnt lgkmcnt(0)\ns_sub_u32 s72, s70, s92\ns_mov_b32 s92, s70\ns_add_u32 s{93+k}, s{93+k}, s72")
    if pa: e("s_memtime s[92:93]\ns_waitcnt lgkmcnt(0)\ns_mov_b32 s93, 0\ns_mov_b32 s94, 0\ns_mov_b32 s95, 0\ns_mov_b32 s96, 0")
    e.label("PA_LOOP")
    e("s_waitcnt vmcnt(4)")
    acc(0)
    e("s_barrier")
    acc(1)
    e(f"s_lshl_b32 s{S_TMP}, s{S_STP}, 15\ns_add_u32 s{S_XG}, s{S_XG}, s{S_TMP}\ns_xor_b32 s{S_XL}, s{S_XL}, 0x8000")
    dma = x_dma(e)
    seq = {}
    def rd(n):
        s, rt = n // 2, n % 2
        seq[n] = e(f"ds_read_b128 {vr(XF + 4 * (n % 8), 4)}, v{V_XRD} offset:{(rt * 16 + s) * 1024}")
    for n in range(6): rd(n)
    for n in range(32):
        s, rt = n // 2, n % 2
        e.waitlg(seq[n])
        x = XF + 4 * (n % 8)
        for t in range(2):
            a = ACC + 4 * (t * 2 + rt)
            e(mfd(a, (t * 16 + s) * 4, x, "0" if s == 0 else a, "a", "v"))
            if t == 0 and n + 6 < 32: rd(n + 6)
        for t in range(2):
            a = ACC + 16 + 4 * (t * 2 + rt)
            e(mfd(a, x, 128 + (t * 16 + s) * 4, "0" if s == 0 else a, "v", "a"))
        if n % 3 == 1 and n // 3 < 8:
            for q in dma[n // 3]: e(q)
        if n == 14:
            e("s_waitcnt vmcnt(5)\ns_barrier")
            flag_store(e, S_I, 1)
    acc(2)
    e(f"v_xor_b32 v{V_XRD}, 0x8000, v{V_XRD}")
    e(f"s_lshl_b32 s{S_OFF}, s{S_SEG}, 19\ns_lshl_b32 s{S_TMP}, s{S_H}, 14\ns_add_u32 s{S_OFF}, s{S_OFF}, s{S_TMP}\ns_add_u32 s{S_OFF}, s{S_OFF}, {WS_KV}")
    e(f"s_lshl_b32 s{S_TMP}, s{S_W}, 10\ns_add_u32 s{S_TMP2}, s{S_OFF}, s{S_TMP}\ns_nop 0\ns_lshl_b32 s{S_I}, s{S_H}, 6\ns_add_u32 s{S_I}, s{S_I}, s{S_SEG}\ns_lshl_b32 s{S_I}, s{S_I}, 2")
    for rt in range(2):
        o = OUT + 4 * rt
        for t in range(2):
            a = ACC + 4 * (t * 2 + rt)
            e(f"v_cvt_pk_bf16_f32 v{o+2*t}, v{a}, v{a+1}\nv_cvt_pk_bf16_f32 v{o+2*t+1}, v{a+2}, v{a+3}")
        e(f"buffer_store_dwordx4 {vr(o,4)}, v{V_L16}, {WS}, s{S_TMP2} offen sc1")
        e(f"s_add_u32 s{S_TMP2}, s{S_TMP2}, 4096")
    e(f"s_add_u32 s{S_TMP2}, s{S_TMP2}, s{S_TMP}")
    for t in range(2):
        o = OUT + 8 + 4 * t
        for rt in range(2):
            a = ACC + 16 + 4 * (t * 2 + rt)
            e(f"v_cvt_pk_bf16_f32 v{o+2*rt}, v{a}, v{a+1}\nv_cvt_pk_bf16_f32 v{o+2*rt+1}, v{a+2}, v{a+3}")
        e(f"buffer_store_dwordx4 {vr(o,4)}, v{V_L16}, {WS}, s{S_TMP2} offen offset:{t*1024} sc1")
    acc(3)
    e(f"s_add_u32 s{S_SEG}, s{S_SEG}, s{S_STP}\ns_cmp_lt_u32 s{S_SEG}, s{S_END}\ns_cbranch_scc1 PA_LOOP")
    e("s_waitcnt vmcnt(0)\ns_barrier")
    flag_store(e, S_I, 1)
    if pa:
        e(f"s_lshl_b32 s72, s{S_GRP}, 5\ns_add_u32 s72, s72, s{S_H}\ns_lshl_b32 s72, s72, 4\ns_add_u32 s72, s72, {WS_STAMP + 0x30000}")
        e(f"v_mov_b32 v32, s93\nv_mov_b32 v33, s94\nv_mov_b32 v34, s95\nv_mov_b32 v35, s96\nv_mov_b32 v36, 0\nbuffer_store_dwordx4 v[32:35], v36, {WS}, s72 offen")

def poll_all(e, name, vaddr, soff, cmpv, vt, sleep=8, bar=True):
    l, d = e.newlabel(name), e.newlabel(name + "D")
    e(f"s_cmp_eq_u32 s{S_W}, 0\ns_cbranch_scc0 {d}\ns_mov_b32 s{S_SPIN}, 0")
    e.label(l)
    e(f"buffer_load_dword v{vt}, v{vaddr}, {WS}, {soff} offen sc1\ns_add_u32 s{S_SPIN}, s{S_SPIN}, 1\ns_waitcnt vmcnt(0)")
    e(f"v_cmp_gt_u32 vcc, {cmpv}, v{vt}\ns_cbranch_vccz {d}\ns_sleep {sleep}")
    e(f"s_cmp_lt_u32 s{S_SPIN}, {SPIN_MAX}\ns_cbranch_scc1 {l}")
    e.label(d)
    if bar: e("s_barrier")

def rb_pair(e, d, a, b):
    e(f"v_cvt_pk_bf16_f32 v{d}, v{a}, v{b}\nv_lshlrev_b32 v{a}, 16, v{d}\nv_and_b32 v{b}, 0xffff0000, v{d}")

C_UR, C_HP, URS, HPC = 0x0, 0x8000, 7680, 4160
HPS = 4 * HPC
def conv(e, cfg):
    e("; ---- conv task")
    S_TK = S_OFF
    e(f"s_cmp_lt_u32 s{S_G}, 3\ns_cbranch_scc1 CV_END\ns_sub_u32 s{S_TK}, s{S_G}, 3\ns_lshl_b32 s{S_TK}, s{S_TK}, 5\ns_add_u32 s{S_TK}, s{S_TK}, s{S_H}")
    if cfg.get("cvwait") is not None:
        wait_init(e, "w", 24)
        e(f"s_lshl_b32 s{S_OFF2}, s{S_H}, 8\ns_add_u32 s{S_OFF2}, s{S_OFF2}, {4*cfg['cvwait']}\nv_mov_b32 v24, 0")
        poll_all(e, "CVS", 24, f"s{S_OFF2}", 1, 25, 32)
    srd(e, R_A, S_K, 0x200000); srd(e, R_B, S_V, 0x200000)
    KR, VR, SH, P, U = 32, 56, 72, 88, 112
    e(f"s_lshl_b32 s{S_TMP}, s{S_W}, 6\nv_add_u32 v16, s{S_TMP}, v0")
    e(f"s_lshl_b32 s{S_TMP}, s{S_TK}, 3\nv_lshlrev_b32 v17, 13, v16\nv_add_u32 v17, s{S_TMP}, v17")
    e("v_subrev_u32 v18, 3072, v17")
    for j in range(3): e(f"buffer_load_dwordx2 {vr(KR+2*j,2)}, v18, s[{R_A}:{R_A+3}], 0 offen offset:{j*1024}")
    e("v_add_u32 v19, 4096, v17")
    for j in range(8):
        va = "v17" if j < 4 else "v19"
        e(f"buffer_load_dwordx2 {vr(KR+6+2*j,2)}, {va}, s[{R_A}:{R_A+3}], 0 offen offset:{(j%4)*1024}")
        e(f"buffer_load_dwordx2 {vr(VR+2*j,2)}, {va}, s[{R_B}:{R_B+3}], 0 offen offset:{(j%4)*1024}")
    e(f"s_lshl_b32 s{S_TMP2}, s{S_TK}, 2\ns_add_u32 s{S_TMP2}, s{S_TMP2}, s{S_W}")
    e(f"s_lshl_b32 s{S_XG}, s{S_TMP2}, 12\ns_mul_i32 s{S_XL}, s{S_W}, {HPS}\ns_add_u32 s{S_XL}, s{S_XL}, {C_HP}")
    e(f"s_add_u32 s{R_O}, s{S_SSMK}, s{S_XG}\ns_addc_u32 s{R_O+1}, s{S_SSMK+1}, 0\ns_mov_b32 s{R_O+2}, 4096\ns_mov_b32 s{R_O+3}, 0x20000")
    HR = 140
    for i in range(5):
        e(f"v_add_u32 v22, {i*1024 - 64}, v{V_L16}\nv_add_u32 v23, {i*1024 - 48}, v{V_L16}")
        e(f"buffer_load_dwordx4 {vr(HR+6*i,4)}, v22, s[{R_O}:{R_O+3}], 0 offen\nbuffer_load_dwordx2 {vr(HR+6*i+4,2)}, v23, s[{R_O}:{R_O+3}], 0 offen")
    e(f"s_lshl_b32 s{S_TMP}, s{S_TK}, 5\ns_load_dwordx8 s[92:99], s[{S_SH}:{S_SH+1}], s{S_TMP}")
    e(f"s_lshl_b32 s{S_TMP}, s{S_TMP2}, 1\ns_and_b32 s{S_TMP}, s{S_TMP}, -4\ns_load_dword s{S_CNT}, s[{S_SSMD}:{S_SSMD+1}], s{S_TMP}")
    e(f"v_mov_b64 v[24:25], 0\nv_mov_b64 v[26:27], 0")
    e(f"s_mul_i32 s{S_I}, s{S_W}, {URS}\nv_add_u32 v20, s{S_I}, v{V_L16}")
    for i in range(2): e(f"ds_write_b128 v20, v[24:27] offset:{5120 + i*1024}")
    e(f"s_mov_b32 exec_hi, 0\nds_write_b128 v20, v[24:27] offset:{5120 + 2048}\ns_mov_b64 exec, -1")
    e("v_lshlrev_b32 v20, 3, v16\nv_sub_u32 v20, 2040, v20\nv_lshrrev_b32 v21, 5, v20\nv_and_b32 v20, 31, v20")
    e("v_mul_u32_u24 v21, 80, v21\nv_lshl_add_u32 v20, v20, 1, v21")
    e("s_waitcnt vmcnt(10) lgkmcnt(0)")
    if cfg.get("cvstamp"): WST(e)
    e("v_cmp_eq_u32 vcc, 0, v16\ns_nop 1")
    for r in range(6): e(f"v_cndmask_b32 v{KR+r}, v{KR+r}, v24, vcc")
    for ch in range(4):
        for j in range(4):
            src = 92 + ch * 2 + j // 2
            e(f"s_lshl_b32 s{62+j}, s{src}, 16" if j % 2 == 0 else f"s_and_b32 s{62+j}, s{src}, 0xffff0000")
        KF = 120
        for j in range(11):
            r = KR + 2 * j + ch // 2
            e(f"v_lshlrev_b32 v{KF+j}, 16, v{r}" if ch % 2 == 0 else f"v_and_b32 v{KF+j}, 0xffff0000, v{r}")
        for pr in range(4):
            a, b, t1, t2, d = P, P + 1, P + 2, P + 3, P + 4
            r0 = 2 * pr
            e(f"v_mul_f32 v{a}, s65, v{KF+r0}\nv_mul_f32 v{b}, s65, v{KF+r0+1}")
            rb_pair(e, d, a, b)
            for j in (2, 1, 0):
                e(f"v_mul_f32 v{t1}, s{62+j}, v{KF+r0+3-j}\nv_mul_f32 v{t2}, s{62+j}, v{KF+r0+1+3-j}")
                rb_pair(e, d, t1, t2)
                e(f"v_add_f32 v{a}, v{a}, v{t1}\nv_add_f32 v{b}, v{b}, v{t2}")
                rb_pair(e, d, a, b)
            for q, rr in ((t1, r0), (t2, r0 + 1)):
                r = VR + 2 * rr + ch // 2
                e(f"v_lshlrev_b32 v{q}, 16, v{r}" if ch % 2 == 0 else f"v_and_b32 v{q}, 0xffff0000, v{r}")
            e(f"v_mul_f32 v{a}, v{a}, v{t1}\nv_mul_f32 v{b}, v{b}, v{t2}")
            e(f"v_cvt_pk_bf16_f32 v{U+3-pr}, v{b}, v{a}")
        e(f"ds_write_b128 v20, {vr(U,4)} offset:{ch*URS}\ns_nop 1")
    if cfg.get("cvstamp"): WST(e)
    e(f"s_waitcnt vmcnt(0)\nv_add_u32 v22, s{S_XL}, v{V_L16}")
    for i in range(5):
        x = HR + 6 * i
        if i == 4: e("s_mov_b64 exec, 15")
        for k in range(4): e(f"v_alignbyte_b32 v{P+k}, v{x+k+1}, v{x+k}, 2")
        for k in range(4): e(f"v_alignbyte_b32 v{P+4+k}, v{x+k+2}, v{x+k+1}, 2")
        for k in range(4): e(f"v_mov_b32 v{P+8+k}, v{x+k+1}")
        e(f"ds_write_b128 v22, {vr(x,4)} offset:{i*1024}\nds_write_b128 v22, {vr(P,4)} offset:{i*1024 + HPC}")
        e(f"ds_write_b128 v22, {vr(P+8,4)} offset:{i*1024 + 2*HPC}\nds_write_b128 v22, {vr(P+4,4)} offset:{i*1024 + 3*HPC}\ns_waitcnt lgkmcnt(0)")
    e("s_mov_b64 exec, -1\ns_barrier")
    if cfg.get("cvstamp"): WST(e)
    e(f"v_and_b32 v16, 31, v0\nv_lshrrev_b32 v17, 5, v0")
    e(f"v_lshl_add_u32 v18, v17, 3, v16\nv_add_u32 v18, 1, v18\nv_and_b32 v19, 3, v18\nv_and_b32 v18, -4, v18\nv_mul_u32_u24 v19, {HPC}, v19")
    e(f"v_lshl_add_u32 v18, v18, 1, v19\nv_add_u32 v18, s{S_XL}, v18")
    e(f"v_sub_u32 v19, 63, v16\nv_mul_u32_u24 v19, 80, v19\nv_lshl_add_u32 v19, v17, 4, v19\nv_add_u32 v19, s{S_I}, v19")
    e("v_subrev_u32 v21, 2560, v19")
    AC0, AC1, FR, NB = 32, 48, 64, 3
    seq = {}
    def rd(sg):
        b = FR + 16 * (sg % NB); bo = (sg // 2) * 80 + (sg % 2) * 32
        e(f"ds_read_b64 {vr(b,2)}, v18 offset:{sg*32}\nds_read_b64 {vr(b+2,2)}, v18 offset:{sg*32+8}")
        e(f"ds_read_b128 {vr(b+4,4)}, v19 offset:{bo}")
        e(f"ds_read_b128 {vr(b+8,4)}, v21 offset:{bo}")
        seq[sg] = e(f"ds_read_b64 {vr(b+12,2)}, v18 offset:{sg*32+2048}\nds_read_b64 {vr(b+14,2)}, v18 offset:{sg*32+2056}")
    def mm(d, a, b, first): return f"v_mfma_f32_32x32x16_bf16 {vr(d,16)}, {vr(a,4)}, {vr(b,4)}, {'0' if first else vr(d,16)}"
    rd(0); rd(1)
    for sg in range(64):
        b = FR + 16 * (sg % NB)
        e.waitlg(seq[sg])
        e(mm(AC0, b, b + 4, sg == 0))
        if sg + 2 < 64: rd(sg + 2)
        e(mm(AC1, b, b + 8, sg == 0))
        e(mm(AC1, b + 12, b + 4, False))
    if cfg.get("cvstamp"): WST(e)
    e(f"s_bitcmp1_b32 s{S_TMP2}, 0\ns_cbranch_scc1 CV_D1\ns_lshl_b32 s{S_CNT}, s{S_CNT}, 16")
    e.label("CV_D1")
    e(f"s_and_b32 s{S_CNT}, s{S_CNT}, 0xffff0000")
    e(f"v_lshlrev_b32 v22, 5, v17\nv_sub_u32 v22, v19, v22\nv_lshl_add_u32 v22, v17, 3, v22")
    e(f"v_lshlrev_b32 v23, 6, v16\nv_lshl_add_u32 v23, v17, 3, v23")
    e(f"s_lshl_b32 s{S_XG}, s{S_TMP2}, 12\ns_add_u32 s{S_XG}, s{S_XG}, {WS_Y2}")
    e("v_subrev_u32 v24, 2560, v22")
    for tl in range(2):
        for q in range(4):
            e(f"ds_read_b64 {vr(FR + 8*tl + 2*q, 2)}, {'v22' if tl == 0 else 'v24'} offset:{56 - 16*q}")
    e("s_waitcnt lgkmcnt(0)\ns_nop 7")
    for tl in range(2):
        for q in range(4):
            y = (AC0 if tl == 0 else AC1) + 4 * q; u = FR + 8 * tl + 2 * q; t = 96
            e(f"v_and_b32 v{t}, 0xffff0000, v{u+1}\nv_lshlrev_b32 v{t+1}, 16, v{u+1}\nv_and_b32 v{t+2}, 0xffff0000, v{u}\nv_lshlrev_b32 v{t+3}, 16, v{u}")
            for i in range(4): e(f"v_mul_f32 v{t+i}, s{S_CNT}, v{t+i}")
            rb_pair(e, t + 4, t, t + 1); rb_pair(e, t + 4, t + 2, t + 3)
            rb_pair(e, t + 4, y, y + 1); rb_pair(e, t + 4, y + 2, y + 3)
            for i in range(4): e(f"v_add_f32 v{y+i}, v{y+i}, v{t+i}")
            e(f"v_cvt_pk_bf16_f32 v{y}, v{y}, v{y+1}\nv_cvt_pk_bf16_f32 v{y+1}, v{y+2}, v{y+3}")
            e(f"buffer_store_dwordx2 {vr(y,2)}, v23, {WS}, s{S_XG} offen offset:{tl*2048 + q*16} sc1")
    if cfg.get("cvstamp"): e("s_nop 0"); WST(e)
    e("s_waitcnt vmcnt(0)\ns_barrier")
    wait_init(e, "w", 24)
    e(f"s_lshl_b32 s{S_TK}, s{S_TK}, 2\ns_add_u32 s{S_TK}, s{S_TK}, {FL_CONV}")
    flag_store(e, S_TK, 1)
    e.label("CV_END")

def phaseB(e, cfg):
    e("; ---- phase B")
    srd(e, R_A, S_WQ, 0x400000); srd(e, R_B, S_WO, 0x400000)
    wload_addr(e)
    e(f"s_mov_b32 s{S_SEG}, s{S_G}\ns_lshl_b32 s{S_XG}, s{S_SEG}, 15\ns_lshl_b32 s{S_XL}, s{S_W}, 13")
    e(f"v_mov_b32 v{V_XRD}, v{V_L16}")
    for g in x_dma(e):
        for s in g: e(s)
    load_blocks(e, wmat_blocks(R_A, 0) + wo_blocks(R_B, 128), cfg.get('wdb', 6))
    srd(e, R_O, S_OUT, 0x200000); srd(e, R_A, S_GATE, 1024)
    GW = 16
    e(f"buffer_load_dwordx4 {vr(GW,4)}, v{V_L16}, s[{R_A}:{R_A+3}], 0 offen")
    e(f"s_and_b32 s62, s{S_W}, 1\ns_lshr_b32 s63, s{S_W}, 1")
    e(f"v_lshlrev_b32 v8, 2, v{V_G}\nv_sub_u32 v8, v{V_C}, v8\ns_lshl_b32 s{S_TMP}, s62, 4\nv_add_u32 v8, s{S_TMP}, v8\nv_subrev_u32 v9, 16, v8")
    e(f"v_lshrrev_b32 v25, 2, v{V_C}\nv_lshl_add_u32 v25, v{V_G}, 2, v25\nv_and_b32 v24, 1, v0\nv_lshlrev_b32 v24, 3, v24\nv_lshl_add_u32 v10, v25, 4, v24\nv_add_u32 v10, {W_KMU}, v10")
    e(f"s_lshl_b32 s{S_TMP}, s{S_W}, 9\ns_add_u32 s{S_TMP}, s{S_TMP}, {W_KMU}\nv_lshlrev_b32 v22, 4, v{V_C}\nv_lshl_add_u32 v22, v{V_G}, 2, v22\nv_add_u32 v22, s{S_TMP}, v22")
    e(f"s_lshl_b32 s{S_TMP}, s{S_W}, 9\nv_lshl_add_u32 v23, v0, 3, s{S_TMP}")
    e(f"v_and_b32 v24, 1, v{V_G}\nv_lshl_add_u32 v11, v24, 5, v{V_C}\nv_lshlrev_b32 v11, 3, v11\ns_lshl_b32 s{S_TMP}, s63, 10\ns_add_u32 s{S_TMP}, s{S_TMP}, 2048\nv_add_u32 v11, s{S_TMP}, v11")
    e(f"v_lshrrev_b32 v24, 2, v0\nv_and_b32 v25, 3, v0\nv_lshlrev_b32 v12, 10, v24\nv_lshl_add_u32 v12, v25, 8, v12")
    e(f"s_lshr_b32 s{S_TMP}, s{S_H}, 4\ns_lshl_b32 s{S_TMP}, s{S_TMP}, 14\ns_and_b32 s{S_TMP2}, s{S_H}, 15\ns_lshl_b32 s{S_TMP2}, s{S_TMP2}, 4\ns_add_u32 s{S_TMP}, s{S_TMP}, s{S_TMP2}\nv_add_u32 v12, s{S_TMP}, v12")
    e(f"s_lshl_b32 s{S_TMP}, s{S_W}, 3\nv_lshrrev_b32 v24, 3, v0\nv_add_u32 v24, s{S_TMP}, v24\nv_and_b32 v25, 7, v0")
    e(f"v_lshrrev_b32 v26, 4, v24\nv_and_b32 v27, 15, v24\nv_lshlrev_b32 v13, 10, v26\nv_lshl_add_u32 v13, v27, 4, v13")
    e(f"v_lshrrev_b32 v26, 1, v25\nv_lshl_add_u32 v13, v26, 8, v13\nv_and_b32 v26, 1, v25\nv_lshl_add_u32 v13, v26, 3, v13\nv_add_u32 v13, {W_RED}, v13")
    e(f"s_lshl_b32 s{S_TMP}, s{S_H}, 16\nv_lshlrev_b32 v14, 13, v25\nv_lshl_add_u32 v14, v24, 1, v14\nv_add_u32 v14, s{S_TMP}, v14")
    e(f"s_lshl_b32 s{S_TMP}, s{S_H}, 5\nv_lshlrev_b32 v15, 10, v24\nv_lshl_add_u32 v15, v25, 2, v15\nv_add_u32 v15, s{S_TMP}, v15")
    e(f"v_and_b32 v20, 31, v0\nv_lshlrev_b32 v20, 7, v20\nv_lshlrev_b32 v21, 2, v24")
    e(f"s_lshl_b32 s{S_CF}, s{S_H}, 7\ns_add_u32 s{S_CF}, s{S_CF}, {FL_CFLAG}\ns_mov_b32 s{S_SC}, 0x3e0293ee")
    e(f"v_lshlrev_b32 v24, 2, v0\ns_mov_b32 s{S_OFF}, {FL_CONV}\ns_mov_b32 s{S_OFF2}, {FL_CONV+256}\ns_lshl_b32 s{S_CNT}, s{S_H}, 8")
    e(f"v_mov_b32 v26, 0\ns_mov_b32 s{S_CHN}, 0")
    e(f"s_mov_b32 s{S_PREV}, -1")
    KF, VF, XF, ACC, QF, KM, VM, SS_, PB, OA, TT = 32, 64, 80, 112, 232, 144, 160, 216, 180, 188, 224
    X0, X1, M, MX = SS_, SS_ + 4, 168, 27
    RB, NR, FA = 80, 32, 208
    S_RT = 64
    def final(half=False):
        cd = e.newlabel("CVD")
        e(f"s_cmp_eq_u32 s{S_CHN}, 1\ns_cbranch_scc1 {cd}\ns_mov_b32 s{S_CHN}, 1\ns_mov_b32 s{S_OFF}, {FL_CONV}\ns_mov_b32 s{S_OFF2}, {FL_CONV+256}")
        poll_all(e, "CVW", 24, f"s{S_OFF}", 1, 25, 32, False)
        poll_all(e, "CVW", 24, f"s{S_OFF2}", 1, 25, 32, True)
        e.label(cd)
        e(f"s_lshl_b32 s{S_TMP}, s{S_PREV}, 6\ns_add_u32 s{S_TMP}, s{S_TMP}, {WS_Y2}\ns_add_u32 s{S_I}, s{S_TMP}, 4096")
        e(f"buffer_load_ushort v{TT+4}, v14, {WS}, s{S_TMP} offen sc1\nbuffer_load_ushort v{TT+5}, v14, {WS}, s{S_I} offen sc1")
        e(f"s_lshl_b32 s{S_CNT}, s{S_PREV}, 15\nbuffer_load_dword v{TT+6}, v15, s[{R_X}:{R_X+3}], s{S_CNT} offen")
        e(f"s_lshl_b32 s{S_OFF2}, s{S_PREV}, 12\ns_add_u32 s{S_OFF2}, s{S_OFF2}, {FL_O2}")
        WST(e)
        poll_all(e, "OW", 20, f"s{S_OFF2}", 1, TT + 2, cfg.get("osleep", 4))
        WST(e)
        e(f"s_lshl_b32 s{S_TMP}, s{S_PREV}, 7\ns_add_u32 s{S_TMP}, s{S_TMP}, {WS_G}\nbuffer_load_dword v{TT+7}, v21, {WS}, s{S_TMP} offen sc1")
        e(f"s_mul_i32 s{S_OFF}, s{S_PREV}, 37\ns_lshr_b32 s{S_OFF}, s{S_OFF}, 9\ns_mul_i32 s{S_OFF}, s{S_OFF}, 14\ns_sub_u32 s{S_OFF}, s{S_PREV}, s{S_OFF}\ns_lshl_b32 s{S_OFF}, s{S_OFF}, 18\ns_lshl_b32 s{S_TMP}, s{S_W}, 16\ns_add_u32 s{S_OFF}, s{S_OFF}, s{S_TMP}\ns_add_u32 s{S_OFF}, s{S_OFF}, {WS_O}")
        NL = 32 if half else 64
        if half: e(f"s_lshl_b32 s{S_TMP}, s{S_RT}, 12\ns_add_u32 s{S_OFF}, s{S_OFF}, s{S_TMP}")
        def ld(n):
            if n % 4 == 0 and n > 0: e(f"s_add_u32 s{S_OFF}, s{S_OFF}, {8192 if half else 4096}")
            e(f"buffer_load_dwordx4 {vr(RB + 4 * (n % NR), 4)}, v{V_L16}, {WS}, s{S_OFF} offen offset:{(n % 4) * 1024} sc1")
        for n in range(NR): ld(n)
        for n in range(NL):
            hh, rt, js = (n // 4, 0, n % 4) if half else (n // 8, (n // 4) % 2, n % 4)
            e(f"s_waitcnt vmcnt({min(NL - 1 - n, NR - 1)})")
            a = FA + 4 * rt
            e(mfd(a, 128 + (hh * 4 + js) * 4, RB + 4 * (n % NR), "0" if n == 4 * rt else a, "a", "v"))
            if n + NR < NL: ld(n + NR)
        e(f"s_lshl_b32 s{S_TMP}, s{S_W}, 11\ns_add_u32 s{S_TMP}, s{S_TMP}, {W_RED}")
        if half: e(f"s_lshl_b32 s{S_I}, s{S_RT}, 10\ns_add_u32 s{S_TMP}, s{S_TMP}, s{S_I}")
        e(f"v_add_u32 v{V_T}, s{S_TMP}, v{V_L16}\ns_nop 5")
        e(f"ds_write_b128 v{V_T}, {vr(FA,4)}")
        if not half: e(f"ds_write_b128 v{V_T}, {vr(FA+4,4)} offset:1024")
        e("s_waitcnt lgkmcnt(0)\ns_barrier")
        B0 = RB
        for w in range(4): e(f"ds_read_b64 {vr(B0+2*w,2)}, v13 offset:{w*2048}")
        y0, y1, q, g = TT + 4, TT + 5, TT + 6, TT + 7
        e(f"v_lshlrev_b32 v{y0}, 16, v{y0}\nv_lshlrev_b32 v{y1}, 16, v{y1}\nv_lshlrev_b32 v{B0+8}, 16, v{q}\nv_and_b32 v{B0+9}, 0xffff0000, v{q}")
        e(f"v_mul_f32 v{y0}, v{y0}, v{B0+8}\nv_mul_f32 v{y1}, v{y1}, v{B0+9}")
        rb_pair(e, B0 + 10, y0, y1)
        e(f"v_mul_f32 v{y0}, v{y0}, v{g}\nv_mul_f32 v{y1}, v{y1}, v{g}")
        rb_pair(e, B0 + 10, y0, y1)
        e(f"v_sub_f32 v{g}, 1.0, v{g}\nv_cvt_pk_bf16_f32 v{g}, v{g}, v{g}\nv_lshlrev_b32 v{g}, 16, v{g}\ns_waitcnt lgkmcnt(0)")
        e(f"v_add_f32 v{B0}, v{B0}, v{B0+2}\nv_add_f32 v{B0+1}, v{B0+1}, v{B0+3}\nv_add_f32 v{B0+4}, v{B0+4}, v{B0+6}\nv_add_f32 v{B0+5}, v{B0+5}, v{B0+7}")
        e(f"v_add_f32 v{B0}, v{B0}, v{B0+4}\nv_add_f32 v{B0+1}, v{B0+1}, v{B0+5}")
        rb_pair(e, B0 + 10, B0, B0 + 1)
        e(f"v_mul_f32 v{B0}, v{B0}, v{g}\nv_mul_f32 v{B0+1}, v{B0+1}, v{g}")
        rb_pair(e, B0 + 10, B0, B0 + 1)
        e(f"v_add_f32 v{B0}, v{B0}, v{y0}\nv_add_f32 v{B0+1}, v{B0+1}, v{y1}\nv_cvt_pk_bf16_f32 v{B0}, v{B0}, v{B0+1}")
        if half: e(f"s_cmp_eq_u32 s63, s{S_RT}\ns_cselect_b64 exec, -1, 0")
        e(f"buffer_store_dword v{B0}, v15, s[{R_O}:{R_O+3}], s{S_CNT} offen {cfg.get('outst', '')}")
        if half: e("s_mov_b64 exec, -1")
    e.label("PB_LOOP")
    e(f"s_lshl_b32 s{S_CNT}, s{S_H}, 6\ns_add_u32 s{S_CNT}, s{S_CNT}, s{S_SEG}\ns_lshl_b32 s{S_CNT}, s{S_CNT}, 2")
    poll_all(e, "KVW", 26, f"s{S_CNT}", 1, 25, 16, False)
    e("s_waitcnt vmcnt(0)\ns_barrier")
    WST(e)
    e(f"s_lshl_b32 s{S_OFF}, s{S_SEG}, 19\ns_lshl_b32 s{S_TMP}, s{S_H}, 14\ns_add_u32 s{S_OFF}, s{S_OFF}, s{S_TMP}\ns_add_u32 s{S_OFF}, s{S_OFF}, {WS_KV}")
    e(f"s_add_u32 s{S_OFF2}, s{S_OFF}, 4096\ns_lshl_b32 s{S_TMP}, s63, 12\ns_add_u32 s{S_CNT}, s{S_OFF}, s{S_TMP}\ns_add_u32 s{S_CNT}, s{S_CNT}, 8192")
    lds_ = []
    for js in range(4):
        lds_.append(f"buffer_load_dwordx4 {vr(KF+4*js,4)}, v{V_L16}, {WS}, s{S_OFF} offen offset:{js*1024} sc1")
        lds_.append(f"buffer_load_dwordx4 {vr(KF+16+4*js,4)}, v{V_L16}, {WS}, s{S_OFF2} offen offset:{js*1024} sc1")
        lds_.append(f"buffer_load_dwordx4 {vr(VF+4*js,4)}, v{V_L16}, {WS}, s{S_CNT} offen offset:{js*1024} sc1")
    seq = {}
    def rd(n):
        s, rt = n // 2, n % 2
        seq[n] = e(f"ds_read_b128 {vr(XF + 4 * (n % 8), 4)}, v{V_XRD} offset:{(rt * 16 + s) * 1024}")
    sg = e(f"ds_read_b128 {vr(TT,4)}, v12")
    for n in range(6): rd(n)
    for n in range(32):
        s, rt = n // 2, n % 2
        e.waitlg(seq[n])
        x = XF + 4 * (n % 8)
        for t in range(2):
            a = ACC + 4 * (t * 2 + rt)
            e(mfd(a, (t * 16 + s) * 4, x, "0" if s == 0 else a, "a", "v"))
            if t == 0 and n + 6 < 32: rd(n + 6)
        if n % 2 == 1 and n // 2 < 12: e(lds_[n // 2])
    for i in range(4):
        e(f"v_lshlrev_b32 v{TT+4}, 16, v{TT+i}\nv_and_b32 v{TT+5}, 0xffff0000, v{TT+i}\nv_lshlrev_b32 v{TT+6}, 16, v{GW+i}\nv_and_b32 v{TT+7}, 0xffff0000, v{GW+i}")
        e(f"v_mul_f32 v{TT+4}, v{TT+4}, v{TT+6}\nv_mul_f32 v{TT+5}, v{TT+5}, v{TT+7}")
        rb_pair(e, TT + 6, TT + 4, TT + 5)
        e(f"v_add_f32 v{TT+i}, v{TT+4}, v{TT+5}")
    e(f"v_add_f32 v{TT}, v{TT}, v{TT+1}\nv_add_f32 v{TT+2}, v{TT+2}, v{TT+3}\nv_add_f32 v{TT}, v{TT}, v{TT+2}")
    for rt in range(2):
        o = QF + 4 * rt
        for t in range(2):
            a = ACC + 4 * (t * 2 + rt)
            e(f"v_cvt_pk_bf16_f32 v{o+2*t}, v{a}, v{a+1}\nv_cvt_pk_bf16_f32 v{o+2*t+1}, v{a+2}, v{a+3}")
    e(f"s_lshl_b32 s{S_TMP}, s{S_W}, 10\ns_add_u32 s{S_TMP}, s{S_TMP}, {W_QX}\nv_add_u32 v{V_T}, s{S_TMP}, v{V_L16}")
    e(f"ds_write_b128 v{V_T}, {vr(QF,4)}\nds_write_b128 v{V_T}, {vr(QF+4,4)} offset:4096")
    for ror in (1, 2, 4, 8):
        e(f"s_nop 1\nv_add_f32_dpp v{TT}, v{TT}, v{TT} row_ror:{ror} row_mask:0xf bank_mask:0xf")
    for op in ("v_permlane16_swap_b32", "v_permlane32_swap_b32"):
        e(f"v_mov_b32 v{TT+1}, v{TT}\ns_nop 1\n{op} v{TT}, v{TT+1}\nv_add_f32 v{TT}, v{TT}, v{TT+1}")
    e(f"v_cvt_pk_bf16_f32 v{TT}, v{TT}, v{TT}\nv_lshlrev_b32 v{TT}, 16, v{TT}\nv_mul_f32 v{TT}, 0xbfb8aa3b, v{TT}\nv_exp_f32 v{TT}, v{TT}\ns_nop 0")
    e(f"v_add_f32 v{TT}, 1.0, v{TT}\nv_rcp_f32 v{TT}, v{TT}\ns_nop 0\nv_cvt_pk_bf16_f32 v{TT}, v{TT}, v{TT}\nv_lshlrev_b32 v{TT}, 16, v{TT}")
    e(f"s_lshl_b32 s{S_TMP}, s{S_SEG}, 5\ns_add_u32 s{S_TMP}, s{S_TMP}, s{S_H}\ns_lshl_b32 s{S_TMP}, s{S_TMP}, 2\ns_add_u32 s{S_TMP}, s{S_TMP}, {WS_G}")
    e(f"v_mov_b32 v{V_T2}, 0\ns_mov_b64 exec, s[{S_W0M}:{S_W0M+1}]\nbuffer_store_dword v{TT}, v{V_T2}, {WS}, s{S_TMP} offen sc1\ns_mov_b64 exec, -1")
    if cfg.get("wtouch"):
        e(f"s_add_u32 s{S_TMP}, s{S_OFF}, {7 << 19}\ns_lshl_b32 s{S_TMP2}, s{S_SEG}, 17\ns_add_u32 s{S_TMP2}, s{S_TMP2}, {WS_KVM + (7 << 17)}\ns_mov_b64 exec, s[{S_W0M}:{S_W0M+1}]")
        e(f"buffer_load_dword v252, off, {WS}, s{S_TMP} sc1\nbuffer_load_dword v253, off, {WS}, s{S_TMP2} sc1\ns_mov_b64 exec, -1")
    e("s_waitcnt lgkmcnt(0)\ns_barrier")
    e(f"s_add_u32 s{S_XG}, s{S_XG}, {7 << 15}\ns_xor_b32 s{S_XL}, s{S_XL}, 0x8000")
    e(f"s_lshl_b32 s{S_TMP}, s62, 12\ns_add_u32 s{S_TMP}, s{S_TMP}, {W_QX}\nv_add_u32 v{V_T}, s{S_TMP}, v{V_L16}")
    for js in range(4): e(f"ds_read_b128 {vr(QF+4*js,4)}, v{V_T} offset:{js*1024}")
    e(f"v_xor_b32 v{V_XRD}, 0x8000, v{V_XRD}\nv_xor_b32 v12, 0x8000, v12")
    e(f"s_waitcnt vmcnt({3 if cfg.get('wtouch') else 1}) lgkmcnt(0)")
    for js in range(4):
        c = lambda r: "0" if js == 0 else r
        e(mfd(X0, KF + 4 * js, QF + 4 * js, c(X0))); e(mfd(X1, KF + 16 + 4 * js, QF + 4 * js, c(X1)))
    for g in x_dma(e):
        for s in g: e(s)
    e(f"v_mov_b32 v{TT}, 0xf149f2ca")
    for kt in range(2):
        for i in range(4):
            e(f"v_cmp_le_i32 vcc, {i}, v{8+kt}\ns_nop 1\nv_cndmask_b32 v{SS_+4*kt+i}, v{TT}, v{SS_+4*kt+i}, vcc")
    e(f"v_max3_f32 v{MX}, v{X0}, v{X0+1}, v{X0+2}\nv_max3_f32 v{TT}, v{X1}, v{X1+1}, v{X1+2}\nv_max3_f32 v{MX}, v{MX}, v{X0+3}, v{X1+3}\nv_max_f32 v{MX}, v{MX}, v{TT}")
    e(f"s_cmp_eq_u32 s{S_PREV}, -1\ns_cbranch_scc1 PB_NOPREV")
    final()
    e.label("PB_NOPREV")
    e(f"s_lshl_b32 s{S_OFF2}, s{S_SEG}, 17\ns_lshl_b32 s{S_TMP}, s{S_H}, 12\ns_add_u32 s{S_OFF2}, s{S_OFF2}, s{S_TMP}\ns_add_u32 s{S_OFF2}, s{S_OFF2}, {WS_KVM}")
    e(f"s_mul_i32 s{S_OFF}, s{S_SEG}, 37\ns_lshr_b32 s{S_OFF}, s{S_OFF}, 9\ns_mul_i32 s{S_OFF}, s{S_OFF}, 14\ns_sub_u32 s{S_OFF}, s{S_SEG}, s{S_OFF}\ns_lshl_b32 s{S_OFF}, s{S_OFF}, 18\ns_lshl_b32 s{S_TMP}, s{S_H}, 13\ns_add_u32 s{S_OFF}, s{S_OFF}, s{S_TMP}")
    def kvm_ld():
        e(f"buffer_load_dwordx2 {vr(KM,2)}, v23, {WS}, s{S_OFF2} offen sc1")
        for i in range(2):
            for b in range(2): e(f"buffer_load_dwordx2 {vr(VM+4*i+2*b,2)}, v11, {WS}, s{S_OFF2} offen offset:{i*512 + b*128} sc1")
    WST(e)
    if cfg.get("dpoll"):
        e(f"s_cmp_ge_u32 s{S_SEG}, {DP_SEG}\ns_cbranch_scc1 PB_DIRECT")
    e(f"v_mov_b32 v{TT+1}, s{S_CF}\ns_add_u32 s{S_I}, s{S_SEG}, 1")
    poll_all(e, "CHW", TT + 1, "0", f"s{S_I}", TT + 2, cfg.get("csleep", 4))
    kvm_ld()
    e("s_waitcnt vmcnt(0)")
    if cfg.get("dpoll"):
        e("s_branch PB_HAVE")
        e.label("PB_DIRECT")
        e(f"s_mov_b32 s{S_SPIN}, 0")
        e.label("PB_DL")
        kvm_ld()
        e(f"s_add_u32 s{S_SPIN}, s{S_SPIN}, 1\ns_waitcnt vmcnt(0)")
        e(f"v_max3_u32 v{TT}, v{KM}, v{KM+1}, v{VM}")
        for i in range(1, 8, 2): e(f"v_max3_u32 v{TT}, v{TT}, v{VM+i}, v{VM+min(i+1,7)}")
        e(f"v_cmp_eq_u32 vcc, -1, v{TT}\ns_cbranch_vccz PB_HAVE\ns_sleep {cfg.get('dsleep', 6)}\ns_cmp_lt_u32 s{S_SPIN}, {SPIN_MAX}\ns_cbranch_scc1 PB_DL")
        e.label("PB_HAVE")
    WST(e)
    e(f"ds_write2_b32 v22, v{KM}, v{KM+1} offset0:0 offset1:64")
    for i in range(2): e(f"v_swap_b32 v{VM+4*i+1}, v{VM+4*i+2}")
    e(f"v_mov_b32 v{TT}, 0xf149f2ca\ns_waitcnt lgkmcnt(0)\ns_barrier")
    for js in range(4):
        for t in range(2): e(f"ds_read_b64_tr_b16 {vr(KM+4*js+2*t,2)}, v10 offset:{js*512 + t*256}")
    for js in range(4):
        e(f"s_waitcnt lgkmcnt({6-2*js})")
        e(mfd(M, KM + 4 * js, QF + 4 * js, "0" if js == 0 else M))
    e(f"s_add_u32 s{S_OFF}, s{S_OFF}, {WS_O}\ns_lshl_b32 s{S_TMP}, s62, 12\ns_add_u32 s{S_OFF}, s{S_OFF}, s{S_TMP}\ns_lshl_b32 s{S_TMP}, s63, 11\ns_add_u32 s{S_OFF}, s{S_OFF}, s{S_TMP}")
    e(f"s_lshl_b32 s{S_OFF2}, s{S_SEG}, 12\ns_add_u32 s{S_OFF2}, s{S_OFF2}, {FL_O2}\ns_lshl_b32 s{S_TMP}, s{S_H}, 7\ns_add_u32 s{S_CNT}, s{S_OFF2}, s{S_TMP}")
    e("s_mov_b32 exec_lo, 0")
    for i in range(4): e(f"v_mov_b32 v{M+i}, v{TT}")
    e("s_mov_b32 exec_lo, -1")
    mx, t2 = MX, TT + 2
    e(f"v_max3_f32 v{mx}, v{mx}, v{M}, v{M+1}\nv_max3_f32 v{mx}, v{mx}, v{M+2}, v{M+3}")
    for op in ("v_permlane16_swap_b32", "v_permlane32_swap_b32"):
        e(f"v_mov_b32 v{t2}, v{mx}\ns_nop 1\n{op} v{mx}, v{t2}\nv_max_f32 v{mx}, v{mx}, v{t2}")
    e(f"v_mul_f32 v{mx}, s{S_SC}, v{mx}")
    EE = [SS_ + i for i in range(8)] + [M + i for i in range(4)]
    for x in EE: e(f"v_fma_f32 v{x}, v{x}, s{S_SC}, -v{mx}")
    for x in EE: e(f"v_exp_f32 v{x}, v{x}")
    e(f"s_nop 0\nv_add_f32 v{mx}, v{EE[0]}, v{EE[1]}")
    for x in EE[2:]: e(f"v_add_f32 v{mx}, v{mx}, v{x}")
    for op in ("v_permlane16_swap_b32", "v_permlane32_swap_b32"):
        e(f"v_mov_b32 v{t2}, v{mx}\ns_nop 1\n{op} v{mx}, v{t2}\nv_add_f32 v{mx}, v{mx}, v{t2}")
    e(f"v_rcp_f32 v{mx}, v{mx}\ns_nop 0")
    for x in EE: e(f"v_mul_f32 v{x}, v{x}, v{mx}")
    for i in range(4): e(f"v_cvt_pk_bf16_f32 v{PB+i}, v{SS_+2*i}, v{SS_+2*i+1}")
    e(f"v_cvt_pk_bf16_f32 v{PB+4}, v{M}, v{M+1}\nv_cvt_pk_bf16_f32 v{PB+5}, v{M+2}, v{M+3}\ns_nop 0")
    for T in range(4): e(mfd(OA + 4 * T, VF + 4 * T, PB, "0"))
    for T in range(4):
        e(f"v_mfma_f32_16x16x16_bf16 {vr(OA+4*T,4)}, {vr(VM+2*T,2)}, {vr(PB+4,2)}, {vr(OA+4*T,4)}")
    e("s_nop 4")
    for j in range(2):
        for t in range(2):
            a = OA + 4 * (2 * j + t)
            e(f"v_cvt_pk_bf16_f32 v{QF+4*j+2*t}, v{a}, v{a+1}\nv_cvt_pk_bf16_f32 v{QF+4*j+2*t+1}, v{a+2}, v{a+3}")
    def ostore(bits):
        for j in range(2): e(f"buffer_store_dwordx4 {vr(QF+4*j,4)}, v{V_L16}, {WS}, s{S_OFF} offen offset:{j*1024}{bits}")
        e("s_waitcnt vmcnt(0)\ns_barrier")
        e(f"v_mov_b32 v{V_T}, 1\ns_mov_b64 exec, s[{S_W0M}:{S_W0M+1}]\nbuffer_store_dword v{V_T}, off, {WS}, s{S_CNT}{bits}\ns_mov_b64 exec, -1")
    if cfg.get("ofast"):
        e(f"s_cmp_ge_u32 s{S_MODE}, 32\ns_cbranch_scc0 PB_OSLOW")
        ostore("")
        e("s_branch PB_ODONE")
        e.label("PB_OSLOW")
    ostore(" sc1")
    e.label("PB_ODONE")
    e(f"s_mov_b32 s{S_PREV}, s{S_SEG}\ns_add_u32 s{S_SEG}, s{S_SEG}, 7\ns_cmp_lt_u32 s{S_SEG}, 64\ns_cbranch_scc1 PB_LOOP")
    if cfg.get("split"):
        e(f"s_mov_b32 s{S_RT}, 0\ns_cmp_ge_u32 s{S_PREV}, 61\ns_cbranch_scc1 PB_HALF")
        final()
        e(f"s_cmp_eq_u32 s{S_PREV}, 60\ns_cbranch_scc1 PB_END\ns_sub_u32 s{S_PREV}, 120, s{S_PREV}\ns_mov_b32 s{S_RT}, 1\ns_barrier")
        e.label("PB_HALF")
        final(True)
        e.label("PB_END")
    else:
        final()

def worker(e, cfg):
    e(f"s_sub_u32 s{S_G}, s{S_GRP}, 1\ns_mov_b32 s{S_CNT}, 0")
    e("v_mov_b32 v15, v2")
    lane_consts(e, f"v{V_C}", f"v{V_G}")
    e(f"v_lshlrev_b32 v{V_L16}, 4, v0\nv_mov_b32 v{V_XRD}, v{V_L16}")
    e(f"s_lshr_b32 s{S_TMP}, s{S_W}, 1\ns_lshl_b32 s{S_TMP}, s{S_TMP}, 14\ns_and_b32 s{S_TMP2}, s{S_W}, 1\ns_lshl_b32 s{S_TMP2}, s{S_TMP2}, 9\ns_add_u32 s{S_TMP}, s{S_TMP}, s{S_TMP2}")
    e(f"v_lshlrev_b32 v{V_XSRC}, 10, v{V_C}\nv_lshl_add_u32 v{V_XSRC}, v{V_G}, 4, v{V_XSRC}\nv_add_u32 v{V_XSRC}, s{S_TMP}, v{V_XSRC}")
    srd(e, R_X, S_Q, 0x200000)
    _cfg.update(cfg)
    if cfg.get("pref") in (2, 4):
        pc = cfg.get("prefc")
        if pc: e(f"s_cmp_lt_u32 s{S_G}, 3\ns_cbranch_scc1 PF_E")
        e(f"s_lshl_b32 s{S_TMP2}, s{S_G}, 5\ns_add_u32 s{S_TMP2}, s{S_TMP2}, s{S_H}\nv_lshlrev_b32 v16, 6, v15")
        if pc: e(f"s_sub_u32 s{S_TMP2}, s{S_TMP2}, 96")
        if cfg.get("pford"):
            e(f"s_lshl_b32 s{S_TMP}, s{S_TMP2}, 14\nv_add_u32 v17, s{S_TMP}, v16\nv_add_u32 v18, 0x200000, v17")
            seqs = {1: [(S_WQ, 18), (S_WQ, 17), (S_WK, 17), (S_WK, 18), (S_WV, 17), (S_WV, 18), (S_WO, 17), (S_WO, 18)],
                    2: [(S_WK, 17), (S_WK, 18), (S_WV, 17), (S_WV, 18), (S_WO, 17), (S_WO, 18), (S_WQ, 17)],
                    3: [(S_WV, 17), (S_WV, 18), (S_WO, 17), (S_WO, 18), (S_WQ, 17)]}[cfg["pford"]]
            for i, (p, v) in enumerate(seqs): e(f"global_load_dword v{248 + i % 4}, v{v}, s[{p}:{p+1}]")
        else:
            e.label("PF_L")
            e(f"s_lshl_b32 s{S_TMP}, s{S_TMP2}, 14\nv_add_u32 v17, s{S_TMP}, v16")
            for i, p in enumerate([S_WQ, S_WK, S_WV, S_WO][:cfg["pref"]] if cfg["pref"] == 4 else [S_WQ, S_WO]):
                e(f"global_load_dword v{248+i}, v17, s[{p}:{p+1}]")
            e(f"s_add_u32 s{S_TMP2}, s{S_TMP2}, {128 if pc else 224}\ns_cmp_lt_u32 s{S_TMP2}, 256\ns_cbranch_scc1 PF_L")
        e.label("PF_E")
    if cfg.get("wstamp"): e("s_mov_b32 s101, 0")
    WST(e)
    if cfg.get("hold") is not None:
        e(f"s_cmp_lt_u32 s{S_G}, {cfg['hold']}\ns_cbranch_scc{0 if cfg.get('holdinv') else 1} HOLD_END")
        e.label("HOLD")
        e(f"s_sleep 32\ns_memrealtime s[70:71]\ns_waitcnt lgkmcnt(0)\ns_sub_u32 s70, s70, s3\ns_cmp_lt_u32 s70, {cfg['holdus']*100}\ns_cbranch_scc1 HOLD")
        e.label("HOLD_END")
    if not cfg.get("noconv"): conv(e, cfg)
    WST(e)
    wload_addr(e)
    phaseA(e, cfg)
    WST(e)
    phaseB(e, cfg)
    WST(e)
    if cfg.get("dbgt"):
        e(f"s_memrealtime s[70:71]\ns_waitcnt lgkmcnt(0)\ns_sub_u32 s70, s70, s3\nv_mov_b32 v20, s70\nv_mov_b32 v21, 20\ns_mov_b64 exec, s[{S_W0M}:{S_W0M+1}]\nglobal_atomic_umax v21, v20, s[{S_DBG}:{S_DBG+1}]")
```

```python
import sys, json
from asmlib import Em, vr, check_hazards
from layout import *
import chain as C
from chain import *

KNAME = "gated_mix__ssm_conv_h3__memory_aug_recurrent_mem_tr__prompt_kernel"

def common_prologue(e, cfg):
    e("s_cmp_ge_u32 s2, 256\ns_cbranch_scc1 KEND")
    e("s_load_dwordx8 s[4:11], s[0:1], 0\ns_load_dwordx4 s[12:15], s[0:1], 32\ns_load_dwordx2 s[16:17], s[0:1], 56")
    e("s_load_dwordx8 s[20:27], s[0:1], 64\ns_load_dwordx4 s[28:31], s[0:1], 104\ns_load_dwordx4 s[32:35], s[0:1], 120")
    e(f"s_getreg_b32 s{S_XCC}, hwreg(HW_REG_XCC_ID)\ns_and_b32 s{S_XCC}, s{S_XCC}, 7")
    e(f"v_lshrrev_b32 v1, 6, v0\nv_mov_b32 v2, v0\nv_and_b32 v0, 63, v0\nv_readfirstlane_b32 s{S_W}, v1")
    e("s_waitcnt lgkmcnt(0)")
    srd(e, R_WS, S_WS, WS_SIZE)
    WS = f"s[{R_WS}:{R_WS+3}]"
    DBG = f"s[{S_DBG}:{S_DBG+1}]"
    e(f"s_cmp_eq_u32 s{S_W}, 0\ns_cbranch_scc0 PRO_NORANK")
    e(f"s_and_b32 s{S_TMP}, s{S_XCC}, 3\ns_lshl_b32 s{S_TMP}, s{S_TMP}, 6\ns_lshr_b32 s{S_TMP2}, s{S_XCC}, 2\ns_lshl_b32 s{S_TMP2}, s{S_TMP2}, 2\ns_add_u32 s{S_TMP}, s{S_TMP}, s{S_TMP2}")
    e(f"v_mov_b32 v3, s{S_TMP}\nv_mov_b32 v4, 1\ns_mov_b64 exec, 1")
    e(f"global_atomic_add v5, v3, v4, {DBG} sc0\ns_mov_b64 exec, -1")
    e.label("PRO_NORANK")
    if cfg.get("pref") == 1:
        e(f"s_barrier\ns_lshl_b32 s{S_TMP}, s2, 14\nv_lshl_add_u32 v17, v2, 6, s{S_TMP}")
        for i, p in enumerate([S_WQ, S_WK, S_WV, S_WO]): e(f"global_load_dword v{248+i}, v17, s[{p}:{p+1}]")
        e("s_waitcnt vmcnt(4)")
    if cfg.get("cpf"):
        e(f"s_getpc_b64 s[{S_TMP+3}:{S_TMP+4}]")
        e.label("CPF_BASE")
        e(f"v_lshlrev_b32 v3, 6, v2\ns_cmp_eq_u32 s{S_W}, 0\ns_cbranch_scc1 CPF_END\nv_subrev_u32 v3, 4096, v3")
        for i in range(cfg["cpf"]):
            e(f"v_cmp_gt_u32 vcc, KEND-CPF_BASE, v3\ns_and_saveexec_b64 s[{S_TMP+5}:{S_TMP+6}], vcc\ns_cbranch_execz CPF_R")
            e(f"global_load_dword v{240+i}, v3, s[{S_TMP+3}:{S_TMP+4}]\nv_add_u32 v3, 12288, v3")
        e.label("CPF_R")
        e("s_mov_b64 exec, -1\ns_branch PRO_W")
        e.label("CPF_END")
    if cfg.get("pref") != 1: e("s_waitcnt vmcnt(0)")
    e(f"s_cmp_eq_u32 s{S_W}, 0\ns_cbranch_scc0 PRO_W")
    e(f"v_readfirstlane_b32 s{S_H}, v5\ns_mov_b32 s{S_GRP}, s{S_XCC}")
    e(f"s_cmp_lt_u32 s{S_H}, 32\ns_cbranch_scc1 PRO_HAVE")
    e(f"v_mov_b32 v3, {DBG_OVF}\ns_mov_b64 exec, 1\nglobal_atomic_add v5, v3, v4, {DBG} sc0\ns_mov_b64 exec, -1")
    e(f"v_lshlrev_b32 v9, 2, v0\ns_mov_b32 s{S_SPIN}, 0")
    e.label("PRO_OV")
    e(f"global_load_dword v10, v9, {DBG} sc1\ns_add_u32 s{S_SPIN}, s{S_SPIN}, 1\ns_waitcnt vmcnt(0)\ns_mov_b32 s{S_TMP2}, 0")
    for x in range(8):
        e(f"v_readlane_b32 s{S_TMP}, v10, {DBG_XCC(x)//4}\ns_add_u32 s{S_TMP2}, s{S_TMP2}, s{S_TMP}")
    e(f"s_cmp_ge_u32 s{S_TMP2}, 256\ns_cbranch_scc1 PRO_OV2\ns_sleep 8\ns_cmp_lt_u32 s{S_SPIN}, {SPIN_MAX}\ns_cbranch_scc1 PRO_OV")
    e.label("PRO_OV2")
    e(f"v_readfirstlane_b32 s{S_TMP2}, v5\ns_mov_b32 s{S_GRP}, 7\ns_mov_b32 s{S_H}, 31")
    for x in range(8):
        nl = f"PRO_OVN{x}"
        e(f"v_readlane_b32 s{S_TMP}, v10, {DBG_XCC(x)//4}\ns_min_u32 s{S_TMP}, s{S_TMP}, 32\ns_add_u32 s{S_SPIN}, s{S_TMP}, s{S_TMP2}")
        e(f"s_cmp_lt_u32 s{S_SPIN}, 32\ns_cbranch_scc0 {nl}\ns_mov_b32 s{S_GRP}, {x}\ns_mov_b32 s{S_H}, s{S_SPIN}\ns_branch PRO_HAVE")
        e.label(nl)
        e(f"s_sub_u32 s{S_TMP2}, s{S_SPIN}, 32")
    e.label("PRO_HAVE")
    e(f"v_mov_b32 v10, s{S_GRP}\nv_mov_b32 v11, s{S_H}\nv_mov_b32 v9, 0\nds_write_b64 v9, v[10:11]\ns_waitcnt lgkmcnt(0)")
    e.label("PRO_W")
    e("s_barrier\nv_mov_b32 v9, 0\nds_read_b64 v[10:11], v9")
    e(f"s_waitcnt lgkmcnt(0)\nv_readfirstlane_b32 s{S_GRP}, v10\nv_readfirstlane_b32 s{S_H}, v11")
    e(f"s_and_b32 s{S_GRP}, s{S_GRP}, 7\ns_and_b32 s{S_H}, s{S_H}, 31")
    e(f"s_cmp_eq_u32 s{S_W}, 0\ns_cselect_b32 s{S_W0M}, 1, 0\ns_mov_b32 s{S_W0M+1}, 0")
    e(f"s_cmp_eq_u32 s{S_GRP}, 0\ns_cbranch_scc1 PRO_NOINIT\ns_cmp_lt_u32 s{S_H}, 4\ns_cbranch_scc0 PRO_NOINIT")
    e(f"s_sub_u32 s{S_TMP2}, s{S_GRP}, 1\ns_lshl_b32 s{S_TMP2}, s{S_TMP2}, 2\ns_add_u32 s{S_TMP2}, s{S_TMP2}, s{S_H}")
    e("v_mov_b64 v[12:13], -1\nv_mov_b64 v[14:15], -1\nv_mov_b32 v8, 0\nv_lshlrev_b32 v9, 4, v2\nv_lshlrev_b32 v3, 2, v2")
    e.label("PRO_INIT")
    e(f"s_lshl_b32 s{S_TMP}, s{S_TMP2}, 13\ns_add_u32 s{S_TMP}, s{S_TMP}, {WS_RS}")
    e(f"buffer_store_dwordx4 v[12:15], v9, {WS}, s{S_TMP} offen sc1\ns_add_u32 s{S_TMP}, s{S_TMP}, 4096")
    e(f"buffer_store_dwordx4 v[12:15], v9, {WS}, s{S_TMP} offen sc1")
    e(f"s_lshl_b32 s{S_TMP}, s{S_TMP2}, 10\nbuffer_store_dword v8, v3, {WS}, s{S_TMP} offen sc1\ns_add_u32 s{S_TMP}, s{S_TMP}, {WS_AG}")
    e(f"buffer_store_dword v12, v3, {WS}, s{S_TMP} offen sc1")
    e(f"s_lshl_b32 s{S_TMP}, s{S_TMP2}, 13\ns_add_u32 s{S_TMP}, s{S_TMP}, {FL_O2}\nv_lshlrev_b32 v16, 5, v2")
    e(f"buffer_store_dword v8, v16, {WS}, s{S_TMP} offen sc1")
    if cfg.get("dpoll"):
        e(f"s_lshl_b32 s{S_TMP}, s{S_TMP2}, 12\ns_add_u32 s{S_TMP}, s{S_TMP}, {WS_KVM + DP_SEG * 0x20000}")
        for sg in range(DP_SEG, 64):
            e(f"buffer_store_dwordx4 v[12:15], v9, {WS}, s{S_TMP} offen sc1\ns_add_u32 s{S_TMP}, s{S_TMP}, 0x20000")
    e(f"s_add_u32 s{S_TMP2}, s{S_TMP2}, 28\ns_cmp_lt_u32 s{S_TMP2}, 32\ns_cbranch_scc1 PRO_INIT")
    e(f"s_waitcnt vmcnt(0)\ns_barrier\nv_mov_b32 v3, {DBG_INIT}\nv_mov_b32 v4, 1\ns_mov_b64 exec, s[{S_W0M}:{S_W0M+1}]")
    e(f"global_atomic_add v3, v4, {DBG}\ns_mov_b64 exec, -1")
    e.label("PRO_NOINIT")
    e("s_barrier")

DEFAULTS = {"agbar":1,"d1e":45,"d1":55,"d2":15,"d2e":30,"Ke":2,"KRe":1,"e1":0,"e2":25,"pref":4,"xv":3,"xo":1,"xz":1,"peek":1,"cpf":6,"wda":1,"wdb":1,"prefc":1,"asplit":30,"dpoll":1,"split":1,"osleep":3,"pford":1}
def build(cfg):
    cfg = {**DEFAULTS, **cfg}
    C.DBGC = bool(cfg.get('dbgt'))
    e = Em()
    e.label(KNAME)
    if cfg.get("gstamp"): e("s_memrealtime s[18:19]\ns_waitcnt lgkmcnt(0)\ns_mov_b32 s3, s18")
    common_prologue(e, cfg)
    e(f"s_cmp_eq_u32 s{S_GRP}, 0\ns_cbranch_scc0 WORKER")
    chain_prologue(e, cfg)
    if cfg.get("force_slow"): e(f"s_mov_b32 s{S_MODE}, 0")
    e(f"s_cmp_ge_u32 s{S_MODE}, 32\ns_cbranch_scc0 CHAIN_SLOW")
    chain_loop(e, True, cfg)
    e.label("CHAIN_SLOW")
    chain_loop(e, False, cfg)
    e.label("WORKER")
    if not cfg.get("chain_only"):
        import worker
        worker.worker(e, cfg)
    else:
        wait_init(e, "w", 32)
        e(f"s_lshl_b32 s{S_TMP}, s{S_H}, 8\nv_lshlrev_b32 v1, 2, v0\nv_mov_b32 v2, 1\nbuffer_store_dword v2, v1, s[{R_WS}:{R_WS+3}], s{S_TMP} offen sc1")
    e.label("KEND")
    e("s_waitcnt vmcnt(0)\ns_endpgm")
    probs = check_hazards(e.lines)
    for p in probs: print("HAZARD", p, file=sys.stderr)
    hdr = open('gated_mix__ssm_conv_h3__memory_aug_recurrent_mem_tr__prompt.s.ref').read().split("; Override launch")[0]
    s = hdr + f"; @launch grid=(256,1,1) block=(256,1,1) lds={LDS_SIZE}\n"
    s += f'.amdgcn_target "amdgcn-amd-amdhsa--gfx950"\n.text\n.globl {KNAME}\n.p2align 8\n.type {KNAME},@function\n'
    s += e.text()
    s += f""".section .rodata,"a"
.p2align 6
.amdhsa_kernel {KNAME}
  .amdhsa_next_free_vgpr 512
  .amdhsa_next_free_sgpr 102
  .amdhsa_accum_offset 256
  .amdhsa_group_segment_fixed_size 0
  .amdhsa_kernarg_size 136
  .amdhsa_user_sgpr_count 2
  .amdhsa_user_sgpr_kernarg_segment_ptr 1
  .amdhsa_system_sgpr_workgroup_id_x 1
.end_amdhsa_kernel
"""
    return s

if __name__ == "__main__":
    out = sys.argv[1]
    cfg = json.loads(sys.argv[2]) if len(sys.argv) > 2 else {}
    open(out, "w").write(build(cfg))
    json.dump(cfg, open(out + ".json", "w"))
```

```python
from asmlib import Em, vr
from layout import *

S_Q, S_K, S_V, S_SH, S_SSMK, S_SSMD, S_MEM0 = 4, 6, 8, 10, 12, 14, 16
S_WQ, S_WK, S_WV, S_WO, S_GATE, S_OUT, S_DBG, S_WS = 20, 22, 24, 26, 28, 30, 32, 34
R_WS, R_T, R_T2 = 36, 40, 44
S_W, S_XCC, S_GRP, S_H = 48, 49, 50, 51
S_W0M = 76
NINIT = 28 + 32
SPIN_MAX = 1 << 18
DBGC = False

def srd(e, r, p, size):
    e(f"s_mov_b32 s{r}, s{p}\ns_mov_b32 s{r+1}, s{p+1}\ns_mov_b32 s{r+2}, {size}\ns_mov_b32 s{r+3}, 0x20000")

def lane_consts(e, c, g, lane="v0"):
    e(f"v_and_b32 {c}, 15, {lane}\nv_lshrrev_b32 {g}, 4, {lane}")

def emit_UB(e, dst, c, b, t):
    e(f"v_lshrrev_b32 {t}, 1, {b}")
    e(f"v_lshl_add_u32 {t}, {t}, 3, {c}")
    e(f"v_and_b32 {t}, 15, {t}")
    e(f"v_lshl_add_u32 {t}, {b}, 4, {t}")
    e(f"v_lshlrev_b32 {dst}, 3, {t}")

IDX, A_RSR, A_AGW, A_AGR, A_TR, A_TRK, A_UW, A_W, A_KX, A_VX, T0, A_RSW, SEL = 0, 1, 2, 3, 4, 5, 6, 7, 8, 9, 10, 11, 12
MEMA, QB, KXA, XT, ACA, ACB = 16, 48, 64, 88, 96, 104
WV0 = 112
S_STEP, S_RSW0, S_RSW1, S_RSR0, S_RSR1, S_AGW, S_AGRST, S_AGR0, S_AGR1 = 52, 53, 54, 55, 56, 57, 58, 59, 60
S_KVG, S_KVL, S_KVM, S_READY, S_SPIN, S_AGSLOT, S_TMP, S_TMP2 = 61, 62, 63, 64, 65, 66, 67, 68
S_M0, S_M1, S_M2 = 70, 72, 74
S_AGM = 72
S_ODD = 78
S_SC = 80
S_CF = 81
S_MODE = 82
S_TAG = 83
S_KVG2, S_FLV = 10, 11
S_XG0, S_XL0 = 96, 97
S_KFO = 58
S_JMP = 6
S_RSR = [55, 56, 4, 5]
S_EM, S_LM, S_LB = 4, 6, 8
S_AGM2 = 74
S_ST = 84

BLOCKS = [("q", J) for J in range(3, 8)] + [("k", J) for J in range(8)] + [("v", J) for J in range(8)] \
       + [("o", (0, p)) for p in range(4)] + [("q", 0), ("q", 1), ("q", 2)] + [("o", (1, p)) for p in range(4)]
NREG = 25
def frag_reg(i):
    if i < 32: return ("a", 8 * i)
    return ("v", WV0 + 8 * (i - 32))
FRAG = {}
for n, (m, J) in enumerate(BLOCKS):
    for t in range(2):
        if n < NREG: FRAG[(m, J, t)] = frag_reg(2 * n + t)
        else: FRAG[(m, J, t)] = ("lds", (n - NREG) * 4096 + t * 2048)
def slot_addr(n):
    s = n % 10
    wl = {5: 0, 6: 1, 7: 2, 8: 3, 9: 4, 0: 5, 1: 6}
    return ("wl", wl[s]) if s in wl else ("ot", s - 2)

def wait_init(e, tag, vt):
    l = e.newlabel("WI"); d = e.newlabel("WID")
    e(f"v_mbcnt_lo_u32_b32 v{vt+1}, -1, 0\nv_mbcnt_hi_u32_b32 v{vt+1}, -1, v{vt+1}\nv_lshlrev_b32 v{vt+1}, 2, v{vt+1}")
    e.label(l)
    e(f"global_load_dword v{vt}, v{vt+1}, s[{S_DBG}:{S_DBG+1}] sc1")
    e(f"s_add_u32 s{S_SPIN}, s{S_SPIN}, 1")
    e("s_waitcnt vmcnt(0)")
    e(f"v_readlane_b32 s{S_TMP}, v{vt}, {DBG_INIT//4}")
    e(f"s_cmp_ge_u32 s{S_TMP}, {NINIT}\ns_cbranch_scc1 {d}")
    e("s_sleep 16")
    e(f"s_cmp_lt_u32 s{S_SPIN}, {SPIN_MAX}\ns_cbranch_scc1 {l}")
    e.label(d)

def kv_poll(e, va, vb, done):
    l = e.newlabel("KR")
    e(f"v_mbcnt_lo_u32_b32 v{vb}, -1, 0\nv_mbcnt_hi_u32_b32 v{vb}, -1, v{vb}\nv_lshlrev_b32 v{vb}, 2, v{vb}")
    e.label(l)
    if DBGC: e(f"s_lshl_b32 s{S_TMP}, 1, s{S_STEP}\ns_or_b32 s60, s60, s{S_TMP}\ns_add_u32 s57, s57, 0")
    e(f"s_lshl_b32 s{S_TMP}, s{S_H}, 8")
    e(f"buffer_load_dword v{va}, v{vb}, s[{R_WS}:{R_WS+3}], s{S_TMP} offen sc1")
    e(f"s_add_u32 s{S_SPIN}, s{S_SPIN}, 1")
    e("s_waitcnt vmcnt(0)")
    e(f"v_cmp_eq_u32 vcc, 0, v{va}\ns_ff1_i32_b64 s{S_READY}, vcc")
    e(f"s_cmp_gt_u32 s{S_READY}, s{S_TMP2}\ns_cbranch_scc1 {done}")
    e("s_sleep 16")
    e(f"s_cmp_lt_u32 s{S_SPIN}, {SPIN_MAX}\ns_cbranch_scc1 {l}")
    e(f"s_branch {done}")

def kv_ready(e, delta, va, vb):
    d = e.newlabel("KRD")
    e(f"s_add_u32 s{S_TMP2}, s{S_STEP}, {delta}\ns_cmp_gt_u32 s{S_READY}, s{S_TMP2}\ns_cbranch_scc1 {d}")
    kv_poll(e, va, vb, d)
    e.label(d)

def kv_dma(e, g=None, l=None):
    out = []
    for i in range(4):
        pre = [f"s_add_u32 m0, s{l or S_KVL}, {(i//2)*8192}", f"s_add_u32 s{S_TMP}, s{g or S_KVG}, {(i//2)*8192}"]
        out.append(pre + [f"buffer_load_dwordx4 v{A_AGR}, s[{R_WS}:{R_WS+3}], s{S_TMP} offen offset:{(i%2)*1024} sc1 lds"])
    return out

def chain_prologue(e, cfg={}):
    e("; ---- chain prologue")
    if cfg.get("prost") == 2: e("s_memrealtime s[92:93]")
    lane_consts(e, "v16", "v17")
    e("v_and_b32 v18, 3, v0\nv_lshrrev_b32 v19, 2, v0")
    e(f"s_lshl_b32 s{S_TMP}, s{S_H}, 8\ns_lshl_b32 s{S_TMP2}, s{S_W}, 6\ns_add_u32 s{S_TMP}, s{S_TMP}, s{S_TMP2}")
    e(f"v_lshlrev_b32 v20, 13, v19\nv_lshl_add_u32 v20, v18, 4, v20\nv_add_u32 v20, s{S_TMP}, v20")
    e(f"s_lshl_b32 s{S_TMP}, s{S_H}, 17\ns_lshl_b32 s{S_TMP2}, s{S_W}, 8\ns_add_u32 s{S_TMP}, s{S_TMP}, s{S_TMP2}")
    e(f"v_lshlrev_b32 v21, 10, v19\nv_lshl_add_u32 v21, v18, 4, v21\nv_add_u32 v21, s{S_TMP}, v21")
    e("v_and_b32 v22, 1, v17\nv_lshlrev_b32 v22, 5, v22")
    e("v_lshrrev_b32 v23, 1, v17\nv_lshl_add_u32 v22, v23, 2, v22")
    e("v_lshrrev_b32 v23, 3, v16\nv_lshl_add_u32 v22, v23, 4, v22")
    e("v_bfe_u32 v23, v16, 2, 1\nv_add_u32 v22, v22, v23")
    e("v_lshlrev_b32 v22, 6, v22\nv_lshl_add_u32 v22, v18, 3, v22")
    e(f"s_mul_i32 s{S_KVL}, s{S_W}, 28672")
    e(f"s_mul_i32 s{S_KVG}, s{S_W}, 12288\ns_add_u32 s{S_KVG}, s{S_KVG}, {L_KVB}")
    e(f"v_add_u32 v24, s{S_KVL}, v22\nv_add_u32 v25, s{S_KVG}, v22")
    e(f"v_lshl_add_u32 v{A_W}, v0, 4, s{S_KVL}")
    RW = {"q": R_T, "k": R_T2, "v": 84, "o": 88}
    for m, p in (("q", S_WQ), ("k", S_WK), ("v", S_WV), ("o", S_WO)): srd(e, RW[m], p, 0x400000)
    def issue(n):
        m, J = BLOCKS[n]
        kind, k = slot_addr(n)
        base = S_KVL if kind == "wl" else S_KVG
        for i in range(4):
            e(f"s_add_u32 m0, s{base}, {k*4096 + i*1024}")
            if m == "o":
                so = (64 * J[0] + 16 * i) * 1024 + J[1] * 64
                e(f"s_mov_b32 s{S_TMP}, {so}")
                e(f"buffer_load_dwordx4 v21, s[{RW[m]}:{RW[m]+3}], s{S_TMP} offen lds")
            else:
                so = (64 * J + 16 * i) * 8192
                e(f"s_mov_b32 s{S_TMP}, {so}")
                e(f"buffer_load_dwordx4 v20, s[{RW[m]}:{RW[m]+3}], s{S_TMP} offen lds")
    def consume(n, outstanding):
        m, J = BLOCKS[n]
        kind, k = slot_addr(n)
        e(f"s_waitcnt vmcnt({outstanding})")
        av = "v24" if kind == "wl" else "v25"
        for t in range(2):
            f = FRAG[(m, J, t)]
            for mm in range(4):
                off = k * 4096 + (8 * (mm // 2) + 2 * (mm % 2)) * 64 + t * 32
                if f[0] == "lds": dst = vr(32 + 8 * t + 2 * mm, 2)
                else: dst = vr(f[1] + 2 * mm, 2, f[0])
                e(f"ds_read_b64_tr_b16 {dst}, {av} offset:{off}")
        e("s_waitcnt lgkmcnt(0)")
        if n >= NREG:
            for t in range(2):
                for hf in range(2):
                    e(f"ds_write_b128 v{A_W}, {vr(32+8*t+4*hf,4)} offset:{k*4096 + t*2048 + hf*1024}")
            e("s_waitcnt lgkmcnt(0)")
    N = len(BLOCKS)
    if cfg.get("tlbw"):
        e(f"v_lshlrev_b32 v26, 16, v0\ns_lshl_b32 s{S_TMP}, s{S_H}, 11\nv_add_u32 v26, s{S_TMP}, v26")
        for m in "qkvo": e(f"buffer_load_dword v27, v26, s[{RW[m]}:{RW[m]+3}], 0 offen")
        if cfg["tlbw"] == 2: e("s_waitcnt vmcnt(0)")
    DEP = cfg.get("dep", 4); LEAD = cfg.get("lead", 0)
    def touch(n):
        m, J = BLOCKS[n]
        so = (64 * J[0]) * 1024 + J[1] * 64 if m == "o" else 64 * J * 8192
        e(f"s_mov_b32 s{S_TMP}, {so}\nbuffer_load_dword v70, v{69 if m == 'o' else 68}, s[{RW[m]}:{RW[m]+3}], s{S_TMP} offen")
    if LEAD:
        e(f"s_and_b32 s{S_TMP}, s{S_H}, 3\ns_lshl_b32 s{S_TMP}, s{S_TMP}, 2\ns_add_u32 s{S_TMP}, s{S_TMP}, s{S_W}\ns_lshl_b32 s{S_TMP}, s{S_TMP}, 15")
        e(f"s_lshr_b32 s{S_TMP2}, s{S_H}, 2\ns_lshl_b32 s{S_TMP2}, s{S_TMP2}, 10\ns_add_u32 s{S_TMP}, s{S_TMP}, s{S_TMP2}")
        e(f"v_lshlrev_b32 v68, 13, v17\nv_lshl_add_u32 v68, v16, 6, v68\nv_add_u32 v68, s{S_TMP}, v68")
        e(f"s_lshl_b32 s{S_TMP}, s{S_H}, 17\ns_lshl_b32 s{S_TMP2}, s{S_W}, 14\ns_add_u32 s{S_TMP}, s{S_TMP}, s{S_TMP2}")
        e(f"v_lshlrev_b32 v69, 10, v19\nv_lshl_add_u32 v69, v18, 8, v69\nv_add_u32 v69, s{S_TMP}, v69")
    e(f"v_mov_b64 v[32:33], -1\nv_mov_b64 v[34:35], -1\ns_lshl_b32 s{S_TMP}, s{S_H}, 13\ns_lshl_b32 s{S_TMP2}, s{S_W}, 11\ns_add_u32 s{S_TMP}, s{S_TMP}, s{S_TMP2}\ns_add_u32 s{S_TMP}, s{S_TMP}, {WS_RS}")
    e(f"v_lshlrev_b32 v36, 4, v0\nbuffer_store_dwordx4 v[32:35], v36, s[{R_WS}:{R_WS+3}], s{S_TMP} offen sc1\nbuffer_store_dwordx4 v[32:35], v36, s[{R_WS}:{R_WS+3}], s{S_TMP} offen offset:1024 sc1")
    e(f"s_mul_i32 s{S_TMP}, s{S_H}, 768\ns_lshl_b32 s{S_TMP2}, s{S_W}, 8\ns_add_u32 s{S_TMP}, s{S_TMP}, s{S_TMP2}\ns_add_u32 s{S_TMP}, s{S_TMP}, {WS_AG}")
    e(f"s_cmp_lt_u32 s{S_W}, 3\ns_cselect_b32 exec_lo, 0xffff, 0\ns_mov_b32 exec_hi, 0\nbuffer_store_dwordx4 v[32:35], v36, s[{R_WS}:{R_WS+3}], s{S_TMP} offen sc1\ns_mov_b64 exec, -1")
    srd(e, 92, S_MEM0, 8192)
    e(f"s_lshl_b32 s{S_TMP}, s{S_W}, 8")
    e(f"v_lshlrev_b32 v26, 11, v17\nv_lshl_add_u32 v26, v16, 1, v26\nv_add_u32 v26, s{S_TMP}, v26")
    mem0_ld = []
    for u in range(4):
        mem0_ld += [f"buffer_load_ushort v{48+2*u}, v26, s[92:95], 0 offen offset:{u*64}", f"buffer_load_ushort v{49+2*u}, v26, s[92:95], 0 offen offset:{u*64+32}",
                    f"buffer_load_ushort v{56+2*u}, v26, s[92:95], 0 offen offset:{u*64+1024}", f"buffer_load_ushort v{57+2*u}, v26, s[92:95], 0 offen offset:{u*64+32+1024}"]
    for n in range(DEP):
        if cfg.get("prost") == 2 and n == 1: e("s_memrealtime s[94:95]")
        issue(n)
    if cfg.get("prost") == 2: e("s_memrealtime s[96:97]")
    for n in range(DEP, DEP + LEAD): touch(n)
    for x in mem0_ld: e(x)
    e(f"v_and_b32 v26, 2, v0\nv_cmp_eq_u32 vcc, 2, v26\nv_mov_b32 v27, 0x44444444\nv_mov_b32 v28, 0xeeeeeeee")
    e(f"s_mov_b64 s[{S_ODD}:{S_ODD+1}], vcc")
    e(f"v_cndmask_b32 v29, v27, v28, vcc")
    for r in range(4):
        e(f"v_mov_b32 v{SEL+r}, 0")
    e("v_mov_b32 v27, 0x3f80\nv_mov_b32 v28, 0x3f800000")
    for j in range(8):
        e(f"v_cmp_eq_u32 vcc, {j}, v16\ns_nop 1\nv_cndmask_b32 v{SEL+j//2}, v{SEL+j//2}, v{27+(j%2)}, vcc")
    e(f"s_and_b32 s{S_TMP}, s{S_W}, 2\ns_lshl_b32 s{S_TMP}, s{S_TMP}, 11\ns_lshl_b32 s{S_TMP2}, s{S_H}, 7\ns_add_u32 s{S_TMP}, s{S_TMP}, s{S_TMP2}")
    e(f"v_lshrrev_b32 v26, 3, v0\nv_and_b32 v27, 7, v0\nv_lshlrev_b32 v{A_RSR}, 13, v26\nv_lshl_add_u32 v{A_RSR}, v27, 4, v{A_RSR}\nv_add_u32 v{A_RSR}, s{S_TMP}, v{A_RSR}")
    e(f"s_lshl_b32 s{S_TMP2}, s{S_W}, 9\nv_lshl_add_u32 v{A_RSW}, v0, 3, s{S_TMP2}")
    e(f"v_and_b32 v26, 1, v17\nv_lshl_add_u32 v26, v27, 1, v26\ns_and_b32 s{S_TMP2}, s{S_H}, 3\nv_mov_b32 v27, s{S_TMP2}")
    emit_UB(e, f"v{A_AGW}", "v26", "v27", "v28")
    e(f"s_and_b32 s{S_TMP}, s{S_TMP}, 0xfffffe00\nv_add_u32 v{A_AGW}, s{S_TMP}, v{A_AGW}")
    e(f"s_mov_b32 s{S_AGM}, 0x00FF00FF\ns_mov_b32 s{S_AGM+1}, 0\ns_mov_b32 s{S_AGM2}, -1\ns_mov_b32 s{S_AGM2+1}, 0")
    e(f"v_bfe_u32 v26, v0, 3, 1\nv_lshl_add_u32 v{A_AGW}, v26, 14, v{A_AGW}")
    e(f"s_lshl_b32 s{S_TMP}, s{S_W}, 11\ns_add_u32 s{S_TMP}, s{S_TMP}, {L_MEM}")
    e(f"v_lshl_add_u32 v{A_AGR}, v0, 4, s{S_TMP}")
    e(f"s_lshl_b32 s{S_TMP}, s{S_W}, 10\ns_add_u32 s{S_TMP}, s{S_TMP}, {L_QU}")
    emit_UB(e, f"v{A_UW}", "v16", "v17", "v28")
    e(f"v_add_u32 v{A_UW}, s{S_TMP}, v{A_UW}")
    e("v_lshrrev_b32 v26, 2, v16\nv_lshl_add_u32 v26, v17, 2, v26")
    emit_UB(e, f"v{A_TR}", "v26", "v18", "v28")
    e(f"v_add_u32 v{A_TR}, {L_MEM}, v{A_TR}")
    e("v_and_b32 v27, 1, v18\nv_lshlrev_b32 v27, 1, v27\nv_lshrrev_b32 v28, 1, v18\nv_or_b32 v27, v27, v28")
    emit_UB(e, f"v{A_TRK}", "v26", "v27", "v28")
    e(f"v_add_u32 v{A_TRK}, {L_MEM}, v{A_TRK}")
    e(f"v_lshlrev_b32 v{A_KX}, 4, v0\nv_add_u32 v{A_KX}, {L_KVB}, v{A_KX}")
    e(f"v_lshrrev_b32 v26, 1, v17\nv_lshl_add_u32 v26, v26, 4, v16\nv_lshlrev_b32 v26, 4, v26\nv_and_b32 v27, 1, v17\nv_lshl_add_u32 v26, v27, 3, v26")
    e(f"s_lshl_b32 s{S_TMP}, s{S_W}, 11\ns_add_u32 s{S_TMP}, s{S_TMP}, {L_KVB + 8192}\nv_add_u32 v{A_VX}, s{S_TMP}, v26")
    e(f"v_lshlrev_b32 v65, 2, v0\ns_mov_b32 s{S_STEP}, 0\ns_mov_b32 s{S_READY}, 0\ns_mov_b32 s{S_MODE}, 0")
    WSR = f"s[{R_WS}:{R_WS+3}]"
    order = [("B", n) for n in range(DEP) for _ in range(4)] + [("T", 1)] * LEAD + [("M", 0)] * 16
    def after(kind, n):
        last = max(i for i, x in enumerate(order) if x == (kind, n))
        return min(len(order) - 1 - last, 63)
    for n in range(N):
        consume(n, after("B", n))
        for k, (a_, b_) in enumerate(cfg.get("pace", [])):
            if n == a_:
                e(f"s_barrier\nv_mov_b32 v36, {DBG_PACE + 64*0 + 4*k}\nv_mov_b32 v37, 1\ns_mov_b64 exec, s[{S_W0M}:{S_W0M+1}]\nglobal_atomic_add v36, v37, s[{S_DBG}:{S_DBG+1}]\ns_mov_b64 exec, -1"); order.append(("P", k))
            if n == b_:
                l = e.newlabel("PC"); d = e.newlabel("PCD")
                e(f"s_cmp_eq_u32 s{S_W}, 0\ns_cbranch_scc0 {d}")
                e.label(l)
                e(f"s_load_dword s{S_TMP}, s[{S_DBG}:{S_DBG+1}], {DBG_PACE + 4*k} glc\ns_add_u32 s{S_SPIN}, s{S_SPIN}, 1\ns_waitcnt lgkmcnt(0)")
                e(f"s_cmp_ge_u32 s{S_TMP}, 32\ns_cbranch_scc1 {d}\ns_sleep 8\ns_cmp_lt_u32 s{S_SPIN}, {SPIN_MAX}\ns_cbranch_scc1 {l}")
                e.label(d)
                e("s_barrier")
        if LEAD and n + DEP + LEAD < N:
            touch(n + DEP + LEAD); order.append(("T", 1))
        if n + DEP < N:
            issue(n + DEP); order += [("B", n + DEP)] * 4
        if n == cfg.get("ctouch", -1):
            e(f"s_mul_i32 s{S_TMP}, s{S_H}, 21\nv_add_u32 v67, s{S_TMP}, v0\nv_lshlrev_b32 v67, 16, v67\ns_mul_i32 s{S_TMP}, s{S_W0M}, 0x1fffff\ns_mov_b32 exec_lo, s{S_TMP}\ns_mov_b32 exec_hi, 0\ns_mov_b32 s{S_TMP}, {WS_KV}")
            e(f"buffer_load_dword v68, v67, {WSR}, s{S_TMP} offen sc1\ns_mov_b64 exec, -1"); order.append(("T", 0))
        if n == 1:
            e(f"s_barrier\nv_mov_b32 v36, {DBG_INIT}\nv_mov_b32 v37, 1\ns_mov_b64 exec, s[{S_W0M}:{S_W0M+1}]")
            e(f"global_atomic_add v36, v37, s[{S_DBG}:{S_DBG+1}]\ns_mov_b64 exec, -1"); order.append(("I", 0))
        if n == 16:
            e(f"global_load_dword v64, v65, s[{S_DBG}:{S_DBG+1}] sc1"); order.append(("D", 0))
        if n == 23:
            e(f"v_readlane_b32 s{S_TMP}, v64, {DBG_INIT//4}\nv_readlane_b32 s{S_MODE}, v64, {DBG_XCC(0)//4}\nv_mov_b32 v66, 0")
            e(f"s_cmp_ge_u32 s{S_TMP}, {NINIT}\ns_cselect_b32 s{S_MODE}, s{S_MODE}, 0\ns_cselect_b64 exec, -1, 0\ns_lshl_b32 s{S_TMP}, s{S_H}, 8")
            e(f"buffer_load_dword v66, v65, {WSR}, s{S_TMP} offen sc1\ns_mov_b64 exec, -1"); order.append(("F", 0))
        if n == 28:
            e("s_barrier")
            e(f"v_cmp_eq_u32 vcc, 0, v66\ns_ff1_i32_b64 s{S_READY}, vcc")
            e(f"s_lshl_b32 s{S_TMP}, s{S_H}, 14\ns_add_u32 s{S_XG0}, s{S_TMP}, {WS_KV - L_MEM}\ns_lshl_b32 s{S_TMP}, s{S_W}, 11\ns_add_u32 s{S_XL0}, s{S_TMP}, {L_KVB}")
            e(f"s_cmp_gt_u32 s{S_READY}, 0\ns_cselect_b64 exec, -1, 0")
            for grp in kv_dma(e, S_XG0, S_XL0):
                for x in grp: e(x)
            e("s_mov_b64 exec, -1"); order += [("K", 0)] * 4
            for r in range(8): e(f"v_lshl_or_b32 v{48+r}, v{56+r}, 16, v{48+r}")
            e(f"s_lshl_b32 s{S_TMP}, s{S_W}, 9\ns_add_u32 s{S_TMP}, s{S_TMP}, {L_QU - L_MEM}\nv_subrev_u32 v27, s{S_TMP}, v{A_UW}")
            for u in range(4): e(f"ds_write_b64 v27, {vr(48+2*u,2)} offset:{u*2048}")
    if cfg.get("gstamp"): e("s_memrealtime s[18:19]\ns_waitcnt lgkmcnt(0)\ns_mov_b32 s69, s18")
    e(f"v_mov_b32 v{IDX}, v29")
    e(f"s_lshl_b32 s{S_TMP}, s{S_H}, 13")
    e(f"s_add_u32 s{S_RSW0}, s{S_TMP}, {WS_RS}\ns_add_u32 s{S_RSW1}, s{S_RSW0}, 4096")
    for i in range(4): e(f"s_mov_b32 s{S_RSR[i]}, {WS_RS + 0x10000 * i}")
    e(f"s_mov_b32 s{S_AGSLOT}, 0\ns_mov_b32 s{S_AGW}, {WS_AG}\ns_mov_b32 s{S_TAG}, 0")
    e(f"s_mov_b32 s{S_KVG}, s{S_XG0}\ns_mov_b32 s{S_KVL}, s{S_XL0}")
    e(f"s_lshl_b32 s{S_TMP}, s{S_H}, 12\ns_add_u32 s{S_KVM}, s{S_TMP}, {WS_KVM - 0x20000}")
    e(f"s_mov_b32 s{S_LB}, 0x3f003f00\ns_mov_b32 s{S_LB+1}, 0x3f803f80")
    e(f"s_lshl_b32 s{S_CF}, s{S_H}, 7\ns_add_u32 s{S_CF}, s{S_CF}, {FL_CFLAG}")
    e(f"s_mov_b32 s{S_SC}, 0x3e0293ee")
    e(f"s_lshl_b32 s{S_KFO}, s{S_H}, 8\ns_add_u32 s{S_KFO}, s{S_KFO}, 4")
    e(f"s_cmp_ge_u32 s{S_MODE}, 32\ns_cbranch_scc1 MODE_D")
    wait_init(e, "c", 32)
    e.label("MODE_L")
    e(f"v_readlane_b32 s{S_MODE}, v32, {DBG_XCC(0)//4}\ns_cmp_ge_u32 s{S_MODE}, 32\ns_cbranch_scc1 MODE_D\ns_mov_b32 s{S_TMP2}, 0")
    for x in range(8):
        e(f"v_readlane_b32 s{S_TMP}, v32, {DBG_XCC(x)//4}\ns_add_u32 s{S_TMP2}, s{S_TMP2}, s{S_TMP}")
    e(f"s_cmp_ge_u32 s{S_TMP2}, 256\ns_cbranch_scc1 MODE_D\ns_sleep 16")
    e(f"global_load_dword v32, v33, s[{S_DBG}:{S_DBG+1}] sc1\ns_add_u32 s{S_SPIN}, s{S_SPIN}, 1\ns_waitcnt vmcnt(0)\ns_cmp_lt_u32 s{S_SPIN}, {SPIN_MAX}\ns_cbranch_scc1 MODE_L")
    e.label("MODE_D")
    e(f"s_cmp_gt_u32 s{S_READY}, 0\ns_cbranch_scc1 KV0_D")
    kv_ready(e, 0, 32, 33)
    for grp in kv_dma(e):
        for s in grp: e(s)
    e.label("KV0_D")
    e(f"s_add_u32 s{S_KVG}, s{S_KVG}, 0x80000\ns_xor_b32 s{S_KVL}, s{S_KVL}, 0x3C000")

def interleave(e, mf, fill):
    def run(x):
        for s in x:
            if callable(s): s()
            else: e(s)
    run(fill.get(-1, []))
    for i, m in enumerate(mf):
        if callable(m): m()
        else: e(m)
        run(fill.get(i, []))

def smf(acc, a, f):
    return f"v_smfmac_f32_16x16x64_bf16 {vr(acc,4)}, {vr(a,4)}, {vr(f[1],8,f[0])}, v{IDX}"
def mf32(d, a, b, c):
    return f"v_mfma_f32_16x16x32_bf16 {vr(d,4)}, {vr(a,4)}, {vr(b,4)}, {c if c == '0' else vr(c,4)}"

NPRE = 5
QL = [(0, 0), (0, 1), (1, 0), (1, 1), (2, 0), (2, 1)]
def rd_ql(e, n, r):
    off = FRAG[("q",) + QL[n]][1]
    e(f"ds_read_b128 {vr(r,4)}, v{A_W} offset:{off}")
    return e(f"ds_read_b128 {vr(r+4,4)}, v{A_W} offset:{off+1024}")
def preload_q(e):
    for n in range(NPRE): rd_ql(e, n, QB + 8 * n)

S_KF = 12
def kv_peek(e):
    e(f"s_min_u32 s{S_TMP}, s{S_STEP}, 59\ns_lshl_b32 s{S_TMP}, s{S_TMP}, 2\ns_add_u32 s{S_TMP}, s{S_TMP}, s{S_KFO}")
    e(f"s_load_dwordx4 s[{S_KF}:{S_KF+3}], s[{S_WS}:{S_WS+1}], s{S_TMP} glc")
def kv_fold(e):
    e(f"s_and_b32 s{S_KF}, s{S_KF}, s{S_KF+1}\ns_and_b32 s{S_KF+2}, s{S_KF+2}, s{S_KF+3}\ns_and_b32 s{S_KF}, s{S_KF}, s{S_KF+2}")
    e(f"s_add_u32 s{S_TMP}, s{S_STEP}, 5\ns_cmp_ge_u32 s{S_STEP}, 59\ns_cselect_b32 s{S_TMP}, -1, s{S_TMP}")
    e(f"s_cmp_eq_u32 s{S_KF}, 1\ns_cselect_b32 s{S_TMP}, s{S_TMP}, 0\ns_max_u32 s{S_READY}, s{S_READY}, s{S_TMP}")

def kv_ready_ool(e, tail, va, vb):
    d = e.newlabel("KRD"); sl = e.newlabel("KRS")
    e(f"s_add_u32 s{S_TMP2}, s{S_STEP}, 1")
    e(f"s_cmp_le_u32 s{S_READY}, s{S_TMP2}\ns_cbranch_scc1 {sl}")
    e.label(d)
    def slow():
        e.label(sl)
        kv_poll(e, va, vb, d)
    tail.append(slow)

def chain_loop(e, fast, cfg):
    st = "" if fast else " sc1"
    tag_ = "F" if fast else "S"
    WS = f"s[{R_WS}:{R_WS+3}]"
    stamps = cfg.get("stamps", [])
    def S(name):
        if name in stamps:
            i = stamps.index(name); e(f"s_memtime s[{S_ST+2*i}:{S_ST+2*i+1}]")
    def SS(name): return lambda: S(name)
    def GS(p, fill, n):
        for i in range(n):
            if f"{p}_{i}" in stamps: fill[i] = [SS(f"{p}_{i}")] + list(fill.get(i, []))
    LOOP, LAST, ENTRY, EARLY = [f"CH{tag_}_{x}" for x in ("LOOP", "LAST", "ENTRY", "EARLY")]
    tail = []
    seq = {}
    def wt(key): return lambda: e.waitlg(seq[key])
    KP, VP, QP = XT + 4, XT + 6, XT + 2
    RP, RED, AGO, T1, AP = MEMA, MEMA + 16, MEMA + 20, MEMA + 22, MEMA + 24
    preload_q(e)
    for r in range(0, 16, 2): e(f"v_mov_b64 {vr(ACA+r,2)}, 0")
    e("s_waitcnt vmcnt(0) lgkmcnt(0)")
    if cfg.get("gstamp"): e("s_memrealtime s[18:19]\ns_memtime s[16:17]")
    kv_ready(e, 1, T0, T1)
    e(f"s_mov_b32 s{S_KF}, 0\ns_mov_b32 s60, 0")
    if cfg.get("prio"): e(f"s_setprio {cfg['prio']}")
    e(f"s_add_u32 s{S_KVG2}, s{S_KVG}, 8192\ns_mov_b32 m0, s{S_KVL}\nv_mov_b32 v{T0}, 0")
    e(f"s_branch {ENTRY}")
    def rs_ld(r):
        for i in range(4): e(f"buffer_load_dwordx4 {vr(r+4*i,4)}, v{A_RSR}, {WS}, s{S_RSR[i]} offen sc1")
    def rs_chk(r, n):
        for i in range(4):
            e(f"s_waitcnt vmcnt({n+3-i})")
            e(mf32(RED, SEL, r + 4 * i, "0" if i == 0 else RED))
            e(f"v_bitop3_b32 v{T1 if i else T0}, v{r+4*i}, v{r+4*i+2}, s{S_TAG} bitop3:0x7e")
            if i: e(f"v_or_b32 v{T0}, v{T0}, v{T1}")
        e(f"v_and_b32 v{T0}, 1, v{T0}\nv_cmp_ne_u32 vcc, 0, v{T0}")
    def ag_ld(r):
        e(f"buffer_load_dwordx4 {vr(r,4)}, v{A_AGR}, {WS}, s{S_AGR0} offen sc1")
        e(f"buffer_load_dwordx4 {vr(r+4,4)}, v{A_AGR}, {WS}, s{S_AGR0} offen offset:1024 sc1")
    def ag_chk(r, n):
        T1 = MEMA + 15
        e(f"s_waitcnt vmcnt({n})")
        e(f"ds_write_b128 v{A_AGR}, {vr(r,4)}\nds_write_b128 v{A_AGR}, {vr(r+4,4)} offset:1024")
        e(f"v_max3_u32 v{T0}, v{r}, v{r+1}, v{r+2}\nv_max3_u32 v{T1}, v{r+4}, v{r+5}, v{r+6}")
        e(f"v_max3_u32 v{T0}, v{T0}, v{r+3}, v{r+7}\nv_max_u32 v{T0}, v{T0}, v{T1}\nv_cmp_eq_u32 vcc, -1, v{T0}")
    def backoff(n):
        if n: e(f"s_sleep {n}")
    def advance():
        e(f"v_mov_b64 {vr(AGO,2)}, -1")
        e(f"v_xor_b32 v{A_KX}, 0x3C000, v{A_KX}\nv_xor_b32 v{A_VX}, 0x3C000, v{A_VX}")
        e(f"v_add_u32 v{A_AGW}, 0x2000, v{A_AGW}\nv_subrev_u32 v{T0}, 0x6000, v{A_AGW}\nv_min_u32 v{A_AGW}, v{A_AGW}, v{T0}")
        e(f"s_add_u32 s{S_AGSLOT}, s{S_AGSLOT}, 0x2000\ns_cmp_eq_u32 s{S_AGSLOT}, 0x6000\ns_cselect_b32 s{S_AGSLOT}, 0, s{S_AGSLOT}")
        e(f"s_add_u32 s{S_AGR0}, s{S_AGSLOT}, {WS_AG - L_MEM}")
        e(f"s_add_u32 s{S_KVG}, s{S_KVG}, 0x80000\ns_xor_b32 s{S_KVL}, s{S_KVL}, 0x3C000\ns_add_u32 s{S_KVM}, s{S_KVM}, 0x20000")
        e(f"s_add_u32 s{S_KVG2}, s{S_KVG}, 8192\ns_mov_b32 m0, s{S_KVL}\ns_mov_b32 s{S_FLV}, s{S_STEP}")
        if cfg.get("peek"): kv_fold(e)
        e(f"s_add_u32 s{S_STEP}, s{S_STEP}, 1")
        if stamps: e(f"s_mov_b32 s{S_SPIN}, 0")
        if cfg.get("peek"): kv_peek(e)
    def comm(reducer, d1, d2, K, KR):
        P1, P1R, P2, P2R = [e.newlabel(x) for x in ("P1", "P1R", "P2", "P2R")]
        if not reducer:
            advance()
            preload_q(e)
            e(f"s_xor_b32 s{S_TAG}, s{S_TAG}, 1")
            S("rsi"); S("rs")
        else:
            advance()
            preload_q(e)
            backoff(d1)
            S("rsi")
            rsets = [RP, ACA][:KR]
            rs_ld(RP)
            if KR > 1:
                backoff(cfg.get("e1", 2)); rs_ld(ACA)
            rs_chk(RP, 4 * (KR - 1))
            e(f"s_cbranch_vccnz {P1R}")
            e.label(P1 + "_OK")
            S("rs")
            def p1r():
                e.label(P1R)
                for k in range(KR):
                    e(f"s_add_u32 s{S_SPIN}, s{S_SPIN}, 1\ns_cmp_gt_u32 s{S_SPIN}, {SPIN_MAX}\ns_cbranch_scc1 {P1}_OK")
                    e("s_mov_b64 exec, vcc"); rs_ld(rsets[k]); e("s_mov_b64 exec, -1")
                    rs_chk(rsets[(k + 1) % KR], 4 * (KR - 1))
                    e(f"s_cbranch_vccz {P1}_OK")
                e(f"s_branch {P1R}")
            tail.append(p1r)
            e(f"s_xor_b32 s{S_TAG}, s{S_TAG}, 1\ns_nop 1")
            for r in range(4):
                e(f"v_add_f32_dpp v{RED+r}, v{RED+r}, v{RED+r} row_ror:8 row_mask:0xf bank_mask:0xf")
            e(f"s_mov_b64 exec, s[{S_AGM}:{S_AGM+1}]")
            e(f"v_cvt_pk_bf16_f32 v{AGO}, v{RED}, v{RED+1}\nv_cvt_pk_bf16_f32 v{AGO+1}, v{RED+2}, v{RED+3}")
            e(f"s_mov_b64 exec, s[{S_AGM2}:{S_AGM2+1}]\nbuffer_store_dwordx2 {vr(AGO,2)}, v{A_AGW}, {WS}, s{S_AGW} offen{st}\ns_mov_b64 exec, -1")
        S("ags")
        if cfg.get("agbar"): e("s_barrier")
        S("agb")
        kv_ready_ool(e, tail, T0, MEMA + 15)
        backoff(d2)
        sets = [AP, ACB, MEMA + 16][:K]
        for k, r in enumerate(sets):
            if k: backoff(cfg.get("e2", 2))
            ag_ld(r)
        ag_chk(AP, 2 * (K - 1))
        e(f"s_cbranch_vccnz {P2R}")
        e.label(P2 + "_OK")
        S("ag")
        def p2r():
            e.label(P2R)
            for k in range(K):
                e(f"s_add_u32 s{S_SPIN}, s{S_SPIN}, {16 if stamps else 1}\ns_cmp_gt_u32 s{S_SPIN}, {SPIN_MAX}\ns_cbranch_scc1 {P2}_OK")
                e("s_mov_b64 exec, vcc"); ag_ld(sets[k]); e("s_mov_b64 exec, -1")
                ag_chk(sets[(k + 1) % K], 2 * (K - 1))
                e(f"s_cbranch_vccz {P2}_OK")
            e(f"s_branch {P2R}")
        tail.append(p2r)
        if stamps:
            sk = e.newlabel("NS")
            e(f"s_waitcnt lgkmcnt(0)\ns_cmp_eq_u32 s{S_STEP}, {cfg.get('stampstep', 40)}\ns_cbranch_scc0 {sk}")
            for i in range(len(stamps)): e(f"v_writelane_b32 v{T0}, s{S_ST+2*i}, {i}")
            e(f"v_writelane_b32 v{T0}, s{S_SPIN}, 10")
            for i in range(5): e(f"s_memrealtime s[{12+4*i}:{13+4*i}]\ns_memtime s[{14+4*i}:{15+4*i}]\ns_nop 5")
            e("s_waitcnt lgkmcnt(0)")
            for i in range(5): e(f"v_writelane_b32 v{T0}, s{12+4*i}, {16+2*i}\nv_writelane_b32 v{T0}, s{14+4*i}, {17+2*i}")
            e(f"s_lshl_b32 s{S_TMP}, s{S_H}, 2\ns_add_u32 s{S_TMP}, s{S_TMP}, s{S_W}\ns_lshl_b32 s{S_TMP}, s{S_TMP}, 8\ns_add_u32 s{S_TMP}, s{S_TMP}, {WS_STAMP}")
            e(f"v_mbcnt_lo_u32_b32 v{T1}, -1, 0\nv_mbcnt_hi_u32_b32 v{T1}, -1, v{T1}\nv_lshlrev_b32 v{T1}, 2, v{T1}")
            e(f"buffer_store_dword v{T0}, v{T1}, {WS}, s{S_TMP} offen")
            e.label(sk)
        for r in range(0, 8, 2): e(f"v_mov_b64 {vr(ACA+r,2)}, 0")
        e(f"s_cmp_ge_u32 s{S_STEP}, 63\ns_cbranch_scc1 {LAST}")
        e(f"v_mov_b32 v{T0}, s{S_FLV}")
        if cfg.get("pubc"): e(f"buffer_store_dwordx4 {vr(KP,4)}, v{A_AGR}, {WS}, s{S_KVM} offen sc1")
        e("s_waitcnt lgkmcnt(0)")
    D = cfg.get("D", [[0, 60], [0, 160], [25, 40], [0, 190]])
    if cfg.get("agbar"): D = [[cfg["d1e"], cfg.get("d2e", 0)], [0, cfg.get("d2e", 0)], [cfg["d1"], cfg["d2"]], [0, cfg["d2"]]]
    KK = [cfg.get("Ke", 1), cfg.get("Ke", 1), cfg.get("K", 2), cfg.get("K", 2)]
    for w in (0, 1, 3):
        e.label(f"{LOOP}_{w}")
        comm(w == 0, D[w][0], D[w][1], KK[w], cfg.get('KRe', 1))
        e(f"s_branch {ENTRY}")
    e(".p2align 6")
    e.label(f"{LOOP}_2")
    comm(True, D[2][0], D[2][1], KK[2], cfg.get('KR', 2))
    e.label(ENTRY)
    e("s_barrier")
    S("b1")
    if cfg.get("stepst"): e("s_memrealtime s[84:85]")
    def rd_m(J, x):
        def f(): seq[("m", J)] = e(f"ds_read_b64_tr_b16 {vr(MEMA+4*J+2*x,2)}, v{A_TR} offset:{(2*(J%2)+x)*2048 + (J//2)*512}")
        return f
    qorder = [(0, 0), (0, 1), (1, 0), (1, 1), (2, 0)] + [(J, t) for J in range(3, 8) for t in range(2)] + [(2, 1)]
    if cfg.get("qo"): qorder = qorder[:11] + [(2, 1)] + qorder[11:15]
    def qf(J, t):
        if J < 3: return ("v", QB + 8 * (QL.index((J, t)) % 5))
        return FRAG[("q", J, t)]
    mq = [smf(ACA + 4 * t, MEMA + 4 * J, qf(J, t)) for J, t in qorder]
    def rd_w(key, r, off):
        def f(): seq[key] = e(f"ds_read_b128 {vr(r,4)}, v{A_W} offset:{off}")
        return f
    def rq(n, hf): return rd_w(("ql", n), QB + 8 * (n % 5) + 4 * hf, FRAG[("q",) + QL[n]][1] + 1024 * hf)
    flag = [f"s_mov_b64 exec, s[{S_W0M}:{S_W0M+1}]", f"buffer_store_dword v{T0}, off, {WS}, s{S_CF} sc1", "s_mov_b64 exec, -1"]
    pubk = f"buffer_store_dwordx2 {vr(KP,2)}, v{A_RSW}, {WS}, s{S_KVM} offen sc1"
    pubv = f"buffer_store_dwordx2 {vr(VP,2)}, v{A_RSW}, {WS}, s{S_KVM} offen offset:2048 sc1"
    if cfg.get("nopub"): pubk = pubv = "s_nop 0"; flag = []
    def dm(i): return "s_nop 0" if cfg.get("nodma") else f"buffer_load_dwordx4 v{A_AGR}, {WS}, s{S_KVG if i < 2 else S_KVG2} offen offset:{(i%2)*1024} sc1 lds"
    z = lambda r: f"v_mov_b64 {vr(r,2)}, 0"
    fill = {-1: [rd_m(J, x) for J in range(4) for x in range(2)] + [wt(("m", 0)), SS("m0")],
            0: [rd_m(4, 0), dm(0)], 1: [rd_m(4, 1), wt(("m", 1))], 2: [rd_m(5, 0), dm(1)], 3: [rd_m(5, 1), wt(("m", 2))],
            4: [f"s_add_u32 m0, s{S_KVL}, 8192", wt(("m", 3))],
            5: [f"s_waitcnt vmcnt({3 if cfg.get('pubc') else 2})", rd_m(6, 0)], 6: [rd_m(6, 1), wt(("m", 4))], 7: [rd_m(7, 0), dm(2)], 8: [rd_m(7, 1), wt(("m", 5))],
            9: [rq(5, 0), dm(3)], 10: [rq(5, 1), wt(("m", 6))], 11: flag, 12: [wt(("m", 7))], 13: [] if cfg.get("pubc") else [pubk], 14: [wt(("ql", 5))],
            }
    if cfg.get("qo"):
        last = []
        m0b = f"s_add_u32 m0, s{S_KVL}, 8192"
        fill = {-1: [rd_m(J, x) for J in range(4) for x in range(2)] + [wt(("m", 0)), SS("m0")],
                0: [rd_m(4, 0)] + (last if cfg["qo"] == 1 else []), 1: [rd_m(4, 1), wt(("m", 1))], 2: [rd_m(5, 0), dm(0)], 3: [rd_m(5, 1), wt(("m", 2))],
                4: [rq(5, 0), wt(("m", 3))], 5: [rq(5, 1), dm(1)], 6: [m0b, wt(("m", 4))], 7: ["s_waitcnt vmcnt(2)", rd_m(6, 0)],
                8: [rd_m(6, 1), wt(("m", 5))], 9: [rd_m(7, 0), dm(2)], 10: [rd_m(7, 1), wt(("ql", 5))], 11: [wt(("m", 6)), dm(3)],
                12: flag, 13: [wt(("m", 7))], 14: [pubk]}
        if cfg["qo"] == 2: fill[-1] = fill[-1][:8] + last + fill[-1][8:]
    if max(KK) > 2:
        fill[0] = ["s_waitcnt vmcnt(0)", rd_m(4, 0), dm(0)]; fill[5] = [rd_m(6, 0)]
    kextra = {}
    dp = cfg.get("dp", 0)
    m0b = f"s_add_u32 m0, s{S_KVL}, 8192"
    if dp:
        for g in (0, 2, 7, 9): fill[g] = fill[g][:1]
        fill[4] = fill[4][1:]
        fill[5] = ["s_waitcnt vmcnt(%d)" % (1 if dp in (1, 2) else 0), rd_m(6, 0)]
        if dp == 1:
            fill[2] += [dm(0)]; fill[7] += [dm(1)]; fill[9] += [m0b]; fill[12] = fill[12] + [dm(2)]; kextra = {5: [dm(3)]}
        if dp == 2:
            fill[2] += [dm(0)]; fill[9] += [dm(1)]; kextra = {3: [m0b], 5: [dm(2)], 11: [dm(3)]}
        if dp == 4:
            kextra = {4: [dm(0)], 7: [dm(1)], 9: [m0b], 11: [dm(2)], 14: [dm(3)]}
        if dp == 5:
            fill[9] += [dm(0)]; fill[12] = fill[12][:1] + [dm(1)] + fill[12][1:]; kextra = {3: [m0b], 5: [dm(2)], 7: [dm(3)]}
        if dp == 3:
            fill[7] += [dm(0)]; fill[12] = fill[12] + [dm(1)]; kextra = {3: [m0b], 6: [dm(2)], 14: [dm(3)]}
    if cfg.get("flp") == 1:
        fill[11] = []; kextra[7] = None
    pp = cfg.get("pubp", 0)
    if pp:
        pre = [rd_m(J, x) for J in range(4) for x in range(2)]
        fill[-1] = pre[:pp] + [pubk] + pre[pp:] + [wt(("m", 0)), SS("m0")]
        fill[13] = []; fill[5] = ["s_waitcnt vmcnt(3)", rd_m(6, 0)]
    pv = cfg.get("pv", 0); pkp = cfg.get("pkp", 0)
    if pv == 0: fill[15] = [pubv]
    if pkp: fill[13] = []
    for n, g in enumerate([10, 11, 13, 14] if cfg.get("qo") else [10, 12, 13, 14]): fill[g] = fill[g] + [z(ACB + 2 * n)]
    GS("q", fill, 16)
    interleave(e, mq, fill)
    S("q")
    mk = [smf(ACB + 4 * t, MEMA + 4 * J, FRAG[("k", J, t)]) for J in range(8) for t in range(2)]
    def post_dup(acc, dst):
        return [f"v_add_f32 v{acc}, v{acc}, v{acc+2}", f"v_add_f32 v{acc+1}, v{acc+1}, v{acc+3}",
                f"v_cvt_pk_bf16_f32 v{dst}, v{acc}, v{acc+1}"]
    pq = post_dup(ACA, QP) + post_dup(ACA + 4, QP + 1)
    def rd_q(js, t):
        def f(): seq[("q", js)] = e(f"ds_read_b64_tr_b16 {vr(QB+4*js+2*t,2)}, v{A_TR} offset:{L_QU-L_MEM + js*1024 + t*512}")
        return f
    kxslot = [0, 1, 2, 3, 4, 5, 0, 1]
    def rd_kx(n):
        js, kt = n // 2, n % 2
        def f(): seq[("kx", n)] = e(f"ds_read_b128 {vr(KXA+4*kxslot[n],4)}, v{A_KX} offset:{(kt*4+js)*1024}")
        return f
    def wr_u(key, a, r, t):
        def f(): seq[key] = e(f"ds_write2_b32 v{a}, v{r}, v{r} offset0:{128*t} offset1:{128*t+1}")
        return f
    fill = {0: pq[0:2], 1: pq[2:4], 2: [wr_u("wq0", A_UW, QP, 0)] + pq[4:6], 3: [wr_u("wq1", A_UW, QP + 1, 1)],
            4: [rd_kx(0), f"v_add_u32 v{T0}, {L_KU - L_QU}, v{A_UW}"], 5: [rd_kx(1)], 6: [rd_kx(2)], 7: [rd_kx(3)],
            8: [wt("wq1"), SS("bq0"), "s_barrier", SS("bq1")],
            9: [rd_q(0, 0), rd_q(0, 1)], 10: [rd_q(1, 0), rd_q(1, 1)], 11: [rd_kx(4)], 12: [rd_q(2, 0), rd_kx(5)], 13: [rd_q(2, 1), rd_q(3, 0)],
            14: [rd_q(3, 1)], 15: [wt(("q", 1))]}
    if pkp == 1: fill[6] = fill[6] + [pubk]
    if pkp == 2: fill[11] = fill[11] + [pubk]
    if pv == 2: fill[14] = fill[14] + [pubv]
    kb = cfg.get("kb", 0)
    if kb == 1:
        fill.update({5: [rd_kx(1), rd_kx(2)], 6: [rd_kx(3)], 7: [wt("wq1"), "s_barrier"], 8: [rd_q(0, 0), rd_q(0, 1)], 9: [rd_q(1, 0)], 10: [rd_q(1, 1)],
                     11: [rd_kx(4)], 12: [rd_q(2, 0), rd_kx(5)]})
    if kb == 2:
        fill.update({5: [rd_kx(1)], 6: [wt("wq1"), "s_barrier"], 7: [rd_q(0, 0), rd_q(0, 1)], 8: [rd_kx(2)], 9: [rd_q(1, 0), rd_kx(3)], 10: [rd_q(1, 1)],
                     11: [rd_kx(4)], 12: [rd_q(2, 0), rd_kx(5)]})
    if kb == 3:
        fill = {0: pq[0:1], 1: pq[1:2], 2: pq[2:3], 3: [wr_u("wq0", A_UW, QP, 0)] + pq[3:4], 4: [rd_kx(0)] + pq[4:5], 5: [rd_kx(1)] + pq[5:6],
                6: [wr_u("wq1", A_UW, QP + 1, 1), f"v_add_u32 v{T0}, {L_KU - L_QU}, v{A_UW}"], 7: [rd_kx(2)], 8: [rd_kx(3)], 9: [rd_kx(4)],
                10: [wt("wq1"), "s_barrier"], 11: [rd_q(0, 0), rd_q(0, 1)], 12: [rd_q(1, 0), rd_q(1, 1)], 13: [rd_q(2, 0), rd_kx(5)],
                14: [rd_q(2, 1), rd_q(3, 0)], 15: [rd_q(3, 1), wt(("q", 0))]}
    for g, x in kextra.items():
        if x is None: fill[g] = flag; fill[6] = fill[6] + [rd_kx(3)]
        elif g == 4: fill[g] = fill[g][:1] + x + fill[g][1:]
        else: fill[g] = fill[g] + x
    if cfg.get("flp") == 1: fill[4] = [rd_kx(0)]; fill[8] = fill[8]; fill[15] = fill[15]; kadd = True
    GS("k", fill, 16)
    interleave(e, mk, fill)
    S("k")
    pk = post_dup(ACB, KP) + post_dup(ACB + 4, KP + 1)
    ms = []
    for js in range(4):
        for kt in range(2):
            n = js * 2 + kt
            ms.append(mf32(ACA + 4 * kt, KXA + 4 * kxslot[n], QB + 4 * js, "0" if js == 0 else ACA + 4 * kt))
    def rd_k(js, t):
        def f(): seq[("k", js)] = e(f"ds_read_b64_tr_b16 {vr(KXA+8+4*js+2*t,2)}, v{A_TRK} offset:{L_KU-L_MEM + js*1024 + t*512}")
        return f
    fill = {0: [rd_kx(6)] + pk[0:2], 1: [rd_kx(7)] + pk[2:4] + ([f"v_add_u32 v{T0}, {L_KU - L_QU}, v{A_UW}"] if cfg.get("flp") == 1 else []),
            2: [wr_u("wk0", T0, KP, 0)] + pk[4:6], 3: [wt(("q", 3)), z(ACB), z(ACB + 2)],
            4: [wr_u("wk1", T0, KP + 1, 1), z(ACB + 4), z(ACB + 6)],
            5: [wt(("kx", 7))],
            }
    if cfg.get("sxs") == 1:
        fill = {0: [rd_kx(6)], 1: [rd_kx(7)] + pk[0:2], 2: pk[2:4], 3: [wt(("q", 3))] + pk[4:6],
                4: [wr_u("wk0", T0, KP, 0), z(ACB), z(ACB + 2)], 5: [wt(("kx", 7)), z(ACB + 4), z(ACB + 6)], 6: [wr_u("wk1", T0, KP + 1, 1)]}
    if kb == 3: fill[1] = fill[1][:1] + [wt(("q", 1))] + fill[1][1:]
    GS("sx", fill, 8)
    interleave(e, ms, fill)
    S("Sx")
    mv = [smf(ACB + 4 * t, MEMA + 4 * J, FRAG[("v", J, t)]) for J in range(8) for t in range(2)]
    SM = KXA
    X0, X1 = ACA, ACA + 4
    mx, t2 = KXA + 4, KXA + 5
    e0 = XT
    NV1 = cfg.get("nv1", 10)
    msm = [mf32(SM, KXA + 8 + 4 * js, QB + 4 * js, "0" if js == 0 else SM) for js in range(4)]
    odd = f"s[{S_ODD}:{S_ODD+1}]"
    early = [f"v_max3_f32 v{mx}, v{X0}, v{X0+1}, v{X0+2}", f"v_max3_f32 v{t2}, v{X1}, v{X1+1}, v{X1+2}",
             f"v_max3_f32 v{mx}, v{mx}, v{X0+3}, v{X1+3}", f"v_max_f32 v{mx}, v{mx}, v{t2}",
             f"v_cndmask_b32 v{e0}, v{X0}, v{X0+2}, {odd}", f"v_cndmask_b32 v{e0+1}, v{X0+1}, v{X0+3}, {odd}",
             f"v_cndmask_b32 v{e0+2}, v{X1}, v{X1+2}, {odd}", f"v_cndmask_b32 v{e0+3}, v{X1+1}, v{X1+3}, {odd}"]
    seqm = mv[:NV1] + msm + mv[NV1:]
    PVB0, PVB1, OAC, PA, LB, LA = QB, QB + 8, KXA + 8, KXA + 16, KXA + 20, KXA + 4
    def rd_vx(n):
        t, hf = n // 2, n % 2
        def f(): seq["vx"] = e(f"ds_read_b64 {vr(QB+8*t+2+4*hf,2)}, v{A_VX} offset:{t*1024 + hf*512}")
        return f
    def rd_wo(T, hf):
        return rd_w(("wo", T), MEMA + 8 * (T % 4) + 4 * hf, FRAG[("o", (1, T // 2), T % 2)][1] + 1024 * hf)
    EE = [SM, SM + 1, e0, e0+1, e0+2, e0+3]
    fill = {0: [wt("wk1"), SS("bk0"), "s_barrier", SS("bk1")]}
    for n in range(8): fill[1 + n] = [rd_k(n // 2, n % 2), early[n]]
    xv = cfg.get("xv", 0)
    if xv == 2:
        fill = {1: early[0:1], 2: early[1:3], 3: early[3:5], 4: [wt("wk1"), "s_barrier"],
                5: [rd_k(0, 0), rd_k(0, 1)], 6: [rd_k(1, 0), rd_k(1, 1)], 7: [rd_k(2, 0), rd_k(2, 1)], 8: [rd_k(3, 0), rd_k(3, 1)]}
    if xv == 3:
        fill = {1: early[0:2], 2: early[2:4], 3: [wt("wk1"), "s_barrier"],
                4: [rd_k(0, 0), rd_k(0, 1)], 5: [rd_k(1, 0), rd_k(1, 1)], 6: [rd_k(2, 0)], 7: [rd_k(2, 1)], 8: [rd_k(3, 0), rd_k(3, 1)]}
    if xv == 1:
        for n in range(8): fill[1 + n] = [rd_k(n // 2, n % 2)]
        fill[7] += early[0:1]; fill[8] += early[1:2]
    if pv == 1: fill[0] = [pubv]
    if pv == 3: fill[6] = fill[6] + [pubv]
    fill[NV1 - 1] = [rd_wo(0, 0), wt(("k", 0)), SS("k0")] if NV1 - 1 > 8 else fill[NV1 - 1][:1] + [wt(("k", 0))] + fill[NV1 - 1][1:]
    lb = [f"v_mov_b64 {vr(LB,2)}, s[{S_LB}:{S_LB+1}]", f"v_mov_b64 {vr(LB+2,2)}, s[{S_LB}:{S_LB+1}]"]
    zz = [z(OAC), z(OAC + 2), z(OAC + 4), z(OAC + 6), f"v_mov_b32 v{PA+2}, 0"] + lb
    if xv == 1:
        fill[NV1 - 1] = fill[NV1 - 1] + early[2:3]
        fill[NV1] = [wt(("k", 1))] + early[3:5]
        fill[NV1 + 1] = [wt(("k", 2))] + early[5:7]
        fill[NV1 + 2] = [wt(("k", 3))] + early[7:8] + zz[0:1]
        fill[NV1 + 3] = [rd_vx(0)] + zz[1:3]
        zz = zz[3:]
    elif xv in (2, 3):
        rem = early[5:] if xv == 2 else early[4:]
        allv = rem + zz
        k0 = 2 if xv == 3 else 0
        fill[NV1] = [wt(("k", 1))]
        fill[NV1 + 1] = [wt(("k", 2))] + allv[0:k0]
        fill[NV1 + 2] = [wt(("k", 3))] + allv[k0:k0 + 2]
        fill[NV1 + 3] = [rd_vx(0)] + allv[k0 + 2:k0 + 4]
        zz = allv[k0 + 4:]
    else:
        fill[NV1] = [wt(("k", 1))] + zz[0:2]
        fill[NV1 + 1] = [wt(("k", 2))] + zz[2:4]
        fill[NV1 + 2] = [wt(("k", 3))] + zz[4:5]
        fill[NV1 + 3] = [rd_vx(0)] + zz[5:7]
        zz = []
    GS("v1", fill, 14)
    interleave(e, seqm[:NV1 + 4], fill)
    S("Sm")
    rest = seqm[NV1 + 4:]
    assert len(rest) == 6
    def run(x):
        for s in x: s() if callable(s) else e(s)
    run([rest[0], rd_vx(1), rd_vx(2)] + zz[0:1] + [rest[1], rd_vx(3), rd_wo(0, 1),
         f"v_max3_f32 v{mx}, v{mx}, v{SM}, v{SM+1}", f"v_mov_b32 v{t2}, v{mx}",
         rest[2], rd_wo(1, 0), rd_wo(1, 1),
         f"v_permlane32_swap_b32 v{mx}, v{t2}", f"v_max_f32 v{mx}, v{mx}, v{t2}", f"v_mov_b32 v{t2}, v{mx}",
         rest[3], rd_wo(2, 0), rd_wo(2, 1),
         f"v_permlane16_swap_b32 v{mx}, v{t2}", f"v_max_f32 v{mx}, v{mx}, v{t2}",
         rest[4], f"v_mul_f32 v{mx}, s{S_SC}, v{mx}", rest[5], rd_wo(3, 0), rd_wo(3, 1)] + zz[1:] + [
         ]
        + [f"v_fma_f32 v{x}, v{x}, s{S_SC}, -v{mx}" for x in EE] + [f"v_exp_f32 v{x}, v{x}" for x in EE]
        + [f"v_cvt_pk_bf16_f32 v{PA}, v{SM}, v{SM+1}", f"v_cvt_pk_bf16_f32 v{PA+1}, v{e0}, v{e0+1}", f"v_cvt_pk_bf16_f32 v{PA+3}, v{e0+2}, v{e0+3}",
           f"v_permlane32_swap_b32 v{PA}, v{PA+2}"])
    S("soft")
    cv = lambda t, h: f"v_cvt_pk_bf16_f32 v{QB+8*t+h}, v{ACB+4*t+2*h}, v{ACB+4*t+2*h+1}"
    run([cv(0, 0), cv(0, 1), mf32(LA, PA, LB, "0"), wt("vx"), cv(1, 0), cv(1, 1),
         f"v_smfmac_f32_16x16x64_bf16 {vr(OAC,4)}, {vr(PA,4)}, {vr(PVB0,8)}, v{IDX}", "s_nop 0",
         f"v_smfmac_f32_16x16x64_bf16 {vr(OAC+4,4)}, {vr(PA,4)}, {vr(PVB1,8)}, v{IDX}",
         ] + ([
         f"v_pk_add_f32 {vr(LA,2)}, {vr(LA,2)}, {vr(LA+2,2)}", f"v_rcp_f32 v{LA}, v{LA}", f"v_rcp_f32 v{LA+1}, v{LA+1}",
         f"v_pk_add_f32 {vr(OAC,2)}, {vr(OAC,2)}, {vr(OAC+2,2)}", f"v_pk_mul_f32 {vr(OAC,2)}, {vr(OAC,2)}, {vr(LA,2)}", "s_nop 0",
         f"v_pk_add_f32 {vr(OAC+4,2)}, {vr(OAC+4,2)}, {vr(OAC+6,2)}", f"v_cvt_pk_bf16_f32 v{OAC}, v{OAC}, v{OAC+1}",
         f"v_pk_mul_f32 {vr(OAC+4,2)}, {vr(OAC+4,2)}, {vr(LA,2)}", f"v_cvt_pk_bf16_f32 v{OAC+1}, v{OAC+4}, v{OAC+5}"] if cfg.get("usepk") else [
         f"v_add_f32 v{LA}, v{LA}, v{LA+2}", f"v_add_f32 v{LA+1}, v{LA+1}, v{LA+3}", f"v_rcp_f32 v{LA}, v{LA}", f"v_rcp_f32 v{LA+1}, v{LA+1}",
         f"v_add_f32 v{OAC}, v{OAC}, v{OAC+2}", f"v_add_f32 v{OAC+1}, v{OAC+1}, v{OAC+3}",
         f"v_mul_f32 v{OAC}, v{OAC}, v{LA}", f"v_mul_f32 v{OAC+1}, v{OAC+1}, v{LA+1}",
         f"v_add_f32 v{OAC+4}, v{OAC+4}, v{OAC+6}", f"v_add_f32 v{OAC+5}, v{OAC+5}, v{OAC+7}",
         f"v_mul_f32 v{OAC+4}, v{OAC+4}, v{LA}", f"v_mul_f32 v{OAC+5}, v{OAC+5}, v{LA+1}",
         f"v_cvt_pk_bf16_f32 v{OAC}, v{OAC}, v{OAC+1}", f"v_cvt_pk_bf16_f32 v{OAC+1}, v{OAC+4}, v{OAC+5}"]))
    WAC = [QB, QB + 4, QB + 8, QB + 12, ACA, ACA + 4, ACB, ACB + 4]
    so = e(f"ds_write_b64 v{A_UW}, {vr(OAC,2)}")
    S("ow")
    def vpost():
        for t in range(2):
            a = ACB + 4 * t
            e(f"v_pk_add_f32 {vr(a,2)}, {vr(a,2)}, {vr(a+2,2)}\nv_cvt_pk_bf16_f32 v{VP+t}, v{a}, v{a+1}")
    if cfg.get("mz"):
        e(z(QB)); e(z(QB + 2))
        vpost()
        e(f"v_mfma_f32_32x32x16_bf16 {vr(ACA,16)}, {vr(QB,4)}, {vr(QB,4)}, 0")
        for r in range(4, 16, 2): e(z(QB + r))
    else:
        vpost()
        for r in range(0, 16, 2): e(z(QB + r))
        for r in range(0, 16, 2): e(z(ACA + r))
    e.waitlg(so)
    S("bo0")
    e("s_barrier")
    S("bo1")
    OA = KXA
    for J in range(2):
        for x in range(2):
            seq[("oa", J)] = e(f"ds_read_b64_tr_b16 {vr(OA+4*J+2*x,2)}, v{A_TR} offset:{L_QU-L_MEM + (2*J+x)*1024}")
    mo = []
    for p in range(4):
        for T in (2 * p, 2 * p + 1): mo.append(smf(WAC[T], OA, FRAG[("o", (0, T // 2), T % 2)]))
        for T in (2 * p, 2 * p + 1): mo.append(smf(WAC[T], OA + 4, ("v", MEMA + 8 * (T % 4))))
    RSO = OAC
    def post_pair(p):
        a, b = WAC[2 * p], WAC[2 * p + 1]; d = RSO + 2 * p
        return [f"v_add_f32 v{a}, v{a}, v{a+2}", f"v_add_f32 v{a+1}, v{a+1}, v{a+3}",
                f"v_cvt_pk_bf16_f32 v{d}, v{a}, v{a+1}", f"v_add_f32 v{b}, v{b}, v{b+2}",
                f"v_add_f32 v{b+1}, v{b+1}, v{b+3}", f"v_and_or_b32 v{d}, v{d}, -2, s{S_TAG}",
                f"v_cvt_pk_bf16_f32 v{d+1}, v{b}, v{b+1}",
                f"buffer_store_dwordx2 {vr(d,2)}, v{A_RSW}, {WS}, s{S_RSW0 if p < 2 else S_RSW1} offen offset:{(p%2)*2048}{st}"]
    p0, p1, p2, p3 = [post_pair(p) for p in range(4)]
    fill = {-1: [wt(("oa", 0)), SS("oa")], 1: [wt(("oa", 1))], 2: [rd_wo(4, 0), rd_wo(4, 1)], 3: [rd_wo(5, 0), rd_wo(5, 1)],
            4: ["s_nop 0"] + p0[0:1], 5: p0[1:3], 6: [rd_wo(6, 0), rd_wo(6, 1)] + p0[3:5], 7: [rd_wo(7, 0), rd_wo(7, 1)] + p0[5:7], 8: p0[7:8] + p1[0:1],
            9: [wt(("wo", 4))] + p1[1:3], 10: [wt(("wo", 5))] + p1[3:5], 11: p1[5:7],
            12: p1[7:8] + p2[0:1], 13: [wt(("wo", 6))] + p2[1:3], 14: [wt(("wo", 7))] + p2[3:5],
            15: p2[5:8] + p3[0:3] + ([p3[5]] + p3[3:5] + p3[6:] if not cfg.get("usepk") else [p3[5], f"v_pk_add_f32 {vr(WAC[7],2)}, {vr(WAC[7],2)}, {vr(WAC[7]+2,2)}"] + p3[6:]),
            }
    GS("wo", fill, 16)
    interleave(e, mo, fill)
    S("Wo")
    if cfg.get("stepst"):
        for k in range(12): e(f"s_cmp_eq_u32 s{S_STEP}, {k}\ns_cselect_b32 s{20+k}, s84, s{20+k}")
    for w in (2, 0, 1): e(f"s_cmp_eq_u32 s{S_W}, {w}\ns_cbranch_scc1 {LOOP}_{w}")
    e(f"s_branch {LOOP}_3")
    for t in tail: t()
    e.label(LAST)
    e("s_waitcnt vmcnt(0) lgkmcnt(0)\ns_barrier")
    for J in range(8):
        for x in range(2): rd_m(J, x)()
    e(pubk); e(pubv)
    e(f"s_add_u32 s{S_KVM}, s{S_KVM}, 0x20000")
    for r in range(0, 8, 2): e(z(ACB + r))
    e("s_waitcnt lgkmcnt(0)")
    for J in range(8):
        for t in range(2): e(smf(ACA + 4 * t, MEMA + 4 * J, FRAG[("k", J, t)]))
    for i, m in enumerate(mv):
        e(m)
        if 2 <= i < 8: e((post_dup(ACA, KP) + post_dup(ACA + 4, KP + 1))[i - 2])
        if i == 8: e(pubk)
    e.nop(8)
    vpost()
    e(pubv)
    e("s_waitcnt vmcnt(0) lgkmcnt(0)\ns_barrier")
    e(f"v_mov_b32 v{T0}, 64\ns_mov_b64 exec, s[{S_W0M}:{S_W0M+1}]")
    e(f"buffer_store_dword v{T0}, off, {WS}, s{S_CF} sc1")
    if cfg.get("gstamp"):
        e(f"s_memrealtime s[84:85]\ns_memtime s[86:87]\ns_waitcnt lgkmcnt(0)\ns_sub_u32 s86, s86, s16\nv_mov_b32 v24, s86\nv_mov_b32 v20, s3\nv_mov_b32 v21, s18\nv_mov_b32 v22, s84\nv_mov_b32 v23, s69")
        e(f"s_lshl_b32 s{S_TMP}, s{S_H}, 4\ns_add_u32 s{S_TMP}, s{S_TMP}, {WS_STAMP + 0x10000}")
        if cfg.get("stepst"):
            for k in range(12): e(f"v_mov_b32 v{30+k}, s{20+k}")
            e(f"s_lshl_b32 s{S_TMP2}, s{S_H}, 6\ns_add_u32 s{S_TMP2}, s{S_TMP2}, {WS_STAMP + 0x11000}")
            for k in range(3): e(f"buffer_store_dwordx4 v[{30+4*k}:{33+4*k}], off, {WS}, s{S_TMP2} offset:{16*k}")
        e(f"buffer_store_dwordx4 v[20:23], off, {WS}, s{S_TMP}\nbuffer_store_dword v24, off, {WS}, s{S_TMP} offset:1024")
    if cfg.get("dbgt"):
        for k, r in enumerate(("s69", "s18", "s84")):
            e(f"s_sub_u32 s{S_TMP}, {r}, s3\nv_mov_b32 v20, s{S_TMP}\nv_mov_b32 v21, {8 + 4*k}\nglobal_atomic_umax v21, v20, s[{S_DBG}:{S_DBG+1}]")
        e(f"v_mov_b32 v20, s60\nv_mov_b32 v21, 28\nglobal_atomic_or v21, v20, s[{S_DBG}:{S_DBG+1}]")
        e(f"v_mov_b32 v20, s86\nv_mov_b32 v21, 24\nglobal_atomic_umax v21, v20, s[{S_DBG}:{S_DBG+1}]")
    e("s_branch KEND")
```

```python
from asmlib import Em, vr
from layout import *
from chain import *

WS = f"s[{R_WS}:{R_WS+3}]"
W_XB, W_QX, W_KMU, W_RED, W_STG = 0x0, 0x10000, 0x12000, 0x13000, 0x10000
NSLOT = 6
S_G, S_SEG, S_CNT, S_XL, S_XG, S_I, S_OFF, S_OFF2, S_STGB = 52, 53, 54, 55, 56, 57, 58, 59, 60
S_STP, S_END, S_PREV, S_CHN = 61, 66, 74, 75
R_X = 84
R_A, R_B = 40, 44
R_O = 88
V_C, V_G, V_L16, V_XSRC, V_XRD, V_T, V_T2 = 1, 2, 3, 4, 5, 6, 7

_cfg = {}
def WST(e, idx=None):
    if not _cfg.get("wstamp"): return
    e(f"s_memrealtime s[70:71]\ns_lshl_b32 s72, s{S_GRP}, 5\ns_add_u32 s72, s72, s{S_H}\ns_lshl_b32 s72, s72, 8\ns_lshl_b32 s73, s101, 2\ns_add_u32 s72, s72, s73")
    e(f"s_add_u32 s72, s72, {WS_STAMP + 0x20000}\ns_add_u32 s101, s101, 1\ns_waitcnt lgkmcnt(0)\ns_sub_u32 s70, s70, s3\nv_mov_b32 v{V_T}, s70\nv_mov_b32 v{V_T2}, 0\ns_mov_b64 exec, s[{S_W0M}:{S_W0M+1}]")
    e(f"buffer_store_dword v{V_T}, v{V_T2}, {WS}, s72 offen\ns_mov_b64 exec, -1\ns_waitcnt vmcnt(0)")

def load_blocks(e, blocks, D=NSLOT):
    N = len(blocks)
    def issue(n):
        r, vs, so, _, _ = blocks[n]
        for i in range(4):
            e(f"s_add_u32 m0, s{S_STGB}, {(n % NSLOT) * 4096 + i * 1024}\ns_mov_b32 s{S_TMP}, {so[i]}")
            e(f"buffer_load_dwordx4 {vs}, s[{r}:{r+3}], s{S_TMP} offen lds")
    for n in range(min(D, N)): issue(n)
    for n in range(N):
        e(f"s_waitcnt vmcnt({4 * min(N - 1 - n, D - 1)})")
        for dst, off in blocks[n][4]:
            e(f"ds_read_b64_tr_b16 {dst}, {blocks[n][3]} offset:{(n % NSLOT) * 4096 + off}")
        e("s_waitcnt lgkmcnt(0)")
        if n + D < N: issue(n + D)

def wmat_blocks(r, abase):
    out = []
    for J in range(8):
        rd = []
        for t in range(2):
            for m in range(4):
                s = 2 * J + m // 2
                rd.append((vr(abase + (t * 16 + s) * 4 + 2 * (m % 2), 2, "a"), (32 * (m // 2) + 4 * (m % 2)) * 64 + t * 32))
        out.append((r, "v20", [(64 * J + 16 * i) * 8192 for i in range(4)], "v22", rd))
    return out

def wo_blocks(r, abase):
    out = []
    for hh in range(8):
        rd = []
        for js in range(4):
            for m in range(2):
                rd.append((vr(abase + (hh * 4 + js) * 4 + 2 * m, 2, "a"), (32 * js + 16 * m) * 32))
        out.append((r, "v21", [(hh * 128 + 32 * i) * 1024 for i in range(4)], "v23", rd))
    return out

def wload_addr(e):
    e("v_and_b32 v18, 3, v0\nv_lshrrev_b32 v19, 2, v0")
    e(f"s_lshl_b32 s{S_TMP}, s{S_H}, 8\ns_lshl_b32 s{S_TMP2}, s{S_W}, 6\ns_add_u32 s{S_TMP}, s{S_TMP}, s{S_TMP2}")
    e(f"v_lshlrev_b32 v20, 13, v19\nv_lshl_add_u32 v20, v18, 4, v20\nv_add_u32 v20, s{S_TMP}, v20")
    e(f"s_lshl_b32 s{S_TMP}, s{S_W}, 20\ns_lshl_b32 s{S_TMP2}, s{S_H}, 5\ns_add_u32 s{S_TMP}, s{S_TMP}, s{S_TMP2}")
    e(f"v_lshrrev_b32 v21, 1, v0\nv_lshlrev_b32 v21, 10, v21\nv_and_b32 v24, 1, v0\nv_lshl_add_u32 v21, v24, 4, v21\nv_add_u32 v21, s{S_TMP}, v21")
    e(f"s_mul_i32 s{S_STGB}, s{S_W}, {NSLOT*4096}\ns_add_u32 s{S_STGB}, s{S_STGB}, {W_STG}")
    e(f"v_lshrrev_b32 v24, 2, v{V_C}")
    e(f"v_lshl_add_u32 v22, v{V_G}, 3, v24\nv_lshlrev_b32 v22, 6, v22\nv_lshl_add_u32 v22, v18, 3, v22\nv_add_u32 v22, s{S_STGB}, v22")
    e(f"v_lshl_add_u32 v23, v{V_G}, 2, v24\nv_lshlrev_b32 v23, 5, v23\nv_lshl_add_u32 v23, v18, 3, v23\nv_add_u32 v23, s{S_STGB}, v23")

def x_dma(e):
    out = []
    for i in range(8):
        out.append([f"s_add_u32 m0, s{S_XL}, {i*1024}", f"s_add_u32 s{S_TMP}, s{S_XG}, {i*64}",
                    f"buffer_load_dwordx4 v{V_XSRC}, s[{R_X}:{R_X+3}], s{S_TMP} offen lds"])
    return out

def flag_store(e, soff, val):
    e(f"v_mov_b32 v{V_T}, {val}\nv_mov_b32 v{V_T2}, s{soff}\ns_mov_b64 exec, s[{S_W0M}:{S_W0M+1}]")
    e(f"buffer_store_dword v{V_T}, v{V_T2}, {WS}, 0 offen sc1\ns_mov_b64 exec, -1")

def mfd(d, a, b, c, pa="v", pb="v"):
    return f"v_mfma_f32_16x16x32_bf16 {vr(d,4)}, {vr(a,4,pa)}, {vr(b,4,pb)}, {c if c == '0' else vr(c,4)}"

def phaseA(e, cfg):
    e("; ---- phase A : K,V projection")
    XF, ACC, OUT = 32, 64, 96
    srd(e, R_A, S_WK, 0x400000); srd(e, R_B, S_WV, 0x400000)
    if cfg.get("seqa"):
        e(f"s_cmp_lt_u32 s{S_G}, 3\ns_cselect_b32 s{S_STP}, 2, 4\ns_cselect_b32 s{S_END}, 28, 64\ns_cselect_b32 s{S_TMP}, 9, 25\ns_add_u32 s{S_SEG}, s{S_G}, s{S_TMP}")
        e(f"s_cmp_eq_u32 s{S_G}, 0\ns_cselect_b32 s{S_STP}, 1, s{S_STP}\ns_cselect_b32 s{S_END}, 10, s{S_END}\ns_cselect_b32 s{S_SEG}, 0, s{S_SEG}")
    else:
        e(f"s_cmp_lt_u32 s{S_G}, 3\ns_cselect_b32 s{S_STP}, 3, 4\ns_cselect_b32 s{S_END}, {cfg.get('asplit', 27)}, 64\ns_cselect_b32 s{S_TMP}, 0, {cfg.get('asplit', 27) - 3}\ns_add_u32 s{S_SEG}, s{S_G}, s{S_TMP}")
    e(f"s_lshl_b32 s{S_XG}, s{S_SEG}, 15\ns_lshl_b32 s{S_XL}, s{S_W}, 13\nv_mov_b32 v{V_XRD}, v{V_L16}")
    for g in x_dma(e):
        for s in g: e(s)
    load_blocks(e, wmat_blocks(R_A, 0) + wmat_blocks(R_B, 128), cfg.get('wda', 6))
    wait_init(e, "w", 24)
    e(f"s_and_b32 s{S_TMP}, s{S_GRP}, 3\ns_lshl_b32 s{S_TMP}, s{S_TMP}, 4\ns_lshr_b32 s{S_TMP2}, s{S_GRP}, 2\ns_add_u32 s{S_TMP}, s{S_TMP}, s{S_TMP2}\ns_nop 3")
    e(f"v_readlane_b32 s{S_MODE}, v24, s{S_TMP}")
    if cfg.get("force_slow"): e(f"s_mov_b32 s{S_MODE}, 0")
    WST(e)
    e(f"s_mov_b32 s{S_I}, 0x7ffffff0")
    pa = cfg.get("pastamp")
    def acc(k):
        if pa: e(f"s_memtime s[70:71]\ns_waitcnt lgkmcnt(0)\ns_sub_u32 s72, s70, s92\ns_mov_b32 s92, s70\ns_add_u32 s{93+k}, s{93+k}, s72")
    if pa: e("s_memtime s[92:93]\ns_waitcnt lgkmcnt(0)\ns_mov_b32 s93, 0\ns_mov_b32 s94, 0\ns_mov_b32 s95, 0\ns_mov_b32 s96, 0")
    e.label("PA_LOOP")
    e("s_waitcnt vmcnt(4)")
    acc(0)
    e("s_barrier")
    acc(1)
    e(f"s_lshl_b32 s{S_TMP}, s{S_STP}, 15\ns_add_u32 s{S_XG}, s{S_XG}, s{S_TMP}\ns_xor_b32 s{S_XL}, s{S_XL}, 0x8000")
    dma = x_dma(e)
    seq = {}
    def rd(n):
        s, rt = n // 2, n % 2
        seq[n] = e(f"ds_read_b128 {vr(XF + 4 * (n % 8), 4)}, v{V_XRD} offset:{(rt * 16 + s) * 1024}")
    for n in range(6): rd(n)
    for n in range(32):
        s, rt = n // 2, n % 2
        e.waitlg(seq[n])
        x = XF + 4 * (n % 8)
        for t in range(2):
            a = ACC + 4 * (t * 2 + rt)
            e(mfd(a, (t * 16 + s) * 4, x, "0" if s == 0 else a, "a", "v"))
            if t == 0 and n + 6 < 32: rd(n + 6)
        for t in range(2):
            a = ACC + 16 + 4 * (t * 2 + rt)
            e(mfd(a, x, 128 + (t * 16 + s) * 4, "0" if s == 0 else a, "v", "a"))
        if n % 3 == 1 and n // 3 < 8:
            for q in dma[n // 3]: e(q)
        if n == 14:
            e("s_waitcnt vmcnt(5)\ns_barrier")
            flag_store(e, S_I, 1)
    acc(2)
    e(f"v_xor_b32 v{V_XRD}, 0x8000, v{V_XRD}")
    e(f"s_lshl_b32 s{S_OFF}, s{S_SEG}, 19\ns_lshl_b32 s{S_TMP}, s{S_H}, 14\ns_add_u32 s{S_OFF}, s{S_OFF}, s{S_TMP}\ns_add_u32 s{S_OFF}, s{S_OFF}, {WS_KV}")
    e(f"s_lshl_b32 s{S_TMP}, s{S_W}, 10\ns_add_u32 s{S_TMP2}, s{S_OFF}, s{S_TMP}\ns_nop 0\ns_lshl_b32 s{S_I}, s{S_H}, 6\ns_add_u32 s{S_I}, s{S_I}, s{S_SEG}\ns_lshl_b32 s{S_I}, s{S_I}, 2")
    for rt in range(2):
        o = OUT + 4 * rt
        for t in range(2):
            a = ACC + 4 * (t * 2 + rt)
            e(f"v_cvt_pk_bf16_f32 v{o+2*t}, v{a}, v{a+1}\nv_cvt_pk_bf16_f32 v{o+2*t+1}, v{a+2}, v{a+3}")
        e(f"buffer_store_dwordx4 {vr(o,4)}, v{V_L16}, {WS}, s{S_TMP2} offen sc1")
        e(f"s_add_u32 s{S_TMP2}, s{S_TMP2}, 4096")
    e(f"s_add_u32 s{S_TMP2}, s{S_TMP2}, s{S_TMP}")
    for t in range(2):
        o = OUT + 8 + 4 * t
        for rt in range(2):
            a = ACC + 16 + 4 * (t * 2 + rt)
            e(f"v_cvt_pk_bf16_f32 v{o+2*rt}, v{a}, v{a+1}\nv_cvt_pk_bf16_f32 v{o+2*rt+1}, v{a+2}, v{a+3}")
        e(f"buffer_store_dwordx4 {vr(o,4)}, v{V_L16}, {WS}, s{S_TMP2} offen offset:{t*1024} sc1")
    acc(3)
    e(f"s_add_u32 s{S_SEG}, s{S_SEG}, s{S_STP}\ns_cmp_lt_u32 s{S_SEG}, s{S_END}\ns_cbranch_scc1 PA_LOOP")
    e("s_waitcnt vmcnt(0)\ns_barrier")
    flag_store(e, S_I, 1)
    if pa:
        e(f"s_lshl_b32 s72, s{S_GRP}, 5\ns_add_u32 s72, s72, s{S_H}\ns_lshl_b32 s72, s72, 4\ns_add_u32 s72, s72, {WS_STAMP + 0x30000}")
        e(f"v_mov_b32 v32, s93\nv_mov_b32 v33, s94\nv_mov_b32 v34, s95\nv_mov_b32 v35, s96\nv_mov_b32 v36, 0\nbuffer_store_dwordx4 v[32:35], v36, {WS}, s72 offen")

def poll_all(e, name, vaddr, soff, cmpv, vt, sleep=8, bar=True):
    l, d = e.newlabel(name), e.newlabel(name + "D")
    e(f"s_cmp_eq_u32 s{S_W}, 0\ns_cbranch_scc0 {d}")
    e.label(l)
    e(f"buffer_load_dword v{vt}, v{vaddr}, {WS}, {soff} offen sc1\ns_add_u32 s{S_SPIN}, s{S_SPIN}, 1\ns_waitcnt vmcnt(0)")
    e(f"v_cmp_gt_u32 vcc, {cmpv}, v{vt}\ns_cbranch_vccz {d}\ns_sleep {sleep}")
    e(f"s_cmp_lt_u32 s{S_SPIN}, {SPIN_MAX}\ns_cbranch_scc1 {l}")
    e.label(d)
    if bar: e("s_barrier")

def rb_pair(e, d, a, b):
    e(f"v_cvt_pk_bf16_f32 v{d}, v{a}, v{b}\nv_lshlrev_b32 v{a}, 16, v{d}\nv_and_b32 v{b}, 0xffff0000, v{d}")

C_UR, C_HP, URS, HPC = 0x0, 0x8000, 7680, 4160
HPS = 4 * HPC
def conv(e, cfg):
    e("; ---- conv task")
    S_TK = S_OFF
    e(f"s_cmp_lt_u32 s{S_G}, 3\ns_cbranch_scc1 CV_END\ns_sub_u32 s{S_TK}, s{S_G}, 3\ns_lshl_b32 s{S_TK}, s{S_TK}, 5\ns_add_u32 s{S_TK}, s{S_TK}, s{S_H}")
    if cfg.get("cvwait") is not None:
        wait_init(e, "w", 24)
        e(f"s_lshl_b32 s{S_OFF2}, s{S_H}, 8\ns_add_u32 s{S_OFF2}, s{S_OFF2}, {4*cfg['cvwait']}\nv_mov_b32 v24, 0")
        poll_all(e, "CVS", 24, f"s{S_OFF2}", 1, 25, 32)
    srd(e, R_A, S_K, 0x200000); srd(e, R_B, S_V, 0x200000)
    KR, VR, SH, P, U = 32, 56, 72, 88, 112
    e(f"s_lshl_b32 s{S_TMP}, s{S_W}, 6\nv_add_u32 v16, s{S_TMP}, v0")
    e(f"s_lshl_b32 s{S_TMP}, s{S_TK}, 3\nv_lshlrev_b32 v17, 13, v16\nv_add_u32 v17, s{S_TMP}, v17")
    e("v_subrev_u32 v18, 3072, v17")
    for j in range(3): e(f"buffer_load_dwordx2 {vr(KR+2*j,2)}, v18, s[{R_A}:{R_A+3}], 0 offen offset:{j*1024}")
    e("v_add_u32 v19, 4096, v17")
    for j in range(8):
        va = "v17" if j < 4 else "v19"
        e(f"buffer_load_dwordx2 {vr(KR+6+2*j,2)}, {va}, s[{R_A}:{R_A+3}], 0 offen offset:{(j%4)*1024}")
        e(f"buffer_load_dwordx2 {vr(VR+2*j,2)}, {va}, s[{R_B}:{R_B+3}], 0 offen offset:{(j%4)*1024}")
    e(f"s_lshl_b32 s{S_TMP2}, s{S_TK}, 2\ns_add_u32 s{S_TMP2}, s{S_TMP2}, s{S_W}")
    e(f"s_lshl_b32 s{S_XG}, s{S_TMP2}, 12\ns_mul_i32 s{S_XL}, s{S_W}, {HPS}\ns_add_u32 s{S_XL}, s{S_XL}, {C_HP}")
    e(f"s_add_u32 s{R_O}, s{S_SSMK}, s{S_XG}\ns_addc_u32 s{R_O+1}, s{S_SSMK+1}, 0\ns_mov_b32 s{R_O+2}, 4096\ns_mov_b32 s{R_O+3}, 0x20000")
    HR = 140
    for i in range(5):
        e(f"v_add_u32 v22, {i*1024 - 64}, v{V_L16}\nv_add_u32 v23, {i*1024 - 48}, v{V_L16}")
        e(f"buffer_load_dwordx4 {vr(HR+6*i,4)}, v22, s[{R_O}:{R_O+3}], 0 offen\nbuffer_load_dwordx2 {vr(HR+6*i+4,2)}, v23, s[{R_O}:{R_O+3}], 0 offen")
    e(f"s_lshl_b32 s{S_TMP}, s{S_TK}, 5\ns_load_dwordx8 s[92:99], s[{S_SH}:{S_SH+1}], s{S_TMP}")
    e(f"s_lshl_b32 s{S_TMP}, s{S_TMP2}, 1\ns_and_b32 s{S_TMP}, s{S_TMP}, -4\ns_load_dword s{S_CNT}, s[{S_SSMD}:{S_SSMD+1}], s{S_TMP}")
    e(f"v_mov_b64 v[24:25], 0\nv_mov_b64 v[26:27], 0")
    e(f"s_mul_i32 s{S_I}, s{S_W}, {URS}\nv_add_u32 v20, s{S_I}, v{V_L16}")
    for i in range(2): e(f"ds_write_b128 v20, v[24:27] offset:{5120 + i*1024}")
    e(f"s_mov_b32 exec_hi, 0\nds_write_b128 v20, v[24:27] offset:{5120 + 2048}\ns_mov_b64 exec, -1")
    e("v_lshlrev_b32 v20, 3, v16\nv_sub_u32 v20, 2040, v20\nv_lshrrev_b32 v21, 5, v20\nv_and_b32 v20, 31, v20")
    e("v_mul_u32_u24 v21, 80, v21\nv_lshl_add_u32 v20, v20, 1, v21")
    e("s_waitcnt vmcnt(10) lgkmcnt(0)")
    if cfg.get("cvstamp"): WST(e)
    e("v_cmp_eq_u32 vcc, 0, v16\ns_nop 1")
    for r in range(6): e(f"v_cndmask_b32 v{KR+r}, v{KR+r}, v24, vcc")
    for ch in range(4):
        for j in range(4):
            src = 92 + ch * 2 + j // 2
            e(f"s_lshl_b32 s{70+j}, s{src}, 16" if j % 2 == 0 else f"s_and_b32 s{70+j}, s{src}, 0xffff0000")
        KF = 120
        for j in range(11):
            r = KR + 2 * j + ch // 2
            e(f"v_lshlrev_b32 v{KF+j}, 16, v{r}" if ch % 2 == 0 else f"v_and_b32 v{KF+j}, 0xffff0000, v{r}")
        for pr in range(4):
            a, b, t1, t2, d = P, P + 1, P + 2, P + 3, P + 4
            r0 = 2 * pr
            e(f"v_mul_f32 v{a}, s73, v{KF+r0}\nv_mul_f32 v{b}, s73, v{KF+r0+1}")
            rb_pair(e, d, a, b)
            for j in (2, 1, 0):
                e(f"v_mul_f32 v{t1}, s{70+j}, v{KF+r0+3-j}\nv_mul_f32 v{t2}, s{70+j}, v{KF+r0+1+3-j}")
                rb_pair(e, d, t1, t2)
                e(f"v_add_f32 v{a}, v{a}, v{t1}\nv_add_f32 v{b}, v{b}, v{t2}")
                rb_pair(e, d, a, b)
            for q, rr in ((t1, r0), (t2, r0 + 1)):
                r = VR + 2 * rr + ch // 2
                e(f"v_lshlrev_b32 v{q}, 16, v{r}" if ch % 2 == 0 else f"v_and_b32 v{q}, 0xffff0000, v{r}")
            e(f"v_mul_f32 v{a}, v{a}, v{t1}\nv_mul_f32 v{b}, v{b}, v{t2}")
            e(f"v_cvt_pk_bf16_f32 v{U+3-pr}, v{b}, v{a}")
        e(f"ds_write_b128 v20, {vr(U,4)} offset:{ch*URS}\ns_nop 1")
    if cfg.get("cvstamp"): WST(e)
    e(f"s_waitcnt vmcnt(0)\nv_add_u32 v22, s{S_XL}, v{V_L16}")
    for i in range(5):
        x = HR + 6 * i
        if i == 4: e("s_mov_b64 exec, 15")
        for k in range(4): e(f"v_alignbyte_b32 v{P+k}, v{x+k+1}, v{x+k}, 2")
        for k in range(4): e(f"v_alignbyte_b32 v{P+4+k}, v{x+k+2}, v{x+k+1}, 2")
        for k in range(4): e(f"v_mov_b32 v{P+8+k}, v{x+k+1}")
        e(f"ds_write_b128 v22, {vr(x,4)} offset:{i*1024}\nds_write_b128 v22, {vr(P,4)} offset:{i*1024 + HPC}")
        e(f"ds_write_b128 v22, {vr(P+8,4)} offset:{i*1024 + 2*HPC}\nds_write_b128 v22, {vr(P+4,4)} offset:{i*1024 + 3*HPC}\ns_waitcnt lgkmcnt(0)")
    e("s_mov_b64 exec, -1\ns_barrier")
    if cfg.get("cvstamp"): WST(e)
    e(f"v_and_b32 v16, 31, v0\nv_lshrrev_b32 v17, 5, v0")
    e(f"v_lshl_add_u32 v18, v17, 3, v16\nv_add_u32 v18, 1, v18\nv_and_b32 v19, 3, v18\nv_and_b32 v18, -4, v18\nv_mul_u32_u24 v19, {HPC}, v19")
    e(f"v_lshl_add_u32 v18, v18, 1, v19\nv_add_u32 v18, s{S_XL}, v18")
    e(f"v_sub_u32 v19, 63, v16\nv_mul_u32_u24 v19, 80, v19\nv_lshl_add_u32 v19, v17, 4, v19\nv_add_u32 v19, s{S_I}, v19")
    e("v_subrev_u32 v21, 2560, v19")
    AC0, AC1, FR, NB = 32, 48, 64, 3
    seq = {}
    def rd(sg):
        b = FR + 16 * (sg % NB); bo = (sg // 2) * 80 + (sg % 2) * 32
        e(f"ds_read_b64 {vr(b,2)}, v18 offset:{sg*32}\nds_read_b64 {vr(b+2,2)}, v18 offset:{sg*32+8}")
        e(f"ds_read_b128 {vr(b+4,4)}, v19 offset:{bo}")
        e(f"ds_read_b128 {vr(b+8,4)}, v21 offset:{bo}")
        seq[sg] = e(f"ds_read_b64 {vr(b+12,2)}, v18 offset:{sg*32+2048}\nds_read_b64 {vr(b+14,2)}, v18 offset:{sg*32+2056}")
    def mm(d, a, b, first): return f"v_mfma_f32_32x32x16_bf16 {vr(d,16)}, {vr(a,4)}, {vr(b,4)}, {'0' if first else vr(d,16)}"
    rd(0); rd(1)
    for sg in range(64):
        b = FR + 16 * (sg % NB)
        e.waitlg(seq[sg])
        e(mm(AC0, b, b + 4, sg == 0))
        if sg + 2 < 64: rd(sg + 2)
        e(mm(AC1, b, b + 8, sg == 0))
        e(mm(AC1, b + 12, b + 4, False))
    if cfg.get("cvstamp"): WST(e)
    e(f"s_bitcmp1_b32 s{S_TMP2}, 0\ns_cbranch_scc1 CV_D1\ns_lshl_b32 s{S_CNT}, s{S_CNT}, 16")
    e.label("CV_D1")
    e(f"s_and_b32 s{S_CNT}, s{S_CNT}, 0xffff0000")
    e(f"v_lshlrev_b32 v22, 5, v17\nv_sub_u32 v22, v19, v22\nv_lshl_add_u32 v22, v17, 3, v22")
    e(f"v_lshlrev_b32 v23, 6, v16\nv_lshl_add_u32 v23, v17, 3, v23")
    e(f"s_lshl_b32 s{S_XG}, s{S_TMP2}, 12\ns_add_u32 s{S_XG}, s{S_XG}, {WS_Y2}")
    e("v_subrev_u32 v24, 2560, v22")
    for tl in range(2):
        for q in range(4):
            e(f"ds_read_b64 {vr(FR + 8*tl + 2*q, 2)}, {'v22' if tl == 0 else 'v24'} offset:{56 - 16*q}")
    e("s_waitcnt lgkmcnt(0)\ns_nop 7")
    for tl in range(2):
        for q in range(4):
            y = (AC0 if tl == 0 else AC1) + 4 * q; u = FR + 8 * tl + 2 * q; t = 96
            e(f"v_and_b32 v{t}, 0xffff0000, v{u+1}\nv_lshlrev_b32 v{t+1}, 16, v{u+1}\nv_and_b32 v{t+2}, 0xffff0000, v{u}\nv_lshlrev_b32 v{t+3}, 16, v{u}")
            for i in range(4): e(f"v_mul_f32 v{t+i}, s{S_CNT}, v{t+i}")
            rb_pair(e, t + 4, t, t + 1); rb_pair(e, t + 4, t + 2, t + 3)
            rb_pair(e, t + 4, y, y + 1); rb_pair(e, t + 4, y + 2, y + 3)
            for i in range(4): e(f"v_add_f32 v{y+i}, v{y+i}, v{t+i}")
            e(f"v_cvt_pk_bf16_f32 v{y}, v{y}, v{y+1}\nv_cvt_pk_bf16_f32 v{y+1}, v{y+2}, v{y+3}")
            e(f"buffer_store_dwordx2 {vr(y,2)}, v23, {WS}, s{S_XG} offen offset:{tl*2048 + q*16} sc1")
    if cfg.get("cvstamp"): e("s_nop 0"); WST(e)
    e("s_waitcnt vmcnt(0)\ns_barrier")
    wait_init(e, "w", 24)
    e(f"s_lshl_b32 s{S_TK}, s{S_TK}, 2\ns_add_u32 s{S_TK}, s{S_TK}, {FL_CONV}")
    flag_store(e, S_TK, 1)
    e.label("CV_END")

def phaseB(e, cfg):
    e("; ---- phase B")
    srd(e, R_A, S_WQ, 0x400000); srd(e, R_B, S_WO, 0x400000)
    wload_addr(e)
    e(f"s_mov_b32 s{S_SEG}, s{S_G}\ns_lshl_b32 s{S_XG}, s{S_SEG}, 15\ns_lshl_b32 s{S_XL}, s{S_W}, 13")
    e(f"v_mov_b32 v{V_XRD}, v{V_L16}")
    for g in x_dma(e):
        for s in g: e(s)
    load_blocks(e, wmat_blocks(R_A, 0) + wo_blocks(R_B, 128), cfg.get('wdb', 6))
    srd(e, R_O, S_OUT, 0x200000); srd(e, R_A, S_GATE, 1024)
    GW = 16
    e(f"buffer_load_dwordx4 {vr(GW,4)}, v{V_L16}, s[{R_A}:{R_A+3}], 0 offen")
    e(f"s_and_b32 s62, s{S_W}, 1\ns_lshr_b32 s63, s{S_W}, 1")
    e(f"v_lshlrev_b32 v8, 2, v{V_G}\nv_sub_u32 v8, v{V_C}, v8\ns_lshl_b32 s{S_TMP}, s62, 4\nv_add_u32 v8, s{S_TMP}, v8\nv_subrev_u32 v9, 16, v8")
    e(f"v_lshrrev_b32 v25, 2, v{V_C}\nv_lshl_add_u32 v25, v{V_G}, 2, v25\nv_and_b32 v24, 1, v0\nv_lshlrev_b32 v24, 3, v24\nv_lshl_add_u32 v10, v25, 4, v24\nv_add_u32 v10, {W_KMU}, v10")
    e(f"s_lshl_b32 s{S_TMP}, s{S_W}, 9\ns_add_u32 s{S_TMP}, s{S_TMP}, {W_KMU}\nv_lshlrev_b32 v22, 4, v{V_C}\nv_lshl_add_u32 v22, v{V_G}, 2, v22\nv_add_u32 v22, s{S_TMP}, v22")
    e(f"s_lshl_b32 s{S_TMP}, s{S_W}, 9\nv_lshl_add_u32 v23, v0, 3, s{S_TMP}")
    e(f"v_and_b32 v24, 1, v{V_G}\nv_lshl_add_u32 v11, v24, 5, v{V_C}\nv_lshlrev_b32 v11, 3, v11\ns_lshl_b32 s{S_TMP}, s63, 10\ns_add_u32 s{S_TMP}, s{S_TMP}, 2048\nv_add_u32 v11, s{S_TMP}, v11")
    e(f"v_lshrrev_b32 v24, 2, v0\nv_and_b32 v25, 3, v0\nv_lshlrev_b32 v12, 10, v24\nv_lshl_add_u32 v12, v25, 8, v12")
    e(f"s_lshr_b32 s{S_TMP}, s{S_H}, 4\ns_lshl_b32 s{S_TMP}, s{S_TMP}, 14\ns_and_b32 s{S_TMP2}, s{S_H}, 15\ns_lshl_b32 s{S_TMP2}, s{S_TMP2}, 4\ns_add_u32 s{S_TMP}, s{S_TMP}, s{S_TMP2}\nv_add_u32 v12, s{S_TMP}, v12")
    e(f"s_lshl_b32 s{S_TMP}, s{S_W}, 3\nv_lshrrev_b32 v24, 3, v0\nv_add_u32 v24, s{S_TMP}, v24\nv_and_b32 v25, 7, v0")
    e(f"v_lshrrev_b32 v26, 4, v24\nv_and_b32 v27, 15, v24\nv_lshlrev_b32 v13, 10, v26\nv_lshl_add_u32 v13, v27, 4, v13")
    e(f"v_lshrrev_b32 v26, 1, v25\nv_lshl_add_u32 v13, v26, 8, v13\nv_and_b32 v26, 1, v25\nv_lshl_add_u32 v13, v26, 3, v13\nv_add_u32 v13, {W_RED}, v13")
    e(f"s_lshl_b32 s{S_TMP}, s{S_H}, 16\nv_lshlrev_b32 v14, 13, v25\nv_lshl_add_u32 v14, v24, 1, v14\nv_add_u32 v14, s{S_TMP}, v14")
    e(f"s_lshl_b32 s{S_TMP}, s{S_H}, 5\nv_lshlrev_b32 v15, 10, v24\nv_lshl_add_u32 v15, v25, 2, v15\nv_add_u32 v15, s{S_TMP}, v15")
    e(f"v_and_b32 v20, 31, v0\nv_lshlrev_b32 v20, 7, v20\nv_lshlrev_b32 v21, 2, v24")
    e(f"s_lshl_b32 s{S_CF}, s{S_H}, 7\ns_add_u32 s{S_CF}, s{S_CF}, {FL_CFLAG}\ns_mov_b32 s{S_SC}, 0x3e0293ee")
    e(f"v_lshlrev_b32 v24, 2, v0\ns_mov_b32 s{S_OFF}, {FL_CONV}\ns_mov_b32 s{S_OFF2}, {FL_CONV+256}\ns_lshl_b32 s{S_CNT}, s{S_H}, 8")
    e(f"v_mov_b32 v26, 0\ns_mov_b32 s{S_CHN}, 0")
    e(f"s_mov_b32 s{S_PREV}, -1")
    KF, VF, XF, ACC, QF, KM, VM, SS_, PB, OA, TT = 32, 64, 80, 112, 232, 144, 160, 216, 180, 188, 224
    X0, X1, M, MX = SS_, SS_ + 4, 168, 27
    RB, NR, FA = 80, 32, 208
    S_RT = 64
    def final(half=False):
        cd = e.newlabel("CVD")
        e(f"s_cmp_eq_u32 s{S_CHN}, 1\ns_cbranch_scc1 {cd}\ns_mov_b32 s{S_CHN}, 1\ns_mov_b32 s{S_OFF}, {FL_CONV}\ns_mov_b32 s{S_OFF2}, {FL_CONV+256}")
        poll_all(e, "CVW", 24, f"s{S_OFF}", 1, 25, 32, False)
        poll_all(e, "CVW", 24, f"s{S_OFF2}", 1, 25, 32, True)
        e.label(cd)
        e(f"s_lshl_b32 s{S_TMP}, s{S_PREV}, 6\ns_add_u32 s{S_TMP}, s{S_TMP}, {WS_Y2}\ns_add_u32 s{S_I}, s{S_TMP}, 4096")
        e(f"buffer_load_ushort v{TT+4}, v14, {WS}, s{S_TMP} offen sc1\nbuffer_load_ushort v{TT+5}, v14, {WS}, s{S_I} offen sc1")
        e(f"s_lshl_b32 s{S_CNT}, s{S_PREV}, 15\nbuffer_load_dword v{TT+6}, v15, s[{R_X}:{R_X+3}], s{S_CNT} offen")
        e(f"s_lshl_b32 s{S_OFF2}, s{S_PREV}, 12\ns_add_u32 s{S_OFF2}, s{S_OFF2}, {FL_O2}")
        WST(e)
        poll_all(e, "OW", 20, f"s{S_OFF2}", 1, TT + 2, cfg.get("osleep", 4))
        WST(e)
        e(f"s_lshl_b32 s{S_TMP}, s{S_PREV}, 7\ns_add_u32 s{S_TMP}, s{S_TMP}, {WS_G}\nbuffer_load_dword v{TT+7}, v21, {WS}, s{S_TMP} offen sc1")
        e(f"s_mul_i32 s{S_OFF}, s{S_PREV}, 37\ns_lshr_b32 s{S_OFF}, s{S_OFF}, 9\ns_mul_i32 s{S_OFF}, s{S_OFF}, 14\ns_sub_u32 s{S_OFF}, s{S_PREV}, s{S_OFF}\ns_lshl_b32 s{S_OFF}, s{S_OFF}, 18\ns_lshl_b32 s{S_TMP}, s{S_W}, 16\ns_add_u32 s{S_OFF}, s{S_OFF}, s{S_TMP}\ns_add_u32 s{S_OFF}, s{S_OFF}, {WS_O}")
        NL = 32 if half else 64
        if half: e(f"s_lshl_b32 s{S_TMP}, s{S_RT}, 12\ns_add_u32 s{S_OFF}, s{S_OFF}, s{S_TMP}")
        def ld(n):
            if n % 4 == 0 and n > 0: e(f"s_add_u32 s{S_OFF}, s{S_OFF}, {8192 if half else 4096}")
            e(f"buffer_load_dwordx4 {vr(RB + 4 * (n % NR), 4)}, v{V_L16}, {WS}, s{S_OFF} offen offset:{(n % 4) * 1024} sc1")
        for n in range(NR): ld(n)
        for n in range(NL):
            hh, rt, js = (n // 4, 0, n % 4) if half else (n // 8, (n // 4) % 2, n % 4)
            e(f"s_waitcnt vmcnt({min(NL - 1 - n, NR - 1)})")
            a = FA + 4 * rt
            e(mfd(a, 128 + (hh * 4 + js) * 4, RB + 4 * (n % NR), "0" if n == 4 * rt else a, "a", "v"))
            if n + NR < NL: ld(n + NR)
        e(f"s_lshl_b32 s{S_TMP}, s{S_W}, 11\ns_add_u32 s{S_TMP}, s{S_TMP}, {W_RED}")
        if half: e(f"s_lshl_b32 s{S_I}, s{S_RT}, 10\ns_add_u32 s{S_TMP}, s{S_TMP}, s{S_I}")
        e(f"v_add_u32 v{V_T}, s{S_TMP}, v{V_L16}\ns_nop 5")
        e(f"ds_write_b128 v{V_T}, {vr(FA,4)}")
        if not half: e(f"ds_write_b128 v{V_T}, {vr(FA+4,4)} offset:1024")
        e("s_waitcnt lgkmcnt(0)\ns_barrier")
        B0 = RB
        for w in range(4): e(f"ds_read_b64 {vr(B0+2*w,2)}, v13 offset:{w*2048}")
        y0, y1, q, g = TT + 4, TT + 5, TT + 6, TT + 7
        e(f"v_lshlrev_b32 v{y0}, 16, v{y0}\nv_lshlrev_b32 v{y1}, 16, v{y1}\nv_lshlrev_b32 v{B0+8}, 16, v{q}\nv_and_b32 v{B0+9}, 0xffff0000, v{q}")
        e(f"v_mul_f32 v{y0}, v{y0}, v{B0+8}\nv_mul_f32 v{y1}, v{y1}, v{B0+9}")
        rb_pair(e, B0 + 10, y0, y1)
        e(f"v_mul_f32 v{y0}, v{y0}, v{g}\nv_mul_f32 v{y1}, v{y1}, v{g}")
        rb_pair(e, B0 + 10, y0, y1)
        e(f"v_sub_f32 v{g}, 1.0, v{g}\nv_cvt_pk_bf16_f32 v{g}, v{g}, v{g}\nv_lshlrev_b32 v{g}, 16, v{g}\ns_waitcnt lgkmcnt(0)")
        e(f"v_add_f32 v{B0}, v{B0}, v{B0+2}\nv_add_f32 v{B0+1}, v{B0+1}, v{B0+3}\nv_add_f32 v{B0+4}, v{B0+4}, v{B0+6}\nv_add_f32 v{B0+5}, v{B0+5}, v{B0+7}")
        e(f"v_add_f32 v{B0}, v{B0}, v{B0+4}\nv_add_f32 v{B0+1}, v{B0+1}, v{B0+5}")
        rb_pair(e, B0 + 10, B0, B0 + 1)
        e(f"v_mul_f32 v{B0}, v{B0}, v{g}\nv_mul_f32 v{B0+1}, v{B0+1}, v{g}")
        rb_pair(e, B0 + 10, B0, B0 + 1)
        e(f"v_add_f32 v{B0}, v{B0}, v{y0}\nv_add_f32 v{B0+1}, v{B0+1}, v{y1}\nv_cvt_pk_bf16_f32 v{B0}, v{B0}, v{B0+1}")
        if half: e(f"s_cmp_eq_u32 s63, s{S_RT}\ns_cselect_b64 exec, -1, 0")
        e(f"buffer_store_dword v{B0}, v15, s[{R_O}:{R_O+3}], s{S_CNT} offen {cfg.get('outst', '')}")
        if half: e("s_mov_b64 exec, -1")
    e.label("PB_LOOP")
    e(f"s_lshl_b32 s{S_CNT}, s{S_H}, 6\ns_add_u32 s{S_CNT}, s{S_CNT}, s{S_SEG}\ns_lshl_b32 s{S_CNT}, s{S_CNT}, 2")
    poll_all(e, "KVW", 26, f"s{S_CNT}", 1, 25, 16, False)
    e("s_waitcnt vmcnt(0)\ns_barrier")
    WST(e)
    e(f"s_lshl_b32 s{S_OFF}, s{S_SEG}, 19\ns_lshl_b32 s{S_TMP}, s{S_H}, 14\ns_add_u32 s{S_OFF}, s{S_OFF}, s{S_TMP}\ns_add_u32 s{S_OFF}, s{S_OFF}, {WS_KV}")
    e(f"s_add_u32 s{S_OFF2}, s{S_OFF}, 4096\ns_lshl_b32 s{S_TMP}, s63, 12\ns_add_u32 s{S_CNT}, s{S_OFF}, s{S_TMP}\ns_add_u32 s{S_CNT}, s{S_CNT}, 8192")
    lds_ = []
    for js in range(4):
        lds_.append(f"buffer_load_dwordx4 {vr(KF+4*js,4)}, v{V_L16}, {WS}, s{S_OFF} offen offset:{js*1024} sc1")
        lds_.append(f"buffer_load_dwordx4 {vr(KF+16+4*js,4)}, v{V_L16}, {WS}, s{S_OFF2} offen offset:{js*1024} sc1")
        lds_.append(f"buffer_load_dwordx4 {vr(VF+4*js,4)}, v{V_L16}, {WS}, s{S_CNT} offen offset:{js*1024} sc1")
    seq = {}
    def rd(n):
        s, rt = n // 2, n % 2
        seq[n] = e(f"ds_read_b128 {vr(XF + 4 * (n % 8), 4)}, v{V_XRD} offset:{(rt * 16 + s) * 1024}")
    sg = e(f"ds_read_b128 {vr(TT,4)}, v12")
    for n in range(6): rd(n)
    for n in range(32):
        s, rt = n // 2, n % 2
        e.waitlg(seq[n])
        x = XF + 4 * (n % 8)
        for t in range(2):
            a = ACC + 4 * (t * 2 + rt)
            e(mfd(a, (t * 16 + s) * 4, x, "0" if s == 0 else a, "a", "v"))
            if t == 0 and n + 6 < 32: rd(n + 6)
        if n % 2 == 1 and n // 2 < 12: e(lds_[n // 2])
    for i in range(4):
        e(f"v_lshlrev_b32 v{TT+4}, 16, v{TT+i}\nv_and_b32 v{TT+5}, 0xffff0000, v{TT+i}\nv_lshlrev_b32 v{TT+6}, 16, v{GW+i}\nv_and_b32 v{TT+7}, 0xffff0000, v{GW+i}")
        e(f"v_mul_f32 v{TT+4}, v{TT+4}, v{TT+6}\nv_mul_f32 v{TT+5}, v{TT+5}, v{TT+7}")
        rb_pair(e, TT + 6, TT + 4, TT + 5)
        e(f"v_add_f32 v{TT+i}, v{TT+4}, v{TT+5}")
    e(f"v_add_f32 v{TT}, v{TT}, v{TT+1}\nv_add_f32 v{TT+2}, v{TT+2}, v{TT+3}\nv_add_f32 v{TT}, v{TT}, v{TT+2}")
    for rt in range(2):
        o = QF + 4 * rt
        for t in range(2):
            a = ACC + 4 * (t * 2 + rt)
            e(f"v_cvt_pk_bf16_f32 v{o+2*t}, v{a}, v{a+1}\nv_cvt_pk_bf16_f32 v{o+2*t+1}, v{a+2}, v{a+3}")
    e(f"s_lshl_b32 s{S_TMP}, s{S_W}, 10\ns_add_u32 s{S_TMP}, s{S_TMP}, {W_QX}\nv_add_u32 v{V_T}, s{S_TMP}, v{V_L16}")
    e(f"ds_write_b128 v{V_T}, {vr(QF,4)}\nds_write_b128 v{V_T}, {vr(QF+4,4)} offset:4096")
    for ror in (1, 2, 4, 8):
        e(f"s_nop 1\nv_add_f32_dpp v{TT}, v{TT}, v{TT} row_ror:{ror} row_mask:0xf bank_mask:0xf")
    for op in ("v_permlane16_swap_b32", "v_permlane32_swap_b32"):
        e(f"v_mov_b32 v{TT+1}, v{TT}\ns_nop 1\n{op} v{TT}, v{TT+1}\nv_add_f32 v{TT}, v{TT}, v{TT+1}")
    e(f"v_cvt_pk_bf16_f32 v{TT}, v{TT}, v{TT}\nv_lshlrev_b32 v{TT}, 16, v{TT}\nv_mul_f32 v{TT}, 0xbfb8aa3b, v{TT}\nv_exp_f32 v{TT}, v{TT}\ns_nop 0")
    e(f"v_add_f32 v{TT}, 1.0, v{TT}\nv_rcp_f32 v{TT}, v{TT}\ns_nop 0\nv_cvt_pk_bf16_f32 v{TT}, v{TT}, v{TT}\nv_lshlrev_b32 v{TT}, 16, v{TT}")
    e(f"s_lshl_b32 s{S_TMP}, s{S_SEG}, 5\ns_add_u32 s{S_TMP}, s{S_TMP}, s{S_H}\ns_lshl_b32 s{S_TMP}, s{S_TMP}, 2\ns_add_u32 s{S_TMP}, s{S_TMP}, {WS_G}")
    e(f"v_mov_b32 v{V_T2}, 0\ns_mov_b64 exec, s[{S_W0M}:{S_W0M+1}]\nbuffer_store_dword v{TT}, v{V_T2}, {WS}, s{S_TMP} offen sc1\ns_mov_b64 exec, -1")
    if cfg.get("wtouch"):
        e(f"s_add_u32 s{S_TMP}, s{S_OFF}, {7 << 19}\ns_lshl_b32 s{S_TMP2}, s{S_SEG}, 17\ns_add_u32 s{S_TMP2}, s{S_TMP2}, {WS_KVM + (7 << 17)}\ns_mov_b64 exec, s[{S_W0M}:{S_W0M+1}]")
        e(f"buffer_load_dword v252, off, {WS}, s{S_TMP} sc1\nbuffer_load_dword v253, off, {WS}, s{S_TMP2} sc1\ns_mov_b64 exec, -1")
    e("s_waitcnt lgkmcnt(0)\ns_barrier")
    e(f"s_add_u32 s{S_XG}, s{S_XG}, {7 << 15}\ns_xor_b32 s{S_XL}, s{S_XL}, 0x8000")
    e(f"s_lshl_b32 s{S_TMP}, s62, 12\ns_add_u32 s{S_TMP}, s{S_TMP}, {W_QX}\nv_add_u32 v{V_T}, s{S_TMP}, v{V_L16}")
    for js in range(4): e(f"ds_read_b128 {vr(QF+4*js,4)}, v{V_T} offset:{js*1024}")
    e(f"v_xor_b32 v{V_XRD}, 0x8000, v{V_XRD}\nv_xor_b32 v12, 0x8000, v12")
    e(f"s_waitcnt vmcnt({3 if cfg.get('wtouch') else 1}) lgkmcnt(0)")
    for js in range(4):
        c = lambda r: "0" if js == 0 else r
        e(mfd(X0, KF + 4 * js, QF + 4 * js, c(X0))); e(mfd(X1, KF + 16 + 4 * js, QF + 4 * js, c(X1)))
    for g in x_dma(e):
        for s in g: e(s)
    e(f"v_mov_b32 v{TT}, 0xf149f2ca")
    for kt in range(2):
        for i in range(4):
            e(f"v_cmp_le_i32 vcc, {i}, v{8+kt}\ns_nop 1\nv_cndmask_b32 v{SS_+4*kt+i}, v{TT}, v{SS_+4*kt+i}, vcc")
    e(f"v_max3_f32 v{MX}, v{X0}, v{X0+1}, v{X0+2}\nv_max3_f32 v{TT}, v{X1}, v{X1+1}, v{X1+2}\nv_max3_f32 v{MX}, v{MX}, v{X0+3}, v{X1+3}\nv_max_f32 v{MX}, v{MX}, v{TT}")
    e(f"s_cmp_eq_u32 s{S_PREV}, -1\ns_cbranch_scc1 PB_NOPREV")
    final()
    e.label("PB_NOPREV")
    e(f"s_lshl_b32 s{S_OFF2}, s{S_SEG}, 17\ns_lshl_b32 s{S_TMP}, s{S_H}, 12\ns_add_u32 s{S_OFF2}, s{S_OFF2}, s{S_TMP}\ns_add_u32 s{S_OFF2}, s{S_OFF2}, {WS_KVM}")
    e(f"s_mul_i32 s{S_OFF}, s{S_SEG}, 37\ns_lshr_b32 s{S_OFF}, s{S_OFF}, 9\ns_mul_i32 s{S_OFF}, s{S_OFF}, 14\ns_sub_u32 s{S_OFF}, s{S_SEG}, s{S_OFF}\ns_lshl_b32 s{S_OFF}, s{S_OFF}, 18\ns_lshl_b32 s{S_TMP}, s{S_H}, 13\ns_add_u32 s{S_OFF}, s{S_OFF}, s{S_TMP}")
    def kvm_ld():
        e(f"buffer_load_dwordx2 {vr(KM,2)}, v23, {WS}, s{S_OFF2} offen sc1")
        for i in range(2):
            for b in range(2): e(f"buffer_load_dwordx2 {vr(VM+4*i+2*b,2)}, v11, {WS}, s{S_OFF2} offen offset:{i*512 + b*128} sc1")
    WST(e)
    if cfg.get("dpoll"):
        e(f"s_cmp_ge_u32 s{S_SEG}, {DP_SEG}\ns_cbranch_scc1 PB_DIRECT")
    e(f"v_mov_b32 v{TT+1}, s{S_CF}\ns_add_u32 s{S_I}, s{S_SEG}, 1")
    poll_all(e, "CHW", TT + 1, "0", f"s{S_I}", TT + 2, cfg.get("csleep", 4))
    kvm_ld()
    e("s_waitcnt vmcnt(0)")
    if cfg.get("dpoll"):
        e("s_branch PB_HAVE")
        e.label("PB_DIRECT")
        e.label("PB_DL")
        kvm_ld()
        e(f"s_add_u32 s{S_SPIN}, s{S_SPIN}, 1\ns_waitcnt vmcnt(0)")
        e(f"v_max3_u32 v{TT}, v{KM}, v{KM+1}, v{VM}")
        for i in range(1, 8, 2): e(f"v_max3_u32 v{TT}, v{TT}, v{VM+i}, v{VM+min(i+1,7)}")
        e(f"v_cmp_eq_u32 vcc, -1, v{TT}\ns_cbranch_vccz PB_HAVE\ns_sleep {cfg.get('dsleep', 6)}\ns_cmp_lt_u32 s{S_SPIN}, {SPIN_MAX}\ns_cbranch_scc1 PB_DL")
        e.label("PB_HAVE")
    WST(e)
    e(f"ds_write2_b32 v22, v{KM}, v{KM+1} offset0:0 offset1:64")
    for i in range(2): e(f"v_swap_b32 v{VM+4*i+1}, v{VM+4*i+2}")
    e(f"v_mov_b32 v{TT}, 0xf149f2ca\ns_waitcnt lgkmcnt(0)\ns_barrier")
    for js in range(4):
        for t in range(2): e(f"ds_read_b64_tr_b16 {vr(KM+4*js+2*t,2)}, v10 offset:{js*512 + t*256}")
    for js in range(4):
        e(f"s_waitcnt lgkmcnt({6-2*js})")
        e(mfd(M, KM + 4 * js, QF + 4 * js, "0" if js == 0 else M))
    e(f"s_add_u32 s{S_OFF}, s{S_OFF}, {WS_O}\ns_lshl_b32 s{S_TMP}, s62, 12\ns_add_u32 s{S_OFF}, s{S_OFF}, s{S_TMP}\ns_lshl_b32 s{S_TMP}, s63, 11\ns_add_u32 s{S_OFF}, s{S_OFF}, s{S_TMP}")
    e(f"s_lshl_b32 s{S_OFF2}, s{S_SEG}, 12\ns_add_u32 s{S_OFF2}, s{S_OFF2}, {FL_O2}\ns_lshl_b32 s{S_TMP}, s{S_H}, 7\ns_add_u32 s{S_CNT}, s{S_OFF2}, s{S_TMP}")
    e("s_mov_b32 exec_lo, 0")
    for i in range(4): e(f"v_mov_b32 v{M+i}, v{TT}")
    e("s_mov_b32 exec_lo, -1")
    mx, t2 = MX, TT + 2
    e(f"v_max3_f32 v{mx}, v{mx}, v{M}, v{M+1}\nv_max3_f32 v{mx}, v{mx}, v{M+2}, v{M+3}")
    for op in ("v_permlane16_swap_b32", "v_permlane32_swap_b32"):
        e(f"v_mov_b32 v{t2}, v{mx}\ns_nop 1\n{op} v{mx}, v{t2}\nv_max_f32 v{mx}, v{mx}, v{t2}")
    e(f"v_mul_f32 v{mx}, s{S_SC}, v{mx}")
    EE = [SS_ + i for i in range(8)] + [M + i for i in range(4)]
    for x in EE: e(f"v_fma_f32 v{x}, v{x}, s{S_SC}, -v{mx}")
    for x in EE: e(f"v_exp_f32 v{x}, v{x}")
    e(f"s_nop 0\nv_add_f32 v{mx}, v{EE[0]}, v{EE[1]}")
    for x in EE[2:]: e(f"v_add_f32 v{mx}, v{mx}, v{x}")
    for op in ("v_permlane16_swap_b32", "v_permlane32_swap_b32"):
        e(f"v_mov_b32 v{t2}, v{mx}\ns_nop 1\n{op} v{mx}, v{t2}\nv_add_f32 v{mx}, v{mx}, v{t2}")
    e(f"v_rcp_f32 v{mx}, v{mx}\ns_nop 0")
    for x in EE: e(f"v_mul_f32 v{x}, v{x}, v{mx}")
    for i in range(4): e(f"v_cvt_pk_bf16_f32 v{PB+i}, v{SS_+2*i}, v{SS_+2*i+1}")
    e(f"v_cvt_pk_bf16_f32 v{PB+4}, v{M}, v{M+1}\nv_cvt_pk_bf16_f32 v{PB+5}, v{M+2}, v{M+3}\ns_nop 0")
    for T in range(4): e(mfd(OA + 4 * T, VF + 4 * T, PB, "0"))
    for T in range(4):
        e(f"v_mfma_f32_16x16x16_bf16 {vr(OA+4*T,4)}, {vr(VM+2*T,2)}, {vr(PB+4,2)}, {vr(OA+4*T,4)}")
    e("s_nop 4")
    for j in range(2):
        for t in range(2):
            a = OA + 4 * (2 * j + t)
            e(f"v_cvt_pk_bf16_f32 v{QF+4*j+2*t}, v{a}, v{a+1}\nv_cvt_pk_bf16_f32 v{QF+4*j+2*t+1}, v{a+2}, v{a+3}")
    def ostore(bits):
        for j in range(2): e(f"buffer_store_dwordx4 {vr(QF+4*j,4)}, v{V_L16}, {WS}, s{S_OFF} offen offset:{j*1024}{bits}")
        e("s_waitcnt vmcnt(0)\ns_barrier")
        e(f"v_mov_b32 v{V_T}, 1\ns_mov_b64 exec, s[{S_W0M}:{S_W0M+1}]\nbuffer_store_dword v{V_T}, off, {WS}, s{S_CNT}{bits}\ns_mov_b64 exec, -1")
    if cfg.get("ofast"):
        e(f"s_cmp_ge_u32 s{S_MODE}, 32\ns_cbranch_scc0 PB_OSLOW")
        ostore("")
        e("s_branch PB_ODONE")
        e.label("PB_OSLOW")
    ostore(" sc1")
    e.label("PB_ODONE")
    e(f"s_mov_b32 s{S_PREV}, s{S_SEG}\ns_add_u32 s{S_SEG}, s{S_SEG}, 7\ns_cmp_lt_u32 s{S_SEG}, 64\ns_cbranch_scc1 PB_LOOP")
    if cfg.get("split"):
        e(f"s_mov_b32 s{S_RT}, 0\ns_cmp_ge_u32 s{S_PREV}, 61\ns_cbranch_scc1 PB_HALF")
        final()
        e(f"s_cmp_eq_u32 s{S_PREV}, 60\ns_cbranch_scc1 PB_END\ns_sub_u32 s{S_PREV}, 120, s{S_PREV}\ns_mov_b32 s{S_RT}, 1\ns_barrier")
        e.label("PB_HALF")
        final(True)
        e.label("PB_END")
    else:
        final()

def worker(e, cfg):
    e(f"s_sub_u32 s{S_G}, s{S_GRP}, 1\ns_mov_b32 s{S_CNT}, 0")
    e("v_mov_b32 v15, v2")
    lane_consts(e, f"v{V_C}", f"v{V_G}")
    e(f"v_lshlrev_b32 v{V_L16}, 4, v0\nv_mov_b32 v{V_XRD}, v{V_L16}")
    e(f"s_lshr_b32 s{S_TMP}, s{S_W}, 1\ns_lshl_b32 s{S_TMP}, s{S_TMP}, 14\ns_and_b32 s{S_TMP2}, s{S_W}, 1\ns_lshl_b32 s{S_TMP2}, s{S_TMP2}, 9\ns_add_u32 s{S_TMP}, s{S_TMP}, s{S_TMP2}")
    e(f"v_lshlrev_b32 v{V_XSRC}, 10, v{V_C}\nv_lshl_add_u32 v{V_XSRC}, v{V_G}, 4, v{V_XSRC}\nv_add_u32 v{V_XSRC}, s{S_TMP}, v{V_XSRC}")
    srd(e, R_X, S_Q, 0x200000)
    _cfg.update(cfg)
    if cfg.get("pref") in (2, 4):
        pc = cfg.get("prefc")
        if pc: e(f"s_cmp_lt_u32 s{S_G}, 3\ns_cbranch_scc1 PF_E")
        e(f"s_lshl_b32 s{S_TMP2}, s{S_G}, 5\ns_add_u32 s{S_TMP2}, s{S_TMP2}, s{S_H}\nv_lshlrev_b32 v16, 6, v15")
        if pc: e(f"s_sub_u32 s{S_TMP2}, s{S_TMP2}, 96")
        if cfg.get("pford"):
            e(f"s_lshl_b32 s{S_TMP}, s{S_TMP2}, 14\nv_add_u32 v17, s{S_TMP}, v16\nv_add_u32 v18, 0x200000, v17")
            seqs = {1: [(S_WQ, 18), (S_WQ, 17), (S_WK, 17), (S_WK, 18), (S_WV, 17), (S_WV, 18), (S_WO, 17), (S_WO, 18)],
                    2: [(S_WK, 17), (S_WK, 18), (S_WV, 17), (S_WV, 18), (S_WO, 17), (S_WO, 18), (S_WQ, 17)],
                    3: [(S_WV, 17), (S_WV, 18), (S_WO, 17), (S_WO, 18), (S_WQ, 17)]}[cfg["pford"]]
            for i, (p, v) in enumerate(seqs): e(f"global_load_dword v{248 + i % 4}, v{v}, s[{p}:{p+1}]")
        else:
            e.label("PF_L")
            e(f"s_lshl_b32 s{S_TMP}, s{S_TMP2}, 14\nv_add_u32 v17, s{S_TMP}, v16")
            for i, p in enumerate([S_WQ, S_WK, S_WV, S_WO][:cfg["pref"]] if cfg["pref"] == 4 else [S_WQ, S_WO]):
                e(f"global_load_dword v{248+i}, v17, s[{p}:{p+1}]")
            e(f"s_add_u32 s{S_TMP2}, s{S_TMP2}, {128 if pc else 224}\ns_cmp_lt_u32 s{S_TMP2}, 256\ns_cbranch_scc1 PF_L")
        e.label("PF_E")
    if cfg.get("wstamp"): e("s_mov_b32 s101, 0")
    WST(e)
    if cfg.get("hold") is not None:
        e(f"s_cmp_lt_u32 s{S_G}, {cfg['hold']}\ns_cbranch_scc{0 if cfg.get('holdinv') else 1} HOLD_END")
        e.label("HOLD")
        e(f"s_sleep 32\ns_memrealtime s[70:71]\ns_waitcnt lgkmcnt(0)\ns_sub_u32 s70, s70, s3\ns_cmp_lt_u32 s70, {cfg['holdus']*100}\ns_cbranch_scc1 HOLD")
        e.label("HOLD_END")
    if not cfg.get("noconv"): conv(e, cfg)
    WST(e)
    wload_addr(e)
    phaseA(e, cfg)
    WST(e)
    phaseB(e, cfg)
    WST(e)
    if cfg.get("dbgt"):
        e(f"s_memrealtime s[70:71]\ns_waitcnt lgkmcnt(0)\ns_sub_u32 s70, s70, s3\nv_mov_b32 v20, s70\nv_mov_b32 v21, 20\ns_mov_b64 exec, s[{S_W0M}:{S_W0M+1}]\nglobal_atomic_umax v21, v20, s[{S_DBG}:{S_DBG+1}]")
```

```python
import sys, json
from asmlib import Em, vr, check_hazards
from layout import *
import chain as C
from chain import *

KNAME = "gated_mix__ssm_conv_h3__memory_aug_recurrent_mem_tr__prompt_kernel"

def common_prologue(e, cfg):
    e("s_cmp_ge_u32 s2, 256\ns_cbranch_scc1 KEND")
    e("s_load_dwordx8 s[4:11], s[0:1], 0\ns_load_dwordx4 s[12:15], s[0:1], 32\ns_load_dwordx2 s[16:17], s[0:1], 56")
    e("s_load_dwordx8 s[20:27], s[0:1], 64\ns_load_dwordx4 s[28:31], s[0:1], 104\ns_load_dwordx4 s[32:35], s[0:1], 120")
    e(f"s_getreg_b32 s{S_XCC}, hwreg(HW_REG_XCC_ID)\ns_and_b32 s{S_XCC}, s{S_XCC}, 7")
    if cfg.get("fakexcc") == 1: e(f"s_lshr_b32 s{S_XCC}, s2, 6")
    if cfg.get("fakexcc") == 2: e(f"s_lshr_b32 s{S_XCC}, s2, 5\ns_max_u32 s{S_XCC}, s{S_XCC}, 1")
    e(f"v_lshrrev_b32 v1, 6, v0\nv_mov_b32 v2, v0\nv_and_b32 v0, 63, v0\nv_readfirstlane_b32 s{S_W}, v1")
    e("s_waitcnt lgkmcnt(0)")
    srd(e, R_WS, S_WS, WS_SIZE)
    WS = f"s[{R_WS}:{R_WS+3}]"
    DBG = f"s[{S_DBG}:{S_DBG+1}]"
    e(f"s_cmp_eq_u32 s{S_W}, 0\ns_cbranch_scc0 PRO_NORANK")
    e(f"s_and_b32 s{S_TMP}, s{S_XCC}, 3\ns_lshl_b32 s{S_TMP}, s{S_TMP}, 6\ns_lshr_b32 s{S_TMP2}, s{S_XCC}, 2\ns_lshl_b32 s{S_TMP2}, s{S_TMP2}, 2\ns_add_u32 s{S_TMP}, s{S_TMP}, s{S_TMP2}")
    e(f"v_mov_b32 v3, s{S_TMP}\nv_mov_b32 v4, 1\ns_mov_b64 exec, 1")
    e(f"global_atomic_add v5, v3, v4, {DBG} sc0\ns_mov_b64 exec, -1")
    e.label("PRO_NORANK")
    if cfg.get("pref") == 1:
        e(f"s_barrier\ns_lshl_b32 s{S_TMP}, s2, 14\nv_lshl_add_u32 v17, v2, 6, s{S_TMP}")
        for i, p in enumerate([S_WQ, S_WK, S_WV, S_WO]): e(f"global_load_dword v{248+i}, v17, s[{p}:{p+1}]")
        e("s_waitcnt vmcnt(4)")
    if cfg.get("cpf"):
        e(f"s_getpc_b64 s[{S_TMP+3}:{S_TMP+4}]")
        e.label("CPF_BASE")
        e(f"v_lshlrev_b32 v3, 6, v2\ns_cmp_eq_u32 s{S_W}, 0\ns_cbranch_scc1 CPF_END\nv_subrev_u32 v3, 4096, v3")
        for i in range(cfg["cpf"]):
            e(f"v_cmp_gt_u32 vcc, KEND-CPF_BASE, v3\ns_and_saveexec_b64 s[{S_TMP+5}:{S_TMP+6}], vcc\ns_cbranch_execz CPF_R")
            e(f"global_load_dword v{240+i}, v3, s[{S_TMP+3}:{S_TMP+4}]\nv_add_u32 v3, 12288, v3")
        e.label("CPF_R")
        e("s_mov_b64 exec, -1\ns_branch PRO_W")
        e.label("CPF_END")
    if cfg.get("pref") != 1: e("s_waitcnt vmcnt(0)")
    e(f"s_cmp_eq_u32 s{S_W}, 0\ns_cbranch_scc0 PRO_W")
    e(f"v_readfirstlane_b32 s{S_H}, v5\ns_mov_b32 s{S_GRP}, s{S_XCC}")
    e(f"s_cmp_lt_u32 s{S_H}, 32\ns_cbranch_scc1 PRO_HAVE")
    e(f"v_mov_b32 v3, {DBG_OVF}\ns_mov_b64 exec, 1\nglobal_atomic_add v5, v3, v4, {DBG} sc0\ns_mov_b64 exec, -1")
    e(f"v_lshlrev_b32 v9, 2, v0\ns_mov_b32 s{S_SPIN}, 0")
    e.label("PRO_OV")
    e(f"global_load_dword v10, v9, {DBG} sc1\ns_add_u32 s{S_SPIN}, s{S_SPIN}, 1\ns_waitcnt vmcnt(0)\ns_mov_b32 s{S_TMP2}, 0")
    for x in range(8):
        e(f"v_readlane_b32 s{S_TMP}, v10, {DBG_XCC(x)//4}\ns_add_u32 s{S_TMP2}, s{S_TMP2}, s{S_TMP}")
    e(f"s_cmp_ge_u32 s{S_TMP2}, 256\ns_cbranch_scc1 PRO_OV2\ns_sleep 8\ns_cmp_lt_u32 s{S_SPIN}, {SPIN_MAX}\ns_cbranch_scc1 PRO_OV")
    e.label("PRO_OV2")
    e(f"v_readfirstlane_b32 s{S_TMP2}, v5\ns_mov_b32 s{S_GRP}, 7\ns_mov_b32 s{S_H}, 31")
    for x in range(8):
        nl = f"PRO_OVN{x}"
        e(f"v_readlane_b32 s{S_TMP}, v10, {DBG_XCC(x)//4}\ns_min_u32 s{S_TMP}, s{S_TMP}, 32\ns_add_u32 s{S_SPIN}, s{S_TMP}, s{S_TMP2}")
        e(f"s_cmp_lt_u32 s{S_SPIN}, 32\ns_cbranch_scc0 {nl}\ns_mov_b32 s{S_GRP}, {x}\ns_mov_b32 s{S_H}, s{S_SPIN}\ns_branch PRO_HAVE")
        e.label(nl)
        e(f"s_sub_u32 s{S_TMP2}, s{S_SPIN}, 32")
    e.label("PRO_HAVE")
    e(f"v_mov_b32 v10, s{S_GRP}\nv_mov_b32 v11, s{S_H}\nv_mov_b32 v9, 0\nds_write_b64 v9, v[10:11]\ns_waitcnt lgkmcnt(0)")
    e.label("PRO_W")
    e("s_barrier\nv_mov_b32 v9, 0\nds_read_b64 v[10:11], v9")
    e(f"s_waitcnt lgkmcnt(0)\nv_readfirstlane_b32 s{S_GRP}, v10\nv_readfirstlane_b32 s{S_H}, v11")
    e(f"s_and_b32 s{S_GRP}, s{S_GRP}, 7\ns_and_b32 s{S_H}, s{S_H}, 31")
    e(f"s_cmp_eq_u32 s{S_W}, 0\ns_cselect_b32 s{S_W0M}, 1, 0\ns_mov_b32 s{S_W0M+1}, 0")
    e(f"s_cmp_eq_u32 s{S_GRP}, 0\ns_cbranch_scc1 PRO_NOINIT\ns_cmp_lt_u32 s{S_H}, 4\ns_cbranch_scc0 PRO_NOINIT")
    e(f"s_sub_u32 s{S_TMP2}, s{S_GRP}, 1\ns_lshl_b32 s{S_TMP2}, s{S_TMP2}, 2\ns_add_u32 s{S_TMP2}, s{S_TMP2}, s{S_H}")
    e("v_mov_b64 v[12:13], -1\nv_mov_b64 v[14:15], -1\nv_mov_b32 v8, 0\nv_lshlrev_b32 v9, 4, v2\nv_lshlrev_b32 v3, 2, v2")
    e.label("PRO_INIT")
    e(f"s_lshl_b32 s{S_TMP}, s{S_TMP2}, 10\nbuffer_store_dword v8, v3, {WS}, s{S_TMP} offen sc1")
    e(f"s_lshl_b32 s{S_TMP}, s{S_TMP2}, 13\ns_add_u32 s{S_TMP}, s{S_TMP}, {FL_O2}\nv_lshlrev_b32 v16, 5, v2")
    e(f"buffer_store_dword v8, v16, {WS}, s{S_TMP} offen sc1")
    if cfg.get("dpoll"):
        e(f"s_lshl_b32 s{S_TMP}, s{S_TMP2}, 12\ns_add_u32 s{S_TMP}, s{S_TMP}, {WS_KVM + DP_SEG * 0x20000}")
        for sg in range(DP_SEG, 64):
            e(f"buffer_store_dwordx4 v[12:15], v9, {WS}, s{S_TMP} offen sc1\ns_add_u32 s{S_TMP}, s{S_TMP}, 0x20000")
    e(f"s_add_u32 s{S_TMP2}, s{S_TMP2}, 28\ns_cmp_lt_u32 s{S_TMP2}, 32\ns_cbranch_scc1 PRO_INIT")
    e(f"s_waitcnt vmcnt(0)\ns_barrier\nv_mov_b32 v3, {DBG_INIT}\nv_mov_b32 v4, 1\ns_mov_b64 exec, s[{S_W0M}:{S_W0M+1}]")
    e(f"global_atomic_add v3, v4, {DBG}\ns_mov_b64 exec, -1")
    e.label("PRO_NOINIT")
    e(f"s_mov_b32 s{S_SPIN}, 0")
    e("s_barrier")

DEFAULTS = {"agbar":1,"d1e":0,"d1":0,"d2":2,"d2e":2,"Ke":2,"KRe":1,"e1":2,"e2":2,"pref":4,"xv":3,"xo":1,"xz":1,"peek":1,"cpf":0,"wda":1,"wdb":1,"prefc":1,"asplit":30,"dpoll":1,"split":1,"osleep":3,"pford":1,"mz":1}
def build(cfg):
    cfg = {**DEFAULTS, **cfg}
    C.DBGC = bool(cfg.get('dbgt'))
    e = Em()
    e.label(KNAME)
    if cfg.get("gstamp"): e("s_memrealtime s[18:19]\ns_waitcnt lgkmcnt(0)\ns_mov_b32 s3, s18")
    common_prologue(e, cfg)
    e(f"s_cmp_eq_u32 s{S_GRP}, 0\ns_cbranch_scc0 WORKER")
    chain_prologue(e, cfg)
    if cfg.get("force_slow") or cfg.get("fakexcc") == 1: e(f"s_mov_b32 s{S_MODE}, 0")
    e(f"s_cmp_ge_u32 s{S_MODE}, 32\ns_cbranch_scc0 CHAIN_SLOW")
    chain_loop(e, True, cfg)
    e.label("CHAIN_SLOW")
    chain_loop(e, False, cfg)
    e.label("WORKER")
    if not cfg.get("chain_only"):
        import worker
        worker.worker(e, cfg)
    else:
        wait_init(e, "w", 32)
        e(f"s_lshl_b32 s{S_TMP}, s{S_H}, 8\nv_lshlrev_b32 v1, 2, v0\nv_mov_b32 v2, 1\nbuffer_store_dword v2, v1, s[{R_WS}:{R_WS+3}], s{S_TMP} offen sc1")
    e.label("KEND")
    e("s_waitcnt vmcnt(0)\ns_endpgm")
    probs = check_hazards(e.lines)
    for p in probs: print("HAZARD", p, file=sys.stderr)
    hdr = open('gated_mix__ssm_conv_h3__memory_aug_recurrent_mem_tr__prompt.s.ref').read().split("; Override launch")[0]
    s = hdr + f"; @launch grid=(256,1,1) block=(256,1,1) lds={LDS_SIZE}\n"
    s += f'.amdgcn_target "amdgcn-amd-amdhsa--gfx950"\n.text\n.globl {KNAME}\n.p2align 8\n.type {KNAME},@function\n'
    s += e.text()
    s += f""".section .rodata,"a"
.p2align 6
.amdhsa_kernel {KNAME}
  .amdhsa_next_free_vgpr 512
  .amdhsa_next_free_sgpr 102
  .amdhsa_accum_offset 256
  .amdhsa_group_segment_fixed_size 0
  .amdhsa_kernarg_size 136
  .amdhsa_user_sgpr_count 2
  .amdhsa_user_sgpr_kernarg_segment_ptr 1
  .amdhsa_system_sgpr_workgroup_id_x 1
.end_amdhsa_kernel
"""
    return s

if __name__ == "__main__":
    out = sys.argv[1]
    cfg = json.loads(sys.argv[2]) if len(sys.argv) > 2 else {}
    open(out, "w").write(build(cfg))
    json.dump(cfg, open(out + ".json", "w"))
```

```python
from asmlib import Em, vr
from layout import *

S_Q, S_K, S_V, S_SH, S_SSMK, S_SSMD, S_MEM0 = 4, 6, 8, 10, 12, 14, 16
S_WQ, S_WK, S_WV, S_WO, S_GATE, S_OUT, S_DBG, S_WS = 20, 22, 24, 26, 28, 30, 32, 34
R_WS, R_T, R_T2 = 36, 40, 44
S_W, S_XCC, S_GRP, S_H = 48, 49, 50, 51
S_W0M = 76
NINIT = 28 + 32
SPIN_MAX = 1 << 18
DBGC = False

def srd(e, r, p, size):
    e(f"s_mov_b32 s{r}, s{p}\ns_mov_b32 s{r+1}, s{p+1}\ns_mov_b32 s{r+2}, {size}\ns_mov_b32 s{r+3}, 0x20000")

def lane_consts(e, c, g, lane="v0"):
    e(f"v_and_b32 {c}, 15, {lane}\nv_lshrrev_b32 {g}, 4, {lane}")

def emit_UB(e, dst, c, b, t):
    e(f"v_lshrrev_b32 {t}, 1, {b}")
    e(f"v_lshl_add_u32 {t}, {t}, 3, {c}")
    e(f"v_and_b32 {t}, 15, {t}")
    e(f"v_lshl_add_u32 {t}, {b}, 4, {t}")
    e(f"v_lshlrev_b32 {dst}, 3, {t}")

IDX, A_RSR, A_AGW, A_AGR, A_TR, A_TRK, A_UW, A_W, A_KX, A_VX, T0, A_RSW, SEL = 0, 1, 2, 3, 4, 5, 6, 7, 8, 9, 10, 11, 12
MEMA, QB, KXA, XT, ACA, ACB = 16, 48, 64, 88, 96, 104
WV0 = 112
S_STEP, S_RSW0, S_RSW1, S_RSR0, S_RSR1, S_AGW, S_AGRST, S_AGR0, S_AGR1 = 52, 53, 54, 55, 56, 57, 58, 59, 60
S_KVG, S_KVL, S_KVM, S_READY, S_SPIN, S_AGSLOT, S_TMP, S_TMP2 = 61, 62, 63, 64, 65, 66, 67, 68
S_M0, S_M1, S_M2 = 70, 72, 74
S_AGM = 72
S_ODD = 78
S_SC = 80
S_CF = 81
S_MODE = 82
S_TAG = 83
S_KVG2, S_FLV = 10, 11
S_XG0, S_XL0 = 96, 97
S_KFO = 58
S_JMP = 6
S_RSR = [55, 56, 4, 5]
S_EM, S_LM, S_LB = 4, 6, 8
S_AGM2 = 74
S_ST = 84

import os
_o0 = [("o", (0, p)) for p in range(4)]; _o1 = [("o", (1, p)) for p in range(4)]
_q = [("q", J) for J in range(3, 8)]; _k = [("k", J) for J in range(8)]; _v = [("v", J) for J in range(8)]; _ql = [("q", 0), ("q", 1), ("q", 2)]
BLOCKS = {"0": _q + _k + _v + _o0 + _ql + _o1, "1": _o0 + _q + _k + _v + _ql + _o1, "2": _o0 + _q + _k + _v + _o1 + _ql,
          "3": _q + _o0 + _k + _v + _ql + _o1}[os.environ.get("BORD", "0")]
NREG = 25
def frag_reg(i):
    if i < 32: return ("a", 8 * i)
    return ("v", WV0 + 8 * (i - 32))
FRAG = {}
for n, (m, J) in enumerate(BLOCKS):
    for t in range(2):
        if n < NREG: FRAG[(m, J, t)] = frag_reg(2 * n + t)
        else: FRAG[(m, J, t)] = ("lds", (n - NREG) * 4096 + t * 2048)
def slot_addr(n):
    s = n % 10
    wl = {5: 0, 6: 1, 7: 2, 8: 3, 9: 4, 0: 5, 1: 6}
    return ("wl", wl[s]) if s in wl else ("ot", s - 2)

def wait_init(e, tag, vt):
    l = e.newlabel("WI"); d = e.newlabel("WID")
    e(f"v_mbcnt_lo_u32_b32 v{vt+1}, -1, 0\nv_mbcnt_hi_u32_b32 v{vt+1}, -1, v{vt+1}\nv_lshlrev_b32 v{vt+1}, 2, v{vt+1}")
    e.label(l)
    e(f"global_load_dword v{vt}, v{vt+1}, s[{S_DBG}:{S_DBG+1}] sc1")
    e(f"s_add_u32 s{S_SPIN}, s{S_SPIN}, 1")
    e("s_waitcnt vmcnt(0)")
    e(f"v_readlane_b32 s{S_TMP}, v{vt}, {DBG_INIT//4}")
    e(f"s_cmp_ge_u32 s{S_TMP}, {NINIT}\ns_cbranch_scc1 {d}")
    e("s_sleep 16")
    e(f"s_cmp_lt_u32 s{S_SPIN}, {SPIN_MAX}\ns_cbranch_scc1 {l}")
    e.label(d)

def kv_poll(e, va, vb, done):
    l = e.newlabel("KR")
    e(f"v_mbcnt_lo_u32_b32 v{vb}, -1, 0\nv_mbcnt_hi_u32_b32 v{vb}, -1, v{vb}\nv_lshlrev_b32 v{vb}, 2, v{vb}")
    e.label(l)
    if DBGC: e(f"s_lshl_b32 s{S_TMP}, 1, s{S_STEP}\ns_or_b32 s60, s60, s{S_TMP}\ns_add_u32 s57, s57, 0")
    e(f"s_lshl_b32 s{S_TMP}, s{S_H}, 8")
    e(f"buffer_load_dword v{va}, v{vb}, s[{R_WS}:{R_WS+3}], s{S_TMP} offen sc1")
    e(f"s_add_u32 s{S_SPIN}, s{S_SPIN}, 1")
    e("s_waitcnt vmcnt(0)")
    e(f"v_cmp_eq_u32 vcc, 0, v{va}\ns_ff1_i32_b64 s{S_READY}, vcc")
    e(f"s_cmp_gt_u32 s{S_READY}, s{S_TMP2}\ns_cbranch_scc1 {done}")
    e("s_sleep 16")
    e(f"s_cmp_lt_u32 s{S_SPIN}, {SPIN_MAX}\ns_cbranch_scc1 {l}")
    e(f"s_branch {done}")

def kv_ready(e, delta, va, vb):
    d = e.newlabel("KRD")
    e(f"s_add_u32 s{S_TMP2}, s{S_STEP}, {delta}\ns_cmp_gt_u32 s{S_READY}, s{S_TMP2}\ns_cbranch_scc1 {d}")
    kv_poll(e, va, vb, d)
    e.label(d)

def kv_dma(e, g=None, l=None):
    out = []
    for i in range(4):
        pre = [f"s_add_u32 m0, s{l or S_KVL}, {(i//2)*8192}", f"s_add_u32 s{S_TMP}, s{g or S_KVG}, {(i//2)*8192}"]
        out.append(pre + [f"buffer_load_dwordx4 v{A_AGR}, s[{R_WS}:{R_WS+3}], s{S_TMP} offen offset:{(i%2)*1024} sc1 lds"])
    return out

NPRE = 5
QL = [(0, 0), (0, 1), (2, 0), (2, 1), (1, 0), (1, 1)] if os.environ.get('V13') else [(0, 0), (0, 1), (1, 0), (1, 1), (2, 0), (2, 1)]
def rd_ql(e, n, r):
    off = FRAG[("q",) + QL[n]][1]
    e(f"ds_read_b128 {vr(r,4)}, v{A_W} offset:{off}")
    return e(f"ds_read_b128 {vr(r+4,4)}, v{A_W} offset:{off+1024}")
def preload_q(e):
    for n in range(NPRE): rd_ql(e, n, QB + 8 * n)

def chain_prologue(e, cfg={}):
    e("; ---- chain prologue")
    if cfg.get("prost") == 2: e("s_memrealtime s[92:93]")
    lane_consts(e, "v16", "v17")
    e("v_and_b32 v18, 3, v0\nv_lshrrev_b32 v19, 2, v0")
    e(f"s_lshl_b32 s{S_TMP}, s{S_H}, 8\ns_lshl_b32 s{S_TMP2}, s{S_W}, 6\ns_add_u32 s{S_TMP}, s{S_TMP}, s{S_TMP2}")
    e(f"v_lshlrev_b32 v20, 13, v19\nv_lshl_add_u32 v20, v18, 4, v20\nv_add_u32 v20, s{S_TMP}, v20")
    e(f"s_lshl_b32 s{S_TMP}, s{S_H}, 17\ns_lshl_b32 s{S_TMP2}, s{S_W}, 8\ns_add_u32 s{S_TMP}, s{S_TMP}, s{S_TMP2}")
    e(f"v_lshlrev_b32 v21, 10, v19\nv_lshl_add_u32 v21, v18, 4, v21\nv_add_u32 v21, s{S_TMP}, v21")
    e("v_and_b32 v22, 1, v17\nv_lshlrev_b32 v22, 5, v22")
    e("v_lshrrev_b32 v23, 1, v17\nv_lshl_add_u32 v22, v23, 2, v22")
    e("v_lshrrev_b32 v23, 3, v16\nv_lshl_add_u32 v22, v23, 4, v22")
    e("v_bfe_u32 v23, v16, 2, 1\nv_add_u32 v22, v22, v23")
    e("v_lshlrev_b32 v22, 6, v22\nv_lshl_add_u32 v22, v18, 3, v22")
    e(f"s_mul_i32 s{S_KVL}, s{S_W}, 28672")
    e(f"s_mul_i32 s{S_KVG}, s{S_W}, 12288\ns_add_u32 s{S_KVG}, s{S_KVG}, {L_KVB}")
    e(f"v_add_u32 v24, s{S_KVL}, v22\nv_add_u32 v25, s{S_KVG}, v22")
    e(f"v_lshl_add_u32 v{A_W}, v0, 4, s{S_KVL}")
    RW = {"q": R_T, "k": R_T2, "v": 84, "o": 88}
    for m, p in (("q", S_WQ), ("k", S_WK), ("v", S_WV), ("o", S_WO)): srd(e, RW[m], p, 0x400000)
    def issue(n):
        m, J = BLOCKS[n]
        kind, k = slot_addr(n)
        base = S_KVL if kind == "wl" else S_KVG
        for i in range(4):
            e(f"s_add_u32 m0, s{base}, {k*4096 + i*1024}")
            if m == "o":
                so = (64 * J[0] + 16 * i) * 1024 + J[1] * 64
                e(f"s_mov_b32 s{S_TMP}, {so}")
                e(f"buffer_load_dwordx4 v21, s[{RW[m]}:{RW[m]+3}], s{S_TMP} offen lds")
            else:
                so = (64 * J + 16 * i) * 8192
                e(f"s_mov_b32 s{S_TMP}, {so}")
                e(f"buffer_load_dwordx4 v20, s[{RW[m]}:{RW[m]+3}], s{S_TMP} offen lds")
    def consume(n, outstanding):
        m, J = BLOCKS[n]
        kind, k = slot_addr(n)
        e(f"s_waitcnt vmcnt({outstanding})")
        av = "v24" if kind == "wl" else "v25"
        for t in range(2):
            f = FRAG[(m, J, t)]
            for mm in range(4):
                off = k * 4096 + (8 * (mm // 2) + 2 * (mm % 2)) * 64 + t * 32
                if f[0] == "lds": dst = vr(32 + 8 * t + 2 * mm, 2)
                else: dst = vr(f[1] + 2 * mm, 2, f[0])
                e(f"ds_read_b64_tr_b16 {dst}, {av} offset:{off}")
        e("s_waitcnt lgkmcnt(0)")
        if n >= NREG:
            for t in range(2):
                for hf in range(2):
                    e(f"ds_write_b128 v{A_W}, {vr(32+8*t+4*hf,4)} offset:{k*4096 + t*2048 + hf*1024}")
            e("s_waitcnt lgkmcnt(0)")
    N = len(BLOCKS)
    if cfg.get("tlbw"):
        e(f"v_lshlrev_b32 v26, 16, v0\ns_lshl_b32 s{S_TMP}, s{S_H}, 11\nv_add_u32 v26, s{S_TMP}, v26")
        for m in "qkvo": e(f"buffer_load_dword v27, v26, s[{RW[m]}:{RW[m]+3}], 0 offen")
        if cfg["tlbw"] == 2: e("s_waitcnt vmcnt(0)")
    DEP = cfg.get("dep", 4); LEAD = cfg.get("lead", 0)
    def touch(n):
        m, J = BLOCKS[n]
        so = (64 * J[0]) * 1024 + J[1] * 64 if m == "o" else 64 * J * 8192
        e(f"s_mov_b32 s{S_TMP}, {so}\nbuffer_load_dword v70, v{69 if m == 'o' else 68}, s[{RW[m]}:{RW[m]+3}], s{S_TMP} offen")
    if LEAD:
        e(f"s_and_b32 s{S_TMP}, s{S_H}, 3\ns_lshl_b32 s{S_TMP}, s{S_TMP}, 2\ns_add_u32 s{S_TMP}, s{S_TMP}, s{S_W}\ns_lshl_b32 s{S_TMP}, s{S_TMP}, 15")
        e(f"s_lshr_b32 s{S_TMP2}, s{S_H}, 2\ns_lshl_b32 s{S_TMP2}, s{S_TMP2}, 10\ns_add_u32 s{S_TMP}, s{S_TMP}, s{S_TMP2}")
        e(f"v_lshlrev_b32 v68, 13, v17\nv_lshl_add_u32 v68, v16, 6, v68\nv_add_u32 v68, s{S_TMP}, v68")
        e(f"s_lshl_b32 s{S_TMP}, s{S_H}, 17\ns_lshl_b32 s{S_TMP2}, s{S_W}, 14\ns_add_u32 s{S_TMP}, s{S_TMP}, s{S_TMP2}")
        e(f"v_lshlrev_b32 v69, 10, v19\nv_lshl_add_u32 v69, v18, 8, v69\nv_add_u32 v69, s{S_TMP}, v69")
    e(f"v_mov_b64 v[32:33], -1\nv_mov_b64 v[34:35], -1\ns_lshl_b32 s{S_TMP}, s{S_H}, 13\ns_lshl_b32 s{S_TMP2}, s{S_W}, 11\ns_add_u32 s{S_TMP}, s{S_TMP}, s{S_TMP2}\ns_add_u32 s{S_TMP}, s{S_TMP}, {WS_RS}")
    e(f"v_lshlrev_b32 v36, 4, v0\nbuffer_store_dwordx4 v[32:35], v36, s[{R_WS}:{R_WS+3}], s{S_TMP} offen sc1\nbuffer_store_dwordx4 v[32:35], v36, s[{R_WS}:{R_WS+3}], s{S_TMP} offen offset:1024 sc1")
    e(f"s_mul_i32 s{S_TMP}, s{S_H}, 768\ns_lshl_b32 s{S_TMP2}, s{S_W}, 8\ns_add_u32 s{S_TMP}, s{S_TMP}, s{S_TMP2}\ns_add_u32 s{S_TMP}, s{S_TMP}, {WS_AG}")
    e(f"s_cmp_lt_u32 s{S_W}, 3\ns_cselect_b32 exec_lo, 0xffff, 0\ns_mov_b32 exec_hi, 0\nbuffer_store_dwordx4 v[32:35], v36, s[{R_WS}:{R_WS+3}], s{S_TMP} offen sc1\ns_mov_b64 exec, -1")
    srd(e, 92, S_MEM0, 8192)
    e(f"s_lshl_b32 s{S_TMP}, s{S_W}, 8")
    e(f"v_lshlrev_b32 v26, 11, v17\nv_lshl_add_u32 v26, v16, 1, v26\nv_add_u32 v26, s{S_TMP}, v26")
    mem0_ld = []
    for u in range(4):
        mem0_ld += [f"buffer_load_ushort v{48+2*u}, v26, s[92:95], 0 offen offset:{u*64}", f"buffer_load_ushort v{49+2*u}, v26, s[92:95], 0 offen offset:{u*64+32}",
                    f"buffer_load_ushort v{56+2*u}, v26, s[92:95], 0 offen offset:{u*64+1024}", f"buffer_load_ushort v{57+2*u}, v26, s[92:95], 0 offen offset:{u*64+32+1024}"]
    for n in range(DEP):
        if cfg.get("prost") == 2 and n == 1: e("s_memrealtime s[94:95]")
        issue(n)
    if cfg.get("prost") == 2: e("s_memrealtime s[96:97]")
    for n in range(DEP, DEP + LEAD): touch(n)
    for x in mem0_ld: e(x)
    e(f"v_and_b32 v26, 2, v0\nv_cmp_eq_u32 vcc, 2, v26\nv_mov_b32 v27, 0x44444444\nv_mov_b32 v28, 0xeeeeeeee")
    e(f"s_mov_b64 s[{S_ODD}:{S_ODD+1}], vcc")
    e(f"v_cndmask_b32 v29, v27, v28, vcc")
    for r in range(4):
        e(f"v_mov_b32 v{SEL+r}, 0")
    e("v_mov_b32 v27, 0x3f80\nv_mov_b32 v28, 0x3f800000")
    for j in range(8):
        e(f"v_cmp_eq_u32 vcc, {j}, v16\ns_nop 1\nv_cndmask_b32 v{SEL+j//2}, v{SEL+j//2}, v{27+(j%2)}, vcc")
    e(f"s_and_b32 s{S_TMP}, s{S_W}, 2\ns_lshl_b32 s{S_TMP}, s{S_TMP}, 11\ns_lshl_b32 s{S_TMP2}, s{S_H}, 7\ns_add_u32 s{S_TMP}, s{S_TMP}, s{S_TMP2}")
    e(f"v_lshrrev_b32 v26, 3, v0\nv_and_b32 v27, 7, v0\nv_lshlrev_b32 v{A_RSR}, 13, v26\nv_lshl_add_u32 v{A_RSR}, v27, 4, v{A_RSR}\nv_add_u32 v{A_RSR}, s{S_TMP}, v{A_RSR}")
    e(f"s_lshl_b32 s{S_TMP2}, s{S_W}, 9\nv_lshl_add_u32 v{A_RSW}, v0, 3, s{S_TMP2}")
    e(f"v_and_b32 v26, 1, v17\nv_lshl_add_u32 v26, v27, 1, v26\ns_and_b32 s{S_TMP2}, s{S_H}, 3\nv_mov_b32 v27, s{S_TMP2}")
    emit_UB(e, f"v{A_AGW}", "v26", "v27", "v28")
    e(f"s_and_b32 s{S_TMP}, s{S_TMP}, 0xfffffe00\nv_add_u32 v{A_AGW}, s{S_TMP}, v{A_AGW}")
    e(f"s_mov_b32 s{S_AGM}, 0x00FF00FF\ns_mov_b32 s{S_AGM+1}, 0\ns_mov_b32 s{S_AGM2}, -1\ns_mov_b32 s{S_AGM2+1}, 0")
    e(f"v_bfe_u32 v26, v0, 3, 1\nv_lshl_add_u32 v{A_AGW}, v26, 14, v{A_AGW}")
    e(f"s_lshl_b32 s{S_TMP}, s{S_W}, 11\ns_add_u32 s{S_TMP}, s{S_TMP}, {L_MEM}")
    e(f"v_lshl_add_u32 v{A_AGR}, v0, 4, s{S_TMP}")
    e(f"s_lshl_b32 s{S_TMP}, s{S_W}, 10\ns_add_u32 s{S_TMP}, s{S_TMP}, {L_QU}")
    emit_UB(e, f"v{A_UW}", "v16", "v17", "v28")
    e(f"v_add_u32 v{A_UW}, s{S_TMP}, v{A_UW}")
    e("v_lshrrev_b32 v26, 2, v16\nv_lshl_add_u32 v26, v17, 2, v26")
    emit_UB(e, f"v{A_TR}", "v26", "v18", "v28")
    e(f"v_add_u32 v{A_TR}, {L_MEM}, v{A_TR}")
    e("v_and_b32 v27, 1, v18\nv_lshlrev_b32 v27, 1, v27\nv_lshrrev_b32 v28, 1, v18\nv_or_b32 v27, v27, v28")
    emit_UB(e, f"v{A_TRK}", "v26", "v27", "v28")
    e(f"v_add_u32 v{A_TRK}, {L_MEM}, v{A_TRK}")
    e(f"v_lshlrev_b32 v{A_KX}, 4, v0\nv_add_u32 v{A_KX}, {L_KVB}, v{A_KX}")
    e(f"v_lshrrev_b32 v26, 1, v17\nv_lshl_add_u32 v26, v26, 4, v16\nv_lshlrev_b32 v26, 4, v26\nv_and_b32 v27, 1, v17\nv_lshl_add_u32 v26, v27, 3, v26")
    e(f"s_lshl_b32 s{S_TMP}, s{S_W}, 11\ns_add_u32 s{S_TMP}, s{S_TMP}, {L_KVB + 8192}\nv_add_u32 v{A_VX}, s{S_TMP}, v26")
    e(f"v_lshlrev_b32 v65, 2, v0\ns_mov_b32 s{S_STEP}, 0\ns_mov_b32 s{S_READY}, 0\ns_mov_b32 s{S_MODE}, 0")
    WSR = f"s[{R_WS}:{R_WS+3}]"
    order = [("B", n) for n in range(DEP) for _ in range(4)] + [("T", 1)] * LEAD + [("M", 0)] * 16
    def after(kind, n):
        last = max(i for i, x in enumerate(order) if x == (kind, n))
        return min(len(order) - 1 - last, 63)
    for n in range(N):
        consume(n, after("B", n))
        for k, (a_, b_) in enumerate(cfg.get("pace", [])):
            if n == a_:
                e(f"s_barrier\nv_mov_b32 v36, {DBG_PACE + 64*0 + 4*k}\nv_mov_b32 v37, 1\ns_mov_b64 exec, s[{S_W0M}:{S_W0M+1}]\nglobal_atomic_add v36, v37, s[{S_DBG}:{S_DBG+1}]\ns_mov_b64 exec, -1"); order.append(("P", k))
            if n == b_:
                l = e.newlabel("PC"); d = e.newlabel("PCD")
                e(f"s_cmp_eq_u32 s{S_W}, 0\ns_cbranch_scc0 {d}")
                e.label(l)
                e(f"s_load_dword s{S_TMP}, s[{S_DBG}:{S_DBG+1}], {DBG_PACE + 4*k} glc\ns_add_u32 s{S_SPIN}, s{S_SPIN}, 1\ns_waitcnt lgkmcnt(0)")
                e(f"s_cmp_ge_u32 s{S_TMP}, 32\ns_cbranch_scc1 {d}\ns_sleep 8\ns_cmp_lt_u32 s{S_SPIN}, {SPIN_MAX}\ns_cbranch_scc1 {l}")
                e.label(d)
                e("s_barrier")
        if LEAD and n + DEP + LEAD < N:
            touch(n + DEP + LEAD); order.append(("T", 1))
        if n + DEP < N:
            issue(n + DEP); order += [("B", n + DEP)] * 4
        if n == cfg.get("ctouch", -1):
            e(f"s_mul_i32 s{S_TMP}, s{S_H}, 21\nv_add_u32 v67, s{S_TMP}, v0\nv_lshlrev_b32 v67, 16, v67\ns_mul_i32 s{S_TMP}, s{S_W0M}, 0x1fffff\ns_mov_b32 exec_lo, s{S_TMP}\ns_mov_b32 exec_hi, 0\ns_mov_b32 s{S_TMP}, {WS_KV}")
            e(f"buffer_load_dword v68, v67, {WSR}, s{S_TMP} offen sc1\ns_mov_b64 exec, -1"); order.append(("T", 0))
        if n == 1:
            e(f"s_barrier\nv_mov_b32 v36, {DBG_INIT}\nv_mov_b32 v37, 1\ns_mov_b64 exec, s[{S_W0M}:{S_W0M+1}]")
            e(f"global_atomic_add v36, v37, s[{S_DBG}:{S_DBG+1}]\ns_mov_b64 exec, -1"); order.append(("I", 0))
        if n == 16:
            e(f"global_load_dword v64, v65, s[{S_DBG}:{S_DBG+1}] sc1"); order.append(("D", 0))
        if n == 23:
            e(f"v_readlane_b32 s{S_TMP}, v64, {DBG_INIT//4}\nv_readlane_b32 s{S_MODE}, v64, {DBG_XCC(0)//4}\nv_mov_b32 v66, 0")
            e(f"s_cmp_ge_u32 s{S_TMP}, {NINIT}\ns_cselect_b32 s{S_MODE}, s{S_MODE}, 0\ns_cselect_b64 exec, -1, 0\ns_lshl_b32 s{S_TMP}, s{S_H}, 8")
            e(f"buffer_load_dword v66, v65, {WSR}, s{S_TMP} offen sc1\ns_mov_b64 exec, -1"); order.append(("F", 0))
        if n == 28:
            e("s_barrier")
            e(f"v_cmp_eq_u32 vcc, 0, v66\ns_ff1_i32_b64 s{S_READY}, vcc")
            e(f"s_lshl_b32 s{S_TMP}, s{S_H}, 14\ns_add_u32 s{S_XG0}, s{S_TMP}, {WS_KV - L_MEM}\ns_lshl_b32 s{S_TMP}, s{S_W}, 11\ns_add_u32 s{S_XL0}, s{S_TMP}, {L_KVB}")
            e(f"s_cmp_gt_u32 s{S_READY}, 0\ns_cselect_b64 exec, -1, 0")
            for grp in kv_dma(e, S_XG0, S_XL0):
                for x in grp: e(x)
            e("s_mov_b64 exec, -1"); order += [("K", 0)] * 4
            for r in range(8): e(f"v_lshl_or_b32 v{48+r}, v{56+r}, 16, v{48+r}")
            e(f"s_lshl_b32 s{S_TMP}, s{S_W}, 9\ns_add_u32 s{S_TMP}, s{S_TMP}, {L_QU - L_MEM}\nv_subrev_u32 v27, s{S_TMP}, v{A_UW}")
            for u in range(4): e(f"ds_write_b64 v27, {vr(48+2*u,2)} offset:{u*2048}")
            e("s_waitcnt lgkmcnt(0)")
            preload_q(e)
            for r in range(0, 16, 2): e(f"v_mov_b64 {vr(ACA+r,2)}, 0")
            e(f"v_mov_b32 v{IDX}, v29")
            e(f"s_lshl_b32 s{S_TMP}, s{S_H}, 13")
            e(f"s_add_u32 s{S_RSW0}, s{S_TMP}, {WS_RS}\ns_add_u32 s{S_RSW1}, s{S_RSW0}, 4096")
            for i in range(4): e(f"s_mov_b32 s{S_RSR[i]}, {WS_RS + 0x10000 * i}")
            e(f"s_mov_b32 s{S_AGSLOT}, 0\ns_mov_b32 s{S_AGW}, {WS_AG}\ns_mov_b32 s{S_TAG}, 0")
            e(f"s_lshl_b32 s{S_TMP}, s{S_H}, 12\ns_add_u32 s{S_KVM}, s{S_TMP}, {WS_KVM - 0x20000}")
            e(f"s_mov_b32 s{S_LB}, 0x3f003f00\ns_mov_b32 s{S_LB+1}, 0x3f803f80")
            e(f"s_lshl_b32 s{S_CF}, s{S_H}, 7\ns_add_u32 s{S_CF}, s{S_CF}, {FL_CFLAG}")
            e(f"s_mov_b32 s{S_SC}, 0x3e0293ee")
            e(f"s_lshl_b32 s{S_KFO}, s{S_H}, 8\ns_add_u32 s{S_KFO}, s{S_KFO}, 4")
    if cfg.get("gstamp"): e("s_memrealtime s[18:19]\ns_waitcnt lgkmcnt(0)\ns_mov_b32 s69, s18")
    e(f"s_mov_b32 s{S_KVG}, s{S_XG0}\ns_mov_b32 s{S_KVL}, s{S_XL0}")
    e(f"s_cmp_ge_u32 s{S_MODE}, 32\ns_cbranch_scc1 MODE_D")
    wait_init(e, "c", 32)
    e.label("MODE_L")
    e(f"v_readlane_b32 s{S_MODE}, v32, {DBG_XCC(0)//4}\ns_cmp_ge_u32 s{S_MODE}, 32\ns_cbranch_scc1 MODE_D\ns_mov_b32 s{S_TMP2}, 0")
    for x in range(8):
        e(f"v_readlane_b32 s{S_TMP}, v32, {DBG_XCC(x)//4}\ns_add_u32 s{S_TMP2}, s{S_TMP2}, s{S_TMP}")
    e(f"s_cmp_ge_u32 s{S_TMP2}, 256\ns_cbranch_scc1 MODE_D\ns_sleep 16")
    e(f"global_load_dword v32, v33, s[{S_DBG}:{S_DBG+1}] sc1\ns_add_u32 s{S_SPIN}, s{S_SPIN}, 1\ns_waitcnt vmcnt(0)\ns_cmp_lt_u32 s{S_SPIN}, {SPIN_MAX}\ns_cbranch_scc1 MODE_L")
    e.label("MODE_D")
    e(f"s_cmp_gt_u32 s{S_READY}, 0\ns_cbranch_scc1 KV0_D")
    kv_ready(e, 0, 32, 33)
    for grp in kv_dma(e):
        for s in grp: e(s)
    e.label("KV0_D")
    e(f"s_add_u32 s{S_KVG}, s{S_KVG}, 0x80000\ns_xor_b32 s{S_KVL}, s{S_KVL}, 0x3C000")

def interleave(e, mf, fill):
    def run(x):
        for s in x:
            if callable(s): s()
            else: e(s)
    run(fill.get(-1, []))
    for i, m in enumerate(mf):
        if callable(m): m()
        else: e(m)
        run(fill.get(i, []))

def smf(acc, a, f):
    return f"v_smfmac_f32_16x16x64_bf16 {vr(acc,4)}, {vr(a,4)}, {vr(f[1],8,f[0])}, v{IDX}"
def mf32(d, a, b, c):
    return f"v_mfma_f32_16x16x32_bf16 {vr(d,4)}, {vr(a,4)}, {vr(b,4)}, {c if c == '0' else vr(c,4)}"

S_KF = 12
def kv_peek(e):
    e(f"s_min_u32 s{S_TMP}, s{S_STEP}, 59\ns_lshl_b32 s{S_TMP}, s{S_TMP}, 2\ns_add_u32 s{S_TMP}, s{S_TMP}, s{S_KFO}")
    e(f"s_load_dwordx4 s[{S_KF}:{S_KF+3}], s[{S_WS}:{S_WS+1}], s{S_TMP} glc")
def kv_fold(e):
    e(f"s_and_b32 s{S_KF}, s{S_KF}, s{S_KF+1}\ns_and_b32 s{S_KF+2}, s{S_KF+2}, s{S_KF+3}\ns_and_b32 s{S_KF}, s{S_KF}, s{S_KF+2}")
    e(f"s_add_u32 s{S_TMP}, s{S_STEP}, 5\ns_cmp_ge_u32 s{S_STEP}, 59\ns_cselect_b32 s{S_TMP}, -1, s{S_TMP}")
    e(f"s_cmp_eq_u32 s{S_KF}, 1\ns_cselect_b32 s{S_TMP}, s{S_TMP}, 0\ns_max_u32 s{S_READY}, s{S_READY}, s{S_TMP}")

def kv_ready_ool(e, tail, va, vb):
    d = e.newlabel("KRD"); sl = e.newlabel("KRS")
    e(f"s_add_u32 s{S_TMP2}, s{S_STEP}, 1")
    e(f"s_cmp_le_u32 s{S_READY}, s{S_TMP2}\ns_cbranch_scc1 {sl}")
    e.label(d)
    def slow():
        e.label(sl)
        kv_poll(e, va, vb, d)
    tail.append(slow)

def chain_loop(e, fast, cfg):
    st = "" if fast else " sc1"
    tag_ = "F" if fast else "S"
    WS = f"s[{R_WS}:{R_WS+3}]"
    stamps = cfg.get("stamps", [])
    def S(name):
        if name in stamps:
            i = stamps.index(name); e(f"s_memtime s[{S_ST+2*i}:{S_ST+2*i+1}]")
    def SS(name): return lambda: S(name)
    def GS(p, fill, n):
        for i in range(n):
            if f"{p}_{i}" in stamps: fill[i] = [SS(f"{p}_{i}")] + list(fill.get(i, []))
    LOOP, LAST, ENTRY, EARLY = [f"CH{tag_}_{x}" for x in ("LOOP", "LAST", "ENTRY", "EARLY")]
    tail = []
    seq = {}
    def wt(key): return lambda: e.waitlg(seq[key])
    KP, VP, QP = XT + 4, XT + 6, XT + 2
    RP, RED, AGO, T1, AP = MEMA, MEMA + 16, MEMA + 20, MEMA + 22, MEMA + 24
    e("s_waitcnt vmcnt(0) lgkmcnt(0)")
    if cfg.get("gstamp"): e("s_memrealtime s[18:19]\ns_memtime s[16:17]")
    kv_ready(e, 1, T0, T1)
    e(f"s_mov_b32 s{S_KF}, 0\ns_mov_b32 s60, 0")
    if cfg.get("prio"): e(f"s_setprio {cfg['prio']}")
    e(f"s_add_u32 s{S_KVG2}, s{S_KVG}, 8192\ns_mov_b32 m0, s{S_KVL}\nv_mov_b32 v{T0}, 0")
    e(f"s_branch {ENTRY}")
    def rs_ld(r):
        for i in range(4): e(f"buffer_load_dwordx4 {vr(r+4*i,4)}, v{A_RSR}, {WS}, s{S_RSR[i]} offen sc1")
    def rs_chk(r, n):
        for i in range(4):
            e(f"s_waitcnt vmcnt({n+3-i})")
            e(mf32(RED, SEL, r + 4 * i, "0" if i == 0 else RED))
            e(f"v_bitop3_b32 v{T1 if i else T0}, v{r+4*i}, v{r+4*i+2}, s{S_TAG} bitop3:0x7e")
            if i: e(f"v_or_b32 v{T0}, v{T0}, v{T1}")
        e(f"v_and_b32 v{T0}, 1, v{T0}\nv_cmp_ne_u32 vcc, 0, v{T0}")
    def ag_ld(r):
        e(f"buffer_load_dwordx4 {vr(r,4)}, v{A_AGR}, {WS}, s{S_AGR0} offen sc1")
        e(f"buffer_load_dwordx4 {vr(r+4,4)}, v{A_AGR}, {WS}, s{S_AGR0} offen offset:1024 sc1")
    def ag_chk(r, n):
        T1 = MEMA + 15
        e(f"s_waitcnt vmcnt({n})")
        e(f"ds_write_b128 v{A_AGR}, {vr(r,4)}\nds_write_b128 v{A_AGR}, {vr(r+4,4)} offset:1024")
        e(f"v_max3_u32 v{T0}, v{r}, v{r+1}, v{r+2}\nv_max3_u32 v{T1}, v{r+4}, v{r+5}, v{r+6}")
        e(f"v_max3_u32 v{T0}, v{T0}, v{r+3}, v{r+7}\nv_max_u32 v{T0}, v{T0}, v{T1}\nv_cmp_eq_u32 vcc, -1, v{T0}")
    def backoff(n):
        if n: e(f"s_sleep {n}")
    def advance():
        e(f"v_mov_b64 {vr(AGO,2)}, -1")
        e(f"v_xor_b32 v{A_KX}, 0x3C000, v{A_KX}\nv_xor_b32 v{A_VX}, 0x3C000, v{A_VX}")
        e(f"v_add_u32 v{A_AGW}, 0x2000, v{A_AGW}\nv_subrev_u32 v{T0}, 0x6000, v{A_AGW}\nv_min_u32 v{A_AGW}, v{A_AGW}, v{T0}")
        e(f"s_add_u32 s{S_AGSLOT}, s{S_AGSLOT}, 0x2000\ns_cmp_eq_u32 s{S_AGSLOT}, 0x6000\ns_cselect_b32 s{S_AGSLOT}, 0, s{S_AGSLOT}")
        e(f"s_add_u32 s{S_AGR0}, s{S_AGSLOT}, {WS_AG - L_MEM}")
        e(f"s_add_u32 s{S_KVG}, s{S_KVG}, 0x80000\ns_xor_b32 s{S_KVL}, s{S_KVL}, 0x3C000\ns_add_u32 s{S_KVM}, s{S_KVM}, 0x20000")
        e(f"s_add_u32 s{S_KVG2}, s{S_KVG}, 8192\ns_mov_b32 m0, s{S_KVL}\ns_mov_b32 s{S_FLV}, s{S_STEP}")
        if cfg.get("peek"): kv_fold(e)
        e(f"s_add_u32 s{S_STEP}, s{S_STEP}, 1")
        if stamps: e(f"s_mov_b32 s{S_SPIN}, 0")
        if cfg.get("peek"): kv_peek(e)
    def comm(reducer, d1, d2, K, KR):
        P1, P1R, P2, P2R = [e.newlabel(x) for x in ("P1", "P1R", "P2", "P2R")]
        if not reducer:
            advance()
            if not cfg.get("pql"): preload_q(e)
            e(f"s_xor_b32 s{S_TAG}, s{S_TAG}, 1")
            S("rsi"); S("rs")
        else:
            advance()
            if not cfg.get("pql"): preload_q(e)
            backoff(d1)
            S("rsi")
            rsets = [RP, ACA][:KR]
            rs_ld(RP)
            if KR > 1:
                backoff(cfg.get("e1", 2)); rs_ld(ACA)
            rs_chk(RP, 4 * (KR - 1))
            e(f"s_cbranch_vccnz {P1R}")
            e.label(P1 + "_OK")
            S("rs")
            def p1r():
                e.label(P1R)
                for k in range(KR):
                    e(f"s_add_u32 s{S_SPIN}, s{S_SPIN}, 1\ns_cmp_gt_u32 s{S_SPIN}, {SPIN_MAX}\ns_cbranch_scc1 {P1}_OK")
                    e("s_mov_b64 exec, vcc"); rs_ld(rsets[k]); e("s_mov_b64 exec, -1")
                    rs_chk(rsets[(k + 1) % KR], 4 * (KR - 1))
                    e(f"s_cbranch_vccz {P1}_OK")
                e(f"s_branch {P1R}")
            tail.append(p1r)
            e(f"s_xor_b32 s{S_TAG}, s{S_TAG}, 1\ns_nop 1")
            for r in range(4):
                e(f"v_add_f32_dpp v{RED+r}, v{RED+r}, v{RED+r} row_ror:8 row_mask:0xf bank_mask:0xf")
            e(f"s_mov_b64 exec, s[{S_AGM}:{S_AGM+1}]")
            e(f"v_cvt_pk_bf16_f32 v{AGO}, v{RED}, v{RED+1}\nv_cvt_pk_bf16_f32 v{AGO+1}, v{RED+2}, v{RED+3}")
            e(f"s_mov_b64 exec, s[{S_AGM2}:{S_AGM2+1}]\nbuffer_store_dwordx2 {vr(AGO,2)}, v{A_AGW}, {WS}, s{S_AGW} offen{st}\ns_mov_b64 exec, -1")
        S("ags")
        if cfg.get("agbar"): e("s_barrier")
        S("agb")
        kv_ready_ool(e, tail, T0, MEMA + 15)
        if cfg.get("pql"): preload_q(e)
        backoff(d2)
        sets = [AP, ACB, MEMA + 16][:K]
        for k, r in enumerate(sets):
            if k: backoff(cfg.get("e2", 2))
            ag_ld(r)
        ag_chk(AP, 2 * (K - 1))
        e(f"s_cbranch_vccnz {P2R}")
        e.label(P2 + "_OK")
        S("ag")
        def p2r():
            e.label(P2R)
            for k in range(K):
                e(f"s_add_u32 s{S_SPIN}, s{S_SPIN}, {16 if stamps else 1}\ns_cmp_gt_u32 s{S_SPIN}, {SPIN_MAX}\ns_cbranch_scc1 {P2}_OK")
                e("s_mov_b64 exec, vcc"); ag_ld(sets[k]); e("s_mov_b64 exec, -1")
                ag_chk(sets[(k + 1) % K], 2 * (K - 1))
                e(f"s_cbranch_vccz {P2}_OK")
            e(f"s_branch {P2R}")
        tail.append(p2r)
        if stamps:
            sk = e.newlabel("NS")
            e(f"s_waitcnt lgkmcnt(0)\ns_cmp_eq_u32 s{S_STEP}, {cfg.get('stampstep', 40)}\ns_cbranch_scc0 {sk}")
            for i in range(len(stamps)): e(f"v_writelane_b32 v{T0}, s{S_ST+2*i}, {i}")
            e(f"v_writelane_b32 v{T0}, s{S_SPIN}, 10")
            for i in range(5): e(f"s_memrealtime s[{12+4*i}:{13+4*i}]\ns_memtime s[{14+4*i}:{15+4*i}]\ns_nop 5")
            e("s_waitcnt lgkmcnt(0)")
            for i in range(5): e(f"v_writelane_b32 v{T0}, s{12+4*i}, {16+2*i}\nv_writelane_b32 v{T0}, s{14+4*i}, {17+2*i}")
            e(f"s_lshl_b32 s{S_TMP}, s{S_H}, 2\ns_add_u32 s{S_TMP}, s{S_TMP}, s{S_W}\ns_lshl_b32 s{S_TMP}, s{S_TMP}, 8\ns_add_u32 s{S_TMP}, s{S_TMP}, {WS_STAMP}")
            e(f"v_mbcnt_lo_u32_b32 v{T1}, -1, 0\nv_mbcnt_hi_u32_b32 v{T1}, -1, v{T1}\nv_lshlrev_b32 v{T1}, 2, v{T1}")
            e(f"buffer_store_dword v{T0}, v{T1}, {WS}, s{S_TMP} offen")
            e.label(sk)
        for r in range(0, 8, 2): e(f"v_mov_b64 {vr(ACA+r,2)}, 0")
        e(f"s_cmp_ge_u32 s{S_STEP}, 63\ns_cbranch_scc1 {LAST}")
        e(f"v_mov_b32 v{T0}, s{S_FLV}")
        if cfg.get("pubc"): e(f"buffer_store_dwordx4 {vr(KP,4)}, v{A_AGR}, {WS}, s{S_KVM} offen sc1")
        e("s_waitcnt lgkmcnt(0)")
    D = cfg.get("D", [[0, 60], [0, 160], [25, 40], [0, 190]])
    if cfg.get("agbar"): D = [[cfg["d1e"], cfg.get("d2e", 0)], [0, cfg.get("d2e", 0)], [cfg["d1"], cfg["d2"]], [0, cfg["d2"]]]
    KK = [cfg.get("Ke", 1), cfg.get("Ke", 1), cfg.get("K", 2), cfg.get("K", 2)]
    for w in (0, 1, 3):
        e.label(f"{LOOP}_{w}")
        comm(w == 0, D[w][0], D[w][1], KK[w], cfg.get('KRe', 1))
        e(f"s_branch {ENTRY}")
    e(".p2align 6")
    e.label(f"{LOOP}_2")
    comm(True, D[2][0], D[2][1], KK[2], cfg.get('KR', 2))
    e.label(ENTRY)
    e("s_barrier")
    S("b1")
    if cfg.get("stepst"): e("s_memrealtime s[84:85]")
    def rd_m(J, x):
        def f(): seq[("m", J)] = e(f"ds_read_b64_tr_b16 {vr(MEMA+4*J+2*x,2)}, v{A_TR} offset:{(2*(J%2)+x)*2048 + (J//2)*512}")
        return f
    qorder = [(0, 0), (0, 1), (1, 0), (1, 1), (2, 0)] + [(J, t) for J in range(3, 8) for t in range(2)] + [(2, 1)]
    if cfg.get("qo"): qorder = qorder[:11] + [(2, 1)] + qorder[11:15]
    def qf(J, t):
        if J < 3: return ("v", QB + 8 * (QL.index((J, t)) % 5))
        return FRAG[("q", J, t)]
    mq = [smf(ACA + 4 * t, MEMA + 4 * J, qf(J, t)) for J, t in qorder]
    def rd_w(key, r, off):
        def f(): seq[key] = e(f"ds_read_b128 {vr(r,4)}, v{A_W} offset:{off}")
        return f
    def rq(n, hf): return rd_w(("ql", n), QB + 8 * (n % 5) + 4 * hf, FRAG[("q",) + QL[n]][1] + 1024 * hf)
    flag = [f"s_mov_b64 exec, s[{S_W0M}:{S_W0M+1}]", f"buffer_store_dword v{T0}, off, {WS}, s{S_CF} sc1", "s_mov_b64 exec, -1"]
    pubk = f"buffer_store_dwordx2 {vr(KP,2)}, v{A_RSW}, {WS}, s{S_KVM} offen sc1"
    pubv = f"buffer_store_dwordx2 {vr(VP,2)}, v{A_RSW}, {WS}, s{S_KVM} offen offset:2048 sc1"
    if cfg.get("nopub"): pubk = pubv = "s_nop 0"; flag = []
    def dm(i): return "s_nop 0" if cfg.get("nodma") else f"buffer_load_dwordx4 v{A_AGR}, {WS}, s{S_KVG if i < 2 else S_KVG2} offen offset:{(i%2)*1024} sc1 lds"
    z = lambda r: f"v_mov_b64 {vr(r,2)}, 0"
    fill = {-1: [rd_m(J, x) for J in range(4) for x in range(2)] + [wt(("m", 0)), SS("m0")],
            0: [rd_m(4, 0), dm(0)], 1: [rd_m(4, 1), wt(("m", 1))], 2: [rd_m(5, 0), dm(1)], 3: [rd_m(5, 1), wt(("m", 2))],
            4: [f"s_add_u32 m0, s{S_KVL}, 8192", wt(("m", 3))],
            5: [f"s_waitcnt vmcnt({3 if cfg.get('pubc') else 2})", rd_m(6, 0)], 6: [rd_m(6, 1), wt(("m", 4))], 7: [rd_m(7, 0), dm(2)], 8: [rd_m(7, 1), wt(("m", 5))],
            9: [rq(5, 0), dm(3)], 10: [rq(5, 1), wt(("m", 6))], 11: flag, 12: [wt(("m", 7))], 13: [] if cfg.get("pubc") else [pubk], 14: [wt(("ql", 5))],
            }
    if cfg.get("qo"):
        last = []
        m0b = f"s_add_u32 m0, s{S_KVL}, 8192"
        fill = {-1: [rd_m(J, x) for J in range(4) for x in range(2)] + [wt(("m", 0)), SS("m0")],
                0: [rd_m(4, 0)] + (last if cfg["qo"] == 1 else []), 1: [rd_m(4, 1), wt(("m", 1))], 2: [rd_m(5, 0), dm(0)], 3: [rd_m(5, 1), wt(("m", 2))],
                4: [rq(5, 0), wt(("m", 3))], 5: [rq(5, 1), dm(1)], 6: [m0b, wt(("m", 4))], 7: ["s_waitcnt vmcnt(2)", rd_m(6, 0)],
                8: [rd_m(6, 1), wt(("m", 5))], 9: [rd_m(7, 0), dm(2)], 10: [rd_m(7, 1), wt(("ql", 5))], 11: [wt(("m", 6)), dm(3)],
                12: flag, 13: [wt(("m", 7))], 14: [pubk]}
        if cfg["qo"] == 2: fill[-1] = fill[-1][:8] + last + fill[-1][8:]
    if max(KK) > 2:
        fill[0] = ["s_waitcnt vmcnt(0)", rd_m(4, 0), dm(0)]; fill[5] = [rd_m(6, 0)]
    kextra = {}
    dp = cfg.get("dp", 0)
    m0b = f"s_add_u32 m0, s{S_KVL}, 8192"
    if dp:
        for g in (0, 2, 7, 9): fill[g] = fill[g][:1]
        fill[4] = fill[4][1:]
        fill[5] = ["s_waitcnt vmcnt(%d)" % (1 if dp in (1, 2) else 0), rd_m(6, 0)]
        if dp == 1:
            fill[2] += [dm(0)]; fill[7] += [dm(1)]; fill[9] += [m0b]; fill[12] = fill[12] + [dm(2)]; kextra = {5: [dm(3)]}
        if dp == 2:
            fill[2] += [dm(0)]; fill[9] += [dm(1)]; kextra = {3: [m0b], 5: [dm(2)], 11: [dm(3)]}
        if dp == 4:
            kextra = {4: [dm(0)], 7: [dm(1)], 9: [m0b], 11: [dm(2)], 14: [dm(3)]}
        if dp == 5:
            fill[9] += [dm(0)]; fill[12] = fill[12][:1] + [dm(1)] + fill[12][1:]; kextra = {3: [m0b], 5: [dm(2)], 7: [dm(3)]}
        if dp == 6:
            fill[0] += [dm(0)]; fill[1] = [rd_m(4, 1), dm(1), wt(("m", 1))]; fill[2] += [m0b]; fill[3] = [rd_m(5, 1), dm(2), wt(("m", 2))]; fill[4] = [dm(3)] + fill[4]
            fill[5] = ["s_waitcnt vmcnt(4)", rd_m(6, 0)]
        if dp == 7:
            pre = fill[-1]; fill[-1] = pre[:8] + [dm(0)] + pre[8:]; fill[0] += [dm(1)]; fill[2] += [m0b]; fill[3] = [rd_m(5, 1), dm(2), wt(("m", 2))]
            fill[5] = ["s_waitcnt vmcnt(3)", rd_m(6, 0)]; fill[7] += [dm(3)]
        if dp == 3:
            fill[7] += [dm(0)]; fill[12] = fill[12] + [dm(1)]; kextra = {3: [m0b], 6: [dm(2)], 14: [dm(3)]}
    if cfg.get("flp") == 1:
        fill[11] = []; kextra[7] = None
    pp = cfg.get("pubp", 0)
    if pp:
        pre = [rd_m(J, x) for J in range(4) for x in range(2)]
        fill[-1] = pre[:pp] + [pubk] + pre[pp:] + [wt(("m", 0)), SS("m0")]
        fill[13] = []; fill[5] = ["s_waitcnt vmcnt(3)", rd_m(6, 0)]
    pv = cfg.get("pv", 0); pkp = cfg.get("pkp", 0)
    if pv == 0: fill[15] = [pubv]
    if pkp: fill[13] = []
    for n, g in enumerate([10, 11, 13, 14] if cfg.get("qo") else [10, 12, 13, 14]): fill[g] = fill[g] + [z(ACB + 2 * n)]
    GS("q", fill, 16)
    interleave(e, mq, fill)
    S("q")
    mk = [smf(ACB + 4 * t, MEMA + 4 * J, FRAG[("k", J, t)]) for J in range(8) for t in range(2)]
    def post_dup(acc, dst):
        return [f"v_add_f32 v{acc}, v{acc}, v{acc+2}", f"v_add_f32 v{acc+1}, v{acc+1}, v{acc+3}",
                f"v_cvt_pk_bf16_f32 v{dst}, v{acc}, v{acc+1}"]
    pq = post_dup(ACA, QP) + post_dup(ACA + 4, QP + 1)
    def rd_q(js, t):
        def f(): seq[("q", js)] = e(f"ds_read_b64_tr_b16 {vr(QB+4*js+2*t,2)}, v{A_TR} offset:{L_QU-L_MEM + js*1024 + t*512}")
        return f
    kxslot = [0, 1, 2, 3, 4, 5, 0, 1]
    def rd_kx(n):
        js, kt = n // 2, n % 2
        def f(): seq[("kx", n)] = e(f"ds_read_b128 {vr(KXA+4*kxslot[n],4)}, v{A_KX} offset:{(kt*4+js)*1024}")
        return f
    def wr_u(key, a, r, t):
        def f(): seq[key] = e(f"ds_write2_b32 v{a}, v{r}, v{r} offset0:{128*t} offset1:{128*t+1}")
        return f
    fill = {0: pq[0:2], 1: pq[2:4], 2: [wr_u("wq0", A_UW, QP, 0)] + pq[4:6], 3: [wr_u("wq1", A_UW, QP + 1, 1)],
            4: [rd_kx(0), f"v_add_u32 v{T0}, {L_KU - L_QU}, v{A_UW}"], 5: [rd_kx(1)], 6: [rd_kx(2)], 7: [rd_kx(3)],
            8: [wt("wq1"), SS("bq0"), "s_barrier", SS("bq1")],
            9: [rd_q(0, 0), rd_q(0, 1)], 10: [rd_q(1, 0), rd_q(1, 1)], 11: [rd_kx(4)], 12: [rd_q(2, 0), rd_kx(5)], 13: [rd_q(2, 1), rd_q(3, 0)],
            14: [rd_q(3, 1)], 15: [wt(("q", 1))]}
    if pkp == 1: fill[6] = fill[6] + [pubk]
    if pkp == 2: fill[11] = fill[11] + [pubk]
    if pv == 2: fill[14] = fill[14] + [pubv]
    kb = cfg.get("kb", 0)
    if kb == 1:
        fill.update({5: [rd_kx(1), rd_kx(2)], 6: [rd_kx(3)], 7: [wt("wq1"), "s_barrier"], 8: [rd_q(0, 0), rd_q(0, 1)], 9: [rd_q(1, 0)], 10: [rd_q(1, 1)],
                     11: [rd_kx(4)], 12: [rd_q(2, 0), rd_kx(5)]})
    if kb == 2:
        fill.update({5: [rd_kx(1)], 6: [wt("wq1"), "s_barrier"], 7: [rd_q(0, 0), rd_q(0, 1)], 8: [rd_kx(2)], 9: [rd_q(1, 0), rd_kx(3)], 10: [rd_q(1, 1)],
                     11: [rd_kx(4)], 12: [rd_q(2, 0), rd_kx(5)]})
    if kb == 3:
        fill = {0: pq[0:1], 1: pq[1:2], 2: pq[2:3], 3: [wr_u("wq0", A_UW, QP, 0)] + pq[3:4], 4: [rd_kx(0)] + pq[4:5], 5: [rd_kx(1)] + pq[5:6],
                6: [wr_u("wq1", A_UW, QP + 1, 1), f"v_add_u32 v{T0}, {L_KU - L_QU}, v{A_UW}"], 7: [rd_kx(2)], 8: [rd_kx(3)], 9: [rd_kx(4)],
                10: [wt("wq1"), "s_barrier"], 11: [rd_q(0, 0), rd_q(0, 1)], 12: [rd_q(1, 0), rd_q(1, 1)], 13: [rd_q(2, 0), rd_kx(5)],
                14: [rd_q(2, 1), rd_q(3, 0)], 15: [rd_q(3, 1), wt(("q", 0))]}
    for g, x in kextra.items():
        if x is None: fill[g] = flag; fill[6] = fill[6] + [rd_kx(3)]
        elif g == 4: fill[g] = fill[g][:1] + x + fill[g][1:]
        else: fill[g] = fill[g] + x
    if cfg.get("flp") == 1: fill[4] = [rd_kx(0)]; fill[8] = fill[8]; fill[15] = fill[15]; kadd = True
    GS("k", fill, 16)
    interleave(e, mk, fill)
    S("k")
    pk = post_dup(ACB, KP) + post_dup(ACB + 4, KP + 1)
    ms = []
    for js in range(4):
        for kt in range(2):
            n = js * 2 + kt
            ms.append(mf32(ACA + 4 * kt, KXA + 4 * kxslot[n], QB + 4 * js, "0" if js == 0 else ACA + 4 * kt))
    def rd_k(js, t):
        def f(): seq[("k", js)] = e(f"ds_read_b64_tr_b16 {vr(KXA+8+4*js+2*t,2)}, v{A_TRK} offset:{L_KU-L_MEM + js*1024 + t*512}")
        return f
    fill = {0: [rd_kx(6)] + pk[0:2], 1: [rd_kx(7)] + pk[2:4] + ([f"v_add_u32 v{T0}, {L_KU - L_QU}, v{A_UW}"] if cfg.get("flp") == 1 else []),
            2: [wr_u("wk0", T0, KP, 0)] + pk[4:6], 3: [wt(("q", 3)), z(ACB), z(ACB + 2)],
            4: [wr_u("wk1", T0, KP + 1, 1), z(ACB + 4), z(ACB + 6)],
            5: [wt(("kx", 7))],
            }
    if cfg.get("sxs") == 1:
        fill = {0: [rd_kx(6)], 1: [rd_kx(7)] + pk[0:2], 2: pk[2:4], 3: [wt(("q", 3))] + pk[4:6],
                4: [wr_u("wk0", T0, KP, 0), z(ACB), z(ACB + 2)], 5: [wt(("kx", 7)), z(ACB + 4), z(ACB + 6)], 6: [wr_u("wk1", T0, KP + 1, 1)]}
    if kb == 3: fill[1] = fill[1][:1] + [wt(("q", 1))] + fill[1][1:]
    GS("sx", fill, 8)
    interleave(e, ms, fill)
    S("Sx")
    mv = [smf(ACB + 4 * t, MEMA + 4 * J, FRAG[("v", J, t)]) for J in range(8) for t in range(2)]
    SM = KXA
    X0, X1 = ACA, ACA + 4
    mx, t2 = KXA + 4, KXA + 5
    e0 = XT
    NV1 = cfg.get("nv1", 10)
    msm = [mf32(SM, KXA + 8 + 4 * js, QB + 4 * js, "0" if js == 0 else SM) for js in range(4)]
    odd = f"s[{S_ODD}:{S_ODD+1}]"
    early = [f"v_max3_f32 v{mx}, v{X0}, v{X0+1}, v{X0+2}", f"v_max3_f32 v{t2}, v{X1}, v{X1+1}, v{X1+2}",
             f"v_max3_f32 v{mx}, v{mx}, v{X0+3}, v{X1+3}", f"v_max_f32 v{mx}, v{mx}, v{t2}",
             f"v_cndmask_b32 v{e0}, v{X0}, v{X0+2}, {odd}", f"v_cndmask_b32 v{e0+1}, v{X0+1}, v{X0+3}, {odd}",
             f"v_cndmask_b32 v{e0+2}, v{X1}, v{X1+2}, {odd}", f"v_cndmask_b32 v{e0+3}, v{X1+1}, v{X1+3}, {odd}"]
    seqm = mv[:NV1] + msm + mv[NV1:]
    PVB0, PVB1, OAC, PA, LB, LA = QB, QB + 8, KXA + 8, KXA + 16, KXA + 20, KXA + 4
    def rd_vx(n):
        t, hf = n // 2, n % 2
        def f(): seq["vx"] = e(f"ds_read_b64 {vr(QB+8*t+2+4*hf,2)}, v{A_VX} offset:{t*1024 + hf*512}")
        return f
    def rd_wo(T, hf):
        return rd_w(("wo", T), MEMA + 8 * (T % 4) + 4 * hf, FRAG[("o", (1, T // 2), T % 2)][1] + 1024 * hf)
    EE = [SM, SM + 1, e0, e0+1, e0+2, e0+3]
    fill = {0: [wt("wk1"), SS("bk0"), "s_barrier", SS("bk1")]}
    for n in range(8): fill[1 + n] = [rd_k(n // 2, n % 2), early[n]]
    xv = cfg.get("xv", 0)
    if xv == 2:
        fill = {1: early[0:1], 2: early[1:3], 3: early[3:5], 4: [wt("wk1"), "s_barrier"],
                5: [rd_k(0, 0), rd_k(0, 1)], 6: [rd_k(1, 0), rd_k(1, 1)], 7: [rd_k(2, 0), rd_k(2, 1)], 8: [rd_k(3, 0), rd_k(3, 1)]}
    if xv == 3:
        fill = {1: early[0:2], 2: early[2:4], 3: [wt("wk1"), "s_barrier"],
                4: [rd_k(0, 0), rd_k(0, 1)], 5: [rd_k(1, 0), rd_k(1, 1)], 6: [rd_k(2, 0)], 7: [rd_k(2, 1)], 8: [rd_k(3, 0), rd_k(3, 1)]}
    if xv == 1:
        for n in range(8): fill[1 + n] = [rd_k(n // 2, n % 2)]
        fill[7] += early[0:1]; fill[8] += early[1:2]
    if pv == 1: fill[0] = [pubv]
    if pv == 3: fill[6] = fill[6] + [pubv]
    fill[NV1 - 1] = [rd_wo(0, 0), wt(("k", 0)), SS("k0")] if NV1 - 1 > 8 else fill[NV1 - 1][:1] + [wt(("k", 0))] + fill[NV1 - 1][1:]
    lb = [f"v_mov_b64 {vr(LB,2)}, s[{S_LB}:{S_LB+1}]", f"v_mov_b64 {vr(LB+2,2)}, s[{S_LB}:{S_LB+1}]"]
    zz = [z(OAC), z(OAC + 2), z(OAC + 4), z(OAC + 6), f"v_mov_b32 v{PA+2}, 0"] + lb
    if xv == 1:
        fill[NV1 - 1] = fill[NV1 - 1] + early[2:3]
        fill[NV1] = [wt(("k", 1))] + early[3:5]
        fill[NV1 + 1] = [wt(("k", 2))] + early[5:7]
        fill[NV1 + 2] = [wt(("k", 3))] + early[7:8] + zz[0:1]
        fill[NV1 + 3] = [rd_vx(0)] + zz[1:3]
        zz = zz[3:]
    elif xv in (2, 3):
        rem = early[5:] if xv == 2 else early[4:]
        allv = rem + zz
        k0 = 2 if xv == 3 else 0
        fill[NV1] = [wt(("k", 1))]
        fill[NV1 + 1] = [wt(("k", 2))] + allv[0:k0]
        fill[NV1 + 2] = [wt(("k", 3))] + allv[k0:k0 + 2]
        fill[NV1 + 3] = [rd_vx(0)] + allv[k0 + 2:k0 + 4]
        zz = allv[k0 + 4:]
    else:
        fill[NV1] = [wt(("k", 1))] + zz[0:2]
        fill[NV1 + 1] = [wt(("k", 2))] + zz[2:4]
        fill[NV1 + 2] = [wt(("k", 3))] + zz[4:5]
        fill[NV1 + 3] = [rd_vx(0)] + zz[5:7]
        zz = []
    GS("v1", fill, 14)
    interleave(e, seqm[:NV1 + 4], fill)
    S("Sm")
    rest = seqm[NV1 + 4:]
    assert len(rest) == 6
    def run(x):
        for s in x: s() if callable(s) else e(s)
    run([rest[0], rd_vx(1), rd_vx(2)] + zz[0:1] + [rest[1], rd_vx(3), rd_wo(0, 1),
         f"v_max3_f32 v{mx}, v{mx}, v{SM}, v{SM+1}", f"v_mov_b32 v{t2}, v{mx}",
         rest[2], rd_wo(1, 0), rd_wo(1, 1),
         f"v_permlane32_swap_b32 v{mx}, v{t2}", f"v_max_f32 v{mx}, v{mx}, v{t2}", f"v_mov_b32 v{t2}, v{mx}",
         rest[3], rd_wo(2, 0), rd_wo(2, 1),
         f"v_permlane16_swap_b32 v{mx}, v{t2}", f"v_max_f32 v{mx}, v{mx}, v{t2}",
         rest[4], f"v_mul_f32 v{mx}, s{S_SC}, v{mx}", rest[5], rd_wo(3, 0), rd_wo(3, 1)] + zz[1:] + [
         ]
        + [f"v_fma_f32 v{x}, v{x}, s{S_SC}, -v{mx}" for x in EE] + [f"v_exp_f32 v{x}, v{x}" for x in EE]
        + [f"v_cvt_pk_bf16_f32 v{PA}, v{SM}, v{SM+1}", f"v_cvt_pk_bf16_f32 v{PA+1}, v{e0}, v{e0+1}", f"v_cvt_pk_bf16_f32 v{PA+3}, v{e0+2}, v{e0+3}",
           f"v_permlane32_swap_b32 v{PA}, v{PA+2}"])
    S("soft")
    cv = lambda t, h: f"v_cvt_pk_bf16_f32 v{QB+8*t+h}, v{ACB+4*t+2*h}, v{ACB+4*t+2*h+1}"
    run([cv(0, 0), cv(0, 1), mf32(LA, PA, LB, "0"), wt("vx"), cv(1, 0), cv(1, 1),
         f"v_smfmac_f32_16x16x64_bf16 {vr(OAC,4)}, {vr(PA,4)}, {vr(PVB0,8)}, v{IDX}", "s_nop 0",
         f"v_smfmac_f32_16x16x64_bf16 {vr(OAC+4,4)}, {vr(PA,4)}, {vr(PVB1,8)}, v{IDX}",
         ] + ([
         f"v_pk_add_f32 {vr(LA,2)}, {vr(LA,2)}, {vr(LA+2,2)}", f"v_rcp_f32 v{LA}, v{LA}", f"v_rcp_f32 v{LA+1}, v{LA+1}",
         f"v_pk_add_f32 {vr(OAC,2)}, {vr(OAC,2)}, {vr(OAC+2,2)}", f"v_pk_mul_f32 {vr(OAC,2)}, {vr(OAC,2)}, {vr(LA,2)}", "s_nop 0",
         f"v_pk_add_f32 {vr(OAC+4,2)}, {vr(OAC+4,2)}, {vr(OAC+6,2)}", f"v_cvt_pk_bf16_f32 v{OAC}, v{OAC}, v{OAC+1}",
         f"v_pk_mul_f32 {vr(OAC+4,2)}, {vr(OAC+4,2)}, {vr(LA,2)}", f"v_cvt_pk_bf16_f32 v{OAC+1}, v{OAC+4}, v{OAC+5}"] if cfg.get("usepk") else [
         f"v_add_f32 v{LA}, v{LA}, v{LA+2}", f"v_add_f32 v{LA+1}, v{LA+1}, v{LA+3}", f"v_rcp_f32 v{LA}, v{LA}", f"v_rcp_f32 v{LA+1}, v{LA+1}",
         f"v_add_f32 v{OAC}, v{OAC}, v{OAC+2}", f"v_add_f32 v{OAC+1}, v{OAC+1}, v{OAC+3}",
         f"v_mul_f32 v{OAC}, v{OAC}, v{LA}", f"v_mul_f32 v{OAC+1}, v{OAC+1}, v{LA+1}",
         f"v_add_f32 v{OAC+4}, v{OAC+4}, v{OAC+6}", f"v_add_f32 v{OAC+5}, v{OAC+5}, v{OAC+7}",
         f"v_mul_f32 v{OAC+4}, v{OAC+4}, v{LA}", f"v_mul_f32 v{OAC+5}, v{OAC+5}, v{LA+1}",
         f"v_cvt_pk_bf16_f32 v{OAC}, v{OAC}, v{OAC+1}", f"v_cvt_pk_bf16_f32 v{OAC+1}, v{OAC+4}, v{OAC+5}"]))
    WAC = [QB, QB + 4, QB + 8, QB + 12, ACA, ACA + 4, ACB, ACB + 4]
    so = e(f"ds_write_b64 v{A_UW}, {vr(OAC,2)}")
    S("ow")
    def vpost():
        for t in range(2):
            a = ACB + 4 * t
            e(f"v_pk_add_f32 {vr(a,2)}, {vr(a,2)}, {vr(a+2,2)}\nv_cvt_pk_bf16_f32 v{VP+t}, v{a}, v{a+1}")
    if cfg.get("mz"):
        e(z(QB)); e(z(QB + 2))
        vpost()
        e(f"v_mfma_f32_32x32x16_bf16 {vr(ACA,16)}, {vr(QB,4)}, {vr(QB,4)}, 0")
        for r in range(4, 16, 2): e(z(QB + r))
    else:
        vpost()
        for r in range(0, 16, 2): e(z(QB + r))
        for r in range(0, 16, 2): e(z(ACA + r))
    e.waitlg(so)
    S("bo0")
    e("s_barrier")
    S("bo1")
    OA = KXA
    for J in range(2):
        for x in range(2):
            seq[("oa", J)] = e(f"ds_read_b64_tr_b16 {vr(OA+4*J+2*x,2)}, v{A_TR} offset:{L_QU-L_MEM + (2*J+x)*1024}")
    mo = []
    for p in range(4):
        for T in (2 * p, 2 * p + 1): mo.append(smf(WAC[T], OA, FRAG[("o", (0, T // 2), T % 2)]))
        for T in (2 * p, 2 * p + 1): mo.append(smf(WAC[T], OA + 4, ("v", MEMA + 8 * (T % 4))))
    RSO = OAC
    def post_pair(p):
        a, b = WAC[2 * p], WAC[2 * p + 1]; d = RSO + 2 * p
        return [f"v_add_f32 v{a}, v{a}, v{a+2}", f"v_add_f32 v{a+1}, v{a+1}, v{a+3}",
                f"v_cvt_pk_bf16_f32 v{d}, v{a}, v{a+1}", f"v_add_f32 v{b}, v{b}, v{b+2}",
                f"v_add_f32 v{b+1}, v{b+1}, v{b+3}", f"v_and_or_b32 v{d}, v{d}, -2, s{S_TAG}",
                f"v_cvt_pk_bf16_f32 v{d+1}, v{b}, v{b+1}",
                f"buffer_store_dwordx2 {vr(d,2)}, v{A_RSW}, {WS}, s{S_RSW0 if p < 2 else S_RSW1} offen offset:{(p%2)*2048}{st}"]
    p0, p1, p2, p3 = [post_pair(p) for p in range(4)]
    fill = {-1: [wt(("oa", 0)), SS("oa")], 1: [wt(("oa", 1))], 2: [rd_wo(4, 0), rd_wo(4, 1)], 3: [rd_wo(5, 0), rd_wo(5, 1)],
            4: ["s_nop 0"] + p0[0:1], 5: p0[1:3], 6: [rd_wo(6, 0), rd_wo(6, 1)] + p0[3:5], 7: [rd_wo(7, 0), rd_wo(7, 1)] + p0[5:7], 8: p0[7:8] + p1[0:1],
            9: [wt(("wo", 4))] + p1[1:3], 10: [wt(("wo", 5))] + p1[3:5], 11: p1[5:7],
            12: p1[7:8] + p2[0:1], 13: [wt(("wo", 6))] + p2[1:3], 14: [wt(("wo", 7))] + p2[3:5],
            15: p2[5:8] + p3[0:3] + ([p3[5]] + p3[3:5] + p3[6:] if not cfg.get("usepk") else [p3[5], f"v_pk_add_f32 {vr(WAC[7],2)}, {vr(WAC[7],2)}, {vr(WAC[7]+2,2)}"] + p3[6:]),
            }
    GS("wo", fill, 16)
    interleave(e, mo, fill)
    S("Wo")
    if cfg.get("stepst"):
        for k in range(12): e(f"s_cmp_eq_u32 s{S_STEP}, {k}\ns_cselect_b32 s{20+k}, s84, s{20+k}")
    for w in (2, 0, 1): e(f"s_cmp_eq_u32 s{S_W}, {w}\ns_cbranch_scc1 {LOOP}_{w}")
    e(f"s_branch {LOOP}_3")
    for t in tail: t()
    e.label(LAST)
    e("s_waitcnt vmcnt(0) lgkmcnt(0)\ns_barrier")
    for J in range(8):
        for x in range(2): rd_m(J, x)()
    e(pubk); e(pubv)
    e(f"s_add_u32 s{S_KVM}, s{S_KVM}, 0x20000")
    for r in range(0, 8, 2): e(z(ACB + r))
    e("s_waitcnt lgkmcnt(0)")
    for J in range(8):
        for t in range(2): e(smf(ACA + 4 * t, MEMA + 4 * J, FRAG[("k", J, t)]))
    for i, m in enumerate(mv):
        e(m)
        if 2 <= i < 8: e((post_dup(ACA, KP) + post_dup(ACA + 4, KP + 1))[i - 2])
        if i == 8: e(pubk)
    e.nop(8)
    vpost()
    e(pubv)
    e("s_waitcnt vmcnt(0) lgkmcnt(0)\ns_barrier")
    e(f"v_mov_b32 v{T0}, 64\ns_mov_b64 exec, s[{S_W0M}:{S_W0M+1}]")
    e(f"buffer_store_dword v{T0}, off, {WS}, s{S_CF} sc1")
    if cfg.get("gstamp"):
        e(f"s_memrealtime s[84:85]\ns_memtime s[86:87]\ns_waitcnt lgkmcnt(0)\ns_sub_u32 s86, s86, s16\nv_mov_b32 v24, s86\nv_mov_b32 v20, s3\nv_mov_b32 v21, s18\nv_mov_b32 v22, s84\nv_mov_b32 v23, s69")
        e(f"s_lshl_b32 s{S_TMP}, s{S_H}, 4\ns_add_u32 s{S_TMP}, s{S_TMP}, {WS_STAMP + 0x10000}")
        if cfg.get("stepst"):
            for k in range(12): e(f"v_mov_b32 v{30+k}, s{20+k}")
            e(f"s_lshl_b32 s{S_TMP2}, s{S_H}, 6\ns_add_u32 s{S_TMP2}, s{S_TMP2}, {WS_STAMP + 0x11000}")
            for k in range(3): e(f"buffer_store_dwordx4 v[{30+4*k}:{33+4*k}], off, {WS}, s{S_TMP2} offset:{16*k}")
        e(f"buffer_store_dwordx4 v[20:23], off, {WS}, s{S_TMP}\nbuffer_store_dword v24, off, {WS}, s{S_TMP} offset:1024")
    if cfg.get("dbgt"):
        for k, r in enumerate(("s69", "s18", "s84")):
            e(f"s_sub_u32 s{S_TMP}, {r}, s3\nv_mov_b32 v20, s{S_TMP}\nv_mov_b32 v21, {8 + 4*k}\nglobal_atomic_umax v21, v20, s[{S_DBG}:{S_DBG+1}]")
        e(f"v_mov_b32 v20, s60\nv_mov_b32 v21, 28\nglobal_atomic_or v21, v20, s[{S_DBG}:{S_DBG+1}]")
        e(f"v_mov_b32 v20, s86\nv_mov_b32 v21, 24\nglobal_atomic_umax v21, v20, s[{S_DBG}:{S_DBG+1}]")
    e("s_branch KEND")
```

```python
from asmlib import Em, vr
from layout import *
from chain import *

WS = f"s[{R_WS}:{R_WS+3}]"
W_XB, W_QX, W_KMU, W_RED, W_STG = 0x0, 0x10000, 0x12000, 0x13000, 0x10000
NSLOT = 6
S_G, S_SEG, S_CNT, S_XL, S_XG, S_I, S_OFF, S_OFF2, S_STGB = 52, 53, 54, 55, 56, 57, 58, 59, 60
S_STP, S_END, S_PREV, S_CHN = 61, 66, 74, 75
R_X = 84
R_A, R_B = 40, 44
R_O = 88
V_C, V_G, V_L16, V_XSRC, V_XRD, V_T, V_T2 = 1, 2, 3, 4, 5, 6, 7

_cfg = {}
def WST(e, idx=None):
    if not _cfg.get("wstamp"): return
    e(f"s_memrealtime s[70:71]\ns_lshl_b32 s72, s{S_GRP}, 5\ns_add_u32 s72, s72, s{S_H}\ns_lshl_b32 s72, s72, 8\ns_lshl_b32 s73, s101, 2\ns_add_u32 s72, s72, s73")
    e(f"s_add_u32 s72, s72, {WS_STAMP + 0x20000}\ns_add_u32 s101, s101, 1\ns_waitcnt lgkmcnt(0)\ns_sub_u32 s70, s70, s3\nv_mov_b32 v{V_T}, s70\nv_mov_b32 v{V_T2}, 0\ns_mov_b64 exec, s[{S_W0M}:{S_W0M+1}]")
    e(f"buffer_store_dword v{V_T}, v{V_T2}, {WS}, s72 offen\ns_mov_b64 exec, -1\ns_waitcnt vmcnt(0)")

def load_blocks(e, blocks, D=4):
    N = len(blocks)
    def issue(q):
        n, i = q // 4, q % 4
        r, vs, so, _, _ = blocks[n]
        e(f"s_add_u32 m0, s{S_STGB}, {(n % NSLOT) * 4096 + i * 1024}\ns_mov_b32 s{S_TMP}, {so[i]}")
        e(f"buffer_load_dwordx4 {vs}, s[{r}:{r+3}], s{S_TMP} offen lds")
    for q in range(D): issue(q)
    for q in range(4 * N):
        nxt = q + D
        if q % 4 == 3 or (D < 4 and nxt < 4 * N): e(f"s_waitcnt vmcnt({min(4 * N - 1 - q, D - 1 if D < 4 else D - 4)})")
        if D < 4 and nxt < 4 * N: issue(nxt)
        if q % 4 == 3:
            n = q // 4
            for dst, off in blocks[n][4]:
                e(f"ds_read_b64_tr_b16 {dst}, {blocks[n][3]} offset:{(n % NSLOT) * 4096 + off}")
            e("s_waitcnt lgkmcnt(0)")
            if D >= 4:
                for k in range(4):
                    if q - 3 + D + k < 4 * N: issue(q - 3 + D + k)

def wmat_blocks(r, abase):
    out = []
    for J in range(8):
        rd = []
        for t in range(2):
            for m in range(4):
                s = 2 * J + m // 2
                rd.append((vr(abase + (t * 16 + s) * 4 + 2 * (m % 2), 2, "a"), (32 * (m // 2) + 4 * (m % 2)) * 64 + t * 32))
        out.append((r, "v20", [(64 * J + 16 * i) * 8192 for i in range(4)], "v22", rd))
    return out

def wo_blocks(r, abase):
    out = []
    for hh in range(8):
        rd = []
        for js in range(4):
            for m in range(2):
                rd.append((vr(abase + (hh * 4 + js) * 4 + 2 * m, 2, "a"), (32 * js + 16 * m) * 32))
        out.append((r, "v21", [(hh * 128 + 32 * i) * 1024 for i in range(4)], "v23", rd))
    return out

def wload_addr(e):
    e("v_and_b32 v18, 3, v0\nv_lshrrev_b32 v19, 2, v0")
    e(f"s_lshl_b32 s{S_TMP}, s{S_H}, 8\ns_lshl_b32 s{S_TMP2}, s{S_W}, 6\ns_add_u32 s{S_TMP}, s{S_TMP}, s{S_TMP2}")
    e(f"v_lshlrev_b32 v20, 13, v19\nv_lshl_add_u32 v20, v18, 4, v20\nv_add_u32 v20, s{S_TMP}, v20")
    e(f"s_lshl_b32 s{S_TMP}, s{S_W}, 20\ns_lshl_b32 s{S_TMP2}, s{S_H}, 5\ns_add_u32 s{S_TMP}, s{S_TMP}, s{S_TMP2}")
    e(f"v_lshrrev_b32 v21, 1, v0\nv_lshlrev_b32 v21, 10, v21\nv_and_b32 v24, 1, v0\nv_lshl_add_u32 v21, v24, 4, v21\nv_add_u32 v21, s{S_TMP}, v21")
    e(f"s_mul_i32 s{S_STGB}, s{S_W}, {NSLOT*4096}\ns_add_u32 s{S_STGB}, s{S_STGB}, {W_STG}")
    e(f"v_lshrrev_b32 v24, 2, v{V_C}")
    e(f"v_lshl_add_u32 v22, v{V_G}, 3, v24\nv_lshlrev_b32 v22, 6, v22\nv_lshl_add_u32 v22, v18, 3, v22\nv_add_u32 v22, s{S_STGB}, v22")
    e(f"v_lshl_add_u32 v23, v{V_G}, 2, v24\nv_lshlrev_b32 v23, 5, v23\nv_lshl_add_u32 v23, v18, 3, v23\nv_add_u32 v23, s{S_STGB}, v23")

def x_dma(e):
    out = []
    for i in range(8):
        out.append([f"s_add_u32 m0, s{S_XL}, {i*1024}", f"s_add_u32 s{S_TMP}, s{S_XG}, {i*64}",
                    f"buffer_load_dwordx4 v{V_XSRC}, s[{R_X}:{R_X+3}], s{S_TMP} offen lds"])
    return out

def flag_store(e, soff, val):
    e(f"v_mov_b32 v{V_T}, {val}\nv_mov_b32 v{V_T2}, s{soff}\ns_mov_b64 exec, s[{S_W0M}:{S_W0M+1}]")
    e(f"buffer_store_dword v{V_T}, v{V_T2}, {WS}, 0 offen sc1\ns_mov_b64 exec, -1")

def mfd(d, a, b, c, pa="v", pb="v"):
    return f"v_mfma_f32_16x16x32_bf16 {vr(d,4)}, {vr(a,4,pa)}, {vr(b,4,pb)}, {c if c == '0' else vr(c,4)}"

def phaseA(e, cfg):
    e("; ---- phase A : K,V projection")
    XF, ACC, OUT = 32, 64, 96
    srd(e, R_A, S_WK, 0x400000); srd(e, R_B, S_WV, 0x400000)
    if cfg.get("seqa"):
        e(f"s_cmp_lt_u32 s{S_G}, 3\ns_cselect_b32 s{S_STP}, 2, 4\ns_cselect_b32 s{S_END}, 28, 64\ns_cselect_b32 s{S_TMP}, 9, 25\ns_add_u32 s{S_SEG}, s{S_G}, s{S_TMP}")
        e(f"s_cmp_eq_u32 s{S_G}, 0\ns_cselect_b32 s{S_STP}, 1, s{S_STP}\ns_cselect_b32 s{S_END}, 10, s{S_END}\ns_cselect_b32 s{S_SEG}, 0, s{S_SEG}")
    else:
        e(f"s_cmp_lt_u32 s{S_G}, 3\ns_cselect_b32 s{S_STP}, 3, 4\ns_cselect_b32 s{S_END}, {cfg.get('asplit', 27)}, 64\ns_cselect_b32 s{S_TMP}, 0, {cfg.get('asplit', 27) - 3}\ns_add_u32 s{S_SEG}, s{S_G}, s{S_TMP}")
    e(f"s_lshl_b32 s{S_XG}, s{S_SEG}, 15\ns_lshl_b32 s{S_XL}, s{S_W}, 13\nv_mov_b32 v{V_XRD}, v{V_L16}")
    for g in x_dma(e):
        for s in g: e(s)
    if cfg.get("wdc", 4) != cfg.get("wda", 4):
        e(f"s_cmp_lt_u32 s{S_G}, 3\ns_cbranch_scc1 PA_W1")
        load_blocks(e, wmat_blocks(R_A, 0) + wmat_blocks(R_B, 128), cfg["wdc"])
        e("s_branch PA_W2")
        e.label("PA_W1")
    load_blocks(e, wmat_blocks(R_A, 0) + wmat_blocks(R_B, 128), cfg.get('wda', 4))
    e.label("PA_W2")
    wait_init(e, "w", 24)
    e(f"s_and_b32 s{S_TMP}, s{S_GRP}, 3\ns_lshl_b32 s{S_TMP}, s{S_TMP}, 4\ns_lshr_b32 s{S_TMP2}, s{S_GRP}, 2\ns_add_u32 s{S_TMP}, s{S_TMP}, s{S_TMP2}\ns_nop 3")
    e(f"v_readlane_b32 s{S_MODE}, v24, s{S_TMP}")
    if cfg.get("force_slow"): e(f"s_mov_b32 s{S_MODE}, 0")
    WST(e)
    e(f"s_mov_b32 s{S_I}, 0x7ffffff0")
    pa = cfg.get("pastamp")
    def acc(k):
        if pa: e(f"s_memtime s[70:71]\ns_waitcnt lgkmcnt(0)\ns_sub_u32 s72, s70, s92\ns_mov_b32 s92, s70\ns_add_u32 s{93+k}, s{93+k}, s72")
    if pa: e("s_memtime s[92:93]\ns_waitcnt lgkmcnt(0)\ns_mov_b32 s93, 0\ns_mov_b32 s94, 0\ns_mov_b32 s95, 0\ns_mov_b32 s96, 0")
    e.label("PA_LOOP")
    if cfg.get("slowa"): e(f"s_cmp_lt_u32 s{S_SEG}, 9\ns_cbranch_scc1 PA_NS\ns_sleep {cfg['slowa']}"); e.label("PA_NS")
    e("s_waitcnt vmcnt(4)")
    acc(0)
    e("s_barrier")
    acc(1)
    e(f"s_lshl_b32 s{S_TMP}, s{S_STP}, 15\ns_add_u32 s{S_XG}, s{S_XG}, s{S_TMP}\ns_xor_b32 s{S_XL}, s{S_XL}, 0x8000")
    dma = x_dma(e)
    seq = {}
    def rd(n):
        s, rt = n // 2, n % 2
        seq[n] = e(f"ds_read_b128 {vr(XF + 4 * (n % 8), 4)}, v{V_XRD} offset:{(rt * 16 + s) * 1024}")
    for n in range(6): rd(n)
    for n in range(32):
        s, rt = n // 2, n % 2
        e.waitlg(seq[n])
        x = XF + 4 * (n % 8)
        for t in range(2):
            a = ACC + 4 * (t * 2 + rt)
            e(mfd(a, (t * 16 + s) * 4, x, "0" if s == 0 else a, "a", "v"))
            if t == 0 and n + 6 < 32: rd(n + 6)
        for t in range(2):
            a = ACC + 16 + 4 * (t * 2 + rt)
            e(mfd(a, x, 128 + (t * 16 + s) * 4, "0" if s == 0 else a, "v", "a"))
        if n % 3 == 1 and n // 3 < 8:
            for q in dma[n // 3]: e(q)
        if n == 14:
            e("s_waitcnt vmcnt(5)\ns_barrier")
            flag_store(e, S_I, 1)
    acc(2)
    e(f"v_xor_b32 v{V_XRD}, 0x8000, v{V_XRD}")
    e(f"s_lshl_b32 s{S_OFF}, s{S_SEG}, 19\ns_lshl_b32 s{S_TMP}, s{S_H}, 14\ns_add_u32 s{S_OFF}, s{S_OFF}, s{S_TMP}\ns_add_u32 s{S_OFF}, s{S_OFF}, {WS_KV}")
    e(f"s_lshl_b32 s{S_TMP}, s{S_W}, 10\ns_add_u32 s{S_TMP2}, s{S_OFF}, s{S_TMP}\ns_nop 0\ns_lshl_b32 s{S_I}, s{S_H}, 6\ns_add_u32 s{S_I}, s{S_I}, s{S_SEG}\ns_lshl_b32 s{S_I}, s{S_I}, 2")
    for rt in range(2):
        o = OUT + 4 * rt
        for t in range(2):
            a = ACC + 4 * (t * 2 + rt)
            e(f"v_cvt_pk_bf16_f32 v{o+2*t}, v{a}, v{a+1}\nv_cvt_pk_bf16_f32 v{o+2*t+1}, v{a+2}, v{a+3}")
        e(f"buffer_store_dwordx4 {vr(o,4)}, v{V_L16}, {WS}, s{S_TMP2} offen sc1")
        e(f"s_add_u32 s{S_TMP2}, s{S_TMP2}, 4096")
    e(f"s_add_u32 s{S_TMP2}, s{S_TMP2}, s{S_TMP}")
    for t in range(2):
        o = OUT + 8 + 4 * t
        for rt in range(2):
            a = ACC + 16 + 4 * (t * 2 + rt)
            e(f"v_cvt_pk_bf16_f32 v{o+2*rt}, v{a}, v{a+1}\nv_cvt_pk_bf16_f32 v{o+2*rt+1}, v{a+2}, v{a+3}")
        e(f"buffer_store_dwordx4 {vr(o,4)}, v{V_L16}, {WS}, s{S_TMP2} offen offset:{t*1024} sc1")
    acc(3)
    e(f"s_add_u32 s{S_SEG}, s{S_SEG}, s{S_STP}\ns_cmp_lt_u32 s{S_SEG}, s{S_END}\ns_cbranch_scc1 PA_LOOP")
    e("s_waitcnt vmcnt(0)\ns_barrier")
    flag_store(e, S_I, 1)
    if pa:
        e(f"s_lshl_b32 s72, s{S_GRP}, 5\ns_add_u32 s72, s72, s{S_H}\ns_lshl_b32 s72, s72, 4\ns_add_u32 s72, s72, {WS_STAMP + 0x30000}")
        e(f"v_mov_b32 v32, s93\nv_mov_b32 v33, s94\nv_mov_b32 v34, s95\nv_mov_b32 v35, s96\nv_mov_b32 v36, 0\nbuffer_store_dwordx4 v[32:35], v36, {WS}, s72 offen")

def poll_all(e, name, vaddr, soff, cmpv, vt, sleep=8, bar=True, pre=False):
    l, d = e.newlabel(name), e.newlabel(name + "D")
    e(f"s_cmp_eq_u32 s{S_W}, 0\ns_cbranch_scc0 {d}")
    if pre: e(f"v_cmp_gt_u32 vcc, {cmpv}, v{vt}\ns_cbranch_vccz {d}")
    e.label(l)
    e(f"buffer_load_dword v{vt}, v{vaddr}, {WS}, {soff} offen sc1\ns_add_u32 s{S_SPIN}, s{S_SPIN}, 1\ns_waitcnt vmcnt(0)")
    e(f"v_cmp_gt_u32 vcc, {cmpv}, v{vt}\ns_cbranch_vccz {d}\ns_sleep {sleep}")
    e(f"s_cmp_lt_u32 s{S_SPIN}, {SPIN_MAX}\ns_cbranch_scc1 {l}")
    e.label(d)
    if bar: e("s_barrier")

def rb_pair(e, d, a, b):
    e(f"v_cvt_pk_bf16_f32 v{d}, v{a}, v{b}\nv_lshlrev_b32 v{a}, 16, v{d}\nv_and_b32 v{b}, 0xffff0000, v{d}")

C_UR, C_HP, URS, HPC = 0x0, 0x8000, 7680, 4160
HPS = 4 * HPC
def conv(e, cfg):
    e("; ---- conv task")
    S_TK = S_OFF
    e(f"s_cmp_lt_u32 s{S_G}, 3\ns_cbranch_scc1 CV_END\ns_sub_u32 s{S_TK}, s{S_G}, 3\ns_lshl_b32 s{S_TK}, s{S_TK}, 5\ns_add_u32 s{S_TK}, s{S_TK}, s{S_H}")
    if cfg.get("cvwait") is not None:
        wait_init(e, "w", 24)
        e(f"s_lshl_b32 s{S_OFF2}, s{S_H}, 8\ns_add_u32 s{S_OFF2}, s{S_OFF2}, {4*cfg['cvwait']}\nv_mov_b32 v24, 0")
        poll_all(e, "CVS", 24, f"s{S_OFF2}", 1, 25, 32)
    srd(e, R_A, S_K, 0x200000); srd(e, R_B, S_V, 0x200000)
    KR, VR, SH, P, U = 32, 56, 72, 88, 112
    e(f"s_lshl_b32 s{S_TMP}, s{S_W}, 6\nv_add_u32 v16, s{S_TMP}, v0")
    e(f"s_lshl_b32 s{S_TMP}, s{S_TK}, 3\nv_lshlrev_b32 v17, 13, v16\nv_add_u32 v17, s{S_TMP}, v17")
    e("v_subrev_u32 v18, 3072, v17")
    for j in range(3): e(f"buffer_load_dwordx2 {vr(KR+2*j,2)}, v18, s[{R_A}:{R_A+3}], 0 offen offset:{j*1024}")
    e("v_add_u32 v19, 4096, v17")
    for j in range(8):
        va = "v17" if j < 4 else "v19"
        e(f"buffer_load_dwordx2 {vr(KR+6+2*j,2)}, {va}, s[{R_A}:{R_A+3}], 0 offen offset:{(j%4)*1024}")
        e(f"buffer_load_dwordx2 {vr(VR+2*j,2)}, {va}, s[{R_B}:{R_B+3}], 0 offen offset:{(j%4)*1024}")
    e(f"s_lshl_b32 s{S_TMP2}, s{S_TK}, 2\ns_add_u32 s{S_TMP2}, s{S_TMP2}, s{S_W}")
    e(f"s_lshl_b32 s{S_XG}, s{S_TMP2}, 12\ns_mul_i32 s{S_XL}, s{S_W}, {HPS}\ns_add_u32 s{S_XL}, s{S_XL}, {C_HP}")
    e(f"s_add_u32 s{R_O}, s{S_SSMK}, s{S_XG}\ns_addc_u32 s{R_O+1}, s{S_SSMK+1}, 0\ns_mov_b32 s{R_O+2}, 4096\ns_mov_b32 s{R_O+3}, 0x20000")
    HR = 140
    for i in range(5):
        e(f"v_add_u32 v22, {i*1024 - 64}, v{V_L16}\nv_add_u32 v23, {i*1024 - 48}, v{V_L16}")
        e(f"buffer_load_dwordx4 {vr(HR+6*i,4)}, v22, s[{R_O}:{R_O+3}], 0 offen\nbuffer_load_dwordx2 {vr(HR+6*i+4,2)}, v23, s[{R_O}:{R_O+3}], 0 offen")
    e(f"s_lshl_b32 s{S_TMP}, s{S_TK}, 5\ns_load_dwordx8 s[92:99], s[{S_SH}:{S_SH+1}], s{S_TMP}")
    e(f"s_lshl_b32 s{S_TMP}, s{S_TMP2}, 1\ns_and_b32 s{S_TMP}, s{S_TMP}, -4\ns_load_dword s{S_CNT}, s[{S_SSMD}:{S_SSMD+1}], s{S_TMP}")
    e(f"v_mov_b64 v[24:25], 0\nv_mov_b64 v[26:27], 0")
    e(f"s_mul_i32 s{S_I}, s{S_W}, {URS}\nv_add_u32 v20, s{S_I}, v{V_L16}")
    for i in range(2): e(f"ds_write_b128 v20, v[24:27] offset:{5120 + i*1024}")
    e(f"s_mov_b32 exec_hi, 0\nds_write_b128 v20, v[24:27] offset:{5120 + 2048}\ns_mov_b64 exec, -1")
    e("v_lshlrev_b32 v20, 3, v16\nv_sub_u32 v20, 2040, v20\nv_lshrrev_b32 v21, 5, v20\nv_and_b32 v20, 31, v20")
    e("v_mul_u32_u24 v21, 80, v21\nv_lshl_add_u32 v20, v20, 1, v21")
    e("s_waitcnt vmcnt(10) lgkmcnt(0)")
    if cfg.get("cvstamp"): WST(e)
    e("v_cmp_eq_u32 vcc, 0, v16\ns_nop 1")
    for r in range(6): e(f"v_cndmask_b32 v{KR+r}, v{KR+r}, v24, vcc")
    for ch in range(4):
        for j in range(4):
            src = 92 + ch * 2 + j // 2
            e(f"s_lshl_b32 s{70+j}, s{src}, 16" if j % 2 == 0 else f"s_and_b32 s{70+j}, s{src}, 0xffff0000")
        KF = 120
        for j in range(11):
            r = KR + 2 * j + ch // 2
            e(f"v_lshlrev_b32 v{KF+j}, 16, v{r}" if ch % 2 == 0 else f"v_and_b32 v{KF+j}, 0xffff0000, v{r}")
        for pr in range(4):
            a, b, t1, t2, d = P, P + 1, P + 2, P + 3, P + 4
            r0 = 2 * pr
            e(f"v_mul_f32 v{a}, s73, v{KF+r0}\nv_mul_f32 v{b}, s73, v{KF+r0+1}")
            rb_pair(e, d, a, b)
            for j in (2, 1, 0):
                e(f"v_mul_f32 v{t1}, s{70+j}, v{KF+r0+3-j}\nv_mul_f32 v{t2}, s{70+j}, v{KF+r0+1+3-j}")
                rb_pair(e, d, t1, t2)
                e(f"v_add_f32 v{a}, v{a}, v{t1}\nv_add_f32 v{b}, v{b}, v{t2}")
                rb_pair(e, d, a, b)
            for q, rr in ((t1, r0), (t2, r0 + 1)):
                r = VR + 2 * rr + ch // 2
                e(f"v_lshlrev_b32 v{q}, 16, v{r}" if ch % 2 == 0 else f"v_and_b32 v{q}, 0xffff0000, v{r}")
            e(f"v_mul_f32 v{a}, v{a}, v{t1}\nv_mul_f32 v{b}, v{b}, v{t2}")
            e(f"v_cvt_pk_bf16_f32 v{U+3-pr}, v{b}, v{a}")
        e(f"ds_write_b128 v20, {vr(U,4)} offset:{ch*URS}\ns_nop 1")
    if cfg.get("cvstamp"): WST(e)
    e(f"s_waitcnt vmcnt(0)\nv_add_u32 v22, s{S_XL}, v{V_L16}")
    for i in range(5):
        x = HR + 6 * i
        if i == 4: e("s_mov_b64 exec, 15")
        for k in range(4): e(f"v_alignbyte_b32 v{P+k}, v{x+k+1}, v{x+k}, 2")
        for k in range(4): e(f"v_alignbyte_b32 v{P+4+k}, v{x+k+2}, v{x+k+1}, 2")
        for k in range(4): e(f"v_mov_b32 v{P+8+k}, v{x+k+1}")
        e(f"ds_write_b128 v22, {vr(x,4)} offset:{i*1024}\nds_write_b128 v22, {vr(P,4)} offset:{i*1024 + HPC}")
        e(f"ds_write_b128 v22, {vr(P+8,4)} offset:{i*1024 + 2*HPC}\nds_write_b128 v22, {vr(P+4,4)} offset:{i*1024 + 3*HPC}\ns_waitcnt lgkmcnt(0)")
    e("s_mov_b64 exec, -1\ns_barrier")
    if cfg.get("cvstamp"): WST(e)
    e(f"v_and_b32 v16, 31, v0\nv_lshrrev_b32 v17, 5, v0")
    e(f"v_lshl_add_u32 v18, v17, 3, v16\nv_add_u32 v18, 1, v18\nv_and_b32 v19, 3, v18\nv_and_b32 v18, -4, v18\nv_mul_u32_u24 v19, {HPC}, v19")
    e(f"v_lshl_add_u32 v18, v18, 1, v19\nv_add_u32 v18, s{S_XL}, v18")
    e(f"v_sub_u32 v19, 63, v16\nv_mul_u32_u24 v19, 80, v19\nv_lshl_add_u32 v19, v17, 4, v19\nv_add_u32 v19, s{S_I}, v19")
    e("v_subrev_u32 v21, 2560, v19")
    AC0, AC1, FR, NB = 32, 48, 64, 3
    seq = {}
    def rd(sg):
        b = FR + 16 * (sg % NB); bo = (sg // 2) * 80 + (sg % 2) * 32
        e(f"ds_read_b64 {vr(b,2)}, v18 offset:{sg*32}\nds_read_b64 {vr(b+2,2)}, v18 offset:{sg*32+8}")
        e(f"ds_read_b128 {vr(b+4,4)}, v19 offset:{bo}")
        e(f"ds_read_b128 {vr(b+8,4)}, v21 offset:{bo}")
        seq[sg] = e(f"ds_read_b64 {vr(b+12,2)}, v18 offset:{sg*32+2048}\nds_read_b64 {vr(b+14,2)}, v18 offset:{sg*32+2056}")
    def mm(d, a, b, first): return f"v_mfma_f32_32x32x16_bf16 {vr(d,16)}, {vr(a,4)}, {vr(b,4)}, {'0' if first else vr(d,16)}"
    rd(0); rd(1)
    for sg in range(64):
        b = FR + 16 * (sg % NB)
        e.waitlg(seq[sg])
        e(mm(AC0, b, b + 4, sg == 0))
        if sg + 2 < 64: rd(sg + 2)
        e(mm(AC1, b, b + 8, sg == 0))
        e(mm(AC1, b + 12, b + 4, False))
    if cfg.get("cvstamp"): WST(e)
    e(f"s_bitcmp1_b32 s{S_TMP2}, 0\ns_cbranch_scc1 CV_D1\ns_lshl_b32 s{S_CNT}, s{S_CNT}, 16")
    e.label("CV_D1")
    e(f"s_and_b32 s{S_CNT}, s{S_CNT}, 0xffff0000")
    e(f"v_lshlrev_b32 v22, 5, v17\nv_sub_u32 v22, v19, v22\nv_lshl_add_u32 v22, v17, 3, v22")
    e(f"v_lshlrev_b32 v23, 6, v16\nv_lshl_add_u32 v23, v17, 3, v23")
    e(f"s_lshl_b32 s{S_XG}, s{S_TMP2}, 12\ns_add_u32 s{S_XG}, s{S_XG}, {WS_Y2}")
    e("v_subrev_u32 v24, 2560, v22")
    for tl in range(2):
        for q in range(4):
            e(f"ds_read_b64 {vr(FR + 8*tl + 2*q, 2)}, {'v22' if tl == 0 else 'v24'} offset:{56 - 16*q}")
    e("s_waitcnt lgkmcnt(0)\ns_nop 7")
    for tl in range(2):
        for q in range(4):
            y = (AC0 if tl == 0 else AC1) + 4 * q; u = FR + 8 * tl + 2 * q; t = 96
            e(f"v_and_b32 v{t}, 0xffff0000, v{u+1}\nv_lshlrev_b32 v{t+1}, 16, v{u+1}\nv_and_b32 v{t+2}, 0xffff0000, v{u}\nv_lshlrev_b32 v{t+3}, 16, v{u}")
            for i in range(4): e(f"v_mul_f32 v{t+i}, s{S_CNT}, v{t+i}")
            rb_pair(e, t + 4, t, t + 1); rb_pair(e, t + 4, t + 2, t + 3)
            rb_pair(e, t + 4, y, y + 1); rb_pair(e, t + 4, y + 2, y + 3)
            for i in range(4): e(f"v_add_f32 v{y+i}, v{y+i}, v{t+i}")
            e(f"v_cvt_pk_bf16_f32 v{y}, v{y}, v{y+1}\nv_cvt_pk_bf16_f32 v{y+1}, v{y+2}, v{y+3}")
            e(f"buffer_store_dwordx2 {vr(y,2)}, v23, {WS}, s{S_XG} offen offset:{tl*2048 + q*16} sc1")
    if cfg.get("cvstamp"): e("s_nop 0"); WST(e)
    e("s_waitcnt vmcnt(0)\ns_barrier")
    wait_init(e, "w", 24)
    e(f"s_lshl_b32 s{S_TK}, s{S_TK}, 2\ns_add_u32 s{S_TK}, s{S_TK}, {FL_CONV}")
    flag_store(e, S_TK, 1)
    e.label("CV_END")

def phaseB(e, cfg):
    e("; ---- phase B")
    srd(e, R_A, S_WQ, 0x400000); srd(e, R_B, S_WO, 0x400000)
    wload_addr(e)
    e(f"s_mov_b32 s{S_SEG}, s{S_G}\ns_lshl_b32 s{S_XG}, s{S_SEG}, 15\ns_lshl_b32 s{S_XL}, s{S_W}, 13")
    e(f"v_mov_b32 v{V_XRD}, v{V_L16}")
    for g in x_dma(e):
        for s in g: e(s)
    load_blocks(e, wmat_blocks(R_A, 0) + wo_blocks(R_B, 128), cfg.get('wdb', 4))
    srd(e, R_O, S_OUT, 0x200000); srd(e, R_A, S_GATE, 1024)
    GW = 16
    e(f"buffer_load_dwordx4 {vr(GW,4)}, v{V_L16}, s[{R_A}:{R_A+3}], 0 offen")
    e(f"s_and_b32 s62, s{S_W}, 1\ns_lshr_b32 s63, s{S_W}, 1")
    e(f"v_lshlrev_b32 v8, 2, v{V_G}\nv_sub_u32 v8, v{V_C}, v8\ns_lshl_b32 s{S_TMP}, s62, 4\nv_add_u32 v8, s{S_TMP}, v8\nv_subrev_u32 v9, 16, v8")
    e(f"v_lshrrev_b32 v25, 2, v{V_C}\nv_lshl_add_u32 v25, v{V_G}, 2, v25\nv_and_b32 v24, 1, v0\nv_lshlrev_b32 v24, 3, v24\nv_lshl_add_u32 v10, v25, 4, v24\nv_add_u32 v10, {W_KMU}, v10")
    e(f"s_lshl_b32 s{S_TMP}, s{S_W}, 9\ns_add_u32 s{S_TMP}, s{S_TMP}, {W_KMU}\nv_lshlrev_b32 v22, 4, v{V_C}\nv_lshl_add_u32 v22, v{V_G}, 2, v22\nv_add_u32 v22, s{S_TMP}, v22")
    e(f"s_lshl_b32 s{S_TMP}, s{S_W}, 9\nv_lshl_add_u32 v23, v0, 3, s{S_TMP}")
    e(f"v_and_b32 v24, 1, v{V_G}\nv_lshl_add_u32 v11, v24, 5, v{V_C}\nv_lshlrev_b32 v11, 3, v11\ns_lshl_b32 s{S_TMP}, s63, 10\ns_add_u32 s{S_TMP}, s{S_TMP}, 2048\nv_add_u32 v11, s{S_TMP}, v11")
    e(f"v_lshrrev_b32 v24, 2, v0\nv_and_b32 v25, 3, v0\nv_lshlrev_b32 v12, 10, v24\nv_lshl_add_u32 v12, v25, 8, v12")
    e(f"s_lshr_b32 s{S_TMP}, s{S_H}, 4\ns_lshl_b32 s{S_TMP}, s{S_TMP}, 14\ns_and_b32 s{S_TMP2}, s{S_H}, 15\ns_lshl_b32 s{S_TMP2}, s{S_TMP2}, 4\ns_add_u32 s{S_TMP}, s{S_TMP}, s{S_TMP2}\nv_add_u32 v12, s{S_TMP}, v12")
    e(f"s_lshl_b32 s{S_TMP}, s{S_W}, 3\nv_lshrrev_b32 v24, 3, v0\nv_add_u32 v24, s{S_TMP}, v24\nv_and_b32 v25, 7, v0")
    e(f"v_lshrrev_b32 v26, 4, v24\nv_and_b32 v27, 15, v24\nv_lshlrev_b32 v13, 10, v26\nv_lshl_add_u32 v13, v27, 4, v13")
    e(f"v_lshrrev_b32 v26, 1, v25\nv_lshl_add_u32 v13, v26, 8, v13\nv_and_b32 v26, 1, v25\nv_lshl_add_u32 v13, v26, 3, v13\nv_add_u32 v13, {W_RED}, v13")
    e(f"s_lshl_b32 s{S_TMP}, s{S_H}, 16\nv_lshlrev_b32 v14, 13, v25\nv_lshl_add_u32 v14, v24, 1, v14\nv_add_u32 v14, s{S_TMP}, v14")
    e(f"s_lshl_b32 s{S_TMP}, s{S_H}, 5\nv_lshlrev_b32 v15, 10, v24\nv_lshl_add_u32 v15, v25, 2, v15\nv_add_u32 v15, s{S_TMP}, v15")
    e(f"v_and_b32 v20, 31, v0\nv_lshlrev_b32 v20, 7, v20\nv_lshlrev_b32 v21, 2, v24")
    e(f"s_lshl_b32 s{S_CF}, s{S_H}, 7\ns_add_u32 s{S_CF}, s{S_CF}, {FL_CFLAG}\ns_mov_b32 s{S_SC}, 0x3e0293ee")
    e(f"v_lshlrev_b32 v24, 2, v0\ns_mov_b32 s{S_OFF}, {FL_CONV}\ns_mov_b32 s{S_OFF2}, {FL_CONV+256}\ns_lshl_b32 s{S_CNT}, s{S_H}, 8")
    e(f"v_mov_b32 v26, 0\nv_mov_b32 v31, 0\ns_mov_b32 s{S_CHN}, 0")
    e(f"s_mov_b32 s{S_PREV}, -1")
    KF, VF, XF, ACC, QF, KM, VM, SS_, PB, OA, TT = 32, 64, 80, 112, 232, 144, 248, 216, 180, 188, 224
    KR_, F1, F2, F3, W_RDY = 28, 25, 30, 31, 0x15000
    X0, X1, M, MX = SS_, SS_ + 4, 168, 27
    RB, NRF, FA = 80, 32, 208
    S_RT, S_LM_, S_SH_, S_SEL_ = 64, 94, 96, 97
    def final(half=False, pre=False):
        cd = e.newlabel("CVD")
        e(f"s_cmp_eq_u32 s{S_CHN}, 1\ns_cbranch_scc1 {cd}\ns_mov_b32 s{S_CHN}, 1\ns_mov_b32 s{S_OFF}, {FL_CONV}\ns_mov_b32 s{S_OFF2}, {FL_CONV+256}")
        poll_all(e, "CVW", 24, f"s{S_OFF}", 1, TT + 2, 32, False)
        poll_all(e, "CVW", 24, f"s{S_OFF2}", 1, TT + 2, 32, True)
        e.label(cd)
        e(f"s_lshl_b32 s{S_TMP}, s{S_PREV}, 6\ns_add_u32 s{S_TMP}, s{S_TMP}, {WS_Y2}\ns_add_u32 s{S_I}, s{S_TMP}, 4096")
        e(f"buffer_load_ushort v{TT+4}, v14, {WS}, s{S_TMP} offen sc1\nbuffer_load_ushort v{TT+5}, v14, {WS}, s{S_I} offen sc1")
        e(f"s_lshl_b32 s{S_CNT}, s{S_PREV}, 15\nbuffer_load_dword v{TT+6}, v15, s[{R_X}:{R_X+3}], s{S_CNT} offen")
        e(f"s_lshl_b32 s{S_OFF2}, s{S_PREV}, 12\ns_add_u32 s{S_OFF2}, s{S_OFF2}, {FL_O2}")
        WST(e)
        poll_all(e, "OW", 20, f"s{S_OFF2}", 1, F1, cfg.get("osleep", 4), True, pre)
        WST(e)
        e(f"s_lshl_b32 s{S_TMP}, s{S_PREV}, 7\ns_add_u32 s{S_TMP}, s{S_TMP}, {WS_G}\nbuffer_load_dword v{TT+7}, v21, {WS}, s{S_TMP} offen sc1")
        e(f"s_mul_i32 s{S_OFF}, s{S_PREV}, 37\ns_lshr_b32 s{S_OFF}, s{S_OFF}, 9\ns_mul_i32 s{S_OFF}, s{S_OFF}, 14\ns_sub_u32 s{S_OFF}, s{S_PREV}, s{S_OFF}\ns_lshl_b32 s{S_OFF}, s{S_OFF}, 18\ns_lshl_b32 s{S_TMP}, s{S_W}, 16\ns_add_u32 s{S_OFF}, s{S_OFF}, s{S_TMP}\ns_add_u32 s{S_OFF}, s{S_OFF}, {WS_O}")
        NL = 32 if half else 64
        NR = NRF if half else cfg.get('nr', 32)
        if half: e(f"s_lshl_b32 s{S_TMP}, s{S_RT}, 12\ns_add_u32 s{S_OFF}, s{S_OFF}, s{S_TMP}")
        def ld(n):
            if n % 4 == 0 and n > 0: e(f"s_add_u32 s{S_OFF}, s{S_OFF}, {8192 if half else 4096}")
            e(f"buffer_load_dwordx4 {vr(RB + 4 * (n % NR), 4)}, v{V_L16}, {WS}, s{S_OFF} offen offset:{(n % 4) * 1024} sc1")
        if half: e(f"s_mov_b64 exec, s[{S_LM_}:{S_LM_+1}]")
        for n in range(NR): ld(n)
        if half: e("s_mov_b64 exec, -1")
        for n in range(NL):
            hh, rt, js = (n // 4, 0, n % 4) if half else (n // 8, (n // 4) % 2, n % 4)
            e(f"s_waitcnt vmcnt({min(NL - 1 - n, NR - 1)})")
            a = FA + 4 * rt
            e(mfd(a, 128 + (hh * 4 + js) * 4, RB + 4 * (n % NR), "0" if n == 4 * rt else a, "a", "v"))
            if n + NR < NL: ld(n + NR)
        e(f"s_lshl_b32 s{S_TMP}, s{S_W}, 11\ns_add_u32 s{S_TMP}, s{S_TMP}, {W_RED}")
        if half: e(f"s_lshl_b32 s{S_I}, s{S_RT}, 10\ns_add_u32 s{S_TMP}, s{S_TMP}, s{S_I}")
        e(f"v_add_u32 v{V_T}, s{S_TMP}, v{V_L16}\ns_nop 5")
        e(f"ds_write_b128 v{V_T}, {vr(FA,4)}")
        if not half: e(f"ds_write_b128 v{V_T}, {vr(FA+4,4)} offset:1024")
        e("s_waitcnt lgkmcnt(0)\ns_barrier")
        B0 = RB
        for w in range(4): e(f"ds_read_b64 {vr(B0+2*w,2)}, v13 offset:{w*2048}")
        y0, y1, q, g = TT + 4, TT + 5, TT + 6, TT + 7
        e(f"v_lshlrev_b32 v{y0}, 16, v{y0}\nv_lshlrev_b32 v{y1}, 16, v{y1}\nv_lshlrev_b32 v{B0+8}, 16, v{q}\nv_and_b32 v{B0+9}, 0xffff0000, v{q}")
        e(f"v_mul_f32 v{y0}, v{y0}, v{B0+8}\nv_mul_f32 v{y1}, v{y1}, v{B0+9}")
        rb_pair(e, B0 + 10, y0, y1)
        e(f"v_mul_f32 v{y0}, v{y0}, v{g}\nv_mul_f32 v{y1}, v{y1}, v{g}")
        rb_pair(e, B0 + 10, y0, y1)
        e(f"v_sub_f32 v{g}, 1.0, v{g}\nv_cvt_pk_bf16_f32 v{g}, v{g}, v{g}\nv_lshlrev_b32 v{g}, 16, v{g}\ns_waitcnt lgkmcnt(0)")
        e(f"v_add_f32 v{B0}, v{B0}, v{B0+2}\nv_add_f32 v{B0+1}, v{B0+1}, v{B0+3}\nv_add_f32 v{B0+4}, v{B0+4}, v{B0+6}\nv_add_f32 v{B0+5}, v{B0+5}, v{B0+7}")
        e(f"v_add_f32 v{B0}, v{B0}, v{B0+4}\nv_add_f32 v{B0+1}, v{B0+1}, v{B0+5}")
        rb_pair(e, B0 + 10, B0, B0 + 1)
        e(f"v_mul_f32 v{B0}, v{B0}, v{g}\nv_mul_f32 v{B0+1}, v{B0+1}, v{g}")
        rb_pair(e, B0 + 10, B0, B0 + 1)
        e(f"v_add_f32 v{B0}, v{B0}, v{y0}\nv_add_f32 v{B0+1}, v{B0+1}, v{y1}\nv_cvt_pk_bf16_f32 v{B0}, v{B0}, v{B0+1}")
        if half: e(f"s_lshr_b32 s{S_TMP}, s{S_W}, s{S_SH_}\ns_cmp_eq_u32 s{S_TMP}, s{S_SEL_}\ns_cselect_b64 exec, -1, 0")
        e(f"buffer_store_dword v{B0}, v15, s[{R_O}:{R_O+3}], s{S_CNT} offen {cfg.get('outst', '')}")
        if half: e("s_mov_b64 exec, -1")
    e.label("PB_LOOP")
    e(f"s_lshl_b32 s{S_CNT}, s{S_H}, 6\ns_add_u32 s{S_CNT}, s{S_CNT}, s{S_SEG}\ns_lshl_b32 s{S_CNT}, s{S_CNT}, 2")
    poll_all(e, "KVW", 26, f"s{S_CNT}", 1, F3, 16, False, True)
    e("s_waitcnt vmcnt(0)\ns_barrier")
    WST(e)
    e(f"s_add_u32 s{S_CNT}, s{S_CNT}, 28\ns_sub_u32 exec_lo, 0, s{S_W0M}\ns_mov_b32 exec_hi, exec_lo")
    e(f"buffer_load_dword v{F2}, off, {WS}, s{S_CF} sc1\nbuffer_load_dword v{F3}, off, {WS}, s{S_CNT} sc1\ns_mov_b64 exec, -1")
    e(f"s_lshl_b32 s{S_OFF}, s{S_SEG}, 19\ns_lshl_b32 s{S_TMP}, s{S_H}, 14\ns_add_u32 s{S_OFF}, s{S_OFF}, s{S_TMP}\ns_add_u32 s{S_OFF}, s{S_OFF}, {WS_KV}")
    e(f"s_add_u32 s{S_OFF2}, s{S_OFF}, 4096\ns_lshl_b32 s{S_TMP}, s63, 12\ns_add_u32 s{S_CNT}, s{S_OFF}, s{S_TMP}\ns_add_u32 s{S_CNT}, s{S_CNT}, 8192")
    lds_ = []
    for js in range(4):
        lds_.append(f"buffer_load_dwordx4 {vr(KF+4*js,4)}, v{V_L16}, {WS}, s{S_OFF} offen offset:{js*1024} sc1")
        lds_.append(f"buffer_load_dwordx4 {vr(KF+16+4*js,4)}, v{V_L16}, {WS}, s{S_OFF2} offen offset:{js*1024} sc1")
        lds_.append(f"buffer_load_dwordx4 {vr(VF+4*js,4)}, v{V_L16}, {WS}, s{S_CNT} offen offset:{js*1024} sc1")
    seq = {}
    def rd(n):
        s, rt = n // 2, n % 2
        seq[n] = e(f"ds_read_b128 {vr(XF + 4 * (n % 8), 4)}, v{V_XRD} offset:{(rt * 16 + s) * 1024}")
    sg = e(f"ds_read_b128 {vr(TT,4)}, v12")
    for n in range(6): rd(n)
    for n in range(32):
        s, rt = n // 2, n % 2
        e.waitlg(seq[n])
        x = XF + 4 * (n % 8)
        for t in range(2):
            a = ACC + 4 * (t * 2 + rt)
            e(mfd(a, (t * 16 + s) * 4, x, "0" if s == 0 else a, "a", "v"))
            if t == 0 and n + 6 < 32: rd(n + 6)
        if n % 2 == 1 and n // 2 < 12: e(lds_[n // 2])
        if n == 31:
            e(f"s_lshl_b32 s{S_TMP}, s{S_PREV}, 12\ns_add_u32 s{S_TMP}, s{S_TMP}, {FL_O2}\ns_sub_u32 exec_lo, 0, s{S_W0M}\ns_mov_b32 exec_hi, exec_lo")
            e(f"buffer_load_dword v{F1}, v20, {WS}, s{S_TMP} offen sc1\ns_mov_b64 exec, -1")
    for i in range(4):
        e(f"v_lshlrev_b32 v{TT+4}, 16, v{TT+i}\nv_and_b32 v{TT+5}, 0xffff0000, v{TT+i}\nv_lshlrev_b32 v{TT+6}, 16, v{GW+i}\nv_and_b32 v{TT+7}, 0xffff0000, v{GW+i}")
        e(f"v_mul_f32 v{TT+4}, v{TT+4}, v{TT+6}\nv_mul_f32 v{TT+5}, v{TT+5}, v{TT+7}")
        rb_pair(e, TT + 6, TT + 4, TT + 5)
        e(f"v_add_f32 v{TT+i}, v{TT+4}, v{TT+5}")
    e(f"v_add_f32 v{TT}, v{TT}, v{TT+1}\nv_add_f32 v{TT+2}, v{TT+2}, v{TT+3}\nv_add_f32 v{TT}, v{TT}, v{TT+2}")
    for rt in range(2):
        o = QF + 4 * rt
        for t in range(2):
            a = ACC + 4 * (t * 2 + rt)
            e(f"v_cvt_pk_bf16_f32 v{o+2*t}, v{a}, v{a+1}\nv_cvt_pk_bf16_f32 v{o+2*t+1}, v{a+2}, v{a+3}")
    e(f"s_lshl_b32 s{S_TMP}, s{S_W}, 10\ns_add_u32 s{S_TMP}, s{S_TMP}, {W_QX}\nv_add_u32 v{V_T}, s{S_TMP}, v{V_L16}")
    e(f"ds_write_b128 v{V_T}, {vr(QF,4)}\nds_write_b128 v{V_T}, {vr(QF+4,4)} offset:4096")
    for ror in (1, 2, 4, 8):
        e(f"s_nop 1\nv_add_f32_dpp v{TT}, v{TT}, v{TT} row_ror:{ror} row_mask:0xf bank_mask:0xf")
    for op in ("v_permlane16_swap_b32", "v_permlane32_swap_b32"):
        e(f"v_mov_b32 v{TT+1}, v{TT}\ns_nop 1\n{op} v{TT}, v{TT+1}\nv_add_f32 v{TT}, v{TT}, v{TT+1}")
    e(f"v_cvt_pk_bf16_f32 v{TT}, v{TT}, v{TT}\nv_lshlrev_b32 v{TT}, 16, v{TT}\nv_mul_f32 v{TT}, 0xbfb8aa3b, v{TT}\nv_exp_f32 v{TT}, v{TT}\ns_nop 0")
    e(f"v_add_f32 v{TT}, 1.0, v{TT}\nv_rcp_f32 v{TT}, v{TT}\ns_nop 0\nv_cvt_pk_bf16_f32 v{TT}, v{TT}, v{TT}\nv_lshlrev_b32 v{TT}, 16, v{TT}")
    e(f"s_lshl_b32 s{S_TMP}, s{S_SEG}, 5\ns_add_u32 s{S_TMP}, s{S_TMP}, s{S_H}\ns_lshl_b32 s{S_TMP}, s{S_TMP}, 2\ns_add_u32 s{S_TMP}, s{S_TMP}, {WS_G}")
    e(f"v_mov_b32 v{V_T2}, 0\ns_mov_b64 exec, s[{S_W0M}:{S_W0M+1}]\nbuffer_store_dword v{TT}, v{V_T2}, {WS}, s{S_TMP} offen sc1\ns_mov_b64 exec, -1")
    if cfg.get("wtouch"):
        e(f"s_add_u32 s{S_TMP}, s{S_OFF}, {7 << 19}\ns_lshl_b32 s{S_TMP2}, s{S_SEG}, 17\ns_add_u32 s{S_TMP2}, s{S_TMP2}, {WS_KVM + (7 << 17)}\ns_mov_b64 exec, s[{S_W0M}:{S_W0M+1}]")
        e(f"buffer_load_dword v252, off, {WS}, s{S_TMP} sc1\nbuffer_load_dword v253, off, {WS}, s{S_TMP2} sc1\ns_mov_b64 exec, -1")
    e(f"s_waitcnt vmcnt(14)\nv_mov_b32 v{V_T}, {W_RDY}\ns_mov_b64 exec, s[{S_W0M}:{S_W0M+1}]\nds_write_b32 v{V_T}, v{F2}\ns_mov_b64 exec, -1")
    e(f"s_waitcnt lgkmcnt(0)\ns_barrier\nds_read_b32 v{F2}, v{V_T}")
    e(f"s_add_u32 s{S_XG}, s{S_XG}, {7 << 15}\ns_xor_b32 s{S_XL}, s{S_XL}, 0x8000")
    e(f"s_lshl_b32 s{S_TMP}, s62, 12\ns_add_u32 s{S_TMP}, s{S_TMP}, {W_QX}\nv_add_u32 v{V_T}, s{S_TMP}, v{V_L16}")
    for js in range(4): e(f"ds_read_b128 {vr(QF+4*js,4)}, v{V_T} offset:{js*1024}")
    e(f"v_xor_b32 v{V_XRD}, 0x8000, v{V_XRD}\nv_xor_b32 v12, 0x8000, v12")
    e(f"s_waitcnt vmcnt({3 if cfg.get('wtouch') else 1}) lgkmcnt(0)")
    for js in range(4):
        c = lambda r: "0" if js == 0 else r
        e(mfd(X0, KF + 4 * js, QF + 4 * js, c(X0))); e(mfd(X1, KF + 16 + 4 * js, QF + 4 * js, c(X1)))
    for g in x_dma(e):
        for s in g: e(s)
    e(f"v_mov_b32 v{TT}, 0xf149f2ca")
    for kt in range(2):
        for i in range(4):
            e(f"v_cmp_le_i32 vcc, {i}, v{8+kt}\ns_nop 1\nv_cndmask_b32 v{SS_+4*kt+i}, v{TT}, v{SS_+4*kt+i}, vcc")
    e(f"v_max3_f32 v{MX}, v{X0}, v{X0+1}, v{X0+2}\nv_max3_f32 v{TT}, v{X1}, v{X1+1}, v{X1+2}\nv_max3_f32 v{MX}, v{MX}, v{X0+3}, v{X1+3}\nv_max_f32 v{MX}, v{MX}, v{TT}")
    S_KO = 92
    e(f"s_lshl_b32 s{S_KO}, s{S_SEG}, 17\ns_lshl_b32 s{S_TMP}, s{S_H}, 12\ns_add_u32 s{S_KO}, s{S_KO}, s{S_TMP}\ns_add_u32 s{S_KO}, s{S_KO}, {WS_KVM}")
    def kvm_ld():
        e(f"buffer_load_dwordx2 {vr(KR_,2)}, v23, {WS}, s{S_KO} offen sc1")
        for i in range(2):
            for b in range(2): e(f"buffer_load_dwordx2 {vr(VM+4*i+2*b,2)}, v11, {WS}, s{S_KO} offen offset:{i*512 + b*128} sc1")
    e(f"v_readfirstlane_b32 s{S_KO+1}, v{F2}\ns_cmp_gt_u32 s{S_KO+1}, s{S_SEG}\ns_cbranch_scc0 PB_NOEARLY")
    kvm_ld()
    e.label("PB_NOEARLY")
    e(f"s_cmp_eq_u32 s{S_PREV}, -1\ns_cbranch_scc0 PB_PREV\ns_waitcnt vmcnt(0)\ns_branch PB_NOPREV")
    e.label("PB_PREV")
    final(False, True)
    e.label("PB_NOPREV")
    e(f"s_mul_i32 s{S_OFF}, s{S_SEG}, 37\ns_lshr_b32 s{S_OFF}, s{S_OFF}, 9\ns_mul_i32 s{S_OFF}, s{S_OFF}, 14\ns_sub_u32 s{S_OFF}, s{S_SEG}, s{S_OFF}\ns_lshl_b32 s{S_OFF}, s{S_OFF}, 18\ns_lshl_b32 s{S_TMP}, s{S_H}, 13\ns_add_u32 s{S_OFF}, s{S_OFF}, s{S_TMP}")
    WST(e)
    e(f"s_cmp_gt_u32 s{S_KO+1}, s{S_SEG}\ns_cbranch_scc1 PB_HAVE")
    e(f"s_cmp_ge_u32 s{S_SEG}, {DP_SEG}\ns_cbranch_scc1 PB_DL")
    e(f"v_mov_b32 v{TT+1}, s{S_CF}\ns_add_u32 s{S_I}, s{S_SEG}, 1")
    poll_all(e, "CHW", TT + 1, "0", f"s{S_I}", TT + 2, cfg.get("csleep", 4))
    kvm_ld()
    e("s_waitcnt vmcnt(0)\ns_branch PB_HAVE")
    e.label("PB_DL")
    kvm_ld()
    e(f"s_add_u32 s{S_SPIN}, s{S_SPIN}, 1\ns_waitcnt vmcnt(0)")
    e(f"v_max3_u32 v{TT}, v{KR_}, v{KR_+1}, v{VM}")
    for i in range(1, 8, 2): e(f"v_max3_u32 v{TT}, v{TT}, v{VM+i}, v{VM+min(i+1,7)}")
    e(f"v_cmp_eq_u32 vcc, -1, v{TT}\ns_cbranch_vccz PB_HAVE\ns_sleep {cfg.get('dsleep', 6)}\ns_cmp_lt_u32 s{S_SPIN}, {SPIN_MAX}\ns_cbranch_scc1 PB_DL")
    e.label("PB_HAVE")
    WST(e)
    e(f"ds_write2_b32 v22, v{KR_}, v{KR_+1} offset0:0 offset1:64")
    for i in range(2): e(f"v_swap_b32 v{VM+4*i+1}, v{VM+4*i+2}")
    e(f"v_mov_b32 v{TT}, 0xf149f2ca\ns_waitcnt lgkmcnt(0)\ns_barrier")
    for js in range(4):
        for t in range(2): e(f"ds_read_b64_tr_b16 {vr(KM+4*js+2*t,2)}, v10 offset:{js*512 + t*256}")
    for js in range(4):
        e(f"s_waitcnt lgkmcnt({6-2*js})")
        e(mfd(M, KM + 4 * js, QF + 4 * js, "0" if js == 0 else M))
    e(f"s_add_u32 s{S_OFF}, s{S_OFF}, {WS_O}\ns_lshl_b32 s{S_TMP}, s62, 12\ns_add_u32 s{S_OFF}, s{S_OFF}, s{S_TMP}\ns_lshl_b32 s{S_TMP}, s63, 11\ns_add_u32 s{S_OFF}, s{S_OFF}, s{S_TMP}")
    e(f"s_lshl_b32 s{S_OFF2}, s{S_SEG}, 12\ns_add_u32 s{S_OFF2}, s{S_OFF2}, {FL_O2}\ns_lshl_b32 s{S_TMP}, s{S_H}, 7\ns_add_u32 s{S_CNT}, s{S_OFF2}, s{S_TMP}")
    e("s_mov_b32 exec_lo, 0")
    for i in range(4): e(f"v_mov_b32 v{M+i}, v{TT}")
    e("s_mov_b32 exec_lo, -1")
    mx, t2 = MX, TT + 2
    e(f"v_max3_f32 v{mx}, v{mx}, v{M}, v{M+1}\nv_max3_f32 v{mx}, v{mx}, v{M+2}, v{M+3}")
    for op in ("v_permlane16_swap_b32", "v_permlane32_swap_b32"):
        e(f"v_mov_b32 v{t2}, v{mx}\ns_nop 1\n{op} v{mx}, v{t2}\nv_max_f32 v{mx}, v{mx}, v{t2}")
    e(f"v_mul_f32 v{mx}, s{S_SC}, v{mx}")
    EE = [SS_ + i for i in range(8)] + [M + i for i in range(4)]
    for x in EE: e(f"v_fma_f32 v{x}, v{x}, s{S_SC}, -v{mx}")
    for x in EE: e(f"v_exp_f32 v{x}, v{x}")
    e(f"s_nop 0\nv_add_f32 v{mx}, v{EE[0]}, v{EE[1]}")
    for x in EE[2:]: e(f"v_add_f32 v{mx}, v{mx}, v{x}")
    for op in ("v_permlane16_swap_b32", "v_permlane32_swap_b32"):
        e(f"v_mov_b32 v{t2}, v{mx}\ns_nop 1\n{op} v{mx}, v{t2}\nv_add_f32 v{mx}, v{mx}, v{t2}")
    e(f"v_rcp_f32 v{mx}, v{mx}\ns_nop 0")
    for x in EE: e(f"v_mul_f32 v{x}, v{x}, v{mx}")
    for i in range(4): e(f"v_cvt_pk_bf16_f32 v{PB+i}, v{SS_+2*i}, v{SS_+2*i+1}")
    e(f"v_cvt_pk_bf16_f32 v{PB+4}, v{M}, v{M+1}\nv_cvt_pk_bf16_f32 v{PB+5}, v{M+2}, v{M+3}\ns_nop 0")
    for T in range(4): e(mfd(OA + 4 * T, VF + 4 * T, PB, "0"))
    for T in range(4):
        e(f"v_mfma_f32_16x16x16_bf16 {vr(OA+4*T,4)}, {vr(VM+2*T,2)}, {vr(PB+4,2)}, {vr(OA+4*T,4)}")
    e("s_nop 4")
    for j in range(2):
        for t in range(2):
            a = OA + 4 * (2 * j + t)
            e(f"v_cvt_pk_bf16_f32 v{QF+4*j+2*t}, v{a}, v{a+1}\nv_cvt_pk_bf16_f32 v{QF+4*j+2*t+1}, v{a+2}, v{a+3}")
    def ostore(bits):
        for j in range(2): e(f"buffer_store_dwordx4 {vr(QF+4*j,4)}, v{V_L16}, {WS}, s{S_OFF} offen offset:{j*1024}{bits}")
        e("s_waitcnt vmcnt(0)\ns_barrier")
        e(f"v_mov_b32 v{V_T}, 1\ns_mov_b64 exec, s[{S_W0M}:{S_W0M+1}]\nbuffer_store_dword v{V_T}, off, {WS}, s{S_CNT}{bits}\ns_mov_b64 exec, -1")
    if cfg.get("ofast"):
        e(f"s_cmp_ge_u32 s{S_MODE}, 32\ns_cbranch_scc0 PB_OSLOW")
        ostore("")
        e("s_branch PB_ODONE")
        e.label("PB_OSLOW")
    ostore(" sc1")
    e.label("PB_ODONE")
    e(f"s_mov_b32 s{S_PREV}, s{S_SEG}\ns_add_u32 s{S_SEG}, s{S_SEG}, 7\ns_cmp_lt_u32 s{S_SEG}, 64\ns_cbranch_scc1 PB_LOOP")
    if cfg.get("split"):
        if cfg["split"] == 2:
            e(f"s_cmp_ge_u32 s{S_PREV}, 62\ns_cbranch_scc1 PB_PART")
            final()
            e(f"s_cmp_eq_u32 s{S_PREV}, 61\ns_cbranch_scc1 PB_END\ns_barrier")
            e.label("PB_PART")
            e(f"s_sub_u32 s{S_SEL_}, s{S_PREV}, 56\ns_cmp_ge_u32 s{S_PREV}, 62\ns_cselect_b32 s{S_SEL_}, 0, s{S_SEL_}\ns_cmp_eq_u32 s{S_PREV}, 60\ns_cselect_b32 s{S_SEL_}, 1, s{S_SEL_}")
            e(f"s_and_b32 s{S_TMP}, s{S_PREV}, 61\ns_cmp_eq_u32 s{S_TMP}, 60\ns_cselect_b32 s{S_PREV}, 62, 63\ns_cselect_b32 s{S_SH_}, 1, 0")
            e(f"s_xor_b32 s{S_TMP}, s{S_SH_}, 1\ns_lshr_b32 s{S_RT}, s{S_SEL_}, s{S_TMP}")
            e(f"s_and_b32 s{S_TMP}, s{S_SEL_}, 1\ns_lshl_b32 s{S_TMP}, s{S_TMP}, 3\ns_lshl_b32 s{S_LM_}, 0x00ff00ff, s{S_TMP}\ns_cmp_eq_u32 s{S_SH_}, 1\ns_cselect_b32 s{S_LM_}, -1, s{S_LM_}\ns_mov_b32 s{S_LM_+1}, s{S_LM_}")
        else:
            e(f"s_mov_b64 s[{S_LM_}:{S_LM_+1}], -1\ns_mov_b32 s{S_SH_}, 1\ns_mov_b32 s{S_SEL_}, 0")
            e(f"s_mov_b32 s{S_RT}, 0\ns_cmp_ge_u32 s{S_PREV}, 61\ns_cbranch_scc1 PB_HALF")
            final()
            e(f"s_cmp_eq_u32 s{S_PREV}, 60\ns_cbranch_scc1 PB_END\ns_sub_u32 s{S_PREV}, 120, s{S_PREV}\ns_mov_b32 s{S_RT}, 1\ns_mov_b32 s{S_SEL_}, 1\ns_barrier")
        e.label("PB_HALF")
        final(True)
        e.label("PB_END")
    else:
        final()

def worker(e, cfg):
    e(f"s_sub_u32 s{S_G}, s{S_GRP}, 1\ns_mov_b32 s{S_CNT}, 0")
    e("v_mov_b32 v15, v2")
    lane_consts(e, f"v{V_C}", f"v{V_G}")
    e(f"v_lshlrev_b32 v{V_L16}, 4, v0\nv_mov_b32 v{V_XRD}, v{V_L16}")
    e(f"s_lshr_b32 s{S_TMP}, s{S_W}, 1\ns_lshl_b32 s{S_TMP}, s{S_TMP}, 14\ns_and_b32 s{S_TMP2}, s{S_W}, 1\ns_lshl_b32 s{S_TMP2}, s{S_TMP2}, 9\ns_add_u32 s{S_TMP}, s{S_TMP}, s{S_TMP2}")
    e(f"v_lshlrev_b32 v{V_XSRC}, 10, v{V_C}\nv_lshl_add_u32 v{V_XSRC}, v{V_G}, 4, v{V_XSRC}\nv_add_u32 v{V_XSRC}, s{S_TMP}, v{V_XSRC}")
    srd(e, R_X, S_Q, 0x200000)
    _cfg.update(cfg)
    if cfg.get("pref") in (2, 4) and not cfg.get("estart"):
        pc = cfg.get("prefc")
        if pc: e(f"s_cmp_lt_u32 s{S_G}, 3\ns_cbranch_scc1 PF_E")
        e(f"s_lshl_b32 s{S_TMP2}, s{S_G}, 5\ns_add_u32 s{S_TMP2}, s{S_TMP2}, s{S_H}\nv_lshlrev_b32 v16, 6, v15")
        if pc: e(f"s_sub_u32 s{S_TMP2}, s{S_TMP2}, 96")
        if cfg.get("pford"):
            e(f"s_lshl_b32 s{S_TMP}, s{S_TMP2}, 14\nv_add_u32 v17, s{S_TMP}, v16\nv_add_u32 v18, 0x200000, v17")
            seqs = {1: [(S_WQ, 18), (S_WQ, 17), (S_WK, 17), (S_WK, 18), (S_WV, 17), (S_WV, 18), (S_WO, 17), (S_WO, 18)],
                    2: [(S_WK, 17), (S_WK, 18), (S_WV, 17), (S_WV, 18), (S_WO, 17), (S_WO, 18), (S_WQ, 17)],
                    3: [(S_WV, 17), (S_WV, 18), (S_WO, 17), (S_WO, 18), (S_WQ, 17)]}[cfg["pford"]]
            for i, (p, v) in enumerate(seqs): e(f"global_load_dword v{248 + i % 4}, v{v}, s[{p}:{p+1}]")
        else:
            e.label("PF_L")
            e(f"s_lshl_b32 s{S_TMP}, s{S_TMP2}, 14\nv_add_u32 v17, s{S_TMP}, v16")
            for i, p in enumerate([S_WQ, S_WK, S_WV, S_WO][:cfg["pref"]] if cfg["pref"] == 4 else [S_WQ, S_WO]):
                e(f"global_load_dword v{248+i}, v17, s[{p}:{p+1}]")
            e(f"s_add_u32 s{S_TMP2}, s{S_TMP2}, {128 if pc else 224}\ns_cmp_lt_u32 s{S_TMP2}, 256\ns_cbranch_scc1 PF_L")
        e.label("PF_E")
    if cfg.get("wstamp"): e("s_mov_b32 s101, 0")
    WST(e)
    if cfg.get("hold") is not None:
        e(f"s_cmp_lt_u32 s{S_G}, {cfg['hold']}\ns_cbranch_scc{0 if cfg.get('holdinv') else 1} HOLD_END")
        e.label("HOLD")
        e(f"s_sleep 32\ns_memrealtime s[70:71]\ns_waitcnt lgkmcnt(0)\ns_sub_u32 s70, s70, s3\ns_cmp_lt_u32 s70, {cfg['holdus']*100}\ns_cbranch_scc1 HOLD")
        e.label("HOLD_END")
    if not cfg.get("noconv"): conv(e, cfg)
    WST(e)
    if cfg.get("holda"):
        e(f"s_cmp_lt_u32 s{S_G}, 3\ns_cbranch_scc1 HOLDA_END")
        e.label("HOLDA")
        e(f"s_sleep 32\ns_memrealtime s[70:71]\ns_waitcnt lgkmcnt(0)\ns_sub_u32 s70, s70, s3\ns_cmp_lt_u32 s70, {cfg['holda']*100}\ns_cbranch_scc1 HOLDA")
        e.label("HOLDA_END")
    wload_addr(e)
    phaseA(e, cfg)
    WST(e)
    if not cfg.get("nob"): phaseB(e, cfg)
    WST(e)
    if cfg.get("dbgt"):
        e(f"s_memrealtime s[70:71]\ns_waitcnt lgkmcnt(0)\ns_sub_u32 s70, s70, s3\nv_mov_b32 v20, s70\nv_mov_b32 v21, 20\ns_mov_b64 exec, s[{S_W0M}:{S_W0M+1}]\nglobal_atomic_umax v21, v20, s[{S_DBG}:{S_DBG+1}]")
```

```python
import sys, json
from asmlib import Em, vr, check_hazards
from layout import *
import chain as C
from chain import *

KNAME = "gated_mix__ssm_conv_h3__memory_aug_recurrent_mem_tr__prompt_kernel"

def common_prologue(e, cfg):
    e("s_cmp_ge_u32 s2, 256\ns_cbranch_scc1 KEND")
    e("s_load_dwordx8 s[4:11], s[0:1], 0\ns_load_dwordx4 s[12:15], s[0:1], 32\ns_load_dwordx2 s[16:17], s[0:1], 56")
    e("s_load_dwordx8 s[20:27], s[0:1], 64\ns_load_dwordx4 s[28:31], s[0:1], 104\ns_load_dwordx4 s[32:35], s[0:1], 120")
    e(f"s_getreg_b32 s{S_XCC}, hwreg(HW_REG_XCC_ID)\ns_and_b32 s{S_XCC}, s{S_XCC}, 7")
    if cfg.get("fakexcc") == 1: e(f"s_lshr_b32 s{S_XCC}, s2, 6")
    if cfg.get("fakexcc") == 2: e(f"s_lshr_b32 s{S_XCC}, s2, 5\ns_max_u32 s{S_XCC}, s{S_XCC}, 1")
    e(f"v_lshrrev_b32 v1, 6, v0\nv_mov_b32 v2, v0\nv_and_b32 v0, 63, v0\nv_readfirstlane_b32 s{S_W}, v1")
    e("s_waitcnt lgkmcnt(0)")
    srd(e, R_WS, S_WS, WS_SIZE)
    WS = f"s[{R_WS}:{R_WS+3}]"
    DBG = f"s[{S_DBG}:{S_DBG+1}]"
    e(f"s_cmp_eq_u32 s{S_W}, 0\ns_cbranch_scc0 PRO_NORANK")
    e(f"s_and_b32 s{S_TMP}, s{S_XCC}, 3\ns_lshl_b32 s{S_TMP}, s{S_TMP}, 6\ns_lshr_b32 s{S_TMP2}, s{S_XCC}, 2\ns_lshl_b32 s{S_TMP2}, s{S_TMP2}, 2\ns_add_u32 s{S_TMP}, s{S_TMP}, s{S_TMP2}")
    e(f"v_mov_b32 v3, s{S_TMP}\nv_mov_b32 v4, 1\ns_mov_b64 exec, 1")
    e(f"global_atomic_add v5, v3, v4, {DBG} sc0\ns_mov_b64 exec, -1")
    e.label("PRO_NORANK")
    if cfg.get("estart"):
        ne = cfg["estart"]
        e(f"s_barrier\ns_lshr_b32 s{S_TMP2}, s2, 3\ns_cmp_ge_u32 s{S_XCC}, 4\ns_cbranch_scc1 ES_W")
        e(f"s_lshl_b32 s{S_TMP}, s{S_TMP2}, 8\ns_lshl_b32 s{S_TMP2}, s{S_W}, 6\ns_add_u32 s{S_TMP}, s{S_TMP}, s{S_TMP2}")
        e(f"v_lshrrev_b32 v18, 2, v0\nv_and_b32 v19, 3, v0\nv_lshlrev_b32 v18, 13, v18\nv_lshl_add_u32 v18, v19, 4, v18\nv_add_u32 v18, s{S_TMP}, v18")
        e(f"s_cmp_eq_u32 s{S_XCC}, 0\ns_cselect_b32 s{R_T}, s{S_WQ}, s{S_WK}\ns_cselect_b32 s{R_T+1}, s{S_WQ+1}, s{S_WK+1}\ns_cselect_b32 s{S_TMP}, {192*8192}, 0\ns_mov_b32 s{R_T+2}, 0x400000\ns_mov_b32 s{R_T+3}, 0x20000")
        for i in range(8):
            if i < ne: e(f"buffer_load_dwordx4 v[{208+4*i}:{211+4*i}], v18, s[{R_T}:{R_T+3}], s{S_TMP} offen\ns_add_u32 s{S_TMP}, s{S_TMP}, 0x20000")
            else: e(f"s_mov_b64 exec, 0\nbuffer_load_dword v208, v18, s[{R_T}:{R_T+3}], s{S_TMP} offen\ns_mov_b64 exec, -1")
        e("s_branch ES_E")
        e.label("ES_W")
        e(f"s_sub_u32 s{S_TMP}, s{S_XCC}, 4\ns_lshl_b32 s{S_TMP}, s{S_TMP}, 5\ns_add_u32 s{S_TMP}, s{S_TMP}, s{S_TMP2}\ns_lshl_b32 s{S_TMP}, s{S_TMP}, 14")
        e(f"v_lshl_add_u32 v17, v2, 6, s{S_TMP}\nv_add_u32 v18, 0x200000, v17")
        for i, (p, v) in enumerate([(S_WQ, 18), (S_WQ, 17), (S_WK, 17), (S_WK, 18), (S_WV, 17), (S_WV, 18), (S_WO, 17), (S_WO, 18)]):
            e(f"global_load_dword v{248 + i % 4}, v{v}, s[{p}:{p+1}]")
        e.label("ES_E")
        e("s_waitcnt vmcnt(8)")
    if cfg.get("pref") == 1:
        e(f"s_barrier\ns_lshl_b32 s{S_TMP}, s2, 14\nv_lshl_add_u32 v17, v2, 6, s{S_TMP}")
        for i, p in enumerate([S_WQ, S_WK, S_WV, S_WO]): e(f"global_load_dword v{248+i}, v17, s[{p}:{p+1}]")
        e("s_waitcnt vmcnt(4)")
    if cfg.get("cpf"):
        e(f"s_getpc_b64 s[{S_TMP+3}:{S_TMP+4}]")
        e.label("CPF_BASE")
        e(f"v_lshlrev_b32 v3, 6, v2\ns_cmp_eq_u32 s{S_W}, 0\ns_cbranch_scc1 CPF_END\nv_subrev_u32 v3, 4096, v3")
        for i in range(cfg["cpf"]):
            e(f"v_cmp_gt_u32 vcc, KEND-CPF_BASE, v3\ns_and_saveexec_b64 s[{S_TMP+5}:{S_TMP+6}], vcc\ns_cbranch_execz CPF_R")
            e(f"global_load_dword v{240+i}, v3, s[{S_TMP+3}:{S_TMP+4}]\nv_add_u32 v3, 12288, v3")
        e.label("CPF_R")
        e("s_mov_b64 exec, -1\ns_branch PRO_W")
        e.label("CPF_END")
    if cfg.get("pref") != 1 and not cfg.get("estart"): e("s_waitcnt vmcnt(0)")
    e(f"s_cmp_eq_u32 s{S_W}, 0\ns_cbranch_scc0 PRO_W")
    e(f"v_readfirstlane_b32 s{S_H}, v5\ns_mov_b32 s{S_GRP}, s{S_XCC}")
    e(f"s_cmp_lt_u32 s{S_H}, 32\ns_cbranch_scc1 PRO_HAVE")
    e(f"v_mov_b32 v3, {DBG_OVF}\ns_mov_b64 exec, 1\nglobal_atomic_add v5, v3, v4, {DBG} sc0\ns_mov_b64 exec, -1")
    e(f"v_lshlrev_b32 v9, 2, v0\ns_mov_b32 s{S_SPIN}, 0")
    e.label("PRO_OV")
    e(f"global_load_dword v10, v9, {DBG} sc1\ns_add_u32 s{S_SPIN}, s{S_SPIN}, 1\ns_waitcnt vmcnt(0)\ns_mov_b32 s{S_TMP2}, 0")
    for x in range(8):
        e(f"v_readlane_b32 s{S_TMP}, v10, {DBG_XCC(x)//4}\ns_add_u32 s{S_TMP2}, s{S_TMP2}, s{S_TMP}")
    e(f"s_cmp_ge_u32 s{S_TMP2}, 256\ns_cbranch_scc1 PRO_OV2\ns_sleep 8\ns_cmp_lt_u32 s{S_SPIN}, {SPIN_MAX}\ns_cbranch_scc1 PRO_OV")
    e.label("PRO_OV2")
    e(f"v_readfirstlane_b32 s{S_TMP2}, v5\ns_mov_b32 s{S_GRP}, 7\ns_mov_b32 s{S_H}, 31")
    for x in range(8):
        nl = f"PRO_OVN{x}"
        e(f"v_readlane_b32 s{S_TMP}, v10, {DBG_XCC(x)//4}\ns_min_u32 s{S_TMP}, s{S_TMP}, 32\ns_add_u32 s{S_SPIN}, s{S_TMP}, s{S_TMP2}")
        e(f"s_cmp_lt_u32 s{S_SPIN}, 32\ns_cbranch_scc0 {nl}\ns_mov_b32 s{S_GRP}, {x}\ns_mov_b32 s{S_H}, s{S_SPIN}\ns_branch PRO_HAVE")
        e.label(nl)
        e(f"s_sub_u32 s{S_TMP2}, s{S_SPIN}, 32")
    e.label("PRO_HAVE")
    e(f"v_mov_b32 v10, s{S_GRP}\nv_mov_b32 v11, s{S_H}\nv_mov_b32 v9, 0\nds_write_b64 v9, v[10:11]\ns_waitcnt lgkmcnt(0)")
    e.label("PRO_W")
    e("s_barrier\nv_mov_b32 v9, 0\nds_read_b64 v[10:11], v9")
    e(f"s_waitcnt lgkmcnt(0)\nv_readfirstlane_b32 s{S_GRP}, v10\nv_readfirstlane_b32 s{S_H}, v11")
    e(f"s_and_b32 s{S_GRP}, s{S_GRP}, 7\ns_and_b32 s{S_H}, s{S_H}, 31")
    e(f"s_cmp_eq_u32 s{S_W}, 0\ns_cselect_b32 s{S_W0M}, 1, 0\ns_mov_b32 s{S_W0M+1}, 0")
    e(f"s_cmp_eq_u32 s{S_GRP}, 0\ns_cbranch_scc1 PRO_NOINIT\ns_cmp_lt_u32 s{S_H}, 4\ns_cbranch_scc0 PRO_NOINIT")
    e(f"s_sub_u32 s{S_TMP2}, s{S_GRP}, 1\ns_lshl_b32 s{S_TMP2}, s{S_TMP2}, 2\ns_add_u32 s{S_TMP2}, s{S_TMP2}, s{S_H}")
    e("v_mov_b64 v[12:13], -1\nv_mov_b64 v[14:15], -1\nv_mov_b32 v8, 0\nv_lshlrev_b32 v9, 4, v2\nv_lshlrev_b32 v3, 2, v2")
    e.label("PRO_INIT")
    e(f"s_lshl_b32 s{S_TMP}, s{S_TMP2}, 10\nbuffer_store_dword v8, v3, {WS}, s{S_TMP} offen sc1")
    e(f"s_lshl_b32 s{S_TMP}, s{S_TMP2}, 13\ns_add_u32 s{S_TMP}, s{S_TMP}, {FL_O2}\nv_lshlrev_b32 v16, 5, v2")
    e(f"buffer_store_dword v8, v16, {WS}, s{S_TMP} offen sc1")
    if cfg.get("dpoll"):
        e(f"s_lshl_b32 s{S_TMP}, s{S_TMP2}, 12\ns_add_u32 s{S_TMP}, s{S_TMP}, {WS_KVM + DP_SEG * 0x20000}")
        for sg in range(DP_SEG, 64):
            e(f"buffer_store_dwordx4 v[12:15], v9, {WS}, s{S_TMP} offen sc1\ns_add_u32 s{S_TMP}, s{S_TMP}, 0x20000")
    e(f"s_add_u32 s{S_TMP2}, s{S_TMP2}, 28\ns_cmp_lt_u32 s{S_TMP2}, 32\ns_cbranch_scc1 PRO_INIT")
    e(f"s_waitcnt vmcnt(0)\ns_barrier\nv_mov_b32 v3, {DBG_INIT}\nv_mov_b32 v4, 1\ns_mov_b64 exec, s[{S_W0M}:{S_W0M+1}]")
    e(f"global_atomic_add v3, v4, {DBG}\ns_mov_b64 exec, -1")
    e.label("PRO_NOINIT")
    e(f"s_mov_b32 s{S_SPIN}, 0")
    e("s_barrier")

DEFAULTS = {"agbar":1,"d1e":0,"d1":1,"d2":2,"d2e":2,"Ke":2,"KRe":1,"e1":2,"e2":2,"pref":4,"xv":3,"xo":1,"xz":1,"peek":1,"cpf":0,"wda":3,"wdb":2,"wdc":2,"prefc":1,"asplit":30,"dpoll":1,"split":1,"osleep":1,"dsleep":2,"pford":1,"mz":1,"estart":8}
def build(cfg):
    cfg = {**DEFAULTS, **cfg}
    C.DBGC = bool(cfg.get('dbgt'))
    e = Em()
    e.label(KNAME)
    if cfg.get("gstamp"): e("s_memrealtime s[18:19]\ns_waitcnt lgkmcnt(0)\ns_mov_b32 s3, s18")
    common_prologue(e, cfg)
    e(f"s_cmp_eq_u32 s{S_GRP}, 0\ns_cbranch_scc0 WORKER")
    chain_prologue(e, cfg)
    if cfg.get("force_slow") or cfg.get("fakexcc") == 1: e(f"s_mov_b32 s{S_MODE}, 0")
    e(f"s_cmp_ge_u32 s{S_MODE}, 32\ns_cbranch_scc0 CHAIN_SLOW")
    chain_loop(e, True, cfg)
    e.label("CHAIN_SLOW")
    chain_loop(e, False, cfg)
    e.label("WORKER")
    if not cfg.get("chain_only"):
        import worker
        worker.worker(e, cfg)
    else:
        wait_init(e, "w", 32)
        e(f"s_lshl_b32 s{S_TMP}, s{S_H}, 8\nv_lshlrev_b32 v1, 2, v0\nv_mov_b32 v2, 1\nbuffer_store_dword v2, v1, s[{R_WS}:{R_WS+3}], s{S_TMP} offen sc1")
    e.label("KEND")
    e("s_waitcnt vmcnt(0)\ns_endpgm")
    probs = check_hazards(e.lines)
    for p in probs: print("HAZARD", p, file=sys.stderr)
    hdr = open('gated_mix__ssm_conv_h3__memory_aug_recurrent_mem_tr__prompt.s.ref').read().split("; Override launch")[0]
    s = hdr + f"; @launch grid=(256,1,1) block=(256,1,1) lds={LDS_SIZE}\n"
    s += """; One persistent launch, one workgroup per CU (512 registers x 4 waves, 160KB LDS). Roles are handed out at run time:
"""
    s += f'.amdgcn_target "amdgcn-amd-amdhsa--gfx950"\n.text\n.globl {KNAME}\n.p2align 8\n.type {KNAME},@function\n'
    s += e.text()
    s += f""".section .rodata,"a"
.p2align 6
.amdhsa_kernel {KNAME}
  .amdhsa_next_free_vgpr 512
  .amdhsa_next_free_sgpr 102
  .amdhsa_accum_offset 256
  .amdhsa_group_segment_fixed_size 0
  .amdhsa_kernarg_size 136
  .amdhsa_user_sgpr_count 2
  .amdhsa_user_sgpr_kernarg_segment_ptr 1
  .amdhsa_system_sgpr_workgroup_id_x 1
.end_amdhsa_kernel
"""
    return s

if __name__ == "__main__":
    out = sys.argv[1]
    cfg = json.loads(sys.argv[2]) if len(sys.argv) > 2 else {}
    open(out, "w").write(build(cfg))
    json.dump(cfg, open(out + ".json", "w"))
```

```python
import sys, json
from asmlib import Em, vr, check_hazards
from layout import *
import chain as C
from chain import *

KNAME = "gated_mix__ssm_conv_h3__memory_aug_recurrent_mem_tr__prompt_kernel"

def common_prologue(e, cfg):
    e("s_cmp_ge_u32 s2, 256\ns_cbranch_scc1 KEND")
    e("s_load_dwordx8 s[4:11], s[0:1], 0\ns_load_dwordx4 s[12:15], s[0:1], 32\ns_load_dwordx2 s[16:17], s[0:1], 56")
    e("s_load_dwordx8 s[20:27], s[0:1], 64\ns_load_dwordx4 s[28:31], s[0:1], 104\ns_load_dwordx4 s[32:35], s[0:1], 120")
    e(f"s_getreg_b32 s{S_XCC}, hwreg(HW_REG_XCC_ID)\ns_and_b32 s{S_XCC}, s{S_XCC}, 7")
    if cfg.get("fakexcc") == 1: e(f"s_lshr_b32 s{S_XCC}, s2, 6")
    if cfg.get("fakexcc") == 2: e(f"s_lshr_b32 s{S_XCC}, s2, 5\ns_max_u32 s{S_XCC}, s{S_XCC}, 1")
    e(f"v_lshrrev_b32 v1, 6, v0\nv_mov_b32 v2, v0\nv_and_b32 v0, 63, v0\nv_readfirstlane_b32 s{S_W}, v1")
    e("s_waitcnt lgkmcnt(0)")
    srd(e, R_WS, S_WS, WS_SIZE)
    WS = f"s[{R_WS}:{R_WS+3}]"
    DBG = f"s[{S_DBG}:{S_DBG+1}]"
    e(f"s_cmp_eq_u32 s{S_W}, 0\ns_cbranch_scc0 PRO_NORANK")
    e(f"s_and_b32 s{S_TMP}, s{S_XCC}, 3\ns_lshl_b32 s{S_TMP}, s{S_TMP}, 6\ns_lshr_b32 s{S_TMP2}, s{S_XCC}, 2\ns_lshl_b32 s{S_TMP2}, s{S_TMP2}, 2\ns_add_u32 s{S_TMP}, s{S_TMP}, s{S_TMP2}")
    e(f"v_mov_b32 v3, s{S_TMP}\nv_mov_b32 v4, 1\ns_mov_b64 exec, 1")
    e(f"global_atomic_add v5, v3, v4, {DBG} sc0\ns_mov_b64 exec, -1")
    e.label("PRO_NORANK")
    if cfg.get("estart"):
        ne = cfg["estart"]
        e(f"s_barrier\ns_lshr_b32 s{S_TMP2}, s2, 3\ns_cmp_ge_u32 s{S_XCC}, 4\ns_cbranch_scc1 ES_W")
        e(f"s_lshl_b32 s{S_TMP}, s{S_TMP2}, 8\ns_lshl_b32 s{S_TMP2}, s{S_W}, 6\ns_add_u32 s{S_TMP}, s{S_TMP}, s{S_TMP2}")
        e(f"v_lshrrev_b32 v18, 2, v0\nv_and_b32 v19, 3, v0\nv_lshlrev_b32 v18, 13, v18\nv_lshl_add_u32 v18, v19, 4, v18\nv_add_u32 v18, s{S_TMP}, v18")
        e(f"s_cmp_eq_u32 s{S_XCC}, 0\ns_cselect_b32 s{R_T}, s{S_WQ}, s{S_WK}\ns_cselect_b32 s{R_T+1}, s{S_WQ+1}, s{S_WK+1}\ns_cselect_b32 s{S_TMP}, {192*8192}, 0\ns_mov_b32 s{R_T+2}, 0x400000\ns_mov_b32 s{R_T+3}, 0x20000")
        for i in range(8):
            if i < ne: e(f"buffer_load_dwordx4 v[{208+4*i}:{211+4*i}], v18, s[{R_T}:{R_T+3}], s{S_TMP} offen\ns_add_u32 s{S_TMP}, s{S_TMP}, 0x20000")
            else: e(f"s_mov_b64 exec, 0\nbuffer_load_dword v208, v18, s[{R_T}:{R_T+3}], s{S_TMP} offen\ns_mov_b64 exec, -1")
        e("s_branch ES_E")
        e.label("ES_W")
        e(f"s_sub_u32 s{S_TMP}, s{S_XCC}, 4\ns_lshl_b32 s{S_TMP}, s{S_TMP}, 5\ns_add_u32 s{S_TMP}, s{S_TMP}, s{S_TMP2}\ns_lshl_b32 s{S_TMP}, s{S_TMP}, 14")
        e(f"v_lshl_add_u32 v17, v2, 6, s{S_TMP}\nv_add_u32 v18, 0x200000, v17")
        for i, (p, v) in enumerate([(S_WQ, 18), (S_WQ, 17), (S_WK, 17), (S_WK, 18), (S_WV, 17), (S_WV, 18), (S_WO, 17), (S_WO, 18)]):
            e(f"global_load_dword v{248 + i % 4}, v{v}, s[{p}:{p+1}]")
        e.label("ES_E")
        e("s_waitcnt vmcnt(8)")
    if cfg.get("pref") == 1:
        e(f"s_barrier\ns_lshl_b32 s{S_TMP}, s2, 14\nv_lshl_add_u32 v17, v2, 6, s{S_TMP}")
        for i, p in enumerate([S_WQ, S_WK, S_WV, S_WO]): e(f"global_load_dword v{248+i}, v17, s[{p}:{p+1}]")
        e("s_waitcnt vmcnt(4)")
    if cfg.get("cpf"):
        e(f"s_getpc_b64 s[{S_TMP+3}:{S_TMP+4}]")
        e.label("CPF_BASE")
        e(f"v_lshlrev_b32 v3, 6, v2\ns_cmp_eq_u32 s{S_W}, 0\ns_cbranch_scc1 CPF_END\nv_subrev_u32 v3, 4096, v3")
        for i in range(cfg["cpf"]):
            e(f"v_cmp_gt_u32 vcc, KEND-CPF_BASE, v3\ns_and_saveexec_b64 s[{S_TMP+5}:{S_TMP+6}], vcc\ns_cbranch_execz CPF_R")
            e(f"global_load_dword v{240+i}, v3, s[{S_TMP+3}:{S_TMP+4}]\nv_add_u32 v3, 12288, v3")
        e.label("CPF_R")
        e("s_mov_b64 exec, -1\ns_branch PRO_W")
        e.label("CPF_END")
    if cfg.get("pref") != 1 and not cfg.get("estart"): e("s_waitcnt vmcnt(0)")
    e(f"s_cmp_eq_u32 s{S_W}, 0\ns_cbranch_scc0 PRO_W")
    e(f"v_readfirstlane_b32 s{S_H}, v5\ns_mov_b32 s{S_GRP}, s{S_XCC}")
    e(f"s_cmp_lt_u32 s{S_H}, 32\ns_cbranch_scc1 PRO_HAVE")
    e(f"v_mov_b32 v3, {DBG_OVF}\ns_mov_b64 exec, 1\nglobal_atomic_add v5, v3, v4, {DBG} sc0\ns_mov_b64 exec, -1")
    e(f"v_lshlrev_b32 v9, 2, v0\ns_mov_b32 s{S_SPIN}, 0")
    e.label("PRO_OV")
    e(f"global_load_dword v10, v9, {DBG} sc1\ns_add_u32 s{S_SPIN}, s{S_SPIN}, 1\ns_waitcnt vmcnt(0)\ns_mov_b32 s{S_TMP2}, 0")
    for x in range(8):
        e(f"v_readlane_b32 s{S_TMP}, v10, {DBG_XCC(x)//4}\ns_add_u32 s{S_TMP2}, s{S_TMP2}, s{S_TMP}")
    e(f"s_cmp_ge_u32 s{S_TMP2}, 256\ns_cbranch_scc1 PRO_OV2\ns_sleep 8\ns_cmp_lt_u32 s{S_SPIN}, {SPIN_MAX}\ns_cbranch_scc1 PRO_OV")
    e.label("PRO_OV2")
    e(f"v_readfirstlane_b32 s{S_TMP2}, v5\ns_mov_b32 s{S_GRP}, 7\ns_mov_b32 s{S_H}, 31")
    for x in range(8):
        nl = f"PRO_OVN{x}"
        e(f"v_readlane_b32 s{S_TMP}, v10, {DBG_XCC(x)//4}\ns_min_u32 s{S_TMP}, s{S_TMP}, 32\ns_add_u32 s{S_SPIN}, s{S_TMP}, s{S_TMP2}")
        e(f"s_cmp_lt_u32 s{S_SPIN}, 32\ns_cbranch_scc0 {nl}\ns_mov_b32 s{S_GRP}, {x}\ns_mov_b32 s{S_H}, s{S_SPIN}\ns_branch PRO_HAVE")
        e.label(nl)
        e(f"s_sub_u32 s{S_TMP2}, s{S_SPIN}, 32")
    e.label("PRO_HAVE")
    e(f"v_mov_b32 v10, s{S_GRP}\nv_mov_b32 v11, s{S_H}\nv_mov_b32 v9, 0\nds_write_b64 v9, v[10:11]\ns_waitcnt lgkmcnt(0)")
    e.label("PRO_W")
    e("s_barrier\nv_mov_b32 v9, 0\nds_read_b64 v[10:11], v9")
    e(f"s_waitcnt lgkmcnt(0)\nv_readfirstlane_b32 s{S_GRP}, v10\nv_readfirstlane_b32 s{S_H}, v11")
    e(f"s_and_b32 s{S_GRP}, s{S_GRP}, 7\ns_and_b32 s{S_H}, s{S_H}, 31")
    e(f"s_cmp_eq_u32 s{S_W}, 0\ns_cselect_b32 s{S_W0M}, 1, 0\ns_mov_b32 s{S_W0M+1}, 0")
    e(f"s_cmp_eq_u32 s{S_GRP}, 0\ns_cbranch_scc1 PRO_NOINIT\ns_cmp_lt_u32 s{S_H}, 4\ns_cbranch_scc0 PRO_NOINIT")
    e(f"s_sub_u32 s{S_TMP2}, s{S_GRP}, 1\ns_lshl_b32 s{S_TMP2}, s{S_TMP2}, 2\ns_add_u32 s{S_TMP2}, s{S_TMP2}, s{S_H}")
    e("v_mov_b64 v[12:13], -1\nv_mov_b64 v[14:15], -1\nv_mov_b32 v8, 0\nv_lshlrev_b32 v9, 4, v2\nv_lshlrev_b32 v3, 2, v2")
    e.label("PRO_INIT")
    e(f"s_lshl_b32 s{S_TMP}, s{S_TMP2}, 10\nbuffer_store_dword v8, v3, {WS}, s{S_TMP} offen sc1")
    e(f"s_lshl_b32 s{S_TMP}, s{S_TMP2}, 13\ns_add_u32 s{S_TMP}, s{S_TMP}, {FL_O2}\nv_lshlrev_b32 v16, 5, v2")
    e(f"buffer_store_dword v8, v16, {WS}, s{S_TMP} offen sc1")
    if cfg.get("dpoll"):
        e(f"s_lshl_b32 s{S_TMP}, s{S_TMP2}, 12\ns_add_u32 s{S_TMP}, s{S_TMP}, {WS_KVM + DP_SEG * 0x20000}")
        for sg in range(DP_SEG, 64):
            e(f"buffer_store_dwordx4 v[12:15], v9, {WS}, s{S_TMP} offen sc1\ns_add_u32 s{S_TMP}, s{S_TMP}, 0x20000")
    e(f"s_add_u32 s{S_TMP2}, s{S_TMP2}, 28\ns_cmp_lt_u32 s{S_TMP2}, 32\ns_cbranch_scc1 PRO_INIT")
    e(f"s_waitcnt vmcnt(0)\ns_barrier\nv_mov_b32 v3, {DBG_INIT}\nv_mov_b32 v4, 1\ns_mov_b64 exec, s[{S_W0M}:{S_W0M+1}]")
    e(f"global_atomic_add v3, v4, {DBG}\ns_mov_b64 exec, -1")
    e.label("PRO_NOINIT")
    e(f"s_mov_b32 s{S_SPIN}, 0")
    e("s_barrier")

DEFAULTS = {"agbar":1,"d1e":0,"d1":1,"d2":2,"d2e":2,"Ke":2,"KRe":1,"e1":2,"e2":2,"pref":4,"xv":3,"xo":1,"xz":1,"peek":1,"cpf":0,"wda":3,"wdb":2,"wdc":2,"prefc":1,"asplit":30,"dpoll":1,"split":1,"osleep":1,"dsleep":2,"pford":1,"mz":1,"estart":8}
def build(cfg):
    cfg = {**DEFAULTS, **cfg}
    C.DBGC = bool(cfg.get('dbgt'))
    e = Em()
    e.label(KNAME)
    if cfg.get("gstamp"): e("s_memrealtime s[18:19]\ns_waitcnt lgkmcnt(0)\ns_mov_b32 s3, s18")
    common_prologue(e, cfg)
    e(f"s_cmp_eq_u32 s{S_GRP}, 0\ns_cbranch_scc0 WORKER")
    chain_prologue(e, cfg)
    if cfg.get("prohold"):
        e.label("PH")
        e(f"s_sleep 2\ns_memrealtime s[70:71]\ns_waitcnt lgkmcnt(0)\ns_sub_u32 s70, s70, s3\ns_cmp_lt_u32 s70, {cfg['prohold']*100}\ns_cbranch_scc1 PH")
    if cfg.get("force_slow") or cfg.get("fakexcc") == 1: e(f"s_mov_b32 s{S_MODE}, 0")
    e(f"s_cmp_ge_u32 s{S_MODE}, 32\ns_cbranch_scc0 CHAIN_SLOW")
    chain_loop(e, True, cfg)
    e.label("CHAIN_SLOW")
    chain_loop(e, False, cfg)
    e.label("WORKER")
    if not cfg.get("chain_only"):
        import worker
        worker.worker(e, cfg)
    else:
        wait_init(e, "w", 32)
        e(f"s_lshl_b32 s{S_TMP}, s{S_H}, 8\nv_lshlrev_b32 v1, 2, v0\nv_mov_b32 v2, 1\nbuffer_store_dword v2, v1, s[{R_WS}:{R_WS+3}], s{S_TMP} offen sc1")
    if cfg.get("endhold"):
        e.label("EH")
        e(f"s_sleep 4\ns_memrealtime s[70:71]\ns_waitcnt lgkmcnt(0)\ns_sub_u32 s70, s70, s3\ns_cmp_lt_u32 s70, {cfg['endhold']*100}\ns_cbranch_scc1 EH")
    e.label("KEND")
    e("s_waitcnt vmcnt(0)\ns_endpgm")
    probs = check_hazards(e.lines)
    for p in probs: print("HAZARD", p, file=sys.stderr)
    hdr = open('gated_mix__ssm_conv_h3__memory_aug_recurrent_mem_tr__prompt.s.ref').read().split("; Override launch")[0]
    s = hdr + f"; @launch grid=(256,1,1) block=(256,1,1) lds={LDS_SIZE}\n"
    s += """; One persistent launch, one workgroup per CU (512 registers x 4 waves, 160KB LDS). Roles are handed out at run time:
"""
    s += f'.amdgcn_target "amdgcn-amd-amdhsa--gfx950"\n.text\n.globl {KNAME}\n.p2align 8\n.type {KNAME},@function\n'
    s += e.text()
    s += f""".section .rodata,"a"
.p2align 6
.amdhsa_kernel {KNAME}
  .amdhsa_next_free_vgpr 512
  .amdhsa_next_free_sgpr 102
  .amdhsa_accum_offset 256
  .amdhsa_group_segment_fixed_size 0
  .amdhsa_kernarg_size 136
  .amdhsa_user_sgpr_count 2
  .amdhsa_user_sgpr_kernarg_segment_ptr 1
  .amdhsa_system_sgpr_workgroup_id_x 1
.end_amdhsa_kernel
"""
    return s

if __name__ == "__main__":
    out = sys.argv[1]
    cfg = json.loads(sys.argv[2]) if len(sys.argv) > 2 else {}
    open(out, "w").write(build(cfg))
    json.dump(cfg, open(out + ".json", "w"))
```

```python
import sys, json
from asmlib import Em, vr, check_hazards
from layout import *
import chain as C
from chain import *

KNAME = "gated_mix__ssm_conv_h3__memory_aug_recurrent_mem_tr__prompt_kernel"

def common_prologue(e, cfg):
    e("s_cmp_ge_u32 s2, 256\ns_cbranch_scc1 KEND")
    e("s_load_dwordx8 s[4:11], s[0:1], 0\ns_load_dwordx4 s[12:15], s[0:1], 32\ns_load_dwordx2 s[16:17], s[0:1], 56")
    e("s_load_dwordx8 s[20:27], s[0:1], 64\ns_load_dwordx4 s[28:31], s[0:1], 104\ns_load_dwordx4 s[32:35], s[0:1], 120")
    e(f"s_getreg_b32 s{S_XCC}, hwreg(HW_REG_XCC_ID)\ns_and_b32 s{S_XCC}, s{S_XCC}, 7")
    if cfg.get("fakexcc") == 1: e(f"s_lshr_b32 s{S_XCC}, s2, 6")
    if cfg.get("fakexcc") == 2: e(f"s_lshr_b32 s{S_XCC}, s2, 5\ns_max_u32 s{S_XCC}, s{S_XCC}, 1")
    e(f"v_lshrrev_b32 v1, 6, v0\nv_mov_b32 v2, v0\nv_and_b32 v0, 63, v0\nv_readfirstlane_b32 s{S_W}, v1")
    e("s_waitcnt lgkmcnt(0)")
    srd(e, R_WS, S_WS, WS_SIZE)
    WS = f"s[{R_WS}:{R_WS+3}]"
    DBG = f"s[{S_DBG}:{S_DBG+1}]"
    e(f"s_cmp_eq_u32 s{S_W}, 0\ns_cbranch_scc0 PRO_NORANK")
    e(f"s_and_b32 s{S_TMP}, s{S_XCC}, 3\ns_lshl_b32 s{S_TMP}, s{S_TMP}, 6\ns_lshr_b32 s{S_TMP2}, s{S_XCC}, 2\ns_lshl_b32 s{S_TMP2}, s{S_TMP2}, 2\ns_add_u32 s{S_TMP}, s{S_TMP}, s{S_TMP2}")
    e(f"v_mov_b32 v3, s{S_TMP}\nv_mov_b32 v4, 1\ns_mov_b64 exec, 1")
    e(f"global_atomic_add v5, v3, v4, {DBG} sc0\ns_mov_b64 exec, -1")
    e.label("PRO_NORANK")
    if cfg.get("estart"):
        ne = cfg["estart"]
        e(f"s_barrier\ns_lshr_b32 s{S_TMP2}, s2, 3\ns_cmp_ge_u32 s{S_XCC}, 4\ns_cbranch_scc1 ES_W")
        e(f"s_lshl_b32 s{S_TMP}, s{S_TMP2}, 8\ns_lshl_b32 s{S_TMP2}, s{S_W}, 6\ns_add_u32 s{S_TMP}, s{S_TMP}, s{S_TMP2}")
        e(f"v_lshrrev_b32 v18, 2, v0\nv_and_b32 v19, 3, v0\nv_lshlrev_b32 v18, 13, v18\nv_lshl_add_u32 v18, v19, 4, v18\nv_add_u32 v18, s{S_TMP}, v18")
        e(f"s_cmp_eq_u32 s{S_XCC}, 0\ns_cselect_b32 s{R_T}, s{S_WQ}, s{S_WK}\ns_cselect_b32 s{R_T+1}, s{S_WQ+1}, s{S_WK+1}\ns_cselect_b32 s{S_TMP}, {192*8192}, 0\ns_mov_b32 s{R_T+2}, 0x400000\ns_mov_b32 s{R_T+3}, 0x20000")
        for i in range(8):
            if i < ne: e(f"buffer_load_dwordx4 v[{208+4*i}:{211+4*i}], v18, s[{R_T}:{R_T+3}], s{S_TMP} offen\ns_add_u32 s{S_TMP}, s{S_TMP}, 0x20000")
            else: e(f"s_mov_b64 exec, 0\nbuffer_load_dword v208, v18, s[{R_T}:{R_T+3}], s{S_TMP} offen\ns_mov_b64 exec, -1")
        e("s_branch ES_E")
        e.label("ES_W")
        e(f"s_sub_u32 s{S_TMP}, s{S_XCC}, 4\ns_lshl_b32 s{S_TMP}, s{S_TMP}, 5\ns_add_u32 s{S_TMP}, s{S_TMP}, s{S_TMP2}\ns_lshl_b32 s{S_TMP}, s{S_TMP}, 14")
        e(f"v_lshl_add_u32 v17, v2, 6, s{S_TMP}\nv_add_u32 v18, 0x200000, v17")
        for i, (p, v) in enumerate([(S_WQ, 18), (S_WQ, 17), (S_WK, 17), (S_WK, 18), (S_WV, 17), (S_WV, 18), (S_WO, 17), (S_WO, 18)]):
            e(f"global_load_dword v{248 + i % 4}, v{v}, s[{p}:{p+1}]")
        e.label("ES_E")
        e("s_waitcnt vmcnt(8)")
    if cfg.get("pref") == 1:
        e(f"s_barrier\ns_lshl_b32 s{S_TMP}, s2, 14\nv_lshl_add_u32 v17, v2, 6, s{S_TMP}")
        for i, p in enumerate([S_WQ, S_WK, S_WV, S_WO]): e(f"global_load_dword v{248+i}, v17, s[{p}:{p+1}]")
        e("s_waitcnt vmcnt(4)")
    if cfg.get("cpf"):
        e(f"s_getpc_b64 s[{S_TMP+3}:{S_TMP+4}]")
        e.label("CPF_BASE")
        e(f"v_lshlrev_b32 v3, 6, v2\ns_cmp_eq_u32 s{S_W}, 0\ns_cbranch_scc1 CPF_END\nv_subrev_u32 v3, 4096, v3")
        for i in range(cfg["cpf"]):
            e(f"v_cmp_gt_u32 vcc, KEND-CPF_BASE, v3\ns_and_saveexec_b64 s[{S_TMP+5}:{S_TMP+6}], vcc\ns_cbranch_execz CPF_R")
            e(f"global_load_dword v{240+i}, v3, s[{S_TMP+3}:{S_TMP+4}]\nv_add_u32 v3, 12288, v3")
        e.label("CPF_R")
        e("s_mov_b64 exec, -1\ns_branch PRO_W")
        e.label("CPF_END")
    if cfg.get("pref") != 1 and not cfg.get("estart"): e("s_waitcnt vmcnt(0)")
    e(f"s_cmp_eq_u32 s{S_W}, 0\ns_cbranch_scc0 PRO_W")
    e(f"v_readfirstlane_b32 s{S_H}, v5\ns_mov_b32 s{S_GRP}, s{S_XCC}")
    e(f"s_cmp_lt_u32 s{S_H}, 32\ns_cbranch_scc1 PRO_HAVE")
    e(f"v_mov_b32 v3, {DBG_OVF}\ns_mov_b64 exec, 1\nglobal_atomic_add v5, v3, v4, {DBG} sc0\ns_mov_b64 exec, -1")
    e(f"v_lshlrev_b32 v9, 2, v0\ns_mov_b32 s{S_SPIN}, 0")
    e.label("PRO_OV")
    e(f"global_load_dword v10, v9, {DBG} sc1\ns_add_u32 s{S_SPIN}, s{S_SPIN}, 1\ns_waitcnt vmcnt(0)\ns_mov_b32 s{S_TMP2}, 0")
    for x in range(8):
        e(f"v_readlane_b32 s{S_TMP}, v10, {DBG_XCC(x)//4}\ns_add_u32 s{S_TMP2}, s{S_TMP2}, s{S_TMP}")
    e(f"s_cmp_ge_u32 s{S_TMP2}, 256\ns_cbranch_scc1 PRO_OV2\ns_sleep 8\ns_cmp_lt_u32 s{S_SPIN}, {SPIN_MAX}\ns_cbranch_scc1 PRO_OV")
    e.label("PRO_OV2")
    e(f"v_readfirstlane_b32 s{S_TMP2}, v5\ns_mov_b32 s{S_GRP}, 7\ns_mov_b32 s{S_H}, 31")
    for x in range(8):
        nl = f"PRO_OVN{x}"
        e(f"v_readlane_b32 s{S_TMP}, v10, {DBG_XCC(x)//4}\ns_min_u32 s{S_TMP}, s{S_TMP}, 32\ns_add_u32 s{S_SPIN}, s{S_TMP}, s{S_TMP2}")
        e(f"s_cmp_lt_u32 s{S_SPIN}, 32\ns_cbranch_scc0 {nl}\ns_mov_b32 s{S_GRP}, {x}\ns_mov_b32 s{S_H}, s{S_SPIN}\ns_branch PRO_HAVE")
        e.label(nl)
        e(f"s_sub_u32 s{S_TMP2}, s{S_SPIN}, 32")
    e.label("PRO_HAVE")
    e(f"v_mov_b32 v10, s{S_GRP}\nv_mov_b32 v11, s{S_H}\nv_mov_b32 v9, 0\nds_write_b64 v9, v[10:11]\ns_waitcnt lgkmcnt(0)")
    e.label("PRO_W")
    e("s_barrier\nv_mov_b32 v9, 0\nds_read_b64 v[10:11], v9")
    e(f"s_waitcnt lgkmcnt(0)\nv_readfirstlane_b32 s{S_GRP}, v10\nv_readfirstlane_b32 s{S_H}, v11")
    e(f"s_and_b32 s{S_GRP}, s{S_GRP}, 7\ns_and_b32 s{S_H}, s{S_H}, 31")
    e(f"s_cmp_eq_u32 s{S_W}, 0\ns_cselect_b32 s{S_W0M}, 1, 0\ns_mov_b32 s{S_W0M+1}, 0")
    e(f"s_cmp_eq_u32 s{S_GRP}, 0\ns_cbranch_scc1 PRO_NOINIT\ns_cmp_lt_u32 s{S_H}, 4\ns_cbranch_scc0 PRO_NOINIT")
    e(f"s_sub_u32 s{S_TMP2}, s{S_GRP}, 1\ns_lshl_b32 s{S_TMP2}, s{S_TMP2}, 2\ns_add_u32 s{S_TMP2}, s{S_TMP2}, s{S_H}")
    e("v_mov_b64 v[12:13], -1\nv_mov_b64 v[14:15], -1\nv_mov_b32 v8, 0\nv_lshlrev_b32 v9, 4, v2\nv_lshlrev_b32 v3, 2, v2")
    e.label("PRO_INIT")
    e(f"s_lshl_b32 s{S_TMP}, s{S_TMP2}, 10\nbuffer_store_dword v8, v3, {WS}, s{S_TMP} offen sc1")
    e(f"s_lshl_b32 s{S_TMP}, s{S_TMP2}, 13\ns_add_u32 s{S_TMP}, s{S_TMP}, {FL_O2}\nv_lshlrev_b32 v16, 5, v2")
    e(f"buffer_store_dword v8, v16, {WS}, s{S_TMP} offen sc1")
    if cfg.get("dpoll"):
        e(f"s_lshl_b32 s{S_TMP}, s{S_TMP2}, 12\ns_add_u32 s{S_TMP}, s{S_TMP}, {WS_KVM + DP_SEG * 0x20000}")
        for sg in range(DP_SEG, 64):
            e(f"buffer_store_dwordx4 v[12:15], v9, {WS}, s{S_TMP} offen sc1\ns_add_u32 s{S_TMP}, s{S_TMP}, 0x20000")
    e(f"s_add_u32 s{S_TMP2}, s{S_TMP2}, 28\ns_cmp_lt_u32 s{S_TMP2}, 32\ns_cbranch_scc1 PRO_INIT")
    e(f"s_waitcnt vmcnt(0)\ns_barrier\nv_mov_b32 v3, {DBG_INIT}\nv_mov_b32 v4, 1\ns_mov_b64 exec, s[{S_W0M}:{S_W0M+1}]")
    e(f"global_atomic_add v3, v4, {DBG}\ns_mov_b64 exec, -1")
    e.label("PRO_NOINIT")
    e(f"s_mov_b32 s{S_SPIN}, 0")
    e("s_barrier")

DEFAULTS = {"agbar":1,"d1e":0,"d1":1,"d2":2,"d2e":2,"Ke":2,"KRe":1,"e1":2,"e2":2,"pref":4,"xv":3,"xo":1,"xz":1,"peek":1,"cpf":0,"wda":3,"wdb":2,"wdc":2,"prefc":1,"asplit":30,"dpoll":1,"split":1,"osleep":1,"dsleep":2,"pford":1,"mz":1,"estart":8}
def build(cfg):
    cfg = {**DEFAULTS, **cfg}
    C.DBGC = bool(cfg.get('dbgt'))
    e = Em()
    e.label(KNAME)
    if cfg.get("gstamp"): e("s_memrealtime s[18:19]\ns_waitcnt lgkmcnt(0)\ns_mov_b32 s3, s18")
    common_prologue(e, cfg)
    if cfg.get("endabs"):
        e(f"s_not_b32 s{S_TMP}, s3\nv_mov_b32 v1, 44\nv_mov_b32 v3, s{S_TMP}\ns_mov_b64 exec, s[{S_W0M}:{S_W0M+1}]\nglobal_atomic_umax v1, v3, s[{S_DBG}:{S_DBG+1}]")
        e(f"v_mov_b32 v1, 48\nv_mov_b32 v3, s3\nglobal_atomic_umax v1, v3, s[{S_DBG}:{S_DBG+1}]\ns_mov_b64 exec, -1")
    e(f"s_cmp_eq_u32 s{S_GRP}, 0\ns_cbranch_scc0 WORKER")
    chain_prologue(e, cfg)
    if cfg.get("prohold"):
        e.label("PH")
        e(f"s_sleep 2\ns_memrealtime s[70:71]\ns_waitcnt lgkmcnt(0)\ns_sub_u32 s70, s70, s3\ns_cmp_lt_u32 s70, {cfg['prohold']*100}\ns_cbranch_scc1 PH")
    if cfg.get("force_slow") or cfg.get("fakexcc") == 1: e(f"s_mov_b32 s{S_MODE}, 0")
    e(f"s_cmp_ge_u32 s{S_MODE}, 32\ns_cbranch_scc0 CHAIN_SLOW")
    chain_loop(e, True, cfg)
    e.label("CHAIN_SLOW")
    chain_loop(e, False, cfg)
    e.label("WORKER")
    if not cfg.get("chain_only"):
        import worker
        worker.worker(e, cfg)
    else:
        wait_init(e, "w", 32)
        e(f"s_lshl_b32 s{S_TMP}, s{S_H}, 8\nv_lshlrev_b32 v1, 2, v0\nv_mov_b32 v2, 1\nbuffer_store_dword v2, v1, s[{R_WS}:{R_WS+3}], s{S_TMP} offen sc1")
    if cfg.get("endabs"):
        e(f"v_mov_b32 v1, 44\nglobal_load_dword v2, v1, s[{S_DBG}:{S_DBG+1}] sc1\ns_waitcnt vmcnt(0)\nv_readfirstlane_b32 s3, v2\ns_not_b32 s3, s3")
    if cfg.get("endhold"):
        e.label("EH")
        e(f"s_sleep 4\ns_memrealtime s[70:71]\ns_waitcnt lgkmcnt(0)\ns_sub_u32 s70, s70, s3\ns_cmp_lt_u32 s70, {cfg['endhold']*100}\ns_cbranch_scc1 EH")
    e.label("KEND")
    e("s_waitcnt vmcnt(0)\ns_endpgm")
    probs = check_hazards(e.lines)
    for p in probs: print("HAZARD", p, file=sys.stderr)
    hdr = open('gated_mix__ssm_conv_h3__memory_aug_recurrent_mem_tr__prompt.s.ref').read().split("; Override launch")[0]
    s = hdr + f"; @launch grid=(256,1,1) block=(256,1,1) lds={LDS_SIZE}\n"
    s += """; One persistent launch, one workgroup per CU (512 registers x 4 waves, 160KB LDS). Roles are handed out at run time:
"""
    s += f'.amdgcn_target "amdgcn-amd-amdhsa--gfx950"\n.text\n.globl {KNAME}\n.p2align 8\n.type {KNAME},@function\n'
    s += e.text()
    s += f""".section .rodata,"a"
.p2align 6
.amdhsa_kernel {KNAME}
  .amdhsa_next_free_vgpr 512
  .amdhsa_next_free_sgpr 102
  .amdhsa_accum_offset 256
  .amdhsa_group_segment_fixed_size 0
  .amdhsa_kernarg_size 136
  .amdhsa_user_sgpr_count 2
  .amdhsa_user_sgpr_kernarg_segment_ptr 1
  .amdhsa_system_sgpr_workgroup_id_x 1
.end_amdhsa_kernel
"""
    return s

if __name__ == "__main__":
    out = sys.argv[1]
    cfg = json.loads(sys.argv[2]) if len(sys.argv) > 2 else {}
    open(out, "w").write(build(cfg))
    json.dump(cfg, open(out + ".json", "w"))
```

```python
from asmlib import Em, vr
from layout import *

S_Q, S_K, S_V, S_SH, S_SSMK, S_SSMD, S_MEM0 = 4, 6, 8, 10, 12, 14, 16
S_WQ, S_WK, S_WV, S_WO, S_GATE, S_OUT, S_DBG, S_WS = 20, 22, 24, 26, 28, 30, 32, 34
R_WS, R_T, R_T2 = 36, 40, 44
S_W, S_XCC, S_GRP, S_H = 48, 49, 50, 51
S_W0M = 76
NINIT = 28 + 32
SPIN_MAX = 1 << 18
DBGC = False

def srd(e, r, p, size):
    e(f"s_mov_b32 s{r}, s{p}\ns_mov_b32 s{r+1}, s{p+1}\ns_mov_b32 s{r+2}, {size}\ns_mov_b32 s{r+3}, 0x20000")

def lane_consts(e, c, g, lane="v0"):
    e(f"v_and_b32 {c}, 15, {lane}\nv_lshrrev_b32 {g}, 4, {lane}")

def emit_UB(e, dst, c, b, t):
    e(f"v_lshrrev_b32 {t}, 1, {b}")
    e(f"v_lshl_add_u32 {t}, {t}, 3, {c}")
    e(f"v_and_b32 {t}, 15, {t}")
    e(f"v_lshl_add_u32 {t}, {b}, 4, {t}")
    e(f"v_lshlrev_b32 {dst}, 3, {t}")

IDX, A_RSR, A_AGW, A_AGR, A_TR, A_TRK, A_UW, A_W, A_KX, A_VX, T0, A_RSW, SEL = 0, 1, 2, 3, 4, 5, 6, 7, 8, 9, 10, 11, 12
MEMA, QB, KXA, XT, ACA, ACB = 16, 48, 64, 88, 96, 104
WV0 = 112
S_STEP, S_RSW0, S_RSW1, S_RSR0, S_RSR1, S_AGW, S_AGRST, S_AGR0, S_AGR1 = 52, 53, 54, 55, 56, 57, 58, 59, 60
S_KVG, S_KVL, S_KVM, S_READY, S_SPIN, S_AGSLOT, S_TMP, S_TMP2 = 61, 62, 63, 64, 65, 66, 67, 68
S_M0, S_M1, S_M2 = 70, 72, 74
S_AGM = 72
S_ODD = 78
S_SC = 80
S_CF = 81
S_MODE = 82
S_TAG = 83
S_KVG2, S_FLV = 10, 11
S_XG0, S_XL0 = 96, 97
S_KFO = 58
S_JMP = 6
S_RSR = [55, 56, 4, 5]
S_EM, S_LM, S_LB = 4, 6, 8
S_AGM2 = 74
S_ST = 84

import os
_o0 = [("o", (0, p)) for p in range(4)]; _o1 = [("o", (1, p)) for p in range(4)]
_q = [("q", J) for J in range(3, 8)]; _k = [("k", J) for J in range(8)]; _v = [("v", J) for J in range(8)]; _ql = [("q", 0), ("q", 1), ("q", 2)]
BLOCKS = {"0": _q + _k + _v + _o0 + _ql + _o1, "1": _o0 + _q + _k + _v + _ql + _o1, "2": _o0 + _q + _k + _v + _o1 + _ql,
          "3": _q + _o0 + _k + _v + _ql + _o1}[os.environ.get("BORD", "0")]
NREG = 25
def frag_reg(i):
    if i < 32: return ("a", 8 * i)
    return ("v", WV0 + 8 * (i - 32))
FRAG = {}
for n, (m, J) in enumerate(BLOCKS):
    for t in range(2):
        if n < NREG: FRAG[(m, J, t)] = frag_reg(2 * n + t)
        else: FRAG[(m, J, t)] = ("lds", (n - NREG) * 4096 + t * 2048)
def slot_addr(n):
    s = n % 10
    wl = {5: 0, 6: 1, 7: 2, 8: 3, 9: 4, 0: 5, 1: 6}
    return ("wl", wl[s]) if s in wl else ("ot", s - 2)

def wait_init(e, tag, vt):
    l = e.newlabel("WI"); d = e.newlabel("WID")
    e(f"v_mbcnt_lo_u32_b32 v{vt+1}, -1, 0\nv_mbcnt_hi_u32_b32 v{vt+1}, -1, v{vt+1}\nv_lshlrev_b32 v{vt+1}, 2, v{vt+1}")
    e.label(l)
    e(f"global_load_dword v{vt}, v{vt+1}, s[{S_DBG}:{S_DBG+1}] sc1")
    e(f"s_add_u32 s{S_SPIN}, s{S_SPIN}, 1")
    e("s_waitcnt vmcnt(0)")
    e(f"v_readlane_b32 s{S_TMP}, v{vt}, {DBG_INIT//4}")
    e(f"s_cmp_ge_u32 s{S_TMP}, {NINIT}\ns_cbranch_scc1 {d}")
    e("s_sleep 16")
    e(f"s_cmp_lt_u32 s{S_SPIN}, {SPIN_MAX}\ns_cbranch_scc1 {l}")
    e.label(d)

def kv_poll(e, va, vb, done):
    l = e.newlabel("KR")
    e(f"v_mbcnt_lo_u32_b32 v{vb}, -1, 0\nv_mbcnt_hi_u32_b32 v{vb}, -1, v{vb}\nv_lshlrev_b32 v{vb}, 2, v{vb}")
    e.label(l)
    if DBGC: e(f"s_lshl_b32 s{S_TMP}, 1, s{S_STEP}\ns_or_b32 s60, s60, s{S_TMP}\ns_add_u32 s57, s57, 0")
    e(f"s_lshl_b32 s{S_TMP}, s{S_H}, 8")
    e(f"buffer_load_dword v{va}, v{vb}, s[{R_WS}:{R_WS+3}], s{S_TMP} offen sc1")
    e(f"s_add_u32 s{S_SPIN}, s{S_SPIN}, 1")
    e("s_waitcnt vmcnt(0)")
    e(f"v_cmp_eq_u32 vcc, 0, v{va}\ns_ff1_i32_b64 s{S_READY}, vcc")
    e(f"s_cmp_gt_u32 s{S_READY}, s{S_TMP2}\ns_cbranch_scc1 {done}")
    e("s_sleep 16")
    e(f"s_cmp_lt_u32 s{S_SPIN}, {SPIN_MAX}\ns_cbranch_scc1 {l}")
    e(f"s_branch {done}")

def kv_ready(e, delta, va, vb):
    d = e.newlabel("KRD")
    e(f"s_add_u32 s{S_TMP2}, s{S_STEP}, {delta}\ns_cmp_gt_u32 s{S_READY}, s{S_TMP2}\ns_cbranch_scc1 {d}")
    kv_poll(e, va, vb, d)
    e.label(d)

def kv_dma(e, g=None, l=None):
    out = []
    for i in range(4):
        pre = [f"s_add_u32 m0, s{l or S_KVL}, {(i//2)*8192}", f"s_add_u32 s{S_TMP}, s{g or S_KVG}, {(i//2)*8192}"]
        out.append(pre + [f"buffer_load_dwordx4 v{A_AGR}, s[{R_WS}:{R_WS+3}], s{S_TMP} offen offset:{(i%2)*1024} sc1 lds"])
    return out

NPRE = 5
QL = [(0, 0), (0, 1), (2, 0), (2, 1), (1, 0), (1, 1)] if os.environ.get('V13') else [(0, 0), (0, 1), (1, 0), (1, 1), (2, 0), (2, 1)]
def rd_ql(e, n, r):
    off = FRAG[("q",) + QL[n]][1]
    e(f"ds_read_b128 {vr(r,4)}, v{A_W} offset:{off}")
    return e(f"ds_read_b128 {vr(r+4,4)}, v{A_W} offset:{off+1024}")
def preload_q(e):
    for n in range(NPRE): rd_ql(e, n, QB + 8 * n)

S_KF = 12
def kv_peek(e):
    e(f"s_min_u32 s{S_TMP}, s{S_STEP}, 59\ns_lshl_b32 s{S_TMP}, s{S_TMP}, 2\ns_add_u32 s{S_TMP}, s{S_TMP}, s{S_KFO}")
    e(f"s_load_dwordx4 s[{S_KF}:{S_KF+3}], s[{S_WS}:{S_WS+1}], s{S_TMP} glc")
def kv_fold(e):
    e(f"s_min_u32 s{S_TMP}, s{S_STEP}, 59\ns_add_u32 s{S_TMP}, s{S_TMP}, 1\ns_add_u32 s{S_TMP}, s{S_TMP}, s{S_KF}")
    for k in range(1, 4): e(f"s_and_b32 s{S_KF}, s{S_KF}, s{S_KF+k}\ns_add_u32 s{S_TMP}, s{S_TMP}, s{S_KF}")
    e(f"s_cmp_ge_u32 s{S_TMP}, 64\ns_cselect_b32 s{S_TMP}, -1, s{S_TMP}\ns_max_u32 s{S_READY}, s{S_READY}, s{S_TMP}")

def chain_prologue(e, cfg={}):
    e("; ---- chain prologue")
    if cfg.get("prost") == 2: e("s_memrealtime s[92:93]")
    lane_consts(e, "v16", "v17")
    e("v_and_b32 v18, 3, v0\nv_lshrrev_b32 v19, 2, v0")
    e(f"s_lshl_b32 s{S_TMP}, s{S_H}, 8\ns_lshl_b32 s{S_TMP2}, s{S_W}, 6\ns_add_u32 s{S_TMP}, s{S_TMP}, s{S_TMP2}")
    e(f"v_lshlrev_b32 v20, 13, v19\nv_lshl_add_u32 v20, v18, 4, v20\nv_add_u32 v20, s{S_TMP}, v20")
    e(f"s_lshl_b32 s{S_TMP}, s{S_H}, 17\ns_lshl_b32 s{S_TMP2}, s{S_W}, 8\ns_add_u32 s{S_TMP}, s{S_TMP}, s{S_TMP2}")
    e(f"v_lshlrev_b32 v21, 10, v19\nv_lshl_add_u32 v21, v18, 4, v21\nv_add_u32 v21, s{S_TMP}, v21")
    e("v_and_b32 v22, 1, v17\nv_lshlrev_b32 v22, 5, v22")
    e("v_lshrrev_b32 v23, 1, v17\nv_lshl_add_u32 v22, v23, 2, v22")
    e("v_lshrrev_b32 v23, 3, v16\nv_lshl_add_u32 v22, v23, 4, v22")
    e("v_bfe_u32 v23, v16, 2, 1\nv_add_u32 v22, v22, v23")
    e("v_lshlrev_b32 v22, 6, v22\nv_lshl_add_u32 v22, v18, 3, v22")
    e(f"s_mul_i32 s{S_KVL}, s{S_W}, 28672")
    e(f"s_mul_i32 s{S_KVG}, s{S_W}, 12288\ns_add_u32 s{S_KVG}, s{S_KVG}, {L_KVB}")
    e(f"v_add_u32 v24, s{S_KVL}, v22\nv_add_u32 v25, s{S_KVG}, v22")
    e(f"v_lshl_add_u32 v{A_W}, v0, 4, s{S_KVL}")
    RW = {"q": R_T, "k": R_T2, "v": 84, "o": 88}
    for m, p in (("q", S_WQ), ("k", S_WK), ("v", S_WV), ("o", S_WO)): srd(e, RW[m], p, 0x400000)
    def issue(n):
        m, J = BLOCKS[n]
        kind, k = slot_addr(n)
        base = S_KVL if kind == "wl" else S_KVG
        for i in range(4):
            e(f"s_add_u32 m0, s{base}, {k*4096 + i*1024}")
            if m == "o":
                so = (64 * J[0] + 16 * i) * 1024 + J[1] * 64
                e(f"s_mov_b32 s{S_TMP}, {so}")
                e(f"buffer_load_dwordx4 v21, s[{RW[m]}:{RW[m]+3}], s{S_TMP} offen lds")
            else:
                so = (64 * J + 16 * i) * 8192
                e(f"s_mov_b32 s{S_TMP}, {so}")
                e(f"buffer_load_dwordx4 v20, s[{RW[m]}:{RW[m]+3}], s{S_TMP} offen lds")
    def consume(n, outstanding):
        m, J = BLOCKS[n]
        kind, k = slot_addr(n)
        e(f"s_waitcnt vmcnt({outstanding})")
        av = "v24" if kind == "wl" else "v25"
        for t in range(2):
            f = FRAG[(m, J, t)]
            for mm in range(4):
                off = k * 4096 + (8 * (mm // 2) + 2 * (mm % 2)) * 64 + t * 32
                if f[0] == "lds": dst = vr(32 + 8 * t + 2 * mm, 2)
                else: dst = vr(f[1] + 2 * mm, 2, f[0])
                e(f"ds_read_b64_tr_b16 {dst}, {av} offset:{off}")
        e("s_waitcnt lgkmcnt(0)")
        if n >= NREG:
            for t in range(2):
                for hf in range(2):
                    e(f"ds_write_b128 v{A_W}, {vr(32+8*t+4*hf,4)} offset:{k*4096 + t*2048 + hf*1024}")
            e("s_waitcnt lgkmcnt(0)")
    N = len(BLOCKS)
    if cfg.get("tlbw"):
        e(f"v_lshlrev_b32 v26, 16, v0\ns_lshl_b32 s{S_TMP}, s{S_H}, 11\nv_add_u32 v26, s{S_TMP}, v26")
        for m in "qkvo": e(f"buffer_load_dword v27, v26, s[{RW[m]}:{RW[m]+3}], 0 offen")
        if cfg["tlbw"] == 2: e("s_waitcnt vmcnt(0)")
    DEP = cfg.get("dep", 4); LEAD = cfg.get("lead", 0)
    def touch(n):
        m, J = BLOCKS[n]
        so = (64 * J[0]) * 1024 + J[1] * 64 if m == "o" else 64 * J * 8192
        e(f"s_mov_b32 s{S_TMP}, {so}\nbuffer_load_dword v70, v{69 if m == 'o' else 68}, s[{RW[m]}:{RW[m]+3}], s{S_TMP} offen")
    if LEAD:
        e(f"s_and_b32 s{S_TMP}, s{S_H}, 3\ns_lshl_b32 s{S_TMP}, s{S_TMP}, 2\ns_add_u32 s{S_TMP}, s{S_TMP}, s{S_W}\ns_lshl_b32 s{S_TMP}, s{S_TMP}, 15")
        e(f"s_lshr_b32 s{S_TMP2}, s{S_H}, 2\ns_lshl_b32 s{S_TMP2}, s{S_TMP2}, 10\ns_add_u32 s{S_TMP}, s{S_TMP}, s{S_TMP2}")
        e(f"v_lshlrev_b32 v68, 13, v17\nv_lshl_add_u32 v68, v16, 6, v68\nv_add_u32 v68, s{S_TMP}, v68")
        e(f"s_lshl_b32 s{S_TMP}, s{S_H}, 17\ns_lshl_b32 s{S_TMP2}, s{S_W}, 14\ns_add_u32 s{S_TMP}, s{S_TMP}, s{S_TMP2}")
        e(f"v_lshlrev_b32 v69, 10, v19\nv_lshl_add_u32 v69, v18, 8, v69\nv_add_u32 v69, s{S_TMP}, v69")
    e(f"v_mov_b64 v[32:33], -1\nv_mov_b64 v[34:35], -1\ns_lshl_b32 s{S_TMP}, s{S_H}, 13\ns_lshl_b32 s{S_TMP2}, s{S_W}, 11\ns_add_u32 s{S_TMP}, s{S_TMP}, s{S_TMP2}\ns_add_u32 s{S_TMP}, s{S_TMP}, {WS_RS}")
    e(f"v_lshlrev_b32 v36, 4, v0\nbuffer_store_dwordx4 v[32:35], v36, s[{R_WS}:{R_WS+3}], s{S_TMP} offen sc1\nbuffer_store_dwordx4 v[32:35], v36, s[{R_WS}:{R_WS+3}], s{S_TMP} offen offset:1024 sc1")
    e(f"s_mul_i32 s{S_TMP}, s{S_H}, 768\ns_lshl_b32 s{S_TMP2}, s{S_W}, 8\ns_add_u32 s{S_TMP}, s{S_TMP}, s{S_TMP2}\ns_add_u32 s{S_TMP}, s{S_TMP}, {WS_AG}")
    e(f"s_cmp_lt_u32 s{S_W}, 3\ns_cselect_b32 exec_lo, 0xffff, 0\ns_mov_b32 exec_hi, 0\nbuffer_store_dwordx4 v[32:35], v36, s[{R_WS}:{R_WS+3}], s{S_TMP} offen sc1\ns_mov_b64 exec, -1")
    srd(e, 92, S_MEM0, 8192)
    e(f"s_lshl_b32 s{S_TMP}, s{S_W}, 8")
    e(f"v_lshlrev_b32 v26, 11, v17\nv_lshl_add_u32 v26, v16, 1, v26\nv_add_u32 v26, s{S_TMP}, v26")
    mem0_ld = []
    for u in range(4):
        mem0_ld += [f"buffer_load_ushort v{48+2*u}, v26, s[92:95], 0 offen offset:{u*64}", f"buffer_load_ushort v{49+2*u}, v26, s[92:95], 0 offen offset:{u*64+32}",
                    f"buffer_load_ushort v{56+2*u}, v26, s[92:95], 0 offen offset:{u*64+1024}", f"buffer_load_ushort v{57+2*u}, v26, s[92:95], 0 offen offset:{u*64+32+1024}"]
    for n in range(DEP):
        if cfg.get("prost") == 2 and n == 1: e("s_memrealtime s[94:95]")
        issue(n)
    if cfg.get("prost") == 2: e("s_memrealtime s[96:97]")
    for n in range(DEP, DEP + LEAD): touch(n)
    for x in mem0_ld: e(x)
    e(f"v_and_b32 v26, 2, v0\nv_cmp_eq_u32 vcc, 2, v26\nv_mov_b32 v27, 0x44444444\nv_mov_b32 v28, 0xeeeeeeee")
    e(f"s_mov_b64 s[{S_ODD}:{S_ODD+1}], vcc")
    e(f"v_cndmask_b32 v29, v27, v28, vcc")
    for r in range(4):
        e(f"v_mov_b32 v{SEL+r}, 0")
    e("v_mov_b32 v27, 0x3f80\nv_mov_b32 v28, 0x3f800000")
    for j in range(8):
        e(f"v_cmp_eq_u32 vcc, {j}, v16\ns_nop 1\nv_cndmask_b32 v{SEL+j//2}, v{SEL+j//2}, v{27+(j%2)}, vcc")
    e(f"s_and_b32 s{S_TMP}, s{S_W}, 2\ns_lshl_b32 s{S_TMP}, s{S_TMP}, 11\ns_lshl_b32 s{S_TMP2}, s{S_H}, 7\ns_add_u32 s{S_TMP}, s{S_TMP}, s{S_TMP2}")
    e(f"v_lshrrev_b32 v26, 3, v0\nv_and_b32 v27, 7, v0\nv_lshlrev_b32 v{A_RSR}, 13, v26\nv_lshl_add_u32 v{A_RSR}, v27, 4, v{A_RSR}\nv_add_u32 v{A_RSR}, s{S_TMP}, v{A_RSR}")
    e(f"s_lshl_b32 s{S_TMP2}, s{S_W}, 9\nv_lshl_add_u32 v{A_RSW}, v0, 3, s{S_TMP2}")
    e(f"v_and_b32 v26, 1, v17\nv_lshl_add_u32 v26, v27, 1, v26\ns_and_b32 s{S_TMP2}, s{S_H}, 3\nv_mov_b32 v27, s{S_TMP2}")
    emit_UB(e, f"v{A_AGW}", "v26", "v27", "v28")
    e(f"s_and_b32 s{S_TMP}, s{S_TMP}, 0xfffffe00\nv_add_u32 v{A_AGW}, s{S_TMP}, v{A_AGW}")
    e(f"s_mov_b32 s{S_AGM}, 0x00FF00FF\ns_mov_b32 s{S_AGM+1}, 0\ns_mov_b32 s{S_AGM2}, -1\ns_mov_b32 s{S_AGM2+1}, 0")
    e(f"v_bfe_u32 v26, v0, 3, 1\nv_lshl_add_u32 v{A_AGW}, v26, 14, v{A_AGW}")
    e(f"s_lshl_b32 s{S_TMP}, s{S_W}, 11\ns_add_u32 s{S_TMP}, s{S_TMP}, {L_MEM}")
    e(f"v_lshl_add_u32 v{A_AGR}, v0, 4, s{S_TMP}")
    e(f"s_lshl_b32 s{S_TMP}, s{S_W}, 10\ns_add_u32 s{S_TMP}, s{S_TMP}, {L_QU}")
    emit_UB(e, f"v{A_UW}", "v16", "v17", "v28")
    e(f"v_add_u32 v{A_UW}, s{S_TMP}, v{A_UW}")
    e("v_lshrrev_b32 v26, 2, v16\nv_lshl_add_u32 v26, v17, 2, v26")
    emit_UB(e, f"v{A_TR}", "v26", "v18", "v28")
    e(f"v_add_u32 v{A_TR}, {L_MEM}, v{A_TR}")
    e("v_and_b32 v27, 1, v18\nv_lshlrev_b32 v27, 1, v27\nv_lshrrev_b32 v28, 1, v18\nv_or_b32 v27, v27, v28")
    emit_UB(e, f"v{A_TRK}", "v26", "v27", "v28")
    e(f"v_add_u32 v{A_TRK}, {L_MEM}, v{A_TRK}")
    e(f"v_lshlrev_b32 v{A_KX}, 4, v0\nv_add_u32 v{A_KX}, {L_KVB}, v{A_KX}")
    e(f"v_lshrrev_b32 v26, 1, v17\nv_lshl_add_u32 v26, v26, 4, v16\nv_lshlrev_b32 v26, 4, v26\nv_and_b32 v27, 1, v17\nv_lshl_add_u32 v26, v27, 3, v26")
    e(f"s_lshl_b32 s{S_TMP}, s{S_W}, 11\ns_add_u32 s{S_TMP}, s{S_TMP}, {L_KVB + 8192}\nv_add_u32 v{A_VX}, s{S_TMP}, v26")
    e(f"v_lshlrev_b32 v65, 2, v0\ns_mov_b32 s{S_STEP}, 0\ns_mov_b32 s{S_READY}, 0\ns_mov_b32 s{S_MODE}, 0")
    WSR = f"s[{R_WS}:{R_WS+3}]"
    order = [("B", n) for n in range(DEP) for _ in range(4)] + [("T", 1)] * LEAD + [("M", 0)] * 16
    def after(kind, n):
        last = max(i for i, x in enumerate(order) if x == (kind, n))
        return min(len(order) - 1 - last, 63)
    for n in range(N):
        consume(n, after("B", n))
        for k, (a_, b_) in enumerate(cfg.get("pace", [])):
            if n == a_:
                e(f"s_barrier\nv_mov_b32 v36, {DBG_PACE + 64*0 + 4*k}\nv_mov_b32 v37, 1\ns_mov_b64 exec, s[{S_W0M}:{S_W0M+1}]\nglobal_atomic_add v36, v37, s[{S_DBG}:{S_DBG+1}]\ns_mov_b64 exec, -1"); order.append(("P", k))
            if n == b_:
                l = e.newlabel("PC"); d = e.newlabel("PCD")
                e(f"s_cmp_eq_u32 s{S_W}, 0\ns_cbranch_scc0 {d}")
                e.label(l)
                e(f"s_load_dword s{S_TMP}, s[{S_DBG}:{S_DBG+1}], {DBG_PACE + 4*k} glc\ns_add_u32 s{S_SPIN}, s{S_SPIN}, 1\ns_waitcnt lgkmcnt(0)")
                e(f"s_cmp_ge_u32 s{S_TMP}, 32\ns_cbranch_scc1 {d}\ns_sleep 8\ns_cmp_lt_u32 s{S_SPIN}, {SPIN_MAX}\ns_cbranch_scc1 {l}")
                e.label(d)
                e("s_barrier")
        if LEAD and n + DEP + LEAD < N:
            touch(n + DEP + LEAD); order.append(("T", 1))
        if n + DEP < N:
            issue(n + DEP); order += [("B", n + DEP)] * 4
        if n == cfg.get("ctouch", -1):
            e(f"s_mul_i32 s{S_TMP}, s{S_H}, 21\nv_add_u32 v67, s{S_TMP}, v0\nv_lshlrev_b32 v67, 16, v67\ns_mul_i32 s{S_TMP}, s{S_W0M}, 0x1fffff\ns_mov_b32 exec_lo, s{S_TMP}\ns_mov_b32 exec_hi, 0\ns_mov_b32 s{S_TMP}, {WS_KV}")
            e(f"buffer_load_dword v68, v67, {WSR}, s{S_TMP} offen sc1\ns_mov_b64 exec, -1"); order.append(("T", 0))
        if n == 1:
            e(f"s_barrier\nv_mov_b32 v36, {DBG_INIT}\nv_mov_b32 v37, 1\ns_mov_b64 exec, s[{S_W0M}:{S_W0M+1}]")
            e(f"global_atomic_add v36, v37, s[{S_DBG}:{S_DBG+1}]\ns_mov_b64 exec, -1"); order.append(("I", 0))
        if n == 16:
            e(f"global_load_dword v64, v65, s[{S_DBG}:{S_DBG+1}] sc1"); order.append(("D", 0))
        if n == 23:
            e(f"v_readlane_b32 s{S_TMP}, v64, {DBG_INIT//4}\nv_readlane_b32 s{S_MODE}, v64, {DBG_XCC(0)//4}\nv_mov_b32 v66, 0")
            e(f"s_cmp_ge_u32 s{S_TMP}, {NINIT}\ns_cselect_b32 s{S_MODE}, s{S_MODE}, 0\ns_cselect_b64 exec, -1, 0\ns_lshl_b32 s{S_TMP}, s{S_H}, 8")
            e(f"buffer_load_dword v66, v65, {WSR}, s{S_TMP} offen sc1\ns_mov_b64 exec, -1"); order.append(("F", 0))
        if n == 28:
            e("s_barrier")
            e(f"v_cmp_eq_u32 vcc, 0, v66\ns_ff1_i32_b64 s{S_READY}, vcc")
            e(f"s_lshl_b32 s{S_TMP}, s{S_H}, 14\ns_add_u32 s{S_XG0}, s{S_TMP}, {WS_KV - L_MEM}\ns_lshl_b32 s{S_TMP}, s{S_W}, 11\ns_add_u32 s{S_XL0}, s{S_TMP}, {L_KVB}")
            e(f"s_cmp_gt_u32 s{S_READY}, 0\ns_cselect_b64 exec, -1, 0")
            for grp in kv_dma(e, S_XG0, S_XL0):
                for x in grp: e(x)
            e("s_mov_b64 exec, -1"); order += [("K", 0)] * 4
            for r in range(8): e(f"v_lshl_or_b32 v{48+r}, v{56+r}, 16, v{48+r}")
            e(f"s_lshl_b32 s{S_TMP}, s{S_W}, 9\ns_add_u32 s{S_TMP}, s{S_TMP}, {L_QU - L_MEM}\nv_subrev_u32 v27, s{S_TMP}, v{A_UW}")
            for u in range(4): e(f"ds_write_b64 v27, {vr(48+2*u,2)} offset:{u*2048}")
            e("s_waitcnt lgkmcnt(0)")
            preload_q(e)
            for r in range(0, 16, 2): e(f"v_mov_b64 {vr(ACA+r,2)}, 0")
            e(f"v_mov_b32 v{IDX}, v29")
            e(f"s_lshl_b32 s{S_TMP}, s{S_H}, 13")
            e(f"s_add_u32 s{S_RSW0}, s{S_TMP}, {WS_RS}\ns_add_u32 s{S_RSW1}, s{S_RSW0}, 4096")
            for i in range(4): e(f"s_mov_b32 s{S_RSR[i]}, {WS_RS + 0x10000 * i}")
            e(f"s_mov_b32 s{S_AGSLOT}, 0\ns_mov_b32 s{S_AGW}, {WS_AG}\ns_mov_b32 s{S_TAG}, 0")
            e(f"s_lshl_b32 s{S_TMP}, s{S_H}, 12\ns_add_u32 s{S_KVM}, s{S_TMP}, {WS_KVM - 0x20000}")
            e(f"s_mov_b32 s{S_LB}, 0x3f003f00\ns_mov_b32 s{S_LB+1}, 0x3f803f80")
            e(f"s_lshl_b32 s{S_CF}, s{S_H}, 7\ns_add_u32 s{S_CF}, s{S_CF}, {FL_CFLAG}")
            e(f"s_mov_b32 s{S_SC}, 0x3e0293ee")
            e(f"s_lshl_b32 s{S_KFO}, s{S_H}, 8\ns_add_u32 s{S_KFO}, s{S_KFO}, 4")
        if n == 29: kv_peek(e)
        if n == 29 and cfg.get("wrm"):
            for sl in range(3):
                e(f"s_mov_b32 s{S_TMP}, {WS_AG - L_MEM + 0x2000 * sl}")
                for o in (0, 1024): e(f"buffer_load_dwordx4 v[88:91], v{A_AGR}, {WSR}, s{S_TMP} offen offset:{o} sc1"); order.append(("W", 0))
            for i in range(4): e(f"buffer_load_dwordx4 v[88:91], v{A_RSR}, {WSR}, s{S_RSR[i]} offen sc1"); order.append(("W", 0))
        if cfg.get("help") and n == 26:
            e(f"v_mov_b32 v36, {DBG_PACE}\nv_mov_b32 v37, 1\ns_mov_b64 exec, 1\nglobal_atomic_add v88, v36, v37, s[{S_DBG}:{S_DBG+1}] sc0\ns_mov_b64 exec, -1"); order.append(("H", 0))
    if cfg.get("help"):
        e(f"v_readfirstlane_b32 s{S_TMP}, v88\ns_cmp_lt_u32 s{S_TMP}, {cfg['help']}\ns_cbranch_scc0 HELP_E")
        k = 0
        for rnd in range(3):
            for d in range(1, 4):
                nb = cfg.get("hfrom", 23) + 3 * rnd + d - 1
                if nb >= N: continue
                m, J = BLOCKS[nb]
                e(f"s_add_u32 s{S_TMP2}, s{S_H}, {d}\ns_and_b32 s{S_TMP2}, s{S_TMP2}, 3\ns_and_b32 s{S_TMP}, s{S_H}, 3\ns_sub_i32 s{S_TMP2}, s{S_TMP2}, s{S_TMP}")
                e(f"s_lshl_b32 s{S_TMP2}, s{S_TMP2}, {17 if m == 'o' else 8}\nv_add_u32 v89, s{S_TMP2}, v{21 if m == 'o' else 20}")
                for i in range(4):
                    so = (64 * J[0] + 16 * i) * 1024 + J[1] * 64 if m == "o" else (64 * J + 16 * i) * 8192
                    e(f"s_mov_b32 s{S_TMP}, {so}\nbuffer_load_dwordx4 v[{40 + 4 * (k % 2)}:{43 + 4 * (k % 2)}], v89, s[{RW[m]}:{RW[m]+3}], s{S_TMP} offen"); k += 1
        e.label("HELP_E")
    e(f"s_cmp_ge_u32 s{S_MODE}, 32\ns_cselect_b32 s{S_KF}, s{S_KF}, 0")
    if cfg.get("gstamp"): e("s_memrealtime s[18:19]\ns_waitcnt lgkmcnt(0)\ns_mov_b32 s69, s18")
    e(f"s_mov_b32 s{S_KVG}, s{S_XG0}\ns_mov_b32 s{S_KVL}, s{S_XL0}")
    e(f"s_cmp_ge_u32 s{S_MODE}, 32\ns_cbranch_scc1 MODE_D")
    wait_init(e, "c", 32)
    e.label("MODE_L")
    e(f"v_readlane_b32 s{S_MODE}, v32, {DBG_XCC(0)//4}\ns_cmp_ge_u32 s{S_MODE}, 32\ns_cbranch_scc1 MODE_D\ns_mov_b32 s{S_TMP2}, 0")
    for x in range(8):
        e(f"v_readlane_b32 s{S_TMP}, v32, {DBG_XCC(x)//4}\ns_add_u32 s{S_TMP2}, s{S_TMP2}, s{S_TMP}")
    e(f"s_cmp_ge_u32 s{S_TMP2}, 256\ns_cbranch_scc1 MODE_D\ns_sleep 16")
    e(f"global_load_dword v32, v33, s[{S_DBG}:{S_DBG+1}] sc1\ns_add_u32 s{S_SPIN}, s{S_SPIN}, 1\ns_waitcnt vmcnt(0)\ns_cmp_lt_u32 s{S_SPIN}, {SPIN_MAX}\ns_cbranch_scc1 MODE_L")
    e.label("MODE_D")
    e(f"s_cmp_gt_u32 s{S_READY}, 0\ns_cbranch_scc1 KV0_D")
    kv_ready(e, 0, 32, 33)
    for grp in kv_dma(e):
        for s in grp: e(s)
    e.label("KV0_D")
    e(f"s_add_u32 s{S_KVG}, s{S_KVG}, 0x80000\ns_xor_b32 s{S_KVL}, s{S_KVL}, 0x3C000")

def interleave(e, mf, fill):
    def run(x):
        for s in x:
            if callable(s): s()
            else: e(s)
    run(fill.get(-1, []))
    for i, m in enumerate(mf):
        if callable(m): m()
        else: e(m)
        run(fill.get(i, []))

def smf(acc, a, f):
    return f"v_smfmac_f32_16x16x64_bf16 {vr(acc,4)}, {vr(a,4)}, {vr(f[1],8,f[0])}, v{IDX}"
def mf32(d, a, b, c):
    return f"v_mfma_f32_16x16x32_bf16 {vr(d,4)}, {vr(a,4)}, {vr(b,4)}, {c if c == '0' else vr(c,4)}"

def kv_ready_ool(e, tail, va, vb):
    d = e.newlabel("KRD"); sl = e.newlabel("KRS")
    e(f"s_add_u32 s{S_TMP2}, s{S_STEP}, 1")
    e(f"s_cmp_le_u32 s{S_READY}, s{S_TMP2}\ns_cbranch_scc1 {sl}")
    e.label(d)
    def slow():
        e.label(sl)
        kv_poll(e, va, vb, d)
    tail.append(slow)

def chain_loop(e, fast, cfg):
    st = "" if fast else " sc1"
    tag_ = "F" if fast else "S"
    WS = f"s[{R_WS}:{R_WS+3}]"
    stamps = cfg.get("stamps", [])
    def S(name):
        if name in stamps:
            i = stamps.index(name); e(f"s_memtime s[{S_ST+2*i}:{S_ST+2*i+1}]")
    def SS(name): return lambda: S(name)
    def GS(p, fill, n):
        for i in range(n):
            if f"{p}_{i}" in stamps: fill[i] = [SS(f"{p}_{i}")] + list(fill.get(i, []))
    LOOP, LAST, ENTRY, EARLY = [f"CH{tag_}_{x}" for x in ("LOOP", "LAST", "ENTRY", "EARLY")]
    tail = []
    seq = {}
    def wt(key): return lambda: e.waitlg(seq[key])
    KP, VP, QP = XT + 4, XT + 6, XT + 2
    RP, RED, AGO, T1, AP = MEMA, MEMA + 16, MEMA + 20, MEMA + 22, MEMA + 24
    e("s_waitcnt vmcnt(0) lgkmcnt(0)")
    if cfg.get("gstamp"): e("s_memrealtime s[18:19]\ns_memtime s[16:17]")
    kv_ready(e, 1, T0, T1)
    if cfg.get("prio"): e(f"s_setprio {cfg['prio']}")
    e(f"s_add_u32 s{S_KVG2}, s{S_KVG}, 8192\ns_mov_b32 m0, s{S_KVL}\nv_mov_b32 v{T0}, 0")
    e(f"s_branch {ENTRY}")
    def rs_ld(r):
        for i in range(4): e(f"buffer_load_dwordx4 {vr(r+4*i,4)}, v{A_RSR}, {WS}, s{S_RSR[i]} offen sc1")
    def rs_chk(r, n):
        for i in range(4):
            e(f"s_waitcnt vmcnt({n+3-i})")
            e(mf32(RED, SEL, r + 4 * i, "0" if i == 0 else RED))
            e(f"v_bitop3_b32 v{T1 if i else T0}, v{r+4*i}, v{r+4*i+2}, s{S_TAG} bitop3:0x7e")
            if i: e(f"v_or_b32 v{T0}, v{T0}, v{T1}")
        e(f"v_and_b32 v{T0}, 1, v{T0}\nv_cmp_ne_u32 vcc, 0, v{T0}")
    def ag_ld(r):
        e(f"buffer_load_dwordx4 {vr(r,4)}, v{A_AGR}, {WS}, s{S_AGR0} offen sc1")
        e(f"buffer_load_dwordx4 {vr(r+4,4)}, v{A_AGR}, {WS}, s{S_AGR0} offen offset:1024 sc1")
    def ag_chk(r, n):
        T1 = MEMA + 15
        if cfg.get("sw"):
            e(f"s_waitcnt vmcnt({n+1})\nds_write_b128 v{A_AGR}, {vr(r,4)}\ns_waitcnt vmcnt({n})\nds_write_b128 v{A_AGR}, {vr(r+4,4)} offset:1024")
        else:
            e(f"s_waitcnt vmcnt({n})")
            e(f"ds_write_b128 v{A_AGR}, {vr(r,4)}\nds_write_b128 v{A_AGR}, {vr(r+4,4)} offset:1024")
        e(f"v_max3_u32 v{T0}, v{r}, v{r+1}, v{r+2}\nv_max3_u32 v{T1}, v{r+4}, v{r+5}, v{r+6}")
        e(f"v_max3_u32 v{T0}, v{T0}, v{r+3}, v{r+7}\nv_max_u32 v{T0}, v{T0}, v{T1}\nv_cmp_eq_u32 vcc, -1, v{T0}")
    def backoff(n):
        if n >= 100: e.nop(n - 100)
        elif n: e(f"s_sleep {n}")
    def advance():
        e(f"v_mov_b64 {vr(AGO,2)}, -1")
        e(f"v_xor_b32 v{A_KX}, 0x3C000, v{A_KX}\nv_xor_b32 v{A_VX}, 0x3C000, v{A_VX}")
        e(f"v_add_u32 v{A_AGW}, 0x2000, v{A_AGW}\nv_subrev_u32 v{T0}, 0x6000, v{A_AGW}\nv_min_u32 v{A_AGW}, v{A_AGW}, v{T0}")
        e(f"s_add_u32 s{S_AGSLOT}, s{S_AGSLOT}, 0x2000\ns_cmp_eq_u32 s{S_AGSLOT}, 0x6000\ns_cselect_b32 s{S_AGSLOT}, 0, s{S_AGSLOT}")
        e(f"s_add_u32 s{S_AGR0}, s{S_AGSLOT}, {WS_AG - L_MEM}")
        e(f"s_add_u32 s{S_KVG}, s{S_KVG}, 0x80000\ns_xor_b32 s{S_KVL}, s{S_KVL}, 0x3C000\ns_add_u32 s{S_KVM}, s{S_KVM}, 0x20000")
        e(f"s_add_u32 s{S_KVG2}, s{S_KVG}, 8192\ns_mov_b32 m0, s{S_KVL}\ns_mov_b32 s{S_FLV}, s{S_STEP}")
        if cfg.get("peek"): kv_fold(e)
        e(f"s_add_u32 s{S_STEP}, s{S_STEP}, 1")
        if stamps: e(f"s_mov_b32 s{S_SPIN}, 0")
        if cfg.get("peek"): kv_peek(e)
    def comm(reducer, d1, d2, K, KR):
        P1, P1R, P2, P2R = [e.newlabel(x) for x in ("P1", "P1R", "P2", "P2R")]
        if not reducer:
            if cfg.get("hist"):
                e(f"s_memtime s[20:21]\ns_waitcnt lgkmcnt(0)\ns_sub_u32 s22, s20, s23\ns_mov_b32 s23, s20\nv_mov_b32 v{T0}, s22")
                e(f"s_lshl_b32 s24, s{S_H}, 8\ns_lshl_b32 s25, s{S_STEP}, 2\ns_add_u32 s24, s24, s25\ns_add_u32 s24, s24, {WS_STAMP + 0x40000}\ns_mov_b64 exec, 1")
                e(f"buffer_store_dword v{T0}, off, {WS}, s24\ns_mov_b64 exec, -1")
            advance()
            if not cfg.get("pql"): preload_q(e)
            e(f"s_xor_b32 s{S_TAG}, s{S_TAG}, 1")
            S("rsi"); S("rs")
        else:
            advance()
            if not cfg.get("pql"): preload_q(e)
            backoff(d1)
            S("rsi")
            rsets = [RP, ACA][:KR]
            rs_ld(RP)
            if KR > 1:
                backoff(cfg.get("e1", 2)); rs_ld(ACA)
            rs_chk(RP, 4 * (KR - 1))
            e(f"s_cbranch_vccnz {P1R}")
            e.label(P1 + "_OK")
            S("rs")
            def p1r():
                e.label(P1R)
                for k in range(KR):
                    e(f"s_add_u32 s{S_SPIN}, s{S_SPIN}, 1\ns_cmp_gt_u32 s{S_SPIN}, {SPIN_MAX}\ns_cbranch_scc1 {P1}_OK")
                    e("s_mov_b64 exec, vcc"); rs_ld(rsets[k]); e("s_mov_b64 exec, -1")
                    rs_chk(rsets[(k + 1) % KR], 4 * (KR - 1))
                    e(f"s_cbranch_vccz {P1}_OK")
                e(f"s_branch {P1R}")
            tail.append(p1r)
            e(f"s_xor_b32 s{S_TAG}, s{S_TAG}, 1\ns_nop 1")
            for r in range(4):
                e(f"v_add_f32_dpp v{RED+r}, v{RED+r}, v{RED+r} row_ror:8 row_mask:0xf bank_mask:0xf")
            e(f"s_mov_b64 exec, s[{S_AGM}:{S_AGM+1}]")
            e(f"v_cvt_pk_bf16_f32 v{AGO}, v{RED}, v{RED+1}\nv_cvt_pk_bf16_f32 v{AGO+1}, v{RED+2}, v{RED+3}")
            e(f"s_mov_b64 exec, s[{S_AGM2}:{S_AGM2+1}]\nbuffer_store_dwordx2 {vr(AGO,2)}, v{A_AGW}, {WS}, s{S_AGW} offen{st}\ns_mov_b64 exec, -1")
        S("ags")
        if cfg.get("agbar"): e("s_barrier")
        S("agb")
        kv_ready_ool(e, tail, T0, MEMA + 15)
        if cfg.get("pql"): preload_q(e)
        backoff(d2)
        sets = [AP, ACB, MEMA + 16][:K]
        for k, r in enumerate(sets):
            if k: backoff(cfg.get("e2", 2))
            ag_ld(r)
        ag_chk(AP, 2 * (K - 1))
        e(f"s_cbranch_vccnz {P2R}")
        e.label(P2 + "_OK")
        S("ag")
        def p2r():
            e.label(P2R)
            for k in range(K):
                e(f"s_add_u32 s{S_SPIN}, s{S_SPIN}, {16 if stamps else 1}\ns_cmp_gt_u32 s{S_SPIN}, {SPIN_MAX}\ns_cbranch_scc1 {P2}_OK")
                e("s_mov_b64 exec, vcc"); ag_ld(sets[k]); e("s_mov_b64 exec, -1")
                ag_chk(sets[(k + 1) % K], 2 * (K - 1))
                e(f"s_cbranch_vccz {P2}_OK")
            e(f"s_branch {P2R}")
        tail.append(p2r)
        if stamps:
            sk = e.newlabel("NS")
            e(f"s_waitcnt lgkmcnt(0)\ns_cmp_eq_u32 s{S_STEP}, {cfg.get('stampstep', 40)}\ns_cbranch_scc0 {sk}")
            for i in range(len(stamps)): e(f"v_writelane_b32 v{T0}, s{S_ST+2*i}, {i}")
            e(f"v_writelane_b32 v{T0}, s{S_SPIN}, 10")
            for i in range(5): e(f"s_memrealtime s[{12+4*i}:{13+4*i}]\ns_memtime s[{14+4*i}:{15+4*i}]\ns_nop 5")
            e("s_waitcnt lgkmcnt(0)")
            for i in range(5): e(f"v_writelane_b32 v{T0}, s{12+4*i}, {16+2*i}\nv_writelane_b32 v{T0}, s{14+4*i}, {17+2*i}")
            e(f"s_lshl_b32 s{S_TMP}, s{S_H}, 2\ns_add_u32 s{S_TMP}, s{S_TMP}, s{S_W}\ns_lshl_b32 s{S_TMP}, s{S_TMP}, 8\ns_add_u32 s{S_TMP}, s{S_TMP}, {WS_STAMP}")
            e(f"v_mbcnt_lo_u32_b32 v{T1}, -1, 0\nv_mbcnt_hi_u32_b32 v{T1}, -1, v{T1}\nv_lshlrev_b32 v{T1}, 2, v{T1}")
            e(f"buffer_store_dword v{T0}, v{T1}, {WS}, s{S_TMP} offen")
            e.label(sk)
        for r in range(0, 8, 2): e(f"v_mov_b64 {vr(ACA+r,2)}, 0")
        e(f"s_cmp_ge_u32 s{S_STEP}, 63\ns_cbranch_scc1 {LAST}")
        e(f"v_mov_b32 v{T0}, s{S_FLV}")
        if cfg.get("pubc"): e(f"buffer_store_dwordx4 {vr(KP,4)}, v{A_AGR}, {WS}, s{S_KVM} offen sc1")
        e("s_waitcnt lgkmcnt(0)")
    D = cfg.get("D", [[0, 60], [0, 160], [25, 40], [0, 190]])
    if cfg.get("agbar"): D = [[cfg["d1e"], cfg.get("d2e", 0)], [0, cfg.get("d2e", 0)], [cfg["d1"], cfg["d2"]], [0, cfg["d2"]]]
    KK = [cfg.get("Ke", 1), cfg.get("Ke", 1), cfg.get("K", 2), cfg.get("K", 2)]
    for w in (0, 1, 3):
        e.label(f"{LOOP}_{w}")
        comm(w == 0, D[w][0], D[w][1], KK[w], cfg.get('KRe', 1))
        e(f"s_branch {ENTRY}")
    e(".p2align 6")
    e.label(f"{LOOP}_2")
    comm(True, D[2][0], D[2][1], KK[2], cfg.get('KR', 2))
    e.label(ENTRY)
    e("s_barrier")
    S("b1")
    if cfg.get("stepst"): e("s_memrealtime s[84:85]")
    def rd_m(J, x):
        def f(): seq[("m", J)] = e(f"ds_read_b64_tr_b16 {vr(MEMA+4*J+2*x,2)}, v{A_TR} offset:{(2*(J%2)+x)*2048 + (J//2)*512}")
        return f
    qorder = [(0, 0), (0, 1), (1, 0), (1, 1), (2, 0)] + [(J, t) for J in range(3, 8) for t in range(2)] + [(2, 1)]
    if cfg.get("qo"): qorder = qorder[:11] + [(2, 1)] + qorder[11:15]
    def qf(J, t):
        if J < 3: return ("v", QB + 8 * (QL.index((J, t)) % 5))
        return FRAG[("q", J, t)]
    mq = [smf(ACA + 4 * t, MEMA + 4 * J, qf(J, t)) for J, t in qorder]
    def rd_w(key, r, off):
        def f(): seq[key] = e(f"ds_read_b128 {vr(r,4)}, v{A_W} offset:{off}")
        return f
    def rq(n, hf): return rd_w(("ql", n), QB + 8 * (n % 5) + 4 * hf, FRAG[("q",) + QL[n]][1] + 1024 * hf)
    flag = [f"s_mov_b64 exec, s[{S_W0M}:{S_W0M+1}]", f"buffer_store_dword v{T0}, off, {WS}, s{S_CF} sc1", "s_mov_b64 exec, -1"]
    pubk = f"buffer_store_dwordx2 {vr(KP,2)}, v{A_RSW}, {WS}, s{S_KVM} offen sc1"
    pubv = f"buffer_store_dwordx2 {vr(VP,2)}, v{A_RSW}, {WS}, s{S_KVM} offen offset:2048 sc1"
    if cfg.get("nopub"): pubk = pubv = "s_nop 0"; flag = []
    def dm(i): return "s_nop 0" if cfg.get("nodma") else f"buffer_load_dwordx4 v{A_AGR}, {WS}, s{S_KVG if i < 2 else S_KVG2} offen offset:{(i%2)*1024} sc1 lds"
    z = lambda r: f"v_mov_b64 {vr(r,2)}, 0"
    fill = {-1: [rd_m(J, x) for J in range(4) for x in range(2)] + [wt(("m", 0)), SS("m0")],
            0: [rd_m(4, 0), dm(0)], 1: [rd_m(4, 1), wt(("m", 1))], 2: [rd_m(5, 0), dm(1)], 3: [rd_m(5, 1), wt(("m", 2))],
            4: [f"s_add_u32 m0, s{S_KVL}, 8192", wt(("m", 3))],
            5: [f"s_waitcnt vmcnt({3 if cfg.get('pubc') else 2})", rd_m(6, 0)], 6: [rd_m(6, 1), wt(("m", 4))], 7: [rd_m(7, 0), dm(2)], 8: [rd_m(7, 1), wt(("m", 5))],
            9: [rq(5, 0), dm(3)], 10: [rq(5, 1), wt(("m", 6))], 11: flag, 12: [wt(("m", 7))], 13: [] if cfg.get("pubc") else [pubk], 14: [wt(("ql", 5))],
            }
    if cfg.get("qo"):
        last = []
        m0b = f"s_add_u32 m0, s{S_KVL}, 8192"
        fill = {-1: [rd_m(J, x) for J in range(4) for x in range(2)] + [wt(("m", 0)), SS("m0")],
                0: [rd_m(4, 0)] + (last if cfg["qo"] == 1 else []), 1: [rd_m(4, 1), wt(("m", 1))], 2: [rd_m(5, 0), dm(0)], 3: [rd_m(5, 1), wt(("m", 2))],
                4: [rq(5, 0), wt(("m", 3))], 5: [rq(5, 1), dm(1)], 6: [m0b, wt(("m", 4))], 7: ["s_waitcnt vmcnt(2)", rd_m(6, 0)],
                8: [rd_m(6, 1), wt(("m", 5))], 9: [rd_m(7, 0), dm(2)], 10: [rd_m(7, 1), wt(("ql", 5))], 11: [wt(("m", 6)), dm(3)],
                12: flag, 13: [wt(("m", 7))], 14: [pubk]}
        if cfg["qo"] == 2: fill[-1] = fill[-1][:8] + last + fill[-1][8:]
    if max(KK) > 2:
        fill[0] = ["s_waitcnt vmcnt(0)", rd_m(4, 0), dm(0)]; fill[5] = [rd_m(6, 0)]
    kextra = {}
    dp = cfg.get("dp", 0)
    m0b = f"s_add_u32 m0, s{S_KVL}, 8192"
    if dp:
        for g in (0, 2, 7, 9): fill[g] = fill[g][:1]
        fill[4] = fill[4][1:]
        fill[5] = ["s_waitcnt vmcnt(%d)" % (1 if dp in (1, 2) else 0), rd_m(6, 0)]
        if dp == 1:
            fill[2] += [dm(0)]; fill[7] += [dm(1)]; fill[9] += [m0b]; fill[12] = fill[12] + [dm(2)]; kextra = {5: [dm(3)]}
        if dp == 2:
            fill[2] += [dm(0)]; fill[9] += [dm(1)]; kextra = {3: [m0b], 5: [dm(2)], 11: [dm(3)]}
        if dp == 4:
            kextra = {4: [dm(0)], 7: [dm(1)], 9: [m0b], 11: [dm(2)], 14: [dm(3)]}
        if dp == 5:
            fill[9] += [dm(0)]; fill[12] = fill[12][:1] + [dm(1)] + fill[12][1:]; kextra = {3: [m0b], 5: [dm(2)], 7: [dm(3)]}
        if dp == 6:
            fill[0] += [dm(0)]; fill[1] = [rd_m(4, 1), dm(1), wt(("m", 1))]; fill[2] += [m0b]; fill[3] = [rd_m(5, 1), dm(2), wt(("m", 2))]; fill[4] = [dm(3)] + fill[4]
            fill[5] = ["s_waitcnt vmcnt(4)", rd_m(6, 0)]
        if dp == 7:
            pre = fill[-1]; fill[-1] = pre[:8] + [dm(0)] + pre[8:]; fill[0] += [dm(1)]; fill[2] += [m0b]; fill[3] = [rd_m(5, 1), dm(2), wt(("m", 2))]
            fill[5] = ["s_waitcnt vmcnt(3)", rd_m(6, 0)]; fill[7] += [dm(3)]
        if dp == 3:
            fill[7] += [dm(0)]; fill[12] = fill[12] + [dm(1)]; kextra = {3: [m0b], 6: [dm(2)], 14: [dm(3)]}
    if cfg.get("flp") == 1:
        fill[11] = []; kextra[7] = None
    pp = cfg.get("pubp", 0)
    if pp:
        pre = [rd_m(J, x) for J in range(4) for x in range(2)]
        fill[-1] = pre[:pp] + [pubk] + pre[pp:] + [wt(("m", 0)), SS("m0")]
        fill[13] = []; fill[5] = ["s_waitcnt vmcnt(3)", rd_m(6, 0)]
    pv = cfg.get("pv", 0); pkp = cfg.get("pkp", 0)
    if pv == 0: fill[15] = [pubv]
    if pkp: fill[13] = []
    for n, g in enumerate([10, 11, 13, 14] if cfg.get("qo") else [10, 12, 13, 14]): fill[g] = fill[g] + [z(ACB + 2 * n)]
    GS("q", fill, 16)
    interleave(e, mq, fill)
    S("q")
    mk = [smf(ACB + 4 * t, MEMA + 4 * J, FRAG[("k", J, t)]) for J in range(8) for t in range(2)]
    def post_dup(acc, dst):
        return [f"v_add_f32 v{acc}, v{acc}, v{acc+2}", f"v_add_f32 v{acc+1}, v{acc+1}, v{acc+3}",
                f"v_cvt_pk_bf16_f32 v{dst}, v{acc}, v{acc+1}"]
    pq = post_dup(ACA, QP) + post_dup(ACA + 4, QP + 1)
    def rd_q(js, t):
        def f(): seq[("q", js)] = e(f"ds_read_b64_tr_b16 {vr(QB+4*js+2*t,2)}, v{A_TR} offset:{L_QU-L_MEM + js*1024 + t*512}")
        return f
    kxslot = [0, 1, 2, 3, 4, 5, 0, 1]
    def rd_kx(n):
        js, kt = n // 2, n % 2
        def f(): seq[("kx", n)] = e(f"ds_read_b128 {vr(KXA+4*kxslot[n],4)}, v{A_KX} offset:{(kt*4+js)*1024}")
        return f
    def wr_u(key, a, r, t):
        def f(): seq[key] = e(f"ds_write2_b32 v{a}, v{r}, v{r} offset0:{128*t} offset1:{128*t+1}")
        return f
    fill = {0: pq[0:2], 1: pq[2:4], 2: [wr_u("wq0", A_UW, QP, 0)] + pq[4:6], 3: [wr_u("wq1", A_UW, QP + 1, 1)],
            4: [rd_kx(0), f"v_add_u32 v{T0}, {L_KU - L_QU}, v{A_UW}"], 5: [rd_kx(1)], 6: [rd_kx(2)], 7: [rd_kx(3)],
            8: [wt("wq1"), SS("bq0"), "s_barrier", SS("bq1")],
            9: [rd_q(0, 0), rd_q(0, 1)], 10: [rd_q(1, 0), rd_q(1, 1)], 11: [rd_kx(4)], 12: [rd_q(2, 0), rd_kx(5)], 13: [rd_q(2, 1), rd_q(3, 0)],
            14: [rd_q(3, 1)], 15: [wt(("q", 1))]}
    if pkp == 1: fill[6] = fill[6] + [pubk]
    if pkp == 2: fill[11] = fill[11] + [pubk]
    if pv == 2: fill[14] = fill[14] + [pubv]
    kb = cfg.get("kb", 0)
    if kb == 1:
        fill.update({5: [rd_kx(1), rd_kx(2)], 6: [rd_kx(3)], 7: [wt("wq1"), "s_barrier"], 8: [rd_q(0, 0), rd_q(0, 1)], 9: [rd_q(1, 0)], 10: [rd_q(1, 1)],
                     11: [rd_kx(4)], 12: [rd_q(2, 0), rd_kx(5)]})
    if kb == 2:
        fill.update({5: [rd_kx(1)], 6: [wt("wq1"), "s_barrier"], 7: [rd_q(0, 0), rd_q(0, 1)], 8: [rd_kx(2)], 9: [rd_q(1, 0), rd_kx(3)], 10: [rd_q(1, 1)],
                     11: [rd_kx(4)], 12: [rd_q(2, 0), rd_kx(5)]})
    if kb == 3:
        fill = {0: pq[0:1], 1: pq[1:2], 2: pq[2:3], 3: [wr_u("wq0", A_UW, QP, 0)] + pq[3:4], 4: [rd_kx(0)] + pq[4:5], 5: [rd_kx(1)] + pq[5:6],
                6: [wr_u("wq1", A_UW, QP + 1, 1), f"v_add_u32 v{T0}, {L_KU - L_QU}, v{A_UW}"], 7: [rd_kx(2)], 8: [rd_kx(3)], 9: [rd_kx(4)],
                10: [wt("wq1"), "s_barrier"], 11: [rd_q(0, 0), rd_q(0, 1)], 12: [rd_q(1, 0), rd_q(1, 1)], 13: [rd_q(2, 0), rd_kx(5)],
                14: [rd_q(2, 1), rd_q(3, 0)], 15: [rd_q(3, 1), wt(("q", 0))]}
    for g, x in kextra.items():
        if x is None: fill[g] = flag; fill[6] = fill[6] + [rd_kx(3)]
        elif g == 4: fill[g] = fill[g][:1] + x + fill[g][1:]
        else: fill[g] = fill[g] + x
    if cfg.get("flp") == 1: fill[4] = [rd_kx(0)]; fill[8] = fill[8]; fill[15] = fill[15]; kadd = True
    GS("k", fill, 16)
    interleave(e, mk, fill)
    S("k")
    pk = post_dup(ACB, KP) + post_dup(ACB + 4, KP + 1)
    ms = []
    for js in range(4):
        for kt in range(2):
            n = js * 2 + kt
            ms.append(mf32(ACA + 4 * kt, KXA + 4 * kxslot[n], QB + 4 * js, "0" if js == 0 else ACA + 4 * kt))
    def rd_k(js, t):
        def f(): seq[("k", js)] = e(f"ds_read_b64_tr_b16 {vr(KXA+8+4*js+2*t,2)}, v{A_TRK} offset:{L_KU-L_MEM + js*1024 + t*512}")
        return f
    fill = {0: [rd_kx(6)] + pk[0:2], 1: [rd_kx(7)] + pk[2:4] + ([f"v_add_u32 v{T0}, {L_KU - L_QU}, v{A_UW}"] if cfg.get("flp") == 1 else []),
            2: [wr_u("wk0", T0, KP, 0)] + pk[4:6], 3: [wt(("q", 3)), z(ACB), z(ACB + 2)],
            4: [wr_u("wk1", T0, KP + 1, 1), z(ACB + 4), z(ACB + 6)],
            5: [wt(("kx", 7))],
            }
    if cfg.get("sxs") == 1:
        fill = {0: [rd_kx(6)], 1: [rd_kx(7)] + pk[0:2], 2: pk[2:4], 3: [wt(("q", 3))] + pk[4:6],
                4: [wr_u("wk0", T0, KP, 0), z(ACB), z(ACB + 2)], 5: [wt(("kx", 7)), z(ACB + 4), z(ACB + 6)], 6: [wr_u("wk1", T0, KP + 1, 1)]}
    if kb == 3: fill[1] = fill[1][:1] + [wt(("q", 1))] + fill[1][1:]
    GS("sx", fill, 8)
    interleave(e, ms, fill)
    S("Sx")
    mv = [smf(ACB + 4 * t, MEMA + 4 * J, FRAG[("v", J, t)]) for J in range(8) for t in range(2)]
    SM = KXA
    X0, X1 = ACA, ACA + 4
    mx, t2 = KXA + 4, KXA + 5
    e0 = XT
    NV1 = cfg.get("nv1", 10)
    msm = [mf32(SM, KXA + 8 + 4 * js, QB + 4 * js, "0" if js == 0 else SM) for js in range(4)]
    odd = f"s[{S_ODD}:{S_ODD+1}]"
    early = [f"v_max3_f32 v{mx}, v{X0}, v{X0+1}, v{X0+2}", f"v_max3_f32 v{t2}, v{X1}, v{X1+1}, v{X1+2}",
             f"v_max3_f32 v{mx}, v{mx}, v{X0+3}, v{X1+3}", f"v_max_f32 v{mx}, v{mx}, v{t2}",
             f"v_cndmask_b32 v{e0}, v{X0}, v{X0+2}, {odd}", f"v_cndmask_b32 v{e0+1}, v{X0+1}, v{X0+3}, {odd}",
             f"v_cndmask_b32 v{e0+2}, v{X1}, v{X1+2}, {odd}", f"v_cndmask_b32 v{e0+3}, v{X1+1}, v{X1+3}, {odd}"]
    seqm = mv[:NV1] + msm + mv[NV1:]
    PVB0, PVB1, OAC, PA, LB, LA = QB, QB + 8, KXA + 8, KXA + 16, KXA + 20, KXA + 4
    def rd_vx(n):
        t, hf = n // 2, n % 2
        def f(): seq["vx"] = e(f"ds_read_b64 {vr(QB+8*t+2+4*hf,2)}, v{A_VX} offset:{t*1024 + hf*512}")
        return f
    def rd_wo(T, hf):
        return rd_w(("wo", T), MEMA + 8 * (T % 4) + 4 * hf, FRAG[("o", (1, T // 2), T % 2)][1] + 1024 * hf)
    EE = [SM, SM + 1, e0, e0+1, e0+2, e0+3]
    fill = {0: [wt("wk1"), SS("bk0"), "s_barrier", SS("bk1")]}
    for n in range(8): fill[1 + n] = [rd_k(n // 2, n % 2), early[n]]
    xv = cfg.get("xv", 0)
    if xv == 2:
        fill = {1: early[0:1], 2: early[1:3], 3: early[3:5], 4: [wt("wk1"), "s_barrier"],
                5: [rd_k(0, 0), rd_k(0, 1)], 6: [rd_k(1, 0), rd_k(1, 1)], 7: [rd_k(2, 0), rd_k(2, 1)], 8: [rd_k(3, 0), rd_k(3, 1)]}
    if xv == 3:
        fill = {1: early[0:2], 2: early[2:4], 3: [wt("wk1"), "s_barrier"],
                4: [rd_k(0, 0), rd_k(0, 1)], 5: [rd_k(1, 0), rd_k(1, 1)], 6: [rd_k(2, 0)], 7: [rd_k(2, 1)], 8: [rd_k(3, 0), rd_k(3, 1)]}
    if xv == 1:
        for n in range(8): fill[1 + n] = [rd_k(n // 2, n % 2)]
        fill[7] += early[0:1]; fill[8] += early[1:2]
    if pv == 1: fill[0] = [pubv]
    if pv == 3: fill[6] = fill[6] + [pubv]
    fill[NV1 - 1] = [rd_wo(0, 0), wt(("k", 0)), SS("k0")] if NV1 - 1 > 8 else fill[NV1 - 1][:1] + [wt(("k", 0))] + fill[NV1 - 1][1:]
    lb = [f"v_mov_b64 {vr(LB,2)}, s[{S_LB}:{S_LB+1}]", f"v_mov_b64 {vr(LB+2,2)}, s[{S_LB}:{S_LB+1}]"]
    zz = [z(OAC), z(OAC + 2), z(OAC + 4), z(OAC + 6), f"v_mov_b32 v{PA+2}, 0"] + lb
    if xv == 1:
        fill[NV1 - 1] = fill[NV1 - 1] + early[2:3]
        fill[NV1] = [wt(("k", 1))] + early[3:5]
        fill[NV1 + 1] = [wt(("k", 2))] + early[5:7]
        fill[NV1 + 2] = [wt(("k", 3))] + early[7:8] + zz[0:1]
        fill[NV1 + 3] = [rd_vx(0)] + zz[1:3]
        zz = zz[3:]
    elif xv in (2, 3):
        rem = early[5:] if xv == 2 else early[4:]
        allv = rem + zz
        k0 = 2 if xv == 3 else 0
        fill[NV1] = [wt(("k", 1))]
        fill[NV1 + 1] = [wt(("k", 2))] + allv[0:k0]
        fill[NV1 + 2] = [wt(("k", 3))] + allv[k0:k0 + 2]
        fill[NV1 + 3] = [rd_vx(0)] + allv[k0 + 2:k0 + 4]
        zz = allv[k0 + 4:]
    else:
        fill[NV1] = [wt(("k", 1))] + zz[0:2]
        fill[NV1 + 1] = [wt(("k", 2))] + zz[2:4]
        fill[NV1 + 2] = [wt(("k", 3))] + zz[4:5]
        fill[NV1 + 3] = [rd_vx(0)] + zz[5:7]
        zz = []
    GS("v1", fill, 14)
    interleave(e, seqm[:NV1 + 4], fill)
    S("Sm")
    rest = seqm[NV1 + 4:]
    assert len(rest) == 6
    def run(x):
        for s in x: s() if callable(s) else e(s)
    run([rest[0], rd_vx(1), rd_vx(2)] + zz[0:1] + [rest[1], rd_vx(3), rd_wo(0, 1),
         f"v_max3_f32 v{mx}, v{mx}, v{SM}, v{SM+1}", f"v_mov_b32 v{t2}, v{mx}",
         rest[2], rd_wo(1, 0), rd_wo(1, 1),
         f"v_permlane32_swap_b32 v{mx}, v{t2}", f"v_max_f32 v{mx}, v{mx}, v{t2}", f"v_mov_b32 v{t2}, v{mx}",
         rest[3], rd_wo(2, 0), rd_wo(2, 1),
         f"v_permlane16_swap_b32 v{mx}, v{t2}", f"v_max_f32 v{mx}, v{mx}, v{t2}",
         rest[4], f"v_mul_f32 v{mx}, s{S_SC}, v{mx}", rest[5], rd_wo(3, 0), rd_wo(3, 1)] + zz[1:] + [
         ]
        + [f"v_fma_f32 v{x}, v{x}, s{S_SC}, -v{mx}" for x in EE] + [f"v_exp_f32 v{x}, v{x}" for x in EE]
        + [f"v_cvt_pk_bf16_f32 v{PA}, v{SM}, v{SM+1}", f"v_cvt_pk_bf16_f32 v{PA+1}, v{e0}, v{e0+1}", f"v_cvt_pk_bf16_f32 v{PA+3}, v{e0+2}, v{e0+3}",
           f"v_permlane32_swap_b32 v{PA}, v{PA+2}"])
    S("soft")
    cv = lambda t, h: f"v_cvt_pk_bf16_f32 v{QB+8*t+h}, v{ACB+4*t+2*h}, v{ACB+4*t+2*h+1}"
    run([cv(0, 0), cv(0, 1), mf32(LA, PA, LB, "0"), wt("vx"), cv(1, 0), cv(1, 1),
         f"v_smfmac_f32_16x16x64_bf16 {vr(OAC,4)}, {vr(PA,4)}, {vr(PVB0,8)}, v{IDX}", "s_nop 0",
         f"v_smfmac_f32_16x16x64_bf16 {vr(OAC+4,4)}, {vr(PA,4)}, {vr(PVB1,8)}, v{IDX}",
         ] + ([
         f"v_pk_add_f32 {vr(LA,2)}, {vr(LA,2)}, {vr(LA+2,2)}", f"v_rcp_f32 v{LA}, v{LA}", f"v_rcp_f32 v{LA+1}, v{LA+1}",
         f"v_pk_add_f32 {vr(OAC,2)}, {vr(OAC,2)}, {vr(OAC+2,2)}", f"v_pk_mul_f32 {vr(OAC,2)}, {vr(OAC,2)}, {vr(LA,2)}", "s_nop 0",
         f"v_pk_add_f32 {vr(OAC+4,2)}, {vr(OAC+4,2)}, {vr(OAC+6,2)}", f"v_cvt_pk_bf16_f32 v{OAC}, v{OAC}, v{OAC+1}",
         f"v_pk_mul_f32 {vr(OAC+4,2)}, {vr(OAC+4,2)}, {vr(LA,2)}", f"v_cvt_pk_bf16_f32 v{OAC+1}, v{OAC+4}, v{OAC+5}"] if cfg.get("usepk") else [
         f"v_add_f32 v{LA}, v{LA}, v{LA+2}", f"v_add_f32 v{LA+1}, v{LA+1}, v{LA+3}", f"v_rcp_f32 v{LA}, v{LA}", f"v_rcp_f32 v{LA+1}, v{LA+1}",
         f"v_add_f32 v{OAC}, v{OAC}, v{OAC+2}", f"v_add_f32 v{OAC+1}, v{OAC+1}, v{OAC+3}",
         f"v_mul_f32 v{OAC}, v{OAC}, v{LA}", f"v_mul_f32 v{OAC+1}, v{OAC+1}, v{LA+1}",
         f"v_add_f32 v{OAC+4}, v{OAC+4}, v{OAC+6}", f"v_add_f32 v{OAC+5}, v{OAC+5}, v{OAC+7}",
         f"v_mul_f32 v{OAC+4}, v{OAC+4}, v{LA}", f"v_mul_f32 v{OAC+5}, v{OAC+5}, v{LA+1}",
         f"v_cvt_pk_bf16_f32 v{OAC}, v{OAC}, v{OAC+1}", f"v_cvt_pk_bf16_f32 v{OAC+1}, v{OAC+4}, v{OAC+5}"]))
    WAC = [QB, QB + 4, QB + 8, QB + 12, ACA, ACA + 4, ACB, ACB + 4]
    so = e(f"ds_write_b64 v{A_UW}, {vr(OAC,2)}")
    S("ow")
    def vpost():
        for t in range(2):
            a = ACB + 4 * t
            e(f"v_pk_add_f32 {vr(a,2)}, {vr(a,2)}, {vr(a+2,2)}\nv_cvt_pk_bf16_f32 v{VP+t}, v{a}, v{a+1}")
    if cfg.get("mz"):
        e(z(QB)); e(z(QB + 2))
        vpost()
        e(f"v_mfma_f32_32x32x16_bf16 {vr(ACA,16)}, {vr(QB,4)}, {vr(QB,4)}, 0")
        for r in range(4, 16, 2): e(z(QB + r))
    else:
        vpost()
        for r in range(0, 16, 2): e(z(QB + r))
        for r in range(0, 16, 2): e(z(ACA + r))
    e.waitlg(so)
    S("bo0")
    e("s_barrier")
    S("bo1")
    OA = KXA
    for J in range(2):
        for x in range(2):
            seq[("oa", J)] = e(f"ds_read_b64_tr_b16 {vr(OA+4*J+2*x,2)}, v{A_TR} offset:{L_QU-L_MEM + (2*J+x)*1024}")
    mo = []
    for p in range(4):
        for T in (2 * p, 2 * p + 1): mo.append(smf(WAC[T], OA, FRAG[("o", (0, T // 2), T % 2)]))
        for T in (2 * p, 2 * p + 1): mo.append(smf(WAC[T], OA + 4, ("v", MEMA + 8 * (T % 4))))
    RSO = OAC
    def post_pair(p):
        a, b = WAC[2 * p], WAC[2 * p + 1]; d = RSO + 2 * p
        return [f"v_add_f32 v{a}, v{a}, v{a+2}", f"v_add_f32 v{a+1}, v{a+1}, v{a+3}",
                f"v_cvt_pk_bf16_f32 v{d}, v{a}, v{a+1}", f"v_add_f32 v{b}, v{b}, v{b+2}",
                f"v_add_f32 v{b+1}, v{b+1}, v{b+3}", f"v_and_or_b32 v{d}, v{d}, -2, s{S_TAG}",
                f"v_cvt_pk_bf16_f32 v{d+1}, v{b}, v{b+1}",
                f"buffer_store_dwordx2 {vr(d,2)}, v{A_RSW}, {WS}, s{S_RSW0 if p < 2 else S_RSW1} offen offset:{(p%2)*2048}{st}"]
    p0, p1, p2, p3 = [post_pair(p) for p in range(4)]
    fill = {-1: [wt(("oa", 0)), SS("oa")], 1: [wt(("oa", 1))], 2: [rd_wo(4, 0), rd_wo(4, 1)], 3: [rd_wo(5, 0), rd_wo(5, 1)],
            4: ["s_nop 0"] + p0[0:1], 5: p0[1:3], 6: [rd_wo(6, 0), rd_wo(6, 1)] + p0[3:5], 7: [rd_wo(7, 0), rd_wo(7, 1)] + p0[5:7], 8: p0[7:8] + p1[0:1],
            9: [wt(("wo", 4))] + p1[1:3], 10: [wt(("wo", 5))] + p1[3:5], 11: p1[5:7],
            12: p1[7:8] + p2[0:1], 13: [wt(("wo", 6))] + p2[1:3], 14: [wt(("wo", 7))] + p2[3:5],
            15: p2[5:8] + p3[0:3] + ([p3[5]] + p3[3:5] + p3[6:] if not cfg.get("usepk") else [p3[5], f"v_pk_add_f32 {vr(WAC[7],2)}, {vr(WAC[7],2)}, {vr(WAC[7]+2,2)}"] + p3[6:]),
            }
    GS("wo", fill, 16)
    interleave(e, mo, fill)
    S("Wo")
    if cfg.get("stepst"):
        for k in range(12): e(f"s_cmp_eq_u32 s{S_STEP}, {k}\ns_cselect_b32 s{20+k}, s84, s{20+k}")
    for w in (2, 0, 1): e(f"s_cmp_eq_u32 s{S_W}, {w}\ns_cbranch_scc1 {LOOP}_{w}")
    e(f"s_branch {LOOP}_3")
    for t in tail: t()
    e.label(LAST)
    e("s_waitcnt vmcnt(0) lgkmcnt(0)\ns_barrier")
    for J in range(8):
        for x in range(2): rd_m(J, x)()
    e(pubk); e(pubv)
    e(f"s_add_u32 s{S_KVM}, s{S_KVM}, 0x20000")
    for r in range(0, 8, 2): e(z(ACB + r))
    e("s_waitcnt lgkmcnt(0)")
    for J in range(8):
        for t in range(2): e(smf(ACA + 4 * t, MEMA + 4 * J, FRAG[("k", J, t)]))
    for i, m in enumerate(mv):
        e(m)
        if 2 <= i < 8: e((post_dup(ACA, KP) + post_dup(ACA + 4, KP + 1))[i - 2])
        if i == 8: e(pubk)
    e.nop(8)
    vpost()
    e(pubv)
    e("s_waitcnt vmcnt(0) lgkmcnt(0)\ns_barrier")
    e(f"v_mov_b32 v{T0}, 64\ns_mov_b64 exec, s[{S_W0M}:{S_W0M+1}]")
    e(f"buffer_store_dword v{T0}, off, {WS}, s{S_CF} sc1")
    if cfg.get("gstamp"):
        e(f"s_memrealtime s[84:85]\ns_memtime s[86:87]\ns_waitcnt lgkmcnt(0)\ns_sub_u32 s86, s86, s16\nv_mov_b32 v24, s86\nv_mov_b32 v20, s3\nv_mov_b32 v21, s18\nv_mov_b32 v22, s84\nv_mov_b32 v23, s69")
        e(f"s_lshl_b32 s{S_TMP}, s{S_H}, 4\ns_add_u32 s{S_TMP}, s{S_TMP}, {WS_STAMP + 0x10000}")
        if cfg.get("stepst"):
            for k in range(12): e(f"v_mov_b32 v{30+k}, s{20+k}")
            e(f"s_lshl_b32 s{S_TMP2}, s{S_H}, 6\ns_add_u32 s{S_TMP2}, s{S_TMP2}, {WS_STAMP + 0x11000}")
            for k in range(3): e(f"buffer_store_dwordx4 v[{30+4*k}:{33+4*k}], off, {WS}, s{S_TMP2} offset:{16*k}")
        e(f"buffer_store_dwordx4 v[20:23], off, {WS}, s{S_TMP}\nbuffer_store_dword v24, off, {WS}, s{S_TMP} offset:1024")
    if cfg.get("dbgt"):
        for k, r in enumerate(("s69", "s18", "s84")):
            e(f"s_sub_u32 s{S_TMP}, {r}, s3\nv_mov_b32 v20, s{S_TMP}\nv_mov_b32 v21, {8 + 4*k}\nglobal_atomic_umax v21, v20, s[{S_DBG}:{S_DBG+1}]")
        e(f"v_mov_b32 v20, s60\nv_mov_b32 v21, 28\nglobal_atomic_or v21, v20, s[{S_DBG}:{S_DBG+1}]")
        e(f"v_mov_b32 v20, s86\nv_mov_b32 v21, 24\nglobal_atomic_umax v21, v20, s[{S_DBG}:{S_DBG+1}]")
    e("s_branch KEND")
```

```python
from asmlib import Em, vr
from layout import *
from chain import *

WS = f"s[{R_WS}:{R_WS+3}]"
W_XB, W_QX, W_KMU, W_RED, W_STG = 0x0, 0x10000, 0x12000, 0x13000, 0x10000
NSLOT = 6
S_G, S_SEG, S_CNT, S_XL, S_XG, S_I, S_OFF, S_OFF2, S_STGB = 52, 53, 54, 55, 56, 57, 58, 59, 60
S_STP, S_END, S_PREV, S_CHN = 61, 66, 74, 75
R_X = 84
R_A, R_B = 40, 44
R_O = 88
V_C, V_G, V_L16, V_XSRC, V_XRD, V_T, V_T2 = 1, 2, 3, 4, 5, 6, 7

_cfg = {}
def WST(e, idx=None):
    if not _cfg.get("wstamp"): return
    e(f"s_memrealtime s[70:71]\ns_lshl_b32 s72, s{S_GRP}, 5\ns_add_u32 s72, s72, s{S_H}\ns_lshl_b32 s72, s72, 8\ns_lshl_b32 s73, s101, 2\ns_add_u32 s72, s72, s73")
    e(f"s_add_u32 s72, s72, {WS_STAMP + 0x20000}\ns_add_u32 s101, s101, 1\ns_waitcnt lgkmcnt(0)\ns_sub_u32 s70, s70, s3\nv_mov_b32 v{V_T}, s70\nv_mov_b32 v{V_T2}, 0\ns_mov_b64 exec, s[{S_W0M}:{S_W0M+1}]")
    e(f"buffer_store_dword v{V_T}, v{V_T2}, {WS}, s72 offen\ns_mov_b64 exec, -1\ns_waitcnt vmcnt(0)")

def load_blocks(e, blocks, D=4):
    N = len(blocks)
    def issue(q):
        n, i = q // 4, q % 4
        r, vs, so, _, _ = blocks[n]
        e(f"s_add_u32 m0, s{S_STGB}, {(n % NSLOT) * 4096 + i * 1024}\ns_mov_b32 s{S_TMP}, {so[i]}")
        e(f"buffer_load_dwordx4 {vs}, s[{r}:{r+3}], s{S_TMP} offen lds")
    for q in range(D): issue(q)
    for q in range(4 * N):
        nxt = q + D
        if q % 4 == 3 or (D < 4 and nxt < 4 * N): e(f"s_waitcnt vmcnt({min(4 * N - 1 - q, D - 1 if D < 4 else D - 4)})")
        if D < 4 and nxt < 4 * N: issue(nxt)
        if q % 4 == 3:
            n = q // 4
            for dst, off in blocks[n][4]:
                e(f"ds_read_b64_tr_b16 {dst}, {blocks[n][3]} offset:{(n % NSLOT) * 4096 + off}")
            e("s_waitcnt lgkmcnt(0)")
            if D >= 4:
                for k in range(4):
                    if q - 3 + D + k < 4 * N: issue(q - 3 + D + k)

def wmat_blocks(r, abase):
    out = []
    for J in range(8):
        rd = []
        for t in range(2):
            for m in range(4):
                s = 2 * J + m // 2
                rd.append((vr(abase + (t * 16 + s) * 4 + 2 * (m % 2), 2, "a"), (32 * (m // 2) + 4 * (m % 2)) * 64 + t * 32))
        out.append((r, "v20", [(64 * J + 16 * i) * 8192 for i in range(4)], "v22", rd))
    return out

def wo_blocks(r, abase):
    out = []
    for hh in range(8):
        rd = []
        for js in range(4):
            for m in range(2):
                rd.append((vr(abase + (hh * 4 + js) * 4 + 2 * m, 2, "a"), (32 * js + 16 * m) * 32))
        out.append((r, "v21", [(hh * 128 + 32 * i) * 1024 for i in range(4)], "v23", rd))
    return out

def wload_addr(e):
    e("v_and_b32 v18, 3, v0\nv_lshrrev_b32 v19, 2, v0")
    e(f"s_lshl_b32 s{S_TMP}, s{S_H}, 8\ns_lshl_b32 s{S_TMP2}, s{S_W}, 6\ns_add_u32 s{S_TMP}, s{S_TMP}, s{S_TMP2}")
    e(f"v_lshlrev_b32 v20, 13, v19\nv_lshl_add_u32 v20, v18, 4, v20\nv_add_u32 v20, s{S_TMP}, v20")
    e(f"s_lshl_b32 s{S_TMP}, s{S_W}, 20\ns_lshl_b32 s{S_TMP2}, s{S_H}, 5\ns_add_u32 s{S_TMP}, s{S_TMP}, s{S_TMP2}")
    e(f"v_lshrrev_b32 v21, 1, v0\nv_lshlrev_b32 v21, 10, v21\nv_and_b32 v24, 1, v0\nv_lshl_add_u32 v21, v24, 4, v21\nv_add_u32 v21, s{S_TMP}, v21")
    e(f"s_mul_i32 s{S_STGB}, s{S_W}, {NSLOT*4096}\ns_add_u32 s{S_STGB}, s{S_STGB}, {W_STG}")
    e(f"v_lshrrev_b32 v24, 2, v{V_C}")
    e(f"v_lshl_add_u32 v22, v{V_G}, 3, v24\nv_lshlrev_b32 v22, 6, v22\nv_lshl_add_u32 v22, v18, 3, v22\nv_add_u32 v22, s{S_STGB}, v22")
    e(f"v_lshl_add_u32 v23, v{V_G}, 2, v24\nv_lshlrev_b32 v23, 5, v23\nv_lshl_add_u32 v23, v18, 3, v23\nv_add_u32 v23, s{S_STGB}, v23")

def x_dma(e):
    out = []
    for i in range(8):
        out.append([f"s_add_u32 m0, s{S_XL}, {i*1024}", f"s_add_u32 s{S_TMP}, s{S_XG}, {i*64}",
                    f"buffer_load_dwordx4 v{V_XSRC}, s[{R_X}:{R_X+3}], s{S_TMP} offen lds"])
    return out

def flag_store(e, soff, val):
    e(f"v_mov_b32 v{V_T}, {val}\nv_mov_b32 v{V_T2}, s{soff}\ns_mov_b64 exec, s[{S_W0M}:{S_W0M+1}]")
    e(f"buffer_store_dword v{V_T}, v{V_T2}, {WS}, 0 offen sc1\ns_mov_b64 exec, -1")

def mfd(d, a, b, c, pa="v", pb="v"):
    return f"v_mfma_f32_16x16x32_bf16 {vr(d,4)}, {vr(a,4,pa)}, {vr(b,4,pb)}, {c if c == '0' else vr(c,4)}"

def phaseA(e, cfg):
    e("; ---- phase A : K,V projection")
    XF, ACC, OUT = 32, 64, 96
    srd(e, R_A, S_WK, 0x400000); srd(e, R_B, S_WV, 0x400000)
    if cfg.get("seqa"):
        e(f"s_cmp_lt_u32 s{S_G}, 3\ns_cselect_b32 s{S_STP}, 2, 4\ns_cselect_b32 s{S_END}, 28, 64\ns_cselect_b32 s{S_TMP}, 9, 25\ns_add_u32 s{S_SEG}, s{S_G}, s{S_TMP}")
        e(f"s_cmp_eq_u32 s{S_G}, 0\ns_cselect_b32 s{S_STP}, 1, s{S_STP}\ns_cselect_b32 s{S_END}, 10, s{S_END}\ns_cselect_b32 s{S_SEG}, 0, s{S_SEG}")
    else:
        e(f"s_cmp_lt_u32 s{S_G}, 3\ns_cselect_b32 s{S_STP}, 3, 4\ns_cselect_b32 s{S_END}, {cfg.get('asplit', 27)}, 64\ns_cselect_b32 s{S_TMP}, 0, {cfg.get('asplit', 27) - 3}\ns_add_u32 s{S_SEG}, s{S_G}, s{S_TMP}")
    e(f"s_lshl_b32 s{S_XG}, s{S_SEG}, 15\ns_lshl_b32 s{S_XL}, s{S_W}, 13\nv_mov_b32 v{V_XRD}, v{V_L16}")
    for g in x_dma(e):
        for s in g: e(s)
    if cfg.get("wdc", 4) != cfg.get("wda", 4):
        e(f"s_cmp_lt_u32 s{S_G}, 3\ns_cbranch_scc1 PA_W1")
        load_blocks(e, wmat_blocks(R_A, 0) + wmat_blocks(R_B, 128), cfg["wdc"])
        e("s_branch PA_W2")
        e.label("PA_W1")
    load_blocks(e, wmat_blocks(R_A, 0) + wmat_blocks(R_B, 128), cfg.get('wda', 4))
    e.label("PA_W2")
    wait_init(e, "w", 24)
    e(f"s_and_b32 s{S_TMP}, s{S_GRP}, 3\ns_lshl_b32 s{S_TMP}, s{S_TMP}, 4\ns_lshr_b32 s{S_TMP2}, s{S_GRP}, 2\ns_add_u32 s{S_TMP}, s{S_TMP}, s{S_TMP2}\ns_nop 3")
    e(f"v_readlane_b32 s{S_MODE}, v24, s{S_TMP}")
    if cfg.get("force_slow"): e(f"s_mov_b32 s{S_MODE}, 0")
    WST(e)
    e(f"s_mov_b32 s{S_I}, 0x7ffffff0")
    pa = cfg.get("pastamp")
    def acc(k):
        if pa: e(f"s_memtime s[70:71]\ns_waitcnt lgkmcnt(0)\ns_sub_u32 s72, s70, s92\ns_mov_b32 s92, s70\ns_add_u32 s{93+k}, s{93+k}, s72")
    if pa: e("s_memtime s[92:93]\ns_waitcnt lgkmcnt(0)\ns_mov_b32 s93, 0\ns_mov_b32 s94, 0\ns_mov_b32 s95, 0\ns_mov_b32 s96, 0")
    e.label("PA_LOOP")
    if cfg.get("slowa"): e(f"s_cmp_lt_u32 s{S_SEG}, 9\ns_cbranch_scc1 PA_NS\ns_sleep {cfg['slowa']}"); e.label("PA_NS")
    e("s_waitcnt vmcnt(4)")
    acc(0)
    e("s_barrier")
    acc(1)
    e(f"s_lshl_b32 s{S_TMP}, s{S_STP}, 15\ns_add_u32 s{S_XG}, s{S_XG}, s{S_TMP}\ns_xor_b32 s{S_XL}, s{S_XL}, 0x8000")
    dma = x_dma(e)
    seq = {}
    def rd(n):
        s, rt = n // 2, n % 2
        seq[n] = e(f"ds_read_b128 {vr(XF + 4 * (n % 8), 4)}, v{V_XRD} offset:{(rt * 16 + s) * 1024}")
    for n in range(6): rd(n)
    for n in range(32):
        s, rt = n // 2, n % 2
        e.waitlg(seq[n])
        x = XF + 4 * (n % 8)
        for t in range(2):
            a = ACC + 4 * (t * 2 + rt)
            e(mfd(a, (t * 16 + s) * 4, x, "0" if s == 0 else a, "a", "v"))
            if t == 0 and n + 6 < 32: rd(n + 6)
        for t in range(2):
            a = ACC + 16 + 4 * (t * 2 + rt)
            e(mfd(a, x, 128 + (t * 16 + s) * 4, "0" if s == 0 else a, "v", "a"))
        if n % 3 == 1 and n // 3 < 8:
            for q in dma[n // 3]: e(q)
        if n == 14:
            e("s_waitcnt vmcnt(5)\ns_barrier")
            flag_store(e, S_I, 1)
    acc(2)
    e(f"v_xor_b32 v{V_XRD}, 0x8000, v{V_XRD}")
    e(f"s_lshl_b32 s{S_OFF}, s{S_SEG}, 19\ns_lshl_b32 s{S_TMP}, s{S_H}, 14\ns_add_u32 s{S_OFF}, s{S_OFF}, s{S_TMP}\ns_add_u32 s{S_OFF}, s{S_OFF}, {WS_KV}")
    e(f"s_lshl_b32 s{S_TMP}, s{S_W}, 10\ns_add_u32 s{S_TMP2}, s{S_OFF}, s{S_TMP}\ns_nop 0\ns_lshl_b32 s{S_I}, s{S_H}, 6\ns_add_u32 s{S_I}, s{S_I}, s{S_SEG}\ns_lshl_b32 s{S_I}, s{S_I}, 2")
    for rt in range(2):
        o = OUT + 4 * rt
        for t in range(2):
            a = ACC + 4 * (t * 2 + rt)
            e(f"v_cvt_pk_bf16_f32 v{o+2*t}, v{a}, v{a+1}\nv_cvt_pk_bf16_f32 v{o+2*t+1}, v{a+2}, v{a+3}")
        e(f"buffer_store_dwordx4 {vr(o,4)}, v{V_L16}, {WS}, s{S_TMP2} offen sc1")
        e(f"s_add_u32 s{S_TMP2}, s{S_TMP2}, 4096")
    e(f"s_add_u32 s{S_TMP2}, s{S_TMP2}, s{S_TMP}")
    for t in range(2):
        o = OUT + 8 + 4 * t
        for rt in range(2):
            a = ACC + 16 + 4 * (t * 2 + rt)
            e(f"v_cvt_pk_bf16_f32 v{o+2*rt}, v{a}, v{a+1}\nv_cvt_pk_bf16_f32 v{o+2*rt+1}, v{a+2}, v{a+3}")
        e(f"buffer_store_dwordx4 {vr(o,4)}, v{V_L16}, {WS}, s{S_TMP2} offen offset:{t*1024} sc1")
    acc(3)
    e(f"s_add_u32 s{S_SEG}, s{S_SEG}, s{S_STP}\ns_cmp_lt_u32 s{S_SEG}, s{S_END}\ns_cbranch_scc1 PA_LOOP")
    e("s_waitcnt vmcnt(0)\ns_barrier")
    flag_store(e, S_I, 1)
    if pa:
        e(f"s_lshl_b32 s72, s{S_GRP}, 5\ns_add_u32 s72, s72, s{S_H}\ns_lshl_b32 s72, s72, 4\ns_add_u32 s72, s72, {WS_STAMP + 0x30000}")
        e(f"v_mov_b32 v32, s93\nv_mov_b32 v33, s94\nv_mov_b32 v34, s95\nv_mov_b32 v35, s96\nv_mov_b32 v36, 0\nbuffer_store_dwordx4 v[32:35], v36, {WS}, s72 offen")

def poll_all(e, name, vaddr, soff, cmpv, vt, sleep=8, bar=True, pre=False):
    l, d = e.newlabel(name), e.newlabel(name + "D")
    e(f"s_cmp_eq_u32 s{S_W}, 0\ns_cbranch_scc0 {d}")
    if pre: e(f"v_cmp_gt_u32 vcc, {cmpv}, v{vt}\ns_cbranch_vccz {d}")
    e.label(l)
    e(f"buffer_load_dword v{vt}, v{vaddr}, {WS}, {soff} offen sc1\ns_add_u32 s{S_SPIN}, s{S_SPIN}, 1\ns_waitcnt vmcnt(0)")
    e(f"v_cmp_gt_u32 vcc, {cmpv}, v{vt}\ns_cbranch_vccz {d}\ns_sleep {sleep}")
    e(f"s_cmp_lt_u32 s{S_SPIN}, {SPIN_MAX}\ns_cbranch_scc1 {l}")
    e.label(d)
    if bar: e("s_barrier")

def rb_pair(e, d, a, b):
    e(f"v_cvt_pk_bf16_f32 v{d}, v{a}, v{b}\nv_lshlrev_b32 v{a}, 16, v{d}\nv_and_b32 v{b}, 0xffff0000, v{d}")

C_UR, C_HP, URS, HPC = 0x0, 0x8000, 7680, 4160
HPS = 4 * HPC
def conv(e, cfg):
    e("; ---- conv task")
    S_TK = S_OFF
    e(f"s_cmp_lt_u32 s{S_G}, 3\ns_cbranch_scc1 CV_END\ns_sub_u32 s{S_TK}, s{S_G}, 3\ns_lshl_b32 s{S_TK}, s{S_TK}, 5\ns_add_u32 s{S_TK}, s{S_TK}, s{S_H}")
    if cfg.get("cvwait") is not None:
        wait_init(e, "w", 24)
        e(f"s_lshl_b32 s{S_OFF2}, s{S_H}, 8\ns_add_u32 s{S_OFF2}, s{S_OFF2}, {4*cfg['cvwait']}\nv_mov_b32 v24, 0")
        poll_all(e, "CVS", 24, f"s{S_OFF2}", 1, 25, 32)
    srd(e, R_A, S_K, 0x200000); srd(e, R_B, S_V, 0x200000)
    KR, VR, SH, P, U = 32, 56, 72, 88, 112
    e(f"s_lshl_b32 s{S_TMP}, s{S_W}, 6\nv_add_u32 v16, s{S_TMP}, v0")
    e(f"s_lshl_b32 s{S_TMP}, s{S_TK}, 3\nv_lshlrev_b32 v17, 13, v16\nv_add_u32 v17, s{S_TMP}, v17")
    e("v_subrev_u32 v18, 3072, v17")
    for j in range(3): e(f"buffer_load_dwordx2 {vr(KR+2*j,2)}, v18, s[{R_A}:{R_A+3}], 0 offen offset:{j*1024}")
    e("v_add_u32 v19, 4096, v17")
    for j in range(8):
        va = "v17" if j < 4 else "v19"
        e(f"buffer_load_dwordx2 {vr(KR+6+2*j,2)}, {va}, s[{R_A}:{R_A+3}], 0 offen offset:{(j%4)*1024}")
        e(f"buffer_load_dwordx2 {vr(VR+2*j,2)}, {va}, s[{R_B}:{R_B+3}], 0 offen offset:{(j%4)*1024}")
    e(f"s_lshl_b32 s{S_TMP2}, s{S_TK}, 2\ns_add_u32 s{S_TMP2}, s{S_TMP2}, s{S_W}")
    e(f"s_lshl_b32 s{S_XG}, s{S_TMP2}, 12\ns_mul_i32 s{S_XL}, s{S_W}, {HPS}\ns_add_u32 s{S_XL}, s{S_XL}, {C_HP}")
    e(f"s_add_u32 s{R_O}, s{S_SSMK}, s{S_XG}\ns_addc_u32 s{R_O+1}, s{S_SSMK+1}, 0\ns_mov_b32 s{R_O+2}, 4096\ns_mov_b32 s{R_O+3}, 0x20000")
    HR = 140
    for i in range(5):
        e(f"v_add_u32 v22, {i*1024 - 64}, v{V_L16}\nv_add_u32 v23, {i*1024 - 48}, v{V_L16}")
        e(f"buffer_load_dwordx4 {vr(HR+6*i,4)}, v22, s[{R_O}:{R_O+3}], 0 offen\nbuffer_load_dwordx2 {vr(HR+6*i+4,2)}, v23, s[{R_O}:{R_O+3}], 0 offen")
    e(f"s_lshl_b32 s{S_TMP}, s{S_TK}, 5\ns_load_dwordx8 s[92:99], s[{S_SH}:{S_SH+1}], s{S_TMP}")
    e(f"s_lshl_b32 s{S_TMP}, s{S_TMP2}, 1\ns_and_b32 s{S_TMP}, s{S_TMP}, -4\ns_load_dword s{S_CNT}, s[{S_SSMD}:{S_SSMD+1}], s{S_TMP}")
    e(f"v_mov_b64 v[24:25], 0\nv_mov_b64 v[26:27], 0")
    e(f"s_mul_i32 s{S_I}, s{S_W}, {URS}\nv_add_u32 v20, s{S_I}, v{V_L16}")
    for i in range(2): e(f"ds_write_b128 v20, v[24:27] offset:{5120 + i*1024}")
    e(f"s_mov_b32 exec_hi, 0\nds_write_b128 v20, v[24:27] offset:{5120 + 2048}\ns_mov_b64 exec, -1")
    e("v_lshlrev_b32 v20, 3, v16\nv_sub_u32 v20, 2040, v20\nv_lshrrev_b32 v21, 5, v20\nv_and_b32 v20, 31, v20")
    e("v_mul_u32_u24 v21, 80, v21\nv_lshl_add_u32 v20, v20, 1, v21")
    e("s_waitcnt vmcnt(10) lgkmcnt(0)")
    if cfg.get("cvstamp"): WST(e)
    e("v_cmp_eq_u32 vcc, 0, v16\ns_nop 1")
    for r in range(6): e(f"v_cndmask_b32 v{KR+r}, v{KR+r}, v24, vcc")
    for ch in range(4):
        for j in range(4):
            src = 92 + ch * 2 + j // 2
            e(f"s_lshl_b32 s{70+j}, s{src}, 16" if j % 2 == 0 else f"s_and_b32 s{70+j}, s{src}, 0xffff0000")
        KF = 120
        for j in range(11):
            r = KR + 2 * j + ch // 2
            e(f"v_lshlrev_b32 v{KF+j}, 16, v{r}" if ch % 2 == 0 else f"v_and_b32 v{KF+j}, 0xffff0000, v{r}")
        for pr in range(4):
            a, b, t1, t2, d = P, P + 1, P + 2, P + 3, P + 4
            r0 = 2 * pr
            e(f"v_mul_f32 v{a}, s73, v{KF+r0}\nv_mul_f32 v{b}, s73, v{KF+r0+1}")
            rb_pair(e, d, a, b)
            for j in (2, 1, 0):
                e(f"v_mul_f32 v{t1}, s{70+j}, v{KF+r0+3-j}\nv_mul_f32 v{t2}, s{70+j}, v{KF+r0+1+3-j}")
                rb_pair(e, d, t1, t2)
                e(f"v_add_f32 v{a}, v{a}, v{t1}\nv_add_f32 v{b}, v{b}, v{t2}")
                rb_pair(e, d, a, b)
            for q, rr in ((t1, r0), (t2, r0 + 1)):
                r = VR + 2 * rr + ch // 2
                e(f"v_lshlrev_b32 v{q}, 16, v{r}" if ch % 2 == 0 else f"v_and_b32 v{q}, 0xffff0000, v{r}")
            e(f"v_mul_f32 v{a}, v{a}, v{t1}\nv_mul_f32 v{b}, v{b}, v{t2}")
            e(f"v_cvt_pk_bf16_f32 v{U+3-pr}, v{b}, v{a}")
        e(f"ds_write_b128 v20, {vr(U,4)} offset:{ch*URS}\ns_nop 1")
    if cfg.get("cvstamp"): WST(e)
    e(f"s_waitcnt vmcnt(0)\nv_add_u32 v22, s{S_XL}, v{V_L16}")
    for i in range(5):
        x = HR + 6 * i
        if i == 4: e("s_mov_b64 exec, 15")
        for k in range(4): e(f"v_alignbyte_b32 v{P+k}, v{x+k+1}, v{x+k}, 2")
        for k in range(4): e(f"v_alignbyte_b32 v{P+4+k}, v{x+k+2}, v{x+k+1}, 2")
        for k in range(4): e(f"v_mov_b32 v{P+8+k}, v{x+k+1}")
        e(f"ds_write_b128 v22, {vr(x,4)} offset:{i*1024}\nds_write_b128 v22, {vr(P,4)} offset:{i*1024 + HPC}")
        e(f"ds_write_b128 v22, {vr(P+8,4)} offset:{i*1024 + 2*HPC}\nds_write_b128 v22, {vr(P+4,4)} offset:{i*1024 + 3*HPC}\ns_waitcnt lgkmcnt(0)")
    e("s_mov_b64 exec, -1\ns_barrier")
    if cfg.get("cvstamp"): WST(e)
    e(f"v_and_b32 v16, 31, v0\nv_lshrrev_b32 v17, 5, v0")
    e(f"v_lshl_add_u32 v18, v17, 3, v16\nv_add_u32 v18, 1, v18\nv_and_b32 v19, 3, v18\nv_and_b32 v18, -4, v18\nv_mul_u32_u24 v19, {HPC}, v19")
    e(f"v_lshl_add_u32 v18, v18, 1, v19\nv_add_u32 v18, s{S_XL}, v18")
    e(f"v_sub_u32 v19, 63, v16\nv_mul_u32_u24 v19, 80, v19\nv_lshl_add_u32 v19, v17, 4, v19\nv_add_u32 v19, s{S_I}, v19")
    e("v_subrev_u32 v21, 2560, v19")
    AC0, AC1, FR, NB = 32, 48, 64, 3
    seq = {}
    def rd(sg):
        b = FR + 16 * (sg % NB); bo = (sg // 2) * 80 + (sg % 2) * 32
        e(f"ds_read_b64 {vr(b,2)}, v18 offset:{sg*32}\nds_read_b64 {vr(b+2,2)}, v18 offset:{sg*32+8}")
        e(f"ds_read_b128 {vr(b+4,4)}, v19 offset:{bo}")
        e(f"ds_read_b128 {vr(b+8,4)}, v21 offset:{bo}")
        seq[sg] = e(f"ds_read_b64 {vr(b+12,2)}, v18 offset:{sg*32+2048}\nds_read_b64 {vr(b+14,2)}, v18 offset:{sg*32+2056}")
    def mm(d, a, b, first): return f"v_mfma_f32_32x32x16_bf16 {vr(d,16)}, {vr(a,4)}, {vr(b,4)}, {'0' if first else vr(d,16)}"
    rd(0); rd(1)
    for sg in range(64):
        b = FR + 16 * (sg % NB)
        e.waitlg(seq[sg])
        e(mm(AC0, b, b + 4, sg == 0))
        if sg + 2 < 64: rd(sg + 2)
        e(mm(AC1, b, b + 8, sg == 0))
        e(mm(AC1, b + 12, b + 4, False))
    if cfg.get("cvstamp"): WST(e)
    e(f"s_bitcmp1_b32 s{S_TMP2}, 0\ns_cbranch_scc1 CV_D1\ns_lshl_b32 s{S_CNT}, s{S_CNT}, 16")
    e.label("CV_D1")
    e(f"s_and_b32 s{S_CNT}, s{S_CNT}, 0xffff0000")
    e(f"v_lshlrev_b32 v22, 5, v17\nv_sub_u32 v22, v19, v22\nv_lshl_add_u32 v22, v17, 3, v22")
    e(f"v_lshlrev_b32 v23, 6, v16\nv_lshl_add_u32 v23, v17, 3, v23")
    e(f"s_lshl_b32 s{S_XG}, s{S_TMP2}, 12\ns_add_u32 s{S_XG}, s{S_XG}, {WS_Y2}")
    e("v_subrev_u32 v24, 2560, v22")
    for tl in range(2):
        for q in range(4):
            e(f"ds_read_b64 {vr(FR + 8*tl + 2*q, 2)}, {'v22' if tl == 0 else 'v24'} offset:{56 - 16*q}")
    e("s_waitcnt lgkmcnt(0)\ns_nop 7")
    for tl in range(2):
        for q in range(4):
            y = (AC0 if tl == 0 else AC1) + 4 * q; u = FR + 8 * tl + 2 * q; t = 96
            e(f"v_and_b32 v{t}, 0xffff0000, v{u+1}\nv_lshlrev_b32 v{t+1}, 16, v{u+1}\nv_and_b32 v{t+2}, 0xffff0000, v{u}\nv_lshlrev_b32 v{t+3}, 16, v{u}")
            for i in range(4): e(f"v_mul_f32 v{t+i}, s{S_CNT}, v{t+i}")
            rb_pair(e, t + 4, t, t + 1); rb_pair(e, t + 4, t + 2, t + 3)
            rb_pair(e, t + 4, y, y + 1); rb_pair(e, t + 4, y + 2, y + 3)
            for i in range(4): e(f"v_add_f32 v{y+i}, v{y+i}, v{t+i}")
            e(f"v_cvt_pk_bf16_f32 v{y}, v{y}, v{y+1}\nv_cvt_pk_bf16_f32 v{y+1}, v{y+2}, v{y+3}")
            e(f"buffer_store_dwordx2 {vr(y,2)}, v23, {WS}, s{S_XG} offen offset:{tl*2048 + q*16} sc1")
    if cfg.get("cvstamp"): e("s_nop 0"); WST(e)
    e("s_waitcnt vmcnt(0)\ns_barrier")
    wait_init(e, "w", 24)
    e(f"s_lshl_b32 s{S_TK}, s{S_TK}, 2\ns_add_u32 s{S_TK}, s{S_TK}, {FL_CONV}")
    flag_store(e, S_TK, 1)
    e.label("CV_END")

def phaseB(e, cfg):
    e("; ---- phase B")
    srd(e, R_A, S_WQ, 0x400000); srd(e, R_B, S_WO, 0x400000)
    wload_addr(e)
    e(f"s_mov_b32 s{S_SEG}, s{S_G}\ns_lshl_b32 s{S_XG}, s{S_SEG}, 15\ns_lshl_b32 s{S_XL}, s{S_W}, 13")
    e(f"v_mov_b32 v{V_XRD}, v{V_L16}")
    for g in x_dma(e):
        for s in g: e(s)
    load_blocks(e, wmat_blocks(R_A, 0) + wo_blocks(R_B, 128), cfg.get('wdb', 4))
    srd(e, R_O, S_OUT, 0x200000); srd(e, R_A, S_GATE, 1024)
    GW = 16
    e(f"buffer_load_dwordx4 {vr(GW,4)}, v{V_L16}, s[{R_A}:{R_A+3}], 0 offen")
    e(f"s_and_b32 s62, s{S_W}, 1\ns_lshr_b32 s63, s{S_W}, 1")
    e(f"v_lshlrev_b32 v8, 2, v{V_G}\nv_sub_u32 v8, v{V_C}, v8\ns_lshl_b32 s{S_TMP}, s62, 4\nv_add_u32 v8, s{S_TMP}, v8\nv_subrev_u32 v9, 16, v8")
    e(f"v_lshrrev_b32 v25, 2, v{V_C}\nv_lshl_add_u32 v25, v{V_G}, 2, v25\nv_and_b32 v24, 1, v0\nv_lshlrev_b32 v24, 3, v24\nv_lshl_add_u32 v10, v25, 4, v24\nv_add_u32 v10, {W_KMU}, v10")
    e(f"s_lshl_b32 s{S_TMP}, s{S_W}, 9\ns_add_u32 s{S_TMP}, s{S_TMP}, {W_KMU}\nv_lshlrev_b32 v22, 4, v{V_C}\nv_lshl_add_u32 v22, v{V_G}, 2, v22\nv_add_u32 v22, s{S_TMP}, v22")
    e(f"s_lshl_b32 s{S_TMP}, s{S_W}, 9\nv_lshl_add_u32 v23, v0, 3, s{S_TMP}")
    e(f"v_and_b32 v24, 1, v{V_G}\nv_lshl_add_u32 v11, v24, 5, v{V_C}\nv_lshlrev_b32 v11, 3, v11\ns_lshl_b32 s{S_TMP}, s63, 10\ns_add_u32 s{S_TMP}, s{S_TMP}, 2048\nv_add_u32 v11, s{S_TMP}, v11")
    e(f"v_lshrrev_b32 v24, 2, v0\nv_and_b32 v25, 3, v0\nv_lshlrev_b32 v12, 10, v24\nv_lshl_add_u32 v12, v25, 8, v12")
    e(f"s_lshr_b32 s{S_TMP}, s{S_H}, 4\ns_lshl_b32 s{S_TMP}, s{S_TMP}, 14\ns_and_b32 s{S_TMP2}, s{S_H}, 15\ns_lshl_b32 s{S_TMP2}, s{S_TMP2}, 4\ns_add_u32 s{S_TMP}, s{S_TMP}, s{S_TMP2}\nv_add_u32 v12, s{S_TMP}, v12")
    e(f"s_lshl_b32 s{S_TMP}, s{S_W}, 3\nv_lshrrev_b32 v24, 3, v0\nv_add_u32 v24, s{S_TMP}, v24\nv_and_b32 v25, 7, v0")
    e(f"v_lshrrev_b32 v26, 4, v24\nv_and_b32 v27, 15, v24\nv_lshlrev_b32 v13, 10, v26\nv_lshl_add_u32 v13, v27, 4, v13")
    e(f"v_lshrrev_b32 v26, 1, v25\nv_lshl_add_u32 v13, v26, 8, v13\nv_and_b32 v26, 1, v25\nv_lshl_add_u32 v13, v26, 3, v13\nv_add_u32 v13, {W_RED}, v13")
    e(f"s_lshl_b32 s{S_TMP}, s{S_H}, 16\nv_lshlrev_b32 v14, 13, v25\nv_lshl_add_u32 v14, v24, 1, v14\nv_add_u32 v14, s{S_TMP}, v14")
    e(f"s_lshl_b32 s{S_TMP}, s{S_H}, 5\nv_lshlrev_b32 v15, 10, v24\nv_lshl_add_u32 v15, v25, 2, v15\nv_add_u32 v15, s{S_TMP}, v15")
    e(f"v_and_b32 v20, 31, v0\nv_lshlrev_b32 v20, 7, v20\nv_lshlrev_b32 v21, 2, v24")
    e(f"s_lshl_b32 s{S_CF}, s{S_H}, 7\ns_add_u32 s{S_CF}, s{S_CF}, {FL_CFLAG}\ns_mov_b32 s{S_SC}, 0x3e0293ee")
    e(f"v_lshlrev_b32 v24, 2, v0\ns_mov_b32 s{S_OFF}, {FL_CONV}\ns_mov_b32 s{S_OFF2}, {FL_CONV+256}\ns_lshl_b32 s{S_CNT}, s{S_H}, 8")
    e(f"v_mov_b32 v26, 0\nv_mov_b32 v31, 0\ns_mov_b32 s{S_CHN}, 0")
    e(f"s_mov_b32 s{S_PREV}, -1")
    KF, VF, XF, ACC, QF, KM, VM, SS_, PB, OA, TT = 32, 64, 80, 112, 232, 144, 248, 216, 180, 188, 224
    KR_, F1, F2, F3, W_RDY = 28, 25, 30, 31, 0x15000
    X0, X1, M, MX = SS_, SS_ + 4, 168, 27
    RB, NRF, FA = 80, 32, 208
    S_RT, S_LM_, S_SH_, S_SEL_ = 64, 94, 96, 97
    def final(half=False, pre=False):
        cd = e.newlabel("CVD")
        e(f"s_cmp_eq_u32 s{S_CHN}, 1\ns_cbranch_scc1 {cd}\ns_mov_b32 s{S_CHN}, 1\ns_mov_b32 s{S_OFF}, {FL_CONV}\ns_mov_b32 s{S_OFF2}, {FL_CONV+256}")
        poll_all(e, "CVW", 24, f"s{S_OFF}", 1, TT + 2, 32, False)
        poll_all(e, "CVW", 24, f"s{S_OFF2}", 1, TT + 2, 32, True)
        e.label(cd)
        e(f"s_lshl_b32 s{S_TMP}, s{S_PREV}, 6\ns_add_u32 s{S_TMP}, s{S_TMP}, {WS_Y2}\ns_add_u32 s{S_I}, s{S_TMP}, 4096")
        e(f"buffer_load_ushort v{TT+4}, v14, {WS}, s{S_TMP} offen sc1\nbuffer_load_ushort v{TT+5}, v14, {WS}, s{S_I} offen sc1")
        e(f"s_lshl_b32 s{S_CNT}, s{S_PREV}, 15\nbuffer_load_dword v{TT+6}, v15, s[{R_X}:{R_X+3}], s{S_CNT} offen")
        e(f"s_lshl_b32 s{S_OFF2}, s{S_PREV}, 12\ns_add_u32 s{S_OFF2}, s{S_OFF2}, {FL_O2}")
        od = half and cfg.get("odp")
        if od:
            S_FB = 98
            e(f"s_sub_u32 s{S_FB}, s{S_PREV}, 47\ns_lshl_b32 s{S_FB}, s{S_FB}, 18\ns_lshl_b32 s{S_TMP}, s{S_W}, 16\ns_add_u32 s{S_FB}, s{S_FB}, s{S_TMP}")
            e(f"s_lshl_b32 s{S_TMP}, s{S_RT}, 12\ns_add_u32 s{S_FB}, s{S_FB}, s{S_TMP}\ns_add_u32 s{S_FB}, s{S_FB}, {WS_O}\ns_add_u32 s{S_OFF}, s{S_FB}, {7 * 8192}")
            e(f"s_lshl_b32 s{S_OFF2}, s{S_PREV}, 7\ns_add_u32 s{S_OFF2}, s{S_OFF2}, {WS_G}")
            e.label("OD_0")
            e(f"buffer_load_dword v{RB}, v{V_L16}, {WS}, s{S_OFF} offen offset:3072 sc1\nbuffer_load_dword v{TT+7}, v21, {WS}, s{S_OFF2} offen sc1")
            e(f"s_add_u32 s{S_SPIN}, s{S_SPIN}, 1\ns_waitcnt vmcnt(0)\nv_max_u32 v{RB}, v{RB}, v{TT+7}\nv_cmp_eq_u32 vcc, -1, v{RB}\ns_cbranch_vccz OD_1")
            e(f"s_sleep {cfg.get('osleep', 2)}\ns_cmp_lt_u32 s{S_SPIN}, {SPIN_MAX}\ns_cbranch_scc1 OD_0")
            e.label("OD_1")
            def ldh(hh):
                e(f"s_add_u32 s{S_OFF}, s{S_FB}, {hh * 8192}")
                for js in range(4): e(f"buffer_load_dwordx4 {vr(RB + 16 * hh + 4 * js, 4)}, v{V_L16}, {WS}, s{S_OFF} offen offset:{js * 1024} sc1")
            for hh in range(8): ldh(hh)
            ool = []
            for hh in range(8):
                r = RB + 16 * hh
                e(f"s_waitcnt vmcnt({4 * (7 - hh)})")
                e.label(f"OD_C{hh}")
                e(f"v_max3_u32 v{TT}, v{r}, v{r+1}, v{r+2}")
                for k in range(3, 15, 2): e(f"v_max3_u32 v{TT}, v{TT}, v{r+k}, v{r+k+1}")
                e(f"v_max_u32 v{TT}, v{TT}, v{r+15}\nv_cmp_eq_u32 vcc, -1, v{TT}\ns_cbranch_vccnz OD_R{hh}")
                e.label(f"OD_K{hh}")
                for js in range(4): e(mfd(FA, 128 + (hh * 4 + js) * 4, r + 4 * js, "0" if hh + js == 0 else FA, "a", "v"))
            e("s_branch OD_E")
            for hh in range(8):
                e.label(f"OD_R{hh}")
                e(f"s_add_u32 s{S_SPIN}, s{S_SPIN}, 1\ns_cmp_gt_u32 s{S_SPIN}, {SPIN_MAX}\ns_cbranch_scc1 OD_K{hh}")
                ldh(hh)
                e(f"s_waitcnt vmcnt(0)\ns_branch OD_C{hh}")
            e.label("OD_E")
        if not od:
            WST(e)
            poll_all(e, "OW", 20, f"s{S_OFF2}", 1, F1, cfg.get("osleep", 4), True, pre)
            WST(e)
            e(f"s_lshl_b32 s{S_TMP}, s{S_PREV}, 7\ns_add_u32 s{S_TMP}, s{S_TMP}, {WS_G}\nbuffer_load_dword v{TT+7}, v21, {WS}, s{S_TMP} offen sc1")
        if not od:
            e(f"s_mul_i32 s{S_OFF}, s{S_PREV}, 37\ns_lshr_b32 s{S_OFF}, s{S_OFF}, 9\ns_mul_i32 s{S_OFF}, s{S_OFF}, 14\ns_sub_u32 s{S_OFF}, s{S_PREV}, s{S_OFF}\ns_lshl_b32 s{S_OFF}, s{S_OFF}, 18\ns_lshl_b32 s{S_TMP}, s{S_W}, 16\ns_add_u32 s{S_OFF}, s{S_OFF}, s{S_TMP}\ns_add_u32 s{S_OFF}, s{S_OFF}, {WS_O}")
            NL = 32 if half else 64
            NR = NRF if half else cfg.get('nr', 32)
            if half: e(f"s_lshl_b32 s{S_TMP}, s{S_RT}, 12\ns_add_u32 s{S_OFF}, s{S_OFF}, s{S_TMP}")
            def ld(n):
                if n % 4 == 0 and n > 0: e(f"s_add_u32 s{S_OFF}, s{S_OFF}, {8192 if half else 4096}")
                e(f"buffer_load_dwordx4 {vr(RB + 4 * (n % NR), 4)}, v{V_L16}, {WS}, s{S_OFF} offen offset:{(n % 4) * 1024} sc1")
            if half: e(f"s_mov_b64 exec, s[{S_LM_}:{S_LM_+1}]")
            for n in range(NR): ld(n)
            if half: e("s_mov_b64 exec, -1")
            for n in range(NL):
                hh, rt, js = (n // 4, 0, n % 4) if half else (n // 8, (n // 4) % 2, n % 4)
                e(f"s_waitcnt vmcnt({min(NL - 1 - n, NR - 1)})")
                a = FA + 4 * rt
                e(mfd(a, 128 + (hh * 4 + js) * 4, RB + 4 * (n % NR), "0" if n == 4 * rt else a, "a", "v"))
                if n + NR < NL: ld(n + NR)
        e(f"s_lshl_b32 s{S_TMP}, s{S_W}, 11\ns_add_u32 s{S_TMP}, s{S_TMP}, {W_RED}")
        if half: e(f"s_lshl_b32 s{S_I}, s{S_RT}, 10\ns_add_u32 s{S_TMP}, s{S_TMP}, s{S_I}")
        e(f"v_add_u32 v{V_T}, s{S_TMP}, v{V_L16}\ns_nop 5")
        e(f"ds_write_b128 v{V_T}, {vr(FA,4)}")
        if not half: e(f"ds_write_b128 v{V_T}, {vr(FA+4,4)} offset:1024")
        e("s_waitcnt lgkmcnt(0)\ns_barrier")
        B0 = RB
        for w in range(4): e(f"ds_read_b64 {vr(B0+2*w,2)}, v13 offset:{w*2048}")
        y0, y1, q, g = TT + 4, TT + 5, TT + 6, TT + 7
        e(f"v_lshlrev_b32 v{y0}, 16, v{y0}\nv_lshlrev_b32 v{y1}, 16, v{y1}\nv_lshlrev_b32 v{B0+8}, 16, v{q}\nv_and_b32 v{B0+9}, 0xffff0000, v{q}")
        e(f"v_mul_f32 v{y0}, v{y0}, v{B0+8}\nv_mul_f32 v{y1}, v{y1}, v{B0+9}")
        rb_pair(e, B0 + 10, y0, y1)
        e(f"v_mul_f32 v{y0}, v{y0}, v{g}\nv_mul_f32 v{y1}, v{y1}, v{g}")
        rb_pair(e, B0 + 10, y0, y1)
        e(f"v_sub_f32 v{g}, 1.0, v{g}\nv_cvt_pk_bf16_f32 v{g}, v{g}, v{g}\nv_lshlrev_b32 v{g}, 16, v{g}\ns_waitcnt lgkmcnt(0)")
        e(f"v_add_f32 v{B0}, v{B0}, v{B0+2}\nv_add_f32 v{B0+1}, v{B0+1}, v{B0+3}\nv_add_f32 v{B0+4}, v{B0+4}, v{B0+6}\nv_add_f32 v{B0+5}, v{B0+5}, v{B0+7}")
        e(f"v_add_f32 v{B0}, v{B0}, v{B0+4}\nv_add_f32 v{B0+1}, v{B0+1}, v{B0+5}")
        rb_pair(e, B0 + 10, B0, B0 + 1)
        e(f"v_mul_f32 v{B0}, v{B0}, v{g}\nv_mul_f32 v{B0+1}, v{B0+1}, v{g}")
        rb_pair(e, B0 + 10, B0, B0 + 1)
        e(f"v_add_f32 v{B0}, v{B0}, v{y0}\nv_add_f32 v{B0+1}, v{B0+1}, v{y1}\nv_cvt_pk_bf16_f32 v{B0}, v{B0}, v{B0+1}")
        if half: e(f"s_lshr_b32 s{S_TMP}, s{S_W}, s{S_SH_}\ns_cmp_eq_u32 s{S_TMP}, s{S_SEL_}\ns_cselect_b64 exec, -1, 0")
        e(f"buffer_store_dword v{B0}, v15, s[{R_O}:{R_O+3}], s{S_CNT} offen {cfg.get('outst', '')}")
        if half: e("s_mov_b64 exec, -1")
    e.label("PB_LOOP")
    e(f"s_lshl_b32 s{S_CNT}, s{S_H}, 6\ns_add_u32 s{S_CNT}, s{S_CNT}, s{S_SEG}\ns_lshl_b32 s{S_CNT}, s{S_CNT}, 2")
    poll_all(e, "KVW", 26, f"s{S_CNT}", 1, F3, 16, False, True)
    e("s_waitcnt vmcnt(0)\ns_barrier")
    WST(e)
    e(f"s_add_u32 s{S_CNT}, s{S_CNT}, 28\ns_sub_u32 exec_lo, 0, s{S_W0M}\ns_mov_b32 exec_hi, exec_lo")
    e(f"buffer_load_dword v{F2}, off, {WS}, s{S_CF} sc1\nbuffer_load_dword v{F3}, off, {WS}, s{S_CNT} sc1\ns_mov_b64 exec, -1")
    e(f"s_lshl_b32 s{S_OFF}, s{S_SEG}, 19\ns_lshl_b32 s{S_TMP}, s{S_H}, 14\ns_add_u32 s{S_OFF}, s{S_OFF}, s{S_TMP}\ns_add_u32 s{S_OFF}, s{S_OFF}, {WS_KV}")
    e(f"s_add_u32 s{S_OFF2}, s{S_OFF}, 4096\ns_lshl_b32 s{S_TMP}, s63, 12\ns_add_u32 s{S_CNT}, s{S_OFF}, s{S_TMP}\ns_add_u32 s{S_CNT}, s{S_CNT}, 8192")
    lds_ = []
    for js in range(4):
        lds_.append(f"buffer_load_dwordx4 {vr(KF+4*js,4)}, v{V_L16}, {WS}, s{S_OFF} offen offset:{js*1024} sc1")
        lds_.append(f"buffer_load_dwordx4 {vr(KF+16+4*js,4)}, v{V_L16}, {WS}, s{S_OFF2} offen offset:{js*1024} sc1")
        lds_.append(f"buffer_load_dwordx4 {vr(VF+4*js,4)}, v{V_L16}, {WS}, s{S_CNT} offen offset:{js*1024} sc1")
    seq = {}
    def rd(n):
        s, rt = n // 2, n % 2
        seq[n] = e(f"ds_read_b128 {vr(XF + 4 * (n % 8), 4)}, v{V_XRD} offset:{(rt * 16 + s) * 1024}")
    sg = e(f"ds_read_b128 {vr(TT,4)}, v12")
    for n in range(6): rd(n)
    for n in range(32):
        s, rt = n // 2, n % 2
        e.waitlg(seq[n])
        x = XF + 4 * (n % 8)
        for t in range(2):
            a = ACC + 4 * (t * 2 + rt)
            e(mfd(a, (t * 16 + s) * 4, x, "0" if s == 0 else a, "a", "v"))
            if t == 0 and n + 6 < 32: rd(n + 6)
        if n % 2 == 1 and n // 2 < 12: e(lds_[n // 2])
        if n == 31:
            e(f"s_lshl_b32 s{S_TMP}, s{S_PREV}, 12\ns_add_u32 s{S_TMP}, s{S_TMP}, {FL_O2}\ns_sub_u32 exec_lo, 0, s{S_W0M}\ns_mov_b32 exec_hi, exec_lo")
            e(f"buffer_load_dword v{F1}, v20, {WS}, s{S_TMP} offen sc1\ns_mov_b64 exec, -1")
    for i in range(4):
        e(f"v_lshlrev_b32 v{TT+4}, 16, v{TT+i}\nv_and_b32 v{TT+5}, 0xffff0000, v{TT+i}\nv_lshlrev_b32 v{TT+6}, 16, v{GW+i}\nv_and_b32 v{TT+7}, 0xffff0000, v{GW+i}")
        e(f"v_mul_f32 v{TT+4}, v{TT+4}, v{TT+6}\nv_mul_f32 v{TT+5}, v{TT+5}, v{TT+7}")
        rb_pair(e, TT + 6, TT + 4, TT + 5)
        e(f"v_add_f32 v{TT+i}, v{TT+4}, v{TT+5}")
    e(f"v_add_f32 v{TT}, v{TT}, v{TT+1}\nv_add_f32 v{TT+2}, v{TT+2}, v{TT+3}\nv_add_f32 v{TT}, v{TT}, v{TT+2}")
    for rt in range(2):
        o = QF + 4 * rt
        for t in range(2):
            a = ACC + 4 * (t * 2 + rt)
            e(f"v_cvt_pk_bf16_f32 v{o+2*t}, v{a}, v{a+1}\nv_cvt_pk_bf16_f32 v{o+2*t+1}, v{a+2}, v{a+3}")
    e(f"s_lshl_b32 s{S_TMP}, s{S_W}, 10\ns_add_u32 s{S_TMP}, s{S_TMP}, {W_QX}\nv_add_u32 v{V_T}, s{S_TMP}, v{V_L16}")
    e(f"ds_write_b128 v{V_T}, {vr(QF,4)}\nds_write_b128 v{V_T}, {vr(QF+4,4)} offset:4096")
    for ror in (1, 2, 4, 8):
        e(f"s_nop 1\nv_add_f32_dpp v{TT}, v{TT}, v{TT} row_ror:{ror} row_mask:0xf bank_mask:0xf")
    for op in ("v_permlane16_swap_b32", "v_permlane32_swap_b32"):
        e(f"v_mov_b32 v{TT+1}, v{TT}\ns_nop 1\n{op} v{TT}, v{TT+1}\nv_add_f32 v{TT}, v{TT}, v{TT+1}")
    e(f"v_cvt_pk_bf16_f32 v{TT}, v{TT}, v{TT}\nv_lshlrev_b32 v{TT}, 16, v{TT}\nv_mul_f32 v{TT}, 0xbfb8aa3b, v{TT}\nv_exp_f32 v{TT}, v{TT}\ns_nop 0")
    e(f"v_add_f32 v{TT}, 1.0, v{TT}\nv_rcp_f32 v{TT}, v{TT}\ns_nop 0\nv_cvt_pk_bf16_f32 v{TT}, v{TT}, v{TT}\nv_lshlrev_b32 v{TT}, 16, v{TT}")
    e(f"s_lshl_b32 s{S_TMP}, s{S_SEG}, 5\ns_add_u32 s{S_TMP}, s{S_TMP}, s{S_H}\ns_lshl_b32 s{S_TMP}, s{S_TMP}, 2\ns_add_u32 s{S_TMP}, s{S_TMP}, {WS_G}")
    e(f"v_mov_b32 v{V_T2}, 0\ns_mov_b64 exec, s[{S_W0M}:{S_W0M+1}]\nbuffer_store_dword v{TT}, v{V_T2}, {WS}, s{S_TMP} offen sc1\ns_mov_b64 exec, -1")
    if cfg.get("wtouch"):
        e(f"s_add_u32 s{S_TMP}, s{S_OFF}, {7 << 19}\ns_lshl_b32 s{S_TMP2}, s{S_SEG}, 17\ns_add_u32 s{S_TMP2}, s{S_TMP2}, {WS_KVM + (7 << 17)}\ns_mov_b64 exec, s[{S_W0M}:{S_W0M+1}]")
        e(f"buffer_load_dword v252, off, {WS}, s{S_TMP} sc1\nbuffer_load_dword v253, off, {WS}, s{S_TMP2} sc1\ns_mov_b64 exec, -1")
    e(f"s_waitcnt vmcnt(14)\nv_mov_b32 v{V_T}, {W_RDY}\ns_mov_b64 exec, s[{S_W0M}:{S_W0M+1}]\nds_write_b32 v{V_T}, v{F2}\ns_mov_b64 exec, -1")
    e(f"s_waitcnt lgkmcnt(0)\ns_barrier\nds_read_b32 v{F2}, v{V_T}")
    e(f"s_add_u32 s{S_XG}, s{S_XG}, {7 << 15}\ns_xor_b32 s{S_XL}, s{S_XL}, 0x8000")
    e(f"s_lshl_b32 s{S_TMP}, s62, 12\ns_add_u32 s{S_TMP}, s{S_TMP}, {W_QX}\nv_add_u32 v{V_T}, s{S_TMP}, v{V_L16}")
    for js in range(4): e(f"ds_read_b128 {vr(QF+4*js,4)}, v{V_T} offset:{js*1024}")
    e(f"v_xor_b32 v{V_XRD}, 0x8000, v{V_XRD}\nv_xor_b32 v12, 0x8000, v12")
    e(f"s_waitcnt vmcnt({3 if cfg.get('wtouch') else 1}) lgkmcnt(0)")
    for js in range(4):
        c = lambda r: "0" if js == 0 else r
        e(mfd(X0, KF + 4 * js, QF + 4 * js, c(X0))); e(mfd(X1, KF + 16 + 4 * js, QF + 4 * js, c(X1)))
    for g in x_dma(e):
        for s in g: e(s)
    e(f"v_mov_b32 v{TT}, 0xf149f2ca")
    for kt in range(2):
        for i in range(4):
            e(f"v_cmp_le_i32 vcc, {i}, v{8+kt}\ns_nop 1\nv_cndmask_b32 v{SS_+4*kt+i}, v{TT}, v{SS_+4*kt+i}, vcc")
    e(f"v_max3_f32 v{MX}, v{X0}, v{X0+1}, v{X0+2}\nv_max3_f32 v{TT}, v{X1}, v{X1+1}, v{X1+2}\nv_max3_f32 v{MX}, v{MX}, v{X0+3}, v{X1+3}\nv_max_f32 v{MX}, v{MX}, v{TT}")
    S_KO = 92
    e(f"s_lshl_b32 s{S_KO}, s{S_SEG}, 17\ns_lshl_b32 s{S_TMP}, s{S_H}, 12\ns_add_u32 s{S_KO}, s{S_KO}, s{S_TMP}\ns_add_u32 s{S_KO}, s{S_KO}, {WS_KVM}")
    def kvm_ld():
        e(f"buffer_load_dwordx2 {vr(KR_,2)}, v23, {WS}, s{S_KO} offen sc1")
        for i in range(2):
            for b in range(2): e(f"buffer_load_dwordx2 {vr(VM+4*i+2*b,2)}, v11, {WS}, s{S_KO} offen offset:{i*512 + b*128} sc1")
    e(f"v_readfirstlane_b32 s{S_KO+1}, v{F2}\ns_cmp_gt_u32 s{S_KO+1}, s{S_SEG}\ns_cbranch_scc0 PB_NOEARLY")
    kvm_ld()
    e.label("PB_NOEARLY")
    e(f"s_cmp_eq_u32 s{S_PREV}, -1\ns_cbranch_scc0 PB_PREV\ns_waitcnt vmcnt(0)\ns_branch PB_NOPREV")
    e.label("PB_PREV")
    final(False, True)
    e.label("PB_NOPREV")
    e(f"s_mul_i32 s{S_OFF}, s{S_SEG}, 37\ns_lshr_b32 s{S_OFF}, s{S_OFF}, 9\ns_mul_i32 s{S_OFF}, s{S_OFF}, 14\ns_sub_u32 s{S_OFF}, s{S_SEG}, s{S_OFF}" + (f"\ns_sub_u32 s{S_TMP}, s{S_SEG}, 47\ns_cmp_ge_u32 s{S_SEG}, 61\ns_cselect_b32 s{S_OFF}, s{S_TMP}, s{S_OFF}" if cfg.get("odp") else "") + f"\ns_lshl_b32 s{S_OFF}, s{S_OFF}, 18\ns_lshl_b32 s{S_TMP}, s{S_H}, 13\ns_add_u32 s{S_OFF}, s{S_OFF}, s{S_TMP}")
    WST(e)
    e(f"s_cmp_gt_u32 s{S_KO+1}, s{S_SEG}\ns_cbranch_scc1 PB_HAVE")
    e(f"s_cmp_ge_u32 s{S_SEG}, {DP_SEG}\ns_cbranch_scc1 PB_DL")
    e(f"v_mov_b32 v{TT+1}, s{S_CF}\ns_add_u32 s{S_I}, s{S_SEG}, 1")
    poll_all(e, "CHW", TT + 1, "0", f"s{S_I}", TT + 2, cfg.get("csleep", 4))
    kvm_ld()
    e("s_waitcnt vmcnt(0)\ns_branch PB_HAVE")
    e.label("PB_DL")
    kvm_ld()
    e(f"s_add_u32 s{S_SPIN}, s{S_SPIN}, 1\ns_waitcnt vmcnt(0)")
    e(f"v_max3_u32 v{TT}, v{KR_}, v{KR_+1}, v{VM}")
    for i in range(1, 8, 2): e(f"v_max3_u32 v{TT}, v{TT}, v{VM+i}, v{VM+min(i+1,7)}")
    e(f"v_cmp_eq_u32 vcc, -1, v{TT}\ns_cbranch_vccz PB_HAVE\ns_sleep {cfg.get('dsleep', 6)}\ns_cmp_lt_u32 s{S_SPIN}, {SPIN_MAX}\ns_cbranch_scc1 PB_DL")
    e.label("PB_HAVE")
    WST(e)
    e(f"ds_write2_b32 v22, v{KR_}, v{KR_+1} offset0:0 offset1:64")
    for i in range(2): e(f"v_swap_b32 v{VM+4*i+1}, v{VM+4*i+2}")
    e(f"v_mov_b32 v{TT}, 0xf149f2ca\ns_waitcnt lgkmcnt(0)\ns_barrier")
    for js in range(4):
        for t in range(2): e(f"ds_read_b64_tr_b16 {vr(KM+4*js+2*t,2)}, v10 offset:{js*512 + t*256}")
    for js in range(4):
        e(f"s_waitcnt lgkmcnt({6-2*js})")
        e(mfd(M, KM + 4 * js, QF + 4 * js, "0" if js == 0 else M))
    e(f"s_add_u32 s{S_OFF}, s{S_OFF}, {WS_O}\ns_lshl_b32 s{S_TMP}, s62, 12\ns_add_u32 s{S_OFF}, s{S_OFF}, s{S_TMP}\ns_lshl_b32 s{S_TMP}, s63, 11\ns_add_u32 s{S_OFF}, s{S_OFF}, s{S_TMP}")
    e(f"s_lshl_b32 s{S_OFF2}, s{S_SEG}, 12\ns_add_u32 s{S_OFF2}, s{S_OFF2}, {FL_O2}\ns_lshl_b32 s{S_TMP}, s{S_H}, 7\ns_add_u32 s{S_CNT}, s{S_OFF2}, s{S_TMP}")
    e("s_mov_b32 exec_lo, 0")
    for i in range(4): e(f"v_mov_b32 v{M+i}, v{TT}")
    e("s_mov_b32 exec_lo, -1")
    mx, t2 = MX, TT + 2
    e(f"v_max3_f32 v{mx}, v{mx}, v{M}, v{M+1}\nv_max3_f32 v{mx}, v{mx}, v{M+2}, v{M+3}")
    for op in ("v_permlane16_swap_b32", "v_permlane32_swap_b32"):
        e(f"v_mov_b32 v{t2}, v{mx}\ns_nop 1\n{op} v{mx}, v{t2}\nv_max_f32 v{mx}, v{mx}, v{t2}")
    e(f"v_mul_f32 v{mx}, s{S_SC}, v{mx}")
    EE = [SS_ + i for i in range(8)] + [M + i for i in range(4)]
    for x in EE: e(f"v_fma_f32 v{x}, v{x}, s{S_SC}, -v{mx}")
    for x in EE: e(f"v_exp_f32 v{x}, v{x}")
    e(f"s_nop 0\nv_add_f32 v{mx}, v{EE[0]}, v{EE[1]}")
    for x in EE[2:]: e(f"v_add_f32 v{mx}, v{mx}, v{x}")
    for op in ("v_permlane16_swap_b32", "v_permlane32_swap_b32"):
        e(f"v_mov_b32 v{t2}, v{mx}\ns_nop 1\n{op} v{mx}, v{t2}\nv_add_f32 v{mx}, v{mx}, v{t2}")
    e(f"v_rcp_f32 v{mx}, v{mx}\ns_nop 0")
    for x in EE: e(f"v_mul_f32 v{x}, v{x}, v{mx}")
    for i in range(4): e(f"v_cvt_pk_bf16_f32 v{PB+i}, v{SS_+2*i}, v{SS_+2*i+1}")
    e(f"v_cvt_pk_bf16_f32 v{PB+4}, v{M}, v{M+1}\nv_cvt_pk_bf16_f32 v{PB+5}, v{M+2}, v{M+3}\ns_nop 0")
    for T in range(4): e(mfd(OA + 4 * T, VF + 4 * T, PB, "0"))
    for T in range(4):
        e(f"v_mfma_f32_16x16x16_bf16 {vr(OA+4*T,4)}, {vr(VM+2*T,2)}, {vr(PB+4,2)}, {vr(OA+4*T,4)}")
    e("s_nop 4")
    for j in range(2):
        for t in range(2):
            a = OA + 4 * (2 * j + t)
            e(f"v_cvt_pk_bf16_f32 v{QF+4*j+2*t}, v{a}, v{a+1}\nv_cvt_pk_bf16_f32 v{QF+4*j+2*t+1}, v{a+2}, v{a+3}")
    def ostore(bits):
        for j in range(2): e(f"buffer_store_dwordx4 {vr(QF+4*j,4)}, v{V_L16}, {WS}, s{S_OFF} offen offset:{j*1024}{bits}")
        if cfg.get("odp"): e(f"s_cmp_ge_u32 s{S_SEG}, 61\ns_cbranch_scc1 PB_ODONE")
        e("s_waitcnt vmcnt(0)\ns_barrier")
        e(f"v_mov_b32 v{V_T}, 1\ns_mov_b64 exec, s[{S_W0M}:{S_W0M+1}]\nbuffer_store_dword v{V_T}, off, {WS}, s{S_CNT}{bits}\ns_mov_b64 exec, -1")
    if cfg.get("ofast"):
        e(f"s_cmp_ge_u32 s{S_MODE}, 32\ns_cbranch_scc0 PB_OSLOW")
        ostore("")
        e("s_branch PB_ODONE")
        e.label("PB_OSLOW")
    ostore(" sc1")
    e.label("PB_ODONE")
    e(f"s_mov_b32 s{S_PREV}, s{S_SEG}\ns_add_u32 s{S_SEG}, s{S_SEG}, 7\ns_cmp_lt_u32 s{S_SEG}, 64\ns_cbranch_scc1 PB_LOOP")
    if cfg.get("split"):
        if cfg["split"] == 2:
            e(f"s_cmp_ge_u32 s{S_PREV}, 62\ns_cbranch_scc1 PB_PART")
            final()
            e(f"s_cmp_eq_u32 s{S_PREV}, 61\ns_cbranch_scc1 PB_END\ns_barrier")
            e.label("PB_PART")
            e(f"s_sub_u32 s{S_SEL_}, s{S_PREV}, 56\ns_cmp_ge_u32 s{S_PREV}, 62\ns_cselect_b32 s{S_SEL_}, 0, s{S_SEL_}\ns_cmp_eq_u32 s{S_PREV}, 60\ns_cselect_b32 s{S_SEL_}, 1, s{S_SEL_}")
            e(f"s_and_b32 s{S_TMP}, s{S_PREV}, 61\ns_cmp_eq_u32 s{S_TMP}, 60\ns_cselect_b32 s{S_PREV}, 62, 63\ns_cselect_b32 s{S_SH_}, 1, 0")
            e(f"s_xor_b32 s{S_TMP}, s{S_SH_}, 1\ns_lshr_b32 s{S_RT}, s{S_SEL_}, s{S_TMP}")
            e(f"s_and_b32 s{S_TMP}, s{S_SEL_}, 1\ns_lshl_b32 s{S_TMP}, s{S_TMP}, 3\ns_lshl_b32 s{S_LM_}, 0x00ff00ff, s{S_TMP}\ns_cmp_eq_u32 s{S_SH_}, 1\ns_cselect_b32 s{S_LM_}, -1, s{S_LM_}\ns_mov_b32 s{S_LM_+1}, s{S_LM_}")
        else:
            e(f"s_mov_b64 s[{S_LM_}:{S_LM_+1}], -1\ns_mov_b32 s{S_SH_}, 1\ns_mov_b32 s{S_SEL_}, 0")
            e(f"s_mov_b32 s{S_RT}, 0\ns_cmp_ge_u32 s{S_PREV}, 61\ns_cbranch_scc1 PB_HALF")
            final()
            e(f"s_cmp_eq_u32 s{S_PREV}, 60\ns_cbranch_scc1 PB_END\ns_sub_u32 s{S_PREV}, 120, s{S_PREV}\ns_mov_b32 s{S_RT}, 1\ns_mov_b32 s{S_SEL_}, 1\ns_barrier")
        e.label("PB_HALF")
        final(True)
        e.label("PB_END")
    else:
        final()

def worker(e, cfg):
    e(f"s_sub_u32 s{S_G}, s{S_GRP}, 1\ns_mov_b32 s{S_CNT}, 0")
    e("v_mov_b32 v15, v2")
    lane_consts(e, f"v{V_C}", f"v{V_G}")
    e(f"v_lshlrev_b32 v{V_L16}, 4, v0\nv_mov_b32 v{V_XRD}, v{V_L16}")
    e(f"s_lshr_b32 s{S_TMP}, s{S_W}, 1\ns_lshl_b32 s{S_TMP}, s{S_TMP}, 14\ns_and_b32 s{S_TMP2}, s{S_W}, 1\ns_lshl_b32 s{S_TMP2}, s{S_TMP2}, 9\ns_add_u32 s{S_TMP}, s{S_TMP}, s{S_TMP2}")
    e(f"v_lshlrev_b32 v{V_XSRC}, 10, v{V_C}\nv_lshl_add_u32 v{V_XSRC}, v{V_G}, 4, v{V_XSRC}\nv_add_u32 v{V_XSRC}, s{S_TMP}, v{V_XSRC}")
    srd(e, R_X, S_Q, 0x200000)
    _cfg.update(cfg)
    if cfg.get("pref") in (2, 4) and not cfg.get("estart"):
        pc = cfg.get("prefc")
        if pc: e(f"s_cmp_lt_u32 s{S_G}, 3\ns_cbranch_scc1 PF_E")
        e(f"s_lshl_b32 s{S_TMP2}, s{S_G}, 5\ns_add_u32 s{S_TMP2}, s{S_TMP2}, s{S_H}\nv_lshlrev_b32 v16, 6, v15")
        if pc: e(f"s_sub_u32 s{S_TMP2}, s{S_TMP2}, 96")
        if cfg.get("pford"):
            e(f"s_lshl_b32 s{S_TMP}, s{S_TMP2}, 14\nv_add_u32 v17, s{S_TMP}, v16\nv_add_u32 v18, 0x200000, v17")
            seqs = {1: [(S_WQ, 18), (S_WQ, 17), (S_WK, 17), (S_WK, 18), (S_WV, 17), (S_WV, 18), (S_WO, 17), (S_WO, 18)],
                    2: [(S_WK, 17), (S_WK, 18), (S_WV, 17), (S_WV, 18), (S_WO, 17), (S_WO, 18), (S_WQ, 17)],
                    3: [(S_WV, 17), (S_WV, 18), (S_WO, 17), (S_WO, 18), (S_WQ, 17)]}[cfg["pford"]]
            for i, (p, v) in enumerate(seqs): e(f"global_load_dword v{248 + i % 4}, v{v}, s[{p}:{p+1}]")
        else:
            e.label("PF_L")
            e(f"s_lshl_b32 s{S_TMP}, s{S_TMP2}, 14\nv_add_u32 v17, s{S_TMP}, v16")
            for i, p in enumerate([S_WQ, S_WK, S_WV, S_WO][:cfg["pref"]] if cfg["pref"] == 4 else [S_WQ, S_WO]):
                e(f"global_load_dword v{248+i}, v17, s[{p}:{p+1}]")
            e(f"s_add_u32 s{S_TMP2}, s{S_TMP2}, {128 if pc else 224}\ns_cmp_lt_u32 s{S_TMP2}, 256\ns_cbranch_scc1 PF_L")
        e.label("PF_E")
    if cfg.get("wstamp"): e("s_mov_b32 s101, 0")
    WST(e)
    if cfg.get("hold") is not None:
        e(f"s_cmp_lt_u32 s{S_G}, {cfg['hold']}\ns_cbranch_scc{0 if cfg.get('holdinv') else 1} HOLD_END")
        e.label("HOLD")
        e(f"s_sleep 32\ns_memrealtime s[70:71]\ns_waitcnt lgkmcnt(0)\ns_sub_u32 s70, s70, s3\ns_cmp_lt_u32 s70, {cfg['holdus']*100}\ns_cbranch_scc1 HOLD")
        e.label("HOLD_END")
    if not cfg.get("noconv"): conv(e, cfg)
    WST(e)
    if cfg.get("holda"):
        e(f"s_cmp_lt_u32 s{S_G}, 3\ns_cbranch_scc1 HOLDA_END")
        e.label("HOLDA")
        e(f"s_sleep 32\ns_memrealtime s[70:71]\ns_waitcnt lgkmcnt(0)\ns_sub_u32 s70, s70, s3\ns_cmp_lt_u32 s70, {cfg['holda']*100}\ns_cbranch_scc1 HOLDA")
        e.label("HOLDA_END")
    wload_addr(e)
    phaseA(e, cfg)
    WST(e)
    if not cfg.get("nob"): phaseB(e, cfg)
    WST(e)
    if cfg.get("dbgt"):
        e(f"s_memrealtime s[70:71]\ns_waitcnt lgkmcnt(0)\ns_sub_u32 s70, s70, s3\nv_mov_b32 v20, s70\nv_mov_b32 v21, 20\ns_mov_b64 exec, s[{S_W0M}:{S_W0M+1}]\nglobal_atomic_umax v21, v20, s[{S_DBG}:{S_DBG+1}]")
```

```python
import sys, json
from asmlib import Em, vr, check_hazards
from layout import *
import chain as C
from chain import *

KNAME = "gated_mix__ssm_conv_h3__memory_aug_recurrent_mem_tr__prompt_kernel"

def common_prologue(e, cfg):
    e("s_cmp_ge_u32 s2, 256\ns_cbranch_scc1 KEND")
    e("s_load_dwordx8 s[4:11], s[0:1], 0\ns_load_dwordx4 s[12:15], s[0:1], 32\ns_load_dwordx2 s[16:17], s[0:1], 56")
    e("s_load_dwordx8 s[20:27], s[0:1], 64\ns_load_dwordx4 s[28:31], s[0:1], 104\ns_load_dwordx4 s[32:35], s[0:1], 120")
    e(f"s_getreg_b32 s{S_XCC}, hwreg(HW_REG_XCC_ID)\ns_and_b32 s{S_XCC}, s{S_XCC}, 7")
    if cfg.get("fakexcc") == 1: e(f"s_lshr_b32 s{S_XCC}, s2, 6")
    if cfg.get("fakexcc") == 2: e(f"s_lshr_b32 s{S_XCC}, s2, 5\ns_max_u32 s{S_XCC}, s{S_XCC}, 1")
    e(f"v_lshrrev_b32 v1, 6, v0\nv_mov_b32 v2, v0\nv_and_b32 v0, 63, v0\nv_readfirstlane_b32 s{S_W}, v1")
    e("s_waitcnt lgkmcnt(0)")
    srd(e, R_WS, S_WS, WS_SIZE)
    WS = f"s[{R_WS}:{R_WS+3}]"
    DBG = f"s[{S_DBG}:{S_DBG+1}]"
    e(f"s_cmp_eq_u32 s{S_W}, 0\ns_cbranch_scc0 PRO_NORANK")
    e(f"s_and_b32 s{S_TMP}, s{S_XCC}, 3\ns_lshl_b32 s{S_TMP}, s{S_TMP}, 6\ns_lshr_b32 s{S_TMP2}, s{S_XCC}, 2\ns_lshl_b32 s{S_TMP2}, s{S_TMP2}, 2\ns_add_u32 s{S_TMP}, s{S_TMP}, s{S_TMP2}")
    e(f"v_mov_b32 v3, s{S_TMP}\nv_mov_b32 v4, 1\ns_mov_b64 exec, 1")
    e(f"global_atomic_add v5, v3, v4, {DBG} sc0\ns_mov_b64 exec, -1")
    e.label("PRO_NORANK")
    if cfg.get("estart"):
        ne = cfg["estart"]
        e(f"s_barrier\ns_lshr_b32 s{S_TMP2}, s2, 3\ns_cmp_ge_u32 s{S_XCC}, 4\ns_cbranch_scc1 ES_W")
        e(f"s_lshl_b32 s{S_TMP}, s{S_TMP2}, 8\ns_lshl_b32 s{S_TMP2}, s{S_W}, 6\ns_add_u32 s{S_TMP}, s{S_TMP}, s{S_TMP2}")
        e(f"v_lshrrev_b32 v18, 2, v0\nv_and_b32 v19, 3, v0\nv_lshlrev_b32 v18, 13, v18\nv_lshl_add_u32 v18, v19, 4, v18\nv_add_u32 v18, s{S_TMP}, v18")
        e(f"s_cmp_eq_u32 s{S_XCC}, 0\ns_cselect_b32 s{R_T}, s{S_WQ}, s{S_WK}\ns_cselect_b32 s{R_T+1}, s{S_WQ+1}, s{S_WK+1}\ns_cselect_b32 s{S_TMP}, {192*8192}, 0\ns_mov_b32 s{R_T+2}, 0x400000\ns_mov_b32 s{R_T+3}, 0x20000")
        for i in range(8):
            if i < ne: e(f"buffer_load_dwordx4 v[{208+4*i}:{211+4*i}], v18, s[{R_T}:{R_T+3}], s{S_TMP} offen\ns_add_u32 s{S_TMP}, s{S_TMP}, 0x20000")
            else: e(f"s_mov_b64 exec, 0\nbuffer_load_dword v208, v18, s[{R_T}:{R_T+3}], s{S_TMP} offen\ns_mov_b64 exec, -1")
        e("s_branch ES_E")
        e.label("ES_W")
        e(f"s_sub_u32 s{S_TMP}, s{S_XCC}, 4\ns_lshl_b32 s{S_TMP}, s{S_TMP}, 5\ns_add_u32 s{S_TMP}, s{S_TMP}, s{S_TMP2}\ns_lshl_b32 s{S_TMP}, s{S_TMP}, 14")
        e(f"v_lshl_add_u32 v17, v2, 6, s{S_TMP}\nv_add_u32 v18, 0x200000, v17")
        Q0, Q1, K0, K1, V0, V1, O0, O1 = (S_WQ, 17), (S_WQ, 18), (S_WK, 17), (S_WK, 18), (S_WV, 17), (S_WV, 18), (S_WO, 17), (S_WO, 18)
        od = {0: [Q1, Q0, K0, K1, V0, V1, O0, O1], 1: [K0, K1, V0, V1, O0, O1, Q0, None], 2: [K1, V0, V1, O0, O1, Q0, None, None],
              3: [K0, Q1, K1, V0, V1, O0, O1, Q0], 4: [K0, K1, Q1, V0, V1, O0, O1, Q0]}[cfg.get("eord", 0)]
        for i, x in enumerate(od):
            if x: e(f"global_load_dword v{248 + i % 4}, v{x[1]}, s[{x[0]}:{x[0]+1}]")
            else: e(f"s_mov_b64 exec, 0\nglobal_load_dword v248, v17, s[{S_WQ}:{S_WQ+1}]\ns_mov_b64 exec, -1")
        e.label("ES_E")
        e("s_waitcnt vmcnt(8)")
    if cfg.get("pref") == 1:
        e(f"s_barrier\ns_lshl_b32 s{S_TMP}, s2, 14\nv_lshl_add_u32 v17, v2, 6, s{S_TMP}")
        for i, p in enumerate([S_WQ, S_WK, S_WV, S_WO]): e(f"global_load_dword v{248+i}, v17, s[{p}:{p+1}]")
        e("s_waitcnt vmcnt(4)")
    if cfg.get("cpf"):
        e(f"s_getpc_b64 s[{S_TMP+3}:{S_TMP+4}]")
        e.label("CPF_BASE")
        e(f"v_lshlrev_b32 v3, 6, v2\ns_cmp_eq_u32 s{S_W}, 0\ns_cbranch_scc1 CPF_END\nv_subrev_u32 v3, 4096, v3")
        for i in range(cfg["cpf"]):
            e(f"v_cmp_gt_u32 vcc, KEND-CPF_BASE, v3\ns_and_saveexec_b64 s[{S_TMP+5}:{S_TMP+6}], vcc\ns_cbranch_execz CPF_R")
            e(f"global_load_dword v{240+i}, v3, s[{S_TMP+3}:{S_TMP+4}]\nv_add_u32 v3, 12288, v3")
        e.label("CPF_R")
        e("s_mov_b64 exec, -1\ns_branch PRO_W")
        e.label("CPF_END")
    if cfg.get("pref") != 1 and not cfg.get("estart"): e("s_waitcnt vmcnt(0)")
    e(f"s_cmp_eq_u32 s{S_W}, 0\ns_cbranch_scc0 PRO_W")
    e(f"v_readfirstlane_b32 s{S_H}, v5\ns_mov_b32 s{S_GRP}, s{S_XCC}")
    e(f"s_cmp_lt_u32 s{S_H}, 32\ns_cbranch_scc1 PRO_HAVE")
    e(f"v_mov_b32 v3, {DBG_OVF}\ns_mov_b64 exec, 1\nglobal_atomic_add v5, v3, v4, {DBG} sc0\ns_mov_b64 exec, -1")
    e(f"v_lshlrev_b32 v9, 2, v0\ns_mov_b32 s{S_SPIN}, 0")
    e.label("PRO_OV")
    e(f"global_load_dword v10, v9, {DBG} sc1\ns_add_u32 s{S_SPIN}, s{S_SPIN}, 1\ns_waitcnt vmcnt(0)\ns_mov_b32 s{S_TMP2}, 0")
    for x in range(8):
        e(f"v_readlane_b32 s{S_TMP}, v10, {DBG_XCC(x)//4}\ns_add_u32 s{S_TMP2}, s{S_TMP2}, s{S_TMP}")
    e(f"s_cmp_ge_u32 s{S_TMP2}, 256\ns_cbranch_scc1 PRO_OV2\ns_sleep 8\ns_cmp_lt_u32 s{S_SPIN}, {SPIN_MAX}\ns_cbranch_scc1 PRO_OV")
    e.label("PRO_OV2")
    e(f"v_readfirstlane_b32 s{S_TMP2}, v5\ns_mov_b32 s{S_GRP}, 7\ns_mov_b32 s{S_H}, 31")
    for x in range(8):
        nl = f"PRO_OVN{x}"
        e(f"v_readlane_b32 s{S_TMP}, v10, {DBG_XCC(x)//4}\ns_min_u32 s{S_TMP}, s{S_TMP}, 32\ns_add_u32 s{S_SPIN}, s{S_TMP}, s{S_TMP2}")
        e(f"s_cmp_lt_u32 s{S_SPIN}, 32\ns_cbranch_scc0 {nl}\ns_mov_b32 s{S_GRP}, {x}\ns_mov_b32 s{S_H}, s{S_SPIN}\ns_branch PRO_HAVE")
        e.label(nl)
        e(f"s_sub_u32 s{S_TMP2}, s{S_SPIN}, 32")
    e.label("PRO_HAVE")
    e(f"v_mov_b32 v10, s{S_GRP}\nv_mov_b32 v11, s{S_H}\nv_mov_b32 v9, 0\nds_write_b64 v9, v[10:11]\ns_waitcnt lgkmcnt(0)")
    e.label("PRO_W")
    e("s_barrier\nv_mov_b32 v9, 0\nds_read_b64 v[10:11], v9")
    e(f"s_waitcnt lgkmcnt(0)\nv_readfirstlane_b32 s{S_GRP}, v10\nv_readfirstlane_b32 s{S_H}, v11")
    e(f"s_and_b32 s{S_GRP}, s{S_GRP}, 7\ns_and_b32 s{S_H}, s{S_H}, 31")
    e(f"s_cmp_eq_u32 s{S_W}, 0\ns_cselect_b32 s{S_W0M}, 1, 0\ns_mov_b32 s{S_W0M+1}, 0")
    e(f"s_cmp_eq_u32 s{S_GRP}, 0\ns_cbranch_scc1 PRO_NOINIT\ns_cmp_lt_u32 s{S_H}, 4\ns_cbranch_scc0 PRO_NOINIT")
    e(f"s_sub_u32 s{S_TMP2}, s{S_GRP}, 1\ns_lshl_b32 s{S_TMP2}, s{S_TMP2}, 2\ns_add_u32 s{S_TMP2}, s{S_TMP2}, s{S_H}")
    e("v_mov_b64 v[12:13], -1\nv_mov_b64 v[14:15], -1\nv_mov_b32 v8, 0\nv_lshlrev_b32 v9, 4, v2\nv_lshlrev_b32 v3, 2, v2")
    e.label("PRO_INIT")
    e(f"s_lshl_b32 s{S_TMP}, s{S_TMP2}, 10\nbuffer_store_dword v8, v3, {WS}, s{S_TMP} offen sc1")
    e(f"s_lshl_b32 s{S_TMP}, s{S_TMP2}, 13\ns_add_u32 s{S_TMP}, s{S_TMP}, {FL_O2}\nv_lshlrev_b32 v16, 5, v2")
    e(f"buffer_store_dword v8, v16, {WS}, s{S_TMP} offen sc1")
    if cfg.get("dpoll") and not cfg.get("nofl"):
        e(f"s_lshl_b32 s{S_TMP}, s{S_TMP2}, 12\ns_add_u32 s{S_TMP}, s{S_TMP}, {WS_KVM + DP_SEG * 0x20000}")
        for sg in range(DP_SEG, 64):
            e(f"buffer_store_dwordx4 v[12:15], v9, {WS}, s{S_TMP} offen sc1\ns_add_u32 s{S_TMP}, s{S_TMP}, 0x20000")
    if cfg.get("odp"):
        e(f"s_lshl_b32 s{S_TMP}, s{S_TMP2}, 13\ns_add_u32 s{S_TMP}, s{S_TMP}, {WS_O + (14 << 18)}")
        for sg in range(3):
            e(f"buffer_store_dwordx4 v[12:15], v9, {WS}, s{S_TMP} offen sc1\ns_add_u32 s{S_TMP}, s{S_TMP}, 4096")
            e(f"buffer_store_dwordx4 v[12:15], v9, {WS}, s{S_TMP} offen sc1\ns_add_u32 s{S_TMP}, s{S_TMP}, {(1 << 18) - 4096}")
        e(f"s_lshl_b32 s{S_TMP}, s{S_TMP2}, 2\ns_add_u32 s{S_TMP}, s{S_TMP}, {WS_G + 61 * 128}\nv_lshlrev_b32 v16, 7, v2\ns_mul_i32 exec_lo, s{S_W0M}, 7\ns_mov_b32 exec_hi, 0")
        e(f"buffer_store_dword v12, v16, {WS}, s{S_TMP} offen sc1\ns_mov_b64 exec, -1")
    e(f"s_add_u32 s{S_TMP2}, s{S_TMP2}, 28\ns_cmp_lt_u32 s{S_TMP2}, 32\ns_cbranch_scc1 PRO_INIT")
    e(f"s_waitcnt vmcnt(0)\ns_barrier\nv_mov_b32 v3, {DBG_INIT}\nv_mov_b32 v4, 1\ns_mov_b64 exec, s[{S_W0M}:{S_W0M+1}]")
    e(f"global_atomic_add v3, v4, {DBG}\ns_mov_b64 exec, -1")
    e.label("PRO_NOINIT")
    e(f"s_mov_b32 s{S_SPIN}, 0")
    e("s_barrier")

DEFAULTS = {"agbar":1,"d1e":0,"d1":0,"d2":2,"d2e":2,"Ke":2,"KRe":1,"e1":2,"e2":2,"pref":4,"xv":3,"xo":1,"xz":1,"peek":1,"cpf":0,"wda":3,"wdb":2,"wdc":2,"prefc":1,"asplit":30,"dpoll":1,"split":1,"osleep":2,"dsleep":2,"pford":1,"mz":1,"wrm":1,"wl":1,"pre":1,"join":1,"c4":1,"wr":1}
def build(cfg):
    cfg = {**DEFAULTS, **cfg}
    C.DBGC = bool(cfg.get('dbgt'))
    e = Em()
    e.label(KNAME)
    if cfg.get("gstamp"): e("s_memrealtime s[18:19]\ns_waitcnt lgkmcnt(0)\ns_mov_b32 s3, s18")
    common_prologue(e, cfg)
    if cfg.get("endabs"):
        e(f"s_not_b32 s{S_TMP}, s3\nv_mov_b32 v1, 44\nv_mov_b32 v3, s{S_TMP}\ns_mov_b64 exec, s[{S_W0M}:{S_W0M+1}]\nglobal_atomic_umax v1, v3, s[{S_DBG}:{S_DBG+1}]")
        e(f"v_mov_b32 v1, 48\nv_mov_b32 v3, s3\nglobal_atomic_umax v1, v3, s[{S_DBG}:{S_DBG+1}]\ns_mov_b64 exec, -1")
    e(f"s_cmp_eq_u32 s{S_GRP}, 0\ns_cbranch_scc0 WORKER")
    chain_prologue(e, cfg)
    if cfg.get("prohold"):
        e.label("PH")
        e(f"s_sleep 2\ns_memrealtime s[70:71]\ns_waitcnt lgkmcnt(0)\ns_sub_u32 s70, s70, s3\ns_cmp_lt_u32 s70, {cfg['prohold']*100}\ns_cbranch_scc1 PH")
    if cfg.get("force_slow") or cfg.get("fakexcc") == 1: e(f"s_mov_b32 s{S_MODE}, 0")
    e(f"s_cmp_ge_u32 s{S_MODE}, 32\ns_cbranch_scc0 CHAIN_SLOW")
    chain_loop(e, True, cfg)
    e.label("CHAIN_SLOW")
    chain_loop(e, False, cfg)
    e.label("WORKER")
    if not cfg.get("chain_only"):
        import worker
        worker.worker(e, cfg)
    else:
        wait_init(e, "w", 32)
        e(f"s_lshl_b32 s{S_TMP}, s{S_H}, 8\nv_lshlrev_b32 v1, 2, v0\nv_mov_b32 v2, 1\nbuffer_store_dword v2, v1, s[{R_WS}:{R_WS+3}], s{S_TMP} offen sc1")
    if cfg.get("endabs"):
        e(f"v_mov_b32 v1, 44\nglobal_load_dword v2, v1, s[{S_DBG}:{S_DBG+1}] sc1\ns_waitcnt vmcnt(0)\nv_readfirstlane_b32 s3, v2\ns_not_b32 s3, s3")
    if cfg.get("endhold"):
        e.label("EH")
        e(f"s_sleep 4\ns_memrealtime s[70:71]\ns_waitcnt lgkmcnt(0)\ns_sub_u32 s70, s70, s3\ns_cmp_lt_u32 s70, {cfg['endhold']*100}\ns_cbranch_scc1 EH")
    e.label("KEND")
    e("s_waitcnt vmcnt(0)\ns_endpgm")
    probs = check_hazards(e.lines)
    for p in probs: print("HAZARD", p, file=sys.stderr)
    hdr = open('gated_mix__ssm_conv_h3__memory_aug_recurrent_mem_tr__prompt.s.ref').read().split("; Override launch")[0]
    s = hdr + f"; @launch grid=(256,1,1) block=(256,1,1) lds={LDS_SIZE}\n"
    s += """; One persistent launch, one workgroup per CU (512 registers x 4 waves, 160KB LDS). Roles are handed out at run time:
"""
    s += f'.amdgcn_target "amdgcn-amd-amdhsa--gfx950"\n.text\n.globl {KNAME}\n.p2align 8\n.type {KNAME},@function\n'
    s += e.text()
    s += f""".section .rodata,"a"
.p2align 6
.amdhsa_kernel {KNAME}
  .amdhsa_next_free_vgpr 512
  .amdhsa_next_free_sgpr 102
  .amdhsa_accum_offset 256
  .amdhsa_group_segment_fixed_size 0
  .amdhsa_kernarg_size 136
  .amdhsa_user_sgpr_count 2
  .amdhsa_user_sgpr_kernarg_segment_ptr 1
  .amdhsa_system_sgpr_workgroup_id_x 1
.end_amdhsa_kernel
"""
    return s

if __name__ == "__main__":
    out = sys.argv[1]
    cfg = json.loads(sys.argv[2]) if len(sys.argv) > 2 else {}
    open(out, "w").write(build(cfg))
    json.dump(cfg, open(out + ".json", "w"))
```

```python
from asmlib import Em, vr
from layout import *

S_Q, S_K, S_V, S_SH, S_SSMK, S_SSMD, S_MEM0 = 4, 6, 8, 10, 12, 14, 16
S_WQ, S_WK, S_WV, S_WO, S_GATE, S_OUT, S_DBG, S_WS = 20, 22, 24, 26, 28, 30, 32, 34
R_WS, R_T, R_T2 = 36, 40, 44
S_W, S_XCC, S_GRP, S_H = 48, 49, 50, 51
S_W0M = 76
NINIT = 28 + 32
SPIN_MAX = 1 << 18
DBGC = False

def srd(e, r, p, size):
    e(f"s_mov_b32 s{r}, s{p}\ns_mov_b32 s{r+1}, s{p+1}\ns_mov_b32 s{r+2}, {size}\ns_mov_b32 s{r+3}, 0x20000")

def lane_consts(e, c, g, lane="v0"):
    e(f"v_and_b32 {c}, 15, {lane}\nv_lshrrev_b32 {g}, 4, {lane}")

def emit_UB(e, dst, c, b, t):
    e(f"v_lshrrev_b32 {t}, 1, {b}")
    e(f"v_lshl_add_u32 {t}, {t}, 3, {c}")
    e(f"v_and_b32 {t}, 15, {t}")
    e(f"v_lshl_add_u32 {t}, {b}, 4, {t}")
    e(f"v_lshlrev_b32 {dst}, 3, {t}")

IDX, A_RSR, A_AGW, A_AGR, A_TR, A_TRK, A_UW, A_W, A_KX, A_VX, T0, A_RSW, SEL = 0, 1, 2, 3, 4, 5, 6, 7, 8, 9, 10, 11, 12
MEMA, QB, KXA, XT, ACA, ACB = 16, 48, 64, 88, 96, 104
WV0 = 112
S_STEP, S_RSW0, S_RSW1, S_RSR0, S_RSR1, S_AGW, S_AGRST, S_AGR0, S_AGR1 = 52, 53, 54, 55, 56, 57, 58, 59, 60
S_KVG, S_KVL, S_KVM, S_READY, S_SPIN, S_AGSLOT, S_TMP, S_TMP2 = 61, 62, 63, 64, 65, 66, 67, 68
S_M0, S_M1, S_M2 = 70, 72, 74
S_AGM = 72
S_ODD = 78
S_SC = 80
S_CF = 81
S_MODE = 82
S_TAG = 83
S_KVG2, S_FLV = 10, 11
S_XG0, S_XL0 = 96, 97
S_KFO = 58
S_JMP = 6
S_LATE = 7
S_RSR = [55, 56, 4, 5]
S_EM, S_LM, S_LB = 4, 6, 8
S_AGM2 = 74
S_ST = 84

import os
_o0 = [("o", (0, p)) for p in range(4)]; _o1 = [("o", (1, p)) for p in range(4)]
_q = [("q", J) for J in range(3, 8)]; _k = [("k", J) for J in range(8)]; _v = [("v", J) for J in range(8)]; _ql = [("q", 0), ("q", 1), ("q", 2)]
BLOCKS = {"0": _q + _k + _v + _o0 + _ql + _o1, "1": _o0 + _q + _k + _v + _ql + _o1, "2": _o0 + _q + _k + _v + _o1 + _ql,
          "3": _q + _o0 + _k + _v + _ql + _o1}[os.environ.get("BORD", "0")]
NREG = 25
def frag_reg(i):
    if i < 32: return ("a", 8 * i)
    return ("v", WV0 + 8 * (i - 32))
FRAG = {}
for n, (m, J) in enumerate(BLOCKS):
    for t in range(2):
        if n < NREG: FRAG[(m, J, t)] = frag_reg(2 * n + t)
        else: FRAG[(m, J, t)] = ("lds", (n - NREG) * 4096 + t * 2048)
def slot_addr(n):
    s = n % 10
    wl = {5: 0, 6: 1, 7: 2, 8: 3, 9: 4, 0: 5, 1: 6}
    return ("wl", wl[s]) if s in wl else ("ot", s - 2)

def wait_init(e, tag, vt):
    l = e.newlabel("WI"); d = e.newlabel("WID")
    e(f"v_mbcnt_lo_u32_b32 v{vt+1}, -1, 0\nv_mbcnt_hi_u32_b32 v{vt+1}, -1, v{vt+1}\nv_lshlrev_b32 v{vt+1}, 2, v{vt+1}")
    e.label(l)
    e(f"global_load_dword v{vt}, v{vt+1}, s[{S_DBG}:{S_DBG+1}] sc1")
    e(f"s_add_u32 s{S_SPIN}, s{S_SPIN}, 1")
    e("s_waitcnt vmcnt(0)")
    e(f"v_readlane_b32 s{S_TMP}, v{vt}, {DBG_INIT//4}")
    e(f"s_cmp_ge_u32 s{S_TMP}, {NINIT}\ns_cbranch_scc1 {d}")
    e("s_sleep 16")
    e(f"s_cmp_lt_u32 s{S_SPIN}, {SPIN_MAX}\ns_cbranch_scc1 {l}")
    e.label(d)

def kv_poll(e, va, vb, done):
    l = e.newlabel("KR")
    e("s_waitcnt vmcnt(0)")
    e(f"v_mbcnt_lo_u32_b32 v{vb}, -1, 0\nv_mbcnt_hi_u32_b32 v{vb}, -1, v{vb}\nv_lshlrev_b32 v{vb}, 2, v{vb}")
    e.label(l)
    if DBGC: e(f"s_lshl_b32 s{S_TMP}, 1, s{S_STEP}\ns_or_b32 s60, s60, s{S_TMP}\ns_add_u32 s57, s57, 0")
    e(f"s_lshl_b32 s{S_TMP}, s{S_H}, 8")
    e(f"buffer_load_dword v{va}, v{vb}, s[{R_WS}:{R_WS+3}], s{S_TMP} offen sc1")
    e(f"s_add_u32 s{S_SPIN}, s{S_SPIN}, 1")
    e("s_waitcnt vmcnt(0)")
    e(f"v_cmp_eq_u32 vcc, 0, v{va}\ns_ff1_i32_b64 s{S_READY}, vcc")
    e(f"s_cmp_gt_u32 s{S_READY}, s{S_TMP2}\ns_cbranch_scc1 {done}")
    e("s_sleep 16")
    e(f"s_cmp_lt_u32 s{S_SPIN}, {SPIN_MAX}\ns_cbranch_scc1 {l}")
    e(f"s_branch {done}")

def kv_ready(e, delta, va, vb):
    d = e.newlabel("KRD")
    e(f"s_add_u32 s{S_TMP2}, s{S_STEP}, {delta}\ns_cmp_gt_u32 s{S_READY}, s{S_TMP2}\ns_cbranch_scc1 {d}")
    kv_poll(e, va, vb, d)
    e.label(d)

def kv_dma(e, g=None, l=None):
    out = []
    for i in range(4):
        pre = [f"s_add_u32 m0, s{l or S_KVL}, {(i//2)*8192}", f"s_add_u32 s{S_TMP}, s{g or S_KVG}, {(i//2)*8192}"]
        out.append(pre + [f"buffer_load_dwordx4 v{A_AGR}, s[{R_WS}:{R_WS+3}], s{S_TMP} offen offset:{(i%2)*1024} sc1 lds"])
    return out

NPRE = 5
QL = [(0, 0), (0, 1), (2, 0), (2, 1), (1, 0), (1, 1)] if os.environ.get('V13') else [(0, 0), (0, 1), (1, 0), (1, 1), (2, 0), (2, 1)]
def rd_ql(e, n, r):
    off = FRAG[("q",) + QL[n]][1]
    e(f"ds_read_b128 {vr(r,4)}, v{A_W} offset:{off}")
    return e(f"ds_read_b128 {vr(r+4,4)}, v{A_W} offset:{off+1024}")
def preload_q(e):
    for n in range(NPRE): rd_ql(e, n, QB + 8 * n)

S_KF = 12
def kv_peek(e):
    e(f"s_min_u32 s{S_TMP}, s{S_STEP}, 59\ns_lshl_b32 s{S_TMP}, s{S_TMP}, 2\ns_add_u32 s{S_TMP}, s{S_TMP}, s{S_KFO}")
    e(f"s_load_dwordx4 s[{S_KF}:{S_KF+3}], s[{S_WS}:{S_WS+1}], s{S_TMP} glc")
def kv_fold(e):
    e(f"s_min_u32 s{S_TMP}, s{S_STEP}, 59\ns_add_u32 s{S_TMP}, s{S_TMP}, 1\ns_add_u32 s{S_TMP}, s{S_TMP}, s{S_KF}")
    for k in range(1, 4): e(f"s_and_b32 s{S_KF}, s{S_KF}, s{S_KF+k}\ns_add_u32 s{S_TMP}, s{S_TMP}, s{S_KF}")
    e(f"s_cmp_ge_u32 s{S_TMP}, 64\ns_cselect_b32 s{S_TMP}, -1, s{S_TMP}\ns_max_u32 s{S_READY}, s{S_READY}, s{S_TMP}")

def chain_prologue(e, cfg={}):
    e("; ---- chain prologue")
    if cfg.get("prost") == 2: e("s_memrealtime s[92:93]")
    lane_consts(e, "v16", "v17")
    e("v_and_b32 v18, 3, v0\nv_lshrrev_b32 v19, 2, v0")
    e(f"s_lshl_b32 s{S_TMP}, s{S_H}, 8\ns_lshl_b32 s{S_TMP2}, s{S_W}, 6\ns_add_u32 s{S_TMP}, s{S_TMP}, s{S_TMP2}")
    e(f"v_lshlrev_b32 v20, 13, v19\nv_lshl_add_u32 v20, v18, 4, v20\nv_add_u32 v20, s{S_TMP}, v20")
    e(f"s_lshl_b32 s{S_TMP}, s{S_H}, 17\ns_lshl_b32 s{S_TMP2}, s{S_W}, 8\ns_add_u32 s{S_TMP}, s{S_TMP}, s{S_TMP2}")
    e(f"v_lshlrev_b32 v21, 10, v19\nv_lshl_add_u32 v21, v18, 4, v21\nv_add_u32 v21, s{S_TMP}, v21")
    e("v_and_b32 v22, 1, v17\nv_lshlrev_b32 v22, 5, v22")
    e("v_lshrrev_b32 v23, 1, v17\nv_lshl_add_u32 v22, v23, 2, v22")
    e("v_lshrrev_b32 v23, 3, v16\nv_lshl_add_u32 v22, v23, 4, v22")
    e("v_bfe_u32 v23, v16, 2, 1\nv_add_u32 v22, v22, v23")
    e("v_lshlrev_b32 v22, 6, v22\nv_lshl_add_u32 v22, v18, 3, v22")
    e(f"s_mul_i32 s{S_KVL}, s{S_W}, 28672")
    e(f"s_mul_i32 s{S_KVG}, s{S_W}, 12288\ns_add_u32 s{S_KVG}, s{S_KVG}, {L_KVB}")
    e(f"v_add_u32 v24, s{S_KVL}, v22\nv_add_u32 v25, s{S_KVG}, v22")
    e(f"v_lshl_add_u32 v{A_W}, v0, 4, s{S_KVL}")
    RW = {"q": R_T, "k": R_T2, "v": 84, "o": 88}
    for m, p in (("q", S_WQ), ("k", S_WK), ("v", S_WV), ("o", S_WO)): srd(e, RW[m], p, 0x400000)
    def issue(n):
        m, J = BLOCKS[n]
        kind, k = slot_addr(n)
        base = S_KVL if kind == "wl" else S_KVG
        for i in range(4):
            e(f"s_add_u32 m0, s{base}, {k*4096 + i*1024}")
            if m == "o":
                so = (64 * J[0] + 16 * i) * 1024 + J[1] * 64
                e(f"s_mov_b32 s{S_TMP}, {so}")
                e(f"buffer_load_dwordx4 v21, s[{RW[m]}:{RW[m]+3}], s{S_TMP} offen lds")
            else:
                so = (64 * J + 16 * i) * 8192
                e(f"s_mov_b32 s{S_TMP}, {so}")
                e(f"buffer_load_dwordx4 v20, s[{RW[m]}:{RW[m]+3}], s{S_TMP} offen lds")
    def consume(n, outstanding):
        m, J = BLOCKS[n]
        kind, k = slot_addr(n)
        e(f"s_waitcnt vmcnt({outstanding})")
        av = "v24" if kind == "wl" else "v25"
        for t in range(2):
            f = FRAG[(m, J, t)]
            for mm in range(4):
                off = k * 4096 + (8 * (mm // 2) + 2 * (mm % 2)) * 64 + t * 32
                if f[0] == "lds": dst = vr(32 + 8 * t + 2 * mm, 2)
                else: dst = vr(f[1] + 2 * mm, 2, f[0])
                e(f"ds_read_b64_tr_b16 {dst}, {av} offset:{off}")
        e("s_waitcnt lgkmcnt(0)")
        if n >= NREG:
            for t in range(2):
                for hf in range(2):
                    e(f"ds_write_b128 v{A_W}, {vr(32+8*t+4*hf,4)} offset:{k*4096 + t*2048 + hf*1024}")
            e("s_waitcnt lgkmcnt(0)")
    N = len(BLOCKS)
    if cfg.get("tlbw"):
        e(f"v_lshlrev_b32 v26, 16, v0\ns_lshl_b32 s{S_TMP}, s{S_H}, 11\nv_add_u32 v26, s{S_TMP}, v26")
        for m in "qkvo": e(f"buffer_load_dword v27, v26, s[{RW[m]}:{RW[m]+3}], 0 offen")
        if cfg["tlbw"] == 2: e("s_waitcnt vmcnt(0)")
    DEP = cfg.get("dep", 4); LEAD = cfg.get("lead", 0)
    def touch(n):
        m, J = BLOCKS[n]
        so = (64 * J[0]) * 1024 + J[1] * 64 if m == "o" else 64 * J * 8192
        e(f"s_mov_b32 s{S_TMP}, {so}\nbuffer_load_dword v70, v{69 if m == 'o' else 68}, s[{RW[m]}:{RW[m]+3}], s{S_TMP} offen")
    if LEAD:
        e(f"s_and_b32 s{S_TMP}, s{S_H}, 3\ns_lshl_b32 s{S_TMP}, s{S_TMP}, 2\ns_add_u32 s{S_TMP}, s{S_TMP}, s{S_W}\ns_lshl_b32 s{S_TMP}, s{S_TMP}, 15")
        e(f"s_lshr_b32 s{S_TMP2}, s{S_H}, 2\ns_lshl_b32 s{S_TMP2}, s{S_TMP2}, 10\ns_add_u32 s{S_TMP}, s{S_TMP}, s{S_TMP2}")
        e(f"v_lshlrev_b32 v68, 13, v17\nv_lshl_add_u32 v68, v16, 6, v68\nv_add_u32 v68, s{S_TMP}, v68")
        e(f"s_lshl_b32 s{S_TMP}, s{S_H}, 17\ns_lshl_b32 s{S_TMP2}, s{S_W}, 14\ns_add_u32 s{S_TMP}, s{S_TMP}, s{S_TMP2}")
        e(f"v_lshlrev_b32 v69, 10, v19\nv_lshl_add_u32 v69, v18, 8, v69\nv_add_u32 v69, s{S_TMP}, v69")
    e(f"v_mov_b64 v[32:33], -1\nv_mov_b64 v[34:35], -1\ns_lshl_b32 s{S_TMP}, s{S_H}, 13\ns_lshl_b32 s{S_TMP2}, s{S_W}, 11\ns_add_u32 s{S_TMP}, s{S_TMP}, s{S_TMP2}\ns_add_u32 s{S_TMP}, s{S_TMP}, {WS_RS}")
    e(f"v_lshlrev_b32 v36, 4, v0\nbuffer_store_dwordx4 v[32:35], v36, s[{R_WS}:{R_WS+3}], s{S_TMP} offen sc1\nbuffer_store_dwordx4 v[32:35], v36, s[{R_WS}:{R_WS+3}], s{S_TMP} offen offset:1024 sc1")
    e(f"s_mul_i32 s{S_TMP}, s{S_H}, 768\ns_lshl_b32 s{S_TMP2}, s{S_W}, 8\ns_add_u32 s{S_TMP}, s{S_TMP}, s{S_TMP2}\ns_add_u32 s{S_TMP}, s{S_TMP}, {WS_AG}")
    e(f"s_cmp_lt_u32 s{S_W}, 3\ns_cselect_b32 exec_lo, 0xffff, 0\ns_mov_b32 exec_hi, 0\nbuffer_store_dwordx4 v[32:35], v36, s[{R_WS}:{R_WS+3}], s{S_TMP} offen sc1\ns_mov_b64 exec, -1")
    srd(e, 92, S_MEM0, 8192)
    e(f"s_lshl_b32 s{S_TMP}, s{S_W}, 8")
    e(f"v_lshlrev_b32 v26, 11, v17\nv_lshl_add_u32 v26, v16, 1, v26\nv_add_u32 v26, s{S_TMP}, v26")
    mem0_ld = []
    for u in range(4):
        mem0_ld += [f"buffer_load_ushort v{48+2*u}, v26, s[92:95], 0 offen offset:{u*64}", f"buffer_load_ushort v{49+2*u}, v26, s[92:95], 0 offen offset:{u*64+32}",
                    f"buffer_load_ushort v{56+2*u}, v26, s[92:95], 0 offen offset:{u*64+1024}", f"buffer_load_ushort v{57+2*u}, v26, s[92:95], 0 offen offset:{u*64+32+1024}"]
    for n in range(DEP):
        if cfg.get("prost") == 2 and n == 1: e("s_memrealtime s[94:95]")
        issue(n)
    if cfg.get("prost") == 2: e("s_memrealtime s[96:97]")
    for n in range(DEP, DEP + LEAD): touch(n)
    for x in mem0_ld: e(x)
    e(f"v_and_b32 v26, 2, v0\nv_cmp_eq_u32 vcc, 2, v26\nv_mov_b32 v27, 0x44444444\nv_mov_b32 v28, 0xeeeeeeee")
    e(f"s_mov_b64 s[{S_ODD}:{S_ODD+1}], vcc")
    e(f"v_cndmask_b32 v29, v27, v28, vcc")
    for r in range(4):
        e(f"v_mov_b32 v{SEL+r}, 0")
    e("v_mov_b32 v27, 0x3f80\nv_mov_b32 v28, 0x3f800000")
    for j in range(8):
        e(f"v_cmp_eq_u32 vcc, {j}, v16\ns_nop 1\nv_cndmask_b32 v{SEL+j//2}, v{SEL+j//2}, v{27+(j%2)}, vcc")
    e(f"s_and_b32 s{S_TMP}, s{S_W}, 2\ns_lshl_b32 s{S_TMP}, s{S_TMP}, 11\ns_lshl_b32 s{S_TMP2}, s{S_H}, 7\ns_add_u32 s{S_TMP}, s{S_TMP}, s{S_TMP2}")
    e(f"v_lshrrev_b32 v26, 3, v0\nv_and_b32 v27, 7, v0\nv_lshlrev_b32 v{A_RSR}, 13, v26\nv_lshl_add_u32 v{A_RSR}, v27, 4, v{A_RSR}\nv_add_u32 v{A_RSR}, s{S_TMP}, v{A_RSR}")
    e(f"s_lshl_b32 s{S_TMP2}, s{S_W}, 9\nv_lshl_add_u32 v{A_RSW}, v0, 3, s{S_TMP2}")
    e(f"v_and_b32 v26, 1, v17\nv_lshl_add_u32 v26, v27, 1, v26\ns_and_b32 s{S_TMP2}, s{S_H}, 3\nv_mov_b32 v27, s{S_TMP2}")
    emit_UB(e, f"v{A_AGW}", "v26", "v27", "v28")
    e(f"s_and_b32 s{S_TMP}, s{S_TMP}, 0xfffffe00\nv_add_u32 v{A_AGW}, s{S_TMP}, v{A_AGW}")
    e(f"s_mov_b32 s{S_AGM}, 0x00FF00FF\ns_mov_b32 s{S_AGM+1}, 0\ns_mov_b32 s{S_AGM2}, -1\ns_mov_b32 s{S_AGM2+1}, 0")
    e(f"v_bfe_u32 v26, v0, 3, 1\nv_lshl_add_u32 v{A_AGW}, v26, 14, v{A_AGW}")
    e(f"s_lshl_b32 s{S_TMP}, s{S_W}, 11\ns_add_u32 s{S_TMP}, s{S_TMP}, {L_MEM}")
    e(f"v_lshl_add_u32 v{A_AGR}, v0, 4, s{S_TMP}")
    e(f"s_lshl_b32 s{S_TMP}, s{S_W}, 10\ns_add_u32 s{S_TMP}, s{S_TMP}, {L_QU}")
    emit_UB(e, f"v{A_UW}", "v16", "v17", "v28")
    e(f"v_add_u32 v{A_UW}, s{S_TMP}, v{A_UW}")
    e("v_lshrrev_b32 v26, 2, v16\nv_lshl_add_u32 v26, v17, 2, v26")
    emit_UB(e, f"v{A_TR}", "v26", "v18", "v28")
    e(f"v_add_u32 v{A_TR}, {L_MEM}, v{A_TR}")
    e("v_and_b32 v27, 1, v18\nv_lshlrev_b32 v27, 1, v27\nv_lshrrev_b32 v28, 1, v18\nv_or_b32 v27, v27, v28")
    emit_UB(e, f"v{A_TRK}", "v26", "v27", "v28")
    e(f"v_add_u32 v{A_TRK}, {L_MEM}, v{A_TRK}")
    e(f"v_lshlrev_b32 v{A_KX}, 4, v0\nv_add_u32 v{A_KX}, {L_KVB}, v{A_KX}")
    e(f"v_lshrrev_b32 v26, 1, v17\nv_lshl_add_u32 v26, v26, 4, v16\nv_lshlrev_b32 v26, 4, v26\nv_and_b32 v27, 1, v17\nv_lshl_add_u32 v26, v27, 3, v26")
    e(f"s_lshl_b32 s{S_TMP}, s{S_W}, 11\ns_add_u32 s{S_TMP}, s{S_TMP}, {L_KVB + 8192}\nv_add_u32 v{A_VX}, s{S_TMP}, v26")
    e(f"v_lshlrev_b32 v65, 2, v0\ns_mov_b32 s{S_STEP}, 0\ns_mov_b32 s{S_READY}, 0\ns_mov_b32 s{S_MODE}, 0")
    WSR = f"s[{R_WS}:{R_WS+3}]"
    S_PG = 98
    if cfg.get("fair"):
        e(f"s_lshl_b32 s{S_PG}, s{S_H}, 2\ns_add_u32 s{S_PG}, s{S_PG}, s{S_W}\ns_lshl_b32 s{S_PG}, s{S_PG}, 2\ns_mov_b32 s{S_PG+2}, {WS_AG + 0x8000}\ns_add_u32 s{S_PG}, s{S_PG}, s{S_PG+2}")
        e(f"v_mov_b32 v69, 0\ns_mov_b64 exec, 1\nbuffer_store_dword v69, off, {WSR}, s{S_PG}\ns_mov_b64 exec, -1")
    order = [("B", n) for n in range(DEP) for _ in range(4)] + [("T", 1)] * LEAD + [("M", 0)] * (17 if cfg.get("fair") else 16)
    def after(kind, n):
        last = max(i for i, x in enumerate(order) if x == (kind, n))
        return min(len(order) - 1 - last, 63)
    for n in range(N):
        consume(n, after("B", n))
        for k, (a_, b_) in enumerate(cfg.get("pace", [])):
            if n == a_:
                e(f"s_barrier\nv_mov_b32 v36, {DBG_PACE + 64*0 + 4*k}\nv_mov_b32 v37, 1\ns_mov_b64 exec, s[{S_W0M}:{S_W0M+1}]\nglobal_atomic_add v36, v37, s[{S_DBG}:{S_DBG+1}]\ns_mov_b64 exec, -1"); order.append(("P", k))
            if n == b_:
                l = e.newlabel("PC"); d = e.newlabel("PCD")
                e(f"s_cmp_eq_u32 s{S_W}, 0\ns_cbranch_scc0 {d}")
                e.label(l)
                e(f"s_load_dword s{S_TMP}, s[{S_DBG}:{S_DBG+1}], {DBG_PACE + 4*k} glc\ns_add_u32 s{S_SPIN}, s{S_SPIN}, 1\ns_waitcnt lgkmcnt(0)")
                e(f"s_cmp_ge_u32 s{S_TMP}, 32\ns_cbranch_scc1 {d}\ns_sleep 8\ns_cmp_lt_u32 s{S_SPIN}, {SPIN_MAX}\ns_cbranch_scc1 {l}")
                e.label(d)
                e("s_barrier")
        W_ = cfg.get("fair")
        if W_ and n % cfg.get("fstep", 2) == 0 and 2 <= n <= 26:
            pl, pd = e.newlabel("FR"), e.newlabel("FRD")
            e(f"v_mov_b32 v69, {n}\ns_mov_b64 exec, 1\nbuffer_store_dword v69, off, {WSR}, s{S_PG}\ns_mov_b64 exec, -1"); order.append(("G", n))
            if ('G', n - cfg.get('fstep', 2)) in order:
                e(f"s_mov_b32 s{S_PG+1}, 0\ns_waitcnt vmcnt({after('G', n - cfg.get('fstep', 2))})")
                e.label(pl)
                e(f"v_min_i32 v70, v70, v71\nv_cmp_gt_i32 vcc, {max(n - W_, 0)}, v70\ns_cbranch_vccz {pd}")
                e(f"buffer_load_dword v70, v65, {WSR}, s{S_PG+2} offen sc1\nbuffer_load_dword v71, v65, {WSR}, s{S_PG+2} offen offset:256 sc1")
                e(f"s_add_u32 s{S_PG+1}, s{S_PG+1}, 1\ns_waitcnt vmcnt(0)\ns_cmp_lt_u32 s{S_PG+1}, 12\ns_cbranch_scc1 {pl}")
                e.label(pd)
            e(f"buffer_load_dword v70, v65, {WSR}, s{S_PG+2} offen sc1\nbuffer_load_dword v71, v65, {WSR}, s{S_PG+2} offen offset:256 sc1"); order += [("G", n)] * 2
        if LEAD and n + DEP + LEAD < N:
            touch(n + DEP + LEAD); order.append(("T", 1))
        if n + DEP < N:
            issue(n + DEP); order += [("B", n + DEP)] * 4
        if n == cfg.get("ctouch", -1):
            e(f"s_mul_i32 s{S_TMP}, s{S_H}, 21\nv_add_u32 v67, s{S_TMP}, v0\nv_lshlrev_b32 v67, 16, v67\ns_mul_i32 s{S_TMP}, s{S_W0M}, 0x1fffff\ns_mov_b32 exec_lo, s{S_TMP}\ns_mov_b32 exec_hi, 0\ns_mov_b32 s{S_TMP}, {WS_KV}")
            e(f"buffer_load_dword v68, v67, {WSR}, s{S_TMP} offen sc1\ns_mov_b64 exec, -1"); order.append(("T", 0))
        if n == 1:
            e(f"s_barrier\nv_mov_b32 v36, {DBG_INIT}\nv_mov_b32 v37, 1\ns_mov_b64 exec, s[{S_W0M}:{S_W0M+1}]")
            e(f"global_atomic_add v36, v37, s[{S_DBG}:{S_DBG+1}]\ns_mov_b64 exec, -1"); order.append(("I", 0))
        if n == cfg.get("lwait", -1):
            e(f"v_mov_b32 v36, {DBG_PACE}\nv_mov_b32 v37, 1\ns_mov_b64 exec, s[{S_W0M}:{S_W0M+1}]")
            e(f"global_atomic_add v36, v37, s[{S_DBG}:{S_DBG+1}]\ns_mov_b64 exec, -1"); order.append(("L", 0))
        if n == 16:
            e(f"global_load_dword v64, v65, s[{S_DBG}:{S_DBG+1}] sc1"); order.append(("D", 0))
        if n == 23:
            e(f"v_readlane_b32 s{S_TMP}, v64, {DBG_INIT//4}\nv_readlane_b32 s{S_MODE}, v64, {DBG_XCC(0)//4}\nv_mov_b32 v66, 0")
            e(f"s_cmp_ge_u32 s{S_TMP}, {NINIT}\ns_cselect_b32 s{S_MODE}, s{S_MODE}, 0\ns_cselect_b64 exec, -1, 0\ns_lshl_b32 s{S_TMP}, s{S_H}, 8")
            e(f"buffer_load_dword v66, v65, {WSR}, s{S_TMP} offen sc1\ns_mov_b64 exec, -1"); order.append(("F", 0))
        if n == 28:
            e("s_barrier")
            e(f"v_cmp_eq_u32 vcc, 0, v66\ns_ff1_i32_b64 s{S_READY}, vcc")
            e(f"s_lshl_b32 s{S_TMP}, s{S_H}, 14\ns_add_u32 s{S_XG0}, s{S_TMP}, {WS_KV - L_MEM}\ns_lshl_b32 s{S_TMP}, s{S_W}, 11\ns_add_u32 s{S_XL0}, s{S_TMP}, {L_KVB}")
            e(f"s_cmp_gt_u32 s{S_READY}, 0\ns_cselect_b64 exec, -1, 0")
            for grp in kv_dma(e, S_XG0, S_XL0):
                for x in grp: e(x)
            e("s_mov_b64 exec, -1"); order += [("K", 0)] * 4
            for r in range(8): e(f"v_lshl_or_b32 v{48+r}, v{56+r}, 16, v{48+r}")
            e(f"s_lshl_b32 s{S_TMP}, s{S_W}, 9\ns_add_u32 s{S_TMP}, s{S_TMP}, {L_QU - L_MEM}\nv_subrev_u32 v27, s{S_TMP}, v{A_UW}")
            for u in range(4): e(f"ds_write_b64 v27, {vr(48+2*u,2)} offset:{u*2048}")
            e("s_waitcnt lgkmcnt(0)")
            preload_q(e)
            for r in range(0, 16, 2): e(f"v_mov_b64 {vr(ACA+r,2)}, 0")
            e(f"v_mov_b32 v{IDX}, v29")
            e(f"s_lshl_b32 s{S_TMP}, s{S_H}, 13")
            e(f"s_add_u32 s{S_RSW0}, s{S_TMP}, {WS_RS}\ns_add_u32 s{S_RSW1}, s{S_RSW0}, 4096")
            for i in range(4): e(f"s_mov_b32 s{S_RSR[i]}, {WS_RS + 0x10000 * i}")
            e(f"s_mov_b32 s{S_AGSLOT}, 0\ns_mov_b32 s{S_AGW}, {WS_AG}\ns_mov_b32 s{S_TAG}, 0")
            e(f"s_lshl_b32 s{S_TMP}, s{S_H}, 12\ns_add_u32 s{S_KVM}, s{S_TMP}, {WS_KVM - 0x20000}")
            e(f"s_mov_b32 s{S_LB}, 0x3f003f00\ns_mov_b32 s{S_LB+1}, 0x3f803f80")
            e(f"s_lshl_b32 s{S_CF}, s{S_H}, 7\ns_add_u32 s{S_CF}, s{S_CF}, {FL_CFLAG}")
            e(f"s_mov_b32 s{S_SC}, 0x3e0293ee")
            e(f"s_lshl_b32 s{S_KFO}, s{S_H}, 8\ns_add_u32 s{S_KFO}, s{S_KFO}, 4")
        if n == 29: kv_peek(e)
        if n == 29 and cfg.get("wrm"):
            for sl in range(3):
                e(f"s_mov_b32 s{S_TMP}, {WS_AG - L_MEM + 0x2000 * sl}")
                for o in (0, 1024): e(f"buffer_load_dwordx4 v[88:91], v{A_AGR}, {WSR}, s{S_TMP} offen offset:{o} sc1"); order.append(("W", 0))
            for i in range(4): e(f"buffer_load_dwordx4 v[88:91], v{A_RSR}, {WSR}, s{S_RSR[i]} offen sc1"); order.append(("W", 0))
        if cfg.get("help") and n == 26:
            e(f"v_mov_b32 v36, {DBG_PACE}\nv_mov_b32 v37, 1\ns_mov_b64 exec, 1\nglobal_atomic_add v88, v36, v37, s[{S_DBG}:{S_DBG+1}] sc0\ns_mov_b64 exec, -1"); order.append(("H", 0))
    if cfg.get("help"):
        e(f"v_readfirstlane_b32 s{S_TMP}, v88\ns_cmp_lt_u32 s{S_TMP}, {cfg['help']}\ns_cbranch_scc0 HELP_E")
        k = 0
        for rnd in range(3):
            for d in range(1, 4):
                nb = cfg.get("hfrom", 23) + 3 * rnd + d - 1
                if nb >= N: continue
                m, J = BLOCKS[nb]
                e(f"s_add_u32 s{S_TMP2}, s{S_H}, {d}\ns_and_b32 s{S_TMP2}, s{S_TMP2}, 3\ns_and_b32 s{S_TMP}, s{S_H}, 3\ns_sub_i32 s{S_TMP2}, s{S_TMP2}, s{S_TMP}")
                e(f"s_lshl_b32 s{S_TMP2}, s{S_TMP2}, {17 if m == 'o' else 8}\nv_add_u32 v89, s{S_TMP2}, v{21 if m == 'o' else 20}")
                for i in range(4):
                    so = (64 * J[0] + 16 * i) * 1024 + J[1] * 64 if m == "o" else (64 * J + 16 * i) * 8192
                    e(f"s_mov_b32 s{S_TMP}, {so}\nbuffer_load_dwordx4 v[{40 + 4 * (k % 2)}:{43 + 4 * (k % 2)}], v89, s[{RW[m]}:{RW[m]+3}], s{S_TMP} offen"); k += 1
        e.label("HELP_E")
    e(f"s_cmp_ge_u32 s{S_MODE}, 32\ns_cselect_b32 s{S_KF}, s{S_KF}, 0")
    if cfg.get("gstamp"): e("s_memrealtime s[18:19]\ns_waitcnt lgkmcnt(0)\ns_mov_b32 s69, s18")
    e(f"s_mov_b32 s{S_KVG}, s{S_XG0}\ns_mov_b32 s{S_KVL}, s{S_XL0}")
    e(f"s_cmp_ge_u32 s{S_MODE}, 32\ns_cbranch_scc1 MODE_D")
    wait_init(e, "c", 32)
    e.label("MODE_L")
    e(f"v_readlane_b32 s{S_MODE}, v32, {DBG_XCC(0)//4}\ns_cmp_ge_u32 s{S_MODE}, 32\ns_cbranch_scc1 MODE_D\ns_mov_b32 s{S_TMP2}, 0")
    for x in range(8):
        e(f"v_readlane_b32 s{S_TMP}, v32, {DBG_XCC(x)//4}\ns_add_u32 s{S_TMP2}, s{S_TMP2}, s{S_TMP}")
    e(f"s_cmp_ge_u32 s{S_TMP2}, 256\ns_cbranch_scc1 MODE_D\ns_sleep 16")
    e(f"global_load_dword v32, v33, s[{S_DBG}:{S_DBG+1}] sc1\ns_add_u32 s{S_SPIN}, s{S_SPIN}, 1\ns_waitcnt vmcnt(0)\ns_cmp_lt_u32 s{S_SPIN}, {SPIN_MAX}\ns_cbranch_scc1 MODE_L")
    e.label("MODE_D")
    e(f"s_cmp_gt_u32 s{S_READY}, 0\ns_cbranch_scc1 KV0_D")
    kv_ready(e, 0, 32, 33)
    for grp in kv_dma(e):
        for s in grp: e(s)
    e.label("KV0_D")
    e(f"s_add_u32 s{S_KVG}, s{S_KVG}, 0x80000\ns_xor_b32 s{S_KVL}, s{S_KVL}, 0x3C000")

def interleave(e, mf, fill):
    def run(x):
        for s in x:
            if callable(s): s()
            else: e(s)
    run(fill.get(-1, []))
    for i, m in enumerate(mf):
        if callable(m): m()
        else: e(m)
        run(fill.get(i, []))

def smf(acc, a, f):
    return f"v_smfmac_f32_16x16x64_bf16 {vr(acc,4)}, {vr(a,4)}, {vr(f[1],8,f[0])}, v{IDX}"
def mf32(d, a, b, c):
    return f"v_mfma_f32_16x16x32_bf16 {vr(d,4)}, {vr(a,4)}, {vr(b,4)}, {c if c == '0' else vr(c,4)}"

def kv_ready_ool(e, tail, va, vb):
    d = e.newlabel("KRD"); sl = e.newlabel("KRS")
    e(f"s_add_u32 s{S_TMP2}, s{S_STEP}, 1")
    e(f"s_cmp_le_u32 s{S_READY}, s{S_TMP2}\ns_cbranch_scc1 {sl}")
    e.label(d)
    def slow():
        e.label(sl)
        kv_poll(e, va, vb, d)
    tail.append(slow)

def chain_loop(e, fast, cfg):
    st = "" if fast else " sc1"
    tag_ = "F" if fast else "S"
    WS = f"s[{R_WS}:{R_WS+3}]"
    stamps = cfg.get("stamps", [])
    def S(name):
        if name in stamps:
            i = stamps.index(name); e(f"s_memtime s[{S_ST+2*i}:{S_ST+2*i+1}]")
    def SS(name): return lambda: S(name)
    def GS(p, fill, n):
        for i in range(n):
            if f"{p}_{i}" in stamps: fill[i] = [SS(f"{p}_{i}")] + list(fill.get(i, []))
    LOOP, LAST, ENTRY, EARLY = [f"CH{tag_}_{x}" for x in ("LOOP", "LAST", "ENTRY", "EARLY")]
    tail = []
    seq = {}
    def wt(key): return lambda: e.waitlg(seq[key])
    KP, VP, QP = XT + 4, XT + 6, XT + 2
    RP, RED, AGO, T1, AP = MEMA, MEMA + 16, MEMA + 20, MEMA + 22, MEMA + 24
    e("s_waitcnt vmcnt(0) lgkmcnt(0)")
    if cfg.get("gstamp"): e("s_memrealtime s[18:19]\ns_memtime s[16:17]")
    kv_ready(e, 1, T0, T1)
    if cfg.get("prio"): e(f"s_setprio {cfg['prio']}")
    e(f"s_add_u32 s{S_KVG2}, s{S_KVG}, 8192\ns_mov_b32 m0, s{S_KVL}\nv_mov_b32 v{T0}, 0")
    e(f"s_branch {ENTRY}")
    def rs_ld(r):
        for i in range(4): e(f"buffer_load_dwordx4 {vr(r+4*i,4)}, v{A_RSR}, {WS}, s{S_RSR[i]} offen sc1")
    def rs_chk(r, n):
        for i in range(4):
            e(f"s_waitcnt vmcnt({n+3-i})")
            e(mf32(RED, SEL, r + 4 * i, "0" if i == 0 else RED))
            e(f"v_bitop3_b32 v{T1 if i else T0}, v{r+4*i}, v{r+4*i+2}, s{S_TAG} bitop3:0x7e")
            if i: e(f"v_or_b32 v{T0}, v{T0}, v{T1}")
        e(f"v_and_b32 v{T0}, 1, v{T0}\nv_cmp_ne_u32 vcc, 0, v{T0}")
    def ag_ld(r):
        e(f"buffer_load_dwordx4 {vr(r,4)}, v{A_AGR}, {WS}, s{S_AGR0} offen sc1")
        e(f"buffer_load_dwordx4 {vr(r+4,4)}, v{A_AGR}, {WS}, s{S_AGR0} offen offset:1024 sc1")
    def ag_chk(r, n):
        T1 = MEMA + 15
        if cfg.get("sw"):
            e(f"s_waitcnt vmcnt({n+1})\nds_write_b128 v{A_AGR}, {vr(r,4)}\ns_waitcnt vmcnt({n})\nds_write_b128 v{A_AGR}, {vr(r+4,4)} offset:1024")
        else:
            e(f"s_waitcnt vmcnt({n})")
            e(f"ds_write_b128 v{A_AGR}, {vr(r,4)}\nds_write_b128 v{A_AGR}, {vr(r+4,4)} offset:1024")
        e(f"v_max3_u32 v{T0}, v{r}, v{r+1}, v{r+2}\nv_max3_u32 v{T1}, v{r+4}, v{r+5}, v{r+6}")
        e(f"v_max3_u32 v{T0}, v{T0}, v{r+3}, v{r+7}\nv_max_u32 v{T0}, v{T0}, v{T1}\nv_cmp_eq_u32 vcc, -1, v{T0}")
    def backoff(n):
        if n >= 100: e.nop(n - 100)
        elif n: e(f"s_sleep {n}")
    def advance():
        e(f"v_mov_b64 {vr(AGO,2)}, -1")
        e(f"v_xor_b32 v{A_KX}, 0x3C000, v{A_KX}\nv_xor_b32 v{A_VX}, 0x3C000, v{A_VX}")
        e(f"v_add_u32 v{A_AGW}, 0x2000, v{A_AGW}\nv_subrev_u32 v{T0}, 0x6000, v{A_AGW}\nv_min_u32 v{A_AGW}, v{A_AGW}, v{T0}")
        e(f"s_add_u32 s{S_AGSLOT}, s{S_AGSLOT}, 0x2000\ns_cmp_eq_u32 s{S_AGSLOT}, 0x6000\ns_cselect_b32 s{S_AGSLOT}, 0, s{S_AGSLOT}")
        e(f"s_add_u32 s{S_AGR0}, s{S_AGSLOT}, {WS_AG - L_MEM}")
        e(f"s_add_u32 s{S_KVG}, s{S_KVG}, 0x80000\ns_xor_b32 s{S_KVL}, s{S_KVL}, 0x3C000\ns_add_u32 s{S_KVM}, s{S_KVM}, 0x20000")
        e(f"s_add_u32 s{S_KVG2}, s{S_KVG}, 8192\ns_mov_b32 m0, s{S_KVL}\ns_mov_b32 s{S_FLV}, s{S_STEP}")
        if cfg.get("peek"): kv_fold(e)
        e(f"s_add_u32 s{S_STEP}, s{S_STEP}, 1")
        if stamps: e(f"s_mov_b32 s{S_SPIN}, 0")
        if cfg.get("peek"): kv_peek(e)
    def comm(reducer, d1, d2, K, KR):
        P1, P1R, P2, P2R = [e.newlabel(x) for x in ("P1", "P1R", "P2", "P2R")]
        if not reducer:
            if cfg.get("hist"):
                e(f"s_memtime s[20:21]\ns_waitcnt lgkmcnt(0)\ns_sub_u32 s22, s20, s23\ns_mov_b32 s23, s20\nv_mov_b32 v{T0}, s22")
                e(f"s_lshl_b32 s24, s{S_H}, 8\ns_lshl_b32 s25, s{S_STEP}, 2\ns_add_u32 s24, s24, s25\ns_add_u32 s24, s24, {WS_STAMP + 0x40000}\ns_mov_b64 exec, 1")
                e(f"buffer_store_dword v{T0}, off, {WS}, s24\ns_mov_b64 exec, -1")
            advance()
            if not cfg.get("pql"): preload_q(e)
            e(f"s_xor_b32 s{S_TAG}, s{S_TAG}, 1")
            S("rsi"); S("rs")
        else:
            advance()
            rsets = [RP, ACA][:KR]
            if cfg.get("adap"):
                PL, PJ = e.newlabel("PL"), e.newlabel("PJ")
                e(f"s_sub_u32 s{S_LATE}, s{S_LATE}, s{S_STEP}\ns_cmp_eq_u32 s{S_LATE}, {0x5ca1ab00 - 1}\ns_cbranch_scc1 {PL}")
                def pl():
                    e.label(PL)
                    rs_ld(RP); preload_q(e)
                    if KR > 1: backoff(cfg.get("e1l", 1)); rs_ld(ACA)
                    e(f"s_branch {PJ}")
                tail.append(pl)
            preload_q(e)
            backoff(d1)
            S("rsi")
            rs_ld(RP)
            if KR > 1:
                backoff(cfg.get("e1", 2)); rs_ld(ACA)
            if cfg.get("adap"): e.label(PJ)
            rs_chk(RP, 4 * (KR - 1))
            e(f"s_cbranch_vccnz {P1R}")
            e.label(P1 + "_OK")
            S("rs")
            def p1r():
                e.label(P1R)
                for k in range(KR):
                    e(f"s_add_u32 s{S_SPIN}, s{S_SPIN}, 1\ns_cmp_gt_u32 s{S_SPIN}, {SPIN_MAX}\ns_cbranch_scc1 {P1}_OK")
                    e("s_mov_b64 exec, vcc"); rs_ld(rsets[k]); e("s_mov_b64 exec, -1")
                    rs_chk(rsets[(k + 1) % KR], 4 * (KR - 1))
                    e(f"s_cbranch_vccz {P1}_OK")
                e(f"s_branch {P1R}")
            tail.append(p1r)
            e(f"s_xor_b32 s{S_TAG}, s{S_TAG}, 1\ns_nop 1")
            for r in range(4):
                e(f"v_add_f32_dpp v{RED+r}, v{RED+r}, v{RED+r} row_ror:8 row_mask:0xf bank_mask:0xf")
            e(f"s_mov_b64 exec, s[{S_AGM}:{S_AGM+1}]")
            e(f"v_cvt_pk_bf16_f32 v{AGO}, v{RED}, v{RED+1}\nv_cvt_pk_bf16_f32 v{AGO+1}, v{RED+2}, v{RED+3}")
            e(f"s_mov_b64 exec, s[{S_AGM2}:{S_AGM2+1}]\nbuffer_store_dwordx2 {vr(AGO,2)}, v{A_AGW}, {WS}, s{S_AGW} offen{st}\ns_mov_b64 exec, -1")
            if cfg.get("push2"): e(f"s_mov_b64 exec, 1\nbuffer_load_dword v{MEMA+23}, off, {WS}, s{S_RSW0} sc1\ns_mov_b64 exec, -1")
        S("ags")
        if cfg.get("agbar"): e("s_barrier")
        S("agb")
        kv_ready_ool(e, tail, T0, MEMA + 15)
        if cfg.get("pql"): preload_q(e)
        backoff(d2)
        sets = [AP, ACB, MEMA + 16][:K]
        for k, r in enumerate(sets):
            if k: backoff(cfg.get("e2", 2))
            ag_ld(r)
        ag_chk(AP, 2 * (K - 1))
        e(f"s_cbranch_vccnz {P2R}")
        e.label(P2 + "_OK")
        S("ag")
        def p2r():
            e.label(P2R)
            if cfg.get("adap"):
                e(f"s_add_u32 s{S_TMP}, s{S_STEP}, 0x5ca1ab00\nv_mov_b32 v{MEMA+14}, s{S_TMP}\nv_mov_b32 v{MEMA+13}, {L_KU}\nds_write_b32 v{MEMA+13}, v{MEMA+14}")
            for k in range(K):
                e(f"s_add_u32 s{S_SPIN}, s{S_SPIN}, {16 if stamps else 1}\ns_cmp_gt_u32 s{S_SPIN}, {SPIN_MAX}\ns_cbranch_scc1 {P2}_OK")
                e("s_mov_b64 exec, vcc"); ag_ld(sets[k]); e("s_mov_b64 exec, -1")
                ag_chk(sets[(k + 1) % K], 2 * (K - 1))
                e(f"s_cbranch_vccz {P2}_OK")
            e(f"s_branch {P2R}")
        tail.append(p2r)
        if stamps:
            sk = e.newlabel("NS")
            e(f"s_waitcnt lgkmcnt(0)\ns_cmp_eq_u32 s{S_STEP}, {cfg.get('stampstep', 40)}\ns_cbranch_scc0 {sk}")
            for i in range(len(stamps)): e(f"v_writelane_b32 v{T0}, s{S_ST+2*i}, {i}")
            e(f"v_writelane_b32 v{T0}, s{S_SPIN}, 10")
            for i in range(5): e(f"s_memrealtime s[{12+4*i}:{13+4*i}]\ns_memtime s[{14+4*i}:{15+4*i}]\ns_nop 5")
            e("s_waitcnt lgkmcnt(0)")
            for i in range(5): e(f"v_writelane_b32 v{T0}, s{12+4*i}, {16+2*i}\nv_writelane_b32 v{T0}, s{14+4*i}, {17+2*i}")
            e(f"s_lshl_b32 s{S_TMP}, s{S_H}, 2\ns_add_u32 s{S_TMP}, s{S_TMP}, s{S_W}\ns_lshl_b32 s{S_TMP}, s{S_TMP}, 8\ns_add_u32 s{S_TMP}, s{S_TMP}, {WS_STAMP}")
            e(f"v_mbcnt_lo_u32_b32 v{T1}, -1, 0\nv_mbcnt_hi_u32_b32 v{T1}, -1, v{T1}\nv_lshlrev_b32 v{T1}, 2, v{T1}")
            e(f"buffer_store_dword v{T0}, v{T1}, {WS}, s{S_TMP} offen")
            e.label(sk)
        for r in range(0, 8, 2): e(f"v_mov_b64 {vr(ACA+r,2)}, 0")
        e(f"s_cmp_ge_u32 s{S_STEP}, 63\ns_cbranch_scc1 {LAST}")
        e(f"v_mov_b32 v{T0}, s{S_FLV}")
        if cfg.get("pubc"): e(f"buffer_store_dwordx4 {vr(KP,4)}, v{A_AGR}, {WS}, s{S_KVM} offen sc1")
        e("s_waitcnt lgkmcnt(0)")
    D = cfg.get("D", [[0, 60], [0, 160], [25, 40], [0, 190]])
    if cfg.get("agbar"): D = [[cfg["d1e"], cfg.get("d2e", 0)], [0, cfg.get("d2e", 0)], [cfg["d1"], cfg["d2"]], [0, cfg["d2"]]]
    KK = [cfg.get("Ke", 1), cfg.get("Ke", 1), cfg.get("K", 2), cfg.get("K", 2)]
    for w in (0, 1, 3):
        e.label(f"{LOOP}_{w}")
        comm(w == 0, D[w][0], D[w][1], KK[w], cfg.get('KRe', 1))
        e(f"s_branch {ENTRY}")
    e(".p2align 6")
    e.label(f"{LOOP}_2")
    comm(True, D[2][0], D[2][1], KK[2], cfg.get('KR', 2))
    e.label(ENTRY)
    e("s_barrier")
    S("b1")
    if cfg.get("stepst"): e("s_memrealtime s[84:85]")
    def rd_m(J, x):
        def f(): seq[("m", J)] = e(f"ds_read_b64_tr_b16 {vr(MEMA+4*J+2*x,2)}, v{A_TR} offset:{(2*(J%2)+x)*2048 + (J//2)*512}")
        return f
    qorder = [(0, 0), (0, 1), (1, 0), (1, 1), (2, 0)] + [(J, t) for J in range(3, 8) for t in range(2)] + [(2, 1)]
    if cfg.get("qo"): qorder = qorder[:11] + [(2, 1)] + qorder[11:15]
    def qf(J, t):
        if J < 3: return ("v", QB + 8 * (QL.index((J, t)) % 5))
        return FRAG[("q", J, t)]
    mq = [smf(ACA + 4 * t, MEMA + 4 * J, qf(J, t)) for J, t in qorder]
    def rd_w(key, r, off):
        def f(): seq[key] = e(f"ds_read_b128 {vr(r,4)}, v{A_W} offset:{off}")
        return f
    def rq(n, hf): return rd_w(("ql", n), QB + 8 * (n % 5) + 4 * hf, FRAG[("q",) + QL[n]][1] + 1024 * hf)
    flag = [f"s_mov_b64 exec, s[{S_W0M}:{S_W0M+1}]", f"buffer_store_dword v{T0}, off, {WS}, s{S_CF} sc1", "s_mov_b64 exec, -1"]
    pubk = f"buffer_store_dwordx2 {vr(KP,2)}, v{A_RSW}, {WS}, s{S_KVM} offen sc1"
    pubv = f"buffer_store_dwordx2 {vr(VP,2)}, v{A_RSW}, {WS}, s{S_KVM} offen offset:2048 sc1"
    if cfg.get("nopub"): pubk = pubv = "s_nop 0"; flag = []
    def dm(i): return "s_nop 0" if cfg.get("nodma") else f"buffer_load_dwordx4 v{A_AGR}, {WS}, s{S_KVG if i < 2 else S_KVG2} offen offset:{(i%2)*1024} sc1 lds"
    z = lambda r: f"v_mov_b64 {vr(r,2)}, 0"
    fill = {-1: [rd_m(J, x) for J in range(4) for x in range(2)] + [wt(("m", 0)), SS("m0")],
            0: [rd_m(4, 0), dm(0)], 1: [rd_m(4, 1), wt(("m", 1))], 2: [rd_m(5, 0), dm(1)], 3: [rd_m(5, 1), wt(("m", 2))],
            4: [f"s_add_u32 m0, s{S_KVL}, 8192", wt(("m", 3))],
            5: [f"s_waitcnt vmcnt({3 if cfg.get('pubc') else 2})", rd_m(6, 0)], 6: [rd_m(6, 1), wt(("m", 4))], 7: [rd_m(7, 0), dm(2)], 8: [rd_m(7, 1), wt(("m", 5))],
            9: [rq(5, 0), dm(3)], 10: [rq(5, 1), wt(("m", 6))], 11: flag, 12: [wt(("m", 7))], 13: [] if cfg.get("pubc") else [pubk], 14: [wt(("ql", 5))],
            }
    if cfg.get("qo"):
        last = []
        m0b = f"s_add_u32 m0, s{S_KVL}, 8192"
        fill = {-1: [rd_m(J, x) for J in range(4) for x in range(2)] + [wt(("m", 0)), SS("m0")],
                0: [rd_m(4, 0)] + (last if cfg["qo"] == 1 else []), 1: [rd_m(4, 1), wt(("m", 1))], 2: [rd_m(5, 0), dm(0)], 3: [rd_m(5, 1), wt(("m", 2))],
                4: [rq(5, 0), wt(("m", 3))], 5: [rq(5, 1), dm(1)], 6: [m0b, wt(("m", 4))], 7: ["s_waitcnt vmcnt(2)", rd_m(6, 0)],
                8: [rd_m(6, 1), wt(("m", 5))], 9: [rd_m(7, 0), dm(2)], 10: [rd_m(7, 1), wt(("ql", 5))], 11: [wt(("m", 6)), dm(3)],
                12: flag, 13: [wt(("m", 7))], 14: [pubk]}
        if cfg["qo"] == 2: fill[-1] = fill[-1][:8] + last + fill[-1][8:]
    if max(KK) > 2:
        fill[0] = ["s_waitcnt vmcnt(0)", rd_m(4, 0), dm(0)]; fill[5] = [rd_m(6, 0)]
    kextra = {}
    dp = cfg.get("dp", 0)
    m0b = f"s_add_u32 m0, s{S_KVL}, 8192"
    if dp:
        for g in (0, 2, 7, 9): fill[g] = fill[g][:1]
        fill[4] = fill[4][1:]
        fill[5] = ["s_waitcnt vmcnt(%d)" % (1 if dp in (1, 2) else 0), rd_m(6, 0)]
        if dp == 1:
            fill[2] += [dm(0)]; fill[7] += [dm(1)]; fill[9] += [m0b]; fill[12] = fill[12] + [dm(2)]; kextra = {5: [dm(3)]}
        if dp == 2:
            fill[2] += [dm(0)]; fill[9] += [dm(1)]; kextra = {3: [m0b], 5: [dm(2)], 11: [dm(3)]}
        if dp == 4:
            kextra = {4: [dm(0)], 7: [dm(1)], 9: [m0b], 11: [dm(2)], 14: [dm(3)]}
        if dp == 5:
            fill[9] += [dm(0)]; fill[12] = fill[12][:1] + [dm(1)] + fill[12][1:]; kextra = {3: [m0b], 5: [dm(2)], 7: [dm(3)]}
        if dp == 6:
            fill[0] += [dm(0)]; fill[1] = [rd_m(4, 1), dm(1), wt(("m", 1))]; fill[2] += [m0b]; fill[3] = [rd_m(5, 1), dm(2), wt(("m", 2))]; fill[4] = [dm(3)] + fill[4]
            fill[5] = ["s_waitcnt vmcnt(4)", rd_m(6, 0)]
        if dp == 7:
            pre = fill[-1]; fill[-1] = pre[:8] + [dm(0)] + pre[8:]; fill[0] += [dm(1)]; fill[2] += [m0b]; fill[3] = [rd_m(5, 1), dm(2), wt(("m", 2))]
            fill[5] = ["s_waitcnt vmcnt(3)", rd_m(6, 0)]; fill[7] += [dm(3)]
        if dp == 3:
            fill[7] += [dm(0)]; fill[12] = fill[12] + [dm(1)]; kextra = {3: [m0b], 6: [dm(2)], 14: [dm(3)]}
    if cfg.get("flp") == 1:
        fill[11] = []; kextra[7] = None
    pp = cfg.get("pubp", 0)
    if pp:
        pre = [rd_m(J, x) for J in range(4) for x in range(2)]
        fill[-1] = pre[:pp] + [pubk] + pre[pp:] + [wt(("m", 0)), SS("m0")]
        fill[13] = []; fill[5] = ["s_waitcnt vmcnt(3)", rd_m(6, 0)]
    pv = cfg.get("pv", 0); pkp = cfg.get("pkp", 0)
    if pv == 0: fill[15] = [pubv]
    if pkp: fill[13] = []
    for n, g in enumerate([10, 11, 13, 14] if cfg.get("qo") else [10, 12, 13, 14]): fill[g] = fill[g] + [z(ACB + 2 * n)]
    if cfg.get("adap"):
        def rl(): seq["late"] = e(f"ds_read_b32 v{T0}, v{A_TRK} offset:{L_KU - L_MEM}")
        fill[12] = [rl] + fill[12]
    GS("q", fill, 16)
    interleave(e, mq, fill)
    S("q")
    mk = [smf(ACB + 4 * t, MEMA + 4 * J, FRAG[("k", J, t)]) for J in range(8) for t in range(2)]
    def post_dup(acc, dst):
        return [f"v_add_f32 v{acc}, v{acc}, v{acc+2}", f"v_add_f32 v{acc+1}, v{acc+1}, v{acc+3}",
                f"v_cvt_pk_bf16_f32 v{dst}, v{acc}, v{acc+1}"]
    pq = post_dup(ACA, QP) + post_dup(ACA + 4, QP + 1)
    def rd_q(js, t):
        def f(): seq[("q", js)] = e(f"ds_read_b64_tr_b16 {vr(QB+4*js+2*t,2)}, v{A_TR} offset:{L_QU-L_MEM + js*1024 + t*512}")
        return f
    kxslot = [0, 1, 2, 3, 4, 5, 0, 1]
    def rd_kx(n):
        js, kt = n // 2, n % 2
        def f(): seq[("kx", n)] = e(f"ds_read_b128 {vr(KXA+4*kxslot[n],4)}, v{A_KX} offset:{(kt*4+js)*1024}")
        return f
    def wr_u(key, a, r, t):
        def f(): seq[key] = e(f"ds_write2_b32 v{a}, v{r}, v{r} offset0:{128*t} offset1:{128*t+1}")
        return f
    fill = {0: pq[0:2], 1: pq[2:4], 2: [wr_u("wq0", A_UW, QP, 0)] + pq[4:6], 3: [wr_u("wq1", A_UW, QP + 1, 1)],
            4: [rd_kx(0), f"v_add_u32 v{T0}, {L_KU - L_QU}, v{A_UW}"], 5: [rd_kx(1)], 6: [rd_kx(2)], 7: [rd_kx(3)],
            8: [wt("wq1"), SS("bq0"), "s_barrier", SS("bq1")],
            9: [rd_q(0, 0), rd_q(0, 1)], 10: [rd_q(1, 0), rd_q(1, 1)], 11: [rd_kx(4)], 12: [rd_q(2, 0), rd_kx(5)], 13: [rd_q(2, 1), rd_q(3, 0)],
            14: [rd_q(3, 1)], 15: [wt(("q", 1))]}
    if pkp == 1: fill[6] = fill[6] + [pubk]
    if pkp == 2: fill[11] = fill[11] + [pubk]
    if pv == 2: fill[14] = fill[14] + [pubv]
    if cfg.get("adap"): fill[3] = [wt("late")] + fill[3] + [f"v_readfirstlane_b32 s{S_LATE}, v{T0}"]
    kb = cfg.get("kb", 0)
    if kb == 1:
        fill.update({5: [rd_kx(1), rd_kx(2)], 6: [rd_kx(3)], 7: [wt("wq1"), "s_barrier"], 8: [rd_q(0, 0), rd_q(0, 1)], 9: [rd_q(1, 0)], 10: [rd_q(1, 1)],
                     11: [rd_kx(4)], 12: [rd_q(2, 0), rd_kx(5)]})
    if kb == 2:
        fill.update({5: [rd_kx(1)], 6: [wt("wq1"), "s_barrier"], 7: [rd_q(0, 0), rd_q(0, 1)], 8: [rd_kx(2)], 9: [rd_q(1, 0), rd_kx(3)], 10: [rd_q(1, 1)],
                     11: [rd_kx(4)], 12: [rd_q(2, 0), rd_kx(5)]})
    if kb == 3:
        fill = {0: pq[0:1], 1: pq[1:2], 2: pq[2:3], 3: [wr_u("wq0", A_UW, QP, 0)] + pq[3:4], 4: [rd_kx(0)] + pq[4:5], 5: [rd_kx(1)] + pq[5:6],
                6: [wr_u("wq1", A_UW, QP + 1, 1), f"v_add_u32 v{T0}, {L_KU - L_QU}, v{A_UW}"], 7: [rd_kx(2)], 8: [rd_kx(3)], 9: [rd_kx(4)],
                10: [wt("wq1"), "s_barrier"], 11: [rd_q(0, 0), rd_q(0, 1)], 12: [rd_q(1, 0), rd_q(1, 1)], 13: [rd_q(2, 0), rd_kx(5)],
                14: [rd_q(2, 1), rd_q(3, 0)], 15: [rd_q(3, 1), wt(("q", 0))]}
    for g, x in kextra.items():
        if x is None: fill[g] = flag; fill[6] = fill[6] + [rd_kx(3)]
        elif g == 4: fill[g] = fill[g][:1] + x + fill[g][1:]
        else: fill[g] = fill[g] + x
    if cfg.get("flp") == 1: fill[4] = [rd_kx(0)]; fill[8] = fill[8]; fill[15] = fill[15]; kadd = True
    GS("k", fill, 16)
    interleave(e, mk, fill)
    S("k")
    pk = post_dup(ACB, KP) + post_dup(ACB + 4, KP + 1)
    ms = []
    for js in range(4):
        for kt in range(2):
            n = js * 2 + kt
            ms.append(mf32(ACA + 4 * kt, KXA + 4 * kxslot[n], QB + 4 * js, "0" if js == 0 else ACA + 4 * kt))
    def rd_k(js, t):
        def f(): seq[("k", js)] = e(f"ds_read_b64_tr_b16 {vr(KXA+8+4*js+2*t,2)}, v{A_TRK} offset:{L_KU-L_MEM + js*1024 + t*512}")
        return f
    fill = {0: [rd_kx(6)] + pk[0:2], 1: [rd_kx(7)] + pk[2:4] + ([f"v_add_u32 v{T0}, {L_KU - L_QU}, v{A_UW}"] if cfg.get("flp") == 1 else []),
            2: [wr_u("wk0", T0, KP, 0)] + pk[4:6], 3: [wt(("q", 3)), z(ACB), z(ACB + 2)],
            4: [wr_u("wk1", T0, KP + 1, 1), z(ACB + 4), z(ACB + 6)],
            5: [wt(("kx", 7))],
            }
    if cfg.get("sxs") == 1:
        fill = {0: [rd_kx(6)], 1: [rd_kx(7)] + pk[0:2], 2: pk[2:4], 3: [wt(("q", 3))] + pk[4:6],
                4: [wr_u("wk0", T0, KP, 0), z(ACB), z(ACB + 2)], 5: [wt(("kx", 7)), z(ACB + 4), z(ACB + 6)], 6: [wr_u("wk1", T0, KP + 1, 1)]}
    if kb == 3: fill[1] = fill[1][:1] + [wt(("q", 1))] + fill[1][1:]
    GS("sx", fill, 8)
    interleave(e, ms, fill)
    S("Sx")
    mv = [smf(ACB + 4 * t, MEMA + 4 * J, FRAG[("v", J, t)]) for J in range(8) for t in range(2)]
    SM = KXA
    X0, X1 = ACA, ACA + 4
    mx, t2 = KXA + 4, KXA + 5
    e0 = XT
    NV1 = cfg.get("nv1", 10)
    msm = [mf32(SM, KXA + 8 + 4 * js, QB + 4 * js, "0" if js == 0 else SM) for js in range(4)]
    odd = f"s[{S_ODD}:{S_ODD+1}]"
    early = [f"v_max3_f32 v{mx}, v{X0}, v{X0+1}, v{X0+2}", f"v_max3_f32 v{t2}, v{X1}, v{X1+1}, v{X1+2}",
             f"v_max3_f32 v{mx}, v{mx}, v{X0+3}, v{X1+3}", f"v_max_f32 v{mx}, v{mx}, v{t2}",
             f"v_cndmask_b32 v{e0}, v{X0}, v{X0+2}, {odd}", f"v_cndmask_b32 v{e0+1}, v{X0+1}, v{X0+3}, {odd}",
             f"v_cndmask_b32 v{e0+2}, v{X1}, v{X1+2}, {odd}", f"v_cndmask_b32 v{e0+3}, v{X1+1}, v{X1+3}, {odd}"]
    seqm = mv[:NV1] + msm + mv[NV1:]
    PVB0, PVB1, OAC, PA, LB, LA = QB, QB + 8, KXA + 8, KXA + 16, KXA + 20, KXA + 4
    def rd_vx(n):
        t, hf = n // 2, n % 2
        def f(): seq["vx"] = e(f"ds_read_b64 {vr(QB+8*t+2+4*hf,2)}, v{A_VX} offset:{t*1024 + hf*512}")
        return f
    def rd_wo(T, hf):
        return rd_w(("wo", T), MEMA + 8 * (T % 4) + 4 * hf, FRAG[("o", (1, T // 2), T % 2)][1] + 1024 * hf)
    EE = [SM, SM + 1, e0, e0+1, e0+2, e0+3]
    fill = {0: [wt("wk1"), SS("bk0"), "s_barrier", SS("bk1")]}
    for n in range(8): fill[1 + n] = [rd_k(n // 2, n % 2), early[n]]
    xv = cfg.get("xv", 0)
    if xv == 2:
        fill = {1: early[0:1], 2: early[1:3], 3: early[3:5], 4: [wt("wk1"), "s_barrier"],
                5: [rd_k(0, 0), rd_k(0, 1)], 6: [rd_k(1, 0), rd_k(1, 1)], 7: [rd_k(2, 0), rd_k(2, 1)], 8: [rd_k(3, 0), rd_k(3, 1)]}
    if xv == 3:
        fill = {1: early[0:2], 2: early[2:4], 3: [wt("wk1"), "s_barrier"],
                4: [rd_k(0, 0), rd_k(0, 1)], 5: [rd_k(1, 0), rd_k(1, 1)], 6: [rd_k(2, 0)], 7: [rd_k(2, 1)], 8: [rd_k(3, 0), rd_k(3, 1)]}
    if xv == 1:
        for n in range(8): fill[1 + n] = [rd_k(n // 2, n % 2)]
        fill[7] += early[0:1]; fill[8] += early[1:2]
    if pv == 1: fill[0] = [pubv]
    if pv == 3: fill[6] = fill[6] + [pubv]
    fill[NV1 - 1] = [rd_wo(0, 0), wt(("k", 0)), SS("k0")] if NV1 - 1 > 8 else fill[NV1 - 1][:1] + [wt(("k", 0))] + fill[NV1 - 1][1:]
    lb = [f"v_mov_b64 {vr(LB,2)}, s[{S_LB}:{S_LB+1}]", f"v_mov_b64 {vr(LB+2,2)}, s[{S_LB}:{S_LB+1}]"]
    zz = [z(OAC), z(OAC + 2), z(OAC + 4), z(OAC + 6), f"v_mov_b32 v{PA+2}, 0"] + lb
    if xv == 1:
        fill[NV1 - 1] = fill[NV1 - 1] + early[2:3]
        fill[NV1] = [wt(("k", 1))] + early[3:5]
        fill[NV1 + 1] = [wt(("k", 2))] + early[5:7]
        fill[NV1 + 2] = [wt(("k", 3))] + early[7:8] + zz[0:1]
        fill[NV1 + 3] = [rd_vx(0)] + zz[1:3]
        zz = zz[3:]
    elif xv in (2, 3):
        rem = early[5:] if xv == 2 else early[4:]
        allv = rem + zz
        k0 = 2 if xv == 3 else 0
        fill[NV1] = [wt(("k", 1))]
        fill[NV1 + 1] = [wt(("k", 2))] + allv[0:k0]
        fill[NV1 + 2] = [wt(("k", 3))] + allv[k0:k0 + 2]
        fill[NV1 + 3] = [rd_vx(0)] + allv[k0 + 2:k0 + 4]
        zz = allv[k0 + 4:]
    else:
        fill[NV1] = [wt(("k", 1))] + zz[0:2]
        fill[NV1 + 1] = [wt(("k", 2))] + zz[2:4]
        fill[NV1 + 2] = [wt(("k", 3))] + zz[4:5]
        fill[NV1 + 3] = [rd_vx(0)] + zz[5:7]
        zz = []
    GS("v1", fill, 14)
    interleave(e, seqm[:NV1 + 4], fill)
    S("Sm")
    rest = seqm[NV1 + 4:]
    assert len(rest) == 6
    def run(x):
        for s in x: s() if callable(s) else e(s)
    run([rest[0], rd_vx(1), rd_vx(2)] + zz[0:1] + [rest[1], rd_vx(3), rd_wo(0, 1),
         f"v_max3_f32 v{mx}, v{mx}, v{SM}, v{SM+1}", f"v_mov_b32 v{t2}, v{mx}",
         rest[2], rd_wo(1, 0), rd_wo(1, 1),
         f"v_permlane32_swap_b32 v{mx}, v{t2}", f"v_max_f32 v{mx}, v{mx}, v{t2}", f"v_mov_b32 v{t2}, v{mx}",
         rest[3], rd_wo(2, 0), rd_wo(2, 1),
         f"v_permlane16_swap_b32 v{mx}, v{t2}", f"v_max_f32 v{mx}, v{mx}, v{t2}",
         rest[4], f"v_mul_f32 v{mx}, s{S_SC}, v{mx}", rest[5], rd_wo(3, 0), rd_wo(3, 1)] + zz[1:] + [
         ]
        + [f"v_fma_f32 v{x}, v{x}, s{S_SC}, -v{mx}" for x in EE] + [f"v_exp_f32 v{x}, v{x}" for x in EE]
        + [f"v_cvt_pk_bf16_f32 v{PA}, v{SM}, v{SM+1}", f"v_cvt_pk_bf16_f32 v{PA+1}, v{e0}, v{e0+1}", f"v_cvt_pk_bf16_f32 v{PA+3}, v{e0+2}, v{e0+3}",
           f"v_permlane32_swap_b32 v{PA}, v{PA+2}"])
    S("soft")
    cv = lambda t, h: f"v_cvt_pk_bf16_f32 v{QB+8*t+h}, v{ACB+4*t+2*h}, v{ACB+4*t+2*h+1}"
    run([cv(0, 0), cv(0, 1), mf32(LA, PA, LB, "0"), wt("vx"), cv(1, 0), cv(1, 1),
         f"v_smfmac_f32_16x16x64_bf16 {vr(OAC,4)}, {vr(PA,4)}, {vr(PVB0,8)}, v{IDX}", "s_nop 0",
         f"v_smfmac_f32_16x16x64_bf16 {vr(OAC+4,4)}, {vr(PA,4)}, {vr(PVB1,8)}, v{IDX}",
         ] + ([
         f"v_pk_add_f32 {vr(LA,2)}, {vr(LA,2)}, {vr(LA+2,2)}", f"v_rcp_f32 v{LA}, v{LA}", f"v_rcp_f32 v{LA+1}, v{LA+1}",
         f"v_pk_add_f32 {vr(OAC,2)}, {vr(OAC,2)}, {vr(OAC+2,2)}", f"v_pk_mul_f32 {vr(OAC,2)}, {vr(OAC,2)}, {vr(LA,2)}", "s_nop 0",
         f"v_pk_add_f32 {vr(OAC+4,2)}, {vr(OAC+4,2)}, {vr(OAC+6,2)}", f"v_cvt_pk_bf16_f32 v{OAC}, v{OAC}, v{OAC+1}",
         f"v_pk_mul_f32 {vr(OAC+4,2)}, {vr(OAC+4,2)}, {vr(LA,2)}", f"v_cvt_pk_bf16_f32 v{OAC+1}, v{OAC+4}, v{OAC+5}"] if cfg.get("usepk") else [
         f"v_add_f32 v{LA}, v{LA}, v{LA+2}", f"v_add_f32 v{LA+1}, v{LA+1}, v{LA+3}", f"v_rcp_f32 v{LA}, v{LA}", f"v_rcp_f32 v{LA+1}, v{LA+1}",
         f"v_add_f32 v{OAC}, v{OAC}, v{OAC+2}", f"v_add_f32 v{OAC+1}, v{OAC+1}, v{OAC+3}",
         f"v_mul_f32 v{OAC}, v{OAC}, v{LA}", f"v_mul_f32 v{OAC+1}, v{OAC+1}, v{LA+1}",
         f"v_add_f32 v{OAC+4}, v{OAC+4}, v{OAC+6}", f"v_add_f32 v{OAC+5}, v{OAC+5}, v{OAC+7}",
         f"v_mul_f32 v{OAC+4}, v{OAC+4}, v{LA}", f"v_mul_f32 v{OAC+5}, v{OAC+5}, v{LA+1}",
         f"v_cvt_pk_bf16_f32 v{OAC}, v{OAC}, v{OAC+1}", f"v_cvt_pk_bf16_f32 v{OAC+1}, v{OAC+4}, v{OAC+5}"]))
    WAC = [QB, QB + 4, QB + 8, QB + 12, ACA, ACA + 4, ACB, ACB + 4]
    so = e(f"ds_write_b64 v{A_UW}, {vr(OAC,2)}")
    S("ow")
    def vpost():
        for t in range(2):
            a = ACB + 4 * t
            e(f"v_pk_add_f32 {vr(a,2)}, {vr(a,2)}, {vr(a+2,2)}\nv_cvt_pk_bf16_f32 v{VP+t}, v{a}, v{a+1}")
    if cfg.get("mz"):
        e(z(QB)); e(z(QB + 2))
        vpost()
        e(f"v_mfma_f32_32x32x16_bf16 {vr(ACA,16)}, {vr(QB,4)}, {vr(QB,4)}, 0")
        for r in range(4, 16, 2): e(z(QB + r))
    else:
        vpost()
        for r in range(0, 16, 2): e(z(QB + r))
        for r in range(0, 16, 2): e(z(ACA + r))
    e.waitlg(so)
    S("bo0")
    e("s_barrier")
    S("bo1")
    OA = KXA
    for J in range(2):
        for x in range(2):
            seq[("oa", J)] = e(f"ds_read_b64_tr_b16 {vr(OA+4*J+2*x,2)}, v{A_TR} offset:{L_QU-L_MEM + (2*J+x)*1024}")
    mo = []
    for p in range(4):
        for T in (2 * p, 2 * p + 1): mo.append(smf(WAC[T], OA, FRAG[("o", (0, T // 2), T % 2)]))
        for T in (2 * p, 2 * p + 1): mo.append(smf(WAC[T], OA + 4, ("v", MEMA + 8 * (T % 4))))
    RSO = OAC
    def post_pair(p):
        a, b = WAC[2 * p], WAC[2 * p + 1]; d = RSO + 2 * p
        return [f"v_add_f32 v{a}, v{a}, v{a+2}", f"v_add_f32 v{a+1}, v{a+1}, v{a+3}",
                f"v_cvt_pk_bf16_f32 v{d}, v{a}, v{a+1}", f"v_add_f32 v{b}, v{b}, v{b+2}",
                f"v_add_f32 v{b+1}, v{b+1}, v{b+3}", f"v_and_or_b32 v{d}, v{d}, -2, s{S_TAG}",
                f"v_cvt_pk_bf16_f32 v{d+1}, v{b}, v{b+1}",
                f"buffer_store_dwordx2 {vr(d,2)}, v{A_RSW}, {WS}, s{S_RSW0 if p < 2 else S_RSW1} offen offset:{(p%2)*2048}{st}"]
    p0, p1, p2, p3 = [post_pair(p) for p in range(4)]
    fill = {-1: [wt(("oa", 0)), SS("oa")], 1: [wt(("oa", 1))], 2: [rd_wo(4, 0), rd_wo(4, 1)], 3: [rd_wo(5, 0), rd_wo(5, 1)],
            4: ["s_nop 0"] + p0[0:1], 5: p0[1:3], 6: [rd_wo(6, 0), rd_wo(6, 1)] + p0[3:5], 7: [rd_wo(7, 0), rd_wo(7, 1)] + p0[5:7], 8: p0[7:8] + p1[0:1],
            9: [wt(("wo", 4))] + p1[1:3], 10: [wt(("wo", 5))] + p1[3:5], 11: p1[5:7],
            12: p1[7:8] + p2[0:1], 13: [wt(("wo", 6))] + p2[1:3], 14: [wt(("wo", 7))] + p2[3:5],
            15: p2[5:8] + p3[0:3] + ([p3[5]] + p3[3:5] + p3[6:] if not cfg.get("usepk") else [p3[5], f"v_pk_add_f32 {vr(WAC[7],2)}, {vr(WAC[7],2)}, {vr(WAC[7]+2,2)}"] + p3[6:]),
            }
    GS("wo", fill, 16)
    interleave(e, mo, fill)
    S("Wo")
    if cfg.get("push"): e(f"s_mov_b64 exec, 1\nbuffer_load_dword v{MEMA+23}, off, {WS}, s{S_RSW0} sc1\ns_mov_b64 exec, -1")
    if cfg.get("stepst"):
        for k in range(12): e(f"s_cmp_eq_u32 s{S_STEP}, {k}\ns_cselect_b32 s{20+k}, s84, s{20+k}")
    for w in (2, 0, 1): e(f"s_cmp_eq_u32 s{S_W}, {w}\ns_cbranch_scc1 {LOOP}_{w}")
    e(f"s_branch {LOOP}_3")
    for t in tail: t()
    e.label(LAST)
    e("s_waitcnt vmcnt(0) lgkmcnt(0)\ns_barrier")
    for J in range(8):
        for x in range(2): rd_m(J, x)()
    e(pubk); e(pubv)
    e(f"s_add_u32 s{S_KVM}, s{S_KVM}, 0x20000")
    for r in range(0, 8, 2): e(z(ACB + r))
    e("s_waitcnt lgkmcnt(0)")
    for J in range(8):
        for t in range(2): e(smf(ACA + 4 * t, MEMA + 4 * J, FRAG[("k", J, t)]))
    for i, m in enumerate(mv):
        e(m)
        if 2 <= i < 8: e((post_dup(ACA, KP) + post_dup(ACA + 4, KP + 1))[i - 2])
        if i == 8: e(pubk)
    e.nop(8)
    vpost()
    e(pubv)
    e("s_waitcnt vmcnt(0) lgkmcnt(0)\ns_barrier")
    e(f"v_mov_b32 v{T0}, 64\ns_mov_b64 exec, s[{S_W0M}:{S_W0M+1}]")
    e(f"buffer_store_dword v{T0}, off, {WS}, s{S_CF} sc1")
    if cfg.get("gstamp"):
        e(f"s_memrealtime s[84:85]\ns_memtime s[86:87]\ns_waitcnt lgkmcnt(0)\ns_sub_u32 s86, s86, s16\nv_mov_b32 v24, s86\nv_mov_b32 v20, s3\nv_mov_b32 v21, s18\nv_mov_b32 v22, s84\nv_mov_b32 v23, s69")
        e(f"s_lshl_b32 s{S_TMP}, s{S_H}, 4\ns_add_u32 s{S_TMP}, s{S_TMP}, {WS_STAMP + 0x10000}")
        if cfg.get("stepst"):
            for k in range(12): e(f"v_mov_b32 v{30+k}, s{20+k}")
            e(f"s_lshl_b32 s{S_TMP2}, s{S_H}, 6\ns_add_u32 s{S_TMP2}, s{S_TMP2}, {WS_STAMP + 0x11000}")
            for k in range(3): e(f"buffer_store_dwordx4 v[{30+4*k}:{33+4*k}], off, {WS}, s{S_TMP2} offset:{16*k}")
        e(f"buffer_store_dwordx4 v[20:23], off, {WS}, s{S_TMP}\nbuffer_store_dword v24, off, {WS}, s{S_TMP} offset:1024")
    if cfg.get("dbgt"):
        for k, r in enumerate(("s69", "s18", "s84")):
            e(f"s_sub_u32 s{S_TMP}, {r}, s3\nv_mov_b32 v20, s{S_TMP}\nv_mov_b32 v21, {8 + 4*k}\nglobal_atomic_umax v21, v20, s[{S_DBG}:{S_DBG+1}]")
        e(f"v_mov_b32 v20, s60\nv_mov_b32 v21, 28\nglobal_atomic_or v21, v20, s[{S_DBG}:{S_DBG+1}]")
        e(f"v_mov_b32 v20, s86\nv_mov_b32 v21, 24\nglobal_atomic_umax v21, v20, s[{S_DBG}:{S_DBG+1}]")
    e("s_branch KEND")
```

```python
from asmlib import Em, vr
from layout import *
from chain import *

WS = f"s[{R_WS}:{R_WS+3}]"
W_XB, W_QX, W_KMU, W_RED, W_STG = 0x0, 0x10000, 0x12000, 0x13000, 0x10000
NSLOT = 6
S_G, S_SEG, S_CNT, S_XL, S_XG, S_I, S_OFF, S_OFF2, S_STGB = 52, 53, 54, 55, 56, 57, 58, 59, 60
S_STP, S_END, S_PREV, S_CHN = 61, 66, 74, 75
R_X = 84
R_A, R_B = 40, 44
R_O = 88
V_C, V_G, V_L16, V_XSRC, V_XRD, V_T, V_T2 = 1, 2, 3, 4, 5, 6, 7

_cfg = {}
def WST(e, idx=None):
    if not _cfg.get("wstamp"): return
    e(f"s_memrealtime s[70:71]\ns_lshl_b32 s72, s{S_GRP}, 5\ns_add_u32 s72, s72, s{S_H}\ns_lshl_b32 s72, s72, 8\ns_lshl_b32 s73, s101, 2\ns_add_u32 s72, s72, s73")
    e(f"s_add_u32 s72, s72, {WS_STAMP + 0x20000}\ns_add_u32 s101, s101, 1\ns_waitcnt lgkmcnt(0)\ns_sub_u32 s70, s70, s3\nv_mov_b32 v{V_T}, s70\nv_mov_b32 v{V_T2}, 0\ns_mov_b64 exec, s[{S_W0M}:{S_W0M+1}]")
    e(f"buffer_store_dword v{V_T}, v{V_T2}, {WS}, s72 offen\ns_mov_b64 exec, -1\ns_waitcnt vmcnt(0)")

def load_blocks(e, blocks, D=4):
    N = len(blocks)
    def issue(q):
        n, i = q // 4, q % 4
        r, vs, so, _, _ = blocks[n]
        e(f"s_add_u32 m0, s{S_STGB}, {(n % NSLOT) * 4096 + i * 1024}\ns_mov_b32 s{S_TMP}, {so[i]}")
        e(f"buffer_load_dwordx4 {vs}, s[{r}:{r+3}], s{S_TMP} offen lds")
    for q in range(D): issue(q)
    for q in range(4 * N):
        nxt = q + D
        if q % 4 == 3 or (D < 4 and nxt < 4 * N): e(f"s_waitcnt vmcnt({min(4 * N - 1 - q, D - 1 if D < 4 else D - 4)})")
        if D < 4 and nxt < 4 * N: issue(nxt)
        if q % 4 == 3:
            n = q // 4
            for dst, off in blocks[n][4]:
                e(f"ds_read_b64_tr_b16 {dst}, {blocks[n][3]} offset:{(n % NSLOT) * 4096 + off}")
            e("s_waitcnt lgkmcnt(0)")
            if D >= 4:
                for k in range(4):
                    if q - 3 + D + k < 4 * N: issue(q - 3 + D + k)

def wmat_blocks(r, abase):
    out = []
    for J in range(8):
        rd = []
        for t in range(2):
            for m in range(4):
                s = 2 * J + m // 2
                rd.append((vr(abase + (t * 16 + s) * 4 + 2 * (m % 2), 2, "a"), (32 * (m // 2) + 4 * (m % 2)) * 64 + t * 32))
        out.append((r, "v20", [(64 * J + 16 * i) * 8192 for i in range(4)], "v22", rd))
    return out

def wo_blocks(r, abase):
    out = []
    for hh in range(8):
        rd = []
        for js in range(4):
            for m in range(2):
                rd.append((vr(abase + (hh * 4 + js) * 4 + 2 * m, 2, "a"), (32 * js + 16 * m) * 32))
        out.append((r, "v21", [(hh * 128 + 32 * i) * 1024 for i in range(4)], "v23", rd))
    return out

def wload_addr(e):
    e("v_and_b32 v18, 3, v0\nv_lshrrev_b32 v19, 2, v0")
    e(f"s_lshl_b32 s{S_TMP}, s{S_H}, 8\ns_lshl_b32 s{S_TMP2}, s{S_W}, 6\ns_add_u32 s{S_TMP}, s{S_TMP}, s{S_TMP2}")
    e(f"v_lshlrev_b32 v20, 13, v19\nv_lshl_add_u32 v20, v18, 4, v20\nv_add_u32 v20, s{S_TMP}, v20")
    e(f"s_lshl_b32 s{S_TMP}, s{S_W}, 20\ns_lshl_b32 s{S_TMP2}, s{S_H}, 5\ns_add_u32 s{S_TMP}, s{S_TMP}, s{S_TMP2}")
    e(f"v_lshrrev_b32 v21, 1, v0\nv_lshlrev_b32 v21, 10, v21\nv_and_b32 v24, 1, v0\nv_lshl_add_u32 v21, v24, 4, v21\nv_add_u32 v21, s{S_TMP}, v21")
    e(f"s_mul_i32 s{S_STGB}, s{S_W}, {NSLOT*4096}\ns_add_u32 s{S_STGB}, s{S_STGB}, {W_STG}")
    e(f"v_lshrrev_b32 v24, 2, v{V_C}")
    e(f"v_lshl_add_u32 v22, v{V_G}, 3, v24\nv_lshlrev_b32 v22, 6, v22\nv_lshl_add_u32 v22, v18, 3, v22\nv_add_u32 v22, s{S_STGB}, v22")
    e(f"v_lshl_add_u32 v23, v{V_G}, 2, v24\nv_lshlrev_b32 v23, 5, v23\nv_lshl_add_u32 v23, v18, 3, v23\nv_add_u32 v23, s{S_STGB}, v23")

def x_dma(e):
    out = []
    for i in range(8):
        out.append([f"s_add_u32 m0, s{S_XL}, {i*1024}", f"s_add_u32 s{S_TMP}, s{S_XG}, {i*64}",
                    f"buffer_load_dwordx4 v{V_XSRC}, s[{R_X}:{R_X+3}], s{S_TMP} offen lds"])
    return out

def flag_store(e, soff, val):
    e(f"v_mov_b32 v{V_T}, {val}\nv_mov_b32 v{V_T2}, s{soff}\ns_mov_b64 exec, s[{S_W0M}:{S_W0M+1}]")
    e(f"buffer_store_dword v{V_T}, v{V_T2}, {WS}, 0 offen sc1\ns_mov_b64 exec, -1")

def mfd(d, a, b, c, pa="v", pb="v"):
    return f"v_mfma_f32_16x16x32_bf16 {vr(d,4)}, {vr(a,4,pa)}, {vr(b,4,pb)}, {c if c == '0' else vr(c,4)}"

def phaseA(e, cfg):
    e("; ---- phase A : K,V projection")
    XF, ACC, OUT = 32, 64, 96
    srd(e, R_A, S_WK, 0x400000); srd(e, R_B, S_WV, 0x400000)
    if cfg.get("seqa"):
        ns, a2 = cfg["seqa"], cfg.get("a2", 29)
        e(f"s_cmp_lt_u32 s{S_G}, 3\ns_cselect_b32 s{S_STP}, 2, 4\ns_cselect_b32 s{S_END}, {a2}, 64\ns_cselect_b32 s{S_TMP}, {ns-1}, {a2-3}\ns_add_u32 s{S_SEG}, s{S_G}, s{S_TMP}")
        e(f"s_cmp_eq_u32 s{S_G}, 0\ns_cselect_b32 s{S_STP}, 1, s{S_STP}\ns_cselect_b32 s{S_END}, {ns}, s{S_END}\ns_cselect_b32 s{S_SEG}, 0, s{S_SEG}")
    else:
        e(f"s_cmp_lt_u32 s{S_G}, 3\ns_cselect_b32 s{S_STP}, 3, 4\ns_cselect_b32 s{S_END}, {cfg.get('asplit', 27)}, 64\ns_cselect_b32 s{S_TMP}, 0, {cfg.get('asplit', 27) - 3}\ns_add_u32 s{S_SEG}, s{S_G}, s{S_TMP}")
    e(f"s_lshl_b32 s{S_XG}, s{S_SEG}, 15\ns_lshl_b32 s{S_XL}, s{S_W}, 13\nv_mov_b32 v{V_XRD}, v{V_L16}")
    for g in x_dma(e):
        for s in g: e(s)
    if cfg.get("wdc", 4) != cfg.get("wda", 4):
        e(f"s_cmp_lt_u32 s{S_G}, 3\ns_cbranch_scc1 PA_W1")
        load_blocks(e, wmat_blocks(R_A, 0) + wmat_blocks(R_B, 128), cfg["wdc"])
        e("s_branch PA_W2")
        e.label("PA_W1")
    load_blocks(e, wmat_blocks(R_A, 0) + wmat_blocks(R_B, 128), cfg.get('wda', 4))
    e.label("PA_W2")
    wait_init(e, "w", 24)
    e(f"s_and_b32 s{S_TMP}, s{S_GRP}, 3\ns_lshl_b32 s{S_TMP}, s{S_TMP}, 4\ns_lshr_b32 s{S_TMP2}, s{S_GRP}, 2\ns_add_u32 s{S_TMP}, s{S_TMP}, s{S_TMP2}\ns_nop 3")
    e(f"v_readlane_b32 s{S_MODE}, v24, s{S_TMP}")
    if cfg.get("force_slow"): e(f"s_mov_b32 s{S_MODE}, 0")
    WST(e)
    e(f"s_mov_b32 s{S_I}, 0x7ffffff0")
    pa = cfg.get("pastamp")
    def acc(k):
        if pa: e(f"s_memtime s[70:71]\ns_waitcnt lgkmcnt(0)\ns_sub_u32 s72, s70, s92\ns_mov_b32 s92, s70\ns_add_u32 s{93+k}, s{93+k}, s72")
    if pa: e("s_memtime s[92:93]\ns_waitcnt lgkmcnt(0)\ns_mov_b32 s93, 0\ns_mov_b32 s94, 0\ns_mov_b32 s95, 0\ns_mov_b32 s96, 0")
    e.label("PA_LOOP")
    if cfg.get("slowa"): e(f"s_cmp_lt_u32 s{S_SEG}, 9\ns_cbranch_scc1 PA_NS\ns_sleep {cfg['slowa']}"); e.label("PA_NS")
    e("s_waitcnt vmcnt(4)")
    acc(0)
    e("s_barrier")
    acc(1)
    e(f"s_lshl_b32 s{S_TMP}, s{S_STP}, 15\ns_add_u32 s{S_XG}, s{S_XG}, s{S_TMP}\ns_xor_b32 s{S_XL}, s{S_XL}, 0x8000")
    dma = x_dma(e)
    seq = {}
    def rd(n):
        s, rt = n // 2, n % 2
        seq[n] = e(f"ds_read_b128 {vr(XF + 4 * (n % 8), 4)}, v{V_XRD} offset:{(rt * 16 + s) * 1024}")
    for n in range(6): rd(n)
    for n in range(32):
        s, rt = n // 2, n % 2
        e.waitlg(seq[n])
        x = XF + 4 * (n % 8)
        for t in range(2):
            a = ACC + 4 * (t * 2 + rt)
            e(mfd(a, (t * 16 + s) * 4, x, "0" if s == 0 else a, "a", "v"))
            if t == 0 and n + 6 < 32: rd(n + 6)
        for t in range(2):
            a = ACC + 16 + 4 * (t * 2 + rt)
            e(mfd(a, x, 128 + (t * 16 + s) * 4, "0" if s == 0 else a, "v", "a"))
        if n % 3 == 1 and n // 3 < 8:
            for q in dma[n // 3]: e(q)
        if n == 14:
            e("s_waitcnt vmcnt(5)\ns_barrier")
            flag_store(e, S_I, 1)
    acc(2)
    e(f"v_xor_b32 v{V_XRD}, 0x8000, v{V_XRD}")
    e(f"s_lshl_b32 s{S_OFF}, s{S_SEG}, 19\ns_lshl_b32 s{S_TMP}, s{S_H}, 14\ns_add_u32 s{S_OFF}, s{S_OFF}, s{S_TMP}\ns_add_u32 s{S_OFF}, s{S_OFF}, {WS_KV}")
    e(f"s_lshl_b32 s{S_TMP}, s{S_W}, 10\ns_add_u32 s{S_TMP2}, s{S_OFF}, s{S_TMP}\ns_nop 0\ns_lshl_b32 s{S_I}, s{S_H}, 6\ns_add_u32 s{S_I}, s{S_I}, s{S_SEG}\ns_lshl_b32 s{S_I}, s{S_I}, 2")
    for rt in range(2):
        o = OUT + 4 * rt
        for t in range(2):
            a = ACC + 4 * (t * 2 + rt)
            e(f"v_cvt_pk_bf16_f32 v{o+2*t}, v{a}, v{a+1}\nv_cvt_pk_bf16_f32 v{o+2*t+1}, v{a+2}, v{a+3}")
        e(f"buffer_store_dwordx4 {vr(o,4)}, v{V_L16}, {WS}, s{S_TMP2} offen sc1")
        e(f"s_add_u32 s{S_TMP2}, s{S_TMP2}, 4096")
    e(f"s_add_u32 s{S_TMP2}, s{S_TMP2}, s{S_TMP}")
    for t in range(2):
        o = OUT + 8 + 4 * t
        for rt in range(2):
            a = ACC + 16 + 4 * (t * 2 + rt)
            e(f"v_cvt_pk_bf16_f32 v{o+2*rt}, v{a}, v{a+1}\nv_cvt_pk_bf16_f32 v{o+2*rt+1}, v{a+2}, v{a+3}")
        e(f"buffer_store_dwordx4 {vr(o,4)}, v{V_L16}, {WS}, s{S_TMP2} offen offset:{t*1024} sc1")
    acc(3)
    e(f"s_add_u32 s{S_SEG}, s{S_SEG}, s{S_STP}\ns_cmp_lt_u32 s{S_SEG}, s{S_END}\ns_cbranch_scc1 PA_LOOP")
    e("s_waitcnt vmcnt(0)\ns_barrier")
    flag_store(e, S_I, 1)
    if pa:
        e(f"s_lshl_b32 s72, s{S_GRP}, 5\ns_add_u32 s72, s72, s{S_H}\ns_lshl_b32 s72, s72, 4\ns_add_u32 s72, s72, {WS_STAMP + 0x30000}")
        e(f"v_mov_b32 v32, s93\nv_mov_b32 v33, s94\nv_mov_b32 v34, s95\nv_mov_b32 v35, s96\nv_mov_b32 v36, 0\nbuffer_store_dwordx4 v[32:35], v36, {WS}, s72 offen")

def poll_all(e, name, vaddr, soff, cmpv, vt, sleep=8, bar=True, pre=False):
    l, d = e.newlabel(name), e.newlabel(name + "D")
    e(f"s_cmp_eq_u32 s{S_W}, 0\ns_cbranch_scc0 {d}")
    if pre: e(f"v_cmp_gt_u32 vcc, {cmpv}, v{vt}\ns_cbranch_vccz {d}")
    e.label(l)
    e(f"buffer_load_dword v{vt}, v{vaddr}, {WS}, {soff} offen sc1\ns_add_u32 s{S_SPIN}, s{S_SPIN}, 1\ns_waitcnt vmcnt(0)")
    e(f"v_cmp_gt_u32 vcc, {cmpv}, v{vt}\ns_cbranch_vccz {d}\ns_sleep {sleep}")
    e(f"s_cmp_lt_u32 s{S_SPIN}, {SPIN_MAX}\ns_cbranch_scc1 {l}")
    e.label(d)
    if bar: e("s_barrier")

def rb_pair(e, d, a, b):
    e(f"v_cvt_pk_bf16_f32 v{d}, v{a}, v{b}\nv_lshlrev_b32 v{a}, 16, v{d}\nv_and_b32 v{b}, 0xffff0000, v{d}")

C_UR, C_HP, URS, HPC = 0x0, 0x8000, 7680, 4160
HPS = 4 * HPC
def conv(e, cfg):
    e("; ---- conv task")
    S_TK = S_OFF
    e(f"s_cmp_lt_u32 s{S_G}, 3\ns_cbranch_scc1 CV_END\ns_sub_u32 s{S_TK}, s{S_G}, 3\ns_lshl_b32 s{S_TK}, s{S_TK}, 5\ns_add_u32 s{S_TK}, s{S_TK}, s{S_H}")
    if cfg.get("cvwait") is not None:
        wait_init(e, "w", 24)
        e(f"s_lshl_b32 s{S_OFF2}, s{S_H}, 8\ns_add_u32 s{S_OFF2}, s{S_OFF2}, {4*cfg['cvwait']}\nv_mov_b32 v24, 0")
        poll_all(e, "CVS", 24, f"s{S_OFF2}", 1, 25, 32)
    srd(e, R_A, S_K, 0x200000); srd(e, R_B, S_V, 0x200000)
    KR, VR, SH, P, U = 32, 56, 72, 88, 112
    e(f"s_lshl_b32 s{S_TMP}, s{S_W}, 6\nv_add_u32 v16, s{S_TMP}, v0")
    e(f"s_lshl_b32 s{S_TMP}, s{S_TK}, 3\nv_lshlrev_b32 v17, 13, v16\nv_add_u32 v17, s{S_TMP}, v17")
    e("v_subrev_u32 v18, 3072, v17")
    for j in range(3): e(f"buffer_load_dwordx2 {vr(KR+2*j,2)}, v18, s[{R_A}:{R_A+3}], 0 offen offset:{j*1024}")
    e("v_add_u32 v19, 4096, v17")
    for j in range(8):
        va = "v17" if j < 4 else "v19"
        e(f"buffer_load_dwordx2 {vr(KR+6+2*j,2)}, {va}, s[{R_A}:{R_A+3}], 0 offen offset:{(j%4)*1024}")
        e(f"buffer_load_dwordx2 {vr(VR+2*j,2)}, {va}, s[{R_B}:{R_B+3}], 0 offen offset:{(j%4)*1024}")
    e(f"s_lshl_b32 s{S_TMP2}, s{S_TK}, 2\ns_add_u32 s{S_TMP2}, s{S_TMP2}, s{S_W}")
    e(f"s_lshl_b32 s{S_XG}, s{S_TMP2}, 12\ns_mul_i32 s{S_XL}, s{S_W}, {HPS}\ns_add_u32 s{S_XL}, s{S_XL}, {C_HP}")
    e(f"s_add_u32 s{R_O}, s{S_SSMK}, s{S_XG}\ns_addc_u32 s{R_O+1}, s{S_SSMK+1}, 0\ns_mov_b32 s{R_O+2}, 4096\ns_mov_b32 s{R_O+3}, 0x20000")
    HR = 140
    for i in range(5):
        e(f"v_add_u32 v22, {i*1024 - 64}, v{V_L16}\nv_add_u32 v23, {i*1024 - 48}, v{V_L16}")
        e(f"buffer_load_dwordx4 {vr(HR+6*i,4)}, v22, s[{R_O}:{R_O+3}], 0 offen\nbuffer_load_dwordx2 {vr(HR+6*i+4,2)}, v23, s[{R_O}:{R_O+3}], 0 offen")
    e(f"s_lshl_b32 s{S_TMP}, s{S_TK}, 5\ns_load_dwordx8 s[92:99], s[{S_SH}:{S_SH+1}], s{S_TMP}")
    e(f"s_lshl_b32 s{S_TMP}, s{S_TMP2}, 1\ns_and_b32 s{S_TMP}, s{S_TMP}, -4\ns_load_dword s{S_CNT}, s[{S_SSMD}:{S_SSMD+1}], s{S_TMP}")
    e(f"v_mov_b64 v[24:25], 0\nv_mov_b64 v[26:27], 0")
    e(f"s_mul_i32 s{S_I}, s{S_W}, {URS}\nv_add_u32 v20, s{S_I}, v{V_L16}")
    for i in range(2): e(f"ds_write_b128 v20, v[24:27] offset:{5120 + i*1024}")
    e(f"s_mov_b32 exec_hi, 0\nds_write_b128 v20, v[24:27] offset:{5120 + 2048}\ns_mov_b64 exec, -1")
    e("v_lshlrev_b32 v20, 3, v16\nv_sub_u32 v20, 2040, v20\nv_lshrrev_b32 v21, 5, v20\nv_and_b32 v20, 31, v20")
    e("v_mul_u32_u24 v21, 80, v21\nv_lshl_add_u32 v20, v20, 1, v21")
    e("s_waitcnt vmcnt(10) lgkmcnt(0)")
    if cfg.get("cvstamp"): WST(e)
    e("v_cmp_eq_u32 vcc, 0, v16\ns_nop 1")
    for r in range(6): e(f"v_cndmask_b32 v{KR+r}, v{KR+r}, v24, vcc")
    for ch in range(4):
        for j in range(4):
            src = 92 + ch * 2 + j // 2
            e(f"s_lshl_b32 s{70+j}, s{src}, 16" if j % 2 == 0 else f"s_and_b32 s{70+j}, s{src}, 0xffff0000")
        KF = 120
        for j in range(11):
            r = KR + 2 * j + ch // 2
            e(f"v_lshlrev_b32 v{KF+j}, 16, v{r}" if ch % 2 == 0 else f"v_and_b32 v{KF+j}, 0xffff0000, v{r}")
        for pr in range(4):
            a, b, t1, t2, d = P, P + 1, P + 2, P + 3, P + 4
            r0 = 2 * pr
            e(f"v_mul_f32 v{a}, s73, v{KF+r0}\nv_mul_f32 v{b}, s73, v{KF+r0+1}")
            rb_pair(e, d, a, b)
            for j in (2, 1, 0):
                e(f"v_mul_f32 v{t1}, s{70+j}, v{KF+r0+3-j}\nv_mul_f32 v{t2}, s{70+j}, v{KF+r0+1+3-j}")
                rb_pair(e, d, t1, t2)
                e(f"v_add_f32 v{a}, v{a}, v{t1}\nv_add_f32 v{b}, v{b}, v{t2}")
                rb_pair(e, d, a, b)
            for q, rr in ((t1, r0), (t2, r0 + 1)):
                r = VR + 2 * rr + ch // 2
                e(f"v_lshlrev_b32 v{q}, 16, v{r}" if ch % 2 == 0 else f"v_and_b32 v{q}, 0xffff0000, v{r}")
            e(f"v_mul_f32 v{a}, v{a}, v{t1}\nv_mul_f32 v{b}, v{b}, v{t2}")
            e(f"v_cvt_pk_bf16_f32 v{U+3-pr}, v{b}, v{a}")
        e(f"ds_write_b128 v20, {vr(U,4)} offset:{ch*URS}\ns_nop 1")
    if cfg.get("cvstamp"): WST(e)
    e(f"s_waitcnt vmcnt(0)\nv_add_u32 v22, s{S_XL}, v{V_L16}")
    for i in range(5):
        x = HR + 6 * i
        if i == 4: e("s_mov_b64 exec, 15")
        for k in range(4): e(f"v_alignbyte_b32 v{P+k}, v{x+k+1}, v{x+k}, 2")
        for k in range(4): e(f"v_alignbyte_b32 v{P+4+k}, v{x+k+2}, v{x+k+1}, 2")
        for k in range(4): e(f"v_mov_b32 v{P+8+k}, v{x+k+1}")
        e(f"ds_write_b128 v22, {vr(x,4)} offset:{i*1024}\nds_write_b128 v22, {vr(P,4)} offset:{i*1024 + HPC}")
        e(f"ds_write_b128 v22, {vr(P+8,4)} offset:{i*1024 + 2*HPC}\nds_write_b128 v22, {vr(P+4,4)} offset:{i*1024 + 3*HPC}\ns_waitcnt lgkmcnt(0)")
    e("s_mov_b64 exec, -1\ns_barrier")
    if cfg.get("cvstamp"): WST(e)
    e(f"v_and_b32 v16, 31, v0\nv_lshrrev_b32 v17, 5, v0")
    e(f"v_lshl_add_u32 v18, v17, 3, v16\nv_add_u32 v18, 1, v18\nv_and_b32 v19, 3, v18\nv_and_b32 v18, -4, v18\nv_mul_u32_u24 v19, {HPC}, v19")
    e(f"v_lshl_add_u32 v18, v18, 1, v19\nv_add_u32 v18, s{S_XL}, v18")
    e(f"v_sub_u32 v19, 63, v16\nv_mul_u32_u24 v19, 80, v19\nv_lshl_add_u32 v19, v17, 4, v19\nv_add_u32 v19, s{S_I}, v19")
    e("v_subrev_u32 v21, 2560, v19")
    AC0, AC1, FR, NB = 32, 48, 64, 3
    seq = {}
    def rd(sg):
        b = FR + 16 * (sg % NB); bo = (sg // 2) * 80 + (sg % 2) * 32
        e(f"ds_read_b64 {vr(b,2)}, v18 offset:{sg*32}\nds_read_b64 {vr(b+2,2)}, v18 offset:{sg*32+8}")
        e(f"ds_read_b128 {vr(b+4,4)}, v19 offset:{bo}")
        e(f"ds_read_b128 {vr(b+8,4)}, v21 offset:{bo}")
        seq[sg] = e(f"ds_read_b64 {vr(b+12,2)}, v18 offset:{sg*32+2048}\nds_read_b64 {vr(b+14,2)}, v18 offset:{sg*32+2056}")
    def mm(d, a, b, first): return f"v_mfma_f32_32x32x16_bf16 {vr(d,16)}, {vr(a,4)}, {vr(b,4)}, {'0' if first else vr(d,16)}"
    rd(0); rd(1)
    for sg in range(64):
        b = FR + 16 * (sg % NB)
        e.waitlg(seq[sg])
        e(mm(AC0, b, b + 4, sg == 0))
        if sg + 2 < 64: rd(sg + 2)
        e(mm(AC1, b, b + 8, sg == 0))
        e(mm(AC1, b + 12, b + 4, False))
    if cfg.get("cvstamp"): WST(e)
    e(f"s_bitcmp1_b32 s{S_TMP2}, 0\ns_cbranch_scc1 CV_D1\ns_lshl_b32 s{S_CNT}, s{S_CNT}, 16")
    e.label("CV_D1")
    e(f"s_and_b32 s{S_CNT}, s{S_CNT}, 0xffff0000")
    e(f"v_lshlrev_b32 v22, 5, v17\nv_sub_u32 v22, v19, v22\nv_lshl_add_u32 v22, v17, 3, v22")
    e(f"v_lshlrev_b32 v23, 6, v16\nv_lshl_add_u32 v23, v17, 3, v23")
    e(f"s_lshl_b32 s{S_XG}, s{S_TMP2}, 12\ns_add_u32 s{S_XG}, s{S_XG}, {WS_Y2}")
    e("v_subrev_u32 v24, 2560, v22")
    for tl in range(2):
        for q in range(4):
            e(f"ds_read_b64 {vr(FR + 8*tl + 2*q, 2)}, {'v22' if tl == 0 else 'v24'} offset:{56 - 16*q}")
    e("s_waitcnt lgkmcnt(0)\ns_nop 7")
    for tl in range(2):
        for q in range(4):
            y = (AC0 if tl == 0 else AC1) + 4 * q; u = FR + 8 * tl + 2 * q; t = 96
            e(f"v_and_b32 v{t}, 0xffff0000, v{u+1}\nv_lshlrev_b32 v{t+1}, 16, v{u+1}\nv_and_b32 v{t+2}, 0xffff0000, v{u}\nv_lshlrev_b32 v{t+3}, 16, v{u}")
            for i in range(4): e(f"v_mul_f32 v{t+i}, s{S_CNT}, v{t+i}")
            rb_pair(e, t + 4, t, t + 1); rb_pair(e, t + 4, t + 2, t + 3)
            rb_pair(e, t + 4, y, y + 1); rb_pair(e, t + 4, y + 2, y + 3)
            for i in range(4): e(f"v_add_f32 v{y+i}, v{y+i}, v{t+i}")
            e(f"v_cvt_pk_bf16_f32 v{y}, v{y}, v{y+1}\nv_cvt_pk_bf16_f32 v{y+1}, v{y+2}, v{y+3}")
            e(f"buffer_store_dwordx2 {vr(y,2)}, v23, {WS}, s{S_XG} offen offset:{tl*2048 + q*16} sc1")
    if cfg.get("cvstamp"): e("s_nop 0"); WST(e)
    e("s_waitcnt vmcnt(0)\ns_barrier")
    wait_init(e, "w", 24)
    e(f"s_lshl_b32 s{S_TK}, s{S_TK}, 2\ns_add_u32 s{S_TK}, s{S_TK}, {FL_CONV}")
    flag_store(e, S_TK, 1)
    e.label("CV_END")

def phaseB(e, cfg):
    e("; ---- phase B")
    srd(e, R_A, S_WQ, 0x400000); srd(e, R_B, S_WO, 0x400000)
    wload_addr(e)
    e(f"s_mov_b32 s{S_SEG}, s{S_G}\ns_lshl_b32 s{S_XG}, s{S_SEG}, 15\ns_lshl_b32 s{S_XL}, s{S_W}, 13")
    e(f"v_mov_b32 v{V_XRD}, v{V_L16}")
    for g in x_dma(e):
        for s in g: e(s)
    load_blocks(e, wmat_blocks(R_A, 0) + wo_blocks(R_B, 128), cfg.get('wdb', 4))
    srd(e, R_O, S_OUT, 0x200000); srd(e, R_A, S_GATE, 1024)
    GW = 16
    e(f"buffer_load_dwordx4 {vr(GW,4)}, v{V_L16}, s[{R_A}:{R_A+3}], 0 offen")
    e(f"s_and_b32 s62, s{S_W}, 1\ns_lshr_b32 s63, s{S_W}, 1")
    e(f"v_lshlrev_b32 v8, 2, v{V_G}\nv_sub_u32 v8, v{V_C}, v8\ns_lshl_b32 s{S_TMP}, s62, 4\nv_add_u32 v8, s{S_TMP}, v8\nv_subrev_u32 v9, 16, v8")
    e(f"v_lshrrev_b32 v25, 2, v{V_C}\nv_lshl_add_u32 v25, v{V_G}, 2, v25\nv_and_b32 v24, 1, v0\nv_lshlrev_b32 v24, 3, v24\nv_lshl_add_u32 v10, v25, 4, v24\nv_add_u32 v10, {W_KMU}, v10")
    e(f"s_lshl_b32 s{S_TMP}, s{S_W}, 9\ns_add_u32 s{S_TMP}, s{S_TMP}, {W_KMU}\nv_lshlrev_b32 v22, 4, v{V_C}\nv_lshl_add_u32 v22, v{V_G}, 2, v22\nv_add_u32 v22, s{S_TMP}, v22")
    e(f"s_lshl_b32 s{S_TMP}, s{S_W}, 9\nv_lshl_add_u32 v23, v0, 3, s{S_TMP}")
    e(f"v_and_b32 v24, 1, v{V_G}\nv_lshl_add_u32 v11, v24, 5, v{V_C}\nv_lshlrev_b32 v11, 3, v11\ns_lshl_b32 s{S_TMP}, s63, 10\ns_add_u32 s{S_TMP}, s{S_TMP}, 2048\nv_add_u32 v11, s{S_TMP}, v11")
    e(f"v_lshrrev_b32 v24, 2, v0\nv_and_b32 v25, 3, v0\nv_lshlrev_b32 v12, 10, v24\nv_lshl_add_u32 v12, v25, 8, v12")
    e(f"s_lshr_b32 s{S_TMP}, s{S_H}, 4\ns_lshl_b32 s{S_TMP}, s{S_TMP}, 14\ns_and_b32 s{S_TMP2}, s{S_H}, 15\ns_lshl_b32 s{S_TMP2}, s{S_TMP2}, 4\ns_add_u32 s{S_TMP}, s{S_TMP}, s{S_TMP2}\nv_add_u32 v12, s{S_TMP}, v12")
    e(f"s_lshl_b32 s{S_TMP}, s{S_W}, 3\nv_lshrrev_b32 v24, 3, v0\nv_add_u32 v24, s{S_TMP}, v24\nv_and_b32 v25, 7, v0")
    e(f"v_lshrrev_b32 v26, 4, v24\nv_and_b32 v27, 15, v24\nv_lshlrev_b32 v13, 10, v26\nv_lshl_add_u32 v13, v27, 4, v13")
    e(f"v_lshrrev_b32 v26, 1, v25\nv_lshl_add_u32 v13, v26, 8, v13\nv_and_b32 v26, 1, v25\nv_lshl_add_u32 v13, v26, 3, v13\nv_add_u32 v13, {W_RED}, v13")
    e(f"s_lshl_b32 s{S_TMP}, s{S_H}, 16\nv_lshlrev_b32 v14, 13, v25\nv_lshl_add_u32 v14, v24, 1, v14\nv_add_u32 v14, s{S_TMP}, v14")
    e(f"s_lshl_b32 s{S_TMP}, s{S_H}, 5\nv_lshlrev_b32 v15, 10, v24\nv_lshl_add_u32 v15, v25, 2, v15\nv_add_u32 v15, s{S_TMP}, v15")
    e(f"v_and_b32 v20, 31, v0\nv_lshlrev_b32 v20, 7, v20\nv_lshlrev_b32 v21, 2, v24")
    e(f"s_lshl_b32 s{S_CF}, s{S_H}, 7\ns_add_u32 s{S_CF}, s{S_CF}, {FL_CFLAG}\ns_mov_b32 s{S_SC}, 0x3e0293ee")
    e(f"v_lshlrev_b32 v24, 2, v0\ns_mov_b32 s{S_OFF}, {FL_CONV}\ns_mov_b32 s{S_OFF2}, {FL_CONV+256}\ns_lshl_b32 s{S_CNT}, s{S_H}, 8")
    e(f"v_mov_b32 v26, 0\nv_mov_b32 v31, 0\ns_mov_b32 s{S_CHN}, 0")
    e(f"s_mov_b32 s{S_PREV}, -1")
    KF, VF, XF, ACC, QF, KM, VM, SS_, PB, OA, TT = 32, 64, 80, 112, 232, 144, 248, 216, 180, 188, 224
    KR_, F1, F2, F3, W_RDY = 28, 25, 30, 31, 0x15000
    X0, X1, M, MX = SS_, SS_ + 4, 168, 27
    RB, NRF, FA = 80, 32, 208
    S_RT, S_LM_, S_SH_, S_SEL_ = 64, 94, 96, 97
    def final(half=False, pre=False):
        cd = e.newlabel("CVD")
        e(f"s_cmp_eq_u32 s{S_CHN}, 1\ns_cbranch_scc1 {cd}\ns_mov_b32 s{S_CHN}, 1\ns_mov_b32 s{S_OFF}, {FL_CONV}\ns_mov_b32 s{S_OFF2}, {FL_CONV+256}")
        poll_all(e, "CVW", 24, f"s{S_OFF}", 1, TT + 2, 32, False)
        poll_all(e, "CVW", 24, f"s{S_OFF2}", 1, TT + 2, 32, True)
        e.label(cd)
        e(f"s_lshl_b32 s{S_TMP}, s{S_PREV}, 6\ns_add_u32 s{S_TMP}, s{S_TMP}, {WS_Y2}\ns_add_u32 s{S_I}, s{S_TMP}, 4096")
        e(f"buffer_load_ushort v{TT+4}, v14, {WS}, s{S_TMP} offen sc1\nbuffer_load_ushort v{TT+5}, v14, {WS}, s{S_I} offen sc1")
        e(f"s_lshl_b32 s{S_CNT}, s{S_PREV}, 15\nbuffer_load_dword v{TT+6}, v15, s[{R_X}:{R_X+3}], s{S_CNT} offen")
        e(f"s_lshl_b32 s{S_OFF2}, s{S_PREV}, 12\ns_add_u32 s{S_OFF2}, s{S_OFF2}, {FL_O2}")
        od = half and cfg.get("odp")
        if od:
            S_FB = 98
            e(f"s_sub_u32 s{S_FB}, s{S_PREV}, 47\ns_lshl_b32 s{S_FB}, s{S_FB}, 18\ns_lshl_b32 s{S_TMP}, s{S_W}, 16\ns_add_u32 s{S_FB}, s{S_FB}, s{S_TMP}")
            e(f"s_lshl_b32 s{S_TMP}, s{S_RT}, 12\ns_add_u32 s{S_FB}, s{S_FB}, s{S_TMP}\ns_add_u32 s{S_FB}, s{S_FB}, {WS_O}\ns_add_u32 s{S_OFF}, s{S_FB}, {7 * 8192}")
            e(f"s_lshl_b32 s{S_OFF2}, s{S_PREV}, 7\ns_add_u32 s{S_OFF2}, s{S_OFF2}, {WS_G}")
            e.label("OD_0")
            e(f"buffer_load_dword v{RB}, v{V_L16}, {WS}, s{S_OFF} offen offset:3072 sc1\nbuffer_load_dword v{TT+7}, v21, {WS}, s{S_OFF2} offen sc1")
            e(f"s_add_u32 s{S_SPIN}, s{S_SPIN}, 1\ns_waitcnt vmcnt(0)\nv_max_u32 v{RB}, v{RB}, v{TT+7}\nv_cmp_eq_u32 vcc, -1, v{RB}\ns_cbranch_vccz OD_1")
            e(f"s_sleep {cfg.get('osleep', 2)}\ns_cmp_lt_u32 s{S_SPIN}, {SPIN_MAX}\ns_cbranch_scc1 OD_0")
            e.label("OD_1")
            def ldh(hh):
                e(f"s_add_u32 s{S_OFF}, s{S_FB}, {hh * 8192}")
                for js in range(4): e(f"buffer_load_dwordx4 {vr(RB + 16 * hh + 4 * js, 4)}, v{V_L16}, {WS}, s{S_OFF} offen offset:{js * 1024} sc1")
            for hh in range(8): ldh(hh)
            ool = []
            for hh in range(8):
                r = RB + 16 * hh
                e(f"s_waitcnt vmcnt({4 * (7 - hh)})")
                e.label(f"OD_C{hh}")
                e(f"v_max3_u32 v{TT}, v{r}, v{r+1}, v{r+2}")
                for k in range(3, 15, 2): e(f"v_max3_u32 v{TT}, v{TT}, v{r+k}, v{r+k+1}")
                e(f"v_max_u32 v{TT}, v{TT}, v{r+15}\nv_cmp_eq_u32 vcc, -1, v{TT}\ns_cbranch_vccnz OD_R{hh}")
                e.label(f"OD_K{hh}")
                for js in range(4): e(mfd(FA, 128 + (hh * 4 + js) * 4, r + 4 * js, "0" if hh + js == 0 else FA, "a", "v"))
            e("s_branch OD_E")
            for hh in range(8):
                e.label(f"OD_R{hh}")
                e(f"s_add_u32 s{S_SPIN}, s{S_SPIN}, 1\ns_cmp_gt_u32 s{S_SPIN}, {SPIN_MAX}\ns_cbranch_scc1 OD_K{hh}")
                ldh(hh)
                e(f"s_waitcnt vmcnt(0)\ns_branch OD_C{hh}")
            e.label("OD_E")
        if not od:
            WST(e)
            poll_all(e, "OW", 20, f"s{S_OFF2}", 1, F1, cfg.get("osleep", 4), True, pre)
            WST(e)
            e(f"s_lshl_b32 s{S_TMP}, s{S_PREV}, 7\ns_add_u32 s{S_TMP}, s{S_TMP}, {WS_G}\nbuffer_load_dword v{TT+7}, v21, {WS}, s{S_TMP} offen sc1")
        if not od:
            e(f"s_mul_i32 s{S_OFF}, s{S_PREV}, 37\ns_lshr_b32 s{S_OFF}, s{S_OFF}, 9\ns_mul_i32 s{S_OFF}, s{S_OFF}, 14\ns_sub_u32 s{S_OFF}, s{S_PREV}, s{S_OFF}\ns_lshl_b32 s{S_OFF}, s{S_OFF}, 18\ns_lshl_b32 s{S_TMP}, s{S_W}, 16\ns_add_u32 s{S_OFF}, s{S_OFF}, s{S_TMP}\ns_add_u32 s{S_OFF}, s{S_OFF}, {WS_O}")
            NL = 32 if half else 64
            NR = NRF if half else cfg.get('nr', 32)
            if half: e(f"s_lshl_b32 s{S_TMP}, s{S_RT}, 12\ns_add_u32 s{S_OFF}, s{S_OFF}, s{S_TMP}")
            def ld(n):
                if n % 4 == 0 and n > 0: e(f"s_add_u32 s{S_OFF}, s{S_OFF}, {8192 if half else 4096}")
                e(f"buffer_load_dwordx4 {vr(RB + 4 * (n % NR), 4)}, v{V_L16}, {WS}, s{S_OFF} offen offset:{(n % 4) * 1024} sc1")
            if half: e(f"s_mov_b64 exec, s[{S_LM_}:{S_LM_+1}]")
            for n in range(NR): ld(n)
            if half: e("s_mov_b64 exec, -1")
            for n in range(NL):
                hh, rt, js = (n // 4, 0, n % 4) if half else (n // 8, (n // 4) % 2, n % 4)
                e(f"s_waitcnt vmcnt({min(NL - 1 - n, NR - 1)})")
                a = FA + 4 * rt
                e(mfd(a, 128 + (hh * 4 + js) * 4, RB + 4 * (n % NR), "0" if n == 4 * rt else a, "a", "v"))
                if n + NR < NL: ld(n + NR)
        e(f"s_lshl_b32 s{S_TMP}, s{S_W}, 11\ns_add_u32 s{S_TMP}, s{S_TMP}, {W_RED}")
        if half: e(f"s_lshl_b32 s{S_I}, s{S_RT}, 10\ns_add_u32 s{S_TMP}, s{S_TMP}, s{S_I}")
        e(f"v_add_u32 v{V_T}, s{S_TMP}, v{V_L16}\ns_nop 5")
        e(f"ds_write_b128 v{V_T}, {vr(FA,4)}")
        if not half: e(f"ds_write_b128 v{V_T}, {vr(FA+4,4)} offset:1024")
        e("s_waitcnt lgkmcnt(0)\ns_barrier")
        B0 = RB
        for w in range(4): e(f"ds_read_b64 {vr(B0+2*w,2)}, v13 offset:{w*2048}")
        y0, y1, q, g = TT + 4, TT + 5, TT + 6, TT + 7
        e(f"v_lshlrev_b32 v{y0}, 16, v{y0}\nv_lshlrev_b32 v{y1}, 16, v{y1}\nv_lshlrev_b32 v{B0+8}, 16, v{q}\nv_and_b32 v{B0+9}, 0xffff0000, v{q}")
        e(f"v_mul_f32 v{y0}, v{y0}, v{B0+8}\nv_mul_f32 v{y1}, v{y1}, v{B0+9}")
        rb_pair(e, B0 + 10, y0, y1)
        e(f"v_mul_f32 v{y0}, v{y0}, v{g}\nv_mul_f32 v{y1}, v{y1}, v{g}")
        rb_pair(e, B0 + 10, y0, y1)
        e(f"v_sub_f32 v{g}, 1.0, v{g}\nv_cvt_pk_bf16_f32 v{g}, v{g}, v{g}\nv_lshlrev_b32 v{g}, 16, v{g}\ns_waitcnt lgkmcnt(0)")
        e(f"v_add_f32 v{B0}, v{B0}, v{B0+2}\nv_add_f32 v{B0+1}, v{B0+1}, v{B0+3}\nv_add_f32 v{B0+4}, v{B0+4}, v{B0+6}\nv_add_f32 v{B0+5}, v{B0+5}, v{B0+7}")
        e(f"v_add_f32 v{B0}, v{B0}, v{B0+4}\nv_add_f32 v{B0+1}, v{B0+1}, v{B0+5}")
        rb_pair(e, B0 + 10, B0, B0 + 1)
        e(f"v_mul_f32 v{B0}, v{B0}, v{g}\nv_mul_f32 v{B0+1}, v{B0+1}, v{g}")
        rb_pair(e, B0 + 10, B0, B0 + 1)
        e(f"v_add_f32 v{B0}, v{B0}, v{y0}\nv_add_f32 v{B0+1}, v{B0+1}, v{y1}\nv_cvt_pk_bf16_f32 v{B0}, v{B0}, v{B0+1}")
        if half: e(f"s_lshr_b32 s{S_TMP}, s{S_W}, s{S_SH_}\ns_cmp_eq_u32 s{S_TMP}, s{S_SEL_}\ns_cselect_b64 exec, -1, 0")
        e(f"buffer_store_dword v{B0}, v15, s[{R_O}:{R_O+3}], s{S_CNT} offen {cfg.get('outst', '')}")
        if half: e("s_mov_b64 exec, -1")
    e.label("PB_LOOP")
    e(f"s_lshl_b32 s{S_CNT}, s{S_H}, 6\ns_add_u32 s{S_CNT}, s{S_CNT}, s{S_SEG}\ns_lshl_b32 s{S_CNT}, s{S_CNT}, 2")
    poll_all(e, "KVW", 26, f"s{S_CNT}", 1, F3, 16, False, True)
    e("s_waitcnt vmcnt(0)\ns_barrier")
    WST(e)
    e(f"s_add_u32 s{S_CNT}, s{S_CNT}, 28\ns_sub_u32 exec_lo, 0, s{S_W0M}\ns_mov_b32 exec_hi, exec_lo")
    e(f"buffer_load_dword v{F2}, off, {WS}, s{S_CF} sc1\nbuffer_load_dword v{F3}, off, {WS}, s{S_CNT} sc1\ns_mov_b64 exec, -1")
    e(f"s_lshl_b32 s{S_OFF}, s{S_SEG}, 19\ns_lshl_b32 s{S_TMP}, s{S_H}, 14\ns_add_u32 s{S_OFF}, s{S_OFF}, s{S_TMP}\ns_add_u32 s{S_OFF}, s{S_OFF}, {WS_KV}")
    e(f"s_add_u32 s{S_OFF2}, s{S_OFF}, 4096\ns_lshl_b32 s{S_TMP}, s63, 12\ns_add_u32 s{S_CNT}, s{S_OFF}, s{S_TMP}\ns_add_u32 s{S_CNT}, s{S_CNT}, 8192")
    lds_ = []
    for js in range(4):
        lds_.append(f"buffer_load_dwordx4 {vr(KF+4*js,4)}, v{V_L16}, {WS}, s{S_OFF} offen offset:{js*1024} sc1")
        lds_.append(f"buffer_load_dwordx4 {vr(KF+16+4*js,4)}, v{V_L16}, {WS}, s{S_OFF2} offen offset:{js*1024} sc1")
        lds_.append(f"buffer_load_dwordx4 {vr(VF+4*js,4)}, v{V_L16}, {WS}, s{S_CNT} offen offset:{js*1024} sc1")
    seq = {}
    def rd(n):
        s, rt = n // 2, n % 2
        seq[n] = e(f"ds_read_b128 {vr(XF + 4 * (n % 8), 4)}, v{V_XRD} offset:{(rt * 16 + s) * 1024}")
    sg = e(f"ds_read_b128 {vr(TT,4)}, v12")
    for n in range(6): rd(n)
    for n in range(32):
        s, rt = n // 2, n % 2
        e.waitlg(seq[n])
        x = XF + 4 * (n % 8)
        for t in range(2):
            a = ACC + 4 * (t * 2 + rt)
            e(mfd(a, (t * 16 + s) * 4, x, "0" if s == 0 else a, "a", "v"))
            if t == 0 and n + 6 < 32: rd(n + 6)
        if n % 2 == 1 and n // 2 < 12: e(lds_[n // 2])
        if n == 31:
            e(f"s_lshl_b32 s{S_TMP}, s{S_PREV}, 12\ns_add_u32 s{S_TMP}, s{S_TMP}, {FL_O2}\ns_sub_u32 exec_lo, 0, s{S_W0M}\ns_mov_b32 exec_hi, exec_lo")
            e(f"buffer_load_dword v{F1}, v20, {WS}, s{S_TMP} offen sc1\ns_mov_b64 exec, -1")
    for i in range(4):
        e(f"v_lshlrev_b32 v{TT+4}, 16, v{TT+i}\nv_and_b32 v{TT+5}, 0xffff0000, v{TT+i}\nv_lshlrev_b32 v{TT+6}, 16, v{GW+i}\nv_and_b32 v{TT+7}, 0xffff0000, v{GW+i}")
        e(f"v_mul_f32 v{TT+4}, v{TT+4}, v{TT+6}\nv_mul_f32 v{TT+5}, v{TT+5}, v{TT+7}")
        rb_pair(e, TT + 6, TT + 4, TT + 5)
        e(f"v_add_f32 v{TT+i}, v{TT+4}, v{TT+5}")
    e(f"v_add_f32 v{TT}, v{TT}, v{TT+1}\nv_add_f32 v{TT+2}, v{TT+2}, v{TT+3}\nv_add_f32 v{TT}, v{TT}, v{TT+2}")
    for rt in range(2):
        o = QF + 4 * rt
        for t in range(2):
            a = ACC + 4 * (t * 2 + rt)
            e(f"v_cvt_pk_bf16_f32 v{o+2*t}, v{a}, v{a+1}\nv_cvt_pk_bf16_f32 v{o+2*t+1}, v{a+2}, v{a+3}")
    e(f"s_lshl_b32 s{S_TMP}, s{S_W}, 10\ns_add_u32 s{S_TMP}, s{S_TMP}, {W_QX}\nv_add_u32 v{V_T}, s{S_TMP}, v{V_L16}")
    e(f"ds_write_b128 v{V_T}, {vr(QF,4)}\nds_write_b128 v{V_T}, {vr(QF+4,4)} offset:4096")
    for ror in (1, 2, 4, 8):
        e(f"s_nop 1\nv_add_f32_dpp v{TT}, v{TT}, v{TT} row_ror:{ror} row_mask:0xf bank_mask:0xf")
    for op in ("v_permlane16_swap_b32", "v_permlane32_swap_b32"):
        e(f"v_mov_b32 v{TT+1}, v{TT}\ns_nop 1\n{op} v{TT}, v{TT+1}\nv_add_f32 v{TT}, v{TT}, v{TT+1}")
    e(f"v_cvt_pk_bf16_f32 v{TT}, v{TT}, v{TT}\nv_lshlrev_b32 v{TT}, 16, v{TT}\nv_mul_f32 v{TT}, 0xbfb8aa3b, v{TT}\nv_exp_f32 v{TT}, v{TT}\ns_nop 0")
    e(f"v_add_f32 v{TT}, 1.0, v{TT}\nv_rcp_f32 v{TT}, v{TT}\ns_nop 0\nv_cvt_pk_bf16_f32 v{TT}, v{TT}, v{TT}\nv_lshlrev_b32 v{TT}, 16, v{TT}")
    e(f"s_lshl_b32 s{S_TMP}, s{S_SEG}, 5\ns_add_u32 s{S_TMP}, s{S_TMP}, s{S_H}\ns_lshl_b32 s{S_TMP}, s{S_TMP}, 2\ns_add_u32 s{S_TMP}, s{S_TMP}, {WS_G}")
    e(f"v_mov_b32 v{V_T2}, 0\ns_mov_b64 exec, s[{S_W0M}:{S_W0M+1}]\nbuffer_store_dword v{TT}, v{V_T2}, {WS}, s{S_TMP} offen sc1\ns_mov_b64 exec, -1")
    if cfg.get("wtouch"):
        e(f"s_add_u32 s{S_TMP}, s{S_OFF}, {7 << 19}\ns_lshl_b32 s{S_TMP2}, s{S_SEG}, 17\ns_add_u32 s{S_TMP2}, s{S_TMP2}, {WS_KVM + (7 << 17)}\ns_mov_b64 exec, s[{S_W0M}:{S_W0M+1}]")
        e(f"buffer_load_dword v252, off, {WS}, s{S_TMP} sc1\nbuffer_load_dword v253, off, {WS}, s{S_TMP2} sc1\ns_mov_b64 exec, -1")
    e(f"s_waitcnt vmcnt(14)\nv_mov_b32 v{V_T}, {W_RDY}\ns_mov_b64 exec, s[{S_W0M}:{S_W0M+1}]\nds_write_b32 v{V_T}, v{F2}\ns_mov_b64 exec, -1")
    e(f"s_waitcnt lgkmcnt(0)\ns_barrier\nds_read_b32 v{F2}, v{V_T}")
    e(f"s_add_u32 s{S_XG}, s{S_XG}, {7 << 15}\ns_xor_b32 s{S_XL}, s{S_XL}, 0x8000")
    e(f"s_lshl_b32 s{S_TMP}, s62, 12\ns_add_u32 s{S_TMP}, s{S_TMP}, {W_QX}\nv_add_u32 v{V_T}, s{S_TMP}, v{V_L16}")
    for js in range(4): e(f"ds_read_b128 {vr(QF+4*js,4)}, v{V_T} offset:{js*1024}")
    e(f"v_xor_b32 v{V_XRD}, 0x8000, v{V_XRD}\nv_xor_b32 v12, 0x8000, v12")
    e(f"s_waitcnt vmcnt({3 if cfg.get('wtouch') else 1}) lgkmcnt(0)")
    for js in range(4):
        c = lambda r: "0" if js == 0 else r
        e(mfd(X0, KF + 4 * js, QF + 4 * js, c(X0))); e(mfd(X1, KF + 16 + 4 * js, QF + 4 * js, c(X1)))
    for g in x_dma(e):
        for s in g: e(s)
    e(f"v_mov_b32 v{TT}, 0xf149f2ca")
    for kt in range(2):
        for i in range(4):
            e(f"v_cmp_le_i32 vcc, {i}, v{8+kt}\ns_nop 1\nv_cndmask_b32 v{SS_+4*kt+i}, v{TT}, v{SS_+4*kt+i}, vcc")
    e(f"v_max3_f32 v{MX}, v{X0}, v{X0+1}, v{X0+2}\nv_max3_f32 v{TT}, v{X1}, v{X1+1}, v{X1+2}\nv_max3_f32 v{MX}, v{MX}, v{X0+3}, v{X1+3}\nv_max_f32 v{MX}, v{MX}, v{TT}")
    S_KO = 92
    e(f"s_lshl_b32 s{S_KO}, s{S_SEG}, 17\ns_lshl_b32 s{S_TMP}, s{S_H}, 12\ns_add_u32 s{S_KO}, s{S_KO}, s{S_TMP}\ns_add_u32 s{S_KO}, s{S_KO}, {WS_KVM}")
    def kvm_ld():
        e(f"buffer_load_dwordx2 {vr(KR_,2)}, v23, {WS}, s{S_KO} offen sc1")
        for i in range(2):
            for b in range(2): e(f"buffer_load_dwordx2 {vr(VM+4*i+2*b,2)}, v11, {WS}, s{S_KO} offen offset:{i*512 + b*128} sc1")
    e(f"v_readfirstlane_b32 s{S_KO+1}, v{F2}\ns_cmp_gt_u32 s{S_KO+1}, s{S_SEG}\ns_cbranch_scc0 PB_NOEARLY")
    kvm_ld()
    e.label("PB_NOEARLY")
    e(f"s_cmp_eq_u32 s{S_PREV}, -1\ns_cbranch_scc0 PB_PREV\ns_waitcnt vmcnt(0)\ns_branch PB_NOPREV")
    e.label("PB_PREV")
    final(False, True)
    e.label("PB_NOPREV")
    e(f"s_mul_i32 s{S_OFF}, s{S_SEG}, 37\ns_lshr_b32 s{S_OFF}, s{S_OFF}, 9\ns_mul_i32 s{S_OFF}, s{S_OFF}, 14\ns_sub_u32 s{S_OFF}, s{S_SEG}, s{S_OFF}" + (f"\ns_sub_u32 s{S_TMP}, s{S_SEG}, 47\ns_cmp_ge_u32 s{S_SEG}, 61\ns_cselect_b32 s{S_OFF}, s{S_TMP}, s{S_OFF}" if cfg.get("odp") else "") + f"\ns_lshl_b32 s{S_OFF}, s{S_OFF}, 18\ns_lshl_b32 s{S_TMP}, s{S_H}, 13\ns_add_u32 s{S_OFF}, s{S_OFF}, s{S_TMP}")
    WST(e)
    e(f"s_cmp_gt_u32 s{S_KO+1}, s{S_SEG}\ns_cbranch_scc1 PB_HAVE")
    e(f"s_cmp_ge_u32 s{S_SEG}, {DP_SEG}\ns_cbranch_scc1 PB_DL")
    e(f"v_mov_b32 v{TT+1}, s{S_CF}\ns_add_u32 s{S_I}, s{S_SEG}, 1")
    poll_all(e, "CHW", TT + 1, "0", f"s{S_I}", TT + 2, cfg.get("csleep", 4))
    kvm_ld()
    e("s_waitcnt vmcnt(0)\ns_branch PB_HAVE")
    e.label("PB_DL")
    kvm_ld()
    e(f"s_add_u32 s{S_SPIN}, s{S_SPIN}, 1\ns_waitcnt vmcnt(0)")
    e(f"v_max3_u32 v{TT}, v{KR_}, v{KR_+1}, v{VM}")
    for i in range(1, 8, 2): e(f"v_max3_u32 v{TT}, v{TT}, v{VM+i}, v{VM+min(i+1,7)}")
    e(f"v_cmp_eq_u32 vcc, -1, v{TT}\ns_cbranch_vccz PB_HAVE\ns_sleep {cfg.get('dsleep', 6)}\ns_cmp_lt_u32 s{S_SPIN}, {SPIN_MAX}\ns_cbranch_scc1 PB_DL")
    e.label("PB_HAVE")
    WST(e)
    e(f"ds_write2_b32 v22, v{KR_}, v{KR_+1} offset0:0 offset1:64")
    for i in range(2): e(f"v_swap_b32 v{VM+4*i+1}, v{VM+4*i+2}")
    e(f"v_mov_b32 v{TT}, 0xf149f2ca\ns_waitcnt lgkmcnt(0)\ns_barrier")
    for js in range(4):
        for t in range(2): e(f"ds_read_b64_tr_b16 {vr(KM+4*js+2*t,2)}, v10 offset:{js*512 + t*256}")
    for js in range(4):
        e(f"s_waitcnt lgkmcnt({6-2*js})")
        e(mfd(M, KM + 4 * js, QF + 4 * js, "0" if js == 0 else M))
    e(f"s_add_u32 s{S_OFF}, s{S_OFF}, {WS_O}\ns_lshl_b32 s{S_TMP}, s62, 12\ns_add_u32 s{S_OFF}, s{S_OFF}, s{S_TMP}\ns_lshl_b32 s{S_TMP}, s63, 11\ns_add_u32 s{S_OFF}, s{S_OFF}, s{S_TMP}")
    e(f"s_lshl_b32 s{S_OFF2}, s{S_SEG}, 12\ns_add_u32 s{S_OFF2}, s{S_OFF2}, {FL_O2}\ns_lshl_b32 s{S_TMP}, s{S_H}, 7\ns_add_u32 s{S_CNT}, s{S_OFF2}, s{S_TMP}")
    e("s_mov_b32 exec_lo, 0")
    for i in range(4): e(f"v_mov_b32 v{M+i}, v{TT}")
    e("s_mov_b32 exec_lo, -1")
    mx, t2 = MX, TT + 2
    e(f"v_max3_f32 v{mx}, v{mx}, v{M}, v{M+1}\nv_max3_f32 v{mx}, v{mx}, v{M+2}, v{M+3}")
    for op in ("v_permlane16_swap_b32", "v_permlane32_swap_b32"):
        e(f"v_mov_b32 v{t2}, v{mx}\ns_nop 1\n{op} v{mx}, v{t2}\nv_max_f32 v{mx}, v{mx}, v{t2}")
    e(f"v_mul_f32 v{mx}, s{S_SC}, v{mx}")
    EE = [SS_ + i for i in range(8)] + [M + i for i in range(4)]
    for x in EE: e(f"v_fma_f32 v{x}, v{x}, s{S_SC}, -v{mx}")
    for x in EE: e(f"v_exp_f32 v{x}, v{x}")
    e(f"s_nop 0\nv_add_f32 v{mx}, v{EE[0]}, v{EE[1]}")
    for x in EE[2:]: e(f"v_add_f32 v{mx}, v{mx}, v{x}")
    for op in ("v_permlane16_swap_b32", "v_permlane32_swap_b32"):
        e(f"v_mov_b32 v{t2}, v{mx}\ns_nop 1\n{op} v{mx}, v{t2}\nv_add_f32 v{mx}, v{mx}, v{t2}")
    e(f"v_rcp_f32 v{mx}, v{mx}\ns_nop 0")
    for x in EE: e(f"v_mul_f32 v{x}, v{x}, v{mx}")
    for i in range(4): e(f"v_cvt_pk_bf16_f32 v{PB+i}, v{SS_+2*i}, v{SS_+2*i+1}")
    e(f"v_cvt_pk_bf16_f32 v{PB+4}, v{M}, v{M+1}\nv_cvt_pk_bf16_f32 v{PB+5}, v{M+2}, v{M+3}\ns_nop 0")
    for T in range(4): e(mfd(OA + 4 * T, VF + 4 * T, PB, "0"))
    for T in range(4):
        e(f"v_mfma_f32_16x16x16_bf16 {vr(OA+4*T,4)}, {vr(VM+2*T,2)}, {vr(PB+4,2)}, {vr(OA+4*T,4)}")
    e("s_nop 4")
    for j in range(2):
        for t in range(2):
            a = OA + 4 * (2 * j + t)
            e(f"v_cvt_pk_bf16_f32 v{QF+4*j+2*t}, v{a}, v{a+1}\nv_cvt_pk_bf16_f32 v{QF+4*j+2*t+1}, v{a+2}, v{a+3}")
    def ostore(bits):
        for j in range(2): e(f"buffer_store_dwordx4 {vr(QF+4*j,4)}, v{V_L16}, {WS}, s{S_OFF} offen offset:{j*1024}{bits}")
        if cfg.get("odp"): e(f"s_cmp_ge_u32 s{S_SEG}, 61\ns_cbranch_scc1 PB_ODONE")
        e("s_waitcnt vmcnt(0)\ns_barrier")
        e(f"v_mov_b32 v{V_T}, 1\ns_mov_b64 exec, s[{S_W0M}:{S_W0M+1}]\nbuffer_store_dword v{V_T}, off, {WS}, s{S_CNT}{bits}\ns_mov_b64 exec, -1")
    if cfg.get("ofast"):
        e(f"s_cmp_ge_u32 s{S_MODE}, 32\ns_cbranch_scc0 PB_OSLOW")
        ostore("")
        e("s_branch PB_ODONE")
        e.label("PB_OSLOW")
    ostore(" sc1")
    e.label("PB_ODONE")
    e(f"s_mov_b32 s{S_PREV}, s{S_SEG}\ns_add_u32 s{S_SEG}, s{S_SEG}, 7\ns_cmp_lt_u32 s{S_SEG}, 64\ns_cbranch_scc1 PB_LOOP")
    if cfg.get("split"):
        if cfg["split"] == 2:
            e(f"s_cmp_ge_u32 s{S_PREV}, 62\ns_cbranch_scc1 PB_PART")
            final()
            e(f"s_cmp_eq_u32 s{S_PREV}, 61\ns_cbranch_scc1 PB_END\ns_barrier")
            e.label("PB_PART")
            e(f"s_sub_u32 s{S_SEL_}, s{S_PREV}, 56\ns_cmp_ge_u32 s{S_PREV}, 62\ns_cselect_b32 s{S_SEL_}, 0, s{S_SEL_}\ns_cmp_eq_u32 s{S_PREV}, 60\ns_cselect_b32 s{S_SEL_}, 1, s{S_SEL_}")
            e(f"s_and_b32 s{S_TMP}, s{S_PREV}, 61\ns_cmp_eq_u32 s{S_TMP}, 60\ns_cselect_b32 s{S_PREV}, 62, 63\ns_cselect_b32 s{S_SH_}, 1, 0")
            e(f"s_xor_b32 s{S_TMP}, s{S_SH_}, 1\ns_lshr_b32 s{S_RT}, s{S_SEL_}, s{S_TMP}")
            e(f"s_and_b32 s{S_TMP}, s{S_SEL_}, 1\ns_lshl_b32 s{S_TMP}, s{S_TMP}, 3\ns_lshl_b32 s{S_LM_}, 0x00ff00ff, s{S_TMP}\ns_cmp_eq_u32 s{S_SH_}, 1\ns_cselect_b32 s{S_LM_}, -1, s{S_LM_}\ns_mov_b32 s{S_LM_+1}, s{S_LM_}")
        else:
            e(f"s_mov_b64 s[{S_LM_}:{S_LM_+1}], -1\ns_mov_b32 s{S_SH_}, 1\ns_mov_b32 s{S_SEL_}, 0")
            e(f"s_mov_b32 s{S_RT}, 0\ns_cmp_ge_u32 s{S_PREV}, 61\ns_cbranch_scc1 PB_HALF")
            final()
            e(f"s_cmp_eq_u32 s{S_PREV}, 60\ns_cbranch_scc1 PB_END\ns_sub_u32 s{S_PREV}, 120, s{S_PREV}\ns_mov_b32 s{S_RT}, 1\ns_mov_b32 s{S_SEL_}, 1\ns_barrier")
        e.label("PB_HALF")
        final(True)
        e.label("PB_END")
    else:
        final()

def worker(e, cfg):
    e(f"s_sub_u32 s{S_G}, s{S_GRP}, 1\ns_mov_b32 s{S_CNT}, 0")
    e("v_mov_b32 v15, v2")
    lane_consts(e, f"v{V_C}", f"v{V_G}")
    e(f"v_lshlrev_b32 v{V_L16}, 4, v0\nv_mov_b32 v{V_XRD}, v{V_L16}")
    e(f"s_lshr_b32 s{S_TMP}, s{S_W}, 1\ns_lshl_b32 s{S_TMP}, s{S_TMP}, 14\ns_and_b32 s{S_TMP2}, s{S_W}, 1\ns_lshl_b32 s{S_TMP2}, s{S_TMP2}, 9\ns_add_u32 s{S_TMP}, s{S_TMP}, s{S_TMP2}")
    e(f"v_lshlrev_b32 v{V_XSRC}, 10, v{V_C}\nv_lshl_add_u32 v{V_XSRC}, v{V_G}, 4, v{V_XSRC}\nv_add_u32 v{V_XSRC}, s{S_TMP}, v{V_XSRC}")
    srd(e, R_X, S_Q, 0x200000)
    _cfg.update(cfg)
    if cfg.get("pref") in (2, 4) and not cfg.get("estart"):
        pc = cfg.get("prefc")
        if pc: e(f"s_cmp_lt_u32 s{S_G}, 3\ns_cbranch_scc1 PF_E")
        e(f"s_lshl_b32 s{S_TMP2}, s{S_G}, 5\ns_add_u32 s{S_TMP2}, s{S_TMP2}, s{S_H}\nv_lshlrev_b32 v16, 6, v15")
        if pc: e(f"s_sub_u32 s{S_TMP2}, s{S_TMP2}, 96")
        if cfg.get("p128") == 2:
            e(f"s_cmp_lt_u32 s{S_W}, 2\ns_cbranch_scc0 PF_E")
            e.label("PF_L2")
            e(f"s_lshl_b32 s{S_TMP}, s{S_TMP2}, 14\nv_lshl_add_u32 v17, v15, 7, s{S_TMP}")
            for i, p in enumerate([S_WQ, S_WK, S_WV, S_WO]): e(f"global_load_dword v{248 + i}, v17, s[{p}:{p+1}]")
            e(f"s_add_u32 s{S_TMP2}, s{S_TMP2}, 224\ns_cmp_lt_u32 s{S_TMP2}, 256\ns_cbranch_scc1 PF_L2")
        elif cfg.get("p128"):
            e(f"s_lshl_b32 s{S_TMP}, s{S_TMP2}, 15\nv_lshl_add_u32 v17, v15, 7, s{S_TMP}")
            for i, p in enumerate([S_WQ, S_WK, S_WV, S_WO]): e(f"global_load_dword v{248 + i}, v17, s[{p}:{p+1}]")
        elif cfg.get("pford"):
            e(f"s_lshl_b32 s{S_TMP}, s{S_TMP2}, 14\nv_add_u32 v17, s{S_TMP}, v16\nv_add_u32 v18, 0x200000, v17")
            seqs = {1: [(S_WQ, 18), (S_WQ, 17), (S_WK, 17), (S_WK, 18), (S_WV, 17), (S_WV, 18), (S_WO, 17), (S_WO, 18)],
                    2: [(S_WK, 17), (S_WK, 18), (S_WV, 17), (S_WV, 18), (S_WO, 17), (S_WO, 18), (S_WQ, 17)],
                    3: [(S_WV, 17), (S_WV, 18), (S_WO, 17), (S_WO, 18), (S_WQ, 17)]}[cfg["pford"]]
            for i, (p, v) in enumerate(seqs): e(f"global_load_dword v{248 + i % 4}, v{v}, s[{p}:{p+1}]")
        else:
            e.label("PF_L")
            e(f"s_lshl_b32 s{S_TMP}, s{S_TMP2}, 14\nv_add_u32 v17, s{S_TMP}, v16")
            for i, p in enumerate([S_WQ, S_WK, S_WV, S_WO][:cfg["pref"]] if cfg["pref"] == 4 else [S_WQ, S_WO]):
                e(f"global_load_dword v{248+i}, v17, s[{p}:{p+1}]")
            e(f"s_add_u32 s{S_TMP2}, s{S_TMP2}, {128 if pc else 224}\ns_cmp_lt_u32 s{S_TMP2}, 256\ns_cbranch_scc1 PF_L")
        e.label("PF_E")
    if cfg.get("wstamp"): e("s_mov_b32 s101, 0")
    WST(e)
    if cfg.get("hold") is not None:
        e(f"s_cmp_lt_u32 s{S_G}, {cfg['hold']}\ns_cbranch_scc{0 if cfg.get('holdinv') else 1} HOLD_END")
        e.label("HOLD")
        e(f"s_sleep 32\ns_memrealtime s[70:71]\ns_waitcnt lgkmcnt(0)\ns_sub_u32 s70, s70, s3\ns_cmp_lt_u32 s70, {cfg['holdus']*100}\ns_cbranch_scc1 HOLD")
        e.label("HOLD_END")
    if not cfg.get("noconv"): conv(e, cfg)
    WST(e)
    if cfg.get("holda"):
        e(f"s_cmp_lt_u32 s{S_G}, 3\ns_cbranch_scc1 HOLDA_END")
        e.label("HOLDA")
        e(f"s_sleep 32\ns_memrealtime s[70:71]\ns_waitcnt lgkmcnt(0)\ns_sub_u32 s70, s70, s3\ns_cmp_lt_u32 s70, {cfg['holda']*100}\ns_cbranch_scc1 HOLDA")
        e.label("HOLDA_END")
    if cfg.get("lwait"):
        e(f"s_sub_u32 s{S_TMP}, s{S_G}, 1\ns_cmp_lt_u32 s{S_TMP}, 2\ns_cbranch_scc0 LW_E\ns_cmp_eq_u32 s{S_W}, 0\ns_cbranch_scc0 LW_B\nv_mov_b32 v24, {DBG_PACE}")
        e.label("LW_L")
        e(f"s_sleep 32\nglobal_load_dword v25, v24, s[{S_DBG}:{S_DBG+1}] sc1\ns_add_u32 s{S_SPIN}, s{S_SPIN}, 1\ns_waitcnt vmcnt(0)\nv_readfirstlane_b32 s{S_TMP}, v25")
        e(f"s_cmp_ge_u32 s{S_TMP}, {cfg.get('lcnt', 24)}\ns_cbranch_scc1 LW_B\ns_cmp_lt_u32 s{S_SPIN}, {SPIN_MAX}\ns_cbranch_scc1 LW_L")
        e.label("LW_B")
        e("s_barrier")
        e.label("LW_E")
    wload_addr(e)
    phaseA(e, cfg)
    WST(e)
    if not cfg.get("nob"): phaseB(e, cfg)
    WST(e)
    if cfg.get("dbgt"):
        e(f"s_memrealtime s[70:71]\ns_waitcnt lgkmcnt(0)\ns_sub_u32 s70, s70, s3\nv_mov_b32 v20, s70\nv_mov_b32 v21, 20\ns_mov_b64 exec, s[{S_W0M}:{S_W0M+1}]\nglobal_atomic_umax v21, v20, s[{S_DBG}:{S_DBG+1}]")
```

```python
from asmlib import Em, vr
from layout import *

S_Q, S_K, S_V, S_SH, S_SSMK, S_SSMD, S_MEM0 = 4, 6, 8, 10, 12, 14, 16
S_WQ, S_WK, S_WV, S_WO, S_GATE, S_OUT, S_DBG, S_WS = 20, 22, 24, 26, 28, 30, 32, 34
R_WS, R_T, R_T2 = 36, 40, 44
S_W, S_XCC, S_GRP, S_H = 48, 49, 50, 51
S_W0M = 76
NINIT = 28 + 32
SPIN_MAX = 1 << 18
DBGC = False

def srd(e, r, p, size):
    e(f"s_mov_b32 s{r}, s{p}\ns_mov_b32 s{r+1}, s{p+1}\ns_mov_b32 s{r+2}, {size}\ns_mov_b32 s{r+3}, 0x20000")

def lane_consts(e, c, g, lane="v0"):
    e(f"v_and_b32 {c}, 15, {lane}\nv_lshrrev_b32 {g}, 4, {lane}")

def emit_UB(e, dst, c, b, t):
    e(f"v_lshrrev_b32 {t}, 1, {b}")
    e(f"v_lshl_add_u32 {t}, {t}, 3, {c}")
    e(f"v_and_b32 {t}, 15, {t}")
    e(f"v_lshl_add_u32 {t}, {b}, 4, {t}")
    e(f"v_lshlrev_b32 {dst}, 3, {t}")

IDX, A_RSR, A_AGW, A_AGR, A_TR, A_TRK, A_UW, A_W, A_KX, A_VX, T0, A_RSW, SEL = 0, 1, 2, 3, 4, 5, 6, 7, 8, 9, 10, 11, 12
MEMA, QB, KXA, XT, ACA, ACB = 16, 48, 64, 88, 96, 104
WV0 = 112
S_STEP, S_RSW0, S_RSW1, S_RSR0, S_RSR1, S_AGW, S_AGRST, S_AGR0, S_AGR1 = 52, 53, 54, 55, 56, 57, 58, 59, 60
S_KVG, S_KVL, S_KVM, S_READY, S_SPIN, S_AGSLOT, S_TMP, S_TMP2 = 61, 62, 63, 64, 65, 66, 67, 68
S_M0, S_M1, S_M2 = 70, 72, 74
S_AGM = 72
S_ODD = 78
S_SC = 80
S_CF = 81
S_MODE = 82
S_TAG = 83
S_KVG2, S_FLV = 10, 11
S_XG0, S_XL0 = 96, 97
S_KFO = 58
S_JMP = 6
S_LATE = 7
S_MARK, S_MADR = 6, 7
S_RSR = [55, 56, 4, 5]
S_EM, S_LM, S_LB = 4, 6, 8
S_AGM2 = 74
S_ST = 84

import os
_o0 = [("o", (0, p)) for p in range(4)]; _o1 = [("o", (1, p)) for p in range(4)]
_q = [("q", J) for J in range(3, 8)]; _k = [("k", J) for J in range(8)]; _v = [("v", J) for J in range(8)]; _ql = [("q", 0), ("q", 1), ("q", 2)]
BLOCKS = {"0": _q + _k + _v + _o0 + _ql + _o1, "1": _o0 + _q + _k + _v + _ql + _o1, "2": _o0 + _q + _k + _v + _o1 + _ql,
          "3": _q + _o0 + _k + _v + _ql + _o1}[os.environ.get("BORD", "0")]
NREG = 25
def frag_reg(i):
    if i < 32: return ("a", 8 * i)
    return ("v", WV0 + 8 * (i - 32))
FRAG = {}
for n, (m, J) in enumerate(BLOCKS):
    for t in range(2):
        if n < NREG: FRAG[(m, J, t)] = frag_reg(2 * n + t)
        else: FRAG[(m, J, t)] = ("lds", (n - NREG) * 4096 + t * 2048)
def slot_addr(n):
    s = n % 10
    wl = {5: 0, 6: 1, 7: 2, 8: 3, 9: 4, 0: 5, 1: 6}
    return ("wl", wl[s]) if s in wl else ("ot", s - 2)

def wait_init(e, tag, vt):
    l = e.newlabel("WI"); d = e.newlabel("WID")
    e(f"v_mbcnt_lo_u32_b32 v{vt+1}, -1, 0\nv_mbcnt_hi_u32_b32 v{vt+1}, -1, v{vt+1}\nv_lshlrev_b32 v{vt+1}, 2, v{vt+1}")
    e.label(l)
    e(f"global_load_dword v{vt}, v{vt+1}, s[{S_DBG}:{S_DBG+1}] sc1")
    e(f"s_add_u32 s{S_SPIN}, s{S_SPIN}, 1")
    e("s_waitcnt vmcnt(0)")
    e(f"v_readlane_b32 s{S_TMP}, v{vt}, {DBG_INIT//4}")
    e(f"s_cmp_ge_u32 s{S_TMP}, {NINIT}\ns_cbranch_scc1 {d}")
    e("s_sleep 16")
    e(f"s_cmp_lt_u32 s{S_SPIN}, {SPIN_MAX}\ns_cbranch_scc1 {l}")
    e.label(d)

def kv_poll(e, va, vb, done):
    l = e.newlabel("KR")
    e("s_waitcnt vmcnt(0)")
    e(f"v_mbcnt_lo_u32_b32 v{vb}, -1, 0\nv_mbcnt_hi_u32_b32 v{vb}, -1, v{vb}\nv_lshlrev_b32 v{vb}, 2, v{vb}")
    e.label(l)
    if DBGC: e(f"s_lshl_b32 s{S_TMP}, 1, s{S_STEP}\ns_or_b32 s60, s60, s{S_TMP}\ns_add_u32 s57, s57, 0")
    e(f"s_lshl_b32 s{S_TMP}, s{S_H}, 8")
    e(f"buffer_load_dword v{va}, v{vb}, s[{R_WS}:{R_WS+3}], s{S_TMP} offen sc1")
    e(f"s_add_u32 s{S_SPIN}, s{S_SPIN}, 1")
    e("s_waitcnt vmcnt(0)")
    e(f"v_cmp_eq_u32 vcc, 0, v{va}\ns_ff1_i32_b64 s{S_READY}, vcc")
    e(f"s_cmp_gt_u32 s{S_READY}, s{S_TMP2}\ns_cbranch_scc1 {done}")
    e("s_sleep 16")
    e(f"s_cmp_lt_u32 s{S_SPIN}, {SPIN_MAX}\ns_cbranch_scc1 {l}")
    e(f"s_branch {done}")

def kv_ready(e, delta, va, vb):
    d = e.newlabel("KRD")
    e(f"s_add_u32 s{S_TMP2}, s{S_STEP}, {delta}\ns_cmp_gt_u32 s{S_READY}, s{S_TMP2}\ns_cbranch_scc1 {d}")
    kv_poll(e, va, vb, d)
    e.label(d)

def kv_dma(e, g=None, l=None):
    out = []
    for i in range(4):
        pre = [f"s_add_u32 m0, s{l or S_KVL}, {(i//2)*8192}", f"s_add_u32 s{S_TMP}, s{g or S_KVG}, {(i//2)*8192}"]
        out.append(pre + [f"buffer_load_dwordx4 v{A_AGR}, s[{R_WS}:{R_WS+3}], s{S_TMP} offen offset:{(i%2)*1024} sc1 lds"])
    return out

NPRE = 5
QL = [(0, 0), (0, 1), (2, 0), (2, 1), (1, 0), (1, 1)] if os.environ.get('V13') else [(0, 0), (0, 1), (1, 0), (1, 1), (2, 0), (2, 1)]
def rd_ql(e, n, r):
    off = FRAG[("q",) + QL[n]][1]
    e(f"ds_read_b128 {vr(r,4)}, v{A_W} offset:{off}")
    return e(f"ds_read_b128 {vr(r+4,4)}, v{A_W} offset:{off+1024}")
def preload_q(e):
    for n in range(NPRE): rd_ql(e, n, QB + 8 * n)

S_KF = 12
def kv_peek(e):
    e(f"s_min_u32 s{S_TMP}, s{S_STEP}, 59\ns_lshl_b32 s{S_TMP}, s{S_TMP}, 2\ns_add_u32 s{S_TMP}, s{S_TMP}, s{S_KFO}")
    e(f"s_load_dwordx4 s[{S_KF}:{S_KF+3}], s[{S_WS}:{S_WS+1}], s{S_TMP} glc")
def kv_fold(e):
    e(f"s_min_u32 s{S_TMP}, s{S_STEP}, 59\ns_add_u32 s{S_TMP}, s{S_TMP}, 1\ns_add_u32 s{S_TMP}, s{S_TMP}, s{S_KF}")
    for k in range(1, 4): e(f"s_and_b32 s{S_KF}, s{S_KF}, s{S_KF+k}\ns_add_u32 s{S_TMP}, s{S_TMP}, s{S_KF}")
    e(f"s_cmp_ge_u32 s{S_TMP}, 64\ns_cselect_b32 s{S_TMP}, -1, s{S_TMP}\ns_max_u32 s{S_READY}, s{S_READY}, s{S_TMP}")

def chain_prologue(e, cfg={}):
    e("; ---- chain prologue")
    if cfg.get("prost") == 2: e("s_memrealtime s[92:93]")
    lane_consts(e, "v16", "v17")
    e("v_and_b32 v18, 3, v0\nv_lshrrev_b32 v19, 2, v0")
    e(f"s_lshl_b32 s{S_TMP}, s{S_H}, 8\ns_lshl_b32 s{S_TMP2}, s{S_W}, 6\ns_add_u32 s{S_TMP}, s{S_TMP}, s{S_TMP2}")
    e(f"v_lshlrev_b32 v20, 13, v19\nv_lshl_add_u32 v20, v18, 4, v20\nv_add_u32 v20, s{S_TMP}, v20")
    e(f"s_lshl_b32 s{S_TMP}, s{S_H}, 17\ns_lshl_b32 s{S_TMP2}, s{S_W}, 8\ns_add_u32 s{S_TMP}, s{S_TMP}, s{S_TMP2}")
    e(f"v_lshlrev_b32 v21, 10, v19\nv_lshl_add_u32 v21, v18, 4, v21\nv_add_u32 v21, s{S_TMP}, v21")
    e("v_and_b32 v22, 1, v17\nv_lshlrev_b32 v22, 5, v22")
    e("v_lshrrev_b32 v23, 1, v17\nv_lshl_add_u32 v22, v23, 2, v22")
    e("v_lshrrev_b32 v23, 3, v16\nv_lshl_add_u32 v22, v23, 4, v22")
    e("v_bfe_u32 v23, v16, 2, 1\nv_add_u32 v22, v22, v23")
    e("v_lshlrev_b32 v22, 6, v22\nv_lshl_add_u32 v22, v18, 3, v22")
    e(f"s_mul_i32 s{S_KVL}, s{S_W}, 28672")
    e(f"s_mul_i32 s{S_KVG}, s{S_W}, 12288\ns_add_u32 s{S_KVG}, s{S_KVG}, {L_KVB}")
    e(f"v_add_u32 v24, s{S_KVL}, v22\nv_add_u32 v25, s{S_KVG}, v22")
    e(f"v_lshl_add_u32 v{A_W}, v0, 4, s{S_KVL}")
    RW = {"q": R_T, "k": R_T2, "v": 84, "o": 88}
    for m, p in (("q", S_WQ), ("k", S_WK), ("v", S_WV), ("o", S_WO)): srd(e, RW[m], p, 0x400000)
    def issue(n):
        m, J = BLOCKS[n]
        kind, k = slot_addr(n)
        base = S_KVL if kind == "wl" else S_KVG
        for i in range(4):
            e(f"s_add_u32 m0, s{base}, {k*4096 + i*1024}")
            if m == "o":
                so = (64 * J[0] + 16 * i) * 1024 + J[1] * 64
                e(f"s_mov_b32 s{S_TMP}, {so}")
                e(f"buffer_load_dwordx4 v21, s[{RW[m]}:{RW[m]+3}], s{S_TMP} offen lds")
            else:
                so = (64 * J + 16 * i) * 8192
                e(f"s_mov_b32 s{S_TMP}, {so}")
                e(f"buffer_load_dwordx4 v20, s[{RW[m]}:{RW[m]+3}], s{S_TMP} offen lds")
    def consume(n, outstanding):
        m, J = BLOCKS[n]
        kind, k = slot_addr(n)
        e(f"s_waitcnt vmcnt({outstanding})")
        av = "v24" if kind == "wl" else "v25"
        for t in range(2):
            f = FRAG[(m, J, t)]
            for mm in range(4):
                off = k * 4096 + (8 * (mm // 2) + 2 * (mm % 2)) * 64 + t * 32
                if f[0] == "lds": dst = vr(32 + 8 * t + 2 * mm, 2)
                else: dst = vr(f[1] + 2 * mm, 2, f[0])
                e(f"ds_read_b64_tr_b16 {dst}, {av} offset:{off}")
        e("s_waitcnt lgkmcnt(0)")
        if n >= NREG:
            for t in range(2):
                for hf in range(2):
                    e(f"ds_write_b128 v{A_W}, {vr(32+8*t+4*hf,4)} offset:{k*4096 + t*2048 + hf*1024}")
            e("s_waitcnt lgkmcnt(0)")
    N = len(BLOCKS)
    if cfg.get("tlbw"):
        e(f"v_lshlrev_b32 v26, 16, v0\ns_lshl_b32 s{S_TMP}, s{S_H}, 11\nv_add_u32 v26, s{S_TMP}, v26")
        for m in "qkvo": e(f"buffer_load_dword v27, v26, s[{RW[m]}:{RW[m]+3}], 0 offen")
        if cfg["tlbw"] == 2: e("s_waitcnt vmcnt(0)")
    DEP = cfg.get("dep", 4); LEAD = cfg.get("lead", 0)
    def touch(n):
        m, J = BLOCKS[n]
        so = (64 * J[0]) * 1024 + J[1] * 64 if m == "o" else 64 * J * 8192
        e(f"s_mov_b32 s{S_TMP}, {so}\nbuffer_load_dword v70, v{69 if m == 'o' else 68}, s[{RW[m]}:{RW[m]+3}], s{S_TMP} offen")
    if LEAD:
        e(f"s_and_b32 s{S_TMP}, s{S_H}, 3\ns_lshl_b32 s{S_TMP}, s{S_TMP}, 2\ns_add_u32 s{S_TMP}, s{S_TMP}, s{S_W}\ns_lshl_b32 s{S_TMP}, s{S_TMP}, 15")
        e(f"s_lshr_b32 s{S_TMP2}, s{S_H}, 2\ns_lshl_b32 s{S_TMP2}, s{S_TMP2}, 10\ns_add_u32 s{S_TMP}, s{S_TMP}, s{S_TMP2}")
        e(f"v_lshlrev_b32 v68, 13, v17\nv_lshl_add_u32 v68, v16, 6, v68\nv_add_u32 v68, s{S_TMP}, v68")
        e(f"s_lshl_b32 s{S_TMP}, s{S_H}, 17\ns_lshl_b32 s{S_TMP2}, s{S_W}, 14\ns_add_u32 s{S_TMP}, s{S_TMP}, s{S_TMP2}")
        e(f"v_lshlrev_b32 v69, 10, v19\nv_lshl_add_u32 v69, v18, 8, v69\nv_add_u32 v69, s{S_TMP}, v69")
    e(f"v_mov_b64 v[32:33], -1\nv_mov_b64 v[34:35], -1\ns_lshl_b32 s{S_TMP}, s{S_H}, 13\ns_lshl_b32 s{S_TMP2}, s{S_W}, 11\ns_add_u32 s{S_TMP}, s{S_TMP}, s{S_TMP2}\ns_add_u32 s{S_TMP}, s{S_TMP}, {WS_RS}")
    e(f"v_lshlrev_b32 v36, 4, v0\nbuffer_store_dwordx4 v[32:35], v36, s[{R_WS}:{R_WS+3}], s{S_TMP} offen sc1\nbuffer_store_dwordx4 v[32:35], v36, s[{R_WS}:{R_WS+3}], s{S_TMP} offen offset:1024 sc1")
    e(f"s_mul_i32 s{S_TMP}, s{S_H}, 768\ns_lshl_b32 s{S_TMP2}, s{S_W}, 8\ns_add_u32 s{S_TMP}, s{S_TMP}, s{S_TMP2}\ns_add_u32 s{S_TMP}, s{S_TMP}, {WS_AG}")
    e(f"s_cmp_lt_u32 s{S_W}, 3\ns_cselect_b32 exec_lo, 0xffff, 0\ns_mov_b32 exec_hi, 0\nbuffer_store_dwordx4 v[32:35], v36, s[{R_WS}:{R_WS+3}], s{S_TMP} offen sc1\ns_mov_b64 exec, -1")
    srd(e, 92, S_MEM0, 8192)
    e(f"s_lshl_b32 s{S_TMP}, s{S_W}, 8")
    e(f"v_lshlrev_b32 v26, 11, v17\nv_lshl_add_u32 v26, v16, 1, v26\nv_add_u32 v26, s{S_TMP}, v26")
    mem0_ld = []
    for u in range(4):
        mem0_ld += [f"buffer_load_ushort v{48+2*u}, v26, s[92:95], 0 offen offset:{u*64}", f"buffer_load_ushort v{49+2*u}, v26, s[92:95], 0 offen offset:{u*64+32}",
                    f"buffer_load_ushort v{56+2*u}, v26, s[92:95], 0 offen offset:{u*64+1024}", f"buffer_load_ushort v{57+2*u}, v26, s[92:95], 0 offen offset:{u*64+32+1024}"]
    for n in range(DEP):
        if cfg.get("prost") == 2 and n == 1: e("s_memrealtime s[94:95]")
        issue(n)
    if cfg.get("prost") == 2: e("s_memrealtime s[96:97]")
    for n in range(DEP, DEP + LEAD): touch(n)
    for x in mem0_ld: e(x)
    e(f"v_and_b32 v26, 2, v0\nv_cmp_eq_u32 vcc, 2, v26\nv_mov_b32 v27, 0x44444444\nv_mov_b32 v28, 0xeeeeeeee")
    e(f"s_mov_b64 s[{S_ODD}:{S_ODD+1}], vcc")
    e(f"v_cndmask_b32 v29, v27, v28, vcc")
    for r in range(4):
        e(f"v_mov_b32 v{SEL+r}, 0")
    e("v_mov_b32 v27, 0x3f80\nv_mov_b32 v28, 0x3f800000")
    for j in range(8):
        e(f"v_cmp_eq_u32 vcc, {j}, v16\ns_nop 1\nv_cndmask_b32 v{SEL+j//2}, v{SEL+j//2}, v{27+(j%2)}, vcc")
    e(f"s_and_b32 s{S_TMP}, s{S_W}, 2\ns_lshl_b32 s{S_TMP}, s{S_TMP}, 11\ns_lshl_b32 s{S_TMP2}, s{S_H}, 7\ns_add_u32 s{S_TMP}, s{S_TMP}, s{S_TMP2}")
    e(f"v_lshrrev_b32 v26, 3, v0\nv_and_b32 v27, 7, v0\nv_lshlrev_b32 v{A_RSR}, 13, v26\nv_lshl_add_u32 v{A_RSR}, v27, 4, v{A_RSR}\nv_add_u32 v{A_RSR}, s{S_TMP}, v{A_RSR}")
    e(f"s_lshl_b32 s{S_TMP2}, s{S_W}, 9\nv_lshl_add_u32 v{A_RSW}, v0, 3, s{S_TMP2}")
    e(f"v_and_b32 v26, 1, v17\nv_lshl_add_u32 v26, v27, 1, v26\ns_and_b32 s{S_TMP2}, s{S_H}, 3\nv_mov_b32 v27, s{S_TMP2}")
    emit_UB(e, f"v{A_AGW}", "v26", "v27", "v28")
    e(f"s_and_b32 s{S_TMP}, s{S_TMP}, 0xfffffe00\nv_add_u32 v{A_AGW}, s{S_TMP}, v{A_AGW}")
    e(f"s_mov_b32 s{S_AGM}, 0x00FF00FF\ns_mov_b32 s{S_AGM+1}, 0\ns_mov_b32 s{S_AGM2}, -1\ns_mov_b32 s{S_AGM2+1}, 0")
    e(f"v_bfe_u32 v26, v0, 3, 1\nv_lshl_add_u32 v{A_AGW}, v26, 14, v{A_AGW}")
    e(f"s_lshl_b32 s{S_TMP}, s{S_W}, 11\ns_add_u32 s{S_TMP}, s{S_TMP}, {L_MEM}")
    e(f"v_lshl_add_u32 v{A_AGR}, v0, 4, s{S_TMP}")
    e(f"s_lshl_b32 s{S_TMP}, s{S_W}, 10\ns_add_u32 s{S_TMP}, s{S_TMP}, {L_QU}")
    emit_UB(e, f"v{A_UW}", "v16", "v17", "v28")
    e(f"v_add_u32 v{A_UW}, s{S_TMP}, v{A_UW}")
    e("v_lshrrev_b32 v26, 2, v16\nv_lshl_add_u32 v26, v17, 2, v26")
    emit_UB(e, f"v{A_TR}", "v26", "v18", "v28")
    e(f"v_add_u32 v{A_TR}, {L_MEM}, v{A_TR}")
    e("v_and_b32 v27, 1, v18\nv_lshlrev_b32 v27, 1, v27\nv_lshrrev_b32 v28, 1, v18\nv_or_b32 v27, v27, v28")
    emit_UB(e, f"v{A_TRK}", "v26", "v27", "v28")
    e(f"v_add_u32 v{A_TRK}, {L_MEM}, v{A_TRK}")
    e(f"v_lshlrev_b32 v{A_KX}, 4, v0\nv_add_u32 v{A_KX}, {L_KVB}, v{A_KX}")
    e(f"v_lshrrev_b32 v26, 1, v17\nv_lshl_add_u32 v26, v26, 4, v16\nv_lshlrev_b32 v26, 4, v26\nv_and_b32 v27, 1, v17\nv_lshl_add_u32 v26, v27, 3, v26")
    e(f"s_lshl_b32 s{S_TMP}, s{S_W}, 11\ns_add_u32 s{S_TMP}, s{S_TMP}, {L_KVB + 8192}\nv_add_u32 v{A_VX}, s{S_TMP}, v26")
    e(f"v_lshlrev_b32 v65, 2, v0\ns_mov_b32 s{S_STEP}, 0\ns_mov_b32 s{S_READY}, 0\ns_mov_b32 s{S_MODE}, 0")
    WSR = f"s[{R_WS}:{R_WS+3}]"
    S_PG = 98
    if cfg.get("fair"):
        e(f"s_lshl_b32 s{S_PG}, s{S_H}, 2\ns_add_u32 s{S_PG}, s{S_PG}, s{S_W}\ns_lshl_b32 s{S_PG}, s{S_PG}, 2\ns_mov_b32 s{S_PG+2}, {WS_AG + 0x8000}\ns_add_u32 s{S_PG}, s{S_PG}, s{S_PG+2}")
        e(f"v_mov_b32 v69, 0\ns_mov_b64 exec, 1\nbuffer_store_dword v69, off, {WSR}, s{S_PG}\ns_mov_b64 exec, -1")
    order = [("B", n) for n in range(DEP) for _ in range(4)] + [("T", 1)] * LEAD + [("M", 0)] * (17 if cfg.get("fair") else 16)
    def after(kind, n):
        last = max(i for i, x in enumerate(order) if x == (kind, n))
        return min(len(order) - 1 - last, 63)
    for n in range(N):
        consume(n, after("B", n))
        for k, (a_, b_) in enumerate(cfg.get("pace", [])):
            if n == a_:
                e(f"s_barrier\nv_mov_b32 v36, {DBG_PACE + 64*0 + 4*k}\nv_mov_b32 v37, 1\ns_mov_b64 exec, s[{S_W0M}:{S_W0M+1}]\nglobal_atomic_add v36, v37, s[{S_DBG}:{S_DBG+1}]\ns_mov_b64 exec, -1"); order.append(("P", k))
            if n == b_:
                l = e.newlabel("PC"); d = e.newlabel("PCD")
                e(f"s_cmp_eq_u32 s{S_W}, 0\ns_cbranch_scc0 {d}")
                e.label(l)
                e(f"s_load_dword s{S_TMP}, s[{S_DBG}:{S_DBG+1}], {DBG_PACE + 4*k} glc\ns_add_u32 s{S_SPIN}, s{S_SPIN}, 1\ns_waitcnt lgkmcnt(0)")
                e(f"s_cmp_ge_u32 s{S_TMP}, 32\ns_cbranch_scc1 {d}\ns_sleep 8\ns_cmp_lt_u32 s{S_SPIN}, {SPIN_MAX}\ns_cbranch_scc1 {l}")
                e.label(d)
                e("s_barrier")
        W_ = cfg.get("fair")
        if W_ and n % cfg.get("fstep", 2) == 0 and 2 <= n <= 26:
            pl, pd = e.newlabel("FR"), e.newlabel("FRD")
            e(f"v_mov_b32 v69, {n}\ns_mov_b64 exec, 1\nbuffer_store_dword v69, off, {WSR}, s{S_PG}\ns_mov_b64 exec, -1"); order.append(("G", n))
            if ('G', n - cfg.get('fstep', 2)) in order:
                e(f"s_mov_b32 s{S_PG+1}, 0\ns_waitcnt vmcnt({after('G', n - cfg.get('fstep', 2))})")
                e.label(pl)
                e(f"v_min_i32 v70, v70, v71\nv_cmp_gt_i32 vcc, {max(n - W_, 0)}, v70\ns_cbranch_vccz {pd}")
                e(f"buffer_load_dword v70, v65, {WSR}, s{S_PG+2} offen sc1\nbuffer_load_dword v71, v65, {WSR}, s{S_PG+2} offen offset:256 sc1")
                e(f"s_add_u32 s{S_PG+1}, s{S_PG+1}, 1\ns_waitcnt vmcnt(0)\ns_cmp_lt_u32 s{S_PG+1}, 12\ns_cbranch_scc1 {pl}")
                e.label(pd)
            e(f"buffer_load_dword v70, v65, {WSR}, s{S_PG+2} offen sc1\nbuffer_load_dword v71, v65, {WSR}, s{S_PG+2} offen offset:256 sc1"); order += [("G", n)] * 2
        if LEAD and n + DEP + LEAD < N:
            touch(n + DEP + LEAD); order.append(("T", 1))
        if n + DEP < N:
            issue(n + DEP); order += [("B", n + DEP)] * 4
        if n == cfg.get("ctouch", -1):
            e(f"s_mul_i32 s{S_TMP}, s{S_H}, 21\nv_add_u32 v67, s{S_TMP}, v0\nv_lshlrev_b32 v67, 16, v67\ns_mul_i32 s{S_TMP}, s{S_W0M}, 0x1fffff\ns_mov_b32 exec_lo, s{S_TMP}\ns_mov_b32 exec_hi, 0\ns_mov_b32 s{S_TMP}, {WS_KV}")
            e(f"buffer_load_dword v68, v67, {WSR}, s{S_TMP} offen sc1\ns_mov_b64 exec, -1"); order.append(("T", 0))
        if n == 1:
            e(f"s_barrier\nv_mov_b32 v36, {DBG_INIT}\nv_mov_b32 v37, 1\ns_mov_b64 exec, s[{S_W0M}:{S_W0M+1}]")
            e(f"global_atomic_add v36, v37, s[{S_DBG}:{S_DBG+1}]\ns_mov_b64 exec, -1"); order.append(("I", 0))
        if n == cfg.get("lwait", -1):
            e(f"v_mov_b32 v36, {DBG_PACE}\nv_mov_b32 v37, 1\ns_mov_b64 exec, s[{S_W0M}:{S_W0M+1}]")
            e(f"global_atomic_add v36, v37, s[{S_DBG}:{S_DBG+1}]\ns_mov_b64 exec, -1"); order.append(("L", 0))
        if n == 16:
            e(f"global_load_dword v64, v65, s[{S_DBG}:{S_DBG+1}] sc1"); order.append(("D", 0))
        if n == 23:
            e(f"v_readlane_b32 s{S_TMP}, v64, {DBG_INIT//4}\nv_readlane_b32 s{S_MODE}, v64, {DBG_XCC(0)//4}\nv_mov_b32 v66, 0")
            e(f"s_cmp_ge_u32 s{S_TMP}, {NINIT}\ns_cselect_b32 s{S_MODE}, s{S_MODE}, 0\ns_cselect_b64 exec, -1, 0\ns_lshl_b32 s{S_TMP}, s{S_H}, 8")
            e(f"buffer_load_dword v66, v65, {WSR}, s{S_TMP} offen sc1\ns_mov_b64 exec, -1"); order.append(("F", 0))
        if n == 28:
            e("s_barrier")
            e(f"v_cmp_eq_u32 vcc, 0, v66\ns_ff1_i32_b64 s{S_READY}, vcc")
            e(f"s_lshl_b32 s{S_TMP}, s{S_H}, 14\ns_add_u32 s{S_XG0}, s{S_TMP}, {WS_KV - L_MEM}\ns_lshl_b32 s{S_TMP}, s{S_W}, 11\ns_add_u32 s{S_XL0}, s{S_TMP}, {L_KVB}")
            e(f"s_cmp_gt_u32 s{S_READY}, 0\ns_cselect_b64 exec, -1, 0")
            for grp in kv_dma(e, S_XG0, S_XL0):
                for x in grp: e(x)
            e("s_mov_b64 exec, -1"); order += [("K", 0)] * 4
            for r in range(8): e(f"v_lshl_or_b32 v{48+r}, v{56+r}, 16, v{48+r}")
            e(f"s_lshl_b32 s{S_TMP}, s{S_W}, 9\ns_add_u32 s{S_TMP}, s{S_TMP}, {L_QU - L_MEM}\nv_subrev_u32 v27, s{S_TMP}, v{A_UW}")
            for u in range(4): e(f"ds_write_b64 v27, {vr(48+2*u,2)} offset:{u*2048}")
            e("s_waitcnt lgkmcnt(0)")
            preload_q(e)
            for r in range(0, 16, 2): e(f"v_mov_b64 {vr(ACA+r,2)}, 0")
            e(f"v_mov_b32 v{IDX}, v29")
            e(f"s_lshl_b32 s{S_TMP}, s{S_H}, 13")
            e(f"s_add_u32 s{S_RSW0}, s{S_TMP}, {WS_RS}\ns_add_u32 s{S_RSW1}, s{S_RSW0}, 4096")
            for i in range(4): e(f"s_mov_b32 s{S_RSR[i]}, {WS_RS + 0x10000 * i}")
            e(f"s_mov_b32 s{S_AGSLOT}, 0\ns_mov_b32 s{S_AGW}, {WS_AG}\ns_mov_b32 s{S_TAG}, 0")
            e(f"s_lshl_b32 s{S_TMP}, s{S_H}, 12\ns_add_u32 s{S_KVM}, s{S_TMP}, {WS_KVM - 0x20000}")
            e(f"s_mov_b32 s{S_LB}, 0x3f003f00\ns_mov_b32 s{S_LB+1}, 0x3f803f80")
            e(f"s_lshl_b32 s{S_CF}, s{S_H}, 7\ns_add_u32 s{S_CF}, s{S_CF}, {FL_CFLAG}")
            e(f"s_mov_b32 s{S_SC}, 0x3e0293ee")
            e(f"s_lshl_b32 s{S_KFO}, s{S_H}, 8\ns_add_u32 s{S_KFO}, s{S_KFO}, 4")
        if n == 29: kv_peek(e)
        if n == 29 and cfg.get("wrm"):
            for sl in range(3):
                e(f"s_mov_b32 s{S_TMP}, {WS_AG - L_MEM + 0x2000 * sl}")
                for o in (0, 1024): e(f"buffer_load_dwordx4 v[88:91], v{A_AGR}, {WSR}, s{S_TMP} offen offset:{o} sc1"); order.append(("W", 0))
            for i in range(4): e(f"buffer_load_dwordx4 v[88:91], v{A_RSR}, {WSR}, s{S_RSR[i]} offen sc1"); order.append(("W", 0))
        if cfg.get("help") and n == 26:
            e(f"v_mov_b32 v36, {DBG_PACE}\nv_mov_b32 v37, 1\ns_mov_b64 exec, 1\nglobal_atomic_add v88, v36, v37, s[{S_DBG}:{S_DBG+1}] sc0\ns_mov_b64 exec, -1"); order.append(("H", 0))
    if cfg.get("help"):
        e(f"v_readfirstlane_b32 s{S_TMP}, v88\ns_cmp_lt_u32 s{S_TMP}, {cfg['help']}\ns_cbranch_scc0 HELP_E")
        k = 0
        for rnd in range(3):
            for d in range(1, 4):
                nb = cfg.get("hfrom", 23) + 3 * rnd + d - 1
                if nb >= N: continue
                m, J = BLOCKS[nb]
                e(f"s_add_u32 s{S_TMP2}, s{S_H}, {d}\ns_and_b32 s{S_TMP2}, s{S_TMP2}, 3\ns_and_b32 s{S_TMP}, s{S_H}, 3\ns_sub_i32 s{S_TMP2}, s{S_TMP2}, s{S_TMP}")
                e(f"s_lshl_b32 s{S_TMP2}, s{S_TMP2}, {17 if m == 'o' else 8}\nv_add_u32 v89, s{S_TMP2}, v{21 if m == 'o' else 20}")
                for i in range(4):
                    so = (64 * J[0] + 16 * i) * 1024 + J[1] * 64 if m == "o" else (64 * J + 16 * i) * 8192
                    e(f"s_mov_b32 s{S_TMP}, {so}\nbuffer_load_dwordx4 v[{40 + 4 * (k % 2)}:{43 + 4 * (k % 2)}], v89, s[{RW[m]}:{RW[m]+3}], s{S_TMP} offen"); k += 1
        e.label("HELP_E")
    e(f"s_cmp_ge_u32 s{S_MODE}, 32\ns_cselect_b32 s{S_KF}, s{S_KF}, 0")
    if cfg.get("gstamp"): e("s_memrealtime s[18:19]\ns_waitcnt lgkmcnt(0)\ns_mov_b32 s69, s18")
    e(f"s_mov_b32 s{S_KVG}, s{S_XG0}\ns_mov_b32 s{S_KVL}, s{S_XL0}")
    e(f"s_cmp_ge_u32 s{S_MODE}, 32\ns_cbranch_scc1 MODE_D")
    wait_init(e, "c", 32)
    e.label("MODE_L")
    e(f"v_readlane_b32 s{S_MODE}, v32, {DBG_XCC(0)//4}\ns_cmp_ge_u32 s{S_MODE}, 32\ns_cbranch_scc1 MODE_D\ns_mov_b32 s{S_TMP2}, 0")
    for x in range(8):
        e(f"v_readlane_b32 s{S_TMP}, v32, {DBG_XCC(x)//4}\ns_add_u32 s{S_TMP2}, s{S_TMP2}, s{S_TMP}")
    e(f"s_cmp_ge_u32 s{S_TMP2}, 256\ns_cbranch_scc1 MODE_D\ns_sleep 16")
    e(f"global_load_dword v32, v33, s[{S_DBG}:{S_DBG+1}] sc1\ns_add_u32 s{S_SPIN}, s{S_SPIN}, 1\ns_waitcnt vmcnt(0)\ns_cmp_lt_u32 s{S_SPIN}, {SPIN_MAX}\ns_cbranch_scc1 MODE_L")
    e.label("MODE_D")
    e(f"s_cmp_gt_u32 s{S_READY}, 0\ns_cbranch_scc1 KV0_D")
    kv_ready(e, 0, 32, 33)
    for grp in kv_dma(e):
        for s in grp: e(s)
    e.label("KV0_D")
    e(f"s_add_u32 s{S_KVG}, s{S_KVG}, 0x80000\ns_xor_b32 s{S_KVL}, s{S_KVL}, 0x3C000")

def interleave(e, mf, fill):
    def run(x):
        for s in x:
            if callable(s): s()
            else: e(s)
    run(fill.get(-1, []))
    for i, m in enumerate(mf):
        if callable(m): m()
        else: e(m)
        run(fill.get(i, []))

def smf(acc, a, f):
    return f"v_smfmac_f32_16x16x64_bf16 {vr(acc,4)}, {vr(a,4)}, {vr(f[1],8,f[0])}, v{IDX}"
def mf32(d, a, b, c):
    return f"v_mfma_f32_16x16x32_bf16 {vr(d,4)}, {vr(a,4)}, {vr(b,4)}, {c if c == '0' else vr(c,4)}"

def kv_ready_ool(e, tail, va, vb):
    d = e.newlabel("KRD"); sl = e.newlabel("KRS")
    e(f"s_add_u32 s{S_TMP2}, s{S_STEP}, 1")
    e(f"s_cmp_le_u32 s{S_READY}, s{S_TMP2}\ns_cbranch_scc1 {sl}")
    e.label(d)
    def slow():
        e.label(sl)
        kv_poll(e, va, vb, d)
    tail.append(slow)

def chain_loop(e, fast, cfg):
    st = "" if fast else " sc1"
    tag_ = "F" if fast else "S"
    WS = f"s[{R_WS}:{R_WS+3}]"
    stamps = cfg.get("stamps", [])
    def S(name):
        if name in stamps:
            i = stamps.index(name); e(f"s_memtime s[{S_ST+2*i}:{S_ST+2*i+1}]")
    def SS(name): return lambda: S(name)
    def GS(p, fill, n):
        for i in range(n):
            if f"{p}_{i}" in stamps: fill[i] = [SS(f"{p}_{i}")] + list(fill.get(i, []))
    LOOP, LAST, ENTRY, EARLY = [f"CH{tag_}_{x}" for x in ("LOOP", "LAST", "ENTRY", "EARLY")]
    tail = []
    seq = {}
    def wt(key): return lambda: e.waitlg(seq[key])
    KP, VP, QP = XT + 4, XT + 6, XT + 2
    RP, RED, AGO, T1, AP = MEMA, MEMA + 16, MEMA + 20, MEMA + 22, MEMA + 24
    e("s_waitcnt vmcnt(0) lgkmcnt(0)")
    if cfg.get("gstamp"): e("s_memrealtime s[18:19]\ns_memtime s[16:17]")
    kv_ready(e, 1, T0, T1)
    if cfg.get("prio"): e(f"s_setprio {cfg['prio']}")
    e(f"s_add_u32 s{S_KVG2}, s{S_KVG}, 8192\ns_mov_b32 m0, s{S_KVL}\nv_mov_b32 v{T0}, 0\nv_mov_b32 v{QP}, 0")
    e(f"s_branch {ENTRY}")
    def rs_ld(r):
        for i in range(4): e(f"buffer_load_dwordx4 {vr(r+4*i,4)}, v{A_RSR}, {WS}, s{S_RSR[i]} offen sc1")
    def rs_chk(r, n):
        for i in range(4):
            e(f"s_waitcnt vmcnt({n+3-i})")
            e(mf32(RED, SEL, r + 4 * i, "0" if i == 0 else RED))
            e(f"v_bitop3_b32 v{T1 if i else T0}, v{r+4*i}, v{r+4*i+2}, s{S_TAG} bitop3:0x7e")
            if cfg.get("spec") and i == 3: e(f"v_bitop3_b32 v{T0}, v{T0}, v{T1}, 1 bitop3:0xa8")
            elif i: e(f"v_or_b32 v{T0}, v{T0}, v{T1}")
        if cfg.get("spec"):
            e(f"v_cmp_ne_u32 vcc, 0, v{T0}\ns_nop 3")
            for q in range(4): e(f"v_add_f32_dpp v{RED+q}, v{RED+q}, v{RED+q} row_ror:8 row_mask:0xf bank_mask:0xf")
            e(f"s_mov_b64 exec, s[{S_AGM}:{S_AGM+1}]")
            e(f"v_cvt_pk_bf16_f32 v{AGO}, v{RED}, v{RED+1}\nv_cvt_pk_bf16_f32 v{AGO+1}, v{RED+2}, v{RED+3}")
            e(f"s_mov_b64 exec, s[{S_AGM2}:{S_AGM2+1}]")
        else:
            e(f"v_and_b32 v{T0}, 1, v{T0}\nv_cmp_ne_u32 vcc, 0, v{T0}")
    def ag_ld(r):
        e(f"buffer_load_dwordx4 {vr(r,4)}, v{A_AGR}, {WS}, s{S_AGR0} offen sc1")
        e(f"buffer_load_dwordx4 {vr(r+4,4)}, v{A_AGR}, {WS}, s{S_AGR0} offen offset:1024 sc1")
    def ag_chk(r, n):
        T1 = MEMA + 15
        if cfg.get("sw"):
            e(f"s_waitcnt vmcnt({n+1})\nds_write_b128 v{A_AGR}, {vr(r,4)}\ns_waitcnt vmcnt({n})\nds_write_b128 v{A_AGR}, {vr(r+4,4)} offset:1024")
        else:
            e(f"s_waitcnt vmcnt({n})")
            e(f"ds_write_b128 v{A_AGR}, {vr(r,4)}\nds_write_b128 v{A_AGR}, {vr(r+4,4)} offset:1024")
        if cfg.get("c4"):
            e(f"v_max3_u32 v{T0}, v{r}, v{r+2}, v{r+4}\nv_max_u32 v{T0}, v{T0}, v{r+6}\nv_cmp_eq_u32 vcc, -1, v{T0}")
        else:
            e(f"v_max3_u32 v{T0}, v{r}, v{r+1}, v{r+2}\nv_max3_u32 v{T1}, v{r+4}, v{r+5}, v{r+6}")
            e(f"v_max3_u32 v{T0}, v{T0}, v{r+3}, v{r+7}\nv_max_u32 v{T0}, v{T0}, v{T1}\nv_cmp_eq_u32 vcc, -1, v{T0}")
    def backoff(n):
        if n >= 100: e.nop(n - 100)
        elif n: e(f"s_sleep {n}")
    def advance():
        e(f"v_mov_b64 {vr(AGO,2)}, -1")
        e(f"v_xor_b32 v{A_KX}, 0x3C000, v{A_KX}\nv_xor_b32 v{A_VX}, 0x3C000, v{A_VX}")
        e(f"v_add_u32 v{A_AGW}, 0x2000, v{A_AGW}\nv_subrev_u32 v{T0}, 0x6000, v{A_AGW}\nv_min_u32 v{A_AGW}, v{A_AGW}, v{T0}")
        e(f"s_add_u32 s{S_AGSLOT}, s{S_AGSLOT}, 0x2000\ns_cmp_eq_u32 s{S_AGSLOT}, 0x6000\ns_cselect_b32 s{S_AGSLOT}, 0, s{S_AGSLOT}")
        e(f"s_add_u32 s{S_AGR0}, s{S_AGSLOT}, {WS_AG - L_MEM}")
        e(f"s_add_u32 s{S_KVG}, s{S_KVG}, 0x80000\ns_xor_b32 s{S_KVL}, s{S_KVL}, 0x3C000\ns_add_u32 s{S_KVM}, s{S_KVM}, 0x20000")
        e(f"s_add_u32 s{S_KVG2}, s{S_KVG}, 8192\ns_mov_b32 m0, s{S_KVL}\ns_mov_b32 s{S_FLV}, s{S_STEP}")
        if cfg.get("peek"): kv_fold(e)
        e(f"s_add_u32 s{S_STEP}, s{S_STEP}, 1")
        if stamps: e(f"s_mov_b32 s{S_SPIN}, 0")
        if cfg.get("peek"): kv_peek(e)
    def comm(reducer, d1, d2, K, KR, last_copy=True):
        P1, P1R, P2, P2R = [e.newlabel(x) for x in ("P1", "P1R", "P2", "P2R")]
        if not reducer:
            if cfg.get("hist"):
                e(f"s_memtime s[20:21]\ns_waitcnt lgkmcnt(0)\ns_sub_u32 s22, s20, s23\ns_mov_b32 s23, s20\nv_mov_b32 v{T0}, s22")
                e(f"s_lshl_b32 s24, s{S_H}, 8\ns_lshl_b32 s25, s{S_STEP}, 2\ns_add_u32 s24, s24, s25\ns_add_u32 s24, s24, {WS_STAMP + 0x40000}\ns_mov_b64 exec, 1")
                e(f"buffer_store_dword v{T0}, off, {WS}, s24\ns_mov_b64 exec, -1")
            advance()
            if not cfg.get("pql"): preload_q(e)
            e(f"s_xor_b32 s{S_TAG}, s{S_TAG}, 1")
            S("rsi"); S("rs")
        else:
            advance()
            rsets = [RP, ACA][:KR]
            if cfg.get("adap"):
                PL, PJ = e.newlabel("PL"), e.newlabel("PJ")
                e(f"s_sub_u32 s{S_LATE}, s{S_LATE}, s{S_STEP}\ns_cmp_eq_u32 s{S_LATE}, {0x5ca1ab00 - 1}\ns_cbranch_scc1 {PL}")
                def pl():
                    e.label(PL)
                    rs_ld(RP); preload_q(e)
                    if KR > 1: backoff(cfg.get("e1l", 1)); rs_ld(ACA)
                    e(f"s_branch {PJ}")
                tail.append(pl)
            preload_q(e)
            backoff(d1)
            S("rsi")
            rs_ld(RP)
            if KR > 1:
                backoff(cfg.get("e1", 2)); rs_ld(ACA)
            if cfg.get("adap"): e.label(PJ)
            rs_chk(RP, 4 * (KR - 1))
            invr = cfg.get("invr") and KR == 2
            if invr:
                e(f"s_cbranch_vccz {P1}_OK")
                e("s_mov_b64 exec, vcc"); rs_ld(RP); e("s_mov_b64 exec, -1")
                rs_chk(ACA, 4)
            e(f"s_cbranch_vccnz {P1R}")
            e.label(P1 + "_OK")
            S("rs")
            def p1r():
                e.label(P1R)
                for k in ((1, 0) if invr else range(KR)):
                    e(f"s_add_u32 s{S_SPIN}, s{S_SPIN}, 1\ns_cmp_gt_u32 s{S_SPIN}, {SPIN_MAX}\ns_cbranch_scc1 {P1}_OK")
                    e("s_mov_b64 exec, vcc"); rs_ld(rsets[k]); e("s_mov_b64 exec, -1")
                    rs_chk(rsets[(k + 1) % KR], 4 * (KR - 1))
                    e(f"s_cbranch_vccz {P1}_OK")
                e(f"s_branch {P1R}")
            tail.append(p1r)
            if cfg.get("spec"):
                e(f"buffer_store_dwordx2 {vr(AGO,2)}, v{A_AGW}, {WS}, s{S_AGW} offen{st}\ns_mov_b64 exec, -1\ns_xor_b32 s{S_TAG}, s{S_TAG}, 1")
            else:
                e(f"s_xor_b32 s{S_TAG}, s{S_TAG}, 1\ns_nop 1")
                for r in range(4):
                    e(f"v_add_f32_dpp v{RED+r}, v{RED+r}, v{RED+r} row_ror:8 row_mask:0xf bank_mask:0xf")
                e(f"s_mov_b64 exec, s[{S_AGM}:{S_AGM+1}]")
                e(f"v_cvt_pk_bf16_f32 v{AGO}, v{RED}, v{RED+1}\nv_cvt_pk_bf16_f32 v{AGO+1}, v{RED+2}, v{RED+3}")
                e(f"s_mov_b64 exec, s[{S_AGM2}:{S_AGM2+1}]\nbuffer_store_dwordx2 {vr(AGO,2)}, v{A_AGW}, {WS}, s{S_AGW} offen{st}\ns_mov_b64 exec, -1")
            if cfg.get("push2"): e(f"s_mov_b64 exec, 1\nbuffer_load_dword v{MEMA+23}, off, {WS}, s{S_RSW0} sc1\ns_mov_b64 exec, -1")
        S("ags")
        if cfg.get("agbar"): e("s_barrier")
        S("agb")
        kv_ready_ool(e, tail, T0, MEMA + 15)
        if cfg.get("pql"): preload_q(e)
        backoff(d2)
        sets = [AP, ACB, MEMA + 16][:K]
        for k, r in enumerate(sets):
            if k: backoff(cfg.get("e2", 2))
            ag_ld(r)
        if cfg.get("pre"):
            e(f"s_cmp_ge_u32 s{S_STEP}, 63\ns_cbranch_scc1 {LAST}W\nv_mov_b32 v{QP}, s{S_FLV}")
            if reducer and KR > 1: e(f"s_waitcnt vmcnt({2 * K})")
            for r in range(0, 8, 2): e(f"v_mov_b64 {vr(ACA+r,2)}, 0")
        if cfg.get("join"):
            if not last_copy:
                e(f"s_branch {LOOP}_AGW")
                return
            e.label(f"{LOOP}_AGW")
        ag_chk(AP, 2 * (K - 1))
        inv = cfg.get("inv") and K == 2
        if inv:
            e(f"s_cbranch_vccz {P2}_OK")
            e("s_mov_b64 exec, vcc"); ag_ld(sets[0]); e("s_mov_b64 exec, -1")
            ag_chk(sets[1], 2)
        e(f"s_cbranch_vccnz {P2R}")
        e.label(P2 + "_OK")
        S("ag")
        def p2r():
            e.label(P2R)
            if cfg.get("adap"):
                e(f"s_add_u32 s{S_TMP}, s{S_STEP}, 0x5ca1ab00\nv_mov_b32 v{MEMA+14}, s{S_TMP}\nv_mov_b32 v{MEMA+13}, {L_KU}\nds_write_b32 v{MEMA+13}, v{MEMA+14}")
            for k in ((1, 0) if inv else range(K)):
                e(f"s_add_u32 s{S_SPIN}, s{S_SPIN}, {16 if stamps else 1}\ns_cmp_gt_u32 s{S_SPIN}, {SPIN_MAX}\ns_cbranch_scc1 {P2}_OK")
                e("s_mov_b64 exec, vcc"); ag_ld(sets[k]); e("s_mov_b64 exec, -1")
                ag_chk(sets[(k + 1) % K], 2 * (K - 1))
                e(f"s_cbranch_vccz {P2}_OK")
            e(f"s_branch {P2R}")
        tail.append(p2r)
        if stamps:
            sk = e.newlabel("NS")
            e(f"s_waitcnt lgkmcnt(0)\ns_cmp_eq_u32 s{S_STEP}, {cfg.get('stampstep', 40)}\ns_cbranch_scc0 {sk}")
            for i in range(len(stamps)): e(f"v_writelane_b32 v{T0}, s{S_ST+2*i}, {i}")
            e(f"v_writelane_b32 v{T0}, s{S_SPIN}, 10")
            for i in range(5): e(f"s_memrealtime s[{12+4*i}:{13+4*i}]\ns_memtime s[{14+4*i}:{15+4*i}]\ns_nop 5")
            e("s_waitcnt lgkmcnt(0)")
            for i in range(5): e(f"v_writelane_b32 v{T0}, s{12+4*i}, {16+2*i}\nv_writelane_b32 v{T0}, s{14+4*i}, {17+2*i}")
            e(f"s_lshl_b32 s{S_TMP}, s{S_H}, 2\ns_add_u32 s{S_TMP}, s{S_TMP}, s{S_W}\ns_lshl_b32 s{S_TMP}, s{S_TMP}, 8\ns_add_u32 s{S_TMP}, s{S_TMP}, {WS_STAMP}")
            e(f"v_mbcnt_lo_u32_b32 v{T1}, -1, 0\nv_mbcnt_hi_u32_b32 v{T1}, -1, v{T1}\nv_lshlrev_b32 v{T1}, 2, v{T1}")
            e(f"buffer_store_dword v{T0}, v{T1}, {WS}, s{S_TMP} offen")
            e.label(sk)
        if not cfg.get("pre"):
            for r in range(0, 8, 2): e(f"v_mov_b64 {vr(ACA+r,2)}, 0")
            e(f"s_cmp_ge_u32 s{S_STEP}, 63\ns_cbranch_scc1 {LAST}")
            e(f"v_mov_b32 v{T0}, s{S_FLV}")
        if cfg.get("pubc"): e(f"buffer_store_dwordx4 {vr(KP,4)}, v{A_AGR}, {WS}, s{S_KVM} offen sc1")
        if not cfg.get("wl"): e("s_waitcnt lgkmcnt(0)")
    D = cfg.get("D", [[0, 60], [0, 160], [25, 40], [0, 190]])
    if cfg.get("agbar"): D = [[cfg["d1e"], cfg.get("d2e", 0)], [0, cfg.get("d2e", 0)], [cfg["d1"], cfg["d2"]], [0, cfg["d2"]]]
    KK = [cfg.get("Ke", 1), cfg.get("Ke", 1), cfg.get("K", 2), cfg.get("K", 2)]
    ft = cfg.get("ft", 2)
    for w in [x for x in range(4) if x != ft] + [ft]:
        if w == ft: e(".p2align 6")
        e.label(f"{LOOP}_{w}")
        comm(w in (0, 2), D[w][0], D[w][1], KK[w], cfg.get('KRe', 1) if w == 0 else cfg.get('KR', 2), w == ft)
        if w != ft and not cfg.get("join"): e(f"s_branch {ENTRY}")
    e.label(ENTRY)
    if cfg.get("wl"): e("s_waitcnt lgkmcnt(0)")
    e("s_barrier")
    S("b1")
    if cfg.get("stepst"): e("s_memrealtime s[84:85]")
    def rd_m(J, x):
        def f(): seq[("m", J)] = e(f"ds_read_b64_tr_b16 {vr(MEMA+4*J+2*x,2)}, v{A_TR} offset:{(2*(J%2)+x)*2048 + (J//2)*512}")
        return f
    qorder = [(0, 0), (0, 1), (1, 0), (1, 1), (2, 0)] + [(J, t) for J in range(3, 8) for t in range(2)] + [(2, 1)]
    if cfg.get("qo"): qorder = qorder[:11] + [(2, 1)] + qorder[11:15]
    def qf(J, t):
        if J < 3: return ("v", QB + 8 * (QL.index((J, t)) % 5))
        return FRAG[("q", J, t)]
    mq = [smf(ACA + 4 * t, MEMA + 4 * J, qf(J, t)) for J, t in qorder]
    def rd_w(key, r, off):
        def f(): seq[key] = e(f"ds_read_b128 {vr(r,4)}, v{A_W} offset:{off}")
        return f
    def rq(n, hf): return rd_w(("ql", n), QB + 8 * (n % 5) + 4 * hf, FRAG[("q",) + QL[n]][1] + 1024 * hf)
    flag = [f"s_mov_b64 exec, s[{S_W0M}:{S_W0M+1}]", f"buffer_store_dword v{QP if cfg.get('pre') else T0}, off, {WS}, s{S_CF} sc1", "s_mov_b64 exec, -1"]
    pubk = f"buffer_store_dwordx2 {vr(KP,2)}, v{A_RSW}, {WS}, s{S_KVM} offen sc1"
    pubv = f"buffer_store_dwordx2 {vr(VP,2)}, v{A_RSW}, {WS}, s{S_KVM} offen offset:2048 sc1"
    if cfg.get("nopub"): pubk = pubv = "s_nop 0"; flag = []
    def dm(i): return "s_nop 0" if cfg.get("nodma") else f"buffer_load_dwordx4 v{A_AGR}, {WS}, s{S_KVG if i < 2 else S_KVG2} offen offset:{(i%2)*1024} sc1 lds"
    z = lambda r: f"v_mov_b64 {vr(r,2)}, 0"
    fill = {-1: [rd_m(J, x) for J in range(4) for x in range(2)] + [wt(("m", 0)), SS("m0")],
            0: [rd_m(4, 0), dm(0)], 1: [rd_m(4, 1), wt(("m", 1))], 2: [rd_m(5, 0), dm(1)], 3: [rd_m(5, 1), wt(("m", 2))],
            4: [f"s_add_u32 m0, s{S_KVL}, 8192", wt(("m", 3))],
            5: [f"s_waitcnt vmcnt({3 if cfg.get('pubc') else 2})", rd_m(6, 0)], 6: [rd_m(6, 1), wt(("m", 4))], 7: [rd_m(7, 0), dm(2)], 8: [rd_m(7, 1), wt(("m", 5))],
            9: [rq(5, 0), dm(3)], 10: [rq(5, 1), wt(("m", 6))], 11: flag, 12: [wt(("m", 7))], 13: [] if cfg.get("pubc") else [pubk], 14: [wt(("ql", 5))],
            }
    if cfg.get("qo"):
        last = []
        m0b = f"s_add_u32 m0, s{S_KVL}, 8192"
        fill = {-1: [rd_m(J, x) for J in range(4) for x in range(2)] + [wt(("m", 0)), SS("m0")],
                0: [rd_m(4, 0)] + (last if cfg["qo"] == 1 else []), 1: [rd_m(4, 1), wt(("m", 1))], 2: [rd_m(5, 0), dm(0)], 3: [rd_m(5, 1), wt(("m", 2))],
                4: [rq(5, 0), wt(("m", 3))], 5: [rq(5, 1), dm(1)], 6: [m0b, wt(("m", 4))], 7: ["s_waitcnt vmcnt(2)", rd_m(6, 0)],
                8: [rd_m(6, 1), wt(("m", 5))], 9: [rd_m(7, 0), dm(2)], 10: [rd_m(7, 1), wt(("ql", 5))], 11: [wt(("m", 6)), dm(3)],
                12: flag, 13: [wt(("m", 7))], 14: [pubk]}
        if cfg["qo"] == 2: fill[-1] = fill[-1][:8] + last + fill[-1][8:]
    if max(KK) > 2:
        fill[0] = ["s_waitcnt vmcnt(0)", rd_m(4, 0), dm(0)]; fill[5] = [rd_m(6, 0)]
    kextra = {}
    dp = cfg.get("dp", 0)
    m0b = f"s_add_u32 m0, s{S_KVL}, 8192"
    if dp:
        for g in (0, 2, 7, 9): fill[g] = fill[g][:1]
        fill[4] = fill[4][1:]
        fill[5] = ["s_waitcnt vmcnt(%d)" % (1 if dp in (1, 2) else 0), rd_m(6, 0)]
        if dp == 1:
            fill[2] += [dm(0)]; fill[7] += [dm(1)]; fill[9] += [m0b]; fill[12] = fill[12] + [dm(2)]; kextra = {5: [dm(3)]}
        if dp == 2:
            fill[2] += [dm(0)]; fill[9] += [dm(1)]; kextra = {3: [m0b], 5: [dm(2)], 11: [dm(3)]}
        if dp == 4:
            kextra = {4: [dm(0)], 7: [dm(1)], 9: [m0b], 11: [dm(2)], 14: [dm(3)]}
        if dp == 5:
            fill[9] += [dm(0)]; fill[12] = fill[12][:1] + [dm(1)] + fill[12][1:]; kextra = {3: [m0b], 5: [dm(2)], 7: [dm(3)]}
        if dp == 6:
            fill[0] += [dm(0)]; fill[1] = [rd_m(4, 1), dm(1), wt(("m", 1))]; fill[2] += [m0b]; fill[3] = [rd_m(5, 1), dm(2), wt(("m", 2))]; fill[4] = [dm(3)] + fill[4]
            fill[5] = ["s_waitcnt vmcnt(4)", rd_m(6, 0)]
        if dp == 7:
            pre = fill[-1]; fill[-1] = pre[:8] + [dm(0)] + pre[8:]; fill[0] += [dm(1)]; fill[2] += [m0b]; fill[3] = [rd_m(5, 1), dm(2), wt(("m", 2))]
            fill[5] = ["s_waitcnt vmcnt(3)", rd_m(6, 0)]; fill[7] += [dm(3)]
        if dp == 3:
            fill[7] += [dm(0)]; fill[12] = fill[12] + [dm(1)]; kextra = {3: [m0b], 6: [dm(2)], 14: [dm(3)]}
    if cfg.get("flp") == 1:
        fill[11] = []; kextra[7] = None
    pp = cfg.get("pubp", 0)
    if pp:
        pre = [rd_m(J, x) for J in range(4) for x in range(2)]
        fill[-1] = pre[:pp] + [pubk] + pre[pp:] + [wt(("m", 0)), SS("m0")]
        fill[13] = []; fill[5] = ["s_waitcnt vmcnt(3)", rd_m(6, 0)]
    pv = cfg.get("pv", 0); pkp = cfg.get("pkp", 0)
    if pv == 0: fill[15] = [pubv]
    if pkp: fill[13] = []
    for n, g in enumerate([10, 11, 13, 14] if cfg.get("qo") else [10, 12, 13, 14]): fill[g] = fill[g] + [z(ACB + 2 * n)]
    if cfg.get("adap"):
        def rl(): seq["late"] = e(f"ds_read_b32 v{T0}, v{A_TRK} offset:{L_KU - L_MEM}")
        fill[12] = [rl] + fill[12]
    GS("q", fill, 16)
    interleave(e, mq, fill)
    S("q")
    mk = [smf(ACB + 4 * t, MEMA + 4 * J, FRAG[("k", J, t)]) for J in range(8) for t in range(2)]
    def post_dup(acc, dst):
        return [f"v_add_f32 v{acc}, v{acc}, v{acc+2}", f"v_add_f32 v{acc+1}, v{acc+1}, v{acc+3}",
                f"v_cvt_pk_bf16_f32 v{dst}, v{acc}, v{acc+1}"]
    pq = post_dup(ACA, QP) + post_dup(ACA + 4, QP + 1)
    def rd_q(js, t):
        def f(): seq[("q", js)] = e(f"ds_read_b64_tr_b16 {vr(QB+4*js+2*t,2)}, v{A_TR} offset:{L_QU-L_MEM + js*1024 + t*512}")
        return f
    kxslot = [0, 1, 2, 3, 4, 5, 0, 1]
    def rd_kx(n):
        js, kt = n // 2, n % 2
        def f(): seq[("kx", n)] = e(f"ds_read_b128 {vr(KXA+4*kxslot[n],4)}, v{A_KX} offset:{(kt*4+js)*1024}")
        return f
    def wr_u(key, a, r, t):
        def f(): seq[key] = e(f"ds_write2_b32 v{a}, v{r}, v{r} offset0:{128*t} offset1:{128*t+1}")
        return f
    fill = {0: pq[0:2], 1: pq[2:4], 2: [wr_u("wq0", A_UW, QP, 0)] + pq[4:6], 3: [wr_u("wq1", A_UW, QP + 1, 1)],
            4: [rd_kx(0), f"v_add_u32 v{T0}, {L_KU - L_QU}, v{A_UW}"], 5: [rd_kx(1)], 6: [rd_kx(2)], 7: [rd_kx(3)],
            8: [wt("wq1"), SS("bq0"), "s_barrier", SS("bq1")],
            9: [rd_q(0, 0), rd_q(0, 1)], 10: [rd_q(1, 0), rd_q(1, 1)], 11: [rd_kx(4)], 12: [rd_q(2, 0), rd_kx(5)], 13: [rd_q(2, 1), rd_q(3, 0)],
            14: [rd_q(3, 1)], 15: [wt(("q", 1))]}
    if pkp == 1: fill[6] = fill[6] + [pubk]
    if pkp == 2: fill[11] = fill[11] + [pubk]
    if pv == 2: fill[14] = fill[14] + [pubv]
    if cfg.get("adap"): fill[3] = [wt("late")] + fill[3] + [f"v_readfirstlane_b32 s{S_LATE}, v{T0}"]
    kb = cfg.get("kb", 0)
    if kb == 1:
        fill.update({5: [rd_kx(1), rd_kx(2)], 6: [rd_kx(3)], 7: [wt("wq1"), "s_barrier"], 8: [rd_q(0, 0), rd_q(0, 1)], 9: [rd_q(1, 0)], 10: [rd_q(1, 1)],
                     11: [rd_kx(4)], 12: [rd_q(2, 0), rd_kx(5)]})
    if kb == 2:
        fill.update({5: [rd_kx(1)], 6: [wt("wq1"), "s_barrier"], 7: [rd_q(0, 0), rd_q(0, 1)], 8: [rd_kx(2)], 9: [rd_q(1, 0), rd_kx(3)], 10: [rd_q(1, 1)],
                     11: [rd_kx(4)], 12: [rd_q(2, 0), rd_kx(5)]})
    if kb == 3:
        fill = {0: pq[0:1], 1: pq[1:2], 2: pq[2:3], 3: [wr_u("wq0", A_UW, QP, 0)] + pq[3:4], 4: [rd_kx(0)] + pq[4:5], 5: [rd_kx(1)] + pq[5:6],
                6: [wr_u("wq1", A_UW, QP + 1, 1), f"v_add_u32 v{T0}, {L_KU - L_QU}, v{A_UW}"], 7: [rd_kx(2)], 8: [rd_kx(3)], 9: [rd_kx(4)],
                10: [wt("wq1"), "s_barrier"], 11: [rd_q(0, 0), rd_q(0, 1)], 12: [rd_q(1, 0), rd_q(1, 1)], 13: [rd_q(2, 0), rd_kx(5)],
                14: [rd_q(2, 1), rd_q(3, 0)], 15: [rd_q(3, 1), wt(("q", 0))]}
    for g, x in kextra.items():
        if x is None: fill[g] = flag; fill[6] = fill[6] + [rd_kx(3)]
        elif g == 4: fill[g] = fill[g][:1] + x + fill[g][1:]
        else: fill[g] = fill[g] + x
    if cfg.get("flp") == 1: fill[4] = [rd_kx(0)]; fill[8] = fill[8]; fill[15] = fill[15]; kadd = True
    GS("k", fill, 16)
    interleave(e, mk, fill)
    S("k")
    pk = post_dup(ACB, KP) + post_dup(ACB + 4, KP + 1)
    ms = []
    for js in range(4):
        for kt in range(2):
            n = js * 2 + kt
            ms.append(mf32(ACA + 4 * kt, KXA + 4 * kxslot[n], QB + 4 * js, "0" if js == 0 else ACA + 4 * kt))
    def rd_k(js, t):
        def f(): seq[("k", js)] = e(f"ds_read_b64_tr_b16 {vr(KXA+8+4*js+2*t,2)}, v{A_TRK} offset:{L_KU-L_MEM + js*1024 + t*512}")
        return f
    fill = {0: [rd_kx(6)] + pk[0:2], 1: [rd_kx(7)] + pk[2:4] + ([f"v_add_u32 v{T0}, {L_KU - L_QU}, v{A_UW}"] if cfg.get("flp") == 1 else []),
            2: [wr_u("wk0", T0, KP, 0)] + pk[4:6], 3: [wt(("q", 3)), z(ACB), z(ACB + 2)],
            4: [wr_u("wk1", T0, KP + 1, 1), z(ACB + 4), z(ACB + 6)],
            5: [wt(("kx", 7))],
            }
    if cfg.get("sxs") == 1:
        fill = {0: [rd_kx(6)], 1: [rd_kx(7)] + pk[0:2], 2: pk[2:4], 3: [wt(("q", 3))] + pk[4:6],
                4: [wr_u("wk0", T0, KP, 0), z(ACB), z(ACB + 2)], 5: [wt(("kx", 7)), z(ACB + 4), z(ACB + 6)], 6: [wr_u("wk1", T0, KP + 1, 1)]}
    if kb == 3: fill[1] = fill[1][:1] + [wt(("q", 1))] + fill[1][1:]
    GS("sx", fill, 8)
    interleave(e, ms, fill)
    S("Sx")
    mv = [smf(ACB + 4 * t, MEMA + 4 * J, FRAG[("v", J, t)]) for J in range(8) for t in range(2)]
    SM = KXA
    X0, X1 = ACA, ACA + 4
    mx, t2 = KXA + 4, KXA + 5
    e0 = XT
    NV1 = cfg.get("nv1", 10)
    msm = [mf32(SM, KXA + 8 + 4 * js, QB + 4 * js, "0" if js == 0 else SM) for js in range(4)]
    odd = f"s[{S_ODD}:{S_ODD+1}]"
    early = [f"v_max3_f32 v{mx}, v{X0}, v{X0+1}, v{X0+2}", f"v_max3_f32 v{t2}, v{X1}, v{X1+1}, v{X1+2}",
             f"v_max3_f32 v{mx}, v{mx}, v{X0+3}, v{X1+3}", f"v_max_f32 v{mx}, v{mx}, v{t2}",
             f"v_cndmask_b32 v{e0}, v{X0}, v{X0+2}, {odd}", f"v_cndmask_b32 v{e0+1}, v{X0+1}, v{X0+3}, {odd}",
             f"v_cndmask_b32 v{e0+2}, v{X1}, v{X1+2}, {odd}", f"v_cndmask_b32 v{e0+3}, v{X1+1}, v{X1+3}, {odd}"]
    seqm = mv[:NV1] + msm + mv[NV1:]
    PVB0, PVB1, OAC, PA, LB, LA = QB, QB + 8, KXA + 8, KXA + 16, KXA + 20, KXA + 4
    def rd_vx(n):
        t, hf = n // 2, n % 2
        def f(): seq["vx"] = e(f"ds_read_b64 {vr(QB+8*t+2+4*hf,2)}, v{A_VX} offset:{t*1024 + hf*512}")
        return f
    def rd_wo(T, hf):
        return rd_w(("wo", T), MEMA + 8 * (T % 4) + 4 * hf, FRAG[("o", (1, T // 2), T % 2)][1] + 1024 * hf)
    EE = [SM, SM + 1, e0, e0+1, e0+2, e0+3]
    fill = {0: [wt("wk1"), SS("bk0"), "s_barrier", SS("bk1")]}
    for n in range(8): fill[1 + n] = [rd_k(n // 2, n % 2), early[n]]
    xv = cfg.get("xv", 0)
    if xv == 2:
        fill = {1: early[0:1], 2: early[1:3], 3: early[3:5], 4: [wt("wk1"), "s_barrier"],
                5: [rd_k(0, 0), rd_k(0, 1)], 6: [rd_k(1, 0), rd_k(1, 1)], 7: [rd_k(2, 0), rd_k(2, 1)], 8: [rd_k(3, 0), rd_k(3, 1)]}
    if xv == 3:
        fill = {1: early[0:2], 2: early[2:4], 3: [wt("wk1"), "s_barrier"],
                4: [rd_k(0, 0), rd_k(0, 1)], 5: [rd_k(1, 0), rd_k(1, 1)], 6: [rd_k(2, 0)], 7: [rd_k(2, 1)], 8: [rd_k(3, 0), rd_k(3, 1)]}
    if xv == 1:
        for n in range(8): fill[1 + n] = [rd_k(n // 2, n % 2)]
        fill[7] += early[0:1]; fill[8] += early[1:2]
    if pv == 1: fill[0] = [pubv]
    if pv == 3: fill[6] = fill[6] + [pubv]
    fill[NV1 - 1] = [rd_wo(0, 0), wt(("k", 0)), SS("k0")] if NV1 - 1 > 8 else fill[NV1 - 1][:1] + [wt(("k", 0))] + fill[NV1 - 1][1:]
    lb = [f"v_mov_b64 {vr(LB,2)}, s[{S_LB}:{S_LB+1}]", f"v_mov_b64 {vr(LB+2,2)}, s[{S_LB}:{S_LB+1}]"]
    zz = [z(OAC), z(OAC + 2), z(OAC + 4), z(OAC + 6), f"v_mov_b32 v{PA+2}, 0"] + lb
    if xv == 1:
        fill[NV1 - 1] = fill[NV1 - 1] + early[2:3]
        fill[NV1] = [wt(("k", 1))] + early[3:5]
        fill[NV1 + 1] = [wt(("k", 2))] + early[5:7]
        fill[NV1 + 2] = [wt(("k", 3))] + early[7:8] + zz[0:1]
        fill[NV1 + 3] = [rd_vx(0)] + zz[1:3]
        zz = zz[3:]
    elif xv in (2, 3):
        rem = early[5:] if xv == 2 else early[4:]
        allv = rem + zz
        k0 = 2 if xv == 3 else 0
        fill[NV1] = [wt(("k", 1))]
        fill[NV1 + 1] = [wt(("k", 2))] + allv[0:k0]
        fill[NV1 + 2] = [wt(("k", 3))] + allv[k0:k0 + 2]
        fill[NV1 + 3] = [rd_vx(0)] + allv[k0 + 2:k0 + 4]
        zz = allv[k0 + 4:]
    else:
        fill[NV1] = [wt(("k", 1))] + zz[0:2]
        fill[NV1 + 1] = [wt(("k", 2))] + zz[2:4]
        fill[NV1 + 2] = [wt(("k", 3))] + zz[4:5]
        fill[NV1 + 3] = [rd_vx(0)] + zz[5:7]
        zz = []
    GS("v1", fill, 14)
    interleave(e, seqm[:NV1 + 4], fill)
    S("Sm")
    rest = seqm[NV1 + 4:]
    assert len(rest) == 6
    def run(x):
        for s in x: s() if callable(s) else e(s)
    run([rest[0], rd_vx(1), rd_vx(2)] + zz[0:1] + [rest[1], rd_vx(3), rd_wo(0, 1),
         f"v_max3_f32 v{mx}, v{mx}, v{SM}, v{SM+1}", f"v_mov_b32 v{t2}, v{mx}",
         rest[2], rd_wo(1, 0), rd_wo(1, 1),
         f"v_permlane32_swap_b32 v{mx}, v{t2}", f"v_max_f32 v{mx}, v{mx}, v{t2}", f"v_mov_b32 v{t2}, v{mx}",
         rest[3], rd_wo(2, 0), rd_wo(2, 1),
         f"v_permlane16_swap_b32 v{mx}, v{t2}", f"v_max_f32 v{mx}, v{mx}, v{t2}",
         rest[4], f"v_mul_f32 v{mx}, s{S_SC}, v{mx}", rest[5], rd_wo(3, 0), rd_wo(3, 1)] + zz[1:] + [
         ]
        + [f"v_fma_f32 v{x}, v{x}, s{S_SC}, -v{mx}" for x in EE] + [f"v_exp_f32 v{x}, v{x}" for x in EE]
        + [f"v_cvt_pk_bf16_f32 v{PA}, v{SM}, v{SM+1}", f"v_cvt_pk_bf16_f32 v{PA+1}, v{e0}, v{e0+1}", f"v_cvt_pk_bf16_f32 v{PA+3}, v{e0+2}, v{e0+3}",
           f"v_permlane32_swap_b32 v{PA}, v{PA+2}"])
    S("soft")
    cv = lambda t, h: f"v_cvt_pk_bf16_f32 v{QB+8*t+h}, v{ACB+4*t+2*h}, v{ACB+4*t+2*h+1}"
    run([cv(0, 0), cv(0, 1), mf32(LA, PA, LB, "0"), wt("vx"), cv(1, 0), cv(1, 1),
         f"v_smfmac_f32_16x16x64_bf16 {vr(OAC,4)}, {vr(PA,4)}, {vr(PVB0,8)}, v{IDX}", "s_nop 0",
         f"v_smfmac_f32_16x16x64_bf16 {vr(OAC+4,4)}, {vr(PA,4)}, {vr(PVB1,8)}, v{IDX}",
         ] + ([
         f"v_pk_add_f32 {vr(LA,2)}, {vr(LA,2)}, {vr(LA+2,2)}", f"v_rcp_f32 v{LA}, v{LA}", f"v_rcp_f32 v{LA+1}, v{LA+1}",
         f"v_pk_add_f32 {vr(OAC,2)}, {vr(OAC,2)}, {vr(OAC+2,2)}", f"v_pk_mul_f32 {vr(OAC,2)}, {vr(OAC,2)}, {vr(LA,2)}", "s_nop 0",
         f"v_pk_add_f32 {vr(OAC+4,2)}, {vr(OAC+4,2)}, {vr(OAC+6,2)}", f"v_cvt_pk_bf16_f32 v{OAC}, v{OAC}, v{OAC+1}",
         f"v_pk_mul_f32 {vr(OAC+4,2)}, {vr(OAC+4,2)}, {vr(LA,2)}", f"v_cvt_pk_bf16_f32 v{OAC+1}, v{OAC+4}, v{OAC+5}"] if cfg.get("usepk") else [
         f"v_add_f32 v{LA}, v{LA}, v{LA+2}", f"v_add_f32 v{LA+1}, v{LA+1}, v{LA+3}", f"v_rcp_f32 v{LA}, v{LA}", f"v_rcp_f32 v{LA+1}, v{LA+1}",
         f"v_add_f32 v{OAC}, v{OAC}, v{OAC+2}", f"v_add_f32 v{OAC+1}, v{OAC+1}, v{OAC+3}",
         f"v_mul_f32 v{OAC}, v{OAC}, v{LA}", f"v_mul_f32 v{OAC+1}, v{OAC+1}, v{LA+1}",
         f"v_add_f32 v{OAC+4}, v{OAC+4}, v{OAC+6}", f"v_add_f32 v{OAC+5}, v{OAC+5}, v{OAC+7}",
         f"v_mul_f32 v{OAC+4}, v{OAC+4}, v{LA}", f"v_mul_f32 v{OAC+5}, v{OAC+5}, v{LA+1}",
         f"v_cvt_pk_bf16_f32 v{OAC}, v{OAC}, v{OAC+1}", f"v_cvt_pk_bf16_f32 v{OAC+1}, v{OAC+4}, v{OAC+5}"]))
    WAC = [QB, QB + 4, QB + 8, QB + 12, ACA, ACA + 4, ACB, ACB + 4]
    so = e(f"ds_write_b64 v{A_UW}, {vr(OAC,2)}")
    S("ow")
    def vpost():
        for t in range(2):
            a = ACB + 4 * t
            e(f"v_pk_add_f32 {vr(a,2)}, {vr(a,2)}, {vr(a+2,2)}\nv_cvt_pk_bf16_f32 v{VP+t}, v{a}, v{a+1}")
    if cfg.get("mz") == 2:
        e(z(e0)); e(z(e0 + 2))
        vpost()
        e(f"v_mfma_f32_32x32x16_bf16 {vr(QB,16)}, {vr(e0,4)}, {vr(e0,4)}, 0")
        e(f"v_mfma_f32_32x32x16_bf16 {vr(ACA,16)}, {vr(e0,4)}, {vr(e0,4)}, 0")
    elif cfg.get("mz"):
        e(z(QB)); e(z(QB + 2))
        vpost()
        e(f"v_mfma_f32_32x32x16_bf16 {vr(ACA,16)}, {vr(QB,4)}, {vr(QB,4)}, 0")
        for r in range(4, 16, 2): e(z(QB + r))
    else:
        vpost()
        for r in range(0, 16, 2): e(z(QB + r))
        for r in range(0, 16, 2): e(z(ACA + r))
    e.waitlg(so)
    S("bo0")
    e("s_barrier")
    S("bo1")
    OA = KXA
    for J in range(2):
        for x in range(2):
            seq[("oa", J)] = e(f"ds_read_b64_tr_b16 {vr(OA+4*J+2*x,2)}, v{A_TR} offset:{L_QU-L_MEM + (2*J+x)*1024}")
    mo = []
    for p in range(4):
        for T in (2 * p, 2 * p + 1): mo.append(smf(WAC[T], OA, FRAG[("o", (0, T // 2), T % 2)]))
        for T in (2 * p, 2 * p + 1): mo.append(smf(WAC[T], OA + 4, ("v", MEMA + 8 * (T % 4))))
    RSO = OAC
    def post_pair(p):
        a, b = WAC[2 * p], WAC[2 * p + 1]; d = RSO + 2 * p
        return [f"v_add_f32 v{a}, v{a}, v{a+2}", f"v_add_f32 v{a+1}, v{a+1}, v{a+3}",
                f"v_cvt_pk_bf16_f32 v{d}, v{a}, v{a+1}", f"v_add_f32 v{b}, v{b}, v{b+2}",
                f"v_add_f32 v{b+1}, v{b+1}, v{b+3}", f"v_and_or_b32 v{d}, v{d}, -2, s{S_TAG}",
                f"v_cvt_pk_bf16_f32 v{d+1}, v{b}, v{b+1}",
                f"buffer_store_dwordx2 {vr(d,2)}, v{A_RSW}, {WS}, s{S_RSW0 if p < 2 else S_RSW1} offen offset:{(p%2)*2048}{st}"]
    p0, p1, p2, p3 = [post_pair(p) for p in range(4)]
    fill = {-1: [wt(("oa", 0)), SS("oa")], 1: [wt(("oa", 1))], 2: [rd_wo(4, 0), rd_wo(4, 1)], 3: [rd_wo(5, 0), rd_wo(5, 1)],
            4: ["s_nop 0"] + p0[0:1], 5: p0[1:3], 6: [rd_wo(6, 0), rd_wo(6, 1)] + p0[3:5], 7: [rd_wo(7, 0), rd_wo(7, 1)] + p0[5:7], 8: p0[7:8] + p1[0:1],
            9: [wt(("wo", 4))] + p1[1:3], 10: [wt(("wo", 5))] + p1[3:5], 11: p1[5:7],
            12: p1[7:8] + p2[0:1], 13: [wt(("wo", 6))] + p2[1:3], 14: [wt(("wo", 7))] + p2[3:5],
            15: p2[5:8] + p3[0:3] + ([p3[5]] + p3[3:5] + p3[6:] if not cfg.get("usepk") else [p3[5], f"v_pk_add_f32 {vr(WAC[7],2)}, {vr(WAC[7],2)}, {vr(WAC[7]+2,2)}"] + p3[6:]),
            }
    GS("wo", fill, 16)
    interleave(e, mo, fill)
    S("Wo")
    if cfg.get("push"): e(f"s_mov_b64 exec, 1\nbuffer_load_dword v{MEMA+23}, off, {WS}, s{S_RSW0} sc1\ns_mov_b64 exec, -1")
    if cfg.get("stepst"):
        for k in range(12): e(f"s_cmp_eq_u32 s{S_STEP}, {k}\ns_cselect_b32 s{20+k}, s84, s{20+k}")
    for w in (2, 0, 1): e(f"s_cmp_eq_u32 s{S_W}, {w}\ns_cbranch_scc1 {LOOP}_{w}")
    e(f"s_branch {LOOP}_3")
    for t in tail: t()
    if cfg.get("pre"):
        e.label(LAST + "W")
        ag_chk(AP, 0)
        e(f"s_cbranch_vccz {LAST}Z\ns_add_u32 s{S_SPIN}, s{S_SPIN}, 1\ns_cmp_gt_u32 s{S_SPIN}, {SPIN_MAX}\ns_cbranch_scc1 {LAST}Z")
        ag_ld(AP)
        e(f"s_branch {LAST}W")
        e.label(LAST + "Z")
        for r in range(0, 8, 2): e(f"v_mov_b64 {vr(ACA+r,2)}, 0")
    e.label(LAST)
    e("s_waitcnt vmcnt(0) lgkmcnt(0)\ns_barrier")
    for J in range(8):
        for x in range(2): rd_m(J, x)()
    e(pubk); e(pubv)
    e(f"s_add_u32 s{S_KVM}, s{S_KVM}, 0x20000")
    for r in range(0, 8, 2): e(z(ACB + r))
    e("s_waitcnt lgkmcnt(0)")
    for J in range(8):
        for t in range(2): e(smf(ACA + 4 * t, MEMA + 4 * J, FRAG[("k", J, t)]))
    for i, m in enumerate(mv):
        e(m)
        if 2 <= i < 8: e((post_dup(ACA, KP) + post_dup(ACA + 4, KP + 1))[i - 2])
        if i == 8: e(pubk)
    e.nop(8)
    vpost()
    e(pubv)
    e("s_waitcnt vmcnt(0) lgkmcnt(0)\ns_barrier")
    e(f"v_mov_b32 v{T0}, 64\ns_mov_b64 exec, s[{S_W0M}:{S_W0M+1}]")
    e(f"buffer_store_dword v{T0}, off, {WS}, s{S_CF} sc1")
    if cfg.get("gstamp"):
        e(f"s_memrealtime s[84:85]\ns_memtime s[86:87]\ns_waitcnt lgkmcnt(0)\ns_sub_u32 s86, s86, s16\nv_mov_b32 v24, s86\nv_mov_b32 v20, s3\nv_mov_b32 v21, s18\nv_mov_b32 v22, s84\nv_mov_b32 v23, s69")
        e(f"s_lshl_b32 s{S_TMP}, s{S_H}, 4\ns_add_u32 s{S_TMP}, s{S_TMP}, {WS_STAMP + 0x10000}")
        if cfg.get("stepst"):
            for k in range(12): e(f"v_mov_b32 v{30+k}, s{20+k}")
            e(f"s_lshl_b32 s{S_TMP2}, s{S_H}, 6\ns_add_u32 s{S_TMP2}, s{S_TMP2}, {WS_STAMP + 0x11000}")
            for k in range(3): e(f"buffer_store_dwordx4 v[{30+4*k}:{33+4*k}], off, {WS}, s{S_TMP2} offset:{16*k}")
        e(f"buffer_store_dwordx4 v[20:23], off, {WS}, s{S_TMP}\nbuffer_store_dword v24, off, {WS}, s{S_TMP} offset:1024")
    if cfg.get("dbgt"):
        for k, r in enumerate(("s69", "s18", "s84")):
            e(f"s_sub_u32 s{S_TMP}, {r}, s3\nv_mov_b32 v20, s{S_TMP}\nv_mov_b32 v21, {8 + 4*k}\nglobal_atomic_umax v21, v20, s[{S_DBG}:{S_DBG+1}]")
        e(f"v_mov_b32 v20, s60\nv_mov_b32 v21, 28\nglobal_atomic_or v21, v20, s[{S_DBG}:{S_DBG+1}]")
        e(f"v_mov_b32 v20, s86\nv_mov_b32 v21, 24\nglobal_atomic_umax v21, v20, s[{S_DBG}:{S_DBG+1}]")
    e("s_branch KEND")
```

```python
from asmlib import Em, vr
from layout import *

S_Q, S_K, S_V, S_SH, S_SSMK, S_SSMD, S_MEM0 = 4, 6, 8, 10, 12, 14, 16
S_WQ, S_WK, S_WV, S_WO, S_GATE, S_OUT, S_DBG, S_WS = 20, 22, 24, 26, 28, 30, 32, 34
R_WS, R_T, R_T2 = 36, 40, 44
S_W, S_XCC, S_GRP, S_H = 48, 49, 50, 51
S_W0M = 76
NINIT = 28 + 32
SPIN_MAX = 1 << 18
DBGC = False

def srd(e, r, p, size):
    e(f"s_mov_b32 s{r}, s{p}\ns_mov_b32 s{r+1}, s{p+1}\ns_mov_b32 s{r+2}, {size}\ns_mov_b32 s{r+3}, 0x20000")

def lane_consts(e, c, g, lane="v0"):
    e(f"v_and_b32 {c}, 15, {lane}\nv_lshrrev_b32 {g}, 4, {lane}")

def emit_UB(e, dst, c, b, t):
    e(f"v_lshrrev_b32 {t}, 1, {b}")
    e(f"v_lshl_add_u32 {t}, {t}, 3, {c}")
    e(f"v_and_b32 {t}, 15, {t}")
    e(f"v_lshl_add_u32 {t}, {b}, 4, {t}")
    e(f"v_lshlrev_b32 {dst}, 3, {t}")

IDX, A_RSR, A_AGW, A_AGR, A_TR, A_TRK, A_UW, A_W, A_KX, A_VX, T0, A_RSW, SEL = 0, 1, 2, 3, 4, 5, 6, 7, 8, 9, 10, 11, 12
MEMA, QB, KXA, XT, ACA, ACB = 16, 48, 64, 88, 96, 104
WV0 = 112
S_STEP, S_RSW0, S_RSW1, S_RSR0, S_RSR1, S_AGW, S_AGRST, S_AGR0, S_AGR1 = 52, 53, 54, 55, 56, 57, 58, 59, 60
S_KVG, S_KVL, S_KVM, S_READY, S_SPIN, S_AGSLOT, S_TMP, S_TMP2 = 61, 62, 63, 64, 65, 66, 67, 68
S_M0, S_M1, S_M2 = 70, 72, 74
S_AGM = 72
S_ODD = 78
S_SC = 80
S_CF = 81
S_MODE = 82
S_TAG = 83
S_KVG2, S_FLV = 10, 11
S_XG0, S_XL0 = 96, 97
S_KFO = 58
S_JMP = 6
S_LATE = 7
S_MARK, S_MADR = 6, 7
S_RSR = [55, 56, 4, 5]
S_EM, S_LM, S_LB = 4, 6, 8
S_AGM2 = 74
S_ST = 84

import os
_o0 = [("o", (0, p)) for p in range(4)]; _o1 = [("o", (1, p)) for p in range(4)]
_q = [("q", J) for J in range(3, 8)]; _k = [("k", J) for J in range(8)]; _v = [("v", J) for J in range(8)]; _ql = [("q", 0), ("q", 1), ("q", 2)]
BLOCKS = {"0": _q + _k + _v + _o0 + _ql + _o1, "1": _o0 + _q + _k + _v + _ql + _o1, "2": _o0 + _q + _k + _v + _o1 + _ql,
          "3": _q + _o0 + _k + _v + _ql + _o1}[os.environ.get("BORD", "0")]
NREG = 25
def frag_reg(i):
    if i < 32: return ("a", 8 * i)
    return ("v", WV0 + 8 * (i - 32))
FRAG = {}
for n, (m, J) in enumerate(BLOCKS):
    for t in range(2):
        if n < NREG: FRAG[(m, J, t)] = frag_reg(2 * n + t)
        else: FRAG[(m, J, t)] = ("lds", (n - NREG) * 4096 + t * 2048)
def slot_addr(n):
    s = n % 10
    wl = {5: 0, 6: 1, 7: 2, 8: 3, 9: 4, 0: 5, 1: 6}
    return ("wl", wl[s]) if s in wl else ("ot", s - 2)

def wait_init(e, tag, vt):
    l = e.newlabel("WI"); d = e.newlabel("WID")
    e(f"v_mbcnt_lo_u32_b32 v{vt+1}, -1, 0\nv_mbcnt_hi_u32_b32 v{vt+1}, -1, v{vt+1}\nv_lshlrev_b32 v{vt+1}, 2, v{vt+1}")
    e.label(l)
    e(f"global_load_dword v{vt}, v{vt+1}, s[{S_DBG}:{S_DBG+1}] sc1")
    e(f"s_add_u32 s{S_SPIN}, s{S_SPIN}, 1")
    e("s_waitcnt vmcnt(0)")
    e(f"v_readlane_b32 s{S_TMP}, v{vt}, {DBG_INIT//4}")
    e(f"s_cmp_ge_u32 s{S_TMP}, {NINIT}\ns_cbranch_scc1 {d}")
    e("s_sleep 16")
    e(f"s_cmp_lt_u32 s{S_SPIN}, {SPIN_MAX}\ns_cbranch_scc1 {l}")
    e.label(d)

def kv_poll(e, va, vb, done):
    l = e.newlabel("KR")
    e("s_waitcnt vmcnt(0)")
    e(f"v_mbcnt_lo_u32_b32 v{vb}, -1, 0\nv_mbcnt_hi_u32_b32 v{vb}, -1, v{vb}\nv_lshlrev_b32 v{vb}, 2, v{vb}")
    e.label(l)
    if DBGC: e(f"s_lshl_b32 s{S_TMP}, 1, s{S_STEP}\ns_or_b32 s60, s60, s{S_TMP}\ns_add_u32 s57, s57, 0")
    e(f"s_lshl_b32 s{S_TMP}, s{S_H}, 8")
    e(f"buffer_load_dword v{va}, v{vb}, s[{R_WS}:{R_WS+3}], s{S_TMP} offen sc1")
    e(f"s_add_u32 s{S_SPIN}, s{S_SPIN}, 1")
    e("s_waitcnt vmcnt(0)")
    e(f"v_cmp_eq_u32 vcc, 0, v{va}\ns_ff1_i32_b64 s{S_READY}, vcc")
    e(f"s_cmp_gt_u32 s{S_READY}, s{S_TMP2}\ns_cbranch_scc1 {done}")
    e("s_sleep 16")
    e(f"s_cmp_lt_u32 s{S_SPIN}, {SPIN_MAX}\ns_cbranch_scc1 {l}")
    e(f"s_branch {done}")

def kv_ready(e, delta, va, vb):
    d = e.newlabel("KRD")
    e(f"s_add_u32 s{S_TMP2}, s{S_STEP}, {delta}\ns_cmp_gt_u32 s{S_READY}, s{S_TMP2}\ns_cbranch_scc1 {d}")
    kv_poll(e, va, vb, d)
    e.label(d)

def kv_dma(e, g=None, l=None):
    out = []
    for i in range(4):
        pre = [f"s_add_u32 m0, s{l or S_KVL}, {(i//2)*8192}", f"s_add_u32 s{S_TMP}, s{g or S_KVG}, {(i//2)*8192}"]
        out.append(pre + [f"buffer_load_dwordx4 v{A_AGR}, s[{R_WS}:{R_WS+3}], s{S_TMP} offen offset:{(i%2)*1024} sc1 lds"])
    return out

NPRE = 5
QL = [(0, 0), (0, 1), (2, 0), (2, 1), (1, 0), (1, 1)] if os.environ.get('V13') else [(0, 0), (0, 1), (1, 0), (1, 1), (2, 0), (2, 1)]
def rd_ql(e, n, r):
    off = FRAG[("q",) + QL[n]][1]
    e(f"ds_read_b128 {vr(r,4)}, v{A_W} offset:{off}")
    return e(f"ds_read_b128 {vr(r+4,4)}, v{A_W} offset:{off+1024}")
def preload_q(e):
    for n in range(NPRE): rd_ql(e, n, QB + 8 * n)

S_KF = 12
def kv_peek(e):
    e(f"s_min_u32 s{S_TMP}, s{S_STEP}, 59\ns_lshl_b32 s{S_TMP}, s{S_TMP}, 2\ns_add_u32 s{S_TMP}, s{S_TMP}, s{S_KFO}")
    e(f"s_load_dwordx4 s[{S_KF}:{S_KF+3}], s[{S_WS}:{S_WS+1}], s{S_TMP} glc")
def kv_fold(e):
    e(f"s_min_u32 s{S_TMP}, s{S_STEP}, 59\ns_add_u32 s{S_TMP}, s{S_TMP}, 1\ns_add_u32 s{S_TMP}, s{S_TMP}, s{S_KF}")
    for k in range(1, 4): e(f"s_and_b32 s{S_KF}, s{S_KF}, s{S_KF+k}\ns_add_u32 s{S_TMP}, s{S_TMP}, s{S_KF}")
    e(f"s_cmp_ge_u32 s{S_TMP}, 64\ns_cselect_b32 s{S_TMP}, -1, s{S_TMP}\ns_max_u32 s{S_READY}, s{S_READY}, s{S_TMP}")

def chain_prologue(e, cfg={}):
    e("; ---- chain prologue")
    if cfg.get("prost") == 2: e("s_memrealtime s[92:93]")
    lane_consts(e, "v16", "v17")
    e("v_and_b32 v18, 3, v0\nv_lshrrev_b32 v19, 2, v0")
    e(f"s_lshl_b32 s{S_TMP}, s{S_H}, 8\ns_lshl_b32 s{S_TMP2}, s{S_W}, 6\ns_add_u32 s{S_TMP}, s{S_TMP}, s{S_TMP2}")
    e(f"v_lshlrev_b32 v20, 13, v19\nv_lshl_add_u32 v20, v18, 4, v20\nv_add_u32 v20, s{S_TMP}, v20")
    e(f"s_lshl_b32 s{S_TMP}, s{S_H}, 17\ns_lshl_b32 s{S_TMP2}, s{S_W}, 8\ns_add_u32 s{S_TMP}, s{S_TMP}, s{S_TMP2}")
    e(f"v_lshlrev_b32 v21, 10, v19\nv_lshl_add_u32 v21, v18, 4, v21\nv_add_u32 v21, s{S_TMP}, v21")
    e("v_and_b32 v22, 1, v17\nv_lshlrev_b32 v22, 5, v22")
    e("v_lshrrev_b32 v23, 1, v17\nv_lshl_add_u32 v22, v23, 2, v22")
    e("v_lshrrev_b32 v23, 3, v16\nv_lshl_add_u32 v22, v23, 4, v22")
    e("v_bfe_u32 v23, v16, 2, 1\nv_add_u32 v22, v22, v23")
    e("v_lshlrev_b32 v22, 6, v22\nv_lshl_add_u32 v22, v18, 3, v22")
    e(f"s_mul_i32 s{S_KVL}, s{S_W}, 28672")
    e(f"s_mul_i32 s{S_KVG}, s{S_W}, 12288\ns_add_u32 s{S_KVG}, s{S_KVG}, {L_KVB}")
    e(f"v_add_u32 v24, s{S_KVL}, v22\nv_add_u32 v25, s{S_KVG}, v22")
    e(f"v_lshl_add_u32 v{A_W}, v0, 4, s{S_KVL}")
    RW = {"q": R_T, "k": R_T2, "v": 84, "o": 88}
    for m, p in (("q", S_WQ), ("k", S_WK), ("v", S_WV), ("o", S_WO)): srd(e, RW[m], p, 0x400000)
    def issue(n):
        m, J = BLOCKS[n]
        kind, k = slot_addr(n)
        base = S_KVL if kind == "wl" else S_KVG
        for i in range(4):
            e(f"s_add_u32 m0, s{base}, {k*4096 + i*1024}")
            if m == "o":
                so = (64 * J[0] + 16 * i) * 1024 + J[1] * 64
                e(f"s_mov_b32 s{S_TMP}, {so}")
                e(f"buffer_load_dwordx4 v21, s[{RW[m]}:{RW[m]+3}], s{S_TMP} offen lds")
            else:
                so = (64 * J + 16 * i) * 8192
                e(f"s_mov_b32 s{S_TMP}, {so}")
                e(f"buffer_load_dwordx4 v20, s[{RW[m]}:{RW[m]+3}], s{S_TMP} offen lds")
    def consume(n, outstanding):
        m, J = BLOCKS[n]
        kind, k = slot_addr(n)
        e(f"s_waitcnt vmcnt({outstanding})")
        av = "v24" if kind == "wl" else "v25"
        for t in range(2):
            f = FRAG[(m, J, t)]
            for mm in range(4):
                off = k * 4096 + (8 * (mm // 2) + 2 * (mm % 2)) * 64 + t * 32
                if f[0] == "lds": dst = vr(32 + 8 * t + 2 * mm, 2)
                else: dst = vr(f[1] + 2 * mm, 2, f[0])
                e(f"ds_read_b64_tr_b16 {dst}, {av} offset:{off}")
        e("s_waitcnt lgkmcnt(0)")
        if n >= NREG:
            for t in range(2):
                for hf in range(2):
                    e(f"ds_write_b128 v{A_W}, {vr(32+8*t+4*hf,4)} offset:{k*4096 + t*2048 + hf*1024}")
            e("s_waitcnt lgkmcnt(0)")
    N = len(BLOCKS)
    if cfg.get("tlbw"):
        e(f"v_lshlrev_b32 v26, 16, v0\ns_lshl_b32 s{S_TMP}, s{S_H}, 11\nv_add_u32 v26, s{S_TMP}, v26")
        for m in "qkvo": e(f"buffer_load_dword v27, v26, s[{RW[m]}:{RW[m]+3}], 0 offen")
        if cfg["tlbw"] == 2: e("s_waitcnt vmcnt(0)")
    DEP = cfg.get("dep", 4); LEAD = cfg.get("lead", 0)
    def touch(n):
        m, J = BLOCKS[n]
        so = (64 * J[0]) * 1024 + J[1] * 64 if m == "o" else 64 * J * 8192
        e(f"s_mov_b32 s{S_TMP}, {so}\nbuffer_load_dword v70, v{69 if m == 'o' else 68}, s[{RW[m]}:{RW[m]+3}], s{S_TMP} offen")
    if LEAD:
        e(f"s_and_b32 s{S_TMP}, s{S_H}, 3\ns_lshl_b32 s{S_TMP}, s{S_TMP}, 2\ns_add_u32 s{S_TMP}, s{S_TMP}, s{S_W}\ns_lshl_b32 s{S_TMP}, s{S_TMP}, 15")
        e(f"s_lshr_b32 s{S_TMP2}, s{S_H}, 2\ns_lshl_b32 s{S_TMP2}, s{S_TMP2}, 10\ns_add_u32 s{S_TMP}, s{S_TMP}, s{S_TMP2}")
        e(f"v_lshlrev_b32 v68, 13, v17\nv_lshl_add_u32 v68, v16, 6, v68\nv_add_u32 v68, s{S_TMP}, v68")
        e(f"s_lshl_b32 s{S_TMP}, s{S_H}, 17\ns_lshl_b32 s{S_TMP2}, s{S_W}, 14\ns_add_u32 s{S_TMP}, s{S_TMP}, s{S_TMP2}")
        e(f"v_lshlrev_b32 v69, 10, v19\nv_lshl_add_u32 v69, v18, 8, v69\nv_add_u32 v69, s{S_TMP}, v69")
    e(f"v_mov_b64 v[32:33], -1\nv_mov_b64 v[34:35], -1\ns_lshl_b32 s{S_TMP}, s{S_H}, 13\ns_lshl_b32 s{S_TMP2}, s{S_W}, 11\ns_add_u32 s{S_TMP}, s{S_TMP}, s{S_TMP2}\ns_add_u32 s{S_TMP}, s{S_TMP}, {WS_RS}")
    e(f"v_lshlrev_b32 v36, 4, v0\nbuffer_store_dwordx4 v[32:35], v36, s[{R_WS}:{R_WS+3}], s{S_TMP} offen sc1\nbuffer_store_dwordx4 v[32:35], v36, s[{R_WS}:{R_WS+3}], s{S_TMP} offen offset:1024 sc1")
    e(f"s_mul_i32 s{S_TMP}, s{S_H}, 768\ns_lshl_b32 s{S_TMP2}, s{S_W}, 8\ns_add_u32 s{S_TMP}, s{S_TMP}, s{S_TMP2}\ns_add_u32 s{S_TMP}, s{S_TMP}, {WS_AG}")
    e(f"s_cmp_lt_u32 s{S_W}, 3\ns_cselect_b32 exec_lo, 0xffff, 0\ns_mov_b32 exec_hi, 0\nbuffer_store_dwordx4 v[32:35], v36, s[{R_WS}:{R_WS+3}], s{S_TMP} offen sc1\ns_mov_b64 exec, -1")
    srd(e, 92, S_MEM0, 8192)
    e(f"s_lshl_b32 s{S_TMP}, s{S_W}, 8")
    e(f"v_lshlrev_b32 v26, 11, v17\nv_lshl_add_u32 v26, v16, 1, v26\nv_add_u32 v26, s{S_TMP}, v26")
    mem0_ld = []
    for u in range(4):
        mem0_ld += [f"buffer_load_ushort v{48+2*u}, v26, s[92:95], 0 offen offset:{u*64}", f"buffer_load_ushort v{49+2*u}, v26, s[92:95], 0 offen offset:{u*64+32}",
                    f"buffer_load_ushort v{56+2*u}, v26, s[92:95], 0 offen offset:{u*64+1024}", f"buffer_load_ushort v{57+2*u}, v26, s[92:95], 0 offen offset:{u*64+32+1024}"]
    for n in range(DEP):
        if cfg.get("prost") == 2 and n == 1: e("s_memrealtime s[94:95]")
        issue(n)
    if cfg.get("prost") == 2: e("s_memrealtime s[96:97]")
    for n in range(DEP, DEP + LEAD): touch(n)
    for x in mem0_ld: e(x)
    e(f"v_and_b32 v26, 2, v0\nv_cmp_eq_u32 vcc, 2, v26\nv_mov_b32 v27, 0x44444444\nv_mov_b32 v28, 0xeeeeeeee")
    e(f"s_mov_b64 s[{S_ODD}:{S_ODD+1}], vcc")
    e(f"v_cndmask_b32 v29, v27, v28, vcc")
    for r in range(4):
        e(f"v_mov_b32 v{SEL+r}, 0")
    e("v_mov_b32 v27, 0x3f80\nv_mov_b32 v28, 0x3f800000")
    for j in range(8):
        e(f"v_cmp_eq_u32 vcc, {j}, v16\ns_nop 1\nv_cndmask_b32 v{SEL+j//2}, v{SEL+j//2}, v{27+(j%2)}, vcc")
    e(f"s_and_b32 s{S_TMP}, s{S_W}, 2\ns_lshl_b32 s{S_TMP}, s{S_TMP}, 11\ns_lshl_b32 s{S_TMP2}, s{S_H}, 7\ns_add_u32 s{S_TMP}, s{S_TMP}, s{S_TMP2}")
    e(f"v_lshrrev_b32 v26, 3, v0\nv_and_b32 v27, 7, v0\nv_lshlrev_b32 v{A_RSR}, 13, v26\nv_lshl_add_u32 v{A_RSR}, v27, 4, v{A_RSR}\nv_add_u32 v{A_RSR}, s{S_TMP}, v{A_RSR}")
    e(f"s_lshl_b32 s{S_TMP2}, s{S_W}, 9\nv_lshl_add_u32 v{A_RSW}, v0, 3, s{S_TMP2}")
    e(f"v_and_b32 v26, 1, v17\nv_lshl_add_u32 v26, v27, 1, v26\ns_and_b32 s{S_TMP2}, s{S_H}, 3\nv_mov_b32 v27, s{S_TMP2}")
    emit_UB(e, f"v{A_AGW}", "v26", "v27", "v28")
    e(f"s_and_b32 s{S_TMP}, s{S_TMP}, 0xfffffe00\nv_add_u32 v{A_AGW}, s{S_TMP}, v{A_AGW}")
    e(f"s_mov_b32 s{S_AGM}, 0x00FF00FF\ns_mov_b32 s{S_AGM+1}, 0\ns_mov_b32 s{S_AGM2}, -1\ns_mov_b32 s{S_AGM2+1}, 0")
    e(f"v_bfe_u32 v26, v0, 3, 1\nv_lshl_add_u32 v{A_AGW}, v26, 14, v{A_AGW}")
    e(f"s_lshl_b32 s{S_TMP}, s{S_W}, 11\ns_add_u32 s{S_TMP}, s{S_TMP}, {L_MEM}")
    e(f"v_lshl_add_u32 v{A_AGR}, v0, 4, s{S_TMP}")
    e(f"s_lshl_b32 s{S_TMP}, s{S_W}, 10\ns_add_u32 s{S_TMP}, s{S_TMP}, {L_QU}")
    emit_UB(e, f"v{A_UW}", "v16", "v17", "v28")
    e(f"v_add_u32 v{A_UW}, s{S_TMP}, v{A_UW}")
    e("v_lshrrev_b32 v26, 2, v16\nv_lshl_add_u32 v26, v17, 2, v26")
    emit_UB(e, f"v{A_TR}", "v26", "v18", "v28")
    e(f"v_add_u32 v{A_TR}, {L_MEM}, v{A_TR}")
    e("v_and_b32 v27, 1, v18\nv_lshlrev_b32 v27, 1, v27\nv_lshrrev_b32 v28, 1, v18\nv_or_b32 v27, v27, v28")
    emit_UB(e, f"v{A_TRK}", "v26", "v27", "v28")
    e(f"v_add_u32 v{A_TRK}, {L_MEM}, v{A_TRK}")
    e(f"v_lshlrev_b32 v{A_KX}, 4, v0\nv_add_u32 v{A_KX}, {L_KVB}, v{A_KX}")
    e(f"v_lshrrev_b32 v26, 1, v17\nv_lshl_add_u32 v26, v26, 4, v16\nv_lshlrev_b32 v26, 4, v26\nv_and_b32 v27, 1, v17\nv_lshl_add_u32 v26, v27, 3, v26")
    e(f"s_lshl_b32 s{S_TMP}, s{S_W}, 11\ns_add_u32 s{S_TMP}, s{S_TMP}, {L_KVB + 8192}\nv_add_u32 v{A_VX}, s{S_TMP}, v26")
    e(f"v_lshlrev_b32 v65, 2, v0\ns_mov_b32 s{S_STEP}, 0\ns_mov_b32 s{S_READY}, 0\ns_mov_b32 s{S_MODE}, 0")
    WSR = f"s[{R_WS}:{R_WS+3}]"
    S_PG = 98
    if cfg.get("fair"):
        e(f"s_lshl_b32 s{S_PG}, s{S_H}, 2\ns_add_u32 s{S_PG}, s{S_PG}, s{S_W}\ns_lshl_b32 s{S_PG}, s{S_PG}, 2\ns_mov_b32 s{S_PG+2}, {WS_AG + 0x8000}\ns_add_u32 s{S_PG}, s{S_PG}, s{S_PG+2}")
        e(f"v_mov_b32 v69, 0\ns_mov_b64 exec, 1\nbuffer_store_dword v69, off, {WSR}, s{S_PG}\ns_mov_b64 exec, -1")
    order = [("B", n) for n in range(DEP) for _ in range(4)] + [("T", 1)] * LEAD + [("M", 0)] * (17 if cfg.get("fair") else 16)
    def after(kind, n):
        last = max(i for i, x in enumerate(order) if x == (kind, n))
        return min(len(order) - 1 - last, 63)
    for n in range(N):
        consume(n, after("B", n))
        for k, (a_, b_) in enumerate(cfg.get("pace", [])):
            if n == a_:
                e(f"s_barrier\nv_mov_b32 v36, {DBG_PACE + 64*0 + 4*k}\nv_mov_b32 v37, 1\ns_mov_b64 exec, s[{S_W0M}:{S_W0M+1}]\nglobal_atomic_add v36, v37, s[{S_DBG}:{S_DBG+1}]\ns_mov_b64 exec, -1"); order.append(("P", k))
            if n == b_:
                l = e.newlabel("PC"); d = e.newlabel("PCD")
                e(f"s_cmp_eq_u32 s{S_W}, 0\ns_cbranch_scc0 {d}")
                e.label(l)
                e(f"s_load_dword s{S_TMP}, s[{S_DBG}:{S_DBG+1}], {DBG_PACE + 4*k} glc\ns_add_u32 s{S_SPIN}, s{S_SPIN}, 1\ns_waitcnt lgkmcnt(0)")
                e(f"s_cmp_ge_u32 s{S_TMP}, 32\ns_cbranch_scc1 {d}\ns_sleep 8\ns_cmp_lt_u32 s{S_SPIN}, {SPIN_MAX}\ns_cbranch_scc1 {l}")
                e.label(d)
                e("s_barrier")
        W_ = cfg.get("fair")
        if W_ and n % cfg.get("fstep", 2) == 0 and 2 <= n <= 26:
            pl, pd = e.newlabel("FR"), e.newlabel("FRD")
            e(f"v_mov_b32 v69, {n}\ns_mov_b64 exec, 1\nbuffer_store_dword v69, off, {WSR}, s{S_PG}\ns_mov_b64 exec, -1"); order.append(("G", n))
            if ('G', n - cfg.get('fstep', 2)) in order:
                e(f"s_mov_b32 s{S_PG+1}, 0\ns_waitcnt vmcnt({after('G', n - cfg.get('fstep', 2))})")
                e.label(pl)
                e(f"v_min_i32 v70, v70, v71\nv_cmp_gt_i32 vcc, {max(n - W_, 0)}, v70\ns_cbranch_vccz {pd}")
                e(f"buffer_load_dword v70, v65, {WSR}, s{S_PG+2} offen sc1\nbuffer_load_dword v71, v65, {WSR}, s{S_PG+2} offen offset:256 sc1")
                e(f"s_add_u32 s{S_PG+1}, s{S_PG+1}, 1\ns_waitcnt vmcnt(0)\ns_cmp_lt_u32 s{S_PG+1}, 12\ns_cbranch_scc1 {pl}")
                e.label(pd)
            e(f"buffer_load_dword v70, v65, {WSR}, s{S_PG+2} offen sc1\nbuffer_load_dword v71, v65, {WSR}, s{S_PG+2} offen offset:256 sc1"); order += [("G", n)] * 2
        if LEAD and n + DEP + LEAD < N:
            touch(n + DEP + LEAD); order.append(("T", 1))
        if n + DEP < N:
            issue(n + DEP); order += [("B", n + DEP)] * 4
        if n == cfg.get("ctouch", -1):
            e(f"s_mul_i32 s{S_TMP}, s{S_H}, 21\nv_add_u32 v67, s{S_TMP}, v0\nv_lshlrev_b32 v67, 16, v67\ns_mul_i32 s{S_TMP}, s{S_W0M}, 0x1fffff\ns_mov_b32 exec_lo, s{S_TMP}\ns_mov_b32 exec_hi, 0\ns_mov_b32 s{S_TMP}, {WS_KV}")
            e(f"buffer_load_dword v68, v67, {WSR}, s{S_TMP} offen sc1\ns_mov_b64 exec, -1"); order.append(("T", 0))
        if n == 1:
            e(f"s_barrier\nv_mov_b32 v36, {DBG_INIT}\nv_mov_b32 v37, 1\ns_mov_b64 exec, s[{S_W0M}:{S_W0M+1}]")
            e(f"global_atomic_add v36, v37, s[{S_DBG}:{S_DBG+1}]\ns_mov_b64 exec, -1"); order.append(("I", 0))
        if n == cfg.get("lwait", -1):
            e(f"v_mov_b32 v36, {DBG_PACE}\nv_mov_b32 v37, 1\ns_mov_b64 exec, s[{S_W0M}:{S_W0M+1}]")
            e(f"global_atomic_add v36, v37, s[{S_DBG}:{S_DBG+1}]\ns_mov_b64 exec, -1"); order.append(("L", 0))
        if n == 16:
            e(f"global_load_dword v64, v65, s[{S_DBG}:{S_DBG+1}] sc1"); order.append(("D", 0))
        if n == 23:
            e(f"v_readlane_b32 s{S_TMP}, v64, {DBG_INIT//4}\nv_readlane_b32 s{S_MODE}, v64, {DBG_XCC(0)//4}\nv_mov_b32 v66, 0")
            e(f"s_cmp_ge_u32 s{S_TMP}, {NINIT}\ns_cselect_b32 s{S_MODE}, s{S_MODE}, 0\ns_cselect_b64 exec, -1, 0\ns_lshl_b32 s{S_TMP}, s{S_H}, 8")
            e(f"buffer_load_dword v66, v65, {WSR}, s{S_TMP} offen sc1\ns_mov_b64 exec, -1"); order.append(("F", 0))
        if n == 28:
            e("s_barrier")
            e(f"v_cmp_eq_u32 vcc, 0, v66\ns_ff1_i32_b64 s{S_READY}, vcc")
            e(f"s_lshl_b32 s{S_TMP}, s{S_H}, 14\ns_add_u32 s{S_XG0}, s{S_TMP}, {WS_KV - L_MEM}\ns_lshl_b32 s{S_TMP}, s{S_W}, 11\ns_add_u32 s{S_XL0}, s{S_TMP}, {L_KVB}")
            e(f"s_cmp_gt_u32 s{S_READY}, 0\ns_cselect_b64 exec, -1, 0")
            for grp in kv_dma(e, S_XG0, S_XL0):
                for x in grp: e(x)
            e("s_mov_b64 exec, -1"); order += [("K", 0)] * 4
            for r in range(8): e(f"v_lshl_or_b32 v{48+r}, v{56+r}, 16, v{48+r}")
            e(f"s_lshl_b32 s{S_TMP}, s{S_W}, 9\ns_add_u32 s{S_TMP}, s{S_TMP}, {L_QU - L_MEM}\nv_subrev_u32 v27, s{S_TMP}, v{A_UW}")
            for u in range(4): e(f"ds_write_b64 v27, {vr(48+2*u,2)} offset:{u*2048}")
            e("s_waitcnt lgkmcnt(0)")
            preload_q(e)
            for r in range(0, 16, 2): e(f"v_mov_b64 {vr(ACA+r,2)}, 0")
            e(f"v_mov_b32 v{IDX}, v29")
            e(f"s_lshl_b32 s{S_TMP}, s{S_H}, 13")
            e(f"s_add_u32 s{S_RSW0}, s{S_TMP}, {WS_RS}\ns_add_u32 s{S_RSW1}, s{S_RSW0}, 4096")
            for i in range(4): e(f"s_mov_b32 s{S_RSR[i]}, {WS_RS + 0x10000 * i}")
            e(f"s_mov_b32 s{S_AGSLOT}, 0\ns_mov_b32 s{S_AGW}, {WS_AG}\ns_mov_b32 s{S_TAG}, 0")
            e(f"s_lshl_b32 s{S_TMP}, s{S_H}, 12\ns_add_u32 s{S_KVM}, s{S_TMP}, {WS_KVM - 0x20000}")
            e(f"s_mov_b32 s{S_LB}, 0x3f003f00\ns_mov_b32 s{S_LB+1}, 0x3f803f80")
            e(f"s_lshl_b32 s{S_CF}, s{S_H}, 7\ns_add_u32 s{S_CF}, s{S_CF}, {FL_CFLAG}")
            e(f"s_mov_b32 s{S_SC}, 0x3e0293ee")
            e(f"s_lshl_b32 s{S_KFO}, s{S_H}, 8\ns_add_u32 s{S_KFO}, s{S_KFO}, 4")
        if n == 29: kv_peek(e)
        if n == 29 and cfg.get("wrm"):
            for sl in range(3):
                e(f"s_mov_b32 s{S_TMP}, {WS_AG - L_MEM + 0x2000 * sl}")
                for o in (0, 1024): e(f"buffer_load_dwordx4 v[88:91], v{A_AGR}, {WSR}, s{S_TMP} offen offset:{o} sc1"); order.append(("W", 0))
            for i in range(4): e(f"buffer_load_dwordx4 v[88:91], v{A_RSR}, {WSR}, s{S_RSR[i]} offen sc1"); order.append(("W", 0))
        if cfg.get("help") and n == 26:
            e(f"v_mov_b32 v36, {DBG_PACE}\nv_mov_b32 v37, 1\ns_mov_b64 exec, 1\nglobal_atomic_add v88, v36, v37, s[{S_DBG}:{S_DBG+1}] sc0\ns_mov_b64 exec, -1"); order.append(("H", 0))
    if cfg.get("help"):
        e(f"v_readfirstlane_b32 s{S_TMP}, v88\ns_cmp_lt_u32 s{S_TMP}, {cfg['help']}\ns_cbranch_scc0 HELP_E")
        k = 0
        for rnd in range(3):
            for d in range(1, 4):
                nb = cfg.get("hfrom", 23) + 3 * rnd + d - 1
                if nb >= N: continue
                m, J = BLOCKS[nb]
                e(f"s_add_u32 s{S_TMP2}, s{S_H}, {d}\ns_and_b32 s{S_TMP2}, s{S_TMP2}, 3\ns_and_b32 s{S_TMP}, s{S_H}, 3\ns_sub_i32 s{S_TMP2}, s{S_TMP2}, s{S_TMP}")
                e(f"s_lshl_b32 s{S_TMP2}, s{S_TMP2}, {17 if m == 'o' else 8}\nv_add_u32 v89, s{S_TMP2}, v{21 if m == 'o' else 20}")
                for i in range(4):
                    so = (64 * J[0] + 16 * i) * 1024 + J[1] * 64 if m == "o" else (64 * J + 16 * i) * 8192
                    e(f"s_mov_b32 s{S_TMP}, {so}\nbuffer_load_dwordx4 v[{40 + 4 * (k % 2)}:{43 + 4 * (k % 2)}], v89, s[{RW[m]}:{RW[m]+3}], s{S_TMP} offen"); k += 1
        e.label("HELP_E")
    e(f"s_cmp_ge_u32 s{S_MODE}, 32\ns_cselect_b32 s{S_KF}, s{S_KF}, 0")
    if cfg.get("gstamp"): e("s_memrealtime s[18:19]\ns_waitcnt lgkmcnt(0)\ns_mov_b32 s69, s18")
    e(f"s_mov_b32 s{S_KVG}, s{S_XG0}\ns_mov_b32 s{S_KVL}, s{S_XL0}")
    e(f"s_cmp_ge_u32 s{S_MODE}, 32\ns_cbranch_scc1 MODE_D")
    wait_init(e, "c", 32)
    e.label("MODE_L")
    e(f"v_readlane_b32 s{S_MODE}, v32, {DBG_XCC(0)//4}\ns_cmp_ge_u32 s{S_MODE}, 32\ns_cbranch_scc1 MODE_D\ns_mov_b32 s{S_TMP2}, 0")
    for x in range(8):
        e(f"v_readlane_b32 s{S_TMP}, v32, {DBG_XCC(x)//4}\ns_add_u32 s{S_TMP2}, s{S_TMP2}, s{S_TMP}")
    e(f"s_cmp_ge_u32 s{S_TMP2}, 256\ns_cbranch_scc1 MODE_D\ns_sleep 16")
    e(f"global_load_dword v32, v33, s[{S_DBG}:{S_DBG+1}] sc1\ns_add_u32 s{S_SPIN}, s{S_SPIN}, 1\ns_waitcnt vmcnt(0)\ns_cmp_lt_u32 s{S_SPIN}, {SPIN_MAX}\ns_cbranch_scc1 MODE_L")
    e.label("MODE_D")
    e(f"s_cmp_gt_u32 s{S_READY}, 0\ns_cbranch_scc1 KV0_D")
    kv_ready(e, 0, 32, 33)
    for grp in kv_dma(e):
        for s in grp: e(s)
    e.label("KV0_D")
    e(f"s_add_u32 s{S_KVG}, s{S_KVG}, 0x80000\ns_xor_b32 s{S_KVL}, s{S_KVL}, 0x3C000")

def interleave(e, mf, fill):
    def run(x):
        for s in x:
            if callable(s): s()
            else: e(s)
    run(fill.get(-1, []))
    for i, m in enumerate(mf):
        if callable(m): m()
        else: e(m)
        run(fill.get(i, []))

def smf(acc, a, f):
    return f"v_smfmac_f32_16x16x64_bf16 {vr(acc,4)}, {vr(a,4)}, {vr(f[1],8,f[0])}, v{IDX}"
def mf32(d, a, b, c):
    return f"v_mfma_f32_16x16x32_bf16 {vr(d,4)}, {vr(a,4)}, {vr(b,4)}, {c if c == '0' else vr(c,4)}"

def kv_ready_ool(e, tail, va, vb):
    d = e.newlabel("KRD"); sl = e.newlabel("KRS")
    e(f"s_add_u32 s{S_TMP2}, s{S_STEP}, 1")
    e(f"s_cmp_le_u32 s{S_READY}, s{S_TMP2}\ns_cbranch_scc1 {sl}")
    e.label(d)
    def slow():
        e.label(sl)
        kv_poll(e, va, vb, d)
    tail.append(slow)

def chain_loop(e, fast, cfg):
    st = "" if fast else " sc1"
    tag_ = "F" if fast else "S"
    WS = f"s[{R_WS}:{R_WS+3}]"
    stamps = cfg.get("stamps", [])
    def S(name):
        if name in stamps:
            i = stamps.index(name); e(f"s_memtime s[{S_ST+2*i}:{S_ST+2*i+1}]")
    def SS(name): return lambda: S(name)
    def GS(p, fill, n):
        for i in range(n):
            if f"{p}_{i}" in stamps: fill[i] = [SS(f"{p}_{i}")] + list(fill.get(i, []))
    LOOP, LAST, ENTRY, EARLY = [f"CH{tag_}_{x}" for x in ("LOOP", "LAST", "ENTRY", "EARLY")]
    tail = []
    seq = {}
    def wt(key): return lambda: e.waitlg(seq[key])
    KP, VP, QP = XT + 4, XT + 6, XT + 2
    RP, RED, AGO, T1, AP = MEMA, MEMA + 16, MEMA + 20, MEMA + 22, MEMA + 24
    e("s_waitcnt vmcnt(0) lgkmcnt(0)")
    if cfg.get("gstamp"): e("s_memrealtime s[18:19]\ns_memtime s[16:17]")
    kv_ready(e, 1, T0, T1)
    if cfg.get("prio"): e(f"s_setprio {cfg['prio']}")
    e(f"s_add_u32 s{S_KVG2}, s{S_KVG}, 8192\ns_mov_b32 m0, s{S_KVL}\nv_mov_b32 v{T0}, 0\nv_mov_b32 v{QP}, 0")
    e(f"s_branch {ENTRY}")
    def rs_ld(r):
        for i in range(4): e(f"buffer_load_dwordx4 {vr(r+4*i,4)}, v{A_RSR}, {WS}, s{S_RSR[i]} offen sc1")
    def rs_chk(r, n):
        for i in range(4):
            e(f"s_waitcnt vmcnt({n+3-i})")
            e(mf32(RED, SEL, r + 4 * i, "0" if i == 0 else RED))
            e(f"v_bitop3_b32 v{T1 if i else T0}, v{r+4*i}, v{r+4*i+2}, s{S_TAG} bitop3:0x7e")
            if cfg.get("spec") and i == 3: e(f"v_bitop3_b32 v{T0}, v{T0}, v{T1}, 1 bitop3:0xa8")
            elif i: e(f"v_or_b32 v{T0}, v{T0}, v{T1}")
        if cfg.get("spec"):
            e(f"v_cmp_ne_u32 vcc, 0, v{T0}\ns_nop 3")
            for q in range(4): e(f"v_add_f32_dpp v{RED+q}, v{RED+q}, v{RED+q} row_ror:8 row_mask:0xf bank_mask:0xf")
            e(f"s_mov_b64 exec, s[{S_AGM}:{S_AGM+1}]")
            e(f"v_cvt_pk_bf16_f32 v{AGO}, v{RED}, v{RED+1}\nv_cvt_pk_bf16_f32 v{AGO+1}, v{RED+2}, v{RED+3}")
            e(f"s_mov_b64 exec, s[{S_AGM2}:{S_AGM2+1}]")
        else:
            e(f"v_and_b32 v{T0}, 1, v{T0}\nv_cmp_ne_u32 vcc, 0, v{T0}")
    def ag_ld(r):
        e(f"buffer_load_dwordx4 {vr(r,4)}, v{A_AGR}, {WS}, s{S_AGR0} offen sc1")
        e(f"buffer_load_dwordx4 {vr(r+4,4)}, v{A_AGR}, {WS}, s{S_AGR0} offen offset:1024 sc1")
    def ag_chk(r, n):
        T1 = MEMA + 15
        if cfg.get("sw"):
            e(f"s_waitcnt vmcnt({n+1})\nds_write_b128 v{A_AGR}, {vr(r,4)}\ns_waitcnt vmcnt({n})\nds_write_b128 v{A_AGR}, {vr(r+4,4)} offset:1024")
        else:
            e(f"s_waitcnt vmcnt({n})")
            e(f"ds_write_b128 v{A_AGR}, {vr(r,4)}\nds_write_b128 v{A_AGR}, {vr(r+4,4)} offset:1024")
        if cfg.get("c4"):
            e(f"v_max3_u32 v{T0}, v{r}, v{r+2}, v{r+4}\nv_max_u32 v{T0}, v{T0}, v{r+6}\nv_cmp_eq_u32 vcc, -1, v{T0}")
        else:
            e(f"v_max3_u32 v{T0}, v{r}, v{r+1}, v{r+2}\nv_max3_u32 v{T1}, v{r+4}, v{r+5}, v{r+6}")
            e(f"v_max3_u32 v{T0}, v{T0}, v{r+3}, v{r+7}\nv_max_u32 v{T0}, v{T0}, v{T1}\nv_cmp_eq_u32 vcc, -1, v{T0}")
    def backoff(n):
        if n >= 100: e.nop(n - 100)
        elif n: e(f"s_sleep {n}")
    def advance():
        e(f"v_mov_b64 {vr(AGO,2)}, -1")
        e(f"v_xor_b32 v{A_KX}, 0x3C000, v{A_KX}\nv_xor_b32 v{A_VX}, 0x3C000, v{A_VX}")
        e(f"v_add_u32 v{A_AGW}, 0x2000, v{A_AGW}\nv_subrev_u32 v{T0}, 0x6000, v{A_AGW}\nv_min_u32 v{A_AGW}, v{A_AGW}, v{T0}")
        e(f"s_add_u32 s{S_AGSLOT}, s{S_AGSLOT}, 0x2000\ns_cmp_eq_u32 s{S_AGSLOT}, 0x6000\ns_cselect_b32 s{S_AGSLOT}, 0, s{S_AGSLOT}")
        e(f"s_add_u32 s{S_AGR0}, s{S_AGSLOT}, {WS_AG - L_MEM}")
        e(f"s_add_u32 s{S_KVG}, s{S_KVG}, 0x80000\ns_xor_b32 s{S_KVL}, s{S_KVL}, 0x3C000\ns_add_u32 s{S_KVM}, s{S_KVM}, 0x20000")
        e(f"s_add_u32 s{S_KVG2}, s{S_KVG}, 8192\ns_mov_b32 m0, s{S_KVL}\ns_mov_b32 s{S_FLV}, s{S_STEP}")
        if cfg.get("peek"): kv_fold(e)
        e(f"s_add_u32 s{S_STEP}, s{S_STEP}, 1")
        if stamps: e(f"s_mov_b32 s{S_SPIN}, 0")
        if cfg.get("peek"): kv_peek(e)
    def comm(reducer, d1, d2, K, KR, last_copy=True):
        P1, P1R, P2, P2R = [e.newlabel(x) for x in ("P1", "P1R", "P2", "P2R")]
        if not reducer:
            if cfg.get("hist"):
                e(f"s_memtime s[20:21]\ns_waitcnt lgkmcnt(0)\ns_sub_u32 s22, s20, s23\ns_mov_b32 s23, s20\nv_mov_b32 v{T0}, s22")
                e(f"s_lshl_b32 s24, s{S_H}, 8\ns_lshl_b32 s25, s{S_STEP}, 2\ns_add_u32 s24, s24, s25\ns_add_u32 s24, s24, {WS_STAMP + 0x40000}\ns_mov_b64 exec, 1")
                e(f"buffer_store_dword v{T0}, off, {WS}, s24\ns_mov_b64 exec, -1")
            advance()
            if not cfg.get("pql"): preload_q(e)
            e(f"s_xor_b32 s{S_TAG}, s{S_TAG}, 1")
            S("rsi"); S("rs")
        else:
            advance()
            rsets = [RP, ACA][:KR]
            if cfg.get("adap"):
                PL, PJ = e.newlabel("PL"), e.newlabel("PJ")
                e(f"s_sub_u32 s{S_LATE}, s{S_LATE}, s{S_STEP}\ns_cmp_eq_u32 s{S_LATE}, {0x5ca1ab00 - 1}\ns_cbranch_scc1 {PL}")
                def pl():
                    e.label(PL)
                    rs_ld(RP); preload_q(e)
                    if KR > 1: backoff(cfg.get("e1l", 1)); rs_ld(ACA)
                    e(f"s_branch {PJ}")
                tail.append(pl)
            preload_q(e)
            backoff(d1)
            S("rsi")
            rs_ld(RP)
            if KR > 1:
                backoff(cfg.get("e1", 2)); rs_ld(ACA)
            if cfg.get("adap"): e.label(PJ)
            rs_chk(RP, 4 * (KR - 1))
            invr = cfg.get("invr") and KR == 2
            if invr:
                e(f"s_cbranch_vccz {P1}_OK")
                e("s_mov_b64 exec, vcc"); rs_ld(RP); e("s_mov_b64 exec, -1")
                rs_chk(ACA, 4)
            e(f"s_cbranch_vccnz {P1R}")
            e.label(P1 + "_OK")
            S("rs")
            def p1r():
                e.label(P1R)
                for k in ((1, 0) if invr else range(KR)):
                    e(f"s_add_u32 s{S_SPIN}, s{S_SPIN}, 1\ns_cmp_gt_u32 s{S_SPIN}, {SPIN_MAX}\ns_cbranch_scc1 {P1}_OK")
                    e("s_mov_b64 exec, vcc"); rs_ld(rsets[k]); e("s_mov_b64 exec, -1")
                    rs_chk(rsets[(k + 1) % KR], 4 * (KR - 1))
                    e(f"s_cbranch_vccz {P1}_OK")
                e(f"s_branch {P1R}")
            tail.append(p1r)
            if cfg.get("spec"):
                e(f"buffer_store_dwordx2 {vr(AGO,2)}, v{A_AGW}, {WS}, s{S_AGW} offen{st}\ns_mov_b64 exec, -1\ns_xor_b32 s{S_TAG}, s{S_TAG}, 1")
            else:
                e(f"s_xor_b32 s{S_TAG}, s{S_TAG}, 1\ns_nop 1")
                for r in range(4):
                    e(f"v_add_f32_dpp v{RED+r}, v{RED+r}, v{RED+r} row_ror:8 row_mask:0xf bank_mask:0xf")
                e(f"s_mov_b64 exec, s[{S_AGM}:{S_AGM+1}]")
                e(f"v_cvt_pk_bf16_f32 v{AGO}, v{RED}, v{RED+1}\nv_cvt_pk_bf16_f32 v{AGO+1}, v{RED+2}, v{RED+3}")
                e(f"s_mov_b64 exec, s[{S_AGM2}:{S_AGM2+1}]\nbuffer_store_dwordx2 {vr(AGO,2)}, v{A_AGW}, {WS}, s{S_AGW} offen{st}\ns_mov_b64 exec, -1")
            if cfg.get("push2"): e(f"s_mov_b64 exec, 1\nbuffer_load_dword v{MEMA+23}, off, {WS}, s{S_RSW0} sc1\ns_mov_b64 exec, -1")
        S("ags")
        if cfg.get("agbar"): e("s_barrier")
        S("agb")
        kv_ready_ool(e, tail, T0, MEMA + 15)
        if cfg.get("pql"): preload_q(e)
        backoff(d2)
        sets = ([AP, MEMA + 16] if cfg.get('sb') else [AP, ACB, MEMA + 16])[:K]
        for k, r in enumerate(sets):
            if k: backoff(cfg.get("e2", 2))
            ag_ld(r)
        if cfg.get("pre"):
            e(f"s_cmp_ge_u32 s{S_STEP}, 63\ns_cbranch_scc1 {LAST}W")
            if not cfg.get("nofl"): e(f"v_mov_b32 v{QP}, s{S_FLV}")
            if reducer and KR > 1: e(f"s_waitcnt vmcnt({2 * K})")
            for r in range(0, 16 if cfg.get("sb") else 8, 2): e(f"v_mov_b64 {vr(ACA+r,2)}, 0")
        if cfg.get("join"):
            if not last_copy:
                e(f"s_branch {LOOP}_AGW")
                return
            e.label(f"{LOOP}_AGW")
        ag_chk(AP, 2 * (K - 1))
        inv = cfg.get("inv") and K == 2
        if inv:
            e(f"s_cbranch_vccz {P2}_OK")
            e("s_mov_b64 exec, vcc"); ag_ld(sets[0]); e("s_mov_b64 exec, -1")
            ag_chk(sets[1], 2)
        e(f"s_cbranch_vccnz {P2R}")
        e.label(P2 + "_OK")
        S("ag")
        def p2r():
            e.label(P2R)
            if cfg.get("adap"):
                e(f"s_add_u32 s{S_TMP}, s{S_STEP}, 0x5ca1ab00\nv_mov_b32 v{MEMA+14}, s{S_TMP}\nv_mov_b32 v{MEMA+13}, {L_KU}\nds_write_b32 v{MEMA+13}, v{MEMA+14}")
            for k in ((1, 0) if inv else range(K)):
                e(f"s_add_u32 s{S_SPIN}, s{S_SPIN}, {16 if stamps else 1}\ns_cmp_gt_u32 s{S_SPIN}, {SPIN_MAX}\ns_cbranch_scc1 {P2}_OK")
                e("s_mov_b64 exec, vcc"); ag_ld(sets[k]); e("s_mov_b64 exec, -1")
                ag_chk(sets[(k + 1) % K], 2 * (K - 1))
                e(f"s_cbranch_vccz {P2}_OK")
            e(f"s_branch {P2R}")
        tail.append(p2r)
        if stamps:
            sk = e.newlabel("NS")
            e(f"s_waitcnt lgkmcnt(0)\ns_cmp_eq_u32 s{S_STEP}, {cfg.get('stampstep', 40)}\ns_cbranch_scc0 {sk}")
            for i in range(len(stamps)): e(f"v_writelane_b32 v{T0}, s{S_ST+2*i}, {i}")
            e(f"v_writelane_b32 v{T0}, s{S_SPIN}, 10")
            for i in range(5): e(f"s_memrealtime s[{12+4*i}:{13+4*i}]\ns_memtime s[{14+4*i}:{15+4*i}]\ns_nop 5")
            e("s_waitcnt lgkmcnt(0)")
            for i in range(5): e(f"v_writelane_b32 v{T0}, s{12+4*i}, {16+2*i}\nv_writelane_b32 v{T0}, s{14+4*i}, {17+2*i}")
            e(f"s_lshl_b32 s{S_TMP}, s{S_H}, 2\ns_add_u32 s{S_TMP}, s{S_TMP}, s{S_W}\ns_lshl_b32 s{S_TMP}, s{S_TMP}, 8\ns_add_u32 s{S_TMP}, s{S_TMP}, {WS_STAMP}")
            e(f"v_mbcnt_lo_u32_b32 v{T1}, -1, 0\nv_mbcnt_hi_u32_b32 v{T1}, -1, v{T1}\nv_lshlrev_b32 v{T1}, 2, v{T1}")
            e(f"buffer_store_dword v{T0}, v{T1}, {WS}, s{S_TMP} offen")
            e.label(sk)
        if not cfg.get("pre"):
            for r in range(0, 8, 2): e(f"v_mov_b64 {vr(ACA+r,2)}, 0")
            e(f"s_cmp_ge_u32 s{S_STEP}, 63\ns_cbranch_scc1 {LAST}")
            e(f"v_mov_b32 v{T0}, s{S_FLV}")
        if cfg.get("pubc"): e(f"buffer_store_dwordx4 {vr(KP,4)}, v{A_AGR}, {WS}, s{S_KVM} offen sc1")
        if not cfg.get("wl"): e("s_waitcnt lgkmcnt(0)")
    D = cfg.get("D", [[0, 60], [0, 160], [25, 40], [0, 190]])
    if cfg.get("agbar"): D = [[cfg["d1e"], cfg.get("d2e", 0)], [0, cfg.get("d2e", 0)], [cfg["d1"], cfg["d2"]], [0, cfg["d2"]]]
    KK = [cfg.get("Ke", 1), cfg.get("Ke", 1), cfg.get("K", 2), cfg.get("K", 2)]
    ft = cfg.get("ft", 2)
    for w in [x for x in range(4) if x != ft] + [ft]:
        if w == ft: e(".p2align 6")
        e.label(f"{LOOP}_{w}")
        comm(w in (0, 2), D[w][0], D[w][1], KK[w], cfg.get('KRe', 1) if w == 0 else cfg.get('KR', 2), w == ft)
        if w != ft and not cfg.get("join"): e(f"s_branch {ENTRY}")
    e.label(ENTRY)
    if cfg.get("wl"): e("s_waitcnt lgkmcnt(0)")
    e("s_barrier")
    S("b1")
    if cfg.get("stepst"): e("s_memrealtime s[84:85]")
    def rd_m(J, x):
        def f(): seq[("m", J)] = e(f"ds_read_b64_tr_b16 {vr(MEMA+4*J+2*x,2)}, v{A_TR} offset:{(2*(J%2)+x)*2048 + (J//2)*512}")
        return f
    qorder = [(0, 0), (0, 1), (1, 0), (1, 1), (2, 0)] + [(J, t) for J in range(3, 8) for t in range(2)] + [(2, 1)]
    if cfg.get("qo"): qorder = qorder[:11] + [(2, 1)] + qorder[11:15]
    def qf(J, t):
        if J < 3: return ("v", QB + 8 * (QL.index((J, t)) % 5))
        return FRAG[("q", J, t)]
    mq = [smf(ACA + 4 * t, MEMA + 4 * J, qf(J, t)) for J, t in qorder]
    def rd_w(key, r, off):
        def f(): seq[key] = e(f"ds_read_b128 {vr(r,4)}, v{A_W} offset:{off}")
        return f
    def rq(n, hf): return rd_w(("ql", n), QB + 8 * (n % 5) + 4 * hf, FRAG[("q",) + QL[n]][1] + 1024 * hf)
    flag = [f"s_mov_b64 exec, s[{S_W0M}:{S_W0M+1}]", f"buffer_store_dword v{QP if cfg.get('pre') else T0}, off, {WS}, s{S_CF} sc1", "s_mov_b64 exec, -1"]
    pubk = f"buffer_store_dwordx2 {vr(KP,2)}, v{A_RSW}, {WS}, s{S_KVM} offen sc1"
    pubv = f"buffer_store_dwordx2 {vr(VP,2)}, v{A_RSW}, {WS}, s{S_KVM} offen offset:2048 sc1"
    if cfg.get("nopub"): pubk = pubv = "s_nop 0"; flag = []
    if cfg.get("nofl"): flag = []
    def dm(i): return "s_nop 0" if cfg.get("nodma") else f"buffer_load_dwordx4 v{A_AGR}, {WS}, s{S_KVG if i < 2 else S_KVG2} offen offset:{(i%2)*1024} sc1 lds"
    z = lambda r: f"v_mov_b64 {vr(r,2)}, 0"
    fill = {-1: [rd_m(J, x) for J in range(4) for x in range(2)] + [wt(("m", 0)), SS("m0")],
            0: [rd_m(4, 0), dm(0)], 1: [rd_m(4, 1), wt(("m", 1))], 2: [rd_m(5, 0), dm(1)], 3: [rd_m(5, 1), wt(("m", 2))],
            4: [f"s_add_u32 m0, s{S_KVL}, 8192", wt(("m", 3))],
            5: [f"s_waitcnt vmcnt({3 if cfg.get('pubc') else 2})", rd_m(6, 0)], 6: [rd_m(6, 1), wt(("m", 4))], 7: [rd_m(7, 0), dm(2)], 8: [rd_m(7, 1), wt(("m", 5))],
            9: [rq(5, 0), dm(3)], 10: [rq(5, 1), wt(("m", 6))], 11: flag, 12: [wt(("m", 7))], 13: [] if cfg.get("pubc") else [pubk], 14: [wt(("ql", 5))],
            }
    if cfg.get("qo"):
        last = []
        m0b = f"s_add_u32 m0, s{S_KVL}, 8192"
        fill = {-1: [rd_m(J, x) for J in range(4) for x in range(2)] + [wt(("m", 0)), SS("m0")],
                0: [rd_m(4, 0)] + (last if cfg["qo"] == 1 else []), 1: [rd_m(4, 1), wt(("m", 1))], 2: [rd_m(5, 0), dm(0)], 3: [rd_m(5, 1), wt(("m", 2))],
                4: [rq(5, 0), wt(("m", 3))], 5: [rq(5, 1), dm(1)], 6: [m0b, wt(("m", 4))], 7: ["s_waitcnt vmcnt(2)", rd_m(6, 0)],
                8: [rd_m(6, 1), wt(("m", 5))], 9: [rd_m(7, 0), dm(2)], 10: [rd_m(7, 1), wt(("ql", 5))], 11: [wt(("m", 6)), dm(3)],
                12: flag, 13: [wt(("m", 7))], 14: [pubk]}
        if cfg["qo"] == 2: fill[-1] = fill[-1][:8] + last + fill[-1][8:]
    if max(KK) > 2:
        fill[0] = ["s_waitcnt vmcnt(0)", rd_m(4, 0), dm(0)]; fill[5] = [rd_m(6, 0)]
    kextra = {}
    dp = cfg.get("dp", 0)
    m0b = f"s_add_u32 m0, s{S_KVL}, 8192"
    if dp:
        for g in (0, 2, 7, 9): fill[g] = fill[g][:1]
        fill[4] = fill[4][1:]
        fill[5] = ["s_waitcnt vmcnt(%d)" % (1 if dp in (1, 2) else 0), rd_m(6, 0)]
        if dp == 1:
            fill[2] += [dm(0)]; fill[7] += [dm(1)]; fill[9] += [m0b]; fill[12] = fill[12] + [dm(2)]; kextra = {5: [dm(3)]}
        if dp == 2:
            fill[2] += [dm(0)]; fill[9] += [dm(1)]; kextra = {3: [m0b], 5: [dm(2)], 11: [dm(3)]}
        if dp == 4:
            kextra = {4: [dm(0)], 7: [dm(1)], 9: [m0b], 11: [dm(2)], 14: [dm(3)]}
        if dp == 5:
            fill[9] += [dm(0)]; fill[12] = fill[12][:1] + [dm(1)] + fill[12][1:]; kextra = {3: [m0b], 5: [dm(2)], 7: [dm(3)]}
        if dp == 6:
            fill[0] += [dm(0)]; fill[1] = [rd_m(4, 1), dm(1), wt(("m", 1))]; fill[2] += [m0b]; fill[3] = [rd_m(5, 1), dm(2), wt(("m", 2))]; fill[4] = [dm(3)] + fill[4]
            fill[5] = ["s_waitcnt vmcnt(4)", rd_m(6, 0)]
        if dp == 7:
            pre = fill[-1]; fill[-1] = pre[:8] + [dm(0)] + pre[8:]; fill[0] += [dm(1)]; fill[2] += [m0b]; fill[3] = [rd_m(5, 1), dm(2), wt(("m", 2))]
            fill[5] = ["s_waitcnt vmcnt(3)", rd_m(6, 0)]; fill[7] += [dm(3)]
        if dp == 3:
            fill[7] += [dm(0)]; fill[12] = fill[12] + [dm(1)]; kextra = {3: [m0b], 6: [dm(2)], 14: [dm(3)]}
    if cfg.get("flp") == 1:
        fill[11] = []; kextra[7] = None
    pp = cfg.get("pubp", 0)
    if pp:
        pre = [rd_m(J, x) for J in range(4) for x in range(2)]
        fill[-1] = pre[:pp] + [pubk] + pre[pp:] + [wt(("m", 0)), SS("m0")]
        fill[13] = []; fill[5] = ["s_waitcnt vmcnt(3)", rd_m(6, 0)]
    pv = cfg.get("pv", 0); pkp = cfg.get("pkp", 0)
    if pv == 0: fill[15] = [pubv]
    if pkp: fill[13] = []
    if cfg.get("sb") == 1:
        fill.update({0: ["s_waitcnt vmcnt(0)", rd_m(4, 0)], 1: [rd_m(4, 1), wt(("m", 1))], 2: [rd_m(5, 0), dm(0)], 3: [rd_m(5, 1), wt(("m", 2))],
                     4: [rd_m(6, 0), wt(("m", 3))], 5: [rd_m(6, 1), dm(1)], 6: [rd_m(7, 0), wt(("m", 4))], 7: [rd_m(7, 1), m0b], 8: [rq(5, 0), wt(("m", 5))],
                     9: [rq(5, 1), dm(2)], 10: [wt(("m", 6))], 11: flag, 12: [wt(("m", 7)), dm(3)], 13: [pubk], 14: [wt(("ql", 5))], 15: [pubv]})
    elif cfg.get("sb") == 2:
        fill.update({0: ["s_waitcnt vmcnt(0)", rd_m(4, 0)], 1: [rd_m(4, 1), wt(("m", 1))], 2: [rd_m(5, 0), rd_m(5, 1)], 3: [dm(0), wt(("m", 2))],
                     4: [rd_m(6, 0), wt(("m", 3))], 5: [rd_m(6, 1), rd_m(7, 0)], 6: [dm(1), wt(("m", 4))], 7: [rd_m(7, 1), m0b], 8: [rq(5, 0), wt(("m", 5))],
                     9: [rq(5, 1)], 10: [dm(2), wt(("m", 6))], 11: flag, 12: [dm(3), wt(("m", 7))], 13: [pubk], 14: [wt(("ql", 5))], 15: [pubv]})
    else:
        for n, g in enumerate([10, 11, 13, 14] if cfg.get("qo") else [10, 12, 13, 14]): fill[g] = fill[g] + [z(ACB + 2 * n)]
    if cfg.get("adap"):
        def rl(): seq["late"] = e(f"ds_read_b32 v{T0}, v{A_TRK} offset:{L_KU - L_MEM}")
        fill[12] = [rl] + fill[12]
    GS("q", fill, 16)
    interleave(e, mq, fill)
    S("q")
    mk = [smf(ACB + 4 * t, MEMA + 4 * J, FRAG[("k", J, t)]) for J in range(8) for t in range(2)]
    def post_dup(acc, dst):
        return [f"v_add_f32 v{acc}, v{acc}, v{acc+2}", f"v_add_f32 v{acc+1}, v{acc+1}, v{acc+3}",
                f"v_cvt_pk_bf16_f32 v{dst}, v{acc}, v{acc+1}"]
    pq = post_dup(ACA, QP) + post_dup(ACA + 4, QP + 1)
    def rd_q(js, t):
        def f(): seq[("q", js)] = e(f"ds_read_b64_tr_b16 {vr(QB+4*js+2*t,2)}, v{A_TR} offset:{L_QU-L_MEM + js*1024 + t*512}")
        return f
    kxslot = [0, 1, 2, 3, 4, 5, 0, 1]
    def rd_kx(n):
        js, kt = n // 2, n % 2
        def f(): seq[("kx", n)] = e(f"ds_read_b128 {vr(KXA+4*kxslot[n],4)}, v{A_KX} offset:{(kt*4+js)*1024}")
        return f
    def wr_u(key, a, r, t):
        def f(): seq[key] = e(f"ds_write2_b32 v{a}, v{r}, v{r} offset0:{128*t} offset1:{128*t+1}")
        return f
    fill = {0: pq[0:2], 1: pq[2:4], 2: [wr_u("wq0", A_UW, QP, 0)] + pq[4:6], 3: [wr_u("wq1", A_UW, QP + 1, 1)],
            4: [rd_kx(0), f"v_add_u32 v{T0}, {L_KU - L_QU}, v{A_UW}"], 5: [rd_kx(1)], 6: [rd_kx(2)], 7: [rd_kx(3)],
            8: [wt("wq1"), SS("bq0"), "s_barrier", SS("bq1")],
            9: [rd_q(0, 0), rd_q(0, 1)], 10: [rd_q(1, 0), rd_q(1, 1)], 11: [rd_kx(4)], 12: [rd_q(2, 0), rd_kx(5)], 13: [rd_q(2, 1), rd_q(3, 0)],
            14: [rd_q(3, 1)], 15: [wt(("q", 1))]}
    if pkp == 1: fill[6] = fill[6] + [pubk]
    if pkp == 2: fill[11] = fill[11] + [pubk]
    if pv == 2: fill[14] = fill[14] + [pubv]
    if cfg.get("adap"): fill[3] = [wt("late")] + fill[3] + [f"v_readfirstlane_b32 s{S_LATE}, v{T0}"]
    kb = cfg.get("kb", 0)
    if kb == 1:
        fill.update({5: [rd_kx(1), rd_kx(2)], 6: [rd_kx(3)], 7: [wt("wq1"), "s_barrier"], 8: [rd_q(0, 0), rd_q(0, 1)], 9: [rd_q(1, 0)], 10: [rd_q(1, 1)],
                     11: [rd_kx(4)], 12: [rd_q(2, 0), rd_kx(5)]})
    if kb == 2:
        fill.update({5: [rd_kx(1)], 6: [wt("wq1"), "s_barrier"], 7: [rd_q(0, 0), rd_q(0, 1)], 8: [rd_kx(2)], 9: [rd_q(1, 0), rd_kx(3)], 10: [rd_q(1, 1)],
                     11: [rd_kx(4)], 12: [rd_q(2, 0), rd_kx(5)]})
    if kb == 3:
        fill = {0: pq[0:1], 1: pq[1:2], 2: pq[2:3], 3: [wr_u("wq0", A_UW, QP, 0)] + pq[3:4], 4: [rd_kx(0)] + pq[4:5], 5: [rd_kx(1)] + pq[5:6],
                6: [wr_u("wq1", A_UW, QP + 1, 1), f"v_add_u32 v{T0}, {L_KU - L_QU}, v{A_UW}"], 7: [rd_kx(2)], 8: [rd_kx(3)], 9: [rd_kx(4)],
                10: [wt("wq1"), "s_barrier"], 11: [rd_q(0, 0), rd_q(0, 1)], 12: [rd_q(1, 0), rd_q(1, 1)], 13: [rd_q(2, 0), rd_kx(5)],
                14: [rd_q(2, 1), rd_q(3, 0)], 15: [rd_q(3, 1), wt(("q", 0))]}
    for g, x in kextra.items():
        if x is None: fill[g] = flag; fill[6] = fill[6] + [rd_kx(3)]
        elif g == 4: fill[g] = fill[g][:1] + x + fill[g][1:]
        else: fill[g] = fill[g] + x
    if cfg.get("flp") == 1: fill[4] = [rd_kx(0)]; fill[8] = fill[8]; fill[15] = fill[15]; kadd = True
    GS("k", fill, 16)
    interleave(e, mk, fill)
    S("k")
    pk = post_dup(ACB, KP) + post_dup(ACB + 4, KP + 1)
    ms = []
    for js in range(4):
        for kt in range(2):
            n = js * 2 + kt
            ms.append(mf32(ACA + 4 * kt, KXA + 4 * kxslot[n], QB + 4 * js, "0" if js == 0 else ACA + 4 * kt))
    def rd_k(js, t):
        def f(): seq[("k", js)] = e(f"ds_read_b64_tr_b16 {vr(KXA+8+4*js+2*t,2)}, v{A_TRK} offset:{L_KU-L_MEM + js*1024 + t*512}")
        return f
    fill = {0: [rd_kx(6)] + pk[0:2], 1: [rd_kx(7)] + pk[2:4] + ([f"v_add_u32 v{T0}, {L_KU - L_QU}, v{A_UW}"] if cfg.get("flp") == 1 else []),
            2: [wr_u("wk0", T0, KP, 0)] + pk[4:6], 3: [wt(("q", 3)), z(ACB), z(ACB + 2)],
            4: [wr_u("wk1", T0, KP + 1, 1), z(ACB + 4), z(ACB + 6)],
            5: [wt(("kx", 7))],
            }
    if cfg.get("sxs") == 1:
        fill = {0: [rd_kx(6)], 1: [rd_kx(7)] + pk[0:2], 2: pk[2:4], 3: [wt(("q", 3))] + pk[4:6],
                4: [wr_u("wk0", T0, KP, 0), z(ACB), z(ACB + 2)], 5: [wt(("kx", 7)), z(ACB + 4), z(ACB + 6)], 6: [wr_u("wk1", T0, KP + 1, 1)]}
    if kb == 3: fill[1] = fill[1][:1] + [wt(("q", 1))] + fill[1][1:]
    GS("sx", fill, 8)
    interleave(e, ms, fill)
    S("Sx")
    mv = [smf(ACB + 4 * t, MEMA + 4 * J, FRAG[("v", J, t)]) for J in range(8) for t in range(2)]
    SM = KXA
    X0, X1 = ACA, ACA + 4
    mx, t2 = KXA + 4, KXA + 5
    e0 = XT
    NV1 = cfg.get("nv1", 10)
    msm = [mf32(SM, KXA + 8 + 4 * js, QB + 4 * js, "0" if js == 0 else SM) for js in range(4)]
    odd = f"s[{S_ODD}:{S_ODD+1}]"
    early = [f"v_max3_f32 v{mx}, v{X0}, v{X0+1}, v{X0+2}", f"v_max3_f32 v{t2}, v{X1}, v{X1+1}, v{X1+2}",
             f"v_max3_f32 v{mx}, v{mx}, v{X0+3}, v{X1+3}", f"v_max_f32 v{mx}, v{mx}, v{t2}",
             f"v_cndmask_b32 v{e0}, v{X0}, v{X0+2}, {odd}", f"v_cndmask_b32 v{e0+1}, v{X0+1}, v{X0+3}, {odd}",
             f"v_cndmask_b32 v{e0+2}, v{X1}, v{X1+2}, {odd}", f"v_cndmask_b32 v{e0+3}, v{X1+1}, v{X1+3}, {odd}"]
    seqm = mv[:NV1] + msm + mv[NV1:]
    PVB0, PVB1, OAC, PA, LB, LA = QB, QB + 8, KXA + 8, KXA + 16, KXA + 20, KXA + 4
    def rd_vx(n):
        t, hf = n // 2, n % 2
        def f(): seq["vx"] = e(f"ds_read_b64 {vr(QB+8*t+2+4*hf,2)}, v{A_VX} offset:{t*1024 + hf*512}")
        return f
    def rd_wo(T, hf):
        return rd_w(("wo", T), MEMA + 8 * (T % 4) + 4 * hf, FRAG[("o", (1, T // 2), T % 2)][1] + 1024 * hf)
    EE = [SM, SM + 1, e0, e0+1, e0+2, e0+3]
    fill = {0: [wt("wk1"), SS("bk0"), "s_barrier", SS("bk1")]}
    for n in range(8): fill[1 + n] = [rd_k(n // 2, n % 2), early[n]]
    xv = cfg.get("xv", 0)
    if xv == 2:
        fill = {1: early[0:1], 2: early[1:3], 3: early[3:5], 4: [wt("wk1"), "s_barrier"],
                5: [rd_k(0, 0), rd_k(0, 1)], 6: [rd_k(1, 0), rd_k(1, 1)], 7: [rd_k(2, 0), rd_k(2, 1)], 8: [rd_k(3, 0), rd_k(3, 1)]}
    if xv == 3:
        fill = {1: early[0:2], 2: early[2:4], 3: [wt("wk1"), "s_barrier"],
                4: [rd_k(0, 0), rd_k(0, 1)], 5: [rd_k(1, 0), rd_k(1, 1)], 6: [rd_k(2, 0)], 7: [rd_k(2, 1)], 8: [rd_k(3, 0), rd_k(3, 1)]}
    if xv == 1:
        for n in range(8): fill[1 + n] = [rd_k(n // 2, n % 2)]
        fill[7] += early[0:1]; fill[8] += early[1:2]
    if pv == 1: fill[0] = [pubv]
    if pv == 3: fill[6] = fill[6] + [pubv]
    fill[NV1 - 1] = [rd_wo(0, 0), wt(("k", 0)), SS("k0")] if NV1 - 1 > 8 else fill[NV1 - 1][:1] + [wt(("k", 0))] + fill[NV1 - 1][1:]
    lb = [f"v_mov_b64 {vr(LB,2)}, s[{S_LB}:{S_LB+1}]", f"v_mov_b64 {vr(LB+2,2)}, s[{S_LB}:{S_LB+1}]"]
    zz = [z(OAC), z(OAC + 2), z(OAC + 4), z(OAC + 6), f"v_mov_b32 v{PA+2}, 0"] + lb
    if xv == 1:
        fill[NV1 - 1] = fill[NV1 - 1] + early[2:3]
        fill[NV1] = [wt(("k", 1))] + early[3:5]
        fill[NV1 + 1] = [wt(("k", 2))] + early[5:7]
        fill[NV1 + 2] = [wt(("k", 3))] + early[7:8] + zz[0:1]
        fill[NV1 + 3] = [rd_vx(0)] + zz[1:3]
        zz = zz[3:]
    elif xv in (2, 3):
        rem = early[5:] if xv == 2 else early[4:]
        allv = rem + zz
        k0 = 2 if xv == 3 else 0
        fill[NV1] = [wt(("k", 1))]
        fill[NV1 + 1] = [wt(("k", 2))] + allv[0:k0]
        fill[NV1 + 2] = [wt(("k", 3))] + allv[k0:k0 + 2]
        fill[NV1 + 3] = [rd_vx(0)] + allv[k0 + 2:k0 + 4]
        zz = allv[k0 + 4:]
    else:
        fill[NV1] = [wt(("k", 1))] + zz[0:2]
        fill[NV1 + 1] = [wt(("k", 2))] + zz[2:4]
        fill[NV1 + 2] = [wt(("k", 3))] + zz[4:5]
        fill[NV1 + 3] = [rd_vx(0)] + zz[5:7]
        zz = []
    GS("v1", fill, 14)
    interleave(e, seqm[:NV1 + 4], fill)
    S("Sm")
    rest = seqm[NV1 + 4:]
    assert len(rest) == 6
    def run(x):
        for s in x: s() if callable(s) else e(s)
    il = cfg.get("il")
    cv = lambda t, h: f"v_cvt_pk_bf16_f32 v{QB+8*t+h}, v{ACB+4*t+2*h}, v{ACB+4*t+2*h+1}"
    exps = [f"v_exp_f32 v{x}, v{x}" for x in EE]
    if il:
        f2 = zz[1:] + [cv(0, 0), cv(0, 1), cv(1, 0), cv(1, 1)]
        o = []
        for k, x in enumerate(exps): o += [x] + f2[k:k + 1]
        exps = o + f2[6:]
    run([rest[0], rd_vx(1), rd_vx(2)] + zz[0:1] + [rest[1], rd_vx(3), rd_wo(0, 1),
         f"v_max3_f32 v{mx}, v{mx}, v{SM}, v{SM+1}", f"v_mov_b32 v{t2}, v{mx}",
         rest[2], rd_wo(1, 0), rd_wo(1, 1),
         f"v_permlane32_swap_b32 v{mx}, v{t2}", f"v_max_f32 v{mx}, v{mx}, v{t2}", f"v_mov_b32 v{t2}, v{mx}",
         rest[3], rd_wo(2, 0), rd_wo(2, 1),
         f"v_permlane16_swap_b32 v{mx}, v{t2}", f"v_max_f32 v{mx}, v{mx}, v{t2}",
         rest[4], f"v_mul_f32 v{mx}, s{S_SC}, v{mx}", rest[5], rd_wo(3, 0), rd_wo(3, 1)] + ([] if il else zz[1:]) + [
         ]
        + [f"v_fma_f32 v{x}, v{x}, s{S_SC}, -v{mx}" for x in EE] + exps
        + [f"v_cvt_pk_bf16_f32 v{PA}, v{SM}, v{SM+1}", f"v_cvt_pk_bf16_f32 v{PA+1}, v{e0}, v{e0+1}", f"v_cvt_pk_bf16_f32 v{PA+3}, v{e0+2}, v{e0+3}",
           f"v_permlane32_swap_b32 v{PA}, v{PA+2}"])
    S("soft")
    cv = lambda t, h: f"v_cvt_pk_bf16_f32 v{QB+8*t+h}, v{ACB+4*t+2*h}, v{ACB+4*t+2*h+1}"
    run(([wt("vx"), "s_nop 0", mf32(LA, PA, LB, "0")] if il else [cv(0, 0), cv(0, 1), mf32(LA, PA, LB, "0"), wt("vx"), cv(1, 0), cv(1, 1)]) + [
         f"v_smfmac_f32_16x16x64_bf16 {vr(OAC,4)}, {vr(PA,4)}, {vr(PVB0,8)}, v{IDX}"] + ([] if il else ["s_nop 0"]) + [
         f"v_smfmac_f32_16x16x64_bf16 {vr(OAC+4,4)}, {vr(PA,4)}, {vr(PVB1,8)}, v{IDX}",
         ] + ([
         f"v_pk_add_f32 {vr(LA,2)}, {vr(LA,2)}, {vr(LA+2,2)}", f"v_rcp_f32 v{LA}, v{LA}", f"v_rcp_f32 v{LA+1}, v{LA+1}",
         f"v_pk_add_f32 {vr(OAC,2)}, {vr(OAC,2)}, {vr(OAC+2,2)}", f"v_pk_mul_f32 {vr(OAC,2)}, {vr(OAC,2)}, {vr(LA,2)}", "s_nop 0",
         f"v_pk_add_f32 {vr(OAC+4,2)}, {vr(OAC+4,2)}, {vr(OAC+6,2)}", f"v_cvt_pk_bf16_f32 v{OAC}, v{OAC}, v{OAC+1}",
         f"v_pk_mul_f32 {vr(OAC+4,2)}, {vr(OAC+4,2)}, {vr(LA,2)}", f"v_cvt_pk_bf16_f32 v{OAC+1}, v{OAC+4}, v{OAC+5}"] if cfg.get("usepk") else [
         f"v_add_f32 v{LA}, v{LA}, v{LA+2}", f"v_add_f32 v{LA+1}, v{LA+1}, v{LA+3}", f"v_rcp_f32 v{LA}, v{LA}", f"v_rcp_f32 v{LA+1}, v{LA+1}",
         f"v_add_f32 v{OAC}, v{OAC}, v{OAC+2}", f"v_add_f32 v{OAC+1}, v{OAC+1}, v{OAC+3}",
         f"v_mul_f32 v{OAC}, v{OAC}, v{LA}", f"v_mul_f32 v{OAC+1}, v{OAC+1}, v{LA+1}",
         f"v_add_f32 v{OAC+4}, v{OAC+4}, v{OAC+6}", f"v_add_f32 v{OAC+5}, v{OAC+5}, v{OAC+7}",
         f"v_mul_f32 v{OAC+4}, v{OAC+4}, v{LA}", f"v_mul_f32 v{OAC+5}, v{OAC+5}, v{LA+1}",
         f"v_cvt_pk_bf16_f32 v{OAC}, v{OAC}, v{OAC+1}", f"v_cvt_pk_bf16_f32 v{OAC+1}, v{OAC+4}, v{OAC+5}"]))
    WAC = [QB, QB + 4, QB + 8, QB + 12, ACA, ACA + 4, ACB, ACB + 4]
    so = e(f"ds_write_b64 v{A_UW}, {vr(OAC,2)}")
    S("ow")
    def vpost():
        for t in range(2):
            a = ACB + 4 * t
            e(f"v_pk_add_f32 {vr(a,2)}, {vr(a,2)}, {vr(a+2,2)}\nv_cvt_pk_bf16_f32 v{VP+t}, v{a}, v{a+1}")
    if cfg.get("mz") == 2:
        e(z(e0)); e(z(e0 + 2))
        vpost()
        e(f"v_mfma_f32_32x32x16_bf16 {vr(QB,16)}, {vr(e0,4)}, {vr(e0,4)}, 0")
        e(f"v_mfma_f32_32x32x16_bf16 {vr(ACA,16)}, {vr(e0,4)}, {vr(e0,4)}, 0")
    elif cfg.get("mz"):
        e(z(QB)); e(z(QB + 2))
        vpost()
        e(f"v_mfma_f32_32x32x16_bf16 {vr(ACA,16)}, {vr(QB,4)}, {vr(QB,4)}, 0")
        for r in range(4, 16, 2): e(z(QB + r))
    else:
        vpost()
        for r in range(0, 16, 2): e(z(QB + r))
        for r in range(0, 16, 2): e(z(ACA + r))
    e.waitlg(so)
    S("bo0")
    e("s_barrier")
    S("bo1")
    OA = KXA
    for J in range(2):
        for x in range(2):
            seq[("oa", J)] = e(f"ds_read_b64_tr_b16 {vr(OA+4*J+2*x,2)}, v{A_TR} offset:{L_QU-L_MEM + (2*J+x)*1024}")
    mo = []
    for p in range(4):
        for T in (2 * p, 2 * p + 1): mo.append(smf(WAC[T], OA, FRAG[("o", (0, T // 2), T % 2)]))
        for T in (2 * p, 2 * p + 1): mo.append(smf(WAC[T], OA + 4, ("v", MEMA + 8 * (T % 4))))
    RSO = OAC
    def post_pair(p):
        a, b = WAC[2 * p], WAC[2 * p + 1]; d = RSO + 2 * p
        return [f"v_add_f32 v{a}, v{a}, v{a+2}", f"v_add_f32 v{a+1}, v{a+1}, v{a+3}",
                f"v_cvt_pk_bf16_f32 v{d}, v{a}, v{a+1}", f"v_add_f32 v{b}, v{b}, v{b+2}",
                f"v_add_f32 v{b+1}, v{b+1}, v{b+3}", f"v_and_or_b32 v{d}, v{d}, -2, s{S_TAG}",
                f"v_cvt_pk_bf16_f32 v{d+1}, v{b}, v{b+1}",
                f"buffer_store_dwordx2 {vr(d,2)}, v{A_RSW}, {WS}, s{S_RSW0 if p < 2 else S_RSW1} offen offset:{(p%2)*2048}{st}"]
    p0, p1, p2, p3 = [post_pair(p) for p in range(4)]
    fill = {-1: [wt(("oa", 0)), SS("oa")], 1: [wt(("oa", 1))], 2: [rd_wo(4, 0), rd_wo(4, 1)], 3: [rd_wo(5, 0), rd_wo(5, 1)],
            4: ["s_nop 0"] + p0[0:1], 5: p0[1:3], 6: [rd_wo(6, 0), rd_wo(6, 1)] + p0[3:5], 7: [rd_wo(7, 0), rd_wo(7, 1)] + p0[5:7], 8: p0[7:8] + p1[0:1],
            9: [wt(("wo", 4))] + p1[1:3], 10: [wt(("wo", 5))] + p1[3:5], 11: p1[5:7],
            12: p1[7:8] + p2[0:1], 13: [wt(("wo", 6))] + p2[1:3], 14: [wt(("wo", 7))] + p2[3:5],
            15: p2[5:8] + p3[0:3] + ([p3[5]] + p3[3:5] + p3[6:] if not cfg.get("usepk") else [p3[5], f"v_pk_add_f32 {vr(WAC[7],2)}, {vr(WAC[7],2)}, {vr(WAC[7]+2,2)}"] + p3[6:]),
            }
    if cfg.get("wr") == 1:
        fill.update({8: p0[7:8] + p1[0:2], 9: [wt(("wo", 4))] + p1[2:4], 10: [wt(("wo", 5))] + p1[4:6], 11: p1[6:7],
                     12: p1[7:8] + p2[0:2], 13: [wt(("wo", 6))] + p2[2:5], 14: [wt(("wo", 7))] + p2[5:7],
                     15: p2[7:8] + ["s_nop 2"] + p3[0:3] + [p3[5]] + p3[3:5] + p3[6:]})
    if cfg.get("wr") == 2:
        fill[15] = p2[5:7] + ["s_nop 0"] + p3[0:3] + [p3[5]] + p3[3:5] + p3[6:] + p2[7:8]
    GS("wo", fill, 16)
    interleave(e, mo, fill)
    S("Wo")
    if cfg.get("push"): e(f"s_mov_b64 exec, 1\nbuffer_load_dword v{MEMA+23}, off, {WS}, s{S_RSW0} sc1\ns_mov_b64 exec, -1")
    if cfg.get("stepst"):
        for k in range(12): e(f"s_cmp_eq_u32 s{S_STEP}, {k}\ns_cselect_b32 s{20+k}, s84, s{20+k}")
    for w in (2, 0, 1): e(f"s_cmp_eq_u32 s{S_W}, {w}\ns_cbranch_scc1 {LOOP}_{w}")
    e(f"s_branch {LOOP}_3")
    for t in tail: t()
    if cfg.get("pre"):
        e.label(LAST + "W")
        LB_ = ACB
        ag_chk(LB_, 0)
        e(f"s_cbranch_vccz {LAST}Z\ns_add_u32 s{S_SPIN}, s{S_SPIN}, 1\ns_cmp_gt_u32 s{S_SPIN}, {SPIN_MAX}\ns_cbranch_scc1 {LAST}Z")
        ag_ld(LB_)
        e(f"s_branch {LAST}W")
        e.label(LAST + "Z")
        for r in range(0, 8, 2): e(f"v_mov_b64 {vr(ACA+r,2)}, 0")
    e.label(LAST)
    e("s_waitcnt vmcnt(0) lgkmcnt(0)\ns_barrier")
    for J in range(8):
        for x in range(2): rd_m(J, x)()
    e(pubk); e(pubv)
    e(f"s_add_u32 s{S_KVM}, s{S_KVM}, 0x20000")
    for r in range(0, 8, 2): e(z(ACB + r))
    e("s_waitcnt lgkmcnt(0)")
    for J in range(8):
        for t in range(2): e(smf(ACA + 4 * t, MEMA + 4 * J, FRAG[("k", J, t)]))
    for i, m in enumerate(mv):
        e(m)
        if 2 <= i < 8: e((post_dup(ACA, KP) + post_dup(ACA + 4, KP + 1))[i - 2])
        if i == 8: e(pubk)
    e.nop(8)
    vpost()
    e(pubv)
    if not cfg.get("nofl"):
        e("s_waitcnt vmcnt(0) lgkmcnt(0)\ns_barrier")
        e(f"v_mov_b32 v{T0}, 64\ns_mov_b64 exec, s[{S_W0M}:{S_W0M+1}]")
        e(f"buffer_store_dword v{T0}, off, {WS}, s{S_CF} sc1")
    elif cfg.get("gstamp"): e(f"s_waitcnt vmcnt(0)\ns_mov_b64 exec, s[{S_W0M}:{S_W0M+1}]")
    if cfg.get("gstamp"):
        e(f"s_memrealtime s[84:85]\ns_memtime s[86:87]\ns_waitcnt lgkmcnt(0)\ns_sub_u32 s86, s86, s16\nv_mov_b32 v24, s86\nv_mov_b32 v20, s3\nv_mov_b32 v21, s18\nv_mov_b32 v22, s84\nv_mov_b32 v23, s69")
        e(f"s_lshl_b32 s{S_TMP}, s{S_H}, 4\ns_add_u32 s{S_TMP}, s{S_TMP}, {WS_STAMP + 0x10000}")
        if cfg.get("stepst"):
            for k in range(12): e(f"v_mov_b32 v{30+k}, s{20+k}")
            e(f"s_lshl_b32 s{S_TMP2}, s{S_H}, 6\ns_add_u32 s{S_TMP2}, s{S_TMP2}, {WS_STAMP + 0x11000}")
            for k in range(3): e(f"buffer_store_dwordx4 v[{30+4*k}:{33+4*k}], off, {WS}, s{S_TMP2} offset:{16*k}")
        e(f"buffer_store_dwordx4 v[20:23], off, {WS}, s{S_TMP}\nbuffer_store_dword v24, off, {WS}, s{S_TMP} offset:1024")
    if cfg.get("dbgt"):
        for k, r in enumerate(("s69", "s18", "s84")):
            e(f"s_sub_u32 s{S_TMP}, {r}, s3\nv_mov_b32 v20, s{S_TMP}\nv_mov_b32 v21, {8 + 4*k}\nglobal_atomic_umax v21, v20, s[{S_DBG}:{S_DBG+1}]")
        e(f"v_mov_b32 v20, s60\nv_mov_b32 v21, 28\nglobal_atomic_or v21, v20, s[{S_DBG}:{S_DBG+1}]")
        e(f"v_mov_b32 v20, s86\nv_mov_b32 v21, 24\nglobal_atomic_umax v21, v20, s[{S_DBG}:{S_DBG+1}]")
    e("s_branch KEND")
```

```python
from asmlib import Em, vr
from layout import *
from chain import *

WS = f"s[{R_WS}:{R_WS+3}]"
W_XB, W_QX, W_KMU, W_RED, W_STG = 0x0, 0x10000, 0x12000, 0x13000, 0x10000
NSLOT = 6
S_G, S_SEG, S_CNT, S_XL, S_XG, S_I, S_OFF, S_OFF2, S_STGB = 52, 53, 54, 55, 56, 57, 58, 59, 60
S_STP, S_END, S_PREV, S_CHN = 61, 66, 74, 75
R_X = 84
R_A, R_B = 40, 44
R_O = 88
V_C, V_G, V_L16, V_XSRC, V_XRD, V_T, V_T2 = 1, 2, 3, 4, 5, 6, 7

_cfg = {}
def WST(e, idx=None):
    if not _cfg.get("wstamp"): return
    e(f"s_memrealtime s[70:71]\ns_lshl_b32 s72, s{S_GRP}, 5\ns_add_u32 s72, s72, s{S_H}\ns_lshl_b32 s72, s72, 8\ns_lshl_b32 s73, s101, 2\ns_add_u32 s72, s72, s73")
    e(f"s_add_u32 s72, s72, {WS_STAMP + 0x20000}\ns_add_u32 s101, s101, 1\ns_waitcnt lgkmcnt(0)\ns_sub_u32 s70, s70, s3\nv_mov_b32 v{V_T}, s70\nv_mov_b32 v{V_T2}, 0\ns_mov_b64 exec, s[{S_W0M}:{S_W0M+1}]")
    e(f"buffer_store_dword v{V_T}, v{V_T2}, {WS}, s72 offen\ns_mov_b64 exec, -1\ns_waitcnt vmcnt(0)")

def load_blocks(e, blocks, D=4):
    N = len(blocks)
    def issue(q):
        n, i = q // 4, q % 4
        r, vs, so, _, _ = blocks[n]
        e(f"s_add_u32 m0, s{S_STGB}, {(n % NSLOT) * 4096 + i * 1024}\ns_mov_b32 s{S_TMP}, {so[i]}")
        e(f"buffer_load_dwordx4 {vs}, s[{r}:{r+3}], s{S_TMP} offen lds")
    for q in range(D): issue(q)
    for q in range(4 * N):
        nxt = q + D
        if q % 4 == 3 or (D < 4 and nxt < 4 * N): e(f"s_waitcnt vmcnt({min(4 * N - 1 - q, D - 1 if D < 4 else D - 4)})")
        if D < 4 and nxt < 4 * N: issue(nxt)
        if q % 4 == 3:
            n = q // 4
            for dst, off in blocks[n][4]:
                e(f"ds_read_b64_tr_b16 {dst}, {blocks[n][3]} offset:{(n % NSLOT) * 4096 + off}")
            e("s_waitcnt lgkmcnt(0)")
            if D >= 4:
                for k in range(4):
                    if q - 3 + D + k < 4 * N: issue(q - 3 + D + k)

def wmat_blocks(r, abase):
    out = []
    for J in range(8):
        rd = []
        for t in range(2):
            for m in range(4):
                s = 2 * J + m // 2
                rd.append((vr(abase + (t * 16 + s) * 4 + 2 * (m % 2), 2, "a"), (32 * (m // 2) + 4 * (m % 2)) * 64 + t * 32))
        out.append((r, "v20", [(64 * J + 16 * i) * 8192 for i in range(4)], "v22", rd))
    return out

def wo_blocks(r, abase):
    out = []
    for hh in range(8):
        rd = []
        for js in range(4):
            for m in range(2):
                rd.append((vr(abase + (hh * 4 + js) * 4 + 2 * m, 2, "a"), (32 * js + 16 * m) * 32))
        out.append((r, "v21", [(hh * 128 + 32 * i) * 1024 for i in range(4)], "v23", rd))
    return out

def wload_addr(e):
    e("v_and_b32 v18, 3, v0\nv_lshrrev_b32 v19, 2, v0")
    e(f"s_lshl_b32 s{S_TMP}, s{S_H}, 8\ns_lshl_b32 s{S_TMP2}, s{S_W}, 6\ns_add_u32 s{S_TMP}, s{S_TMP}, s{S_TMP2}")
    e(f"v_lshlrev_b32 v20, 13, v19\nv_lshl_add_u32 v20, v18, 4, v20\nv_add_u32 v20, s{S_TMP}, v20")
    e(f"s_lshl_b32 s{S_TMP}, s{S_W}, 20\ns_lshl_b32 s{S_TMP2}, s{S_H}, 5\ns_add_u32 s{S_TMP}, s{S_TMP}, s{S_TMP2}")
    e(f"v_lshrrev_b32 v21, 1, v0\nv_lshlrev_b32 v21, 10, v21\nv_and_b32 v24, 1, v0\nv_lshl_add_u32 v21, v24, 4, v21\nv_add_u32 v21, s{S_TMP}, v21")
    e(f"s_mul_i32 s{S_STGB}, s{S_W}, {NSLOT*4096}\ns_add_u32 s{S_STGB}, s{S_STGB}, {W_STG}")
    e(f"v_lshrrev_b32 v24, 2, v{V_C}")
    e(f"v_lshl_add_u32 v22, v{V_G}, 3, v24\nv_lshlrev_b32 v22, 6, v22\nv_lshl_add_u32 v22, v18, 3, v22\nv_add_u32 v22, s{S_STGB}, v22")
    e(f"v_lshl_add_u32 v23, v{V_G}, 2, v24\nv_lshlrev_b32 v23, 5, v23\nv_lshl_add_u32 v23, v18, 3, v23\nv_add_u32 v23, s{S_STGB}, v23")

def x_dma(e):
    out = []
    for i in range(8):
        out.append([f"s_add_u32 m0, s{S_XL}, {i*1024}", f"s_add_u32 s{S_TMP}, s{S_XG}, {i*64}",
                    f"buffer_load_dwordx4 v{V_XSRC}, s[{R_X}:{R_X+3}], s{S_TMP} offen lds"])
    return out

def flag_store(e, soff, val):
    e(f"v_mov_b32 v{V_T}, {val}\nv_mov_b32 v{V_T2}, s{soff}\ns_mov_b64 exec, s[{S_W0M}:{S_W0M+1}]")
    e(f"buffer_store_dword v{V_T}, v{V_T2}, {WS}, 0 offen sc1\ns_mov_b64 exec, -1")

def mfd(d, a, b, c, pa="v", pb="v"):
    return f"v_mfma_f32_16x16x32_bf16 {vr(d,4)}, {vr(a,4,pa)}, {vr(b,4,pb)}, {c if c == '0' else vr(c,4)}"

def phaseA(e, cfg):
    e("; ---- phase A : K,V projection")
    XF, ACC, OUT = 32, 64, 96
    srd(e, R_A, S_WK, 0x400000); srd(e, R_B, S_WV, 0x400000)
    if cfg.get("seqa"):
        ns, a2 = cfg["seqa"], cfg.get("a2", 29)
        e(f"s_cmp_lt_u32 s{S_G}, 3\ns_cselect_b32 s{S_STP}, 2, 4\ns_cselect_b32 s{S_END}, {a2}, 64\ns_cselect_b32 s{S_TMP}, {ns-1}, {a2-3}\ns_add_u32 s{S_SEG}, s{S_G}, s{S_TMP}")
        e(f"s_cmp_eq_u32 s{S_G}, 0\ns_cselect_b32 s{S_STP}, 1, s{S_STP}\ns_cselect_b32 s{S_END}, {ns}, s{S_END}\ns_cselect_b32 s{S_SEG}, 0, s{S_SEG}")
    else:
        e(f"s_cmp_lt_u32 s{S_G}, 3\ns_cselect_b32 s{S_STP}, 3, 4\ns_cselect_b32 s{S_END}, {cfg.get('asplit', 27)}, 64\ns_cselect_b32 s{S_TMP}, 0, {cfg.get('asplit', 27) - 3}\ns_add_u32 s{S_SEG}, s{S_G}, s{S_TMP}")
    e(f"s_lshl_b32 s{S_XG}, s{S_SEG}, 15\ns_lshl_b32 s{S_XL}, s{S_W}, 13\nv_mov_b32 v{V_XRD}, v{V_L16}")
    for g in x_dma(e):
        for s in g: e(s)
    if cfg.get("wdc", 4) != cfg.get("wda", 4):
        e(f"s_cmp_lt_u32 s{S_G}, 3\ns_cbranch_scc1 PA_W1")
        load_blocks(e, wmat_blocks(R_A, 0) + wmat_blocks(R_B, 128), cfg["wdc"])
        e("s_branch PA_W2")
        e.label("PA_W1")
    load_blocks(e, wmat_blocks(R_A, 0) + wmat_blocks(R_B, 128), cfg.get('wda', 4))
    e.label("PA_W2")
    wait_init(e, "w", 24)
    e(f"s_and_b32 s{S_TMP}, s{S_GRP}, 3\ns_lshl_b32 s{S_TMP}, s{S_TMP}, 4\ns_lshr_b32 s{S_TMP2}, s{S_GRP}, 2\ns_add_u32 s{S_TMP}, s{S_TMP}, s{S_TMP2}\ns_nop 3")
    e(f"v_readlane_b32 s{S_MODE}, v24, s{S_TMP}")
    if cfg.get("force_slow"): e(f"s_mov_b32 s{S_MODE}, 0")
    WST(e)
    e(f"s_mov_b32 s{S_I}, 0x7ffffff0")
    pa = cfg.get("pastamp")
    def acc(k):
        if pa: e(f"s_memtime s[70:71]\ns_waitcnt lgkmcnt(0)\ns_sub_u32 s72, s70, s92\ns_mov_b32 s92, s70\ns_add_u32 s{93+k}, s{93+k}, s72")
    if pa: e("s_memtime s[92:93]\ns_waitcnt lgkmcnt(0)\ns_mov_b32 s93, 0\ns_mov_b32 s94, 0\ns_mov_b32 s95, 0\ns_mov_b32 s96, 0")
    if cfg.get("nofl"): e("v_mov_b64 v[112:113], -1\nv_mov_b64 v[114:115], -1")
    e.label("PA_LOOP")
    if cfg.get("slowa"): e(f"s_cmp_lt_u32 s{S_SEG}, 9\ns_cbranch_scc1 PA_NS\ns_sleep {cfg['slowa']}"); e.label("PA_NS")
    e(f"s_waitcnt vmcnt({5 if cfg.get('nofl') else 4})")
    acc(0)
    e("s_barrier")
    acc(1)
    e(f"s_lshl_b32 s{S_TMP}, s{S_STP}, 15\ns_add_u32 s{S_XG}, s{S_XG}, s{S_TMP}\ns_xor_b32 s{S_XL}, s{S_XL}, 0x8000")
    dma = x_dma(e)
    seq = {}
    def rd(n):
        s, rt = n // 2, n % 2
        seq[n] = e(f"ds_read_b128 {vr(XF + 4 * (n % 8), 4)}, v{V_XRD} offset:{(rt * 16 + s) * 1024}")
    for n in range(6): rd(n)
    for n in range(32):
        s, rt = n // 2, n % 2
        e.waitlg(seq[n])
        x = XF + 4 * (n % 8)
        for t in range(2):
            a = ACC + 4 * (t * 2 + rt)
            e(mfd(a, (t * 16 + s) * 4, x, "0" if s == 0 else a, "a", "v"))
            if t == 0 and n + 6 < 32: rd(n + 6)
        for t in range(2):
            a = ACC + 16 + 4 * (t * 2 + rt)
            e(mfd(a, x, 128 + (t * 16 + s) * 4, "0" if s == 0 else a, "v", "a"))
        if n % 3 == 1 and n // 3 < 8:
            for q in dma[n // 3]: e(q)
        if n == 14:
            e("s_waitcnt vmcnt(5)\ns_barrier")
            flag_store(e, S_I, 1)
    acc(2)
    e(f"v_xor_b32 v{V_XRD}, 0x8000, v{V_XRD}")
    e(f"s_lshl_b32 s{S_OFF}, s{S_SEG}, 19\ns_lshl_b32 s{S_TMP}, s{S_H}, 14\ns_add_u32 s{S_OFF}, s{S_OFF}, s{S_TMP}\ns_add_u32 s{S_OFF}, s{S_OFF}, {WS_KV}")
    e(f"s_lshl_b32 s{S_TMP}, s{S_W}, 10\ns_add_u32 s{S_TMP2}, s{S_OFF}, s{S_TMP}\ns_nop 0\ns_lshl_b32 s{S_I}, s{S_H}, 6\ns_add_u32 s{S_I}, s{S_I}, s{S_SEG}\ns_lshl_b32 s{S_I}, s{S_I}, 2")
    for rt in range(2):
        o = OUT + 4 * rt
        for t in range(2):
            a = ACC + 4 * (t * 2 + rt)
            e(f"v_cvt_pk_bf16_f32 v{o+2*t}, v{a}, v{a+1}\nv_cvt_pk_bf16_f32 v{o+2*t+1}, v{a+2}, v{a+3}")
        e(f"buffer_store_dwordx4 {vr(o,4)}, v{V_L16}, {WS}, s{S_TMP2} offen sc1")
        e(f"s_add_u32 s{S_TMP2}, s{S_TMP2}, 4096")
    e(f"s_add_u32 s{S_TMP2}, s{S_TMP2}, s{S_TMP}")
    for t in range(2):
        o = OUT + 8 + 4 * t
        for rt in range(2):
            a = ACC + 16 + 4 * (t * 2 + rt)
            e(f"v_cvt_pk_bf16_f32 v{o+2*rt}, v{a}, v{a+1}\nv_cvt_pk_bf16_f32 v{o+2*rt+1}, v{a+2}, v{a+3}")
        e(f"buffer_store_dwordx4 {vr(o,4)}, v{V_L16}, {WS}, s{S_TMP2} offen offset:{t*1024} sc1")
    if cfg.get("nofl"):
        e(f"s_lshl_b32 s{S_TMP2}, s{S_SEG}, 7\ns_lshl_b32 s{S_TMP}, s{S_H}, 2\ns_add_u32 s{S_TMP2}, s{S_TMP2}, s{S_TMP}\ns_add_u32 s{S_TMP2}, s{S_TMP2}, s{S_W}")
        e(f"s_lshl_b32 s{S_TMP2}, s{S_TMP2}, 10\ns_add_u32 s{S_TMP2}, s{S_TMP2}, {WS_KVM}\nbuffer_store_dwordx4 v[112:115], v{V_L16}, {WS}, s{S_TMP2} offen sc1")
    acc(3)
    e(f"s_add_u32 s{S_SEG}, s{S_SEG}, s{S_STP}\ns_cmp_lt_u32 s{S_SEG}, s{S_END}\ns_cbranch_scc1 PA_LOOP")
    e("s_waitcnt vmcnt(0)\ns_barrier")
    flag_store(e, S_I, 1)
    if pa:
        e(f"s_lshl_b32 s72, s{S_GRP}, 5\ns_add_u32 s72, s72, s{S_H}\ns_lshl_b32 s72, s72, 4\ns_add_u32 s72, s72, {WS_STAMP + 0x30000}")
        e(f"v_mov_b32 v32, s93\nv_mov_b32 v33, s94\nv_mov_b32 v34, s95\nv_mov_b32 v35, s96\nv_mov_b32 v36, 0\nbuffer_store_dwordx4 v[32:35], v36, {WS}, s72 offen")

def poll_all(e, name, vaddr, soff, cmpv, vt, sleep=8, bar=True, pre=False):
    l, d = e.newlabel(name), e.newlabel(name + "D")
    e(f"s_cmp_eq_u32 s{S_W}, 0\ns_cbranch_scc0 {d}")
    if pre: e(f"v_cmp_gt_u32 vcc, {cmpv}, v{vt}\ns_cbranch_vccz {d}")
    e.label(l)
    e(f"buffer_load_dword v{vt}, v{vaddr}, {WS}, {soff} offen sc1\ns_add_u32 s{S_SPIN}, s{S_SPIN}, 1\ns_waitcnt vmcnt(0)")
    e(f"v_cmp_gt_u32 vcc, {cmpv}, v{vt}\ns_cbranch_vccz {d}\ns_sleep {sleep}")
    e(f"s_cmp_lt_u32 s{S_SPIN}, {SPIN_MAX}\ns_cbranch_scc1 {l}")
    e.label(d)
    if bar: e("s_barrier")

def rb_pair(e, d, a, b):
    e(f"v_cvt_pk_bf16_f32 v{d}, v{a}, v{b}\nv_lshlrev_b32 v{a}, 16, v{d}\nv_and_b32 v{b}, 0xffff0000, v{d}")

C_UR, C_HP, URS, HPC = 0x0, 0x8000, 7680, 4160
HPS = 4 * HPC
def conv(e, cfg):
    e("; ---- conv task")
    S_TK = S_OFF
    e(f"s_cmp_lt_u32 s{S_G}, 3\ns_cbranch_scc1 CV_END\ns_sub_u32 s{S_TK}, s{S_G}, 3\ns_lshl_b32 s{S_TK}, s{S_TK}, 5\ns_add_u32 s{S_TK}, s{S_TK}, s{S_H}")
    if cfg.get("cvwait") is not None:
        wait_init(e, "w", 24)
        e(f"s_lshl_b32 s{S_OFF2}, s{S_H}, 8\ns_add_u32 s{S_OFF2}, s{S_OFF2}, {4*cfg['cvwait']}\nv_mov_b32 v24, 0")
        poll_all(e, "CVS", 24, f"s{S_OFF2}", 1, 25, 32)
    srd(e, R_A, S_K, 0x200000); srd(e, R_B, S_V, 0x200000)
    KR, VR, SH, P, U = 32, 56, 72, 88, 112
    e(f"s_lshl_b32 s{S_TMP}, s{S_W}, 6\nv_add_u32 v16, s{S_TMP}, v0")
    e(f"s_lshl_b32 s{S_TMP}, s{S_TK}, 3\nv_lshlrev_b32 v17, 13, v16\nv_add_u32 v17, s{S_TMP}, v17")
    e("v_subrev_u32 v18, 3072, v17")
    for j in range(3): e(f"buffer_load_dwordx2 {vr(KR+2*j,2)}, v18, s[{R_A}:{R_A+3}], 0 offen offset:{j*1024}")
    e("v_add_u32 v19, 4096, v17")
    for j in range(8):
        va = "v17" if j < 4 else "v19"
        e(f"buffer_load_dwordx2 {vr(KR+6+2*j,2)}, {va}, s[{R_A}:{R_A+3}], 0 offen offset:{(j%4)*1024}")
        e(f"buffer_load_dwordx2 {vr(VR+2*j,2)}, {va}, s[{R_B}:{R_B+3}], 0 offen offset:{(j%4)*1024}")
    e(f"s_lshl_b32 s{S_TMP2}, s{S_TK}, 2\ns_add_u32 s{S_TMP2}, s{S_TMP2}, s{S_W}")
    e(f"s_lshl_b32 s{S_XG}, s{S_TMP2}, 12\ns_mul_i32 s{S_XL}, s{S_W}, {HPS}\ns_add_u32 s{S_XL}, s{S_XL}, {C_HP}")
    e(f"s_add_u32 s{R_O}, s{S_SSMK}, s{S_XG}\ns_addc_u32 s{R_O+1}, s{S_SSMK+1}, 0\ns_mov_b32 s{R_O+2}, 4096\ns_mov_b32 s{R_O+3}, 0x20000")
    HR = 140
    for i in range(5):
        e(f"v_add_u32 v22, {i*1024 - 64}, v{V_L16}\nv_add_u32 v23, {i*1024 - 48}, v{V_L16}")
        e(f"buffer_load_dwordx4 {vr(HR+6*i,4)}, v22, s[{R_O}:{R_O+3}], 0 offen\nbuffer_load_dwordx2 {vr(HR+6*i+4,2)}, v23, s[{R_O}:{R_O+3}], 0 offen")
    e(f"s_lshl_b32 s{S_TMP}, s{S_TK}, 5\ns_load_dwordx8 s[92:99], s[{S_SH}:{S_SH+1}], s{S_TMP}")
    e(f"s_lshl_b32 s{S_TMP}, s{S_TMP2}, 1\ns_and_b32 s{S_TMP}, s{S_TMP}, -4\ns_load_dword s{S_CNT}, s[{S_SSMD}:{S_SSMD+1}], s{S_TMP}")
    e(f"v_mov_b64 v[24:25], 0\nv_mov_b64 v[26:27], 0")
    e(f"s_mul_i32 s{S_I}, s{S_W}, {URS}\nv_add_u32 v20, s{S_I}, v{V_L16}")
    for i in range(2): e(f"ds_write_b128 v20, v[24:27] offset:{5120 + i*1024}")
    e(f"s_mov_b32 exec_hi, 0\nds_write_b128 v20, v[24:27] offset:{5120 + 2048}\ns_mov_b64 exec, -1")
    e("v_lshlrev_b32 v20, 3, v16\nv_sub_u32 v20, 2040, v20\nv_lshrrev_b32 v21, 5, v20\nv_and_b32 v20, 31, v20")
    e("v_mul_u32_u24 v21, 80, v21\nv_lshl_add_u32 v20, v20, 1, v21")
    e("s_waitcnt vmcnt(10) lgkmcnt(0)")
    if cfg.get("cvstamp"): WST(e)
    e("v_cmp_eq_u32 vcc, 0, v16\ns_nop 1")
    for r in range(6): e(f"v_cndmask_b32 v{KR+r}, v{KR+r}, v24, vcc")
    for ch in range(4):
        for j in range(4):
            src = 92 + ch * 2 + j // 2
            e(f"s_lshl_b32 s{70+j}, s{src}, 16" if j % 2 == 0 else f"s_and_b32 s{70+j}, s{src}, 0xffff0000")
        KF = 120
        for j in range(11):
            r = KR + 2 * j + ch // 2
            e(f"v_lshlrev_b32 v{KF+j}, 16, v{r}" if ch % 2 == 0 else f"v_and_b32 v{KF+j}, 0xffff0000, v{r}")
        for pr in range(4):
            a, b, t1, t2, d = P, P + 1, P + 2, P + 3, P + 4
            r0 = 2 * pr
            e(f"v_mul_f32 v{a}, s73, v{KF+r0}\nv_mul_f32 v{b}, s73, v{KF+r0+1}")
            rb_pair(e, d, a, b)
            for j in (2, 1, 0):
                e(f"v_mul_f32 v{t1}, s{70+j}, v{KF+r0+3-j}\nv_mul_f32 v{t2}, s{70+j}, v{KF+r0+1+3-j}")
                rb_pair(e, d, t1, t2)
                e(f"v_add_f32 v{a}, v{a}, v{t1}\nv_add_f32 v{b}, v{b}, v{t2}")
                rb_pair(e, d, a, b)
            for q, rr in ((t1, r0), (t2, r0 + 1)):
                r = VR + 2 * rr + ch // 2
                e(f"v_lshlrev_b32 v{q}, 16, v{r}" if ch % 2 == 0 else f"v_and_b32 v{q}, 0xffff0000, v{r}")
            e(f"v_mul_f32 v{a}, v{a}, v{t1}\nv_mul_f32 v{b}, v{b}, v{t2}")
            e(f"v_cvt_pk_bf16_f32 v{U+3-pr}, v{b}, v{a}")
        e(f"ds_write_b128 v20, {vr(U,4)} offset:{ch*URS}\ns_nop 1")
    if cfg.get("cvstamp"): WST(e)
    e(f"s_waitcnt vmcnt(0)\nv_add_u32 v22, s{S_XL}, v{V_L16}")
    for i in range(5):
        x = HR + 6 * i
        if i == 4: e("s_mov_b64 exec, 15")
        for k in range(4): e(f"v_alignbyte_b32 v{P+k}, v{x+k+1}, v{x+k}, 2")
        for k in range(4): e(f"v_alignbyte_b32 v{P+4+k}, v{x+k+2}, v{x+k+1}, 2")
        for k in range(4): e(f"v_mov_b32 v{P+8+k}, v{x+k+1}")
        e(f"ds_write_b128 v22, {vr(x,4)} offset:{i*1024}\nds_write_b128 v22, {vr(P,4)} offset:{i*1024 + HPC}")
        e(f"ds_write_b128 v22, {vr(P+8,4)} offset:{i*1024 + 2*HPC}\nds_write_b128 v22, {vr(P+4,4)} offset:{i*1024 + 3*HPC}\ns_waitcnt lgkmcnt(0)")
    e("s_mov_b64 exec, -1\ns_barrier")
    if cfg.get("cvstamp"): WST(e)
    e(f"v_and_b32 v16, 31, v0\nv_lshrrev_b32 v17, 5, v0")
    e(f"v_lshl_add_u32 v18, v17, 3, v16\nv_add_u32 v18, 1, v18\nv_and_b32 v19, 3, v18\nv_and_b32 v18, -4, v18\nv_mul_u32_u24 v19, {HPC}, v19")
    e(f"v_lshl_add_u32 v18, v18, 1, v19\nv_add_u32 v18, s{S_XL}, v18")
    e(f"v_sub_u32 v19, 63, v16\nv_mul_u32_u24 v19, 80, v19\nv_lshl_add_u32 v19, v17, 4, v19\nv_add_u32 v19, s{S_I}, v19")
    e("v_subrev_u32 v21, 2560, v19")
    AC0, AC1, FR, NB = 32, 48, 64, 3
    seq = {}
    def rd(sg):
        b = FR + 16 * (sg % NB); bo = (sg // 2) * 80 + (sg % 2) * 32
        e(f"ds_read_b64 {vr(b,2)}, v18 offset:{sg*32}\nds_read_b64 {vr(b+2,2)}, v18 offset:{sg*32+8}")
        e(f"ds_read_b128 {vr(b+4,4)}, v19 offset:{bo}")
        e(f"ds_read_b128 {vr(b+8,4)}, v21 offset:{bo}")
        seq[sg] = e(f"ds_read_b64 {vr(b+12,2)}, v18 offset:{sg*32+2048}\nds_read_b64 {vr(b+14,2)}, v18 offset:{sg*32+2056}")
    def mm(d, a, b, first): return f"v_mfma_f32_32x32x16_bf16 {vr(d,16)}, {vr(a,4)}, {vr(b,4)}, {'0' if first else vr(d,16)}"
    rd(0); rd(1)
    for sg in range(64):
        b = FR + 16 * (sg % NB)
        e.waitlg(seq[sg])
        e(mm(AC0, b, b + 4, sg == 0))
        if sg + 2 < 64: rd(sg + 2)
        e(mm(AC1, b, b + 8, sg == 0))
        e(mm(AC1, b + 12, b + 4, False))
    if cfg.get("cvstamp"): WST(e)
    e(f"s_bitcmp1_b32 s{S_TMP2}, 0\ns_cbranch_scc1 CV_D1\ns_lshl_b32 s{S_CNT}, s{S_CNT}, 16")
    e.label("CV_D1")
    e(f"s_and_b32 s{S_CNT}, s{S_CNT}, 0xffff0000")
    e(f"v_lshlrev_b32 v22, 5, v17\nv_sub_u32 v22, v19, v22\nv_lshl_add_u32 v22, v17, 3, v22")
    e(f"v_lshlrev_b32 v23, 6, v16\nv_lshl_add_u32 v23, v17, 3, v23")
    e(f"s_lshl_b32 s{S_XG}, s{S_TMP2}, 12\ns_add_u32 s{S_XG}, s{S_XG}, {WS_Y2}")
    e("v_subrev_u32 v24, 2560, v22")
    for tl in range(2):
        for q in range(4):
            e(f"ds_read_b64 {vr(FR + 8*tl + 2*q, 2)}, {'v22' if tl == 0 else 'v24'} offset:{56 - 16*q}")
    e("s_waitcnt lgkmcnt(0)\ns_nop 7")
    for tl in range(2):
        for q in range(4):
            y = (AC0 if tl == 0 else AC1) + 4 * q; u = FR + 8 * tl + 2 * q; t = 96
            e(f"v_and_b32 v{t}, 0xffff0000, v{u+1}\nv_lshlrev_b32 v{t+1}, 16, v{u+1}\nv_and_b32 v{t+2}, 0xffff0000, v{u}\nv_lshlrev_b32 v{t+3}, 16, v{u}")
            for i in range(4): e(f"v_mul_f32 v{t+i}, s{S_CNT}, v{t+i}")
            rb_pair(e, t + 4, t, t + 1); rb_pair(e, t + 4, t + 2, t + 3)
            rb_pair(e, t + 4, y, y + 1); rb_pair(e, t + 4, y + 2, y + 3)
            for i in range(4): e(f"v_add_f32 v{y+i}, v{y+i}, v{t+i}")
            e(f"v_cvt_pk_bf16_f32 v{y}, v{y}, v{y+1}\nv_cvt_pk_bf16_f32 v{y+1}, v{y+2}, v{y+3}")
            e(f"buffer_store_dwordx2 {vr(y,2)}, v23, {WS}, s{S_XG} offen offset:{tl*2048 + q*16} sc1")
    if cfg.get("cvstamp"): e("s_nop 0"); WST(e)
    e("s_waitcnt vmcnt(0)\ns_barrier")
    wait_init(e, "w", 24)
    e(f"s_lshl_b32 s{S_TK}, s{S_TK}, 2\ns_add_u32 s{S_TK}, s{S_TK}, {FL_CONV}")
    flag_store(e, S_TK, 1)
    e.label("CV_END")

def phaseB(e, cfg):
    e("; ---- phase B")
    srd(e, R_A, S_WQ, 0x400000); srd(e, R_B, S_WO, 0x400000)
    wload_addr(e)
    e(f"s_mov_b32 s{S_SEG}, s{S_G}\ns_lshl_b32 s{S_XG}, s{S_SEG}, 15\ns_lshl_b32 s{S_XL}, s{S_W}, 13")
    e(f"v_mov_b32 v{V_XRD}, v{V_L16}")
    for g in x_dma(e):
        for s in g: e(s)
    load_blocks(e, wmat_blocks(R_A, 0) + wo_blocks(R_B, 128), cfg.get('wdb', 4))
    srd(e, R_O, S_OUT, 0x200000); srd(e, R_A, S_GATE, 1024)
    GW = 16
    e(f"buffer_load_dwordx4 {vr(GW,4)}, v{V_L16}, s[{R_A}:{R_A+3}], 0 offen")
    e(f"s_and_b32 s62, s{S_W}, 1\ns_lshr_b32 s63, s{S_W}, 1")
    e(f"v_lshlrev_b32 v8, 2, v{V_G}\nv_sub_u32 v8, v{V_C}, v8\ns_lshl_b32 s{S_TMP}, s62, 4\nv_add_u32 v8, s{S_TMP}, v8\nv_subrev_u32 v9, 16, v8")
    e(f"v_lshrrev_b32 v25, 2, v{V_C}\nv_lshl_add_u32 v25, v{V_G}, 2, v25\nv_and_b32 v24, 1, v0\nv_lshlrev_b32 v24, 3, v24\nv_lshl_add_u32 v10, v25, 4, v24\nv_add_u32 v10, {W_KMU}, v10")
    e(f"s_lshl_b32 s{S_TMP}, s{S_W}, 9\ns_add_u32 s{S_TMP}, s{S_TMP}, {W_KMU}\nv_lshlrev_b32 v22, 4, v{V_C}\nv_lshl_add_u32 v22, v{V_G}, 2, v22\nv_add_u32 v22, s{S_TMP}, v22")
    e(f"s_lshl_b32 s{S_TMP}, s{S_W}, 9\nv_lshl_add_u32 v23, v0, 3, s{S_TMP}")
    e(f"v_and_b32 v24, 1, v{V_G}\nv_lshl_add_u32 v11, v24, 5, v{V_C}\nv_lshlrev_b32 v11, 3, v11\ns_lshl_b32 s{S_TMP}, s63, 10\ns_add_u32 s{S_TMP}, s{S_TMP}, 2048\nv_add_u32 v11, s{S_TMP}, v11")
    e(f"v_lshrrev_b32 v24, 2, v0\nv_and_b32 v25, 3, v0\nv_lshlrev_b32 v12, 10, v24\nv_lshl_add_u32 v12, v25, 8, v12")
    e(f"s_lshr_b32 s{S_TMP}, s{S_H}, 4\ns_lshl_b32 s{S_TMP}, s{S_TMP}, 14\ns_and_b32 s{S_TMP2}, s{S_H}, 15\ns_lshl_b32 s{S_TMP2}, s{S_TMP2}, 4\ns_add_u32 s{S_TMP}, s{S_TMP}, s{S_TMP2}\nv_add_u32 v12, s{S_TMP}, v12")
    e(f"s_lshl_b32 s{S_TMP}, s{S_W}, 3\nv_lshrrev_b32 v24, 3, v0\nv_add_u32 v24, s{S_TMP}, v24\nv_and_b32 v25, 7, v0")
    e(f"v_lshrrev_b32 v26, 4, v24\nv_and_b32 v27, 15, v24\nv_lshlrev_b32 v13, 10, v26\nv_lshl_add_u32 v13, v27, 4, v13")
    e(f"v_lshrrev_b32 v26, 1, v25\nv_lshl_add_u32 v13, v26, 8, v13\nv_and_b32 v26, 1, v25\nv_lshl_add_u32 v13, v26, 3, v13\nv_add_u32 v13, {W_RED}, v13")
    e(f"s_lshl_b32 s{S_TMP}, s{S_H}, 16\nv_lshlrev_b32 v14, 13, v25\nv_lshl_add_u32 v14, v24, 1, v14\nv_add_u32 v14, s{S_TMP}, v14")
    e(f"s_lshl_b32 s{S_TMP}, s{S_H}, 5\nv_lshlrev_b32 v15, 10, v24\nv_lshl_add_u32 v15, v25, 2, v15\nv_add_u32 v15, s{S_TMP}, v15")
    e(f"v_and_b32 v20, 31, v0\nv_lshlrev_b32 v20, 7, v20\nv_lshlrev_b32 v21, 2, v24")
    e(f"s_lshl_b32 s{S_CF}, s{S_H}, 7\ns_add_u32 s{S_CF}, s{S_CF}, {FL_CFLAG}\ns_mov_b32 s{S_SC}, 0x3e0293ee")
    e(f"v_lshlrev_b32 v24, 2, v0\ns_mov_b32 s{S_OFF}, {FL_CONV}\ns_mov_b32 s{S_OFF2}, {FL_CONV+256}\ns_lshl_b32 s{S_CNT}, s{S_H}, 8")
    e(f"v_mov_b32 v26, 0\nv_mov_b32 v31, 0\ns_mov_b32 s{S_CHN}, 0")
    e(f"s_mov_b32 s{S_PREV}, -1")
    KF, VF, XF, ACC, QF, KM, VM, SS_, PB, OA, TT = 32, 64, 80, 112, 232, 144, 248, 216, 180, 188, 224
    KR_, F1, F2, F3, W_RDY = 28, 25, 30, 31, 0x15000
    X0, X1, M, MX = SS_, SS_ + 4, 168, 27
    RB, NRF, FA = 80, 32, 208
    S_RT, S_LM_, S_SH_, S_SEL_ = 64, 94, 96, 97
    def final(half=False, pre=False):
        cd = e.newlabel("CVD")
        e(f"s_cmp_eq_u32 s{S_CHN}, 1\ns_cbranch_scc1 {cd}\ns_mov_b32 s{S_CHN}, 1\ns_mov_b32 s{S_OFF}, {FL_CONV}\ns_mov_b32 s{S_OFF2}, {FL_CONV+256}")
        poll_all(e, "CVW", 24, f"s{S_OFF}", 1, TT + 2, 32, False)
        poll_all(e, "CVW", 24, f"s{S_OFF2}", 1, TT + 2, 32, True)
        e.label(cd)
        e(f"s_lshl_b32 s{S_TMP}, s{S_PREV}, 6\ns_add_u32 s{S_TMP}, s{S_TMP}, {WS_Y2}\ns_add_u32 s{S_I}, s{S_TMP}, 4096")
        e(f"buffer_load_ushort v{TT+4}, v14, {WS}, s{S_TMP} offen sc1\nbuffer_load_ushort v{TT+5}, v14, {WS}, s{S_I} offen sc1")
        e(f"s_lshl_b32 s{S_CNT}, s{S_PREV}, 15\nbuffer_load_dword v{TT+6}, v15, s[{R_X}:{R_X+3}], s{S_CNT} offen")
        e(f"s_lshl_b32 s{S_OFF2}, s{S_PREV}, 12\ns_add_u32 s{S_OFF2}, s{S_OFF2}, {FL_O2}")
        od = half and cfg.get("odp")
        if od:
            S_FB = 98
            e(f"s_sub_u32 s{S_FB}, s{S_PREV}, 47\ns_lshl_b32 s{S_FB}, s{S_FB}, 18\ns_lshl_b32 s{S_TMP}, s{S_W}, 16\ns_add_u32 s{S_FB}, s{S_FB}, s{S_TMP}")
            e(f"s_lshl_b32 s{S_TMP}, s{S_RT}, 12\ns_add_u32 s{S_FB}, s{S_FB}, s{S_TMP}\ns_add_u32 s{S_FB}, s{S_FB}, {WS_O}\ns_add_u32 s{S_OFF}, s{S_FB}, {7 * 8192}")
            e(f"s_lshl_b32 s{S_OFF2}, s{S_PREV}, 7\ns_add_u32 s{S_OFF2}, s{S_OFF2}, {WS_G}")
            e.label("OD_0")
            e(f"buffer_load_dword v{RB}, v{V_L16}, {WS}, s{S_OFF} offen offset:3072 sc1\nbuffer_load_dword v{TT+7}, v21, {WS}, s{S_OFF2} offen sc1")
            e(f"s_add_u32 s{S_SPIN}, s{S_SPIN}, 1\ns_waitcnt vmcnt(0)\nv_max_u32 v{RB}, v{RB}, v{TT+7}\nv_cmp_eq_u32 vcc, -1, v{RB}\ns_cbranch_vccz OD_1")
            e(f"s_sleep {cfg.get('osleep', 2)}\ns_cmp_lt_u32 s{S_SPIN}, {SPIN_MAX}\ns_cbranch_scc1 OD_0")
            e.label("OD_1")
            def ldh(hh):
                e(f"s_add_u32 s{S_OFF}, s{S_FB}, {hh * 8192}")
                for js in range(4): e(f"buffer_load_dwordx4 {vr(RB + 16 * hh + 4 * js, 4)}, v{V_L16}, {WS}, s{S_OFF} offen offset:{js * 1024} sc1")
            for hh in range(8): ldh(hh)
            ool = []
            for hh in range(8):
                r = RB + 16 * hh
                e(f"s_waitcnt vmcnt({4 * (7 - hh)})")
                e.label(f"OD_C{hh}")
                e(f"v_max3_u32 v{TT}, v{r}, v{r+1}, v{r+2}")
                for k in range(3, 15, 2): e(f"v_max3_u32 v{TT}, v{TT}, v{r+k}, v{r+k+1}")
                e(f"v_max_u32 v{TT}, v{TT}, v{r+15}\nv_cmp_eq_u32 vcc, -1, v{TT}\ns_cbranch_vccnz OD_R{hh}")
                e.label(f"OD_K{hh}")
                for js in range(4): e(mfd(FA, 128 + (hh * 4 + js) * 4, r + 4 * js, "0" if hh + js == 0 else FA, "a", "v"))
            e("s_branch OD_E")
            for hh in range(8):
                e.label(f"OD_R{hh}")
                e(f"s_add_u32 s{S_SPIN}, s{S_SPIN}, 1\ns_cmp_gt_u32 s{S_SPIN}, {SPIN_MAX}\ns_cbranch_scc1 OD_K{hh}")
                ldh(hh)
                e(f"s_waitcnt vmcnt(0)\ns_branch OD_C{hh}")
            e.label("OD_E")
        if not od:
            WST(e)
            poll_all(e, "OW", 20, f"s{S_OFF2}", 1, F1, cfg.get("osleep", 4), True, pre)
            WST(e)
            e(f"s_lshl_b32 s{S_TMP}, s{S_PREV}, 7\ns_add_u32 s{S_TMP}, s{S_TMP}, {WS_G}\nbuffer_load_dword v{TT+7}, v21, {WS}, s{S_TMP} offen sc1")
        if not od:
            e(f"s_mul_i32 s{S_OFF}, s{S_PREV}, 37\ns_lshr_b32 s{S_OFF}, s{S_OFF}, 9\ns_mul_i32 s{S_OFF}, s{S_OFF}, 14\ns_sub_u32 s{S_OFF}, s{S_PREV}, s{S_OFF}\ns_lshl_b32 s{S_OFF}, s{S_OFF}, 18\ns_lshl_b32 s{S_TMP}, s{S_W}, 16\ns_add_u32 s{S_OFF}, s{S_OFF}, s{S_TMP}\ns_add_u32 s{S_OFF}, s{S_OFF}, {WS_O}")
            NL = 32 if half else 64
            NR = NRF if half else cfg.get('nr', 32)
            if half: e(f"s_lshl_b32 s{S_TMP}, s{S_RT}, 12\ns_add_u32 s{S_OFF}, s{S_OFF}, s{S_TMP}")
            def ld(n):
                if n % 4 == 0 and n > 0: e(f"s_add_u32 s{S_OFF}, s{S_OFF}, {8192 if half else 4096}")
                e(f"buffer_load_dwordx4 {vr(RB + 4 * (n % NR), 4)}, v{V_L16}, {WS}, s{S_OFF} offen offset:{(n % 4) * 1024} sc1")
            if half: e(f"s_mov_b64 exec, s[{S_LM_}:{S_LM_+1}]")
            for n in range(NR): ld(n)
            if half: e("s_mov_b64 exec, -1")
            for n in range(NL):
                hh, rt, js = (n // 4, 0, n % 4) if half else (n // 8, (n // 4) % 2, n % 4)
                e(f"s_waitcnt vmcnt({min(NL - 1 - n, NR - 1)})")
                a = FA + 4 * rt
                e(mfd(a, 128 + (hh * 4 + js) * 4, RB + 4 * (n % NR), "0" if n == 4 * rt else a, "a", "v"))
                if n + NR < NL: ld(n + NR)
        e(f"s_lshl_b32 s{S_TMP}, s{S_W}, 11\ns_add_u32 s{S_TMP}, s{S_TMP}, {W_RED}")
        if half: e(f"s_lshl_b32 s{S_I}, s{S_RT}, 10\ns_add_u32 s{S_TMP}, s{S_TMP}, s{S_I}")
        e(f"v_add_u32 v{V_T}, s{S_TMP}, v{V_L16}\ns_nop 5")
        e(f"ds_write_b128 v{V_T}, {vr(FA,4)}")
        if not half: e(f"ds_write_b128 v{V_T}, {vr(FA+4,4)} offset:1024")
        e("s_waitcnt lgkmcnt(0)\ns_barrier")
        B0 = RB
        for w in range(4): e(f"ds_read_b64 {vr(B0+2*w,2)}, v13 offset:{w*2048}")
        y0, y1, q, g = TT + 4, TT + 5, TT + 6, TT + 7
        e(f"v_lshlrev_b32 v{y0}, 16, v{y0}\nv_lshlrev_b32 v{y1}, 16, v{y1}\nv_lshlrev_b32 v{B0+8}, 16, v{q}\nv_and_b32 v{B0+9}, 0xffff0000, v{q}")
        e(f"v_mul_f32 v{y0}, v{y0}, v{B0+8}\nv_mul_f32 v{y1}, v{y1}, v{B0+9}")
        rb_pair(e, B0 + 10, y0, y1)
        e(f"v_mul_f32 v{y0}, v{y0}, v{g}\nv_mul_f32 v{y1}, v{y1}, v{g}")
        rb_pair(e, B0 + 10, y0, y1)
        e(f"v_sub_f32 v{g}, 1.0, v{g}\nv_cvt_pk_bf16_f32 v{g}, v{g}, v{g}\nv_lshlrev_b32 v{g}, 16, v{g}\ns_waitcnt lgkmcnt(0)")
        e(f"v_add_f32 v{B0}, v{B0}, v{B0+2}\nv_add_f32 v{B0+1}, v{B0+1}, v{B0+3}\nv_add_f32 v{B0+4}, v{B0+4}, v{B0+6}\nv_add_f32 v{B0+5}, v{B0+5}, v{B0+7}")
        e(f"v_add_f32 v{B0}, v{B0}, v{B0+4}\nv_add_f32 v{B0+1}, v{B0+1}, v{B0+5}")
        rb_pair(e, B0 + 10, B0, B0 + 1)
        e(f"v_mul_f32 v{B0}, v{B0}, v{g}\nv_mul_f32 v{B0+1}, v{B0+1}, v{g}")
        rb_pair(e, B0 + 10, B0, B0 + 1)
        e(f"v_add_f32 v{B0}, v{B0}, v{y0}\nv_add_f32 v{B0+1}, v{B0+1}, v{y1}\nv_cvt_pk_bf16_f32 v{B0}, v{B0}, v{B0+1}")
        if half: e(f"s_lshr_b32 s{S_TMP}, s{S_W}, s{S_SH_}\ns_cmp_eq_u32 s{S_TMP}, s{S_SEL_}\ns_cselect_b64 exec, -1, 0")
        e(f"buffer_store_dword v{B0}, v15, s[{R_O}:{R_O+3}], s{S_CNT} offen {cfg.get('outst', '')}")
        if half: e("s_mov_b64 exec, -1")
    e.label("PB_LOOP")
    e(f"s_lshl_b32 s{S_CNT}, s{S_H}, 6\ns_add_u32 s{S_CNT}, s{S_CNT}, s{S_SEG}\ns_lshl_b32 s{S_CNT}, s{S_CNT}, 2")
    poll_all(e, "KVW", 26, f"s{S_CNT}", 1, F3, 16, False, True)
    e("s_waitcnt vmcnt(0)\ns_barrier")
    WST(e)
    e(f"s_add_u32 s{S_CNT}, s{S_CNT}, 28\ns_sub_u32 exec_lo, 0, s{S_W0M}\ns_mov_b32 exec_hi, exec_lo")
    e(("" if cfg.get("nofl") else f"buffer_load_dword v{F2}, off, {WS}, s{S_CF} sc1\n") + f"buffer_load_dword v{F3}, off, {WS}, s{S_CNT} sc1\ns_mov_b64 exec, -1")
    e(f"s_lshl_b32 s{S_OFF}, s{S_SEG}, 19\ns_lshl_b32 s{S_TMP}, s{S_H}, 14\ns_add_u32 s{S_OFF}, s{S_OFF}, s{S_TMP}\ns_add_u32 s{S_OFF}, s{S_OFF}, {WS_KV}")
    e(f"s_add_u32 s{S_OFF2}, s{S_OFF}, 4096\ns_lshl_b32 s{S_TMP}, s63, 12\ns_add_u32 s{S_CNT}, s{S_OFF}, s{S_TMP}\ns_add_u32 s{S_CNT}, s{S_CNT}, 8192")
    lds_ = []
    for js in range(4):
        lds_.append(f"buffer_load_dwordx4 {vr(KF+4*js,4)}, v{V_L16}, {WS}, s{S_OFF} offen offset:{js*1024} sc1")
        lds_.append(f"buffer_load_dwordx4 {vr(KF+16+4*js,4)}, v{V_L16}, {WS}, s{S_OFF2} offen offset:{js*1024} sc1")
        lds_.append(f"buffer_load_dwordx4 {vr(VF+4*js,4)}, v{V_L16}, {WS}, s{S_CNT} offen offset:{js*1024} sc1")
    seq = {}
    def rd(n):
        s, rt = n // 2, n % 2
        seq[n] = e(f"ds_read_b128 {vr(XF + 4 * (n % 8), 4)}, v{V_XRD} offset:{(rt * 16 + s) * 1024}")
    sg = e(f"ds_read_b128 {vr(TT,4)}, v12")
    for n in range(6): rd(n)
    for n in range(32):
        s, rt = n // 2, n % 2
        e.waitlg(seq[n])
        x = XF + 4 * (n % 8)
        for t in range(2):
            a = ACC + 4 * (t * 2 + rt)
            e(mfd(a, (t * 16 + s) * 4, x, "0" if s == 0 else a, "a", "v"))
            if t == 0 and n + 6 < 32: rd(n + 6)
        if n % 2 == 1 and n // 2 < 12: e(lds_[n // 2])
        if n == 31:
            e(f"s_lshl_b32 s{S_TMP}, s{S_PREV}, 12\ns_add_u32 s{S_TMP}, s{S_TMP}, {FL_O2}\ns_sub_u32 exec_lo, 0, s{S_W0M}\ns_mov_b32 exec_hi, exec_lo")
            e(f"buffer_load_dword v{F1}, v20, {WS}, s{S_TMP} offen sc1\ns_mov_b64 exec, -1")
    for i in range(4):
        e(f"v_lshlrev_b32 v{TT+4}, 16, v{TT+i}\nv_and_b32 v{TT+5}, 0xffff0000, v{TT+i}\nv_lshlrev_b32 v{TT+6}, 16, v{GW+i}\nv_and_b32 v{TT+7}, 0xffff0000, v{GW+i}")
        e(f"v_mul_f32 v{TT+4}, v{TT+4}, v{TT+6}\nv_mul_f32 v{TT+5}, v{TT+5}, v{TT+7}")
        rb_pair(e, TT + 6, TT + 4, TT + 5)
        e(f"v_add_f32 v{TT+i}, v{TT+4}, v{TT+5}")
    e(f"v_add_f32 v{TT}, v{TT}, v{TT+1}\nv_add_f32 v{TT+2}, v{TT+2}, v{TT+3}\nv_add_f32 v{TT}, v{TT}, v{TT+2}")
    for rt in range(2):
        o = QF + 4 * rt
        for t in range(2):
            a = ACC + 4 * (t * 2 + rt)
            e(f"v_cvt_pk_bf16_f32 v{o+2*t}, v{a}, v{a+1}\nv_cvt_pk_bf16_f32 v{o+2*t+1}, v{a+2}, v{a+3}")
    e(f"s_lshl_b32 s{S_TMP}, s{S_W}, 10\ns_add_u32 s{S_TMP}, s{S_TMP}, {W_QX}\nv_add_u32 v{V_T}, s{S_TMP}, v{V_L16}")
    e(f"ds_write_b128 v{V_T}, {vr(QF,4)}\nds_write_b128 v{V_T}, {vr(QF+4,4)} offset:4096")
    for ror in (1, 2, 4, 8):
        e(f"s_nop 1\nv_add_f32_dpp v{TT}, v{TT}, v{TT} row_ror:{ror} row_mask:0xf bank_mask:0xf")
    for op in ("v_permlane16_swap_b32", "v_permlane32_swap_b32"):
        e(f"v_mov_b32 v{TT+1}, v{TT}\ns_nop 1\n{op} v{TT}, v{TT+1}\nv_add_f32 v{TT}, v{TT}, v{TT+1}")
    e(f"v_cvt_pk_bf16_f32 v{TT}, v{TT}, v{TT}\nv_lshlrev_b32 v{TT}, 16, v{TT}\nv_mul_f32 v{TT}, 0xbfb8aa3b, v{TT}\nv_exp_f32 v{TT}, v{TT}\ns_nop 0")
    e(f"v_add_f32 v{TT}, 1.0, v{TT}\nv_rcp_f32 v{TT}, v{TT}\ns_nop 0\nv_cvt_pk_bf16_f32 v{TT}, v{TT}, v{TT}\nv_lshlrev_b32 v{TT}, 16, v{TT}")
    e(f"s_lshl_b32 s{S_TMP}, s{S_SEG}, 5\ns_add_u32 s{S_TMP}, s{S_TMP}, s{S_H}\ns_lshl_b32 s{S_TMP}, s{S_TMP}, 2\ns_add_u32 s{S_TMP}, s{S_TMP}, {WS_G}")
    e(f"v_mov_b32 v{V_T2}, 0\ns_mov_b64 exec, s[{S_W0M}:{S_W0M+1}]\nbuffer_store_dword v{TT}, v{V_T2}, {WS}, s{S_TMP} offen sc1\ns_mov_b64 exec, -1")
    if cfg.get("wtouch"):
        e(f"s_add_u32 s{S_TMP}, s{S_OFF}, {7 << 19}\ns_lshl_b32 s{S_TMP2}, s{S_SEG}, 17\ns_add_u32 s{S_TMP2}, s{S_TMP2}, {WS_KVM + (7 << 17)}\ns_mov_b64 exec, s[{S_W0M}:{S_W0M+1}]")
        e(f"buffer_load_dword v252, off, {WS}, s{S_TMP} sc1\nbuffer_load_dword v253, off, {WS}, s{S_TMP2} sc1\ns_mov_b64 exec, -1")
    if cfg.get("nofl"): e("s_waitcnt lgkmcnt(0)\ns_barrier")
    else:
        e(f"s_waitcnt vmcnt(14)\nv_mov_b32 v{V_T}, {W_RDY}\ns_mov_b64 exec, s[{S_W0M}:{S_W0M+1}]\nds_write_b32 v{V_T}, v{F2}\ns_mov_b64 exec, -1")
        e(f"s_waitcnt lgkmcnt(0)\ns_barrier\nds_read_b32 v{F2}, v{V_T}")
    e(f"s_add_u32 s{S_XG}, s{S_XG}, {7 << 15}\ns_xor_b32 s{S_XL}, s{S_XL}, 0x8000")
    e(f"s_lshl_b32 s{S_TMP}, s62, 12\ns_add_u32 s{S_TMP}, s{S_TMP}, {W_QX}\nv_add_u32 v{V_T}, s{S_TMP}, v{V_L16}")
    for js in range(4): e(f"ds_read_b128 {vr(QF+4*js,4)}, v{V_T} offset:{js*1024}")
    e(f"v_xor_b32 v{V_XRD}, 0x8000, v{V_XRD}\nv_xor_b32 v12, 0x8000, v12")
    e(f"s_waitcnt vmcnt({3 if cfg.get('wtouch') else 1}) lgkmcnt(0)")
    for js in range(4):
        c = lambda r: "0" if js == 0 else r
        e(mfd(X0, KF + 4 * js, QF + 4 * js, c(X0))); e(mfd(X1, KF + 16 + 4 * js, QF + 4 * js, c(X1)))
    for g in x_dma(e):
        for s in g: e(s)
    e(f"v_mov_b32 v{TT}, 0xf149f2ca")
    for kt in range(2):
        for i in range(4):
            e(f"v_cmp_le_i32 vcc, {i}, v{8+kt}\ns_nop 1\nv_cndmask_b32 v{SS_+4*kt+i}, v{TT}, v{SS_+4*kt+i}, vcc")
    e(f"v_max3_f32 v{MX}, v{X0}, v{X0+1}, v{X0+2}\nv_max3_f32 v{TT}, v{X1}, v{X1+1}, v{X1+2}\nv_max3_f32 v{MX}, v{MX}, v{X0+3}, v{X1+3}\nv_max_f32 v{MX}, v{MX}, v{TT}")
    S_KO = 92
    e(f"s_lshl_b32 s{S_KO}, s{S_SEG}, 17\ns_lshl_b32 s{S_TMP}, s{S_H}, 12\ns_add_u32 s{S_KO}, s{S_KO}, s{S_TMP}\ns_add_u32 s{S_KO}, s{S_KO}, {WS_KVM}")
    def kvm_ld():
        e(f"buffer_load_dwordx2 {vr(KR_,2)}, v23, {WS}, s{S_KO} offen sc1")
        for i in range(2):
            for b in range(2): e(f"buffer_load_dwordx2 {vr(VM+4*i+2*b,2)}, v11, {WS}, s{S_KO} offen offset:{i*512 + b*128} sc1")
    if not cfg.get("nofl"): e(f"v_readfirstlane_b32 s{S_KO+1}, v{F2}\ns_cmp_gt_u32 s{S_KO+1}, s{S_SEG}\ns_cbranch_scc0 PB_NOEARLY")
    kvm_ld()
    e.label("PB_NOEARLY")
    e(f"s_cmp_eq_u32 s{S_PREV}, -1\ns_cbranch_scc0 PB_PREV\ns_waitcnt vmcnt(0)\ns_branch PB_NOPREV")
    e.label("PB_PREV")
    final(False, True)
    e.label("PB_NOPREV")
    e(f"s_mul_i32 s{S_OFF}, s{S_SEG}, 37\ns_lshr_b32 s{S_OFF}, s{S_OFF}, 9\ns_mul_i32 s{S_OFF}, s{S_OFF}, 14\ns_sub_u32 s{S_OFF}, s{S_SEG}, s{S_OFF}" + (f"\ns_sub_u32 s{S_TMP}, s{S_SEG}, 47\ns_cmp_ge_u32 s{S_SEG}, 61\ns_cselect_b32 s{S_OFF}, s{S_TMP}, s{S_OFF}" if cfg.get("odp") else "") + f"\ns_lshl_b32 s{S_OFF}, s{S_OFF}, 18\ns_lshl_b32 s{S_TMP}, s{S_H}, 13\ns_add_u32 s{S_OFF}, s{S_OFF}, s{S_TMP}")
    WST(e)
    if cfg.get("nofl"):
        e("s_branch PB_DC")
        e.label("PB_DL")
        e(f"s_cmp_ge_u32 s{S_SEG}, {DP_SEG}\ns_cbranch_scc1 PB_DQ\ns_sleep {cfg.get('csleep', 4)}")
        e.label("PB_DQ")
        e(f"s_sleep {cfg.get('dsleep', 6)}")
        kvm_ld()
        e(f"s_add_u32 s{S_SPIN}, s{S_SPIN}, 1\ns_waitcnt vmcnt(0)\ns_cmp_gt_u32 s{S_SPIN}, {SPIN_MAX}\ns_cbranch_scc1 PB_HAVE")
        e.label("PB_DC")
        e(f"v_max3_u32 v{TT}, v{KR_}, v{KR_+1}, v{VM}")
        for i in range(1, 8, 2): e(f"v_max3_u32 v{TT}, v{TT}, v{VM+i}, v{VM+min(i+1,7)}")
        e(f"v_cmp_eq_u32 vcc, -1, v{TT}\ns_cbranch_vccnz PB_DL")
    else:
        e(f"s_cmp_gt_u32 s{S_KO+1}, s{S_SEG}\ns_cbranch_scc1 PB_HAVE")
        e(f"s_cmp_ge_u32 s{S_SEG}, {DP_SEG}\ns_cbranch_scc1 PB_DL")
        e(f"v_mov_b32 v{TT+1}, s{S_CF}\ns_add_u32 s{S_I}, s{S_SEG}, 1")
        poll_all(e, "CHW", TT + 1, "0", f"s{S_I}", TT + 2, cfg.get("csleep", 4))
        kvm_ld()
        e("s_waitcnt vmcnt(0)\ns_branch PB_HAVE")
        e.label("PB_DL")
        kvm_ld()
        e(f"s_add_u32 s{S_SPIN}, s{S_SPIN}, 1\ns_waitcnt vmcnt(0)")
        e(f"v_max3_u32 v{TT}, v{KR_}, v{KR_+1}, v{VM}")
        for i in range(1, 8, 2): e(f"v_max3_u32 v{TT}, v{TT}, v{VM+i}, v{VM+min(i+1,7)}")
        e(f"v_cmp_eq_u32 vcc, -1, v{TT}\ns_cbranch_vccz PB_HAVE\ns_sleep {cfg.get('dsleep', 6)}\ns_cmp_lt_u32 s{S_SPIN}, {SPIN_MAX}\ns_cbranch_scc1 PB_DL")
    e.label("PB_HAVE")
    WST(e)
    e(f"ds_write2_b32 v22, v{KR_}, v{KR_+1} offset0:0 offset1:64")
    for i in range(2): e(f"v_swap_b32 v{VM+4*i+1}, v{VM+4*i+2}")
    e(f"v_mov_b32 v{TT}, 0xf149f2ca\ns_waitcnt lgkmcnt(0)\ns_barrier")
    for js in range(4):
        for t in range(2): e(f"ds_read_b64_tr_b16 {vr(KM+4*js+2*t,2)}, v10 offset:{js*512 + t*256}")
    for js in range(4):
        e(f"s_waitcnt lgkmcnt({6-2*js})")
        e(mfd(M, KM + 4 * js, QF + 4 * js, "0" if js == 0 else M))
    e(f"s_add_u32 s{S_OFF}, s{S_OFF}, {WS_O}\ns_lshl_b32 s{S_TMP}, s62, 12\ns_add_u32 s{S_OFF}, s{S_OFF}, s{S_TMP}\ns_lshl_b32 s{S_TMP}, s63, 11\ns_add_u32 s{S_OFF}, s{S_OFF}, s{S_TMP}")
    e(f"s_lshl_b32 s{S_OFF2}, s{S_SEG}, 12\ns_add_u32 s{S_OFF2}, s{S_OFF2}, {FL_O2}\ns_lshl_b32 s{S_TMP}, s{S_H}, 7\ns_add_u32 s{S_CNT}, s{S_OFF2}, s{S_TMP}")
    e("s_mov_b32 exec_lo, 0")
    for i in range(4): e(f"v_mov_b32 v{M+i}, v{TT}")
    e("s_mov_b32 exec_lo, -1")
    mx, t2 = MX, TT + 2
    e(f"v_max3_f32 v{mx}, v{mx}, v{M}, v{M+1}\nv_max3_f32 v{mx}, v{mx}, v{M+2}, v{M+3}")
    for op in ("v_permlane16_swap_b32", "v_permlane32_swap_b32"):
        e(f"v_mov_b32 v{t2}, v{mx}\ns_nop 1\n{op} v{mx}, v{t2}\nv_max_f32 v{mx}, v{mx}, v{t2}")
    e(f"v_mul_f32 v{mx}, s{S_SC}, v{mx}")
    EE = [SS_ + i for i in range(8)] + [M + i for i in range(4)]
    for x in EE: e(f"v_fma_f32 v{x}, v{x}, s{S_SC}, -v{mx}")
    for x in EE: e(f"v_exp_f32 v{x}, v{x}")
    e(f"s_nop 0\nv_add_f32 v{mx}, v{EE[0]}, v{EE[1]}")
    for x in EE[2:]: e(f"v_add_f32 v{mx}, v{mx}, v{x}")
    for op in ("v_permlane16_swap_b32", "v_permlane32_swap_b32"):
        e(f"v_mov_b32 v{t2}, v{mx}\ns_nop 1\n{op} v{mx}, v{t2}\nv_add_f32 v{mx}, v{mx}, v{t2}")
    e(f"v_rcp_f32 v{mx}, v{mx}\ns_nop 0")
    for x in EE: e(f"v_mul_f32 v{x}, v{x}, v{mx}")
    for i in range(4): e(f"v_cvt_pk_bf16_f32 v{PB+i}, v{SS_+2*i}, v{SS_+2*i+1}")
    e(f"v_cvt_pk_bf16_f32 v{PB+4}, v{M}, v{M+1}\nv_cvt_pk_bf16_f32 v{PB+5}, v{M+2}, v{M+3}\ns_nop 0")
    for T in range(4): e(mfd(OA + 4 * T, VF + 4 * T, PB, "0"))
    for T in range(4):
        e(f"v_mfma_f32_16x16x16_bf16 {vr(OA+4*T,4)}, {vr(VM+2*T,2)}, {vr(PB+4,2)}, {vr(OA+4*T,4)}")
    e("s_nop 4")
    for j in range(2):
        for t in range(2):
            a = OA + 4 * (2 * j + t)
            e(f"v_cvt_pk_bf16_f32 v{QF+4*j+2*t}, v{a}, v{a+1}\nv_cvt_pk_bf16_f32 v{QF+4*j+2*t+1}, v{a+2}, v{a+3}")
    def ostore(bits):
        for j in range(2): e(f"buffer_store_dwordx4 {vr(QF+4*j,4)}, v{V_L16}, {WS}, s{S_OFF} offen offset:{j*1024}{bits}")
        if cfg.get("odp"): e(f"s_cmp_ge_u32 s{S_SEG}, 61\ns_cbranch_scc1 PB_ODONE")
        e("s_waitcnt vmcnt(0)\ns_barrier")
        e(f"v_mov_b32 v{V_T}, 1\ns_mov_b64 exec, s[{S_W0M}:{S_W0M+1}]\nbuffer_store_dword v{V_T}, off, {WS}, s{S_CNT}{bits}\ns_mov_b64 exec, -1")
    if cfg.get("ofast"):
        e(f"s_cmp_ge_u32 s{S_MODE}, 32\ns_cbranch_scc0 PB_OSLOW")
        ostore("")
        e("s_branch PB_ODONE")
        e.label("PB_OSLOW")
    ostore(" sc1")
    e.label("PB_ODONE")
    e(f"s_mov_b32 s{S_PREV}, s{S_SEG}\ns_add_u32 s{S_SEG}, s{S_SEG}, 7\ns_cmp_lt_u32 s{S_SEG}, 64\ns_cbranch_scc1 PB_LOOP")
    if cfg.get("split"):
        if cfg["split"] == 2:
            e(f"s_cmp_ge_u32 s{S_PREV}, 62\ns_cbranch_scc1 PB_PART")
            final()
            e(f"s_cmp_eq_u32 s{S_PREV}, 61\ns_cbranch_scc1 PB_END\ns_barrier")
            e.label("PB_PART")
            e(f"s_sub_u32 s{S_SEL_}, s{S_PREV}, 56\ns_cmp_ge_u32 s{S_PREV}, 62\ns_cselect_b32 s{S_SEL_}, 0, s{S_SEL_}\ns_cmp_eq_u32 s{S_PREV}, 60\ns_cselect_b32 s{S_SEL_}, 1, s{S_SEL_}")
            e(f"s_and_b32 s{S_TMP}, s{S_PREV}, 61\ns_cmp_eq_u32 s{S_TMP}, 60\ns_cselect_b32 s{S_PREV}, 62, 63\ns_cselect_b32 s{S_SH_}, 1, 0")
            e(f"s_xor_b32 s{S_TMP}, s{S_SH_}, 1\ns_lshr_b32 s{S_RT}, s{S_SEL_}, s{S_TMP}")
            e(f"s_and_b32 s{S_TMP}, s{S_SEL_}, 1\ns_lshl_b32 s{S_TMP}, s{S_TMP}, 3\ns_lshl_b32 s{S_LM_}, 0x00ff00ff, s{S_TMP}\ns_cmp_eq_u32 s{S_SH_}, 1\ns_cselect_b32 s{S_LM_}, -1, s{S_LM_}\ns_mov_b32 s{S_LM_+1}, s{S_LM_}")
        else:
            e(f"s_mov_b64 s[{S_LM_}:{S_LM_+1}], -1\ns_mov_b32 s{S_SH_}, 1\ns_mov_b32 s{S_SEL_}, 0")
            e(f"s_mov_b32 s{S_RT}, 0\ns_cmp_ge_u32 s{S_PREV}, 61\ns_cbranch_scc1 PB_HALF")
            final()
            e(f"s_cmp_eq_u32 s{S_PREV}, 60\ns_cbranch_scc1 PB_END\ns_sub_u32 s{S_PREV}, 120, s{S_PREV}\ns_mov_b32 s{S_RT}, 1\ns_mov_b32 s{S_SEL_}, 1\ns_barrier")
        e.label("PB_HALF")
        final(True)
        e.label("PB_END")
    else:
        final()

def worker(e, cfg):
    e(f"s_sub_u32 s{S_G}, s{S_GRP}, 1\ns_mov_b32 s{S_CNT}, 0")
    e("v_mov_b32 v15, v2")
    lane_consts(e, f"v{V_C}", f"v{V_G}")
    e(f"v_lshlrev_b32 v{V_L16}, 4, v0\nv_mov_b32 v{V_XRD}, v{V_L16}")
    e(f"s_lshr_b32 s{S_TMP}, s{S_W}, 1\ns_lshl_b32 s{S_TMP}, s{S_TMP}, 14\ns_and_b32 s{S_TMP2}, s{S_W}, 1\ns_lshl_b32 s{S_TMP2}, s{S_TMP2}, 9\ns_add_u32 s{S_TMP}, s{S_TMP}, s{S_TMP2}")
    e(f"v_lshlrev_b32 v{V_XSRC}, 10, v{V_C}\nv_lshl_add_u32 v{V_XSRC}, v{V_G}, 4, v{V_XSRC}\nv_add_u32 v{V_XSRC}, s{S_TMP}, v{V_XSRC}")
    srd(e, R_X, S_Q, 0x200000)
    _cfg.update(cfg)
    if cfg.get("pref") in (2, 4) and not cfg.get("estart"):
        pc = cfg.get("prefc")
        if pc: e(f"s_cmp_lt_u32 s{S_G}, 3\ns_cbranch_scc1 PF_E")
        e(f"s_lshl_b32 s{S_TMP2}, s{S_G}, 5\ns_add_u32 s{S_TMP2}, s{S_TMP2}, s{S_H}\nv_lshlrev_b32 v16, 6, v15")
        if pc: e(f"s_sub_u32 s{S_TMP2}, s{S_TMP2}, 96")
        if cfg.get("p128") == 2:
            e(f"s_cmp_lt_u32 s{S_W}, 2\ns_cbranch_scc0 PF_E")
            e.label("PF_L2")
            e(f"s_lshl_b32 s{S_TMP}, s{S_TMP2}, 14\nv_lshl_add_u32 v17, v15, 7, s{S_TMP}")
            for i, p in enumerate([S_WQ, S_WK, S_WV, S_WO]): e(f"global_load_dword v{248 + i}, v17, s[{p}:{p+1}]")
            e(f"s_add_u32 s{S_TMP2}, s{S_TMP2}, 224\ns_cmp_lt_u32 s{S_TMP2}, 256\ns_cbranch_scc1 PF_L2")
        elif cfg.get("p128"):
            e(f"s_lshl_b32 s{S_TMP}, s{S_TMP2}, 15\nv_lshl_add_u32 v17, v15, 7, s{S_TMP}")
            for i, p in enumerate([S_WQ, S_WK, S_WV, S_WO]): e(f"global_load_dword v{248 + i}, v17, s[{p}:{p+1}]")
        elif cfg.get("pford"):
            e(f"s_lshl_b32 s{S_TMP}, s{S_TMP2}, 14\nv_add_u32 v17, s{S_TMP}, v16\nv_add_u32 v18, 0x200000, v17")
            seqs = {1: [(S_WQ, 18), (S_WQ, 17), (S_WK, 17), (S_WK, 18), (S_WV, 17), (S_WV, 18), (S_WO, 17), (S_WO, 18)],
                    2: [(S_WK, 17), (S_WK, 18), (S_WV, 17), (S_WV, 18), (S_WO, 17), (S_WO, 18), (S_WQ, 17)],
                    3: [(S_WV, 17), (S_WV, 18), (S_WO, 17), (S_WO, 18), (S_WQ, 17)]}[cfg["pford"]]
            for i, (p, v) in enumerate(seqs): e(f"global_load_dword v{248 + i % 4}, v{v}, s[{p}:{p+1}]")
        else:
            e.label("PF_L")
            e(f"s_lshl_b32 s{S_TMP}, s{S_TMP2}, 14\nv_add_u32 v17, s{S_TMP}, v16")
            for i, p in enumerate([S_WQ, S_WK, S_WV, S_WO][:cfg["pref"]] if cfg["pref"] == 4 else [S_WQ, S_WO]):
                e(f"global_load_dword v{248+i}, v17, s[{p}:{p+1}]")
            e(f"s_add_u32 s{S_TMP2}, s{S_TMP2}, {128 if pc else 224}\ns_cmp_lt_u32 s{S_TMP2}, 256\ns_cbranch_scc1 PF_L")
        e.label("PF_E")
    if cfg.get("wstamp"): e("s_mov_b32 s101, 0")
    WST(e)
    if cfg.get("hold") is not None:
        e(f"s_cmp_lt_u32 s{S_G}, {cfg['hold']}\ns_cbranch_scc{0 if cfg.get('holdinv') else 1} HOLD_END")
        e.label("HOLD")
        e(f"s_sleep 32\ns_memrealtime s[70:71]\ns_waitcnt lgkmcnt(0)\ns_sub_u32 s70, s70, s3\ns_cmp_lt_u32 s70, {cfg['holdus']*100}\ns_cbranch_scc1 HOLD")
        e.label("HOLD_END")
    if not cfg.get("noconv"): conv(e, cfg)
    WST(e)
    if cfg.get("holda"):
        e(f"s_cmp_lt_u32 s{S_G}, 3\ns_cbranch_scc1 HOLDA_END")
        e.label("HOLDA")
        e(f"s_sleep 32\ns_memrealtime s[70:71]\ns_waitcnt lgkmcnt(0)\ns_sub_u32 s70, s70, s3\ns_cmp_lt_u32 s70, {cfg['holda']*100}\ns_cbranch_scc1 HOLDA")
        e.label("HOLDA_END")
    if cfg.get("lwait"):
        e(f"s_sub_u32 s{S_TMP}, s{S_G}, 1\ns_cmp_lt_u32 s{S_TMP}, 2\ns_cbranch_scc0 LW_E\ns_cmp_eq_u32 s{S_W}, 0\ns_cbranch_scc0 LW_B\nv_mov_b32 v24, {DBG_PACE}")
        e.label("LW_L")
        e(f"s_sleep 32\nglobal_load_dword v25, v24, s[{S_DBG}:{S_DBG+1}] sc1\ns_add_u32 s{S_SPIN}, s{S_SPIN}, 1\ns_waitcnt vmcnt(0)\nv_readfirstlane_b32 s{S_TMP}, v25")
        e(f"s_cmp_ge_u32 s{S_TMP}, {cfg.get('lcnt', 24)}\ns_cbranch_scc1 LW_B\ns_cmp_lt_u32 s{S_SPIN}, {SPIN_MAX}\ns_cbranch_scc1 LW_L")
        e.label("LW_B")
        e("s_barrier")
        e.label("LW_E")
    wload_addr(e)
    phaseA(e, cfg)
    WST(e)
    if not cfg.get("nob"): phaseB(e, cfg)
    WST(e)
    if cfg.get("dbgt"):
        e(f"s_memrealtime s[70:71]\ns_waitcnt lgkmcnt(0)\ns_sub_u32 s70, s70, s3\nv_mov_b32 v20, s70\nv_mov_b32 v21, 20\ns_mov_b64 exec, s[{S_W0M}:{S_W0M+1}]\nglobal_atomic_umax v21, v20, s[{S_DBG}:{S_DBG+1}]")
```

```python
from asmlib import Em, vr
from layout import *

S_Q, S_K, S_V, S_SH, S_SSMK, S_SSMD, S_MEM0 = 4, 6, 8, 10, 12, 14, 16
S_WQ, S_WK, S_WV, S_WO, S_GATE, S_OUT, S_DBG, S_WS = 20, 22, 24, 26, 28, 30, 32, 34
R_WS, R_T, R_T2 = 36, 40, 44
S_W, S_XCC, S_GRP, S_H = 48, 49, 50, 51
S_W0M = 76
NINIT = 28 + 32
SPIN_MAX = 1 << 18
DBGC = False

def srd(e, r, p, size):
    e(f"s_mov_b32 s{r}, s{p}\ns_mov_b32 s{r+1}, s{p+1}\ns_mov_b32 s{r+2}, {size}\ns_mov_b32 s{r+3}, 0x20000")

def lane_consts(e, c, g, lane="v0"):
    e(f"v_and_b32 {c}, 15, {lane}\nv_lshrrev_b32 {g}, 4, {lane}")

def emit_UB(e, dst, c, b, t):
    e(f"v_lshrrev_b32 {t}, 1, {b}")
    e(f"v_lshl_add_u32 {t}, {t}, 3, {c}")
    e(f"v_and_b32 {t}, 15, {t}")
    e(f"v_lshl_add_u32 {t}, {b}, 4, {t}")
    e(f"v_lshlrev_b32 {dst}, 3, {t}")

IDX, A_RSR, A_AGW, A_AGR, A_TR, A_TRK, A_UW, A_W, A_KX, A_VX, T0, A_RSW, SEL = 0, 1, 2, 3, 4, 5, 6, 7, 8, 9, 10, 11, 12
MEMA, QB, KXA, XT, ACA, ACB = 16, 48, 64, 88, 96, 104
WV0 = 112
S_STEP, S_RSW0, S_RSW1, S_RSR0, S_RSR1, S_AGW, S_AGRST, S_AGR0, S_AGR1 = 52, 53, 54, 55, 56, 57, 58, 59, 60
S_KVG, S_KVL, S_KVM, S_READY, S_SPIN, S_AGSLOT, S_TMP, S_TMP2 = 61, 62, 63, 64, 65, 66, 67, 68
S_M0, S_M1, S_M2 = 70, 72, 74
S_AGM = 72
S_ODD = 78
S_SC = 80
S_CF = 81
S_MODE = 82
S_TAG = 83
S_KVG2, S_FLV = 10, 11
S_XG0, S_XL0 = 96, 97
S_KFO = 58
S_JMP = 6
S_LATE = 7
S_MARK, S_MADR = 6, 7
S_RSR = [55, 56, 4, 5]
S_EM, S_LM, S_LB = 4, 6, 8
S_AGM2 = 74
S_ST = 84

import os
_o0 = [("o", (0, p)) for p in range(4)]; _o1 = [("o", (1, p)) for p in range(4)]
_q = [("q", J) for J in range(3, 8)]; _k = [("k", J) for J in range(8)]; _v = [("v", J) for J in range(8)]; _ql = [("q", 0), ("q", 1), ("q", 2)]
BLOCKS = {"0": _q + _k + _v + _o0 + _ql + _o1, "1": _o0 + _q + _k + _v + _ql + _o1, "2": _o0 + _q + _k + _v + _o1 + _ql,
          "3": _q + _o0 + _k + _v + _ql + _o1}[os.environ.get("BORD", "0")]
NREG = 25
def frag_reg(i):
    if i < 32: return ("a", 8 * i)
    return ("v", WV0 + 8 * (i - 32))
FRAG = {}
for n, (m, J) in enumerate(BLOCKS):
    for t in range(2):
        if n < NREG: FRAG[(m, J, t)] = frag_reg(2 * n + t)
        else: FRAG[(m, J, t)] = ("lds", (n - NREG) * 4096 + t * 2048)
def slot_addr(n):
    s = n % 10
    wl = {5: 0, 6: 1, 7: 2, 8: 3, 9: 4, 0: 5, 1: 6}
    return ("wl", wl[s]) if s in wl else ("ot", s - 2)

def wait_init(e, tag, vt):
    l = e.newlabel("WI"); d = e.newlabel("WID")
    e(f"v_mbcnt_lo_u32_b32 v{vt+1}, -1, 0\nv_mbcnt_hi_u32_b32 v{vt+1}, -1, v{vt+1}\nv_lshlrev_b32 v{vt+1}, 2, v{vt+1}")
    e.label(l)
    e(f"global_load_dword v{vt}, v{vt+1}, s[{S_DBG}:{S_DBG+1}] sc1")
    e(f"s_add_u32 s{S_SPIN}, s{S_SPIN}, 1")
    e("s_waitcnt vmcnt(0)")
    e(f"v_readlane_b32 s{S_TMP}, v{vt}, {DBG_INIT//4}")
    e(f"s_cmp_ge_u32 s{S_TMP}, {NINIT}\ns_cbranch_scc1 {d}")
    e("s_sleep 16")
    e(f"s_cmp_lt_u32 s{S_SPIN}, {SPIN_MAX}\ns_cbranch_scc1 {l}")
    e.label(d)

def kv_poll(e, va, vb, done):
    l = e.newlabel("KR")
    e("s_waitcnt vmcnt(0)")
    e(f"v_mbcnt_lo_u32_b32 v{vb}, -1, 0\nv_mbcnt_hi_u32_b32 v{vb}, -1, v{vb}\nv_lshlrev_b32 v{vb}, 2, v{vb}")
    e.label(l)
    if DBGC: e(f"s_lshl_b32 s{S_TMP}, 1, s{S_STEP}\ns_or_b32 s60, s60, s{S_TMP}\ns_add_u32 s57, s57, 0")
    e(f"s_lshl_b32 s{S_TMP}, s{S_H}, 8")
    e(f"buffer_load_dword v{va}, v{vb}, s[{R_WS}:{R_WS+3}], s{S_TMP} offen sc1")
    e(f"s_add_u32 s{S_SPIN}, s{S_SPIN}, 1")
    e("s_waitcnt vmcnt(0)")
    e(f"v_cmp_eq_u32 vcc, 0, v{va}\ns_ff1_i32_b64 s{S_READY}, vcc")
    e(f"s_cmp_gt_u32 s{S_READY}, s{S_TMP2}\ns_cbranch_scc1 {done}")
    e("s_sleep 16")
    e(f"s_cmp_lt_u32 s{S_SPIN}, {SPIN_MAX}\ns_cbranch_scc1 {l}")
    e(f"s_branch {done}")

def kv_ready(e, delta, va, vb):
    d = e.newlabel("KRD")
    e(f"s_add_u32 s{S_TMP2}, s{S_STEP}, {delta}\ns_cmp_gt_u32 s{S_READY}, s{S_TMP2}\ns_cbranch_scc1 {d}")
    kv_poll(e, va, vb, d)
    e.label(d)

def kv_dma(e, g=None, l=None):
    out = []
    for i in range(4):
        pre = [f"s_add_u32 m0, s{l or S_KVL}, {(i//2)*8192}", f"s_add_u32 s{S_TMP}, s{g or S_KVG}, {(i//2)*8192}"]
        out.append(pre + [f"buffer_load_dwordx4 v{A_AGR}, s[{R_WS}:{R_WS+3}], s{S_TMP} offen offset:{(i%2)*1024} sc1 lds"])
    return out

NPRE = 5
QL = [(0, 0), (0, 1), (2, 0), (2, 1), (1, 0), (1, 1)] if os.environ.get('V13') else [(0, 0), (0, 1), (1, 0), (1, 1), (2, 0), (2, 1)]
def rd_ql(e, n, r):
    off = FRAG[("q",) + QL[n]][1]
    e(f"ds_read_b128 {vr(r,4)}, v{A_W} offset:{off}")
    return e(f"ds_read_b128 {vr(r+4,4)}, v{A_W} offset:{off+1024}")
def preload_q(e):
    for n in range(NPRE): rd_ql(e, n, QB + 8 * n)

S_KF = 12
def kv_peek(e):
    e(f"s_min_u32 s{S_TMP}, s{S_STEP}, 59\ns_lshl_b32 s{S_TMP}, s{S_TMP}, 2\ns_add_u32 s{S_TMP}, s{S_TMP}, s{S_KFO}")
    e(f"s_load_dwordx4 s[{S_KF}:{S_KF+3}], s[{S_WS}:{S_WS+1}], s{S_TMP} glc")
def kv_fold(e):
    e(f"s_min_u32 s{S_TMP}, s{S_STEP}, 59\ns_add_u32 s{S_TMP}, s{S_TMP}, 1\ns_add_u32 s{S_TMP}, s{S_TMP}, s{S_KF}")
    for k in range(1, 4): e(f"s_and_b32 s{S_KF}, s{S_KF}, s{S_KF+k}\ns_add_u32 s{S_TMP}, s{S_TMP}, s{S_KF}")
    e(f"s_cmp_ge_u32 s{S_TMP}, 64\ns_cselect_b32 s{S_TMP}, -1, s{S_TMP}\ns_max_u32 s{S_READY}, s{S_READY}, s{S_TMP}")

def chain_prologue(e, cfg={}):
    e("; ---- chain prologue")
    if cfg.get("prost") == 2: e("s_memrealtime s[92:93]")
    lane_consts(e, "v16", "v17")
    e("v_and_b32 v18, 3, v0\nv_lshrrev_b32 v19, 2, v0")
    e(f"s_lshl_b32 s{S_TMP}, s{S_H}, 8\ns_lshl_b32 s{S_TMP2}, s{S_W}, 6\ns_add_u32 s{S_TMP}, s{S_TMP}, s{S_TMP2}")
    e(f"v_lshlrev_b32 v20, 13, v19\nv_lshl_add_u32 v20, v18, 4, v20\nv_add_u32 v20, s{S_TMP}, v20")
    e(f"s_lshl_b32 s{S_TMP}, s{S_H}, 17\ns_lshl_b32 s{S_TMP2}, s{S_W}, 8\ns_add_u32 s{S_TMP}, s{S_TMP}, s{S_TMP2}")
    e(f"v_lshlrev_b32 v21, 10, v19\nv_lshl_add_u32 v21, v18, 4, v21\nv_add_u32 v21, s{S_TMP}, v21")
    e("v_and_b32 v22, 1, v17\nv_lshlrev_b32 v22, 5, v22")
    e("v_lshrrev_b32 v23, 1, v17\nv_lshl_add_u32 v22, v23, 2, v22")
    e("v_lshrrev_b32 v23, 3, v16\nv_lshl_add_u32 v22, v23, 4, v22")
    e("v_bfe_u32 v23, v16, 2, 1\nv_add_u32 v22, v22, v23")
    e("v_lshlrev_b32 v22, 6, v22\nv_lshl_add_u32 v22, v18, 3, v22")
    e(f"s_mul_i32 s{S_KVL}, s{S_W}, 28672")
    e(f"s_mul_i32 s{S_KVG}, s{S_W}, 12288\ns_add_u32 s{S_KVG}, s{S_KVG}, {L_KVB}")
    e(f"v_add_u32 v24, s{S_KVL}, v22\nv_add_u32 v25, s{S_KVG}, v22")
    e(f"v_lshl_add_u32 v{A_W}, v0, 4, s{S_KVL}")
    RW = {"q": R_T, "k": R_T2, "v": 84, "o": 88}
    for m, p in (("q", S_WQ), ("k", S_WK), ("v", S_WV), ("o", S_WO)): srd(e, RW[m], p, 0x400000)
    def issue(n):
        m, J = BLOCKS[n]
        kind, k = slot_addr(n)
        base = S_KVL if kind == "wl" else S_KVG
        for i in range(4):
            e(f"s_add_u32 m0, s{base}, {k*4096 + i*1024}")
            if m == "o":
                so = (64 * J[0] + 16 * i) * 1024 + J[1] * 64
                e(f"s_mov_b32 s{S_TMP}, {so}")
                e(f"buffer_load_dwordx4 v21, s[{RW[m]}:{RW[m]+3}], s{S_TMP} offen lds")
            else:
                so = (64 * J + 16 * i) * 8192
                e(f"s_mov_b32 s{S_TMP}, {so}")
                e(f"buffer_load_dwordx4 v20, s[{RW[m]}:{RW[m]+3}], s{S_TMP} offen lds")
    def consume(n, outstanding):
        m, J = BLOCKS[n]
        kind, k = slot_addr(n)
        e(f"s_waitcnt vmcnt({outstanding})")
        av = "v24" if kind == "wl" else "v25"
        for t in range(2):
            f = FRAG[(m, J, t)]
            for mm in range(4):
                off = k * 4096 + (8 * (mm // 2) + 2 * (mm % 2)) * 64 + t * 32
                if f[0] == "lds": dst = vr(32 + 8 * t + 2 * mm, 2)
                else: dst = vr(f[1] + 2 * mm, 2, f[0])
                e(f"ds_read_b64_tr_b16 {dst}, {av} offset:{off}")
        e("s_waitcnt lgkmcnt(0)")
        if n >= NREG:
            for t in range(2):
                for hf in range(2):
                    e(f"ds_write_b128 v{A_W}, {vr(32+8*t+4*hf,4)} offset:{k*4096 + t*2048 + hf*1024}")
            e("s_waitcnt lgkmcnt(0)")
    N = len(BLOCKS)
    if cfg.get("tlbw"):
        e(f"v_lshlrev_b32 v26, 16, v0\ns_lshl_b32 s{S_TMP}, s{S_H}, 11\nv_add_u32 v26, s{S_TMP}, v26")
        for m in "qkvo": e(f"buffer_load_dword v27, v26, s[{RW[m]}:{RW[m]+3}], 0 offen")
        if cfg["tlbw"] == 2: e("s_waitcnt vmcnt(0)")
    DEP = cfg.get("dep", 4); LEAD = cfg.get("lead", 0)
    def touch(n):
        m, J = BLOCKS[n]
        so = (64 * J[0]) * 1024 + J[1] * 64 if m == "o" else 64 * J * 8192
        e(f"s_mov_b32 s{S_TMP}, {so}\nbuffer_load_dword v70, v{69 if m == 'o' else 68}, s[{RW[m]}:{RW[m]+3}], s{S_TMP} offen")
    if LEAD:
        e(f"s_and_b32 s{S_TMP}, s{S_H}, 3\ns_lshl_b32 s{S_TMP}, s{S_TMP}, 2\ns_add_u32 s{S_TMP}, s{S_TMP}, s{S_W}\ns_lshl_b32 s{S_TMP}, s{S_TMP}, 15")
        e(f"s_lshr_b32 s{S_TMP2}, s{S_H}, 2\ns_lshl_b32 s{S_TMP2}, s{S_TMP2}, 10\ns_add_u32 s{S_TMP}, s{S_TMP}, s{S_TMP2}")
        e(f"v_lshlrev_b32 v68, 13, v17\nv_lshl_add_u32 v68, v16, 6, v68\nv_add_u32 v68, s{S_TMP}, v68")
        e(f"s_lshl_b32 s{S_TMP}, s{S_H}, 17\ns_lshl_b32 s{S_TMP2}, s{S_W}, 14\ns_add_u32 s{S_TMP}, s{S_TMP}, s{S_TMP2}")
        e(f"v_lshlrev_b32 v69, 10, v19\nv_lshl_add_u32 v69, v18, 8, v69\nv_add_u32 v69, s{S_TMP}, v69")
    e(f"v_mov_b64 v[32:33], -1\nv_mov_b64 v[34:35], -1\ns_lshl_b32 s{S_TMP}, s{S_H}, 13\ns_lshl_b32 s{S_TMP2}, s{S_W}, 11\ns_add_u32 s{S_TMP}, s{S_TMP}, s{S_TMP2}\ns_add_u32 s{S_TMP}, s{S_TMP}, {WS_RS}")
    e(f"v_lshlrev_b32 v36, 4, v0\nbuffer_store_dwordx4 v[32:35], v36, s[{R_WS}:{R_WS+3}], s{S_TMP} offen sc1\nbuffer_store_dwordx4 v[32:35], v36, s[{R_WS}:{R_WS+3}], s{S_TMP} offen offset:1024 sc1")
    e(f"s_mul_i32 s{S_TMP}, s{S_H}, 768\ns_lshl_b32 s{S_TMP2}, s{S_W}, 8\ns_add_u32 s{S_TMP}, s{S_TMP}, s{S_TMP2}\ns_add_u32 s{S_TMP}, s{S_TMP}, {WS_AG}")
    e(f"s_cmp_lt_u32 s{S_W}, 3\ns_cselect_b32 exec_lo, 0xffff, 0\ns_mov_b32 exec_hi, 0\nbuffer_store_dwordx4 v[32:35], v36, s[{R_WS}:{R_WS+3}], s{S_TMP} offen sc1\ns_mov_b64 exec, -1")
    srd(e, 92, S_MEM0, 8192)
    e(f"s_lshl_b32 s{S_TMP}, s{S_W}, 8")
    e(f"v_lshlrev_b32 v26, 11, v17\nv_lshl_add_u32 v26, v16, 1, v26\nv_add_u32 v26, s{S_TMP}, v26")
    mem0_ld = []
    for u in range(4):
        mem0_ld += [f"buffer_load_ushort v{48+2*u}, v26, s[92:95], 0 offen offset:{u*64}", f"buffer_load_ushort v{49+2*u}, v26, s[92:95], 0 offen offset:{u*64+32}",
                    f"buffer_load_ushort v{56+2*u}, v26, s[92:95], 0 offen offset:{u*64+1024}", f"buffer_load_ushort v{57+2*u}, v26, s[92:95], 0 offen offset:{u*64+32+1024}"]
    for n in range(DEP):
        if cfg.get("prost") == 2 and n == 1: e("s_memrealtime s[94:95]")
        issue(n)
    if cfg.get("prost") == 2: e("s_memrealtime s[96:97]")
    for n in range(DEP, DEP + LEAD): touch(n)
    for x in mem0_ld: e(x)
    e(f"v_and_b32 v26, 2, v0\nv_cmp_eq_u32 vcc, 2, v26\nv_mov_b32 v27, 0x44444444\nv_mov_b32 v28, 0xeeeeeeee")
    e(f"s_mov_b64 s[{S_ODD}:{S_ODD+1}], vcc")
    e(f"v_cndmask_b32 v29, v27, v28, vcc")
    for r in range(4):
        e(f"v_mov_b32 v{SEL+r}, 0")
    e("v_mov_b32 v27, 0x3f80\nv_mov_b32 v28, 0x3f800000")
    for j in range(8):
        e(f"v_cmp_eq_u32 vcc, {j}, v16\ns_nop 1\nv_cndmask_b32 v{SEL+j//2}, v{SEL+j//2}, v{27+(j%2)}, vcc")
    e(f"s_and_b32 s{S_TMP}, s{S_W}, 2\ns_lshl_b32 s{S_TMP}, s{S_TMP}, 11\ns_lshl_b32 s{S_TMP2}, s{S_H}, 7\ns_add_u32 s{S_TMP}, s{S_TMP}, s{S_TMP2}")
    e(f"v_lshrrev_b32 v26, 3, v0\nv_and_b32 v27, 7, v0\nv_lshlrev_b32 v{A_RSR}, 13, v26\nv_lshl_add_u32 v{A_RSR}, v27, 4, v{A_RSR}\nv_add_u32 v{A_RSR}, s{S_TMP}, v{A_RSR}")
    e(f"s_lshl_b32 s{S_TMP2}, s{S_W}, 9\nv_lshl_add_u32 v{A_RSW}, v0, 3, s{S_TMP2}")
    e(f"v_and_b32 v26, 1, v17\nv_lshl_add_u32 v26, v27, 1, v26\ns_and_b32 s{S_TMP2}, s{S_H}, 3\nv_mov_b32 v27, s{S_TMP2}")
    emit_UB(e, f"v{A_AGW}", "v26", "v27", "v28")
    e(f"s_and_b32 s{S_TMP}, s{S_TMP}, 0xfffffe00\nv_add_u32 v{A_AGW}, s{S_TMP}, v{A_AGW}")
    e(f"s_mov_b32 s{S_AGM}, 0x00FF00FF\ns_mov_b32 s{S_AGM+1}, 0\ns_mov_b32 s{S_AGM2}, -1\ns_mov_b32 s{S_AGM2+1}, 0")
    e(f"v_bfe_u32 v26, v0, 3, 1\nv_lshl_add_u32 v{A_AGW}, v26, 14, v{A_AGW}")
    e(f"s_lshl_b32 s{S_TMP}, s{S_W}, 11\ns_add_u32 s{S_TMP}, s{S_TMP}, {L_MEM}")
    e(f"v_lshl_add_u32 v{A_AGR}, v0, 4, s{S_TMP}")
    e(f"s_lshl_b32 s{S_TMP}, s{S_W}, 10\ns_add_u32 s{S_TMP}, s{S_TMP}, {L_QU}")
    emit_UB(e, f"v{A_UW}", "v16", "v17", "v28")
    e(f"v_add_u32 v{A_UW}, s{S_TMP}, v{A_UW}")
    e("v_lshrrev_b32 v26, 2, v16\nv_lshl_add_u32 v26, v17, 2, v26")
    emit_UB(e, f"v{A_TR}", "v26", "v18", "v28")
    e(f"v_add_u32 v{A_TR}, {L_MEM}, v{A_TR}")
    e("v_and_b32 v27, 1, v18\nv_lshlrev_b32 v27, 1, v27\nv_lshrrev_b32 v28, 1, v18\nv_or_b32 v27, v27, v28")
    emit_UB(e, f"v{A_TRK}", "v26", "v27", "v28")
    e(f"v_add_u32 v{A_TRK}, {L_MEM}, v{A_TRK}")
    e(f"v_lshlrev_b32 v{A_KX}, 4, v0\nv_add_u32 v{A_KX}, {L_KVB}, v{A_KX}")
    e(f"v_lshrrev_b32 v26, 1, v17\nv_lshl_add_u32 v26, v26, 4, v16\nv_lshlrev_b32 v26, 4, v26\nv_and_b32 v27, 1, v17\nv_lshl_add_u32 v26, v27, 3, v26")
    e(f"s_lshl_b32 s{S_TMP}, s{S_W}, 11\ns_add_u32 s{S_TMP}, s{S_TMP}, {L_KVB + 8192}\nv_add_u32 v{A_VX}, s{S_TMP}, v26")
    e(f"v_lshlrev_b32 v65, 2, v0\ns_mov_b32 s{S_STEP}, 0\ns_mov_b32 s{S_READY}, 0\ns_mov_b32 s{S_MODE}, 0")
    WSR = f"s[{R_WS}:{R_WS+3}]"
    S_PG = 98
    if cfg.get("fair"):
        e(f"s_lshl_b32 s{S_PG}, s{S_H}, 2\ns_add_u32 s{S_PG}, s{S_PG}, s{S_W}\ns_lshl_b32 s{S_PG}, s{S_PG}, 2\ns_mov_b32 s{S_PG+2}, {WS_AG + 0x8000}\ns_add_u32 s{S_PG}, s{S_PG}, s{S_PG+2}")
        e(f"v_mov_b32 v69, 0\ns_mov_b64 exec, 1\nbuffer_store_dword v69, off, {WSR}, s{S_PG}\ns_mov_b64 exec, -1")
    order = [("B", n) for n in range(DEP) for _ in range(4)] + [("T", 1)] * LEAD + [("M", 0)] * (17 if cfg.get("fair") else 16)
    def after(kind, n):
        last = max(i for i, x in enumerate(order) if x == (kind, n))
        return min(len(order) - 1 - last, 63)
    for n in range(N):
        consume(n, after("B", n))
        for k, (a_, b_) in enumerate(cfg.get("pace", [])):
            if n == a_:
                e(f"s_barrier\nv_mov_b32 v36, {DBG_PACE + 64*0 + 4*k}\nv_mov_b32 v37, 1\ns_mov_b64 exec, s[{S_W0M}:{S_W0M+1}]\nglobal_atomic_add v36, v37, s[{S_DBG}:{S_DBG+1}]\ns_mov_b64 exec, -1"); order.append(("P", k))
            if n == b_:
                l = e.newlabel("PC"); d = e.newlabel("PCD")
                e(f"s_cmp_eq_u32 s{S_W}, 0\ns_cbranch_scc0 {d}")
                e.label(l)
                e(f"s_load_dword s{S_TMP}, s[{S_DBG}:{S_DBG+1}], {DBG_PACE + 4*k} glc\ns_add_u32 s{S_SPIN}, s{S_SPIN}, 1\ns_waitcnt lgkmcnt(0)")
                e(f"s_cmp_ge_u32 s{S_TMP}, 32\ns_cbranch_scc1 {d}\ns_sleep 8\ns_cmp_lt_u32 s{S_SPIN}, {SPIN_MAX}\ns_cbranch_scc1 {l}")
                e.label(d)
                e("s_barrier")
        W_ = cfg.get("fair")
        if W_ and n % cfg.get("fstep", 2) == 0 and 2 <= n <= 26:
            pl, pd = e.newlabel("FR"), e.newlabel("FRD")
            e(f"v_mov_b32 v69, {n}\ns_mov_b64 exec, 1\nbuffer_store_dword v69, off, {WSR}, s{S_PG}\ns_mov_b64 exec, -1"); order.append(("G", n))
            if ('G', n - cfg.get('fstep', 2)) in order:
                e(f"s_mov_b32 s{S_PG+1}, 0\ns_waitcnt vmcnt({after('G', n - cfg.get('fstep', 2))})")
                e.label(pl)
                e(f"v_min_i32 v70, v70, v71\nv_cmp_gt_i32 vcc, {max(n - W_, 0)}, v70\ns_cbranch_vccz {pd}")
                e(f"buffer_load_dword v70, v65, {WSR}, s{S_PG+2} offen sc1\nbuffer_load_dword v71, v65, {WSR}, s{S_PG+2} offen offset:256 sc1")
                e(f"s_add_u32 s{S_PG+1}, s{S_PG+1}, 1\ns_waitcnt vmcnt(0)\ns_cmp_lt_u32 s{S_PG+1}, 12\ns_cbranch_scc1 {pl}")
                e.label(pd)
            e(f"buffer_load_dword v70, v65, {WSR}, s{S_PG+2} offen sc1\nbuffer_load_dword v71, v65, {WSR}, s{S_PG+2} offen offset:256 sc1"); order += [("G", n)] * 2
        if LEAD and n + DEP + LEAD < N:
            touch(n + DEP + LEAD); order.append(("T", 1))
        if n + DEP < N:
            issue(n + DEP); order += [("B", n + DEP)] * 4
        if n == cfg.get("ctouch", -1):
            e(f"s_mul_i32 s{S_TMP}, s{S_H}, 21\nv_add_u32 v67, s{S_TMP}, v0\nv_lshlrev_b32 v67, 16, v67\ns_mul_i32 s{S_TMP}, s{S_W0M}, 0x1fffff\ns_mov_b32 exec_lo, s{S_TMP}\ns_mov_b32 exec_hi, 0\ns_mov_b32 s{S_TMP}, {WS_KV}")
            e(f"buffer_load_dword v68, v67, {WSR}, s{S_TMP} offen sc1\ns_mov_b64 exec, -1"); order.append(("T", 0))
        if n == 1:
            e(f"s_barrier\nv_mov_b32 v36, {DBG_INIT}\nv_mov_b32 v37, 1\ns_mov_b64 exec, s[{S_W0M}:{S_W0M+1}]")
            e(f"global_atomic_add v36, v37, s[{S_DBG}:{S_DBG+1}]\ns_mov_b64 exec, -1"); order.append(("I", 0))
        if n == cfg.get("lwait", -1):
            e(f"v_mov_b32 v36, {DBG_PACE}\nv_mov_b32 v37, 1\ns_mov_b64 exec, s[{S_W0M}:{S_W0M+1}]")
            e(f"global_atomic_add v36, v37, s[{S_DBG}:{S_DBG+1}]\ns_mov_b64 exec, -1"); order.append(("L", 0))
        if n == 16:
            e(f"global_load_dword v64, v65, s[{S_DBG}:{S_DBG+1}] sc1"); order.append(("D", 0))
        if n == 23:
            e(f"v_readlane_b32 s{S_TMP}, v64, {DBG_INIT//4}\nv_readlane_b32 s{S_MODE}, v64, {DBG_XCC(0)//4}\nv_mov_b32 v66, 0")
            e(f"s_cmp_ge_u32 s{S_TMP}, {NINIT}\ns_cselect_b32 s{S_MODE}, s{S_MODE}, 0\ns_cselect_b64 exec, -1, 0\ns_lshl_b32 s{S_TMP}, s{S_H}, 8")
            e(f"buffer_load_dword v66, v65, {WSR}, s{S_TMP} offen sc1\ns_mov_b64 exec, -1"); order.append(("F", 0))
        if n == 28:
            e("s_barrier")
            e(f"v_cmp_eq_u32 vcc, 0, v66\ns_ff1_i32_b64 s{S_READY}, vcc")
            e(f"s_lshl_b32 s{S_TMP}, s{S_H}, 14\ns_add_u32 s{S_XG0}, s{S_TMP}, {WS_KV - L_MEM}\ns_lshl_b32 s{S_TMP}, s{S_W}, 11\ns_add_u32 s{S_XL0}, s{S_TMP}, {L_KVB}")
            e(f"s_cmp_gt_u32 s{S_READY}, 0\ns_cselect_b64 exec, -1, 0")
            for grp in kv_dma(e, S_XG0, S_XL0):
                for x in grp: e(x)
            e("s_mov_b64 exec, -1"); order += [("K", 0)] * 4
            for r in range(8): e(f"v_lshl_or_b32 v{48+r}, v{56+r}, 16, v{48+r}")
            e(f"s_lshl_b32 s{S_TMP}, s{S_W}, 9\ns_add_u32 s{S_TMP}, s{S_TMP}, {L_QU - L_MEM}\nv_subrev_u32 v27, s{S_TMP}, v{A_UW}")
            for u in range(4): e(f"ds_write_b64 v27, {vr(48+2*u,2)} offset:{u*2048}")
            e("s_waitcnt lgkmcnt(0)")
            preload_q(e)
            for r in range(0, 16, 2): e(f"v_mov_b64 {vr(ACA+r,2)}, 0")
            e(f"v_mov_b32 v{IDX}, v29")
            e(f"s_lshl_b32 s{S_TMP}, s{S_H}, 13")
            e(f"s_add_u32 s{S_RSW0}, s{S_TMP}, {WS_RS}\ns_add_u32 s{S_RSW1}, s{S_RSW0}, 4096")
            for i in range(4): e(f"s_mov_b32 s{S_RSR[i]}, {WS_RS + 0x10000 * i}")
            e(f"s_mov_b32 s{S_AGSLOT}, 0\ns_mov_b32 s{S_AGW}, {WS_AG}\ns_mov_b32 s{S_TAG}, 0")
            e(f"s_lshl_b32 s{S_TMP}, s{S_H}, 12\ns_add_u32 s{S_KVM}, s{S_TMP}, {WS_KVM - 0x20000}")
            e(f"s_mov_b32 s{S_LB}, 0x3f003f00\ns_mov_b32 s{S_LB+1}, 0x3f803f80")
            e(f"s_lshl_b32 s{S_CF}, s{S_H}, 7\ns_add_u32 s{S_CF}, s{S_CF}, {FL_CFLAG}")
            e(f"s_mov_b32 s{S_SC}, 0x3e0293ee")
            e(f"s_lshl_b32 s{S_KFO}, s{S_H}, 8\ns_add_u32 s{S_KFO}, s{S_KFO}, 4")
        if n == 29: kv_peek(e)
        if n == 29 and cfg.get("wrm"):
            for sl in range(3):
                e(f"s_mov_b32 s{S_TMP}, {WS_AG - L_MEM + 0x2000 * sl}")
                for o in (0, 1024): e(f"buffer_load_dwordx4 v[88:91], v{A_AGR}, {WSR}, s{S_TMP} offen offset:{o} sc1"); order.append(("W", 0))
            for i in range(4): e(f"buffer_load_dwordx4 v[88:91], v{A_RSR}, {WSR}, s{S_RSR[i]} offen sc1"); order.append(("W", 0))
        if cfg.get("help") and n == 26:
            e(f"v_mov_b32 v36, {DBG_PACE}\nv_mov_b32 v37, 1\ns_mov_b64 exec, 1\nglobal_atomic_add v88, v36, v37, s[{S_DBG}:{S_DBG+1}] sc0\ns_mov_b64 exec, -1"); order.append(("H", 0))
    if cfg.get("help"):
        e(f"v_readfirstlane_b32 s{S_TMP}, v88\ns_cmp_lt_u32 s{S_TMP}, {cfg['help']}\ns_cbranch_scc0 HELP_E")
        k = 0
        for rnd in range(3):
            for d in range(1, 4):
                nb = cfg.get("hfrom", 23) + 3 * rnd + d - 1
                if nb >= N: continue
                m, J = BLOCKS[nb]
                e(f"s_add_u32 s{S_TMP2}, s{S_H}, {d}\ns_and_b32 s{S_TMP2}, s{S_TMP2}, 3\ns_and_b32 s{S_TMP}, s{S_H}, 3\ns_sub_i32 s{S_TMP2}, s{S_TMP2}, s{S_TMP}")
                e(f"s_lshl_b32 s{S_TMP2}, s{S_TMP2}, {17 if m == 'o' else 8}\nv_add_u32 v89, s{S_TMP2}, v{21 if m == 'o' else 20}")
                for i in range(4):
                    so = (64 * J[0] + 16 * i) * 1024 + J[1] * 64 if m == "o" else (64 * J + 16 * i) * 8192
                    e(f"s_mov_b32 s{S_TMP}, {so}\nbuffer_load_dwordx4 v[{40 + 4 * (k % 2)}:{43 + 4 * (k % 2)}], v89, s[{RW[m]}:{RW[m]+3}], s{S_TMP} offen"); k += 1
        e.label("HELP_E")
    e(f"s_cmp_ge_u32 s{S_MODE}, 32\ns_cselect_b32 s{S_KF}, s{S_KF}, 0")
    if cfg.get("gstamp"): e("s_memrealtime s[18:19]\ns_waitcnt lgkmcnt(0)\ns_mov_b32 s69, s18")
    e(f"s_mov_b32 s{S_KVG}, s{S_XG0}\ns_mov_b32 s{S_KVL}, s{S_XL0}")
    e(f"s_cmp_ge_u32 s{S_MODE}, 32\ns_cbranch_scc1 MODE_D")
    wait_init(e, "c", 32)
    e.label("MODE_L")
    e(f"v_readlane_b32 s{S_MODE}, v32, {DBG_XCC(0)//4}\ns_cmp_ge_u32 s{S_MODE}, 32\ns_cbranch_scc1 MODE_D\ns_mov_b32 s{S_TMP2}, 0")
    for x in range(8):
        e(f"v_readlane_b32 s{S_TMP}, v32, {DBG_XCC(x)//4}\ns_add_u32 s{S_TMP2}, s{S_TMP2}, s{S_TMP}")
    e(f"s_cmp_ge_u32 s{S_TMP2}, 256\ns_cbranch_scc1 MODE_D\ns_sleep 16")
    e(f"global_load_dword v32, v33, s[{S_DBG}:{S_DBG+1}] sc1\ns_add_u32 s{S_SPIN}, s{S_SPIN}, 1\ns_waitcnt vmcnt(0)\ns_cmp_lt_u32 s{S_SPIN}, {SPIN_MAX}\ns_cbranch_scc1 MODE_L")
    e.label("MODE_D")
    e(f"s_cmp_gt_u32 s{S_READY}, 0\ns_cbranch_scc1 KV0_D")
    kv_ready(e, 0, 32, 33)
    for grp in kv_dma(e):
        for s in grp: e(s)
    e.label("KV0_D")
    e(f"s_add_u32 s{S_KVG}, s{S_KVG}, 0x80000\ns_xor_b32 s{S_KVL}, s{S_KVL}, 0x3C000")

def interleave(e, mf, fill):
    def run(x):
        for s in x:
            if callable(s): s()
            else: e(s)
    run(fill.get(-1, []))
    for i, m in enumerate(mf):
        if callable(m): m()
        else: e(m)
        run(fill.get(i, []))

def smf(acc, a, f):
    return f"v_smfmac_f32_16x16x64_bf16 {vr(acc,4)}, {vr(a,4)}, {vr(f[1],8,f[0])}, v{IDX}"
def mf32(d, a, b, c):
    return f"v_mfma_f32_16x16x32_bf16 {vr(d,4)}, {vr(a,4)}, {vr(b,4)}, {c if c == '0' else vr(c,4)}"

def kv_ready_ool(e, tail, va, vb):
    d = e.newlabel("KRD"); sl = e.newlabel("KRS")
    e(f"s_add_u32 s{S_TMP2}, s{S_STEP}, 1")
    e(f"s_cmp_le_u32 s{S_READY}, s{S_TMP2}\ns_cbranch_scc1 {sl}")
    e.label(d)
    def slow():
        e.label(sl)
        kv_poll(e, va, vb, d)
    tail.append(slow)

def chain_loop(e, fast, cfg):
    st = "" if fast else " sc1"
    tag_ = "F" if fast else "S"
    WS = f"s[{R_WS}:{R_WS+3}]"
    stamps = cfg.get("stamps", [])
    def S(name):
        if name in stamps:
            i = stamps.index(name); e(f"s_memtime s[{S_ST+2*i}:{S_ST+2*i+1}]")
    def SS(name): return lambda: S(name)
    def GS(p, fill, n):
        for i in range(n):
            if f"{p}_{i}" in stamps: fill[i] = [SS(f"{p}_{i}")] + list(fill.get(i, []))
    LOOP, LAST, ENTRY, EARLY = [f"CH{tag_}_{x}" for x in ("LOOP", "LAST", "ENTRY", "EARLY")]
    tail = []
    seq = {}
    def wt(key): return lambda: e.waitlg(seq[key])
    KP, VP, QP = XT + 4, XT + 6, XT + 2
    RP, RED, AGO, T1, AP = MEMA, MEMA + 16, MEMA + 20, MEMA + 22, MEMA + 24
    e("s_waitcnt vmcnt(0) lgkmcnt(0)")
    if cfg.get("gstamp"): e("s_memrealtime s[18:19]\ns_memtime s[16:17]")
    kv_ready(e, 1, T0, T1)
    if cfg.get("prio"): e(f"s_setprio {cfg['prio']}")
    e(f"s_add_u32 s{S_KVG2}, s{S_KVG}, 8192\ns_mov_b32 m0, s{S_KVL}\nv_mov_b32 v{T0}, 0\nv_mov_b32 v{QP}, 0")
    for i in range(cfg.get("dmc", 0)):
        if i == 2: e(f"s_add_u32 m0, s{S_KVL}, 8192")
        e(f"s_nop 0\nbuffer_load_dwordx4 v{A_AGR}, {WS}, s{S_KVG if i < 2 else S_KVG2} offen offset:{(i%2)*1024} sc1 lds")
    e(f"s_branch {ENTRY}")
    def rs_ld(r):
        for i in range(4): e(f"buffer_load_dwordx4 {vr(r+4*i,4)}, v{A_RSR}, {WS}, s{S_RSR[i]} offen sc1")
    def rs_chk(r, n):
        for i in range(4):
            e(f"s_waitcnt vmcnt({n+3-i})")
            e(mf32(RED, SEL, r + 4 * i, "0" if i == 0 else RED))
            e(f"v_bitop3_b32 v{T1 if i else T0}, v{r+4*i}, v{r+4*i+2}, s{S_TAG} bitop3:0x7e")
            if cfg.get("spec") and i == 3: e(f"v_bitop3_b32 v{T0}, v{T0}, v{T1}, 1 bitop3:0xa8")
            elif i: e(f"v_or_b32 v{T0}, v{T0}, v{T1}")
        if cfg.get("spec"):
            e(f"v_cmp_ne_u32 vcc, 0, v{T0}\ns_nop 3")
            for q in range(4): e(f"v_add_f32_dpp v{RED+q}, v{RED+q}, v{RED+q} row_ror:8 row_mask:0xf bank_mask:0xf")
            e(f"s_mov_b64 exec, s[{S_AGM}:{S_AGM+1}]")
            e(f"v_cvt_pk_bf16_f32 v{AGO}, v{RED}, v{RED+1}\nv_cvt_pk_bf16_f32 v{AGO+1}, v{RED+2}, v{RED+3}")
            e(f"s_mov_b64 exec, s[{S_AGM2}:{S_AGM2+1}]")
        else:
            e(f"v_and_b32 v{T0}, 1, v{T0}\nv_cmp_ne_u32 vcc, 0, v{T0}")
    def ag_ld(r):
        e(f"buffer_load_dwordx4 {vr(r,4)}, v{A_AGR}, {WS}, s{S_AGR0} offen sc1")
        e(f"buffer_load_dwordx4 {vr(r+4,4)}, v{A_AGR}, {WS}, s{S_AGR0} offen offset:1024 sc1")
    def ag_chk(r, n):
        T1 = MEMA + 15
        if cfg.get("sw"):
            e(f"s_waitcnt vmcnt({n+1})\nds_write_b128 v{A_AGR}, {vr(r,4)}\ns_waitcnt vmcnt({n})\nds_write_b128 v{A_AGR}, {vr(r+4,4)} offset:1024")
        else:
            e(f"s_waitcnt vmcnt({n})")
            e(f"ds_write_b128 v{A_AGR}, {vr(r,4)}\nds_write_b128 v{A_AGR}, {vr(r+4,4)} offset:1024")
        if cfg.get("c4"):
            e(f"v_max3_u32 v{T0}, v{r}, v{r+2}, v{r+4}\nv_max_u32 v{T0}, v{T0}, v{r+6}\nv_cmp_eq_u32 vcc, -1, v{T0}")
        else:
            e(f"v_max3_u32 v{T0}, v{r}, v{r+1}, v{r+2}\nv_max3_u32 v{T1}, v{r+4}, v{r+5}, v{r+6}")
            e(f"v_max3_u32 v{T0}, v{T0}, v{r+3}, v{r+7}\nv_max_u32 v{T0}, v{T0}, v{T1}\nv_cmp_eq_u32 vcc, -1, v{T0}")
    def backoff(n):
        if n >= 100: e.nop(n - 100)
        elif n: e(f"s_sleep {n}")
    def advance():
        e(f"v_mov_b64 {vr(AGO,2)}, -1")
        e(f"v_xor_b32 v{A_KX}, 0x3C000, v{A_KX}\nv_xor_b32 v{A_VX}, 0x3C000, v{A_VX}")
        e(f"v_add_u32 v{A_AGW}, 0x2000, v{A_AGW}\nv_subrev_u32 v{T0}, 0x6000, v{A_AGW}\nv_min_u32 v{A_AGW}, v{A_AGW}, v{T0}")
        e(f"s_add_u32 s{S_AGSLOT}, s{S_AGSLOT}, 0x2000\ns_cmp_eq_u32 s{S_AGSLOT}, 0x6000\ns_cselect_b32 s{S_AGSLOT}, 0, s{S_AGSLOT}")
        e(f"s_add_u32 s{S_AGR0}, s{S_AGSLOT}, {WS_AG - L_MEM}")
        e(f"s_add_u32 s{S_KVG}, s{S_KVG}, 0x80000\ns_xor_b32 s{S_KVL}, s{S_KVL}, 0x3C000\ns_add_u32 s{S_KVM}, s{S_KVM}, 0x20000")
        e(f"s_add_u32 s{S_KVG2}, s{S_KVG}, 8192\ns_mov_b32 m0, s{S_KVL}\ns_mov_b32 s{S_FLV}, s{S_STEP}")
        if cfg.get("peek"): kv_fold(e)
        e(f"s_add_u32 s{S_STEP}, s{S_STEP}, 1")
        if stamps: e(f"s_mov_b32 s{S_SPIN}, 0")
        if cfg.get("peek"): kv_peek(e)
    def comm(reducer, d1, d2, K, KR, last_copy=True):
        P1, P1R, P2, P2R = [e.newlabel(x) for x in ("P1", "P1R", "P2", "P2R")]
        if not reducer:
            if cfg.get("hist"):
                e(f"s_memtime s[20:21]\ns_waitcnt lgkmcnt(0)\ns_sub_u32 s22, s20, s23\ns_mov_b32 s23, s20\nv_mov_b32 v{T0}, s22")
                e(f"s_lshl_b32 s24, s{S_H}, 8\ns_lshl_b32 s25, s{S_STEP}, 2\ns_add_u32 s24, s24, s25\ns_add_u32 s24, s24, {WS_STAMP + 0x40000}\ns_mov_b64 exec, 1")
                e(f"buffer_store_dword v{T0}, off, {WS}, s24\ns_mov_b64 exec, -1")
            advance()
            if not cfg.get("pql"): preload_q(e)
            e(f"s_xor_b32 s{S_TAG}, s{S_TAG}, 1")
            S("rsi"); S("rs")
        else:
            advance()
            rsets = [RP, ACA][:KR]
            if cfg.get("adap"):
                PL, PJ = e.newlabel("PL"), e.newlabel("PJ")
                e(f"s_sub_u32 s{S_LATE}, s{S_LATE}, s{S_STEP}\ns_cmp_eq_u32 s{S_LATE}, {0x5ca1ab00 - 1}\ns_cbranch_scc1 {PL}")
                def pl():
                    e.label(PL)
                    rs_ld(RP); preload_q(e)
                    if KR > 1: backoff(cfg.get("e1l", 1)); rs_ld(ACA)
                    e(f"s_branch {PJ}")
                tail.append(pl)
            preload_q(e)
            backoff(d1)
            S("rsi")
            rs_ld(RP)
            if KR > 1:
                backoff(cfg.get("e1", 2)); rs_ld(ACA)
            if cfg.get("adap"): e.label(PJ)
            rs_chk(RP, 4 * (KR - 1))
            invr = cfg.get("invr") and KR == 2
            if invr:
                e(f"s_cbranch_vccz {P1}_OK")
                e("s_mov_b64 exec, vcc"); rs_ld(RP); e("s_mov_b64 exec, -1")
                rs_chk(ACA, 4)
            e(f"s_cbranch_vccnz {P1R}")
            e.label(P1 + "_OK")
            S("rs")
            def p1r():
                e.label(P1R)
                for k in ((1, 0) if invr else range(KR)):
                    e(f"s_add_u32 s{S_SPIN}, s{S_SPIN}, 1\ns_cmp_gt_u32 s{S_SPIN}, {SPIN_MAX}\ns_cbranch_scc1 {P1}_OK")
                    e("s_mov_b64 exec, vcc"); rs_ld(rsets[k]); e("s_mov_b64 exec, -1")
                    rs_chk(rsets[(k + 1) % KR], 4 * (KR - 1))
                    e(f"s_cbranch_vccz {P1}_OK")
                e(f"s_branch {P1R}")
            tail.append(p1r)
            if cfg.get("spec"):
                e(f"buffer_store_dwordx2 {vr(AGO,2)}, v{A_AGW}, {WS}, s{S_AGW} offen{st}\ns_mov_b64 exec, -1\ns_xor_b32 s{S_TAG}, s{S_TAG}, 1")
            else:
                e(f"s_xor_b32 s{S_TAG}, s{S_TAG}, 1\ns_nop 1")
                for r in range(4):
                    e(f"v_add_f32_dpp v{RED+r}, v{RED+r}, v{RED+r} row_ror:8 row_mask:0xf bank_mask:0xf")
                e(f"s_mov_b64 exec, s[{S_AGM}:{S_AGM+1}]")
                e(f"v_cvt_pk_bf16_f32 v{AGO}, v{RED}, v{RED+1}\nv_cvt_pk_bf16_f32 v{AGO+1}, v{RED+2}, v{RED+3}")
                e(f"s_mov_b64 exec, s[{S_AGM2}:{S_AGM2+1}]\nbuffer_store_dwordx2 {vr(AGO,2)}, v{A_AGW}, {WS}, s{S_AGW} offen{st}\ns_mov_b64 exec, -1")
            if cfg.get("push2"): e(f"s_mov_b64 exec, 1\nbuffer_load_dword v{MEMA+23}, off, {WS}, s{S_RSW0} sc1\ns_mov_b64 exec, -1")
        S("ags")
        if cfg.get("agbar"): e("s_barrier")
        S("agb")
        kv_ready_ool(e, tail, T0, MEMA + 15)
        if cfg.get("pql"): preload_q(e)
        backoff(d2)
        sets = ([AP, MEMA + 16] if cfg.get('sb') else [AP, ACB, MEMA + 16])[:K]
        for k, r in enumerate(sets):
            if k: backoff(cfg.get("e2", 2))
            ag_ld(r)
        if cfg.get("pre"):
            e(f"s_cmp_ge_u32 s{S_STEP}, 63\ns_cbranch_scc1 {LAST}W")
            if not cfg.get("nofl"): e(f"v_mov_b32 v{QP}, s{S_FLV}")
            nd = cfg.get("dmc", 0)
            for i in range(nd):
                if i == 2: e(f"s_add_u32 m0, s{S_KVL}, 8192\ns_nop 0")
                e(f"buffer_load_dwordx4 v{A_AGR}, {WS}, s{S_KVG if i < 2 else S_KVG2} offen offset:{(i%2)*1024} sc1 lds")
            if reducer and KR > 1: e(f"s_waitcnt vmcnt({2 * K + nd})")
            for r in range(0, 16 if cfg.get("sb") else 8, 2): e(f"v_mov_b64 {vr(ACA+r,2)}, 0")
        if cfg.get("join"):
            if not last_copy:
                e(f"s_branch {LOOP}_AGW")
                return
            e.label(f"{LOOP}_AGW")
        nd = cfg.get("dmc", 0)
        ag_chk(AP, 2 * (K - 1) + nd)
        inv = cfg.get("inv") and K == 2
        if inv:
            e(f"s_cbranch_vccz {P2}_OK")
            e("s_mov_b64 exec, vcc"); ag_ld(sets[0]); e("s_mov_b64 exec, -1")
            ag_chk(sets[1], 2)
        e(f"s_cbranch_vccnz {P2R}")
        e.label(P2 + "_OK")
        S("ag")
        def p2r():
            e.label(P2R)
            if cfg.get("adap"):
                e(f"s_add_u32 s{S_TMP}, s{S_STEP}, 0x5ca1ab00\nv_mov_b32 v{MEMA+14}, s{S_TMP}\nv_mov_b32 v{MEMA+13}, {L_KU}\nds_write_b32 v{MEMA+13}, v{MEMA+14}")
            if nd:
                ag_chk(sets[1], nd)
                e(f"s_cbranch_vccz {P2}_OK")
                e.label(P2R + "L")
                e(f"s_add_u32 s{S_SPIN}, s{S_SPIN}, 1\ns_cmp_gt_u32 s{S_SPIN}, {SPIN_MAX}\ns_cbranch_scc1 {P2}_OK")
                e("s_mov_b64 exec, vcc"); ag_ld(sets[1]); e("s_mov_b64 exec, -1")
                ag_chk(sets[1], 0)
                e(f"s_cbranch_vccz {P2}_OK\ns_branch {P2R}L")
                return
            for k in ((1, 0) if inv else range(K)):
                e(f"s_add_u32 s{S_SPIN}, s{S_SPIN}, {16 if stamps else 1}\ns_cmp_gt_u32 s{S_SPIN}, {SPIN_MAX}\ns_cbranch_scc1 {P2}_OK")
                e("s_mov_b64 exec, vcc"); ag_ld(sets[k]); e("s_mov_b64 exec, -1")
                ag_chk(sets[(k + 1) % K], 2 * (K - 1))
                e(f"s_cbranch_vccz {P2}_OK")
            e(f"s_branch {P2R}")
        tail.append(p2r)
        if stamps:
            sk = e.newlabel("NS")
            e(f"s_waitcnt lgkmcnt(0)\ns_cmp_eq_u32 s{S_STEP}, {cfg.get('stampstep', 40)}\ns_cbranch_scc0 {sk}")
            for i in range(len(stamps)): e(f"v_writelane_b32 v{T0}, s{S_ST+2*i}, {i}")
            e(f"v_writelane_b32 v{T0}, s{S_SPIN}, 10")
            for i in range(5): e(f"s_memrealtime s[{12+4*i}:{13+4*i}]\ns_memtime s[{14+4*i}:{15+4*i}]\ns_nop 5")
            e("s_waitcnt lgkmcnt(0)")
            for i in range(5): e(f"v_writelane_b32 v{T0}, s{12+4*i}, {16+2*i}\nv_writelane_b32 v{T0}, s{14+4*i}, {17+2*i}")
            e(f"s_lshl_b32 s{S_TMP}, s{S_H}, 2\ns_add_u32 s{S_TMP}, s{S_TMP}, s{S_W}\ns_lshl_b32 s{S_TMP}, s{S_TMP}, 8\ns_add_u32 s{S_TMP}, s{S_TMP}, {WS_STAMP}")
            e(f"v_mbcnt_lo_u32_b32 v{T1}, -1, 0\nv_mbcnt_hi_u32_b32 v{T1}, -1, v{T1}\nv_lshlrev_b32 v{T1}, 2, v{T1}")
            e(f"buffer_store_dword v{T0}, v{T1}, {WS}, s{S_TMP} offen")
            e.label(sk)
        if not cfg.get("pre"):
            for r in range(0, 8, 2): e(f"v_mov_b64 {vr(ACA+r,2)}, 0")
            e(f"s_cmp_ge_u32 s{S_STEP}, 63\ns_cbranch_scc1 {LAST}")
            e(f"v_mov_b32 v{T0}, s{S_FLV}")
        if cfg.get("pubc"): e(f"buffer_store_dwordx4 {vr(KP,4)}, v{A_AGR}, {WS}, s{S_KVM} offen sc1")
        if not cfg.get("wl"): e("s_waitcnt lgkmcnt(0)")
    D = cfg.get("D", [[0, 60], [0, 160], [25, 40], [0, 190]])
    if cfg.get("agbar"): D = [[cfg["d1e"], cfg.get("d2e", 0)], [0, cfg.get("d2e", 0)], [cfg["d1"], cfg["d2"]], [0, cfg["d2"]]]
    KK = [cfg.get("Ke", 1), cfg.get("Ke", 1), cfg.get("K", 2), cfg.get("K", 2)]
    ft = cfg.get("ft", 2)
    for w in [x for x in range(4) if x != ft] + [ft]:
        if w == ft: e(".p2align 6")
        e.label(f"{LOOP}_{w}")
        comm(w in (0, 2), D[w][0], D[w][1], KK[w], cfg.get('KRe', 1) if w == 0 else cfg.get('KR', 2), w == ft)
        if w != ft and not cfg.get("join"): e(f"s_branch {ENTRY}")
    e.label(ENTRY)
    if cfg.get("wl"): e("s_waitcnt lgkmcnt(0)")
    e("s_barrier")
    S("b1")
    if cfg.get("stepst"): e("s_memrealtime s[84:85]")
    def rd_m(J, x):
        def f(): seq[("m", J)] = e(f"ds_read_b64_tr_b16 {vr(MEMA+4*J+2*x,2)}, v{A_TR} offset:{(2*(J%2)+x)*2048 + (J//2)*512}")
        return f
    qorder = [(0, 0), (0, 1), (1, 0), (1, 1), (2, 0)] + [(J, t) for J in range(3, 8) for t in range(2)] + [(2, 1)]
    if cfg.get("qo"): qorder = qorder[:11] + [(2, 1)] + qorder[11:15]
    def qf(J, t):
        if J < 3: return ("v", QB + 8 * (QL.index((J, t)) % 5))
        return FRAG[("q", J, t)]
    mq = [smf(ACA + 4 * t, MEMA + 4 * J, qf(J, t)) for J, t in qorder]
    def rd_w(key, r, off):
        def f(): seq[key] = e(f"ds_read_b128 {vr(r,4)}, v{A_W} offset:{off}")
        return f
    def rq(n, hf): return rd_w(("ql", n), QB + 8 * (n % 5) + 4 * hf, FRAG[("q",) + QL[n]][1] + 1024 * hf)
    flag = [f"s_mov_b64 exec, s[{S_W0M}:{S_W0M+1}]", f"buffer_store_dword v{QP if cfg.get('pre') else T0}, off, {WS}, s{S_CF} sc1", "s_mov_b64 exec, -1"]
    pubk = f"buffer_store_dwordx2 {vr(KP,2)}, v{A_RSW}, {WS}, s{S_KVM} offen sc1"
    pubv = f"buffer_store_dwordx2 {vr(VP,2)}, v{A_RSW}, {WS}, s{S_KVM} offen offset:2048 sc1"
    if cfg.get("nopub"): pubk = pubv = "s_nop 0"; flag = []
    if cfg.get("nofl"): flag = []
    def dm(i): return "s_nop 0" if cfg.get("nodma") else f"buffer_load_dwordx4 v{A_AGR}, {WS}, s{S_KVG if i < 2 else S_KVG2} offen offset:{(i%2)*1024} sc1 lds"
    z = lambda r: f"v_mov_b64 {vr(r,2)}, 0"
    fill = {-1: [rd_m(J, x) for J in range(4) for x in range(2)] + [wt(("m", 0)), SS("m0")],
            0: [rd_m(4, 0), dm(0)], 1: [rd_m(4, 1), wt(("m", 1))], 2: [rd_m(5, 0), dm(1)], 3: [rd_m(5, 1), wt(("m", 2))],
            4: [f"s_add_u32 m0, s{S_KVL}, 8192", wt(("m", 3))],
            5: [f"s_waitcnt vmcnt({3 if cfg.get('pubc') else 2})", rd_m(6, 0)], 6: [rd_m(6, 1), wt(("m", 4))], 7: [rd_m(7, 0), dm(2)], 8: [rd_m(7, 1), wt(("m", 5))],
            9: [rq(5, 0), dm(3)], 10: [rq(5, 1), wt(("m", 6))], 11: flag, 12: [wt(("m", 7))], 13: [] if cfg.get("pubc") else [pubk], 14: [wt(("ql", 5))],
            }
    if cfg.get("qo"):
        last = []
        m0b = f"s_add_u32 m0, s{S_KVL}, 8192"
        fill = {-1: [rd_m(J, x) for J in range(4) for x in range(2)] + [wt(("m", 0)), SS("m0")],
                0: [rd_m(4, 0)] + (last if cfg["qo"] == 1 else []), 1: [rd_m(4, 1), wt(("m", 1))], 2: [rd_m(5, 0), dm(0)], 3: [rd_m(5, 1), wt(("m", 2))],
                4: [rq(5, 0), wt(("m", 3))], 5: [rq(5, 1), dm(1)], 6: [m0b, wt(("m", 4))], 7: ["s_waitcnt vmcnt(2)", rd_m(6, 0)],
                8: [rd_m(6, 1), wt(("m", 5))], 9: [rd_m(7, 0), dm(2)], 10: [rd_m(7, 1), wt(("ql", 5))], 11: [wt(("m", 6)), dm(3)],
                12: flag, 13: [wt(("m", 7))], 14: [pubk]}
        if cfg["qo"] == 2: fill[-1] = fill[-1][:8] + last + fill[-1][8:]
    if max(KK) > 2:
        fill[0] = ["s_waitcnt vmcnt(0)", rd_m(4, 0), dm(0)]; fill[5] = [rd_m(6, 0)]
    if cfg.get("dmc") == 4:
        for g in (0, 2, 7, 9): fill[g] = fill[g][:1]
        fill[4] = fill[4][1:]; fill[5] = ["s_waitcnt vmcnt(4)", rd_m(6, 0)]
    if cfg.get("dmc") == 2:
        for g in (0, 2): fill[g] = fill[g][:1]
    kextra = {}
    dp = cfg.get("dp", 0)
    m0b = f"s_add_u32 m0, s{S_KVL}, 8192"
    if dp:
        for g in (0, 2, 7, 9): fill[g] = fill[g][:1]
        fill[4] = fill[4][1:]
        fill[5] = ["s_waitcnt vmcnt(%d)" % (1 if dp in (1, 2) else 0), rd_m(6, 0)]
        if dp == 1:
            fill[2] += [dm(0)]; fill[7] += [dm(1)]; fill[9] += [m0b]; fill[12] = fill[12] + [dm(2)]; kextra = {5: [dm(3)]}
        if dp == 2:
            fill[2] += [dm(0)]; fill[9] += [dm(1)]; kextra = {3: [m0b], 5: [dm(2)], 11: [dm(3)]}
        if dp == 4:
            kextra = {4: [dm(0)], 7: [dm(1)], 9: [m0b], 11: [dm(2)], 14: [dm(3)]}
        if dp == 5:
            fill[9] += [dm(0)]; fill[12] = fill[12][:1] + [dm(1)] + fill[12][1:]; kextra = {3: [m0b], 5: [dm(2)], 7: [dm(3)]}
        if dp == 6:
            fill[0] += [dm(0)]; fill[1] = [rd_m(4, 1), dm(1), wt(("m", 1))]; fill[2] += [m0b]; fill[3] = [rd_m(5, 1), dm(2), wt(("m", 2))]; fill[4] = [dm(3)] + fill[4]
            fill[5] = ["s_waitcnt vmcnt(4)", rd_m(6, 0)]
        if dp == 7:
            pre = fill[-1]; fill[-1] = pre[:8] + [dm(0)] + pre[8:]; fill[0] += [dm(1)]; fill[2] += [m0b]; fill[3] = [rd_m(5, 1), dm(2), wt(("m", 2))]
            fill[5] = ["s_waitcnt vmcnt(3)", rd_m(6, 0)]; fill[7] += [dm(3)]
        if dp == 3:
            fill[7] += [dm(0)]; fill[12] = fill[12] + [dm(1)]; kextra = {3: [m0b], 6: [dm(2)], 14: [dm(3)]}
    if cfg.get("flp") == 1:
        fill[11] = []; kextra[7] = None
    pp = cfg.get("pubp", 0)
    if pp:
        pre = [rd_m(J, x) for J in range(4) for x in range(2)]
        fill[-1] = pre[:pp] + [pubk] + pre[pp:] + [wt(("m", 0)), SS("m0")]
        fill[13] = []; fill[5] = ["s_waitcnt vmcnt(3)", rd_m(6, 0)]
    pv = cfg.get("pv", 0); pkp = cfg.get("pkp", 0)
    if pv == 0: fill[15] = [pubv]
    if pkp: fill[13] = []
    if cfg.get("sb") == 1:
        fill.update({0: ["s_waitcnt vmcnt(0)", rd_m(4, 0)], 1: [rd_m(4, 1), wt(("m", 1))], 2: [rd_m(5, 0), dm(0)], 3: [rd_m(5, 1), wt(("m", 2))],
                     4: [rd_m(6, 0), wt(("m", 3))], 5: [rd_m(6, 1), dm(1)], 6: [rd_m(7, 0), wt(("m", 4))], 7: [rd_m(7, 1), m0b], 8: [rq(5, 0), wt(("m", 5))],
                     9: [rq(5, 1), dm(2)], 10: [wt(("m", 6))], 11: flag, 12: [wt(("m", 7)), dm(3)], 13: [pubk], 14: [wt(("ql", 5))], 15: [pubv]})
    elif cfg.get("sb") == 2:
        fill.update({0: ["s_waitcnt vmcnt(0)", rd_m(4, 0)], 1: [rd_m(4, 1), wt(("m", 1))], 2: [rd_m(5, 0), rd_m(5, 1)], 3: [dm(0), wt(("m", 2))],
                     4: [rd_m(6, 0), wt(("m", 3))], 5: [rd_m(6, 1), rd_m(7, 0)], 6: [dm(1), wt(("m", 4))], 7: [rd_m(7, 1), m0b], 8: [rq(5, 0), wt(("m", 5))],
                     9: [rq(5, 1)], 10: [dm(2), wt(("m", 6))], 11: flag, 12: [dm(3), wt(("m", 7))], 13: [pubk], 14: [wt(("ql", 5))], 15: [pubv]})
    else:
        for n, g in enumerate([10, 11, 13, 14] if cfg.get("qo") else [10, 12, 13, 14]): fill[g] = fill[g] + [z(ACB + 2 * n)]
    if cfg.get("adap"):
        def rl(): seq["late"] = e(f"ds_read_b32 v{T0}, v{A_TRK} offset:{L_KU - L_MEM}")
        fill[12] = [rl] + fill[12]
    GS("q", fill, 16)
    interleave(e, mq, fill)
    S("q")
    mk = [smf(ACB + 4 * t, MEMA + 4 * J, FRAG[("k", J, t)]) for J in range(8) for t in range(2)]
    def post_dup(acc, dst):
        return [f"v_add_f32 v{acc}, v{acc}, v{acc+2}", f"v_add_f32 v{acc+1}, v{acc+1}, v{acc+3}",
                f"v_cvt_pk_bf16_f32 v{dst}, v{acc}, v{acc+1}"]
    pq = post_dup(ACA, QP) + post_dup(ACA + 4, QP + 1)
    def rd_q(js, t):
        def f(): seq[("q", js)] = e(f"ds_read_b64_tr_b16 {vr(QB+4*js+2*t,2)}, v{A_TR} offset:{L_QU-L_MEM + js*1024 + t*512}")
        return f
    kxslot = [0, 1, 2, 3, 4, 5, 0, 1]
    def rd_kx(n):
        js, kt = n // 2, n % 2
        def f(): seq[("kx", n)] = e(f"ds_read_b128 {vr(KXA+4*kxslot[n],4)}, v{A_KX} offset:{(kt*4+js)*1024}")
        return f
    def wr_u(key, a, r, t):
        def f(): seq[key] = e(f"ds_write2_b32 v{a}, v{r}, v{r} offset0:{128*t} offset1:{128*t+1}")
        return f
    fill = {0: pq[0:2], 1: pq[2:4], 2: [wr_u("wq0", A_UW, QP, 0)] + pq[4:6], 3: [wr_u("wq1", A_UW, QP + 1, 1)],
            4: [rd_kx(0), f"v_add_u32 v{T0}, {L_KU - L_QU}, v{A_UW}"], 5: [rd_kx(1)], 6: [rd_kx(2)], 7: [rd_kx(3)],
            8: [wt("wq1"), SS("bq0"), "s_barrier", SS("bq1")],
            9: [rd_q(0, 0), rd_q(0, 1)], 10: [rd_q(1, 0), rd_q(1, 1)], 11: [rd_kx(4)], 12: [rd_q(2, 0), rd_kx(5)], 13: [rd_q(2, 1), rd_q(3, 0)],
            14: [rd_q(3, 1)], 15: [wt(("q", 1))]}
    if pkp == 1: fill[6] = fill[6] + [pubk]
    if pkp == 2: fill[11] = fill[11] + [pubk]
    if pv == 2: fill[14] = fill[14] + [pubv]
    if cfg.get("adap"): fill[3] = [wt("late")] + fill[3] + [f"v_readfirstlane_b32 s{S_LATE}, v{T0}"]
    kb = cfg.get("kb", 0)
    if kb == 1:
        fill.update({5: [rd_kx(1), rd_kx(2)], 6: [rd_kx(3)], 7: [wt("wq1"), "s_barrier"], 8: [rd_q(0, 0), rd_q(0, 1)], 9: [rd_q(1, 0)], 10: [rd_q(1, 1)],
                     11: [rd_kx(4)], 12: [rd_q(2, 0), rd_kx(5)]})
    if kb == 2:
        fill.update({5: [rd_kx(1)], 6: [wt("wq1"), "s_barrier"], 7: [rd_q(0, 0), rd_q(0, 1)], 8: [rd_kx(2)], 9: [rd_q(1, 0), rd_kx(3)], 10: [rd_q(1, 1)],
                     11: [rd_kx(4)], 12: [rd_q(2, 0), rd_kx(5)]})
    if kb == 3:
        fill = {0: pq[0:1], 1: pq[1:2], 2: pq[2:3], 3: [wr_u("wq0", A_UW, QP, 0)] + pq[3:4], 4: [rd_kx(0)] + pq[4:5], 5: [rd_kx(1)] + pq[5:6],
                6: [wr_u("wq1", A_UW, QP + 1, 1), f"v_add_u32 v{T0}, {L_KU - L_QU}, v{A_UW}"], 7: [rd_kx(2)], 8: [rd_kx(3)], 9: [rd_kx(4)],
                10: [wt("wq1"), "s_barrier"], 11: [rd_q(0, 0), rd_q(0, 1)], 12: [rd_q(1, 0), rd_q(1, 1)], 13: [rd_q(2, 0), rd_kx(5)],
                14: [rd_q(2, 1), rd_q(3, 0)], 15: [rd_q(3, 1), wt(("q", 0))]}
    for g, x in kextra.items():
        if x is None: fill[g] = flag; fill[6] = fill[6] + [rd_kx(3)]
        elif g == 4: fill[g] = fill[g][:1] + x + fill[g][1:]
        else: fill[g] = fill[g] + x
    if cfg.get("flp") == 1: fill[4] = [rd_kx(0)]; fill[8] = fill[8]; fill[15] = fill[15]; kadd = True
    GS("k", fill, 16)
    interleave(e, mk, fill)
    S("k")
    pk = post_dup(ACB, KP) + post_dup(ACB + 4, KP + 1)
    ms = []
    for js in range(4):
        for kt in range(2):
            n = js * 2 + kt
            ms.append(mf32(ACA + 4 * kt, KXA + 4 * kxslot[n], QB + 4 * js, "0" if js == 0 else ACA + 4 * kt))
    def rd_k(js, t):
        def f(): seq[("k", js)] = e(f"ds_read_b64_tr_b16 {vr(KXA+8+4*js+2*t,2)}, v{A_TRK} offset:{L_KU-L_MEM + js*1024 + t*512}")
        return f
    fill = {0: [rd_kx(6)] + pk[0:2], 1: [rd_kx(7)] + pk[2:4] + ([f"v_add_u32 v{T0}, {L_KU - L_QU}, v{A_UW}"] if cfg.get("flp") == 1 else []),
            2: [wr_u("wk0", T0, KP, 0)] + pk[4:6], 3: [wt(("q", 3)), z(ACB), z(ACB + 2)],
            4: [wr_u("wk1", T0, KP + 1, 1), z(ACB + 4), z(ACB + 6)],
            5: [wt(("kx", 7))],
            }
    if cfg.get("sxs") == 1:
        fill = {0: [rd_kx(6)], 1: [rd_kx(7)] + pk[0:2], 2: pk[2:4], 3: [wt(("q", 3))] + pk[4:6],
                4: [wr_u("wk0", T0, KP, 0), z(ACB), z(ACB + 2)], 5: [wt(("kx", 7)), z(ACB + 4), z(ACB + 6)], 6: [wr_u("wk1", T0, KP + 1, 1)]}
    if kb == 3: fill[1] = fill[1][:1] + [wt(("q", 1))] + fill[1][1:]
    GS("sx", fill, 8)
    interleave(e, ms, fill)
    S("Sx")
    mv = [smf(ACB + 4 * t, MEMA + 4 * J, FRAG[("v", J, t)]) for J in range(8) for t in range(2)]
    SM = KXA
    X0, X1 = ACA, ACA + 4
    mx, t2 = KXA + 4, KXA + 5
    e0 = XT
    NV1 = cfg.get("nv1", 10)
    msm = [mf32(SM, KXA + 8 + 4 * js, QB + 4 * js, "0" if js == 0 else SM) for js in range(4)]
    odd = f"s[{S_ODD}:{S_ODD+1}]"
    early = [f"v_max3_f32 v{mx}, v{X0}, v{X0+1}, v{X0+2}", f"v_max3_f32 v{t2}, v{X1}, v{X1+1}, v{X1+2}",
             f"v_max3_f32 v{mx}, v{mx}, v{X0+3}, v{X1+3}", f"v_max_f32 v{mx}, v{mx}, v{t2}",
             f"v_cndmask_b32 v{e0}, v{X0}, v{X0+2}, {odd}", f"v_cndmask_b32 v{e0+1}, v{X0+1}, v{X0+3}, {odd}",
             f"v_cndmask_b32 v{e0+2}, v{X1}, v{X1+2}, {odd}", f"v_cndmask_b32 v{e0+3}, v{X1+1}, v{X1+3}, {odd}"]
    seqm = mv[:NV1] + msm + mv[NV1:]
    PVB0, PVB1, OAC, PA, LB, LA = QB, QB + 8, KXA + 8, KXA + 16, KXA + 20, KXA + 4
    def rd_vx(n):
        t, hf = n // 2, n % 2
        def f(): seq["vx"] = e(f"ds_read_b64 {vr(QB+8*t+2+4*hf,2)}, v{A_VX} offset:{t*1024 + hf*512}")
        return f
    def rd_wo(T, hf):
        return rd_w(("wo", T), MEMA + 8 * (T % 4) + 4 * hf, FRAG[("o", (1, T // 2), T % 2)][1] + 1024 * hf)
    EE = [SM, SM + 1, e0, e0+1, e0+2, e0+3]
    fill = {0: [wt("wk1"), SS("bk0"), "s_barrier", SS("bk1")]}
    for n in range(8): fill[1 + n] = [rd_k(n // 2, n % 2), early[n]]
    xv = cfg.get("xv", 0)
    if xv == 2:
        fill = {1: early[0:1], 2: early[1:3], 3: early[3:5], 4: [wt("wk1"), "s_barrier"],
                5: [rd_k(0, 0), rd_k(0, 1)], 6: [rd_k(1, 0), rd_k(1, 1)], 7: [rd_k(2, 0), rd_k(2, 1)], 8: [rd_k(3, 0), rd_k(3, 1)]}
    if xv == 3:
        fill = {1: early[0:2], 2: early[2:4], 3: [wt("wk1"), "s_barrier"],
                4: [rd_k(0, 0), rd_k(0, 1)], 5: [rd_k(1, 0), rd_k(1, 1)], 6: [rd_k(2, 0)], 7: [rd_k(2, 1)], 8: [rd_k(3, 0), rd_k(3, 1)]}
    if xv == 1:
        for n in range(8): fill[1 + n] = [rd_k(n // 2, n % 2)]
        fill[7] += early[0:1]; fill[8] += early[1:2]
    if pv == 1: fill[0] = [pubv]
    if pv == 3: fill[6] = fill[6] + [pubv]
    fill[NV1 - 1] = [rd_wo(0, 0), wt(("k", 0)), SS("k0")] if NV1 - 1 > 8 else fill[NV1 - 1][:1] + [wt(("k", 0))] + fill[NV1 - 1][1:]
    lb = [f"v_mov_b64 {vr(LB,2)}, s[{S_LB}:{S_LB+1}]", f"v_mov_b64 {vr(LB+2,2)}, s[{S_LB}:{S_LB+1}]"]
    zz = [z(OAC), z(OAC + 2), z(OAC + 4), z(OAC + 6), f"v_mov_b32 v{PA+2}, 0"] + lb
    if xv == 1:
        fill[NV1 - 1] = fill[NV1 - 1] + early[2:3]
        fill[NV1] = [wt(("k", 1))] + early[3:5]
        fill[NV1 + 1] = [wt(("k", 2))] + early[5:7]
        fill[NV1 + 2] = [wt(("k", 3))] + early[7:8] + zz[0:1]
        fill[NV1 + 3] = [rd_vx(0)] + zz[1:3]
        zz = zz[3:]
    elif xv in (2, 3):
        rem = early[5:] if xv == 2 else early[4:]
        allv = rem + zz
        k0 = 2 if xv == 3 else 0
        fill[NV1] = [wt(("k", 1))]
        fill[NV1 + 1] = [wt(("k", 2))] + allv[0:k0]
        fill[NV1 + 2] = [wt(("k", 3))] + allv[k0:k0 + 2]
        fill[NV1 + 3] = [rd_vx(0)] + allv[k0 + 2:k0 + 4]
        zz = allv[k0 + 4:]
    else:
        fill[NV1] = [wt(("k", 1))] + zz[0:2]
        fill[NV1 + 1] = [wt(("k", 2))] + zz[2:4]
        fill[NV1 + 2] = [wt(("k", 3))] + zz[4:5]
        fill[NV1 + 3] = [rd_vx(0)] + zz[5:7]
        zz = []
    GS("v1", fill, 14)
    interleave(e, seqm[:NV1 + 4], fill)
    S("Sm")
    rest = seqm[NV1 + 4:]
    assert len(rest) == 6
    def run(x):
        for s in x: s() if callable(s) else e(s)
    il = cfg.get("il")
    cv = lambda t, h: f"v_cvt_pk_bf16_f32 v{QB+8*t+h}, v{ACB+4*t+2*h}, v{ACB+4*t+2*h+1}"
    exps = [f"v_exp_f32 v{x}, v{x}" for x in EE]
    if il:
        f2 = zz[1:] + [cv(0, 0), cv(0, 1), cv(1, 0), cv(1, 1)]
        o = []
        for k, x in enumerate(exps): o += [x] + f2[k:k + 1]
        exps = o + f2[6:]
    run([rest[0], rd_vx(1), rd_vx(2)] + zz[0:1] + [rest[1], rd_vx(3), rd_wo(0, 1),
         f"v_max3_f32 v{mx}, v{mx}, v{SM}, v{SM+1}", f"v_mov_b32 v{t2}, v{mx}",
         rest[2], rd_wo(1, 0), rd_wo(1, 1),
         f"v_permlane32_swap_b32 v{mx}, v{t2}", f"v_max_f32 v{mx}, v{mx}, v{t2}", f"v_mov_b32 v{t2}, v{mx}",
         rest[3], rd_wo(2, 0), rd_wo(2, 1),
         f"v_permlane16_swap_b32 v{mx}, v{t2}", f"v_max_f32 v{mx}, v{mx}, v{t2}",
         rest[4], f"v_mul_f32 v{mx}, s{S_SC}, v{mx}", rest[5], rd_wo(3, 0), rd_wo(3, 1)] + ([] if il else zz[1:]) + [
         ]
        + [f"v_fma_f32 v{x}, v{x}, s{S_SC}, -v{mx}" for x in EE] + exps
        + [f"v_cvt_pk_bf16_f32 v{PA}, v{SM}, v{SM+1}", f"v_cvt_pk_bf16_f32 v{PA+1}, v{e0}, v{e0+1}", f"v_cvt_pk_bf16_f32 v{PA+3}, v{e0+2}, v{e0+3}",
           f"v_permlane32_swap_b32 v{PA}, v{PA+2}"])
    S("soft")
    cv = lambda t, h: f"v_cvt_pk_bf16_f32 v{QB+8*t+h}, v{ACB+4*t+2*h}, v{ACB+4*t+2*h+1}"
    run(([wt("vx"), "s_nop 0", mf32(LA, PA, LB, "0")] if il else [cv(0, 0), cv(0, 1), mf32(LA, PA, LB, "0"), wt("vx"), cv(1, 0), cv(1, 1)]) + [
         f"v_smfmac_f32_16x16x64_bf16 {vr(OAC,4)}, {vr(PA,4)}, {vr(PVB0,8)}, v{IDX}"] + ([] if il else ["s_nop 0"]) + [
         f"v_smfmac_f32_16x16x64_bf16 {vr(OAC+4,4)}, {vr(PA,4)}, {vr(PVB1,8)}, v{IDX}",
         ] + ([
         f"v_pk_add_f32 {vr(LA,2)}, {vr(LA,2)}, {vr(LA+2,2)}", f"v_rcp_f32 v{LA}, v{LA}", f"v_rcp_f32 v{LA+1}, v{LA+1}",
         f"v_pk_add_f32 {vr(OAC,2)}, {vr(OAC,2)}, {vr(OAC+2,2)}", f"v_pk_mul_f32 {vr(OAC,2)}, {vr(OAC,2)}, {vr(LA,2)}", "s_nop 0",
         f"v_pk_add_f32 {vr(OAC+4,2)}, {vr(OAC+4,2)}, {vr(OAC+6,2)}", f"v_cvt_pk_bf16_f32 v{OAC}, v{OAC}, v{OAC+1}",
         f"v_pk_mul_f32 {vr(OAC+4,2)}, {vr(OAC+4,2)}, {vr(LA,2)}", f"v_cvt_pk_bf16_f32 v{OAC+1}, v{OAC+4}, v{OAC+5}"] if cfg.get("usepk") else [
         f"v_add_f32 v{LA}, v{LA}, v{LA+2}", f"v_add_f32 v{LA+1}, v{LA+1}, v{LA+3}", f"v_rcp_f32 v{LA}, v{LA}", f"v_rcp_f32 v{LA+1}, v{LA+1}",
         f"v_add_f32 v{OAC}, v{OAC}, v{OAC+2}", f"v_add_f32 v{OAC+1}, v{OAC+1}, v{OAC+3}",
         f"v_mul_f32 v{OAC}, v{OAC}, v{LA}", f"v_mul_f32 v{OAC+1}, v{OAC+1}, v{LA+1}",
         f"v_add_f32 v{OAC+4}, v{OAC+4}, v{OAC+6}", f"v_add_f32 v{OAC+5}, v{OAC+5}, v{OAC+7}",
         f"v_mul_f32 v{OAC+4}, v{OAC+4}, v{LA}", f"v_mul_f32 v{OAC+5}, v{OAC+5}, v{LA+1}",
         f"v_cvt_pk_bf16_f32 v{OAC}, v{OAC}, v{OAC+1}", f"v_cvt_pk_bf16_f32 v{OAC+1}, v{OAC+4}, v{OAC+5}"]))
    WAC = [QB, QB + 4, QB + 8, QB + 12, ACA, ACA + 4, ACB, ACB + 4]
    so = e(f"ds_write_b64 v{A_UW}, {vr(OAC,2)}")
    S("ow")
    def vpost():
        for t in range(2):
            a = ACB + 4 * t
            e(f"v_pk_add_f32 {vr(a,2)}, {vr(a,2)}, {vr(a+2,2)}\nv_cvt_pk_bf16_f32 v{VP+t}, v{a}, v{a+1}")
    if cfg.get("mz") == 2:
        e(z(e0)); e(z(e0 + 2))
        vpost()
        e(f"v_mfma_f32_32x32x16_bf16 {vr(QB,16)}, {vr(e0,4)}, {vr(e0,4)}, 0")
        e(f"v_mfma_f32_32x32x16_bf16 {vr(ACA,16)}, {vr(e0,4)}, {vr(e0,4)}, 0")
    elif cfg.get("mz"):
        e(z(QB)); e(z(QB + 2))
        vpost()
        e(f"v_mfma_f32_32x32x16_bf16 {vr(ACA,16)}, {vr(QB,4)}, {vr(QB,4)}, 0")
        for r in range(4, 16, 2): e(z(QB + r))
    else:
        vpost()
        for r in range(0, 16, 2): e(z(QB + r))
        for r in range(0, 16, 2): e(z(ACA + r))
    e.waitlg(so)
    S("bo0")
    e("s_barrier")
    S("bo1")
    OA = KXA
    for J in range(2):
        for x in range(2):
            seq[("oa", J)] = e(f"ds_read_b64_tr_b16 {vr(OA+4*J+2*x,2)}, v{A_TR} offset:{L_QU-L_MEM + (2*J+x)*1024}")
    mo = []
    for p in range(4):
        for T in (2 * p, 2 * p + 1): mo.append(smf(WAC[T], OA, FRAG[("o", (0, T // 2), T % 2)]))
        for T in (2 * p, 2 * p + 1): mo.append(smf(WAC[T], OA + 4, ("v", MEMA + 8 * (T % 4))))
    RSO = OAC
    def post_pair(p):
        a, b = WAC[2 * p], WAC[2 * p + 1]; d = RSO + 2 * p
        return [f"v_add_f32 v{a}, v{a}, v{a+2}", f"v_add_f32 v{a+1}, v{a+1}, v{a+3}",
                f"v_cvt_pk_bf16_f32 v{d}, v{a}, v{a+1}", f"v_add_f32 v{b}, v{b}, v{b+2}",
                f"v_add_f32 v{b+1}, v{b+1}, v{b+3}", f"v_and_or_b32 v{d}, v{d}, -2, s{S_TAG}",
                f"v_cvt_pk_bf16_f32 v{d+1}, v{b}, v{b+1}",
                f"buffer_store_dwordx2 {vr(d,2)}, v{A_RSW}, {WS}, s{S_RSW0 if p < 2 else S_RSW1} offen offset:{(p%2)*2048}{st}"]
    p0, p1, p2, p3 = [post_pair(p) for p in range(4)]
    fill = {-1: [wt(("oa", 0)), SS("oa")], 1: [wt(("oa", 1))], 2: [rd_wo(4, 0), rd_wo(4, 1)], 3: [rd_wo(5, 0), rd_wo(5, 1)],
            4: ["s_nop 0"] + p0[0:1], 5: p0[1:3], 6: [rd_wo(6, 0), rd_wo(6, 1)] + p0[3:5], 7: [rd_wo(7, 0), rd_wo(7, 1)] + p0[5:7], 8: p0[7:8] + p1[0:1],
            9: [wt(("wo", 4))] + p1[1:3], 10: [wt(("wo", 5))] + p1[3:5], 11: p1[5:7],
            12: p1[7:8] + p2[0:1], 13: [wt(("wo", 6))] + p2[1:3], 14: [wt(("wo", 7))] + p2[3:5],
            15: p2[5:8] + p3[0:3] + ([p3[5]] + p3[3:5] + p3[6:] if not cfg.get("usepk") else [p3[5], f"v_pk_add_f32 {vr(WAC[7],2)}, {vr(WAC[7],2)}, {vr(WAC[7]+2,2)}"] + p3[6:]),
            }
    if cfg.get("wr") == 1:
        fill.update({8: p0[7:8] + p1[0:2], 9: [wt(("wo", 4))] + p1[2:4], 10: [wt(("wo", 5))] + p1[4:6], 11: p1[6:7],
                     12: p1[7:8] + p2[0:2], 13: [wt(("wo", 6))] + p2[2:5], 14: [wt(("wo", 7))] + p2[5:7],
                     15: p2[7:8] + ["s_nop 2"] + p3[0:3] + [p3[5]] + p3[3:5] + p3[6:]})
    if cfg.get("wr") == 2:
        fill[15] = p2[5:7] + ["s_nop 0"] + p3[0:3] + [p3[5]] + p3[3:5] + p3[6:] + p2[7:8]
    GS("wo", fill, 16)
    interleave(e, mo, fill)
    S("Wo")
    if cfg.get("push"): e(f"s_mov_b64 exec, 1\nbuffer_load_dword v{MEMA+23}, off, {WS}, s{S_RSW0} sc1\ns_mov_b64 exec, -1")
    if cfg.get("stepst"):
        for k in range(12): e(f"s_cmp_eq_u32 s{S_STEP}, {k}\ns_cselect_b32 s{20+k}, s84, s{20+k}")
    for w in (2, 0, 1): e(f"s_cmp_eq_u32 s{S_W}, {w}\ns_cbranch_scc1 {LOOP}_{w}")
    e(f"s_branch {LOOP}_3")
    for t in tail: t()
    if cfg.get("pre"):
        e.label(LAST + "W")
        LB_ = ACB
        ag_chk(LB_, 0)
        e(f"s_cbranch_vccz {LAST}Z\ns_add_u32 s{S_SPIN}, s{S_SPIN}, 1\ns_cmp_gt_u32 s{S_SPIN}, {SPIN_MAX}\ns_cbranch_scc1 {LAST}Z")
        ag_ld(LB_)
        e(f"s_branch {LAST}W")
        e.label(LAST + "Z")
        for r in range(0, 8, 2): e(f"v_mov_b64 {vr(ACA+r,2)}, 0")
    e.label(LAST)
    e("s_waitcnt vmcnt(0) lgkmcnt(0)\ns_barrier")
    for J in range(8):
        for x in range(2): rd_m(J, x)()
    e(pubk); e(pubv)
    e(f"s_add_u32 s{S_KVM}, s{S_KVM}, 0x20000")
    for r in range(0, 8, 2): e(z(ACB + r))
    e("s_waitcnt lgkmcnt(0)")
    for J in range(8):
        for t in range(2): e(smf(ACA + 4 * t, MEMA + 4 * J, FRAG[("k", J, t)]))
    for i, m in enumerate(mv):
        e(m)
        if 2 <= i < 8: e((post_dup(ACA, KP) + post_dup(ACA + 4, KP + 1))[i - 2])
        if i == 8: e(pubk)
    e.nop(8)
    vpost()
    e(pubv)
    if not cfg.get("nofl"):
        e("s_waitcnt vmcnt(0) lgkmcnt(0)\ns_barrier")
        e(f"v_mov_b32 v{T0}, 64\ns_mov_b64 exec, s[{S_W0M}:{S_W0M+1}]")
        e(f"buffer_store_dword v{T0}, off, {WS}, s{S_CF} sc1")
    elif cfg.get("gstamp"): e(f"s_waitcnt vmcnt(0)\ns_mov_b64 exec, s[{S_W0M}:{S_W0M+1}]")
    if cfg.get("gstamp"):
        e(f"s_memrealtime s[84:85]\ns_memtime s[86:87]\ns_waitcnt lgkmcnt(0)\ns_sub_u32 s86, s86, s16\nv_mov_b32 v24, s86\nv_mov_b32 v20, s3\nv_mov_b32 v21, s18\nv_mov_b32 v22, s84\nv_mov_b32 v23, s69")
        e(f"s_lshl_b32 s{S_TMP}, s{S_H}, 4\ns_add_u32 s{S_TMP}, s{S_TMP}, {WS_STAMP + 0x10000}")
        if cfg.get("stepst"):
            for k in range(12): e(f"v_mov_b32 v{30+k}, s{20+k}")
            e(f"s_lshl_b32 s{S_TMP2}, s{S_H}, 6\ns_add_u32 s{S_TMP2}, s{S_TMP2}, {WS_STAMP + 0x11000}")
            for k in range(3): e(f"buffer_store_dwordx4 v[{30+4*k}:{33+4*k}], off, {WS}, s{S_TMP2} offset:{16*k}")
        e(f"buffer_store_dwordx4 v[20:23], off, {WS}, s{S_TMP}\nbuffer_store_dword v24, off, {WS}, s{S_TMP} offset:1024")
    if cfg.get("dbgt"):
        for k, r in enumerate(("s69", "s18", "s84")):
            e(f"s_sub_u32 s{S_TMP}, {r}, s3\nv_mov_b32 v20, s{S_TMP}\nv_mov_b32 v21, {8 + 4*k}\nglobal_atomic_umax v21, v20, s[{S_DBG}:{S_DBG+1}]")
        e(f"v_mov_b32 v20, s60\nv_mov_b32 v21, 28\nglobal_atomic_or v21, v20, s[{S_DBG}:{S_DBG+1}]")
        e(f"v_mov_b32 v20, s86\nv_mov_b32 v21, 24\nglobal_atomic_umax v21, v20, s[{S_DBG}:{S_DBG+1}]")
    e("s_branch KEND")
```
